```python
import torch

def _softmax(x, axis=-1):
    return torch.softmax(x, dim=axis)

def _gelu(x):
    return torch.nn.functional.gelu(x, approximate='tanh')

def _silu(x):
    return torch.nn.functional.silu(x)

def _sigmoid(x):
    return torch.sigmoid(x)

def _layernorm(x, axis=-1, eps=1e-05):
    m = x.mean(dim=axis, keepdim=True)
    v = x.var(dim=axis, keepdim=True, unbiased=False)
    return (x - m) / torch.sqrt(v + eps)

def _scatter_add(tgt, idx, src, axis=0):
    return tgt.clone().index_add_(axis, idx, src)

def _segment_sum(src, seg, n):
    out = torch.zeros((n,) + src.shape[1:], dtype=src.dtype)
    return out.index_add_(0, seg, src)

def _pad(x, pw):
    flat = tuple((v for pair in reversed(pw) for v in pair))
    return torch.nn.functional.pad(x, flat)
kernel_name = 'adaLN_cond__sliding_block_cached__geglu_ffn__prompt'

def setup_inputs():

    _w = lambda a: (lambda t: t.to(torch.bfloat16) if t.is_floating_point() else t)(torch.as_tensor(a))

    def _A_setup():
        B, Sq, D = (1, 2048, 512)
        Hq, Hkv, Sk, Dh = (32, 8, 2048, 128)
        assert Hq % Hkv == 0, (Hq, Hkv)
        return {'x': _w((lambda *s: torch.randn(*s, dtype=torch.bfloat16) * 0.1)(B, Sq, D)), 'k_cache': _w((lambda *s: torch.randn(*s, dtype=torch.bfloat16) * 0.8)(B, Hkv, Sk, Dh)), 'v_cache': _w((lambda *s: torch.randn(*s, dtype=torch.bfloat16) * 1.6)(B, Hkv, Sk, Dh)), 'wq': _w((lambda *s: torch.randn(*s, dtype=torch.bfloat16) * 0.8)(D, Hq * Dh) * D ** (-0.5)), 'wo': _w((lambda *s: torch.randn(*s, dtype=torch.bfloat16) * 1.6)(Hq * Dh, D) * (Hq * Dh) ** (-0.5))}
    _A_in = _A_setup()

    def _B_setup():
        B, S, D, F = (1, 2048, 512, 1792)
        return {'x': _w((lambda *s: torch.randn(*s, dtype=torch.bfloat16) * 0.1)(B, S, D)), 'w_gate': _w((lambda *s: torch.randn(*s, dtype=torch.bfloat16) * 0.2)(D, F)), 'w_up': _w((lambda *s: torch.randn(*s, dtype=torch.bfloat16) * 0.2)(D, F)), 'w_down': _w((lambda *s: torch.randn(*s, dtype=torch.bfloat16) * 0.2)(F, D))}
    _B_in = _B_setup()
    return {'A_x': _A_in['x'], 'A_k_cache': _A_in['k_cache'], 'A_v_cache': _A_in['v_cache'], 'A_wq': _A_in['wq'], 'A_wo': _A_in['wo'], 'B_x': _B_in['x'], 'B_w_gate': _B_in['w_gate'], 'B_w_up': _B_in['w_up'], 'B_w_down': _B_in['w_down'], 'c': _w((lambda *s: torch.randn(*s, dtype=torch.bfloat16) * 0.8)(1, 512) * 8.0), 'w_mod': _w((lambda *s: torch.randn(*s, dtype=torch.bfloat16) * 0.8)(512, 6 * 512) * 512 ** (-0.5) * 8.0)}

def reference(A_x, A_k_cache, A_v_cache, A_wq, A_wo, B_x, B_w_gate, B_w_up, B_w_down, c, w_mod):

    def _A_ref(x, k_cache, v_cache, wq, wo):
        B, Sq, D = x.shape
        Hq, Dh = (32, 128)
        Hkv, Sk = (k_cache.shape[1], k_cache.shape[2])
        W = min(4096, max(256, Sk // 4))
        rep = Hq // Hkv
        q = (lambda x, *d: x.permute(*d))((x @ wq).reshape(B, Sq, Hq, Dh), 0, 2, 1, 3)
        k = (lambda x, n, axis: torch.repeat_interleave(x, n, dim=axis))(k_cache[:, :, Sk - W:, :], rep, axis=1)
        v = (lambda x, n, axis: torch.repeat_interleave(x, n, dim=axis))(v_cache[:, :, Sk - W:, :], rep, axis=1)
        scores = torch.einsum('bhqd,bhkd->bhqk', q, k) * Dh ** (-0.5)
        p = _softmax(scores, axis=-1)
        o = torch.einsum('bhqk,bhkd->bhqd', p, v)
        return (lambda x, *d: x.permute(*d))(o, 0, 2, 1, 3).reshape(B, Sq, Hq * Dh) @ wo

    def _B_ref(x, w_gate, w_up, w_down):
        return _gelu(x @ w_gate) * (x @ w_up) @ w_down
    x = A_x
    mod = (_silu(c) @ w_mod).reshape(c.shape[0], 6, 1, -1)
    sa, ca, ga, sb, cb, gb = (mod[:, 0].clone(), mod[:, 1].clone(), mod[:, 2].clone(), mod[:, 3].clone(), mod[:, 4].clone(), mod[:, 5].clone())
    h = _layernorm(x, axis=-1) * (1 + ca) + sa
    x = x + ga * _A_ref(h, A_k_cache, A_v_cache, A_wq, A_wo)
    h = _layernorm(x, axis=-1) * (1 + cb) + sb
    x = x + gb * _B_ref(h, B_w_gate, B_w_up, B_w_down)
    return x
```

```python
import re

def v(i, n=1): return f"v{i}" if n == 1 else f"v[{i}:{i+n-1}]"
def a(i, n=1): return f"a{i}" if n == 1 else f"a[{i}:{i+n-1}]"
def s(i, n=1): return f"s{i}" if n == 1 else f"s[{i}:{i+n-1}]"

_REG = re.compile(r"^-?\|?(?:abs\()?([vas])(?:(\d+)|\[(\d+):(\d+)\])\)?\|?$")
def regs_of(tok):
    tok = tok.strip()
    if tok in ("vcc",): return {("s", 106), ("s", 107)}
    if tok == "vcc_lo": return {("s", 106)}
    if tok == "vcc_hi": return {("s", 107)}
    if tok == "exec": return {("s", 126), ("s", 127)}
    if tok == "m0": return {("s", 124)}
    m = _REG.match(tok)
    if not m: return set()
    f = m.group(1)
    if m.group(2) is not None: lo = hi = int(m.group(2))
    else: lo, hi = int(m.group(3)), int(m.group(4))
    return {(f, i) for i in range(lo, hi + 1)}

def split_ops(rest):
    ops, depth, cur = [], 0, ""
    for ch in rest + ",":
        if ch in "[(": depth += 1
        elif ch in "])": depth -= 1
        if ch == "," and depth == 0:
            ops.append(cur.strip()); cur = ""
        else: cur += ch
    ops = [o for o in ops if o]
    mods = []
    out = []
    for o in ops:
        p = o.split()
        out.append(p[0]); mods += p[1:]
    return out, mods

TRANS = ("v_exp_f32", "v_log_f32", "v_rcp_f32", "v_rsq_f32", "v_sqrt_f32", "v_sin_f32", "v_cos_f32", "v_rcp_iflag_f32")

class Ins:
    __slots__ = ("text", "mn", "ops", "mods", "rd", "wr", "kind", "passes", "srcC", "srcAB", "token", "label", "target", "nops", "dpp", "wide_store")
    def __init__(self, text, token=None):
        self.text = text.strip()
        self.token = token
        self.label = None; self.target = None; self.nops = 1; self.passes = 0
        self.srcC = set(); self.srcAB = set(); self.dpp = False; self.wide_store = set()
        t = self.text.split(";")[0].strip()
        sp = t.split(None, 1)
        self.mn = mn = sp[0]
        self.ops, self.mods = split_ops(sp[1]) if len(sp) > 1 else ([], [])
        ops = self.ops
        R = lambda idxs: set().union(*[regs_of(ops[i]) for i in idxs if i < len(ops)]) if idxs else set()
        n = len(ops)
        rd, wr = set(), set()
        base = re.sub(r"_(e32|e64|dpp|sdwa)$", "", mn)
        if mn.startswith("v_mfma"):
            self.kind = "mfma"
            wr = R([0]); self.srcAB = R([1, 2]); self.srcC = R([3]); rd = self.srcAB | self.srcC
            self.passes = 8 if "32x32x16" in mn else 4
        elif mn.startswith("v_"):
            self.kind = "trans" if base in TRANS else "valu"
            self.dpp = mn.endswith("_dpp") or any(m.startswith(("row_", "quad_perm", "wave_")) for m in self.mods)
            if base.startswith("v_cmp"):
                wr = R([0]); rd = R(range(1, n))
                if base.startswith("v_cmpx"): wr |= regs_of("exec")
            elif base in ("v_permlane32_swap_b32", "v_permlane16_swap_b32", "v_swap_b32"):
                wr = R([0, 1]); rd = R([0, 1]); self.kind = "permlane" if "permlane" in base else "valu"
            elif base in ("v_add_co_u32", "v_sub_co_u32", "v_subrev_co_u32", "v_addc_co_u32", "v_subb_co_u32", "v_div_scale_f32", "v_mad_u64_u32"):
                wr = R([0, 1]); rd = R(range(2, n))
            elif base in ("v_fmac_f32", "v_dot2c_f32_bf16", "v_pk_fmac_f16", "v_writelane_b32"):
                wr = R([0]); rd = R(range(0, n))
            elif base in ("v_readfirstlane_b32", "v_readlane_b32"):
                wr = R([0]); rd = R(range(1, n)); self.kind = "readlane"
            else:
                wr = R([0]); rd = R(range(1, n))
                if base == "v_cndmask_b32" and n == 3: rd |= regs_of("vcc")
                if base == "v_div_fmas_f32": rd |= regs_of("vcc")
                if self.dpp or "sdwa" in mn: rd |= R([0])
        elif mn.startswith("ds_"):
            self.kind = "ds"
            if mn.startswith(("ds_read", "ds_bpermute", "ds_permute", "ds_swizzle")):
                wr = R([0]); rd = R(range(1, n))
            elif "_rtn" in mn:
                wr = R([0]); rd = R(range(1, n))
            else:
                rd = R(range(0, n))
        elif mn.startswith(("buffer_", "global_")):
            self.kind = "vmem"
            lds = "lds" in self.mods or "_lds_" in mn
            if mn in ("buffer_wbl2", "buffer_inv"):
                pass
            elif "load" in mn and not lds:
                wr = R([0]); rd = R(range(1, n))
            elif "atomic" in mn and "sc0" in self.mods:
                if mn.startswith("buffer_"): wr = R([0]); rd = R(range(0, n))
                else: wr = R([0]); rd = R(range(1, n))
            else:
                rd = R(range(0, n))
                if lds: rd |= regs_of("m0")
                if "store" in mn and ("x4" in mn or "x3" in mn):
                    self.wide_store = R([0]) if mn.startswith("buffer_") else R([1])
        elif mn.startswith(("s_load", "s_buffer_load", "s_memtime", "s_memrealtime", "s_atomic")):
            self.kind = "smem"; wr = R([0]); rd = R(range(1, n))
        elif mn == "s_nop":
            self.kind = "nop"; self.nops = int(ops[0], 0) + 1
        elif mn in ("s_waitcnt", "s_barrier", "s_endpgm", "s_setprio", "s_sleep"):
            self.kind = "misc"
        elif mn.startswith(("s_branch", "s_cbranch")):
            self.kind = "branch"; self.target = ops[0]
        elif mn.startswith("s_"):
            self.kind = "salu"
            if mn.startswith("s_cmp") or mn.startswith("s_bitcmp"): rd = R(range(0, n))
            else:
                wr = R([0]); rd = R(range(1, n))
                if "saveexec" in mn: wr |= regs_of("exec")
                if mn in ("s_addk_i32", "s_mulk_i32"): rd |= R([0])
        else:
            raise ValueError("unknown instruction " + text)
        self.rd, self.wr = rd, wr

class Label:
    def __init__(self, name): self.name = name; self.kind = "label"; self.nops = 0; self.text = name + ":"
class Raw:
    def __init__(self, text): self.text = text; self.kind = "raw"; self.nops = 0

def isV(r): return r[0] in "va"

def need(p, c):
    n = 0
    pk, ck = p.kind, c.kind
    VALU = ("valu", "trans", "permlane", "readlane")
    if pk in VALU:
        wv = {r for r in p.wr if isV(r)}; ws = {r for r in p.wr if r[0] == "s"}
        if ck == "mfma" and wv & c.rd: n = max(n, 2)
        if ck == "permlane" and wv & c.rd: n = max(n, 2)
        if ck in VALU and c.dpp and wv & c.rd: n = max(n, 2)
        if ck == "readlane" and wv & c.rd: n = max(n, 1)
        if pk == "trans" and ck in VALU + ("mfma",) and ck != "trans" and wv & c.rd: n = max(n, 1)
        if pk == "trans" and ck in ("ds", "vmem") and wv & c.rd: n = max(n, 1)
        if ws:
            if ck == "vmem" and ws & c.rd: n = max(n, 5)
            if ck in VALU and ws & c.rd: n = max(n, 4 if ck == "readlane" or c.mn.startswith(("v_div_fmas", "v_writelane")) else 2)
            if ck == "salu" and ws & c.rd: n = max(n, 1)
            if ck == "branch" and c.mn in ("s_cbranch_vccz", "s_cbranch_vccnz") and ws & regs_of("vcc"): n = max(n, 5)
            if ws & regs_of("exec"):
                if ck == "mfma" or ck == "permlane" or ck == "readlane": n = max(n, 4)
                if ck in VALU and c.dpp: n = max(n, 5)
        if "sdwa" in p.mn and ck in VALU and wv & (c.rd | c.wr): n = max(n, 1)
    if pk == "salu":
        if ("s", 124) in p.wr and ck == "vmem" and ("s", 124) in c.rd: n = max(n, 1)
    if pk == "vmem" and p.wide_store:
        if p.wide_store & c.wr: n = max(n, 2 if ck in VALU else 1)
    if pk == "mfma":
        P = p.passes
        tab = {4: (6, 8, 3), 8: (10, 12, 7)}[P]
        if ck == "mfma":
            if p.wr & c.srcAB: n = max(n, tab[1])
            if p.wr & c.srcC and not (p.wr == c.srcC and c.passes == P): n = max(n, tab[0])
            if p.wr & c.wr and not (p.wr == c.wr and c.passes == P and p.wr == c.srcC): n = max(n, tab[0])
        elif ck in VALU:
            if p.wr & (c.rd | c.wr): n = max(n, tab[1])
            if p.srcC & c.wr: n = max(n, tab[2])
        elif ck in ("ds", "vmem"):
            if p.wr & (c.rd | c.wr): n = max(n, tab[1])
    return n

class Kernel:
    def __init__(self, name, grid, block, lds, vgpr=256, agpr=0, sgpr=102):
        self.name, self.grid, self.block, self.lds = name, grid, block, lds
        self.vgpr, self.agpr, self.sgpr = vgpr, agpr, sgpr
        self.items = []
        self.nlab = 0
        self.vm = {}; self.lg = {}
        self.smem_pending = False
        self.auto = True
    def _emit_wait(self, vm=None, lg=None):
        parts = []
        if vm is not None:
            vm = min(vm, 63); parts.append(f"vmcnt({vm})")
            self.vm = {k: p for k, p in self.vm.items() if p < vm}
        if lg is not None:
            lg = min(lg, 15); parts.append(f"lgkmcnt({lg})")
            self.lg = {k: p for k, p in self.lg.items() if p < lg}
            if lg == 0: self.smem_pending = False
        if parts: self.items.append(Ins("s_waitcnt " + " ".join(parts)))
    def wait(self, *tokens):
        vm = [self.vm[t] for t in tokens if t in self.vm]
        lg = [self.lg[t] for t in tokens if t in self.lg]
        self._emit_wait(min(vm) if vm else None, (0 if self.smem_pending else min(lg)) if lg else None)
    def wait_all(self, vm=True, lg=True):
        self._emit_wait(0 if vm else None, 0 if lg else None)
    def __call__(self, line, token=None):
        ins = Ins(line, token)
        if ins.mn == "s_waitcnt":
            m = re.search(r"vmcnt\((\d+)\)", line); vm = int(m.group(1)) if m else None
            m = re.search(r"lgkmcnt\((\d+)\)", line); lg = int(m.group(1)) if m else None
            self._emit_wait(vm, lg); return
        if self.auto:
            touched = ins.rd | ins.wr
            vm = [p for k, p in self.vm.items() if k in touched]
            lg = [p for k, p in self.lg.items() if k in touched]
            if vm or lg:
                self._emit_wait(min(vm) if vm else None, (0 if self.smem_pending else min(lg)) if lg else None)
        self.items.append(ins)
        if ins.kind == "vmem":
            self.vm = {k: p + 1 for k, p in self.vm.items()}
            for r in ins.wr: self.vm[r] = 0
            if token: self.vm[token] = 0
        elif ins.kind == "ds":
            self.lg = {k: p + 1 for k, p in self.lg.items()}
            for r in ins.wr: self.lg[r] = 0
            if token: self.lg[token] = 0
        elif ins.kind == "smem":
            self.smem_pending = True
            self.lg = {k: p + 1 for k, p in self.lg.items()}
            for r in ins.wr: self.lg[r] = 0
    def label(self, l): self.items.append(Label(l))
    def raw(self, t): self.items.append(Raw(t))
    def align(self, p2): self.items.append(Raw(f".p2align {p2}"))
    def newlabel(self, base="L"):
        self.nlab += 1
        return f"{base}_{self.name}_{self.nlab}"
    def comment(self, c): self.items.append(Raw("    ; " + c))
    @staticmethod
    def _merge(x, y):
        out = dict(x)
        for k, p in y.items(): out[k] = min(p, out[k]) if k in out else p
        return out
    def loop(self, counter, n, body, align=None):
        self(f"s_mov_b32 s{counter}, 0")
        lab = self.newlabel("LOOP")
        st = (dict(self.vm), dict(self.lg))
        mark = len(self.items); nl = self.nlab
        for it in range(10):
            del self.items[mark:]; self.nlab = nl
            self.vm, self.lg = dict(st[0]), dict(st[1])
            if align: self.align(align)
            self.label(lab)
            body()
            self(f"s_add_u32 s{counter}, s{counter}, 1")
            self(f"s_cmp_lt_u32 s{counter}, {n}")
            self(f"s_cbranch_scc1 {lab}")
            new = (self._merge(st[0], self.vm), self._merge(st[1], self.lg))
            if new == st: break
            st = new
        else:
            raise RuntimeError("loop wait state did not converge")
    def finalize(self):
        items = self.items
        out = []
        W = 24
        def window(seq):
            res = []; d = 0
            for it in reversed(seq):
                if it.kind in ("label", "raw"): continue
                res.append((it, d))
                d += it.nops
                if d > W: break
            return res
        nins = 0
        for it in items:
            if it.kind not in ("label", "raw"):
                req = 0
                for p, d in window(out):
                    req = max(req, need(p, it) - d)
                while req > 0:
                    c = min(req, 16); out.append(Ins(f"s_nop {c-1}")); req -= c; nins += 1
            out.append(it)
        changed = True
        while changed:
            changed = False
            pos = {it.name: i for i, it in enumerate(out) if it.kind == "label"}
            for i, it in enumerate(out):
                if it.kind == "branch" and it.target in pos:
                    win = window(out[:i + 1])
                    d2 = 0; req = 0
                    for c in out[pos[it.target]:pos[it.target] + 60]:
                        if c.kind in ("label", "raw"): continue
                        for p, d in win: req = max(req, need(p, c) - d - d2)
                        d2 += c.nops
                        if d2 > W or c.kind == "branch" and c.mn == "s_branch": break
                    if req > 0:
                        out.insert(i, Ins(f"s_nop {min(req,16)-1}")); changed = True; nins += 1
                        break
        self.items = out
        self.n_nops = nins
        mv = ma = ms = -1
        for it in out:
            if it.kind in ("label", "raw"): continue
            for f, i in it.rd | it.wr:
                if f == "v": mv = max(mv, i)
                elif f == "a": ma = max(ma, i)
                elif i < 102: ms = max(ms, i)
        assert mv < self.vgpr, (self.name, "vgpr", mv, self.vgpr)
        assert ma < self.agpr or ma < 0, (self.name, "agpr", ma, self.agpr)
        assert ms < self.sgpr, (self.name, "sgpr", ms)
        self.used = (mv + 1, ma + 1, ms + 1)
    def text(self):
        out = [f".globl {self.name}", ".p2align 8", f".type {self.name},@function", f"{self.name}:"]
        for it in self.items:
            out.append(it.text if it.kind in ("label", "raw") else "    " + it.text)
        return "\n".join(out) + "\n"
    def desc(self):
        acc = (self.vgpr + 3) // 4 * 4
        nfv = acc + self.agpr if self.agpr else self.vgpr
        return f""".p2align 6
.amdhsa_kernel {self.name}
  .amdhsa_next_free_vgpr {nfv}
  .amdhsa_next_free_sgpr {self.sgpr}
  .amdhsa_accum_offset {acc}
  .amdhsa_group_segment_fixed_size 0
  .amdhsa_kernarg_size 112
  .amdhsa_user_sgpr_count 2
  .amdhsa_user_sgpr_kernarg_segment_ptr 1
  .amdhsa_system_sgpr_workgroup_id_x 1
  .amdhsa_float_denorm_mode_32 3
  .amdhsa_float_denorm_mode_16_64 3
.end_amdhsa_kernel
"""
    def launch_line(self):
        g, b = self.grid, self.block
        return f"; @launch kernel={self.name} grid=({g},1,1) block=({b},1,1) lds={self.lds}"
    def srd(self, d, ptr, nbytes, off=0):
        if off:
            self(f"s_add_u32 s{d}, s{ptr}, {off:#x}"); self(f"s_addc_u32 s{d+1}, s{ptr+1}, 0"); self(f"s_and_b32 s{d+1}, s{d+1}, 0xffff")
        else:
            self(f"s_mov_b32 s{d}, s{ptr}"); self(f"s_and_b32 s{d+1}, s{ptr+1}, 0xffff")
        self(f"s_mov_b32 s{d+2}, {nbytes:#x}"); self(f"s_mov_b32 s{d+3}, 0x20000")

def emit(kernels, launches=None, header=""):
    launches = launches or kernels
    out = header
    out += "\n".join(k.launch_line() for k in launches) + "\n"
    out += '.amdgcn_target "amdgcn-amd-amdhsa--gfx950"\n.text\n'
    for k in kernels:
        k.finalize()
        out += k.text()
    out += '.section .rodata,"a"\n'
    for k in kernels: out += k.desc()
    return out

def interleave(main, fill, start=0):
    out = []
    n = len(main); m = len(fill)
    j = 0
    for i, x in enumerate(main):
        out.append(x)
        tgt = (i + 1) * m // n
        while j < tgt: out.append(fill[j]); j += 1
    out += fill[j:]
    return out
```

```python
import sys, struct, math
from asmlib import *

def f32(x): return "0x%08x" % struct.unpack("<I", struct.pack("<f", x))[0]
LOG2E = 1.4426950408889634
CS = struct.unpack("<f", struct.pack("<f", 128 ** -0.5))[0]

A_X, A_K, A_V, A_WQ, A_WO, B_X, A_WG, A_WU, A_WD, A_C, A_WM, A_OUT, A_DBG, A_WS = [8 * i for i in range(14)]
WS_MOD = 0x0
WS_H = 0x200000
WS_P = 0x400000
WS_X1 = 0x1400000
WS_H2 = 0x1600000
WS_ACT = 0x1800000
WS_BYTES = 0x10000000

def wave_id(k, sdst, vtmp):
    k(f"v_lshrrev_b32 v{vtmp}, 6, v0")
    k(f"v_readfirstlane_b32 s{sdst}, v{vtmp}")

def rowsum_8(k, val, tmp):
    k(f"v_add_f32_dpp v{val}, v{val}, v{val} row_ror:8 row_mask:0xf bank_mask:0xf")
    k(f"v_mov_b32 v{tmp}, v{val}")
    k(f"v_permlane16_swap_b32 v{val}, v{tmp}")
    k(f"v_add_f32 v{val}, v{val}, v{tmp}")
    k(f"v_mov_b32 v{tmp}, v{val}")
    k(f"v_permlane32_swap_b32 v{val}, v{tmp}")
    k(f"v_add_f32 v{val}, v{val}, v{tmp}")

def rnd(k, d, sreg):
    k(f"v_cvt_pk_bf16_f32 v{d}, 0, v{sreg}")

def gen_mod():
    k = Kernel("mod_kernel", 96, 256, 2048, vgpr=72, sgpr=40)
    k("s_cmp_ge_u32 s2, 96"); k("s_cbranch_scc1 END_mod")
    k(f"s_load_dwordx4 s[4:7], s[0:1], {A_C}")
    k(f"s_load_dwordx2 s[28:29], s[0:1], {A_WS}")
    k("v_and_b32 v1, 3, v0")
    k("v_lshrrev_b32 v2, 2, v0")
    k("v_mul_u32_u24 v3, 6144, v2")
    k("v_lshl_add_u32 v3, v1, 4, v3")
    k("v_lshlrev_b32 v4, 1, v2")
    wave_id(k, 30, 5)
    k.srd(8, 4, 1024); k.srd(12, 6, 512 * 6144); k.srd(16, 28, 12288, WS_MOD)
    k("s_lshl_b32 s20, s2, 6")
    for i in range(8):
        k(f"buffer_load_ushort v{8+i}, v4, s[8:11], 0 offen offset:{128*i}")
    for i in range(8):
        k(f"buffer_load_dwordx4 {v(32+4*i,4)}, v3, s[12:15], s20 offen")
        if i < 7: k(f"s_add_u32 s20, s20, {64*6144}")
    k(f"s_mov_b32 s21, {f32(-LOG2E)}")
    k(f"s_mov_b32 s22, {f32(126.0)}")
    k("s_mov_b32 s23, 0xffff0000")
    for i in range(8):
        x = 8 + i
        k(f"v_lshlrev_b32 v{x}, 16, v{x}")
        k(f"v_mul_f32 v5, s21, v{x}")
        k("v_min_f32 v5, s22, v5")
        k("v_exp_f32 v5, v5")
        k("v_add_f32 v5, 1.0, v5")
        k("v_rcp_f32 v6, v5")
        k(f"v_mul_f32 v7, v{x}, v6")
        k(f"v_fma_f32 v5, -v7, v5, v{x}")
        k("v_fma_f32 v7, v5, v6, v7")
        rnd(k, x, 7)
    for j in range(8): k(f"v_mov_b32 v{16+j}, 0")
    for i in range(8):
        for q in range(4):
            r = 32 + 4 * i + q
            k(f"v_lshlrev_b32 v5, 16, v{r}")
            k(f"v_and_b32 v6, s23, v{r}")
            k(f"v_fmac_f32 v{16+2*q}, v5, v{8+i}")
            k(f"v_fmac_f32 v{17+2*q}, v6, v{8+i}")
    for rot in (4, 8):
        for j in range(8):
            k(f"v_add_f32_dpp v{16+j}, v{16+j}, v{16+j} row_ror:{rot} row_mask:0xf bank_mask:0xf")
    k("v_lshrrev_b32 v5, 4, v0"); k("v_lshlrev_b32 v5, 7, v5"); k("v_lshl_add_u32 v5, v1, 5, v5")
    k(f"ds_write_b128 v5, {v(16,4)}", token="w"); k(f"ds_write_b128 v5, {v(20,4)} offset:16", token="w")
    k.wait("w"); k("s_barrier")
    k("s_cmp_lg_u32 s30, 0"); k("s_cbranch_scc1 END_mod")
    k("v_and_b32 v5, 31, v0"); k("v_lshlrev_b32 v5, 2, v5")
    for i in range(16): k(f"ds_read_b32 v{32+i}, v5 offset:{128*i}")
    for st in (1, 2, 4, 8):
        for i in range(0, 16, 2 * st): k(f"v_add_f32 v{32+i}, v{32+i}, v{32+i+st}")
    rnd(k, 32, 32)
    k("s_lshl_b32 s20, s2, 7")
    k("v_cmp_gt_u32 vcc, 32, v0")
    k("s_and_saveexec_b64 s[24:25], vcc")
    k("buffer_store_dword v32, v5, s[16:19], s20 offen")
    k.label("END_mod"); k("s_endpgm")
    return k

def gen_ln(second):
    name = "ln2_kernel" if second else "ln1_kernel"
    k = Kernel(name, 256, 256, 256, vgpr=128, sgpr=48)
    E = "END_" + name
    k("s_cmp_ge_u32 s2, 256"); k(f"s_cbranch_scc1 {E}")
    k(f"s_load_dwordx2 s[4:5], s[0:1], {A_X}")
    k(f"s_load_dwordx2 s[6:7], s[0:1], {A_WS}")
    k("v_and_b32 v1, 7, v0")
    k("v_lshrrev_b32 v2, 3, v0")
    k("v_lshrrev_b32 v6, 6, v0")
    k("v_and_b32 v7, 7, v2")
    k("v_lshl_add_u32 v7, v6, 4, v7")
    k("v_lshlrev_b32 v3, 9, v7"); k("v_lshl_add_u32 v3, v1, 4, v3")
    k("v_lshlrev_b32 v4, 10, v1"); k("v_lshl_add_u32 v4, v7, 4, v4")
    k("v_lshlrev_b32 v5, 5, v7")
    k("v_lshlrev_b32 v8, 4, v1"); k("v_lshl_add_u32 v9, v6, 2, v8")
    k.srd(8, 4, 2048 * 1024); k.srd(12, 6, WS_BYTES)
    k("s_lshl_b32 s20, s2, 13")
    k("s_lshr_b32 s21, s2, 2"); k("s_lshl_b32 s21, s21, 15"); k("s_and_b32 s22, s2, 3"); k("s_lshl_b32 s22, s22, 7")
    k("s_add_u32 s21, s21, s22")
    X = 16
    for i in range(2): k(f"buffer_load_dwordx4 {v(X+4*i,4)}, v4, s[8:11], s20 offen offset:{128*i}")
    PB = 64
    if second:
        for g in range(8):
            for i in range(2):
                k(f"s_add_u32 s23, s21, {WS_P + g*0x200000 + 4096*i:#x}")
                k(f"buffer_load_dwordx4 {v(PB+8*g+4*i,4)}, v3, s[12:15], s23 offen")
    k("s_mov_b32 s24, 0xffff0000")
    XF = 24
    MV = 40
    def load_mod(m):
        k(f"s_mov_b32 s23, {WS_MOD + m*2048}")
        for i in range(2):
            for hh in range(2):
                k(f"buffer_load_dwordx4 {v(MV+8*i+4*hh,4)}, v5, s[12:15], s23 offen offset:{256*i+16*hh}")
    def unpack(dst, src):
        k(f"v_lshlrev_b32 v{dst}, 16, v{src}"); k(f"v_and_b32 v{dst+1}, s24, v{src}")
    if second: load_mod(2)
    for q in range(8): unpack(XF + 2 * q, X + q)
    if second:
        for q in range(8):
            unpack(10, PB + q)
            for g in range(1, 8):
                unpack(12, PB + 8 * g + q)
                k("v_add_f32 v10, v10, v12"); k("v_add_f32 v11, v11, v13")
            for e in range(2):
                rnd(k, 10 + e, 10 + e)
                k(f"v_mul_f32 v{10+e}, v{10+e}, v{MV+2*q+e}")
                rnd(k, 10 + e, 10 + e)
                k(f"v_add_f32 v{10+e}, v{10+e}, v{XF+2*q+e}")
            k(f"v_cvt_pk_bf16_f32 v{X+q}, v10, v11")
            unpack(XF + 2 * q, X + q)
        for i in range(2):
            k(f"s_add_u32 s23, s21, {WS_X1 + 4096*i:#x}")
            k(f"buffer_store_dwordx4 {v(X+4*i,4)}, v3, s[12:15], s23 offen")
    load_mod(4 if second else 1)
    SV = 64
    k(f"s_mov_b32 s23, {WS_MOD + (3 if second else 0)*2048}")
    for i in range(2):
        for hh in range(2):
            k(f"buffer_load_dwordx4 {v(SV+8*i+4*hh,4)}, v5, s[12:15], s23 offen offset:{256*i+16*hh}")
    k(f"v_add_f32 v10, v{XF}, v{XF+1}")
    for e in range(2, 16): k(f"v_add_f32 v10, v10, v{XF+e}")
    def allreduce(off):
        rowsum_8(k, 10, 11)
        k(f"ds_write_b32 v9, v10 offset:{off}", token="w"); k.wait("w"); k("s_barrier")
        k(f"ds_read_b128 {v(12,4)}, v8 offset:{off}")
        k("v_add_f32 v12, v12, v13"); k("v_add_f32 v14, v14, v15"); k("v_add_f32 v10, v12, v14")
        k(f"v_mul_f32 v10, {f32(1/512)}, v10")
    allreduce(0)
    k("v_mov_b32 v56, v10")
    k("v_mov_b32 v10, 0")
    for e in range(16):
        k(f"v_sub_f32 v11, v{XF+e}, v56"); k("v_fmac_f32 v10, v11, v11")
    allreduce(128)
    rnd(k, 10, 10)
    k(f"v_add_f32 v10, {f32(1e-5)}, v10"); rnd(k, 10, 10)
    k("v_sqrt_f32 v10, v10"); rnd(k, 10, 10)
    k("v_rcp_f32 v57, v10")
    rnd(k, 56, 56)
    for e in range(16):
        x = XF + e
        k(f"v_sub_f32 v{x}, v{x}, v56"); rnd(k, x, x)
        k(f"v_mul_f32 v{x}, v{x}, v57"); rnd(k, x, x)
        k(f"v_add_f32 v{MV+e}, 1.0, v{MV+e}"); rnd(k, MV + e, MV + e)
        k(f"v_mul_f32 v{x}, v{x}, v{MV+e}"); rnd(k, x, x)
        k(f"v_add_f32 v{x}, v{x}, v{SV+e}")
    for q in range(8): k(f"v_cvt_pk_bf16_f32 v{80+q}, v{XF+2*q}, v{XF+2*q+1}")
    for i in range(2):
        k(f"s_add_u32 s23, s21, {(WS_H2 if second else WS_H) + 4096*i:#x}")
        k(f"buffer_store_dwordx4 {v(80+4*i,4)}, v3, s[12:15], s23 offen")
    k.label(E); k("s_endpgm")
    return k

def lane_tr_parts(k, lane, r, c2, gn, h, tmp):
    k(f"v_bfe_u32 v{r}, v{lane}, 2, 2")
    k(f"v_and_b32 v{c2}, 1, v{lane}"); k(f"v_lshlrev_b32 v{c2}, 1, v{c2}")
    k(f"v_bfe_u32 v{tmp}, v{lane}, 1, 1"); k(f"v_or_b32 v{c2}, v{c2}, v{tmp}")
    k(f"v_bfe_u32 v{gn}, v{lane}, 4, 1")
    k(f"v_lshrrev_b32 v{h}, 5, v{lane}")

def gen_attn(mode="exact"):
    k = Kernel("attn_kernel", 256, 512, 163840, vgpr=256, sgpr=64)
    L_K, L_H, L_V, L_W = 0, 32768, 32768, 98304
    O = 0; S = 64; Q = 128; P = 160; KF = 176; VF = 192
    ACC = 0; AF = 64; BF = 80
    VK = 208
    VV = 216
    VW = 220
    VLIN = 222
    VD0, VD1 = 223, 224
    VDK, VDV = 225, 226
    VL16 = 227
    M, Lsum, MO, AL, T0, T1, T2, T3, MG = 228, 229, 230, 231, 232, 233, 234, 235, 236
    TT = 240
    sW, sG, sRB = 28, 29, 30
    sKS, sT0, sT1, sRING = 31, 32, 33, 34
    sC, sL2E, sCL = 35, 36, 37
    sST, sKVB = 38, 39
    k("s_cmp_ge_u32 s2, 256"); k("s_cbranch_scc1 END_attn")
    k(f"s_load_dwordx8 s[40:47], s[0:1], {A_K}")
    k(f"s_load_dwordx2 s[48:49], s[0:1], {A_WS}")
    wave_id(k, sW, TT)
    k(f"v_and_b32 v{TT}, 63, v0")
    k(f"v_lshlrev_b32 v{VL16}, 4, v{TT}")
    k(f"s_and_b32 s{sG}, s2, 7"); k(f"s_lshr_b32 s{sRB}, s2, 3")
    k.srd(8, 44, 512 * 8192); k.srd(12, 40, 8 * 2048 * 256); k.srd(16, 42, 8 * 2048 * 256)
    k.srd(20, 46, 4096 * 1024); k.srd(24, 48, WS_BYTES)
    k(f"v_lshrrev_b32 v{TT+1}, 3, v{TT}")
    k(f"v_bfe_u32 v{TT+2}, v{TT}, 4, 1"); k(f"v_lshlrev_b32 v{TT+2}, 2, v{TT+2}")
    k(f"v_and_b32 v{TT+3}, 7, v{TT}"); k(f"v_xor_b32 v{TT+3}, v{TT+3}, v{TT+2}")
    k(f"v_lshlrev_b32 v{TT+3}, 4, v{TT+3}")
    k(f"s_lshl_b32 s{sT0}, s{sG}, 10"); k(f"s_lshl_b32 s{sT1}, s{sW}, 7"); k(f"s_add_u32 s{sT0}, s{sT0}, s{sT1}")
    k(f"v_lshl_add_u32 v{VD0}, v{TT+1}, 13, v{TT+3}"); k(f"v_add_u32 v{VD0}, s{sT0}, v{VD0}")
    k(f"v_add_u32 v{VD1}, {8*8192-1024}, v{VD0}")
    k(f"s_lshl_b32 s{sRING}, s{sW}, 13"); k(f"s_add_u32 s{sRING}, s{sRING}, {L_W}")
    for j in range(4):
        k(f"s_lshl_b32 s{sT0}, s{sW}, 2"); k(f"s_add_u32 s{sT0}, s{sT0}, {j}")
        k(f"s_add_u32 s{sT1}, s{sT0}, s{sRB}"); k(f"s_and_b32 s{sT1}, s{sT1}, 31"); k(f"s_lshl_b32 s{sT1}, s{sT1}, 10")
        k(f"s_lshl_b32 s{sKS}, s{sRB}, 16"); k(f"s_add_u32 s{sT1}, s{sT1}, s{sKS}"); k(f"s_add_u32 s{sT1}, s{sT1}, {WS_H:#x}")
        k(f"s_lshl_b32 s{sT0}, s{sT0}, 10"); k(f"s_add_u32 m0, s{sT0}, {L_H}")
        k(f"buffer_load_dwordx4 v{VL16}, s[24:27], s{sT1} offen lds", token="H")
        k(f"s_add_u32 m0, s{sT0}, {L_H+32768}"); k(f"s_add_u32 s{sT1}, s{sT1}, 32768")
        k(f"buffer_load_dwordx4 v{VL16}, s[24:27], s{sT1} offen lds", token="H")
        if j == 0:
            pass
    def w_dma(slot, srd, shift):
        k(f"s_lshl_b32 s{sT0}, s{sKS}, {shift}")
        k(f"s_add_u32 m0, s{sRING}, {2048*slot}")
        k(f"s_add_u32 s{sKS}, s{sKS}, 1")
        k(f"buffer_load_dwordx4 v{VD0}, s[{srd}:{srd+3}], s{sT0} offen lds")
        k(f"s_and_b32 s{sKS}, s{sKS}, 31")
        k(f"buffer_load_dwordx4 v{VD1}, s[{srd}:{srd+3}], s{sT0} offen offset:1024 lds", token=f"W{slot}")
    k(f"s_mov_b32 s{sKS}, s{sRB}")
    for sl in range(3): w_dma(sl, 8, 17)
    r_, c2, gn, h_, tm = TT + 4, TT + 5, TT + 6, TT + 7, TT + 8
    lane_tr_parts(k, TT, r_, c2, gn, h_, tm)
    k(f"v_lshl_add_u32 v{tm}, v{h_}, 3, v{r_}"); k(f"v_lshlrev_b32 v{VW}, 7, v{tm}")
    k(f"v_lshl_add_u32 v{tm+1}, v{gn}, 2, v{c2}")
    k(f"v_lshl_add_u32 v{VW}, v{tm+1}, 3, v{VW}")
    k(f"v_lshrrev_b32 v{tm}, 1, v{r_}"); k(f"v_lshl_add_u32 v{VW}, v{tm}, 6, v{VW}")
    k(f"v_add_u32 v{VW}, s{sRING}, v{VW}")
    k(f"v_xor_b32 v{VW+1}, 64, v{VW}")
    k(f"v_lshl_add_u32 v{tm}, v{h_}, 2, v{r_}"); k(f"v_lshlrev_b32 v{tm}, 8, v{tm}")
    k(f"v_lshl_add_u32 v{tm}, v{tm+1}, 3, v{tm}"); k(f"v_add_u32 v{tm}, {L_V}, v{tm}")
    for dt in range(4):
        k(f"v_xor_b32 v{tm+2}, {dt}, v{r_}"); k(f"v_lshl_add_u32 v{VV+dt}, v{tm+2}, 6, v{tm}")
    k(f"v_and_b32 v{tm}, 31, v{TT}"); k(f"v_and_b32 v{tm+2}, 15, v{TT}"); k(f"v_xor_b32 v{tm+2}, v{tm+2}, v{h_}")
    k(f"v_lshlrev_b32 v{tm}, 8, v{tm}"); k(f"v_lshl_add_u32 v{VK}, v{tm+2}, 4, v{tm}")
    for s_ in range(1, 8): k(f"v_xor_b32 v{VK+s_}, {s_*32}, v{VK}")
    k(f"v_add_u32 v{VLIN}, {L_H}, v{VL16}")
    k(f"v_lshrrev_b32 v{tm}, 4, v{TT}")
    k(f"v_and_b32 v{tm+2}, 15, v{TT}")
    k(f"v_lshlrev_b32 v{tm+3}, 2, v{tm}"); k(f"v_xor_b32 v{tm+3}, v{tm+3}, v{tm+2}")
    k(f"v_lshlrev_b32 v{VDV}, 8, v{tm}"); k(f"v_lshl_add_u32 v{VDV}, v{tm+3}, 4, v{VDV}")
    k(f"s_and_b32 s{sT0}, s{sW}, 1"); k(f"s_lshl_b32 s{sT0}, s{sT0}, 3")
    k(f"v_or_b32 v{tm+3}, s{sT0}, v{tm}"); k(f"v_xor_b32 v{tm+3}, v{tm+3}, v{tm+2}")
    k(f"v_lshlrev_b32 v{VDK}, 8, v{tm}"); k(f"v_lshl_add_u32 v{VDK}, v{tm+3}, 4, v{VDK}")
    k(f"v_xor_b32 v{MG}, 64, v{VDK}")
    VDK2 = 237
    k(f"v_mov_b32 v{VDK2}, v{MG}")
    k(f"s_lshl_b32 s{sKVB}, s{sG}, 19"); k(f"s_lshl_b32 s{sT0}, s{sW}, 11"); k(f"s_add_u32 s{sKVB}, s{sKVB}, s{sT0}")
    k(f"s_add_u32 s{sKVB}, s{sKVB}, {1536*256}")
    sKst, sVst = 50, 51
    k(f"s_and_b32 s{sKst}, s{sRB}, 7"); k(f"s_mov_b32 s{sVst}, s{sKst}")
    def kv_dma(which, slot):
        st = sKst if which == "K" else sVst
        srd = 12 if which == "K" else 16
        base = (L_K if which == "K" else L_V) + 16384 * slot
        k(f"s_lshl_b32 s{sT0}, s{st}, 14"); k(f"s_add_u32 s{sT0}, s{sT0}, s{sKVB}")
        k(f"s_lshl_b32 s{sT1}, s{sW}, 11"); k(f"s_add_u32 m0, s{sT1}, {base}")
        k(f"s_add_u32 s{st}, s{st}, 1")
        k(f"buffer_load_dwordx4 v{VDK if which=='K' else VDV}, s[{srd}:{srd+3}], s{sT0} offen lds")
        k(f"s_and_b32 s{st}, s{st}, 7")
        k(f"buffer_load_dwordx4 v{VDK2 if which=='K' else VDV}, s[{srd}:{srd+3}], s{sT0} offen offset:1024 lds", token=f"{which}{slot}")
    k(f"s_mov_b32 s{sC}, {f32(CS)}"); k(f"s_mov_b32 s{sL2E}, {f32(LOG2E)}"); k(f"s_mov_b32 s{sCL}, {f32(CS*LOG2E)}")

    def gemm_reads(step, buf):
        slot = step % 4
        k.wait(f"W{slot}")
        for a_ in range(2):
            for u in range(2):
                k(f"ds_read_b64_tr_b16 {v(AF+8*buf+4*a_+2*u,2)}, v{VW+a_} offset:{2048*slot+512*u}")
        for rt in range(2):
            k(f"ds_read_b128 {v(BF+8*buf+4*rt,4)}, v{VLIN} offset:{1024*step+32768*rt}")
    def gemm_mfma(buf, first=False):
        for a_ in range(2):
            for rt in range(2):
                acc = v(ACC + 32 * a_ + 16 * rt, 16)
                k(f"v_mfma_f32_32x32x16_bf16 {acc}, {v(AF+8*buf+4*a_,4)}, {v(BF+8*buf+4*rt,4)}, {'0' if first else acc}")
    def gemm(srd, shift, tail_hook=None):
        for i in range(64): k(f"v_mov_b32 v{ACC+i}, 0")
        gemm_reads(0, 0)
        def body(last=False):
            for i in range(4):
                if not (last and i == 3): gemm_reads(i + 1, (i + 1) % 2)
                if not last or i == 0: w_dma((i + 3) % 4, srd, shift)
                elif tail_hook: tail_hook(i)
                gemm_mfma(i % 2)
            if not last: k(f"v_add_u32 v{VLIN}, 4096, v{VLIN}")
        k.loop(sST, 7, body)
        body(last=True)
        k(f"v_add_u32 v{VLIN}, {L_H}, v{VL16}")
    k.wait("H"); k("s_barrier")
    def qtail(i):
        if i == 1: kv_dma("K", 0)
        if i == 2: kv_dma("K", 1)
    gemm(8, 17, qtail)
    QT = 96
    for a_ in range(2):
        for rt in range(2):
            for j in range(8):
                b = ACC + 32 * a_ + 16 * rt + 2 * j
                k(f"v_cvt_pk_bf16_f32 v{QT+16*a_+8*rt+j}, v{b}, v{b+1}")
    k(f"v_add_u32 v{T0}, s{sRING}, v{VL16}")
    k(f"v_xor_b32 v{T1}, 0x2000, v{T0}")
    assert L_W % 16384 == 0
    LA, LB = k.newlabel("QX"), k.newlabel("QX")
    k(f"s_bitcmp1_b32 s{sW}, 0"); k(f"s_cbranch_scc1 {LA}")
    st0 = (dict(k.vm), dict(k.lg))
    for hf in range(2):
        if hf == 1:
            k(f"s_branch {LB}"); k.label(LA); k.vm, k.lg = dict(st0[0]), dict(st0[1])
        for a_ in range(2):
            for sp in range(2):
                k(f"ds_write_b128 v{T0}, {v(QT+16*a_+8*(1-hf)+4*sp,4)} offset:{1024*(2*a_+sp)}", token="qx")
        for a_ in range(2):
            for j in range(8):
                k(f"v_mov_b32 v{Q+16*hf+8*a_+j}, v{QT+16*a_+8*hf+j}")
        k.wait_all()
        k("s_barrier")
        for j in range(4):
            k(f"ds_read_b128 {v(Q+16*(1-hf)+4*j,4)}, v{T1} offset:{1024*j}")
        k.wait_all(vm=False)
    k.label(LB)
    kv_dma("V", 0); kv_dma("V", 1)
    k(f"s_lshl_b32 s{sT0}, s{sG}, 19"); k(f"s_lshl_b32 s{sT1}, s{sW}, 7"); k(f"s_add_u32 s{sT0}, s{sT0}, s{sT1}")
    k(f"v_lshl_add_u32 v{VD0}, v{TT+1}, 10, v{TT+3}"); k(f"v_add_u32 v{VD0}, s{sT0}, v{VD0}")
    k(f"v_add_u32 v{VD1}, {8*1024-1024}, v{VD0}")
    def qk_ops(sbuf, kslot):
        ops = []
        n = 0
        seq = [(t, s_) for t in range(2) for s_ in range(8)]
        def rd(i):
            t, s_ = seq[i]
            return f"ds_read_b128 {v(KF+4*(i%4),4)}, v{VK+s_} offset:{L_K+16384*kslot+8192*t}"
        pre = [rd(0), rd(1), rd(2)]
        for i, (t, s_) in enumerate(seq):
            acc = v(S + 32 * sbuf + 16 * t, 16)
            g_ = [f"v_mfma_f32_32x32x16_bf16 {acc}, {v(KF+4*(i%4),4)}, {v(Q+4*s_,4)}, {'0' if s_==0 else acc}"]
            if i + 3 < 16: g_.append(rd(i + 3))
            ops.append(g_)
        return pre, ops
    def pv_ops(vslot):
        seq = [(ks, dt) for ks in range(4) for dt in range(4)]
        def rd(i):
            ks, dt = seq[i]
            return [f"ds_read_b64_tr_b16 {v(VF+4*(i%4)+2*u,2)}, v{VV+dt} offset:{16384*vslot+4096*ks+2048*u}" for u in range(2)]
        pre = rd(0) + rd(1) + rd(2)
        ops = []
        for i, (ks, dt) in enumerate(seq):
            acc = v(O + 16 * dt, 16)
            g_ = [f"v_mfma_f32_32x32x16_bf16 {acc}, {v(VF+4*(i%4),4)}, {v(P+4*ks,4)}, {acc}"]
            if i + 3 < 16: g_ += rd(i + 3)
            ops.append(g_)
        return pre, ops
    def max_ops(sbuf, first):
        b = S + 32 * sbuf
        o = [f"v_max3_f32 v{T0}, v{b}, v{b+1}, v{b+2}", f"v_max3_f32 v{T1}, v{b+3}, v{b+4}, v{b+5}"]
        i = 6; t = 0
        while i + 1 < 32:
            o.append(f"v_max3_f32 v{T0+t}, v{T0+t}, v{b+i}, v{b+i+1}"); i += 2; t ^= 1
        if first: o.append(f"v_max_f32 v{T0}, v{T0}, v{T1}")
        else: o.append(f"v_max3_f32 v{T0}, v{T0}, v{T1}, v{M}")
        o += [f"v_mov_b32 v{T1}, v{T0}", "s_nop 0", f"v_permlane32_swap_b32 v{T0}, v{T1}", f"v_max_f32 v{M}, v{T0}, v{T1}"]
        if mode == "none":
            o.append(f"v_mul_f32 v{T2}, s{sCL}, v{M}")
        else:
            o += [f"v_cvt_pk_bf16_f32 v{T2}, 0, v{M}", f"v_mul_f32 v{T2}, s{sC}, v{T2}", f"v_cvt_pk_bf16_f32 v{T2}, 0, v{T2}"]
            if mode == "exact":
                o.append(f"v_mul_f32 v{T2}, s{sL2E}, v{T2}")
            else:
                o += [f"v_and_b32 v{MG}, 0x7f800000, v{T2}", f"v_max_u32 v{MG}, 0x20000000, v{MG}", f"v_min_u32 v{MG}, 0x70000000, v{MG}",
                      f"v_add_u32 v{MG}, 0x08400000, v{MG}",
                      f"v_add_f32 v{T3}, v{MG}, v{T2}", f"v_mul_f32 v{T3}, s{sL2E}, v{T3}", f"v_fma_f32 v{T2}, -v{MG}, s{sL2E}, v{T3}"]
        if not first:
            o += [f"v_sub_f32 v{AL}, v{MO}, v{T2}", f"v_exp_f32 v{AL}, v{AL}"]
        o.append(f"v_mov_b32 v{MO}, v{T2}")
        if not first:
            o.append(f"v_mul_f32 v{Lsum}, v{Lsum}, v{AL}")
            o += [f"v_mul_f32 v{O+i}, v{O+i}, v{AL}" for i in range(64)]
        return o
    def sm_ops(sbuf, t):
        b = S + 32 * sbuf + 16 * t
        o = []
        for j in range(0, 16, 2):
            rr = (b + j, b + j + 1)
            if mode == "none":
                o += [f"v_fma_f32 v{x}, v{x}, s{sCL}, -v{MO}" for x in rr]
            elif mode == "exact":
                o += [f"v_cvt_pk_bf16_f32 v{x}, 0, v{x}" for x in rr]
                o += [f"v_mul_f32 v{x}, s{sC}, v{x}" for x in rr]
                o += [f"v_cvt_pk_bf16_f32 v{x}, 0, v{x}" for x in rr]
                o += [f"v_fma_f32 v{x}, v{x}, s{sL2E}, -v{MO}" for x in rr]
            else:
                o += [f"v_cvt_pk_bf16_f32 v{x}, 0, v{x}" for x in rr]
                o += [f"v_fma_f32 v{x}, v{x}, s{sC}, v{MG}" for x in rr]
                o += [f"v_fma_f32 v{x}, v{x}, s{sL2E}, -v{T3}" for x in rr]
            o += [f"v_exp_f32 v{x}, v{x}" for x in rr]
            o += [f"v_add_f32 v{Lsum}, v{Lsum}, v{rr[0]}", f"v_cvt_pk_bf16_f32 v{P+8*t+j//2}, v{rr[0]}, v{rr[1]}", f"v_add_f32 v{Lsum}, v{Lsum}, v{rr[1]}"]
        return o
    def put(seq):
        for x in seq:
            if isinstance(x, list): put(x)
            else: k(x)
    for i in range(64): k(f"v_mov_b32 v{O+i}, 0")
    k(f"v_mov_b32 v{Lsum}, 0")
    pre, ops = qk_ops(0, 0); put(pre); put(ops)
    def stage(par, first=False, last=False, hook=None):
        k.wait(f"K{1-par}", f"V{par}"); k("s_barrier")
        if hook: hook()
        va = max_ops(par, first) + sm_ops(par, 0)
        vb = sm_ops(par, 1)
        ppre, pops = pv_ops(par)
        if not last:
            pre, ops = qk_ops(1 - par, 1 - par); put(pre)
            ops[-1] = ops[-1] + ppre
            put(interleave(ops, va))
        else:
            put(ppre); put(va)
        put(interleave(pops[:8], vb)); put(pops[8:])
    def hookKV(par, dok=True, dov=True):
        def f():
            if dok: kv_dma("K", par)
            if dov: kv_dma("V", 1 - par)
        return f
    def wo_pref():
        k(f"s_mov_b32 s{sKS}, s{sRB}")
        for sl in range(3): w_dma(sl, 20, 14)
    stage(0, first=True, hook=hookKV(0, True, False))
    def h1(): hookKV(1)(); wo_pref()
    stage(1, hook=h1)
    def body():
        stage(0, hook=hookKV(0)); stage(1, hook=hookKV(1))
    k.loop(sST, 2, body)
    stage(0, hook=hookKV(0, False, True))
    stage(1, last=True)
    k(f"v_mov_b32 v{T1}, v{Lsum}")
    k(f"v_permlane32_swap_b32 v{Lsum}, v{T1}")
    k(f"v_add_f32 v{Lsum}, v{Lsum}, v{T1}")
    k(f"v_rcp_f32 v{AL}, v{Lsum}")
    for i in range(64): k(f"v_mul_f32 v{O+i}, v{O+i}, v{AL}")
    for j in range(32): k(f"v_cvt_pk_bf16_f32 v{QT+j}, v{O+2*j}, v{O+2*j+1}")
    k("s_barrier")
    k(f"s_and_b32 s{sT1}, s{sW}, 1"); k(f"s_lshl_b32 s{sT1}, s{sT1}, 15"); k(f"v_add_u32 v{T0}, s{sT1}, v{VLIN}")
    k(f"s_lshr_b32 s{sKVB}, s{sW}, 1"); k(f"s_lshl_b32 s{sKVB}, s{sKVB}, 3"); k(f"s_sub_u32 s{sKVB}, s{sKVB}, s{sRB}")
    for j in range(8):
        k(f"s_add_u32 s{sT0}, s{sKVB}, {j}"); k(f"s_and_b32 s{sT0}, s{sT0}, 31"); k(f"s_lshl_b32 s{sT0}, s{sT0}, 10")
        k(f"v_add_u32 v{T1+(j&1)}, s{sT0}, v{T0}")
        k(f"ds_write_b128 v{T1+(j&1)}, {v(QT+4*j,4)}", token="ow")
    k.wait("ow"); k("s_barrier")
    gemm(20, 14)
    k(f"s_lshl_b32 s{sT0}, s{sG}, 21"); k(f"s_lshl_b32 s{sT1}, s{sRB}, 16"); k(f"s_add_u32 s{sT0}, s{sT0}, s{sT1}")
    k(f"s_lshl_b32 s{sT1}, s{sW}, 12"); k(f"s_add_u32 s{sT0}, s{sT0}, s{sT1}"); k(f"s_add_u32 s{sT0}, s{sT0}, {WS_P:#x}")
    k(f"s_add_u32 s{sT1}, s{sT0}, 32768")
    for a_ in range(2):
        for rt in range(2):
            for j in range(8):
                b = ACC + 32 * a_ + 16 * rt + 2 * j
                k(f"v_cvt_pk_bf16_f32 v{QT+16*a_+8*rt+j}, v{b}, v{b+1}")
            for sp in range(2):
                k(f"buffer_store_dwordx4 {v(QT+16*a_+8*rt+4*sp,4)}, v{VL16}, s[24:27], s{sT1 if rt else sT0} offen offset:{2048*a_+1024*sp}")
    k.label("END_attn"); k("s_endpgm")
    return k

def gen_ffn1():
    NS = 5
    SB = 28672 + 256
    UOFF = 14336 + 128
    k = Kernel("ffn1_kernel", 256, 256, NS * SB, vgpr=128, agpr=240, sgpr=48)
    HB = 0
    AC = 128
    AF = 0
    AF = 8
    VD = 64
    VA = 71; VL16 = 72; TT = 80
    sW, sFS, sRB, sT0, sT1, sKS, sST = 28, 29, 30, 31, 32, 33, 34
    k("s_cmp_ge_u32 s2, 256"); k("s_cbranch_scc1 END_ffn1")
    k(f"s_load_dwordx4 s[40:43], s[0:1], {A_WG}")
    k(f"s_load_dwordx2 s[44:45], s[0:1], {A_WS}")
    wave_id(k, sW, TT)
    k(f"v_and_b32 v{TT}, 63, v0"); k(f"v_lshlrev_b32 v{VL16}, 4, v{TT}")
    k(f"s_and_b32 s{sFS}, s2, 15"); k(f"s_lshr_b32 s{sRB}, s2, 4")
    k(f"s_cmp_lt_u32 s{sW}, 2")
    k(f"s_cselect_b32 s35, 0, {UOFF}")
    k("s_cselect_b32 s8, s40, s42"); k("s_cselect_b32 s9, s41, s43"); k("s_and_b32 s9, s9, 0xffff")
    k(f"s_mov_b32 s10, {512*3584}"); k("s_mov_b32 s11, 0x20000")
    k.srd(24, 44, WS_BYTES)
    k(f"s_and_b32 s{sT0}, s{sW}, 1"); k(f"s_mul_i32 s{sT1}, s{sT0}, 7168"); k(f"s_add_u32 s35, s35, s{sT1}")
    k(f"s_mul_i32 s{sT0}, s{sT0}, 448")
    k(f"s_mul_i32 s36, s{sFS}, 224")
    k("s_mov_b32 s37, 4682")
    for n in range(7):
        k(f"v_add_u32 v{TT+1}, s{sT0}, v{TT}"); k(f"v_add_u32 v{TT+1}, {64*n}, v{TT+1}")
        k(f"v_mul_u32_u24 v{TT+2}, s37, v{TT+1}"); k(f"v_lshrrev_b32 v{TT+2}, 16, v{TT+2}")
        k(f"v_mul_u32_u24 v{TT+3}, 14, v{TT+2}"); k(f"v_sub_u32 v{TT+3}, v{TT+1}, v{TT+3}")
        k(f"v_mul_u32_u24 v{TT+2}, 3584, v{TT+2}"); k(f"v_lshl_add_u32 v{TT+2}, v{TT+3}, 4, v{TT+2}")
        k(f"v_add_u32 v{VD+n}, s36, v{TT+2}")
        if n % 4: k(f"v_subrev_u32 v{VD+n}, {1024*(n%4)}, v{VD+n}")
    for q in range(14 * 64 * 1): assert (q * 4682) >> 16 == q // 14
    k(f"s_and_b32 s{sKS}, s{sRB}, 7")
    def dma(slot):
        k(f"s_mul_i32 s{sT0}, s{sKS}, {64*3584}")
        k(f"s_add_u32 m0, s35, {SB*slot}")
        k(f"s_add_u32 s{sKS}, s{sKS}, 1"); k(f"s_and_b32 s{sKS}, s{sKS}, 7")
        for n in range(7):
            if n == 4: k(f"s_add_u32 m0, s35, {SB*slot+4096}")
            k(f"buffer_load_dwordx4 v{VD+n}, s[8:11], s{sT0} offen offset:{1024*(n%4)} lds", token=f"W{slot}")
    dma_first = True
    k(f"s_lshl_b32 s{sT1}, s{sRB}, 2"); k(f"s_add_u32 s{sT1}, s{sT1}, s{sW}"); k(f"s_lshl_b32 s{sT1}, s{sT1}, 15")
    k(f"s_add_u32 s38, s{sT1}, {WS_H2:#x}")
    k(f"s_mov_b32 s39, s{sKS}")
    dma(0)
    for st in range(8):
        k(f"s_lshl_b32 s{sT1}, s39, 12"); k(f"s_add_u32 s{sT1}, s{sT1}, s38")
        k("s_add_u32 s39, s39, 1"); k("s_and_b32 s39, s39, 7")
        for j in range(4):
            k(f"buffer_load_dwordx4 {a(HB+16*st+4*j,4)}, v{VL16}, s[24:27], s{sT1} offen offset:{1024*j}")
        if st in (0, 2, 4): dma(1 + st // 2)
    r_, c2, gn, h_, tm = TT + 4, TT + 5, TT + 6, TT + 7, TT + 8
    lane_tr_parts(k, TT, r_, c2, gn, h_, tm)
    k(f"v_lshl_add_u32 v{tm}, v{h_}, 3, v{r_}"); k(f"v_mul_u32_u24 v{VA}, 224, v{tm}")
    k(f"v_mul_u32_u24 v{tm}, {UOFF}, v{gn}"); k(f"v_add_u32 v{VA}, v{VA}, v{tm}"); k(f"v_lshl_add_u32 v{VA}, v{c2}, 3, v{VA}")
    k(f"v_add_u32 v{VA+2}, {2*SB}, v{VA}"); k(f"v_add_u32 v{VA+3}, {4*SB}, v{VA}")
    VAs = [VA, VA, VA + 2, VA + 2, VA + 3]; VAo = [0, SB, 0, SB, 0]
    VL16 = 72
    def reads(st, ks, buf):
        slot = st % NS
        return [f"ds_read_b64_tr_b16 {v(AF+28*buf+4*t+2*u,2)}, v{VAs[slot]} offset:{VAo[slot]+224*(16*ks+4*u)+32*t}" for t in range(7) for u in range(2)]
    def mf(st, ks, buf):
        first = st == 0 and ks == 0
        return [f"v_mfma_f32_32x32x16_bf16 {a(AC+16*t,16)}, {v(AF+28*buf+4*t,4)}, {a(HB+16*st+4*ks,4)}, {'0' if first else a(AC+16*t,16)}" for t in range(7)]
    k.wait("W0"); k("s_barrier")
    for x in reads(0, 0, 0): k(x)
    step = 0
    for st in range(8):
        for ks in range(4):
            nst, nks = (st, ks + 1) if ks < 3 else (st + 1, 0)
            rd = []
            if nst < 8:
                if nks == 0:
                    k.wait(f"W{nst % NS}"); k("s_barrier")
                    if st + 4 < 8 and st >= 0: dma((st + 4) % NS)
                rd = reads(nst, nks, (step + 1) % 2)
            for x in interleave(mf(st, ks, step % 2), rd): k(x)
            step += 1
    K0_ = -2 * math.sqrt(2 / math.pi) * LOG2E
    k(f"s_mov_b32 s36, {f32(K0_*0.044715)}"); k(f"v_mov_b32 v{TT+1}, {f32(K0_)}")
    k(f"s_lshl_b32 s{sT1}, s{sRB}, 2"); k(f"s_add_u32 s{sT1}, s{sT1}, s{sW}"); k(f"s_mul_i32 s{sT1}, s{sT1}, {224*512}")
    k(f"s_mul_i32 s{sT0}, s{sFS}, {14*512}"); k(f"s_add_u32 s{sT1}, s{sT1}, s{sT0}"); k(f"s_add_u32 s{sT1}, s{sT1}, {WS_ACT:#x}")
    k(f"s_add_u32 s{sT0}, s{sT1}, 4096")
    for t in range(7):
        G = 8 + 24 * (t % 2)
        for r in range(16): k(f"v_accvgpr_read_b32 v{G+r}, a{AC+16*t+r}")
        for r in range(8): k(f"v_mul_f32 v{G+16+r}, v{G+r}, v{G+r}")
        for r in range(8): k(f"v_fma_f32 v{G+16+r}, v{G+16+r}, s36, v{TT+1}")
        for r in range(8): k(f"v_mul_f32 v{G+16+r}, v{G+16+r}, v{G+r}")
        for r in range(8): k(f"v_exp_f32 v{G+16+r}, v{G+16+r}")
        for r in range(8): k(f"v_mul_f32 v{G+r}, v{G+r}, v{G+8+r}")
        for r in range(8): k(f"v_add_f32 v{G+16+r}, 1.0, v{G+16+r}")
        for r in range(8): k(f"v_rcp_f32 v{G+16+r}, v{G+16+r}")
        for r in range(8): k(f"v_mul_f32 v{G+r}, v{G+r}, v{G+16+r}")
        D = 56 + 4 * (t % 2)
        for j in range(4): k(f"v_cvt_pk_bf16_f32 v{D+j}, v{G+2*j}, v{G+2*j+1}")
        k(f"buffer_store_dwordx4 {v(D,4)}, v{VL16}, s[24:27], s{sT1 if t<4 else sT0} offen offset:{1024*(t%4)}")
    k.label("END_ffn1"); k("s_endpgm")
    return k

def gen_ffn2():
    NSL = 14
    k = Kernel("ffn2_kernel", 256, 256, 4 * NSL * 2048, vgpr=256, agpr=64, sgpr=48)
    BFR = 16
    AF = 128
    VD0, VD1, VW, VL16, TT = 2, 3, 4, 6, 144
    sW, sNB, sRB, sT0, sT1, sKS, sRING, sAB = 28, 29, 30, 31, 32, 33, 34, 35
    k("s_cmp_ge_u32 s2, 256"); k("s_cbranch_scc1 END_ffn2")
    k(f"s_load_dwordx2 s[40:41], s[0:1], {A_WD}")
    k(f"s_load_dwordx2 s[42:43], s[0:1], {A_OUT}")
    k(f"s_load_dwordx2 s[44:45], s[0:1], {A_WS}")
    wave_id(k, sW, TT)
    k(f"v_and_b32 v{TT}, 63, v0"); k(f"v_lshlrev_b32 v{VL16}, 4, v{TT}")
    k(f"s_and_b32 s{sNB}, s2, 7"); k(f"s_lshr_b32 s{sRB}, s2, 3")
    k.srd(8, 40, 1792 * 1024); k.srd(12, 42, 2048 * 1024); k.srd(24, 44, WS_BYTES)
    k(f"v_lshrrev_b32 v{TT+1}, 3, v{TT}")
    k(f"v_bfe_u32 v{TT+2}, v{TT}, 4, 1"); k(f"v_lshlrev_b32 v{TT+2}, 2, v{TT+2}")
    k(f"v_and_b32 v{TT+3}, 7, v{TT}"); k(f"v_xor_b32 v{TT+3}, v{TT+3}, v{TT+2}"); k(f"v_lshlrev_b32 v{TT+3}, 4, v{TT+3}")
    k(f"s_lshl_b32 s{sT0}, s{sNB}, 7")
    k(f"v_lshl_add_u32 v{VD0}, v{TT+1}, 10, v{TT+3}"); k(f"v_add_u32 v{VD0}, s{sT0}, v{VD0}")
    k(f"v_add_u32 v{VD1}, {8*1024-1024}, v{VD0}")
    k(f"s_mul_i32 s{sRING}, s{sW}, {NSL*2048}")
    k(f"v_add_u32 v{VL16+1}, {224*512}, v{VL16}")
    k(f"s_cmp_ge_u32 s{sRB}, 28"); k(f"s_cselect_b32 s{sT0}, 28, 0"); k(f"s_sub_u32 s{sKS}, s{sRB}, s{sT0}")
    k(f"s_mul_i32 s36, s{sW}, 28")
    k(f"s_mul_i32 s{sAB}, s{sRB}, {2*224*512}"); k(f"s_add_u32 s{sAB}, s{sAB}, {WS_ACT:#x}")
    def issue(i):
        sl = i % NSL
        k(f"s_add_u32 s{sT1}, s{sKS}, s36")
        k(f"s_lshl_b32 s{sT0}, s{sT1}, 14")
        k(f"s_add_u32 m0, s{sRING}, {2048*sl}")
        k(f"s_lshl_b32 s{sT1}, s{sT1}, 10"); k(f"s_add_u32 s{sT1}, s{sT1}, s{sAB}")
        k(f"buffer_load_dwordx4 v{VD0}, s[8:11], s{sT0} offen lds")
        k(f"buffer_load_dwordx4 v{VD1}, s[8:11], s{sT0} offen offset:1024 lds", token=f"W{sl}")
        k(f"buffer_load_dwordx4 {v(BFR+8*sl,4)}, v{VL16}, s[24:27], s{sT1} offen")
        k(f"buffer_load_dwordx4 {v(BFR+8*sl+4,4)}, v{VL16+1}, s[24:27], s{sT1} offen")
        k(f"s_add_u32 s{sKS}, s{sKS}, 1"); k(f"s_cmp_ge_u32 s{sKS}, 28"); k(f"s_cselect_b32 s{sKS}, 0, s{sKS}")
    PRE = 12
    for i in range(PRE): issue(i)
    r_, c2, gn, h_, tm = TT + 4, TT + 5, TT + 6, TT + 7, TT + 8
    lane_tr_parts(k, TT, r_, c2, gn, h_, tm)
    k(f"v_lshl_add_u32 v{tm}, v{h_}, 3, v{r_}"); k(f"v_lshlrev_b32 v{VW}, 7, v{tm}")
    k(f"v_lshl_add_u32 v{tm+1}, v{gn}, 2, v{c2}"); k(f"v_lshl_add_u32 v{VW}, v{tm+1}, 3, v{VW}")
    k(f"v_lshrrev_b32 v{tm}, 1, v{r_}"); k(f"v_lshl_add_u32 v{VW}, v{tm}, 6, v{VW}")
    k(f"v_add_u32 v{VW}, s{sRING}, v{VW}"); k(f"v_xor_b32 v{VW+1}, 64, v{VW}")
    def reads(i):
        sl = i % NSL
        k.wait(f"W{sl}")
        for a_ in range(2):
            for u in range(2):
                k(f"ds_read_b64_tr_b16 {v(AF+8*(i%2)+4*a_+2*u,2)}, v{VW+a_} offset:{2048*sl+512*u}")
    reads(0)
    for i in range(28):
        if i + 1 < 28: reads(i + 1)
        for a_ in range(2):
            for rt in range(2):
                acc = a(32 * a_ + 16 * rt, 16)
                k(f"v_mfma_f32_32x32x16_bf16 {acc}, {v(AF+8*(i%2)+4*a_,4)}, {v(BFR+8*(i%NSL)+4*rt,4)}, {'0' if i==0 else acc}")
        if i + PRE < 28: issue(i + PRE)
    X1R, GB = 160, 176
    k(f"s_lshl_b32 s{sT0}, s{sRB}, 1"); k(f"s_and_b32 s{sT1}, s{sW}, 1"); k(f"s_add_u32 s37, s{sT0}, s{sT1}")
    k(f"s_lshr_b32 s38, s{sW}, 1"); k(f"s_lshl_b32 s38, s38, 2"); k(f"s_lshl_b32 s{sT0}, s{sNB}, 3"); k(f"s_add_u32 s38, s38, s{sT0}")
    k(f"s_lshl_b32 s{sT0}, s37, 15"); k(f"s_lshl_b32 s{sT1}, s38, 9"); k(f"s_add_u32 s{sT0}, s{sT0}, s{sT1}"); k(f"s_add_u32 s{sT0}, s{sT0}, {WS_X1:#x}")
    for sp in range(2): k(f"buffer_load_dwordx4 {v(X1R+4*sp,4)}, v{VL16}, s[24:27], s{sT0} offen offset:{1024*sp}")
    k(f"v_lshlrev_b32 v{tm}, 5, v{h_}")
    k(f"s_lshl_b32 s{sT1}, s38, 5"); k(f"s_add_u32 s{sT1}, s{sT1}, {WS_MOD+5*2048}")
    for sp in range(2):
        for q in range(2): k(f"buffer_load_dwordx4 {v(GB+8*sp+4*q,4)}, v{tm}, s[24:27], s{sT1} offen offset:{64*sp+16*q}")
    k("s_barrier")
    k(f"s_lshl_b32 s{sT0}, s{sW}, 14"); k(f"v_add_u32 v{tm+1}, s{sT0}, v{VL16}")
    for q in range(16): k(f"ds_write_b128 v{tm+1}, {a(4*q,4)} offset:{1024*q}", token="red")
    k.wait("red"); k("s_barrier")
    k(f"s_lshl_b32 s{sT0}, s{sW}, 12"); k(f"v_add_u32 v{tm+1}, s{sT0}, v{VL16}")
    R = 16
    for ww in range(4):
        for q in range(4): k(f"ds_read_b128 {v(R+16*ww+4*q,4)}, v{tm+1} offset:{16384*ww+1024*q}")
    k("s_mov_b32 s39, 0xffff0000")
    for r in range(16):
        k(f"v_add_f32 v{R+r}, v{R+r}, v{R+16+r}"); k(f"v_add_f32 v{R+32+r}, v{R+32+r}, v{R+48+r}")
    for r in range(16):
        x = R + r
        k(f"v_add_f32 v{x}, v{x}, v{R+32+r}"); rnd(k, x, x)
        k(f"v_mul_f32 v{x}, v{x}, v{GB+r}"); rnd(k, x, x)
        if r % 2 == 0: k(f"v_lshlrev_b32 v{R+16+r}, 16, v{X1R+r//2}")
        else: k(f"v_and_b32 v{R+16+r}, s39, v{X1R+r//2}")
        k(f"v_add_f32 v{x}, v{x}, v{R+16+r}")
    for j in range(8): k(f"v_cvt_pk_bf16_f32 v{R+32+j}, v{R+2*j}, v{R+2*j+1}")
    k(f"v_and_b32 v{tm}, 31, v{TT}"); k(f"v_lshlrev_b32 v{tm}, 10, v{tm}"); k(f"v_lshl_add_u32 v{tm}, v{h_}, 4, v{tm}")
    k(f"s_lshl_b32 s{sT0}, s37, 15"); k(f"s_lshl_b32 s{sT1}, s38, 4"); k(f"s_add_u32 s{sT0}, s{sT0}, s{sT1}")
    for sp in range(2): k(f"buffer_store_dwordx4 {v(R+32+4*sp,4)}, v{tm}, s[12:15], s{sT0} offen offset:{32*sp}")
    k.label("END_ffn2"); k("s_endpgm")
    return k

HEADER = open('adaLN_cond__sliding_block_cached__geglu_ffn__prompt.s.ref').read().split("; Override launch")[0]

if __name__ == "__main__":
    mode = sys.argv[1] if len(sys.argv) > 1 else "exact"
    out = sys.argv[2] if len(sys.argv) > 2 else "k.s"
    ks = [gen_mod(), gen_ln(False), gen_attn(mode), gen_ln(True), gen_ffn1(), gen_ffn2()]
    txt = emit(ks, header=HEADER)
    open(out, "w").write(txt)
    for k in ks: print(k.name, "regs(v,a,s)", k.used, "nops", k.n_nops, "instrs", len(k.items))
```

```python
import sys, struct, math
from asmlib import *

def f32(x): return "0x%08x" % struct.unpack("<I", struct.pack("<f", x))[0]
LOG2E = 1.4426950408889634
CS = struct.unpack("<f", struct.pack("<f", 128 ** -0.5))[0]

A_X, A_K, A_V, A_WQ, A_WO, B_X, A_WG, A_WU, A_WD, A_C, A_WM, A_OUT, A_DBG, A_WS = [8 * i for i in range(14)]
WS_MOD = 0x0
WS_H = 0x200000
WS_P = 0x400000
WS_X1 = 0x1400000
WS_H2 = 0x1600000
WS_ACT = 0x1800000
WS_BYTES = 0x10000000

WS_DBG = 0x8000000
STAMPS = False
import os
PERT_OUT = float(os.environ.get("PERT_OUT", 0)); PERT_CS = float(os.environ.get("PERT_CS", 0))
def stamp(k, name):
    if not STAMPS: return
    i = len(k.stamps); k.stamps.append(name)
    assert i < 17
    k.sgpr = 102
    k(f"s_memtime s[60:61]"); k("s_memrealtime s[62:63]"); k("s_waitcnt lgkmcnt(0)")
    k(f"s_mov_b32 s{66+2*i}, s60"); k(f"s_mov_b32 s{67+2*i}, s62")
def stamp_begin(k):
    k.stamps = []
    if not STAMPS: return
    k("v_lshrrev_b32 v1, 6, v0"); k("v_readfirstlane_b32 s101, v1")
    stamp(k, "start")
def stamp_flush(k, kidx):
    if not STAMPS: return
    stamp(k, "end")
    k(f"s_load_dwordx2 s[64:65], s[0:1], {A_WS}")
    k("s_mov_b64 exec, -1")
    k.srd(56, 64, WS_BYTES)
    k("s_lshl_b32 s100, s2, 3"); k("s_add_u32 s100, s100, s101"); k("s_lshl_b32 s100, s100, 8")
    k(f"s_add_u32 s100, s100, {WS_DBG + kidx*0x100000:#x}")
    k("v_mov_b32 v1, 0")
    for j, sr in enumerate([66 + i for i in range(2*len(k.stamps))]):
        k(f"v_mov_b32 v0, s{sr}")
        k(f"buffer_store_dword v0, v1, s[56:59], s100 offen offset:{4*j}")

def wave_id(k, sdst, vtmp):
    k(f"v_lshrrev_b32 v{vtmp}, 6, v0")
    k(f"v_readfirstlane_b32 s{sdst}, v{vtmp}")

def rowsum_8(k, val, tmp):
    k(f"v_add_f32_dpp v{val}, v{val}, v{val} row_ror:8 row_mask:0xf bank_mask:0xf")
    k(f"v_mov_b32 v{tmp}, v{val}")
    k(f"v_permlane16_swap_b32 v{val}, v{tmp}")
    k(f"v_add_f32 v{val}, v{val}, v{tmp}")
    k(f"v_mov_b32 v{tmp}, v{val}")
    k(f"v_permlane32_swap_b32 v{val}, v{tmp}")
    k(f"v_add_f32 v{val}, v{val}, v{tmp}")

def rnd(k, d, sreg):
    k(f"v_cvt_pk_bf16_f32 v{d}, 0, v{sreg}")

def gen_mod():
    k = Kernel("mod_kernel", 96, 256, 2048, vgpr=72, sgpr=40)
    k("s_cmp_ge_u32 s2, 96"); k("s_cbranch_scc1 END_mod")
    stamp_begin(k)
    k(f"s_load_dwordx4 s[4:7], s[0:1], {A_C}")
    k(f"s_load_dwordx2 s[28:29], s[0:1], {A_WS}")
    k("v_and_b32 v1, 3, v0")
    k("v_lshrrev_b32 v2, 2, v0")
    k("v_mul_u32_u24 v3, 6144, v2")
    k("v_lshl_add_u32 v3, v1, 4, v3")
    k("v_lshlrev_b32 v4, 1, v2")
    wave_id(k, 30, 5)
    k.srd(8, 4, 1024); k.srd(12, 6, 512 * 6144); k.srd(16, 28, 12288, WS_MOD)
    k("s_lshl_b32 s20, s2, 6")
    for i in range(8):
        k(f"buffer_load_ushort v{8+i}, v4, s[8:11], 0 offen offset:{128*i}")
    for i in range(8):
        k(f"buffer_load_dwordx4 {v(32+4*i,4)}, v3, s[12:15], s20 offen")
        if i < 7: k(f"s_add_u32 s20, s20, {64*6144}")
    k(f"s_mov_b32 s21, {f32(-LOG2E)}")
    k(f"s_mov_b32 s22, {f32(126.0)}")
    k("s_mov_b32 s23, 0xffff0000")
    for i in range(8):
        x = 8 + i
        k(f"v_lshlrev_b32 v{x}, 16, v{x}")
        k(f"v_mul_f32 v5, s21, v{x}")
        k("v_min_f32 v5, s22, v5")
        k("v_exp_f32 v5, v5")
        k("v_add_f32 v5, 1.0, v5")
        k("v_rcp_f32 v6, v5")
        k(f"v_mul_f32 v7, v{x}, v6")
        k(f"v_fma_f32 v5, -v7, v5, v{x}")
        k("v_fma_f32 v7, v5, v6, v7")
        rnd(k, x, 7)
    stamp(k, "silu")
    for j in range(8): k(f"v_mov_b32 v{16+j}, 0")
    for i in range(8):
        for q in range(4):
            r = 32 + 4 * i + q
            k(f"v_lshlrev_b32 v5, 16, v{r}")
            k(f"v_and_b32 v6, s23, v{r}")
            k(f"v_fmac_f32 v{16+2*q}, v5, v{8+i}")
            k(f"v_fmac_f32 v{17+2*q}, v6, v{8+i}")
    for rot in (4, 8):
        for j in range(8):
            k(f"v_add_f32_dpp v{16+j}, v{16+j}, v{16+j} row_ror:{rot} row_mask:0xf bank_mask:0xf")
    stamp(k, "fma")
    k("v_lshrrev_b32 v5, 4, v0"); k("v_lshlrev_b32 v5, 7, v5"); k("v_lshl_add_u32 v5, v1, 5, v5")
    k(f"ds_write_b128 v5, {v(16,4)}", token="w"); k(f"ds_write_b128 v5, {v(20,4)} offset:16", token="w")
    k.wait("w"); k("s_barrier")
    k("s_cmp_lg_u32 s30, 0"); k("s_cbranch_scc1 END_mod")
    k("v_and_b32 v5, 31, v0"); k("v_lshlrev_b32 v5, 2, v5")
    for i in range(16): k(f"ds_read_b32 v{32+i}, v5 offset:{128*i}")
    for st in (1, 2, 4, 8):
        for i in range(0, 16, 2 * st): k(f"v_add_f32 v{32+i}, v{32+i}, v{32+i+st}")
    rnd(k, 32, 32)
    k("s_lshl_b32 s20, s2, 7")
    k("v_cmp_gt_u32 vcc, 32, v0")
    k("s_and_saveexec_b64 s[24:25], vcc")
    k("buffer_store_dword v32, v5, s[16:19], s20 offen")
    stamp_flush(k, 0)
    k.label("END_mod"); k("s_endpgm")
    return k

def gen_ln(second):
    name = "ln2_kernel" if second else "ln1_kernel"
    k = Kernel(name, 256, 256, 256, vgpr=128, sgpr=48)
    E = "END_" + name
    k("s_cmp_ge_u32 s2, 256"); k(f"s_cbranch_scc1 {E}")
    stamp_begin(k)
    k(f"s_load_dwordx2 s[4:5], s[0:1], {A_X}")
    k(f"s_load_dwordx2 s[6:7], s[0:1], {A_WS}")
    k("v_and_b32 v1, 7, v0")
    k("v_lshrrev_b32 v2, 3, v0")
    k("v_lshrrev_b32 v6, 6, v0")
    k("v_and_b32 v7, 7, v2")
    k("v_lshl_add_u32 v7, v6, 4, v7")
    k("v_lshlrev_b32 v3, 9, v7"); k("v_lshl_add_u32 v3, v1, 4, v3")
    k("v_lshlrev_b32 v4, 10, v1"); k("v_lshl_add_u32 v4, v7, 4, v4")
    k("v_lshlrev_b32 v5, 5, v7")
    k("v_lshlrev_b32 v8, 4, v1"); k("v_lshl_add_u32 v9, v6, 2, v8")
    k.srd(8, 4, 2048 * 1024); k.srd(12, 6, WS_BYTES)
    k("s_lshl_b32 s20, s2, 13")
    k("s_lshr_b32 s21, s2, 2"); k("s_lshl_b32 s21, s21, 15"); k("s_and_b32 s22, s2, 3"); k("s_lshl_b32 s22, s22, 7")
    k("s_add_u32 s21, s21, s22")
    X = 16
    for i in range(2): k(f"buffer_load_dwordx4 {v(X+4*i,4)}, v4, s[8:11], s20 offen offset:{128*i}")
    PB = 64
    if second:
        for g in range(8):
            for i in range(2):
                k(f"s_add_u32 s23, s21, {WS_P + g*0x200000 + 4096*i:#x}")
                k(f"buffer_load_dwordx4 {v(PB+8*g+4*i,4)}, v3, s[12:15], s23 offen")
    k("s_mov_b32 s24, 0xffff0000")
    XF = 24
    MV = 40
    def load_mod(m):
        k(f"s_mov_b32 s23, {WS_MOD + m*2048}")
        for i in range(2):
            for hh in range(2):
                k(f"buffer_load_dwordx4 {v(MV+8*i+4*hh,4)}, v5, s[12:15], s23 offen offset:{256*i+16*hh}")
    def unpack(dst, src):
        k(f"v_lshlrev_b32 v{dst}, 16, v{src}"); k(f"v_and_b32 v{dst+1}, s24, v{src}")
    if second: load_mod(2)
    for q in range(8): unpack(XF + 2 * q, X + q)
    if second:
        for q in range(8):
            unpack(10, PB + q)
            for g in range(1, 8):
                unpack(12, PB + 8 * g + q)
                k("v_add_f32 v10, v10, v12"); k("v_add_f32 v11, v11, v13")
            for e in range(2):
                rnd(k, 10 + e, 10 + e)
                k(f"v_mul_f32 v{10+e}, v{10+e}, v{MV+2*q+e}")
                rnd(k, 10 + e, 10 + e)
                k(f"v_add_f32 v{10+e}, v{10+e}, v{XF+2*q+e}")
            k(f"v_cvt_pk_bf16_f32 v{X+q}, v10, v11")
            unpack(XF + 2 * q, X + q)
        for i in range(2):
            k(f"s_add_u32 s23, s21, {WS_X1 + 4096*i:#x}")
            k(f"buffer_store_dwordx4 {v(X+4*i,4)}, v3, s[12:15], s23 offen")
    load_mod(4 if second else 1)
    SV = 64
    k(f"s_mov_b32 s23, {WS_MOD + (3 if second else 0)*2048}")
    for i in range(2):
        for hh in range(2):
            k(f"buffer_load_dwordx4 {v(SV+8*i+4*hh,4)}, v5, s[12:15], s23 offen offset:{256*i+16*hh}")
    stamp(k, "x1")
    k(f"v_add_f32 v10, v{XF}, v{XF+1}")
    for e in range(2, 16): k(f"v_add_f32 v10, v10, v{XF+e}")
    def allreduce(off):
        rowsum_8(k, 10, 11)
        k(f"ds_write_b32 v9, v10 offset:{off}", token="w"); k.wait("w"); k("s_barrier")
        k(f"ds_read_b128 {v(12,4)}, v8 offset:{off}")
        k("v_add_f32 v12, v12, v13"); k("v_add_f32 v14, v14, v15"); k("v_add_f32 v10, v12, v14")
        k(f"v_mul_f32 v10, {f32(1/512)}, v10")
    allreduce(0)
    k("v_mov_b32 v56, v10")
    k("v_mov_b32 v10, 0")
    for e in range(16):
        k(f"v_sub_f32 v11, v{XF+e}, v56"); k("v_fmac_f32 v10, v11, v11")
    allreduce(128)
    stamp(k, "stats")
    rnd(k, 10, 10)
    k(f"v_add_f32 v10, {f32(1e-5)}, v10"); rnd(k, 10, 10)
    k("v_sqrt_f32 v10, v10"); rnd(k, 10, 10)
    k("v_rcp_f32 v57, v10")
    rnd(k, 56, 56)
    for e in range(16):
        x = XF + e
        k(f"v_sub_f32 v{x}, v{x}, v56"); rnd(k, x, x)
        k(f"v_mul_f32 v{x}, v{x}, v57"); rnd(k, x, x)
        k(f"v_add_f32 v{MV+e}, 1.0, v{MV+e}"); rnd(k, MV + e, MV + e)
        k(f"v_mul_f32 v{x}, v{x}, v{MV+e}"); rnd(k, x, x)
        k(f"v_add_f32 v{x}, v{x}, v{SV+e}")
    for q in range(8): k(f"v_cvt_pk_bf16_f32 v{80+q}, v{XF+2*q}, v{XF+2*q+1}")
    for i in range(2):
        k(f"s_add_u32 s23, s21, {(WS_H2 if second else WS_H) + 4096*i:#x}")
        k(f"buffer_store_dwordx4 {v(80+4*i,4)}, v3, s[12:15], s23 offen")
    stamp_flush(k, 3 if second else 1)
    k.label(E); k("s_endpgm")
    return k

def lane_tr_parts(k, lane, r, c2, gn, h, tmp):
    k(f"v_bfe_u32 v{r}, v{lane}, 2, 2")
    k(f"v_and_b32 v{c2}, 1, v{lane}"); k(f"v_lshlrev_b32 v{c2}, 1, v{c2}")
    k(f"v_bfe_u32 v{tmp}, v{lane}, 1, 1"); k(f"v_or_b32 v{c2}, v{c2}, v{tmp}")
    k(f"v_bfe_u32 v{gn}, v{lane}, 4, 1")
    k(f"v_lshrrev_b32 v{h}, 5, v{lane}")

def gen_attn(mode="exact"):
    k = Kernel("attn_kernel", 256, 512, 163840, vgpr=256, sgpr=64)
    L_K, L_H, L_V, L_W = 0, 32768, 32768, 98304
    O = 0; S = 64; Q = 128; P = 160; KF = 176; VF = 192
    ACC = 0; AF = 64; BF = 80
    VK = 208
    VV = 216
    VW = 220
    VLIN = 222
    VD0, VD1 = 223, 224
    VDK, VDV = 225, 226
    VL16 = 227
    M, Lsum, MO, AL, T0, T1, T2, T3, MG = 228, 229, 230, 231, 232, 233, 234, 235, 236
    TT = 240
    sW, sG, sRB = 28, 29, 30
    sKS, sT0, sT1, sRING = 31, 32, 33, 34
    sC, sL2E, sCL = 35, 36, 37
    sST, sKVB = 38, 39
    k("s_cmp_ge_u32 s2, 256"); k("s_cbranch_scc1 END_attn")
    stamp_begin(k)
    k(f"s_load_dwordx8 s[40:47], s[0:1], {A_K}")
    k(f"s_load_dwordx2 s[48:49], s[0:1], {A_WS}")
    wave_id(k, sW, TT)
    k(f"v_and_b32 v{TT}, 63, v0")
    k(f"v_lshlrev_b32 v{VL16}, 4, v{TT}")
    k(f"s_and_b32 s{sG}, s2, 7"); k(f"s_lshr_b32 s{sRB}, s2, 3")
    k.srd(8, 44, 512 * 8192); k.srd(12, 40, 8 * 2048 * 256); k.srd(16, 42, 8 * 2048 * 256)
    k.srd(20, 46, 4096 * 1024); k.srd(24, 48, WS_BYTES)
    k(f"v_lshrrev_b32 v{TT+1}, 3, v{TT}")
    k(f"v_bfe_u32 v{TT+2}, v{TT}, 4, 1"); k(f"v_lshlrev_b32 v{TT+2}, 2, v{TT+2}")
    k(f"v_and_b32 v{TT+3}, 7, v{TT}"); k(f"v_xor_b32 v{TT+3}, v{TT+3}, v{TT+2}")
    k(f"v_lshlrev_b32 v{TT+3}, 4, v{TT+3}")
    k(f"s_lshl_b32 s{sT0}, s{sG}, 10"); k(f"s_lshl_b32 s{sT1}, s{sW}, 7"); k(f"s_add_u32 s{sT0}, s{sT0}, s{sT1}")
    k(f"v_lshl_add_u32 v{VD0}, v{TT+1}, 13, v{TT+3}"); k(f"v_add_u32 v{VD0}, s{sT0}, v{VD0}")
    k(f"v_add_u32 v{VD1}, {8*8192-1024}, v{VD0}")
    k(f"s_lshl_b32 s{sRING}, s{sW}, 13"); k(f"s_add_u32 s{sRING}, s{sRING}, {L_W}")
    for j in range(4):
        k(f"s_lshl_b32 s{sT0}, s{sW}, 2"); k(f"s_add_u32 s{sT0}, s{sT0}, {j}")
        k(f"s_add_u32 s{sT1}, s{sT0}, s{sRB}"); k(f"s_and_b32 s{sT1}, s{sT1}, 31"); k(f"s_lshl_b32 s{sT1}, s{sT1}, 10")
        k(f"s_lshl_b32 s{sKS}, s{sRB}, 16"); k(f"s_add_u32 s{sT1}, s{sT1}, s{sKS}"); k(f"s_add_u32 s{sT1}, s{sT1}, {WS_H:#x}")
        k(f"s_lshl_b32 s{sT0}, s{sT0}, 10"); k(f"s_add_u32 m0, s{sT0}, {L_H}")
        k(f"buffer_load_dwordx4 v{VL16}, s[24:27], s{sT1} offen lds", token="H")
        k(f"s_add_u32 m0, s{sT0}, {L_H+32768}"); k(f"s_add_u32 s{sT1}, s{sT1}, 32768")
        k(f"buffer_load_dwordx4 v{VL16}, s[24:27], s{sT1} offen lds", token="H")
        if j == 0:
            pass
    def w_dma(slot, srd, shift):
        k(f"s_lshl_b32 s{sT0}, s{sKS}, {shift}")
        k(f"s_add_u32 m0, s{sRING}, {2048*slot}")
        k(f"s_add_u32 s{sKS}, s{sKS}, 1")
        k(f"buffer_load_dwordx4 v{VD0}, s[{srd}:{srd+3}], s{sT0} offen lds")
        k(f"s_and_b32 s{sKS}, s{sKS}, 31")
        k(f"buffer_load_dwordx4 v{VD1}, s[{srd}:{srd+3}], s{sT0} offen offset:1024 lds", token=f"W{slot}")
    k(f"s_mov_b32 s{sKS}, s{sRB}")
    for sl in range(3): w_dma(sl, 8, 17)
    r_, c2, gn, h_, tm = TT + 4, TT + 5, TT + 6, TT + 7, TT + 8
    lane_tr_parts(k, TT, r_, c2, gn, h_, tm)
    k(f"v_lshl_add_u32 v{tm}, v{h_}, 3, v{r_}"); k(f"v_lshlrev_b32 v{VW}, 7, v{tm}")
    k(f"v_lshl_add_u32 v{tm+1}, v{gn}, 2, v{c2}")
    k(f"v_lshl_add_u32 v{VW}, v{tm+1}, 3, v{VW}")
    k(f"v_lshrrev_b32 v{tm}, 1, v{r_}"); k(f"v_lshl_add_u32 v{VW}, v{tm}, 6, v{VW}")
    k(f"v_add_u32 v{VW}, s{sRING}, v{VW}")
    k(f"v_xor_b32 v{VW+1}, 64, v{VW}")
    k(f"v_lshl_add_u32 v{tm}, v{h_}, 2, v{r_}"); k(f"v_lshlrev_b32 v{tm}, 8, v{tm}")
    k(f"v_lshl_add_u32 v{tm}, v{tm+1}, 3, v{tm}"); k(f"v_add_u32 v{tm}, {L_V}, v{tm}")
    for dt in range(4):
        k(f"v_xor_b32 v{tm+2}, {dt}, v{r_}"); k(f"v_lshl_add_u32 v{VV+dt}, v{tm+2}, 6, v{tm}")
    k(f"v_and_b32 v{tm}, 31, v{TT}"); k(f"v_and_b32 v{tm+2}, 15, v{TT}"); k(f"v_xor_b32 v{tm+2}, v{tm+2}, v{h_}")
    k(f"v_lshlrev_b32 v{tm}, 8, v{tm}"); k(f"v_lshl_add_u32 v{VK}, v{tm+2}, 4, v{tm}")
    for s_ in range(1, 8): k(f"v_xor_b32 v{VK+s_}, {s_*32}, v{VK}")
    k(f"v_add_u32 v{VLIN}, {L_H}, v{VL16}")
    k(f"v_lshrrev_b32 v{tm}, 4, v{TT}")
    k(f"v_and_b32 v{tm+2}, 15, v{TT}")
    k(f"v_lshlrev_b32 v{tm+3}, 2, v{tm}"); k(f"v_xor_b32 v{tm+3}, v{tm+3}, v{tm+2}")
    k(f"v_lshlrev_b32 v{VDV}, 8, v{tm}"); k(f"v_lshl_add_u32 v{VDV}, v{tm+3}, 4, v{VDV}")
    k(f"s_and_b32 s{sT0}, s{sW}, 1"); k(f"s_lshl_b32 s{sT0}, s{sT0}, 3")
    k(f"v_or_b32 v{tm+3}, s{sT0}, v{tm}"); k(f"v_xor_b32 v{tm+3}, v{tm+3}, v{tm+2}")
    k(f"v_lshlrev_b32 v{VDK}, 8, v{tm}"); k(f"v_lshl_add_u32 v{VDK}, v{tm+3}, 4, v{VDK}")
    k(f"v_xor_b32 v{MG}, 64, v{VDK}")
    VDK2 = 237
    k(f"v_mov_b32 v{VDK2}, v{MG}")
    k(f"s_lshl_b32 s{sKVB}, s{sG}, 19"); k(f"s_lshl_b32 s{sT0}, s{sW}, 11"); k(f"s_add_u32 s{sKVB}, s{sKVB}, s{sT0}")
    k(f"s_add_u32 s{sKVB}, s{sKVB}, {1536*256}")
    sKst, sVst = 50, 51
    k(f"s_and_b32 s{sKst}, s{sRB}, 7"); k(f"s_mov_b32 s{sVst}, s{sKst}")
    def kv_dma(which, slot):
        st = sKst if which == "K" else sVst
        srd = 12 if which == "K" else 16
        base = (L_K if which == "K" else L_V) + 16384 * slot
        k(f"s_lshl_b32 s{sT0}, s{st}, 14"); k(f"s_add_u32 s{sT0}, s{sT0}, s{sKVB}")
        k(f"s_lshl_b32 s{sT1}, s{sW}, 11"); k(f"s_add_u32 m0, s{sT1}, {base}")
        k(f"s_add_u32 s{st}, s{st}, 1")
        k(f"buffer_load_dwordx4 v{VDK if which=='K' else VDV}, s[{srd}:{srd+3}], s{sT0} offen lds")
        k(f"s_and_b32 s{st}, s{st}, 7")
        k(f"buffer_load_dwordx4 v{VDK2 if which=='K' else VDV}, s[{srd}:{srd+3}], s{sT0} offen offset:1024 lds", token=f"{which}{slot}")
    k(f"s_mov_b32 s{sC}, {f32(CS)}"); k(f"s_mov_b32 s{sL2E}, {f32(LOG2E)}"); k(f"s_mov_b32 s{sCL}, {f32(CS*LOG2E*(1+PERT_CS))}")

    def gemm_reads(step, buf):
        slot = step % 4
        k.wait(f"W{slot}")
        for a_ in range(2):
            for u in range(2):
                k(f"ds_read_b64_tr_b16 {v(AF+8*buf+4*a_+2*u,2)}, v{VW+a_} offset:{2048*slot+512*u}")
        for rt in range(2):
            k(f"ds_read_b128 {v(BF+8*buf+4*rt,4)}, v{VLIN} offset:{1024*step+32768*rt}")
    def gemm_mfma(buf, first=False):
        for a_ in range(2):
            for rt in range(2):
                acc = v(ACC + 32 * a_ + 16 * rt, 16)
                k(f"v_mfma_f32_32x32x16_bf16 {acc}, {v(AF+8*buf+4*a_,4)}, {v(BF+8*buf+4*rt,4)}, {'0' if first else acc}")
    def gemm(srd, shift, tail_hook=None):
        for i in range(64): k(f"v_mov_b32 v{ACC+i}, 0")
        gemm_reads(0, 0)
        def body(last=False):
            for i in range(4):
                if not (last and i == 3): gemm_reads(i + 1, (i + 1) % 2)
                if not last or i == 0: w_dma((i + 3) % 4, srd, shift)
                elif tail_hook: tail_hook(i)
                gemm_mfma(i % 2)
            if not last: k(f"v_add_u32 v{VLIN}, 4096, v{VLIN}")
        k.loop(sST, 7, body)
        body(last=True)
        k(f"v_add_u32 v{VLIN}, {L_H}, v{VL16}")
    stamp(k, "setup")
    k.wait("H"); k("s_barrier")
    stamp(k, "Hready")
    def qtail(i):
        if i == 1: kv_dma("K", 0)
        if i == 2: kv_dma("K", 1)
    gemm(8, 17, qtail)
    stamp(k, "qgemm")
    QT = 96
    for a_ in range(2):
        for rt in range(2):
            for j in range(8):
                b = ACC + 32 * a_ + 16 * rt + 2 * j
                k(f"v_cvt_pk_bf16_f32 v{QT+16*a_+8*rt+j}, v{b}, v{b+1}")
    k(f"v_add_u32 v{T0}, s{sRING}, v{VL16}")
    k(f"v_xor_b32 v{T1}, 0x2000, v{T0}")
    assert L_W % 16384 == 0
    LA, LB = k.newlabel("QX"), k.newlabel("QX")
    k(f"s_bitcmp1_b32 s{sW}, 0"); k(f"s_cbranch_scc1 {LA}")
    st0 = (dict(k.vm), dict(k.lg))
    for hf in range(2):
        if hf == 1:
            k(f"s_branch {LB}"); k.label(LA); k.vm, k.lg = dict(st0[0]), dict(st0[1])
        for a_ in range(2):
            for sp in range(2):
                k(f"ds_write_b128 v{T0}, {v(QT+16*a_+8*(1-hf)+4*sp,4)} offset:{1024*(2*a_+sp)}", token="qx")
        for a_ in range(2):
            for j in range(8):
                k(f"v_mov_b32 v{Q+16*hf+8*a_+j}, v{QT+16*a_+8*hf+j}")
        k.wait_all()
        k("s_barrier")
        for j in range(4):
            k(f"ds_read_b128 {v(Q+16*(1-hf)+4*j,4)}, v{T1} offset:{1024*j}")
        k.wait_all(vm=False)
    k.label(LB)
    kv_dma("V", 0); kv_dma("V", 1)
    k(f"s_lshl_b32 s{sT0}, s{sG}, 19"); k(f"s_lshl_b32 s{sT1}, s{sW}, 7"); k(f"s_add_u32 s{sT0}, s{sT0}, s{sT1}")
    k(f"v_lshl_add_u32 v{VD0}, v{TT+1}, 10, v{TT+3}"); k(f"v_add_u32 v{VD0}, s{sT0}, v{VD0}")
    k(f"v_add_u32 v{VD1}, {8*1024-1024}, v{VD0}")
    def qk_ops(sbuf, kslot):
        ops = []
        n = 0
        seq = [(t, s_) for t in range(2) for s_ in range(8)]
        def rd(i):
            t, s_ = seq[i]
            return f"ds_read_b128 {v(KF+4*(i%4),4)}, v{VK+s_} offset:{L_K+16384*kslot+8192*t}"
        pre = [rd(0), rd(1), rd(2)]
        for i, (t, s_) in enumerate(seq):
            acc = v(S + 32 * sbuf + 16 * t, 16)
            g_ = [f"v_mfma_f32_32x32x16_bf16 {acc}, {v(KF+4*(i%4),4)}, {v(Q+4*s_,4)}, {'0' if s_==0 else acc}"]
            if i + 3 < 16: g_.append(rd(i + 3))
            ops.append(g_)
        return pre, ops
    def pv_ops(vslot):
        seq = [(ks, dt) for ks in range(4) for dt in range(4)]
        def rd(i):
            ks, dt = seq[i]
            return [f"ds_read_b64_tr_b16 {v(VF+4*(i%4)+2*u,2)}, v{VV+dt} offset:{16384*vslot+4096*ks+2048*u}" for u in range(2)]
        pre = rd(0) + rd(1) + rd(2)
        ops = []
        for i, (ks, dt) in enumerate(seq):
            acc = v(O + 16 * dt, 16)
            g_ = [f"v_mfma_f32_32x32x16_bf16 {acc}, {v(VF+4*(i%4),4)}, {v(P+4*ks,4)}, {acc}"]
            if i + 3 < 16: g_ += rd(i + 3)
            ops.append(g_)
        return pre, ops
    def max_ops(sbuf, first):
        b = S + 32 * sbuf
        o = [f"v_max3_f32 v{T0}, v{b}, v{b+1}, v{b+2}", f"v_max3_f32 v{T1}, v{b+3}, v{b+4}, v{b+5}"]
        i = 6; t = 0
        while i + 1 < 32:
            o.append(f"v_max3_f32 v{T0+t}, v{T0+t}, v{b+i}, v{b+i+1}"); i += 2; t ^= 1
        if first: o.append(f"v_max_f32 v{T0}, v{T0}, v{T1}")
        else: o.append(f"v_max3_f32 v{T0}, v{T0}, v{T1}, v{M}")
        o += [f"v_mov_b32 v{T1}, v{T0}", "s_nop 0", f"v_permlane32_swap_b32 v{T0}, v{T1}", f"v_max_f32 v{M}, v{T0}, v{T1}"]
        if mode == "none":
            o.append(f"v_mul_f32 v{T2}, s{sCL}, v{M}")
        else:
            o += [f"v_cvt_pk_bf16_f32 v{T2}, 0, v{M}", f"v_mul_f32 v{T2}, s{sC}, v{T2}", f"v_cvt_pk_bf16_f32 v{T2}, 0, v{T2}"]
            if mode == "exact":
                o.append(f"v_mul_f32 v{T2}, s{sL2E}, v{T2}")
            else:
                o += [f"v_and_b32 v{MG}, 0x7f800000, v{T2}", f"v_max_u32 v{MG}, 0x20000000, v{MG}", f"v_min_u32 v{MG}, 0x70000000, v{MG}",
                      f"v_add_u32 v{MG}, 0x08400000, v{MG}",
                      f"v_add_f32 v{T3}, v{MG}, v{T2}", f"v_mul_f32 v{T3}, s{sL2E}, v{T3}", f"v_fma_f32 v{T2}, -v{MG}, s{sL2E}, v{T3}"]
        if not first:
            o += [f"v_sub_f32 v{AL}, v{MO}, v{T2}", f"v_exp_f32 v{AL}, v{AL}"]
        o.append(f"v_mov_b32 v{MO}, v{T2}")
        if not first:
            o.append(f"v_mul_f32 v{Lsum}, v{Lsum}, v{AL}")
            o += [f"v_mul_f32 v{O+i}, v{O+i}, v{AL}" for i in range(64)]
        return o
    def sm_ops(sbuf, t):
        b = S + 32 * sbuf + 16 * t
        o = []
        for j in range(0, 16, 2):
            rr = (b + j, b + j + 1)
            if mode == "none":
                o += [f"v_fma_f32 v{x}, v{x}, s{sCL}, -v{MO}" for x in rr]
            elif mode == "exact":
                o += [f"v_cvt_pk_bf16_f32 v{x}, 0, v{x}" for x in rr]
                o += [f"v_mul_f32 v{x}, s{sC}, v{x}" for x in rr]
                o += [f"v_cvt_pk_bf16_f32 v{x}, 0, v{x}" for x in rr]
                o += [f"v_fma_f32 v{x}, v{x}, s{sL2E}, -v{MO}" for x in rr]
            else:
                o += [f"v_cvt_pk_bf16_f32 v{x}, 0, v{x}" for x in rr]
                o += [f"v_fma_f32 v{x}, v{x}, s{sC}, v{MG}" for x in rr]
                o += [f"v_fma_f32 v{x}, v{x}, s{sL2E}, -v{T3}" for x in rr]
            o += [f"v_exp_f32 v{x}, v{x}" for x in rr]
            o += [f"v_add_f32 v{Lsum}, v{Lsum}, v{rr[0]}", f"v_cvt_pk_bf16_f32 v{P+8*t+j//2}, v{rr[0]}, v{rr[1]}", f"v_add_f32 v{Lsum}, v{Lsum}, v{rr[1]}"]
        return o
    def put(seq):
        for x in seq:
            if isinstance(x, list): put(x)
            else: k(x)
    stamp(k, "qx")
    for i in range(64): k(f"v_mov_b32 v{O+i}, 0")
    k(f"v_mov_b32 v{Lsum}, 0")
    pre, ops = qk_ops(0, 0); put(pre); put(ops)
    def stage(par, first=False, last=False, hook=None):
        k.wait(f"K{1-par}", f"V{par}"); k("s_barrier")
        if hook: hook()
        va = max_ops(par, first) + sm_ops(par, 0)
        vb = sm_ops(par, 1)
        ppre, pops = pv_ops(par)
        if not last:
            pre, ops = qk_ops(1 - par, 1 - par); put(pre)
            ops[-1] = ops[-1] + ppre
            put(interleave(ops, va))
        else:
            put(ppre); put(va)
        put(interleave(pops[:8], vb)); put(pops[8:])
    def hookKV(par, dok=True, dov=True):
        def f():
            if dok: kv_dma("K", par)
            if dov: kv_dma("V", 1 - par)
        return f
    def wo_pref():
        k(f"s_mov_b32 s{sKS}, s{sRB}")
        for sl in range(3): w_dma(sl, 20, 14)
    stamp(k, "qk0")
    stage(0, first=True, hook=hookKV(0, True, False))
    stamp(k, "st0")
    def h1(): hookKV(1)(); wo_pref()
    stage(1, hook=h1)
    stamp(k, "st1")
    def body():
        stage(0, hook=hookKV(0)); stage(1, hook=hookKV(1))
    k.loop(sST, 2, body)
    stamp(k, "st2-5")
    stage(0, hook=hookKV(0, False, True))
    stage(1, last=True)
    stamp(k, "st6-7")
    k(f"v_mov_b32 v{T1}, v{Lsum}")
    k(f"v_permlane32_swap_b32 v{Lsum}, v{T1}")
    k(f"v_add_f32 v{Lsum}, v{Lsum}, v{T1}")
    k(f"v_rcp_f32 v{AL}, v{Lsum}")
    for i in range(64): k(f"v_mul_f32 v{O+i}, v{O+i}, v{AL}")
    for j in range(32): k(f"v_cvt_pk_bf16_f32 v{QT+j}, v{O+2*j}, v{O+2*j+1}")
    k("s_barrier")
    k(f"s_and_b32 s{sT1}, s{sW}, 1"); k(f"s_lshl_b32 s{sT1}, s{sT1}, 15"); k(f"v_add_u32 v{T0}, s{sT1}, v{VLIN}")
    k(f"s_lshr_b32 s{sKVB}, s{sW}, 1"); k(f"s_lshl_b32 s{sKVB}, s{sKVB}, 3"); k(f"s_sub_u32 s{sKVB}, s{sKVB}, s{sRB}")
    for j in range(8):
        k(f"s_add_u32 s{sT0}, s{sKVB}, {j}"); k(f"s_and_b32 s{sT0}, s{sT0}, 31"); k(f"s_lshl_b32 s{sT0}, s{sT0}, 10")
        k(f"v_add_u32 v{T1+(j&1)}, s{sT0}, v{T0}")
        k(f"ds_write_b128 v{T1+(j&1)}, {v(QT+4*j,4)}", token="ow")
    k.wait("ow"); k("s_barrier")
    stamp(k, "owrite")
    gemm(20, 14)
    stamp(k, "ogemm")
    k(f"s_lshl_b32 s{sT0}, s{sG}, 21"); k(f"s_lshl_b32 s{sT1}, s{sRB}, 16"); k(f"s_add_u32 s{sT0}, s{sT0}, s{sT1}")
    k(f"s_lshl_b32 s{sT1}, s{sW}, 12"); k(f"s_add_u32 s{sT0}, s{sT0}, s{sT1}"); k(f"s_add_u32 s{sT0}, s{sT0}, {WS_P:#x}")
    k(f"s_add_u32 s{sT1}, s{sT0}, 32768")
    for a_ in range(2):
        for rt in range(2):
            for j in range(8):
                b = ACC + 32 * a_ + 16 * rt + 2 * j
                k(f"v_cvt_pk_bf16_f32 v{QT+16*a_+8*rt+j}, v{b}, v{b+1}")
            for sp in range(2):
                k(f"buffer_store_dwordx4 {v(QT+16*a_+8*rt+4*sp,4)}, v{VL16}, s[24:27], s{sT1 if rt else sT0} offen offset:{2048*a_+1024*sp}")
    stamp_flush(k, 2)
    k.label("END_attn"); k("s_endpgm")
    return k

def gen_ffn1():
    NS = 5
    SB = 28672 + 256
    UOFF = 14336 + 128
    k = Kernel("ffn1_kernel", 256, 256, NS * SB, vgpr=128, agpr=240, sgpr=48)
    HB = 0
    AC = 128
    AF = 0
    AF = 8
    VD = 64
    VA = 71; VL16 = 72; TT = 80
    sW, sFS, sRB, sT0, sT1, sKS, sST = 28, 29, 30, 31, 32, 33, 34
    k("s_cmp_ge_u32 s2, 256"); k("s_cbranch_scc1 END_ffn1")
    stamp_begin(k)
    k(f"s_load_dwordx4 s[40:43], s[0:1], {A_WG}")
    k(f"s_load_dwordx2 s[44:45], s[0:1], {A_WS}")
    wave_id(k, sW, TT)
    k(f"v_and_b32 v{TT}, 63, v0"); k(f"v_lshlrev_b32 v{VL16}, 4, v{TT}")
    k(f"s_and_b32 s{sFS}, s2, 15"); k(f"s_lshr_b32 s{sRB}, s2, 4")
    k(f"s_cmp_lt_u32 s{sW}, 2")
    k(f"s_cselect_b32 s35, 0, {UOFF}")
    k("s_cselect_b32 s8, s40, s42"); k("s_cselect_b32 s9, s41, s43"); k("s_and_b32 s9, s9, 0xffff")
    k(f"s_mov_b32 s10, {512*3584}"); k("s_mov_b32 s11, 0x20000")
    k.srd(24, 44, WS_BYTES)
    k(f"s_and_b32 s{sT0}, s{sW}, 1"); k(f"s_mul_i32 s{sT1}, s{sT0}, 7168"); k(f"s_add_u32 s35, s35, s{sT1}")
    k(f"s_mul_i32 s{sT0}, s{sT0}, 448")
    k(f"s_mul_i32 s36, s{sFS}, 224")
    k("s_mov_b32 s37, 4682")
    for n in range(7):
        k(f"v_add_u32 v{TT+1}, s{sT0}, v{TT}"); k(f"v_add_u32 v{TT+1}, {64*n}, v{TT+1}")
        k(f"v_mul_u32_u24 v{TT+2}, s37, v{TT+1}"); k(f"v_lshrrev_b32 v{TT+2}, 16, v{TT+2}")
        k(f"v_mul_u32_u24 v{TT+3}, 14, v{TT+2}"); k(f"v_sub_u32 v{TT+3}, v{TT+1}, v{TT+3}")
        k(f"v_mul_u32_u24 v{TT+2}, 3584, v{TT+2}"); k(f"v_lshl_add_u32 v{TT+2}, v{TT+3}, 4, v{TT+2}")
        k(f"v_add_u32 v{VD+n}, s36, v{TT+2}")
        if n % 4: k(f"v_subrev_u32 v{VD+n}, {1024*(n%4)}, v{VD+n}")
    for q in range(14 * 64 * 1): assert (q * 4682) >> 16 == q // 14
    k(f"s_and_b32 s{sKS}, s{sRB}, 7")
    def dma(slot):
        k(f"s_mul_i32 s{sT0}, s{sKS}, {64*3584}")
        k(f"s_add_u32 m0, s35, {SB*slot}")
        k(f"s_add_u32 s{sKS}, s{sKS}, 1"); k(f"s_and_b32 s{sKS}, s{sKS}, 7")
        for n in range(7):
            if n == 4: k(f"s_add_u32 m0, s35, {SB*slot+4096}")
            k(f"buffer_load_dwordx4 v{VD+n}, s[8:11], s{sT0} offen offset:{1024*(n%4)} lds", token=f"W{slot}")
    dma_first = True
    k(f"s_lshl_b32 s{sT1}, s{sRB}, 2"); k(f"s_add_u32 s{sT1}, s{sT1}, s{sW}"); k(f"s_lshl_b32 s{sT1}, s{sT1}, 15")
    k(f"s_add_u32 s38, s{sT1}, {WS_H2:#x}")
    k(f"s_mov_b32 s39, s{sKS}")
    dma(0)
    for st in range(8):
        k(f"s_lshl_b32 s{sT1}, s39, 12"); k(f"s_add_u32 s{sT1}, s{sT1}, s38")
        k("s_add_u32 s39, s39, 1"); k("s_and_b32 s39, s39, 7")
        for j in range(4):
            k(f"buffer_load_dwordx4 {a(HB+16*st+4*j,4)}, v{VL16}, s[24:27], s{sT1} offen offset:{1024*j}")
        if st in (0, 2, 4): dma(1 + st // 2)
    r_, c2, gn, h_, tm = TT + 4, TT + 5, TT + 6, TT + 7, TT + 8
    lane_tr_parts(k, TT, r_, c2, gn, h_, tm)
    k(f"v_lshl_add_u32 v{tm}, v{h_}, 3, v{r_}"); k(f"v_mul_u32_u24 v{VA}, 224, v{tm}")
    k(f"v_mul_u32_u24 v{tm}, {UOFF}, v{gn}"); k(f"v_add_u32 v{VA}, v{VA}, v{tm}"); k(f"v_lshl_add_u32 v{VA}, v{c2}, 3, v{VA}")
    k(f"v_add_u32 v{VA+2}, {2*SB}, v{VA}"); k(f"v_add_u32 v{VA+3}, {4*SB}, v{VA}")
    VAs = [VA, VA, VA + 2, VA + 2, VA + 3]; VAo = [0, SB, 0, SB, 0]
    VL16 = 72
    def reads(st, ks, buf):
        slot = st % NS
        return [f"ds_read_b64_tr_b16 {v(AF+28*buf+4*t+2*u,2)}, v{VAs[slot]} offset:{VAo[slot]+224*(16*ks+4*u)+32*t}" for t in range(7) for u in range(2)]
    def mf(st, ks, buf):
        first = st == 0 and ks == 0
        return [f"v_mfma_f32_32x32x16_bf16 {a(AC+16*t,16)}, {v(AF+28*buf+4*t,4)}, {a(HB+16*st+4*ks,4)}, {'0' if first else a(AC+16*t,16)}" for t in range(7)]
    stamp(k, "setup")
    k.wait("W0"); k("s_barrier")
    stamp(k, "W0")
    for x in reads(0, 0, 0): k(x)
    step = 0
    for st in range(8):
        for ks in range(4):
            nst, nks = (st, ks + 1) if ks < 3 else (st + 1, 0)
            rd = []
            if nst < 8:
                if nks == 0:
                    k.wait(f"W{nst % NS}"); k("s_barrier")
                    if st + 4 < 8 and st >= 0: dma((st + 4) % NS)
                rd = reads(nst, nks, (step + 1) % 2)
            for x in interleave(mf(st, ks, step % 2), rd): k(x)
            step += 1
        stamp(k, f"st{st}")
    K0_ = -2 * math.sqrt(2 / math.pi) * LOG2E
    k(f"s_mov_b32 s36, {f32(K0_*0.044715)}"); k(f"v_mov_b32 v{TT+1}, {f32(K0_)}")
    k(f"s_lshl_b32 s{sT1}, s{sRB}, 2"); k(f"s_add_u32 s{sT1}, s{sT1}, s{sW}"); k(f"s_mul_i32 s{sT1}, s{sT1}, {224*512}")
    k(f"s_mul_i32 s{sT0}, s{sFS}, {14*512}"); k(f"s_add_u32 s{sT1}, s{sT1}, s{sT0}"); k(f"s_add_u32 s{sT1}, s{sT1}, {WS_ACT:#x}")
    k(f"s_add_u32 s{sT0}, s{sT1}, 4096")
    for t in range(7):
        G = 8 + 24 * (t % 2)
        for r in range(16): k(f"v_accvgpr_read_b32 v{G+r}, a{AC+16*t+r}")
        for r in range(8): k(f"v_mul_f32 v{G+16+r}, v{G+r}, v{G+r}")
        for r in range(8): k(f"v_fma_f32 v{G+16+r}, v{G+16+r}, s36, v{TT+1}")
        for r in range(8): k(f"v_mul_f32 v{G+16+r}, v{G+16+r}, v{G+r}")
        for r in range(8): k(f"v_exp_f32 v{G+16+r}, v{G+16+r}")
        for r in range(8): k(f"v_mul_f32 v{G+r}, v{G+r}, v{G+8+r}")
        for r in range(8): k(f"v_add_f32 v{G+16+r}, 1.0, v{G+16+r}")
        for r in range(8): k(f"v_rcp_f32 v{G+16+r}, v{G+16+r}")
        for r in range(8): k(f"v_mul_f32 v{G+r}, v{G+r}, v{G+16+r}")
        D = 56 + 4 * (t % 2)
        for j in range(4): k(f"v_cvt_pk_bf16_f32 v{D+j}, v{G+2*j}, v{G+2*j+1}")
        k(f"buffer_store_dwordx4 {v(D,4)}, v{VL16}, s[24:27], s{sT1 if t<4 else sT0} offen offset:{1024*(t%4)}")
    stamp_flush(k, 4)
    k.label("END_ffn1"); k("s_endpgm")
    return k

def gen_ffn2():
    NSL = 14
    k = Kernel("ffn2_kernel", 256, 256, 4 * NSL * 2048, vgpr=256, agpr=64, sgpr=48)
    BFR = 16
    AF = 128
    VD0, VD1, VW, VL16, TT = 2, 3, 4, 6, 144
    sW, sNB, sRB, sT0, sT1, sKS, sRING, sAB = 28, 29, 30, 31, 32, 33, 34, 35
    k("s_cmp_ge_u32 s2, 256"); k("s_cbranch_scc1 END_ffn2")
    stamp_begin(k)
    k(f"s_load_dwordx2 s[40:41], s[0:1], {A_WD}")
    k(f"s_load_dwordx2 s[42:43], s[0:1], {A_OUT}")
    k(f"s_load_dwordx2 s[44:45], s[0:1], {A_WS}")
    wave_id(k, sW, TT)
    k(f"v_and_b32 v{TT}, 63, v0"); k(f"v_lshlrev_b32 v{VL16}, 4, v{TT}")
    k(f"s_and_b32 s{sNB}, s2, 7"); k(f"s_lshr_b32 s{sRB}, s2, 3")
    k.srd(8, 40, 1792 * 1024); k.srd(12, 42, 2048 * 1024); k.srd(24, 44, WS_BYTES)
    k(f"v_lshrrev_b32 v{TT+1}, 3, v{TT}")
    k(f"v_bfe_u32 v{TT+2}, v{TT}, 4, 1"); k(f"v_lshlrev_b32 v{TT+2}, 2, v{TT+2}")
    k(f"v_and_b32 v{TT+3}, 7, v{TT}"); k(f"v_xor_b32 v{TT+3}, v{TT+3}, v{TT+2}"); k(f"v_lshlrev_b32 v{TT+3}, 4, v{TT+3}")
    k(f"s_lshl_b32 s{sT0}, s{sNB}, 7")
    k(f"v_lshl_add_u32 v{VD0}, v{TT+1}, 10, v{TT+3}"); k(f"v_add_u32 v{VD0}, s{sT0}, v{VD0}")
    k(f"v_add_u32 v{VD1}, {8*1024-1024}, v{VD0}")
    k(f"s_mul_i32 s{sRING}, s{sW}, {NSL*2048}")
    k(f"v_add_u32 v{VL16+1}, {224*512}, v{VL16}")
    k(f"s_cmp_ge_u32 s{sRB}, 28"); k(f"s_cselect_b32 s{sT0}, 28, 0"); k(f"s_sub_u32 s{sKS}, s{sRB}, s{sT0}")
    k(f"s_mul_i32 s36, s{sW}, 28")
    k(f"s_mul_i32 s{sAB}, s{sRB}, {2*224*512}"); k(f"s_add_u32 s{sAB}, s{sAB}, {WS_ACT:#x}")
    def issue(i):
        sl = i % NSL
        k(f"s_add_u32 s{sT1}, s{sKS}, s36")
        k(f"s_lshl_b32 s{sT0}, s{sT1}, 14")
        k(f"s_add_u32 m0, s{sRING}, {2048*sl}")
        k(f"s_lshl_b32 s{sT1}, s{sT1}, 10"); k(f"s_add_u32 s{sT1}, s{sT1}, s{sAB}")
        k(f"buffer_load_dwordx4 v{VD0}, s[8:11], s{sT0} offen lds")
        k(f"buffer_load_dwordx4 v{VD1}, s[8:11], s{sT0} offen offset:1024 lds", token=f"W{sl}")
        k(f"buffer_load_dwordx4 {v(BFR+8*sl,4)}, v{VL16}, s[24:27], s{sT1} offen")
        k(f"buffer_load_dwordx4 {v(BFR+8*sl+4,4)}, v{VL16+1}, s[24:27], s{sT1} offen")
        k(f"s_add_u32 s{sKS}, s{sKS}, 1"); k(f"s_cmp_ge_u32 s{sKS}, 28"); k(f"s_cselect_b32 s{sKS}, 0, s{sKS}")
    PRE = 12
    for i in range(PRE): issue(i)
    r_, c2, gn, h_, tm = TT + 4, TT + 5, TT + 6, TT + 7, TT + 8
    lane_tr_parts(k, TT, r_, c2, gn, h_, tm)
    k(f"v_lshl_add_u32 v{tm}, v{h_}, 3, v{r_}"); k(f"v_lshlrev_b32 v{VW}, 7, v{tm}")
    k(f"v_lshl_add_u32 v{tm+1}, v{gn}, 2, v{c2}"); k(f"v_lshl_add_u32 v{VW}, v{tm+1}, 3, v{VW}")
    k(f"v_lshrrev_b32 v{tm}, 1, v{r_}"); k(f"v_lshl_add_u32 v{VW}, v{tm}, 6, v{VW}")
    k(f"v_add_u32 v{VW}, s{sRING}, v{VW}"); k(f"v_xor_b32 v{VW+1}, 64, v{VW}")
    def reads(i):
        sl = i % NSL
        k.wait(f"W{sl}")
        for a_ in range(2):
            for u in range(2):
                k(f"ds_read_b64_tr_b16 {v(AF+8*(i%2)+4*a_+2*u,2)}, v{VW+a_} offset:{2048*sl+512*u}")
    stamp(k, "setup")
    reads(0)
    stamp(k, "first")
    for i in range(28):
        if i and i % 7 == 0: stamp(k, f"k{i}")
        if i + 1 < 28: reads(i + 1)
        for a_ in range(2):
            for rt in range(2):
                acc = a(32 * a_ + 16 * rt, 16)
                k(f"v_mfma_f32_32x32x16_bf16 {acc}, {v(AF+8*(i%2)+4*a_,4)}, {v(BFR+8*(i%NSL)+4*rt,4)}, {'0' if i==0 else acc}")
        if i + PRE < 28: issue(i + PRE)
    stamp(k, "main")
    X1R, GB = 160, 176
    k(f"s_lshl_b32 s{sT0}, s{sRB}, 1"); k(f"s_and_b32 s{sT1}, s{sW}, 1"); k(f"s_add_u32 s37, s{sT0}, s{sT1}")
    k(f"s_lshr_b32 s38, s{sW}, 1"); k(f"s_lshl_b32 s38, s38, 2"); k(f"s_lshl_b32 s{sT0}, s{sNB}, 3"); k(f"s_add_u32 s38, s38, s{sT0}")
    k(f"s_lshl_b32 s{sT0}, s37, 15"); k(f"s_lshl_b32 s{sT1}, s38, 9"); k(f"s_add_u32 s{sT0}, s{sT0}, s{sT1}"); k(f"s_add_u32 s{sT0}, s{sT0}, {WS_X1:#x}")
    for sp in range(2): k(f"buffer_load_dwordx4 {v(X1R+4*sp,4)}, v{VL16}, s[24:27], s{sT0} offen offset:{1024*sp}")
    k(f"v_lshlrev_b32 v{tm}, 5, v{h_}")
    k(f"s_lshl_b32 s{sT1}, s38, 5"); k(f"s_add_u32 s{sT1}, s{sT1}, {WS_MOD+5*2048}")
    for sp in range(2):
        for q in range(2): k(f"buffer_load_dwordx4 {v(GB+8*sp+4*q,4)}, v{tm}, s[24:27], s{sT1} offen offset:{64*sp+16*q}")
    k("s_barrier")
    k(f"s_lshl_b32 s{sT0}, s{sW}, 14"); k(f"v_add_u32 v{tm+1}, s{sT0}, v{VL16}")
    for q in range(16): k(f"ds_write_b128 v{tm+1}, {a(4*q,4)} offset:{1024*q}", token="red")
    k.wait("red"); k("s_barrier")
    k(f"s_lshl_b32 s{sT0}, s{sW}, 12"); k(f"v_add_u32 v{tm+1}, s{sT0}, v{VL16}")
    R = 16
    for ww in range(4):
        for q in range(4): k(f"ds_read_b128 {v(R+16*ww+4*q,4)}, v{tm+1} offset:{16384*ww+1024*q}")
    k("s_mov_b32 s39, 0xffff0000")
    for r in range(16):
        k(f"v_add_f32 v{R+r}, v{R+r}, v{R+16+r}"); k(f"v_add_f32 v{R+32+r}, v{R+32+r}, v{R+48+r}")
    for r in range(16):
        x = R + r
        k(f"v_add_f32 v{x}, v{x}, v{R+32+r}"); rnd(k, x, x)
        k(f"v_mul_f32 v{x}, v{x}, v{GB+r}")
        if PERT_OUT: k(f"v_mul_f32 v{x}, {f32(1+PERT_OUT)}, v{x}")
        rnd(k, x, x)
        if r % 2 == 0: k(f"v_lshlrev_b32 v{R+16+r}, 16, v{X1R+r//2}")
        else: k(f"v_and_b32 v{R+16+r}, s39, v{X1R+r//2}")
        k(f"v_add_f32 v{x}, v{x}, v{R+16+r}")
    for j in range(8): k(f"v_cvt_pk_bf16_f32 v{R+32+j}, v{R+2*j}, v{R+2*j+1}")
    k(f"v_and_b32 v{tm}, 31, v{TT}"); k(f"v_lshlrev_b32 v{tm}, 10, v{tm}"); k(f"v_lshl_add_u32 v{tm}, v{h_}, 4, v{tm}")
    k(f"s_lshl_b32 s{sT0}, s37, 15"); k(f"s_lshl_b32 s{sT1}, s38, 4"); k(f"s_add_u32 s{sT0}, s{sT0}, s{sT1}")
    for sp in range(2): k(f"buffer_store_dwordx4 {v(R+32+4*sp,4)}, v{tm}, s[12:15], s{sT0} offen offset:{32*sp}")
    stamp_flush(k, 5)
    k.label("END_ffn2"); k("s_endpgm")
    return k

HEADER = open('adaLN_cond__sliding_block_cached__geglu_ffn__prompt.s.ref').read().split("; Override launch")[0]

if __name__ == "__main__":
    mode = sys.argv[1] if len(sys.argv) > 1 else "exact"
    out = sys.argv[2] if len(sys.argv) > 2 else "k.s"
    if len(sys.argv) > 3: STAMPS = True
    ks = [gen_mod(), gen_ln(False), gen_attn(mode), gen_ln(True), gen_ffn1(), gen_ffn2()]
    txt = emit(ks, header=HEADER)
    open(out, "w").write(txt)
    import json; json.dump([[k.name, k.grid, k.block//64, k.stamps] for k in ks], open(out[:-2]+".json","w"))
    for k in ks: print(k.name, "regs(v,a,s)", k.used, "nops", k.n_nops, "instrs", len(k.items))
```

```python
import math
from asmlib import *

def gen_ffn1(M):
    P = M.P; f32 = M.f32; stamp = M.stamp
    NS = 5
    SB = 28672 + 256
    UOFF = 14336 + 128
    k = Kernel("ffn1_kernel", 256, 256, NS * SB, vgpr=128, agpr=256, sgpr=56)
    HB = 0; AC = 128; AF = 8; VD = 64; VA = 71; VL16 = 72; TT = 80
    sW, sFS, sRB, sT0, sT1, sKS, sST = 28, 29, 30, 31, 32, 33, 34
    k("s_cmp_ge_u32 s2, 256"); k("s_cbranch_scc1 END_ffn1")
    M.stamp_begin(k)
    k(f"s_load_dwordx4 s[40:43], s[0:1], {M.A_WG}")
    k(f"s_load_dwordx2 s[44:45], s[0:1], {M.A_WS}")
    k(f"s_load_dwordx2 s[46:47], s[0:1], {M.A_WD}")
    M.wave_id(k, sW, TT)
    k(f"v_and_b32 v{TT}, 63, v0"); k(f"v_lshlrev_b32 v{VL16}, 4, v{TT}")
    R = P["F1R"]
    M.split2(k, 2, sFS, sRB, 32 // R, 16, sT0, sKS)
    if R >= 8: k(f"s_and_b32 s{sKS}, s{sKS}, 7")
    else: k(f"s_lshl_b32 s{sKS}, s{sKS}, {M.lg2(8//R)}")
    if not P.get("F1ROT", 1): k(f"s_mov_b32 s{sKS}, 0")
    k(f"s_cmp_lt_u32 s{sW}, 2")
    k(f"s_cselect_b32 s35, 0, {UOFF}")
    k("s_cselect_b32 s8, s40, s42"); k("s_cselect_b32 s9, s41, s43"); k("s_and_b32 s9, s9, 0xffff")
    k(f"s_mov_b32 s10, {512*3584}"); k("s_mov_b32 s11, 0x20000")
    k.srd(24, 44, M.WS_BYTES)
    k(f"s_and_b32 s{sT0}, s{sW}, 1"); k(f"s_mul_i32 s{sT1}, s{sT0}, 7168"); k(f"s_add_u32 s35, s35, s{sT1}")
    k(f"s_mul_i32 s{sT0}, s{sT0}, 448")
    k(f"s_mul_i32 s36, s{sFS}, 224")
    k("s_mov_b32 s37, 4682")
    for n in range(7):
        k(f"v_add_u32 v{TT+1}, s{sT0}, v{TT}"); k(f"v_add_u32 v{TT+1}, {64*n}, v{TT+1}")
        k(f"v_mul_u32_u24 v{TT+2}, s37, v{TT+1}"); k(f"v_lshrrev_b32 v{TT+2}, 16, v{TT+2}")
        k(f"v_mul_u32_u24 v{TT+3}, 14, v{TT+2}"); k(f"v_sub_u32 v{TT+3}, v{TT+1}, v{TT+3}")
        k(f"v_mul_u32_u24 v{TT+2}, 3584, v{TT+2}"); k(f"v_lshl_add_u32 v{TT+2}, v{TT+3}, 4, v{TT+2}")
        k(f"v_add_u32 v{VD+n}, s36, v{TT+2}")
        if n % 4: k(f"v_subrev_u32 v{VD+n}, {1024*(n%4)}, v{VD+n}")
    def dma(slot):
        o = []
        for n in range(7):
            pre = []
            if n == 0: pre = [f"s_mul_i32 s{sT0}, s{sKS}, {64*3584}", f"s_add_u32 m0, s35, {SB*slot}", f"s_add_u32 s{sKS}, s{sKS}, 1", f"s_and_b32 s{sKS}, s{sKS}, 7"]
            if n == 4: pre = [f"s_add_u32 m0, s35, {SB*slot+4096}"]
            o.append(pre + [lambda n=n: k(f"buffer_load_dwordx4 v{VD+n}, s[8:11], s{sT0} offen offset:{1024*(n%4)} lds", token=f"W{slot}")])
        return o
    k(f"s_lshl_b32 s{sT1}, s{sRB}, 2"); k(f"s_add_u32 s{sT1}, s{sT1}, s{sW}"); k(f"s_lshl_b32 s{sT1}, s{sT1}, 15")
    k(f"s_add_u32 s38, s{sT1}, {M.WS_H2:#x}")
    k(f"s_mov_b32 s39, s{sKS}")
    def hload(st):
        o = [[f"s_lshl_b32 s{sT1}, s39, 12", f"s_add_u32 s{sT1}, s{sT1}, s38", "s_add_u32 s39, s39, 1", "s_and_b32 s39, s39, 7"]]
        for j in range(4):
            o.append(f"buffer_load_dwordx4 {a(HB+16*st+4*j,4)}, v{VL16}, s[24:27], s{sT1} offen offset:{1024*j}")
        return [o[0] + [o[1]]] + o[2:]
    M.put(k, dma(0)); M.put(k, hload(0)); M.put(k, dma(1)); M.put(k, hload(1)); M.put(k, dma(2)); M.put(k, hload(2))
    r_, c2, gn, h_, tm = TT + 4, TT + 5, TT + 6, TT + 7, TT + 8
    M.lane_tr_parts(k, TT, r_, c2, gn, h_, tm)
    k(f"v_lshl_add_u32 v{tm}, v{h_}, 3, v{r_}"); k(f"v_mul_u32_u24 v{VA}, 224, v{tm}")
    k(f"v_mul_u32_u24 v{tm}, {UOFF}, v{gn}"); k(f"v_add_u32 v{VA}, v{VA}, v{tm}"); k(f"v_lshl_add_u32 v{VA}, v{c2}, 3, v{VA}")
    k(f"v_add_u32 v{VA+2}, {2*SB}, v{VA}"); k(f"v_add_u32 v{VA+3}, {4*SB}, v{VA}")
    VAs = [VA, VA, VA + 2, VA + 2, VA + 3]; VAo = [0, SB, 0, SB, 0]
    def reads(st, ks, buf):
        slot = st % NS
        return [f"ds_read_b64_tr_b16 {v(AF+28*buf+4*t+2*u,2)}, v{VAs[slot]} offset:{VAo[slot]+224*(16*ks+4*u)+32*t}" for t in range(7) for u in range(2)]
    def mf(st, ks, buf):
        first = st == 0 and ks == 0
        return [f"v_mfma_f32_32x32x16_bf16 {a(AC+16*t,16)}, {v(AF+28*buf+4*t,4)}, {a(HB+16*st+4*ks,4)}, {'0' if first else a(AC+16*t,16)}" for t in range(7)]
    stamp(k, "setup")
    k.wait("W0"); k("s_barrier")
    stamp(k, "W0")
    for x in reads(0, 0, 0): k(x)
    step = 0
    for st in range(8):
        ld = (dma((st + 3) % NS) + hload(st + 3)) if st + 3 < 8 else []
        if P["PF2"] and st in (5, 6):
            nA = 32 // P["F2R"]; NA = 8 // nA; rows = 8 // nA
            nin = 14 // rows
            pf = [[f"buffer_load_dwordx4 {v(96+4*(n%7),4)}, v{TT+1}, s[12:15], s{sT1} offen", f"s_add_u32 s{sT1}, s{sT1}, {1024*rows}"] for n in range(nin)]
            if st == 5:
                pre = [lambda: k.srd(12, 46, 1792 * 1024),
                       f"v_lshrrev_b32 v{TT+1}, {M.lg2(8*nA)}, v{TT}", f"v_lshlrev_b32 v{TT+1}, 10, v{TT+1}", f"v_and_b32 v{TT+2}, {8*nA-1}, v{TT}", f"v_lshl_add_u32 v{TT+1}, v{TT+2}, 4, v{TT+1}",
                       f"s_lshr_b32 s{sT1}, s2, 3", f"s_lshl_b32 s{sT1}, s{sT1}, 2", f"s_add_u32 s{sT1}, s{sT1}, s{sW}", f"s_mul_i32 s{sT1}, s{sT1}, {14*1024}",
                       f"s_and_b32 s{sT0}, s2, {NA-1}", f"s_mul_i32 s{sT0}, s{sT0}, {128*nA}", f"s_add_u32 s{sT1}, s{sT1}, s{sT0}"]
                ld = [pre] + pf[:7]
            else:
                ld = [[x.replace("v[" , "v[", 1) for x in p_] for p_ in pf[7:]]
                ld = [[f"buffer_load_dwordx4 {a(240+4*(n%4),4) if n < 4 else v(76+0,4) if n == 4 else v(0+4*(n-5),4)}, v{TT+1}, s[12:15], s{sT1} offen", f"s_add_u32 s{sT1}, s{sT1}, {1024*rows}"] for n in range(len(pf[7:]))]
        for ks in range(4):
            nst, nks = (st, ks + 1) if ks < 3 else (st + 1, 0)
            fill = [[] for _ in range(7)]
            if nst < 8:
                if nks == 0: fill[0].append(lambda nst=nst: (k.wait(f"W{nst % NS}"), k("s_barrier")))
                for n, x in enumerate(reads(nst, nks, (step + 1) % 2)): fill[n * 5 // 14].append(x)
            if ks < 3:
                for n, x in enumerate(ld[4 * ks:4 * ks + 4]): fill[2 * n].append(x)
            for m, f_ in zip(mf(st, ks, step % 2), fill): k(m); M.put(k, f_)
            step += 1
        if st % 2: stamp(k, f"st{st}")
    K0_ = -2 * math.sqrt(2 / math.pi) * M.LOG2E
    k(f"s_mov_b32 s36, {f32(K0_*0.044715)}"); k("s_mov_b32 s37, s36"); k(f"v_mov_b32 v{TT+2}, {f32(K0_)}"); k(f"v_mov_b32 v{TT+3}, {f32(K0_)}")
    k(f"s_lshl_b32 s{sT1}, s{sRB}, 2"); k(f"s_add_u32 s{sT1}, s{sT1}, s{sW}"); k(f"s_mul_i32 s{sT1}, s{sT1}, {224*512}")
    k(f"s_mul_i32 s{sT0}, s{sFS}, {14*512}"); k(f"s_add_u32 s{sT1}, s{sT1}, s{sT0}"); k(f"s_add_u32 s{sT1}, s{sT1}, {M.WS_ACT:#x}")
    k(f"s_add_u32 s{sT0}, s{sT1}, 4096")
    for t in range(7):
        G = 8 + 24 * (t % 2)
        for r in range(16): k(f"v_accvgpr_read_b32 v{G+r}, a{AC+16*t+r}")
        for r in range(0, 8, 2): k(f"v_pk_mul_f32 {v(G+16+r,2)}, {v(G+r,2)}, {v(G+r,2)}")
        for r in range(0, 8, 2): k(f"v_pk_fma_f32 {v(G+16+r,2)}, {v(G+16+r,2)}, s[36:37], {v(TT+2,2)}")
        for r in range(0, 8, 2): k(f"v_pk_mul_f32 {v(G+16+r,2)}, {v(G+16+r,2)}, {v(G+r,2)}")
        for r in range(8): k(f"v_exp_f32 v{G+16+r}, v{G+16+r}")
        for r in range(0, 8, 2): k(f"v_pk_mul_f32 {v(G+r,2)}, {v(G+r,2)}, {v(G+8+r,2)}")
        for r in range(0, 8, 2): k(f"v_pk_add_f32 {v(G+16+r,2)}, {v(G+16+r,2)}, 1.0 op_sel_hi:[1,0]")
        for r in range(8): k(f"v_rcp_f32 v{G+16+r}, v{G+16+r}")
        for r in range(0, 8, 2): k(f"v_pk_mul_f32 {v(G+r,2)}, {v(G+r,2)}, {v(G+16+r,2)}")
        D = 56 + 4 * (t % 2)
        for j in range(4): k(f"v_cvt_pk_bf16_f32 v{D+j}, v{G+2*j}, v{G+2*j+1}")
        k(f"buffer_store_dwordx4 {v(D,4)}, v{VL16}, s[24:27], s{sT1 if t<4 else sT0} offen offset:{1024*(t%4)}" + ["", " nt", " sc1", " sc0 sc1"][P["AST"]])
    M.stamp_flush(k, 3)
    k.label("END_ffn1"); k("s_endpgm")
    return k

def gen_ffn2(M):
    P = M.P; f32 = M.f32; stamp = M.stamp; rnd = M.rnd
    NSL = 14
    k = Kernel("ffn2_kernel", 256, 256, 4 * NSL * 2048, vgpr=256, agpr=64, sgpr=56)
    BFR = 16; AF = 128
    VD0, VD1, VW, VL16, TT = 2, 3, 4, 6, 144
    sW, sNB, sRB, sT0, sT1, sKS, sRING, sAB = 28, 29, 30, 31, 32, 33, 34, 35
    k("s_cmp_ge_u32 s2, 256"); k("s_cbranch_scc1 END_ffn2")
    M.stamp_begin(k)
    k(f"s_load_dwordx2 s[40:41], s[0:1], {M.A_WD}")
    k(f"s_load_dwordx2 s[42:43], s[0:1], {M.A_OUT}")
    k(f"s_load_dwordx2 s[44:45], s[0:1], {M.A_WS}")
    M.wave_id(k, sW, TT)
    k(f"v_and_b32 v{TT}, 63, v0"); k(f"v_lshlrev_b32 v{VL16}, 4, v{TT}")
    R = P["F2R"]
    M.split2(k, 2, sNB, sRB, 32 // R, 32, sT0, sKS)
    k.srd(8, 40, 1792 * 1024); k.srd(12, 42, 2048 * 1024); k.srd(24, 44, M.WS_BYTES)
    stamp(k, "karg")
    k(f"v_lshrrev_b32 v{TT+1}, 3, v{TT}")
    k(f"v_bfe_u32 v{TT+2}, v{TT}, 4, 1"); k(f"v_lshlrev_b32 v{TT+2}, 2, v{TT+2}")
    k(f"v_and_b32 v{TT+3}, 7, v{TT}"); k(f"v_xor_b32 v{TT+3}, v{TT+3}, v{TT+2}"); k(f"v_lshlrev_b32 v{TT+3}, 4, v{TT+3}")
    k(f"s_lshl_b32 s{sT0}, s{sNB}, 7")
    k(f"v_lshl_add_u32 v{VD0}, v{TT+1}, 10, v{TT+3}"); k(f"v_add_u32 v{VD0}, s{sT0}, v{VD0}")
    k(f"v_add_u32 v{VD1}, {8*1024-1024}, v{VD0}")
    k(f"s_mul_i32 s{sRING}, s{sW}, {NSL*2048}")
    k(f"v_add_u32 v{VL16+1}, {224*512}, v{VL16}")
    k(f"s_lshr_b32 s{sKS}, s2, 3"); k(f"s_mul_i32 s{sKS}, s{sKS}, 7"); k(f"s_lshr_b32 s{sKS}, s{sKS}, 3")
    if not P.get("F2ROT", 1): k(f"s_mov_b32 s{sKS}, 0")
    k(f"s_mul_i32 s36, s{sW}, 28")
    k(f"s_mul_i32 s{sAB}, s{sRB}, {2*224*512}"); k(f"s_add_u32 s{sAB}, s{sAB}, {M.WS_ACT:#x}")
    def issue(i):
        sl = i % NSL
        return [[f"s_add_u32 s{sT1}, s{sKS}, s36", f"s_lshl_b32 s{sT0}, s{sT1}, 14", f"s_add_u32 m0, s{sRING}, {2048*sl}",
                 f"s_lshl_b32 s{sT1}, s{sT1}, 10", f"s_add_u32 s{sT1}, s{sT1}, s{sAB}",
                 f"buffer_load_dwordx4 v{VD0}, s[8:11], s{sT0} offen lds"],
                lambda: k(f"buffer_load_dwordx4 v{VD1}, s[8:11], s{sT0} offen offset:1024 lds", token=f"W{sl}"),
                f"buffer_load_dwordx4 {v(BFR+8*sl,4)}, v{VL16}, s[24:27], s{sT1} offen",
                [f"buffer_load_dwordx4 {v(BFR+8*sl+4,4)}, v{VL16+1}, s[24:27], s{sT1} offen",
                 f"s_add_u32 s{sKS}, s{sKS}, 1", f"s_cmp_ge_u32 s{sKS}, 28", f"s_cselect_b32 s{sKS}, 0, s{sKS}"]]
    PRE = P.get("F2PRE", 8)
    for i in range(PRE):
        M.put(k, issue(i))
        if P.get("DBG1") and i == 0:
            stamp(k, "iss0"); k.wait("W0"); stamp(k, "W0lat"); k.wait_all(); stamp(k, "A0lat")
        if P.get("DBG1") and i == 3: stamp(k, "iss3")
    r_, c2, gn, h_, tm = TT + 4, TT + 5, TT + 6, TT + 7, TT + 8
    M.lane_tr_parts(k, TT, r_, c2, gn, h_, tm)
    k(f"v_lshl_add_u32 v{tm}, v{h_}, 3, v{r_}"); k(f"v_lshlrev_b32 v{VW}, 7, v{tm}")
    k(f"v_lshl_add_u32 v{tm+1}, v{gn}, 2, v{c2}"); k(f"v_lshl_add_u32 v{VW}, v{tm+1}, 3, v{VW}")
    k(f"v_lshrrev_b32 v{tm}, 1, v{r_}"); k(f"v_lshl_add_u32 v{VW}, v{tm}, 6, v{VW}")
    k(f"v_add_u32 v{VW}, s{sRING}, v{VW}"); k(f"v_xor_b32 v{VW+1}, 64, v{VW}")
    def reads(i):
        sl = i % NSL
        k.wait(f"W{sl}")
        for a_ in range(2):
            for u in range(2):
                k(f"ds_read_b64_tr_b16 {v(AF+8*(i%2)+4*a_+2*u,2)}, v{VW+a_} offset:{2048*sl+512*u}")
    X1R, GB = 160, 176
    def epi_loads():
        k(f"s_lshl_b32 s{sT0}, s{sRB}, 1"); k(f"s_and_b32 s{sT1}, s{sW}, 1"); k(f"s_add_u32 s37, s{sT0}, s{sT1}")
        k(f"s_lshr_b32 s38, s{sW}, 1"); k(f"s_lshl_b32 s38, s38, 2"); k(f"s_lshl_b32 s{sT0}, s{sNB}, 3"); k(f"s_add_u32 s38, s38, s{sT0}")
        k(f"s_lshl_b32 s{sT0}, s37, 15"); k(f"s_lshl_b32 s{sT1}, s38, 9"); k(f"s_add_u32 s{sT0}, s{sT0}, s{sT1}"); k(f"s_add_u32 s{sT0}, s{sT0}, {M.WS_X1:#x}")
        for sp in range(2): k(f"buffer_load_dwordx4 {v(X1R+4*sp,4)}, v{VL16}, s[24:27], s{sT0} offen offset:{1024*sp}")
        k(f"v_lshlrev_b32 v{tm}, 5, v{h_}")
        k(f"s_lshl_b32 s{sT1}, s38, 5"); k(f"s_add_u32 s{sT1}, s{sT1}, {M.WS_MOD+5*2048}")
        for sp in range(2):
            for q in range(2): k(f"buffer_load_dwordx4 {v(GB+8*sp+4*q,4)}, v{tm}, s[24:27], s{sT1} offen offset:{64*sp+16*q}")
    stamp(k, "setup")
    reads(0)
    stamp(k, "first")
    for i in range(28):
        if i and i % 7 == 0: stamp(k, f"k{i}")
        if i + 1 < 28: reads(i + 1)
        iss = issue(i + PRE) if i + PRE < 28 else [[]] * 4
        n = 0
        for a_ in range(2):
            for rt in range(2):
                acc = a(32 * a_ + 16 * rt, 16)
                k(f"v_mfma_f32_32x32x16_bf16 {acc}, {v(AF+8*(i%2)+4*a_,4)}, {v(BFR+8*(i%NSL)+4*rt,4)}, {'0' if i==0 else acc}")
                M.put(k, [iss[n]]); n += 1
        if i + PRE == 28: epi_loads()
    stamp(k, "main")
    k("s_barrier")
    k(f"s_lshl_b32 s{sT0}, s{sW}, 14"); k(f"v_add_u32 v{tm+1}, s{sT0}, v{VL16}")
    for q in range(16): k(f"ds_write_b128 v{tm+1}, {a(4*q,4)} offset:{1024*q}", token="red")
    k.wait("red"); k("s_barrier")
    k(f"s_lshl_b32 s{sT0}, s{sW}, 12"); k(f"v_add_u32 v{tm+1}, s{sT0}, v{VL16}")
    R_ = 16
    for ww in range(4):
        for q in range(4): k(f"ds_read_b128 {v(R_+16*ww+4*q,4)}, v{tm+1} offset:{16384*ww+1024*q}")
    k("s_mov_b32 s39, 0xffff0000")
    for r in range(16):
        if r % 2 == 0: k(f"v_lshlrev_b32 v{96+r}, 16, v{X1R+r//2}")
        else: k(f"v_and_b32 v{96+r}, s39, v{X1R+r//2}")
    for r in range(0, 16, 2):
        k(f"v_pk_add_f32 {v(R_+r,2)}, {v(R_+r,2)}, {v(R_+16+r,2)}"); k(f"v_pk_add_f32 {v(R_+32+r,2)}, {v(R_+32+r,2)}, {v(R_+48+r,2)}")
    for r in range(0, 16, 2):
        k(f"v_pk_add_f32 {v(R_+r,2)}, {v(R_+r,2)}, {v(R_+32+r,2)}")
        k(f"v_pk_fma_f32 {v(R_+r,2)}, {v(R_+r,2)}, {v(GB+r,2)}, {v(96+r,2)}")
    for j in range(8): k(f"v_cvt_pk_bf16_f32 v{R_+32+j}, v{R_+2*j}, v{R_+2*j+1}")
    k(f"v_and_b32 v{tm}, 31, v{TT}"); k(f"v_lshlrev_b32 v{tm}, 10, v{tm}"); k(f"v_lshl_add_u32 v{tm}, v{h_}, 4, v{tm}")
    k(f"s_lshl_b32 s{sT0}, s37, 15"); k(f"s_lshl_b32 s{sT1}, s38, 4"); k(f"s_add_u32 s{sT0}, s{sT0}, s{sT1}")
    for sp in range(2): k(f"buffer_store_dwordx4 {v(R_+32+4*sp,4)}, v{tm}, s[12:15], s{sT0} offen offset:{32*sp}")
    M.stamp_flush(k, 4)
    k.label("END_ffn2"); k("s_endpgm")
    return k
```

```python
import sys, struct, math, os, json
from asmlib import *

def f32(x): return "0x%08x" % struct.unpack("<I", struct.pack("<f", x))[0]
LOG2E = 1.4426950408889634
CS = 128 ** -0.5
A_X, A_K, A_V, A_WQ, A_WO, B_X, A_WG, A_WU, A_WD, A_C, A_WM, A_OUT, A_DBG, A_WS = [8 * i for i in range(14)]
WS_MOD = 0x0
WS_ST = 0x10000
WS_P = 0x400000
WS_X1 = 0x1400000
WS_H2 = 0x1600000
WS_ACT = 0x1800000
WS_BYTES = 0x10000000
WS_DBG = 0x8000000
P = dict(STAMPS=0, G=1, ROT=1, F1R=8, F2R=8, PREF0=1, PREFC=1, BIAS=64, FORCE_FB=0, PNT=0, PST=2, AST=2, PF1=1, PF2=1)
for kv in os.environ.get("GP", "").split(","):
    if kv: P[kv.split("=")[0]] = int(kv.split("=")[1])

def stamp(k, name):
    if not P["STAMPS"]: return
    i = len(k.stamps); k.stamps.append(name)
    assert i < 17
    k.sgpr = 102
    k("s_memtime s[60:61]"); k("s_memrealtime s[62:63]"); k("s_waitcnt lgkmcnt(0)")
    k(f"s_mov_b32 s{66+2*i}, s60"); k(f"s_mov_b32 s{67+2*i}, s62")
def stamp_begin(k):
    k.stamps = []
    if not P["STAMPS"]: return
    k("v_lshrrev_b32 v1, 6, v0"); k("v_readfirstlane_b32 s101, v1")
    stamp(k, "start")
def stamp_flush(k, kidx):
    if not P["STAMPS"]: return
    stamp(k, "end")
    k(f"s_load_dwordx2 s[64:65], s[0:1], {A_WS}")
    k("s_mov_b64 exec, -1")
    k.srd(56, 64, WS_BYTES)
    k("s_lshl_b32 s100, s2, 3"); k("s_add_u32 s100, s100, s101"); k("s_lshl_b32 s100, s100, 8")
    k(f"s_add_u32 s100, s100, {WS_DBG + kidx*0x100000:#x}")
    k("v_mov_b32 v1, 0")
    for j, sr in enumerate([66 + i for i in range(2*len(k.stamps))]):
        k(f"v_mov_b32 v0, s{sr}")
        k(f"buffer_store_dword v0, v1, s[56:59], s100 offen offset:{4*j}")

def wave_id(k, sdst, vtmp):
    k(f"v_lshrrev_b32 v{vtmp}, 6, v0")
    k(f"v_readfirstlane_b32 s{sdst}, v{vtmp}")
def rowsum_8(k, val, tmp):
    k(f"v_add_f32_dpp v{val}, v{val}, v{val} row_ror:8 row_mask:0xf bank_mask:0xf")
    k(f"v_mov_b32 v{tmp}, v{val}"); k(f"v_permlane16_swap_b32 v{val}, v{tmp}"); k(f"v_add_f32 v{val}, v{val}, v{tmp}")
    k(f"v_mov_b32 v{tmp}, v{val}"); k(f"v_permlane32_swap_b32 v{val}, v{tmp}"); k(f"v_add_f32 v{val}, v{val}, v{tmp}")
def rnd(k, d, sreg): k(f"v_cvt_pk_bf16_f32 v{d}, 0, v{sreg}")
def lg2(x): return x.bit_length() - 1
def split2(k, sb, sA, sB, nA_per, nB_total, t0, t1):
    A_total = 256 // nB_total; NA = A_total // nA_per
    k(f"s_and_b32 s{t0}, s{sb}, 7"); k(f"s_lshr_b32 s{t1}, s{sb}, 3")
    k(f"s_and_b32 s{sA}, s{t0}, {NA-1}"); k(f"s_lshl_b32 s{sA}, s{sA}, {lg2(nA_per)}")
    k(f"s_and_b32 s{sB}, s{t1}, {nA_per-1}"); k(f"s_add_u32 s{sA}, s{sA}, s{sB}")
    k(f"s_lshr_b32 s{sB}, s{t0}, {lg2(NA)}"); k(f"s_lshl_b32 s{sB}, s{sB}, {lg2(32//nA_per)}")
    k(f"s_lshr_b32 s{t1}, s{t1}, {lg2(nA_per)}"); k(f"s_add_u32 s{sB}, s{sB}, s{t1}")
def lane_tr_parts(k, lane, r, c2, gn, h, tmp):
    k(f"v_bfe_u32 v{r}, v{lane}, 2, 2")
    k(f"v_and_b32 v{c2}, 1, v{lane}"); k(f"v_lshlrev_b32 v{c2}, 1, v{c2}")
    k(f"v_bfe_u32 v{tmp}, v{lane}, 1, 1"); k(f"v_or_b32 v{c2}, v{c2}, v{tmp}")
    k(f"v_bfe_u32 v{gn}, v{lane}, 4, 1")
    k(f"v_lshrrev_b32 v{h}, 5, v{lane}")

QS = CS * LOG2E
def gen_prep():
    NG_, NP_ = 192, 256
    k = Kernel("prep_kernel", NG_ + NP_, 256, 1024, vgpr=128, sgpr=64)
    k(f"s_cmp_ge_u32 s2, {NG_+NP_}"); k("s_cbranch_scc1 END_prep")
    stamp_begin(k)
    k(f"s_cmp_ge_u32 s2, {NG_}"); k("s_cbranch_scc1 ST_prep")
    k(f"s_load_dwordx4 s[4:7], s[0:1], {A_C}")
    k(f"s_load_dwordx2 s[28:29], s[0:1], {A_WS}")
    k("v_and_b32 v1, 1, v0"); k("v_lshrrev_b32 v2, 1, v0")
    k("v_mul_u32_u24 v3, 6144, v2"); k("v_lshl_add_u32 v3, v1, 4, v3")
    k("v_lshlrev_b32 v4, 1, v2")
    wave_id(k, 30, 5)
    k("s_and_b32 s31, s2, 7"); k("s_mul_i32 s31, s31, 24"); k("s_lshr_b32 s20, s2, 3"); k("s_add_u32 s31, s31, s20")
    k("s_lshl_b32 s20, s31, 5")
    k.srd(12, 6, 512 * 6144); k.srd(8, 4, 1024)
    for i in range(4):
        k(f"buffer_load_dwordx4 {v(32+4*i,4)}, v3, s[12:15], s20 offen")
        if i < 3: k(f"s_add_u32 s20, s20, {128*6144}")
    for i in range(4):
        k(f"buffer_load_ushort v{8+i}, v4, s[8:11], 0 offen offset:{256*i}")
    k.srd(16, 28, 12288, WS_MOD)
    k(f"s_mov_b32 s21, {f32(-LOG2E)}"); k("s_mov_b32 s23, 0xffff0000")
    for i in range(4):
        x = 8 + i
        k(f"v_lshlrev_b32 v{x}, 16, v{x}")
        k(f"v_mul_f32 v5, s21, v{x}"); k("v_exp_f32 v5, v5"); k("v_add_f32 v5, 1.0, v5"); k("v_rcp_f32 v6, v5")
        k(f"v_mul_f32 v7, v{x}, v6")
        rnd(k, x, 7)
    stamp(k, "x1")
    for i in range(4):
        for q in range(4):
            r = 32 + 4 * i + q
            k(f"v_lshlrev_b32 v5, 16, v{r}"); k(f"v_and_b32 v6, s23, v{r}")
            op = "v_mul_f32" if i == 0 else "v_fmac_f32"
            k(f"{op} v{16+2*q}, v5, v{8+i}"); k(f"{op} v{17+2*q}, v6, v{8+i}")
    for md in ("quad_perm:[2,3,0,1]", "row_ror:4", "row_ror:8"):
        for j in range(8):
            k(f"v_add_f32_dpp v{16+j}, v{16+j}, v{16+j} {md} row_mask:0xf bank_mask:0xf")
    stamp(k, "stats")
    k("v_lshrrev_b32 v5, 4, v0"); k("v_lshlrev_b32 v5, 6, v5"); k("v_lshl_add_u32 v5, v1, 5, v5")
    k(f"ds_write_b128 v5, {v(16,4)}", token="w"); k(f"ds_write_b128 v5, {v(20,4)} offset:16", token="w")
    k.wait("w"); k("s_barrier")
    k("s_cmp_lg_u32 s30, 0"); k("s_cbranch_scc1 END_prep")
    k("v_lshlrev_b32 v5, 2, v0")
    for i in range(4): k(f"ds_read_b32 v{32+i}, v5 offset:{256*i}")
    k("v_add_f32 v32, v32, v33"); k("v_add_f32 v34, v34, v35"); k("v_add_f32 v32, v32, v34")
    k("v_mov_b32 v33, v32"); k("v_permlane16_swap_b32 v32, v33"); k("v_add_f32 v32, v32, v33")
    k("v_mov_b32 v33, v32"); k("v_permlane32_swap_b32 v32, v33"); k("v_add_f32 v32, v32, v33")
    rnd(k, 32, 32)
    k("s_lshr_b32 s20, s31, 5"); k("s_cmp_eq_u32 s20, 1"); k("s_cselect_b32 s21, 1.0, 0")
    k("s_cmp_eq_u32 s20, 4"); k("s_cselect_b32 s21, 1.0, s21")
    k("s_cmp_lt_u32 s20, 2"); k(f"s_cselect_b32 s22, {f32(QS)}, 1.0")
    k("v_add_f32 v32, s21, v32"); k("v_mul_f32 v32, s22, v32")
    k("s_lshl_b32 s20, s31, 6")
    k("v_cmp_gt_u32 vcc, 16, v0")
    k("s_and_saveexec_b64 s[24:25], vcc")
    k("buffer_store_dword v32, v5, s[16:19], s20 offen sc1")
    stamp_flush(k, 0)
    k("s_endpgm")
    k.label("ST_prep")
    k.vm, k.lg = {}, {}
    if P["STAMPS"]: k.stamps = ["start"]
    k(f"s_load_dwordx2 s[4:5], s[0:1], {A_X}")
    k(f"s_load_dwordx2 s[6:7], s[0:1], {A_WS}")
    k("s_getpc_b64 s[32:33]")
    k.label("PCREF_prep")
    k(f"s_sub_u32 s31, s2, {NG_}")
    G = P["G"]
    split2(k, 31, 26, 25, G, 32, 20, 21)
    k("v_and_b32 v1, 7, v0"); k("v_lshrrev_b32 v2, 3, v0"); k("v_lshrrev_b32 v6, 6, v0")
    k("v_and_b32 v7, 7, v2"); k("v_lshl_add_u32 v7, v6, 4, v7")
    k("v_lshlrev_b32 v4, 10, v1"); k("v_lshl_add_u32 v4, v7, 4, v4")
    k("v_lshlrev_b32 v8, 4, v1"); k("v_lshl_add_u32 v9, v6, 2, v8")
    k("v_lshlrev_b32 v3, 4, v0")
    k.srd(8, 4, 2048 * 1024); k.srd(12, 6, WS_BYTES)
    k("s_lshl_b32 s20, s25, 16"); k("s_lshl_b32 s21, s26, 13"); k("s_add_u32 s21, s21, s20")
    X = 16; XF = 24
    for i in range(2): k(f"buffer_load_dwordx4 {v(X+4*i,4)}, v4, s[8:11], s21 offen offset:{128*i}")
    if P["PREF0"]:
        k(f"s_and_b32 s22, s26, {G-1}"); k(f"s_mul_i32 s22, s22, {65536//G}"); k("s_add_u32 s22, s22, s20")
        for i in range(16 // G):
            k(f"buffer_load_dwordx4 {v(64+4*i,4)}, v3, s[8:11], s22 offen")
            k("s_add_u32 s22, s22, 4096")
    if P["PREFC"]:
        k("s_lshr_b32 s22, s31, 3"); k("s_lshl_b32 s22, s22, 12")
        k("s_cmp_ge_u32 s22, CODE_END-attn_kernel-4095"); k("s_cbranch_scc1 NOPC_prep")
        k("s_add_u32 s22, s22, attn_kernel-PCREF_prep")
        k("s_add_u32 s32, s32, s22"); k("s_addc_u32 s33, s33, 0")
        k("global_load_dwordx4 v[60:63], v3, s[32:33]")
        k.label("NOPC_prep")
        k.vm = {kk: max(0, p - 1) for kk, p in k.vm.items()}
    k("s_mov_b32 s24, 0xffff0000")
    for q in range(8):
        k(f"v_lshlrev_b32 v{XF+2*q}, 16, v{X+q}"); k(f"v_and_b32 v{XF+2*q+1}, s24, v{X+q}")
    stamp(k, "x1")
    ln_stats(k, XF)
    stamp(k, "stats")
    k("v_mul_f32 v10, v58, v56"); k("v_mov_b32 v11, v56")
    k("v_lshlrev_b32 v5, 6, v1")
    k("s_lshl_b32 s20, s25, 9"); k("s_lshl_b32 s21, s26, 3"); k("s_add_u32 s20, s20, s21"); k(f"s_add_u32 s20, s20, {WS_ST:#x}")
    k("v_cmp_gt_u32 vcc, 8, v0")
    k("s_and_saveexec_b64 s[28:29], vcc")
    k("s_cbranch_execz SKIPST_prep")
    k("buffer_store_dwordx2 v[10:11], v5, s[12:15], s20 offen sc1")
    k.label("SKIPST_prep")
    stamp_flush(k, 0)
    k.label("END_prep"); k("s_endpgm")
    return k

def ln_stats(k, XF):
    k(f"v_pk_add_f32 v[10:11], {v(XF,2)}, {v(XF+2,2)}")
    for e in range(4, 16, 2): k(f"v_pk_add_f32 v[10:11], v[10:11], {v(XF+e,2)}")
    k("v_add_f32 v10, v10, v11")
    def allreduce(off):
        rowsum_8(k, 10, 11)
        k(f"ds_write_b32 v9, v10 offset:{off}", token="w"); k.wait("w"); k("s_barrier")
        k(f"ds_read_b128 {v(12,4)}, v8 offset:{off}")
        k("v_add_f32 v12, v12, v13"); k("v_add_f32 v14, v14, v15"); k("v_add_f32 v10, v12, v14")
    allreduce(0)
    k(f"v_mul_f32 v58, {f32(-1/512)}, v10"); k("v_mov_b32 v59, v58")
    for e in range(0, 16, 2): k(f"v_pk_add_f32 {v(XF+e,2)}, {v(XF+e,2)}, v[58:59]")
    k(f"v_pk_mul_f32 v[10:11], {v(XF,2)}, {v(XF,2)}")
    for e in range(2, 16, 2): k(f"v_pk_fma_f32 v[10:11], {v(XF+e,2)}, {v(XF+e,2)}, v[10:11]")
    k("v_add_f32 v10, v10, v11")
    allreduce(128)
    k(f"v_mov_b32 v11, {f32(1e-5)}"); k(f"v_fmac_f32 v11, {f32(1/512)}, v10")
    k("v_rsq_f32 v56, v11"); k("v_mov_b32 v57, v56")

def gen_ln2():
    k = Kernel("ln2_kernel", 256, 256, 256, vgpr=160, sgpr=64)
    k("s_cmp_ge_u32 s2, 256"); k("s_cbranch_scc1 END_ln2")
    stamp_begin(k)
    k(f"s_load_dwordx2 s[4:5], s[0:1], {A_X}")
    k(f"s_load_dwordx2 s[6:7], s[0:1], {A_WS}")
    k("v_and_b32 v1, 7, v0"); k("v_lshrrev_b32 v2, 3, v0"); k("v_lshrrev_b32 v6, 6, v0")
    k("v_and_b32 v7, 7, v2"); k("v_lshl_add_u32 v7, v6, 4, v7")
    k("v_lshlrev_b32 v3, 9, v7"); k("v_lshl_add_u32 v3, v1, 4, v3")
    k("v_add_u32 v2, 4096, v3")
    k("v_lshlrev_b32 v4, 10, v1"); k("v_lshl_add_u32 v4, v7, 4, v4")
    k("v_lshlrev_b32 v5, 5, v7")
    k("v_lshlrev_b32 v8, 4, v1"); k("v_lshl_add_u32 v9, v6, 2, v8")
    k("s_and_b32 s25, s2, 7"); k("s_lshl_b32 s25, s25, 5"); k("s_lshr_b32 s26, s2, 3"); k("s_add_u32 s25, s25, s26")
    k("s_lshl_b32 s20, s25, 13")
    k("s_lshr_b32 s21, s25, 2"); k("s_lshl_b32 s21, s21, 15"); k("s_and_b32 s22, s25, 3"); k("s_lshl_b32 s22, s22, 7")
    k("s_add_u32 s21, s21, s22")
    k(f"s_add_u32 s23, s21, {WS_P:#x}")
    k.srd(12, 6, WS_BYTES)
    X = 16; XF = 24; MV = 40; PB = 64
    for g in range(8):
        for i in range(2):
            k(f"buffer_load_dwordx4 {v(PB+8*g+4*i,4)}, v{3-i}, s[12:15], s23 offen" + (" nt" if P["PNT"] else ""))
        if g < 7: k("s_add_u32 s23, s23, 0x200000")
    k.srd(8, 4, 2048 * 1024)
    for i in range(2): k(f"buffer_load_dwordx4 {v(X+4*i,4)}, v4, s[8:11], s20 offen offset:{128*i}")
    k("s_mov_b32 s24, 0xffff0000")
    def load_mod(base, m):
        k(f"s_mov_b32 s23, {WS_MOD + m*2048}")
        for i in range(2):
            for hh in range(2):
                k(f"buffer_load_dwordx4 {v(base+8*i+4*hh,4)}, v5, s[12:15], s23 offen offset:{256*i+16*hh}")
    def unpack(dst, src):
        k(f"v_lshlrev_b32 v{dst}, 16, v{src}"); k(f"v_and_b32 v{dst+1}, s24, v{src}")
    load_mod(MV, 2); load_mod(128, 4); load_mod(144, 3)
    for q in range(8): unpack(XF + 2 * q, PB + q)
    for g in range(1, 8):
        for q in range(8):
            unpack(10 + 2 * (q & 1), PB + 8 * g + q)
            k(f"v_pk_add_f32 {v(XF+2*q,2)}, {v(XF+2*q,2)}, {v(10+2*(q&1),2)}")
    for q in range(8):
        unpack(10, X + q)
        k(f"v_pk_fma_f32 v[10:11], {v(XF+2*q,2)}, {v(MV+2*q,2)}, v[10:11]")
        k(f"v_cvt_pk_bf16_f32 v{X+q}, v10, v11")
        unpack(XF + 2 * q, X + q)
    k(f"s_add_u32 s23, s21, {WS_X1:#x}")
    for i in range(2): k(f"buffer_store_dwordx4 {v(X+4*i,4)}, v{3-i}, s[12:15], s23 offen sc1")
    stamp(k, "x1")
    ln_stats(k, XF)
    stamp(k, "stats")
    for e in range(0, 16, 2):
        k(f"v_pk_mul_f32 {v(XF+e,2)}, {v(XF+e,2)}, v[56:57]")
        k(f"v_pk_fma_f32 {v(XF+e,2)}, {v(XF+e,2)}, {v(128+e,2)}, {v(144+e,2)}")
        k(f"v_cvt_pk_bf16_f32 v{MV+e//2}, v{XF+e}, v{XF+e+1}")
    k(f"s_add_u32 s23, s21, {WS_H2:#x}")
    for i in range(2): k(f"buffer_store_dwordx4 {v(MV+4*i,4)}, v{3-i}, s[12:15], s23 offen sc1")
    stamp_flush(k, 2)
    k.label("END_ln2"); k("s_endpgm")
    return k

def put(k, seq):
    for x in seq:
        if isinstance(x, list): put(k, x)
        elif callable(x): x()
        else: k(x)

def gen_attn():
    k = Kernel("attn_kernel", 256, 256, 163840, vgpr=256, agpr=256, sgpr=60)
    L_K, L_H, L_V, L_W = 0, 32768, 32768, 98304
    ACC = 0; S = 0; CI = 64; Q = 128
    VK = 192; VV = 200; VW = 204; VDW = 208; VDK = 212; VDV = 214; VLIN = 215; VL16 = 216
    LS = 217
    T = 220
    O = 0; FR = 128; AF = 128; BF = 160
    sW, sG, sRB, sKS, sT0, sT1, sRING, sST, sKVB, sKt, sVt, sFB, sROT, sT2 = 28, 29, 30, 31, 32, 33, 34, 35, 36, 37, 38, 39, 50, 51
    k("s_cmp_ge_u32 s2, 256"); k("s_cbranch_scc1 END_attn")
    stamp_begin(k)
    k(f"s_load_dwordx2 s[4:5], s[0:1], {A_X}")
    k(f"s_load_dwordx2 s[48:49], s[0:1], {A_WS}")
    k(f"s_load_dwordx8 s[40:47], s[0:1], {A_K}")
    wave_id(k, sW, T)
    LN_ = T
    k(f"v_and_b32 v{LN_}, 63, v0"); k(f"v_lshlrev_b32 v{VL16}, 4, v{LN_}")
    G = P["G"]
    split2(k, 2, sG, sRB, G, 32, sT0, sROT)
    if P["ROT"]: k(f"s_lshl_b32 s{sROT}, s{sROT}, {lg2(G)}")
    else: k(f"s_mov_b32 s{sROT}, 0")
    RR, CGL = T + 3, T + 4
    k(f"v_and_b32 v{RR}, 7, v{LN_}"); k(f"v_lshrrev_b32 v{CGL}, 3, v{LN_}")
    k(f"v_lshlrev_b32 v{T+5}, 10, v{RR}"); k(f"v_lshl_add_u32 v{T+5}, v{CGL}, 4, v{T+5}")
    k(f"v_lshlrev_b32 v{T+6}, 5, v{CGL}")
    k(f"v_lshlrev_b32 v{T+7}, 6, v{RR}")
    k(f"s_lshl_b32 s{sT2}, s{sW}, 9")
    k(f"s_lshl_b32 s{sT1}, s{sRB}, 9"); k(f"s_add_u32 s{sT1}, s{sT1}, {WS_ST:#x}")
    k(f"s_lshl_b32 s{sT0}, s{sRB}, 16"); k(f"s_lshl_b32 s54, s{sW}, 8"); k(f"s_add_u32 s{sT0}, s{sT0}, s54")
    k.srd(24, 48, WS_BYTES)
    XH = 0; MG = 64; MS = 80; STT = 96
    for cb in range(2):
        for q in range(2):
            k(f"buffer_load_dwordx4 {v(MG+8*cb+4*q,4)}, v{T+6}, s[24:27], s{sT2} offen offset:{2048+256*cb+16*q}")
            k(f"buffer_load_dwordx4 {v(MS+8*cb+4*q,4)}, v{T+6}, s[24:27], s{sT2} offen offset:{256*cb+16*q}")
    for q in range(4): k(f"buffer_load_dwordx4 {v(STT+4*q,4)}, v{T+7}, s[24:27], s{sT1} offen offset:{16*q}")
    k.srd(12, 4, 2048 * 1024)
    for o in range(8):
        for cb in range(2):
            k(f"buffer_load_dwordx4 {v(XH+8*o+4*cb,4)}, v{T+5}, s[12:15], s{sT0} offen offset:{128*cb}")
        if o < 7: k(f"s_add_u32 s{sT0}, s{sT0}, 8192")
    k.srd(8, 44, 512 * 8192)
    ROWL, GR16 = T + 1, T + 2
    k(f"v_lshrrev_b32 v{ROWL}, 4, v{LN_}")
    k(f"v_and_b32 v{T+8}, 15, v{LN_}"); k(f"v_lshlrev_b32 v{GR16}, 2, v{ROWL}"); k(f"v_xor_b32 v{GR16}, v{GR16}, v{T+8}")
    k(f"v_lshlrev_b32 v{GR16}, 4, v{GR16}")
    def w_voffs(psh, scol):
        return [f"v_lshl_add_u32 v{VDW}, v{ROWL}, {psh}, v{GR16}", f"v_add_u32 v{VDW}, s{scol}, v{VDW}"] + \
               [f"v_add_u32 v{VDW+n}, {n*((4<<psh)-1024)}, v{VDW}" for n in range(1, 4)]
    k(f"s_lshl_b32 s{sT0}, s{sG}, 10"); k(f"s_add_u32 s{sT0}, s{sT0}, s54")
    put(k, w_voffs(13, sT0))
    k(f"s_lshl_b32 s{sRING}, s{sW}, 14"); k(f"s_add_u32 s{sRING}, s{sRING}, {L_W}")
    def w_dma(slot, srd, shift):
        o = [[f"s_lshl_b32 s{sT0}, s{sKS}, {shift}", f"s_add_u32 m0, s{sRING}, {4096*slot}", f"s_add_u32 s{sKS}, s{sKS}, 1", f"s_and_b32 s{sKS}, s{sKS}, 31",
              f"buffer_load_dwordx4 v{VDW}, s[{srd}:{srd+3}], s{sT0} offen lds"]]
        for n in range(1, 4):
            o.append(lambda n=n: k(f"buffer_load_dwordx4 v{VDW+n}, s[{srd}:{srd+3}], s{sT0} offen offset:{1024*n} lds", token=f"W{slot}"))
        return o
    k(f"s_mov_b32 s{sKS}, s{sROT}")
    for sl in range(3): put(k, w_dma(sl, 8, 17))
    HW = T + 14
    k(f"s_lshl_b32 s{sT2}, s{sW}, 3"); k(f"s_sub_u32 s{sT2}, s{sT2}, s{sROT}")
    k(f"v_lshrrev_b32 v{T+8}, 1, v{CGL}"); k(f"v_add_u32 v{T+8}, s{sT2}, v{T+8}")
    k(f"v_and_b32 v{T+9}, 1, v{CGL}"); k(f"v_lshlrev_b32 v{T+9}, 9, v{T+9}"); k(f"v_lshl_add_u32 v{T+9}, v{RR}, 4, v{T+9}"); k(f"v_add_u32 v{T+9}, {L_H}, v{T+9}")
    for cb in range(2):
        k(f"v_add_u32 v{T+10}, {4*cb}, v{T+8}"); k(f"v_and_b32 v{T+10}, 31, v{T+10}"); k(f"v_lshl_add_u32 v{HW+cb}, v{T+10}, 10, v{T+9}")
    k.srd(12, 40, 8 * 2048 * 256); k.srd(16, 42, 8 * 2048 * 256); k.srd(20, 46, 4096 * 1024)
    r_, c2, gn, h_, tm = T + 5, T + 6, T + 7, T + 8, T + 9
    lane_tr_parts(k, LN_, r_, c2, gn, h_, tm)
    CH8 = T + 13
    k(f"v_lshl_add_u32 v{CH8}, v{gn}, 2, v{c2}"); k(f"v_lshlrev_b32 v{CH8}, 3, v{CH8}")
    k(f"v_lshl_add_u32 v{tm}, v{h_}, 3, v{r_}"); k(f"v_lshl_add_u32 v{tm}, v{tm}, 8, v{CH8}"); k(f"v_add_u32 v{tm}, s{sRING}, v{tm}")
    for a_ in range(4):
        k(f"v_xor_b32 v{tm+1}, {a_}, v{r_}"); k(f"v_lshl_add_u32 v{VW+a_}, v{tm+1}, 6, v{tm}")
    def kv_addr():
        k(f"v_lshl_add_u32 v{tm}, v{h_}, 2, v{r_}"); k(f"v_lshl_add_u32 v{tm}, v{tm}, 8, v{CH8}"); k(f"v_add_u32 v{tm}, {L_V}, v{tm}")
        for dt in range(4):
            k(f"v_xor_b32 v{tm+1}, {dt}, v{r_}"); k(f"v_lshl_add_u32 v{VV+dt}, v{tm+1}, 6, v{tm}")
        k(f"v_and_b32 v{tm}, 31, v{LN_}"); k(f"v_and_b32 v{tm+1}, 15, v{LN_}"); k(f"v_xor_b32 v{tm+1}, v{tm+1}, v{h_}")
        k(f"v_lshlrev_b32 v{tm}, 8, v{tm}"); k(f"v_lshl_add_u32 v{VK}, v{tm+1}, 4, v{tm}")
        for s_ in range(1, 8): k(f"v_xor_b32 v{VK+s_}, {s_*32}, v{VK}")
        k(f"s_lshr_b32 s{sKt}, s{sROT}, 1"); k(f"s_mov_b32 s{sVt}, s{sKt}")
        k(f"s_lshl_b32 s{sKL}, s{sW}, 11"); k(f"s_add_u32 s{sVL}, s{sKL}, {L_V+16384}"); k(f"s_add_u32 s{sKL}, s{sKL}, {L_K+16384}")
        k(f"v_mov_b32 v{LS}, 0"); k(f"v_mov_b32 v{LS+1}, 0")
    sKL, sVL = 52, 53
    kv_addr()
    k(f"v_add_u32 v{VLIN}, {L_H}, v{VL16}")
    k(f"v_lshl_add_u32 v{VDV}, v{ROWL}, 8, v{GR16}")
    k(f"s_and_b32 s{sT0}, s{sW}, 1"); k(f"s_lshl_b32 s{sT0}, s{sT0}, 3")
    k(f"v_or_b32 v{tm}, s{sT0}, v{ROWL}"); k(f"v_and_b32 v{tm+1}, 15, v{LN_}"); k(f"v_xor_b32 v{tm}, v{tm}, v{tm+1}")
    k(f"v_lshlrev_b32 v{VDK}, 8, v{ROWL}"); k(f"v_lshl_add_u32 v{VDK}, v{tm}, 4, v{VDK}")
    k(f"v_xor_b32 v{VDK+1}, 64, v{VDK}")
    k(f"s_lshl_b32 s{sKVB}, s{sG}, 19"); k(f"s_lshl_b32 s{sT0}, s{sW}, 11"); k(f"s_add_u32 s{sKVB}, s{sKVB}, s{sT0}")
    k(f"s_add_u32 s{sKVB}, s{sKVB}, {1536*256}")
    def kv_dma(which, lds_off, dyn=None):
        st = sKt if which == "K" else sVt
        srd = 12 if which == "K" else 16
        t_ = 56 if which == "K" else 57
        o = [f"s_lshl_b32 s{t_}, s{st}, 13", f"s_add_u32 s{t_}, s{t_}, s{sKVB}"]
        if dyn is None: o += [f"s_lshl_b32 s{sT1}, s{sW}, 11", f"s_add_u32 m0, s{sT1}, {lds_off}"]
        else: o += [f"s_add_u32 m0, s{dyn}, {lds_off}"]
        o += [f"s_add_u32 s{st}, s{st}, 1", f"s_and_b32 s{st}, s{st}, 15",
              f"buffer_load_dwordx4 v{VDK if which=='K' else VDV}, s[{srd}:{srd+3}], s{t_} offen lds"]
        return [o, lambda: k(f"buffer_load_dwordx4 v{VDK+1 if which=='K' else VDV}, s[{srd}:{srd+3}], s{t_} offen offset:1024 lds", token=which)]
    for off in (L_K + 16384 + 8192, L_K, L_K + 8192): put(k, kv_dma("K", off))
    k(f"s_mov_b32 s{sFB}, 0")
    k("s_mov_b32 s58, 0xffff0000")
    stamp(k, "setup")
    U = 128
    for o in range(8):
        for cb in range(2):
            x = XH + 8 * o + 4 * cb
            u = U + 8 * cb + 16 * (o & 1)
            st = v(STT + 2 * o, 2)
            for q in range(4):
                k(f"v_lshlrev_b32 v{u+2*q}, 16, v{x+q}"); k(f"v_and_b32 v{u+2*q+1}, s58, v{x+q}")
            for q in range(4): k(f"v_pk_fma_f32 {v(u+2*q,2)}, {v(u+2*q,2)}, {st}, {st} op_sel:[0,1,0] op_sel_hi:[1,1,0]")
            for q in range(4): k(f"v_pk_fma_f32 {v(u+2*q,2)}, {v(u+2*q,2)}, {v(MG+8*cb+2*q,2)}, {v(MS+8*cb+2*q,2)}")
            for q in range(4): k(f"v_cvt_pk_bf16_f32 v{x+q}, v{u+2*q}, v{u+2*q+1}")
            k(f"ds_write_b128 v{HW+cb}, {v(x,4)} offset:{32768*(o>>2)+128*(o&3)}", token="hw")
    k.wait("hw"); k("s_barrier")
    stamp(k, "mod")
    fr = lambda f: FR + 4 * (f % 8)
    def rdK(f, s_, off): return [f"ds_read_b128 {a(fr(f),4)}, v{VK+s_} offset:{off}"]
    def rdV(f, i, off): return [f"ds_read_b64_tr_b16 {a(fr(f)+2*u,2)}, v{VV+i%4} offset:{off+4096*(i//4)+2048*u}" for u in range(2)]
    def g_reads(step, buf):
        slot = step % 4
        o = [lambda: k.wait(f"W{slot}")]
        rd = [f"ds_read_b64_tr_b16 {a(AF+16*buf+4*a_+2*u,2)}, v{VW+a_} offset:{4096*slot+1024*u}" for a_ in range(4) for u in range(2)]
        rb_ = [f"ds_read_b128 {a(BF+8*buf+4*rt,4)}, v{VLIN} offset:{1024*step+32768*rt}" for rt in range(2)]
        return [rb_[0], rb_[1], o + [rd[0]]] + rd[1:]
    def g_mfma(buf, first=False):
        return [f"v_mfma_f32_32x32x16_bf16 {v(ACC+32*a_+16*rt,16)}, {a(AF+16*buf+4*a_,4)}, {a(BF+8*buf+4*rt,4)}, {'0' if first else v(ACC+32*a_+16*rt,16)}"
                for a_ in range(4) for rt in range(2)]
    def gemm(srd, shift, tail=None):
        put(k, g_reads(0, 0))
        def body(first=False, last=False):
            for i in range(4):
                fill = [[] for _ in range(8)]
                if not (last and i == 3):
                    rd = g_reads(i + 1, (i + 1) % 2)
                    for n, x in enumerate(rd): fill[n * 6 // 10].append(x)
                if not last or i == 0:
                    for n, x in enumerate(w_dma((i + 3) % 4, srd, shift)): fill[2 * n + 1].append(x)
                if last and i == 3 and tail: tail(fill)
                if i == 3 and not last: fill[7].append(f"v_add_u32 v{VLIN}, 4096, v{VLIN}")
                for m, f_ in zip(g_mfma(i % 2, first and i == 0), fill): k(m); put(k, f_)
        body(first=True)
        k.loop(sST, 6, body, align=3)
        body(last=True)
    def qtail(fill):
        fill[0].append(lambda: (k.wait_all(), k("s_barrier")))
        for f in range(4): fill[1 + f].append(rdK(f, f, L_K + 16384 + 8192))
        dm = kv_dma("V", L_V) + kv_dma("V", L_V + 8192)
        for n, x in enumerate(dm): fill[1 + n].append(x)
        fill[5].append([f"s_lshl_b32 s{sT0}, s{sG}, 19", f"s_add_u32 s{sT0}, s{sT0}, s54", f"v_add_u32 v{VLIN}, {L_H}, v{VL16}", f"s_mov_b32 s{sKS}, s{sROT}"] + w_voffs(10, sT0))
        fill[6].append(qepi(0)[:8]); fill[7].append(qepi(0)[8:])
    def qepi(a_):
        return [f"v_cvt_pk_bf16_f32 v{Q+16*a_+8*(j//4)+4*rt+j%4}, v{ACC+32*a_+16*rt+2*j}, v{ACC+32*a_+16*rt+2*j+1}" for rt in range(2) for j in range(8)]
    gemm(8, 17, qtail)
    stamp(k, "qgemm")
    def qk(f, s_, qt, buf, zero):
        d = v(S + 32 * buf + 16 * qt, 16)
        c = d if s_ else ("0" if zero else v(CI + 16 * qt, 16))
        return f"v_mfma_f32_32x32x16_bf16 {d}, {a(fr(f),4)}, {v(Q+8*s_+4*qt,4)}, {c}"
    def pv(f, i, qt, buf, zero=False):
        d = a(O + 32 * (i % 4) + 16 * qt, 16)
        return f"v_mfma_f32_32x32x16_bf16 {d}, {a(fr(f),4)}, {v(S+32*buf+16*qt+8*(i//4),4)}, {'0' if zero else d}"
    def sreg(buf, e): return S + 32 * buf + 16 * ((e >> 3) & 1) + 8 * (e >> 4) + (e & 7)
    def sm(buf, e, addci=False):
        o = []
        if e < 32:
            if addci: o.append(f"v_add_f32 v{sreg(buf,e)}, v{sreg(buf,e)}, v{CI+16*((e>>3)&1)}")
            o.append(f"v_exp_f32 v{sreg(buf,e)}, v{sreg(buf,e)}")
        if e >= 1:
            p = e - 1
            o.append(f"v_add_f32 v{LS+((p>>3)&1)}, v{LS+((p>>3)&1)}, v{sreg(buf,p)}")
            if p & 1:
                o.append(f"v_cvt_pk_bf16_f32 v{sreg(buf,p&~7)+(p&7)//2}, v{sreg(buf,p-1)}, v{sreg(buf,p)}")
        return o
    def qk0(epi):
        wd = w_dma(0, 20, 14) + w_dma(1, 20, 14) + w_dma(2, 20, 14) if epi else []
        for s_ in range(8):
            ep = qepi(s_ // 2 + 1)[8 * (s_ & 1):8 * (s_ & 1) + 8] if epi and s_ < 6 else []
            k(qk(s_, s_, 0, 0, True))
            put(k, rdK(s_ + 4, s_ + 4, L_K + 16384 + 8192) if s_ < 4 else rdK(s_ + 4, s_ - 4, L_K))
            put(k, ep[:4]); put(k, wd[2 * s_:2 * s_ + 1])
            k(qk(s_, s_, 1, 0, True))
            put(k, ep[4:]); put(k, wd[2 * s_ + 1:2 * s_ + 2])
    qk0(True)
    stamp(k, "qk0")
    k.label("IT0")
    def maxops(buf, dst):
        o = []
        for qt in range(2):
            b = S + 32 * buf + 16 * qt; t = dst + qt
            o.append(f"v_max3_f32 v{t}, v{b}, v{b+1}, v{b+2}")
            for i in range(3, 15, 2): o.append(f"v_max3_f32 v{t}, v{t}, v{b+i}, v{b+i+1}")
            o.append(f"v_max_f32 v{t}, v{t}, v{b+15}")
        return [x for pr in zip(o[:8], o[8:]) for x in pr]
    def xhalf_max(t, t2):
        return [f"v_mov_b32 v{t2}, v{t}", f"v_mov_b32 v{t2+1}, v{t+1}", f"v_permlane32_swap_b32 v{t}, v{t2}", f"v_permlane32_swap_b32 v{t+1}, v{t2+1}",
                f"v_max_f32 v{t}, v{t}, v{t2}", f"v_max_f32 v{t+1}, v{t+1}, v{t2+1}"]
    MX = T + 16
    def iteration(first=False, last=False):
        mf = []; fill = [[] for _ in range(64)]
        for g in range(64):
            f = g // 2; qt = g & 1; ph = g // 16; i = f % 8
            if ph == 0: mf.append(qk(f, i, qt, 1, first))
            elif ph == 1: mf.append(pv(f, i, qt, 0, first and i < 4))
            elif ph == 2: mf.append(None if last else qk(f, i, qt, 0, False))
            else: mf.append(pv(f, i, qt, 1))
        for f in range(4, 32):
            ph = f // 8; i = f % 8
            if ph == 2 and last: continue
            rd = rdK(f, i, 8192 * (ph // 2)) if ph % 2 == 0 else rdV(f, i, 8192 * (ph // 2))
            g = 2 * (f - 4)
            sp = first and ph == 1 and i < 4
            if sp: g = 11 + i
            if last and ph == 3: g = 2 * (f - 12) if i < 4 else 2 * (f - 4)
            for n, x in enumerate(rd): fill[g + (0 if sp else n)].append(x)
        if first:
            fill[10].append(lambda: (k.wait("V"), k("s_barrier")))
            dm = kv_dma("K", 0, sKL) + kv_dma("K", 8192, sKL) + kv_dma("V", 0, sVL) + kv_dma("V", 8192, sVL)
            for n, x in enumerate(dm): fill[22 + 2 * n].append(x)
            fill[40].append([f"s_xor_b32 s{sKL}, s{sKL}, 16384", f"s_xor_b32 s{sVL}, s{sVL}, 16384"])
            mx = maxops(0, MX) + xhalf_max(MX, MX + 2)
            mx += [f"s_cmp_lg_u32 s{sFB}, 0", "s_cselect_b64 vcc, -1, 0"]
            mx += [f"v_sub_f32 v{CI+16*qt}, {f32(-float(P['BIAS']))}, v{MX+qt}" for qt in range(2)]
            mx += [f"v_cndmask_b32 v{CI+16*qt}, v{CI+16*qt}, v{MX+4+qt}, vcc" for qt in range(2)]
            for n, x in enumerate(mx): fill[1 + n * 4 // len(mx)].append(x)
            for e in range(33): fill[5 + e * 10 // 16 if e < 16 else 15 + (e - 16) * 7 // 17].append(sm(0, e, True))
            cp = [f"v_mov_b32 v{CI+16*qt+i}, v{CI+16*qt}" for qt in range(2) for i in range(1, 16)]
            for n, x in enumerate(cp): fill[22 + n * 9 // 30].append(x)
            for e in range(33): fill[23 + e * 29 // 32].append(sm(1, e, True))
        else:
            for e in range(12, 33): fill[e - 12].append(sm(0, e))
            if last:
                for e in range(33): fill[19 + e * 13 // 17 if e < 17 else 48 + (e - 17) * 6 // 16].append(sm(1, e))
            else:
                for e in range(33): fill[20 + e].append(sm(1, e))
        if not last:
            for e in range(12): fill[52 + e].append(sm(0, e))
            for s_ in range(8): fill[41 + s_].append(f"v_xor_b32 v{VK+s_}, 16384, v{VK+s_}")
            for dt in range(4): fill[60 + dt].append(f"v_xor_b32 v{VV+dt}, 16384, v{VV+dt}")
            fill[58].insert(0, lambda: (k.wait("K", "V"), k.wait_all(vm=False), k("s_barrier")))
            for f in range(4): fill[58 + f].append(rdK(f, f, 0))
        return mf, fill
    def emit_iter(mf, fill):
        for m, f_ in zip(mf, fill):
            if m: k(m)
            put(k, f_)
    emit_iter(*iteration(first=True))
    stamp(k, "it0")
    def body():
        mf, fill = iteration()
        dm = kv_dma("K", 0, sKL) + kv_dma("K", 8192, sKL) + kv_dma("V", 0, sVL) + kv_dma("V", 8192, sVL)
        for n, x in enumerate(dm): fill[1 + 2 * n].append(x)
        fill[40].append([f"s_xor_b32 s{sKL}, s{sKL}, 16384", f"s_xor_b32 s{sVL}, s{sVL}, 16384"])
        emit_iter(mf, fill)
    k.loop(sST, 6, body, align=3)
    stamp(k, "it1-6")
    mf, fill = iteration(last=True)
    if P["PF1"]:
        NA = P["F1R"] // 2; Wd_ = 3584 // NA; nl = (Wd_ + 1023) // 1024; per = Wd_ // nl // 16
        pf = [[f"s_load_dwordx4 s[4:7], s[0:1], {A_WG}", f"v_min_u32 v{tm}, {per-1}, v{LN_}", f"v_lshlrev_b32 v{tm}, 4, v{tm}",
               f"s_lshr_b32 s{sT1}, s2, 3", f"s_lshl_b32 s{sT1}, s{sT1}, 2", f"s_add_u32 s{sT1}, s{sT1}, s{sW}", f"s_mul_i32 s{sT1}, s{sT1}, {4*3584}",
               f"s_and_b32 s{sT2}, s2, {NA-1}", f"s_mul_i32 s{sT2}, s{sT2}, {Wd_}", f"s_add_u32 s{sT1}, s{sT1}, s{sT2}"],
              lambda: (k.srd(12, 4, 512 * 3584), k.srd(16, 6, 512 * 3584))]
        n = 0
        for r in range(4):
            for l_ in range(nl):
                for srd in (12, 16):
                    pf.append(f"buffer_load_dwordx4 {a(192+4*(n%16),4)}, v{tm}, s[{srd}:{srd+3}], s{sT1} offen offset:{l_*per*16}"); n += 1
            pf.append(f"s_add_u32 s{sT1}, s{sT1}, 3584")
        fill[0].append(pf[0]); fill[8].append(pf[1])
        for n, x in enumerate(pf[2:]): fill[9 + n].append(x)
    fin = [f"v_mov_b32 v{T+16}, v{LS}", f"v_mov_b32 v{T+17}, v{LS+1}", f"v_mov_b32 v{T+20}, 0", f"v_mov_b32 v{T+21}, 0",
           f"v_permlane32_swap_b32 v{LS}, v{T+16}", f"v_permlane32_swap_b32 v{LS+1}, v{T+17}",
           f"v_add_f32 v{LS}, v{LS}, v{T+16}", f"v_add_f32 v{LS+1}, v{LS+1}, v{T+17}",
           f"v_rcp_f32 v{T+16}, v{LS}", f"v_rcp_f32 v{T+18}, v{LS+1}", f"v_max_f32 v{T+22}, v{LS}, v{LS+1}",
           f"v_mov_b32 v{T+17}, v{T+16}", f"v_mov_b32 v{T+19}, v{T+18}",
           f"s_lshl_b32 s{sT2}, s{sW}, 3", f"s_sub_u32 s{sT2}, s{sT2}, s{sROT}"]
    for n, x in enumerate(fin): fill[56 + n // 3].append(x)
    fill[58].append(lambda: (k.wait_all(vm=False), k("s_barrier")))
    emit_iter(mf, fill)
    stamp(k, "it7")
    OP = 64
    for dt in range(4):
        for qt in range(2):
            b = 16 * (2 * (dt & 1) + qt)
            for i in range(16): k(f"v_accvgpr_read_b32 v{b+i}, a{O+32*dt+16*qt+i}")
            for i in range(0, 16, 2): k(f"v_maximum3_f32 v{T+20+qt}, |v{b+i}|, |v{b+i+1}|, v{T+20+qt}")
            for i in range(0, 16, 2): k(f"v_pk_mul_f32 {v(b+i,2)}, {v(b+i,2)}, {v(T+16+2*qt,2)}")
            for j in range(8): k(f"v_cvt_pk_bf16_f32 v{OP+16*dt+8*qt+j}, v{b+2*j}, v{b+2*j+1}")
            for sp in range(2):
                if qt == 0:
                    k(f"s_add_u32 s{sT0}, s{sT2}, {2*dt+sp}"); k(f"s_and_b32 s{sT0}, s{sT0}, 31"); k(f"s_lshl_b32 s{sT0}, s{sT0}, 10")
                    k(f"v_add_u32 v{T+14+sp}, s{sT0}, v{VLIN}")
                k(f"ds_write_b128 v{T+14+sp}, {v(OP+16*dt+8*qt+4*sp,4)} offset:{32768*qt}", token="ow")
    k(f"v_maximum3_f32 v{T+23}, v{T+20}, v{T+21}, v{T+22}")
    k(f"v_min_f32 v{T+20}, v{T+20}, v{T+21}")
    k(f"v_cmp_ngt_f32 vcc, {f32(2.0**120)}, v{T+23}")
    k(f"s_mov_b64 s[56:57], vcc")
    k(f"v_cmp_gt_f32 vcc, {f32(2.0**-90 if not P['FORCE_FB'] else 2.0**100)}, v{T+20}")
    k("s_or_b64 s[56:57], s[56:57], vcc")
    k(f"s_cselect_b32 s{sT0}, 1, 0")
    k(f"v_mov_b32 v{T+22}, s{sT0}"); k(f"s_lshl_b32 s{sT1}, s{sW}, 2"); k(f"v_mov_b32 v{T+23}, s{sT1}")
    k(f"ds_write_b32 v{T+23}, v{T+22} offset:{L_K}", token="ow")
    k(f"v_mov_b32 v{T+23}, 0")
    k.wait("ow"); k("s_barrier")
    k(f"ds_read_b128 {v(T+24,4)}, v{T+23} offset:{L_K}")
    k(f"v_or3_b32 v{T+24}, v{T+24}, v{T+25}, v{T+26}"); k(f"v_or_b32 v{T+24}, v{T+24}, v{T+27}")
    k(f"v_readfirstlane_b32 s{sT0}, v{T+24}")
    k(f"s_andn2_b32 s{sT0}, s{sT0}, s{sFB}")
    k("s_cbranch_scc1 FALLBACK")
    stamp(k, "owrite")
    def otail(fill):
        fill[0].append([f"s_lshl_b32 s{sT0}, s{sG}, 21", f"s_lshl_b32 s{sT1}, s{sRB}, 16", f"s_add_u32 s{sT0}, s{sT0}, s{sT1}",
                        f"s_lshl_b32 s{sT1}, s{sW}, 13", f"s_add_u32 s{sT0}, s{sT0}, s{sT1}", f"s_add_u32 s{sT0}, s{sT0}, {WS_P:#x}"])
    gemm(20, 14, otail)
    stamp(k, "ogemm")
    for a_ in range(4):
        for rt in range(2):
            k(f"s_add_u32 s{sT1}, s{sT0}, {32768*rt + 2048*a_}")
            b = ACC + 32 * a_ + 16 * rt
            for j in range(8): k(f"v_cvt_pk_bf16_f32 v{Q+16*a_+8*rt+j}, v{b+2*j}, v{b+2*j+1}")
            for sp in range(2):
                k(f"buffer_store_dwordx4 {v(Q+16*a_+8*rt+4*sp,4)}, v{VL16}, s[24:27], s{sT1} offen offset:{1024*sp}" + ["", " nt", " sc1", " sc0 sc1"][P["PST"]])
    stamp_flush(k, 1)
    k.label("END_attn"); k("s_endpgm")
    k.label("FALLBACK")
    k.wait_all(); k("s_barrier")
    k.srd(12, 40, 8 * 2048 * 256); k.srd(16, 42, 8 * 2048 * 256)
    kv_addr()
    k(f"v_mov_b32 v{MX+4}, 0xff800000"); k(f"v_mov_b32 v{MX+5}, 0xff800000")
    def fbody():
        put(k, kv_dma("K", L_K)); k.wait("K"); k("s_barrier")
        for s_ in range(8): put(k, rdK(s_, s_, L_K))
        for s_ in range(8):
            for qt in range(2): k(qk(s_, s_, qt, 0, True))
        put(k, maxops(0, MX))
        k(f"v_max_f32 v{MX+4}, v{MX+4}, v{MX}"); k(f"v_max_f32 v{MX+5}, v{MX+5}, v{MX+1}")
        k("s_barrier")
    k.loop(sST, 16, fbody)
    put(k, xhalf_max(MX + 4, MX + 2))
    for qt in range(2): k(f"v_sub_f32 v{MX+4+qt}, 0, v{MX+4+qt}")
    for off in (L_K + 16384 + 8192, L_K, L_K + 8192): put(k, kv_dma("K", off))
    put(k, kv_dma("V", L_V)); put(k, kv_dma("V", L_V + 8192))
    k(f"s_mov_b32 s{sFB}, 1")
    k.wait_all(); k("s_barrier")
    for f in range(4): put(k, rdK(f, f, L_K + 16384 + 8192))
    qk0(False)
    k.wait_all()
    k("s_branch IT0")
    return k

from gen3_ffn import gen_ffn1, gen_ffn2

HEADER = open('adaLN_cond__sliding_block_cached__geglu_ffn__prompt.s.ref').read().split("; Override launch")[0]

if __name__ == "__main__":
    out = sys.argv[1] if len(sys.argv) > 1 else "k.s"
    me = sys.modules[__name__]
    ks = [gen_prep(), gen_attn(), gen_ln2(), gen_ffn1(me), gen_ffn2(me)]
    ks[-1].label("CODE_END")
    txt = emit(ks, header=HEADER)
    open(out, "w").write(txt)
    json.dump([[k.name, k.grid, k.block//64, k.stamps] for k in ks], open(out[:-2]+".json","w"))
    for k in ks: print(k.name, "regs(v,a,s)", k.used, "nops", k.n_nops, "instrs", len(k.items))
```

```python
import re

def v(i, n=1): return f"v{i}" if n == 1 else f"v[{i}:{i+n-1}]"
def a(i, n=1): return f"a{i}" if n == 1 else f"a[{i}:{i+n-1}]"
def s(i, n=1): return f"s{i}" if n == 1 else f"s[{i}:{i+n-1}]"

_REG = re.compile(r"^-?\|?(?:abs\()?([vas])(?:(\d+)|\[(\d+):(\d+)\])\)?\|?$")
def regs_of(tok):
    tok = tok.strip()
    if tok in ("vcc",): return {("s", 106), ("s", 107)}
    if tok == "vcc_lo": return {("s", 106)}
    if tok == "vcc_hi": return {("s", 107)}
    if tok == "exec": return {("s", 126), ("s", 127)}
    if tok == "exec_lo": return {("s", 126)}
    if tok == "m0": return {("s", 124)}
    m = _REG.match(tok)
    if not m: return set()
    f = m.group(1)
    if m.group(2) is not None: lo = hi = int(m.group(2))
    else: lo, hi = int(m.group(3)), int(m.group(4))
    return {(f, i) for i in range(lo, hi + 1)}

def split_ops(rest):
    ops, depth, cur = [], 0, ""
    for ch in rest + ",":
        if ch in "[(": depth += 1
        elif ch in "])": depth -= 1
        if ch == "," and depth == 0:
            ops.append(cur.strip()); cur = ""
        else: cur += ch
    ops = [o for o in ops if o]
    mods = []
    out = []
    for o in ops:
        p = o.split()
        out.append(p[0]); mods += p[1:]
    return out, mods

TRANS = ("v_exp_f32", "v_log_f32", "v_rcp_f32", "v_rsq_f32", "v_sqrt_f32", "v_sin_f32", "v_cos_f32", "v_rcp_iflag_f32")

class Ins:
    __slots__ = ("text", "mn", "ops", "mods", "rd", "wr", "kind", "passes", "srcC", "srcAB", "token", "label", "target", "nops", "dpp", "wide_store")
    def __init__(self, text, token=None):
        self.text = text.strip()
        self.token = token
        self.label = None; self.target = None; self.nops = 1; self.passes = 0
        self.srcC = set(); self.srcAB = set(); self.dpp = False; self.wide_store = set()
        t = self.text.split(";")[0].strip()
        sp = t.split(None, 1)
        self.mn = mn = sp[0]
        self.ops, self.mods = split_ops(sp[1]) if len(sp) > 1 else ([], [])
        ops = self.ops
        R = lambda idxs: set().union(*[regs_of(ops[i]) for i in idxs if i < len(ops)]) if idxs else set()
        n = len(ops)
        rd, wr = set(), set()
        base = re.sub(r"_(e32|e64|dpp|sdwa)$", "", mn)
        if mn.startswith("v_mfma"):
            self.kind = "mfma"
            wr = R([0]); self.srcAB = R([1, 2]); self.srcC = R([3]); rd = self.srcAB | self.srcC
            self.passes = 8 if "32x32x16" in mn else 4
        elif mn.startswith("v_"):
            self.kind = "trans" if base in TRANS else "valu"
            self.dpp = mn.endswith("_dpp") or any(m.startswith(("row_", "quad_perm", "wave_")) for m in self.mods)
            if base.startswith("v_cmp"):
                wr = R([0]); rd = R(range(1, n))
                if base.startswith("v_cmpx"): wr |= regs_of("exec")
            elif base in ("v_permlane32_swap_b32", "v_permlane16_swap_b32", "v_swap_b32"):
                wr = R([0, 1]); rd = R([0, 1]); self.kind = "permlane" if "permlane" in base else "valu"
            elif base in ("v_add_co_u32", "v_sub_co_u32", "v_subrev_co_u32", "v_addc_co_u32", "v_subb_co_u32", "v_div_scale_f32", "v_mad_u64_u32"):
                wr = R([0, 1]); rd = R(range(2, n))
            elif base in ("v_fmac_f32", "v_dot2c_f32_bf16", "v_pk_fmac_f16", "v_writelane_b32"):
                wr = R([0]); rd = R(range(0, n))
            elif base in ("v_readfirstlane_b32", "v_readlane_b32"):
                wr = R([0]); rd = R(range(1, n)); self.kind = "readlane"
            else:
                wr = R([0]); rd = R(range(1, n))
                if base == "v_cndmask_b32" and n == 3: rd |= regs_of("vcc")
                if base == "v_div_fmas_f32": rd |= regs_of("vcc")
                if self.dpp or "sdwa" in mn: rd |= R([0])
        elif mn.startswith("ds_"):
            self.kind = "ds"
            if mn.startswith(("ds_read", "ds_bpermute", "ds_permute", "ds_swizzle")):
                wr = R([0]); rd = R(range(1, n))
            elif "_rtn" in mn:
                wr = R([0]); rd = R(range(1, n))
            else:
                rd = R(range(0, n))
        elif mn.startswith(("buffer_", "global_")):
            self.kind = "vmem"
            lds = "lds" in self.mods or "_lds_" in mn
            if mn in ("buffer_wbl2", "buffer_inv"):
                pass
            elif "load" in mn and not lds:
                wr = R([0]); rd = R(range(1, n))
            elif "atomic" in mn and "sc0" in self.mods:
                if mn.startswith("buffer_"): wr = R([0]); rd = R(range(0, n))
                else: wr = R([0]); rd = R(range(1, n))
            else:
                rd = R(range(0, n))
                if lds: rd |= regs_of("m0")
                if "store" in mn and ("x4" in mn or "x3" in mn):
                    self.wide_store = R([0]) if mn.startswith("buffer_") else R([1])
        elif mn.startswith(("s_load", "s_buffer_load", "s_memtime", "s_memrealtime", "s_atomic")):
            self.kind = "smem"; wr = R([0]); rd = R(range(1, n))
        elif mn == "s_nop":
            self.kind = "nop"; self.nops = int(ops[0], 0) + 1
        elif mn in ("s_waitcnt", "s_barrier", "s_endpgm", "s_setprio", "s_sleep"):
            self.kind = "misc"
        elif mn.startswith(("s_branch", "s_cbranch")):
            self.kind = "branch"; self.target = ops[0]
        elif mn.startswith("s_"):
            self.kind = "salu"
            if mn.startswith("s_cmp") or mn.startswith("s_bitcmp"): rd = R(range(0, n))
            else:
                wr = R([0]); rd = R(range(1, n))
                if "saveexec" in mn: wr |= regs_of("exec")
                if mn in ("s_addk_i32", "s_mulk_i32"): rd |= R([0])
        else:
            raise ValueError("unknown instruction " + text)
        self.rd, self.wr = rd, wr

VOP3_ONLY = ("v_fma_f32", "v_max3_f32", "v_min3_f32", "v_med3_f32", "v_maximum3_f32", "v_minimum3_f32", "v_cvt_pk_bf16_f32", "v_lshl_add_u32", "v_add_lshl_u32",
             "v_lshl_or_b32", "v_and_or_b32", "v_or3_b32", "v_add3_u32", "v_bfe_u32", "v_bfe_i32", "v_bfi_b32", "v_mul_lo_u32", "v_mul_hi_u32", "v_mad_u32_u24",
             "v_perm_b32", "v_readlane_b32", "v_writelane_b32", "v_accvgpr_read_b32", "v_accvgpr_write_b32", "v_ldexp_f32", "v_mbcnt_lo_u32_b32", "v_mbcnt_hi_u32_b32",
             "v_dot2_f32_bf16", "v_bitop3_b32", "v_alignbit_b32", "v_div_scale_f32", "v_div_fmas_f32", "v_div_fixup_f32", "v_lshlrev_b64")
_INL = {"0.5", "-0.5", "1.0", "-1.0", "2.0", "-2.0", "4.0", "-4.0"}
_INLBITS = {0x3f000000, 0xbf000000, 0x3f800000, 0xbf800000, 0x40000000, 0xc0000000, 0x40800000, 0xc0800000, 0x3e22f983}
def is_literal(tok):
    if tok in _INL or regs_of(tok) or tok in ("off", "scc", "exec_lo", "exec_hi"): return False
    try:
        x = int(tok, 0)
        if -16 <= x <= 64: return False
        if x & 0xffffffff in _INLBITS or (x & 0xffffffff) >= 0xfffffff0: return False
        return True
    except ValueError:
        return True
def ins_size(i):
    mn = i.mn
    if i.kind in ("mfma", "ds", "vmem", "smem"): return 8
    if mn.startswith("v_"):
        if mn.endswith(("_e64", "_dpp", "_sdwa")) or i.dpp or mn.startswith("v_pk_") or mn in VOP3_ONLY: return 8
        if any(o.startswith(("-", "|", "abs")) and regs_of(o) for o in i.ops): return 8
        if mn.startswith("v_cmp") and i.ops[0] != "vcc": return 8
        if mn in ("v_fmamk_f32", "v_fmaak_f32"): return 8
        srcs = i.ops[1:]
        if mn == "v_cndmask_b32" and len(i.ops) == 4 and i.ops[3] != "vcc": return 8
        if len(srcs) >= 2 and not srcs[1].startswith("v") and mn not in ("v_add_co_u32", "v_addc_co_u32"): return 8
        return 8 if any(is_literal(o) for o in srcs) else 4
    if i.kind in ("nop", "misc", "branch"): return 4
    if mn.startswith(("s_movk", "s_addk", "s_mulk", "s_cmpk", "s_getreg", "s_getpc")): return 4
    ops = i.ops if mn.startswith(("s_cmp", "s_bitcmp")) else i.ops[1:]
    return 8 if any(is_literal(o) for o in ops) else 4
def widenable(i):
    return i.kind in ("valu", "trans") and ins_size(i) == 4 and not i.mn.endswith("_e32") and i.mn not in ("v_readfirstlane_b32", "v_nop") and not i.mn.startswith(("v_permlane", "v_accvgpr", "v_fmac", "v_dot2c"))

def op_cost(x):
    if isinstance(x, list): return sum(op_cost(y) for y in x)
    if callable(x): return getattr(x, "cost", 4)
    mn = x.split()[0]
    if mn.startswith(TRANS) or mn.startswith("v_permlane"): return 8
    if mn.startswith(("buffer_", "global_")): return 10
    if mn.startswith("ds_write_b128"): return 22
    return 4
def has_mem(x):
    if isinstance(x, list): return any(has_mem(y) for y in x)
    if callable(x): return getattr(x, "mem", False)
    return x.startswith(("ds_", "buffer_", "global_"))
def has_vmem(x):
    if isinstance(x, list): return any(has_vmem(y) for y in x)
    if callable(x): return getattr(x, "mem", False) == "v"
    return x.startswith(("buffer_", "global_"))
def has_valu(x):
    if isinstance(x, list): return any(has_valu(y) for y in x)
    if callable(x): return False
    return x.startswith("v_")

class Sched:
    def __init__(self, n, budget=24):
        self.n = n; self.budget = budget; self.streams = []; self.pinned = [[] for _ in range(n)]; self.pinned_end = [[] for _ in range(n)]
    def pin(self, g, x, end=False): (self.pinned_end if end else self.pinned)[g].append(x)
    def add(self, ops, g0, g1, prio=0):
        if ops: self.streams.append(dict(ops=list(ops), g0=g0, g1=g1, i=0, prio=prio))
    def run(self):
        fill = []
        for g in range(self.n):
            c = op_cost(self.pinned[g]) + op_cost(self.pinned_end[g])
            for s_ in self.streams: s_["cur"] = []; s_["blk"] = False
            while True:
                cand = [s_ for s_ in self.streams if s_["i"] < len(s_["ops"]) and s_["g0"] <= g and not s_["blk"]]
                if not cand: break
                def lag(s_):
                    return s_["g0"] + (s_["i"] + 0.5) * (s_["g1"] - s_["g0"]) / len(s_["ops"]) - g - s_["prio"]
                must = [x for x in cand if x["g1"] - 1 <= g]
                s_ = must[0] if must else min(cand, key=lag)
                op = s_["ops"][s_["i"]]; cc = op_cost(op)
                if not must:
                    if lag(s_) + s_["prio"] > 1.5 or (c + cc > self.budget and c > 0 and lag(s_) > -4) or (has_mem(op) and has_valu(s_["cur"])):
                        s_["blk"] = True; continue
                s_["cur"].append(op); c += cc; s_["i"] += 1
            front, back = [], []
            for s_ in self.streams:
                cur = s_["cur"]; n = 0
                for j, x in enumerate(cur):
                    if has_valu(x): break
                    if has_mem(x): n = j + 1
                if n: front.append(cur[:n])
                back += cur[n:]
            front.sort(key=lambda x: 0 if has_vmem(x) else 1)
            pf = [x for x in self.pinned[g] if not has_valu(x)]; pb = [x for x in self.pinned[g] if has_valu(x)]
            fill.append(pf + [y for x in front for y in x] + pb + back + self.pinned_end[g])
        for s_ in self.streams: assert s_["i"] == len(s_["ops"]), "unscheduled ops"
        return fill

class Label:
    def __init__(self, name): self.name = name; self.kind = "label"; self.nops = 0; self.text = name + ":"
class Raw:
    def __init__(self, text): self.text = text; self.kind = "raw"; self.nops = 0

def isV(r): return r[0] in "va"

def need(p, c):
    n = 0
    pk, ck = p.kind, c.kind
    VALU = ("valu", "trans", "permlane", "readlane")
    if pk in VALU:
        wv = {r for r in p.wr if isV(r)}; ws = {r for r in p.wr if r[0] == "s"}
        if ck == "mfma" and wv & c.rd: n = max(n, 2)
        if ck == "permlane" and wv & c.rd: n = max(n, 2)
        if ck in VALU and c.dpp and wv & c.rd: n = max(n, 2)
        if ck == "readlane" and wv & c.rd: n = max(n, 1)
        if pk == "trans" and ck in VALU + ("mfma",) and ck != "trans" and wv & c.rd: n = max(n, 1)
        if pk == "trans" and ck in ("ds", "vmem") and wv & c.rd: n = max(n, 1)
        if ws:
            if ck == "vmem" and ws & c.rd: n = max(n, 5)
            if ck in VALU and ws & c.rd: n = max(n, 4 if ck == "readlane" or c.mn.startswith(("v_div_fmas", "v_writelane")) else 2)
            if ck == "salu" and ws & c.rd: n = max(n, 1)
            if ck == "branch" and c.mn in ("s_cbranch_vccz", "s_cbranch_vccnz") and ws & regs_of("vcc"): n = max(n, 5)
            if ws & regs_of("exec"):
                if ck == "mfma" or ck == "permlane" or ck == "readlane": n = max(n, 4)
                if ck in VALU and c.dpp: n = max(n, 5)
        if "sdwa" in p.mn and ck in VALU and wv & (c.rd | c.wr): n = max(n, 1)
    if pk == "salu":
        if ("s", 124) in p.wr and ck == "vmem" and ("s", 124) in c.rd: n = max(n, 1)
    if pk == "vmem" and p.wide_store:
        if p.wide_store & c.wr: n = max(n, 2 if ck in VALU else 1)
    if pk == "mfma":
        P = p.passes
        tab = {4: (6, 8, 3), 8: (10, 12, 7)}[P]
        if ck == "mfma":
            if p.wr & c.srcAB: n = max(n, tab[1])
            if p.wr & c.srcC and not (p.wr == c.srcC and c.passes == P): n = max(n, tab[0])
            if p.wr & c.wr and not (p.wr == c.wr and c.passes == P and p.wr == c.srcC): n = max(n, tab[0])
        elif ck in VALU:
            if p.wr & (c.rd | c.wr): n = max(n, tab[1])
            if p.srcC & c.wr: n = max(n, tab[2])
        elif ck in ("ds", "vmem"):
            if p.wr & (c.rd | c.wr): n = max(n, tab[1])
    return n

class Kernel:
    def __init__(self, name, grid, block, lds, vgpr=256, agpr=0, sgpr=102):
        self.name, self.grid, self.block, self.lds = name, grid, block, lds
        self.vgpr, self.agpr, self.sgpr = vgpr, agpr, sgpr
        self.items = []
        self.nlab = 0
        self.vm = {}; self.lg = {}
        self.smem_pending = False
        self.auto = True
    def _emit_wait(self, vm=None, lg=None):
        parts = []
        if vm is not None:
            vm = min(vm, 63); parts.append(f"vmcnt({vm})")
            self.vm = {k: p for k, p in self.vm.items() if p < vm}
        if lg is not None:
            lg = min(lg, 15); parts.append(f"lgkmcnt({lg})")
            self.lg = {k: p for k, p in self.lg.items() if p < lg}
            if lg == 0: self.smem_pending = False
        if parts: self.items.append(Ins("s_waitcnt " + " ".join(parts)))
    def wait(self, *tokens):
        vm = [self.vm[t] for t in tokens if t in self.vm]
        lg = [self.lg[t] for t in tokens if t in self.lg]
        self._emit_wait(min(vm) if vm else None, (0 if self.smem_pending else min(lg)) if lg else None)
    def wait_regs(self, *toks):
        rs = set().union(*[regs_of(x) for x in toks])
        self.wait(*rs)
    def wait_all(self, vm=True, lg=True):
        self._emit_wait(0 if vm else None, 0 if lg else None)
    def __call__(self, line, token=None):
        ins = Ins(line, token)
        if ins.mn == "s_waitcnt":
            m = re.search(r"vmcnt\((\d+)\)", line); vm = int(m.group(1)) if m else None
            m = re.search(r"lgkmcnt\((\d+)\)", line); lg = int(m.group(1)) if m else None
            self._emit_wait(vm, lg); return
        if self.auto:
            touched = ins.rd | ins.wr
            vm = [p for k, p in self.vm.items() if k in touched]
            lg = [p for k, p in self.lg.items() if k in touched]
            if vm or lg:
                self._emit_wait(min(vm) if vm else None, (0 if self.smem_pending else min(lg)) if lg else None)
        self.items.append(ins)
        if ins.kind == "vmem":
            self.vm = {k: p + 1 for k, p in self.vm.items()}
            for r in ins.wr: self.vm[r] = 0
            if token: self.vm[token] = 0
        elif ins.kind == "ds":
            self.lg = {k: p + 1 for k, p in self.lg.items()}
            for r in ins.wr: self.lg[r] = 0
            if token: self.lg[token] = 0
        elif ins.kind == "smem":
            self.smem_pending = True
            self.lg = {k: p + 1 for k, p in self.lg.items()}
            for r in ins.wr: self.lg[r] = 0
    def label(self, l): self.items.append(Label(l))
    def raw(self, t): self.items.append(Raw(t))
    def align(self, p2): self.items.append(Raw(f".p2align {p2}"))
    def newlabel(self, base="L"):
        self.nlab += 1
        return f"{base}_{self.name[:12]}_{self.nlab}"
    def comment(self, c): self.items.append(Raw("    ; " + c))
    @staticmethod
    def _merge(x, y):
        out = dict(x)
        for k, p in y.items(): out[k] = min(p, out[k]) if k in out else p
        return out
    def loop(self, counter, n, body, align=None):
        self(f"s_mov_b32 s{counter}, 0")
        lab = self.newlabel("LOOP")
        st = (dict(self.vm), dict(self.lg))
        mark = len(self.items); nl = self.nlab
        for it in range(10):
            del self.items[mark:]; self.nlab = nl
            self.vm, self.lg = dict(st[0]), dict(st[1])
            if align: self.align(align)
            self.label(lab)
            body()
            self(f"s_add_u32 s{counter}, s{counter}, 1")
            self(f"s_cmp_lt_u32 s{counter}, {n}")
            self(f"s_cbranch_scc1 {lab}")
            new = (self._merge(st[0], self.vm), self._merge(st[1], self.lg))
            if new == st: break
            st = new
        else:
            raise RuntimeError("loop wait state did not converge")
    def finalize(self):
        items = self.items
        out = []
        W = 24
        def window(seq):
            res = []; d = 0
            for it in reversed(seq):
                if it.kind in ("label", "raw"): continue
                res.append((it, d))
                d += it.nops
                if d > W: break
            return res
        nins = 0
        for it in items:
            if it.kind not in ("label", "raw"):
                req = 0
                for p, d in window(out):
                    req = max(req, need(p, it) - d)
                while req > 0:
                    c = min(req, 16); out.append(Ins(f"s_nop {c-1}")); req -= c; nins += 1
            out.append(it)
        changed = True
        while changed:
            changed = False
            pos = {it.name: i for i, it in enumerate(out) if it.kind == "label"}
            for i, it in enumerate(out):
                if it.kind == "branch" and it.target in pos:
                    win = window(out[:i + 1])
                    d2 = 0; req = 0
                    for c in out[pos[it.target]:pos[it.target] + 60]:
                        if c.kind in ("label", "raw"): continue
                        for p, d in win: req = max(req, need(p, c) - d - d2)
                        d2 += c.nops
                        if d2 > W or c.kind == "branch" and c.mn == "s_branch": break
                    if req > 0:
                        out.insert(i, Ins(f"s_nop {min(req,16)-1}")); changed = True; nins += 1
                        break
        off = 0; last4 = None; self.n_mis = 0
        pads = []
        for idx, it in enumerate(out):
            if it.kind == "raw":
                m = re.match(r"\.p2align (\d+)", it.text)
                if m: off = 0; last4 = None
                continue
            if it.kind == "label": continue
            sz = ins_size(it)
            if sz == 8 and off % 8:
                if last4 is not None:
                    o = out[last4]; out[last4] = Ins(o.text.replace(o.mn, o.mn + "_e64", 1), o.token); off += 4
                else:
                    run = 0
                    for y in out[idx:idx + 12]:
                        if y.kind in ("raw", "label"): continue
                        if ins_size(y) != 8: break
                        run += 1
                    if run >= 7: pads.append(idx); off += 4
                    else: self.n_mis += 1
            if sz == 8: last4 = None
            elif widenable(it): last4 = idx
            off += sz
        for idx in reversed(pads): out.insert(idx, Ins("s_nop 0"))
        self.items = out
        self.n_nops = nins
        mv = ma = ms = -1
        for it in out:
            if it.kind in ("label", "raw"): continue
            for f, i in it.rd | it.wr:
                if f == "v": mv = max(mv, i)
                elif f == "a": ma = max(ma, i)
                elif i < 102: ms = max(ms, i)
        assert mv < self.vgpr, (self.name, "vgpr", mv, self.vgpr)
        assert ma < self.agpr or ma < 0, (self.name, "agpr", ma, self.agpr)
        assert ms < self.sgpr, (self.name, "sgpr", ms)
        self.used = (mv + 1, ma + 1, ms + 1)
    def text(self):
        out = [f".globl {self.name}", ".p2align 8", f".type {self.name},@function", f"{self.name}:"]
        for it in self.items:
            out.append(it.text if it.kind in ("label", "raw") else "    " + it.text)
        return "\n".join(out) + "\n"
    def desc(self):
        acc = (self.vgpr + 3) // 4 * 4
        nfv = acc + self.agpr if self.agpr else self.vgpr
        return f""".p2align 6
.amdhsa_kernel {self.name}
  .amdhsa_next_free_vgpr {nfv}
  .amdhsa_next_free_sgpr {self.sgpr}
  .amdhsa_accum_offset {acc}
  .amdhsa_group_segment_fixed_size 0
  .amdhsa_kernarg_size 112
  .amdhsa_user_sgpr_count 2
  .amdhsa_user_sgpr_kernarg_segment_ptr 1
  .amdhsa_system_sgpr_workgroup_id_x 1
  .amdhsa_float_denorm_mode_32 {getattr(self, 'denorm32', 3)}
  .amdhsa_float_denorm_mode_16_64 3
.end_amdhsa_kernel
"""
    def launch_line(self):
        g, b = self.grid, self.block
        return f"; @launch kernel={self.name} grid=({g},1,1) block=({b},1,1) lds={self.lds}"
    def srd(self, d, ptr, nbytes, off=0):
        if off:
            self(f"s_add_u32 s{d}, s{ptr}, {off:#x}"); self(f"s_addc_u32 s{d+1}, s{ptr+1}, 0"); self(f"s_and_b32 s{d+1}, s{d+1}, 0xffff")
        else:
            self(f"s_mov_b32 s{d}, s{ptr}"); self(f"s_and_b32 s{d+1}, s{ptr+1}, 0xffff")
        self(f"s_mov_b32 s{d+2}, {nbytes:#x}"); self(f"s_mov_b32 s{d+3}, 0x20000")

def emit(kernels, launches=None, header=""):
    launches = launches or kernels
    out = header
    out += "\n".join(k.launch_line() for k in launches) + "\n"
    out += '.amdgcn_target "amdgcn-amd-amdhsa--gfx950"\n.text\n'
    for k in kernels:
        k.finalize()
        out += k.text()
    out += '.section .rodata,"a"\n'
    for k in kernels: out += k.desc()
    return out

def interleave(main, fill, start=0):
    out = []
    n = len(main); m = len(fill)
    j = 0
    for i, x in enumerate(main):
        out.append(x)
        tgt = (i + 1) * m // n
        while j < tgt: out.append(fill[j]); j += 1
    out += fill[j:]
    return out
```

```python
import sys, struct, math, os, json
from asmlib import *

def f32(x): return "0x%08x" % struct.unpack("<I", struct.pack("<f", x))[0]
LOG2E = 1.4426950408889634
CS = 128 ** -0.5
A_X, A_K, A_V, A_WQ, A_WO, B_X, A_WG, A_WU, A_WD, A_C, A_WM, A_OUT, A_DBG, A_WS = [8 * i for i in range(14)]
WS_MOD = 0x0
WS_ST = 0x10000
WS_P = 0x400000
WS_X1 = 0x1400000
WS_H2 = 0x1600000
WS_ACT = 0x1800000
WS_BYTES = 0x10000000
WS_DBG = 0x8000000
P = dict(STAMPS=0, G=1, ROT=1, F1R=8, F2R=8, PREF0=1, PREFC=1, PREFQ=1, PREFK=1, PORD=1, BURST=54, KEARLY=0, BIAS=64, FORCE_FB=0, PNT=0, PST=2, AST=2, PF1=1, PF2=1)
for kv in os.environ.get("GP", "").split(","):
    if kv: P[kv.split("=")[0]] = int(kv.split("=")[1])

def stamp(k, name):
    if not P["STAMPS"]: return
    i = len(k.stamps); k.stamps.append(name)
    assert i < 12
    k.sgpr = 102
    k("s_memtime s[72:73]"); k("s_memrealtime s[74:75]"); k("s_waitcnt lgkmcnt(0)")
    k(f"s_mov_b32 s{76+2*i}, s72"); k(f"s_mov_b32 s{77+2*i}, s74")
def stamp_begin(k):
    k.stamps = []
    if not P["STAMPS"]: return
    k("v_lshrrev_b32 v1, 6, v0"); k("v_readfirstlane_b32 s101, v1")
    stamp(k, "start")
def stamp_flush(k, kidx):
    if not P["STAMPS"]: return
    stamp(k, "end")
    k(f"s_load_dwordx2 s[64:65], s[0:1], {A_WS}")
    k("s_mov_b64 exec, -1")
    k.srd(56, 64, WS_BYTES)
    k("s_lshl_b32 s100, s2, 3"); k("s_add_u32 s100, s100, s101"); k("s_lshl_b32 s100, s100, 8")
    k(f"s_add_u32 s100, s100, {WS_DBG + kidx*0x100000:#x}")
    k("v_mov_b32 v1, 0")
    for j, sr in enumerate([76 + i for i in range(2*len(k.stamps))]):
        k(f"v_mov_b32 v0, s{sr}")
        k(f"buffer_store_dword v0, v1, s[56:59], s100 offen offset:{4*j}")

def wave_id(k, sdst, vtmp):
    k(f"v_lshrrev_b32 v{vtmp}, 6, v0")
    k(f"v_readfirstlane_b32 s{sdst}, v{vtmp}")
def rowsum_8(k, val, tmp):
    k(f"v_add_f32_dpp v{val}, v{val}, v{val} row_ror:8 row_mask:0xf bank_mask:0xf")
    k(f"v_mov_b32 v{tmp}, v{val}"); k(f"v_permlane16_swap_b32 v{val}, v{tmp}"); k(f"v_add_f32 v{val}, v{val}, v{tmp}")
    k(f"v_mov_b32 v{tmp}, v{val}"); k(f"v_permlane32_swap_b32 v{val}, v{tmp}"); k(f"v_add_f32 v{val}, v{val}, v{tmp}")
def rnd(k, d, sreg): k(f"v_cvt_pk_bf16_f32 v{d}, 0, v{sreg}")
def lg2(x): return x.bit_length() - 1
def split2(k, sb, sA, sB, nA_per, nB_total, t0, t1):
    A_total = 256 // nB_total; NA = A_total // nA_per
    k(f"s_and_b32 s{t0}, s{sb}, 7"); k(f"s_lshr_b32 s{t1}, s{sb}, 3")
    k(f"s_and_b32 s{sA}, s{t0}, {NA-1}"); k(f"s_lshl_b32 s{sA}, s{sA}, {lg2(nA_per)}")
    k(f"s_and_b32 s{sB}, s{t1}, {nA_per-1}"); k(f"s_add_u32 s{sA}, s{sA}, s{sB}")
    k(f"s_lshr_b32 s{sB}, s{t0}, {lg2(NA)}"); k(f"s_lshl_b32 s{sB}, s{sB}, {lg2(32//nA_per)}")
    k(f"s_lshr_b32 s{t1}, s{t1}, {lg2(nA_per)}"); k(f"s_add_u32 s{sB}, s{sB}, s{t1}")
def lane_tr_parts(k, lane, r, c2, gn, h, tmp):
    k(f"v_bfe_u32 v{r}, v{lane}, 2, 2")
    k(f"v_and_b32 v{c2}, 1, v{lane}"); k(f"v_lshlrev_b32 v{c2}, 1, v{c2}")
    k(f"v_bfe_u32 v{tmp}, v{lane}, 1, 1"); k(f"v_or_b32 v{c2}, v{c2}, v{tmp}")
    k(f"v_bfe_u32 v{gn}, v{lane}, 4, 1")
    k(f"v_lshrrev_b32 v{h}, 5, v{lane}")

QS = CS * LOG2E
def gen_prep():
    NG_, NP_ = 192, 256
    k = Kernel("prep_kernel", NG_ + NP_, 256, 1024, vgpr=128, agpr=16, sgpr=64)
    k(f"s_cmp_ge_u32 s2, {NG_+NP_}"); k("s_cbranch_scc1 END_prep")
    stamp_begin(k)
    k(f"s_cmp_ge_u32 s2, {NG_}"); k("s_cbranch_scc1 ST_prep")
    k(f"s_load_dwordx4 s[4:7], s[0:1], {A_C}")
    k(f"s_load_dwordx2 s[28:29], s[0:1], {A_WS}")
    k("v_and_b32 v1, 1, v0"); k("v_lshrrev_b32 v2, 1, v0")
    k("v_mul_u32_u24 v3, 6144, v2"); k("v_lshl_add_u32 v3, v1, 4, v3")
    k("v_lshlrev_b32 v4, 1, v2")
    wave_id(k, 30, 5)
    k("s_and_b32 s31, s2, 7"); k("s_mul_i32 s31, s31, 24"); k("s_lshr_b32 s20, s2, 3"); k("s_add_u32 s31, s31, s20")
    k("s_lshl_b32 s20, s31, 5")
    k.srd(12, 6, 512 * 6144); k.srd(8, 4, 1024)
    for i in range(4):
        k(f"buffer_load_dwordx4 {v(32+4*i,4)}, v3, s[12:15], s20 offen")
        if i < 3: k(f"s_add_u32 s20, s20, {128*6144}")
    for i in range(4):
        k(f"buffer_load_ushort v{8+i}, v4, s[8:11], 0 offen offset:{256*i}")
    k.srd(16, 28, 12288, WS_MOD)
    k(f"s_mov_b32 s21, {f32(-LOG2E)}"); k("s_mov_b32 s23, 0xffff0000")
    for i in range(4):
        x = 8 + i
        k(f"v_lshlrev_b32 v{x}, 16, v{x}")
        k(f"v_mul_f32 v5, s21, v{x}"); k("v_exp_f32 v5, v5"); k("v_add_f32 v5, 1.0, v5"); k("v_rcp_f32 v6, v5")
        k(f"v_mul_f32 v7, v{x}, v6")
        rnd(k, x, 7)
    stamp(k, "x1")
    for i in range(4):
        for q in range(4):
            r = 32 + 4 * i + q
            k(f"v_lshlrev_b32 v5, 16, v{r}"); k(f"v_and_b32 v6, s23, v{r}")
            op = "v_mul_f32" if i == 0 else "v_fmac_f32"
            k(f"{op} v{16+2*q}, v5, v{8+i}"); k(f"{op} v{17+2*q}, v6, v{8+i}")
    for md in ("quad_perm:[2,3,0,1]", "row_ror:4", "row_ror:8"):
        for j in range(8):
            k(f"v_add_f32_dpp v{16+j}, v{16+j}, v{16+j} {md} row_mask:0xf bank_mask:0xf")
    stamp(k, "stats")
    k("v_lshrrev_b32 v5, 4, v0"); k("v_lshlrev_b32 v5, 6, v5"); k("v_lshl_add_u32 v5, v1, 5, v5")
    k(f"ds_write_b128 v5, {v(16,4)}", token="w"); k(f"ds_write_b128 v5, {v(20,4)} offset:16", token="w")
    k.wait("w"); k("s_barrier")
    k("s_cmp_lg_u32 s30, 0"); k("s_cbranch_scc1 END_prep")
    k("v_lshlrev_b32 v5, 2, v0")
    for i in range(4): k(f"ds_read_b32 v{32+i}, v5 offset:{256*i}")
    k("v_add_f32 v32, v32, v33"); k("v_add_f32 v34, v34, v35"); k("v_add_f32 v32, v32, v34")
    k("v_mov_b32 v33, v32"); k("v_permlane16_swap_b32 v32, v33"); k("v_add_f32 v32, v32, v33")
    k("v_mov_b32 v33, v32"); k("v_permlane32_swap_b32 v32, v33"); k("v_add_f32 v32, v32, v33")
    rnd(k, 32, 32)
    k("s_lshr_b32 s20, s31, 5"); k("s_cmp_eq_u32 s20, 1"); k("s_cselect_b32 s21, 1.0, 0")
    k("s_cmp_eq_u32 s20, 4"); k("s_cselect_b32 s21, 1.0, s21")
    k("s_cmp_lt_u32 s20, 2"); k(f"s_cselect_b32 s22, {f32(QS)}, 1.0")
    k("v_add_f32 v32, s21, v32"); k("v_mul_f32 v32, s22, v32")
    k("s_lshl_b32 s20, s31, 6")
    k("v_cmp_gt_u32 vcc, 16, v0")
    k("s_and_saveexec_b64 s[24:25], vcc")
    k("buffer_store_dword v32, v5, s[16:19], s20 offen sc1")
    stamp_flush(k, 0)
    k("s_endpgm")
    k.label("ST_prep")
    k.vm, k.lg = {}, {}
    if P["STAMPS"]: k.stamps = ["start"]
    k(f"s_load_dwordx2 s[4:5], s[0:1], {A_X}")
    k(f"s_load_dwordx2 s[6:7], s[0:1], {A_WS}")
    k(f"s_load_dwordx2 s[34:35], s[0:1], {A_WQ}")
    k(f"s_load_dwordx4 s[36:39], s[0:1], {A_K}")
    k("s_getpc_b64 s[32:33]")
    k.label("PCREF_prep")
    k(f"s_sub_u32 s31, s2, {NG_}")
    G = P["G"]
    split2(k, 31, 26, 25, G, 32, 20, 21)
    k("v_and_b32 v1, 7, v0"); k("v_lshrrev_b32 v2, 3, v0"); k("v_lshrrev_b32 v6, 6, v0")
    k("v_and_b32 v7, 7, v2"); k("v_lshl_add_u32 v7, v6, 4, v7")
    k("v_lshlrev_b32 v4, 10, v1"); k("v_lshl_add_u32 v4, v7, 4, v4")
    k("v_lshlrev_b32 v8, 4, v1"); k("v_lshl_add_u32 v9, v6, 2, v8")
    k("v_lshlrev_b32 v3, 4, v0")
    k.srd(8, 4, 2048 * 1024); k.srd(12, 6, WS_BYTES)
    k("s_lshl_b32 s20, s25, 16"); k("s_lshl_b32 s21, s26, 13"); k("s_add_u32 s21, s21, s20")
    X = 16; XF = 24
    for i in range(2): k(f"buffer_load_dwordx4 {v(X+4*i,4)}, v4, s[8:11], s21 offen offset:{128*i}")
    if P["PREF0"]:
        k(f"s_and_b32 s22, s26, {G-1}"); k(f"s_mul_i32 s22, s22, {65536//G}"); k("s_add_u32 s22, s22, s20")
        for i in range(16 // G):
            k(f"buffer_load_dwordx4 {v(64+4*i,4)}, v3, s[8:11], s22 offen")
            k("s_add_u32 s22, s22, 4096")
    if P["PREFQ"]:
        k.srd(40, 34, 512 * 8192)
        k("v_lshlrev_b32 v11, 13, v6"); k("v_and_b32 v12, 63, v0"); k("v_lshl_add_u32 v11, v12, 4, v11")
        k(f"s_lshr_b32 s22, s31, {3+lg2(G)}"); k(f"s_lshl_b32 s22, s22, {17+lg2(G)}"); k("s_lshl_b32 s23, s26, 10"); k("s_add_u32 s22, s22, s23")
        for i in range(4 * G):
            k(f"buffer_load_dwordx4 {v(40+4*(i%4),4) if i < 4 else v(128-4*(i-3),4)}, v11, s[40:43], s22 offen")
            k(f"s_add_u32 s22, s22, {4*8192}")
    if P["PREFK"]:
        k.srd(44, 36, 8 * 2048 * 256); k.srd(48, 38, 8 * 2048 * 256)
        k(f"s_lshr_b32 s22, s31, {3+lg2(G)}"); k(f"s_lshl_b32 s22, s22, {12+lg2(G)}"); k("s_lshl_b32 s23, s26, 19"); k("s_add_u32 s22, s22, s23"); k(f"s_add_u32 s22, s22, {1536*256}")
        for i in range(G):
            k(f"buffer_load_dwordx4 {a(8*i,4)}, v3, s[44:47], s22 offen")
            k(f"buffer_load_dwordx4 {a(8*i+4,4)}, v3, s[48:51], s22 offen")
            k("s_add_u32 s22, s22, 4096")
    if P["PREFC"]:
        k("s_lshr_b32 s22, s31, 3"); k("s_lshl_b32 s22, s22, 12")
        k("s_cmp_ge_u32 s22, CODE_END-attn_kernel-4095"); k("s_cbranch_scc1 NOPC_prep")
        k("s_add_u32 s22, s22, attn_kernel-PCREF_prep")
        k("s_add_u32 s32, s32, s22"); k("s_addc_u32 s33, s33, 0")
        k("global_load_dwordx4 v[60:63], v3, s[32:33]")
        k.label("NOPC_prep")
        k.vm = {kk: max(0, p - 1) for kk, p in k.vm.items()}
    k("s_mov_b32 s24, 0xffff0000")
    for q in range(8):
        k(f"v_lshlrev_b32 v{XF+2*q}, 16, v{X+q}"); k(f"v_and_b32 v{XF+2*q+1}, s24, v{X+q}")
    stamp(k, "x1")
    ln_stats(k, XF)
    stamp(k, "stats")
    k("v_mul_f32 v10, v58, v56"); k("v_mov_b32 v11, v56")
    k("v_lshlrev_b32 v5, 6, v1")
    k("s_lshl_b32 s20, s25, 9"); k("s_lshl_b32 s21, s26, 3"); k("s_add_u32 s20, s20, s21"); k(f"s_add_u32 s20, s20, {WS_ST:#x}")
    k("v_cmp_gt_u32 vcc, 8, v0")
    k("s_and_saveexec_b64 s[28:29], vcc")
    k("s_cbranch_execz SKIPST_prep")
    k("buffer_store_dwordx2 v[10:11], v5, s[12:15], s20 offen sc1")
    k.label("SKIPST_prep")
    stamp_flush(k, 0)
    k.label("END_prep"); k("s_endpgm")
    return k

def ln_stats(k, XF):
    k(f"v_pk_add_f32 v[10:11], {v(XF,2)}, {v(XF+2,2)}")
    for e in range(4, 16, 2): k(f"v_pk_add_f32 v[10:11], v[10:11], {v(XF+e,2)}")
    k("v_add_f32 v10, v10, v11")
    def allreduce(off):
        rowsum_8(k, 10, 11)
        k(f"ds_write_b32 v9, v10 offset:{off}", token="w"); k.wait("w"); k("s_barrier")
        k(f"ds_read_b128 {v(12,4)}, v8 offset:{off}")
        k("v_add_f32 v12, v12, v13"); k("v_add_f32 v14, v14, v15"); k("v_add_f32 v10, v12, v14")
    allreduce(0)
    k(f"v_mul_f32 v58, {f32(-1/512)}, v10"); k("v_mov_b32 v59, v58")
    for e in range(0, 16, 2): k(f"v_pk_add_f32 {v(XF+e,2)}, {v(XF+e,2)}, v[58:59]")
    k(f"v_pk_mul_f32 v[10:11], {v(XF,2)}, {v(XF,2)}")
    for e in range(2, 16, 2): k(f"v_pk_fma_f32 v[10:11], {v(XF+e,2)}, {v(XF+e,2)}, v[10:11]")
    k("v_add_f32 v10, v10, v11")
    allreduce(128)
    k(f"v_mov_b32 v11, {f32(1e-5)}"); k(f"v_fmac_f32 v11, {f32(1/512)}, v10")
    k("v_rsq_f32 v56, v11"); k("v_mov_b32 v57, v56")

def gen_ln2():
    k = Kernel("ln2_kernel", 256, 256, 256, vgpr=160, sgpr=64)
    k("s_cmp_ge_u32 s2, 256"); k("s_cbranch_scc1 END_ln2")
    stamp_begin(k)
    k(f"s_load_dwordx2 s[4:5], s[0:1], {A_X}")
    k(f"s_load_dwordx2 s[6:7], s[0:1], {A_WS}")
    k("v_and_b32 v1, 7, v0"); k("v_lshrrev_b32 v2, 3, v0"); k("v_lshrrev_b32 v6, 6, v0")
    k("v_and_b32 v7, 7, v2"); k("v_lshl_add_u32 v7, v6, 4, v7")
    k("v_lshlrev_b32 v3, 9, v7"); k("v_lshl_add_u32 v3, v1, 4, v3")
    k("v_add_u32 v2, 4096, v3")
    k("v_lshlrev_b32 v4, 10, v1"); k("v_lshl_add_u32 v4, v7, 4, v4")
    k("v_lshlrev_b32 v5, 5, v7")
    k("v_lshlrev_b32 v8, 4, v1"); k("v_lshl_add_u32 v9, v6, 2, v8")
    k("s_and_b32 s25, s2, 7"); k("s_lshl_b32 s25, s25, 5"); k("s_lshr_b32 s26, s2, 3"); k("s_add_u32 s25, s25, s26")
    k("s_lshl_b32 s20, s25, 13")
    k("s_lshr_b32 s21, s25, 2"); k("s_lshl_b32 s21, s21, 15"); k("s_and_b32 s22, s25, 3"); k("s_lshl_b32 s22, s22, 7")
    k("s_add_u32 s21, s21, s22")
    k(f"s_add_u32 s23, s21, {WS_P:#x}")
    k.srd(12, 6, WS_BYTES)
    X = 16; XF = 24; MV = 40; PB = 64
    for g in range(8):
        for i in range(2):
            k(f"buffer_load_dwordx4 {v(PB+8*g+4*i,4)}, v{3-i}, s[12:15], s23 offen" + (" nt" if P["PNT"] else ""))
        if g < 7: k("s_add_u32 s23, s23, 0x200000")
    k.srd(8, 4, 2048 * 1024)
    for i in range(2): k(f"buffer_load_dwordx4 {v(X+4*i,4)}, v4, s[8:11], s20 offen offset:{128*i}")
    k("s_mov_b32 s24, 0xffff0000")
    def load_mod(base, m):
        k(f"s_mov_b32 s23, {WS_MOD + m*2048}")
        for i in range(2):
            for hh in range(2):
                k(f"buffer_load_dwordx4 {v(base+8*i+4*hh,4)}, v5, s[12:15], s23 offen offset:{256*i+16*hh}")
    def unpack(dst, src):
        k(f"v_lshlrev_b32 v{dst}, 16, v{src}"); k(f"v_and_b32 v{dst+1}, s24, v{src}")
    load_mod(MV, 2); load_mod(128, 4); load_mod(144, 3)
    for q in range(8): unpack(XF + 2 * q, PB + q)
    for g in range(1, 8):
        for q in range(8):
            unpack(10 + 2 * (q & 1), PB + 8 * g + q)
            k(f"v_pk_add_f32 {v(XF+2*q,2)}, {v(XF+2*q,2)}, {v(10+2*(q&1),2)}")
    for q in range(8):
        unpack(10, X + q)
        k(f"v_pk_fma_f32 v[10:11], {v(XF+2*q,2)}, {v(MV+2*q,2)}, v[10:11]")
        k(f"v_cvt_pk_bf16_f32 v{X+q}, v10, v11")
        unpack(XF + 2 * q, X + q)
    k(f"s_add_u32 s23, s21, {WS_X1:#x}")
    for i in range(2): k(f"buffer_store_dwordx4 {v(X+4*i,4)}, v{3-i}, s[12:15], s23 offen sc1")
    stamp(k, "x1")
    ln_stats(k, XF)
    stamp(k, "stats")
    for e in range(0, 16, 2):
        k(f"v_pk_mul_f32 {v(XF+e,2)}, {v(XF+e,2)}, v[56:57]")
        k(f"v_pk_fma_f32 {v(XF+e,2)}, {v(XF+e,2)}, {v(128+e,2)}, {v(144+e,2)}")
        k(f"v_cvt_pk_bf16_f32 v{MV+e//2}, v{XF+e}, v{XF+e+1}")
    k(f"s_add_u32 s23, s21, {WS_H2:#x}")
    for i in range(2): k(f"buffer_store_dwordx4 {v(MV+4*i,4)}, v{3-i}, s[12:15], s23 offen sc1")
    stamp_flush(k, 2)
    k.label("END_ln2"); k("s_endpgm")
    return k

def put(k, seq):
    for x in seq:
        if isinstance(x, list): put(k, x)
        elif callable(x): x()
        else: k(x)

def gen_attn():
    k = Kernel("attn_kernel", 256, 256, 163840, vgpr=256, agpr=256, sgpr=72)
    L_K, L_H, L_V, L_W, L_M = 0, 32768, 32768, 98304, 16384
    ACC = 0; S = 0; CI = 64; Q = 128
    VK = 192; VV = 200; VW = 204; VDW = 208; VDK = 212; VDV = 214; VLIN = 215; VL16 = 216
    LS = 217
    T = 220
    LN_, ROWL, GR16 = T, T + 1, T + 2
    r_, c2, gn, h_, tm = T + 3, T + 4, T + 5, T + 6, T + 7
    CH8 = T + 10; HW = T + 11
    VX = T + 13; VM = T + 15
    MX = T + 16
    STT = T + 24
    RL = T + 28; UT = T + 28
    O = 0; FR = 128; AF = 128; BF = 160
    sW, sG, sRB, sT0, sT1, sRING, sST, sFB, sROT, sT2 = 28, 29, 30, 32, 33, 34, 35, 39, 50, 51
    sO0, sO1, sO2, sW2K, sW256, sKhi, sMASK, sCC, sR8 = 36, 37, 38, 52, 54, 55, 58, 59, 6
    TAB = 60
    def L(f, cost=4, mem=False):
        f.cost = cost; f.mem = mem; return f
    k("s_cmp_ge_u32 s2, 256"); k("s_cbranch_scc1 END_attn")
    stamp_begin(k)
    wave_id(k, sW, T)
    k(f"v_and_b32 v{LN_}, 63, v0")
    k(f"s_mov_b32 s{sFB}, 0")
    k.label("RESTART")
    k(f"s_load_dwordx2 s[4:5], s[0:1], {A_X}")
    k(f"s_load_dwordx2 s[48:49], s[0:1], {A_WS}")
    k(f"s_load_dwordx8 s[40:47], s[0:1], {A_K}")
    k(f"s_load_dwordx4 s[68:71], s[0:1], {A_WG}")
    k(f"v_lshlrev_b32 v{VL16}, 4, v{LN_}")
    G = P["G"]
    split2(k, 2, sG, sRB, G, 32, sT0, sROT)
    k(f"s_lshl_b32 s{sROT}, s{sROT}, {lg2(G)}")
    k(f"s_and_b32 s{sR8}, s{sROT}, 7"); k(f"s_lshr_b32 s{sCC}, s{sROT}, 3")
    RR, CGL = tm, tm + 1
    k(f"v_and_b32 v{RR}, 7, v{LN_}"); k(f"v_lshrrev_b32 v{CGL}, 3, v{LN_}")
    k(f"v_lshlrev_b32 v{VX}, 10, v{RR}"); k(f"v_lshl_add_u32 v{VX}, v{CGL}, 4, v{VX}"); k(f"v_add_u32 v{VX+1}, 8192, v{VX}")
    k(f"v_lshlrev_b32 v{tm+2}, 6, v{RR}")
    k(f"s_lshl_b32 s{sT1}, s{sRB}, 9"); k(f"s_lshl_b32 s{sT2}, s{sW}, 4"); k(f"s_add_u32 s{sT1}, s{sT1}, s{sT2}"); k(f"s_add_u32 s{sT1}, s{sT1}, {WS_ST:#x}")
    k(f"s_lshl_b32 s3, s{sRB}, 16"); k(f"s_lshl_b32 s{sT2}, s{sW}, 14"); k(f"s_add_u32 s3, s3, s{sT2}")
    k(f"s_lshl_b32 s{sW256}, s{sW}, 8"); k(f"s_lshl_b32 s{sW2K}, s{sW}, 11")
    k(f"v_lshrrev_b32 v{ROWL}, 4, v{LN_}")
    k(f"v_and_b32 v{r_}, 15, v{LN_}"); k(f"v_lshlrev_b32 v{GR16}, 2, v{ROWL}"); k(f"v_xor_b32 v{GR16}, v{GR16}, v{r_}")
    k(f"v_lshlrev_b32 v{GR16}, 4, v{GR16}")
    def w_voffs(psh, scol):
        return [f"v_lshl_add_u32 v{VDW}, v{ROWL}, {psh}, v{GR16}", f"v_add_u32 v{VDW}, s{scol}, v{VDW}"] + \
               [f"v_add_u32 v{VDW+n}, {n*((4<<psh)-1024)}, v{VDW}" for n in range(1, 4)]
    k(f"s_lshl_b32 s{sT0}, s{sG}, 10"); k(f"s_add_u32 s{sT0}, s{sT0}, s{sW256}")
    put(k, w_voffs(13, sT0))
    k(f"s_lshl_b32 s{sRING}, s{sW}, 14"); k(f"s_add_u32 s{sRING}, s{sRING}, {L_W}")
    for p in range(8):
        k(f"s_add_u32 s{TAB+p}, s{sR8}, {p}"); k(f"s_and_b32 s{TAB+p}, s{TAB+p}, 7"); k(f"s_lshl_b32 s{TAB+p}, s{TAB+p}, 17")
    k(f"s_lshl_b32 s{sKhi}, s{sCC}, 20")
    k.srd(24, 48, WS_BYTES); k.srd(16, 4, 2048 * 1024); k.srd(8, 44, 512 * 8192)
    XR = [0, 128, 144, 160]; CN = 176
    def xloads(c):
        o = [f"s_add_u32 s57, s{sCC}, {c}", "s_and_b32 s57, s57, 3", "s_lshl_b32 s57, s57, 8", "s_add_u32 s57, s57, s3"]
        for cb in range(2):
            for oo in range(2):
                o.append(f"buffer_load_dwordx4 {v(XR[c]+8*cb+4*oo,4)}, v{VX+oo}, s[16:19], s57 offen offset:{128*cb}")
        return o
    def w_dma(step, which):
        slot = step % 4
        if which == "Q":
            srd = 8
            pre = [f"s_add_u32 s{sT0}, s{sKhi}, s{TAB+step%8}"]
            adv = [[f"s_add_u32 s{sKhi}, s{sKhi}, 0x100000", f"s_and_b32 s{sKhi}, s{sKhi}, 0x3fffff"]] if step % 8 == 7 else []
        else:
            srd = 20
            pre = [f"s_add_u32 s{sT0}, s{TAB+step%8}, {(2*(step//8))<<14}"]
            adv = []
        o = [pre + [f"s_add_u32 m0, s{sRING}, {4096*slot}"]] + adv + [f"buffer_load_dwordx4 v{VDW}, s[{srd}:{srd+3}], s{sT0} offen lds"]
        for n in range(1, 4):
            o.append(L(lambda n=n: k(f"buffer_load_dwordx4 v{VDW+n}, s[{srd}:{srd+3}], s{sT0} offen offset:{1024*n} lds", token=f"W{slot}"), 10, "v"))
        return o
    slow = [f"buffer_load_dwordx4 {v(STT,4)}, v{tm+2}, s[24:27], s{sT1} offen",
            f"s_lshl_b32 s{sT2}, s{sW}, 10", f"s_add_u32 m0, s{sT2}, {L_M}",
            lambda: k(f"buffer_load_dwordx4 v{VL16}, s[24:27], s{sT2} offen lds", token="M")]
    seq = {0: [slow, xloads(0), w_dma(0, "Q"), xloads(1), w_dma(1, "Q")],
           1: [xloads(0), w_dma(0, "Q"), slow, xloads(1), w_dma(1, "Q")],
           2: [xloads(0), w_dma(0, "Q"), xloads(1), w_dma(1, "Q"), slow]}[P["PORD"]]
    put(k, seq)
    k(f"v_lshrrev_b32 v{r_}, 1, v{CGL}"); k(f"v_subrev_u32 v{r_}, s{sR8}, v{r_}")
    k(f"v_and_b32 v{c2}, 1, v{CGL}"); k(f"v_lshlrev_b32 v{c2}, 9, v{c2}"); k(f"v_lshl_add_u32 v{c2}, v{RR}, 4, v{c2}")
    k(f"s_lshr_b32 s{sT1}, s{sW}, 1"); k(f"s_lshl_b32 s{sT1}, s{sT1}, 15"); k(f"s_and_b32 s{sT2}, s{sW}, 1"); k(f"s_lshl_b32 s{sT2}, s{sT2}, 8")
    k(f"s_add_u32 s{sT1}, s{sT1}, s{sT2}"); k(f"s_add_u32 s{sT1}, s{sT1}, {L_H}"); k(f"v_add_u32 v{c2}, s{sT1}, v{c2}")
    for cb in range(2):
        k(f"v_add_u32 v{gn}, {4*cb}, v{r_}"); k(f"v_and_b32 v{gn}, 7, v{gn}"); k(f"v_lshl_add_u32 v{HW+cb}, v{gn}, 10, v{c2}")
    k(f"s_lshl_b32 s{sT2}, s{sCC}, 9"); k(f"v_lshlrev_b32 v{VM}, 5, v{CGL}"); k(f"v_add_u32 v{VM}, s{sT2}, v{VM}")
    lane_tr_parts(k, LN_, r_, c2, gn, h_, tm)
    k(f"v_lshl_add_u32 v{CH8}, v{gn}, 2, v{c2}"); k(f"v_lshlrev_b32 v{CH8}, 3, v{CH8}")
    k(f"v_lshl_add_u32 v{tm}, v{h_}, 3, v{r_}"); k(f"v_lshl_add_u32 v{tm}, v{tm}, 8, v{CH8}"); k(f"v_add_u32 v{tm}, s{sRING}, v{tm}")
    for a_ in range(4):
        k(f"v_xor_b32 v{tm+1}, {a_}, v{r_}"); k(f"v_lshl_add_u32 v{VW+a_}, v{tm+1}, 6, v{tm}")
    put(k, [f"v_lshl_add_u32 v{tm}, v{h_}, 2, v{r_}", f"v_lshl_add_u32 v{tm}, v{tm}, 8, v{CH8}", f"v_add_u32 v{tm}, {L_V}, v{tm}"])
    for dt in range(4): put(k, [f"v_xor_b32 v{tm+1}, {dt}, v{r_}", f"v_lshl_add_u32 v{VV+dt}, v{tm+1}, 6, v{tm}"])
    put(k, [f"v_and_b32 v{tm}, 31, v{LN_}", f"v_and_b32 v{tm+1}, 15, v{LN_}", f"v_xor_b32 v{tm+1}, v{tm+1}, v{h_}",
            f"v_lshlrev_b32 v{tm}, 8, v{tm}", f"v_lshl_add_u32 v{VK}, v{tm+1}, 4, v{tm}"])
    put(k, [f"v_xor_b32 v{VK+s_}, {s_*32}, v{VK}" for s_ in range(1, 8)])
    put(k, [f"v_mov_b32 v{LS}, 0", f"v_mov_b32 v{LS+1}, 0",
        f"v_lshl_add_u32 v{VDV}, v{ROWL}, 8, v{GR16}", f"s_and_b32 s{sT1}, s{sW}, 1", f"s_lshl_b32 s{sT1}, s{sT1}, 3",
        f"v_or_b32 v{tm}, s{sT1}, v{ROWL}", f"v_and_b32 v{tm+1}, 15, v{LN_}", f"v_xor_b32 v{tm}, v{tm}, v{tm+1}",
        f"v_lshlrev_b32 v{VDK}, 8, v{ROWL}", f"v_lshl_add_u32 v{VDK}, v{tm}, 4, v{VDK}", f"v_xor_b32 v{VDK+1}, 64, v{VDK}",
        f"s_lshl_b32 s{sT1}, s{sG}, 19", f"s_add_u32 s{sT1}, s{sT1}, s{sW2K}", f"s_add_u32 s{sT1}, s{sT1}, {1536*256}",
        f"v_add_u32 v{VDK}, s{sT1}, v{VDK}", f"v_add_u32 v{VDK+1}, s{sT1}, v{VDK+1}", f"v_add_u32 v{VDV}, s{sT1}, v{VDV}",
        f"v_add_u32 v{VLIN}, {L_H}, v{VL16}", f"s_mov_b32 s{sMASK}, 0xffff0000"])
    k.srd(12, 40, 8 * 2048 * 256); k.srd(20, 46, 4096 * 1024)
    def nxt(d, s_): return [f"s_add_u32 s{d}, s{s_}, 8192", f"s_and_b32 s{d}, s{d}, 0x1ffff"]
    def kv_dma(which, lds_off, so):
        srd = 12 if which == "K" else 16
        return [f"s_add_u32 m0, s{sW2K}, {lds_off}", f"buffer_load_dwordx4 v{VDK if which=='K' else VDV}, s[{srd}:{srd+3}], s{so} offen lds",
                L(lambda: k(f"buffer_load_dwordx4 v{VDK+1 if which=='K' else VDV}, s[{srd}:{srd+3}], s{so} offen offset:1024 lds", token=which), 10, "v")]
    kinit = [[f"s_lshr_b32 s{sO0}, s{sROT}, 1", f"s_lshl_b32 s{sO0}, s{sO0}, 13"] + nxt(sO1, sO0) + nxt(sO2, sO1)]
    kfirst = [kv_dma("K", L_K + 16384 + 8192, sO0), kv_dma("K", L_K, sO1), kv_dma("K", L_K + 8192, sO2)]
    put(k, [w_dma(2, "Q"), xloads(2), w_dma(3, "Q"), xloads(3), kinit])
    if P["KEARLY"]: put(k, kfirst)
    stamp(k, "setup")
    def cread(cb, dst):
        return [f"ds_read_b128 {v(dst+8*m_+4*q,4)}, v{VM} offset:{L_M+2048*(1-m_)+256*cb+16*q}" for m_ in range(2) for q in range(2)]
    vmadv = [[f"v_add_u32 v{VM}, 0x200, v{VM}", f"v_and_b32 v{VM}, 0x7ff, v{VM}"]]
    def modulate(c, cb, cn, U_, pk):
        o = []
        for oo in range(2):
            x = XR[c] + 8 * cb + 4 * oo; u = U_ + (8 * oo if pk else 0)
            for q in range(4): o += [f"v_lshlrev_b32 v{u+2*q}, 16, v{x+q}", f"v_and_b32 v{u+2*q+1}, s{sMASK}, v{x+q}"]
            if pk:
                st = v(STT + 2 * oo, 2)
                o += [f"v_pk_fma_f32 {v(u+2*q,2)}, {v(u+2*q,2)}, {st}, {st} op_sel:[0,1,0] op_sel_hi:[1,1,0]" for q in range(4)]
                o += [f"v_pk_fma_f32 {v(u+2*q,2)}, {v(u+2*q,2)}, {v(cn+2*q,2)}, {v(cn+8+2*q,2)}" for q in range(4)]
            else:
                o += [f"v_fma_f32 v{u+e}, v{u+e}, v{STT+2*oo+1}, v{STT+2*oo}" for e in range(8)]
                o += [f"v_fma_f32 v{u+e}, v{u+e}, v{cn+e}, v{cn+8+e}" for e in range(8)]
            o += [f"v_cvt_pk_bf16_f32 v{x+q}, v{u+2*q}, v{u+2*q+1}" for q in range(4)]
            o.append(L(lambda x=x, cb=cb, oo=oo: k(f"ds_write_b128 v{HW+cb}, {v(x,4)} offset:{8192*c+128*oo}", token="hw"), 22, "d"))
        return o
    k.wait("M"); k("s_barrier")
    put(k, cread(0, 16) + cread(1, 32) + vmadv)
    put(k, modulate(0, 0, 16, 48, True) + modulate(0, 1, 32, 64, True))
    fr = lambda f: FR + 4 * (f % 8)
    def rdK(f, s_, off): return [f"ds_read_b128 {a(fr(f),4)}, v{VK+s_} offset:{off}"]
    def rdV(f, i, off): return [f"ds_read_b64_tr_b16 {a(fr(f)+2*u,2)}, v{VV+i%4} offset:{off+4096*(i//4)+2048*u}" for u in range(2)]
    def a_reads(step):
        slot = step % 4; buf = step % 2
        rd = [f"ds_read_b64_tr_b16 {a(AF+16*buf+4*a_+2*u,2)}, v{VW+a_} offset:{4096*slot+1024*u}" for a_ in range(4) for u in range(2)]
        return [[L(lambda: k.wait(f"W{slot}")), rd[0]]] + rd[1:]
    def b_reads(step):
        return [f"ds_read_b128 {a(BF+8*(step%2)+4*rt,4)}, v{VLIN} offset:{1024*step+32768*rt}" for rt in range(2)]
    put(k, a_reads(0))
    k.wait("hw"); k("s_barrier")
    stamp(k, "mod")
    put(k, b_reads(0))
    def g_mfma(buf, first=False):
        return [f"v_mfma_f32_32x32x16_bf16 {v(ACC+32*a_+16*rt,16)}, {a(AF+16*buf+4*a_,4)}, {a(BF+8*buf+4*rt,4)}, {'0' if first else v(ACC+32*a_+16*rt,16)}"
                for a_ in range(4) for rt in range(2)]
    def gbody(which, c, extra):
        sc = Sched(64)
        mf = []
        if c < 3: sc.pin(57, L(lambda: (k.wait("hw"), k("s_barrier")), 8))
        for i in range(8):
            st = 8 * c + i
            if st + 1 < 32:
                sc.add(a_reads(st + 1), 8 * i, 8 * i + 5, prio=1)
                sc.add(b_reads(st + 1), 8 * i + (1 if i == 7 else 0), 8 * i + 4, prio=1)
                sc.pin(8 * i + 7, L(lambda st=st: k.wait_regs(a(AF + 16 * ((st + 1) % 2), 16), a(BF + 8 * ((st + 1) % 2), 8))), end=True)
            if st + 4 < 32: sc.add(w_dma(st + 4, which), 8 * i, 8 * i + 8)
            mf += g_mfma(i % 2, st == 0)
        extra(sc)
        for m, f_ in zip(mf, sc.run()): k(m); put(k, f_)
    def qepi(a_):
        return [f"v_cvt_pk_bf16_f32 v{Q+16*a_+8*(j//4)+4*rt+j%4}, v{ACC+32*a_+16*rt+2*j}, v{ACC+32*a_+16*rt+2*j+1}" for rt in range(2) for j in range(8)]
    def qx(c):
        def f(sc):
            if c < 3:
                m0_ = modulate(c + 1, 0, CN, UT, False); m1_ = modulate(c + 1, 1, CN, UT, False)
                if P["BURST"]:
                    wr = [x for x in m0_ + m1_ if callable(x)]
                    m0_ = [x for x in m0_ if not callable(x)]; m1_ = [x for x in m1_ if not callable(x)]
                    sc.add(cread(0, CN) + m0_[:-4] + cread(1, CN) + m0_[-4:] + m1_ + vmadv, 0, P["BURST"])
                    sc.pin(P["BURST"], wr)
                else:
                    sc.add(cread(0, CN) + m0_[:-5] + cread(1, CN) + m0_[-5:] + m1_ + vmadv, 0, 55)
            else:
                sc.pin(0, L(lambda: k.srd(16, 42, 8 * 2048 * 256), 16))
                if not P["KEARLY"]: sc.add([x for d in kfirst for x in d], 32, 44)
                tab = []
                for p in range(8):
                    tab.append([f"s_add_u32 s{sT1}, s{sR8}, {p}", f"s_and_b32 s{sT1}, s{sT1}, 7", f"s_lshr_b32 s{sT2}, s{sT1}, 1", f"s_mul_i32 s{sT2}, s{sT2}, 6"])
                    tab.append([f"s_add_u32 s{sT1}, s{sT1}, s{sT2}", f"s_lshl_b32 s{TAB+p}, s{sT1}, 14"])
                sc.add(tab + [[f"s_lshl_b32 s{sT0}, s{sG}, 19", f"s_add_u32 s{sT0}, s{sT0}, s{sW256}"]] + w_voffs(10, sT0), 33, 56)
                sc.pin(56, L(lambda: (k.wait_all(), k("s_barrier")), 8))
                sc.add([rdK(f, f, L_K + 16384 + 8192) for f in range(4)], 56, 60, prio=1)
                sc.add(kv_dma("V", L_V, sO0) + kv_dma("V", L_V + 8192, sO1), 57, 62)
                sc.add(qepi(0), 61, 64)
        return f
    for c in range(4): gbody("Q", c, qx(c))
    stamp(k, "qgemm")
    def qk(f, s_, qt, buf, zero):
        d = v(S + 32 * buf + 16 * qt, 16)
        c = d if s_ else ("0" if zero else v(CI + 16 * qt, 16))
        return f"v_mfma_f32_32x32x16_bf16 {d}, {a(fr(f),4)}, {v(Q+8*s_+4*qt,4)}, {c}"
    def pv(f, i, qt, buf, zero=False):
        d = a(O + 32 * (i % 4) + 16 * qt, 16)
        return f"v_mfma_f32_32x32x16_bf16 {d}, {a(fr(f),4)}, {v(S+32*buf+16*qt+8*(i//4),4)}, {'0' if zero else d}"
    def sreg(buf, e): return S + 32 * buf + 16 * ((e >> 3) & 1) + 8 * (e >> 4) + (e & 7)
    def sm(buf, e, addci=False):
        o = []
        if e < 32:
            if addci: o.append(f"v_add_f32 v{sreg(buf,e)}, v{sreg(buf,e)}, v{CI+16*((e>>3)&1)}")
            o.append(f"v_exp_f32 v{sreg(buf,e)}, v{sreg(buf,e)}")
        if e >= 1:
            p = e - 1
            o.append(f"v_add_f32 v{LS+((p>>3)&1)}, v{LS+((p>>3)&1)}, v{sreg(buf,p)}")
            if p & 1:
                o.append(f"v_cvt_pk_bf16_f32 v{sreg(buf,p&~7)+(p&7)//2}, v{sreg(buf,p-1)}, v{sreg(buf,p)}")
        return o
    def wgrp(j): return L(lambda: k.wait_regs(a(FR + 16 * (j % 2), 16)))
    def qk0(epi):
        wgrp(0)()
        for s_ in range(8):
            ep = qepi(s_ // 2 + 1)[8 * (s_ & 1):8 * (s_ & 1) + 8] if epi and s_ < 6 else []
            rd = [rdK(f + 4, f + 4, L_K + 16384 + 8192) if f < 4 else rdK(f + 4, f - 4, L_K) for f in ([2*s_, 2*s_+1] if s_ < 2 else [2*s_-4, 2*s_-3] if 4 <= s_ < 6 else [])]
            k(qk(s_, s_, 0, 0, True)); put(k, rd[:1]); put(k, ep[:4])
            k(qk(s_, s_, 1, 0, True)); put(k, rd[1:]); put(k, ep[4:])
            if s_ % 4 == 3: wgrp(s_ // 4 + 1)()
    qk0(True)
    k(f"s_cmp_lg_u32 s{sFB}, 0"); k("s_cbranch_scc1 FB_MAX")
    if not P.get("OST"): stamp(k, "qk0")
    k.label("IT0")
    def maxops(buf, dst):
        o = []
        for qt in range(2):
            b = S + 32 * buf + 16 * qt; t = dst + qt
            o.append(f"v_max3_f32 v{t}, v{b}, v{b+1}, v{b+2}")
            for i in range(3, 15, 2): o.append(f"v_max3_f32 v{t}, v{t}, v{b+i}, v{b+i+1}")
            o.append(f"v_max_f32 v{t}, v{t}, v{b+15}")
        return [x for pr in zip(o[:8], o[8:]) for x in pr]
    def xhalf_max(t, t2):
        return [f"v_mov_b32 v{t2}, v{t}", f"v_mov_b32 v{t2+1}, v{t+1}", f"v_permlane32_swap_b32 v{t}, v{t2}", f"v_permlane32_swap_b32 v{t+1}, v{t2+1}",
                f"v_max_f32 v{t}, v{t}, v{t2}", f"v_max_f32 v{t+1}, v{t+1}, v{t2+1}"]
    def flat(x): return [y for z in x for y in z]
    def iteration(par, first=False, last=False, extra=None):
        hb = 16384 * par; nb = 16384 * (1 - par)
        mf = []
        phs = [0, 1, 3] if last else [0, 1, 2, 3]
        n = 16 * len(phs)
        sc = Sched(n)
        frs = []
        for q_, ph in enumerate(phs):
            for g in range(16):
                f = 8 * q_ + g // 2; qt = g & 1; i = g // 2
                if ph == 0: mf.append(qk(f, i, qt, 1, first))
                elif ph == 1: mf.append(pv(f, i, qt, 0, first and i < 4))
                elif ph == 2: mf.append(qk(f, i, qt, 0, False))
                else: mf.append(pv(f, i, qt, 1))
            for i in range(8): frs.append((ph, i))
        ng = len(frs) // 4
        for j in range(1, ng):
            rd = []
            for f in range(4 * j, 4 * j + 4):
                ph, i = frs[f]
                rd += rdK(f, i, hb + 8192 * (ph // 2)) if ph % 2 == 0 else rdV(f, i, hb + 8192 * (ph // 2))
            g0 = 8 * (j - 1)
            if first and j == 2: sc.pin(g0 + 1, L(lambda: (k.wait("V"), k("s_barrier")), 8)); g0 += 1
            sc.add(rd, g0, 8 * (j - 1) + 6, prio=1)
            sc.pin(8 * j - 1, wgrp(j), end=True)
        dm = [nxt(sO1, sO2), kv_dma("V", L_V + nb, sO2), kv_dma("K", L_K + nb, sO1), kv_dma("V", L_V + nb + 8192, sO1), nxt(sO2, sO1), kv_dma("K", L_K + nb + 8192, sO2)]
        dm = [dm[0]] + dm[1] + dm[2] + dm[3] + [dm[4]] + dm[5]
        if first:
            sc.add(dm, 24, 44)
            mx = maxops(0, MX) + xhalf_max(MX, MX + 2)
            mx += [[f"s_cmp_lg_u32 s{sFB}, 0", "s_cselect_b64 vcc, -1, 0"]]
            mx += [f"v_sub_f32 v{CI+16*qt}, {f32(-float(P['BIAS']))}, v{MX+qt}" for qt in range(2)]
            mx += [f"v_cndmask_b32 v{CI+16*qt}, v{CI+16*qt}, v{MX+4+qt}, vcc" for qt in range(2)]
            sc.add(mx + flat(sm(0, e, True) for e in range(17)), 1, 16)
            sc.add(flat(sm(0, e, True) for e in range(17, 33)), 16, 23)
            sc.add([f"v_mov_b32 v{CI+16*qt+i}, v{CI+16*qt}" for qt in range(2) for i in range(1, 16)], 23, 31)
            sc.add(flat(sm(1, e, True) for e in range(33)), 23, 54)
            sc.add(flat(sm(0, e) for e in range(12)), 54, 64)
        else:
            for e in range(12, 33): sc.pin(e - 12, sm(0, e))
            if last:
                sc.add(flat(sm(1, e) for e in range(17)), 19, 31)
                sc.add(flat(sm(1, e) for e in range(17, 33)), 31, 39)
            else:
                sc.add(dm, 1, 40)
                for e in range(33): sc.pin(20 + e, sm(1, e))
                for e in range(12): sc.pin(52 + e, sm(0, e))
        if not last:
            sc.pin(56, L(lambda: (k.wait("K", "V"), k("s_barrier")), 8))
            sc.add([rdK(f, f, nb) for f in range(4)], 56, 61, prio=1)
            sc.pin(63, wgrp(0), end=True)
        if extra: extra(sc)
        for m, f_ in zip(mf, sc.run()): k(m); put(k, f_)
    def x_first(sc):
        pf = [[f"s_lshl_b32 s{sT1}, s{sROT}, 14", f"s_lshl_b32 s{sT2}, s{sG}, 19", f"s_add_u32 s{sT1}, s{sT1}, s{sT2}"], [f"s_lshl_b32 s{sT2}, s{sW}, {12+lg2(G)}", f"s_add_u32 s{sT1}, s{sT1}, s{sT2}"]]
        for n in range(4 * G):
            pf.append([f"buffer_load_dwordx4 {a(192+4*(n%16),4)}, v{VL16}, s[20:23], s{sT1} offen offset:{1024*(n%4)}"] + ([f"s_add_u32 s{sT1}, s{sT1}, 4096"] if n % 4 == 3 else []))
        sc.add(pf, 44, 56)
    iteration(0, first=True, extra=x_first)
    if not P.get("OST"): stamp(k, "it0")
    i0 = len(k.items)
    k.loop(sST, 3, lambda: (iteration(1), iteration(0)), align=3)
    X = P.get("DBGX", 0)
    if X:
        def keep(it):
            if it.kind in ("label", "raw"): return True
            if X & 1 and it.mn == "s_barrier": return False
            if X & 2 and it.mn == "s_waitcnt": return False
            if X & 4 and it.kind in ("valu", "trans"): return False
            if X & 8 and it.kind == "vmem": return False
            if X & 16 and it.kind == "ds": return False
            if X & 32 and it.kind == "trans": return False
            if X & 64 and it.kind == "valu": return False
            return True
        k.items[i0:] = [it for it in k.items[i0:] if keep(it)]
        k.wait_all()
    if not P.get("OST"): stamp(k, "it1-6")
    OM = MX + 4
    def finalize(dt):
        o = []
        for qt in range(2):
            b = Q + 16 * qt; pk_ = Q + 32 + 8 * qt
            o += [f"v_accvgpr_read_b32 v{b+i}, a{O+32*dt+16*qt+i}" for i in range(16)]
            o += [f"v_maximum3_f32 v{OM+qt}, |v{b+i}|, |v{b+i+1}|, v{OM+qt}" for i in range(0, 16, 2)]
            o += [f"v_mul_f32 v{b+i}, v{b+i}, v{RL+qt}" for i in range(16)]
            for sp in range(2):
                o += [f"v_cvt_pk_bf16_f32 v{pk_+4*sp+j}, v{b+8*sp+2*j}, v{b+8*sp+2*j+1}" for j in range(4)]
                o.append(L(lambda sp=sp, qt=qt, pk_=pk_: k(f"ds_write_b128 v{HW+sp}, {v(pk_+4*sp,4)} offset:{32768*qt+8192*dt}", token="hw"), 22, "d"))
        return o
    f0 = finalize(0)
    def x_last(sc):
        sc.add(flat(w_dma(s_, "O") for s_ in range(4)), 0, 30)
        fin = [f"v_mov_b32 v{MX}, v{LS}", f"v_mov_b32 v{MX+1}, v{LS+1}", f"v_mov_b32 v{OM}, 0", f"v_mov_b32 v{OM+1}, 0",
               f"v_permlane32_swap_b32 v{LS}, v{MX}", f"v_permlane32_swap_b32 v{LS+1}, v{MX+1}",
               f"v_add_f32 v{LS}, v{LS}, v{MX}", f"v_add_f32 v{LS+1}, v{LS+1}, v{MX+1}",
               f"v_rcp_f32 v{RL}, v{LS}", f"v_rcp_f32 v{RL+1}, v{LS+1}", f"v_max_f32 v{MX+6}, v{LS}, v{LS+1}"]
        adr = []
        for sp in range(2):
            adr += [[f"s_lshl_b32 s56, s{sW}, 1", f"s_add_u32 s56, s56, {sp}", f"s_sub_u32 s56, s56, s{sR8}"], [f"s_and_b32 s56, s56, 7",
                    f"s_lshl_b32 s56, s56, 10", f"v_add_u32 v{HW+sp}, s56, v{VLIN}"]]
        sc.add(adr, 0, 8)
        sc.add(fin, 39, 43)
        sc.pin(40, L(lambda: k("s_barrier")))
        sc.add(a_reads(0), 40, 46, prio=1)
        sc.add(f0[:30], 43, 48)
    iteration(1, last=True, extra=x_last)
    stamp(k, "it7")
    put(k, f0[30:])
    k.wait("hw"); k("s_barrier")
    put(k, b_reads(0))
    stamp(k, "owrite")
    def ox(c):
        def f(sc):
            if c < 3 and P["BURST"]:
                fz = finalize(c + 1)
                sc.add([x for x in fz if not callable(x)], 1, 46 if c == 2 else P["BURST"])
                sc.pin(P["BURST"], [x for x in fz if callable(x)])
            elif c < 3: sc.add(finalize(c + 1), 1, 48 if c == 2 else 55)
            if c == 2:
                chk = [f"v_maximum3_f32 v{MX+7}, v{OM}, v{OM+1}, v{MX+6}", f"v_min_f32 v{OM}, v{OM}, v{OM+1}",
                       f"v_cmp_ngt_f32 vcc, {f32(2.0**120)}, v{MX+7}", "s_mov_b64 s[56:57], vcc",
                       f"v_cmp_gt_f32 vcc, {f32(2.0**-90 if not P['FORCE_FB'] else 2.0**100)}, v{OM}",
                       ["s_or_b64 s[56:57], s[56:57], vcc", f"s_cselect_b32 s{sT1}, 1, 0", f"v_mov_b32 v{MX}, s{sT1}"],
                       [f"s_lshl_b32 s{sT1}, s{sW}, 2", f"v_mov_b32 v{MX+1}, s{sT1}"],
                       L(lambda: k(f"ds_write_b32 v{MX+1}, v{MX} offset:{L_K}", token="hw"), 4, "d"), f"v_mov_b32 v{MX+2}, 0"]
                if P["BURST"]: sc.add(chk[:-2] + chk[-1:], 46, P["BURST"]); sc.pin(P["BURST"], chk[-2])
                else: sc.add(chk, 48, 56)
            if c == 3:
                if P["PF1"]:
                    NA = P["F1R"] // 2; Wd_ = 3584 // NA; nl = (Wd_ + 1023) // 1024; per = Wd_ // nl // 16
                    pf = [[f"v_min_u32 v{tm}, {per-1}, v{LN_}", f"v_lshlrev_b32 v{tm}, 4, v{tm}"],
                          [f"s_lshr_b32 s56, s2, 3", f"s_lshl_b32 s56, s56, 2", f"s_add_u32 s56, s56, s{sW}"], [f"s_mul_i32 s56, s56, {4*3584}",
                           f"s_and_b32 s57, s2, {NA-1}"], [f"s_mul_i32 s57, s57, {Wd_}", f"s_add_u32 s56, s56, s57"],
                          L(lambda: k.srd(12, 68, 512 * 3584), 16), L(lambda: k.srd(16, 70, 512 * 3584), 16)]
                    n = 0
                    for r in range(4):
                        for l_ in range(nl):
                            for srd in (12, 16):
                                pf.append(f"buffer_load_dwordx4 {a(192+4*(n%16),4)}, v{tm}, s[{srd}:{srd+3}], s56 offen offset:{l_*per*16}"); n += 1
                        pf.append(f"s_add_u32 s56, s56, 3584")
                    sc.add(pf[:6], 8, 32); sc.add(pf[6:], 32, 56)
                sc.pin(5, f"ds_read_b128 {v(STT,4)}, v{MX+2} offset:{L_K}")
                sc.pin(14, [f"v_or3_b32 v{STT}, v{STT}, v{STT+1}, v{STT+2}", f"v_or_b32 v{STT}, v{STT}, v{STT+3}"])
                sc.pin(22, f"v_readfirstlane_b32 s{sT2}, v{STT}")
                sc.pin(38, [f"s_lshl_b32 s{sT0}, s{sG}, 21", f"s_lshl_b32 s{sT1}, s{sRB}, 16", f"s_add_u32 s{sT0}, s{sT0}, s{sT1}"])
                sc.pin(46, [f"s_lshl_b32 s{sT1}, s{sW}, 13", f"s_add_u32 s{sT0}, s{sT0}, s{sT1}", f"s_add_u32 s{sT0}, s{sT0}, {WS_P:#x}"])
                sc.pin(54, [f"s_andn2_b32 s{sT2}, s{sT2}, s{sFB}", "s_cbranch_scc1 FALLBACK"])
        return f
    i0 = len(k.items)
    for c in range(4):
        gbody("O", c, ox(c))
        if P.get("OST") and c < 3: stamp(k, f"o{c}")
    X = P.get("DBGO", 0)
    if X:
        def keep(it):
            if it.kind in ("label", "raw"): return True
            if it.mn.startswith("s_cbranch"): return False
            if X & 1 and it.mn == "s_barrier": return False
            if X & 2 and it.mn == "s_waitcnt" and "vmcnt" in it.text: return False
            if X & 4 and it.kind in ("valu", "trans") and not it.mn.startswith(("v_min_u32", "v_lshlrev")): return False
            if X & 8 and it.kind == "vmem": return False
            if X & 16 and it.mn.startswith("ds_write"): return False
            if X & 32 and it.mn == "s_waitcnt" and "lgkmcnt" in it.text: return False
            return True
        k.items[i0:] = [it for it in k.items[i0:] if keep(it)]
        k.wait_all()
    stamp(k, "ogemm")
    for a_ in range(4):
        for rt in range(2):
            k(f"s_add_u32 s{sT1}, s{sT0}, {32768*rt + 2048*a_}")
            b = ACC + 32 * a_ + 16 * rt
            for sp in range(2):
                for j in range(4 * sp, 4 * sp + 4): k(f"v_cvt_pk_bf16_f32 v{Q+16*a_+8*rt+j}, v{b+2*j}, v{b+2*j+1}")
                k(f"buffer_store_dwordx4 {v(Q+16*a_+8*rt+4*sp,4)}, v{VL16}, s[24:27], s{sT1} offen offset:{1024*sp}" + ["", " nt", " sc1", " sc0 sc1"][P["PST"]])
    stamp_flush(k, 1)
    k.label("END_attn"); k("s_endpgm")
    k.label("FALLBACK")
    k.wait_all(); k("s_barrier")
    k(f"s_mov_b32 s{sFB}, 1")
    k("s_nop 15")
    k("s_branch RESTART")
    k.label("FB_MAX")
    k.wait_all(); k("s_barrier")
    k(f"v_mov_b32 v{MX+4}, 0xff800000"); k(f"v_mov_b32 v{MX+5}, 0xff800000")
    def fbody():
        put(k, kv_dma("K", L_K, sO0) + nxt(sO0, sO0)); k.wait("K"); k("s_barrier")
        for s_ in range(8): put(k, rdK(s_, s_, L_K))
        for s_ in range(8):
            for qt in range(2): k(qk(s_, s_, qt, 0, True))
        put(k, maxops(0, MX))
        k(f"v_max_f32 v{MX+4}, v{MX+4}, v{MX}"); k(f"v_max_f32 v{MX+5}, v{MX+5}, v{MX+1}")
        k("s_barrier")
    k.loop(sST, 16, fbody)
    put(k, xhalf_max(MX + 4, MX + 2))
    for qt in range(2): k(f"v_sub_f32 v{MX+4+qt}, 0, v{MX+4+qt}")
    put(k, kfirst)
    k.wait_all(); k("s_barrier")
    for f in range(4): put(k, rdK(f, f, L_K + 16384 + 8192))
    qk0(False)
    k.wait_all()
    k("s_branch IT0")
    return k

from gen5_ffn import gen_ffn1, gen_ffn2

HEADER = open('adaLN_cond__sliding_block_cached__geglu_ffn__prompt.s.ref').read().split("; Override launch")[0]

if __name__ == "__main__":
    out = sys.argv[1] if len(sys.argv) > 1 else "k.s"
    me = sys.modules[__name__]
    ks = [gen_prep(), gen_attn(), gen_ln2(), gen_ffn1(me), gen_ffn2(me)]
    ks[-1].label("CODE_END")
    txt = emit(ks, header=HEADER)
    open(out, "w").write(txt)
    json.dump([[k.name, k.grid, k.block//64, k.stamps] for k in ks], open(out[:-2]+".json","w"))
    for k in ks: print(k.name, "regs(v,a,s)", k.used, "nops", k.n_nops, "misal", k.n_mis, "instrs", len(k.items))
```

```python
import sys, struct, math, os, json
from asmlib import *

def f32(x): return "0x%08x" % struct.unpack("<I", struct.pack("<f", x))[0]
LOG2E = 1.4426950408889634
CS = 128 ** -0.5
A_X, A_K, A_V, A_WQ, A_WO, B_X, A_WG, A_WU, A_WD, A_C, A_WM, A_OUT, A_DBG, A_WS = [8 * i for i in range(14)]
WS_MOD = 0x0
WS_ST = 0x10000
WS_P = 0x400000
WS_X1 = 0x1400000
WS_H2 = 0x1600000
WS_ACT = 0x1800000
WS_BYTES = 0x10000000
WS_DBG = 0x8000000
P = dict(STAMPS=0, G=1, ROT=1, F1R=8, F2R=8, PREF0=1, PREFC=1, PREFQ=1, PREFK=1, PORD=1, BURST=54, KEARLY=0, BIAS=64, FORCE_FB=0, PNT=0, PST=2, AST=2, PF1=1, PF2=1)
for kv in os.environ.get("GP", "").split(","):
    if kv: P[kv.split("=")[0]] = int(kv.split("=")[1])

def stamp(k, name):
    if not P["STAMPS"]: return
    i = len(k.stamps); k.stamps.append(name)
    assert i < 12
    k.sgpr = 102
    k("s_memtime s[72:73]"); k("s_memrealtime s[74:75]"); k("s_waitcnt lgkmcnt(0)")
    k(f"s_mov_b32 s{76+2*i}, s72"); k(f"s_mov_b32 s{77+2*i}, s74")
def stamp_begin(k):
    k.stamps = []
    if not P["STAMPS"]: return
    k("v_lshrrev_b32 v1, 6, v0"); k("v_readfirstlane_b32 s101, v1")
    stamp(k, "start")
def stamp_flush(k, kidx):
    if not P["STAMPS"]: return
    stamp(k, "end")
    if P["STAMPS"] == 2:
        lab = k.newlabel("NODBG")
        k("s_mov_b64 exec, -1")
        k("s_or_b32 s100, s2, s101"); k("s_cmp_lg_u32 s100, 0"); k(f"s_cbranch_scc1 {lab}")
        k(f"s_load_dwordx2 s[64:65], s[0:1], {A_DBG}")
        k(f"s_sub_u32 s64, s64, {512*kidx}"); k("s_subb_u32 s65, s65, 0")
        k.srd(56, 64, 256)
        n = len(k.stamps) - 1
        k(f"s_sub_u32 s100, s{76+2*n}, s76")
        k("v_mov_b32 v1, 0")
        for j, sr in enumerate([77, 77 + 2*n, 100]):
            k(f"v_mov_b32 v0, s{sr}")
            k(f"buffer_store_dword v0, v1, s[56:59], 0 offen offset:{12*kidx+4*j}")
        k.label(lab)
        return
    k(f"s_load_dwordx2 s[64:65], s[0:1], {A_WS}")
    k("s_mov_b64 exec, -1")
    k.srd(56, 64, WS_BYTES)
    k("s_lshl_b32 s100, s2, 3"); k("s_add_u32 s100, s100, s101"); k("s_lshl_b32 s100, s100, 8")
    k(f"s_add_u32 s100, s100, {WS_DBG + kidx*0x100000:#x}")
    k("v_mov_b32 v1, 0")
    for j, sr in enumerate([76 + i for i in range(2*len(k.stamps))]):
        k(f"v_mov_b32 v0, s{sr}")
        k(f"buffer_store_dword v0, v1, s[56:59], s100 offen offset:{4*j}")

def wave_id(k, sdst, vtmp):
    k(f"v_lshrrev_b32 v{vtmp}, 6, v0")
    k(f"v_readfirstlane_b32 s{sdst}, v{vtmp}")
def rowsum_8(k, val, tmp):
    k(f"v_add_f32_dpp v{val}, v{val}, v{val} row_ror:8 row_mask:0xf bank_mask:0xf")
    k(f"v_mov_b32 v{tmp}, v{val}"); k(f"v_permlane16_swap_b32 v{val}, v{tmp}"); k(f"v_add_f32 v{val}, v{val}, v{tmp}")
    k(f"v_mov_b32 v{tmp}, v{val}"); k(f"v_permlane32_swap_b32 v{val}, v{tmp}"); k(f"v_add_f32 v{val}, v{val}, v{tmp}")
def rnd(k, d, sreg): k(f"v_cvt_pk_bf16_f32 v{d}, 0, v{sreg}")
def lg2(x): return x.bit_length() - 1
def split2(k, sb, sA, sB, nA_per, nB_total, t0, t1):
    A_total = 256 // nB_total; NA = A_total // nA_per
    k(f"s_and_b32 s{t0}, s{sb}, 7"); k(f"s_lshr_b32 s{t1}, s{sb}, 3")
    k(f"s_and_b32 s{sA}, s{t0}, {NA-1}"); k(f"s_lshl_b32 s{sA}, s{sA}, {lg2(nA_per)}")
    k(f"s_and_b32 s{sB}, s{t1}, {nA_per-1}"); k(f"s_add_u32 s{sA}, s{sA}, s{sB}")
    k(f"s_lshr_b32 s{sB}, s{t0}, {lg2(NA)}"); k(f"s_lshl_b32 s{sB}, s{sB}, {lg2(32//nA_per)}")
    k(f"s_lshr_b32 s{t1}, s{t1}, {lg2(nA_per)}"); k(f"s_add_u32 s{sB}, s{sB}, s{t1}")
def lane_tr_parts(k, lane, r, c2, gn, h, tmp):
    k(f"v_bfe_u32 v{r}, v{lane}, 2, 2")
    k(f"v_and_b32 v{c2}, 1, v{lane}"); k(f"v_lshlrev_b32 v{c2}, 1, v{c2}")
    k(f"v_bfe_u32 v{tmp}, v{lane}, 1, 1"); k(f"v_or_b32 v{c2}, v{c2}, v{tmp}")
    k(f"v_bfe_u32 v{gn}, v{lane}, 4, 1")
    k(f"v_lshrrev_b32 v{h}, 5, v{lane}")

QS = CS * LOG2E
def gen_prep():
    NG_, NP_ = 192, 256
    k = Kernel("prep_kernel", NG_ + NP_, 256, 1024, vgpr=128, agpr=16, sgpr=64)
    k(f"s_cmp_ge_u32 s2, {NG_+NP_}"); k("s_cbranch_scc1 END_prep")
    stamp_begin(k)
    k(f"s_cmp_ge_u32 s2, {NG_}"); k("s_cbranch_scc1 ST_prep")
    k(f"s_load_dwordx4 s[4:7], s[0:1], {A_C}")
    k(f"s_load_dwordx2 s[28:29], s[0:1], {A_WS}")
    k("v_and_b32 v1, 1, v0"); k("v_lshrrev_b32 v2, 1, v0")
    k("v_mul_u32_u24 v3, 6144, v2"); k("v_lshl_add_u32 v3, v1, 4, v3")
    k("v_lshlrev_b32 v4, 1, v2")
    wave_id(k, 30, 5)
    k("s_and_b32 s31, s2, 7"); k("s_mul_i32 s31, s31, 24"); k("s_lshr_b32 s20, s2, 3"); k("s_add_u32 s31, s31, s20")
    k("s_lshl_b32 s20, s31, 5")
    k.srd(12, 6, 512 * 6144); k.srd(8, 4, 1024)
    for i in range(4):
        k(f"buffer_load_dwordx4 {v(32+4*i,4)}, v3, s[12:15], s20 offen")
        if i < 3: k(f"s_add_u32 s20, s20, {128*6144}")
    for i in range(4):
        k(f"buffer_load_ushort v{8+i}, v4, s[8:11], 0 offen offset:{256*i}")
    k.srd(16, 28, 12288, WS_MOD)
    k(f"s_mov_b32 s21, {f32(-LOG2E)}"); k("s_mov_b32 s23, 0xffff0000")
    for i in range(4):
        x = 8 + i
        k(f"v_lshlrev_b32 v{x}, 16, v{x}")
        k(f"v_mul_f32 v5, s21, v{x}"); k("v_exp_f32 v5, v5"); k("v_add_f32 v5, 1.0, v5"); k("v_rcp_f32 v6, v5")
        k(f"v_mul_f32 v7, v{x}, v6")
        rnd(k, x, 7)
    stamp(k, "x1")
    for i in range(4):
        for q in range(4):
            r = 32 + 4 * i + q
            k(f"v_lshlrev_b32 v5, 16, v{r}"); k(f"v_and_b32 v6, s23, v{r}")
            op = "v_mul_f32" if i == 0 else "v_fmac_f32"
            k(f"{op} v{16+2*q}, v5, v{8+i}"); k(f"{op} v{17+2*q}, v6, v{8+i}")
    for md in ("quad_perm:[2,3,0,1]", "row_ror:4", "row_ror:8"):
        for j in range(8):
            k(f"v_add_f32_dpp v{16+j}, v{16+j}, v{16+j} {md} row_mask:0xf bank_mask:0xf")
    stamp(k, "stats")
    k("v_lshrrev_b32 v5, 4, v0"); k("v_lshlrev_b32 v5, 6, v5"); k("v_lshl_add_u32 v5, v1, 5, v5")
    k(f"ds_write_b128 v5, {v(16,4)}", token="w"); k(f"ds_write_b128 v5, {v(20,4)} offset:16", token="w")
    k.wait("w"); k("s_barrier")
    k("s_cmp_lg_u32 s30, 0"); k("s_cbranch_scc1 END_prep")
    k("v_lshlrev_b32 v5, 2, v0")
    for i in range(4): k(f"ds_read_b32 v{32+i}, v5 offset:{256*i}")
    k("v_add_f32 v32, v32, v33"); k("v_add_f32 v34, v34, v35"); k("v_add_f32 v32, v32, v34")
    k("v_mov_b32 v33, v32"); k("v_permlane16_swap_b32 v32, v33"); k("v_add_f32 v32, v32, v33")
    k("v_mov_b32 v33, v32"); k("v_permlane32_swap_b32 v32, v33"); k("v_add_f32 v32, v32, v33")
    rnd(k, 32, 32)
    k("s_lshr_b32 s20, s31, 5"); k("s_cmp_eq_u32 s20, 1"); k("s_cselect_b32 s21, 1.0, 0")
    k("s_cmp_eq_u32 s20, 4"); k("s_cselect_b32 s21, 1.0, s21")
    k("s_cmp_lt_u32 s20, 2"); k(f"s_cselect_b32 s22, {f32(QS)}, 1.0")
    k("v_add_f32 v32, s21, v32"); k("v_mul_f32 v32, s22, v32")
    k("s_lshl_b32 s20, s31, 6")
    k("v_cmp_gt_u32 vcc, 16, v0")
    k("s_and_saveexec_b64 s[24:25], vcc")
    k("buffer_store_dword v32, v5, s[16:19], s20 offen sc1")
    stamp_flush(k, 0)
    k("s_endpgm")
    k.label("ST_prep")
    k.vm, k.lg = {}, {}
    if P["STAMPS"]: k.stamps = ["start"]
    k(f"s_load_dwordx2 s[4:5], s[0:1], {A_X}")
    k(f"s_load_dwordx2 s[6:7], s[0:1], {A_WS}")
    k(f"s_load_dwordx2 s[34:35], s[0:1], {A_WQ}")
    k(f"s_load_dwordx4 s[36:39], s[0:1], {A_K}")
    k("s_getpc_b64 s[32:33]")
    k.label("PCREF_prep")
    k(f"s_sub_u32 s31, s2, {NG_}")
    G = P["G"]
    split2(k, 31, 26, 25, G, 32, 20, 21)
    k("v_and_b32 v1, 7, v0"); k("v_lshrrev_b32 v2, 3, v0"); k("v_lshrrev_b32 v6, 6, v0")
    k("v_and_b32 v7, 7, v2"); k("v_lshl_add_u32 v7, v6, 4, v7")
    k("v_lshlrev_b32 v4, 10, v1"); k("v_lshl_add_u32 v4, v7, 4, v4")
    k("v_lshlrev_b32 v8, 4, v1"); k("v_lshl_add_u32 v9, v6, 2, v8")
    k("v_lshlrev_b32 v3, 4, v0")
    k.srd(8, 4, 2048 * 1024); k.srd(12, 6, WS_BYTES)
    k("s_lshl_b32 s20, s25, 16"); k("s_lshl_b32 s21, s26, 13"); k("s_add_u32 s21, s21, s20")
    X = 16; XF = 24
    for i in range(2): k(f"buffer_load_dwordx4 {v(X+4*i,4)}, v4, s[8:11], s21 offen offset:{128*i}")
    if P["PREF0"]:
        k(f"s_and_b32 s22, s26, {G-1}"); k(f"s_mul_i32 s22, s22, {65536//G}"); k("s_add_u32 s22, s22, s20")
        for i in range(16 // G):
            k(f"buffer_load_dwordx4 {v(64+4*i,4)}, v3, s[8:11], s22 offen")
            k("s_add_u32 s22, s22, 4096")
    if P["PREFQ"]:
        k.srd(40, 34, 512 * 8192)
        k("v_lshlrev_b32 v11, 13, v6"); k("v_and_b32 v12, 63, v0"); k("v_lshl_add_u32 v11, v12, 4, v11")
        k(f"s_lshr_b32 s22, s31, {3+lg2(G)}"); k(f"s_lshl_b32 s22, s22, {17+lg2(G)}"); k("s_lshl_b32 s23, s26, 10"); k("s_add_u32 s22, s22, s23")
        for i in range(4 * G):
            k(f"buffer_load_dwordx4 {v(40+4*(i%4),4) if i < 4 else v(128-4*(i-3),4)}, v11, s[40:43], s22 offen")
            k(f"s_add_u32 s22, s22, {4*8192}")
    if P["PREFK"]:
        k.srd(44, 36, 8 * 2048 * 256); k.srd(48, 38, 8 * 2048 * 256)
        k(f"s_lshr_b32 s22, s31, {3+lg2(G)}"); k(f"s_lshl_b32 s22, s22, {12+lg2(G)}"); k("s_lshl_b32 s23, s26, 19"); k("s_add_u32 s22, s22, s23"); k(f"s_add_u32 s22, s22, {1536*256}")
        for i in range(G):
            k(f"buffer_load_dwordx4 {a(8*i,4)}, v3, s[44:47], s22 offen")
            k(f"buffer_load_dwordx4 {a(8*i+4,4)}, v3, s[48:51], s22 offen")
            k("s_add_u32 s22, s22, 4096")
    if P["PREFC"]:
        k("s_lshr_b32 s22, s31, 3"); k("s_lshl_b32 s22, s22, 12")
        k("s_cmp_ge_u32 s22, CODE_END-attn_kernel-4095"); k("s_cbranch_scc1 NOPC_prep")
        k("s_add_u32 s22, s22, attn_kernel-PCREF_prep")
        k("s_add_u32 s32, s32, s22"); k("s_addc_u32 s33, s33, 0")
        k("global_load_dwordx4 v[60:63], v3, s[32:33]")
        k.label("NOPC_prep")
        k.vm = {kk: max(0, p - 1) for kk, p in k.vm.items()}
    k("s_mov_b32 s24, 0xffff0000")
    for q in range(8):
        k(f"v_lshlrev_b32 v{XF+2*q}, 16, v{X+q}"); k(f"v_and_b32 v{XF+2*q+1}, s24, v{X+q}")
    stamp(k, "x1")
    ln_stats(k, XF)
    stamp(k, "stats")
    k("v_mul_f32 v10, v58, v56"); k("v_mov_b32 v11, v56")
    k("v_lshlrev_b32 v5, 6, v1")
    k("s_lshl_b32 s20, s25, 9"); k("s_lshl_b32 s21, s26, 3"); k("s_add_u32 s20, s20, s21"); k(f"s_add_u32 s20, s20, {WS_ST:#x}")
    k("v_cmp_gt_u32 vcc, 8, v0")
    k("s_and_saveexec_b64 s[28:29], vcc")
    k("s_cbranch_execz SKIPST_prep")
    k("buffer_store_dwordx2 v[10:11], v5, s[12:15], s20 offen sc1")
    k.label("SKIPST_prep")
    stamp_flush(k, 0)
    k.label("END_prep"); k("s_endpgm")
    return k

def ln_stats(k, XF):
    k(f"v_pk_add_f32 v[10:11], {v(XF,2)}, {v(XF+2,2)}")
    for e in range(4, 16, 2): k(f"v_pk_add_f32 v[10:11], v[10:11], {v(XF+e,2)}")
    k("v_add_f32 v10, v10, v11")
    def allreduce(off):
        rowsum_8(k, 10, 11)
        k(f"ds_write_b32 v9, v10 offset:{off}", token="w"); k.wait("w"); k("s_barrier")
        k(f"ds_read_b128 {v(12,4)}, v8 offset:{off}")
        k("v_add_f32 v12, v12, v13"); k("v_add_f32 v14, v14, v15"); k("v_add_f32 v10, v12, v14")
    allreduce(0)
    k(f"v_mul_f32 v58, {f32(-1/512)}, v10"); k("v_mov_b32 v59, v58")
    for e in range(0, 16, 2): k(f"v_pk_add_f32 {v(XF+e,2)}, {v(XF+e,2)}, v[58:59]")
    k(f"v_pk_mul_f32 v[10:11], {v(XF,2)}, {v(XF,2)}")
    for e in range(2, 16, 2): k(f"v_pk_fma_f32 v[10:11], {v(XF+e,2)}, {v(XF+e,2)}, v[10:11]")
    k("v_add_f32 v10, v10, v11")
    allreduce(128)
    k(f"v_mov_b32 v11, {f32(1e-5)}"); k(f"v_fmac_f32 v11, {f32(1/512)}, v10")
    k("v_rsq_f32 v56, v11"); k("v_mov_b32 v57, v56")

def gen_ln2():
    k = Kernel("ln2_kernel", 256, 256, 256, vgpr=160, sgpr=64)
    k("s_cmp_ge_u32 s2, 256"); k("s_cbranch_scc1 END_ln2")
    stamp_begin(k)
    k(f"s_load_dwordx2 s[4:5], s[0:1], {A_X}")
    k(f"s_load_dwordx2 s[6:7], s[0:1], {A_WS}")
    k("v_and_b32 v1, 7, v0"); k("v_lshrrev_b32 v2, 3, v0"); k("v_lshrrev_b32 v6, 6, v0")
    k("v_and_b32 v7, 7, v2"); k("v_lshl_add_u32 v7, v6, 4, v7")
    k("v_lshlrev_b32 v3, 9, v7"); k("v_lshl_add_u32 v3, v1, 4, v3")
    k("v_add_u32 v2, 4096, v3")
    k("v_lshlrev_b32 v4, 10, v1"); k("v_lshl_add_u32 v4, v7, 4, v4")
    k("v_lshlrev_b32 v5, 5, v7")
    k("v_lshlrev_b32 v8, 4, v1"); k("v_lshl_add_u32 v9, v6, 2, v8")
    k("s_and_b32 s25, s2, 7"); k("s_lshl_b32 s25, s25, 5"); k("s_lshr_b32 s26, s2, 3"); k("s_add_u32 s25, s25, s26")
    k("s_lshl_b32 s20, s25, 13")
    k("s_lshr_b32 s21, s25, 2"); k("s_lshl_b32 s21, s21, 15"); k("s_and_b32 s22, s25, 3"); k("s_lshl_b32 s22, s22, 7")
    k("s_add_u32 s21, s21, s22")
    k(f"s_add_u32 s23, s21, {WS_P:#x}")
    k.srd(12, 6, WS_BYTES)
    X = 16; XF = 24; MV = 40; PB = 64
    for g in range(8):
        for i in range(2):
            k(f"buffer_load_dwordx4 {v(PB+8*g+4*i,4)}, v{3-i}, s[12:15], s23 offen" + (" nt" if P["PNT"] else ""))
        if g < 7: k("s_add_u32 s23, s23, 0x200000")
    k.srd(8, 4, 2048 * 1024)
    for i in range(2): k(f"buffer_load_dwordx4 {v(X+4*i,4)}, v4, s[8:11], s20 offen offset:{128*i}")
    k("s_mov_b32 s24, 0xffff0000")
    def load_mod(base, m):
        k(f"s_mov_b32 s23, {WS_MOD + m*2048}")
        for i in range(2):
            for hh in range(2):
                k(f"buffer_load_dwordx4 {v(base+8*i+4*hh,4)}, v5, s[12:15], s23 offen offset:{256*i+16*hh}")
    def unpack(dst, src):
        k(f"v_lshlrev_b32 v{dst}, 16, v{src}"); k(f"v_and_b32 v{dst+1}, s24, v{src}")
    load_mod(MV, 2); load_mod(128, 4); load_mod(144, 3)
    for q in range(8): unpack(XF + 2 * q, PB + q)
    for g in range(1, 8):
        for q in range(8):
            unpack(10 + 2 * (q & 1), PB + 8 * g + q)
            k(f"v_pk_add_f32 {v(XF+2*q,2)}, {v(XF+2*q,2)}, {v(10+2*(q&1),2)}")
    for q in range(8):
        unpack(10, X + q)
        k(f"v_pk_fma_f32 v[10:11], {v(XF+2*q,2)}, {v(MV+2*q,2)}, v[10:11]")
        k(f"v_cvt_pk_bf16_f32 v{X+q}, v10, v11")
        unpack(XF + 2 * q, X + q)
    k(f"s_add_u32 s23, s21, {WS_X1:#x}")
    for i in range(2): k(f"buffer_store_dwordx4 {v(X+4*i,4)}, v{3-i}, s[12:15], s23 offen sc1")
    stamp(k, "x1")
    ln_stats(k, XF)
    stamp(k, "stats")
    for e in range(0, 16, 2):
        k(f"v_pk_mul_f32 {v(XF+e,2)}, {v(XF+e,2)}, v[56:57]")
        k(f"v_pk_fma_f32 {v(XF+e,2)}, {v(XF+e,2)}, {v(128+e,2)}, {v(144+e,2)}")
        k(f"v_cvt_pk_bf16_f32 v{MV+e//2}, v{XF+e}, v{XF+e+1}")
    k(f"s_add_u32 s23, s21, {WS_H2:#x}")
    for i in range(2): k(f"buffer_store_dwordx4 {v(MV+4*i,4)}, v{3-i}, s[12:15], s23 offen sc1")
    stamp_flush(k, 2)
    k.label("END_ln2"); k("s_endpgm")
    return k

def put(k, seq):
    for x in seq:
        if isinstance(x, list): put(k, x)
        elif callable(x): x()
        else: k(x)

def gen_attn():
    k = Kernel("attn_kernel", 256, 256, 163840, vgpr=256, agpr=256, sgpr=72)
    L_K, L_H, L_V, L_W, L_M = 0, 32768, 32768, 98304, 16384
    ACC = 0; S = 0; CI = 64; Q = 128
    VK = 192; VV = 200; VW = 204; VDW = 208; VDK = 212; VDV = 214; VLIN = 215; VL16 = 216
    LS = 217
    T = 220
    LN_, ROWL, GR16 = T, T + 1, T + 2
    r_, c2, gn, h_, tm = T + 3, T + 4, T + 5, T + 6, T + 7
    CH8 = T + 10; HW = T + 11
    VX = T + 13; VM = T + 15
    MX = T + 16
    STT = T + 24
    RL = T + 28; UT = T + 28
    O = 0; FR = 128; AF = 128; BF = 160
    sW, sG, sRB, sT0, sT1, sRING, sST, sFB, sROT, sT2 = 28, 29, 30, 32, 33, 34, 35, 39, 50, 51
    sO0, sO1, sO2, sW2K, sW256, sKhi, sMASK, sCC, sR8 = 36, 37, 38, 52, 54, 55, 58, 59, 6
    TAB = 60
    def L(f, cost=4, mem=False):
        f.cost = cost; f.mem = mem; return f
    k("s_cmp_ge_u32 s2, 256"); k("s_cbranch_scc1 END_attn")
    stamp_begin(k)
    wave_id(k, sW, T)
    k(f"v_and_b32 v{LN_}, 63, v0")
    k(f"s_mov_b32 s{sFB}, 0")
    k.label("RESTART")
    k(f"s_load_dwordx2 s[4:5], s[0:1], {A_X}")
    k(f"s_load_dwordx2 s[48:49], s[0:1], {A_WS}")
    k(f"s_load_dwordx8 s[40:47], s[0:1], {A_K}")
    k(f"s_load_dwordx4 s[68:71], s[0:1], {A_WG}")
    k(f"v_lshlrev_b32 v{VL16}, 4, v{LN_}")
    G = P["G"]
    split2(k, 2, sG, sRB, G, 32, sT0, sROT)
    k(f"s_lshl_b32 s{sROT}, s{sROT}, {lg2(G)}")
    k(f"s_and_b32 s{sR8}, s{sROT}, 7"); k(f"s_lshr_b32 s{sCC}, s{sROT}, 3")
    RR, CGL = tm, tm + 1
    k(f"v_and_b32 v{RR}, 7, v{LN_}"); k(f"v_lshrrev_b32 v{CGL}, 3, v{LN_}")
    k(f"v_lshlrev_b32 v{VX}, 10, v{RR}"); k(f"v_lshl_add_u32 v{VX}, v{CGL}, 4, v{VX}"); k(f"v_add_u32 v{VX+1}, 8192, v{VX}")
    k(f"v_lshlrev_b32 v{tm+2}, 6, v{RR}")
    k(f"s_lshl_b32 s{sT1}, s{sRB}, 9"); k(f"s_lshl_b32 s{sT2}, s{sW}, 4"); k(f"s_add_u32 s{sT1}, s{sT1}, s{sT2}"); k(f"s_add_u32 s{sT1}, s{sT1}, {WS_ST:#x}")
    k(f"s_lshl_b32 s3, s{sRB}, 16"); k(f"s_lshl_b32 s{sT2}, s{sW}, 14"); k(f"s_add_u32 s3, s3, s{sT2}")
    k(f"s_lshl_b32 s{sW256}, s{sW}, 8"); k(f"s_lshl_b32 s{sW2K}, s{sW}, 11")
    k(f"v_lshrrev_b32 v{ROWL}, 4, v{LN_}")
    k(f"v_and_b32 v{r_}, 15, v{LN_}"); k(f"v_lshlrev_b32 v{GR16}, 2, v{ROWL}"); k(f"v_xor_b32 v{GR16}, v{GR16}, v{r_}")
    k(f"v_lshlrev_b32 v{GR16}, 4, v{GR16}")
    def w_voffs(psh, scol):
        return [f"v_lshl_add_u32 v{VDW}, v{ROWL}, {psh}, v{GR16}", f"v_add_u32 v{VDW}, s{scol}, v{VDW}"] + \
               [f"v_add_u32 v{VDW+n}, {n*((4<<psh)-1024)}, v{VDW}" for n in range(1, 4)]
    k(f"s_lshl_b32 s{sT0}, s{sG}, 10"); k(f"s_add_u32 s{sT0}, s{sT0}, s{sW256}")
    put(k, w_voffs(13, sT0))
    k(f"s_lshl_b32 s{sRING}, s{sW}, 14"); k(f"s_add_u32 s{sRING}, s{sRING}, {L_W}")
    for p in range(8):
        k(f"s_add_u32 s{TAB+p}, s{sR8}, {p}"); k(f"s_and_b32 s{TAB+p}, s{TAB+p}, 7"); k(f"s_lshl_b32 s{TAB+p}, s{TAB+p}, 17")
    k(f"s_lshl_b32 s{sKhi}, s{sCC}, 20")
    k.srd(24, 48, WS_BYTES); k.srd(16, 4, 2048 * 1024); k.srd(8, 44, 512 * 8192)
    XR = [0, 128, 144, 160]; CN = 176
    def xloads(c):
        o = [f"s_add_u32 s57, s{sCC}, {c}", "s_and_b32 s57, s57, 3", "s_lshl_b32 s57, s57, 8", "s_add_u32 s57, s57, s3"]
        for cb in range(2):
            for oo in range(2):
                o.append(f"buffer_load_dwordx4 {v(XR[c]+8*cb+4*oo,4)}, v{VX+oo}, s[16:19], s57 offen offset:{128*cb}")
        return o
    def w_dma(step, which):
        slot = step % 4
        if which == "Q":
            srd = 8
            pre = [f"s_add_u32 s{sT0}, s{sKhi}, s{TAB+step%8}"]
            adv = [[f"s_add_u32 s{sKhi}, s{sKhi}, 0x100000", f"s_and_b32 s{sKhi}, s{sKhi}, 0x3fffff"]] if step % 8 == 7 else []
        else:
            srd = 20
            pre = [f"s_add_u32 s{sT0}, s{TAB+step%8}, {(2*(step//8))<<14}"]
            adv = []
        o = [pre + [f"s_add_u32 m0, s{sRING}, {4096*slot}"]] + adv + [f"buffer_load_dwordx4 v{VDW}, s[{srd}:{srd+3}], s{sT0} offen lds"]
        for n in range(1, 4):
            o.append(L(lambda n=n: k(f"buffer_load_dwordx4 v{VDW+n}, s[{srd}:{srd+3}], s{sT0} offen offset:{1024*n} lds", token=f"W{slot}"), 10, "v"))
        return o
    slow = [f"buffer_load_dwordx4 {v(STT,4)}, v{tm+2}, s[24:27], s{sT1} offen",
            f"s_lshl_b32 s{sT2}, s{sW}, 10", f"s_add_u32 m0, s{sT2}, {L_M}",
            lambda: k(f"buffer_load_dwordx4 v{VL16}, s[24:27], s{sT2} offen lds", token="M")]
    seq = {0: [slow, xloads(0), w_dma(0, "Q"), xloads(1), w_dma(1, "Q")],
           1: [xloads(0), w_dma(0, "Q"), slow, xloads(1), w_dma(1, "Q")],
           2: [xloads(0), w_dma(0, "Q"), xloads(1), w_dma(1, "Q"), slow]}[P["PORD"]]
    put(k, seq)
    k(f"v_lshrrev_b32 v{r_}, 1, v{CGL}"); k(f"v_subrev_u32 v{r_}, s{sR8}, v{r_}")
    k(f"v_and_b32 v{c2}, 1, v{CGL}"); k(f"v_lshlrev_b32 v{c2}, 9, v{c2}"); k(f"v_lshl_add_u32 v{c2}, v{RR}, 4, v{c2}")
    k(f"s_lshr_b32 s{sT1}, s{sW}, 1"); k(f"s_lshl_b32 s{sT1}, s{sT1}, 15"); k(f"s_and_b32 s{sT2}, s{sW}, 1"); k(f"s_lshl_b32 s{sT2}, s{sT2}, 8")
    k(f"s_add_u32 s{sT1}, s{sT1}, s{sT2}"); k(f"s_add_u32 s{sT1}, s{sT1}, {L_H}"); k(f"v_add_u32 v{c2}, s{sT1}, v{c2}")
    for cb in range(2):
        k(f"v_add_u32 v{gn}, {4*cb}, v{r_}"); k(f"v_and_b32 v{gn}, 7, v{gn}"); k(f"v_lshl_add_u32 v{HW+cb}, v{gn}, 10, v{c2}")
    k(f"s_lshl_b32 s{sT2}, s{sCC}, 9"); k(f"v_lshlrev_b32 v{VM}, 5, v{CGL}"); k(f"v_add_u32 v{VM}, s{sT2}, v{VM}")
    lane_tr_parts(k, LN_, r_, c2, gn, h_, tm)
    k(f"v_lshl_add_u32 v{CH8}, v{gn}, 2, v{c2}"); k(f"v_lshlrev_b32 v{CH8}, 3, v{CH8}")
    k(f"v_lshl_add_u32 v{tm}, v{h_}, 3, v{r_}"); k(f"v_lshl_add_u32 v{tm}, v{tm}, 8, v{CH8}"); k(f"v_add_u32 v{tm}, s{sRING}, v{tm}")
    for a_ in range(4):
        k(f"v_xor_b32 v{tm+1}, {a_}, v{r_}"); k(f"v_lshl_add_u32 v{VW+a_}, v{tm+1}, 6, v{tm}")
    put(k, [f"v_lshl_add_u32 v{tm}, v{h_}, 2, v{r_}", f"v_lshl_add_u32 v{tm}, v{tm}, 8, v{CH8}", f"v_add_u32 v{tm}, {L_V}, v{tm}"])
    for dt in range(4): put(k, [f"v_xor_b32 v{tm+1}, {dt}, v{r_}", f"v_lshl_add_u32 v{VV+dt}, v{tm+1}, 6, v{tm}"])
    put(k, [f"v_and_b32 v{tm}, 31, v{LN_}", f"v_and_b32 v{tm+1}, 15, v{LN_}", f"v_xor_b32 v{tm+1}, v{tm+1}, v{h_}",
            f"v_lshlrev_b32 v{tm}, 8, v{tm}", f"v_lshl_add_u32 v{VK}, v{tm+1}, 4, v{tm}"])
    put(k, [f"v_xor_b32 v{VK+s_}, {s_*32}, v{VK}" for s_ in range(1, 8)])
    put(k, [f"v_mov_b32 v{LS}, 0", f"v_mov_b32 v{LS+1}, 0",
        f"v_lshl_add_u32 v{VDV}, v{ROWL}, 8, v{GR16}", f"s_and_b32 s{sT1}, s{sW}, 1", f"s_lshl_b32 s{sT1}, s{sT1}, 3",
        f"v_or_b32 v{tm}, s{sT1}, v{ROWL}", f"v_and_b32 v{tm+1}, 15, v{LN_}", f"v_xor_b32 v{tm}, v{tm}, v{tm+1}",
        f"v_lshlrev_b32 v{VDK}, 8, v{ROWL}", f"v_lshl_add_u32 v{VDK}, v{tm}, 4, v{VDK}", f"v_xor_b32 v{VDK+1}, 64, v{VDK}",
        f"s_lshl_b32 s{sT1}, s{sG}, 19", f"s_add_u32 s{sT1}, s{sT1}, s{sW2K}", f"s_add_u32 s{sT1}, s{sT1}, {1536*256}",
        f"v_add_u32 v{VDK}, s{sT1}, v{VDK}", f"v_add_u32 v{VDK+1}, s{sT1}, v{VDK+1}", f"v_add_u32 v{VDV}, s{sT1}, v{VDV}",
        f"v_add_u32 v{VLIN}, {L_H}, v{VL16}", f"s_mov_b32 s{sMASK}, 0xffff0000"])
    k.srd(12, 40, 8 * 2048 * 256); k.srd(20, 46, 4096 * 1024)
    def nxt(d, s_): return [f"s_add_u32 s{d}, s{s_}, 8192", f"s_and_b32 s{d}, s{d}, 0x1ffff"]
    def kv_dma(which, lds_off, so):
        srd = 12 if which == "K" else 16
        return [f"s_add_u32 m0, s{sW2K}, {lds_off}", f"buffer_load_dwordx4 v{VDK if which=='K' else VDV}, s[{srd}:{srd+3}], s{so} offen lds",
                L(lambda: k(f"buffer_load_dwordx4 v{VDK+1 if which=='K' else VDV}, s[{srd}:{srd+3}], s{so} offen offset:1024 lds", token=which), 10, "v")]
    kinit = [[f"s_lshr_b32 s{sO0}, s{sROT}, 1", f"s_lshl_b32 s{sO0}, s{sO0}, 13"] + nxt(sO1, sO0) + nxt(sO2, sO1)]
    kfirst = [kv_dma("K", L_K + 16384 + 8192, sO0), kv_dma("K", L_K, sO1), kv_dma("K", L_K + 8192, sO2)]
    put(k, [w_dma(2, "Q"), xloads(2), w_dma(3, "Q"), xloads(3), kinit])
    if P["KEARLY"]: put(k, kfirst)
    stamp(k, "setup")
    def cread(cb, dst):
        return [f"ds_read_b128 {v(dst+8*m_+4*q,4)}, v{VM} offset:{L_M+2048*(1-m_)+256*cb+16*q}" for m_ in range(2) for q in range(2)]
    vmadv = [[f"v_add_u32 v{VM}, 0x200, v{VM}", f"v_and_b32 v{VM}, 0x7ff, v{VM}"]]
    def modulate(c, cb, cn, U_, pk):
        o = []
        for oo in range(2):
            x = XR[c] + 8 * cb + 4 * oo; u = U_ + (8 * oo if pk else 0)
            for q in range(4): o += [f"v_lshlrev_b32 v{u+2*q}, 16, v{x+q}", f"v_and_b32 v{u+2*q+1}, s{sMASK}, v{x+q}"]
            if pk:
                st = v(STT + 2 * oo, 2)
                o += [f"v_pk_fma_f32 {v(u+2*q,2)}, {v(u+2*q,2)}, {st}, {st} op_sel:[0,1,0] op_sel_hi:[1,1,0]" for q in range(4)]
                o += [f"v_pk_fma_f32 {v(u+2*q,2)}, {v(u+2*q,2)}, {v(cn+2*q,2)}, {v(cn+8+2*q,2)}" for q in range(4)]
            else:
                o += [f"v_fma_f32 v{u+e}, v{u+e}, v{STT+2*oo+1}, v{STT+2*oo}" for e in range(8)]
                o += [f"v_fma_f32 v{u+e}, v{u+e}, v{cn+e}, v{cn+8+e}" for e in range(8)]
            o += [f"v_cvt_pk_bf16_f32 v{x+q}, v{u+2*q}, v{u+2*q+1}" for q in range(4)]
            o.append(L(lambda x=x, cb=cb, oo=oo: k(f"ds_write_b128 v{HW+cb}, {v(x,4)} offset:{8192*c+128*oo}", token="hw"), 22, "d"))
        return o
    k.wait("M"); k("s_barrier")
    put(k, cread(0, 16) + cread(1, 32) + vmadv)
    put(k, modulate(0, 0, 16, 48, True) + modulate(0, 1, 32, 64, True))
    fr = lambda f: FR + 4 * (f % 8)
    def rdK(f, s_, off): return [f"ds_read_b128 {a(fr(f),4)}, v{VK+s_} offset:{off}"]
    def rdV(f, i, off): return [f"ds_read_b64_tr_b16 {a(fr(f)+2*u,2)}, v{VV+i%4} offset:{off+4096*(i//4)+2048*u}" for u in range(2)]
    def a_reads(step):
        slot = step % 4; buf = step % 2
        rd = [f"ds_read_b64_tr_b16 {a(AF+16*buf+4*a_+2*u,2)}, v{VW+a_} offset:{4096*slot+1024*u}" for a_ in range(4) for u in range(2)]
        return [[L(lambda: k.wait(f"W{slot}")), rd[0]]] + rd[1:]
    def b_reads(step):
        return [f"ds_read_b128 {a(BF+8*(step%2)+4*rt,4)}, v{VLIN} offset:{1024*step+32768*rt}" for rt in range(2)]
    put(k, a_reads(0))
    k.wait("hw"); k("s_barrier")
    stamp(k, "mod")
    put(k, b_reads(0))
    def g_mfma(buf, first=False):
        return [f"v_mfma_f32_32x32x16_bf16 {v(ACC+32*a_+16*rt,16)}, {a(AF+16*buf+4*a_,4)}, {a(BF+8*buf+4*rt,4)}, {'0' if first else v(ACC+32*a_+16*rt,16)}"
                for a_ in range(4) for rt in range(2)]
    def gbody(which, c, extra):
        sc = Sched(64)
        mf = []
        if c < 3: sc.pin(57, L(lambda: (k.wait("hw"), k("s_barrier")), 8))
        for i in range(8):
            st = 8 * c + i
            if st + 1 < 32:
                sc.add(a_reads(st + 1), 8 * i, 8 * i + 5, prio=1)
                sc.add(b_reads(st + 1), 8 * i + (1 if i == 7 else 0), 8 * i + 4, prio=1)
                sc.pin(8 * i + 7, L(lambda st=st: k.wait_regs(a(AF + 16 * ((st + 1) % 2), 16), a(BF + 8 * ((st + 1) % 2), 8))), end=True)
            if st + 4 < 32: sc.add(w_dma(st + 4, which), 8 * i, 8 * i + 8)
            mf += g_mfma(i % 2, st == 0)
        extra(sc)
        for m, f_ in zip(mf, sc.run()): k(m); put(k, f_)
    def qepi(a_):
        return [f"v_cvt_pk_bf16_f32 v{Q+16*a_+8*(j//4)+4*rt+j%4}, v{ACC+32*a_+16*rt+2*j}, v{ACC+32*a_+16*rt+2*j+1}" for rt in range(2) for j in range(8)]
    def qx(c):
        def f(sc):
            if c < 3:
                m0_ = modulate(c + 1, 0, CN, UT, False); m1_ = modulate(c + 1, 1, CN, UT, False)
                if P["BURST"]:
                    wr = [x for x in m0_ + m1_ if callable(x)]
                    m0_ = [x for x in m0_ if not callable(x)]; m1_ = [x for x in m1_ if not callable(x)]
                    sc.add(cread(0, CN) + m0_[:-4] + cread(1, CN) + m0_[-4:] + m1_ + vmadv, 0, P["BURST"])
                    sc.pin(P["BURST"], wr)
                else:
                    sc.add(cread(0, CN) + m0_[:-5] + cread(1, CN) + m0_[-5:] + m1_ + vmadv, 0, 55)
            else:
                sc.pin(0, L(lambda: k.srd(16, 42, 8 * 2048 * 256), 16))
                if not P["KEARLY"]: sc.add([x for d in kfirst for x in d], 32, 44)
                tab = []
                for p in range(8):
                    tab.append([f"s_add_u32 s{sT1}, s{sR8}, {p}", f"s_and_b32 s{sT1}, s{sT1}, 7", f"s_lshr_b32 s{sT2}, s{sT1}, 1", f"s_mul_i32 s{sT2}, s{sT2}, 6"])
                    tab.append([f"s_add_u32 s{sT1}, s{sT1}, s{sT2}", f"s_lshl_b32 s{TAB+p}, s{sT1}, 14"])
                sc.add(tab + [[f"s_lshl_b32 s{sT0}, s{sG}, 19", f"s_add_u32 s{sT0}, s{sT0}, s{sW256}"]] + w_voffs(10, sT0), 33, 56)
                sc.pin(56, L(lambda: (k.wait_all(), k("s_barrier")), 8))
                sc.add([rdK(f, f, L_K + 16384 + 8192) for f in range(4)], 56, 60, prio=1)
                sc.add(kv_dma("V", L_V, sO0) + kv_dma("V", L_V + 8192, sO1), 57, 62)
                sc.add(qepi(0), 61, 64)
        return f
    for c in range(4): gbody("Q", c, qx(c))
    stamp(k, "qgemm")
    def qk(f, s_, qt, buf, zero):
        d = v(S + 32 * buf + 16 * qt, 16)
        c = d if s_ else ("0" if zero else v(CI + 16 * qt, 16))
        return f"v_mfma_f32_32x32x16_bf16 {d}, {a(fr(f),4)}, {v(Q+8*s_+4*qt,4)}, {c}"
    def pv(f, i, qt, buf, zero=False):
        d = a(O + 32 * (i % 4) + 16 * qt, 16)
        return f"v_mfma_f32_32x32x16_bf16 {d}, {a(fr(f),4)}, {v(S+32*buf+16*qt+8*(i//4),4)}, {'0' if zero else d}"
    def sreg(buf, e): return S + 32 * buf + 16 * ((e >> 3) & 1) + 8 * (e >> 4) + (e & 7)
    def sm(buf, e, addci=False):
        o = []
        if e < 32:
            if addci: o.append(f"v_add_f32 v{sreg(buf,e)}, v{sreg(buf,e)}, v{CI+16*((e>>3)&1)}")
            o.append(f"v_exp_f32 v{sreg(buf,e)}, v{sreg(buf,e)}")
        if e >= 1:
            p = e - 1
            o.append(f"v_add_f32 v{LS+((p>>3)&1)}, v{LS+((p>>3)&1)}, v{sreg(buf,p)}")
            if p & 1:
                o.append(f"v_cvt_pk_bf16_f32 v{sreg(buf,p&~7)+(p&7)//2}, v{sreg(buf,p-1)}, v{sreg(buf,p)}")
        return o
    def wgrp(j): return L(lambda: k.wait_regs(a(FR + 16 * (j % 2), 16)))
    def qk0(epi):
        wgrp(0)()
        for s_ in range(8):
            ep = qepi(s_ // 2 + 1)[8 * (s_ & 1):8 * (s_ & 1) + 8] if epi and s_ < 6 else []
            rd = [rdK(f + 4, f + 4, L_K + 16384 + 8192) if f < 4 else rdK(f + 4, f - 4, L_K) for f in ([2*s_, 2*s_+1] if s_ < 2 else [2*s_-4, 2*s_-3] if 4 <= s_ < 6 else [])]
            k(qk(s_, s_, 0, 0, True)); put(k, rd[:1]); put(k, ep[:4])
            k(qk(s_, s_, 1, 0, True)); put(k, rd[1:]); put(k, ep[4:])
            if s_ % 4 == 3: wgrp(s_ // 4 + 1)()
    qk0(True)
    k(f"s_cmp_lg_u32 s{sFB}, 0"); k("s_cbranch_scc1 FB_MAX")
    if not P.get("OST"): stamp(k, "qk0")
    k.label("IT0")
    def maxops(buf, dst):
        o = []
        for qt in range(2):
            b = S + 32 * buf + 16 * qt; t = dst + qt
            o.append(f"v_max3_f32 v{t}, v{b}, v{b+1}, v{b+2}")
            for i in range(3, 15, 2): o.append(f"v_max3_f32 v{t}, v{t}, v{b+i}, v{b+i+1}")
            o.append(f"v_max_f32 v{t}, v{t}, v{b+15}")
        return [x for pr in zip(o[:8], o[8:]) for x in pr]
    def xhalf_max(t, t2):
        return [f"v_mov_b32 v{t2}, v{t}", f"v_mov_b32 v{t2+1}, v{t+1}", f"v_permlane32_swap_b32 v{t}, v{t2}", f"v_permlane32_swap_b32 v{t+1}, v{t2+1}",
                f"v_max_f32 v{t}, v{t}, v{t2}", f"v_max_f32 v{t+1}, v{t+1}, v{t2+1}"]
    def flat(x): return [y for z in x for y in z]
    def iteration(par, first=False, last=False, extra=None):
        hb = 16384 * par; nb = 16384 * (1 - par)
        mf = []
        phs = [0, 1, 3] if last else [0, 1, 2, 3]
        n = 16 * len(phs)
        sc = Sched(n)
        frs = []
        for q_, ph in enumerate(phs):
            for g in range(16):
                f = 8 * q_ + g // 2; qt = g & 1; i = g // 2
                if ph == 0: mf.append(qk(f, i, qt, 1, first))
                elif ph == 1: mf.append(pv(f, i, qt, 0, first and i < 4))
                elif ph == 2: mf.append(qk(f, i, qt, 0, False))
                else: mf.append(pv(f, i, qt, 1))
            for i in range(8): frs.append((ph, i))
        ng = len(frs) // 4
        for j in range(1, ng):
            rd = []
            for f in range(4 * j, 4 * j + 4):
                ph, i = frs[f]
                rd += rdK(f, i, hb + 8192 * (ph // 2)) if ph % 2 == 0 else rdV(f, i, hb + 8192 * (ph // 2))
            g0 = 8 * (j - 1)
            if first and j == 2: sc.pin(g0 + 1, L(lambda: (k.wait("V"), k("s_barrier")), 8)); g0 += 1
            sc.add(rd, g0, 8 * (j - 1) + 6, prio=1)
            sc.pin(8 * j - 1, wgrp(j), end=True)
        dm = [nxt(sO1, sO2), kv_dma("V", L_V + nb, sO2), kv_dma("K", L_K + nb, sO1), kv_dma("V", L_V + nb + 8192, sO1), nxt(sO2, sO1), kv_dma("K", L_K + nb + 8192, sO2)]
        dm = [dm[0]] + dm[1] + dm[2] + dm[3] + [dm[4]] + dm[5]
        if first:
            sc.add(dm, 24, 44)
            mx = maxops(0, MX) + xhalf_max(MX, MX + 2)
            mx += [[f"s_cmp_lg_u32 s{sFB}, 0", "s_cselect_b64 vcc, -1, 0"]]
            mx += [f"v_sub_f32 v{CI+16*qt}, {f32(-float(P['BIAS']))}, v{MX+qt}" for qt in range(2)]
            mx += [f"v_cndmask_b32 v{CI+16*qt}, v{CI+16*qt}, v{MX+4+qt}, vcc" for qt in range(2)]
            sc.add(mx + flat(sm(0, e, True) for e in range(17)), 1, 16)
            sc.add(flat(sm(0, e, True) for e in range(17, 33)), 16, 23)
            sc.add([f"v_mov_b32 v{CI+16*qt+i}, v{CI+16*qt}" for qt in range(2) for i in range(1, 16)], 23, 31)
            sc.add(flat(sm(1, e, True) for e in range(33)), 23, 54)
            sc.add(flat(sm(0, e) for e in range(12)), 54, 64)
        else:
            for e in range(12, 33): sc.pin(e - 12, sm(0, e))
            if last:
                sc.add(flat(sm(1, e) for e in range(17)), 19, 31)
                sc.add(flat(sm(1, e) for e in range(17, 33)), 31, 39)
            else:
                sc.add(dm, 1, 40)
                for e in range(33): sc.pin(20 + e, sm(1, e))
                for e in range(12): sc.pin(52 + e, sm(0, e))
        if not last:
            sc.pin(56, L(lambda: (k.wait("K", "V"), k("s_barrier")), 8))
            sc.add([rdK(f, f, nb) for f in range(4)], 56, 61, prio=1)
            sc.pin(63, wgrp(0), end=True)
        if extra: extra(sc)
        for m, f_ in zip(mf, sc.run()): k(m); put(k, f_)
    def x_first(sc):
        pf = [[f"s_lshl_b32 s{sT1}, s{sROT}, 14", f"s_lshl_b32 s{sT2}, s{sG}, 19", f"s_add_u32 s{sT1}, s{sT1}, s{sT2}"], [f"s_lshl_b32 s{sT2}, s{sW}, {12+lg2(G)}", f"s_add_u32 s{sT1}, s{sT1}, s{sT2}"]]
        for n in range(4 * G):
            pf.append([f"buffer_load_dwordx4 {a(192+4*(n%16),4)}, v{VL16}, s[20:23], s{sT1} offen offset:{1024*(n%4)}"] + ([f"s_add_u32 s{sT1}, s{sT1}, 4096"] if n % 4 == 3 else []))
        sc.add(pf, 44, 56)
    iteration(0, first=True, extra=x_first)
    if not P.get("OST"): stamp(k, "it0")
    i0 = len(k.items)
    k.loop(sST, 3, lambda: (iteration(1), iteration(0)), align=3)
    X = P.get("DBGX", 0)
    if X:
        def keep(it):
            if it.kind in ("label", "raw"): return True
            if X & 1 and it.mn == "s_barrier": return False
            if X & 2 and it.mn == "s_waitcnt": return False
            if X & 4 and it.kind in ("valu", "trans"): return False
            if X & 8 and it.kind == "vmem": return False
            if X & 16 and it.kind == "ds": return False
            if X & 32 and it.kind == "trans": return False
            if X & 64 and it.kind == "valu": return False
            return True
        k.items[i0:] = [it for it in k.items[i0:] if keep(it)]
        k.wait_all()
    if not P.get("OST"): stamp(k, "it1-6")
    OM = MX + 4
    def finalize(dt):
        o = []
        for qt in range(2):
            b = Q + 16 * qt; pk_ = Q + 32 + 8 * qt
            o += [f"v_accvgpr_read_b32 v{b+i}, a{O+32*dt+16*qt+i}" for i in range(16)]
            o += [f"v_maximum3_f32 v{OM+qt}, |v{b+i}|, |v{b+i+1}|, v{OM+qt}" for i in range(0, 16, 2)]
            o += [f"v_mul_f32 v{b+i}, v{b+i}, v{RL+qt}" for i in range(16)]
            for sp in range(2):
                o += [f"v_cvt_pk_bf16_f32 v{pk_+4*sp+j}, v{b+8*sp+2*j}, v{b+8*sp+2*j+1}" for j in range(4)]
                o.append(L(lambda sp=sp, qt=qt, pk_=pk_: k(f"ds_write_b128 v{HW+sp}, {v(pk_+4*sp,4)} offset:{32768*qt+8192*dt}", token="hw"), 22, "d"))
        return o
    f0 = finalize(0)
    def x_last(sc):
        sc.add(flat(w_dma(s_, "O") for s_ in range(4)), 0, 30)
        fin = [f"v_mov_b32 v{MX}, v{LS}", f"v_mov_b32 v{MX+1}, v{LS+1}", f"v_mov_b32 v{OM}, 0", f"v_mov_b32 v{OM+1}, 0",
               f"v_permlane32_swap_b32 v{LS}, v{MX}", f"v_permlane32_swap_b32 v{LS+1}, v{MX+1}",
               f"v_add_f32 v{LS}, v{LS}, v{MX}", f"v_add_f32 v{LS+1}, v{LS+1}, v{MX+1}",
               f"v_rcp_f32 v{RL}, v{LS}", f"v_rcp_f32 v{RL+1}, v{LS+1}", f"v_max_f32 v{MX+6}, v{LS}, v{LS+1}"]
        adr = []
        for sp in range(2):
            adr += [[f"s_lshl_b32 s56, s{sW}, 1", f"s_add_u32 s56, s56, {sp}", f"s_sub_u32 s56, s56, s{sR8}"], [f"s_and_b32 s56, s56, 7",
                    f"s_lshl_b32 s56, s56, 10", f"v_add_u32 v{HW+sp}, s56, v{VLIN}"]]
        sc.add(adr, 0, 8)
        sc.add(fin, 39, 43)
        sc.pin(40, L(lambda: k("s_barrier")))
        sc.add(a_reads(0), 40, 46, prio=1)
        sc.add(f0[:30], 43, 48)
    iteration(1, last=True, extra=x_last)
    stamp(k, "it7")
    put(k, f0[30:])
    k.wait("hw"); k("s_barrier")
    put(k, b_reads(0))
    stamp(k, "owrite")
    def ox(c):
        def f(sc):
            if c < 3 and P["BURST"]:
                fz = finalize(c + 1)
                sc.add([x for x in fz if not callable(x)], 1, 46 if c == 2 else P["BURST"])
                sc.pin(P["BURST"], [x for x in fz if callable(x)])
            elif c < 3: sc.add(finalize(c + 1), 1, 48 if c == 2 else 55)
            if c == 2:
                chk = [f"v_maximum3_f32 v{MX+7}, v{OM}, v{OM+1}, v{MX+6}", f"v_min_f32 v{OM}, v{OM}, v{OM+1}",
                       f"v_cmp_ngt_f32 vcc, {f32(2.0**120)}, v{MX+7}", "s_mov_b64 s[56:57], vcc",
                       f"v_cmp_gt_f32 vcc, {f32(2.0**-90 if not P['FORCE_FB'] else 2.0**100)}, v{OM}",
                       ["s_or_b64 s[56:57], s[56:57], vcc", f"s_cselect_b32 s{sT1}, 1, 0", f"v_mov_b32 v{MX}, s{sT1}"],
                       [f"s_lshl_b32 s{sT1}, s{sW}, 2", f"v_mov_b32 v{MX+1}, s{sT1}"],
                       L(lambda: k(f"ds_write_b32 v{MX+1}, v{MX} offset:{L_K}", token="hw"), 4, "d"), f"v_mov_b32 v{MX+2}, 0"]
                if P["BURST"]: sc.add(chk[:-2] + chk[-1:], 46, P["BURST"]); sc.pin(P["BURST"], chk[-2])
                else: sc.add(chk, 48, 56)
            if c == 3:
                if P["PF1"]:
                    NA = P["F1R"] // 2; Wd_ = 3584 // NA; nl = (Wd_ + 1023) // 1024; per = Wd_ // nl // 16
                    pf = [[f"v_min_u32 v{tm}, {per-1}, v{LN_}", f"v_lshlrev_b32 v{tm}, 4, v{tm}"],
                          [f"s_lshr_b32 s56, s2, 3", f"s_lshl_b32 s56, s56, 2", f"s_add_u32 s56, s56, s{sW}"], [f"s_mul_i32 s56, s56, {4*3584}",
                           f"s_and_b32 s57, s2, {NA-1}"], [f"s_mul_i32 s57, s57, {Wd_}", f"s_add_u32 s56, s56, s57"],
                          L(lambda: k.srd(12, 68, 512 * 3584), 16), L(lambda: k.srd(16, 70, 512 * 3584), 16)]
                    n = 0
                    for r in range(4):
                        for l_ in range(nl):
                            for srd in (12, 16):
                                pf.append(f"buffer_load_dwordx4 {a(192+4*(n%16),4)}, v{tm}, s[{srd}:{srd+3}], s56 offen offset:{l_*per*16}"); n += 1
                        pf.append(f"s_add_u32 s56, s56, 3584")
                    sc.add(pf[:6], 8, 32); sc.add(pf[6:], 32, 56)
                sc.pin(5, f"ds_read_b128 {v(STT,4)}, v{MX+2} offset:{L_K}")
                sc.pin(14, [f"v_or3_b32 v{STT}, v{STT}, v{STT+1}, v{STT+2}", f"v_or_b32 v{STT}, v{STT}, v{STT+3}"])
                sc.pin(22, f"v_readfirstlane_b32 s{sT2}, v{STT}")
                sc.pin(38, [f"s_lshl_b32 s{sT0}, s{sG}, 21", f"s_lshl_b32 s{sT1}, s{sRB}, 16", f"s_add_u32 s{sT0}, s{sT0}, s{sT1}"])
                sc.pin(46, [f"s_lshl_b32 s{sT1}, s{sW}, 13", f"s_add_u32 s{sT0}, s{sT0}, s{sT1}", f"s_add_u32 s{sT0}, s{sT0}, {WS_P:#x}"])
                sc.pin(54, [f"s_andn2_b32 s{sT2}, s{sT2}, s{sFB}", "s_cbranch_scc1 FALLBACK"])
        return f
    i0 = len(k.items)
    for c in range(4):
        gbody("O", c, ox(c))
        if P.get("OST") and c < 3: stamp(k, f"o{c}")
    X = P.get("DBGO", 0)
    if X:
        def keep(it):
            if it.kind in ("label", "raw"): return True
            if it.mn.startswith("s_cbranch"): return False
            if X & 1 and it.mn == "s_barrier": return False
            if X & 2 and it.mn == "s_waitcnt" and "vmcnt" in it.text: return False
            if X & 4 and it.kind in ("valu", "trans") and not it.mn.startswith(("v_min_u32", "v_lshlrev")): return False
            if X & 8 and it.kind == "vmem": return False
            if X & 16 and it.mn.startswith("ds_write"): return False
            if X & 32 and it.mn == "s_waitcnt" and "lgkmcnt" in it.text: return False
            return True
        k.items[i0:] = [it for it in k.items[i0:] if keep(it)]
        k.wait_all()
    stamp(k, "ogemm")
    for a_ in range(4):
        for rt in range(2):
            k(f"s_add_u32 s{sT1}, s{sT0}, {32768*rt + 2048*a_}")
            b = ACC + 32 * a_ + 16 * rt
            for sp in range(2):
                for j in range(4 * sp, 4 * sp + 4): k(f"v_cvt_pk_bf16_f32 v{Q+16*a_+8*rt+j}, v{b+2*j}, v{b+2*j+1}")
                k(f"buffer_store_dwordx4 {v(Q+16*a_+8*rt+4*sp,4)}, v{VL16}, s[24:27], s{sT1} offen offset:{1024*sp}" + ["", " nt", " sc1", " sc0 sc1"][P["PST"]])
    stamp_flush(k, 1)
    k.label("END_attn"); k("s_endpgm")
    k.label("FALLBACK")
    k.wait_all(); k("s_barrier")
    k(f"s_mov_b32 s{sFB}, 1")
    k("s_nop 15")
    k("s_branch RESTART")
    k.label("FB_MAX")
    k.wait_all(); k("s_barrier")
    k(f"v_mov_b32 v{MX+4}, 0xff800000"); k(f"v_mov_b32 v{MX+5}, 0xff800000")
    def fbody():
        put(k, kv_dma("K", L_K, sO0) + nxt(sO0, sO0)); k.wait("K"); k("s_barrier")
        for s_ in range(8): put(k, rdK(s_, s_, L_K))
        for s_ in range(8):
            for qt in range(2): k(qk(s_, s_, qt, 0, True))
        put(k, maxops(0, MX))
        k(f"v_max_f32 v{MX+4}, v{MX+4}, v{MX}"); k(f"v_max_f32 v{MX+5}, v{MX+5}, v{MX+1}")
        k("s_barrier")
    k.loop(sST, 16, fbody)
    put(k, xhalf_max(MX + 4, MX + 2))
    for qt in range(2): k(f"v_sub_f32 v{MX+4+qt}, 0, v{MX+4+qt}")
    put(k, kfirst)
    k.wait_all(); k("s_barrier")
    for f in range(4): put(k, rdK(f, f, L_K + 16384 + 8192))
    qk0(False)
    k.wait_all()
    k("s_branch IT0")
    return k

from gen5_ffn import gen_ffn1, gen_ffn2

HEADER = open('adaLN_cond__sliding_block_cached__geglu_ffn__prompt.s.ref').read().split("; Override launch")[0]

if __name__ == "__main__":
    out = sys.argv[1] if len(sys.argv) > 1 else "k.s"
    me = sys.modules[__name__]
    ks = [gen_prep(), gen_attn(), gen_ln2(), gen_ffn1(me), gen_ffn2(me)]
    ks[-1].label("CODE_END")
    txt = emit(ks, header=HEADER)
    open(out, "w").write(txt)
    json.dump([[k.name, k.grid, k.block//64, k.stamps] for k in ks], open(out[:-2]+".json","w"))
    for k in ks: print(k.name, "regs(v,a,s)", k.used, "nops", k.n_nops, "misal", k.n_mis, "instrs", len(k.items))
```

```python
import sys, struct, math, os, json
from asmlib import *

def f32(x): return "0x%08x" % struct.unpack("<I", struct.pack("<f", x))[0]
LOG2E = 1.4426950408889634
CS = 128 ** -0.5
A_X, A_K, A_V, A_WQ, A_WO, B_X, A_WG, A_WU, A_WD, A_C, A_WM, A_OUT, A_DBG, A_WS = [8 * i for i in range(14)]
WS_MOD = 0x0
WS_ST = 0x10000
WS_P = 0x400000
WS_X1 = 0x1400000
WS_H2 = 0x1600000
WS_ACT = 0x1800000
WS_BYTES = 0x10000000
WS_DBG = 0x8000000
P = dict(STAMPS=0, G=1, ROT=1, F1R=8, F2R=8, PREF0=1, PREFC=1, PREFQ=1, PREFK=1, PORD=1, BURST=54, KEARLY=0, BIAS=64, FORCE_FB=0, PNT=0, PST=2, AST=2, PF1=1, PF2=1)
for kv in os.environ.get("GP", "").split(","):
    if kv: P[kv.split("=")[0]] = int(kv.split("=")[1])

def stamp(k, name):
    if not P["STAMPS"]: return
    i = len(k.stamps); k.stamps.append(name)
    assert i < 12
    k.sgpr = 102
    k("s_memtime s[72:73]"); k("s_memrealtime s[74:75]"); k("s_waitcnt lgkmcnt(0)")
    k(f"s_mov_b32 s{76+2*i}, s72"); k(f"s_mov_b32 s{77+2*i}, s74")
def stamp_begin(k):
    k.stamps = []
    if not P["STAMPS"]: return
    k("v_lshrrev_b32 v1, 6, v0"); k("v_readfirstlane_b32 s101, v1")
    stamp(k, "start")
def stamp_flush(k, kidx):
    if not P["STAMPS"]: return
    stamp(k, "end")
    if P["STAMPS"] == 2:
        lab = k.newlabel("NODBG")
        k("s_mov_b64 exec, -1")
        k("s_or_b32 s100, s2, s101"); k("s_cmp_lg_u32 s100, 0"); k(f"s_cbranch_scc1 {lab}")
        k(f"s_load_dwordx2 s[64:65], s[0:1], {A_WS}")
        k(f"s_load_dwordx2 s[66:67], s[0:1], {A_DBG}")
        k.srd(56, 64, 256, WS_DBG)
        n = len(k.stamps) - 1
        k(f"s_sub_u32 s100, s{76+2*n}, s76")
        k("v_mov_b32 v1, 0")
        for j, sr in enumerate([77, 77 + 2*n, 100]):
            k(f"v_mov_b32 v0, s{sr}")
            k(f"buffer_store_dword v0, v1, s[56:59], 0 offen offset:{12*kidx+4*j} sc0 sc1")
        k.wait_all()
        k("v_mbcnt_lo_u32_b32 v1, -1, 0"); k("v_mbcnt_hi_u32_b32 v1, -1, v1"); k("v_lshlrev_b32 v1, 2, v1")
        k("buffer_load_dword v0, v1, s[56:59], 0 offen sc0 sc1")
        k.srd(60, 66, 256)
        k("buffer_store_dword v0, v1, s[60:63], 0 offen")
        k.label(lab)
        return
    k(f"s_load_dwordx2 s[64:65], s[0:1], {A_WS}")
    k("s_mov_b64 exec, -1")
    k.srd(56, 64, WS_BYTES)
    k("s_lshl_b32 s100, s2, 3"); k("s_add_u32 s100, s100, s101"); k("s_lshl_b32 s100, s100, 8")
    k(f"s_add_u32 s100, s100, {WS_DBG + kidx*0x100000:#x}")
    k("v_mov_b32 v1, 0")
    for j, sr in enumerate([76 + i for i in range(2*len(k.stamps))]):
        k(f"v_mov_b32 v0, s{sr}")
        k(f"buffer_store_dword v0, v1, s[56:59], s100 offen offset:{4*j}")

def wave_id(k, sdst, vtmp):
    k(f"v_lshrrev_b32 v{vtmp}, 6, v0")
    k(f"v_readfirstlane_b32 s{sdst}, v{vtmp}")
def rowsum_8(k, val, tmp):
    k(f"v_add_f32_dpp v{val}, v{val}, v{val} row_ror:8 row_mask:0xf bank_mask:0xf")
    k(f"v_mov_b32 v{tmp}, v{val}"); k(f"v_permlane16_swap_b32 v{val}, v{tmp}"); k(f"v_add_f32 v{val}, v{val}, v{tmp}")
    k(f"v_mov_b32 v{tmp}, v{val}"); k(f"v_permlane32_swap_b32 v{val}, v{tmp}"); k(f"v_add_f32 v{val}, v{val}, v{tmp}")
def rnd(k, d, sreg): k(f"v_cvt_pk_bf16_f32 v{d}, 0, v{sreg}")
def lg2(x): return x.bit_length() - 1
def split2(k, sb, sA, sB, nA_per, nB_total, t0, t1):
    A_total = 256 // nB_total; NA = A_total // nA_per
    k(f"s_and_b32 s{t0}, s{sb}, 7"); k(f"s_lshr_b32 s{t1}, s{sb}, 3")
    k(f"s_and_b32 s{sA}, s{t0}, {NA-1}"); k(f"s_lshl_b32 s{sA}, s{sA}, {lg2(nA_per)}")
    k(f"s_and_b32 s{sB}, s{t1}, {nA_per-1}"); k(f"s_add_u32 s{sA}, s{sA}, s{sB}")
    k(f"s_lshr_b32 s{sB}, s{t0}, {lg2(NA)}"); k(f"s_lshl_b32 s{sB}, s{sB}, {lg2(32//nA_per)}")
    k(f"s_lshr_b32 s{t1}, s{t1}, {lg2(nA_per)}"); k(f"s_add_u32 s{sB}, s{sB}, s{t1}")
def lane_tr_parts(k, lane, r, c2, gn, h, tmp):
    k(f"v_bfe_u32 v{r}, v{lane}, 2, 2")
    k(f"v_and_b32 v{c2}, 1, v{lane}"); k(f"v_lshlrev_b32 v{c2}, 1, v{c2}")
    k(f"v_bfe_u32 v{tmp}, v{lane}, 1, 1"); k(f"v_or_b32 v{c2}, v{c2}, v{tmp}")
    k(f"v_bfe_u32 v{gn}, v{lane}, 4, 1")
    k(f"v_lshrrev_b32 v{h}, 5, v{lane}")

QS = CS * LOG2E
def gen_prep():
    NG_, NP_ = 192, 256
    k = Kernel("prep_kernel", NG_ + NP_, 256, 1024, vgpr=128, agpr=16, sgpr=64)
    k(f"s_cmp_ge_u32 s2, {NG_+NP_}"); k("s_cbranch_scc1 END_prep")
    stamp_begin(k)
    k(f"s_cmp_ge_u32 s2, {NG_}"); k("s_cbranch_scc1 ST_prep")
    k(f"s_load_dwordx4 s[4:7], s[0:1], {A_C}")
    k(f"s_load_dwordx2 s[28:29], s[0:1], {A_WS}")
    k("v_and_b32 v1, 1, v0"); k("v_lshrrev_b32 v2, 1, v0")
    k("v_mul_u32_u24 v3, 6144, v2"); k("v_lshl_add_u32 v3, v1, 4, v3")
    k("v_lshlrev_b32 v4, 1, v2")
    wave_id(k, 30, 5)
    k("s_and_b32 s31, s2, 7"); k("s_mul_i32 s31, s31, 24"); k("s_lshr_b32 s20, s2, 3"); k("s_add_u32 s31, s31, s20")
    k("s_lshl_b32 s20, s31, 5")
    k.srd(12, 6, 512 * 6144); k.srd(8, 4, 1024)
    for i in range(4):
        k(f"buffer_load_dwordx4 {v(32+4*i,4)}, v3, s[12:15], s20 offen")
        if i < 3: k(f"s_add_u32 s20, s20, {128*6144}")
    for i in range(4):
        k(f"buffer_load_ushort v{8+i}, v4, s[8:11], 0 offen offset:{256*i}")
    k.srd(16, 28, 12288, WS_MOD)
    k(f"s_mov_b32 s21, {f32(-LOG2E)}"); k("s_mov_b32 s23, 0xffff0000")
    for i in range(4):
        x = 8 + i
        k(f"v_lshlrev_b32 v{x}, 16, v{x}")
        k(f"v_mul_f32 v5, s21, v{x}"); k("v_exp_f32 v5, v5"); k("v_add_f32 v5, 1.0, v5"); k("v_rcp_f32 v6, v5")
        k(f"v_mul_f32 v7, v{x}, v6")
        rnd(k, x, 7)
    stamp(k, "x1")
    for i in range(4):
        for q in range(4):
            r = 32 + 4 * i + q
            k(f"v_lshlrev_b32 v5, 16, v{r}"); k(f"v_and_b32 v6, s23, v{r}")
            op = "v_mul_f32" if i == 0 else "v_fmac_f32"
            k(f"{op} v{16+2*q}, v5, v{8+i}"); k(f"{op} v{17+2*q}, v6, v{8+i}")
    for md in ("quad_perm:[2,3,0,1]", "row_ror:4", "row_ror:8"):
        for j in range(8):
            k(f"v_add_f32_dpp v{16+j}, v{16+j}, v{16+j} {md} row_mask:0xf bank_mask:0xf")
    stamp(k, "stats")
    k("v_lshrrev_b32 v5, 4, v0"); k("v_lshlrev_b32 v5, 6, v5"); k("v_lshl_add_u32 v5, v1, 5, v5")
    k(f"ds_write_b128 v5, {v(16,4)}", token="w"); k(f"ds_write_b128 v5, {v(20,4)} offset:16", token="w")
    k.wait("w"); k("s_barrier")
    k("s_cmp_lg_u32 s30, 0"); k("s_cbranch_scc1 END_prep")
    k("v_lshlrev_b32 v5, 2, v0")
    for i in range(4): k(f"ds_read_b32 v{32+i}, v5 offset:{256*i}")
    k("v_add_f32 v32, v32, v33"); k("v_add_f32 v34, v34, v35"); k("v_add_f32 v32, v32, v34")
    k("v_mov_b32 v33, v32"); k("v_permlane16_swap_b32 v32, v33"); k("v_add_f32 v32, v32, v33")
    k("v_mov_b32 v33, v32"); k("v_permlane32_swap_b32 v32, v33"); k("v_add_f32 v32, v32, v33")
    rnd(k, 32, 32)
    k("s_lshr_b32 s20, s31, 5"); k("s_cmp_eq_u32 s20, 1"); k("s_cselect_b32 s21, 1.0, 0")
    k("s_cmp_eq_u32 s20, 4"); k("s_cselect_b32 s21, 1.0, s21")
    k("s_cmp_lt_u32 s20, 2"); k(f"s_cselect_b32 s22, {f32(QS)}, 1.0")
    k("v_add_f32 v32, s21, v32"); k("v_mul_f32 v32, s22, v32")
    k("s_lshl_b32 s20, s31, 6")
    k("v_cmp_gt_u32 vcc, 16, v0")
    k("s_and_saveexec_b64 s[24:25], vcc")
    k("buffer_store_dword v32, v5, s[16:19], s20 offen sc1")
    stamp_flush(k, 0)
    k("s_endpgm")
    k.label("ST_prep")
    k.vm, k.lg = {}, {}
    if P["STAMPS"]: k.stamps = ["start"]
    k(f"s_load_dwordx2 s[4:5], s[0:1], {A_X}")
    k(f"s_load_dwordx2 s[6:7], s[0:1], {A_WS}")
    k(f"s_load_dwordx2 s[34:35], s[0:1], {A_WQ}")
    k(f"s_load_dwordx4 s[36:39], s[0:1], {A_K}")
    k("s_getpc_b64 s[32:33]")
    k.label("PCREF_prep")
    k(f"s_sub_u32 s31, s2, {NG_}")
    G = P["G"]
    split2(k, 31, 26, 25, G, 32, 20, 21)
    k("v_and_b32 v1, 7, v0"); k("v_lshrrev_b32 v2, 3, v0"); k("v_lshrrev_b32 v6, 6, v0")
    k("v_and_b32 v7, 7, v2"); k("v_lshl_add_u32 v7, v6, 4, v7")
    k("v_lshlrev_b32 v4, 10, v1"); k("v_lshl_add_u32 v4, v7, 4, v4")
    k("v_lshlrev_b32 v8, 4, v1"); k("v_lshl_add_u32 v9, v6, 2, v8")
    k("v_lshlrev_b32 v3, 4, v0")
    k.srd(8, 4, 2048 * 1024); k.srd(12, 6, WS_BYTES)
    k("s_lshl_b32 s20, s25, 16"); k("s_lshl_b32 s21, s26, 13"); k("s_add_u32 s21, s21, s20")
    X = 16; XF = 24
    for i in range(2): k(f"buffer_load_dwordx4 {v(X+4*i,4)}, v4, s[8:11], s21 offen offset:{128*i}")
    if P["PREF0"]:
        k(f"s_and_b32 s22, s26, {G-1}"); k(f"s_mul_i32 s22, s22, {65536//G}"); k("s_add_u32 s22, s22, s20")
        for i in range(16 // G):
            k(f"buffer_load_dwordx4 {v(64+4*i,4)}, v3, s[8:11], s22 offen")
            k("s_add_u32 s22, s22, 4096")
    if P["PREFQ"]:
        k.srd(40, 34, 512 * 8192)
        k("v_lshlrev_b32 v11, 13, v6"); k("v_and_b32 v12, 63, v0"); k("v_lshl_add_u32 v11, v12, 4, v11")
        k(f"s_lshr_b32 s22, s31, {3+lg2(G)}"); k(f"s_lshl_b32 s22, s22, {17+lg2(G)}"); k("s_lshl_b32 s23, s26, 10"); k("s_add_u32 s22, s22, s23")
        for i in range(4 * G):
            k(f"buffer_load_dwordx4 {v(40+4*(i%4),4) if i < 4 else v(128-4*(i-3),4)}, v11, s[40:43], s22 offen")
            k(f"s_add_u32 s22, s22, {4*8192}")
    if P["PREFK"]:
        k.srd(44, 36, 8 * 2048 * 256); k.srd(48, 38, 8 * 2048 * 256)
        k(f"s_lshr_b32 s22, s31, {3+lg2(G)}"); k(f"s_lshl_b32 s22, s22, {12+lg2(G)}"); k("s_lshl_b32 s23, s26, 19"); k("s_add_u32 s22, s22, s23"); k(f"s_add_u32 s22, s22, {1536*256}")
        for i in range(G):
            k(f"buffer_load_dwordx4 {a(8*i,4)}, v3, s[44:47], s22 offen")
            k(f"buffer_load_dwordx4 {a(8*i+4,4)}, v3, s[48:51], s22 offen")
            k("s_add_u32 s22, s22, 4096")
    if P["PREFC"]:
        k("s_lshr_b32 s22, s31, 3"); k("s_lshl_b32 s22, s22, 12")
        k("s_cmp_ge_u32 s22, CODE_END-attn_kernel-4095"); k("s_cbranch_scc1 NOPC_prep")
        k("s_add_u32 s22, s22, attn_kernel-PCREF_prep")
        k("s_add_u32 s32, s32, s22"); k("s_addc_u32 s33, s33, 0")
        k("global_load_dwordx4 v[60:63], v3, s[32:33]")
        k.label("NOPC_prep")
        k.vm = {kk: max(0, p - 1) for kk, p in k.vm.items()}
    k("s_mov_b32 s24, 0xffff0000")
    for q in range(8):
        k(f"v_lshlrev_b32 v{XF+2*q}, 16, v{X+q}"); k(f"v_and_b32 v{XF+2*q+1}, s24, v{X+q}")
    stamp(k, "x1")
    ln_stats(k, XF)
    stamp(k, "stats")
    k("v_mul_f32 v10, v58, v56"); k("v_mov_b32 v11, v56")
    k("v_lshlrev_b32 v5, 6, v1")
    k("s_lshl_b32 s20, s25, 9"); k("s_lshl_b32 s21, s26, 3"); k("s_add_u32 s20, s20, s21"); k(f"s_add_u32 s20, s20, {WS_ST:#x}")
    k("v_cmp_gt_u32 vcc, 8, v0")
    k("s_and_saveexec_b64 s[28:29], vcc")
    k("s_cbranch_execz SKIPST_prep")
    k("buffer_store_dwordx2 v[10:11], v5, s[12:15], s20 offen sc1")
    k.label("SKIPST_prep")
    stamp_flush(k, 0)
    k.label("END_prep"); k("s_endpgm")
    return k

def ln_stats(k, XF):
    k(f"v_pk_add_f32 v[10:11], {v(XF,2)}, {v(XF+2,2)}")
    for e in range(4, 16, 2): k(f"v_pk_add_f32 v[10:11], v[10:11], {v(XF+e,2)}")
    k("v_add_f32 v10, v10, v11")
    def allreduce(off):
        rowsum_8(k, 10, 11)
        k(f"ds_write_b32 v9, v10 offset:{off}", token="w"); k.wait("w"); k("s_barrier")
        k(f"ds_read_b128 {v(12,4)}, v8 offset:{off}")
        k("v_add_f32 v12, v12, v13"); k("v_add_f32 v14, v14, v15"); k("v_add_f32 v10, v12, v14")
    allreduce(0)
    k(f"v_mul_f32 v58, {f32(-1/512)}, v10"); k("v_mov_b32 v59, v58")
    for e in range(0, 16, 2): k(f"v_pk_add_f32 {v(XF+e,2)}, {v(XF+e,2)}, v[58:59]")
    k(f"v_pk_mul_f32 v[10:11], {v(XF,2)}, {v(XF,2)}")
    for e in range(2, 16, 2): k(f"v_pk_fma_f32 v[10:11], {v(XF+e,2)}, {v(XF+e,2)}, v[10:11]")
    k("v_add_f32 v10, v10, v11")
    allreduce(128)
    k(f"v_mov_b32 v11, {f32(1e-5)}"); k(f"v_fmac_f32 v11, {f32(1/512)}, v10")
    k("v_rsq_f32 v56, v11"); k("v_mov_b32 v57, v56")

def gen_ln2():
    k = Kernel("ln2_kernel", 256, 256, 256, vgpr=160, sgpr=64)
    k("s_cmp_ge_u32 s2, 256"); k("s_cbranch_scc1 END_ln2")
    stamp_begin(k)
    k(f"s_load_dwordx2 s[4:5], s[0:1], {A_X}")
    k(f"s_load_dwordx2 s[6:7], s[0:1], {A_WS}")
    k("v_and_b32 v1, 7, v0"); k("v_lshrrev_b32 v2, 3, v0"); k("v_lshrrev_b32 v6, 6, v0")
    k("v_and_b32 v7, 7, v2"); k("v_lshl_add_u32 v7, v6, 4, v7")
    k("v_lshlrev_b32 v3, 9, v7"); k("v_lshl_add_u32 v3, v1, 4, v3")
    k("v_add_u32 v2, 4096, v3")
    k("v_lshlrev_b32 v4, 10, v1"); k("v_lshl_add_u32 v4, v7, 4, v4")
    k("v_lshlrev_b32 v5, 5, v7")
    k("v_lshlrev_b32 v8, 4, v1"); k("v_lshl_add_u32 v9, v6, 2, v8")
    k("s_and_b32 s25, s2, 7"); k("s_lshl_b32 s25, s25, 5"); k("s_lshr_b32 s26, s2, 3"); k("s_add_u32 s25, s25, s26")
    k("s_lshl_b32 s20, s25, 13")
    k("s_lshr_b32 s21, s25, 2"); k("s_lshl_b32 s21, s21, 15"); k("s_and_b32 s22, s25, 3"); k("s_lshl_b32 s22, s22, 7")
    k("s_add_u32 s21, s21, s22")
    k(f"s_add_u32 s23, s21, {WS_P:#x}")
    k.srd(12, 6, WS_BYTES)
    X = 16; XF = 24; MV = 40; PB = 64
    for g in range(8):
        for i in range(2):
            k(f"buffer_load_dwordx4 {v(PB+8*g+4*i,4)}, v{3-i}, s[12:15], s23 offen" + (" nt" if P["PNT"] else ""))
        if g < 7: k("s_add_u32 s23, s23, 0x200000")
    k.srd(8, 4, 2048 * 1024)
    for i in range(2): k(f"buffer_load_dwordx4 {v(X+4*i,4)}, v4, s[8:11], s20 offen offset:{128*i}")
    k("s_mov_b32 s24, 0xffff0000")
    def load_mod(base, m):
        k(f"s_mov_b32 s23, {WS_MOD + m*2048}")
        for i in range(2):
            for hh in range(2):
                k(f"buffer_load_dwordx4 {v(base+8*i+4*hh,4)}, v5, s[12:15], s23 offen offset:{256*i+16*hh}")
    def unpack(dst, src):
        k(f"v_lshlrev_b32 v{dst}, 16, v{src}"); k(f"v_and_b32 v{dst+1}, s24, v{src}")
    load_mod(MV, 2); load_mod(128, 4); load_mod(144, 3)
    for q in range(8): unpack(XF + 2 * q, PB + q)
    for g in range(1, 8):
        for q in range(8):
            unpack(10 + 2 * (q & 1), PB + 8 * g + q)
            k(f"v_pk_add_f32 {v(XF+2*q,2)}, {v(XF+2*q,2)}, {v(10+2*(q&1),2)}")
    for q in range(8):
        unpack(10, X + q)
        k(f"v_pk_fma_f32 v[10:11], {v(XF+2*q,2)}, {v(MV+2*q,2)}, v[10:11]")
        k(f"v_cvt_pk_bf16_f32 v{X+q}, v10, v11")
        unpack(XF + 2 * q, X + q)
    k(f"s_add_u32 s23, s21, {WS_X1:#x}")
    for i in range(2): k(f"buffer_store_dwordx4 {v(X+4*i,4)}, v{3-i}, s[12:15], s23 offen sc1")
    stamp(k, "x1")
    ln_stats(k, XF)
    stamp(k, "stats")
    for e in range(0, 16, 2):
        k(f"v_pk_mul_f32 {v(XF+e,2)}, {v(XF+e,2)}, v[56:57]")
        k(f"v_pk_fma_f32 {v(XF+e,2)}, {v(XF+e,2)}, {v(128+e,2)}, {v(144+e,2)}")
        k(f"v_cvt_pk_bf16_f32 v{MV+e//2}, v{XF+e}, v{XF+e+1}")
    k(f"s_add_u32 s23, s21, {WS_H2:#x}")
    for i in range(2): k(f"buffer_store_dwordx4 {v(MV+4*i,4)}, v{3-i}, s[12:15], s23 offen sc1")
    stamp_flush(k, 2)
    k.label("END_ln2"); k("s_endpgm")
    return k

def put(k, seq):
    for x in seq:
        if isinstance(x, list): put(k, x)
        elif callable(x): x()
        else: k(x)

def gen_attn():
    k = Kernel("attn_kernel", 256, 256, 163840, vgpr=256, agpr=256, sgpr=72)
    L_K, L_H, L_V, L_W, L_M = 0, 32768, 32768, 98304, 16384
    ACC = 0; S = 0; CI = 64; Q = 128
    VK = 192; VV = 200; VW = 204; VDW = 208; VDK = 212; VDV = 214; VLIN = 215; VL16 = 216
    LS = 217
    T = 220
    LN_, ROWL, GR16 = T, T + 1, T + 2
    r_, c2, gn, h_, tm = T + 3, T + 4, T + 5, T + 6, T + 7
    CH8 = T + 10; HW = T + 11
    VX = T + 13; VM = T + 15
    MX = T + 16
    STT = T + 24
    RL = T + 28; UT = T + 28
    O = 0; FR = 128; AF = 128; BF = 160
    sW, sG, sRB, sT0, sT1, sRING, sST, sFB, sROT, sT2 = 28, 29, 30, 32, 33, 34, 35, 39, 50, 51
    sO0, sO1, sO2, sW2K, sW256, sKhi, sMASK, sCC, sR8 = 36, 37, 38, 52, 54, 55, 58, 59, 6
    TAB = 60
    def L(f, cost=4, mem=False):
        f.cost = cost; f.mem = mem; return f
    k("s_cmp_ge_u32 s2, 256"); k("s_cbranch_scc1 END_attn")
    stamp_begin(k)
    wave_id(k, sW, T)
    k(f"v_and_b32 v{LN_}, 63, v0")
    k(f"s_mov_b32 s{sFB}, 0")
    k.label("RESTART")
    k(f"s_load_dwordx2 s[4:5], s[0:1], {A_X}")
    k(f"s_load_dwordx2 s[48:49], s[0:1], {A_WS}")
    k(f"s_load_dwordx8 s[40:47], s[0:1], {A_K}")
    k(f"s_load_dwordx4 s[68:71], s[0:1], {A_WG}")
    k(f"v_lshlrev_b32 v{VL16}, 4, v{LN_}")
    G = P["G"]
    split2(k, 2, sG, sRB, G, 32, sT0, sROT)
    k(f"s_lshl_b32 s{sROT}, s{sROT}, {lg2(G)}")
    k(f"s_and_b32 s{sR8}, s{sROT}, 7"); k(f"s_lshr_b32 s{sCC}, s{sROT}, 3")
    RR, CGL = tm, tm + 1
    k(f"v_and_b32 v{RR}, 7, v{LN_}"); k(f"v_lshrrev_b32 v{CGL}, 3, v{LN_}")
    k(f"v_lshlrev_b32 v{VX}, 10, v{RR}"); k(f"v_lshl_add_u32 v{VX}, v{CGL}, 4, v{VX}"); k(f"v_add_u32 v{VX+1}, 8192, v{VX}")
    k(f"v_lshlrev_b32 v{tm+2}, 6, v{RR}")
    k(f"s_lshl_b32 s{sT1}, s{sRB}, 9"); k(f"s_lshl_b32 s{sT2}, s{sW}, 4"); k(f"s_add_u32 s{sT1}, s{sT1}, s{sT2}"); k(f"s_add_u32 s{sT1}, s{sT1}, {WS_ST:#x}")
    k(f"s_lshl_b32 s3, s{sRB}, 16"); k(f"s_lshl_b32 s{sT2}, s{sW}, 14"); k(f"s_add_u32 s3, s3, s{sT2}")
    k(f"s_lshl_b32 s{sW256}, s{sW}, 8"); k(f"s_lshl_b32 s{sW2K}, s{sW}, 11")
    k(f"v_lshrrev_b32 v{ROWL}, 4, v{LN_}")
    k(f"v_and_b32 v{r_}, 15, v{LN_}"); k(f"v_lshlrev_b32 v{GR16}, 2, v{ROWL}"); k(f"v_xor_b32 v{GR16}, v{GR16}, v{r_}")
    k(f"v_lshlrev_b32 v{GR16}, 4, v{GR16}")
    def w_voffs(psh, scol):
        return [f"v_lshl_add_u32 v{VDW}, v{ROWL}, {psh}, v{GR16}", f"v_add_u32 v{VDW}, s{scol}, v{VDW}"] + \
               [f"v_add_u32 v{VDW+n}, {n*((4<<psh)-1024)}, v{VDW}" for n in range(1, 4)]
    k(f"s_lshl_b32 s{sT0}, s{sG}, 10"); k(f"s_add_u32 s{sT0}, s{sT0}, s{sW256}")
    put(k, w_voffs(13, sT0))
    k(f"s_lshl_b32 s{sRING}, s{sW}, 14"); k(f"s_add_u32 s{sRING}, s{sRING}, {L_W}")
    for p in range(8):
        k(f"s_add_u32 s{TAB+p}, s{sR8}, {p}"); k(f"s_and_b32 s{TAB+p}, s{TAB+p}, 7"); k(f"s_lshl_b32 s{TAB+p}, s{TAB+p}, 17")
    k(f"s_lshl_b32 s{sKhi}, s{sCC}, 20")
    k.srd(24, 48, WS_BYTES); k.srd(16, 4, 2048 * 1024); k.srd(8, 44, 512 * 8192)
    XR = [0, 128, 144, 160]; CN = 176
    def xloads(c):
        o = [f"s_add_u32 s57, s{sCC}, {c}", "s_and_b32 s57, s57, 3", "s_lshl_b32 s57, s57, 8", "s_add_u32 s57, s57, s3"]
        for cb in range(2):
            for oo in range(2):
                o.append(f"buffer_load_dwordx4 {v(XR[c]+8*cb+4*oo,4)}, v{VX+oo}, s[16:19], s57 offen offset:{128*cb}")
        return o
    def w_dma(step, which):
        slot = step % 4
        if which == "Q":
            srd = 8
            pre = [f"s_add_u32 s{sT0}, s{sKhi}, s{TAB+step%8}"]
            adv = [[f"s_add_u32 s{sKhi}, s{sKhi}, 0x100000", f"s_and_b32 s{sKhi}, s{sKhi}, 0x3fffff"]] if step % 8 == 7 else []
        else:
            srd = 20
            pre = [f"s_add_u32 s{sT0}, s{TAB+step%8}, {(2*(step//8))<<14}"]
            adv = []
        o = [pre + [f"s_add_u32 m0, s{sRING}, {4096*slot}"]] + adv + [f"buffer_load_dwordx4 v{VDW}, s[{srd}:{srd+3}], s{sT0} offen lds"]
        for n in range(1, 4):
            o.append(L(lambda n=n: k(f"buffer_load_dwordx4 v{VDW+n}, s[{srd}:{srd+3}], s{sT0} offen offset:{1024*n} lds", token=f"W{slot}"), 10, "v"))
        return o
    slow = [f"buffer_load_dwordx4 {v(STT,4)}, v{tm+2}, s[24:27], s{sT1} offen",
            f"s_lshl_b32 s{sT2}, s{sW}, 10", f"s_add_u32 m0, s{sT2}, {L_M}",
            lambda: k(f"buffer_load_dwordx4 v{VL16}, s[24:27], s{sT2} offen lds", token="M")]
    seq = {0: [slow, xloads(0), w_dma(0, "Q"), xloads(1), w_dma(1, "Q")],
           1: [xloads(0), w_dma(0, "Q"), slow, xloads(1), w_dma(1, "Q")],
           2: [xloads(0), w_dma(0, "Q"), xloads(1), w_dma(1, "Q"), slow]}[P["PORD"]]
    put(k, seq)
    k(f"v_lshrrev_b32 v{r_}, 1, v{CGL}"); k(f"v_subrev_u32 v{r_}, s{sR8}, v{r_}")
    k(f"v_and_b32 v{c2}, 1, v{CGL}"); k(f"v_lshlrev_b32 v{c2}, 9, v{c2}"); k(f"v_lshl_add_u32 v{c2}, v{RR}, 4, v{c2}")
    k(f"s_lshr_b32 s{sT1}, s{sW}, 1"); k(f"s_lshl_b32 s{sT1}, s{sT1}, 15"); k(f"s_and_b32 s{sT2}, s{sW}, 1"); k(f"s_lshl_b32 s{sT2}, s{sT2}, 8")
    k(f"s_add_u32 s{sT1}, s{sT1}, s{sT2}"); k(f"s_add_u32 s{sT1}, s{sT1}, {L_H}"); k(f"v_add_u32 v{c2}, s{sT1}, v{c2}")
    for cb in range(2):
        k(f"v_add_u32 v{gn}, {4*cb}, v{r_}"); k(f"v_and_b32 v{gn}, 7, v{gn}"); k(f"v_lshl_add_u32 v{HW+cb}, v{gn}, 10, v{c2}")
    k(f"s_lshl_b32 s{sT2}, s{sCC}, 9"); k(f"v_lshlrev_b32 v{VM}, 5, v{CGL}"); k(f"v_add_u32 v{VM}, s{sT2}, v{VM}")
    lane_tr_parts(k, LN_, r_, c2, gn, h_, tm)
    k(f"v_lshl_add_u32 v{CH8}, v{gn}, 2, v{c2}"); k(f"v_lshlrev_b32 v{CH8}, 3, v{CH8}")
    k(f"v_lshl_add_u32 v{tm}, v{h_}, 3, v{r_}"); k(f"v_lshl_add_u32 v{tm}, v{tm}, 8, v{CH8}"); k(f"v_add_u32 v{tm}, s{sRING}, v{tm}")
    for a_ in range(4):
        k(f"v_xor_b32 v{tm+1}, {a_}, v{r_}"); k(f"v_lshl_add_u32 v{VW+a_}, v{tm+1}, 6, v{tm}")
    put(k, [f"v_lshl_add_u32 v{tm}, v{h_}, 2, v{r_}", f"v_lshl_add_u32 v{tm}, v{tm}, 8, v{CH8}", f"v_add_u32 v{tm}, {L_V}, v{tm}"])
    for dt in range(4): put(k, [f"v_xor_b32 v{tm+1}, {dt}, v{r_}", f"v_lshl_add_u32 v{VV+dt}, v{tm+1}, 6, v{tm}"])
    put(k, [f"v_and_b32 v{tm}, 31, v{LN_}", f"v_and_b32 v{tm+1}, 15, v{LN_}", f"v_xor_b32 v{tm+1}, v{tm+1}, v{h_}",
            f"v_lshlrev_b32 v{tm}, 8, v{tm}", f"v_lshl_add_u32 v{VK}, v{tm+1}, 4, v{tm}"])
    put(k, [f"v_xor_b32 v{VK+s_}, {s_*32}, v{VK}" for s_ in range(1, 8)])
    put(k, [f"v_mov_b32 v{LS}, 0", f"v_mov_b32 v{LS+1}, 0",
        f"v_lshl_add_u32 v{VDV}, v{ROWL}, 8, v{GR16}", f"s_and_b32 s{sT1}, s{sW}, 1", f"s_lshl_b32 s{sT1}, s{sT1}, 3",
        f"v_or_b32 v{tm}, s{sT1}, v{ROWL}", f"v_and_b32 v{tm+1}, 15, v{LN_}", f"v_xor_b32 v{tm}, v{tm}, v{tm+1}",
        f"v_lshlrev_b32 v{VDK}, 8, v{ROWL}", f"v_lshl_add_u32 v{VDK}, v{tm}, 4, v{VDK}", f"v_xor_b32 v{VDK+1}, 64, v{VDK}",
        f"s_lshl_b32 s{sT1}, s{sG}, 19", f"s_add_u32 s{sT1}, s{sT1}, s{sW2K}", f"s_add_u32 s{sT1}, s{sT1}, {1536*256}",
        f"v_add_u32 v{VDK}, s{sT1}, v{VDK}", f"v_add_u32 v{VDK+1}, s{sT1}, v{VDK+1}", f"v_add_u32 v{VDV}, s{sT1}, v{VDV}",
        f"v_add_u32 v{VLIN}, {L_H}, v{VL16}", f"s_mov_b32 s{sMASK}, 0xffff0000"])
    k.srd(12, 40, 8 * 2048 * 256); k.srd(20, 46, 4096 * 1024)
    def nxt(d, s_): return [f"s_add_u32 s{d}, s{s_}, 8192", f"s_and_b32 s{d}, s{d}, 0x1ffff"]
    def kv_dma(which, lds_off, so):
        srd = 12 if which == "K" else 16
        return [f"s_add_u32 m0, s{sW2K}, {lds_off}", f"buffer_load_dwordx4 v{VDK if which=='K' else VDV}, s[{srd}:{srd+3}], s{so} offen lds",
                L(lambda: k(f"buffer_load_dwordx4 v{VDK+1 if which=='K' else VDV}, s[{srd}:{srd+3}], s{so} offen offset:1024 lds", token=which), 10, "v")]
    kinit = [[f"s_lshr_b32 s{sO0}, s{sROT}, 1", f"s_lshl_b32 s{sO0}, s{sO0}, 13"] + nxt(sO1, sO0) + nxt(sO2, sO1)]
    kfirst = [kv_dma("K", L_K + 16384 + 8192, sO0), kv_dma("K", L_K, sO1), kv_dma("K", L_K + 8192, sO2)]
    put(k, [w_dma(2, "Q"), xloads(2), w_dma(3, "Q"), xloads(3), kinit])
    if P["KEARLY"]: put(k, kfirst)
    stamp(k, "setup")
    def cread(cb, dst):
        return [f"ds_read_b128 {v(dst+8*m_+4*q,4)}, v{VM} offset:{L_M+2048*(1-m_)+256*cb+16*q}" for m_ in range(2) for q in range(2)]
    vmadv = [[f"v_add_u32 v{VM}, 0x200, v{VM}", f"v_and_b32 v{VM}, 0x7ff, v{VM}"]]
    def modulate(c, cb, cn, U_, pk):
        o = []
        for oo in range(2):
            x = XR[c] + 8 * cb + 4 * oo; u = U_ + (8 * oo if pk else 0)
            for q in range(4): o += [f"v_lshlrev_b32 v{u+2*q}, 16, v{x+q}", f"v_and_b32 v{u+2*q+1}, s{sMASK}, v{x+q}"]
            if pk:
                st = v(STT + 2 * oo, 2)
                o += [f"v_pk_fma_f32 {v(u+2*q,2)}, {v(u+2*q,2)}, {st}, {st} op_sel:[0,1,0] op_sel_hi:[1,1,0]" for q in range(4)]
                o += [f"v_pk_fma_f32 {v(u+2*q,2)}, {v(u+2*q,2)}, {v(cn+2*q,2)}, {v(cn+8+2*q,2)}" for q in range(4)]
            else:
                o += [f"v_fma_f32 v{u+e}, v{u+e}, v{STT+2*oo+1}, v{STT+2*oo}" for e in range(8)]
                o += [f"v_fma_f32 v{u+e}, v{u+e}, v{cn+e}, v{cn+8+e}" for e in range(8)]
            o += [f"v_cvt_pk_bf16_f32 v{x+q}, v{u+2*q}, v{u+2*q+1}" for q in range(4)]
            o.append(L(lambda x=x, cb=cb, oo=oo: k(f"ds_write_b128 v{HW+cb}, {v(x,4)} offset:{8192*c+128*oo}", token="hw"), 22, "d"))
        return o
    k.wait("M"); k("s_barrier")
    put(k, cread(0, 16) + cread(1, 32) + vmadv)
    put(k, modulate(0, 0, 16, 48, True) + modulate(0, 1, 32, 64, True))
    fr = lambda f: FR + 4 * (f % 8)
    def rdK(f, s_, off): return [f"ds_read_b128 {a(fr(f),4)}, v{VK+s_} offset:{off}"]
    def rdV(f, i, off): return [f"ds_read_b64_tr_b16 {a(fr(f)+2*u,2)}, v{VV+i%4} offset:{off+4096*(i//4)+2048*u}" for u in range(2)]
    def a_reads(step):
        slot = step % 4; buf = step % 2
        rd = [f"ds_read_b64_tr_b16 {a(AF+16*buf+4*a_+2*u,2)}, v{VW+a_} offset:{4096*slot+1024*u}" for a_ in range(4) for u in range(2)]
        return [[L(lambda: k.wait(f"W{slot}")), rd[0]]] + rd[1:]
    def b_reads(step):
        return [f"ds_read_b128 {a(BF+8*(step%2)+4*rt,4)}, v{VLIN} offset:{1024*step+32768*rt}" for rt in range(2)]
    put(k, a_reads(0))
    k.wait("hw"); k("s_barrier")
    stamp(k, "mod")
    put(k, b_reads(0))
    def g_mfma(buf, first=False):
        return [f"v_mfma_f32_32x32x16_bf16 {v(ACC+32*a_+16*rt,16)}, {a(AF+16*buf+4*a_,4)}, {a(BF+8*buf+4*rt,4)}, {'0' if first else v(ACC+32*a_+16*rt,16)}"
                for a_ in range(4) for rt in range(2)]
    def gbody(which, c, extra):
        sc = Sched(64)
        mf = []
        if c < 3: sc.pin(57, L(lambda: (k.wait("hw"), k("s_barrier")), 8))
        for i in range(8):
            st = 8 * c + i
            if st + 1 < 32:
                sc.add(a_reads(st + 1), 8 * i, 8 * i + 5, prio=1)
                sc.add(b_reads(st + 1), 8 * i + (1 if i == 7 else 0), 8 * i + 4, prio=1)
                sc.pin(8 * i + 7, L(lambda st=st: k.wait_regs(a(AF + 16 * ((st + 1) % 2), 16), a(BF + 8 * ((st + 1) % 2), 8))), end=True)
            if st + 4 < 32: sc.add(w_dma(st + 4, which), 8 * i, 8 * i + 8)
            mf += g_mfma(i % 2, st == 0)
        extra(sc)
        for m, f_ in zip(mf, sc.run()): k(m); put(k, f_)
    def qepi(a_):
        return [f"v_cvt_pk_bf16_f32 v{Q+16*a_+8*(j//4)+4*rt+j%4}, v{ACC+32*a_+16*rt+2*j}, v{ACC+32*a_+16*rt+2*j+1}" for rt in range(2) for j in range(8)]
    def qx(c):
        def f(sc):
            if c < 3:
                m0_ = modulate(c + 1, 0, CN, UT, False); m1_ = modulate(c + 1, 1, CN, UT, False)
                if P["BURST"]:
                    wr = [x for x in m0_ + m1_ if callable(x)]
                    m0_ = [x for x in m0_ if not callable(x)]; m1_ = [x for x in m1_ if not callable(x)]
                    sc.add(cread(0, CN) + m0_[:-4] + cread(1, CN) + m0_[-4:] + m1_ + vmadv, 0, P["BURST"])
                    sc.pin(P["BURST"], wr)
                else:
                    sc.add(cread(0, CN) + m0_[:-5] + cread(1, CN) + m0_[-5:] + m1_ + vmadv, 0, 55)
            else:
                sc.pin(0, L(lambda: k.srd(16, 42, 8 * 2048 * 256), 16))
                if not P["KEARLY"]: sc.add([x for d in kfirst for x in d], 32, 44)
                tab = []
                for p in range(8):
                    tab.append([f"s_add_u32 s{sT1}, s{sR8}, {p}", f"s_and_b32 s{sT1}, s{sT1}, 7", f"s_lshr_b32 s{sT2}, s{sT1}, 1", f"s_mul_i32 s{sT2}, s{sT2}, 6"])
                    tab.append([f"s_add_u32 s{sT1}, s{sT1}, s{sT2}", f"s_lshl_b32 s{TAB+p}, s{sT1}, 14"])
                sc.add(tab + [[f"s_lshl_b32 s{sT0}, s{sG}, 19", f"s_add_u32 s{sT0}, s{sT0}, s{sW256}"]] + w_voffs(10, sT0), 33, 56)
                sc.pin(56, L(lambda: (k.wait_all(), k("s_barrier")), 8))
                sc.add([rdK(f, f, L_K + 16384 + 8192) for f in range(4)], 56, 60, prio=1)
                sc.add(kv_dma("V", L_V, sO0) + kv_dma("V", L_V + 8192, sO1), 57, 62)
                sc.add(qepi(0), 61, 64)
        return f
    for c in range(4): gbody("Q", c, qx(c))
    stamp(k, "qgemm")
    def qk(f, s_, qt, buf, zero):
        d = v(S + 32 * buf + 16 * qt, 16)
        c = d if s_ else ("0" if zero else v(CI + 16 * qt, 16))
        return f"v_mfma_f32_32x32x16_bf16 {d}, {a(fr(f),4)}, {v(Q+8*s_+4*qt,4)}, {c}"
    def pv(f, i, qt, buf, zero=False):
        d = a(O + 32 * (i % 4) + 16 * qt, 16)
        return f"v_mfma_f32_32x32x16_bf16 {d}, {a(fr(f),4)}, {v(S+32*buf+16*qt+8*(i//4),4)}, {'0' if zero else d}"
    def sreg(buf, e): return S + 32 * buf + 16 * ((e >> 3) & 1) + 8 * (e >> 4) + (e & 7)
    def sm(buf, e, addci=False):
        o = []
        if e < 32:
            if addci: o.append(f"v_add_f32 v{sreg(buf,e)}, v{sreg(buf,e)}, v{CI+16*((e>>3)&1)}")
            o.append(f"v_exp_f32 v{sreg(buf,e)}, v{sreg(buf,e)}")
        if e >= 1:
            p = e - 1
            o.append(f"v_add_f32 v{LS+((p>>3)&1)}, v{LS+((p>>3)&1)}, v{sreg(buf,p)}")
            if p & 1:
                o.append(f"v_cvt_pk_bf16_f32 v{sreg(buf,p&~7)+(p&7)//2}, v{sreg(buf,p-1)}, v{sreg(buf,p)}")
        return o
    def wgrp(j): return L(lambda: k.wait_regs(a(FR + 16 * (j % 2), 16)))
    def qk0(epi):
        wgrp(0)()
        for s_ in range(8):
            ep = qepi(s_ // 2 + 1)[8 * (s_ & 1):8 * (s_ & 1) + 8] if epi and s_ < 6 else []
            rd = [rdK(f + 4, f + 4, L_K + 16384 + 8192) if f < 4 else rdK(f + 4, f - 4, L_K) for f in ([2*s_, 2*s_+1] if s_ < 2 else [2*s_-4, 2*s_-3] if 4 <= s_ < 6 else [])]
            k(qk(s_, s_, 0, 0, True)); put(k, rd[:1]); put(k, ep[:4])
            k(qk(s_, s_, 1, 0, True)); put(k, rd[1:]); put(k, ep[4:])
            if s_ % 4 == 3: wgrp(s_ // 4 + 1)()
    qk0(True)
    k(f"s_cmp_lg_u32 s{sFB}, 0"); k("s_cbranch_scc1 FB_MAX")
    if not P.get("OST"): stamp(k, "qk0")
    k.label("IT0")
    def maxops(buf, dst):
        o = []
        for qt in range(2):
            b = S + 32 * buf + 16 * qt; t = dst + qt
            o.append(f"v_max3_f32 v{t}, v{b}, v{b+1}, v{b+2}")
            for i in range(3, 15, 2): o.append(f"v_max3_f32 v{t}, v{t}, v{b+i}, v{b+i+1}")
            o.append(f"v_max_f32 v{t}, v{t}, v{b+15}")
        return [x for pr in zip(o[:8], o[8:]) for x in pr]
    def xhalf_max(t, t2):
        return [f"v_mov_b32 v{t2}, v{t}", f"v_mov_b32 v{t2+1}, v{t+1}", f"v_permlane32_swap_b32 v{t}, v{t2}", f"v_permlane32_swap_b32 v{t+1}, v{t2+1}",
                f"v_max_f32 v{t}, v{t}, v{t2}", f"v_max_f32 v{t+1}, v{t+1}, v{t2+1}"]
    def flat(x): return [y for z in x for y in z]
    def iteration(par, first=False, last=False, extra=None):
        hb = 16384 * par; nb = 16384 * (1 - par)
        mf = []
        phs = [0, 1, 3] if last else [0, 1, 2, 3]
        n = 16 * len(phs)
        sc = Sched(n)
        frs = []
        for q_, ph in enumerate(phs):
            for g in range(16):
                f = 8 * q_ + g // 2; qt = g & 1; i = g // 2
                if ph == 0: mf.append(qk(f, i, qt, 1, first))
                elif ph == 1: mf.append(pv(f, i, qt, 0, first and i < 4))
                elif ph == 2: mf.append(qk(f, i, qt, 0, False))
                else: mf.append(pv(f, i, qt, 1))
            for i in range(8): frs.append((ph, i))
        ng = len(frs) // 4
        for j in range(1, ng):
            rd = []
            for f in range(4 * j, 4 * j + 4):
                ph, i = frs[f]
                rd += rdK(f, i, hb + 8192 * (ph // 2)) if ph % 2 == 0 else rdV(f, i, hb + 8192 * (ph // 2))
            g0 = 8 * (j - 1)
            if first and j == 2: sc.pin(g0 + 1, L(lambda: (k.wait("V"), k("s_barrier")), 8)); g0 += 1
            sc.add(rd, g0, 8 * (j - 1) + 6, prio=1)
            sc.pin(8 * j - 1, wgrp(j), end=True)
        dm = [nxt(sO1, sO2), kv_dma("V", L_V + nb, sO2), kv_dma("K", L_K + nb, sO1), kv_dma("V", L_V + nb + 8192, sO1), nxt(sO2, sO1), kv_dma("K", L_K + nb + 8192, sO2)]
        dm = [dm[0]] + dm[1] + dm[2] + dm[3] + [dm[4]] + dm[5]
        if first:
            sc.add(dm, 24, 44)
            mx = maxops(0, MX) + xhalf_max(MX, MX + 2)
            mx += [[f"s_cmp_lg_u32 s{sFB}, 0", "s_cselect_b64 vcc, -1, 0"]]
            mx += [f"v_sub_f32 v{CI+16*qt}, {f32(-float(P['BIAS']))}, v{MX+qt}" for qt in range(2)]
            mx += [f"v_cndmask_b32 v{CI+16*qt}, v{CI+16*qt}, v{MX+4+qt}, vcc" for qt in range(2)]
            sc.add(mx + flat(sm(0, e, True) for e in range(17)), 1, 16)
            sc.add(flat(sm(0, e, True) for e in range(17, 33)), 16, 23)
            sc.add([f"v_mov_b32 v{CI+16*qt+i}, v{CI+16*qt}" for qt in range(2) for i in range(1, 16)], 23, 31)
            sc.add(flat(sm(1, e, True) for e in range(33)), 23, 54)
            sc.add(flat(sm(0, e) for e in range(12)), 54, 64)
        else:
            for e in range(12, 33): sc.pin(e - 12, sm(0, e))
            if last:
                sc.add(flat(sm(1, e) for e in range(17)), 19, 31)
                sc.add(flat(sm(1, e) for e in range(17, 33)), 31, 39)
            else:
                sc.add(dm, 1, 40)
                for e in range(33): sc.pin(20 + e, sm(1, e))
                for e in range(12): sc.pin(52 + e, sm(0, e))
        if not last:
            sc.pin(56, L(lambda: (k.wait("K", "V"), k("s_barrier")), 8))
            sc.add([rdK(f, f, nb) for f in range(4)], 56, 61, prio=1)
            sc.pin(63, wgrp(0), end=True)
        if extra: extra(sc)
        for m, f_ in zip(mf, sc.run()): k(m); put(k, f_)
    def x_first(sc):
        pf = [[f"s_lshl_b32 s{sT1}, s{sROT}, 14", f"s_lshl_b32 s{sT2}, s{sG}, 19", f"s_add_u32 s{sT1}, s{sT1}, s{sT2}"], [f"s_lshl_b32 s{sT2}, s{sW}, {12+lg2(G)}", f"s_add_u32 s{sT1}, s{sT1}, s{sT2}"]]
        for n in range(4 * G):
            pf.append([f"buffer_load_dwordx4 {a(192+4*(n%16),4)}, v{VL16}, s[20:23], s{sT1} offen offset:{1024*(n%4)}"] + ([f"s_add_u32 s{sT1}, s{sT1}, 4096"] if n % 4 == 3 else []))
        sc.add(pf, 44, 56)
    iteration(0, first=True, extra=x_first)
    if not P.get("OST"): stamp(k, "it0")
    i0 = len(k.items)
    k.loop(sST, 3, lambda: (iteration(1), iteration(0)), align=3)
    X = P.get("DBGX", 0)
    if X:
        def keep(it):
            if it.kind in ("label", "raw"): return True
            if X & 1 and it.mn == "s_barrier": return False
            if X & 2 and it.mn == "s_waitcnt": return False
            if X & 4 and it.kind in ("valu", "trans"): return False
            if X & 8 and it.kind == "vmem": return False
            if X & 16 and it.kind == "ds": return False
            if X & 32 and it.kind == "trans": return False
            if X & 64 and it.kind == "valu": return False
            return True
        k.items[i0:] = [it for it in k.items[i0:] if keep(it)]
        k.wait_all()
    if not P.get("OST"): stamp(k, "it1-6")
    OM = MX + 4
    def finalize(dt):
        o = []
        for qt in range(2):
            b = Q + 16 * qt; pk_ = Q + 32 + 8 * qt
            o += [f"v_accvgpr_read_b32 v{b+i}, a{O+32*dt+16*qt+i}" for i in range(16)]
            o += [f"v_maximum3_f32 v{OM+qt}, |v{b+i}|, |v{b+i+1}|, v{OM+qt}" for i in range(0, 16, 2)]
            o += [f"v_mul_f32 v{b+i}, v{b+i}, v{RL+qt}" for i in range(16)]
            for sp in range(2):
                o += [f"v_cvt_pk_bf16_f32 v{pk_+4*sp+j}, v{b+8*sp+2*j}, v{b+8*sp+2*j+1}" for j in range(4)]
                o.append(L(lambda sp=sp, qt=qt, pk_=pk_: k(f"ds_write_b128 v{HW+sp}, {v(pk_+4*sp,4)} offset:{32768*qt+8192*dt}", token="hw"), 22, "d"))
        return o
    f0 = finalize(0)
    def x_last(sc):
        sc.add(flat(w_dma(s_, "O") for s_ in range(4)), 0, 30)
        fin = [f"v_mov_b32 v{MX}, v{LS}", f"v_mov_b32 v{MX+1}, v{LS+1}", f"v_mov_b32 v{OM}, 0", f"v_mov_b32 v{OM+1}, 0",
               f"v_permlane32_swap_b32 v{LS}, v{MX}", f"v_permlane32_swap_b32 v{LS+1}, v{MX+1}",
               f"v_add_f32 v{LS}, v{LS}, v{MX}", f"v_add_f32 v{LS+1}, v{LS+1}, v{MX+1}",
               f"v_rcp_f32 v{RL}, v{LS}", f"v_rcp_f32 v{RL+1}, v{LS+1}", f"v_max_f32 v{MX+6}, v{LS}, v{LS+1}"]
        adr = []
        for sp in range(2):
            adr += [[f"s_lshl_b32 s56, s{sW}, 1", f"s_add_u32 s56, s56, {sp}", f"s_sub_u32 s56, s56, s{sR8}"], [f"s_and_b32 s56, s56, 7",
                    f"s_lshl_b32 s56, s56, 10", f"v_add_u32 v{HW+sp}, s56, v{VLIN}"]]
        sc.add(adr, 0, 8)
        sc.add(fin, 39, 43)
        sc.pin(40, L(lambda: k("s_barrier")))
        sc.add(a_reads(0), 40, 46, prio=1)
        sc.add(f0[:30], 43, 48)
    iteration(1, last=True, extra=x_last)
    stamp(k, "it7")
    put(k, f0[30:])
    k.wait("hw"); k("s_barrier")
    put(k, b_reads(0))
    stamp(k, "owrite")
    def ox(c):
        def f(sc):
            if c < 3 and P["BURST"]:
                fz = finalize(c + 1)
                sc.add([x for x in fz if not callable(x)], 1, 46 if c == 2 else P["BURST"])
                sc.pin(P["BURST"], [x for x in fz if callable(x)])
            elif c < 3: sc.add(finalize(c + 1), 1, 48 if c == 2 else 55)
            if c == 2:
                chk = [f"v_maximum3_f32 v{MX+7}, v{OM}, v{OM+1}, v{MX+6}", f"v_min_f32 v{OM}, v{OM}, v{OM+1}",
                       f"v_cmp_ngt_f32 vcc, {f32(2.0**120)}, v{MX+7}", "s_mov_b64 s[56:57], vcc",
                       f"v_cmp_gt_f32 vcc, {f32(2.0**-90 if not P['FORCE_FB'] else 2.0**100)}, v{OM}",
                       ["s_or_b64 s[56:57], s[56:57], vcc", f"s_cselect_b32 s{sT1}, 1, 0", f"v_mov_b32 v{MX}, s{sT1}"],
                       [f"s_lshl_b32 s{sT1}, s{sW}, 2", f"v_mov_b32 v{MX+1}, s{sT1}"],
                       L(lambda: k(f"ds_write_b32 v{MX+1}, v{MX} offset:{L_K}", token="hw"), 4, "d"), f"v_mov_b32 v{MX+2}, 0"]
                if P["BURST"]: sc.add(chk[:-2] + chk[-1:], 46, P["BURST"]); sc.pin(P["BURST"], chk[-2])
                else: sc.add(chk, 48, 56)
            if c == 3:
                if P["PF1"]:
                    NA = P["F1R"] // 2; Wd_ = 3584 // NA; nl = (Wd_ + 1023) // 1024; per = Wd_ // nl // 16
                    pf = [[f"v_min_u32 v{tm}, {per-1}, v{LN_}", f"v_lshlrev_b32 v{tm}, 4, v{tm}"],
                          [f"s_lshr_b32 s56, s2, 3", f"s_lshl_b32 s56, s56, 2", f"s_add_u32 s56, s56, s{sW}"], [f"s_mul_i32 s56, s56, {4*3584}",
                           f"s_and_b32 s57, s2, {NA-1}"], [f"s_mul_i32 s57, s57, {Wd_}", f"s_add_u32 s56, s56, s57"],
                          L(lambda: k.srd(12, 68, 512 * 3584), 16), L(lambda: k.srd(16, 70, 512 * 3584), 16)]
                    n = 0
                    for r in range(4):
                        for l_ in range(nl):
                            for srd in (12, 16):
                                pf.append(f"buffer_load_dwordx4 {a(192+4*(n%16),4)}, v{tm}, s[{srd}:{srd+3}], s56 offen offset:{l_*per*16}"); n += 1
                        pf.append(f"s_add_u32 s56, s56, 3584")
                    sc.add(pf[:6], 8, 32); sc.add(pf[6:], 32, 56)
                sc.pin(5, f"ds_read_b128 {v(STT,4)}, v{MX+2} offset:{L_K}")
                sc.pin(14, [f"v_or3_b32 v{STT}, v{STT}, v{STT+1}, v{STT+2}", f"v_or_b32 v{STT}, v{STT}, v{STT+3}"])
                sc.pin(22, f"v_readfirstlane_b32 s{sT2}, v{STT}")
                sc.pin(38, [f"s_lshl_b32 s{sT0}, s{sG}, 21", f"s_lshl_b32 s{sT1}, s{sRB}, 16", f"s_add_u32 s{sT0}, s{sT0}, s{sT1}"])
                sc.pin(46, [f"s_lshl_b32 s{sT1}, s{sW}, 13", f"s_add_u32 s{sT0}, s{sT0}, s{sT1}", f"s_add_u32 s{sT0}, s{sT0}, {WS_P:#x}"])
                sc.pin(54, [f"s_andn2_b32 s{sT2}, s{sT2}, s{sFB}", "s_cbranch_scc1 FALLBACK"])
        return f
    i0 = len(k.items)
    for c in range(4):
        gbody("O", c, ox(c))
        if P.get("OST") and c < 3: stamp(k, f"o{c}")
    X = P.get("DBGO", 0)
    if X:
        def keep(it):
            if it.kind in ("label", "raw"): return True
            if it.mn.startswith("s_cbranch"): return False
            if X & 1 and it.mn == "s_barrier": return False
            if X & 2 and it.mn == "s_waitcnt" and "vmcnt" in it.text: return False
            if X & 4 and it.kind in ("valu", "trans") and not it.mn.startswith(("v_min_u32", "v_lshlrev")): return False
            if X & 8 and it.kind == "vmem": return False
            if X & 16 and it.mn.startswith("ds_write"): return False
            if X & 32 and it.mn == "s_waitcnt" and "lgkmcnt" in it.text: return False
            return True
        k.items[i0:] = [it for it in k.items[i0:] if keep(it)]
        k.wait_all()
    stamp(k, "ogemm")
    for a_ in range(4):
        for rt in range(2):
            k(f"s_add_u32 s{sT1}, s{sT0}, {32768*rt + 2048*a_}")
            b = ACC + 32 * a_ + 16 * rt
            for sp in range(2):
                for j in range(4 * sp, 4 * sp + 4): k(f"v_cvt_pk_bf16_f32 v{Q+16*a_+8*rt+j}, v{b+2*j}, v{b+2*j+1}")
                k(f"buffer_store_dwordx4 {v(Q+16*a_+8*rt+4*sp,4)}, v{VL16}, s[24:27], s{sT1} offen offset:{1024*sp}" + ["", " nt", " sc1", " sc0 sc1"][P["PST"]])
    stamp_flush(k, 1)
    k.label("END_attn"); k("s_endpgm")
    k.label("FALLBACK")
    k.wait_all(); k("s_barrier")
    k(f"s_mov_b32 s{sFB}, 1")
    k("s_nop 15")
    k("s_branch RESTART")
    k.label("FB_MAX")
    k.wait_all(); k("s_barrier")
    k(f"v_mov_b32 v{MX+4}, 0xff800000"); k(f"v_mov_b32 v{MX+5}, 0xff800000")
    def fbody():
        put(k, kv_dma("K", L_K, sO0) + nxt(sO0, sO0)); k.wait("K"); k("s_barrier")
        for s_ in range(8): put(k, rdK(s_, s_, L_K))
        for s_ in range(8):
            for qt in range(2): k(qk(s_, s_, qt, 0, True))
        put(k, maxops(0, MX))
        k(f"v_max_f32 v{MX+4}, v{MX+4}, v{MX}"); k(f"v_max_f32 v{MX+5}, v{MX+5}, v{MX+1}")
        k("s_barrier")
    k.loop(sST, 16, fbody)
    put(k, xhalf_max(MX + 4, MX + 2))
    for qt in range(2): k(f"v_sub_f32 v{MX+4+qt}, 0, v{MX+4+qt}")
    put(k, kfirst)
    k.wait_all(); k("s_barrier")
    for f in range(4): put(k, rdK(f, f, L_K + 16384 + 8192))
    qk0(False)
    k.wait_all()
    k("s_branch IT0")
    return k

from gen5_ffn import gen_ffn1, gen_ffn2

HEADER = open('adaLN_cond__sliding_block_cached__geglu_ffn__prompt.s.ref').read().split("; Override launch")[0]

if __name__ == "__main__":
    out = sys.argv[1] if len(sys.argv) > 1 else "k.s"
    me = sys.modules[__name__]
    ks = [gen_prep(), gen_attn(), gen_ln2(), gen_ffn1(me), gen_ffn2(me)]
    ks[-1].label("CODE_END")
    txt = emit(ks, header=HEADER)
    open(out, "w").write(txt)
    json.dump([[k.name, k.grid, k.block//64, k.stamps] for k in ks], open(out[:-2]+".json","w"))
    for k in ks: print(k.name, "regs(v,a,s)", k.used, "nops", k.n_nops, "misal", k.n_mis, "instrs", len(k.items))
```

```python
import math
from asmlib import *

def gen_ffn1(M):
    P = M.P; f32 = M.f32; stamp = M.stamp
    NS = 5
    SB = 28672 + 256
    UOFF = 14336 + 128
    k = Kernel("ffn1_kernel", 256, 256, NS * SB, vgpr=128, agpr=256, sgpr=56)
    HB = 0; AC = 128; AF = 8; VD = 64; VA = 71; VL16 = 72; TT = 80
    sW, sFS, sRB, sT0, sT1, sKS, sST = 28, 29, 30, 31, 32, 33, 34
    k("s_cmp_ge_u32 s2, 256"); k("s_cbranch_scc1 END_ffn1")
    M.stamp_begin(k)
    k(f"s_load_dwordx4 s[40:43], s[0:1], {M.A_WG}")
    k(f"s_load_dwordx2 s[44:45], s[0:1], {M.A_WS}")
    k(f"s_load_dwordx2 s[46:47], s[0:1], {M.A_WD}")
    M.wave_id(k, sW, TT)
    k(f"v_and_b32 v{TT}, 63, v0"); k(f"v_lshlrev_b32 v{VL16}, 4, v{TT}")
    R = P["F1R"]
    M.split2(k, 2, sFS, sRB, 32 // R, 16, sT0, sKS)
    if R >= 8: k(f"s_and_b32 s{sKS}, s{sKS}, 7")
    else: k(f"s_lshl_b32 s{sKS}, s{sKS}, {M.lg2(8//R)}")
    if not P.get("F1ROT", 1): k(f"s_mov_b32 s{sKS}, 0")
    k(f"s_cmp_lt_u32 s{sW}, 2")
    k(f"s_cselect_b32 s35, 0, {UOFF}")
    k("s_cselect_b32 s8, s40, s42"); k("s_cselect_b32 s9, s41, s43"); k("s_and_b32 s9, s9, 0xffff")
    k(f"s_mov_b32 s10, {512*3584}"); k("s_mov_b32 s11, 0x20000")
    k.srd(24, 44, M.WS_BYTES)
    k(f"s_and_b32 s{sT0}, s{sW}, 1"); k(f"s_mul_i32 s{sT1}, s{sT0}, 7168"); k(f"s_add_u32 s35, s35, s{sT1}")
    k(f"s_mul_i32 s{sT0}, s{sT0}, 448")
    k(f"s_mul_i32 s36, s{sFS}, 224")
    k("s_mov_b32 s37, 4682")
    for n in range(7):
        k(f"v_add_u32 v{TT+1}, s{sT0}, v{TT}"); k(f"v_add_u32 v{TT+1}, {64*n}, v{TT+1}")
        k(f"v_mul_u32_u24 v{TT+2}, s37, v{TT+1}"); k(f"v_lshrrev_b32 v{TT+2}, 16, v{TT+2}")
        k(f"v_mul_u32_u24 v{TT+3}, 14, v{TT+2}"); k(f"v_sub_u32 v{TT+3}, v{TT+1}, v{TT+3}")
        k(f"v_mul_u32_u24 v{TT+2}, 3584, v{TT+2}"); k(f"v_lshl_add_u32 v{TT+2}, v{TT+3}, 4, v{TT+2}")
        k(f"v_add_u32 v{VD+n}, s36, v{TT+2}")
        if n % 4: k(f"v_subrev_u32 v{VD+n}, {1024*(n%4)}, v{VD+n}")
    def dma(slot):
        o = []
        for n in range(7):
            pre = []
            if n == 0: pre = [f"s_mul_i32 s{sT0}, s{sKS}, {64*3584}", f"s_add_u32 m0, s35, {SB*slot}", f"s_add_u32 s{sKS}, s{sKS}, 1", f"s_and_b32 s{sKS}, s{sKS}, 7"]
            if n == 4: pre = [f"s_add_u32 m0, s35, {SB*slot+4096}"]
            o.append(pre + [lambda n=n: k(f"buffer_load_dwordx4 v{VD+n}, s[8:11], s{sT0} offen offset:{1024*(n%4)} lds", token=f"W{slot}")])
        return o
    k(f"s_lshl_b32 s{sT1}, s{sRB}, 2"); k(f"s_add_u32 s{sT1}, s{sT1}, s{sW}"); k(f"s_lshl_b32 s{sT1}, s{sT1}, 15")
    k(f"s_add_u32 s38, s{sT1}, {M.WS_H2:#x}")
    k(f"s_mov_b32 s39, s{sKS}")
    def hload(st):
        o = [[f"s_lshl_b32 s{sT1}, s39, 12", f"s_add_u32 s{sT1}, s{sT1}, s38", "s_add_u32 s39, s39, 1", "s_and_b32 s39, s39, 7"]]
        for j in range(4):
            o.append(f"buffer_load_dwordx4 {a(HB+16*st+4*j,4)}, v{VL16}, s[24:27], s{sT1} offen offset:{1024*j}")
        return [o[0] + [o[1]]] + o[2:]
    M.put(k, dma(0)); M.put(k, hload(0)); M.put(k, dma(1)); M.put(k, hload(1)); M.put(k, dma(2)); M.put(k, hload(2))
    r_, c2, gn, h_, tm = TT + 4, TT + 5, TT + 6, TT + 7, TT + 8
    M.lane_tr_parts(k, TT, r_, c2, gn, h_, tm)
    k(f"v_lshl_add_u32 v{tm}, v{h_}, 3, v{r_}"); k(f"v_mul_u32_u24 v{VA}, 224, v{tm}")
    k(f"v_mul_u32_u24 v{tm}, {UOFF}, v{gn}"); k(f"v_add_u32 v{VA}, v{VA}, v{tm}"); k(f"v_lshl_add_u32 v{VA}, v{c2}, 3, v{VA}")
    k(f"v_add_u32 v{VA+2}, {2*SB}, v{VA}"); k(f"v_add_u32 v{VA+3}, {4*SB}, v{VA}")
    VAs = [VA, VA, VA + 2, VA + 2, VA + 3]; VAo = [0, SB, 0, SB, 0]
    def reads(st, ks, buf):
        slot = st % NS
        return [f"ds_read_b64_tr_b16 {v(AF+28*buf+4*t+2*u,2)}, v{VAs[slot]} offset:{VAo[slot]+224*(16*ks+4*u)+32*t}" for t in range(7) for u in range(2)]
    def mf(st, ks, buf):
        first = st == 0 and ks == 0
        return [f"v_mfma_f32_32x32x16_bf16 {a(AC+16*t,16)}, {v(AF+28*buf+4*t,4)}, {a(HB+16*st+4*ks,4)}, {'0' if first else a(AC+16*t,16)}" for t in range(7)]
    stamp(k, "setup")
    k.wait("W0"); k("s_barrier")
    stamp(k, "W0")
    for x in reads(0, 0, 0): k(x)
    step = 0
    for st in range(8):
        ld = (dma((st + 3) % NS) + hload(st + 3)) if st + 3 < 8 else []
        if P["PF2"] and st in (5, 6):
            nA = 32 // P["F2R"]; NA = 8 // nA; rows = 8 // nA
            nin = 14 // rows
            pf = [[f"buffer_load_dwordx4 {v(96+4*(n%7),4)}, v{TT+1}, s[12:15], s{sT1} offen", f"s_add_u32 s{sT1}, s{sT1}, {1024*rows}"] for n in range(nin)]
            if st == 5:
                pre = [lambda: k.srd(12, 46, 1792 * 1024),
                       f"v_lshrrev_b32 v{TT+1}, {M.lg2(8*nA)}, v{TT}", f"v_lshlrev_b32 v{TT+1}, 10, v{TT+1}", f"v_and_b32 v{TT+2}, {8*nA-1}, v{TT}", f"v_lshl_add_u32 v{TT+1}, v{TT+2}, 4, v{TT+1}",
                       f"s_lshr_b32 s{sT1}, s2, 3", f"s_lshl_b32 s{sT1}, s{sT1}, 2", f"s_add_u32 s{sT1}, s{sT1}, s{sW}", f"s_mul_i32 s{sT1}, s{sT1}, {14*1024}",
                       f"s_and_b32 s{sT0}, s2, {NA-1}", f"s_mul_i32 s{sT0}, s{sT0}, {128*nA}", f"s_add_u32 s{sT1}, s{sT1}, s{sT0}"]
                ld = [pre] + pf[:7]
            else:
                ld = [[x.replace("v[" , "v[", 1) for x in p_] for p_ in pf[7:]]
                ld = [[f"buffer_load_dwordx4 {a(240+4*(n%4),4) if n < 4 else v(76+0,4) if n == 4 else v(0+4*(n-5),4)}, v{TT+1}, s[12:15], s{sT1} offen", f"s_add_u32 s{sT1}, s{sT1}, {1024*rows}"] for n in range(len(pf[7:]))]
        for ks in range(4):
            nst, nks = (st, ks + 1) if ks < 3 else (st + 1, 0)
            fill = [[] for _ in range(7)]
            if nst < 8:
                if nks == 0: fill[0].append(lambda nst=nst: (k.wait(f"W{nst % NS}"), k("s_barrier")))
                for n, x in enumerate(reads(nst, nks, (step + 1) % 2)): fill[n * 5 // 14].append(x)
            if ks < 3:
                for n, x in enumerate(ld[4 * ks:4 * ks + 4]): fill[2 * n].append(x)
            for m, f_ in zip(mf(st, ks, step % 2), fill): k(m); M.put(k, f_)
            step += 1
        if st % 2: stamp(k, f"st{st}")
    K0_ = -2 * math.sqrt(2 / math.pi) * M.LOG2E
    k(f"s_mov_b32 s36, {f32(K0_*0.044715)}"); k("s_mov_b32 s37, s36"); k(f"v_mov_b32 v{TT+2}, {f32(K0_)}"); k(f"v_mov_b32 v{TT+3}, {f32(K0_)}")
    k(f"s_lshl_b32 s{sT1}, s{sRB}, 2"); k(f"s_add_u32 s{sT1}, s{sT1}, s{sW}"); k(f"s_mul_i32 s{sT1}, s{sT1}, {224*512}")
    k(f"s_mul_i32 s{sT0}, s{sFS}, {14*512}"); k(f"s_add_u32 s{sT1}, s{sT1}, s{sT0}"); k(f"s_add_u32 s{sT1}, s{sT1}, {M.WS_ACT:#x}")
    k(f"s_add_u32 s{sT0}, s{sT1}, 4096")
    for t in range(7):
        G = 8 + 24 * (t % 2)
        for r in range(16): k(f"v_accvgpr_read_b32 v{G+r}, a{AC+16*t+r}")
        for r in range(0, 8, 2): k(f"v_pk_mul_f32 {v(G+16+r,2)}, {v(G+r,2)}, {v(G+r,2)}")
        for r in range(0, 8, 2): k(f"v_pk_fma_f32 {v(G+16+r,2)}, {v(G+16+r,2)}, s[36:37], {v(TT+2,2)}")
        for r in range(0, 8, 2): k(f"v_pk_mul_f32 {v(G+16+r,2)}, {v(G+16+r,2)}, {v(G+r,2)}")
        for r in range(8): k(f"v_exp_f32 v{G+16+r}, v{G+16+r}")
        for r in range(0, 8, 2): k(f"v_pk_mul_f32 {v(G+r,2)}, {v(G+r,2)}, {v(G+8+r,2)}")
        for r in range(0, 8, 2): k(f"v_pk_add_f32 {v(G+16+r,2)}, {v(G+16+r,2)}, 1.0 op_sel_hi:[1,0]")
        for r in range(8): k(f"v_rcp_f32 v{G+16+r}, v{G+16+r}")
        for r in range(0, 8, 2): k(f"v_pk_mul_f32 {v(G+r,2)}, {v(G+r,2)}, {v(G+16+r,2)}")
        D = 56 + 4 * (t % 2)
        for j in range(4): k(f"v_cvt_pk_bf16_f32 v{D+j}, v{G+2*j}, v{G+2*j+1}")
        k(f"buffer_store_dwordx4 {v(D,4)}, v{VL16}, s[24:27], s{sT1 if t<4 else sT0} offen offset:{1024*(t%4)}" + ["", " nt", " sc1", " sc0 sc1"][P["AST"]])
    M.stamp_flush(k, 2)
    k.label("END_ffn1"); k("s_endpgm")
    return k

def gen_ffn2(M):
    P = M.P; f32 = M.f32; stamp = M.stamp; rnd = M.rnd
    NSL = 14
    k = Kernel("ffn2_kernel", 256, 256, 4 * NSL * 2048, vgpr=256, agpr=64, sgpr=56)
    BFR = 16; AF = 128
    VD0, VD1, VW, VL16, TT = 2, 3, 4, 6, 144
    sW, sNB, sRB, sT0, sT1, sKS, sRING, sAB = 28, 29, 30, 31, 32, 33, 34, 35
    k("s_cmp_ge_u32 s2, 256"); k("s_cbranch_scc1 END_ffn2")
    M.stamp_begin(k)
    k(f"s_load_dwordx2 s[40:41], s[0:1], {M.A_WD}")
    k(f"s_load_dwordx2 s[42:43], s[0:1], {M.A_OUT}")
    k(f"s_load_dwordx2 s[44:45], s[0:1], {M.A_WS}")
    M.wave_id(k, sW, TT)
    k(f"v_and_b32 v{TT}, 63, v0"); k(f"v_lshlrev_b32 v{VL16}, 4, v{TT}")
    R = P["F2R"]
    M.split2(k, 2, sNB, sRB, 32 // R, 32, sT0, sKS)
    k.srd(8, 40, 1792 * 1024); k.srd(12, 42, 2048 * 1024); k.srd(24, 44, M.WS_BYTES)
    stamp(k, "karg")
    k(f"v_lshrrev_b32 v{TT+1}, 3, v{TT}")
    k(f"v_bfe_u32 v{TT+2}, v{TT}, 4, 1"); k(f"v_lshlrev_b32 v{TT+2}, 2, v{TT+2}")
    k(f"v_and_b32 v{TT+3}, 7, v{TT}"); k(f"v_xor_b32 v{TT+3}, v{TT+3}, v{TT+2}"); k(f"v_lshlrev_b32 v{TT+3}, 4, v{TT+3}")
    k(f"s_lshl_b32 s{sT0}, s{sNB}, 7")
    k(f"v_lshl_add_u32 v{VD0}, v{TT+1}, 10, v{TT+3}"); k(f"v_add_u32 v{VD0}, s{sT0}, v{VD0}")
    k(f"v_add_u32 v{VD1}, {8*1024-1024}, v{VD0}")
    k(f"s_mul_i32 s{sRING}, s{sW}, {NSL*2048}")
    k(f"v_add_u32 v{VL16+1}, {224*512}, v{VL16}")
    k(f"s_lshr_b32 s{sKS}, s2, 3"); k(f"s_mul_i32 s{sKS}, s{sKS}, 7"); k(f"s_lshr_b32 s{sKS}, s{sKS}, 3")
    if not P.get("F2ROT", 1): k(f"s_mov_b32 s{sKS}, 0")
    k(f"s_mul_i32 s36, s{sW}, 28")
    k(f"s_mul_i32 s{sAB}, s{sRB}, {2*224*512}"); k(f"s_add_u32 s{sAB}, s{sAB}, {M.WS_ACT:#x}")
    def issue(i):
        sl = i % NSL
        return [[f"s_add_u32 s{sT1}, s{sKS}, s36", f"s_lshl_b32 s{sT0}, s{sT1}, 14", f"s_add_u32 m0, s{sRING}, {2048*sl}",
                 f"s_lshl_b32 s{sT1}, s{sT1}, 10", f"s_add_u32 s{sT1}, s{sT1}, s{sAB}",
                 f"buffer_load_dwordx4 v{VD0}, s[8:11], s{sT0} offen lds"],
                lambda: k(f"buffer_load_dwordx4 v{VD1}, s[8:11], s{sT0} offen offset:1024 lds", token=f"W{sl}"),
                f"buffer_load_dwordx4 {v(BFR+8*sl,4)}, v{VL16}, s[24:27], s{sT1} offen",
                [f"buffer_load_dwordx4 {v(BFR+8*sl+4,4)}, v{VL16+1}, s[24:27], s{sT1} offen",
                 f"s_add_u32 s{sKS}, s{sKS}, 1", f"s_cmp_ge_u32 s{sKS}, 28", f"s_cselect_b32 s{sKS}, 0, s{sKS}"]]
    PRE = P.get("F2PRE", 8)
    for i in range(PRE):
        M.put(k, issue(i))
        if P.get("DBG1") and i == 0:
            stamp(k, "iss0"); k.wait("W0"); stamp(k, "W0lat"); k.wait_all(); stamp(k, "A0lat")
        if P.get("DBG1") and i == 3: stamp(k, "iss3")
    r_, c2, gn, h_, tm = TT + 4, TT + 5, TT + 6, TT + 7, TT + 8
    M.lane_tr_parts(k, TT, r_, c2, gn, h_, tm)
    k(f"v_lshl_add_u32 v{tm}, v{h_}, 3, v{r_}"); k(f"v_lshlrev_b32 v{VW}, 7, v{tm}")
    k(f"v_lshl_add_u32 v{tm+1}, v{gn}, 2, v{c2}"); k(f"v_lshl_add_u32 v{VW}, v{tm+1}, 3, v{VW}")
    k(f"v_lshrrev_b32 v{tm}, 1, v{r_}"); k(f"v_lshl_add_u32 v{VW}, v{tm}, 6, v{VW}")
    k(f"v_add_u32 v{VW}, s{sRING}, v{VW}"); k(f"v_xor_b32 v{VW+1}, 64, v{VW}")
    def reads(i):
        sl = i % NSL
        k.wait(f"W{sl}")
        for a_ in range(2):
            for u in range(2):
                k(f"ds_read_b64_tr_b16 {v(AF+8*(i%2)+4*a_+2*u,2)}, v{VW+a_} offset:{2048*sl+512*u}")
    X1R, GB = 160, 176
    def epi_loads():
        k(f"s_lshl_b32 s{sT0}, s{sRB}, 1"); k(f"s_and_b32 s{sT1}, s{sW}, 1"); k(f"s_add_u32 s37, s{sT0}, s{sT1}")
        k(f"s_lshr_b32 s38, s{sW}, 1"); k(f"s_lshl_b32 s38, s38, 2"); k(f"s_lshl_b32 s{sT0}, s{sNB}, 3"); k(f"s_add_u32 s38, s38, s{sT0}")
        k(f"s_lshl_b32 s{sT0}, s37, 15"); k(f"s_lshl_b32 s{sT1}, s38, 9"); k(f"s_add_u32 s{sT0}, s{sT0}, s{sT1}"); k(f"s_add_u32 s{sT0}, s{sT0}, {M.WS_X1:#x}")
        for sp in range(2): k(f"buffer_load_dwordx4 {v(X1R+4*sp,4)}, v{VL16}, s[24:27], s{sT0} offen offset:{1024*sp}")
        k(f"v_lshlrev_b32 v{tm}, 5, v{h_}")
        k(f"s_lshl_b32 s{sT1}, s38, 5"); k(f"s_add_u32 s{sT1}, s{sT1}, {M.WS_MOD+5*2048}")
        for sp in range(2):
            for q in range(2): k(f"buffer_load_dwordx4 {v(GB+8*sp+4*q,4)}, v{tm}, s[24:27], s{sT1} offen offset:{64*sp+16*q}")
    stamp(k, "setup")
    reads(0)
    stamp(k, "first")
    for i in range(28):
        if i and i % 7 == 0: stamp(k, f"k{i}")
        if i + 1 < 28: reads(i + 1)
        iss = issue(i + PRE) if i + PRE < 28 else [[]] * 4
        n = 0
        for a_ in range(2):
            for rt in range(2):
                acc = a(32 * a_ + 16 * rt, 16)
                k(f"v_mfma_f32_32x32x16_bf16 {acc}, {v(AF+8*(i%2)+4*a_,4)}, {v(BFR+8*(i%NSL)+4*rt,4)}, {'0' if i==0 else acc}")
                M.put(k, [iss[n]]); n += 1
        if i + PRE == 28: epi_loads()
    stamp(k, "main")
    k("s_barrier")
    k(f"s_lshl_b32 s{sT0}, s{sW}, 14"); k(f"v_add_u32 v{tm+1}, s{sT0}, v{VL16}")
    for q in range(16): k(f"ds_write_b128 v{tm+1}, {a(4*q,4)} offset:{1024*q}", token="red")
    k.wait("red"); k("s_barrier")
    k(f"s_lshl_b32 s{sT0}, s{sW}, 12"); k(f"v_add_u32 v{tm+1}, s{sT0}, v{VL16}")
    R_ = 16
    for ww in range(4):
        for q in range(4): k(f"ds_read_b128 {v(R_+16*ww+4*q,4)}, v{tm+1} offset:{16384*ww+1024*q}")
    k("s_mov_b32 s39, 0xffff0000")
    for r in range(16):
        if r % 2 == 0: k(f"v_lshlrev_b32 v{96+r}, 16, v{X1R+r//2}")
        else: k(f"v_and_b32 v{96+r}, s39, v{X1R+r//2}")
    for r in range(0, 16, 2):
        k(f"v_pk_add_f32 {v(R_+r,2)}, {v(R_+r,2)}, {v(R_+16+r,2)}"); k(f"v_pk_add_f32 {v(R_+32+r,2)}, {v(R_+32+r,2)}, {v(R_+48+r,2)}")
    for r in range(0, 16, 2):
        k(f"v_pk_add_f32 {v(R_+r,2)}, {v(R_+r,2)}, {v(R_+32+r,2)}")
        k(f"v_pk_fma_f32 {v(R_+r,2)}, {v(R_+r,2)}, {v(GB+r,2)}, {v(96+r,2)}")
    for j in range(8): k(f"v_cvt_pk_bf16_f32 v{R_+32+j}, v{R_+2*j}, v{R_+2*j+1}")
    k(f"v_and_b32 v{tm}, 31, v{TT}"); k(f"v_lshlrev_b32 v{tm}, 10, v{tm}"); k(f"v_lshl_add_u32 v{tm}, v{h_}, 4, v{tm}")
    k(f"s_lshl_b32 s{sT0}, s37, 15"); k(f"s_lshl_b32 s{sT1}, s38, 4"); k(f"s_add_u32 s{sT0}, s{sT0}, s{sT1}")
    for sp in range(2): k(f"buffer_store_dwordx4 {v(R_+32+4*sp,4)}, v{tm}, s[12:15], s{sT0} offen offset:{32*sp}")
    M.stamp_flush(k, 3)
    k.label("END_ffn2"); k("s_endpgm")
    return k
```

```python
import sys, struct, math, os, json
from asmlib import *

def f32(x): return "0x%08x" % struct.unpack("<I", struct.pack("<f", x))[0]
LOG2E = 1.4426950408889634
CS = 128 ** -0.5
A_X, A_K, A_V, A_WQ, A_WO, B_X, A_WG, A_WU, A_WD, A_C, A_WM, A_OUT, A_DBG, A_WS = [8 * i for i in range(14)]
WS_MOD = 0x0
WS_ST = 0x10000
WS_P = 0x400000
WS_X1 = 0x1400000
WS_H2 = 0x1600000
WS_ACT = 0x1800000
WS_BYTES = 0x10000000
WS_DBG = 0x8000000
P = dict(STAMPS=0, G=2, ROT=1, F1R=8, F2R=8, PREF0=1, PREFC=1, PREFQ=1, PREFK=1, PORD=1, XPRE=0, TLBW=1, PBAR=3, WPOS=1, DEFER=1, SYNC=1, LFIRST=0, SLEEP=0, PSYS=0, WPRE=2, BURST=54, KEARLY=0, BIAS=100, FORCE_FB=0, PNT=0, PST=2, AST=2, PF1=1, PF2=1)
for kv in os.environ.get("GP", "").split(","):
    if kv: P[kv.split("=")[0]] = int(kv.split("=")[1])

def stamp(k, name):
    if not P["STAMPS"]: return
    i = len(k.stamps); k.stamps.append(name)
    assert i < 12
    k.sgpr = 102
    k("s_memtime s[72:73]"); k("s_memrealtime s[74:75]"); k("s_waitcnt lgkmcnt(0)")
    k(f"s_mov_b32 s{76+2*i}, s72"); k(f"s_mov_b32 s{77+2*i}, s74")
def stamp_begin(k):
    k.stamps = []
    if not P["STAMPS"]: return
    k("v_lshrrev_b32 v1, 6, v0"); k("v_readfirstlane_b32 s101, v1")
    stamp(k, "start")
def stamp_flush(k, kidx):
    if not P["STAMPS"]: return
    stamp(k, "end")
    if P["STAMPS"] == 2:
        lab = k.newlabel("NODBG")
        k("s_mov_b64 exec, -1")
        k("s_or_b32 s100, s2, s101"); k("s_cmp_lg_u32 s100, 0"); k(f"s_cbranch_scc1 {lab}")
        k(f"s_load_dwordx2 s[64:65], s[0:1], {A_WS}")
        k(f"s_load_dwordx2 s[66:67], s[0:1], {A_DBG}")
        k.srd(56, 64, 256, WS_DBG)
        n = len(k.stamps) - 1
        k(f"s_sub_u32 s100, s{76+2*n}, s76")
        k("v_mov_b32 v1, 0")
        for j, sr in enumerate([77, 77 + 2*n, 100]):
            k(f"v_mov_b32 v0, s{sr}")
            k(f"buffer_store_dword v0, v1, s[56:59], 0 offen offset:{12*kidx+4*j} sc0 sc1")
        k.wait_all()
        k("v_mbcnt_lo_u32_b32 v1, -1, 0"); k("v_mbcnt_hi_u32_b32 v1, -1, v1"); k("v_lshlrev_b32 v1, 2, v1")
        k("buffer_load_dword v0, v1, s[56:59], 0 offen sc0 sc1")
        k.srd(60, 66, 256)
        k("buffer_store_dword v0, v1, s[60:63], 0 offen")
        k.label(lab)
        return
    k(f"s_load_dwordx2 s[64:65], s[0:1], {A_WS}")
    k("s_mov_b64 exec, -1")
    k.srd(56, 64, WS_BYTES)
    k("s_lshl_b32 s100, s2, 3"); k("s_add_u32 s100, s100, s101"); k("s_lshl_b32 s100, s100, 8")
    k(f"s_add_u32 s100, s100, {WS_DBG + kidx*0x100000:#x}")
    k("v_mov_b32 v1, 0")
    for j, sr in enumerate([76 + i for i in range(2*len(k.stamps))]):
        k(f"v_mov_b32 v0, s{sr}")
        k(f"buffer_store_dword v0, v1, s[56:59], s100 offen offset:{4*j}")

def wave_id(k, sdst, vtmp):
    k(f"v_lshrrev_b32 v{vtmp}, 6, v0")
    k(f"v_readfirstlane_b32 s{sdst}, v{vtmp}")
def rowsum_8(k, val, tmp):
    k(f"v_add_f32_dpp v{val}, v{val}, v{val} row_ror:8 row_mask:0xf bank_mask:0xf")
    k(f"v_mov_b32 v{tmp}, v{val}"); k(f"v_permlane16_swap_b32 v{val}, v{tmp}"); k(f"v_add_f32 v{val}, v{val}, v{tmp}")
    k(f"v_mov_b32 v{tmp}, v{val}"); k(f"v_permlane32_swap_b32 v{val}, v{tmp}"); k(f"v_add_f32 v{val}, v{val}, v{tmp}")
def rnd(k, d, sreg): k(f"v_cvt_pk_bf16_f32 v{d}, 0, v{sreg}")
def lg2(x): return x.bit_length() - 1
def split2(k, sb, sA, sB, nA_per, nB_total, t0, t1):
    A_total = 256 // nB_total; NA = A_total // nA_per
    k(f"s_and_b32 s{t0}, s{sb}, 7"); k(f"s_lshr_b32 s{t1}, s{sb}, 3")
    k(f"s_and_b32 s{sA}, s{t0}, {NA-1}"); k(f"s_lshl_b32 s{sA}, s{sA}, {lg2(nA_per)}")
    k(f"s_and_b32 s{sB}, s{t1}, {nA_per-1}"); k(f"s_add_u32 s{sA}, s{sA}, s{sB}")
    k(f"s_lshr_b32 s{sB}, s{t0}, {lg2(NA)}"); k(f"s_lshl_b32 s{sB}, s{sB}, {lg2(32//nA_per)}")
    k(f"s_lshr_b32 s{t1}, s{t1}, {lg2(nA_per)}"); k(f"s_add_u32 s{sB}, s{sB}, s{t1}")
def lane_tr_parts(k, lane, r, c2, gn, h, tmp):
    k(f"v_bfe_u32 v{r}, v{lane}, 2, 2")
    k(f"v_and_b32 v{c2}, 1, v{lane}"); k(f"v_lshlrev_b32 v{c2}, 1, v{c2}")
    k(f"v_bfe_u32 v{tmp}, v{lane}, 1, 1"); k(f"v_or_b32 v{c2}, v{c2}, v{tmp}")
    k(f"v_bfe_u32 v{gn}, v{lane}, 4, 1")
    k(f"v_lshrrev_b32 v{h}, 5, v{lane}")

QS = CS * LOG2E
def ln_stats(k, XF):
    k(f"v_pk_add_f32 v[10:11], {v(XF,2)}, {v(XF+2,2)}")
    for e in range(4, 16, 2): k(f"v_pk_add_f32 v[10:11], v[10:11], {v(XF+e,2)}")
    k("v_add_f32 v10, v10, v11")
    def allreduce(off):
        rowsum_8(k, 10, 11)
        k(f"ds_write_b32 v9, v10 offset:{off}", token="w"); k.wait("w"); k("s_barrier")
        k(f"ds_read_b128 {v(12,4)}, v8 offset:{off}")
        k("v_add_f32 v12, v12, v13"); k("v_add_f32 v14, v14, v15"); k("v_add_f32 v10, v12, v14")
    allreduce(0)
    k(f"v_mul_f32 v58, {f32(-1/512)}, v10"); k("v_mov_b32 v59, v58")
    for e in range(0, 16, 2): k(f"v_pk_add_f32 {v(XF+e,2)}, {v(XF+e,2)}, v[58:59]")
    k(f"v_pk_mul_f32 v[10:11], {v(XF,2)}, {v(XF,2)}")
    for e in range(2, 16, 2): k(f"v_pk_fma_f32 v[10:11], {v(XF+e,2)}, {v(XF+e,2)}, v[10:11]")
    k("v_add_f32 v10, v10, v11")
    allreduce(128)
    k(f"v_mov_b32 v11, {f32(1e-5)}"); k(f"v_fmac_f32 v11, {f32(1/512)}, v10")
    k("v_rsq_f32 v56, v11"); k("v_mov_b32 v57, v56")

def gen_ln2():
    k = Kernel("ln2_kernel", 256, 256, 256, vgpr=160, sgpr=64)
    k("s_cmp_ge_u32 s2, 256"); k("s_cbranch_scc1 END_ln2")
    stamp_begin(k)
    k(f"s_load_dwordx2 s[4:5], s[0:1], {A_X}")
    k(f"s_load_dwordx2 s[6:7], s[0:1], {A_WS}")
    k("v_and_b32 v1, 7, v0"); k("v_lshrrev_b32 v2, 3, v0"); k("v_lshrrev_b32 v6, 6, v0")
    k("v_and_b32 v7, 7, v2"); k("v_lshl_add_u32 v7, v6, 4, v7")
    k("v_lshlrev_b32 v3, 9, v7"); k("v_lshl_add_u32 v3, v1, 4, v3")
    k("v_add_u32 v2, 4096, v3")
    k("v_lshlrev_b32 v4, 10, v1"); k("v_lshl_add_u32 v4, v7, 4, v4")
    k("v_lshlrev_b32 v5, 5, v7")
    k("v_lshlrev_b32 v8, 4, v1"); k("v_lshl_add_u32 v9, v6, 2, v8")
    k("s_and_b32 s25, s2, 7"); k("s_lshl_b32 s25, s25, 5"); k("s_lshr_b32 s26, s2, 3"); k("s_add_u32 s25, s25, s26")
    k("s_lshl_b32 s20, s25, 13")
    k("s_lshr_b32 s21, s25, 2"); k("s_lshl_b32 s21, s21, 15"); k("s_and_b32 s22, s25, 3"); k("s_lshl_b32 s22, s22, 7")
    k("s_add_u32 s21, s21, s22")
    k(f"s_add_u32 s23, s21, {WS_P:#x}")
    k.srd(12, 6, WS_BYTES)
    X = 16; XF = 24; MV = 40; PB = 64
    for g in range(8):
        for i in range(2):
            k(f"buffer_load_dwordx4 {v(PB+8*g+4*i,4)}, v{3-i}, s[12:15], s23 offen" + (" nt" if P["PNT"] else ""))
        if g < 7: k("s_add_u32 s23, s23, 0x200000")
    k.srd(8, 4, 2048 * 1024)
    for i in range(2): k(f"buffer_load_dwordx4 {v(X+4*i,4)}, v4, s[8:11], s20 offen offset:{128*i}")
    k("s_mov_b32 s24, 0xffff0000")
    def load_mod(base, m):
        k(f"s_mov_b32 s23, {WS_MOD + m*2048}")
        for i in range(2):
            for hh in range(2):
                k(f"buffer_load_dwordx4 {v(base+8*i+4*hh,4)}, v5, s[12:15], s23 offen offset:{256*i+16*hh}")
    def unpack(dst, src):
        k(f"v_lshlrev_b32 v{dst}, 16, v{src}"); k(f"v_and_b32 v{dst+1}, s24, v{src}")
    load_mod(MV, 2); load_mod(128, 4); load_mod(144, 3)
    for q in range(8): unpack(XF + 2 * q, PB + q)
    for g in range(1, 8):
        for q in range(8):
            unpack(10 + 2 * (q & 1), PB + 8 * g + q)
            k(f"v_pk_add_f32 {v(XF+2*q,2)}, {v(XF+2*q,2)}, {v(10+2*(q&1),2)}")
    for q in range(8):
        unpack(10, X + q)
        k(f"v_pk_fma_f32 v[10:11], {v(XF+2*q,2)}, {v(MV+2*q,2)}, v[10:11]")
        k(f"v_cvt_pk_bf16_f32 v{X+q}, v10, v11")
        unpack(XF + 2 * q, X + q)
    k(f"s_add_u32 s23, s21, {WS_X1:#x}")
    for i in range(2): k(f"buffer_store_dwordx4 {v(X+4*i,4)}, v{3-i}, s[12:15], s23 offen sc1")
    stamp(k, "x1")
    ln_stats(k, XF)
    stamp(k, "stats")
    for e in range(0, 16, 2):
        k(f"v_pk_mul_f32 {v(XF+e,2)}, {v(XF+e,2)}, v[56:57]")
        k(f"v_pk_fma_f32 {v(XF+e,2)}, {v(XF+e,2)}, {v(128+e,2)}, {v(144+e,2)}")
        k(f"v_cvt_pk_bf16_f32 v{MV+e//2}, v{XF+e}, v{XF+e+1}")
    k(f"s_add_u32 s23, s21, {WS_H2:#x}")
    for i in range(2): k(f"buffer_store_dwordx4 {v(MV+4*i,4)}, v{3-i}, s[12:15], s23 offen sc1")
    stamp_flush(k, 1)
    k.label("END_ln2"); k("s_endpgm")
    return k

def put(k, seq):
    for x in seq:
        if isinstance(x, list): put(k, x)
        elif callable(x): x()
        else: k(x)

def gen_attn():
    k = Kernel("attn_kernel", 256, 256, 163840, vgpr=256, agpr=256, sgpr=72)
    k.denorm32 = P.get("DEN", 3)
    L_K, L_H, L_V, L_W, L_M = 0, 32768, 32768, 98304, 16384
    ACC = 0; S = 0; CI = 64; Q = 128
    VK = 192; VV = 200; VW = 204; VDW = 208; VDK = 212; VDV = 214; VLIN = 215; VL16 = 216
    LS = 217
    T = 220
    LN_, ROWL, GR16 = T, T + 1, T + 2
    r_, c2, gn, h_, tm = T + 3, T + 4, T + 5, T + 6, T + 7
    CH8 = T + 10; HW = T + 11
    VX = T + 13; VM = T + 15
    MX = T + 16
    STT = T + 24
    RL = T + 28; UT = T + 28
    O = 0; FR = 128; AF = 128; BF = 160
    sW, sG, sRB, sT0, sT1, sRING, sST, sFB, sROT, sT2 = 28, 29, 30, 32, 33, 34, 35, 39, 50, 51
    sO0, sO1, sO2, sW2K, sW256, sKhi, sMASK, sCC, sR8 = 36, 37, 38, 52, 54, 55, 58, 59, 6
    TAB = 60
    def L(f, cost=4, mem=False):
        f.cost = cost; f.mem = mem; return f
    k("s_cmp_ge_u32 s2, 256"); k("s_cbranch_scc1 END_attn")
    stamp_begin(k)
    k(f"s_mov_b32 s{sFB}, 0")
    if P["PREFC"]:
        k("s_getpc_b64 s[56:57]")
        k.label("PCREF")
        k(f"s_lshr_b32 s{sT1}, s2, 3"); k(f"s_lshl_b32 s{sT1}, s{sT1}, 12")
        k("v_lshlrev_b32 v108, 4, v0"); k(f"v_add_u32 v108, s{sT1}, v108"); k("v_min_u32 v108, CODE_END-PCREF-16, v108")
        k("global_load_dwordx4 a[252:255], v108, s[56:57]")
    wave_id(k, sW, T)
    k(f"v_and_b32 v{LN_}, 63, v0")
    k.label("RESTART")
    k(f"s_load_dwordx4 s[8:11], s[0:1], {A_C}")
    k(f"s_load_dwordx2 s[4:5], s[0:1], {A_X}")
    k(f"s_load_dwordx4 s[68:71], s[0:1], {A_DBG}")
    k(f"s_load_dwordx8 s[40:47], s[0:1], {A_K}")
    L_R = L_M + 4096
    PSC = "sc1"
    GW, GC, GA = 64, 80, 88
    k(f"v_lshl_add_u32 v99, s{sW}, 6, v{LN_}")
    k("v_and_b32 v100, 1, v99"); k("v_lshrrev_b32 v101, 1, v99")
    k("v_mul_u32_u24 v102, 6144, v101"); k("v_lshl_add_u32 v102, v100, 4, v102"); k("v_lshlrev_b32 v103, 1, v101")
    k("v_lshrrev_b32 v104, 4, v99"); k("v_lshlrev_b32 v104, 6, v104"); k("v_lshl_add_u32 v104, v100, 5, v104")
    sSL = 7; sPR = 53
    k(f"s_and_b32 s{sT0}, s2, 7"); k(f"s_lshr_b32 s{sT1}, s2, 3")
    k(f"s_lshl_b32 s{sSL}, s{sT0}, 3"); k(f"s_add_u32 s{sSL}, s{sSL}, s{sT1}")
    k(f"s_lshl_b32 s{sT2}, s{sT0}, 4"); k(f"s_add_u32 s{sT2}, s{sT2}, s{sT1}"); k(f"s_add_u32 s{sT2}, s{sT2}, 56")
    k("s_cmp_lt_u32 s2, 64"); k(f"s_cselect_b32 s{sSL}, s{sSL}, s{sT2}")
    k(f"s_cselect_b32 s{sPR}, s{sFB}, 1")
    k(f"s_lshl_b32 s31, s{sSL}, 5")
    k(f"v_lshlrev_b32 v{VL16}, 4, v{LN_}")
    G = P["G"]
    NG = 8 // G; NS = 32 // G
    k(f"s_and_b32 s{sG}, s2, {NG-1}"); k(f"s_lshl_b32 s{sG}, s{sG}, {lg2(G)}"); k(f"s_lshr_b32 s{sT0}, s2, {3+lg2(NS)}"); k(f"s_add_u32 s{sG}, s{sG}, s{sT0}")
    k(f"s_bfe_u32 s{sROT}, s2, {3 | (lg2(NS) << 16):#x}")
    k(f"s_and_b32 s{sRB}, s2, 7"); k(f"s_lshr_b32 s{sRB}, s{sRB}, {lg2(NG)}"); k(f"s_lshl_b32 s{sRB}, s{sRB}, {lg2(NS)}"); k(f"s_add_u32 s{sRB}, s{sRB}, s{sROT}")
    k(f"s_lshl_b32 s{sROT}, s{sROT}, {lg2(G)}")
    k(f"s_and_b32 s{sR8}, s{sROT}, 7"); k(f"s_lshr_b32 s{sCC}, s{sROT}, 3")
    RR, CGL = tm, tm + 1
    k(f"v_and_b32 v{RR}, 7, v{LN_}"); k(f"v_lshrrev_b32 v{CGL}, 3, v{LN_}")
    k(f"v_lshlrev_b32 v{VX}, 10, v{RR}"); k(f"v_lshl_add_u32 v{VX}, v{CGL}, 4, v{VX}"); k(f"v_add_u32 v{VX+1}, 8192, v{VX}")
    k(f"s_lshl_b32 s3, s{sRB}, 16"); k(f"s_lshl_b32 s{sT2}, s{sW}, 14"); k(f"s_add_u32 s3, s3, s{sT2}")
    XR = [0, 128, 144, 160]; CN = 176
    XS = [48, 49, 56, 57]
    for c in range(4):
        put(k, [f"s_add_u32 s{XS[c]}, s{sCC}, {c}", f"s_and_b32 s{XS[c]}, s{XS[c]}, 3", f"s_lshl_b32 s{XS[c]}, s{XS[c]}, 8", f"s_add_u32 s{XS[c]}, s{XS[c]}, s3"])
    xl = [f"buffer_load_dwordx4 {v(XR[c]+8*cb+4*oo,4)}, v{VX+oo}, s[16:19], s{XS[c]} offen offset:{128*cb}" for oo in range(2) for c in range(4) for cb in range(2)]
    k.srd(12, 10, 512 * 6144); k.srd(20, 8, 1024); k.srd(16, 4, 2048 * 1024)
    def gemv_loads():
        k(f"s_mov_b32 s{sT0}, s31")
        for i in range(4):
            k(f"buffer_load_dwordx4 {v(GW+4*i,4)}, v102, s[12:15], s{sT0} offen")
            if i < 3: k(f"s_add_u32 s{sT0}, s{sT0}, {128*6144}")
    for i in range(4): k(f"buffer_load_ushort v{GC+i}, v103, s[20:23], 0 offen offset:{256*i}")
    k(f"s_cmp_eq_u32 s{sPR}, 0"); k("s_cbranch_scc1 PLOAD")
    s_a = (dict(k.vm), dict(k.lg))
    put(k, xl)
    s_b = dict(k.vm)
    k("s_branch PJOIN")
    k.label("PLOAD")
    k.vm = dict(s_a[0])
    gemv_loads()
    k.label("PJOIN")
    k.vm = k._merge(k.vm, s_b)
    k(f"s_lshl_b32 s{sW256}, s{sW}, 8"); k(f"s_lshl_b32 s{sW2K}, s{sW}, 11")
    k(f"v_lshrrev_b32 v{ROWL}, 4, v{LN_}")
    k(f"v_and_b32 v{r_}, 15, v{LN_}"); k(f"v_lshlrev_b32 v{GR16}, 2, v{ROWL}"); k(f"v_xor_b32 v{GR16}, v{GR16}, v{r_}")
    k(f"v_lshlrev_b32 v{GR16}, 4, v{GR16}")
    def w_voffs(psh, scol):
        return [f"v_lshl_add_u32 v{VDW}, v{ROWL}, {psh}, v{GR16}", f"v_add_u32 v{VDW}, s{scol}, v{VDW}"] + \
               [f"v_add_u32 v{VDW+n}, {n*((4<<psh)-1024)}, v{VDW}" for n in range(1, 4)]
    k(f"s_lshl_b32 s{sT0}, s{sG}, 10"); k(f"s_add_u32 s{sT0}, s{sT0}, s{sW256}")
    put(k, w_voffs(13, sT0))
    k(f"s_lshl_b32 s{sRING}, s{sW}, 14"); k(f"s_add_u32 s{sRING}, s{sRING}, {L_W}")
    for p in range(8):
        k(f"s_add_u32 s{TAB+p}, s{sR8}, {p}"); k(f"s_and_b32 s{TAB+p}, s{TAB+p}, 7"); k(f"s_lshl_b32 s{TAB+p}, s{TAB+p}, 17")
    k(f"s_lshl_b32 s{sKhi}, s{sCC}, 20")
    k.srd(24, 70, WS_BYTES); k.srd(8, 44, 512 * 8192)
    def w_dma(step, which):
        slot = step % 4
        if which == "Q":
            srd = 8
            pre = [f"s_add_u32 s{sT0}, s{sKhi}, s{TAB+step%8}"]
            adv = [[f"s_add_u32 s{sKhi}, s{sKhi}, 0x100000", f"s_and_b32 s{sKhi}, s{sKhi}, 0x3fffff"]] if step % 8 == 7 else []
        else:
            srd = 20
            pre = [f"s_add_u32 s{sT0}, s{TAB+step%8}, {(2*(step//8))<<14}"]
            adv = []
        o = [pre + [f"s_add_u32 m0, s{sRING}, {4096*slot}"]] + adv + [f"buffer_load_dwordx4 v{VDW}, s[{srd}:{srd+3}], s{sT0} offen lds"]
        for n in range(1, 4):
            o.append(L(lambda n=n: k(f"buffer_load_dwordx4 v{VDW+n}, s[{srd}:{srd+3}], s{sT0} offen offset:{1024*n} lds", token=f"W{slot}"), 10, "v"))
        return o
    k(f"v_lshrrev_b32 v{r_}, 1, v{CGL}"); k(f"v_subrev_u32 v{r_}, s{sR8}, v{r_}")
    k(f"v_and_b32 v{c2}, 1, v{CGL}"); k(f"v_lshlrev_b32 v{c2}, 9, v{c2}"); k(f"v_lshl_add_u32 v{c2}, v{RR}, 4, v{c2}")
    k(f"s_lshr_b32 s{sT1}, s{sW}, 1"); k(f"s_lshl_b32 s{sT1}, s{sT1}, 15"); k(f"s_and_b32 s{sT2}, s{sW}, 1"); k(f"s_lshl_b32 s{sT2}, s{sT2}, 8")
    k(f"s_add_u32 s{sT1}, s{sT1}, s{sT2}"); k(f"s_add_u32 s{sT1}, s{sT1}, {L_H}"); k(f"v_add_u32 v{c2}, s{sT1}, v{c2}")
    for cb in range(2):
        k(f"v_add_u32 v{gn}, {4*cb}, v{r_}"); k(f"v_and_b32 v{gn}, 7, v{gn}"); k(f"v_lshl_add_u32 v{HW+cb}, v{gn}, 10, v{c2}")
    k(f"s_lshl_b32 s{sT2}, s{sCC}, 9"); k(f"v_lshlrev_b32 v{VM}, 5, v{CGL}"); k(f"v_add_u32 v{VM}, s{sT2}, v{VM}")
    lane_tr_parts(k, LN_, r_, c2, gn, h_, tm)
    k(f"v_lshl_add_u32 v{CH8}, v{gn}, 2, v{c2}"); k(f"v_lshlrev_b32 v{CH8}, 3, v{CH8}")
    k(f"v_lshl_add_u32 v{tm}, v{h_}, 3, v{r_}"); k(f"v_lshl_add_u32 v{tm}, v{tm}, 8, v{CH8}"); k(f"v_add_u32 v{tm}, s{sRING}, v{tm}")
    for a_ in range(4):
        k(f"v_xor_b32 v{tm+1}, {a_}, v{r_}"); k(f"v_lshl_add_u32 v{VW+a_}, v{tm+1}, 6, v{tm}")
    put(k, [f"v_lshl_add_u32 v{tm}, v{h_}, 2, v{r_}", f"v_lshl_add_u32 v{tm}, v{tm}, 8, v{CH8}", f"v_add_u32 v{tm}, {L_V}, v{tm}"])
    for dt in range(4): put(k, [f"v_xor_b32 v{tm+1}, {dt}, v{r_}", f"v_lshl_add_u32 v{VV+dt}, v{tm+1}, 6, v{tm}"])
    put(k, [f"v_and_b32 v{tm}, 31, v{LN_}", f"v_and_b32 v{tm+1}, 15, v{LN_}", f"v_xor_b32 v{tm+1}, v{tm+1}, v{h_}",
            f"v_lshlrev_b32 v{tm}, 8, v{tm}", f"v_lshl_add_u32 v{VK}, v{tm+1}, 4, v{tm}"])
    put(k, [f"v_xor_b32 v{VK+s_}, {s_*32}, v{VK}" for s_ in range(1, 8)])
    put(k, [f"v_mov_b32 v{LS}, 0", f"v_mov_b32 v{LS+1}, 0",
        f"v_lshl_add_u32 v{VDV}, v{ROWL}, 8, v{GR16}", f"s_and_b32 s{sT1}, s{sW}, 1", f"s_lshl_b32 s{sT1}, s{sT1}, 3",
        f"v_or_b32 v{tm}, s{sT1}, v{ROWL}", f"v_and_b32 v{tm+1}, 15, v{LN_}", f"v_xor_b32 v{tm}, v{tm}, v{tm+1}",
        f"v_lshlrev_b32 v{VDK}, 8, v{ROWL}", f"v_lshl_add_u32 v{VDK}, v{tm}, 4, v{VDK}", f"v_xor_b32 v{VDK+1}, 64, v{VDK}",
        f"s_lshl_b32 s{sT1}, s{sG}, 19", f"s_add_u32 s{sT1}, s{sT1}, s{sW2K}", f"s_add_u32 s{sT1}, s{sT1}, {1536*256}",
        f"v_add_u32 v{VDK}, s{sT1}, v{VDK}", f"v_add_u32 v{VDK+1}, s{sT1}, v{VDK+1}", f"v_add_u32 v{VDV}, s{sT1}, v{VDV}",
        f"v_add_u32 v{VLIN}, {L_H}, v{VL16}", f"s_mov_b32 s{sMASK}, 0xffff0000"])
    def nxt(d, s_): return [f"s_add_u32 s{d}, s{s_}, 8192", f"s_and_b32 s{d}, s{d}, 0x1ffff"]
    def kv_dma(which, lds_off, so):
        srd = 12 if which == "K" else 16
        return [f"s_add_u32 m0, s{sW2K}, {lds_off}", f"buffer_load_dwordx4 v{VDK if which=='K' else VDV}, s[{srd}:{srd+3}], s{so} offen lds",
                L(lambda: k(f"buffer_load_dwordx4 v{VDK+1 if which=='K' else VDV}, s[{srd}:{srd+3}], s{so} offen offset:1024 lds", token=which), 10, "v")]
    kinit = [[f"s_lshr_b32 s{sO0}, s{sROT}, 1", f"s_lshl_b32 s{sO0}, s{sO0}, 13"] + nxt(sO1, sO0) + nxt(sO2, sO1)]
    kfirst = [kv_dma("K", L_K + 16384 + 8192, sO0), kv_dma("K", L_K, sO1), kv_dma("K", L_K + 8192, sO2)]
    put(k, kinit)
    k.srd(20, 68, 256)
    def gemv_compute(lo, hi, tag, late):
        k(f"s_sub_u32 s{sT0}, s2, {lo}"); k(f"s_cmp_ge_u32 s{sT0}, {hi-lo}"); k(f"s_cselect_b32 s{sT0}, 1, s{sFB}"); k(f"s_cmp_lg_u32 s{sT0}, 0"); k("s_cbranch_scc1 NOGEMV" + tag)
        st0 = (dict(k.vm), dict(k.lg))
        D = P.get("DG") == 1 and not late
        if D: stamp(k, "g_in"); k.wait_regs(v(GW, 20)); stamp(k, "g_data")
        k(f"s_mov_b32 s{sT1}, {f32(-LOG2E)}")
        for i in range(4): k(f"v_lshlrev_b32 v{GC+i}, 16, v{GC+i}")
        for i in range(4): k(f"v_mul_f32 v{GA+i}, s{sT1}, v{GC+i}")
        for i in range(4): k(f"v_exp_f32 v{GA+i}, v{GA+i}")
        for i in range(4): k(f"v_add_f32 v{GA+i}, 1.0, v{GA+i}")
        for i in range(4): k(f"v_rcp_f32 v{GA+i}, v{GA+i}")
        for i in range(4): k(f"v_mul_f32 v{GC+i}, v{GC+i}, v{GA+i}")
        for i in range(4): rnd(k, 112 + 2 * i, GC + i)
        for i in range(4):
            for q in range(4):
                r = GW + 4 * i + q; u = 120 + 2 * (q & 1)
                k(f"v_lshlrev_b32 v{u}, 16, v{r}"); k(f"v_and_b32 v{u+1}, s{sMASK}, v{r}")
                if i == 0: k(f"v_pk_mul_f32 {v(GA+2*q,2)}, {v(u,2)}, {v(112+2*i,2)} op_sel_hi:[1,0]")
                else: k(f"v_pk_fma_f32 {v(GA+2*q,2)}, {v(u,2)}, {v(112+2*i,2)}, {v(GA+2*q,2)} op_sel_hi:[1,0,1]")
        for md in ("quad_perm:[2,3,0,1]", "row_ror:4", "row_ror:8"):
            for j in range(8): k(f"v_add_f32_dpp v{GA+j}, v{GA+j}, v{GA+j} {md} row_mask:0xf bank_mask:0xf")
        k(f"ds_write_b128 v104, {v(GA,4)} offset:{L_R}", token="w"); k(f"ds_write_b128 v104, {v(GA+4,4)} offset:{L_R+16}", token="w")
        k(f"v_lshlrev_b32 v105, 2, v{LN_}")
        k(f"s_lshr_b32 s{sT0}, s{sSL}, 5"); k(f"s_cmp_eq_u32 s{sT0}, 1"); k(f"s_cselect_b32 s{sT1}, 1.0, 0")
        k(f"s_cmp_eq_u32 s{sT0}, 4"); k(f"s_cselect_b32 s{sT1}, 1.0, s{sT1}")
        k(f"s_cmp_lt_u32 s{sT0}, 2"); k(f"s_cselect_b32 s{sT2}, {f32(QS)}, 1.0")
        k(f"s_lshl_b32 s{sT0}, s{sSL}, 6")
        k.wait("w"); k("s_barrier")
        k(f"s_cmp_lg_u32 s{sW}, 3"); k("s_cbranch_scc1 " + ("NOGEMV" + tag if late else "PWAIT"))
        for i in range(4): k(f"ds_read_b32 v{GA+i}, v105 offset:{L_R+256*i}")
        k(f"v_add_f32 v{GA}, v{GA}, v{GA+1}"); k(f"v_add_f32 v{GA+2}, v{GA+2}, v{GA+3}"); k(f"v_add_f32 v{GA}, v{GA}, v{GA+2}")
        k(f"v_mov_b32 v{GA+1}, v{GA}"); k(f"v_permlane16_swap_b32 v{GA}, v{GA+1}"); k(f"v_add_f32 v{GA}, v{GA}, v{GA+1}")
        k(f"v_mov_b32 v{GA+1}, v{GA}"); k(f"v_permlane32_swap_b32 v{GA}, v{GA+1}"); k(f"v_add_f32 v{GA}, v{GA}, v{GA+1}")
        rnd(k, GA, GA)
        k(f"v_add_f32 v{GA}, s{sT1}, v{GA}"); k(f"v_mul_f32 v{GA}, s{sT2}, v{GA}")
        if D: stamp(k, "g_red")
        k("s_mov_b64 exec, 0xffff")
        k(f"buffer_store_dword v{GA}, v105, s[24:27], s{sT0} offen sc1")
        if not late:
            k("s_mov_b64 exec, 1")
            k("v_mov_b32 v106, 1")
            k.wait_all(lg=False)
            if D: stamp(k, "g_ack")
            if P["SYNC"] == 2:
                k(f"buffer_atomic_add v106, v105, s[20:23], 0 offen offset:128")
            else:
                k(f"buffer_atomic_add v106, v105, s[20:23], 0 offen sc0")
                if P["PBAR"] == 2: k("s_barrier")
                k("v_cmp_eq_u32 vcc, 63, v106")
                k("s_and_b64 exec, exec, vcc")
                k("s_cbranch_execz NOGO")
                k(f"buffer_store_dword v106, v105, s[20:23], 0 offen offset:128 sc1")
                k.label("NOGO")
            k("s_mov_b64 exec, -1")
            if P["PBAR"] == 2: k("s_branch PX")
            k.label("PWAIT")
            k("s_barrier")
            k.label("PX")
            k.vm = {}
            put(k, xl)
            st0 = (k._merge(st0[0], k.vm), None)
        else:
            k("s_mov_b64 exec, -1")
        k.label("NOGEMV" + tag)
        k.vm, k.lg = dict(st0[0]), {}
    gemv_compute(0, 64, "A", False)
    stamp(k, "gemv")
    k("s_mov_b32 s3, 0x3f803f80")
    if P.get("DG") == 2: stamp(k, "iss"); k.wait_regs(v(0, 16), v(128, 48)); stamp(k, "xarr")
    for oo in range(2):
        src = [XR[c] + 8 * cb + 4 * oo + q for c in range(4) for cb in range(2) for q in range(4)]
        A_ = 16 + 8 * oo
        if oo == P["WPOS"]:
            if oo: k.wait_regs(*[f"v{x}" for x in src])
            def late_loads():
                k(f"s_sub_u32 s{sT0}, s2, 64"); k(f"s_cmp_ge_u32 s{sT0}, 128"); k("s_cbranch_scc1 NOLATE")
                s_c = dict(k.vm)
                gemv_loads()
                k.label("NOLATE")
                k.vm = k._merge(k.vm, s_c)
                k.srd(12, 40, 8 * 2048 * 256)
            if P["LFIRST"]: late_loads()
            put(k, [w_dma(s_, "Q") for s_ in range(P["WPRE"])])
            if not P["LFIRST"]: late_loads()
        for j, x in enumerate(src):
            k(f"v_dot2_f32_bf16 v{A_+(j&1)}, v{x}, s3, {'0' if j < 2 else 'v%d' % (A_+(j&1))}")
            k(f"v_dot2_f32_bf16 v{A_+2+(j&1)}, v{x}, v{x}, {'0' if j < 2 else 'v%d' % (A_+2+(j&1))}")
        k("s_nop 2")
        k(f"v_add_f32 v{A_}, v{A_}, v{A_+1}"); k(f"v_add_f32 v{A_+2}, v{A_+2}, v{A_+3}")
        rowsum_8(k, A_, A_ + 1); rowsum_8(k, A_ + 2, A_ + 3)
        k(f"v_mul_f32 v{A_}, {f32(-1/512)}, v{A_}")
        k(f"v_mul_f32 v{A_+2}, {f32(1/512)}, v{A_+2}")
        k(f"v_fma_f32 v{A_+2}, -v{A_}, v{A_}, v{A_+2}"); k(f"v_max_f32 v{A_+2}, 0, v{A_+2}")
        k(f"v_add_f32 v{A_+2}, {f32(1e-5)}, v{A_+2}"); k(f"v_rsq_f32 v{STT+2*oo+1}, v{A_+2}")
        k(f"v_mul_f32 v{STT+2*oo}, v{A_}, v{STT+2*oo+1}")
    def cread(cb, dst):
        return [f"ds_read_b128 {v(dst+8*m_+4*q,4)}, v{VM} offset:{L_M+2048*(1-m_)+256*cb+16*q}" for m_ in range(2) for q in range(2)]
    vmadv = [[f"v_add_u32 v{VM}, 0x200, v{VM}", f"v_and_b32 v{VM}, 0x7ff, v{VM}"]]
    def modulate(c, cb, cn, U_, pk):
        o = []
        for oo in range(2):
            x = XR[c] + 8 * cb + 4 * oo; u = U_ + (8 * oo if pk else 0)
            for q in range(4): o += [f"v_lshlrev_b32 v{u+2*q}, 16, v{x+q}", f"v_and_b32 v{u+2*q+1}, s{sMASK}, v{x+q}"]
            if pk:
                st = v(STT + 2 * oo, 2)
                o += [f"v_pk_fma_f32 {v(u+2*q,2)}, {v(u+2*q,2)}, {st}, {st} op_sel:[0,1,0] op_sel_hi:[1,1,0]" for q in range(4)]
                if pk == "pre": continue
                if pk == "post": o = o[:-12]
                o += [f"v_pk_fma_f32 {v(u+2*q,2)}, {v(u+2*q,2)}, {v(cn+2*q,2)}, {v(cn+8+2*q,2)}" for q in range(4)]
            else:
                o += [f"v_fma_f32 v{u+e}, v{u+e}, v{STT+2*oo+1}, v{STT+2*oo}" for e in range(8)]
                o += [f"v_fma_f32 v{u+e}, v{u+e}, v{cn+e}, v{cn+8+e}" for e in range(8)]
            o += [f"v_cvt_pk_bf16_f32 v{x+q}, v{u+2*q}, v{u+2*q+1}" for q in range(4)]
            o.append(L(lambda x=x, cb=cb, oo=oo: k(f"ds_write_b128 v{HW+cb}, {v(x,4)} offset:{8192*c+128*oo}", token="hw"), 22, "d"))
        return o
    put(k, modulate(0, 0, 16, 32, "pre") + modulate(0, 1, 32, 48, "pre"))
    if P.get("DG") == 2: stamp(k, "st+pre")
    gemv_compute(64, 192, "B", True)
    stamp(k, "stats")
    k(f"s_cmp_lg_u32 s{sW}, 0"); k("s_cbranch_scc1 NOPOLL")
    st1 = (dict(k.vm), dict(k.lg))
    k("v_mov_b32 v80, 128")
    k(f"s_mov_b32 s{sT1}, 0")
    k.label("POLL")
    if P["SLEEP"]: k(f"s_sleep {P['SLEEP']}")
    k(f"buffer_load_dword v81, v80, s[20:23], 0 offen {PSC}")
    k(f"s_add_u32 s{sT1}, s{sT1}, 1")
    k("v_cmp_eq_u32 vcc, 0, v81" if P["SYNC"] != 2 else "v_cmp_gt_u32 vcc, 64, v81")
    k(f"s_cmp_gt_u32 s{sT1}, 0x40000"); k("s_cbranch_scc1 POLLED")
    k("s_cbranch_vccnz POLL")
    k.label("POLLED")
    if P.get("DG"): stamp(k, "go")
    for i in range(4): k(f"buffer_load_dwordx4 {v(16+4*i,4)}, v{VL16}, s[24:27], 0 offen offset:{1024*i} sc1")
    for i in range(4): k(f"ds_write_b128 v{VL16}, {v(16+4*i,4)} offset:{L_M+1024*i}", token="w")
    k.wait("w")
    k.label("NOPOLL")
    k.vm, k.lg = dict(st1[0]), {}
    k("s_barrier")
    stamp(k, "poll")
    k.srd(20, 46, 4096 * 1024)
    put(k, cread(0, 64) + cread(1, 80) + vmadv)
    put(k, modulate(0, 0, 64, 32, "post") + modulate(0, 1, 80, 48, "post"))
    put(k, [w_dma(s_, "Q") for s_ in range(P["WPRE"], 4)])
    fr = lambda f: FR + 4 * (f % 8)
    def rdK(f, s_, off): return [f"ds_read_b128 {a(fr(f),4)}, v{VK+s_} offset:{off}"]
    def rdV(f, i, off): return [f"ds_read_b64_tr_b16 {a(fr(f)+2*u,2)}, v{VV+i%4} offset:{off+4096*(i//4)+2048*u}" for u in range(2)]
    def a_reads(step):
        slot = step % 4; buf = step % 2
        rd = [f"ds_read_b64_tr_b16 {a(AF+16*buf+4*a_+2*u,2)}, v{VW+a_} offset:{4096*slot+1024*u}" for a_ in range(4) for u in range(2)]
        return [[L(lambda: k.wait(f"W{slot}")), rd[0]]] + rd[1:]
    def b_reads(step):
        return [f"ds_read_b128 {a(BF+8*(step%2)+4*rt,4)}, v{VLIN} offset:{1024*step+32768*rt}" for rt in range(2)]
    put(k, a_reads(0))
    k.wait("hw"); k("s_barrier")
    stamp(k, "mod")
    put(k, b_reads(0))
    def g_mfma(buf, first=False):
        return [f"v_mfma_f32_32x32x16_bf16 {v(ACC+32*a_+16*rt,16)}, {a(AF+16*buf+4*a_,4)}, {a(BF+8*buf+4*rt,4)}, {'0' if first else v(ACC+32*a_+16*rt,16)}"
                for a_ in range(4) for rt in range(2)]
    def gbody(which, c, extra):
        sc = Sched(64)
        mf = []
        if c < 3: sc.pin(57, L(lambda: (k.wait("hw"), k("s_barrier")), 8))
        for i in range(8):
            st = 8 * c + i
            if st + 1 < 32:
                sc.add(a_reads(st + 1), 8 * i, 8 * i + 5, prio=1)
                sc.add(b_reads(st + 1), 8 * i + (1 if i == 7 else 0), 8 * i + 4, prio=1)
                sc.pin(8 * i + 7, L(lambda st=st: k.wait_regs(a(AF + 16 * ((st + 1) % 2), 16), a(BF + 8 * ((st + 1) % 2), 8))), end=True)
            if st + 4 < 32: sc.add(w_dma(st + 4, which), 8 * i, 8 * i + 8)
            mf += g_mfma(i % 2, st == 0)
        extra(sc)
        for m, f_ in zip(mf, sc.run()): k(m); put(k, f_)
    def qepi(a_):
        return [f"v_cvt_pk_bf16_f32 v{Q+16*a_+8*(j//4)+4*rt+j%4}, v{ACC+32*a_+16*rt+2*j}, v{ACC+32*a_+16*rt+2*j+1}" for rt in range(2) for j in range(8)]
    def qx(c):
        def f(sc):
            if c < 3:
                m0_ = modulate(c + 1, 0, CN, UT, False); m1_ = modulate(c + 1, 1, CN, UT, False)
                if P["BURST"]:
                    wr = [x for x in m0_ + m1_ if callable(x)]
                    m0_ = [x for x in m0_ if not callable(x)]; m1_ = [x for x in m1_ if not callable(x)]
                    sc.add(cread(0, CN) + m0_[:-4] + cread(1, CN) + m0_[-4:] + m1_ + vmadv, 0, P["BURST"])
                    sc.pin(P["BURST"], wr)
                else:
                    sc.add(cread(0, CN) + m0_[:-5] + cread(1, CN) + m0_[-5:] + m1_ + vmadv, 0, 55)
            else:
                sc.pin(0, L(lambda: k.srd(16, 42, 8 * 2048 * 256), 16))
                if not P["KEARLY"]: sc.add([x for d in kfirst for x in d], 32, 44)
                tab = []
                for p in range(8):
                    tab.append([f"s_add_u32 s{sT1}, s{sR8}, {p}", f"s_and_b32 s{sT1}, s{sT1}, 7", f"s_lshr_b32 s{sT2}, s{sT1}, 1", f"s_mul_i32 s{sT2}, s{sT2}, 6"])
                    tab.append([f"s_add_u32 s{sT1}, s{sT1}, s{sT2}", f"s_lshl_b32 s{TAB+p}, s{sT1}, 14"])
                sc.add(tab + [[f"s_lshl_b32 s{sT0}, s{sG}, 19", f"s_add_u32 s{sT0}, s{sT0}, s{sW256}"]] + w_voffs(10, sT0), 33, 56)
                sc.pin(56, L(lambda: (k.wait_all(), k("s_barrier")), 8))
                sc.add([rdK(f, f, L_K + 16384 + 8192) for f in range(4)], 56, 60, prio=1)
                sc.add(kv_dma("V", L_V, sO0) + kv_dma("V", L_V + 8192, sO1), 57, 62)
                sc.add(qepi(0), 61, 64)
        return f
    for c in range(4): gbody("Q", c, qx(c))
    stamp(k, "qgemm")
    def qk(f, s_, qt, buf, zero):
        d = v(S + 32 * buf + 16 * qt, 16)
        c = d if s_ else ("0" if zero else v(CI + 16 * qt, 16))
        return f"v_mfma_f32_32x32x16_bf16 {d}, {a(fr(f),4)}, {v(Q+8*s_+4*qt,4)}, {c}"
    def pv(f, i, qt, buf, zero=False):
        d = a(O + 32 * (i % 4) + 16 * qt, 16)
        return f"v_mfma_f32_32x32x16_bf16 {d}, {a(fr(f),4)}, {v(S+32*buf+16*qt+8*(i//4),4)}, {'0' if zero else d}"
    def sreg(buf, e): return S + 32 * buf + 16 * ((e >> 3) & 1) + 8 * (e >> 4) + (e & 7)
    def sm(buf, e, addci=False):
        o = []
        if e < 32:
            if addci: o.append(f"v_add_f32 v{sreg(buf,e)}, v{sreg(buf,e)}, v{CI+16*((e>>3)&1)}")
            o.append(f"v_exp_f32 v{sreg(buf,e)}, v{sreg(buf,e)}")
        if e >= 1:
            p = e - 1
            o.append(f"v_add_f32 v{LS+((p>>3)&1)}, v{LS+((p>>3)&1)}, v{sreg(buf,p)}")
            if p & 1:
                o.append(f"v_cvt_pk_bf16_f32 v{sreg(buf,p&~7)+(p&7)//2}, v{sreg(buf,p-1)}, v{sreg(buf,p)}")
        return o
    def wgrp(j): return L(lambda: k.wait_regs(a(FR + 16 * (j % 2), 16)))
    def qk0(epi):
        wgrp(0)()
        for s_ in range(8):
            ep = qepi(s_ // 2 + 1)[8 * (s_ & 1):8 * (s_ & 1) + 8] if epi and s_ < 6 else []
            rd = [rdK(f + 4, f + 4, L_K + 16384 + 8192) if f < 4 else rdK(f + 4, f - 4, L_K) for f in ([2*s_, 2*s_+1] if s_ < 2 else [2*s_-4, 2*s_-3] if 4 <= s_ < 6 else [])]
            k(qk(s_, s_, 0, 0, True)); put(k, rd[:1]); put(k, ep[:4])
            k(qk(s_, s_, 1, 0, True)); put(k, rd[1:]); put(k, ep[4:])
            if s_ % 4 == 3: wgrp(s_ // 4 + 1)()
    qk0(True)
    k(f"s_cmp_lg_u32 s{sFB}, 0"); k("s_cbranch_scc1 FB_MAX")
    k.label("IT0")
    def maxops(buf, dst):
        o = []
        for qt in range(2):
            b = S + 32 * buf + 16 * qt; t = dst + qt
            o.append(f"v_max3_f32 v{t}, v{b}, v{b+1}, v{b+2}")
            for i in range(3, 15, 2): o.append(f"v_max3_f32 v{t}, v{t}, v{b+i}, v{b+i+1}")
            o.append(f"v_max_f32 v{t}, v{t}, v{b+15}")
        return [x for pr in zip(o[:8], o[8:]) for x in pr]
    def xhalf_max(t, t2):
        return [f"v_mov_b32 v{t2}, v{t}", f"v_mov_b32 v{t2+1}, v{t+1}", f"v_permlane32_swap_b32 v{t}, v{t2}", f"v_permlane32_swap_b32 v{t+1}, v{t2+1}",
                f"v_max_f32 v{t}, v{t}, v{t2}", f"v_max_f32 v{t+1}, v{t+1}, v{t2+1}"]
    def flat(x): return [y for z in x for y in z]
    def iteration(par, first=False, last=False, extra=None):
        hb = 16384 * par; nb = 16384 * (1 - par)
        mf = []
        phs = [0, 1, 3] if last else [0, 1, 2, 3]
        n = 16 * len(phs)
        sc = Sched(n)
        frs = []
        for q_, ph in enumerate(phs):
            for g in range(16):
                f = 8 * q_ + g // 2; qt = g & 1; i = g // 2
                if ph == 0: mf.append(qk(f, i, qt, 1, first))
                elif ph == 1: mf.append(pv(f, i, qt, 0, first and i < 4))
                elif ph == 2: mf.append(qk(f, i, qt, 0, False))
                else: mf.append(pv(f, i, qt, 1))
            for i in range(8): frs.append((ph, i))
        ng = len(frs) // 4
        for j in range(1, ng):
            rd = []
            for f in range(4 * j, 4 * j + 4):
                ph, i = frs[f]
                rd += rdK(f, i, hb + 8192 * (ph // 2)) if ph % 2 == 0 else rdV(f, i, hb + 8192 * (ph // 2))
            g0 = 8 * (j - 1)
            if first and j == 2: sc.pin(g0 + 1, L(lambda: (k.wait("V"), k("s_barrier")), 8)); g0 += 1
            sc.add(rd, g0, 8 * (j - 1) + 6, prio=1)
            sc.pin(8 * j - 1, wgrp(j), end=True)
        dm = [nxt(sO1, sO2), kv_dma("V", L_V + nb, sO2), kv_dma("K", L_K + nb, sO1), kv_dma("V", L_V + nb + 8192, sO1), nxt(sO2, sO1), kv_dma("K", L_K + nb + 8192, sO2)]
        dm = [dm[0]] + dm[1] + dm[2] + dm[3] + [dm[4]] + dm[5]
        if first:
            sc.add(dm, 24, 44)
            mx = maxops(0, MX) + xhalf_max(MX, MX + 2)
            mx += [[f"s_cmp_lg_u32 s{sFB}, 0", "s_cselect_b64 vcc, -1, 0"]]
            mx += [f"v_sub_f32 v{CI+16*qt}, {f32(-float(P['BIAS']))}, v{MX+qt}" for qt in range(2)]
            mx += [f"v_cndmask_b32 v{CI+16*qt}, v{CI+16*qt}, v{MX+4+qt}, vcc" for qt in range(2)]
            sc.add(mx + flat(sm(0, e, True) for e in range(17)), 1, 16)
            sc.add(flat(sm(0, e, True) for e in range(17, 33)), 16, 23)
            sc.add([f"v_mov_b32 v{CI+16*qt+i}, v{CI+16*qt}" for qt in range(2) for i in range(1, 16)], 23, 31)
            sc.add(flat(sm(1, e, True) for e in range(33)), 23, 54)
            sc.add(flat(sm(0, e) for e in range(12)), 54, 64)
        else:
            for e in range(12, 33): sc.pin(e - 12, sm(0, e))
            if last:
                sc.add(flat(sm(1, e) for e in range(17)), 19, 31)
                sc.add(flat(sm(1, e) for e in range(17, 33)), 31, 39)
            else:
                sc.add(dm, 1, 40)
                for e in range(33): sc.pin(20 + e, sm(1, e))
                for e in range(12): sc.pin(52 + e, sm(0, e))
        if not last:
            sc.pin(56, L(lambda: (k.wait("K", "V"), k("s_barrier")), 8))
            sc.add([rdK(f, f, nb) for f in range(4)], 56, 61, prio=1)
            sc.pin(63, wgrp(0), end=True)
        if extra: extra(sc)
        for m, f_ in zip(mf, sc.run()): k(m); put(k, f_)
    def x_first(sc):
        pf = [[f"s_lshl_b32 s{sT1}, s{sROT}, 14", f"s_lshl_b32 s{sT2}, s{sG}, 19", f"s_add_u32 s{sT1}, s{sT1}, s{sT2}"], [f"s_lshl_b32 s{sT2}, s{sW}, {12+lg2(G)}", f"s_add_u32 s{sT1}, s{sT1}, s{sT2}"]]
        for n in range(4 * G):
            pf.append([f"buffer_load_dwordx4 {a(192+4*(n%16),4)}, v{VL16}, s[20:23], s{sT1} offen offset:{1024*(n%4)}"] + ([f"s_add_u32 s{sT1}, s{sT1}, 4096"] if n % 4 == 3 else []))
        sc.add(pf, 44, 56)
    iteration(0, first=True, extra=x_first)
    if not P.get("OST") and not P.get("DG"): stamp(k, "it0")
    i0 = len(k.items)
    k.loop(sST, 3, lambda: (iteration(1), iteration(0)), align=3)
    X = P.get("DBGX", 0)
    if X:
        def keep(it):
            if it.kind in ("label", "raw"): return True
            if X & 1 and it.mn == "s_barrier": return False
            if X & 2 and it.mn == "s_waitcnt": return False
            if X & 4 and it.kind in ("valu", "trans"): return False
            if X & 8 and it.kind == "vmem": return False
            if X & 16 and it.kind == "ds": return False
            if X & 32 and it.kind == "trans": return False
            if X & 64 and it.kind == "valu": return False
            return True
        k.items[i0:] = [it for it in k.items[i0:] if keep(it)]
        k.wait_all()
    if not P.get("OST") and not P.get("DG"): stamp(k, "it1-6")
    OM = MX + 4
    def finalize(dt):
        o = []
        for qt in range(2):
            b = Q + 16 * qt; pk_ = Q + 32 + 8 * qt
            o += [f"v_accvgpr_read_b32 v{b+i}, a{O+32*dt+16*qt+i}" for i in range(16)]
            o += [f"v_maximum3_f32 v{OM+qt}, |v{b+i}|, |v{b+i+1}|, v{OM+qt}" for i in range(0, 16, 2)]
            o += [f"v_mul_f32 v{b+i}, v{b+i}, v{RL+qt}" for i in range(16)]
            for sp in range(2):
                o += [f"v_cvt_pk_bf16_f32 v{pk_+4*sp+j}, v{b+8*sp+2*j}, v{b+8*sp+2*j+1}" for j in range(4)]
                o.append(L(lambda sp=sp, qt=qt, pk_=pk_: k(f"ds_write_b128 v{HW+sp}, {v(pk_+4*sp,4)} offset:{32768*qt+8192*dt}", token="hw"), 22, "d"))
        return o
    f0 = finalize(0)
    def x_last(sc):
        sc.add(flat(w_dma(s_, "O") for s_ in range(4)), 0, 30)
        fin = [f"v_mov_b32 v{MX}, v{LS}", f"v_mov_b32 v{MX+1}, v{LS+1}", f"v_mov_b32 v{OM}, 0", f"v_mov_b32 v{OM+1}, 0",
               f"v_permlane32_swap_b32 v{LS}, v{MX}", f"v_permlane32_swap_b32 v{LS+1}, v{MX+1}",
               f"v_add_f32 v{LS}, v{LS}, v{MX}", f"v_add_f32 v{LS+1}, v{LS+1}, v{MX+1}",
               f"v_rcp_f32 v{RL}, v{LS}", f"v_rcp_f32 v{RL+1}, v{LS+1}", f"v_max_f32 v{MX+6}, v{LS}, v{LS+1}"]
        adr = []
        for sp in range(2):
            adr += [[f"s_lshl_b32 s56, s{sW}, 1", f"s_add_u32 s56, s56, {sp}", f"s_sub_u32 s56, s56, s{sR8}"], [f"s_and_b32 s56, s56, 7",
                    f"s_lshl_b32 s56, s56, 10", f"v_add_u32 v{HW+sp}, s56, v{VLIN}"]]
        sc.add(adr, 0, 8)
        sc.add(fin, 39, 43)
        sc.pin(40, L(lambda: k("s_barrier")))
        sc.add(a_reads(0), 40, 46, prio=1)
        sc.add(f0[:30], 43, 48)
    iteration(1, last=True, extra=x_last)
    if not P.get("DG"): stamp(k, "it7")
    k(f"s_load_dwordx4 s[40:43], s[0:1], {A_WG}")
    put(k, f0[30:])
    k.wait_all(vm=False); k("s_barrier")
    put(k, b_reads(0))
    if not P.get("DG"): stamp(k, "owrite")
    def ox(c):
        def f(sc):
            if c < 3 and P["BURST"]:
                fz = finalize(c + 1)
                sc.add([x for x in fz if not callable(x)], 1, 46 if c == 2 else P["BURST"])
                sc.pin(P["BURST"], [x for x in fz if callable(x)])
            elif c < 3: sc.add(finalize(c + 1), 1, 48 if c == 2 else 55)
            if c == 2:
                chk = [f"v_maximum3_f32 v{MX+7}, v{OM}, v{OM+1}, v{MX+6}", f"v_min_f32 v{OM}, v{OM}, v{OM+1}",
                       f"v_cmp_ngt_f32 vcc, {f32(2.0**120)}, v{MX+7}", "s_mov_b64 s[56:57], vcc",
                       f"v_cmp_gt_f32 vcc, {f32(2.0**-112 if not P['FORCE_FB'] else 2.0**100)}, v{OM}",
                       ["s_or_b64 s[56:57], s[56:57], vcc", f"s_cselect_b32 s{sT1}, 1, 0", f"v_mov_b32 v{MX}, s{sT1}"],
                       [f"s_lshl_b32 s{sT1}, s{sW}, 2", f"v_mov_b32 v{MX+1}, s{sT1}"],
                       L(lambda: k(f"ds_write_b32 v{MX+1}, v{MX} offset:{L_K}", token="hw"), 4, "d"), f"v_mov_b32 v{MX+2}, 0"]
                if P["BURST"]: sc.add(chk[:-2] + chk[-1:], 46, P["BURST"]); sc.pin(P["BURST"], chk[-2])
                else: sc.add(chk, 48, 56)
            if c == 3:
                if P["PF1"]:
                    NA = P["F1R"] // 2; Wd_ = 3584 // NA; nl = (Wd_ + 1023) // 1024; per = Wd_ // nl // 16
                    pf = [[f"v_min_u32 v{tm}, {per-1}, v{LN_}", f"v_lshlrev_b32 v{tm}, 4, v{tm}"],
                          [f"s_lshr_b32 s56, s2, 3", f"s_lshl_b32 s56, s56, 2", f"s_add_u32 s56, s56, s{sW}"], [f"s_mul_i32 s56, s56, {4*3584}",
                           f"s_and_b32 s57, s2, {NA-1}"], [f"s_mul_i32 s57, s57, {Wd_}", f"s_add_u32 s56, s56, s57"],
                          L(lambda: k.srd(12, 40, 512 * 3584), 16), L(lambda: k.srd(16, 42, 512 * 3584), 16)]
                    n = 0
                    for r in range(4):
                        for l_ in range(nl):
                            for srd in (12, 16):
                                pf.append(f"buffer_load_dwordx4 {a(192+4*(n%16),4)}, v{tm}, s[{srd}:{srd+3}], s56 offen offset:{l_*per*16}"); n += 1
                        pf.append(f"s_add_u32 s56, s56, 3584")
                    sc.add(pf[:6], 8, 32); sc.add(pf[6:], 32, 56)
                sc.pin(5, f"ds_read_b128 {v(STT,4)}, v{MX+2} offset:{L_K}")
                sc.pin(14, [f"v_or3_b32 v{STT}, v{STT}, v{STT+1}, v{STT+2}", f"v_or_b32 v{STT}, v{STT}, v{STT+3}"])
                sc.pin(22, f"v_readfirstlane_b32 s{sT2}, v{STT}")
                sc.pin(38, [f"s_lshl_b32 s{sT0}, s{sG}, 21", f"s_lshl_b32 s{sT1}, s{sRB}, 16", f"s_add_u32 s{sT0}, s{sT0}, s{sT1}"])
                sc.pin(46, [f"s_lshl_b32 s{sT1}, s{sW}, 13", f"s_add_u32 s{sT0}, s{sT0}, s{sT1}", f"s_add_u32 s{sT0}, s{sT0}, {WS_P:#x}"])
                sc.pin(54, [f"s_andn2_b32 s{sT2}, s{sT2}, s{sFB}", "s_cbranch_scc1 FALLBACK"])
        return f
    i0 = len(k.items)
    for c in range(4):
        gbody("O", c, ox(c))
        if P.get("OST") and c < 3: stamp(k, f"o{c}")
    X = P.get("DBGO", 0)
    if X:
        def keep(it):
            if it.kind in ("label", "raw"): return True
            if it.mn.startswith("s_cbranch"): return False
            if X & 1 and it.mn == "s_barrier": return False
            if X & 2 and it.mn == "s_waitcnt" and "vmcnt" in it.text: return False
            if X & 4 and it.kind in ("valu", "trans") and not it.mn.startswith(("v_min_u32", "v_lshlrev")): return False
            if X & 8 and it.kind == "vmem": return False
            if X & 16 and it.mn.startswith("ds_write"): return False
            if X & 32 and it.mn == "s_waitcnt" and "lgkmcnt" in it.text: return False
            return True
        k.items[i0:] = [it for it in k.items[i0:] if keep(it)]
        k.wait_all()
    if not P.get("DG"): stamp(k, "ogemm")
    for a_ in range(4):
        for rt in range(2):
            k(f"s_add_u32 s{sT1}, s{sT0}, {32768*rt + 2048*a_}")
            b = ACC + 32 * a_ + 16 * rt
            for sp in range(2):
                for j in range(4 * sp, 4 * sp + 4): k(f"v_cvt_pk_bf16_f32 v{Q+16*a_+8*rt+j}, v{b+2*j}, v{b+2*j+1}")
                k(f"buffer_store_dwordx4 {v(Q+16*a_+8*rt+4*sp,4)}, v{VL16}, s[24:27], s{sT1} offen offset:{1024*sp}" + ["", " nt", " sc1", " sc0 sc1"][P["PST"]])
    stamp_flush(k, 0)
    k.label("END_attn"); k("s_endpgm")
    k.label("FALLBACK")
    k.wait_all(); k("s_barrier")
    k(f"s_mov_b32 s{sFB}, 1")
    k("s_nop 15")
    k("s_branch RESTART")
    k.label("FB_MAX")
    k.wait_all(); k("s_barrier")
    k(f"v_mov_b32 v{MX+4}, 0xff800000"); k(f"v_mov_b32 v{MX+5}, 0xff800000")
    def fbody():
        put(k, kv_dma("K", L_K, sO0) + nxt(sO0, sO0)); k.wait("K"); k("s_barrier")
        for s_ in range(8): put(k, rdK(s_, s_, L_K))
        for s_ in range(8):
            for qt in range(2): k(qk(s_, s_, qt, 0, True))
        put(k, maxops(0, MX))
        k(f"v_max_f32 v{MX+4}, v{MX+4}, v{MX}"); k(f"v_max_f32 v{MX+5}, v{MX+5}, v{MX+1}")
        k("s_barrier")
    k.loop(sST, 16, fbody)
    put(k, xhalf_max(MX + 4, MX + 2))
    for qt in range(2): k(f"v_sub_f32 v{MX+4+qt}, 0, v{MX+4+qt}")
    put(k, kfirst)
    k.wait_all(); k("s_barrier")
    for f in range(4): put(k, rdK(f, f, L_K + 16384 + 8192))
    qk0(False)
    k.wait_all()
    k("s_branch IT0")
    return k

from gen7_ffn import gen_ffn1, gen_ffn2

HEADER = open('adaLN_cond__sliding_block_cached__geglu_ffn__prompt.s.ref').read().split("; Override launch")[0]

if __name__ == "__main__":
    out = sys.argv[1] if len(sys.argv) > 1 else "k.s"
    me = sys.modules[__name__]
    ks = [gen_attn(), gen_ln2(), gen_ffn1(me), gen_ffn2(me)]
    ks[-1].label("CODE_END")
    txt = emit(ks, header=HEADER)
    open(out, "w").write(txt)
    json.dump([[k.name, k.grid, k.block//64, k.stamps] for k in ks], open(out[:-2]+".json","w"))
    for k in ks: print(k.name, "regs(v,a,s)", k.used, "nops", k.n_nops, "misal", k.n_mis, "instrs", len(k.items))
```

```python
import math
from asmlib import *

def L(f, cost=4, mem=False):
    f.cost = cost; f.mem = mem; return f

def ffn1_body(M, k, tail_hook=None):
    P = M.P; f32 = M.f32; stamp = M.stamp
    NS = 5; SB = 28672 + 256; UOFF = 14336 + 128
    HB = 0; AF = 128; AC = 0
    VD = 112; VA = 119; VL16 = 123; TT = 124
    sW, sFS, sRB, sT0, sT1, sKS = 28, 29, 30, 31, 32, 33
    R = P["F1R"]
    M.split2(k, 2, sFS, sRB, 32 // R, 16, sT0, sKS)
    if R >= 8: k(f"s_and_b32 s{sKS}, s{sKS}, 7")
    else: k(f"s_lshl_b32 s{sKS}, s{sKS}, {M.lg2(8//R)}")
    k(f"s_and_b32 s{sT0}, s{sW}, 1"); k(f"s_mul_i32 s{sT1}, s{sT0}, 7168")
    k(f"s_mul_i32 s{sT0}, s{sT0}, 448")
    k(f"s_mul_i32 s36, s{sFS}, 224")
    k("s_mov_b32 s37, 4682")
    for n in range(7):
        k(f"v_add_u32 v{TT+1}, s{sT0}, v{TT}"); k(f"v_add_u32 v{TT+1}, {64*n}, v{TT+1}")
        k(f"v_mul_u32_u24 v{TT+2}, s37, v{TT+1}"); k(f"v_lshrrev_b32 v{TT+2}, 16, v{TT+2}")
        k(f"v_mul_u32_u24 v{TT+3}, 14, v{TT+2}"); k(f"v_sub_u32 v{TT+3}, v{TT+1}, v{TT+3}")
        k(f"v_mul_u32_u24 v{TT+2}, 3584, v{TT+2}"); k(f"v_lshl_add_u32 v{TT+2}, v{TT+3}, 4, v{TT+2}")
        k(f"v_add_u32 v{VD+n}, s36, v{TT+2}")
        if n % 4: k(f"v_subrev_u32 v{VD+n}, {1024*(n%4)}, v{VD+n}")
    k(f"s_cmp_lt_u32 s{sW}, 2")
    k(f"s_cselect_b32 s35, 0, {UOFF}")
    k("s_cselect_b32 s8, s40, s42"); k("s_cselect_b32 s9, s41, s43"); k("s_and_b32 s9, s9, 0xffff")
    k(f"s_mov_b32 s10, {512*3584}"); k("s_mov_b32 s11, 0x20000")
    k(f"s_add_u32 s35, s35, s{sT1}")
    def dma(slot):
        o = []
        for n in range(7):
            if n == 0: o.append([f"s_mul_i32 s{sT0}, s{sKS}, {64*3584}", f"s_add_u32 m0, s35, {SB*slot}"]); o.append([f"s_add_u32 s{sKS}, s{sKS}, 1", f"s_and_b32 s{sKS}, s{sKS}, 7"])
            if n == 4: o.append(f"s_add_u32 m0, s35, {SB*slot+4096}")
            o.append(L(lambda n=n: k(f"buffer_load_dwordx4 v{VD+n}, s[8:11], s{sT0} offen offset:{1024*(n%4)} lds", token=f"W{slot}"), 10, "v"))
        return o
    k(f"s_lshl_b32 s{sT1}, s{sRB}, 2"); k(f"s_add_u32 s{sT1}, s{sT1}, s{sW}"); k(f"s_lshl_b32 s{sT1}, s{sT1}, 15")
    k(f"s_add_u32 s38, s{sT1}, {M.WS_H2:#x}")
    k(f"s_mov_b32 s39, s{sKS}")
    HSC = " sc1" if P.get("M2") else ""
    def hload(st):
        o = [[f"s_lshl_b32 s{sT1}, s39, 12", f"s_add_u32 s{sT1}, s{sT1}, s38"], ["s_add_u32 s39, s39, 1", "s_and_b32 s39, s39, 7"]]
        o += [f"buffer_load_dwordx4 {a(HB+16*st+4*j,4)}, v{VL16}, s[24:27], s{sT1} offen offset:{1024*j}{HSC}" for j in range(4)]
        return o
    def addr_setup():
        r_, c2, gn, h_, tm = TT + 4, TT + 5, TT + 6, TT + 7, TT + 8
        M.lane_tr_parts(k, TT, r_, c2, gn, h_, tm)
        k(f"v_lshl_add_u32 v{tm}, v{h_}, 3, v{r_}"); k(f"v_mul_u32_u24 v{VA}, 224, v{tm}")
        k(f"v_mul_u32_u24 v{tm}, {UOFF}, v{gn}"); k(f"v_add_u32 v{VA}, v{VA}, v{tm}"); k(f"v_lshl_add_u32 v{VA}, v{c2}, 3, v{VA}")
        k(f"v_add_u32 v{VA+1}, {2*SB}, v{VA}"); k(f"v_add_u32 v{VA+2}, {4*SB}, v{VA}")
    M.put(k, dma(0)); M.put(k, hload(0)); M.put(k, dma(1)); M.put(k, hload(1))
    addr_setup()
    M.put(k, dma(2)); M.put(k, hload(2))
    VAs = [VA, VA, VA + 1, VA + 1, VA + 2]; VAo = [0, SB, 0, SB, 0]
    def reads(step):
        st, ks = divmod(step, 4); slot = st % NS; buf = step % 2
        return [f"ds_read_b64_tr_b16 {a(AF+28*buf+4*t+2*u,2)}, v{VAs[slot]} offset:{VAo[slot]+224*(16*ks+4*u)+32*t}" for t in range(7) for u in range(2)]
    def mf(step):
        st, ks = divmod(step, 4); buf = step % 2
        return [f"v_mfma_f32_32x32x16_bf16 {v(AC+16*t,16)}, {a(AF+28*buf+4*t,4)}, {a(HB+16*st+4*ks,4)}, {'0' if step == 0 else v(AC+16*t,16)}" for t in range(7)]
    stamp(k, "setup")
    k.wait("W0"); k("s_barrier")
    for x in reads(0): k(x)
    for st in range(8):
        sc = Sched(28)
        m_ = []
        for ks in range(4):
            step = 4 * st + ks
            if step + 1 < 32:
                if ks == 3: sc.pin(21, L(lambda st=st: (k.wait(f"W{(st+1) % NS}"), k("s_barrier")), 8))
                rd = reads(step + 1)
                sc.add(rd, 7 * ks, 7 * ks + 6, prio=1)
                sc.pin(7 * ks + 6, L(lambda step=step: k.wait_regs(a(AF + 28 * ((step + 1) % 2), 16), a(HB + 4 * (step + 1), 4))), end=True)
                if ks < 3: sc.pin(7 * ks + 10, L(lambda step=step: k.wait_regs(a(AF + 28 * ((step + 1) % 2), 28))), end=True)
            if ks == 0 and st > 0: sc.pin(3, L(lambda step=step: k.wait_regs(a(AF + 28 * (step % 2), 28))), end=True)
            m_ += mf(step)
        if st + 3 < 8: sc.add(dma((st + 3) % NS) + hload(st + 3), 0, 21)
        if tail_hook: tail_hook(st, sc)
        for m, f_ in zip(m_, sc.run()): k(m); M.put(k, f_)
        if st % 4 == 3: stamp(k, f"st{st}")
    K0_ = -2 * math.sqrt(2 / math.pi) * M.LOG2E
    pre = [f"s_mov_b32 s36, {f32(K0_*0.044715)}", "s_mov_b32 s37, s36", f"v_mov_b32 v{TT+2}, {f32(K0_)}", f"v_mov_b32 v{TT+3}, {f32(K0_)}",
           f"s_lshl_b32 s{sT1}, s{sRB}, 2", f"s_add_u32 s{sT1}, s{sT1}, s{sW}", f"s_mul_i32 s{sT1}, s{sT1}, {224*512}",
           f"s_mul_i32 s{sT0}, s{sFS}, {14*512}", f"s_add_u32 s38, s{sT1}, s{sT0}", f"s_add_u32 s38, s38, {M.WS_ACT:#x}", "s_add_u32 s39, s38, 4096"]
    tiles = []
    for t in range(7):
        G = AC + 16 * t; E = 136 + 8 * (t % 2); D = 152 + 4 * (t % 2)
        o = []
        o += [f"v_pk_mul_f32 {v(E+r,2)}, {v(G+r,2)}, {v(G+r,2)}" for r in range(0, 8, 2)]
        o += [f"v_pk_fma_f32 {v(E+r,2)}, {v(E+r,2)}, s[36:37], {v(TT+2,2)}" for r in range(0, 8, 2)]
        o += [f"v_pk_mul_f32 {v(E+r,2)}, {v(E+r,2)}, {v(G+r,2)}" for r in range(0, 8, 2)]
        o += [f"v_exp_f32 v{E+r}, v{E+r}" for r in range(8)]
        o += [f"v_pk_mul_f32 {v(G+r,2)}, {v(G+r,2)}, {v(G+8+r,2)}" for r in range(0, 8, 2)]
        o += [f"v_pk_add_f32 {v(E+r,2)}, {v(E+r,2)}, 1.0 op_sel_hi:[1,0]" for r in range(0, 8, 2)]
        o += [f"v_rcp_f32 v{E+r}, v{E+r}" for r in range(8)]
        o += [f"v_pk_mul_f32 {v(G+r,2)}, {v(G+r,2)}, {v(E+r,2)}" for r in range(0, 8, 2)]
        o += [f"v_cvt_pk_bf16_f32 v{D+j}, v{G+2*j}, v{G+2*j+1}" for j in range(4)]
        o.append(lambda t=t, D=D: k(f"buffer_store_dwordx4 {v(D,4)}, v{VL16}, s[24:27], s{38 if t<4 else 39} offen offset:{1024*(t%4)} sc1", token="ST"))
        tiles.append(o)
    return pre, tiles

def gen_ffn(M):
    P = M.P; f32 = M.f32; stamp = M.stamp; put = M.put
    k = Kernel("ffn_kernel", 256, 256, 163840, vgpr=256, agpr=256, sgpr=72)
    VL16, TT = 123, 124
    sW = 28
    k("s_cmp_ge_u32 s2, 256"); k("s_cbranch_scc1 END_ffn")
    M.stamp_begin(k)
    k(f"s_load_dwordx4 s[40:43], s[0:1], {M.A_WG}")
    k(f"s_load_dwordx2 s[44:45], s[0:1], {M.A_WD}")
    k(f"s_load_dwordx2 s[46:47], s[0:1], {M.A_WS}")
    k(f"s_load_dwordx2 s[48:49], s[0:1], {M.A_OUT}")
    M.wave_id(k, sW, TT)
    k(f"v_and_b32 v{TT}, 63, v0"); k(f"v_lshlrev_b32 v{VL16}, 4, v{TT}")
    k.srd(24, 46, M.WS_BYTES)
    NSL = 20; NB = 14
    BFR = 0
    AF2 = 112
    AC2 = 192
    VD0, VD1, VW, VL2, T2 = 160, 161, 162, 164, 168
    sNB, sRB2, sA0, sA1, sKW, sKA, sRING, sAB, sK0 = 50, 51, 52, 53, 54, 55, 56, 57, 58
    def setup2():
        o = []
        o.append(L(lambda: M.split2(k, 2, sNB, sRB2, 32 // P["F2R"], 32, sA0, sKW), 40))
        o += [L(lambda: k.srd(12, 44, 1792 * 1024), 16), L(lambda: k.srd(16, 48, 2048 * 1024), 16)]
        o += [f"v_lshrrev_b32 v{T2+1}, 3, v{TT}", f"v_bfe_u32 v{T2+2}, v{TT}, 4, 1", f"v_lshlrev_b32 v{T2+2}, 2, v{T2+2}",
              f"v_and_b32 v{T2+3}, 7, v{TT}", f"v_xor_b32 v{T2+3}, v{T2+3}, v{T2+2}", f"v_lshlrev_b32 v{T2+3}, 4, v{T2+3}",
              f"s_lshl_b32 s{sA0}, s{sNB}, 7", f"v_lshl_add_u32 v{VD0}, v{T2+1}, 10, v{T2+3}", f"v_add_u32 v{VD0}, s{sA0}, v{VD0}",
              f"v_add_u32 v{VD1}, {8*1024-1024}, v{VD0}", f"s_mul_i32 s{sRING}, s{sW}, {NSL*2048}", f"v_add_u32 v{VL2}, {224*512}, v{VL16}",
              [f"s_lshr_b32 s{sKW}, s2, 3", f"s_mul_i32 s{sKW}, s{sKW}, 7", f"s_lshr_b32 s{sKW}, s{sKW}, 3"], [f"s_mov_b32 s{sKA}, s{sKW}", f"s_mul_i32 s{sK0}, s{sW}, 28"],
              [f"s_mul_i32 s{sAB}, s{sRB2}, {2*224*512}", f"s_add_u32 s{sAB}, s{sAB}, {M.WS_ACT:#x}"]]
        r_, c2, gn, h_, tm = TT + 4, TT + 5, TT + 6, TT + 7, T2 + 4
        o += [f"v_lshl_add_u32 v{tm}, v{h_}, 3, v{r_}", f"v_lshlrev_b32 v{VW}, 7, v{tm}", f"v_lshl_add_u32 v{tm+1}, v{gn}, 2, v{c2}",
              f"v_lshl_add_u32 v{VW}, v{tm+1}, 3, v{VW}", f"v_lshrrev_b32 v{tm}, 1, v{r_}", f"v_lshl_add_u32 v{VW}, v{tm}, 6, v{VW}",
              f"v_add_u32 v{VW}, s{sRING}, v{VW}", f"v_xor_b32 v{VW+1}, 64, v{VW}"]
        o += [f"v_lshlrev_b32 v{T2}, 7, v{TT}", [f"s_lshr_b32 s59, s{sRB2}, 1", "s_lshl_b32 s59, s59, 11", f"s_add_u32 s59, s59, {M.WS_FL:#x}"],
              ["s_lshl_b32 s60, s30, 4", "s_add_u32 s60, s60, s29", "s_lshl_b32 s60, s60, 7"], f"s_add_u32 s60, s60, {M.WS_FL:#x}"]
        return o
    def pf2():
        nA = 32 // P["F2R"]; NA = 8 // nA; rows = 8 // nA; nin = 14 // rows
        o = [f"v_lshrrev_b32 v{T2+8}, {M.lg2(8*nA)}, v{TT}", f"v_lshlrev_b32 v{T2+8}, 10, v{T2+8}", f"v_and_b32 v{T2+9}, {8*nA-1}, v{TT}", f"v_lshl_add_u32 v{T2+8}, v{T2+9}, 4, v{T2+8}",
             ["s_lshr_b32 s61, s2, 3", "s_lshl_b32 s61, s61, 2", f"s_add_u32 s61, s61, s{sW}"], [f"s_mul_i32 s61, s61, {14*1024}", f"s_and_b32 s62, s2, {NA-1}"],
             [f"s_mul_i32 s62, s62, {128*nA}", "s_add_u32 s61, s61, s62"]]
        o += [[f"buffer_load_dwordx4 {v(192+4*n,4)}, v{T2+8}, s[12:15], s61 offen", f"s_add_u32 s61, s61, {1024*rows}"] for n in range(nin)]
        return o
    def hook(st, sc):
        if st == 4: sc.add(setup2(), 0, 28)
        if st == 5 and P["PF2"]: sc.add(pf2(), 0, 28)
    pre, tiles = ffn1_body(M, k, hook)
    def wdma(i):
        sl = i % NSL
        return [[f"s_add_u32 s{sA0}, s{sKW}, s{sK0}", f"s_lshl_b32 s{sA0}, s{sA0}, 14", f"s_add_u32 m0, s{sRING}, {2048*sl}"],
                [f"s_add_u32 s{sKW}, s{sKW}, 1", f"s_cmp_ge_u32 s{sKW}, 28", f"s_cselect_b32 s{sKW}, 0, s{sKW}"],
                f"buffer_load_dwordx4 v{VD0}, s[12:15], s{sA0} offen lds",
                L(lambda: k(f"buffer_load_dwordx4 v{VD1}, s[12:15], s{sA0} offen offset:1024 lds", token=f"D{sl}"), 10, "v")]
    def aload(i):
        sl = i % NB
        return [[f"s_add_u32 s{sA1}, s{sKA}, s{sK0}", f"s_lshl_b32 s{sA1}, s{sA1}, 10", f"s_add_u32 s{sA1}, s{sA1}, s{sAB}"],
                [f"s_add_u32 s{sKA}, s{sKA}, 1", f"s_cmp_ge_u32 s{sKA}, 28", f"s_cselect_b32 s{sKA}, 0, s{sKA}"],
                f"buffer_load_dwordx4 {a(BFR+8*sl,4)}, v{VL16}, s[24:27], s{sA1} offen sc1",
                f"buffer_load_dwordx4 {a(BFR+8*sl+4,4)}, v{VL2}, s[24:27], s{sA1} offen sc1"]
    put(k, pre)
    k("s_barrier")
    W1 = P["FW1"]
    n = 0
    for t in range(7):
        per = (W1 * (t + 1)) // 6 - (W1 * t) // 6 if t < 6 else 0
        for j in range(per): put(k, wdma(n)); n += 1
        put(k, tiles[t])
    stamp(k, "epi")
    k.wait("ST"); k("s_barrier")
    def cond(sreg, lab, body):
        k(f"s_cmp_lg_u32 s{sreg}, 0"); k(f"s_cbranch_scc1 {lab}")
        s0 = (dict(k.vm), dict(k.lg)); body(); k.label(lab)
        k.vm = k._merge(k.vm, s0[0]); k.lg = k._merge(k.lg, s0[1])
    def flag():
        k("s_mov_b64 exec, 1"); k(f"v_mov_b32 v{T2+1}, 1")
        k(f"buffer_store_dword v{T2+1}, v{T2}, s[24:27], s60 offen sc1")
        k("s_mov_b64 exec, -1")
    cond(sW, "NOFLAG_ffn", flag)
    stamp(k, "pub")
    X1R, GB = 176, 184
    h_ = TT + 7; tm = T2 + 4
    k(f"s_lshl_b32 s61, s{sRB2}, 1"); k(f"s_and_b32 s62, s{sW}, 1"); k("s_add_u32 s63, s61, s62")
    k(f"s_lshr_b32 s64, s{sW}, 1"); k("s_lshl_b32 s64, s64, 2"); k(f"s_lshl_b32 s61, s{sNB}, 3"); k("s_add_u32 s64, s64, s61")
    k("s_lshl_b32 s61, s63, 15"); k("s_lshl_b32 s62, s64, 9"); k("s_add_u32 s61, s61, s62"); k(f"s_add_u32 s61, s61, {M.WS_X1:#x}")
    for sp in range(2): k(f"buffer_load_dwordx4 {v(X1R+4*sp,4)}, v{VL16}, s[24:27], s61 offen offset:{1024*sp}")
    k(f"v_lshlrev_b32 v{tm}, 5, v{h_}")
    k("s_lshl_b32 s62, s64, 5"); k(f"s_add_u32 s62, s62, {M.WS_MOD+5*2048}")
    for sp in range(2):
        for q in range(2): k(f"buffer_load_dwordx4 {v(GB+8*sp+4*q,4)}, v{tm}, s[24:27], s62 offen offset:{64*sp+16*q}")
    while n < P["FW2"]: put(k, wdma(n)); n += 1
    def poll():
        k("s_mov_b64 exec, 0xffff")
        k("s_mov_b32 s61, 0")
        k.label("POLL_ffn")
        k(f"buffer_load_dword v{T2+1}, v{T2}, s[24:27], s59 offen sc1")
        k("s_add_u32 s61, s61, 1")
        k(f"v_cmp_eq_u32 vcc, 0, v{T2+1}")
        k("s_cmp_gt_u32 s61, 0x40000"); k("s_cbranch_scc1 POLLED_ffn")
        k("s_cbranch_vccz POLLED_ffn")
        k(f"s_sleep {P['SLEEP2']}"); k("s_branch POLL_ffn")
        k.label("POLLED_ffn")
        k("s_mov_b64 exec, -1")
    cond(sW, "NOPOLL_ffn", poll)
    k("s_barrier")
    stamp(k, "poll")
    PRE = P["F2PRE"]
    for i in range(PRE): put(k, aload(i))
    def reads(i):
        sl = i % NSL
        rd = [f"ds_read_b64_tr_b16 {a(AF2+8*(i%2)+4*a_+2*u,2)}, v{VW+a_} offset:{2048*sl+512*u}" for a_ in range(2) for u in range(2)]
        return [[L(lambda: k.wait(f"D{sl}")), rd[0]]] + rd[1:]
    put(k, reads(0))
    stamp(k, "iss")
    nw = n
    for i in range(28):
        sc = Sched(4, budget=40)
        if i + 1 < 28: sc.add(reads(i + 1), 0, 2, prio=1)
        ld = aload(i + PRE) if i + PRE < 28 else []
        if nw < 28 and nw - NSL < i: ld = ld + wdma(nw); nw += 1
        sc.add(ld, 0, 4)
        mf = [f"v_mfma_f32_32x32x16_bf16 {a(AC2+32*a_+16*rt,16)}, {a(AF2+8*(i%2)+4*a_,4)}, {a(BFR+8*(i%NB)+4*rt,4)}, {'0' if i==0 else a(AC2+32*a_+16*rt,16)}" for a_ in range(2) for rt in range(2)]
        for m, f_ in zip(mf, sc.run()): k(m); put(k, f_)
        if i == 13: stamp(k, "k14")
    stamp(k, "main")
    k("s_barrier")
    k(f"s_lshl_b32 s61, s{sW}, 14"); k(f"v_add_u32 v{tm+1}, s61, v{VL16}")
    for q in range(16): k(f"ds_write_b128 v{tm+1}, {a(AC2+4*q,4)} offset:{1024*q}", token="red")
    R_ = 16
    k("s_mov_b32 s39, 0xffff0000")
    for r in range(16):
        if r % 2 == 0: k(f"v_lshlrev_b32 v{96+r}, 16, v{X1R+r//2}")
        else: k(f"v_and_b32 v{96+r}, s39, v{X1R+r//2}")
    k(f"v_and_b32 v{tm}, 31, v{TT}"); k(f"v_lshlrev_b32 v{tm}, 10, v{tm}"); k(f"v_lshl_add_u32 v{tm}, v{h_}, 4, v{tm}")
    k(f"s_lshl_b32 s61, s{sW}, 12"); k(f"v_add_u32 v{tm+2}, s61, v{VL16}")
    k("s_lshl_b32 s61, s63, 15"); k("s_lshl_b32 s62, s64, 4"); k("s_add_u32 s61, s61, s62")
    k.wait("red"); k("s_barrier")
    for q in range(4):
        for ww in range(4): k(f"ds_read_b128 {v(R_+16*ww+4*q,4)}, v{tm+2} offset:{16384*ww+1024*q}")
    for sp in range(2):
        for r in range(8 * sp, 8 * sp + 8, 2):
            k(f"v_pk_add_f32 {v(R_+r,2)}, {v(R_+r,2)}, {v(R_+16+r,2)}"); k(f"v_pk_add_f32 {v(R_+32+r,2)}, {v(R_+32+r,2)}, {v(R_+48+r,2)}")
        for r in range(8 * sp, 8 * sp + 8, 2): k(f"v_pk_add_f32 {v(R_+r,2)}, {v(R_+r,2)}, {v(R_+32+r,2)}")
        for r in range(8 * sp, 8 * sp + 8, 2): k(f"v_pk_fma_f32 {v(R_+r,2)}, {v(R_+r,2)}, {v(GB+r,2)}, {v(96+r,2)}")
        for j in range(4 * sp, 4 * sp + 4): k(f"v_cvt_pk_bf16_f32 v{80+j}, v{R_+2*j}, v{R_+2*j+1}")
        k(f"buffer_store_dwordx4 {v(80+4*sp,4)}, v{tm}, s[16:19], s61 offen offset:{32*sp}" + (" sc1" if P.get("OSC") else ""))
    M.stamp_flush(k, 2)
    k.label("END_ffn"); k("s_endpgm")
    return k
```

```python
import sys, struct, math, os, json
from asmlib import *

def f32(x): return "0x%08x" % struct.unpack("<I", struct.pack("<f", x))[0]
LOG2E = 1.4426950408889634
CS = 128 ** -0.5
A_X, A_K, A_V, A_WQ, A_WO, B_X, A_WG, A_WU, A_WD, A_C, A_WM, A_OUT, A_DBG, A_WS = [8 * i for i in range(14)]
WS_MOD = 0x0
WS_FL = 0x20000
WS_ST = 0x10000
WS_P = 0x400000
WS_X1 = 0x1400000
WS_H2 = 0x1600000
WS_ACT = 0x1800000
WS_BYTES = 0x10000000
WS_DBG = 0x8000000
P = dict(STAMPS=0, G=2, ROT=1, F1R=8, F2R=8, PREF0=1, PREFC=1, PREFQ=1, PREFK=1, PORD=1, XPRE=0, TLBW=1, PBAR=3, WPOS=1, DEFER=1, SYNC=1, LFIRST=0, SLEEP=8, SLEEP2=4, FW1=10, FW2=20, F2PRE=12, PSYS=0, WPRE=2, BURST=54, KEARLY=0, BIAS=100, FORCE_FB=0, PNT=0, PST=2, AST=2, PF1=1, PF2=1)
for kv in os.environ.get("GP", "").split(","):
    if kv: P[kv.split("=")[0]] = int(kv.split("=")[1])

def stamp(k, name):
    if not P["STAMPS"]: return
    i = len(k.stamps); k.stamps.append(name)
    assert i < 12
    k.sgpr = 102
    k("s_memtime s[72:73]"); k("s_memrealtime s[74:75]"); k("s_waitcnt lgkmcnt(0)")
    k(f"s_mov_b32 s{76+2*i}, s72"); k(f"s_mov_b32 s{77+2*i}, s74")
def stamp_begin(k):
    k.stamps = []
    if not P["STAMPS"]: return
    k("v_lshrrev_b32 v1, 6, v0"); k("v_readfirstlane_b32 s101, v1")
    stamp(k, "start")
def stamp_flush(k, kidx):
    if not P["STAMPS"]: return
    stamp(k, "end")
    if P["STAMPS"] == 2:
        lab = k.newlabel("NODBG")
        k("s_mov_b64 exec, -1")
        k("s_or_b32 s100, s2, s101"); k("s_cmp_lg_u32 s100, 0"); k(f"s_cbranch_scc1 {lab}")
        k(f"s_load_dwordx2 s[64:65], s[0:1], {A_WS}")
        k(f"s_load_dwordx2 s[66:67], s[0:1], {A_DBG}")
        k.srd(56, 64, 256, WS_DBG)
        n = len(k.stamps) - 1
        k(f"s_sub_u32 s100, s{76+2*n}, s76")
        k("v_mov_b32 v1, 0")
        for j, sr in enumerate([77, 77 + 2*n, 100]):
            k(f"v_mov_b32 v0, s{sr}")
            k(f"buffer_store_dword v0, v1, s[56:59], 0 offen offset:{12*kidx+4*j} sc0 sc1")
        k.wait_all()
        k("v_mbcnt_lo_u32_b32 v1, -1, 0"); k("v_mbcnt_hi_u32_b32 v1, -1, v1"); k("v_lshlrev_b32 v1, 2, v1")
        k("buffer_load_dword v0, v1, s[56:59], 0 offen sc0 sc1")
        k.srd(60, 66, 256)
        k("buffer_store_dword v0, v1, s[60:63], 0 offen")
        k.label(lab)
        return
    k(f"s_load_dwordx2 s[64:65], s[0:1], {A_WS}")
    k("s_mov_b64 exec, -1")
    k.srd(56, 64, WS_BYTES)
    k("s_lshl_b32 s100, s2, 3"); k("s_add_u32 s100, s100, s101"); k("s_lshl_b32 s100, s100, 8")
    k(f"s_add_u32 s100, s100, {WS_DBG + kidx*0x100000:#x}")
    k("v_mov_b32 v1, 0")
    for j, sr in enumerate([76 + i for i in range(2*len(k.stamps))]):
        k(f"v_mov_b32 v0, s{sr}")
        k(f"buffer_store_dword v0, v1, s[56:59], s100 offen offset:{4*j}")

def wave_id(k, sdst, vtmp):
    k(f"v_lshrrev_b32 v{vtmp}, 6, v0")
    k(f"v_readfirstlane_b32 s{sdst}, v{vtmp}")
def rowsum_8(k, val, tmp):
    k(f"v_add_f32_dpp v{val}, v{val}, v{val} row_ror:8 row_mask:0xf bank_mask:0xf")
    k(f"v_mov_b32 v{tmp}, v{val}"); k(f"v_permlane16_swap_b32 v{val}, v{tmp}"); k(f"v_add_f32 v{val}, v{val}, v{tmp}")
    k(f"v_mov_b32 v{tmp}, v{val}"); k(f"v_permlane32_swap_b32 v{val}, v{tmp}"); k(f"v_add_f32 v{val}, v{val}, v{tmp}")
def rnd(k, d, sreg): k(f"v_cvt_pk_bf16_f32 v{d}, 0, v{sreg}")
def lg2(x): return x.bit_length() - 1
def split2(k, sb, sA, sB, nA_per, nB_total, t0, t1):
    A_total = 256 // nB_total; NA = A_total // nA_per
    k(f"s_and_b32 s{t0}, s{sb}, 7"); k(f"s_lshr_b32 s{t1}, s{sb}, 3")
    k(f"s_and_b32 s{sA}, s{t0}, {NA-1}"); k(f"s_lshl_b32 s{sA}, s{sA}, {lg2(nA_per)}")
    k(f"s_and_b32 s{sB}, s{t1}, {nA_per-1}"); k(f"s_add_u32 s{sA}, s{sA}, s{sB}")
    k(f"s_lshr_b32 s{sB}, s{t0}, {lg2(NA)}"); k(f"s_lshl_b32 s{sB}, s{sB}, {lg2(32//nA_per)}")
    k(f"s_lshr_b32 s{t1}, s{t1}, {lg2(nA_per)}"); k(f"s_add_u32 s{sB}, s{sB}, s{t1}")
def lane_tr_parts(k, lane, r, c2, gn, h, tmp):
    k(f"v_bfe_u32 v{r}, v{lane}, 2, 2")
    k(f"v_and_b32 v{c2}, 1, v{lane}"); k(f"v_lshlrev_b32 v{c2}, 1, v{c2}")
    k(f"v_bfe_u32 v{tmp}, v{lane}, 1, 1"); k(f"v_or_b32 v{c2}, v{c2}, v{tmp}")
    k(f"v_bfe_u32 v{gn}, v{lane}, 4, 1")
    k(f"v_lshrrev_b32 v{h}, 5, v{lane}")

QS = CS * LOG2E
def ln_stats(k, XF):
    k(f"v_pk_add_f32 v[10:11], {v(XF,2)}, {v(XF+2,2)}")
    for e in range(4, 16, 2): k(f"v_pk_add_f32 v[10:11], v[10:11], {v(XF+e,2)}")
    k("v_add_f32 v10, v10, v11")
    def allreduce(off):
        rowsum_8(k, 10, 11)
        k(f"ds_write_b32 v9, v10 offset:{off}", token="w"); k.wait("w"); k("s_barrier")
        k(f"ds_read_b128 {v(12,4)}, v8 offset:{off}")
        k("v_add_f32 v12, v12, v13"); k("v_add_f32 v14, v14, v15"); k("v_add_f32 v10, v12, v14")
    allreduce(0)
    k(f"v_mul_f32 v58, {f32(-1/512)}, v10"); k("v_mov_b32 v59, v58")
    for e in range(0, 16, 2): k(f"v_pk_add_f32 {v(XF+e,2)}, {v(XF+e,2)}, v[58:59]")
    k(f"v_pk_mul_f32 v[10:11], {v(XF,2)}, {v(XF,2)}")
    for e in range(2, 16, 2): k(f"v_pk_fma_f32 v[10:11], {v(XF+e,2)}, {v(XF+e,2)}, v[10:11]")
    k("v_add_f32 v10, v10, v11")
    allreduce(128)
    k(f"v_mov_b32 v11, {f32(1e-5)}"); k(f"v_fmac_f32 v11, {f32(1/512)}, v10")
    k("v_rsq_f32 v56, v11"); k("v_mov_b32 v57, v56")

def gen_ln2():
    k = Kernel("ln2_kernel", 256, 256, 256, vgpr=160, sgpr=64)
    k("s_cmp_ge_u32 s2, 256"); k("s_cbranch_scc1 END_ln2")
    stamp_begin(k)
    k(f"s_load_dwordx2 s[4:5], s[0:1], {A_X}")
    k(f"s_load_dwordx2 s[6:7], s[0:1], {A_WS}")
    k("v_and_b32 v1, 7, v0"); k("v_lshrrev_b32 v2, 3, v0"); k("v_lshrrev_b32 v6, 6, v0")
    k("v_and_b32 v7, 7, v2"); k("v_lshl_add_u32 v7, v6, 4, v7")
    k("v_lshlrev_b32 v3, 9, v7"); k("v_lshl_add_u32 v3, v1, 4, v3")
    k("v_add_u32 v2, 4096, v3")
    k("v_lshlrev_b32 v4, 10, v1"); k("v_lshl_add_u32 v4, v7, 4, v4")
    k("v_lshlrev_b32 v5, 5, v7")
    k("v_lshlrev_b32 v8, 4, v1"); k("v_lshl_add_u32 v9, v6, 2, v8")
    k("s_and_b32 s25, s2, 7"); k("s_lshl_b32 s25, s25, 5"); k("s_lshr_b32 s26, s2, 3"); k("s_add_u32 s25, s25, s26")
    k("s_lshl_b32 s20, s25, 13")
    k("s_lshr_b32 s21, s25, 2"); k("s_lshl_b32 s21, s21, 15"); k("s_and_b32 s22, s25, 3"); k("s_lshl_b32 s22, s22, 7")
    k("s_add_u32 s21, s21, s22")
    k(f"s_add_u32 s23, s21, {WS_P:#x}")
    k.srd(12, 6, WS_BYTES)
    X = 16; XF = 24; MV = 40; PB = 64
    for g in range(8):
        for i in range(2):
            k(f"buffer_load_dwordx4 {v(PB+8*g+4*i,4)}, v{3-i}, s[12:15], s23 offen" + (" nt" if P["PNT"] else ""))
        if g < 7: k("s_add_u32 s23, s23, 0x200000")
    k.srd(8, 4, 2048 * 1024)
    for i in range(2): k(f"buffer_load_dwordx4 {v(X+4*i,4)}, v4, s[8:11], s20 offen offset:{128*i}")
    k("v_mov_b32 v10, 0"); k("s_lshl_b32 s27, s2, 7"); k(f"s_add_u32 s27, s27, {WS_FL:#x}")
    k("buffer_store_dword v10, v10, s[12:15], s27 offen sc1")
    k("s_mov_b32 s24, 0xffff0000")
    def load_mod(base, m):
        k(f"s_mov_b32 s23, {WS_MOD + m*2048}")
        for i in range(2):
            for hh in range(2):
                k(f"buffer_load_dwordx4 {v(base+8*i+4*hh,4)}, v5, s[12:15], s23 offen offset:{256*i+16*hh}")
    def unpack(dst, src):
        k(f"v_lshlrev_b32 v{dst}, 16, v{src}"); k(f"v_and_b32 v{dst+1}, s24, v{src}")
    load_mod(MV, 2); load_mod(128, 4); load_mod(144, 3)
    for q in range(8): unpack(XF + 2 * q, PB + q)
    for g in range(1, 8):
        for q in range(8):
            unpack(10 + 2 * (q & 1), PB + 8 * g + q)
            k(f"v_pk_add_f32 {v(XF+2*q,2)}, {v(XF+2*q,2)}, {v(10+2*(q&1),2)}")
    for q in range(8):
        unpack(10, X + q)
        k(f"v_pk_fma_f32 v[10:11], {v(XF+2*q,2)}, {v(MV+2*q,2)}, v[10:11]")
        k(f"v_cvt_pk_bf16_f32 v{X+q}, v10, v11")
        unpack(XF + 2 * q, X + q)
    k(f"s_add_u32 s23, s21, {WS_X1:#x}")
    for i in range(2): k(f"buffer_store_dwordx4 {v(X+4*i,4)}, v{3-i}, s[12:15], s23 offen sc1")
    stamp(k, "x1")
    ln_stats(k, XF)
    stamp(k, "stats")
    for e in range(0, 16, 2):
        k(f"v_pk_mul_f32 {v(XF+e,2)}, {v(XF+e,2)}, v[56:57]")
        k(f"v_pk_fma_f32 {v(XF+e,2)}, {v(XF+e,2)}, {v(128+e,2)}, {v(144+e,2)}")
        k(f"v_cvt_pk_bf16_f32 v{MV+e//2}, v{XF+e}, v{XF+e+1}")
    k(f"s_add_u32 s23, s21, {WS_H2:#x}")
    for i in range(2): k(f"buffer_store_dwordx4 {v(MV+4*i,4)}, v{3-i}, s[12:15], s23 offen sc1")
    stamp_flush(k, 1)
    k.label("END_ln2"); k("s_endpgm")
    return k

def put(k, seq):
    for x in seq:
        if isinstance(x, list): put(k, x)
        elif callable(x): x()
        else: k(x)

def gen_attn():
    k = Kernel("attn_kernel", 256, 256, 163840, vgpr=256, agpr=256, sgpr=72)
    k.denorm32 = P.get("DEN", 3)
    L_K, L_H, L_V, L_W, L_M = 0, 32768, 32768, 98304, 16384
    ACC = 0; S = 0; CI = 64; Q = 128
    VK = 192; VV = 200; VW = 204; VDW = 208; VDK = 212; VDV = 214; VLIN = 215; VL16 = 216
    LS = 217
    T = 220
    LN_, ROWL, GR16 = T, T + 1, T + 2
    r_, c2, gn, h_, tm = T + 3, T + 4, T + 5, T + 6, T + 7
    CH8 = T + 10; HW = T + 11
    VX = T + 13; VM = T + 15
    MX = T + 16
    STT = T + 24
    RL = T + 28; UT = T + 28
    O = 0; FR = 128; AF = 128; BF = 160
    sW, sG, sRB, sT0, sT1, sRING, sST, sFB, sROT, sT2 = 28, 29, 30, 32, 33, 34, 35, 39, 50, 51
    sO0, sO1, sO2, sW2K, sW256, sKhi, sMASK, sCC, sR8 = 36, 37, 38, 52, 54, 55, 58, 59, 6
    TAB = 60
    def L(f, cost=4, mem=False):
        f.cost = cost; f.mem = mem; return f
    k("s_cmp_ge_u32 s2, 256"); k("s_cbranch_scc1 END_attn")
    stamp_begin(k)
    k(f"s_mov_b32 s{sFB}, 0")
    if P["PREFC"]:
        k("s_getpc_b64 s[56:57]")
        k.label("PCREF")
        k(f"s_lshr_b32 s{sT1}, s2, 3"); k(f"s_lshl_b32 s{sT1}, s{sT1}, 12")
        k("v_lshlrev_b32 v108, 4, v0"); k(f"v_add_u32 v108, s{sT1}, v108"); k("v_min_u32 v108, CODE_END-PCREF-16, v108")
        k("global_load_dwordx4 a[252:255], v108, s[56:57]")
    wave_id(k, sW, T)
    k(f"v_and_b32 v{LN_}, 63, v0")
    k.label("RESTART")
    k(f"s_load_dwordx4 s[8:11], s[0:1], {A_C}")
    k(f"s_load_dwordx2 s[4:5], s[0:1], {A_X}")
    k(f"s_load_dwordx4 s[68:71], s[0:1], {A_DBG}")
    k(f"s_load_dwordx8 s[40:47], s[0:1], {A_K}")
    L_R = L_M + 4096
    PSC = "sc1"
    GW, GC, GA = 64, 80, 88
    k(f"v_lshl_add_u32 v99, s{sW}, 6, v{LN_}")
    k("v_and_b32 v100, 1, v99"); k("v_lshrrev_b32 v101, 1, v99")
    k("v_mul_u32_u24 v102, 6144, v101"); k("v_lshl_add_u32 v102, v100, 4, v102"); k("v_lshlrev_b32 v103, 1, v101")
    k("v_lshrrev_b32 v104, 4, v99"); k("v_lshlrev_b32 v104, 6, v104"); k("v_lshl_add_u32 v104, v100, 5, v104")
    sSL = 7; sPR = 53
    k(f"s_and_b32 s{sT0}, s2, 7"); k(f"s_lshr_b32 s{sT1}, s2, 3")
    k(f"s_lshl_b32 s{sSL}, s{sT0}, 3"); k(f"s_add_u32 s{sSL}, s{sSL}, s{sT1}")
    k(f"s_lshl_b32 s{sT2}, s{sT0}, 4"); k(f"s_add_u32 s{sT2}, s{sT2}, s{sT1}"); k(f"s_add_u32 s{sT2}, s{sT2}, 56")
    k("s_cmp_lt_u32 s2, 64"); k(f"s_cselect_b32 s{sSL}, s{sSL}, s{sT2}")
    k(f"s_cselect_b32 s{sPR}, s{sFB}, 1")
    k(f"s_lshl_b32 s31, s{sSL}, 5")
    k(f"v_lshlrev_b32 v{VL16}, 4, v{LN_}")
    G = P["G"]
    NG = 8 // G; NS = 32 // G
    k(f"s_and_b32 s{sG}, s2, {NG-1}"); k(f"s_lshl_b32 s{sG}, s{sG}, {lg2(G)}"); k(f"s_lshr_b32 s{sT0}, s2, {3+lg2(NS)}"); k(f"s_add_u32 s{sG}, s{sG}, s{sT0}")
    k(f"s_bfe_u32 s{sROT}, s2, {3 | (lg2(NS) << 16):#x}")
    k(f"s_and_b32 s{sRB}, s2, 7"); k(f"s_lshr_b32 s{sRB}, s{sRB}, {lg2(NG)}"); k(f"s_lshl_b32 s{sRB}, s{sRB}, {lg2(NS)}"); k(f"s_add_u32 s{sRB}, s{sRB}, s{sROT}")
    k(f"s_lshl_b32 s{sROT}, s{sROT}, {lg2(G)}")
    k(f"s_and_b32 s{sR8}, s{sROT}, 7"); k(f"s_lshr_b32 s{sCC}, s{sROT}, 3")
    RR, CGL = tm, tm + 1
    k(f"v_and_b32 v{RR}, 7, v{LN_}"); k(f"v_lshrrev_b32 v{CGL}, 3, v{LN_}")
    k(f"v_lshlrev_b32 v{VX}, 10, v{RR}"); k(f"v_lshl_add_u32 v{VX}, v{CGL}, 4, v{VX}"); k(f"v_add_u32 v{VX+1}, 8192, v{VX}")
    k(f"s_lshl_b32 s3, s{sRB}, 16"); k(f"s_lshl_b32 s{sT2}, s{sW}, 14"); k(f"s_add_u32 s3, s3, s{sT2}")
    XR = [0, 128, 144, 160]; CN = 176
    XS = [48, 49, 56, 57]
    for c in range(4):
        put(k, [f"s_add_u32 s{XS[c]}, s{sCC}, {c}", f"s_and_b32 s{XS[c]}, s{XS[c]}, 3", f"s_lshl_b32 s{XS[c]}, s{XS[c]}, 8", f"s_add_u32 s{XS[c]}, s{XS[c]}, s3"])
    xl = [f"buffer_load_dwordx4 {v(XR[c]+8*cb+4*oo,4)}, v{VX+oo}, s[16:19], s{XS[c]} offen offset:{128*cb}" for oo in range(2) for c in range(4) for cb in range(2)]
    k.srd(12, 10, 512 * 6144); k.srd(20, 8, 1024); k.srd(16, 4, 2048 * 1024)
    def gemv_loads():
        k(f"s_mov_b32 s{sT0}, s31")
        for i in range(4):
            k(f"buffer_load_dwordx4 {v(GW+4*i,4)}, v102, s[12:15], s{sT0} offen")
            if i < 3: k(f"s_add_u32 s{sT0}, s{sT0}, {128*6144}")
    for i in range(4): k(f"buffer_load_ushort v{GC+i}, v103, s[20:23], 0 offen offset:{256*i}")
    k(f"s_cmp_eq_u32 s{sPR}, 0"); k("s_cbranch_scc1 PLOAD")
    s_a = (dict(k.vm), dict(k.lg))
    put(k, xl)
    s_b = dict(k.vm)
    k("s_branch PJOIN")
    k.label("PLOAD")
    k.vm = dict(s_a[0])
    gemv_loads()
    k.label("PJOIN")
    k.vm = k._merge(k.vm, s_b)
    k(f"s_lshl_b32 s{sW256}, s{sW}, 8"); k(f"s_lshl_b32 s{sW2K}, s{sW}, 11")
    k(f"v_lshrrev_b32 v{ROWL}, 4, v{LN_}")
    k(f"v_and_b32 v{r_}, 15, v{LN_}"); k(f"v_lshlrev_b32 v{GR16}, 2, v{ROWL}"); k(f"v_xor_b32 v{GR16}, v{GR16}, v{r_}")
    k(f"v_lshlrev_b32 v{GR16}, 4, v{GR16}")
    def w_voffs(psh, scol):
        return [f"v_lshl_add_u32 v{VDW}, v{ROWL}, {psh}, v{GR16}", f"v_add_u32 v{VDW}, s{scol}, v{VDW}"] + \
               [f"v_add_u32 v{VDW+n}, {n*((4<<psh)-1024)}, v{VDW}" for n in range(1, 4)]
    k(f"s_lshl_b32 s{sT0}, s{sG}, 10"); k(f"s_add_u32 s{sT0}, s{sT0}, s{sW256}")
    put(k, w_voffs(13, sT0))
    k(f"s_lshl_b32 s{sRING}, s{sW}, 14"); k(f"s_add_u32 s{sRING}, s{sRING}, {L_W}")
    for p in range(8):
        k(f"s_add_u32 s{TAB+p}, s{sR8}, {p}"); k(f"s_and_b32 s{TAB+p}, s{TAB+p}, 7"); k(f"s_lshl_b32 s{TAB+p}, s{TAB+p}, 17")
    k(f"s_lshl_b32 s{sKhi}, s{sCC}, 20")
    k.srd(24, 70, WS_BYTES); k.srd(8, 44, 512 * 8192)
    def w_dma(step, which):
        slot = step % 4
        if which == "Q":
            srd = 8
            pre = [f"s_add_u32 s{sT0}, s{sKhi}, s{TAB+step%8}"]
            adv = [[f"s_add_u32 s{sKhi}, s{sKhi}, 0x100000", f"s_and_b32 s{sKhi}, s{sKhi}, 0x3fffff"]] if step % 8 == 7 else []
        else:
            srd = 20
            pre = [f"s_add_u32 s{sT0}, s{TAB+step%8}, {(2*(step//8))<<14}"]
            adv = []
        o = [pre + [f"s_add_u32 m0, s{sRING}, {4096*slot}"]] + adv + [f"buffer_load_dwordx4 v{VDW}, s[{srd}:{srd+3}], s{sT0} offen lds"]
        for n in range(1, 4):
            o.append(L(lambda n=n: k(f"buffer_load_dwordx4 v{VDW+n}, s[{srd}:{srd+3}], s{sT0} offen offset:{1024*n} lds", token=f"W{slot}"), 10, "v"))
        return o
    k(f"v_lshrrev_b32 v{r_}, 1, v{CGL}"); k(f"v_subrev_u32 v{r_}, s{sR8}, v{r_}")
    k(f"v_and_b32 v{c2}, 1, v{CGL}"); k(f"v_lshlrev_b32 v{c2}, 9, v{c2}"); k(f"v_lshl_add_u32 v{c2}, v{RR}, 4, v{c2}")
    k(f"s_lshr_b32 s{sT1}, s{sW}, 1"); k(f"s_lshl_b32 s{sT1}, s{sT1}, 15"); k(f"s_and_b32 s{sT2}, s{sW}, 1"); k(f"s_lshl_b32 s{sT2}, s{sT2}, 8")
    k(f"s_add_u32 s{sT1}, s{sT1}, s{sT2}"); k(f"s_add_u32 s{sT1}, s{sT1}, {L_H}"); k(f"v_add_u32 v{c2}, s{sT1}, v{c2}")
    for cb in range(2):
        k(f"v_add_u32 v{gn}, {4*cb}, v{r_}"); k(f"v_and_b32 v{gn}, 7, v{gn}"); k(f"v_lshl_add_u32 v{HW+cb}, v{gn}, 10, v{c2}")
    k(f"s_lshl_b32 s{sT2}, s{sCC}, 9"); k(f"v_lshlrev_b32 v{VM}, 5, v{CGL}"); k(f"v_add_u32 v{VM}, s{sT2}, v{VM}")
    lane_tr_parts(k, LN_, r_, c2, gn, h_, tm)
    k(f"v_lshl_add_u32 v{CH8}, v{gn}, 2, v{c2}"); k(f"v_lshlrev_b32 v{CH8}, 3, v{CH8}")
    k(f"v_lshl_add_u32 v{tm}, v{h_}, 3, v{r_}"); k(f"v_lshl_add_u32 v{tm}, v{tm}, 8, v{CH8}"); k(f"v_add_u32 v{tm}, s{sRING}, v{tm}")
    for a_ in range(4):
        k(f"v_xor_b32 v{tm+1}, {a_}, v{r_}"); k(f"v_lshl_add_u32 v{VW+a_}, v{tm+1}, 6, v{tm}")
    put(k, [f"v_lshl_add_u32 v{tm}, v{h_}, 2, v{r_}", f"v_lshl_add_u32 v{tm}, v{tm}, 8, v{CH8}", f"v_add_u32 v{tm}, {L_V}, v{tm}"])
    for dt in range(4): put(k, [f"v_xor_b32 v{tm+1}, {dt}, v{r_}", f"v_lshl_add_u32 v{VV+dt}, v{tm+1}, 6, v{tm}"])
    put(k, [f"v_and_b32 v{tm}, 31, v{LN_}", f"v_and_b32 v{tm+1}, 15, v{LN_}", f"v_xor_b32 v{tm+1}, v{tm+1}, v{h_}",
            f"v_lshlrev_b32 v{tm}, 8, v{tm}", f"v_lshl_add_u32 v{VK}, v{tm+1}, 4, v{tm}"])
    put(k, [f"v_xor_b32 v{VK+s_}, {s_*32}, v{VK}" for s_ in range(1, 8)])
    put(k, [f"v_mov_b32 v{LS}, 0", f"v_mov_b32 v{LS+1}, 0",
        f"v_lshl_add_u32 v{VDV}, v{ROWL}, 8, v{GR16}", f"s_and_b32 s{sT1}, s{sW}, 1", f"s_lshl_b32 s{sT1}, s{sT1}, 3",
        f"v_or_b32 v{tm}, s{sT1}, v{ROWL}", f"v_and_b32 v{tm+1}, 15, v{LN_}", f"v_xor_b32 v{tm}, v{tm}, v{tm+1}",
        f"v_lshlrev_b32 v{VDK}, 8, v{ROWL}", f"v_lshl_add_u32 v{VDK}, v{tm}, 4, v{VDK}", f"v_xor_b32 v{VDK+1}, 64, v{VDK}",
        f"s_lshl_b32 s{sT1}, s{sG}, 19", f"s_add_u32 s{sT1}, s{sT1}, s{sW2K}", f"s_add_u32 s{sT1}, s{sT1}, {1536*256}",
        f"v_add_u32 v{VDK}, s{sT1}, v{VDK}", f"v_add_u32 v{VDK+1}, s{sT1}, v{VDK+1}", f"v_add_u32 v{VDV}, s{sT1}, v{VDV}",
        f"v_add_u32 v{VLIN}, {L_H}, v{VL16}", f"s_mov_b32 s{sMASK}, 0xffff0000"])
    def nxt(d, s_): return [f"s_add_u32 s{d}, s{s_}, 8192", f"s_and_b32 s{d}, s{d}, 0x1ffff"]
    def kv_dma(which, lds_off, so):
        srd = 12 if which == "K" else 16
        return [f"s_add_u32 m0, s{sW2K}, {lds_off}", f"buffer_load_dwordx4 v{VDK if which=='K' else VDV}, s[{srd}:{srd+3}], s{so} offen lds",
                L(lambda: k(f"buffer_load_dwordx4 v{VDK+1 if which=='K' else VDV}, s[{srd}:{srd+3}], s{so} offen offset:1024 lds", token=which), 10, "v")]
    kinit = [[f"s_lshr_b32 s{sO0}, s{sROT}, 1", f"s_lshl_b32 s{sO0}, s{sO0}, 13"] + nxt(sO1, sO0) + nxt(sO2, sO1)]
    kfirst = [kv_dma("K", L_K + 16384 + 8192, sO0), kv_dma("K", L_K, sO1), kv_dma("K", L_K + 8192, sO2)]
    put(k, kinit)
    k.srd(20, 68, 256)
    def gemv_compute(lo, hi, tag, late):
        k(f"s_sub_u32 s{sT0}, s2, {lo}"); k(f"s_cmp_ge_u32 s{sT0}, {hi-lo}"); k(f"s_cselect_b32 s{sT0}, 1, s{sFB}"); k(f"s_cmp_lg_u32 s{sT0}, 0"); k("s_cbranch_scc1 NOGEMV" + tag)
        st0 = (dict(k.vm), dict(k.lg))
        D = P.get("DG") == 1 and not late
        if D: stamp(k, "g_in"); k.wait_regs(v(GW, 20)); stamp(k, "g_data")
        k(f"s_mov_b32 s{sT1}, {f32(-LOG2E)}")
        for i in range(4): k(f"v_lshlrev_b32 v{GC+i}, 16, v{GC+i}")
        for i in range(4): k(f"v_mul_f32 v{GA+i}, s{sT1}, v{GC+i}")
        for i in range(4): k(f"v_exp_f32 v{GA+i}, v{GA+i}")
        for i in range(4): k(f"v_add_f32 v{GA+i}, 1.0, v{GA+i}")
        for i in range(4): k(f"v_rcp_f32 v{GA+i}, v{GA+i}")
        for i in range(4): k(f"v_mul_f32 v{GC+i}, v{GC+i}, v{GA+i}")
        for i in range(4): rnd(k, 112 + 2 * i, GC + i)
        for i in range(4):
            for q in range(4):
                r = GW + 4 * i + q; u = 120 + 2 * (q & 1)
                k(f"v_lshlrev_b32 v{u}, 16, v{r}"); k(f"v_and_b32 v{u+1}, s{sMASK}, v{r}")
                if i == 0: k(f"v_pk_mul_f32 {v(GA+2*q,2)}, {v(u,2)}, {v(112+2*i,2)} op_sel_hi:[1,0]")
                else: k(f"v_pk_fma_f32 {v(GA+2*q,2)}, {v(u,2)}, {v(112+2*i,2)}, {v(GA+2*q,2)} op_sel_hi:[1,0,1]")
        for md in ("quad_perm:[2,3,0,1]", "row_ror:4", "row_ror:8"):
            for j in range(8): k(f"v_add_f32_dpp v{GA+j}, v{GA+j}, v{GA+j} {md} row_mask:0xf bank_mask:0xf")
        k(f"ds_write_b128 v104, {v(GA,4)} offset:{L_R}", token="w"); k(f"ds_write_b128 v104, {v(GA+4,4)} offset:{L_R+16}", token="w")
        k(f"v_lshlrev_b32 v105, 2, v{LN_}")
        k(f"s_lshr_b32 s{sT0}, s{sSL}, 5"); k(f"s_cmp_eq_u32 s{sT0}, 1"); k(f"s_cselect_b32 s{sT1}, 1.0, 0")
        k(f"s_cmp_eq_u32 s{sT0}, 4"); k(f"s_cselect_b32 s{sT1}, 1.0, s{sT1}")
        k(f"s_cmp_lt_u32 s{sT0}, 2"); k(f"s_cselect_b32 s{sT2}, {f32(QS)}, 1.0")
        k(f"s_lshl_b32 s{sT0}, s{sSL}, 6")
        k.wait("w"); k("s_barrier")
        k(f"s_cmp_lg_u32 s{sW}, 3"); k("s_cbranch_scc1 " + ("NOGEMV" + tag if late else "PWAIT"))
        for i in range(4): k(f"ds_read_b32 v{GA+i}, v105 offset:{L_R+256*i}")
        k(f"v_add_f32 v{GA}, v{GA}, v{GA+1}"); k(f"v_add_f32 v{GA+2}, v{GA+2}, v{GA+3}"); k(f"v_add_f32 v{GA}, v{GA}, v{GA+2}")
        k(f"v_mov_b32 v{GA+1}, v{GA}"); k(f"v_permlane16_swap_b32 v{GA}, v{GA+1}"); k(f"v_add_f32 v{GA}, v{GA}, v{GA+1}")
        k(f"v_mov_b32 v{GA+1}, v{GA}"); k(f"v_permlane32_swap_b32 v{GA}, v{GA+1}"); k(f"v_add_f32 v{GA}, v{GA}, v{GA+1}")
        rnd(k, GA, GA)
        k(f"v_add_f32 v{GA}, s{sT1}, v{GA}"); k(f"v_mul_f32 v{GA}, s{sT2}, v{GA}")
        if D: stamp(k, "g_red")
        k("s_mov_b64 exec, 0xffff")
        k(f"buffer_store_dword v{GA}, v105, s[24:27], s{sT0} offen sc1")
        if not late:
            k("s_mov_b64 exec, 1")
            k("v_mov_b32 v106, 1")
            k.wait_all(lg=False)
            if D: stamp(k, "g_ack")
            if P["SYNC"] == 2:
                k(f"buffer_atomic_add v106, v105, s[20:23], 0 offen offset:128")
            else:
                k(f"buffer_atomic_add v106, v105, s[20:23], 0 offen sc0")
                if P["PBAR"] == 2: k("s_barrier")
                k("v_cmp_eq_u32 vcc, 63, v106")
                k("s_and_b64 exec, exec, vcc")
                k("s_cbranch_execz NOGO")
                k(f"buffer_store_dword v106, v105, s[20:23], 0 offen offset:128 sc1")
                k.label("NOGO")
            k("s_mov_b64 exec, -1")
            if P["PBAR"] == 2: k("s_branch PX")
            k.label("PWAIT")
            k("s_barrier")
            k.label("PX")
            k.vm = {}
            put(k, xl)
            st0 = (k._merge(st0[0], k.vm), None)
        else:
            k("s_mov_b64 exec, -1")
        k.label("NOGEMV" + tag)
        k.vm, k.lg = dict(st0[0]), {}
    gemv_compute(0, 64, "A", False)
    stamp(k, "gemv")
    k("s_mov_b32 s3, 0x3f803f80")
    if P.get("DG") == 2: stamp(k, "iss"); k.wait_regs(v(0, 16), v(128, 48)); stamp(k, "xarr")
    for oo in range(2):
        src = [XR[c] + 8 * cb + 4 * oo + q for c in range(4) for cb in range(2) for q in range(4)]
        A_ = 16 + 8 * oo
        if oo == P["WPOS"]:
            if oo: k.wait_regs(*[f"v{x}" for x in src])
            def late_loads():
                k(f"s_sub_u32 s{sT0}, s2, 64"); k(f"s_cmp_ge_u32 s{sT0}, 128"); k("s_cbranch_scc1 NOLATE")
                s_c = dict(k.vm)
                gemv_loads()
                k.label("NOLATE")
                k.vm = k._merge(k.vm, s_c)
                k.srd(12, 40, 8 * 2048 * 256)
            if P["LFIRST"]: late_loads()
            put(k, [w_dma(s_, "Q") for s_ in range(P["WPRE"])])
            if not P["LFIRST"]: late_loads()
        for j, x in enumerate(src):
            k(f"v_dot2_f32_bf16 v{A_+(j&1)}, v{x}, s3, {'0' if j < 2 else 'v%d' % (A_+(j&1))}")
            k(f"v_dot2_f32_bf16 v{A_+2+(j&1)}, v{x}, v{x}, {'0' if j < 2 else 'v%d' % (A_+2+(j&1))}")
        k("s_nop 2")
        k(f"v_add_f32 v{A_}, v{A_}, v{A_+1}"); k(f"v_add_f32 v{A_+2}, v{A_+2}, v{A_+3}")
        rowsum_8(k, A_, A_ + 1); rowsum_8(k, A_ + 2, A_ + 3)
        k(f"v_mul_f32 v{A_}, {f32(-1/512)}, v{A_}")
        k(f"v_mul_f32 v{A_+2}, {f32(1/512)}, v{A_+2}")
        k(f"v_fma_f32 v{A_+2}, -v{A_}, v{A_}, v{A_+2}"); k(f"v_max_f32 v{A_+2}, 0, v{A_+2}")
        k(f"v_add_f32 v{A_+2}, {f32(1e-5)}, v{A_+2}"); k(f"v_rsq_f32 v{STT+2*oo+1}, v{A_+2}")
        k(f"v_mul_f32 v{STT+2*oo}, v{A_}, v{STT+2*oo+1}")
    def cread(cb, dst):
        return [f"ds_read_b128 {v(dst+8*m_+4*q,4)}, v{VM} offset:{L_M+2048*(1-m_)+256*cb+16*q}" for m_ in range(2) for q in range(2)]
    vmadv = [[f"v_add_u32 v{VM}, 0x200, v{VM}", f"v_and_b32 v{VM}, 0x7ff, v{VM}"]]
    def modulate(c, cb, cn, U_, pk):
        o = []
        for oo in range(2):
            x = XR[c] + 8 * cb + 4 * oo; u = U_ + (8 * oo if pk else 0)
            for q in range(4): o += [f"v_lshlrev_b32 v{u+2*q}, 16, v{x+q}", f"v_and_b32 v{u+2*q+1}, s{sMASK}, v{x+q}"]
            if pk:
                st = v(STT + 2 * oo, 2)
                o += [f"v_pk_fma_f32 {v(u+2*q,2)}, {v(u+2*q,2)}, {st}, {st} op_sel:[0,1,0] op_sel_hi:[1,1,0]" for q in range(4)]
                if pk == "pre": continue
                if pk == "post": o = o[:-12]
                o += [f"v_pk_fma_f32 {v(u+2*q,2)}, {v(u+2*q,2)}, {v(cn+2*q,2)}, {v(cn+8+2*q,2)}" for q in range(4)]
            else:
                o += [f"v_fma_f32 v{u+e}, v{u+e}, v{STT+2*oo+1}, v{STT+2*oo}" for e in range(8)]
                o += [f"v_fma_f32 v{u+e}, v{u+e}, v{cn+e}, v{cn+8+e}" for e in range(8)]
            o += [f"v_cvt_pk_bf16_f32 v{x+q}, v{u+2*q}, v{u+2*q+1}" for q in range(4)]
            o.append(L(lambda x=x, cb=cb, oo=oo: k(f"ds_write_b128 v{HW+cb}, {v(x,4)} offset:{8192*c+128*oo}", token="hw"), 22, "d"))
        return o
    put(k, modulate(0, 0, 16, 32, "pre") + modulate(0, 1, 32, 48, "pre"))
    if P.get("DG") == 2: stamp(k, "st+pre")
    gemv_compute(64, 192, "B", True)
    stamp(k, "stats")
    k(f"s_cmp_lg_u32 s{sW}, 0"); k("s_cbranch_scc1 NOPOLL")
    st1 = (dict(k.vm), dict(k.lg))
    k("v_mov_b32 v80, 128")
    k(f"s_mov_b32 s{sT1}, 0")
    k.label("POLL")
    if P["SLEEP"]: k(f"s_sleep {P['SLEEP']}")
    k(f"buffer_load_dword v81, v80, s[20:23], 0 offen {PSC}")
    k(f"s_add_u32 s{sT1}, s{sT1}, 1")
    k("v_cmp_eq_u32 vcc, 0, v81" if P["SYNC"] != 2 else "v_cmp_gt_u32 vcc, 64, v81")
    k(f"s_cmp_gt_u32 s{sT1}, 0x40000"); k("s_cbranch_scc1 POLLED")
    k("s_cbranch_vccnz POLL")
    k.label("POLLED")
    if P.get("DG"): stamp(k, "go")
    for i in range(4): k(f"buffer_load_dwordx4 {v(16+4*i,4)}, v{VL16}, s[24:27], 0 offen offset:{1024*i} sc1")
    for i in range(4): k(f"ds_write_b128 v{VL16}, {v(16+4*i,4)} offset:{L_M+1024*i}", token="w")
    k.wait("w")
    k.label("NOPOLL")
    k.vm, k.lg = dict(st1[0]), {}
    k("s_barrier")
    stamp(k, "poll")
    k.srd(20, 46, 4096 * 1024)
    put(k, cread(0, 64) + cread(1, 80) + vmadv)
    put(k, modulate(0, 0, 64, 32, "post") + modulate(0, 1, 80, 48, "post"))
    put(k, [w_dma(s_, "Q") for s_ in range(P["WPRE"], 4)])
    fr = lambda f: FR + 4 * (f % 8)
    def rdK(f, s_, off): return [f"ds_read_b128 {a(fr(f),4)}, v{VK+s_} offset:{off}"]
    def rdV(f, i, off): return [f"ds_read_b64_tr_b16 {a(fr(f)+2*u,2)}, v{VV+i%4} offset:{off+4096*(i//4)+2048*u}" for u in range(2)]
    def a_reads(step):
        slot = step % 4; buf = step % 2
        rd = [f"ds_read_b64_tr_b16 {a(AF+16*buf+4*a_+2*u,2)}, v{VW+a_} offset:{4096*slot+1024*u}" for a_ in range(4) for u in range(2)]
        return [[L(lambda: k.wait(f"W{slot}")), rd[0]]] + rd[1:]
    def b_reads(step):
        return [f"ds_read_b128 {a(BF+8*(step%2)+4*rt,4)}, v{VLIN} offset:{1024*step+32768*rt}" for rt in range(2)]
    put(k, a_reads(0))
    k.wait("hw"); k("s_barrier")
    stamp(k, "mod")
    put(k, b_reads(0))
    def g_mfma(buf, first=False):
        return [f"v_mfma_f32_32x32x16_bf16 {v(ACC+32*a_+16*rt,16)}, {a(AF+16*buf+4*a_,4)}, {a(BF+8*buf+4*rt,4)}, {'0' if first else v(ACC+32*a_+16*rt,16)}"
                for a_ in range(4) for rt in range(2)]
    def gbody(which, c, extra):
        sc = Sched(64)
        mf = []
        if c < 3: sc.pin(57, L(lambda: (k.wait("hw"), k("s_barrier")), 8))
        for i in range(8):
            st = 8 * c + i
            if st + 1 < 32:
                sc.add(a_reads(st + 1), 8 * i, 8 * i + 5, prio=1)
                sc.add(b_reads(st + 1), 8 * i + (1 if i == 7 else 0), 8 * i + 4, prio=1)
                sc.pin(8 * i + 7, L(lambda st=st: k.wait_regs(a(AF + 16 * ((st + 1) % 2), 16), a(BF + 8 * ((st + 1) % 2), 8))), end=True)
            if st + 4 < 32: sc.add(w_dma(st + 4, which), 8 * i, 8 * i + 8)
            mf += g_mfma(i % 2, st == 0)
        extra(sc)
        for m, f_ in zip(mf, sc.run()): k(m); put(k, f_)
    def qepi(a_):
        return [f"v_cvt_pk_bf16_f32 v{Q+16*a_+8*(j//4)+4*rt+j%4}, v{ACC+32*a_+16*rt+2*j}, v{ACC+32*a_+16*rt+2*j+1}" for rt in range(2) for j in range(8)]
    def qx(c):
        def f(sc):
            if c < 3:
                m0_ = modulate(c + 1, 0, CN, UT, False); m1_ = modulate(c + 1, 1, CN, UT, False)
                if P["BURST"]:
                    wr = [x for x in m0_ + m1_ if callable(x)]
                    m0_ = [x for x in m0_ if not callable(x)]; m1_ = [x for x in m1_ if not callable(x)]
                    sc.add(cread(0, CN) + m0_[:-4] + cread(1, CN) + m0_[-4:] + m1_ + vmadv, 0, P["BURST"])
                    sc.pin(P["BURST"], wr)
                else:
                    sc.add(cread(0, CN) + m0_[:-5] + cread(1, CN) + m0_[-5:] + m1_ + vmadv, 0, 55)
            else:
                sc.pin(0, L(lambda: k.srd(16, 42, 8 * 2048 * 256), 16))
                if not P["KEARLY"]: sc.add([x for d in kfirst for x in d], 32, 44)
                tab = []
                for p in range(8):
                    tab.append([f"s_add_u32 s{sT1}, s{sR8}, {p}", f"s_and_b32 s{sT1}, s{sT1}, 7", f"s_lshr_b32 s{sT2}, s{sT1}, 1", f"s_mul_i32 s{sT2}, s{sT2}, 6"])
                    tab.append([f"s_add_u32 s{sT1}, s{sT1}, s{sT2}", f"s_lshl_b32 s{TAB+p}, s{sT1}, 14"])
                sc.add(tab + [[f"s_lshl_b32 s{sT0}, s{sG}, 19", f"s_add_u32 s{sT0}, s{sT0}, s{sW256}"]] + w_voffs(10, sT0), 33, 56)
                sc.pin(56, L(lambda: (k.wait_all(), k("s_barrier")), 8))
                sc.add([rdK(f, f, L_K + 16384 + 8192) for f in range(4)], 56, 60, prio=1)
                sc.add(kv_dma("V", L_V, sO0) + kv_dma("V", L_V + 8192, sO1), 57, 62)
                sc.add(qepi(0), 61, 64)
        return f
    for c in range(4): gbody("Q", c, qx(c))
    stamp(k, "qgemm")
    def qk(f, s_, qt, buf, zero):
        d = v(S + 32 * buf + 16 * qt, 16)
        c = d if s_ else ("0" if zero else v(CI + 16 * qt, 16))
        return f"v_mfma_f32_32x32x16_bf16 {d}, {a(fr(f),4)}, {v(Q+8*s_+4*qt,4)}, {c}"
    def pv(f, i, qt, buf, zero=False):
        d = a(O + 32 * (i % 4) + 16 * qt, 16)
        return f"v_mfma_f32_32x32x16_bf16 {d}, {a(fr(f),4)}, {v(S+32*buf+16*qt+8*(i//4),4)}, {'0' if zero else d}"
    def sreg(buf, e): return S + 32 * buf + 16 * ((e >> 3) & 1) + 8 * (e >> 4) + (e & 7)
    def sm(buf, e, addci=False):
        o = []
        if e < 32:
            if addci: o.append(f"v_add_f32 v{sreg(buf,e)}, v{sreg(buf,e)}, v{CI+16*((e>>3)&1)}")
            o.append(f"v_exp_f32 v{sreg(buf,e)}, v{sreg(buf,e)}")
        if e >= 1:
            p = e - 1
            o.append(f"v_add_f32 v{LS+((p>>3)&1)}, v{LS+((p>>3)&1)}, v{sreg(buf,p)}")
            if p & 1:
                o.append(f"v_cvt_pk_bf16_f32 v{sreg(buf,p&~7)+(p&7)//2}, v{sreg(buf,p-1)}, v{sreg(buf,p)}")
        return o
    def wgrp(j): return L(lambda: k.wait_regs(a(FR + 16 * (j % 2), 16)))
    def qk0(epi):
        wgrp(0)()
        for s_ in range(8):
            ep = qepi(s_ // 2 + 1)[8 * (s_ & 1):8 * (s_ & 1) + 8] if epi and s_ < 6 else []
            rd = [rdK(f + 4, f + 4, L_K + 16384 + 8192) if f < 4 else rdK(f + 4, f - 4, L_K) for f in ([2*s_, 2*s_+1] if s_ < 2 else [2*s_-4, 2*s_-3] if 4 <= s_ < 6 else [])]
            k(qk(s_, s_, 0, 0, True)); put(k, rd[:1]); put(k, ep[:4])
            k(qk(s_, s_, 1, 0, True)); put(k, rd[1:]); put(k, ep[4:])
            if s_ % 4 == 3: wgrp(s_ // 4 + 1)()
    qk0(True)
    k(f"s_cmp_lg_u32 s{sFB}, 0"); k("s_cbranch_scc1 FB_MAX")
    k.label("IT0")
    def maxops(buf, dst):
        o = []
        for qt in range(2):
            b = S + 32 * buf + 16 * qt; t = dst + qt
            o.append(f"v_max3_f32 v{t}, v{b}, v{b+1}, v{b+2}")
            for i in range(3, 15, 2): o.append(f"v_max3_f32 v{t}, v{t}, v{b+i}, v{b+i+1}")
            o.append(f"v_max_f32 v{t}, v{t}, v{b+15}")
        return [x for pr in zip(o[:8], o[8:]) for x in pr]
    def xhalf_max(t, t2):
        return [f"v_mov_b32 v{t2}, v{t}", f"v_mov_b32 v{t2+1}, v{t+1}", f"v_permlane32_swap_b32 v{t}, v{t2}", f"v_permlane32_swap_b32 v{t+1}, v{t2+1}",
                f"v_max_f32 v{t}, v{t}, v{t2}", f"v_max_f32 v{t+1}, v{t+1}, v{t2+1}"]
    def flat(x): return [y for z in x for y in z]
    def iteration(par, first=False, last=False, extra=None):
        hb = 16384 * par; nb = 16384 * (1 - par)
        mf = []
        phs = [0, 1, 3] if last else [0, 1, 2, 3]
        n = 16 * len(phs)
        sc = Sched(n)
        frs = []
        for q_, ph in enumerate(phs):
            for g in range(16):
                f = 8 * q_ + g // 2; qt = g & 1; i = g // 2
                if ph == 0: mf.append(qk(f, i, qt, 1, first))
                elif ph == 1: mf.append(pv(f, i, qt, 0, first and i < 4))
                elif ph == 2: mf.append(qk(f, i, qt, 0, False))
                else: mf.append(pv(f, i, qt, 1))
            for i in range(8): frs.append((ph, i))
        ng = len(frs) // 4
        for j in range(1, ng):
            rd = []
            for f in range(4 * j, 4 * j + 4):
                ph, i = frs[f]
                rd += rdK(f, i, hb + 8192 * (ph // 2)) if ph % 2 == 0 else rdV(f, i, hb + 8192 * (ph // 2))
            g0 = 8 * (j - 1)
            if first and j == 2: sc.pin(g0 + 1, L(lambda: (k.wait("V"), k("s_barrier")), 8)); g0 += 1
            sc.add(rd, g0, 8 * (j - 1) + 6, prio=1)
            sc.pin(8 * j - 1, wgrp(j), end=True)
        dm = [nxt(sO1, sO2), kv_dma("V", L_V + nb, sO2), kv_dma("K", L_K + nb, sO1), kv_dma("V", L_V + nb + 8192, sO1), nxt(sO2, sO1), kv_dma("K", L_K + nb + 8192, sO2)]
        dm = [dm[0]] + dm[1] + dm[2] + dm[3] + [dm[4]] + dm[5]
        if first:
            sc.add(dm, 24, 44)
            mx = maxops(0, MX) + xhalf_max(MX, MX + 2)
            mx += [[f"s_cmp_lg_u32 s{sFB}, 0", "s_cselect_b64 vcc, -1, 0"]]
            mx += [f"v_sub_f32 v{CI+16*qt}, {f32(-float(P['BIAS']))}, v{MX+qt}" for qt in range(2)]
            mx += [f"v_cndmask_b32 v{CI+16*qt}, v{CI+16*qt}, v{MX+4+qt}, vcc" for qt in range(2)]
            sc.add(mx + flat(sm(0, e, True) for e in range(17)), 1, 16)
            sc.add(flat(sm(0, e, True) for e in range(17, 33)), 16, 23)
            sc.add([f"v_mov_b32 v{CI+16*qt+i}, v{CI+16*qt}" for qt in range(2) for i in range(1, 16)], 23, 31)
            sc.add(flat(sm(1, e, True) for e in range(33)), 23, 54)
            sc.add(flat(sm(0, e) for e in range(12)), 54, 64)
        else:
            for e in range(12, 33): sc.pin(e - 12, sm(0, e))
            if last:
                sc.add(flat(sm(1, e) for e in range(17)), 19, 31)
                sc.add(flat(sm(1, e) for e in range(17, 33)), 31, 39)
            else:
                sc.add(dm, 1, 40)
                for e in range(33): sc.pin(20 + e, sm(1, e))
                for e in range(12): sc.pin(52 + e, sm(0, e))
        if not last:
            sc.pin(56, L(lambda: (k.wait("K", "V"), k("s_barrier")), 8))
            sc.add([rdK(f, f, nb) for f in range(4)], 56, 61, prio=1)
            sc.pin(63, wgrp(0), end=True)
        if extra: extra(sc)
        for m, f_ in zip(mf, sc.run()): k(m); put(k, f_)
    def x_first(sc):
        pf = [[f"s_lshl_b32 s{sT1}, s{sROT}, 14", f"s_lshl_b32 s{sT2}, s{sG}, 19", f"s_add_u32 s{sT1}, s{sT1}, s{sT2}"], [f"s_lshl_b32 s{sT2}, s{sW}, {12+lg2(G)}", f"s_add_u32 s{sT1}, s{sT1}, s{sT2}"]]
        for n in range(4 * G):
            pf.append([f"buffer_load_dwordx4 {a(192+4*(n%16),4)}, v{VL16}, s[20:23], s{sT1} offen offset:{1024*(n%4)}"] + ([f"s_add_u32 s{sT1}, s{sT1}, 4096"] if n % 4 == 3 else []))
        sc.add(pf, 44, 56)
    iteration(0, first=True, extra=x_first)
    if not P.get("OST") and not P.get("DG"): stamp(k, "it0")
    i0 = len(k.items)
    k.loop(sST, 3, lambda: (iteration(1), iteration(0)), align=3)
    X = P.get("DBGX", 0)
    if X:
        def keep(it):
            if it.kind in ("label", "raw"): return True
            if X & 1 and it.mn == "s_barrier": return False
            if X & 2 and it.mn == "s_waitcnt": return False
            if X & 4 and it.kind in ("valu", "trans"): return False
            if X & 8 and it.kind == "vmem": return False
            if X & 16 and it.kind == "ds": return False
            if X & 32 and it.kind == "trans": return False
            if X & 64 and it.kind == "valu": return False
            return True
        k.items[i0:] = [it for it in k.items[i0:] if keep(it)]
        k.wait_all()
    if not P.get("OST") and not P.get("DG"): stamp(k, "it1-6")
    OM = MX + 4
    def finalize(dt):
        o = []
        for qt in range(2):
            b = Q + 16 * qt; pk_ = Q + 32 + 8 * qt
            o += [f"v_accvgpr_read_b32 v{b+i}, a{O+32*dt+16*qt+i}" for i in range(16)]
            o += [f"v_maximum3_f32 v{OM+qt}, |v{b+i}|, |v{b+i+1}|, v{OM+qt}" for i in range(0, 16, 2)]
            o += [f"v_mul_f32 v{b+i}, v{b+i}, v{RL+qt}" for i in range(16)]
            for sp in range(2):
                o += [f"v_cvt_pk_bf16_f32 v{pk_+4*sp+j}, v{b+8*sp+2*j}, v{b+8*sp+2*j+1}" for j in range(4)]
                o.append(L(lambda sp=sp, qt=qt, pk_=pk_: k(f"ds_write_b128 v{HW+sp}, {v(pk_+4*sp,4)} offset:{32768*qt+8192*dt}", token="hw"), 22, "d"))
        return o
    f0 = finalize(0)
    def x_last(sc):
        sc.add(flat(w_dma(s_, "O") for s_ in range(4)), 0, 30)
        fin = [f"v_mov_b32 v{MX}, v{LS}", f"v_mov_b32 v{MX+1}, v{LS+1}", f"v_mov_b32 v{OM}, 0", f"v_mov_b32 v{OM+1}, 0",
               f"v_permlane32_swap_b32 v{LS}, v{MX}", f"v_permlane32_swap_b32 v{LS+1}, v{MX+1}",
               f"v_add_f32 v{LS}, v{LS}, v{MX}", f"v_add_f32 v{LS+1}, v{LS+1}, v{MX+1}",
               f"v_rcp_f32 v{RL}, v{LS}", f"v_rcp_f32 v{RL+1}, v{LS+1}", f"v_max_f32 v{MX+6}, v{LS}, v{LS+1}"]
        adr = []
        for sp in range(2):
            adr += [[f"s_lshl_b32 s56, s{sW}, 1", f"s_add_u32 s56, s56, {sp}", f"s_sub_u32 s56, s56, s{sR8}"], [f"s_and_b32 s56, s56, 7",
                    f"s_lshl_b32 s56, s56, 10", f"v_add_u32 v{HW+sp}, s56, v{VLIN}"]]
        sc.add(adr, 0, 8)
        sc.add(fin, 39, 43)
        sc.pin(40, L(lambda: k("s_barrier")))
        sc.add(a_reads(0), 40, 46, prio=1)
        sc.add(f0[:30], 43, 48)
    iteration(1, last=True, extra=x_last)
    if not P.get("DG"): stamp(k, "it7")
    k(f"s_load_dwordx4 s[40:43], s[0:1], {A_WG}")
    put(k, f0[30:])
    k.wait_all(vm=False); k("s_barrier")
    put(k, b_reads(0))
    if not P.get("DG"): stamp(k, "owrite")
    def ox(c):
        def f(sc):
            if c < 3 and P["BURST"]:
                fz = finalize(c + 1)
                sc.add([x for x in fz if not callable(x)], 1, 46 if c == 2 else P["BURST"])
                sc.pin(P["BURST"], [x for x in fz if callable(x)])
            elif c < 3: sc.add(finalize(c + 1), 1, 48 if c == 2 else 55)
            if c == 2:
                chk = [f"v_maximum3_f32 v{MX+7}, v{OM}, v{OM+1}, v{MX+6}", f"v_min_f32 v{OM}, v{OM}, v{OM+1}",
                       f"v_cmp_ngt_f32 vcc, {f32(2.0**120)}, v{MX+7}", "s_mov_b64 s[56:57], vcc",
                       f"v_cmp_gt_f32 vcc, {f32(2.0**-112 if not P['FORCE_FB'] else 2.0**100)}, v{OM}",
                       ["s_or_b64 s[56:57], s[56:57], vcc", f"s_cselect_b32 s{sT1}, 1, 0", f"v_mov_b32 v{MX}, s{sT1}"],
                       [f"s_lshl_b32 s{sT1}, s{sW}, 2", f"v_mov_b32 v{MX+1}, s{sT1}"],
                       L(lambda: k(f"ds_write_b32 v{MX+1}, v{MX} offset:{L_K}", token="hw"), 4, "d"), f"v_mov_b32 v{MX+2}, 0"]
                if P["BURST"]: sc.add(chk[:-2] + chk[-1:], 46, P["BURST"]); sc.pin(P["BURST"], chk[-2])
                else: sc.add(chk, 48, 56)
            if c == 3:
                if P["PF1"]:
                    NA = P["F1R"] // 2; Wd_ = 3584 // NA; nl = (Wd_ + 1023) // 1024; per = Wd_ // nl // 16
                    pf = [[f"v_min_u32 v{tm}, {per-1}, v{LN_}", f"v_lshlrev_b32 v{tm}, 4, v{tm}"],
                          [f"s_lshr_b32 s56, s2, 3", f"s_lshl_b32 s56, s56, 2", f"s_add_u32 s56, s56, s{sW}"], [f"s_mul_i32 s56, s56, {4*3584}",
                           f"s_and_b32 s57, s2, {NA-1}"], [f"s_mul_i32 s57, s57, {Wd_}", f"s_add_u32 s56, s56, s57"],
                          L(lambda: k.srd(12, 40, 512 * 3584), 16), L(lambda: k.srd(16, 42, 512 * 3584), 16)]
                    n = 0
                    for r in range(4):
                        for l_ in range(nl):
                            for srd in (12, 16):
                                pf.append(f"buffer_load_dwordx4 {a(192+4*(n%16),4)}, v{tm}, s[{srd}:{srd+3}], s56 offen offset:{l_*per*16}"); n += 1
                        pf.append(f"s_add_u32 s56, s56, 3584")
                    sc.add(pf[:6], 8, 32); sc.add(pf[6:], 32, 56)
                sc.pin(5, f"ds_read_b128 {v(STT,4)}, v{MX+2} offset:{L_K}")
                sc.pin(14, [f"v_or3_b32 v{STT}, v{STT}, v{STT+1}, v{STT+2}", f"v_or_b32 v{STT}, v{STT}, v{STT+3}"])
                sc.pin(22, f"v_readfirstlane_b32 s{sT2}, v{STT}")
                sc.pin(38, [f"s_lshl_b32 s{sT0}, s{sG}, 21", f"s_lshl_b32 s{sT1}, s{sRB}, 16", f"s_add_u32 s{sT0}, s{sT0}, s{sT1}"])
                sc.pin(46, [f"s_lshl_b32 s{sT1}, s{sW}, 13", f"s_add_u32 s{sT0}, s{sT0}, s{sT1}", f"s_add_u32 s{sT0}, s{sT0}, {WS_P:#x}"])
                sc.pin(54, [f"s_andn2_b32 s{sT2}, s{sT2}, s{sFB}", "s_cbranch_scc1 FALLBACK"])
        return f
    i0 = len(k.items)
    for c in range(4):
        gbody("O", c, ox(c))
        if P.get("OST") and c < 3: stamp(k, f"o{c}")
    X = P.get("DBGO", 0)
    if X:
        def keep(it):
            if it.kind in ("label", "raw"): return True
            if it.mn.startswith("s_cbranch"): return False
            if X & 1 and it.mn == "s_barrier": return False
            if X & 2 and it.mn == "s_waitcnt" and "vmcnt" in it.text: return False
            if X & 4 and it.kind in ("valu", "trans") and not it.mn.startswith(("v_min_u32", "v_lshlrev")): return False
            if X & 8 and it.kind == "vmem": return False
            if X & 16 and it.mn.startswith("ds_write"): return False
            if X & 32 and it.mn == "s_waitcnt" and "lgkmcnt" in it.text: return False
            return True
        k.items[i0:] = [it for it in k.items[i0:] if keep(it)]
        k.wait_all()
    if not P.get("DG"): stamp(k, "ogemm")
    for a_ in range(4):
        for rt in range(2):
            k(f"s_add_u32 s{sT1}, s{sT0}, {32768*rt + 2048*a_}")
            b = ACC + 32 * a_ + 16 * rt
            for sp in range(2):
                for j in range(4 * sp, 4 * sp + 4): k(f"v_cvt_pk_bf16_f32 v{Q+16*a_+8*rt+j}, v{b+2*j}, v{b+2*j+1}")
                k(f"buffer_store_dwordx4 {v(Q+16*a_+8*rt+4*sp,4)}, v{VL16}, s[24:27], s{sT1} offen offset:{1024*sp}" + ["", " nt", " sc1", " sc0 sc1"][P["PST"]])
    stamp_flush(k, 0)
    k.label("END_attn"); k("s_endpgm")
    k.label("FALLBACK")
    k.wait_all(); k("s_barrier")
    k(f"s_mov_b32 s{sFB}, 1")
    k("s_nop 15")
    k("s_branch RESTART")
    k.label("FB_MAX")
    k.wait_all(); k("s_barrier")
    k(f"v_mov_b32 v{MX+4}, 0xff800000"); k(f"v_mov_b32 v{MX+5}, 0xff800000")
    def fbody():
        put(k, kv_dma("K", L_K, sO0) + nxt(sO0, sO0)); k.wait("K"); k("s_barrier")
        for s_ in range(8): put(k, rdK(s_, s_, L_K))
        for s_ in range(8):
            for qt in range(2): k(qk(s_, s_, qt, 0, True))
        put(k, maxops(0, MX))
        k(f"v_max_f32 v{MX+4}, v{MX+4}, v{MX}"); k(f"v_max_f32 v{MX+5}, v{MX+5}, v{MX+1}")
        k("s_barrier")
    k.loop(sST, 16, fbody)
    put(k, xhalf_max(MX + 4, MX + 2))
    for qt in range(2): k(f"v_sub_f32 v{MX+4+qt}, 0, v{MX+4+qt}")
    put(k, kfirst)
    k.wait_all(); k("s_barrier")
    for f in range(4): put(k, rdK(f, f, L_K + 16384 + 8192))
    qk0(False)
    k.wait_all()
    k("s_branch IT0")
    return k

from gen9_ffn import gen_ffn

HEADER = open('adaLN_cond__sliding_block_cached__geglu_ffn__prompt.s.ref').read().split("; Override launch")[0]

if __name__ == "__main__":
    out = sys.argv[1] if len(sys.argv) > 1 else "k.s"
    me = sys.modules[__name__]
    ks = [gen_attn(), gen_ln2(), gen_ffn(me)]
    ks[-1].label("CODE_END")
    txt = emit(ks, header=HEADER)
    open(out, "w").write(txt)
    json.dump([[k.name, k.grid, k.block//64, k.stamps] for k in ks], open(out[:-2]+".json","w"))
    for k in ks: print(k.name, "regs(v,a,s)", k.used, "nops", k.n_nops, "misal", k.n_mis, "instrs", len(k.items))
```

```python
import math
from asmlib import *

def L(f, cost=4, mem=False):
    f.cost = cost; f.mem = mem; return f

def tail(M, k):
    P = M.P; f32 = M.f32; put = M.put
    TS = P.get("DG") == 3
    def stamp(k, n):
        if TS: M.stamp(k, n)
    sW = 28; VL16 = 216; TT = 220
    FL1, FL2, FL3 = M.WS_FL, M.WS_FL + 0x8000, M.WS_FL + 0x10000
    L_S = 163840 - 256
    VF = 248
    def cond(sreg, lab, body):
        k(f"s_cmp_lg_u32 s{sreg}, 0"); k(f"s_cbranch_scc1 {lab}")
        s0 = (dict(k.vm), dict(k.lg)); body(); k.label(lab)
        k.vm = k._merge(k.vm, s0[0]); k.lg = k._merge(k.lg, s0[1])
    def publish(tok, soff, tag):
        k.wait(tok); k("s_barrier")
        def f():
            k("s_mov_b64 exec, 1"); k(f"v_mov_b32 v{VF+1}, 1")
            k(f"buffer_store_dword v{VF+1}, v{VF}, s[24:27], s{soff} offen sc1")
            k("s_mov_b64 exec, -1")
        cond(sW, "NOPUB" + tag, f)
    def await_(soff, n, tag, counter=False):
        def f():
            k(f"s_mov_b64 exec, {(1 << n) - 1:#x}")
            k("s_mov_b32 s3, 0")
            k.label("POLL" + tag)
            if counter: k(f"buffer_load_dword v{VF+1}, v{VF}, s[16:19], 0 offen sc1")
            else: k(f"buffer_load_dword v{VF+1}, v{VF}, s[24:27], s{soff} offen sc1")
            k("s_add_u32 s3, s3, 1")
            k(f"v_cmp_gt_u32 vcc, 0x100, v{VF+1}" if counter else f"v_cmp_eq_u32 vcc, 0, v{VF+1}")
            k("s_cmp_gt_u32 s3, 0x8000"); k("s_cbranch_scc1 POLLED" + tag)
            k("s_cbranch_vccz POLLED" + tag)
            k(f"s_sleep {P['SLEEP2']}"); k("s_branch POLL" + tag)
            k.label("POLLED" + tag)
            k("s_mov_b64 exec, -1")
        cond(sW, "NOPOLL" + tag, f)
        if not counter: k("s_barrier")
    k("s_lshl_b32 s3, s30, 3"); k("s_add_u32 s3, s3, s29")
    k("s_lshl_b32 s5, s3, 13")
    k("s_lshr_b32 s4, s3, 2"); k("s_lshl_b32 s4, s4, 15"); k("s_and_b32 s6, s3, 3"); k("s_lshl_b32 s6, s6, 7"); k("s_add_u32 s4, s4, s6")
    k("s_lshl_b32 s7, s3, 7"); k(f"s_add_u32 s7, s7, {FL1:#x}")
    k("s_lshl_b32 s6, s30, 10"); k(f"s_add_u32 s6, s6, {FL1:#x}")
    k.srd(12, 46, 2048 * 1024); k.srd(16, 68, 256)
    k(f"v_lshlrev_b32 v{VF}, 7, v{TT}")
    k(f"v_and_b32 v1, 7, v{TT}"); k(f"v_lshrrev_b32 v7, 3, v{TT}"); k(f"v_lshl_add_u32 v7, s{sW}, 4, v7")
    k("v_lshlrev_b32 v3, 9, v7"); k("v_lshl_add_u32 v3, v1, 4, v3"); k("v_add_u32 v2, 4096, v3")
    k("v_lshlrev_b32 v4, 10, v1"); k("v_lshl_add_u32 v4, v7, 4, v4")
    k("v_lshlrev_b32 v5, 5, v7")
    k("v_lshlrev_b32 v8, 4, v1"); k(f"v_add_u32 v8, {L_S}, v8"); k(f"v_lshl_add_u32 v9, s{sW}, 2, v8")
    NS = 5; SB = 28672 + 256; UOFF = 14336 + 128
    HB = 0; AF = 128; AC = 0
    VD = 224; VA = 231; T1 = 234; KC = 246
    sFS, sRB, sT0, sT1, sKS = 29, 30, 31, 32, 33
    R = P["F1R"]
    M.split2(k, 2, sFS, sRB, 32 // R, 16, sT0, sKS)
    if R >= 8: k(f"s_and_b32 s{sKS}, s{sKS}, 7")
    else: k(f"s_lshl_b32 s{sKS}, s{sKS}, {M.lg2(8//R)}")
    k(f"s_and_b32 s{sT0}, s{sW}, 1"); k(f"s_mul_i32 s{sT1}, s{sT0}, 7168")
    k(f"s_mul_i32 s{sT0}, s{sT0}, 448")
    k(f"s_mul_i32 s36, s{sFS}, 224")
    k("s_mov_b32 s37, 4682")
    for n in range(7):
        k(f"v_add_u32 v{T1+1}, s{sT0}, v{TT}"); k(f"v_add_u32 v{T1+1}, {64*n}, v{T1+1}")
        k(f"v_mul_u32_u24 v{T1+2}, s37, v{T1+1}"); k(f"v_lshrrev_b32 v{T1+2}, 16, v{T1+2}")
        k(f"v_mul_u32_u24 v{T1+3}, 14, v{T1+2}"); k(f"v_sub_u32 v{T1+3}, v{T1+1}, v{T1+3}")
        k(f"v_mul_u32_u24 v{T1+2}, 3584, v{T1+2}"); k(f"v_lshl_add_u32 v{T1+2}, v{T1+3}, 4, v{T1+2}")
        k(f"v_add_u32 v{VD+n}, s36, v{T1+2}")
        if n % 4: k(f"v_subrev_u32 v{VD+n}, {1024*(n%4)}, v{VD+n}")
    k(f"s_cmp_lt_u32 s{sW}, 2")
    k(f"s_cselect_b32 s35, 0, {UOFF}")
    k("s_cselect_b32 s8, s40, s42"); k("s_cselect_b32 s9, s41, s43"); k("s_and_b32 s9, s9, 0xffff")
    k(f"s_mov_b32 s10, {512*3584}"); k("s_mov_b32 s11, 0x20000")
    k(f"s_add_u32 s35, s35, s{sT1}")
    k(f"s_lshl_b32 s{sT1}, s{sRB}, 2"); k(f"s_add_u32 s{sT1}, s{sT1}, s{sW}"); k(f"s_lshl_b32 s{sT1}, s{sT1}, 15")
    k(f"s_add_u32 s38, s{sT1}, {M.WS_H2:#x}")
    k(f"s_mov_b32 s39, s{sKS}")
    k(f"s_lshl_b32 s34, s{sRB}, 11"); k(f"s_add_u32 s34, s34, {FL2:#x}")
    r_, c2, gn, h_, tm = T1 + 4, T1 + 5, T1 + 6, T1 + 7, T1 + 8
    M.lane_tr_parts(k, TT, r_, c2, gn, h_, tm)
    k(f"v_lshl_add_u32 v{tm}, v{h_}, 3, v{r_}"); k(f"v_mul_u32_u24 v{VA}, 224, v{tm}")
    k(f"v_mul_u32_u24 v{tm}, {UOFF}, v{gn}"); k(f"v_add_u32 v{VA}, v{VA}, v{tm}"); k(f"v_lshl_add_u32 v{VA}, v{c2}, 3, v{VA}")
    k(f"v_add_u32 v{VA+1}, {2*SB}, v{VA}"); k(f"v_add_u32 v{VA+2}, {4*SB}, v{VA}")
    def dma(slot):
        o = []
        for n in range(7):
            if n == 0: o.append([f"s_mul_i32 s{sT0}, s{sKS}, {64*3584}", f"s_add_u32 m0, s35, {SB*slot}"]); o.append([f"s_add_u32 s{sKS}, s{sKS}, 1", f"s_and_b32 s{sKS}, s{sKS}, 7"])
            if n == 4: o.append(f"s_add_u32 m0, s35, {SB*slot+4096}")
            o.append(L(lambda n=n: k(f"buffer_load_dwordx4 v{VD+n}, s[8:11], s{sT0} offen offset:{1024*(n%4)} lds", token=f"W{slot}"), 10, "v"))
        return o
    def hload(st):
        o = [[f"s_lshl_b32 s{sT1}, s39, 12", f"s_add_u32 s{sT1}, s{sT1}, s38"], ["s_add_u32 s39, s39, 1", "s_and_b32 s39, s39, 7"]]
        o += [f"buffer_load_dwordx4 {a(HB+16*st+4*j,4)}, v{VL16}, s[24:27], s{sT1} offen offset:{1024*j} sc1" for j in range(4)]
        return o
    stamp(k, "t_set")
    await_(0, 1, "_0", counter=True)
    publish("PST", 7, "_1")
    stamp(k, "pub1")
    X = 16; XF = 24; MV = 40; PB = 64
    for i in range(2): k(f"buffer_load_dwordx4 {v(X+4*i,4)}, v4, s[12:15], s5 offen offset:{128*i}")
    def load_mod(base, m):
        k(f"s_mov_b32 s23, {M.WS_MOD + m*2048}")
        for i in range(2):
            for hh in range(2): k(f"buffer_load_dwordx4 {v(base+8*i+4*hh,4)}, v5, s[24:27], s23 offen offset:{256*i+16*hh} sc1")
    load_mod(MV, 2); load_mod(128, 4); load_mod(144, 3)
    nd = 0
    while nd < P["TW1"]: put(k, dma(nd)); nd += 1
    await_(6, 8, "_1")
    stamp(k, "poll1")
    k(f"s_add_u32 s23, s4, {M.WS_P:#x}")
    for g in range(8):
        for i in range(2): k(f"buffer_load_dwordx4 {v(PB+8*g+4*i,4)}, v{3-i}, s[24:27], s23 offen sc1")
        if g < 7: k("s_add_u32 s23, s23, 0x200000")
    k("s_mov_b32 s22, 0xffff0000")
    def unpack(dst, src):
        k(f"v_lshlrev_b32 v{dst}, 16, v{src}"); k(f"v_and_b32 v{dst+1}, s22, v{src}")
    for q in range(8): unpack(XF + 2 * q, PB + q)
    for g in range(1, 8):
        for q in range(8):
            unpack(10 + 2 * (q & 1), PB + 8 * g + q)
            k(f"v_pk_add_f32 {v(XF+2*q,2)}, {v(XF+2*q,2)}, {v(10+2*(q&1),2)}")
    for q in range(8):
        unpack(10, X + q)
        k(f"v_pk_fma_f32 v[10:11], {v(XF+2*q,2)}, {v(MV+2*q,2)}, v[10:11]")
        k(f"v_cvt_pk_bf16_f32 v{X+q}, v10, v11")
        unpack(XF + 2 * q, X + q)
    k(f"s_add_u32 s23, s4, {M.WS_X1:#x}")
    for i in range(2): k(f"buffer_store_dwordx4 {v(X+4*i,4)}, v{3-i}, s[24:27], s23 offen sc1")
    stamp(k, "x1")
    M.ln_stats(k, XF)
    for e in range(0, 16, 2):
        k(f"v_pk_mul_f32 {v(XF+e,2)}, {v(XF+e,2)}, v[56:57]")
        k(f"v_pk_fma_f32 {v(XF+e,2)}, {v(XF+e,2)}, {v(128+e,2)}, {v(144+e,2)}")
        k(f"v_cvt_pk_bf16_f32 v{MV+e//2}, v{XF+e}, v{XF+e+1}")
    k(f"s_add_u32 s23, s4, {M.WS_H2:#x}")
    for i in range(2): k(f"buffer_store_dwordx4 {v(MV+4*i,4)}, v{3-i}, s[24:27], s23 offen sc1", token="H2S")
    k("s_add_u32 s7, s7, 0x8000")
    publish("H2S", 7, "_2")
    stamp(k, "pub2")
    while nd < P["TW2"]: put(k, dma(nd)); nd += 1
    await_(34, 16, "_2")
    stamp(k, "poll2")
    HP = P["HPRE"]
    for st in range(HP): put(k, hload(st))
    VAs = [VA, VA, VA + 1, VA + 1, VA + 2]; VAo = [0, SB, 0, SB, 0]
    def reads(step):
        st, ks = divmod(step, 4); slot = st % NS; buf = step % 2
        return [f"ds_read_b64_tr_b16 {a(AF+28*buf+4*t+2*u,2)}, v{VAs[slot]} offset:{VAo[slot]+224*(16*ks+4*u)+32*t}" for t in range(7) for u in range(2)]
    def mf(step):
        st, ks = divmod(step, 4); buf = step % 2
        return [f"v_mfma_f32_32x32x16_bf16 {v(AC+16*t,16)}, {a(AF+28*buf+4*t,4)}, {a(HB+16*st+4*ks,4)}, {'0' if step == 0 else v(AC+16*t,16)}" for t in range(7)]
    NSL = 20; NB = 14
    BFR = 0; AF2 = 112; AC2 = 192
    VD0, VD1, VW, VL2, T2 = 160, 161, 162, 164, 168
    sNB, sRB2, sA0, sA1, sKW, sKA, sRING, sAB, sK0 = 50, 51, 52, 53, 54, 55, 56, 57, 58
    def setup2():
        o = [L(lambda: M.split2(k, 2, sNB, sRB2, 32 // P["F2R"], 32, sA0, sKW), 40)]
        o += [L(lambda: k.srd(12, 44, 1792 * 1024), 16), L(lambda: k.srd(16, 48, 2048 * 1024), 16)]
        o += [f"v_lshrrev_b32 v{T2+1}, 3, v{TT}", f"v_bfe_u32 v{T2+2}, v{TT}, 4, 1", f"v_lshlrev_b32 v{T2+2}, 2, v{T2+2}",
              f"v_and_b32 v{T2+3}, 7, v{TT}", f"v_xor_b32 v{T2+3}, v{T2+3}, v{T2+2}", f"v_lshlrev_b32 v{T2+3}, 4, v{T2+3}",
              f"s_lshl_b32 s{sA0}, s{sNB}, 7", f"v_lshl_add_u32 v{VD0}, v{T2+1}, 10, v{T2+3}", f"v_add_u32 v{VD0}, s{sA0}, v{VD0}",
              f"v_add_u32 v{VD1}, {8*1024-1024}, v{VD0}", f"s_mul_i32 s{sRING}, s{sW}, {NSL*2048}", f"v_add_u32 v{VL2}, {224*512}, v{VL16}",
              [f"s_lshr_b32 s{sKW}, s2, 3", f"s_mul_i32 s{sKW}, s{sKW}, 7", f"s_lshr_b32 s{sKW}, s{sKW}, 3"], [f"s_mov_b32 s{sKA}, s{sKW}", f"s_mul_i32 s{sK0}, s{sW}, 28"],
              [f"s_mul_i32 s{sAB}, s{sRB2}, {2*224*512}", f"s_add_u32 s{sAB}, s{sAB}, {M.WS_ACT:#x}"]]
        t2 = T2 + 4
        o += [f"v_lshl_add_u32 v{t2}, v{h_}, 3, v{r_}", f"v_lshlrev_b32 v{VW}, 7, v{t2}", f"v_lshl_add_u32 v{t2+1}, v{gn}, 2, v{c2}",
              f"v_lshl_add_u32 v{VW}, v{t2+1}, 3, v{VW}", f"v_lshrrev_b32 v{t2}, 1, v{r_}", f"v_lshl_add_u32 v{VW}, v{t2}, 6, v{VW}",
              f"v_add_u32 v{VW}, s{sRING}, v{VW}", f"v_xor_b32 v{VW+1}, 64, v{VW}"]
        o += [[f"s_lshr_b32 s59, s{sRB2}, 1", "s_lshl_b32 s59, s59, 11", f"s_add_u32 s59, s59, {FL3:#x}"],
              ["s_lshl_b32 s60, s30, 4", "s_add_u32 s60, s60, s29", "s_lshl_b32 s60, s60, 7"], f"s_add_u32 s60, s60, {FL3:#x}"]
        return o
    def pf2():
        nA = 32 // P["F2R"]; NA = 8 // nA; rows = 8 // nA; nin = 14 // rows
        o = [f"v_lshrrev_b32 v{T2+8}, {M.lg2(8*nA)}, v{TT}", f"v_lshlrev_b32 v{T2+8}, 10, v{T2+8}", f"v_and_b32 v{T2+9}, {8*nA-1}, v{TT}", f"v_lshl_add_u32 v{T2+8}, v{T2+9}, 4, v{T2+8}",
             ["s_lshr_b32 s61, s2, 3", "s_lshl_b32 s61, s61, 2", f"s_add_u32 s61, s61, s{sW}"], [f"s_mul_i32 s61, s61, {14*1024}", f"s_and_b32 s62, s2, {NA-1}"],
             [f"s_mul_i32 s62, s62, {128*nA}", "s_add_u32 s61, s61, s62"]]
        o += [[f"buffer_load_dwordx4 {a(192+4*n,4)}, v{T2+8}, s[12:15], s61 offen", f"s_add_u32 s61, s61, {1024*rows}"] for n in range(nin)]
        return o
    K0_ = -2 * math.sqrt(2 / math.pi) * M.LOG2E
    pre = [[f"s_mov_b32 s36, {f32(K0_*0.044715)}", "s_mov_b32 s37, s36"], f"v_mov_b32 v{KC}, {f32(K0_)}", f"v_mov_b32 v{KC+1}, {f32(K0_)}",
           [f"s_lshl_b32 s{sT1}, s{sRB}, 2", f"s_add_u32 s{sT1}, s{sT1}, s{sW}", f"s_mul_i32 s{sT1}, s{sT1}, {224*512}"],
           [f"s_mul_i32 s{sT0}, s{sFS}, {14*512}", f"s_add_u32 s38, s{sT1}, s{sT0}"], [f"s_add_u32 s38, s38, {M.WS_ACT:#x}", "s_add_u32 s39, s38, 4096"]]
    k.wait("W0"); k("s_barrier")
    for x in reads(0): k(x)
    nh = HP
    for st in range(8):
        sc = Sched(28)
        m_ = []
        for ks in range(4):
            step = 4 * st + ks
            if step + 1 < 32:
                if ks == 3: sc.pin(21, L(lambda st=st: (k.wait(f"W{(st+1) % NS}"), k("s_barrier")), 8))
                sc.add(reads(step + 1), 7 * ks, 7 * ks + 6, prio=1)
                sc.pin(7 * ks + 6, L(lambda step=step: k.wait_regs(a(AF + 28 * ((step + 1) % 2), 16), a(HB + 4 * (step + 1), 4))), end=True)
                if ks < 3: sc.pin(7 * ks + 10, L(lambda step=step: k.wait_regs(a(AF + 28 * ((step + 1) % 2), 28))), end=True)
            if ks == 0 and st > 0: sc.pin(3, L(lambda step=step: k.wait_regs(a(AF + 28 * (step % 2), 28))), end=True)
            m_ += mf(step)
        ld = []
        for _ in range(2):
            if nh < 8: ld += hload(nh); nh += 1
        while nd < 8 and nd <= st + 3: ld += dma(nd % NS); nd += 1
        sc.add(ld, 0, 21)
        if st == 4: sc.add(setup2(), 0, 28)
        if st == 5 and P["PF2"]: sc.add(pf2(), 0, 28)
        if st == 7: sc.add(pre, 0, 20); sc.pin(25, "s_barrier")
        for m, f_ in zip(m_, sc.run()): k(m); put(k, f_)
    stamp(k, "ffn1")
    def wdma(i):
        sl = i % NSL
        return [[f"s_add_u32 s{sA0}, s{sKW}, s{sK0}", f"s_lshl_b32 s{sA0}, s{sA0}, 14", f"s_add_u32 m0, s{sRING}, {2048*sl}"],
                [f"s_add_u32 s{sKW}, s{sKW}, 1", f"s_cmp_ge_u32 s{sKW}, 28", f"s_cselect_b32 s{sKW}, 0, s{sKW}"],
                f"buffer_load_dwordx4 v{VD0}, s[12:15], s{sA0} offen lds",
                L(lambda: k(f"buffer_load_dwordx4 v{VD1}, s[12:15], s{sA0} offen offset:1024 lds", token=f"D{sl}"), 10, "v")]
    def aload(i):
        sl = i % NB
        return [[f"s_add_u32 s{sA1}, s{sKA}, s{sK0}", f"s_lshl_b32 s{sA1}, s{sA1}, 10", f"s_add_u32 s{sA1}, s{sA1}, s{sAB}"],
                [f"s_add_u32 s{sKA}, s{sKA}, 1", f"s_cmp_ge_u32 s{sKA}, 28", f"s_cselect_b32 s{sKA}, 0, s{sKA}"],
                f"buffer_load_dwordx4 {a(BFR+8*sl,4)}, v{VL16}, s[24:27], s{sA1} offen sc1",
                f"buffer_load_dwordx4 {a(BFR+8*sl+4,4)}, v{VL2}, s[24:27], s{sA1} offen sc1"]
    W1 = P["FW1"]; n = 0
    for t in range(7):
        G = AC + 16 * t; E = 136 + 8 * (t % 2); D = 152 + 4 * (t % 2)
        per = (W1 * (t + 1)) // 6 - (W1 * t) // 6 if t < 6 else 0
        for j in range(per): put(k, wdma(n)); n += 1
        o = [f"v_pk_mul_f32 {v(E+r,2)}, {v(G+r,2)}, {v(G+r,2)}" for r in range(0, 8, 2)]
        o += [f"v_pk_fma_f32 {v(E+r,2)}, {v(E+r,2)}, s[36:37], {v(KC,2)}" for r in range(0, 8, 2)]
        o += [f"v_pk_mul_f32 {v(E+r,2)}, {v(E+r,2)}, {v(G+r,2)}" for r in range(0, 8, 2)]
        o += [f"v_exp_f32 v{E+r}, v{E+r}" for r in range(8)]
        o += [f"v_pk_mul_f32 {v(G+r,2)}, {v(G+r,2)}, {v(G+8+r,2)}" for r in range(0, 8, 2)]
        o += [f"v_pk_add_f32 {v(E+r,2)}, {v(E+r,2)}, 1.0 op_sel_hi:[1,0]" for r in range(0, 8, 2)]
        o += [f"v_rcp_f32 v{E+r}, v{E+r}" for r in range(8)]
        o += [f"v_pk_mul_f32 {v(G+r,2)}, {v(G+r,2)}, {v(E+r,2)}" for r in range(0, 8, 2)]
        o += [f"v_cvt_pk_bf16_f32 v{D+j}, v{G+2*j}, v{G+2*j+1}" for j in range(4)]
        put(k, o)
        k(f"buffer_store_dwordx4 {v(D,4)}, v{VL16}, s[24:27], s{38 if t<4 else 39} offen offset:{1024*(t%4)} sc1", token="ST")
    publish("ST", 60, "_3")
    stamp(k, "pub3")
    X1R, GB = 176, 184
    t2 = T2 + 4
    k(f"s_lshl_b32 s61, s{sRB2}, 1"); k(f"s_and_b32 s62, s{sW}, 1"); k("s_add_u32 s63, s61, s62")
    k(f"s_lshr_b32 s64, s{sW}, 1"); k("s_lshl_b32 s64, s64, 2"); k(f"s_lshl_b32 s61, s{sNB}, 3"); k("s_add_u32 s64, s64, s61")
    k("s_lshl_b32 s65, s63, 15"); k("s_lshl_b32 s62, s64, 9"); k("s_add_u32 s65, s65, s62"); k(f"s_add_u32 s65, s65, {M.WS_X1:#x}")
    k(f"v_lshlrev_b32 v{t2}, 5, v{h_}")
    k("s_lshl_b32 s62, s64, 5"); k(f"s_add_u32 s62, s62, {M.WS_MOD+5*2048}")
    for sp in range(2):
        for q in range(2): k(f"buffer_load_dwordx4 {v(GB+8*sp+4*q,4)}, v{t2}, s[24:27], s62 offen offset:{64*sp+16*q} sc1")
    while n < P["FW2"]: put(k, wdma(n)); n += 1
    await_(59, 16, "_3")
    stamp(k, "poll3")
    PRE = P["F2PRE"]
    for i in range(PRE): put(k, aload(i))
    def reads2(i):
        sl = i % NSL
        rd = [f"ds_read_b64_tr_b16 {a(AF2+8*(i%2)+4*a_+2*u,2)}, v{VW+a_} offset:{2048*sl+512*u}" for a_ in range(2) for u in range(2)]
        return [[L(lambda: k.wait(f"D{sl}")), rd[0]]] + rd[1:]
    put(k, reads2(0))
    nw = n
    for i in range(28):
        sc = Sched(4, budget=40)
        if i + 1 < 28: sc.add(reads2(i + 1), 0, 2, prio=1)
        ld = aload(i + PRE) if i + PRE < 28 else []
        if nw < 28 and nw - NSL < i: ld = ld + wdma(nw); nw += 1
        if i + PRE == 28: ld = ld + [f"buffer_load_dwordx4 {v(X1R+4*sp,4)}, v{VL16}, s[24:27], s65 offen offset:{1024*sp} sc1" for sp in range(2)]
        sc.add(ld, 0, 4)
        mf2 = [f"v_mfma_f32_32x32x16_bf16 {a(AC2+32*a_+16*rt,16)}, {a(AF2+8*(i%2)+4*a_,4)}, {a(BFR+8*(i%NB)+4*rt,4)}, {'0' if i==0 else a(AC2+32*a_+16*rt,16)}" for a_ in range(2) for rt in range(2)]
        for m, f_ in zip(mf2, sc.run()): k(m); put(k, f_)
    stamp(k, "ffn2")
    k("s_barrier")
    k(f"s_lshl_b32 s61, s{sW}, 14"); k(f"v_add_u32 v{t2+1}, s61, v{VL16}")
    for q in range(16): k(f"ds_write_b128 v{t2+1}, {a(AC2+4*q,4)} offset:{1024*q}", token="red")
    R_ = 16
    for r in range(16):
        if r % 2 == 0: k(f"v_lshlrev_b32 v{96+r}, 16, v{X1R+r//2}")
        else: k(f"v_and_b32 v{96+r}, s22, v{X1R+r//2}")
    k(f"v_and_b32 v{t2}, 31, v{TT}"); k(f"v_lshlrev_b32 v{t2}, 10, v{t2}"); k(f"v_lshl_add_u32 v{t2}, v{h_}, 4, v{t2}")
    k(f"s_lshl_b32 s61, s{sW}, 12"); k(f"v_add_u32 v{t2+2}, s61, v{VL16}")
    k("s_lshl_b32 s61, s63, 15"); k("s_lshl_b32 s62, s64, 4"); k("s_add_u32 s61, s61, s62")
    k.wait("red"); k("s_barrier")
    for q in range(4):
        for ww in range(4): k(f"ds_read_b128 {v(R_+16*ww+4*q,4)}, v{t2+2} offset:{16384*ww+1024*q}")
    for sp in range(2):
        for r in range(8 * sp, 8 * sp + 8, 2):
            k(f"v_pk_add_f32 {v(R_+r,2)}, {v(R_+r,2)}, {v(R_+16+r,2)}"); k(f"v_pk_add_f32 {v(R_+32+r,2)}, {v(R_+32+r,2)}, {v(R_+48+r,2)}")
        for r in range(8 * sp, 8 * sp + 8, 2): k(f"v_pk_add_f32 {v(R_+r,2)}, {v(R_+r,2)}, {v(R_+32+r,2)}")
        for r in range(8 * sp, 8 * sp + 8, 2): k(f"v_pk_fma_f32 {v(R_+r,2)}, {v(R_+r,2)}, {v(GB+r,2)}, {v(96+r,2)}")
        for j in range(4 * sp, 4 * sp + 4): k(f"v_cvt_pk_bf16_f32 v{80+j}, v{R_+2*j}, v{R_+2*j+1}")
        k(f"buffer_store_dwordx4 {v(80+4*sp,4)}, v{t2}, s[16:19], s61 offen offset:{32*sp} sc1")
```

```python
import sys, struct, math, os, json
from asmlib import *

def f32(x): return "0x%08x" % struct.unpack("<I", struct.pack("<f", x))[0]
LOG2E = 1.4426950408889634
CS = 128 ** -0.5
A_X, A_K, A_V, A_WQ, A_WO, B_X, A_WG, A_WU, A_WD, A_C, A_WM, A_OUT, A_DBG, A_WS = [8 * i for i in range(14)]
WS_MOD = 0x0
WS_GO = 0x18000
WS_FL = 0x20000
WS_ST = 0x10000
WS_P = 0x400000
WS_X1 = 0x1400000
WS_H2 = 0x1600000
WS_ACT = 0x1800000
WS_BYTES = 0x10000000
WS_DBG = 0x8000000
P = dict(STAMPS=0, G=2, ROT=1, F1R=8, F2R=8, PREF0=1, PREFC=1, PREFQ=1, PREFK=1, PORD=1, XPRE=0, TLBW=1, PBAR=3, WPOS=1, DEFER=1, SYNC=1, LFIRST=0, SLEEP=2, OSC=1, SLEEP2=4, FW1=10, FW2=20, F2PRE=12, TW1=3, TW2=5, HPRE=3, PSYS=0, WPRE=2, BURST=54, KEARLY=0, BIAS=100, FORCE_FB=0, PNT=0, PST=2, AST=2, PF1=1, PF2=1)
for kv in os.environ.get("GP", "").split(","):
    if kv: P[kv.split("=")[0]] = int(kv.split("=")[1])

def stamp(k, name):
    if not P["STAMPS"]: return
    if P.get("DG") == 3 and name in ("gemv", "stats", "go", "poll", "mod", "qgemm"): return
    i = len(k.stamps); k.stamps.append(name)
    assert i < 12
    k.sgpr = 102
    k("s_memtime s[72:73]"); k("s_memrealtime s[74:75]"); k("s_waitcnt lgkmcnt(0)")
    k(f"s_mov_b32 s{76+2*i}, s72"); k(f"s_mov_b32 s{77+2*i}, s74")
def stamp_begin(k):
    k.stamps = []
    if not P["STAMPS"]: return
    k("v_lshrrev_b32 v1, 6, v0"); k("v_readfirstlane_b32 s101, v1")
    stamp(k, "start")
def stamp_flush(k, kidx):
    if not P["STAMPS"]: return
    stamp(k, "end")
    if P["STAMPS"] == 2:
        lab = k.newlabel("NODBG")
        k("s_mov_b64 exec, -1")
        k("s_or_b32 s100, s2, s101"); k("s_cmp_lg_u32 s100, 0"); k(f"s_cbranch_scc1 {lab}")
        k(f"s_load_dwordx2 s[64:65], s[0:1], {A_WS}")
        k(f"s_load_dwordx2 s[66:67], s[0:1], {A_DBG}")
        k.srd(56, 64, 256, WS_DBG)
        n = len(k.stamps) - 1
        k(f"s_sub_u32 s100, s{76+2*n}, s76")
        k("v_mov_b32 v1, 0")
        for j, sr in enumerate([77, 77 + 2*n, 100]):
            k(f"v_mov_b32 v0, s{sr}")
            k(f"buffer_store_dword v0, v1, s[56:59], 0 offen offset:{12*kidx+4*j} sc0 sc1")
        k.wait_all()
        k("v_mbcnt_lo_u32_b32 v1, -1, 0"); k("v_mbcnt_hi_u32_b32 v1, -1, v1"); k("v_lshlrev_b32 v1, 2, v1")
        k("buffer_load_dword v0, v1, s[56:59], 0 offen sc0 sc1")
        k.srd(60, 66, 256)
        k("buffer_store_dword v0, v1, s[60:63], 0 offen")
        k.label(lab)
        return
    k(f"s_load_dwordx2 s[64:65], s[0:1], {A_WS}")
    k("s_mov_b64 exec, -1")
    k.srd(56, 64, WS_BYTES)
    k("s_lshl_b32 s100, s2, 3"); k("s_add_u32 s100, s100, s101"); k("s_lshl_b32 s100, s100, 8")
    k(f"s_add_u32 s100, s100, {WS_DBG + kidx*0x100000:#x}")
    k("v_mov_b32 v1, 0")
    for j, sr in enumerate([76 + i for i in range(2*len(k.stamps))]):
        k(f"v_mov_b32 v0, s{sr}")
        k(f"buffer_store_dword v0, v1, s[56:59], s100 offen offset:{4*j}")

def wave_id(k, sdst, vtmp):
    k(f"v_lshrrev_b32 v{vtmp}, 6, v0")
    k(f"v_readfirstlane_b32 s{sdst}, v{vtmp}")
def rowsum_8(k, val, tmp):
    k(f"v_add_f32_dpp v{val}, v{val}, v{val} row_ror:8 row_mask:0xf bank_mask:0xf")
    k(f"v_mov_b32 v{tmp}, v{val}"); k(f"v_permlane16_swap_b32 v{val}, v{tmp}"); k(f"v_add_f32 v{val}, v{val}, v{tmp}")
    k(f"v_mov_b32 v{tmp}, v{val}"); k(f"v_permlane32_swap_b32 v{val}, v{tmp}"); k(f"v_add_f32 v{val}, v{val}, v{tmp}")
def rnd(k, d, sreg): k(f"v_cvt_pk_bf16_f32 v{d}, 0, v{sreg}")
def lg2(x): return x.bit_length() - 1
def split2(k, sb, sA, sB, nA_per, nB_total, t0, t1):
    A_total = 256 // nB_total; NA = A_total // nA_per
    k(f"s_and_b32 s{t0}, s{sb}, 7"); k(f"s_lshr_b32 s{t1}, s{sb}, 3")
    k(f"s_and_b32 s{sA}, s{t0}, {NA-1}"); k(f"s_lshl_b32 s{sA}, s{sA}, {lg2(nA_per)}")
    k(f"s_and_b32 s{sB}, s{t1}, {nA_per-1}"); k(f"s_add_u32 s{sA}, s{sA}, s{sB}")
    k(f"s_lshr_b32 s{sB}, s{t0}, {lg2(NA)}"); k(f"s_lshl_b32 s{sB}, s{sB}, {lg2(32//nA_per)}")
    k(f"s_lshr_b32 s{t1}, s{t1}, {lg2(nA_per)}"); k(f"s_add_u32 s{sB}, s{sB}, s{t1}")
def lane_tr_parts(k, lane, r, c2, gn, h, tmp):
    k(f"v_bfe_u32 v{r}, v{lane}, 2, 2")
    k(f"v_and_b32 v{c2}, 1, v{lane}"); k(f"v_lshlrev_b32 v{c2}, 1, v{c2}")
    k(f"v_bfe_u32 v{tmp}, v{lane}, 1, 1"); k(f"v_or_b32 v{c2}, v{c2}, v{tmp}")
    k(f"v_bfe_u32 v{gn}, v{lane}, 4, 1")
    k(f"v_lshrrev_b32 v{h}, 5, v{lane}")

QS = CS * LOG2E
KNAME = "adaLN_cond__sliding_block_cached__geglu_ffn__prompt_kernel"
def ln_stats(k, XF):
    k(f"v_pk_add_f32 v[10:11], {v(XF,2)}, {v(XF+2,2)}")
    for e in range(4, 16, 2): k(f"v_pk_add_f32 v[10:11], v[10:11], {v(XF+e,2)}")
    k("v_add_f32 v10, v10, v11")
    def allreduce(off):
        rowsum_8(k, 10, 11)
        k(f"ds_write_b32 v9, v10 offset:{off}", token="w"); k.wait("w"); k("s_barrier")
        k(f"ds_read_b128 {v(12,4)}, v8 offset:{off}")
        k("v_add_f32 v12, v12, v13"); k("v_add_f32 v14, v14, v15"); k("v_add_f32 v10, v12, v14")
    allreduce(0)
    k(f"v_mul_f32 v58, {f32(-1/512)}, v10"); k("v_mov_b32 v59, v58")
    for e in range(0, 16, 2): k(f"v_pk_add_f32 {v(XF+e,2)}, {v(XF+e,2)}, v[58:59]")
    k(f"v_pk_mul_f32 v[10:11], {v(XF,2)}, {v(XF,2)}")
    for e in range(2, 16, 2): k(f"v_pk_fma_f32 v[10:11], {v(XF+e,2)}, {v(XF+e,2)}, v[10:11]")
    k("v_add_f32 v10, v10, v11")
    allreduce(128)
    k(f"v_mov_b32 v11, {f32(1e-5)}"); k(f"v_fmac_f32 v11, {f32(1/512)}, v10")
    k("v_rsq_f32 v56, v11"); k("v_mov_b32 v57, v56")

def gen_ln2():
    k = Kernel("ln2_kernel", 256, 256, 256, vgpr=160, sgpr=64)
    k("s_cmp_ge_u32 s2, 256"); k("s_cbranch_scc1 END_ln2")
    stamp_begin(k)
    k(f"s_load_dwordx2 s[4:5], s[0:1], {A_X}")
    k(f"s_load_dwordx2 s[6:7], s[0:1], {A_WS}")
    k("v_and_b32 v1, 7, v0"); k("v_lshrrev_b32 v2, 3, v0"); k("v_lshrrev_b32 v6, 6, v0")
    k("v_and_b32 v7, 7, v2"); k("v_lshl_add_u32 v7, v6, 4, v7")
    k("v_lshlrev_b32 v3, 9, v7"); k("v_lshl_add_u32 v3, v1, 4, v3")
    k("v_add_u32 v2, 4096, v3")
    k("v_lshlrev_b32 v4, 10, v1"); k("v_lshl_add_u32 v4, v7, 4, v4")
    k("v_lshlrev_b32 v5, 5, v7")
    k("v_lshlrev_b32 v8, 4, v1"); k("v_lshl_add_u32 v9, v6, 2, v8")
    k("s_and_b32 s25, s2, 7"); k("s_lshl_b32 s25, s25, 5"); k("s_lshr_b32 s26, s2, 3"); k("s_add_u32 s25, s25, s26")
    k("s_lshl_b32 s20, s25, 13")
    k("s_lshr_b32 s21, s25, 2"); k("s_lshl_b32 s21, s21, 15"); k("s_and_b32 s22, s25, 3"); k("s_lshl_b32 s22, s22, 7")
    k("s_add_u32 s21, s21, s22")
    k(f"s_add_u32 s23, s21, {WS_P:#x}")
    k.srd(12, 6, WS_BYTES)
    X = 16; XF = 24; MV = 40; PB = 64
    for g in range(8):
        for i in range(2):
            k(f"buffer_load_dwordx4 {v(PB+8*g+4*i,4)}, v{3-i}, s[12:15], s23 offen" + (" nt" if P["PNT"] else ""))
        if g < 7: k("s_add_u32 s23, s23, 0x200000")
    k.srd(8, 4, 2048 * 1024)
    for i in range(2): k(f"buffer_load_dwordx4 {v(X+4*i,4)}, v4, s[8:11], s20 offen offset:{128*i}")
    k("v_mov_b32 v10, 0"); k("s_lshl_b32 s27, s2, 7"); k(f"s_add_u32 s27, s27, {WS_FL:#x}")
    k("buffer_store_dword v10, v10, s[12:15], s27 offen sc1")
    k("s_mov_b32 s24, 0xffff0000")
    def load_mod(base, m):
        k(f"s_mov_b32 s23, {WS_MOD + m*2048}")
        for i in range(2):
            for hh in range(2):
                k(f"buffer_load_dwordx4 {v(base+8*i+4*hh,4)}, v5, s[12:15], s23 offen offset:{256*i+16*hh}")
    def unpack(dst, src):
        k(f"v_lshlrev_b32 v{dst}, 16, v{src}"); k(f"v_and_b32 v{dst+1}, s24, v{src}")
    load_mod(MV, 2); load_mod(128, 4); load_mod(144, 3)
    for q in range(8): unpack(XF + 2 * q, PB + q)
    for g in range(1, 8):
        for q in range(8):
            unpack(10 + 2 * (q & 1), PB + 8 * g + q)
            k(f"v_pk_add_f32 {v(XF+2*q,2)}, {v(XF+2*q,2)}, {v(10+2*(q&1),2)}")
    for q in range(8):
        unpack(10, X + q)
        k(f"v_pk_fma_f32 v[10:11], {v(XF+2*q,2)}, {v(MV+2*q,2)}, v[10:11]")
        k(f"v_cvt_pk_bf16_f32 v{X+q}, v10, v11")
        unpack(XF + 2 * q, X + q)
    k(f"s_add_u32 s23, s21, {WS_X1:#x}")
    for i in range(2): k(f"buffer_store_dwordx4 {v(X+4*i,4)}, v{3-i}, s[12:15], s23 offen sc1")
    stamp(k, "x1")
    ln_stats(k, XF)
    stamp(k, "stats")
    for e in range(0, 16, 2):
        k(f"v_pk_mul_f32 {v(XF+e,2)}, {v(XF+e,2)}, v[56:57]")
        k(f"v_pk_fma_f32 {v(XF+e,2)}, {v(XF+e,2)}, {v(128+e,2)}, {v(144+e,2)}")
        k(f"v_cvt_pk_bf16_f32 v{MV+e//2}, v{XF+e}, v{XF+e+1}")
    k(f"s_add_u32 s23, s21, {WS_H2:#x}")
    for i in range(2): k(f"buffer_store_dwordx4 {v(MV+4*i,4)}, v{3-i}, s[12:15], s23 offen sc1")
    stamp_flush(k, 1)
    k.label("END_ln2"); k("s_endpgm")
    return k

def put(k, seq):
    for x in seq:
        if isinstance(x, list): put(k, x)
        elif callable(x): x()
        else: k(x)

def gen_attn():
    k = Kernel(KNAME, 256, 256, 163840, vgpr=256, agpr=256, sgpr=72)
    k.denorm32 = P.get("DEN", 3)
    L_K, L_H, L_V, L_W, L_M = 0, 32768, 32768, 98304, 16384
    ACC = 0; S = 0; CI = 64; Q = 128
    VK = 192; VV = 200; VW = 204; VDW = 208; VDK = 212; VDV = 214; VLIN = 215; VL16 = 216
    LS = 217; VLO = 219
    T = 220
    LN_, ROWL, GR16 = T, T + 1, T + 2
    r_, c2, gn, h_, tm = T + 3, T + 4, T + 5, T + 6, T + 7
    CH8 = T + 10; HW = T + 11
    VX = T + 13; VM = T + 15
    MX = T + 16
    STT = T + 24
    RL = T + 28; UT = T + 28
    O = 0; FR = 128; AF = 128; BF = 160
    sW, sG, sRB, sT0, sT1, sRING, sST, sFB, sROT, sT2 = 28, 29, 30, 32, 33, 34, 35, 39, 50, 51
    sO0, sO1, sO2, sW2K, sW256, sKhi, sMASK, sCC, sR8 = 36, 37, 38, 52, 54, 55, 58, 59, 6
    TAB = 60
    def L(f, cost=4, mem=False):
        f.cost = cost; f.mem = mem; return f
    k("s_cmp_ge_u32 s2, 256"); k("s_cbranch_scc1 END_attn")
    stamp_begin(k)
    k(f"s_mov_b32 s{sFB}, 0")
    if P["PREFC"]:
        k("s_getpc_b64 s[56:57]")
        k.label("PCREF")
        k(f"s_lshr_b32 s{sT1}, s2, 3"); k(f"s_lshl_b32 s{sT1}, s{sT1}, 12")
        k("v_lshlrev_b32 v108, 4, v0"); k(f"v_add_u32 v108, s{sT1}, v108"); k("v_min_u32 v108, CODE_END-PCREF-16, v108")
        k("global_load_dwordx4 a[252:255], v108, s[56:57]")
    wave_id(k, sW, T)
    k(f"v_and_b32 v{LN_}, 63, v0")
    k.label("RESTART")
    k(f"s_load_dwordx4 s[8:11], s[0:1], {A_C}")
    k(f"s_load_dwordx2 s[4:5], s[0:1], {A_X}")
    k(f"s_load_dwordx4 s[68:71], s[0:1], {A_DBG}")
    k(f"s_load_dwordx8 s[40:47], s[0:1], {A_K}")
    L_R = L_M + 4096
    PSC = "sc1"
    GW, GC, GA = 64, 80, 88
    k(f"v_lshl_add_u32 v99, s{sW}, 6, v{LN_}")
    k("v_and_b32 v100, 1, v99"); k("v_lshrrev_b32 v101, 1, v99")
    k("v_mul_u32_u24 v102, 6144, v101"); k("v_lshl_add_u32 v102, v100, 4, v102"); k("v_lshlrev_b32 v103, 1, v101")
    k("v_lshrrev_b32 v104, 4, v99"); k("v_lshlrev_b32 v104, 6, v104"); k("v_lshl_add_u32 v104, v100, 5, v104")
    sSL = 7; sPR = 53
    k(f"s_and_b32 s{sT0}, s2, 7"); k(f"s_lshr_b32 s{sT1}, s2, 3")
    k(f"s_lshl_b32 s{sSL}, s{sT0}, 3"); k(f"s_add_u32 s{sSL}, s{sSL}, s{sT1}")
    k(f"s_lshl_b32 s{sT2}, s{sT0}, 4"); k(f"s_add_u32 s{sT2}, s{sT2}, s{sT1}"); k(f"s_add_u32 s{sT2}, s{sT2}, 56")
    k("s_cmp_lt_u32 s2, 64"); k(f"s_cselect_b32 s{sSL}, s{sSL}, s{sT2}")
    k(f"s_cselect_b32 s{sPR}, s{sFB}, 1")
    k(f"s_lshl_b32 s31, s{sSL}, 5")
    k(f"v_lshlrev_b32 v{VL16}, 4, v{LN_}")
    G = P["G"]
    NG = 8 // G; NS = 32 // G
    k(f"s_and_b32 s{sG}, s2, {NG-1}"); k(f"s_lshl_b32 s{sG}, s{sG}, {lg2(G)}"); k(f"s_lshr_b32 s{sT0}, s2, {3+lg2(NS)}"); k(f"s_add_u32 s{sG}, s{sG}, s{sT0}")
    k(f"s_bfe_u32 s{sROT}, s2, {3 | (lg2(NS) << 16):#x}")
    k(f"s_and_b32 s{sRB}, s2, 7"); k(f"s_lshr_b32 s{sRB}, s{sRB}, {lg2(NG)}"); k(f"s_lshl_b32 s{sRB}, s{sRB}, {lg2(NS)}"); k(f"s_add_u32 s{sRB}, s{sRB}, s{sROT}")
    k(f"s_lshl_b32 s{sROT}, s{sROT}, {lg2(G)}")
    k(f"s_and_b32 s{sR8}, s{sROT}, 7"); k(f"s_lshr_b32 s{sCC}, s{sROT}, 3")
    RR, CGL = tm, tm + 1
    k(f"v_bfe_u32 v{RR}, v{LN_}, 2, 3")
    k(f"v_lshrrev_b32 v{CGL}, 5, v{LN_}"); k(f"v_lshlrev_b32 v{CGL}, 2, v{CGL}"); k(f"v_and_or_b32 v{CGL}, v{LN_}, 3, v{CGL}")
    k(f"v_lshlrev_b32 v{VX}, 10, v{RR}"); k(f"v_lshl_add_u32 v{VX}, v{CGL}, 4, v{VX}"); k(f"v_add_u32 v{VX+1}, 8192, v{VX}")
    k(f"s_lshl_b32 s3, s{sRB}, 16"); k(f"s_lshl_b32 s{sT2}, s{sW}, 14"); k(f"s_add_u32 s3, s3, s{sT2}")
    XR = [0, 128, 144, 160]; CN = 176
    XS = [48, 49, 56, 57]
    for c in range(4):
        put(k, [f"s_add_u32 s{XS[c]}, s{sCC}, {c}", f"s_and_b32 s{XS[c]}, s{XS[c]}, 3", f"s_lshl_b32 s{XS[c]}, s{XS[c]}, 8", f"s_add_u32 s{XS[c]}, s{XS[c]}, s3"])
    xl = [f"buffer_load_dwordx4 {v(XR[c]+8*cb+4*oo,4)}, v{VX+oo}, s[16:19], s{XS[c]} offen offset:{128*cb}" for oo in range(2) for c in range(4) for cb in range(2)]
    k.srd(12, 10, 512 * 6144); k.srd(20, 8, 1024); k.srd(16, 4, 2048 * 1024)
    def gemv_loads():
        k(f"s_mov_b32 s{sT0}, s31")
        for i in range(4):
            k(f"buffer_load_dwordx4 {v(GW+4*i,4)}, v102, s[12:15], s{sT0} offen")
            if i < 3: k(f"s_add_u32 s{sT0}, s{sT0}, {128*6144}")
    for i in range(4): k(f"buffer_load_ushort v{GC+i}, v103, s[20:23], 0 offen offset:{256*i}")
    k.srd(24, 70, WS_BYTES)
    k(f"s_lshl_b32 s{sO2}, s{sW}, 11"); k(f"s_add_u32 s{sO2}, s{sO2}, {WS_GO:#x}")
    for i in range(2): k(f"buffer_load_dwordx4 {v(MX+4*i,4)}, v{VL16}, s[24:27], s{sO2} offen offset:{1024*i} sc1")
    k(f"v_lshlrev_b32 v109, 3, v{LN_}"); k(f"s_lshl_b32 s{sO1}, s{sSL}, 7"); k(f"s_add_u32 s{sO1}, s{sO1}, {WS_GO:#x}")
    k(f"buffer_load_dword v110, v109, s[24:27], s{sO1} offen offset:4 sc1")
    k(f"s_xor_b32 s{sO0}, s{sW}, 3"); k(f"s_or_b32 s{sO0}, s{sO0}, s{sFB}")
    k(f"s_cmp_lg_u32 s{sO0}, 0"); k("s_cbranch_scc1 NOZERO")
    k(f"v_lshlrev_b32 v111, 15, v{LN_}"); k("v_mov_b32 v107, 0"); k(f"s_lshl_b32 s{sT0}, s2, 7"); k(f"s_add_u32 s{sT0}, s{sT0}, {WS_FL:#x}")
    k("s_mov_b64 exec, 7")
    k(f"buffer_store_dword v107, v111, s[24:27], s{sT0} offen sc1")
    k("s_mov_b64 exec, -1")
    k.label("NOZERO")
    k.vm = {kk: max(p - 1, 0) for kk, p in k.vm.items()}
    k(f"s_cmp_eq_u32 s{sPR}, 0"); k("s_cbranch_scc1 PLOAD")
    s_a = (dict(k.vm), dict(k.lg))
    put(k, xl)
    s_b = dict(k.vm)
    k("s_branch PJOIN")
    k.label("PLOAD")
    k.vm = dict(s_a[0])
    gemv_loads()
    k.label("PJOIN")
    k.vm = k._merge(k.vm, s_b)
    k(f"s_lshl_b32 s{sW256}, s{sW}, 8"); k(f"s_lshl_b32 s{sW2K}, s{sW}, 11")
    k(f"v_lshrrev_b32 v{ROWL}, 4, v{LN_}")
    k(f"v_and_b32 v{r_}, 15, v{LN_}"); k(f"v_lshlrev_b32 v{GR16}, 2, v{ROWL}"); k(f"v_xor_b32 v{GR16}, v{GR16}, v{r_}")
    k(f"v_lshlrev_b32 v{GR16}, 4, v{GR16}")
    def w_voffs(psh, scol):
        return [f"v_lshl_add_u32 v{VDW}, v{ROWL}, {psh}, v{GR16}", f"v_add_u32 v{VDW}, s{scol}, v{VDW}"] + \
               [f"v_add_u32 v{VDW+n}, {n*((4<<psh)-1024)}, v{VDW}" for n in range(1, 4)]
    k(f"s_lshl_b32 s{sT0}, s{sG}, 10"); k(f"s_add_u32 s{sT0}, s{sT0}, s{sW256}")
    put(k, w_voffs(13, sT0))
    k(f"s_lshl_b32 s{sRING}, s{sW}, 14"); k(f"s_add_u32 s{sRING}, s{sRING}, {L_W}")
    for p in range(8):
        k(f"s_add_u32 s{TAB+p}, s{sR8}, {p}"); k(f"s_and_b32 s{TAB+p}, s{TAB+p}, 7"); k(f"s_lshl_b32 s{TAB+p}, s{TAB+p}, 17")
    k(f"s_lshl_b32 s{sKhi}, s{sCC}, 20")
    k.srd(8, 44, 512 * 8192)
    def w_dma(step, which):
        slot = step % 4
        if which == "Q":
            srd = 8
            pre = [f"s_add_u32 s{sT0}, s{sKhi}, s{TAB+step%8}"]
            adv = [[f"s_add_u32 s{sKhi}, s{sKhi}, 0x100000", f"s_and_b32 s{sKhi}, s{sKhi}, 0x3fffff"]] if step % 8 == 7 else []
        else:
            srd = 20
            pre = [f"s_add_u32 s{sT0}, s{TAB+step%8}, {(2*(step//8))<<14}"]
            adv = []
        o = [pre + [f"s_add_u32 m0, s{sRING}, {4096*slot}"]] + adv + [f"buffer_load_dwordx4 v{VDW}, s[{srd}:{srd+3}], s{sT0} offen lds"]
        for n in range(1, 4):
            o.append(L(lambda n=n: k(f"buffer_load_dwordx4 v{VDW+n}, s[{srd}:{srd+3}], s{sT0} offen offset:{1024*n} lds", token=f"W{slot}"), 10, "v"))
        return o
    k(f"v_lshrrev_b32 v{r_}, 1, v{CGL}"); k(f"v_subrev_u32 v{r_}, s{sR8}, v{r_}")
    k(f"v_and_b32 v{c2}, 1, v{CGL}"); k(f"v_and_b32 v{gn}, 1, v{r_}"); k(f"v_lshl_add_u32 v{gn}, v{gn}, 1, v{c2}"); k(f"v_lshlrev_b32 v{gn}, 1, v{gn}")
    k(f"v_xor_b32 v{gn}, v{gn}, v{RR}")
    k(f"v_lshlrev_b32 v{c2}, 9, v{c2}"); k(f"v_lshl_add_u32 v{c2}, v{gn}, 4, v{c2}")
    k(f"s_lshr_b32 s{sT1}, s{sW}, 1"); k(f"s_lshl_b32 s{sT1}, s{sT1}, 15"); k(f"s_and_b32 s{sT2}, s{sW}, 1"); k(f"s_lshl_b32 s{sT2}, s{sT2}, 8")
    k(f"s_add_u32 s{sT1}, s{sT1}, s{sT2}"); k(f"s_add_u32 s{sT1}, s{sT1}, {L_H}"); k(f"v_add_u32 v{c2}, s{sT1}, v{c2}")
    for cb in range(2):
        k(f"v_add_u32 v{gn}, {4*cb}, v{r_}"); k(f"v_and_b32 v{gn}, 7, v{gn}"); k(f"v_lshl_add_u32 v{HW+cb}, v{gn}, 10, v{c2}")
    k(f"s_lshl_b32 s{sT2}, s{sCC}, 9"); k(f"v_lshlrev_b32 v{VM}, 5, v{CGL}"); k(f"v_add_u32 v{VM}, s{sT2}, v{VM}")
    lane_tr_parts(k, LN_, r_, c2, gn, h_, tm)
    k(f"v_lshl_add_u32 v{CH8}, v{gn}, 2, v{c2}"); k(f"v_lshlrev_b32 v{CH8}, 3, v{CH8}")
    k(f"v_lshl_add_u32 v{tm}, v{h_}, 3, v{r_}"); k(f"v_lshl_add_u32 v{tm}, v{tm}, 8, v{CH8}"); k(f"v_add_u32 v{tm}, s{sRING}, v{tm}")
    for a_ in range(4):
        k(f"v_xor_b32 v{tm+1}, {a_}, v{r_}"); k(f"v_lshl_add_u32 v{VW+a_}, v{tm+1}, 6, v{tm}")
    put(k, [f"v_lshl_add_u32 v{tm}, v{h_}, 2, v{r_}", f"v_lshl_add_u32 v{tm}, v{tm}, 8, v{CH8}", f"v_add_u32 v{tm}, {L_V}, v{tm}"])
    for dt in range(4): put(k, [f"v_xor_b32 v{tm+1}, {dt}, v{r_}", f"v_lshl_add_u32 v{VV+dt}, v{tm+1}, 6, v{tm}"])
    put(k, [f"v_and_b32 v{tm}, 31, v{LN_}", f"v_and_b32 v{tm+1}, 15, v{LN_}", f"v_xor_b32 v{tm+1}, v{tm+1}, v{h_}",
            f"v_lshlrev_b32 v{tm}, 8, v{tm}", f"v_lshl_add_u32 v{VK}, v{tm+1}, 4, v{tm}"])
    put(k, [f"v_xor_b32 v{VK+s_}, {s_*32}, v{VK}" for s_ in range(1, 8)])
    put(k, [f"v_mov_b32 v{LS}, 0", f"v_mov_b32 v{LS+1}, 0",
        f"v_lshl_add_u32 v{VDV}, v{ROWL}, 8, v{GR16}", f"s_and_b32 s{sT1}, s{sW}, 1", f"s_lshl_b32 s{sT1}, s{sT1}, 3",
        f"v_or_b32 v{tm}, s{sT1}, v{ROWL}", f"v_and_b32 v{tm+1}, 15, v{LN_}", f"v_xor_b32 v{tm}, v{tm}, v{tm+1}",
        f"v_lshlrev_b32 v{VDK}, 8, v{ROWL}", f"v_lshl_add_u32 v{VDK}, v{tm}, 4, v{VDK}", f"v_xor_b32 v{VDK+1}, 64, v{VDK}",
        f"s_lshl_b32 s{sT1}, s{sG}, 19", f"s_add_u32 s{sT1}, s{sT1}, s{sW2K}", f"s_add_u32 s{sT1}, s{sT1}, {1536*256}",
        f"v_add_u32 v{VDK}, s{sT1}, v{VDK}", f"v_add_u32 v{VDK+1}, s{sT1}, v{VDK+1}", f"v_add_u32 v{VDV}, s{sT1}, v{VDV}",
        f"v_lshlrev_b32 v{tm}, 5, v{h_}", f"v_xor_b32 v{VLIN}, v{tm}, v{VL16}", f"v_add_u32 v{VLIN}, {L_H}, v{VLIN}", f"v_xor_b32 v{VLO}, 64, v{VLIN}",
        f"s_mov_b32 s{sMASK}, 0xffff0000"])
    def nxt(d, s_): return [f"s_add_u32 s{d}, s{s_}, 8192", f"s_and_b32 s{d}, s{d}, 0x1ffff"]
    def kv_dma(which, lds_off, so):
        srd = 12 if which == "K" else 16
        return [f"s_add_u32 m0, s{sW2K}, {lds_off}", f"buffer_load_dwordx4 v{VDK if which=='K' else VDV}, s[{srd}:{srd+3}], s{so} offen lds",
                L(lambda: k(f"buffer_load_dwordx4 v{VDK+1 if which=='K' else VDV}, s[{srd}:{srd+3}], s{so} offen offset:1024 lds", token=which), 10, "v")]
    kinit = [[f"s_lshr_b32 s{sO0}, s{sROT}, 1", f"s_lshl_b32 s{sO0}, s{sO0}, 13"] + nxt(sO1, sO0) + nxt(sO2, sO1)]
    kfirst = [kv_dma("K", L_K + 16384 + 8192, sO0), kv_dma("K", L_K, sO1), kv_dma("K", L_K + 8192, sO2)]
    k.srd(20, 68, 256)
    def gemv_compute(lo, hi, tag, late):
        k(f"s_sub_u32 s{sT0}, s2, {lo}"); k(f"s_cmp_ge_u32 s{sT0}, {hi-lo}"); k(f"s_cselect_b32 s{sT0}, 1, s{sFB}"); k(f"s_cmp_lg_u32 s{sT0}, 0"); k("s_cbranch_scc1 NOGEMV" + tag)
        st0 = (dict(k.vm), dict(k.lg))
        D = P.get("DG") == 1 and not late
        if D: stamp(k, "g_in"); k.wait_regs(v(GW, 20)); stamp(k, "g_data")
        k(f"s_mov_b32 s{sT1}, {f32(-LOG2E)}")
        for i in range(4): k(f"v_lshlrev_b32 v{GC+i}, 16, v{GC+i}")
        for i in range(4): k(f"v_mul_f32 v{GA+i}, s{sT1}, v{GC+i}")
        for i in range(4): k(f"v_exp_f32 v{GA+i}, v{GA+i}")
        for i in range(4): k(f"v_add_f32 v{GA+i}, 1.0, v{GA+i}")
        for i in range(4): k(f"v_rcp_f32 v{GA+i}, v{GA+i}")
        for i in range(4): k(f"v_mul_f32 v{GC+i}, v{GC+i}, v{GA+i}")
        for i in range(4): rnd(k, 112 + 2 * i, GC + i)
        for i in range(4):
            for q in range(4):
                r = GW + 4 * i + q; u = 120 + 2 * (q & 1)
                k(f"v_lshlrev_b32 v{u}, 16, v{r}"); k(f"v_and_b32 v{u+1}, s{sMASK}, v{r}")
                if i == 0: k(f"v_pk_mul_f32 {v(GA+2*q,2)}, {v(u,2)}, {v(112+2*i,2)} op_sel_hi:[1,0]")
                else: k(f"v_pk_fma_f32 {v(GA+2*q,2)}, {v(u,2)}, {v(112+2*i,2)}, {v(GA+2*q,2)} op_sel_hi:[1,0,1]")
        for md in ("quad_perm:[2,3,0,1]", "row_ror:4", "row_ror:8"):
            for j in range(8): k(f"v_add_f32_dpp v{GA+j}, v{GA+j}, v{GA+j} {md} row_mask:0xf bank_mask:0xf")
        k(f"ds_write_b128 v104, {v(GA,4)} offset:{L_R}", token="w"); k(f"ds_write_b128 v104, {v(GA+4,4)} offset:{L_R+16}", token="w")
        k(f"v_lshlrev_b32 v105, 2, v{LN_}")
        k(f"s_lshr_b32 s{sT0}, s{sSL}, 5"); k(f"s_cmp_eq_u32 s{sT0}, 1"); k(f"s_cselect_b32 s{sT1}, 1.0, 0")
        k(f"s_cmp_eq_u32 s{sT0}, 4"); k(f"s_cselect_b32 s{sT1}, 1.0, s{sT1}")
        k(f"s_cmp_lt_u32 s{sT0}, 2"); k(f"s_cselect_b32 s{sT2}, {f32(QS)}, 1.0")
        k(f"s_lshl_b32 s{sT0}, s{sSL}, 6")
        k.wait("w"); k("s_barrier")
        k(f"s_cmp_lg_u32 s{sW}, 3"); k("s_cbranch_scc1 " + ("NOGEMV" + tag if late else "PWAIT"))
        for i in range(4): k(f"ds_read_b32 v{GA+i}, v105 offset:{L_R+256*i}")
        k(f"v_add_f32 v{GA}, v{GA}, v{GA+1}"); k(f"v_add_f32 v{GA+2}, v{GA+2}, v{GA+3}"); k(f"v_add_f32 v{GA}, v{GA}, v{GA+2}")
        k(f"v_mov_b32 v{GA+1}, v{GA}"); k(f"v_permlane16_swap_b32 v{GA}, v{GA+1}"); k(f"v_add_f32 v{GA}, v{GA}, v{GA+1}")
        k(f"v_mov_b32 v{GA+1}, v{GA}"); k(f"v_permlane32_swap_b32 v{GA}, v{GA+1}"); k(f"v_add_f32 v{GA}, v{GA}, v{GA+1}")
        rnd(k, GA, GA)
        k(f"v_add_f32 v{GA}, s{sT1}, v{GA}"); k(f"v_mul_f32 v{GA}, s{sT2}, v{GA}")
        if D: stamp(k, "g_red")
        k("s_mov_b64 exec, 0xffff")
        if not late:
            k(f"v_add_u32 v{GA+1}, 1, v110")
            k(f"buffer_store_dwordx2 {v(GA,2)}, v109, s[24:27], s{sO1} offen sc1")
            k("s_mov_b64 exec, -1")
            k.label("PWAIT")
            k("s_barrier")
            k.vm = {}
            put(k, xl)
            st0 = (k._merge(st0[0], k.vm), None)
        else:
            k(f"buffer_store_dword v{GA}, v105, s[24:27], s{sT0} offen sc1")
            k("s_mov_b64 exec, -1")
        k.label("NOGEMV" + tag)
        k.vm, k.lg = dict(st0[0]), {}
    gemv_compute(0, 64, "A", False)
    stamp(k, "gemv")
    k("s_mov_b32 s3, 0x3f803f80")
    if P.get("DG") == 2: stamp(k, "iss"); k.wait_regs(v(0, 16), v(128, 48)); stamp(k, "xarr")
    for oo in range(2):
        src = [XR[c] + 8 * cb + 4 * oo + q for c in range(4) for cb in range(2) for q in range(4)]
        A_ = 16 + 8 * oo
        if oo == P["WPOS"]:
            if oo: k.wait_regs(*[f"v{x}" for x in src])
            def late_loads():
                k(f"s_sub_u32 s{sT0}, s2, 64"); k(f"s_cmp_ge_u32 s{sT0}, 128"); k("s_cbranch_scc1 NOLATE")
                s_c = dict(k.vm)
                gemv_loads()
                k.label("NOLATE")
                k.vm = k._merge(k.vm, s_c)
                k.srd(12, 40, 8 * 2048 * 256)
            if P["LFIRST"]: late_loads()
            put(k, [w_dma(s_, "Q") for s_ in range(P["WPRE"])])
            if not P["LFIRST"]: late_loads()
        for j, x in enumerate(src):
            k(f"v_dot2_f32_bf16 v{A_+(j&1)}, v{x}, s3, {'0' if j < 2 else 'v%d' % (A_+(j&1))}")
            k(f"v_dot2_f32_bf16 v{A_+2+(j&1)}, v{x}, v{x}, {'0' if j < 2 else 'v%d' % (A_+2+(j&1))}")
        k("s_nop 2")
        k(f"v_add_f32 v{A_}, v{A_}, v{A_+1}"); k(f"v_add_f32 v{A_+2}, v{A_+2}, v{A_+3}")
        for md in ("quad_perm:[1,0,3,2]", "quad_perm:[2,3,0,1]"):
            for x in (A_, A_ + 2): k(f"v_add_f32_dpp v{x}, v{x}, v{x} {md} row_mask:0xf bank_mask:0xf")
        for x in (A_, A_ + 2): k(f"v_mov_b32 v{x+1}, v{x}")
        for x in (A_, A_ + 2): k(f"v_permlane32_swap_b32 v{x}, v{x+1}")
        for x in (A_, A_ + 2): k(f"v_add_f32 v{x}, v{x}, v{x+1}")
        k(f"v_mul_f32 v{A_}, {f32(-1/512)}, v{A_}")
        k(f"v_mul_f32 v{A_+2}, {f32(1/512)}, v{A_+2}")
        k(f"v_fma_f32 v{A_+2}, -v{A_}, v{A_}, v{A_+2}"); k(f"v_max_f32 v{A_+2}, 0, v{A_+2}")
        k(f"v_add_f32 v{A_+2}, {f32(1e-5)}, v{A_+2}"); k(f"v_rsq_f32 v{STT+2*oo+1}, v{A_+2}")
        k(f"v_mul_f32 v{STT+2*oo}, v{A_}, v{STT+2*oo+1}")
    def cread(cb, dst):
        return [f"ds_read_b128 {v(dst+8*m_+4*q,4)}, v{VM} offset:{L_M+2048*(1-m_)+256*cb+16*q}" for m_ in range(2) for q in range(2)]
    vmadv = [[f"v_add_u32 v{VM}, 0x200, v{VM}", f"v_and_b32 v{VM}, 0x7ff, v{VM}"]]
    def modulate(c, cb, cn, U_, pk):
        o = []
        for oo in range(2):
            x = XR[c] + 8 * cb + 4 * oo; u = U_ + (8 * oo if pk else 0)
            for q in range(4): o += [f"v_lshlrev_b32 v{u+2*q}, 16, v{x+q}", f"v_and_b32 v{u+2*q+1}, s{sMASK}, v{x+q}"]
            if pk:
                st = v(STT + 2 * oo, 2)
                o += [f"v_pk_fma_f32 {v(u+2*q,2)}, {v(u+2*q,2)}, {st}, {st} op_sel:[0,1,0] op_sel_hi:[1,1,0]" for q in range(4)]
                if pk == "pre": continue
                if pk == "post": o = o[:-12]
                o += [f"v_pk_fma_f32 {v(u+2*q,2)}, {v(u+2*q,2)}, {v(cn+2*q,2)}, {v(cn+8+2*q,2)}" for q in range(4)]
            else:
                o += [f"v_fma_f32 v{u+e}, v{u+e}, v{STT+2*oo+1}, v{STT+2*oo}" for e in range(8)]
                o += [f"v_fma_f32 v{u+e}, v{u+e}, v{cn+e}, v{cn+8+e}" for e in range(8)]
            o += [f"v_cvt_pk_bf16_f32 v{x+q}, v{u+2*q}, v{u+2*q+1}" for q in range(4)]
            o.append(L(lambda x=x, cb=cb, oo=oo: k(f"ds_write_b128 v{HW+cb}, {v(x,4)} offset:{8192*c+128*oo}", token="hw"), 22, "d"))
        return o
    put(k, modulate(0, 0, 16, 32, "pre") + modulate(0, 1, 32, 48, "pre"))
    if P.get("DG") == 2: stamp(k, "st+pre")
    gemv_compute(64, 192, "B", True)
    stamp(k, "stats")
    k(f"s_lshl_b32 s{sT1}, s{sFB}, 4"); k(f"s_sub_u32 s{sT1}, s{sT1}, s{sFB}")
    k("v_mov_b32 v80, 0")
    k(f"s_mov_b32 s{sT2}, 0")
    k.label("POLL")
    k(f"s_add_u32 s{sT1}, s{sT1}, 1")
    k(f"s_and_b32 s{sT0}, s{sT1}, 15"); k("s_cbranch_scc1 POLLR")
    k("buffer_load_dword v81, v80, s[20:23], 0 offen sc1")
    k("v_readfirstlane_b32 s{0}, v81".format(sT0))
    k(f"s_cmp_eq_u32 s{sT0}, 0x100"); k(f"s_cselect_b32 s{sT2}, 1, 0")
    k(f"s_cmp_gt_u32 s{sT1}, 0x40000"); k(f"s_cselect_b32 s{sT2}, 1, s{sT2}")
    k.label("POLLR")
    for i in range(2): k(f"buffer_load_dwordx4 {v(16+4*i,4)}, v{VL16}, s[24:27], s{sO2} offen offset:{1024*i} sc1")
    k(f"v_cmp_eq_u32 vcc, v17, v{MX+1}")
    for j in (3, 5, 7):
        k(f"v_cmp_eq_u32 s[56:57], v{16+j}, v{MX+j}"); k("s_or_b64 vcc, vcc, s[56:57]")
    k(f"s_cselect_b32 s{sT2}, s{sT2}, 1")
    k(f"s_cmp_lg_u32 s{sO0}, 0"); k("s_cbranch_scc1 NOARR")
    k("s_mov_b64 exec, 1"); k("v_mov_b32 v106, 1")
    k("buffer_atomic_add v106, v80, s[20:23], 0 offen")
    k("s_mov_b64 exec, -1")
    k(f"s_mov_b32 s{sO0}, 1")
    k.label("NOARR")
    k(f"s_cmp_lg_u32 s{sT2}, 0"); k("s_cbranch_scc1 POLLED")
    if P["SLEEP"]: k(f"s_sleep {P['SLEEP']}")
    k("s_branch POLL")
    k.label("POLLED")
    if P.get("DG"): stamp(k, "go")
    k("v_mov_b32 v17, v18"); k("v_mov_b32 v21, v22")
    k(f"s_lshl_b32 s{sT0}, s{sW}, 10"); k(f"v_add_u32 v80, s{sT0}, v109")
    for i in range(2): k(f"ds_write_b64 v80, {v(16+4*i,2)} offset:{L_M+512*i}", token="w")
    put(k, kinit)
    k.wait("w")
    k("s_barrier")
    stamp(k, "poll")
    k.srd(20, 46, 4096 * 1024)
    put(k, cread(0, 64) + cread(1, 80) + vmadv)
    put(k, modulate(0, 0, 64, 32, "post") + modulate(0, 1, 80, 48, "post"))
    put(k, [w_dma(s_, "Q") for s_ in range(P["WPRE"], 4)])
    fr = lambda f: FR + 4 * (f % 8)
    def rdK(f, s_, off): return [f"ds_read_b128 {a(fr(f),4)}, v{VK+s_} offset:{off}"]
    def rdV(f, i, off): return [f"ds_read_b64_tr_b16 {a(fr(f)+2*u,2)}, v{VV+i%4} offset:{off+4096*(i//4)+2048*u}" for u in range(2)]
    def a_reads(step):
        slot = step % 4; buf = step % 2
        rd = [f"ds_read_b64_tr_b16 {a(AF+16*buf+4*a_+2*u,2)}, v{VW+a_} offset:{4096*slot+1024*u}" for a_ in range(4) for u in range(2)]
        return [[L(lambda: k.wait(f"W{slot}")), rd[0]]] + rd[1:]
    def b_reads(step):
        return [f"ds_read_b128 {a(BF+8*(step%2)+4*rt,4)}, v{VLO if step & 1 else VLIN} offset:{1024*step+32768*rt}" for rt in range(2)]
    put(k, a_reads(0))
    k.wait("hw"); k("s_barrier")
    stamp(k, "mod")
    put(k, b_reads(0))
    def g_mfma(buf, first=False):
        return [f"v_mfma_f32_32x32x16_bf16 {v(ACC+32*a_+16*rt,16)}, {a(AF+16*buf+4*a_,4)}, {a(BF+8*buf+4*rt,4)}, {'0' if first else v(ACC+32*a_+16*rt,16)}"
                for a_ in range(4) for rt in range(2)]
    def gbody(which, c, extra):
        sc = Sched(64)
        mf = []
        if c < 3: sc.pin(57, L(lambda: (k.wait("hw"), k("s_barrier")), 8))
        for i in range(8):
            st = 8 * c + i
            if st + 1 < 32:
                sc.add(a_reads(st + 1), 8 * i, 8 * i + 5, prio=1)
                sc.add(b_reads(st + 1), 8 * i + (1 if i == 7 else 0), 8 * i + 4, prio=1)
                sc.pin(8 * i + 7, L(lambda st=st: k.wait_regs(a(AF + 16 * ((st + 1) % 2), 16), a(BF + 8 * ((st + 1) % 2), 8))), end=True)
            if st + 4 < 32: sc.add(w_dma(st + 4, which), 8 * i, 8 * i + 8)
            mf += g_mfma(i % 2, st == 0)
        extra(sc)
        for m, f_ in zip(mf, sc.run()): k(m); put(k, f_)
    def qepi(a_):
        return [f"v_cvt_pk_bf16_f32 v{Q+16*a_+8*(j//4)+4*rt+j%4}, v{ACC+32*a_+16*rt+2*j}, v{ACC+32*a_+16*rt+2*j+1}" for rt in range(2) for j in range(8)]
    def qx(c):
        def f(sc):
            if c < 3:
                m0_ = modulate(c + 1, 0, CN, UT, False); m1_ = modulate(c + 1, 1, CN, UT, False)
                if P["BURST"]:
                    wr = [x for x in m0_ + m1_ if callable(x)]
                    m0_ = [x for x in m0_ if not callable(x)]; m1_ = [x for x in m1_ if not callable(x)]
                    sc.add(cread(0, CN) + m0_[:-4] + cread(1, CN) + m0_[-4:] + m1_ + vmadv, 0, P["BURST"])
                    sc.pin(P["BURST"], wr)
                else:
                    sc.add(cread(0, CN) + m0_[:-5] + cread(1, CN) + m0_[-5:] + m1_ + vmadv, 0, 55)
            else:
                sc.pin(0, L(lambda: k.srd(16, 42, 8 * 2048 * 256), 16))
                if not P["KEARLY"]: sc.add([x for d in kfirst for x in d], 32, 44)
                tab = []
                for p in range(8):
                    tab.append([f"s_add_u32 s{sT1}, s{sR8}, {p}", f"s_and_b32 s{sT1}, s{sT1}, 7", f"s_lshr_b32 s{sT2}, s{sT1}, 1", f"s_mul_i32 s{sT2}, s{sT2}, 6"])
                    tab.append([f"s_add_u32 s{sT1}, s{sT1}, s{sT2}", f"s_lshl_b32 s{TAB+p}, s{sT1}, 14"])
                sc.add(tab + [[f"s_lshl_b32 s{sT0}, s{sG}, 19", f"s_add_u32 s{sT0}, s{sT0}, s{sW256}"]] + w_voffs(10, sT0), 33, 56)
                sc.pin(56, L(lambda: (k.wait_all(), k("s_barrier")), 8))
                sc.add([rdK(f, f, L_K + 16384 + 8192) for f in range(4)], 56, 60, prio=1)
                sc.add(kv_dma("V", L_V, sO0) + kv_dma("V", L_V + 8192, sO1), 57, 62)
                sc.add(qepi(0), 61, 64)
                sc.pin(58, [f"v_add_u32 v{VLIN}, {L_H}, v{VL16}", f"v_add_u32 v{VLO}, {L_H}, v{VL16}"])
        return f
    for c in range(4): gbody("Q", c, qx(c))
    stamp(k, "qgemm")
    def qk(f, s_, qt, buf, zero):
        d = v(S + 32 * buf + 16 * qt, 16)
        c = d if s_ else ("0" if zero else v(CI + 16 * qt, 16))
        return f"v_mfma_f32_32x32x16_bf16 {d}, {a(fr(f),4)}, {v(Q+8*s_+4*qt,4)}, {c}"
    def pv(f, i, qt, buf, zero=False):
        d = a(O + 32 * (i % 4) + 16 * qt, 16)
        return f"v_mfma_f32_32x32x16_bf16 {d}, {a(fr(f),4)}, {v(S+32*buf+16*qt+8*(i//4),4)}, {'0' if zero else d}"
    def sreg(buf, e): return S + 32 * buf + 16 * ((e >> 3) & 1) + 8 * (e >> 4) + (e & 7)
    def sm(buf, e, addci=False):
        o = []
        if e < 32:
            if addci: o.append(f"v_add_f32 v{sreg(buf,e)}, v{sreg(buf,e)}, v{CI+16*((e>>3)&1)}")
            o.append(f"v_exp_f32 v{sreg(buf,e)}, v{sreg(buf,e)}")
        if e >= 1:
            p = e - 1
            o.append(f"v_add_f32 v{LS+((p>>3)&1)}, v{LS+((p>>3)&1)}, v{sreg(buf,p)}")
            if p & 1:
                o.append(f"v_cvt_pk_bf16_f32 v{sreg(buf,p&~7)+(p&7)//2}, v{sreg(buf,p-1)}, v{sreg(buf,p)}")
        return o
    def wgrp(j): return L(lambda: k.wait_regs(a(FR + 16 * (j % 2), 16)))
    def qk0(epi):
        wgrp(0)()
        for s_ in range(8):
            ep = qepi(s_ // 2 + 1)[8 * (s_ & 1):8 * (s_ & 1) + 8] if epi and s_ < 6 else []
            rd = [rdK(f + 4, f + 4, L_K + 16384 + 8192) if f < 4 else rdK(f + 4, f - 4, L_K) for f in ([2*s_, 2*s_+1] if s_ < 2 else [2*s_-4, 2*s_-3] if 4 <= s_ < 6 else [])]
            k(qk(s_, s_, 0, 0, True)); put(k, rd[:1]); put(k, ep[:4])
            k(qk(s_, s_, 1, 0, True)); put(k, rd[1:]); put(k, ep[4:])
            if s_ % 4 == 3: wgrp(s_ // 4 + 1)()
    qk0(True)
    k(f"s_cmp_lg_u32 s{sFB}, 0"); k("s_cbranch_scc1 FB_MAX")
    k.label("IT0")
    def maxops(buf, dst):
        o = []
        for qt in range(2):
            b = S + 32 * buf + 16 * qt; t = dst + qt
            o.append(f"v_max3_f32 v{t}, v{b}, v{b+1}, v{b+2}")
            for i in range(3, 15, 2): o.append(f"v_max3_f32 v{t}, v{t}, v{b+i}, v{b+i+1}")
            o.append(f"v_max_f32 v{t}, v{t}, v{b+15}")
        return [x for pr in zip(o[:8], o[8:]) for x in pr]
    def xhalf_max(t, t2):
        return [f"v_mov_b32 v{t2}, v{t}", f"v_mov_b32 v{t2+1}, v{t+1}", f"v_permlane32_swap_b32 v{t}, v{t2}", f"v_permlane32_swap_b32 v{t+1}, v{t2+1}",
                f"v_max_f32 v{t}, v{t}, v{t2}", f"v_max_f32 v{t+1}, v{t+1}, v{t2+1}"]
    def flat(x): return [y for z in x for y in z]
    def iteration(par, first=False, last=False, extra=None):
        hb = 16384 * par; nb = 16384 * (1 - par)
        mf = []
        phs = [0, 1, 3] if last else [0, 1, 2, 3]
        n = 16 * len(phs)
        sc = Sched(n)
        frs = []
        for q_, ph in enumerate(phs):
            for g in range(16):
                f = 8 * q_ + g // 2; qt = g & 1; i = g // 2
                if ph == 0: mf.append(qk(f, i, qt, 1, first))
                elif ph == 1: mf.append(pv(f, i, qt, 0, first and i < 4))
                elif ph == 2: mf.append(qk(f, i, qt, 0, False))
                else: mf.append(pv(f, i, qt, 1))
            for i in range(8): frs.append((ph, i))
        ng = len(frs) // 4
        for j in range(1, ng):
            rd = []
            for f in range(4 * j, 4 * j + 4):
                ph, i = frs[f]
                rd += rdK(f, i, hb + 8192 * (ph // 2)) if ph % 2 == 0 else rdV(f, i, hb + 8192 * (ph // 2))
            g0 = 8 * (j - 1)
            if first and j == 2: sc.pin(g0 + 1, L(lambda: (k.wait("V"), k("s_barrier")), 8)); g0 += 1
            sc.add(rd, g0, 8 * (j - 1) + 6, prio=1)
            sc.pin(8 * j - 1, wgrp(j), end=True)
        dm = [nxt(sO1, sO2), kv_dma("V", L_V + nb, sO2), kv_dma("K", L_K + nb, sO1), kv_dma("V", L_V + nb + 8192, sO1), nxt(sO2, sO1), kv_dma("K", L_K + nb + 8192, sO2)]
        dm = [dm[0]] + dm[1] + dm[2] + dm[3] + [dm[4]] + dm[5]
        if first:
            sc.add(dm, 24, 44)
            mx = maxops(0, MX) + xhalf_max(MX, MX + 2)
            mx += [[f"s_cmp_lg_u32 s{sFB}, 0", "s_cselect_b64 vcc, -1, 0"]]
            mx += [f"v_sub_f32 v{CI+16*qt}, {f32(-float(P['BIAS']))}, v{MX+qt}" for qt in range(2)]
            mx += [f"v_cndmask_b32 v{CI+16*qt}, v{CI+16*qt}, v{MX+4+qt}, vcc" for qt in range(2)]
            sc.add(mx + flat(sm(0, e, True) for e in range(17)), 1, 16)
            sc.add(flat(sm(0, e, True) for e in range(17, 33)), 16, 23)
            sc.add([f"v_mov_b32 v{CI+16*qt+i}, v{CI+16*qt}" for qt in range(2) for i in range(1, 16)], 23, 31)
            sc.add(flat(sm(1, e, True) for e in range(33)), 23, 54)
            sc.add(flat(sm(0, e) for e in range(12)), 54, 64)
        else:
            for e in range(12, 33): sc.pin(e - 12, sm(0, e))
            if last:
                sc.add(flat(sm(1, e) for e in range(17)), 19, 31)
                sc.add(flat(sm(1, e) for e in range(17, 33)), 31, 39)
            else:
                sc.add(dm, 1, 40)
                for e in range(33): sc.pin(20 + e, sm(1, e))
                for e in range(12): sc.pin(52 + e, sm(0, e))
        if not last:
            sc.pin(56, L(lambda: (k.wait("K", "V"), k("s_barrier")), 8))
            sc.add([rdK(f, f, nb) for f in range(4)], 56, 61, prio=1)
            sc.pin(63, wgrp(0), end=True)
        if extra: extra(sc)
        for m, f_ in zip(mf, sc.run()): k(m); put(k, f_)
    def x_first(sc):
        pf = [[f"s_lshl_b32 s{sT1}, s{sROT}, 14", f"s_lshl_b32 s{sT2}, s{sG}, 19", f"s_add_u32 s{sT1}, s{sT1}, s{sT2}"], [f"s_lshl_b32 s{sT2}, s{sW}, {12+lg2(G)}", f"s_add_u32 s{sT1}, s{sT1}, s{sT2}"]]
        for n in range(4 * G):
            pf.append([f"buffer_load_dwordx4 {a(192+4*(n%16),4)}, v{VL16}, s[20:23], s{sT1} offen offset:{1024*(n%4)}"] + ([f"s_add_u32 s{sT1}, s{sT1}, 4096"] if n % 4 == 3 else []))
        sc.add(pf, 44, 56)
    iteration(0, first=True, extra=x_first)
    if not P.get("OST") and not P.get("DG"): stamp(k, "it0")
    i0 = len(k.items)
    k.loop(sST, 3, lambda: (iteration(1), iteration(0)), align=3)
    X = P.get("DBGX", 0)
    if X:
        def keep(it):
            if it.kind in ("label", "raw"): return True
            if X & 1 and it.mn == "s_barrier": return False
            if X & 2 and it.mn == "s_waitcnt": return False
            if X & 4 and it.kind in ("valu", "trans"): return False
            if X & 8 and it.kind == "vmem": return False
            if X & 16 and it.kind == "ds": return False
            if X & 32 and it.kind == "trans": return False
            if X & 64 and it.kind == "valu": return False
            return True
        k.items[i0:] = [it for it in k.items[i0:] if keep(it)]
        k.wait_all()
    if not P.get("OST") and not P.get("DG"): stamp(k, "it1-6")
    OM = MX + 4
    def finalize(dt):
        o = []
        for qt in range(2):
            b = Q + 16 * qt; pk_ = Q + 32 + 8 * qt
            o += [f"v_accvgpr_read_b32 v{b+i}, a{O+32*dt+16*qt+i}" for i in range(16)]
            o += [f"v_maximum3_f32 v{OM+qt}, |v{b+i}|, |v{b+i+1}|, v{OM+qt}" for i in range(0, 16, 2)]
            o += [f"v_mul_f32 v{b+i}, v{b+i}, v{RL+qt}" for i in range(16)]
            for sp in range(2):
                o += [f"v_cvt_pk_bf16_f32 v{pk_+4*sp+j}, v{b+8*sp+2*j}, v{b+8*sp+2*j+1}" for j in range(4)]
                o.append(L(lambda sp=sp, qt=qt, pk_=pk_: k(f"ds_write_b128 v{HW+sp}, {v(pk_+4*sp,4)} offset:{32768*qt+8192*dt}", token="hw"), 22, "d"))
        return o
    f0 = finalize(0)
    def x_last(sc):
        sc.add(flat(w_dma(s_, "O") for s_ in range(4)), 0, 30)
        fin = [f"v_mov_b32 v{MX}, v{LS}", f"v_mov_b32 v{MX+1}, v{LS+1}", f"v_mov_b32 v{OM}, 0", f"v_mov_b32 v{OM+1}, 0",
               f"v_permlane32_swap_b32 v{LS}, v{MX}", f"v_permlane32_swap_b32 v{LS+1}, v{MX+1}",
               f"v_add_f32 v{LS}, v{LS}, v{MX}", f"v_add_f32 v{LS+1}, v{LS+1}, v{MX+1}",
               f"v_rcp_f32 v{RL}, v{LS}", f"v_rcp_f32 v{RL+1}, v{LS+1}", f"v_max_f32 v{MX+6}, v{LS}, v{LS+1}"]
        adr = []
        for sp in range(2):
            adr += [[f"s_lshl_b32 s56, s{sW}, 1", f"s_add_u32 s56, s56, {sp}", f"s_sub_u32 s56, s56, s{sR8}"], [f"s_and_b32 s56, s56, 7",
                    f"s_lshl_b32 s56, s56, 10", f"v_add_u32 v{HW+sp}, s56, v{VLIN}"]]
        sc.add(adr, 0, 8)
        sc.add(fin, 39, 43)
        sc.pin(40, L(lambda: k("s_barrier")))
        sc.add(a_reads(0), 40, 46, prio=1)
        sc.add(f0[:30], 43, 48)
    iteration(1, last=True, extra=x_last)
    if not P.get("DG"): stamp(k, "it7")
    k(f"s_load_dwordx4 s[40:43], s[0:1], {A_WG}")
    k(f"s_load_dwordx2 s[44:45], s[0:1], {A_WD}")
    k(f"s_load_dwordx2 s[46:47], s[0:1], {A_X}")
    k(f"s_load_dwordx2 s[48:49], s[0:1], {A_OUT}")
    put(k, f0[30:])
    k.wait_all(vm=False); k("s_barrier")
    put(k, b_reads(0))
    if not P.get("DG"): stamp(k, "owrite")
    def ox(c):
        def f(sc):
            if c < 3 and P["BURST"]:
                fz = finalize(c + 1)
                sc.add([x for x in fz if not callable(x)], 1, 46 if c == 2 else P["BURST"])
                sc.pin(P["BURST"], [x for x in fz if callable(x)])
            elif c < 3: sc.add(finalize(c + 1), 1, 48 if c == 2 else 55)
            if c == 2:
                chk = [f"v_maximum3_f32 v{MX+7}, v{OM}, v{OM+1}, v{MX+6}", f"v_min_f32 v{OM}, v{OM}, v{OM+1}",
                       f"v_cmp_ngt_f32 vcc, {f32(2.0**120)}, v{MX+7}", "s_mov_b64 s[56:57], vcc",
                       f"v_cmp_gt_f32 vcc, {f32(2.0**-112 if not P['FORCE_FB'] else 2.0**100)}, v{OM}",
                       ["s_or_b64 s[56:57], s[56:57], vcc", f"s_cselect_b32 s{sT1}, 1, 0", f"v_mov_b32 v{MX}, s{sT1}"],
                       [f"s_lshl_b32 s{sT1}, s{sW}, 2", f"v_mov_b32 v{MX+1}, s{sT1}"],
                       L(lambda: k(f"ds_write_b32 v{MX+1}, v{MX} offset:{L_K}", token="hw"), 4, "d"), f"v_mov_b32 v{MX+2}, 0"]
                if P["BURST"]: sc.add(chk[:-2] + chk[-1:], 46, P["BURST"]); sc.pin(P["BURST"], chk[-2])
                else: sc.add(chk, 48, 56)
            if c == 3:
                if P["PF1"]:
                    NA = P["F1R"] // 2; Wd_ = 3584 // NA; nl = (Wd_ + 1023) // 1024; per = Wd_ // nl // 16
                    pf = [[f"v_min_u32 v{tm}, {per-1}, v{LN_}", f"v_lshlrev_b32 v{tm}, 4, v{tm}"],
                          [f"s_lshr_b32 s56, s2, 3", f"s_lshl_b32 s56, s56, 2", f"s_add_u32 s56, s56, s{sW}"], [f"s_mul_i32 s56, s56, {4*3584}",
                           f"s_and_b32 s57, s2, {NA-1}"], [f"s_mul_i32 s57, s57, {Wd_}", f"s_add_u32 s56, s56, s57"],
                          L(lambda: k.srd(12, 40, 512 * 3584), 16), L(lambda: k.srd(16, 42, 512 * 3584), 16)]
                    n = 0
                    for r in range(4):
                        for l_ in range(nl):
                            for srd in (12, 16):
                                pf.append(f"buffer_load_dwordx4 {a(192+4*(n%16),4)}, v{tm}, s[{srd}:{srd+3}], s56 offen offset:{l_*per*16}"); n += 1
                        pf.append(f"s_add_u32 s56, s56, 3584")
                    sc.add(pf[:6], 8, 32); sc.add(pf[6:], 32, 56)
                sc.pin(5, f"ds_read_b128 {v(STT,4)}, v{MX+2} offset:{L_K}")
                sc.pin(14, [f"v_or3_b32 v{STT}, v{STT}, v{STT+1}, v{STT+2}", f"v_or_b32 v{STT}, v{STT}, v{STT+3}"])
                sc.pin(22, f"v_readfirstlane_b32 s{sT2}, v{STT}")
                sc.pin(38, [f"s_lshl_b32 s{sT0}, s{sG}, 21", f"s_lshl_b32 s{sT1}, s{sRB}, 16", f"s_add_u32 s{sT0}, s{sT0}, s{sT1}"])
                sc.pin(46, [f"s_lshl_b32 s{sT1}, s{sW}, 13", f"s_add_u32 s{sT0}, s{sT0}, s{sT1}", f"s_add_u32 s{sT0}, s{sT0}, {WS_P:#x}"])
                sc.pin(54, [f"s_andn2_b32 s{sT2}, s{sT2}, s{sFB}", "s_cbranch_scc1 FALLBACK"])
        return f
    i0 = len(k.items)
    for c in range(4):
        gbody("O", c, ox(c))
        if P.get("OST") and c < 3: stamp(k, f"o{c}")
    X = P.get("DBGO", 0)
    if X:
        def keep(it):
            if it.kind in ("label", "raw"): return True
            if it.mn.startswith("s_cbranch"): return False
            if X & 1 and it.mn == "s_barrier": return False
            if X & 2 and it.mn == "s_waitcnt" and "vmcnt" in it.text: return False
            if X & 4 and it.kind in ("valu", "trans") and not it.mn.startswith(("v_min_u32", "v_lshlrev")): return False
            if X & 8 and it.kind == "vmem": return False
            if X & 16 and it.mn.startswith("ds_write"): return False
            if X & 32 and it.mn == "s_waitcnt" and "lgkmcnt" in it.text: return False
            return True
        k.items[i0:] = [it for it in k.items[i0:] if keep(it)]
        k.wait_all()
    if not P.get("DG"): stamp(k, "ogemm")
    for a_ in range(4):
        for rt in range(2):
            k(f"s_add_u32 s{sT1}, s{sT0}, {32768*rt + 2048*a_}")
            b = ACC + 32 * a_ + 16 * rt
            for sp in range(2):
                for j in range(4 * sp, 4 * sp + 4): k(f"v_cvt_pk_bf16_f32 v{Q+16*a_+8*rt+j}, v{b+2*j}, v{b+2*j+1}")
                k(f"buffer_store_dwordx4 {v(Q+16*a_+8*rt+4*sp,4)}, v{VL16}, s[24:27], s{sT1} offen offset:{1024*sp} sc1", token="PST")
    tail(sys.modules[__name__], k)
    stamp_flush(k, 0)
    k.label("END_attn"); k("s_endpgm")
    k.label("FALLBACK")
    k.wait_all(); k("s_barrier")
    k(f"s_mov_b32 s{sFB}, 1")
    k("s_nop 15")
    k("s_branch RESTART")
    k.label("FB_MAX")
    k.wait_all(); k("s_barrier")
    k(f"v_mov_b32 v{MX+4}, 0xff800000"); k(f"v_mov_b32 v{MX+5}, 0xff800000")
    def fbody():
        put(k, kv_dma("K", L_K, sO0) + nxt(sO0, sO0)); k.wait("K"); k("s_barrier")
        for s_ in range(8): put(k, rdK(s_, s_, L_K))
        for s_ in range(8):
            for qt in range(2): k(qk(s_, s_, qt, 0, True))
        put(k, maxops(0, MX))
        k(f"v_max_f32 v{MX+4}, v{MX+4}, v{MX}"); k(f"v_max_f32 v{MX+5}, v{MX+5}, v{MX+1}")
        k("s_barrier")
    k.loop(sST, 16, fbody)
    put(k, xhalf_max(MX + 4, MX + 2))
    for qt in range(2): k(f"v_sub_f32 v{MX+4+qt}, 0, v{MX+4+qt}")
    put(k, kfirst)
    k.wait_all(); k("s_barrier")
    for f in range(4): put(k, rdK(f, f, L_K + 16384 + 8192))
    qk0(False)
    k.wait_all()
    k("s_branch IT0")
    return k

from gen10_tail import tail

HEADER = open('adaLN_cond__sliding_block_cached__geglu_ffn__prompt.s.ref').read().split("; Override launch")[0]

if __name__ == "__main__":
    out = sys.argv[1] if len(sys.argv) > 1 else "k.s"
    me = sys.modules[__name__]
    ks = [gen_attn()]
    ks[-1].label("CODE_END")
    txt = emit(ks, header=HEADER)
    if P.get("SINGLE"): txt = txt.replace("; @launch kernel=" + KNAME + " ", "; @launch ")
    open(out, "w").write(txt)
    json.dump([[k.name, k.grid, k.block//64, k.stamps] for k in ks], open(out[:-2]+".json","w"))
    for k in ks: print(k.name, "regs(v,a,s)", k.used, "nops", k.n_nops, "misal", k.n_mis, "instrs", len(k.items))
```

```python
import sys, struct, math, os, json
from asmlib import *

def f32(x): return "0x%08x" % struct.unpack("<I", struct.pack("<f", x))[0]
LOG2E = 1.4426950408889634
CS = 128 ** -0.5
A_X, A_K, A_V, A_WQ, A_WO, B_X, A_WG, A_WU, A_WD, A_C, A_WM, A_OUT, A_DBG, A_WS = [8 * i for i in range(14)]
WS_MOD = 0x0
WS_GO = 0x18000
WS_FL = 0x20000
WS_ST = 0x10000
WS_P = 0x80000
WS_X1 = 0x1400000
WS_H2 = 0x1600000
WS_ACT = 0x1800000
WS_BYTES = 0x10000000
WS_DBG = 0x8000000
P = dict(STAMPS=0, G=2, ROT=1, F1R=8, F2R=8, PREF0=1, PREFC=1, PREFQ=1, PREFK=1, PORD=1, XPRE=0, TLBW=1, PBAR=3, WPOS=1, DEFER=1, SYNC=1, LFIRST=0, SLEEP=2, OSC=1, SLEEP2=4, FW1=10, FW2=20, F2PRE=12, TW1=3, TW2=5, HPRE=3, PSYS=0, WPRE=2, BURST=54, KEARLY=0, BIAS=100, FORCE_FB=0, PNT=0, PST=2, AST=2, PF1=1, PF2=1)
for kv in os.environ.get("GP", "").split(","):
    if kv: P[kv.split("=")[0]] = int(kv.split("=")[1])

def stamp(k, name):
    if not P["STAMPS"]: return
    if P.get("DG") == 3 and name in ("gemv", "stats", "go", "poll", "mod", "qgemm"): return
    i = len(k.stamps); k.stamps.append(name)
    assert i < 12
    k.sgpr = 102
    k("s_memtime s[72:73]"); k("s_memrealtime s[74:75]"); k("s_waitcnt lgkmcnt(0)")
    k(f"s_mov_b32 s{76+2*i}, s72"); k(f"s_mov_b32 s{77+2*i}, s74")
def stamp_begin(k):
    k.stamps = []
    if not P["STAMPS"]: return
    k("v_lshrrev_b32 v1, 6, v0"); k("v_readfirstlane_b32 s101, v1")
    stamp(k, "start")
def stamp_flush(k, kidx):
    if not P["STAMPS"]: return
    stamp(k, "end")
    if P["STAMPS"] == 2:
        lab = k.newlabel("NODBG")
        k("s_mov_b64 exec, -1")
        k(f"s_xor_b32 s100, s2, {P.get('DWG', 200)}"); k("s_or_b32 s100, s100, s101"); k("s_cmp_lg_u32 s100, 0"); k(f"s_cbranch_scc1 {lab}")
        k(f"s_load_dwordx2 s[66:67], s[0:1], {A_DBG}")
        k.srd(60, 66, 256)
        k("v_mov_b32 v1, 0")
        n = len(k.stamps)
        for j in range(1, n):
            k(f"s_sub_u32 s100, s{77+2*j}, s77"); k("v_mov_b32 v0, s100")
            k(f"buffer_store_dword v0, v1, s[60:63], 0 offen offset:{4*j}")
        k(f"s_sub_u32 s100, s{76+2*(n-1)}, s76"); k("v_mov_b32 v0, s100")
        k(f"buffer_store_dword v0, v1, s[60:63], 0 offen offset:{4*n}")
        k.label(lab)
        return
    k(f"s_load_dwordx2 s[64:65], s[0:1], {A_WS}")
    k("s_mov_b64 exec, -1")
    k.srd(56, 64, WS_BYTES)
    k("s_lshl_b32 s100, s2, 3"); k("s_add_u32 s100, s100, s101"); k("s_lshl_b32 s100, s100, 8")
    k(f"s_add_u32 s100, s100, {WS_DBG + kidx*0x100000:#x}")
    k("v_mov_b32 v1, 0")
    for j, sr in enumerate([76 + i for i in range(2*len(k.stamps))]):
        k(f"v_mov_b32 v0, s{sr}")
        k(f"buffer_store_dword v0, v1, s[56:59], s100 offen offset:{4*j}")

def wave_id(k, sdst, vtmp):
    k(f"v_lshrrev_b32 v{vtmp}, 6, v0")
    k(f"v_readfirstlane_b32 s{sdst}, v{vtmp}")
def rowsum_8(k, val, tmp):
    k(f"v_add_f32_dpp v{val}, v{val}, v{val} row_ror:8 row_mask:0xf bank_mask:0xf")
    k(f"v_mov_b32 v{tmp}, v{val}"); k(f"v_permlane16_swap_b32 v{val}, v{tmp}"); k(f"v_add_f32 v{val}, v{val}, v{tmp}")
    k(f"v_mov_b32 v{tmp}, v{val}"); k(f"v_permlane32_swap_b32 v{val}, v{tmp}"); k(f"v_add_f32 v{val}, v{val}, v{tmp}")
def rnd(k, d, sreg): k(f"v_cvt_pk_bf16_f32 v{d}, 0, v{sreg}")
def lg2(x): return x.bit_length() - 1
def split2(k, sb, sA, sB, nA_per, nB_total, t0, t1):
    A_total = 256 // nB_total; NA = A_total // nA_per
    k(f"s_and_b32 s{t0}, s{sb}, 7"); k(f"s_lshr_b32 s{t1}, s{sb}, 3")
    k(f"s_and_b32 s{sA}, s{t0}, {NA-1}"); k(f"s_lshl_b32 s{sA}, s{sA}, {lg2(nA_per)}")
    k(f"s_and_b32 s{sB}, s{t1}, {nA_per-1}"); k(f"s_add_u32 s{sA}, s{sA}, s{sB}")
    k(f"s_lshr_b32 s{sB}, s{t0}, {lg2(NA)}"); k(f"s_lshl_b32 s{sB}, s{sB}, {lg2(32//nA_per)}")
    k(f"s_lshr_b32 s{t1}, s{t1}, {lg2(nA_per)}"); k(f"s_add_u32 s{sB}, s{sB}, s{t1}")
def lane_tr_parts(k, lane, r, c2, gn, h, tmp):
    k(f"v_bfe_u32 v{r}, v{lane}, 2, 2")
    k(f"v_and_b32 v{c2}, 1, v{lane}"); k(f"v_lshlrev_b32 v{c2}, 1, v{c2}")
    k(f"v_bfe_u32 v{tmp}, v{lane}, 1, 1"); k(f"v_or_b32 v{c2}, v{c2}, v{tmp}")
    k(f"v_bfe_u32 v{gn}, v{lane}, 4, 1")
    k(f"v_lshrrev_b32 v{h}, 5, v{lane}")

QS = CS * LOG2E
KNAME = "adaLN_cond__sliding_block_cached__geglu_ffn__prompt_kernel"
def ln_stats(k, XF):
    k(f"v_pk_add_f32 v[10:11], {v(XF,2)}, {v(XF+2,2)}")
    for e in range(4, 16, 2): k(f"v_pk_add_f32 v[10:11], v[10:11], {v(XF+e,2)}")
    k("v_add_f32 v10, v10, v11")
    def allreduce(off):
        rowsum_8(k, 10, 11)
        k(f"ds_write_b32 v9, v10 offset:{off}", token="w"); k.wait("w"); k("s_barrier")
        k(f"ds_read_b128 {v(12,4)}, v8 offset:{off}")
        k("v_add_f32 v12, v12, v13"); k("v_add_f32 v14, v14, v15"); k("v_add_f32 v10, v12, v14")
    allreduce(0)
    k(f"v_mul_f32 v58, {f32(-1/512)}, v10"); k("v_mov_b32 v59, v58")
    for e in range(0, 16, 2): k(f"v_pk_add_f32 {v(XF+e,2)}, {v(XF+e,2)}, v[58:59]")
    k(f"v_pk_mul_f32 v[10:11], {v(XF,2)}, {v(XF,2)}")
    for e in range(2, 16, 2): k(f"v_pk_fma_f32 v[10:11], {v(XF+e,2)}, {v(XF+e,2)}, v[10:11]")
    k("v_add_f32 v10, v10, v11")
    allreduce(128)
    k(f"v_mov_b32 v11, {f32(1e-5)}"); k(f"v_fmac_f32 v11, {f32(1/512)}, v10")
    k("v_rsq_f32 v56, v11"); k("v_mov_b32 v57, v56")

def gen_ln2():
    k = Kernel("ln2_kernel", 256, 256, 256, vgpr=160, sgpr=64)
    k("s_cmp_ge_u32 s2, 256"); k("s_cbranch_scc1 END_ln2")
    stamp_begin(k)
    k(f"s_load_dwordx2 s[4:5], s[0:1], {A_X}")
    k(f"s_load_dwordx2 s[6:7], s[0:1], {A_WS}")
    k("v_and_b32 v1, 7, v0"); k("v_lshrrev_b32 v2, 3, v0"); k("v_lshrrev_b32 v6, 6, v0")
    k("v_and_b32 v7, 7, v2"); k("v_lshl_add_u32 v7, v6, 4, v7")
    k("v_lshlrev_b32 v3, 9, v7"); k("v_lshl_add_u32 v3, v1, 4, v3")
    k("v_add_u32 v2, 4096, v3")
    k("v_lshlrev_b32 v4, 10, v1"); k("v_lshl_add_u32 v4, v7, 4, v4")
    k("v_lshlrev_b32 v5, 5, v7")
    k("v_lshlrev_b32 v8, 4, v1"); k("v_lshl_add_u32 v9, v6, 2, v8")
    k("s_and_b32 s25, s2, 7"); k("s_lshl_b32 s25, s25, 5"); k("s_lshr_b32 s26, s2, 3"); k("s_add_u32 s25, s25, s26")
    k("s_lshl_b32 s20, s25, 13")
    k("s_lshr_b32 s21, s25, 2"); k("s_lshl_b32 s21, s21, 15"); k("s_and_b32 s22, s25, 3"); k("s_lshl_b32 s22, s22, 7")
    k("s_add_u32 s21, s21, s22")
    k(f"s_add_u32 s23, s21, {WS_P:#x}")
    k.srd(12, 6, WS_BYTES)
    X = 16; XF = 24; MV = 40; PB = 64
    for g in range(8):
        for i in range(2):
            k(f"buffer_load_dwordx4 {v(PB+8*g+4*i,4)}, v{3-i}, s[12:15], s23 offen" + (" nt" if P["PNT"] else ""))
        if g < 7: k("s_add_u32 s23, s23, 0x200000")
    k.srd(8, 4, 2048 * 1024)
    for i in range(2): k(f"buffer_load_dwordx4 {v(X+4*i,4)}, v4, s[8:11], s20 offen offset:{128*i}")
    k("v_mov_b32 v10, 0"); k("s_lshl_b32 s27, s2, 7"); k(f"s_add_u32 s27, s27, {WS_FL:#x}")
    k("buffer_store_dword v10, v10, s[12:15], s27 offen sc1")
    k("s_mov_b32 s24, 0xffff0000")
    def load_mod(base, m):
        k(f"s_mov_b32 s23, {WS_MOD + m*2048}")
        for i in range(2):
            for hh in range(2):
                k(f"buffer_load_dwordx4 {v(base+8*i+4*hh,4)}, v5, s[12:15], s23 offen offset:{256*i+16*hh}")
    def unpack(dst, src):
        k(f"v_lshlrev_b32 v{dst}, 16, v{src}"); k(f"v_and_b32 v{dst+1}, s24, v{src}")
    load_mod(MV, 2); load_mod(128, 4); load_mod(144, 3)
    for q in range(8): unpack(XF + 2 * q, PB + q)
    for g in range(1, 8):
        for q in range(8):
            unpack(10 + 2 * (q & 1), PB + 8 * g + q)
            k(f"v_pk_add_f32 {v(XF+2*q,2)}, {v(XF+2*q,2)}, {v(10+2*(q&1),2)}")
    for q in range(8):
        unpack(10, X + q)
        k(f"v_pk_fma_f32 v[10:11], {v(XF+2*q,2)}, {v(MV+2*q,2)}, v[10:11]")
        k(f"v_cvt_pk_bf16_f32 v{X+q}, v10, v11")
        unpack(XF + 2 * q, X + q)
    k(f"s_add_u32 s23, s21, {WS_X1:#x}")
    for i in range(2): k(f"buffer_store_dwordx4 {v(X+4*i,4)}, v{3-i}, s[12:15], s23 offen sc1")
    stamp(k, "x1")
    ln_stats(k, XF)
    stamp(k, "stats")
    for e in range(0, 16, 2):
        k(f"v_pk_mul_f32 {v(XF+e,2)}, {v(XF+e,2)}, v[56:57]")
        k(f"v_pk_fma_f32 {v(XF+e,2)}, {v(XF+e,2)}, {v(128+e,2)}, {v(144+e,2)}")
        k(f"v_cvt_pk_bf16_f32 v{MV+e//2}, v{XF+e}, v{XF+e+1}")
    k(f"s_add_u32 s23, s21, {WS_H2:#x}")
    for i in range(2): k(f"buffer_store_dwordx4 {v(MV+4*i,4)}, v{3-i}, s[12:15], s23 offen sc1")
    stamp_flush(k, 1)
    k.label("END_ln2"); k("s_endpgm")
    return k

def put(k, seq):
    for x in seq:
        if isinstance(x, list): put(k, x)
        elif callable(x): x()
        else: k(x)

def gen_attn():
    k = Kernel(KNAME, 256, 256, 163840, vgpr=256, agpr=256, sgpr=72)
    k.denorm32 = P.get("DEN", 3)
    L_K, L_H, L_V, L_W, L_M = 0, 32768, 32768, 98304, 16384
    ACC = 0; S = 0; CI = 64; Q = 128
    VK = 192; VV = 200; VW = 204; VDW = 208; VDK = 212; VDV = 214; VLIN = 215; VL16 = 216
    LS = 217; VLO = 219
    T = 220
    LN_, ROWL, GR16 = T, T + 1, T + 2
    r_, c2, gn, h_, tm = T + 3, T + 4, T + 5, T + 6, T + 7
    CH8 = T + 10; HW = T + 11
    VX = T + 13; VM = T + 15
    MX = T + 16
    STT = T + 24
    RL = T + 28; UT = T + 28
    O = 0; FR = 128; AF = 128; BF = 160
    sW, sG, sRB, sT0, sT1, sRING, sST, sFB, sROT, sT2 = 28, 29, 30, 32, 33, 34, 35, 39, 50, 51
    sO0, sO1, sO2, sW2K, sW256, sKhi, sMASK, sCC, sR8 = 36, 37, 38, 52, 54, 55, 58, 59, 6
    TAB = 60
    def L(f, cost=4, mem=False):
        f.cost = cost; f.mem = mem; return f
    k("s_cmp_ge_u32 s2, 256"); k("s_cbranch_scc1 END_attn")
    stamp_begin(k)
    k(f"s_mov_b32 s{sFB}, 0")
    if P["PREFC"]:
        k("s_getpc_b64 s[56:57]")
        k.label("PCREF")
        k(f"s_lshr_b32 s{sT1}, s2, 3"); k(f"s_lshl_b32 s{sT1}, s{sT1}, 12")
        k("v_lshlrev_b32 v108, 4, v0"); k(f"v_add_u32 v108, s{sT1}, v108"); k("v_min_u32 v108, CODE_END-PCREF-16, v108")
        k("global_load_dwordx4 a[252:255], v108, s[56:57]")
    wave_id(k, sW, T)
    k(f"v_and_b32 v{LN_}, 63, v0")
    k.label("RESTART")
    k(f"s_load_dwordx4 s[8:11], s[0:1], {A_C}")
    k(f"s_load_dwordx2 s[4:5], s[0:1], {A_X}")
    k(f"s_load_dwordx4 s[68:71], s[0:1], {A_DBG}")
    k(f"s_load_dwordx8 s[40:47], s[0:1], {A_K}")
    L_R = L_M + 4096
    PSC = "sc1"
    GW, GC, GA = 64, 80, 88
    k(f"v_lshl_add_u32 v99, s{sW}, 6, v{LN_}")
    k("v_and_b32 v100, 1, v99"); k("v_lshrrev_b32 v101, 1, v99")
    k("v_mul_u32_u24 v102, 6144, v101"); k("v_lshl_add_u32 v102, v100, 4, v102"); k("v_lshlrev_b32 v103, 1, v101")
    k("v_lshrrev_b32 v104, 4, v99"); k("v_lshlrev_b32 v104, 6, v104"); k("v_lshl_add_u32 v104, v100, 5, v104")
    sSL = 7; sPR = 53
    k(f"s_and_b32 s{sT0}, s2, 7"); k(f"s_lshr_b32 s{sT1}, s2, 3")
    k(f"s_lshl_b32 s{sSL}, s{sT0}, 3"); k(f"s_add_u32 s{sSL}, s{sSL}, s{sT1}")
    k(f"s_lshl_b32 s{sT2}, s{sT0}, 4"); k(f"s_add_u32 s{sT2}, s{sT2}, s{sT1}"); k(f"s_add_u32 s{sT2}, s{sT2}, 56")
    k("s_cmp_lt_u32 s2, 64"); k(f"s_cselect_b32 s{sSL}, s{sSL}, s{sT2}")
    k(f"s_cselect_b32 s{sPR}, s{sFB}, 1")
    k(f"s_lshl_b32 s31, s{sSL}, 5")
    k(f"v_lshlrev_b32 v{VL16}, 4, v{LN_}")
    G = P["G"]
    NG = 8 // G; NS = 32 // G
    k(f"s_and_b32 s{sG}, s2, {NG-1}"); k(f"s_lshl_b32 s{sG}, s{sG}, {lg2(G)}"); k(f"s_lshr_b32 s{sT0}, s2, {3+lg2(NS)}"); k(f"s_add_u32 s{sG}, s{sG}, s{sT0}")
    k(f"s_bfe_u32 s{sROT}, s2, {3 | (lg2(NS) << 16):#x}")
    k(f"s_and_b32 s{sRB}, s2, 7"); k(f"s_lshr_b32 s{sRB}, s{sRB}, {lg2(NG)}"); k(f"s_lshl_b32 s{sRB}, s{sRB}, {lg2(NS)}"); k(f"s_add_u32 s{sRB}, s{sRB}, s{sROT}")
    k(f"s_lshl_b32 s{sROT}, s{sROT}, {lg2(G)}")
    k(f"s_and_b32 s{sR8}, s{sROT}, 7"); k(f"s_lshr_b32 s{sCC}, s{sROT}, 3")
    RR, CGL = tm, tm + 1
    k(f"v_bfe_u32 v{RR}, v{LN_}, 2, 3")
    k(f"v_lshrrev_b32 v{CGL}, 5, v{LN_}"); k(f"v_lshlrev_b32 v{CGL}, 2, v{CGL}"); k(f"v_and_or_b32 v{CGL}, v{LN_}, 3, v{CGL}")
    k(f"v_lshlrev_b32 v{VX}, 10, v{RR}"); k(f"v_lshl_add_u32 v{VX}, v{CGL}, 4, v{VX}"); k(f"v_add_u32 v{VX+1}, 8192, v{VX}")
    k(f"s_lshl_b32 s3, s{sRB}, 16"); k(f"s_lshl_b32 s{sT2}, s{sW}, 14"); k(f"s_add_u32 s3, s3, s{sT2}")
    XR = [0, 128, 144, 160]; CN = 176
    XS = [48, 49, 56, 57]
    for c in range(4):
        put(k, [f"s_add_u32 s{XS[c]}, s{sCC}, {c}", f"s_and_b32 s{XS[c]}, s{XS[c]}, 3", f"s_lshl_b32 s{XS[c]}, s{XS[c]}, 8", f"s_add_u32 s{XS[c]}, s{XS[c]}, s3"])
    xl = [f"buffer_load_dwordx4 {v(XR[c]+8*cb+4*oo,4)}, v{VX+oo}, s[16:19], s{XS[c]} offen offset:{128*cb}" for oo in range(2) for c in range(4) for cb in range(2)]
    k.srd(12, 10, 512 * 6144); k.srd(20, 8, 1024); k.srd(16, 4, 2048 * 1024)
    def gemv_loads():
        k(f"s_mov_b32 s{sT0}, s31")
        for i in range(4):
            k(f"buffer_load_dwordx4 {v(GW+4*i,4)}, v102, s[12:15], s{sT0} offen")
            if i < 3: k(f"s_add_u32 s{sT0}, s{sT0}, {128*6144}")
    for i in range(4): k(f"buffer_load_ushort v{GC+i}, v103, s[20:23], 0 offen offset:{256*i}")
    k.srd(24, 70, WS_BYTES)
    k(f"s_lshl_b32 s{sO2}, s{sW}, 11"); k(f"s_add_u32 s{sO2}, s{sO2}, {WS_GO:#x}")
    for i in range(2): k(f"buffer_load_dwordx4 {v(MX+4*i,4)}, v{VL16}, s[24:27], s{sO2} offen offset:{1024*i} sc1")
    k(f"v_lshlrev_b32 v109, 3, v{LN_}"); k(f"s_lshl_b32 s{sO1}, s{sSL}, 7"); k(f"s_add_u32 s{sO1}, s{sO1}, {WS_GO:#x}")
    k(f"buffer_load_dword v110, v109, s[24:27], s{sO1} offen offset:4 sc1")
    k(f"s_xor_b32 s{sO0}, s{sW}, 3"); k(f"s_or_b32 s{sO0}, s{sO0}, s{sFB}")
    k(f"s_cmp_lg_u32 s{sO0}, 0"); k("s_cbranch_scc1 NOZERO")
    k(f"v_lshlrev_b32 v111, 15, v{LN_}"); k("v_mov_b32 v107, 0"); k(f"s_lshl_b32 s{sT0}, s2, 7"); k(f"s_add_u32 s{sT0}, s{sT0}, {WS_FL:#x}")
    k("s_mov_b64 exec, 7")
    k(f"buffer_store_dword v107, v111, s[24:27], s{sT0} offen sc1")
    k("s_mov_b64 exec, -1")
    k.label("NOZERO")
    k.vm = {kk: max(p - 1, 0) for kk, p in k.vm.items()}
    k(f"s_cmp_eq_u32 s{sPR}, 0"); k("s_cbranch_scc1 PLOAD")
    s_a = (dict(k.vm), dict(k.lg))
    put(k, xl)
    s_b = dict(k.vm)
    k("s_branch PJOIN")
    k.label("PLOAD")
    k.vm = dict(s_a[0])
    gemv_loads()
    k.label("PJOIN")
    k.vm = k._merge(k.vm, s_b)
    k(f"s_lshl_b32 s{sW256}, s{sW}, 8"); k(f"s_lshl_b32 s{sW2K}, s{sW}, 11")
    k(f"v_lshrrev_b32 v{ROWL}, 4, v{LN_}")
    k(f"v_and_b32 v{r_}, 15, v{LN_}"); k(f"v_lshlrev_b32 v{GR16}, 2, v{ROWL}"); k(f"v_xor_b32 v{GR16}, v{GR16}, v{r_}")
    k(f"v_lshlrev_b32 v{GR16}, 4, v{GR16}")
    def w_voffs(psh, scol):
        return [f"v_lshl_add_u32 v{VDW}, v{ROWL}, {psh}, v{GR16}", f"v_add_u32 v{VDW}, s{scol}, v{VDW}"] + \
               [f"v_add_u32 v{VDW+n}, {n*((4<<psh)-1024)}, v{VDW}" for n in range(1, 4)]
    k(f"s_lshl_b32 s{sT0}, s{sG}, 10"); k(f"s_add_u32 s{sT0}, s{sT0}, s{sW256}")
    put(k, w_voffs(13, sT0))
    k(f"s_lshl_b32 s{sRING}, s{sW}, 14"); k(f"s_add_u32 s{sRING}, s{sRING}, {L_W}")
    for p in range(8):
        k(f"s_add_u32 s{TAB+p}, s{sR8}, {p}"); k(f"s_and_b32 s{TAB+p}, s{TAB+p}, 7"); k(f"s_lshl_b32 s{TAB+p}, s{TAB+p}, 17")
    k(f"s_lshl_b32 s{sKhi}, s{sCC}, 20")
    k.srd(8, 44, 512 * 8192)
    def w_dma(step, which):
        slot = step % 4
        if which == "Q":
            srd = 8
            pre = [f"s_add_u32 s{sT0}, s{sKhi}, s{TAB+step%8}"]
            adv = [[f"s_add_u32 s{sKhi}, s{sKhi}, 0x100000", f"s_and_b32 s{sKhi}, s{sKhi}, 0x3fffff"]] if step % 8 == 7 else []
        else:
            srd = 20
            pre = [f"s_add_u32 s{sT0}, s{TAB+step%8}, {(2*(step//8))<<14}"]
            adv = []
        o = [pre + [f"s_add_u32 m0, s{sRING}, {4096*slot}"]] + adv + [f"buffer_load_dwordx4 v{VDW}, s[{srd}:{srd+3}], s{sT0} offen lds"]
        for n in range(1, 4):
            o.append(L(lambda n=n: k(f"buffer_load_dwordx4 v{VDW+n}, s[{srd}:{srd+3}], s{sT0} offen offset:{1024*n} lds", token=f"W{slot}"), 10, "v"))
        return o
    k(f"v_lshrrev_b32 v{r_}, 1, v{CGL}"); k(f"v_subrev_u32 v{r_}, s{sR8}, v{r_}")
    k(f"v_and_b32 v{c2}, 1, v{CGL}"); k(f"v_and_b32 v{gn}, 1, v{r_}"); k(f"v_lshl_add_u32 v{gn}, v{gn}, 1, v{c2}"); k(f"v_lshlrev_b32 v{gn}, 1, v{gn}")
    k(f"v_xor_b32 v{gn}, v{gn}, v{RR}")
    k(f"v_lshlrev_b32 v{c2}, 9, v{c2}"); k(f"v_lshl_add_u32 v{c2}, v{gn}, 4, v{c2}")
    k(f"s_lshr_b32 s{sT1}, s{sW}, 1"); k(f"s_lshl_b32 s{sT1}, s{sT1}, 15"); k(f"s_and_b32 s{sT2}, s{sW}, 1"); k(f"s_lshl_b32 s{sT2}, s{sT2}, 8")
    k(f"s_add_u32 s{sT1}, s{sT1}, s{sT2}"); k(f"s_add_u32 s{sT1}, s{sT1}, {L_H}"); k(f"v_add_u32 v{c2}, s{sT1}, v{c2}")
    for cb in range(2):
        k(f"v_add_u32 v{gn}, {4*cb}, v{r_}"); k(f"v_and_b32 v{gn}, 7, v{gn}"); k(f"v_lshl_add_u32 v{HW+cb}, v{gn}, 10, v{c2}")
    k(f"s_lshl_b32 s{sT2}, s{sCC}, 9"); k(f"v_lshlrev_b32 v{VM}, 5, v{CGL}"); k(f"v_add_u32 v{VM}, s{sT2}, v{VM}")
    lane_tr_parts(k, LN_, r_, c2, gn, h_, tm)
    k(f"v_lshl_add_u32 v{CH8}, v{gn}, 2, v{c2}"); k(f"v_lshlrev_b32 v{CH8}, 3, v{CH8}")
    k(f"v_lshl_add_u32 v{tm}, v{h_}, 3, v{r_}"); k(f"v_lshl_add_u32 v{tm}, v{tm}, 8, v{CH8}"); k(f"v_add_u32 v{tm}, s{sRING}, v{tm}")
    for a_ in range(4):
        k(f"v_xor_b32 v{tm+1}, {a_}, v{r_}"); k(f"v_lshl_add_u32 v{VW+a_}, v{tm+1}, 6, v{tm}")
    put(k, [f"v_lshl_add_u32 v{tm}, v{h_}, 2, v{r_}", f"v_lshl_add_u32 v{tm}, v{tm}, 8, v{CH8}", f"v_add_u32 v{tm}, {L_V}, v{tm}"])
    for dt in range(4): put(k, [f"v_xor_b32 v{tm+1}, {dt}, v{r_}", f"v_lshl_add_u32 v{VV+dt}, v{tm+1}, 6, v{tm}"])
    put(k, [f"v_and_b32 v{tm}, 31, v{LN_}", f"v_and_b32 v{tm+1}, 15, v{LN_}", f"v_xor_b32 v{tm+1}, v{tm+1}, v{h_}",
            f"v_lshlrev_b32 v{tm}, 8, v{tm}", f"v_lshl_add_u32 v{VK}, v{tm+1}, 4, v{tm}"])
    put(k, [f"v_xor_b32 v{VK+s_}, {s_*32}, v{VK}" for s_ in range(1, 8)])
    put(k, [f"v_mov_b32 v{LS}, 0", f"v_mov_b32 v{LS+1}, 0",
        f"v_lshl_add_u32 v{VDV}, v{ROWL}, 8, v{GR16}", f"s_and_b32 s{sT1}, s{sW}, 1", f"s_lshl_b32 s{sT1}, s{sT1}, 3",
        f"v_or_b32 v{tm}, s{sT1}, v{ROWL}", f"v_and_b32 v{tm+1}, 15, v{LN_}", f"v_xor_b32 v{tm}, v{tm}, v{tm+1}",
        f"v_lshlrev_b32 v{VDK}, 8, v{ROWL}", f"v_lshl_add_u32 v{VDK}, v{tm}, 4, v{VDK}", f"v_xor_b32 v{VDK+1}, 64, v{VDK}",
        f"s_lshl_b32 s{sT1}, s{sG}, 19", f"s_add_u32 s{sT1}, s{sT1}, s{sW2K}", f"s_add_u32 s{sT1}, s{sT1}, {1536*256}",
        f"v_add_u32 v{VDK}, s{sT1}, v{VDK}", f"v_add_u32 v{VDK+1}, s{sT1}, v{VDK+1}", f"v_add_u32 v{VDV}, s{sT1}, v{VDV}",
        f"v_lshlrev_b32 v{tm}, 5, v{h_}", f"v_xor_b32 v{VLIN}, v{tm}, v{VL16}", f"v_add_u32 v{VLIN}, {L_H}, v{VLIN}", f"v_xor_b32 v{VLO}, 64, v{VLIN}",
        f"s_mov_b32 s{sMASK}, 0xffff0000"])
    def nxt(d, s_): return [f"s_add_u32 s{d}, s{s_}, 8192", f"s_and_b32 s{d}, s{d}, 0x1ffff"]
    def kv_dma(which, lds_off, so):
        srd = 12 if which == "K" else 16
        return [f"s_add_u32 m0, s{sW2K}, {lds_off}", f"buffer_load_dwordx4 v{VDK if which=='K' else VDV}, s[{srd}:{srd+3}], s{so} offen lds",
                L(lambda: k(f"buffer_load_dwordx4 v{VDK+1 if which=='K' else VDV}, s[{srd}:{srd+3}], s{so} offen offset:1024 lds", token=which), 10, "v")]
    kinit = [[f"s_lshr_b32 s{sO0}, s{sROT}, 1", f"s_lshl_b32 s{sO0}, s{sO0}, 13"] + nxt(sO1, sO0) + nxt(sO2, sO1)]
    kfirst = [kv_dma("K", L_K + 16384 + 8192, sO0), kv_dma("K", L_K, sO1), kv_dma("K", L_K + 8192, sO2)]
    k.srd(20, 68, 256)
    def gemv_compute(lo, hi, tag, late):
        k(f"s_sub_u32 s{sT0}, s2, {lo}"); k(f"s_cmp_ge_u32 s{sT0}, {hi-lo}"); k(f"s_cselect_b32 s{sT0}, 1, s{sFB}"); k(f"s_cmp_lg_u32 s{sT0}, 0"); k("s_cbranch_scc1 NOGEMV" + tag)
        st0 = (dict(k.vm), dict(k.lg))
        D = P.get("DG") == 1 and not late
        if D: stamp(k, "g_in"); k.wait_regs(v(GW, 20)); stamp(k, "g_data")
        k(f"s_mov_b32 s{sT1}, {f32(-LOG2E)}")
        for i in range(4): k(f"v_lshlrev_b32 v{GC+i}, 16, v{GC+i}")
        for i in range(4): k(f"v_mul_f32 v{GA+i}, s{sT1}, v{GC+i}")
        for i in range(4): k(f"v_exp_f32 v{GA+i}, v{GA+i}")
        for i in range(4): k(f"v_add_f32 v{GA+i}, 1.0, v{GA+i}")
        for i in range(4): k(f"v_rcp_f32 v{GA+i}, v{GA+i}")
        for i in range(4): k(f"v_mul_f32 v{GC+i}, v{GC+i}, v{GA+i}")
        for i in range(4): rnd(k, 112 + 2 * i, GC + i)
        for i in range(4):
            for q in range(4):
                r = GW + 4 * i + q; u = 120 + 2 * (q & 1)
                k(f"v_lshlrev_b32 v{u}, 16, v{r}"); k(f"v_and_b32 v{u+1}, s{sMASK}, v{r}")
                if i == 0: k(f"v_pk_mul_f32 {v(GA+2*q,2)}, {v(u,2)}, {v(112+2*i,2)} op_sel_hi:[1,0]")
                else: k(f"v_pk_fma_f32 {v(GA+2*q,2)}, {v(u,2)}, {v(112+2*i,2)}, {v(GA+2*q,2)} op_sel_hi:[1,0,1]")
        for md in ("quad_perm:[2,3,0,1]", "row_ror:4", "row_ror:8"):
            for j in range(8): k(f"v_add_f32_dpp v{GA+j}, v{GA+j}, v{GA+j} {md} row_mask:0xf bank_mask:0xf")
        k(f"ds_write_b128 v104, {v(GA,4)} offset:{L_R}", token="w"); k(f"ds_write_b128 v104, {v(GA+4,4)} offset:{L_R+16}", token="w")
        k(f"v_lshlrev_b32 v105, 2, v{LN_}")
        k(f"s_lshr_b32 s{sT0}, s{sSL}, 5"); k(f"s_cmp_eq_u32 s{sT0}, 1"); k(f"s_cselect_b32 s{sT1}, 1.0, 0")
        k(f"s_cmp_eq_u32 s{sT0}, 4"); k(f"s_cselect_b32 s{sT1}, 1.0, s{sT1}")
        k(f"s_cmp_lt_u32 s{sT0}, 2"); k(f"s_cselect_b32 s{sT2}, {f32(QS)}, 1.0")
        k(f"s_lshl_b32 s{sT0}, s{sSL}, 6")
        k.wait("w"); k("s_barrier")
        k(f"s_cmp_lg_u32 s{sW}, 3"); k("s_cbranch_scc1 " + ("NOGEMV" + tag if late else "PWAIT"))
        for i in range(4): k(f"ds_read_b32 v{GA+i}, v105 offset:{L_R+256*i}")
        k(f"v_add_f32 v{GA}, v{GA}, v{GA+1}"); k(f"v_add_f32 v{GA+2}, v{GA+2}, v{GA+3}"); k(f"v_add_f32 v{GA}, v{GA}, v{GA+2}")
        k(f"v_mov_b32 v{GA+1}, v{GA}"); k(f"v_permlane16_swap_b32 v{GA}, v{GA+1}"); k(f"v_add_f32 v{GA}, v{GA}, v{GA+1}")
        k(f"v_mov_b32 v{GA+1}, v{GA}"); k(f"v_permlane32_swap_b32 v{GA}, v{GA+1}"); k(f"v_add_f32 v{GA}, v{GA}, v{GA+1}")
        rnd(k, GA, GA)
        k(f"v_add_f32 v{GA}, s{sT1}, v{GA}"); k(f"v_mul_f32 v{GA}, s{sT2}, v{GA}")
        if D: stamp(k, "g_red")
        k("s_mov_b64 exec, 0xffff")
        if not late:
            k(f"v_add_u32 v{GA+1}, 1, v110")
            k(f"buffer_store_dwordx2 {v(GA,2)}, v109, s[24:27], s{sO1} offen sc1")
            k("s_mov_b64 exec, -1")
            k.label("PWAIT")
            k("s_barrier")
            k.vm = {}
            put(k, xl)
            st0 = (k._merge(st0[0], k.vm), None)
        else:
            k(f"buffer_store_dword v{GA}, v105, s[24:27], s{sT0} offen sc1")
            k("s_mov_b64 exec, -1")
        k.label("NOGEMV" + tag)
        k.vm, k.lg = dict(st0[0]), {}
    gemv_compute(0, 64, "A", False)
    stamp(k, "gemv")
    k("s_mov_b32 s3, 0x3f803f80")
    if P.get("DG") == 2: stamp(k, "iss"); k.wait_regs(v(0, 16), v(128, 48)); stamp(k, "xarr")
    for oo in range(2):
        src = [XR[c] + 8 * cb + 4 * oo + q for c in range(4) for cb in range(2) for q in range(4)]
        A_ = 16 + 8 * oo
        if oo == P["WPOS"]:
            if oo: k.wait_regs(*[f"v{x}" for x in src])
            def late_loads():
                k(f"s_sub_u32 s{sT0}, s2, 64"); k(f"s_cmp_ge_u32 s{sT0}, 128"); k("s_cbranch_scc1 NOLATE")
                s_c = dict(k.vm)
                gemv_loads()
                k.label("NOLATE")
                k.vm = k._merge(k.vm, s_c)
                k.srd(12, 40, 8 * 2048 * 256)
            if P["LFIRST"]: late_loads()
            put(k, [w_dma(s_, "Q") for s_ in range(P["WPRE"])])
            if not P["LFIRST"]: late_loads()
        for j, x in enumerate(src):
            k(f"v_dot2_f32_bf16 v{A_+(j&1)}, v{x}, s3, {'0' if j < 2 else 'v%d' % (A_+(j&1))}")
            k(f"v_dot2_f32_bf16 v{A_+2+(j&1)}, v{x}, v{x}, {'0' if j < 2 else 'v%d' % (A_+2+(j&1))}")
        k("s_nop 2")
        k(f"v_add_f32 v{A_}, v{A_}, v{A_+1}"); k(f"v_add_f32 v{A_+2}, v{A_+2}, v{A_+3}")
        for md in ("quad_perm:[1,0,3,2]", "quad_perm:[2,3,0,1]"):
            for x in (A_, A_ + 2): k(f"v_add_f32_dpp v{x}, v{x}, v{x} {md} row_mask:0xf bank_mask:0xf")
        for x in (A_, A_ + 2): k(f"v_mov_b32 v{x+1}, v{x}")
        for x in (A_, A_ + 2): k(f"v_permlane32_swap_b32 v{x}, v{x+1}")
        for x in (A_, A_ + 2): k(f"v_add_f32 v{x}, v{x}, v{x+1}")
        k(f"v_mul_f32 v{A_}, {f32(-1/512)}, v{A_}")
        k(f"v_mul_f32 v{A_+2}, {f32(1/512)}, v{A_+2}")
        k(f"v_fma_f32 v{A_+2}, -v{A_}, v{A_}, v{A_+2}"); k(f"v_max_f32 v{A_+2}, 0, v{A_+2}")
        k(f"v_add_f32 v{A_+2}, {f32(1e-5)}, v{A_+2}"); k(f"v_rsq_f32 v{STT+2*oo+1}, v{A_+2}")
        k(f"v_mul_f32 v{STT+2*oo}, v{A_}, v{STT+2*oo+1}")
    def cread(cb, dst):
        return [f"ds_read_b128 {v(dst+8*m_+4*q,4)}, v{VM} offset:{L_M+2048*(1-m_)+256*cb+16*q}" for m_ in range(2) for q in range(2)]
    vmadv = [[f"v_add_u32 v{VM}, 0x200, v{VM}", f"v_and_b32 v{VM}, 0x7ff, v{VM}"]]
    def modulate(c, cb, cn, U_, pk):
        o = []
        for oo in range(2):
            x = XR[c] + 8 * cb + 4 * oo; u = U_ + (8 * oo if pk else 0)
            for q in range(4): o += [f"v_lshlrev_b32 v{u+2*q}, 16, v{x+q}", f"v_and_b32 v{u+2*q+1}, s{sMASK}, v{x+q}"]
            if pk:
                st = v(STT + 2 * oo, 2)
                o += [f"v_pk_fma_f32 {v(u+2*q,2)}, {v(u+2*q,2)}, {st}, {st} op_sel:[0,1,0] op_sel_hi:[1,1,0]" for q in range(4)]
                if pk == "pre": continue
                if pk == "post": o = o[:-12]
                o += [f"v_pk_fma_f32 {v(u+2*q,2)}, {v(u+2*q,2)}, {v(cn+2*q,2)}, {v(cn+8+2*q,2)}" for q in range(4)]
            else:
                o += [f"v_fma_f32 v{u+e}, v{u+e}, v{STT+2*oo+1}, v{STT+2*oo}" for e in range(8)]
                o += [f"v_fma_f32 v{u+e}, v{u+e}, v{cn+e}, v{cn+8+e}" for e in range(8)]
            o += [f"v_cvt_pk_bf16_f32 v{x+q}, v{u+2*q}, v{u+2*q+1}" for q in range(4)]
            o.append(L(lambda x=x, cb=cb, oo=oo: k(f"ds_write_b128 v{HW+cb}, {v(x,4)} offset:{8192*c+128*oo}", token="hw"), 22, "d"))
        return o
    put(k, modulate(0, 0, 16, 32, "pre") + modulate(0, 1, 32, 48, "pre"))
    if P.get("DG") == 2: stamp(k, "st+pre")
    gemv_compute(64, 192, "B", True)
    stamp(k, "stats")
    k(f"s_lshl_b32 s{sT1}, s{sFB}, 4"); k(f"s_sub_u32 s{sT1}, s{sT1}, s{sFB}")
    k("v_mov_b32 v80, 0")
    k(f"s_mov_b32 s{sT2}, 0")
    k.label("POLL")
    k(f"s_add_u32 s{sT1}, s{sT1}, 1")
    k(f"s_and_b32 s{sT0}, s{sT1}, 15"); k("s_cbranch_scc1 POLLR")
    k("buffer_load_dword v81, v80, s[20:23], 0 offen sc1")
    k("v_readfirstlane_b32 s{0}, v81".format(sT0))
    k(f"s_cmp_ge_u32 s{sT0}, 0x100"); k(f"s_cselect_b32 s{sT2}, 1, 0")
    k(f"s_cmp_gt_u32 s{sT1}, 0x8000"); k(f"s_cselect_b32 s{sT2}, 1, s{sT2}")
    k.label("POLLR")
    for i in range(2): k(f"buffer_load_dwordx4 {v(16+4*i,4)}, v{VL16}, s[24:27], s{sO2} offen offset:{1024*i} sc1")
    k(f"v_cmp_eq_u32 vcc, v17, v{MX+1}")
    for j in (3, 5, 7):
        k(f"v_cmp_eq_u32 s[56:57], v{16+j}, v{MX+j}"); k("s_or_b64 vcc, vcc, s[56:57]")
    k(f"s_cselect_b32 s{sT2}, s{sT2}, 1")
    k(f"s_cmp_lg_u32 s{sO0}, 0"); k("s_cbranch_scc1 NOARR")
    k("s_mov_b64 exec, 1"); k("v_mov_b32 v106, 1")
    k("buffer_atomic_add v106, v80, s[20:23], 0 offen")
    k("s_mov_b64 exec, -1")
    k(f"s_mov_b32 s{sO0}, 1")
    k.label("NOARR")
    k(f"s_cmp_lg_u32 s{sT2}, 0"); k("s_cbranch_scc1 POLLED")
    if P["SLEEP"]: k(f"s_sleep {P['SLEEP']}")
    k("s_branch POLL")
    k.label("POLLED")
    if P.get("DG"): stamp(k, "go")
    k("v_mov_b32 v17, v18"); k("v_mov_b32 v21, v22")
    k(f"s_lshl_b32 s{sT0}, s{sW}, 10"); k(f"v_add_u32 v80, s{sT0}, v109")
    for i in range(2): k(f"ds_write_b64 v80, {v(16+4*i,2)} offset:{L_M+512*i}", token="w")
    put(k, kinit)
    k.wait("w")
    k("s_barrier")
    stamp(k, "poll")
    k.srd(20, 46, 4096 * 1024)
    put(k, cread(0, 64) + cread(1, 80) + vmadv)
    put(k, modulate(0, 0, 64, 32, "post") + modulate(0, 1, 80, 48, "post"))
    put(k, [w_dma(s_, "Q") for s_ in range(P["WPRE"], 4)])
    fr = lambda f: FR + 4 * (f % 8)
    def rdK(f, s_, off): return [f"ds_read_b128 {a(fr(f),4)}, v{VK+s_} offset:{off}"]
    def rdV(f, i, off): return [f"ds_read_b64_tr_b16 {a(fr(f)+2*u,2)}, v{VV+i%4} offset:{off+4096*(i//4)+2048*u}" for u in range(2)]
    def a_reads(step):
        slot = step % 4; buf = step % 2
        rd = [f"ds_read_b64_tr_b16 {a(AF+16*buf+4*a_+2*u,2)}, v{VW+a_} offset:{4096*slot+1024*u}" for a_ in range(4) for u in range(2)]
        return [[L(lambda: k.wait(f"W{slot}")), rd[0]]] + rd[1:]
    def b_reads(step):
        return [f"ds_read_b128 {a(BF+8*(step%2)+4*rt,4)}, v{VLO if step & 1 else VLIN} offset:{1024*step+32768*rt}" for rt in range(2)]
    put(k, a_reads(0))
    k.wait("hw"); k("s_barrier")
    stamp(k, "mod")
    put(k, b_reads(0))
    def g_mfma(buf, first=False):
        return [f"v_mfma_f32_32x32x16_bf16 {v(ACC+32*a_+16*rt,16)}, {a(AF+16*buf+4*a_,4)}, {a(BF+8*buf+4*rt,4)}, {'0' if first else v(ACC+32*a_+16*rt,16)}"
                for a_ in range(4) for rt in range(2)]
    def gbody(which, c, extra):
        sc = Sched(64)
        mf = []
        if c < 3: sc.pin(57, L(lambda: (k.wait("hw"), k("s_barrier")), 8))
        for i in range(8):
            st = 8 * c + i
            if st + 1 < 32:
                sc.add(a_reads(st + 1), 8 * i, 8 * i + 5, prio=1)
                sc.add(b_reads(st + 1), 8 * i + (1 if i == 7 else 0), 8 * i + 4, prio=1)
                sc.pin(8 * i + 7, L(lambda st=st: k.wait_regs(a(AF + 16 * ((st + 1) % 2), 16), a(BF + 8 * ((st + 1) % 2), 8))), end=True)
            if st + 4 < 32: sc.add(w_dma(st + 4, which), 8 * i, 8 * i + 8)
            mf += g_mfma(i % 2, st == 0)
        extra(sc)
        for m, f_ in zip(mf, sc.run()): k(m); put(k, f_)
    def qepi(a_):
        return [f"v_cvt_pk_bf16_f32 v{Q+16*a_+8*(j//4)+4*rt+j%4}, v{ACC+32*a_+16*rt+2*j}, v{ACC+32*a_+16*rt+2*j+1}" for rt in range(2) for j in range(8)]
    def qx(c):
        def f(sc):
            if c < 3:
                m0_ = modulate(c + 1, 0, CN, UT, False); m1_ = modulate(c + 1, 1, CN, UT, False)
                if P["BURST"]:
                    wr = [x for x in m0_ + m1_ if callable(x)]
                    m0_ = [x for x in m0_ if not callable(x)]; m1_ = [x for x in m1_ if not callable(x)]
                    sc.add(cread(0, CN) + m0_[:-4] + cread(1, CN) + m0_[-4:] + m1_ + vmadv, 0, P["BURST"])
                    sc.pin(P["BURST"], wr)
                else:
                    sc.add(cread(0, CN) + m0_[:-5] + cread(1, CN) + m0_[-5:] + m1_ + vmadv, 0, 55)
            else:
                sc.pin(0, L(lambda: k.srd(16, 42, 8 * 2048 * 256), 16))
                if not P["KEARLY"]: sc.add([x for d in kfirst for x in d], 32, 44)
                tab = []
                for p in range(8):
                    tab.append([f"s_add_u32 s{sT1}, s{sR8}, {p}", f"s_and_b32 s{sT1}, s{sT1}, 7", f"s_lshr_b32 s{sT2}, s{sT1}, 1", f"s_mul_i32 s{sT2}, s{sT2}, 6"])
                    tab.append([f"s_add_u32 s{sT1}, s{sT1}, s{sT2}", f"s_lshl_b32 s{TAB+p}, s{sT1}, 14"])
                sc.add(tab + [[f"s_lshl_b32 s{sT0}, s{sG}, 19", f"s_add_u32 s{sT0}, s{sT0}, s{sW256}"]] + w_voffs(10, sT0), 33, 56)
                sc.pin(56, L(lambda: (k.wait_all(), k("s_barrier")), 8))
                sc.add([rdK(f, f, L_K + 16384 + 8192) for f in range(4)], 56, 60, prio=1)
                sc.add(kv_dma("V", L_V, sO0) + kv_dma("V", L_V + 8192, sO1), 57, 62)
                sc.add(qepi(0), 61, 64)
                sc.pin(58, [f"v_add_u32 v{VLIN}, {L_H}, v{VL16}", f"v_add_u32 v{VLO}, {L_H}, v{VL16}"])
        return f
    for c in range(4): gbody("Q", c, qx(c))
    stamp(k, "qgemm")
    def qk(f, s_, qt, buf, zero):
        d = v(S + 32 * buf + 16 * qt, 16)
        c = d if s_ else ("0" if zero else v(CI + 16 * qt, 16))
        return f"v_mfma_f32_32x32x16_bf16 {d}, {a(fr(f),4)}, {v(Q+8*s_+4*qt,4)}, {c}"
    def pv(f, i, qt, buf, zero=False):
        d = a(O + 32 * (i % 4) + 16 * qt, 16)
        return f"v_mfma_f32_32x32x16_bf16 {d}, {a(fr(f),4)}, {v(S+32*buf+16*qt+8*(i//4),4)}, {'0' if zero else d}"
    def sreg(buf, e): return S + 32 * buf + 16 * ((e >> 3) & 1) + 8 * (e >> 4) + (e & 7)
    def sm(buf, e, addci=False):
        o = []
        if e < 32:
            if addci: o.append(f"v_add_f32 v{sreg(buf,e)}, v{sreg(buf,e)}, v{CI+16*((e>>3)&1)}")
            o.append(f"v_exp_f32 v{sreg(buf,e)}, v{sreg(buf,e)}")
        if e >= 1:
            p = e - 1
            o.append(f"v_add_f32 v{LS+((p>>3)&1)}, v{LS+((p>>3)&1)}, v{sreg(buf,p)}")
            if p & 1:
                o.append(f"v_cvt_pk_bf16_f32 v{sreg(buf,p&~7)+(p&7)//2}, v{sreg(buf,p-1)}, v{sreg(buf,p)}")
        return o
    def wgrp(j): return L(lambda: k.wait_regs(a(FR + 16 * (j % 2), 16)))
    def qk0(epi):
        wgrp(0)()
        for s_ in range(8):
            ep = qepi(s_ // 2 + 1)[8 * (s_ & 1):8 * (s_ & 1) + 8] if epi and s_ < 6 else []
            rd = [rdK(f + 4, f + 4, L_K + 16384 + 8192) if f < 4 else rdK(f + 4, f - 4, L_K) for f in ([2*s_, 2*s_+1] if s_ < 2 else [2*s_-4, 2*s_-3] if 4 <= s_ < 6 else [])]
            k(qk(s_, s_, 0, 0, True)); put(k, rd[:1]); put(k, ep[:4])
            k(qk(s_, s_, 1, 0, True)); put(k, rd[1:]); put(k, ep[4:])
            if s_ % 4 == 3: wgrp(s_ // 4 + 1)()
    qk0(True)
    k(f"s_cmp_lg_u32 s{sFB}, 0"); k("s_cbranch_scc1 FB_MAX")
    k.label("IT0")
    def maxops(buf, dst):
        o = []
        for qt in range(2):
            b = S + 32 * buf + 16 * qt; t = dst + qt
            o.append(f"v_max3_f32 v{t}, v{b}, v{b+1}, v{b+2}")
            for i in range(3, 15, 2): o.append(f"v_max3_f32 v{t}, v{t}, v{b+i}, v{b+i+1}")
            o.append(f"v_max_f32 v{t}, v{t}, v{b+15}")
        return [x for pr in zip(o[:8], o[8:]) for x in pr]
    def xhalf_max(t, t2):
        return [f"v_mov_b32 v{t2}, v{t}", f"v_mov_b32 v{t2+1}, v{t+1}", f"v_permlane32_swap_b32 v{t}, v{t2}", f"v_permlane32_swap_b32 v{t+1}, v{t2+1}",
                f"v_max_f32 v{t}, v{t}, v{t2}", f"v_max_f32 v{t+1}, v{t+1}, v{t2+1}"]
    def flat(x): return [y for z in x for y in z]
    def iteration(par, first=False, last=False, extra=None):
        hb = 16384 * par; nb = 16384 * (1 - par)
        mf = []
        phs = [0, 1, 3] if last else [0, 1, 2, 3]
        n = 16 * len(phs)
        sc = Sched(n)
        frs = []
        for q_, ph in enumerate(phs):
            for g in range(16):
                f = 8 * q_ + g // 2; qt = g & 1; i = g // 2
                if ph == 0: mf.append(qk(f, i, qt, 1, first))
                elif ph == 1: mf.append(pv(f, i, qt, 0, first and i < 4))
                elif ph == 2: mf.append(qk(f, i, qt, 0, False))
                else: mf.append(pv(f, i, qt, 1))
            for i in range(8): frs.append((ph, i))
        ng = len(frs) // 4
        for j in range(1, ng):
            rd = []
            for f in range(4 * j, 4 * j + 4):
                ph, i = frs[f]
                rd += rdK(f, i, hb + 8192 * (ph // 2)) if ph % 2 == 0 else rdV(f, i, hb + 8192 * (ph // 2))
            g0 = 8 * (j - 1)
            if first and j == 2: sc.pin(g0 + 1, L(lambda: (k.wait("V"), k("s_barrier")), 8)); g0 += 1
            sc.add(rd, g0, 8 * (j - 1) + 6, prio=1)
            sc.pin(8 * j - 1, wgrp(j), end=True)
        dm = [nxt(sO1, sO2), kv_dma("V", L_V + nb, sO2), kv_dma("K", L_K + nb, sO1), kv_dma("V", L_V + nb + 8192, sO1), nxt(sO2, sO1), kv_dma("K", L_K + nb + 8192, sO2)]
        dm = [dm[0]] + dm[1] + dm[2] + dm[3] + [dm[4]] + dm[5]
        if first:
            sc.add(dm, 24, 44)
            mx = maxops(0, MX) + xhalf_max(MX, MX + 2)
            mx += [[f"s_cmp_lg_u32 s{sFB}, 0", "s_cselect_b64 vcc, -1, 0"]]
            mx += [f"v_sub_f32 v{CI+16*qt}, {f32(-float(P['BIAS']))}, v{MX+qt}" for qt in range(2)]
            mx += [f"v_cndmask_b32 v{CI+16*qt}, v{CI+16*qt}, v{MX+4+qt}, vcc" for qt in range(2)]
            sc.add(mx + flat(sm(0, e, True) for e in range(17)), 1, 16)
            sc.add(flat(sm(0, e, True) for e in range(17, 33)), 16, 23)
            sc.add([f"v_mov_b32 v{CI+16*qt+i}, v{CI+16*qt}" for qt in range(2) for i in range(1, 16)], 23, 31)
            sc.add(flat(sm(1, e, True) for e in range(33)), 23, 54)
            sc.add(flat(sm(0, e) for e in range(12)), 54, 64)
        else:
            for e in range(12, 33): sc.pin(e - 12, sm(0, e))
            if last:
                sc.add(flat(sm(1, e) for e in range(17)), 19, 31)
                sc.add(flat(sm(1, e) for e in range(17, 33)), 31, 39)
            else:
                sc.add(dm, 1, 40)
                for e in range(33): sc.pin(20 + e, sm(1, e))
                for e in range(12): sc.pin(52 + e, sm(0, e))
        if not last:
            sc.pin(56, L(lambda: (k.wait("K", "V"), k("s_barrier")), 8))
            sc.add([rdK(f, f, nb) for f in range(4)], 56, 61, prio=1)
            sc.pin(63, wgrp(0), end=True)
        if extra: extra(sc)
        for m, f_ in zip(mf, sc.run()): k(m); put(k, f_)
    def x_first(sc):
        pf = [[f"s_lshl_b32 s{sT1}, s{sROT}, 14", f"s_lshl_b32 s{sT2}, s{sG}, 19", f"s_add_u32 s{sT1}, s{sT1}, s{sT2}"], [f"s_lshl_b32 s{sT2}, s{sW}, {12+lg2(G)}", f"s_add_u32 s{sT1}, s{sT1}, s{sT2}"]]
        for n in range(4 * G):
            pf.append([f"buffer_load_dwordx4 {a(192+4*(n%16),4)}, v{VL16}, s[20:23], s{sT1} offen offset:{1024*(n%4)}"] + ([f"s_add_u32 s{sT1}, s{sT1}, 4096"] if n % 4 == 3 else []))
        sc.add(pf, 44, 56)
    iteration(0, first=True, extra=x_first)
    if not P.get("OST") and not P.get("DG"): stamp(k, "it0")
    i0 = len(k.items)
    k.loop(sST, 3, lambda: (iteration(1), iteration(0)), align=3)
    X = P.get("DBGX", 0)
    if X:
        def keep(it):
            if it.kind in ("label", "raw"): return True
            if X & 1 and it.mn == "s_barrier": return False
            if X & 2 and it.mn == "s_waitcnt": return False
            if X & 4 and it.kind in ("valu", "trans"): return False
            if X & 8 and it.kind == "vmem": return False
            if X & 16 and it.kind == "ds": return False
            if X & 32 and it.kind == "trans": return False
            if X & 64 and it.kind == "valu": return False
            return True
        k.items[i0:] = [it for it in k.items[i0:] if keep(it)]
        k.wait_all()
    if not P.get("OST") and not P.get("DG"): stamp(k, "it1-6")
    OM = MX + 4
    def finalize(dt):
        o = []
        for qt in range(2):
            b = Q + 16 * qt; pk_ = Q + 32 + 8 * qt
            o += [f"v_accvgpr_read_b32 v{b+i}, a{O+32*dt+16*qt+i}" for i in range(16)]
            o += [f"v_maximum3_f32 v{OM+qt}, |v{b+i}|, |v{b+i+1}|, v{OM+qt}" for i in range(0, 16, 2)]
            o += [f"v_mul_f32 v{b+i}, v{b+i}, v{RL+qt}" for i in range(16)]
            for sp in range(2):
                o += [f"v_cvt_pk_bf16_f32 v{pk_+4*sp+j}, v{b+8*sp+2*j}, v{b+8*sp+2*j+1}" for j in range(4)]
                o.append(L(lambda sp=sp, qt=qt, pk_=pk_: k(f"ds_write_b128 v{HW+sp}, {v(pk_+4*sp,4)} offset:{32768*qt+8192*dt}", token="hw"), 22, "d"))
        return o
    f0 = finalize(0)
    def x_last(sc):
        sc.add(flat(w_dma(s_, "O") for s_ in range(4)), 0, 30)
        fin = [f"v_mov_b32 v{MX}, v{LS}", f"v_mov_b32 v{MX+1}, v{LS+1}", f"v_mov_b32 v{OM}, 0", f"v_mov_b32 v{OM+1}, 0",
               f"v_permlane32_swap_b32 v{LS}, v{MX}", f"v_permlane32_swap_b32 v{LS+1}, v{MX+1}",
               f"v_add_f32 v{LS}, v{LS}, v{MX}", f"v_add_f32 v{LS+1}, v{LS+1}, v{MX+1}",
               f"v_rcp_f32 v{RL}, v{LS}", f"v_rcp_f32 v{RL+1}, v{LS+1}", f"v_max_f32 v{MX+6}, v{LS}, v{LS+1}"]
        adr = []
        for sp in range(2):
            adr += [[f"s_lshl_b32 s56, s{sW}, 1", f"s_add_u32 s56, s56, {sp}", f"s_sub_u32 s56, s56, s{sR8}"], [f"s_and_b32 s56, s56, 7",
                    f"s_lshl_b32 s56, s56, 10", f"v_add_u32 v{HW+sp}, s56, v{VLIN}"]]
        sc.add(adr, 0, 8)
        sc.add(fin, 39, 43)
        sc.pin(40, L(lambda: k("s_barrier")))
        sc.add(a_reads(0), 40, 46, prio=1)
        sc.add(f0[:30], 43, 48)
    iteration(1, last=True, extra=x_last)
    if not P.get("DG"): stamp(k, "it7")
    k(f"s_load_dwordx4 s[40:43], s[0:1], {A_WG}")
    k(f"s_load_dwordx2 s[44:45], s[0:1], {A_WD}")
    k(f"s_load_dwordx2 s[46:47], s[0:1], {A_X}")
    k(f"s_load_dwordx2 s[48:49], s[0:1], {A_OUT}")
    put(k, f0[30:])
    k.wait_all(vm=False); k("s_barrier")
    put(k, b_reads(0))
    if not P.get("DG"): stamp(k, "owrite")
    def ox(c):
        def f(sc):
            if c < 3 and P["BURST"]:
                fz = finalize(c + 1)
                sc.add([x for x in fz if not callable(x)], 1, 46 if c == 2 else P["BURST"])
                sc.pin(P["BURST"], [x for x in fz if callable(x)])
            elif c < 3: sc.add(finalize(c + 1), 1, 48 if c == 2 else 55)
            if c == 2:
                chk = [f"v_maximum3_f32 v{MX+7}, v{OM}, v{OM+1}, v{MX+6}", f"v_min_f32 v{OM}, v{OM}, v{OM+1}",
                       f"v_cmp_ngt_f32 vcc, {f32(2.0**120)}, v{MX+7}", "s_mov_b64 s[56:57], vcc",
                       f"v_cmp_gt_f32 vcc, {f32(2.0**-112 if not P['FORCE_FB'] else 2.0**100)}, v{OM}",
                       ["s_or_b64 s[56:57], s[56:57], vcc", f"s_cselect_b32 s{sT1}, 1, 0", f"v_mov_b32 v{MX}, s{sT1}"],
                       [f"s_lshl_b32 s{sT1}, s{sW}, 2", f"v_mov_b32 v{MX+1}, s{sT1}"],
                       L(lambda: k(f"ds_write_b32 v{MX+1}, v{MX} offset:{L_K}", token="hw"), 4, "d"), f"v_mov_b32 v{MX+2}, 0"]
                if P["BURST"]: sc.add(chk[:-2] + chk[-1:], 46, P["BURST"]); sc.pin(P["BURST"], chk[-2])
                else: sc.add(chk, 48, 56)
            if c == 3:
                if P["PF1"]:
                    NA = P["F1R"] // 2; Wd_ = 3584 // NA; nl = (Wd_ + 1023) // 1024; per = Wd_ // nl // 16
                    pf = [[f"v_min_u32 v{tm}, {per-1}, v{LN_}", f"v_lshlrev_b32 v{tm}, 4, v{tm}"],
                          [f"s_lshr_b32 s56, s2, 3", f"s_lshl_b32 s56, s56, 2", f"s_add_u32 s56, s56, s{sW}"], [f"s_mul_i32 s56, s56, {4*3584}",
                           f"s_and_b32 s57, s2, {NA-1}"], [f"s_mul_i32 s57, s57, {Wd_}", f"s_add_u32 s56, s56, s57"],
                          L(lambda: k.srd(12, 40, 512 * 3584), 16), L(lambda: k.srd(16, 42, 512 * 3584), 16)]
                    n = 0
                    for r in range(4):
                        for l_ in range(nl):
                            for srd in (12, 16):
                                pf.append(f"buffer_load_dwordx4 {a(192+4*(n%16),4)}, v{tm}, s[{srd}:{srd+3}], s56 offen offset:{l_*per*16}"); n += 1
                        pf.append(f"s_add_u32 s56, s56, 3584")
                    sc.add(pf[:6], 8, 32); sc.add(pf[6:], 32, 56)
                sc.pin(5, f"ds_read_b128 {v(STT,4)}, v{MX+2} offset:{L_K}")
                sc.pin(14, [f"v_or3_b32 v{STT}, v{STT}, v{STT+1}, v{STT+2}", f"v_or_b32 v{STT}, v{STT}, v{STT+3}"])
                sc.pin(22, f"v_readfirstlane_b32 s{sT2}, v{STT}")
                sc.pin(38, [f"s_lshl_b32 s{sT0}, s{sG}, 21", f"s_lshl_b32 s{sT1}, s{sRB}, 16", f"s_add_u32 s{sT0}, s{sT0}, s{sT1}"])
                sc.pin(46, [f"s_lshl_b32 s{sT1}, s{sW}, 13", f"s_add_u32 s{sT0}, s{sT0}, s{sT1}", f"s_add_u32 s{sT0}, s{sT0}, {WS_P:#x}"])
                sc.pin(54, [f"s_andn2_b32 s{sT2}, s{sT2}, s{sFB}", "s_cbranch_scc1 FALLBACK"])
        return f
    i0 = len(k.items)
    for c in range(4):
        gbody("O", c, ox(c))
        if P.get("OST") and c < 3: stamp(k, f"o{c}")
    X = P.get("DBGO", 0)
    if X:
        def keep(it):
            if it.kind in ("label", "raw"): return True
            if it.mn.startswith("s_cbranch"): return False
            if X & 1 and it.mn == "s_barrier": return False
            if X & 2 and it.mn == "s_waitcnt" and "vmcnt" in it.text: return False
            if X & 4 and it.kind in ("valu", "trans") and not it.mn.startswith(("v_min_u32", "v_lshlrev")): return False
            if X & 8 and it.kind == "vmem": return False
            if X & 16 and it.mn.startswith("ds_write"): return False
            if X & 32 and it.mn == "s_waitcnt" and "lgkmcnt" in it.text: return False
            return True
        k.items[i0:] = [it for it in k.items[i0:] if keep(it)]
        k.wait_all()
    if not P.get("DG"): stamp(k, "ogemm")
    for a_ in range(4):
        for rt in range(2):
            k(f"s_add_u32 s{sT1}, s{sT0}, {32768*rt + 2048*a_}")
            b = ACC + 32 * a_ + 16 * rt
            for sp in range(2):
                for j in range(4 * sp, 4 * sp + 4): k(f"v_cvt_pk_bf16_f32 v{Q+16*a_+8*rt+j}, v{b+2*j}, v{b+2*j+1}")
                k(f"buffer_store_dwordx4 {v(Q+16*a_+8*rt+4*sp,4)}, v{VL16}, s[24:27], s{sT1} offen offset:{1024*sp} sc1", token="PST")
    tail(sys.modules[__name__], k)
    stamp_flush(k, 0)
    k.label("END_attn"); k("s_endpgm")
    k.label("FALLBACK")
    k.wait_all(); k("s_barrier")
    k(f"s_mov_b32 s{sFB}, 1")
    k("s_nop 15")
    k("s_branch RESTART")
    k.label("FB_MAX")
    k.wait_all(); k("s_barrier")
    k(f"v_mov_b32 v{MX+4}, 0xff800000"); k(f"v_mov_b32 v{MX+5}, 0xff800000")
    def fbody():
        put(k, kv_dma("K", L_K, sO0) + nxt(sO0, sO0)); k.wait("K"); k("s_barrier")
        for s_ in range(8): put(k, rdK(s_, s_, L_K))
        for s_ in range(8):
            for qt in range(2): k(qk(s_, s_, qt, 0, True))
        put(k, maxops(0, MX))
        k(f"v_max_f32 v{MX+4}, v{MX+4}, v{MX}"); k(f"v_max_f32 v{MX+5}, v{MX+5}, v{MX+1}")
        k("s_barrier")
    k.loop(sST, 16, fbody)
    put(k, xhalf_max(MX + 4, MX + 2))
    for qt in range(2): k(f"v_sub_f32 v{MX+4+qt}, 0, v{MX+4+qt}")
    put(k, kfirst)
    k.wait_all(); k("s_barrier")
    for f in range(4): put(k, rdK(f, f, L_K + 16384 + 8192))
    qk0(False)
    k.wait_all()
    k("s_branch IT0")
    return k

from gen10_tail import tail

HEADER = open('adaLN_cond__sliding_block_cached__geglu_ffn__prompt.s.ref').read().split("; Override launch")[0]

if __name__ == "__main__":
    out = sys.argv[1] if len(sys.argv) > 1 else "k.s"
    me = sys.modules[__name__]
    ks = [gen_attn()]
    ks[-1].label("CODE_END")
    txt = emit(ks, header=HEADER)
    if P.get("SINGLE"): txt = txt.replace("; @launch kernel=" + KNAME + " ", "; @launch ")
    open(out, "w").write(txt)
    json.dump([[k.name, k.grid, k.block//64, k.stamps] for k in ks], open(out[:-2]+".json","w"))
    for k in ks: print(k.name, "regs(v,a,s)", k.used, "nops", k.n_nops, "misal", k.n_mis, "instrs", len(k.items))
```

```python
import math
from asmlib import *

def L(f, cost=4, mem=False):
    f.cost = cost; f.mem = mem; return f

def tail(M, k):
    P = M.P; f32 = M.f32; put = M.put
    stamp = M.stamp
    sW = 28; VL16 = 216; TT = 220
    FL1, FL2, FL3 = M.WS_FL, M.WS_FL + 0x8000, M.WS_FL + 0x10000
    L_S = 163840 - 256
    VF = 248
    def cond(sreg, lab, body):
        k(f"s_cmp_lg_u32 s{sreg}, 0"); k(f"s_cbranch_scc1 {lab}")
        s0 = (dict(k.vm), dict(k.lg)); body(); k.label(lab)
        k.vm = k._merge(k.vm, s0[0]); k.lg = k._merge(k.lg, s0[1])
    def publish(tok, soff, tag):
        k.wait(tok); k("s_barrier")
        def f():
            k("s_mov_b64 exec, 1"); k(f"v_mov_b32 v{VF+1}, 1")
            k(f"buffer_store_dword v{VF+1}, v{VF}, s[24:27], s{soff} offen sc1")
            k("s_mov_b64 exec, -1")
        cond(sW, "NOPUB" + tag, f)
    def await_(soff, n, tag, counter=False):
        def f():
            k(f"s_mov_b64 exec, {(1 << n) - 1:#x}")
            k("s_mov_b32 s3, 0")
            k.label("POLL" + tag)
            if counter: k(f"buffer_load_dword v{VF+1}, v{VF}, s[16:19], 0 offen sc1")
            else: k(f"buffer_load_dword v{VF+1}, v{VF}, s[24:27], s{soff} offen sc1")
            k("s_add_u32 s3, s3, 1")
            k(f"v_cmp_gt_u32 vcc, 0x100, v{VF+1}" if counter else f"v_cmp_eq_u32 vcc, 0, v{VF+1}")
            k("s_cmp_gt_u32 s3, 0x8000"); k("s_cbranch_scc1 POLLED" + tag)
            k("s_cbranch_vccz POLLED" + tag)
            k(f"s_sleep {P['SLEEP2']}"); k("s_branch POLL" + tag)
            k.label("POLLED" + tag)
            k("s_mov_b64 exec, -1")
        cond(sW, "NOPOLL" + tag, f)
        if not counter: k("s_barrier")
    k("s_lshl_b32 s3, s30, 3"); k("s_add_u32 s3, s3, s29")
    k("s_lshl_b32 s5, s3, 13")
    k("s_lshr_b32 s4, s3, 2"); k("s_lshl_b32 s4, s4, 15"); k("s_and_b32 s6, s3, 3"); k("s_lshl_b32 s6, s6, 7"); k("s_add_u32 s4, s4, s6")
    k("s_lshl_b32 s7, s3, 7"); k(f"s_add_u32 s7, s7, {FL1:#x}")
    k("s_lshl_b32 s6, s30, 10"); k(f"s_add_u32 s6, s6, {FL1:#x}")
    k.srd(12, 46, 2048 * 1024); k.srd(16, 68, 256)
    k(f"v_lshlrev_b32 v{VF}, 7, v{TT}")
    k(f"v_and_b32 v1, 7, v{TT}"); k(f"v_lshrrev_b32 v7, 3, v{TT}"); k(f"v_lshl_add_u32 v7, s{sW}, 4, v7")
    k("v_lshlrev_b32 v3, 9, v7"); k("v_lshl_add_u32 v3, v1, 4, v3"); k("v_add_u32 v2, 4096, v3")
    k("v_lshlrev_b32 v4, 10, v1"); k("v_lshl_add_u32 v4, v7, 4, v4")
    k("v_lshlrev_b32 v5, 5, v7")
    k("v_lshlrev_b32 v8, 4, v1"); k(f"v_add_u32 v8, {L_S}, v8"); k(f"v_lshl_add_u32 v9, s{sW}, 2, v8")
    NS = 5; SB = 28672 + 256; UOFF = 14336 + 128
    HB = 0; AF = 128; AC = 0
    VD = 224; VA = 231; T1 = 234; KC = 246
    sFS, sRB, sT0, sT1, sKS = 29, 30, 31, 32, 33
    R = P["F1R"]
    M.split2(k, 2, sFS, sRB, 32 // R, 16, sT0, sKS)
    if R >= 8: k(f"s_and_b32 s{sKS}, s{sKS}, 7")
    else: k(f"s_lshl_b32 s{sKS}, s{sKS}, {M.lg2(8//R)}")
    k(f"s_and_b32 s{sT0}, s{sW}, 1"); k(f"s_mul_i32 s{sT1}, s{sT0}, 7168")
    k(f"s_mul_i32 s{sT0}, s{sT0}, 448")
    k(f"s_mul_i32 s36, s{sFS}, 224")
    k("s_mov_b32 s37, 4682")
    for n in range(7):
        k(f"v_add_u32 v{T1+1}, s{sT0}, v{TT}"); k(f"v_add_u32 v{T1+1}, {64*n}, v{T1+1}")
        k(f"v_mul_u32_u24 v{T1+2}, s37, v{T1+1}"); k(f"v_lshrrev_b32 v{T1+2}, 16, v{T1+2}")
        k(f"v_mul_u32_u24 v{T1+3}, 14, v{T1+2}"); k(f"v_sub_u32 v{T1+3}, v{T1+1}, v{T1+3}")
        k(f"v_mul_u32_u24 v{T1+2}, 3584, v{T1+2}"); k(f"v_lshl_add_u32 v{T1+2}, v{T1+3}, 4, v{T1+2}")
        k(f"v_add_u32 v{VD+n}, s36, v{T1+2}")
        if n % 4: k(f"v_subrev_u32 v{VD+n}, {1024*(n%4)}, v{VD+n}")
    k(f"s_cmp_lt_u32 s{sW}, 2")
    k(f"s_cselect_b32 s35, 0, {UOFF}")
    k("s_cselect_b32 s8, s40, s42"); k("s_cselect_b32 s9, s41, s43"); k("s_and_b32 s9, s9, 0xffff")
    k(f"s_mov_b32 s10, {512*3584}"); k("s_mov_b32 s11, 0x20000")
    k(f"s_add_u32 s35, s35, s{sT1}")
    k(f"s_lshl_b32 s{sT1}, s{sRB}, 2"); k(f"s_add_u32 s{sT1}, s{sT1}, s{sW}"); k(f"s_lshl_b32 s{sT1}, s{sT1}, 15")
    k(f"s_add_u32 s38, s{sT1}, {M.WS_H2:#x}")
    k(f"s_mov_b32 s39, s{sKS}")
    k(f"s_lshl_b32 s34, s{sRB}, 11"); k(f"s_add_u32 s34, s34, {FL2:#x}")
    r_, c2, gn, h_, tm = T1 + 4, T1 + 5, T1 + 6, T1 + 7, T1 + 8
    M.lane_tr_parts(k, TT, r_, c2, gn, h_, tm)
    k(f"v_lshl_add_u32 v{tm}, v{h_}, 3, v{r_}"); k(f"v_mul_u32_u24 v{VA}, 224, v{tm}")
    k(f"v_mul_u32_u24 v{tm}, {UOFF}, v{gn}"); k(f"v_add_u32 v{VA}, v{VA}, v{tm}"); k(f"v_lshl_add_u32 v{VA}, v{c2}, 3, v{VA}")
    k(f"v_add_u32 v{VA+1}, {2*SB}, v{VA}"); k(f"v_add_u32 v{VA+2}, {4*SB}, v{VA}")
    def dma(slot):
        o = []
        for n in range(7):
            if n == 0: o.append([f"s_mul_i32 s{sT0}, s{sKS}, {64*3584}", f"s_add_u32 m0, s35, {SB*slot}"]); o.append([f"s_add_u32 s{sKS}, s{sKS}, 1", f"s_and_b32 s{sKS}, s{sKS}, 7"])
            if n == 4: o.append(f"s_add_u32 m0, s35, {SB*slot+4096}")
            o.append(L(lambda n=n: k(f"buffer_load_dwordx4 v{VD+n}, s[8:11], s{sT0} offen offset:{1024*(n%4)} lds", token=f"W{slot}"), 10, "v"))
        return o
    def hload(st):
        o = [[f"s_lshl_b32 s{sT1}, s39, 12", f"s_add_u32 s{sT1}, s{sT1}, s38"], ["s_add_u32 s39, s39, 1", "s_and_b32 s39, s39, 7"]]
        o += [f"buffer_load_dwordx4 {a(HB+16*st+4*j,4)}, v{VL16}, s[24:27], s{sT1} offen offset:{1024*j} sc1" for j in range(4)]
        return o
    stamp(k, "t_set")
    await_(0, 1, "_0", counter=True)
    publish("PST", 7, "_1")
    stamp(k, "pub1")
    X = 16; XF = 24; MV = 40; PB = 64
    for i in range(2): k(f"buffer_load_dwordx4 {v(X+4*i,4)}, v4, s[12:15], s5 offen offset:{128*i}")
    def load_mod(base, m):
        k(f"s_mov_b32 s23, {M.WS_MOD + m*2048}")
        for i in range(2):
            for hh in range(2): k(f"buffer_load_dwordx4 {v(base+8*i+4*hh,4)}, v5, s[24:27], s23 offen offset:{256*i+16*hh} sc1")
    load_mod(MV, 2); load_mod(128, 4); load_mod(144, 3)
    nd = 0
    while nd < P["TW1"]: put(k, dma(nd)); nd += 1
    await_(6, 8, "_1")
    stamp(k, "poll1")
    k(f"s_add_u32 s23, s4, {M.WS_P:#x}")
    for g in range(8):
        for i in range(2): k(f"buffer_load_dwordx4 {v(PB+8*g+4*i,4)}, v{3-i}, s[24:27], s23 offen sc1")
        if g < 7: k("s_add_u32 s23, s23, 0x200000")
    k("s_mov_b32 s22, 0xffff0000")
    def unpack(dst, src):
        k(f"v_lshlrev_b32 v{dst}, 16, v{src}"); k(f"v_and_b32 v{dst+1}, s22, v{src}")
    for q in range(8): unpack(XF + 2 * q, PB + q)
    for g in range(1, 8):
        for q in range(8):
            unpack(10 + 2 * (q & 1), PB + 8 * g + q)
            k(f"v_pk_add_f32 {v(XF+2*q,2)}, {v(XF+2*q,2)}, {v(10+2*(q&1),2)}")
    for q in range(8):
        unpack(10, X + q)
        k(f"v_pk_fma_f32 v[10:11], {v(XF+2*q,2)}, {v(MV+2*q,2)}, v[10:11]")
        k(f"v_cvt_pk_bf16_f32 v{X+q}, v10, v11")
        unpack(XF + 2 * q, X + q)
    k(f"s_add_u32 s23, s4, {M.WS_X1:#x}")
    for i in range(2): k(f"buffer_store_dwordx4 {v(X+4*i,4)}, v{3-i}, s[24:27], s23 offen sc1")
    stamp(k, "x1")
    M.ln_stats(k, XF)
    for e in range(0, 16, 2):
        k(f"v_pk_mul_f32 {v(XF+e,2)}, {v(XF+e,2)}, v[56:57]")
        k(f"v_pk_fma_f32 {v(XF+e,2)}, {v(XF+e,2)}, {v(128+e,2)}, {v(144+e,2)}")
        k(f"v_cvt_pk_bf16_f32 v{MV+e//2}, v{XF+e}, v{XF+e+1}")
    k(f"s_add_u32 s23, s4, {M.WS_H2:#x}")
    for i in range(2): k(f"buffer_store_dwordx4 {v(MV+4*i,4)}, v{3-i}, s[24:27], s23 offen sc1", token="H2S")
    k("s_add_u32 s7, s7, 0x8000")
    publish("H2S", 7, "_2")
    stamp(k, "pub2")
    while nd < P["TW2"]: put(k, dma(nd)); nd += 1
    await_(34, 16, "_2")
    stamp(k, "poll2")
    HP = P["HPRE"]
    for st in range(HP): put(k, hload(st))
    VAs = [VA, VA, VA + 1, VA + 1, VA + 2]; VAo = [0, SB, 0, SB, 0]
    def reads(step):
        st, ks = divmod(step, 4); slot = st % NS; buf = step % 2
        return [f"ds_read_b64_tr_b16 {a(AF+28*buf+4*t+2*u,2)}, v{VAs[slot]} offset:{VAo[slot]+224*(16*ks+4*u)+32*t}" for t in range(7) for u in range(2)]
    def mf(step):
        st, ks = divmod(step, 4); buf = step % 2
        return [f"v_mfma_f32_32x32x16_bf16 {v(AC+16*t,16)}, {a(AF+28*buf+4*t,4)}, {a(HB+16*st+4*ks,4)}, {'0' if step == 0 else v(AC+16*t,16)}" for t in range(7)]
    NSL = 20; NB = 14
    BFR = 0; AF2 = 112; AC2 = 192
    VD0, VD1, VW, VL2, T2 = 160, 161, 162, 164, 168
    sNB, sRB2, sA0, sA1, sKW, sKA, sRING, sAB, sK0 = 50, 51, 52, 53, 54, 55, 56, 57, 58
    def setup2():
        o = [L(lambda: M.split2(k, 2, sNB, sRB2, 32 // P["F2R"], 32, sA0, sKW), 40)]
        o += [L(lambda: k.srd(12, 44, 1792 * 1024), 16), L(lambda: k.srd(16, 48, 2048 * 1024), 16)]
        o += [f"v_lshrrev_b32 v{T2+1}, 3, v{TT}", f"v_bfe_u32 v{T2+2}, v{TT}, 4, 1", f"v_lshlrev_b32 v{T2+2}, 2, v{T2+2}",
              f"v_and_b32 v{T2+3}, 7, v{TT}", f"v_xor_b32 v{T2+3}, v{T2+3}, v{T2+2}", f"v_lshlrev_b32 v{T2+3}, 4, v{T2+3}",
              f"s_lshl_b32 s{sA0}, s{sNB}, 7", f"v_lshl_add_u32 v{VD0}, v{T2+1}, 10, v{T2+3}", f"v_add_u32 v{VD0}, s{sA0}, v{VD0}",
              f"v_add_u32 v{VD1}, {8*1024-1024}, v{VD0}", f"s_mul_i32 s{sRING}, s{sW}, {NSL*2048}", f"v_add_u32 v{VL2}, {224*512}, v{VL16}",
              [f"s_lshr_b32 s{sKW}, s2, 3", f"s_mul_i32 s{sKW}, s{sKW}, 7", f"s_lshr_b32 s{sKW}, s{sKW}, 3"], [f"s_mov_b32 s{sKA}, s{sKW}", f"s_mul_i32 s{sK0}, s{sW}, 28"],
              [f"s_mul_i32 s{sAB}, s{sRB2}, {2*224*512}", f"s_add_u32 s{sAB}, s{sAB}, {M.WS_ACT:#x}"]]
        t2 = T2 + 4
        o += [f"v_lshl_add_u32 v{t2}, v{h_}, 3, v{r_}", f"v_lshlrev_b32 v{VW}, 7, v{t2}", f"v_lshl_add_u32 v{t2+1}, v{gn}, 2, v{c2}",
              f"v_lshl_add_u32 v{VW}, v{t2+1}, 3, v{VW}", f"v_lshrrev_b32 v{t2}, 1, v{r_}", f"v_lshl_add_u32 v{VW}, v{t2}, 6, v{VW}",
              f"v_add_u32 v{VW}, s{sRING}, v{VW}", f"v_xor_b32 v{VW+1}, 64, v{VW}"]
        o += [[f"s_lshr_b32 s59, s{sRB2}, 1", "s_lshl_b32 s59, s59, 11", f"s_add_u32 s59, s59, {FL3:#x}"],
              ["s_lshl_b32 s60, s30, 4", "s_add_u32 s60, s60, s29", "s_lshl_b32 s60, s60, 7"], f"s_add_u32 s60, s60, {FL3:#x}"]
        return o
    def pf2():
        nA = 32 // P["F2R"]; NA = 8 // nA; rows = 8 // nA; nin = 14 // rows
        o = [f"v_lshrrev_b32 v{T2+8}, {M.lg2(8*nA)}, v{TT}", f"v_lshlrev_b32 v{T2+8}, 10, v{T2+8}", f"v_and_b32 v{T2+9}, {8*nA-1}, v{TT}", f"v_lshl_add_u32 v{T2+8}, v{T2+9}, 4, v{T2+8}",
             ["s_lshr_b32 s61, s2, 3", "s_lshl_b32 s61, s61, 2", f"s_add_u32 s61, s61, s{sW}"], [f"s_mul_i32 s61, s61, {14*1024}", f"s_and_b32 s62, s2, {NA-1}"],
             [f"s_mul_i32 s62, s62, {128*nA}", "s_add_u32 s61, s61, s62"]]
        o += [[f"buffer_load_dwordx4 {a(192+4*n,4)}, v{T2+8}, s[12:15], s61 offen", f"s_add_u32 s61, s61, {1024*rows}"] for n in range(nin)]
        return o
    K0_ = -2 * math.sqrt(2 / math.pi) * M.LOG2E
    pre = [[f"s_mov_b32 s36, {f32(K0_*0.044715)}", "s_mov_b32 s37, s36"], f"v_mov_b32 v{KC}, {f32(K0_)}", f"v_mov_b32 v{KC+1}, {f32(K0_)}",
           [f"s_lshl_b32 s{sT1}, s{sRB}, 2", f"s_add_u32 s{sT1}, s{sT1}, s{sW}", f"s_mul_i32 s{sT1}, s{sT1}, {224*512}"],
           [f"s_mul_i32 s{sT0}, s{sFS}, {14*512}", f"s_add_u32 s38, s{sT1}, s{sT0}"], [f"s_add_u32 s38, s38, {M.WS_ACT:#x}", "s_add_u32 s39, s38, 4096"]]
    k.wait("W0"); k("s_barrier")
    for x in reads(0): k(x)
    nh = HP
    for st in range(8):
        sc = Sched(28)
        m_ = []
        for ks in range(4):
            step = 4 * st + ks
            if step + 1 < 32:
                if ks == 3: sc.pin(21, L(lambda st=st: (k.wait(f"W{(st+1) % NS}"), k("s_barrier")), 8))
                sc.add(reads(step + 1), 7 * ks, 7 * ks + 6, prio=1)
                sc.pin(7 * ks + 6, L(lambda step=step: k.wait_regs(a(AF + 28 * ((step + 1) % 2), 16), a(HB + 4 * (step + 1), 4))), end=True)
                if ks < 3: sc.pin(7 * ks + 10, L(lambda step=step: k.wait_regs(a(AF + 28 * ((step + 1) % 2), 28))), end=True)
            if ks == 0 and st > 0: sc.pin(3, L(lambda step=step: k.wait_regs(a(AF + 28 * (step % 2), 28))), end=True)
            m_ += mf(step)
        ld = []
        for _ in range(2):
            if nh < 8: ld += hload(nh); nh += 1
        while nd < 8 and nd <= st + 3: ld += dma(nd % NS); nd += 1
        sc.add(ld, 0, 21)
        if st == 4: sc.add(setup2(), 0, 28)
        if st == 5 and P["PF2"]: sc.add(pf2(), 0, 28)
        if st == 7: sc.add(pre, 0, 20); sc.pin(25, "s_barrier")
        for m, f_ in zip(m_, sc.run()): k(m); put(k, f_)
    stamp(k, "ffn1")
    def wdma(i):
        sl = i % NSL
        return [[f"s_add_u32 s{sA0}, s{sKW}, s{sK0}", f"s_lshl_b32 s{sA0}, s{sA0}, 14", f"s_add_u32 m0, s{sRING}, {2048*sl}"],
                [f"s_add_u32 s{sKW}, s{sKW}, 1", f"s_cmp_ge_u32 s{sKW}, 28", f"s_cselect_b32 s{sKW}, 0, s{sKW}"],
                f"buffer_load_dwordx4 v{VD0}, s[12:15], s{sA0} offen lds",
                L(lambda: k(f"buffer_load_dwordx4 v{VD1}, s[12:15], s{sA0} offen offset:1024 lds", token=f"D{sl}"), 10, "v")]
    def aload(i):
        sl = i % NB
        return [[f"s_add_u32 s{sA1}, s{sKA}, s{sK0}", f"s_lshl_b32 s{sA1}, s{sA1}, 10", f"s_add_u32 s{sA1}, s{sA1}, s{sAB}"],
                [f"s_add_u32 s{sKA}, s{sKA}, 1", f"s_cmp_ge_u32 s{sKA}, 28", f"s_cselect_b32 s{sKA}, 0, s{sKA}"],
                f"buffer_load_dwordx4 {a(BFR+8*sl,4)}, v{VL16}, s[24:27], s{sA1} offen sc1",
                f"buffer_load_dwordx4 {a(BFR+8*sl+4,4)}, v{VL2}, s[24:27], s{sA1} offen sc1"]
    W1 = P["FW1"]; n = 0
    for t in range(7):
        G = AC + 16 * t; E = 136 + 8 * (t % 2); D = 152 + 4 * (t % 2)
        per = (W1 * (t + 1)) // 6 - (W1 * t) // 6 if t < 6 else 0
        for j in range(per): put(k, wdma(n)); n += 1
        o = [f"v_pk_mul_f32 {v(E+r,2)}, {v(G+r,2)}, {v(G+r,2)}" for r in range(0, 8, 2)]
        o += [f"v_pk_fma_f32 {v(E+r,2)}, {v(E+r,2)}, s[36:37], {v(KC,2)}" for r in range(0, 8, 2)]
        o += [f"v_pk_mul_f32 {v(E+r,2)}, {v(E+r,2)}, {v(G+r,2)}" for r in range(0, 8, 2)]
        o += [f"v_exp_f32 v{E+r}, v{E+r}" for r in range(8)]
        o += [f"v_pk_mul_f32 {v(G+r,2)}, {v(G+r,2)}, {v(G+8+r,2)}" for r in range(0, 8, 2)]
        o += [f"v_pk_add_f32 {v(E+r,2)}, {v(E+r,2)}, 1.0 op_sel_hi:[1,0]" for r in range(0, 8, 2)]
        o += [f"v_rcp_f32 v{E+r}, v{E+r}" for r in range(8)]
        o += [f"v_pk_mul_f32 {v(G+r,2)}, {v(G+r,2)}, {v(E+r,2)}" for r in range(0, 8, 2)]
        o += [f"v_cvt_pk_bf16_f32 v{D+j}, v{G+2*j}, v{G+2*j+1}" for j in range(4)]
        put(k, o)
        k(f"buffer_store_dwordx4 {v(D,4)}, v{VL16}, s[24:27], s{38 if t<4 else 39} offen offset:{1024*(t%4)} sc1", token="ST")
    publish("ST", 60, "_3")
    stamp(k, "pub3")
    X1R, GB = 176, 184
    t2 = T2 + 4
    k(f"s_lshl_b32 s61, s{sRB2}, 1"); k(f"s_and_b32 s62, s{sW}, 1"); k("s_add_u32 s63, s61, s62")
    k(f"s_lshr_b32 s80, s{sW}, 1"); k("s_lshl_b32 s80, s80, 2"); k(f"s_lshl_b32 s61, s{sNB}, 3"); k("s_add_u32 s80, s80, s61")
    k("s_lshl_b32 s81, s63, 15"); k("s_lshl_b32 s62, s80, 9"); k("s_add_u32 s81, s81, s62"); k(f"s_add_u32 s81, s81, {M.WS_X1:#x}")
    k(f"v_lshlrev_b32 v{t2}, 5, v{h_}")
    k("s_lshl_b32 s62, s80, 5"); k(f"s_add_u32 s62, s62, {M.WS_MOD+5*2048}")
    for sp in range(2):
        for q in range(2): k(f"buffer_load_dwordx4 {v(GB+8*sp+4*q,4)}, v{t2}, s[24:27], s62 offen offset:{64*sp+16*q} sc1")
    while n < P["FW2"]: put(k, wdma(n)); n += 1
    await_(59, 16, "_3")
    stamp(k, "poll3")
    PRE = P["F2PRE"]
    for i in range(PRE): put(k, aload(i))
    def reads2(i):
        sl = i % NSL
        rd = [f"ds_read_b64_tr_b16 {a(AF2+8*(i%2)+4*a_+2*u,2)}, v{VW+a_} offset:{2048*sl+512*u}" for a_ in range(2) for u in range(2)]
        return [[L(lambda: k.wait(f"D{sl}")), rd[0]]] + rd[1:]
    put(k, reads2(0))
    nw = n
    for i in range(28):
        sc = Sched(4, budget=40)
        if i + 1 < 28: sc.add(reads2(i + 1), 0, 2, prio=1)
        ld = aload(i + PRE) if i + PRE < 28 else []
        if nw < 28 and nw - NSL < i: ld = ld + wdma(nw); nw += 1
        if i + PRE == 28: ld = ld + [f"buffer_load_dwordx4 {v(X1R+4*sp,4)}, v{VL16}, s[24:27], s81 offen offset:{1024*sp} sc1" for sp in range(2)]
        sc.add(ld, 0, 4)
        mf2 = [f"v_mfma_f32_32x32x16_bf16 {a(AC2+32*a_+16*rt,16)}, {a(AF2+8*(i%2)+4*a_,4)}, {a(BFR+8*(i%NB)+4*rt,4)}, {'0' if i==0 else a(AC2+32*a_+16*rt,16)}" for a_ in range(2) for rt in range(2)]
        for m, f_ in zip(mf2, sc.run()): k(m); put(k, f_)
    stamp(k, "ffn2")
    k("s_barrier")
    k(f"s_lshl_b32 s61, s{sW}, 14"); k(f"v_add_u32 v{t2+1}, s61, v{VL16}")
    for q in range(16): k(f"ds_write_b128 v{t2+1}, {a(AC2+4*q,4)} offset:{1024*q}", token="red")
    R_ = 16
    for r in range(16):
        if r % 2 == 0: k(f"v_lshlrev_b32 v{96+r}, 16, v{X1R+r//2}")
        else: k(f"v_and_b32 v{96+r}, s22, v{X1R+r//2}")
    k(f"v_and_b32 v{t2}, 31, v{TT}"); k(f"v_lshlrev_b32 v{t2}, 10, v{t2}"); k(f"v_lshl_add_u32 v{t2}, v{h_}, 4, v{t2}")
    k(f"s_lshl_b32 s61, s{sW}, 12"); k(f"v_add_u32 v{t2+2}, s61, v{VL16}")
    k("s_lshl_b32 s61, s63, 15"); k("s_lshl_b32 s62, s80, 4"); k("s_add_u32 s61, s61, s62")
    k.wait("red"); k("s_barrier")
    for q in range(4):
        for ww in range(4): k(f"ds_read_b128 {v(R_+16*ww+4*q,4)}, v{t2+2} offset:{16384*ww+1024*q}")
    for sp in range(2):
        for r in range(8 * sp, 8 * sp + 8, 2):
            k(f"v_pk_add_f32 {v(R_+r,2)}, {v(R_+r,2)}, {v(R_+16+r,2)}"); k(f"v_pk_add_f32 {v(R_+32+r,2)}, {v(R_+32+r,2)}, {v(R_+48+r,2)}")
        for r in range(8 * sp, 8 * sp + 8, 2): k(f"v_pk_add_f32 {v(R_+r,2)}, {v(R_+r,2)}, {v(R_+32+r,2)}")
        for r in range(8 * sp, 8 * sp + 8, 2): k(f"v_pk_fma_f32 {v(R_+r,2)}, {v(R_+r,2)}, {v(GB+r,2)}, {v(96+r,2)}")
        for j in range(4 * sp, 4 * sp + 4): k(f"v_cvt_pk_bf16_f32 v{80+j}, v{R_+2*j}, v{R_+2*j+1}")
        k(f"buffer_store_dwordx4 {v(80+4*sp,4)}, v{t2}, s[16:19], s61 offen offset:{32*sp} sc1")
```

```python
import sys, struct, math, os, json
from asmlib import *

def f32(x): return "0x%08x" % struct.unpack("<I", struct.pack("<f", x))[0]
LOG2E = 1.4426950408889634
CS = 128 ** -0.5
A_X, A_K, A_V, A_WQ, A_WO, B_X, A_WG, A_WU, A_WD, A_C, A_WM, A_OUT, A_DBG, A_WS = [8 * i for i in range(14)]
WS_MOD = 0x0
WS_GO = 0x18000
WS_FL = 0x20000
WS_ST = 0x10000
WS_P = 0x400000
WS_X1 = 0x1400000
WS_H2 = 0x1600000
WS_ACT = 0x1800000
WS_BYTES = 0x10000000
WS_DBG = 0x8000000
P = dict(STAMPS=0, G=2, ROT=1, F1R=8, F2R=8, PREF0=1, PREFC=1, PREFQ=1, PREFK=1, PORD=1, XPRE=0, TLBW=1, PBAR=3, WPOS=1, DEFER=1, SYNC=1, LFIRST=0, SLEEP=2, OSC=1, SLEEP2=4, FW1=10, FW2=20, F2PRE=12, N0=4, QP0=10, QBURST=1, TW1=3, TW2=5, HPRE=3, PSYS=0, WPRE=2, BURST=54, KEARLY=1, BIAS=100, FORCE_FB=0, PNT=0, PST=2, AST=2, PF1=1, PF2=1)
for kv in os.environ.get("GP", "").split(","):
    if kv: P[kv.split("=")[0]] = int(kv.split("=")[1])

def stamp(k, name):
    if not P["STAMPS"]: return
    SETS = {0: ("start", "mod", "qgemm", "it0", "it1-6", "owrite", "ogemm", "t_set", "end"), 1: ("start", "gemv", "stats", "poll", "mod", "qgemm", "end"),
            3: ("start", "t_set", "poll1", "x1", "poll2", "ffn1", "pub3", "poll3", "end"), 4: ("start", "mod", "q0", "q1", "q2", "qgemm", "end"), 5: ("start", "owrite", "q0o", "q1o", "q2o", "ogemm", "end")}
    if name not in SETS[P.get("DG", 0)]: return
    i = len(k.stamps); k.stamps.append(name)
    assert i < 9
    k.sgpr = 102
    k("s_memtime s[64:65]"); k("s_memrealtime s[66:67]"); k("s_waitcnt lgkmcnt(0)")
    k(f"s_mov_b32 s{82+2*i}, s64"); k(f"s_mov_b32 s{83+2*i}, s66")
def stamp_begin(k):
    k.stamps = []
    if not P["STAMPS"]: return
    k("v_lshrrev_b32 v1, 6, v0"); k("v_readfirstlane_b32 s101, v1")
    stamp(k, "start")
def stamp_flush(k, kidx):
    if not P["STAMPS"]: return
    stamp(k, "end")
    if P["STAMPS"] == 2:
        lab = k.newlabel("NODBG")
        k("s_mov_b64 exec, -1")
        k(f"s_xor_b32 s100, s2, {P.get('DWG', 200)}"); k("s_or_b32 s100, s100, s101"); k("s_cmp_lg_u32 s100, 0"); k(f"s_cbranch_scc1 {lab}")
        k(f"s_load_dwordx2 s[66:67], s[0:1], {A_DBG}")
        k.srd(60, 66, 256)
        k("v_mov_b32 v1, 0")
        n = len(k.stamps)
        for j in range(1, n):
            k(f"s_sub_u32 s100, s{77+2*j}, s77"); k("v_mov_b32 v0, s100")
            k(f"buffer_store_dword v0, v1, s[60:63], 0 offen offset:{4*j}")
        k(f"s_sub_u32 s100, s{76+2*(n-1)}, s76"); k("v_mov_b32 v0, s100")
        k(f"buffer_store_dword v0, v1, s[60:63], 0 offen offset:{4*n}")
        k.label(lab)
        return
    k(f"s_load_dwordx2 s[64:65], s[0:1], {A_WS}")
    k("s_mov_b64 exec, -1")
    k.srd(56, 64, WS_BYTES)
    k("s_lshl_b32 s100, s2, 3"); k("s_add_u32 s100, s100, s101"); k("s_lshl_b32 s100, s100, 8")
    k(f"s_add_u32 s100, s100, {WS_DBG + kidx*0x100000:#x}")
    k("v_mov_b32 v1, 0")
    for j, sr in enumerate([82 + i for i in range(2*len(k.stamps))]):
        k(f"v_mov_b32 v0, s{sr}")
        k(f"buffer_store_dword v0, v1, s[56:59], s100 offen offset:{4*j}")

def wave_id(k, sdst, vtmp):
    k(f"v_lshrrev_b32 v{vtmp}, 6, v0")
    k(f"v_readfirstlane_b32 s{sdst}, v{vtmp}")
def rowsum_8(k, val, tmp):
    k(f"v_add_f32_dpp v{val}, v{val}, v{val} row_ror:8 row_mask:0xf bank_mask:0xf")
    k(f"v_mov_b32 v{tmp}, v{val}"); k(f"v_permlane16_swap_b32 v{val}, v{tmp}"); k(f"v_add_f32 v{val}, v{val}, v{tmp}")
    k(f"v_mov_b32 v{tmp}, v{val}"); k(f"v_permlane32_swap_b32 v{val}, v{tmp}"); k(f"v_add_f32 v{val}, v{val}, v{tmp}")
def rnd(k, d, sreg): k(f"v_cvt_pk_bf16_f32 v{d}, 0, v{sreg}")
def lg2(x): return x.bit_length() - 1
def split2(k, sb, sA, sB, nA_per, nB_total, t0, t1):
    A_total = 256 // nB_total; NA = A_total // nA_per
    k(f"s_and_b32 s{t0}, s{sb}, 7"); k(f"s_lshr_b32 s{t1}, s{sb}, 3")
    k(f"s_and_b32 s{sA}, s{t0}, {NA-1}"); k(f"s_lshl_b32 s{sA}, s{sA}, {lg2(nA_per)}")
    k(f"s_and_b32 s{sB}, s{t1}, {nA_per-1}"); k(f"s_add_u32 s{sA}, s{sA}, s{sB}")
    k(f"s_lshr_b32 s{sB}, s{t0}, {lg2(NA)}"); k(f"s_lshl_b32 s{sB}, s{sB}, {lg2(32//nA_per)}")
    k(f"s_lshr_b32 s{t1}, s{t1}, {lg2(nA_per)}"); k(f"s_add_u32 s{sB}, s{sB}, s{t1}")
def lane_tr_parts(k, lane, r, c2, gn, h, tmp):
    k(f"v_bfe_u32 v{r}, v{lane}, 2, 2")
    k(f"v_and_b32 v{c2}, 1, v{lane}"); k(f"v_lshlrev_b32 v{c2}, 1, v{c2}")
    k(f"v_bfe_u32 v{tmp}, v{lane}, 1, 1"); k(f"v_or_b32 v{c2}, v{c2}, v{tmp}")
    k(f"v_bfe_u32 v{gn}, v{lane}, 4, 1")
    k(f"v_lshrrev_b32 v{h}, 5, v{lane}")

QS = CS * LOG2E
KNAME = "adaLN_cond__sliding_block_cached__geglu_ffn__prompt_kernel"
def ln_stats(k, XF):
    k(f"v_pk_add_f32 v[10:11], {v(XF,2)}, {v(XF+2,2)}")
    for e in range(4, 16, 2): k(f"v_pk_add_f32 v[10:11], v[10:11], {v(XF+e,2)}")
    k("v_add_f32 v10, v10, v11")
    def allreduce(off):
        rowsum_8(k, 10, 11)
        k(f"ds_write_b32 v9, v10 offset:{off}", token="w"); k.wait("w"); k("s_barrier")
        k(f"ds_read_b128 {v(12,4)}, v8 offset:{off}")
        k("v_add_f32 v12, v12, v13"); k("v_add_f32 v14, v14, v15"); k("v_add_f32 v10, v12, v14")
    allreduce(0)
    k(f"v_mul_f32 v58, {f32(-1/512)}, v10"); k("v_mov_b32 v59, v58")
    for e in range(0, 16, 2): k(f"v_pk_add_f32 {v(XF+e,2)}, {v(XF+e,2)}, v[58:59]")
    k(f"v_pk_mul_f32 v[10:11], {v(XF,2)}, {v(XF,2)}")
    for e in range(2, 16, 2): k(f"v_pk_fma_f32 v[10:11], {v(XF+e,2)}, {v(XF+e,2)}, v[10:11]")
    k("v_add_f32 v10, v10, v11")
    allreduce(128)
    k(f"v_mov_b32 v11, {f32(1e-5)}"); k(f"v_fmac_f32 v11, {f32(1/512)}, v10")
    k("v_rsq_f32 v56, v11"); k("v_mov_b32 v57, v56")

def gen_ln2():
    k = Kernel("ln2_kernel", 256, 256, 256, vgpr=160, sgpr=64)
    k("s_cmp_ge_u32 s2, 256"); k("s_cbranch_scc1 END_ln2")
    stamp_begin(k)
    k(f"s_load_dwordx2 s[4:5], s[0:1], {A_X}")
    k(f"s_load_dwordx2 s[6:7], s[0:1], {A_WS}")
    k("v_and_b32 v1, 7, v0"); k("v_lshrrev_b32 v2, 3, v0"); k("v_lshrrev_b32 v6, 6, v0")
    k("v_and_b32 v7, 7, v2"); k("v_lshl_add_u32 v7, v6, 4, v7")
    k("v_lshlrev_b32 v3, 9, v7"); k("v_lshl_add_u32 v3, v1, 4, v3")
    k("v_add_u32 v2, 4096, v3")
    k("v_lshlrev_b32 v4, 10, v1"); k("v_lshl_add_u32 v4, v7, 4, v4")
    k("v_lshlrev_b32 v5, 5, v7")
    k("v_lshlrev_b32 v8, 4, v1"); k("v_lshl_add_u32 v9, v6, 2, v8")
    k("s_and_b32 s25, s2, 7"); k("s_lshl_b32 s25, s25, 5"); k("s_lshr_b32 s26, s2, 3"); k("s_add_u32 s25, s25, s26")
    k("s_lshl_b32 s20, s25, 13")
    k("s_lshr_b32 s21, s25, 2"); k("s_lshl_b32 s21, s21, 15"); k("s_and_b32 s22, s25, 3"); k("s_lshl_b32 s22, s22, 7")
    k("s_add_u32 s21, s21, s22")
    k(f"s_add_u32 s23, s21, {WS_P:#x}")
    k.srd(12, 6, WS_BYTES)
    X = 16; XF = 24; MV = 40; PB = 64
    for g in range(8):
        for i in range(2):
            k(f"buffer_load_dwordx4 {v(PB+8*g+4*i,4)}, v{3-i}, s[12:15], s23 offen" + (" nt" if P["PNT"] else ""))
        if g < 7: k("s_add_u32 s23, s23, 0x200000")
    k.srd(8, 4, 2048 * 1024)
    for i in range(2): k(f"buffer_load_dwordx4 {v(X+4*i,4)}, v4, s[8:11], s20 offen offset:{128*i}")
    k("v_mov_b32 v10, 0"); k("s_lshl_b32 s27, s2, 7"); k(f"s_add_u32 s27, s27, {WS_FL:#x}")
    k("buffer_store_dword v10, v10, s[12:15], s27 offen sc1")
    k("s_mov_b32 s24, 0xffff0000")
    def load_mod(base, m):
        k(f"s_mov_b32 s23, {WS_MOD + m*2048}")
        for i in range(2):
            for hh in range(2):
                k(f"buffer_load_dwordx4 {v(base+8*i+4*hh,4)}, v5, s[12:15], s23 offen offset:{256*i+16*hh}")
    def unpack(dst, src):
        k(f"v_lshlrev_b32 v{dst}, 16, v{src}"); k(f"v_and_b32 v{dst+1}, s24, v{src}")
    load_mod(MV, 2); load_mod(128, 4); load_mod(144, 3)
    for q in range(8): unpack(XF + 2 * q, PB + q)
    for g in range(1, 8):
        for q in range(8):
            unpack(10 + 2 * (q & 1), PB + 8 * g + q)
            k(f"v_pk_add_f32 {v(XF+2*q,2)}, {v(XF+2*q,2)}, {v(10+2*(q&1),2)}")
    for q in range(8):
        unpack(10, X + q)
        k(f"v_pk_fma_f32 v[10:11], {v(XF+2*q,2)}, {v(MV+2*q,2)}, v[10:11]")
        k(f"v_cvt_pk_bf16_f32 v{X+q}, v10, v11")
        unpack(XF + 2 * q, X + q)
    k(f"s_add_u32 s23, s21, {WS_X1:#x}")
    for i in range(2): k(f"buffer_store_dwordx4 {v(X+4*i,4)}, v{3-i}, s[12:15], s23 offen sc1")
    stamp(k, "x1")
    ln_stats(k, XF)
    stamp(k, "stats")
    for e in range(0, 16, 2):
        k(f"v_pk_mul_f32 {v(XF+e,2)}, {v(XF+e,2)}, v[56:57]")
        k(f"v_pk_fma_f32 {v(XF+e,2)}, {v(XF+e,2)}, {v(128+e,2)}, {v(144+e,2)}")
        k(f"v_cvt_pk_bf16_f32 v{MV+e//2}, v{XF+e}, v{XF+e+1}")
    k(f"s_add_u32 s23, s21, {WS_H2:#x}")
    for i in range(2): k(f"buffer_store_dwordx4 {v(MV+4*i,4)}, v{3-i}, s[12:15], s23 offen sc1")
    stamp_flush(k, 1)
    k.label("END_ln2"); k("s_endpgm")
    return k

def put(k, seq):
    for x in seq:
        if isinstance(x, list): put(k, x)
        elif callable(x): x()
        else: k(x)

def gen_attn():
    k = Kernel(KNAME, 256, 256, 163840, vgpr=256, agpr=256, sgpr=82)
    k.denorm32 = P.get("DEN", 3)
    L_K, L_H, L_V, L_W, L_M = 0, 32768, 32768, 98304, 16384
    ACC = 0; S = 0; CI = 64; Q = 128
    VK = 192; VV = 200; VW = 204; VDW = 208; VDK = 212; VDV = 214; VLIN = 215; VL16 = 216
    LS = 217; VLO = 219
    T = 220
    LN_, ROWL, GR16 = T, T + 1, T + 2
    r_, c2, gn, h_, tm = T + 3, T + 4, T + 5, T + 6, T + 7
    CH8 = T + 10; HW = T + 11
    VX = T + 13; VM = T + 15
    MX = T + 16
    STT = T + 24
    RL = T + 28; UT = T + 28
    O = 0; FR = 128; AF = 128; BF = 160
    sW, sG, sRB, sT0, sT1, sRING, sST, sFB, sROT, sT2 = 28, 29, 30, 32, 33, 34, 35, 39, 50, 51
    sE0, sE1, sE2 = 61, 62, 63
    sO0, sO1, sO2, sW2K, sW256, sKhi, sMASK, sCC, sR8 = 36, 37, 38, 52, 54, 55, 58, 59, 6
    TAB = 72
    def L(f, cost=4, mem=False):
        f.cost = cost; f.mem = mem; return f
    k("s_cmp_ge_u32 s2, 256"); k("s_cbranch_scc1 END_attn")
    stamp_begin(k)
    k(f"s_mov_b32 s{sFB}, 0")
    if P["PREFC"]:
        k("s_getpc_b64 s[56:57]")
        k.label("PCREF")
        k(f"s_lshr_b32 s{sT1}, s2, 3"); k(f"s_lshl_b32 s{sT1}, s{sT1}, 12")
        k("v_lshlrev_b32 v108, 4, v0"); k(f"v_add_u32 v108, s{sT1}, v108"); k("v_min_u32 v108, CODE_END-PCREF-16, v108")
        k("global_load_dwordx4 a[252:255], v108, s[56:57]")
    wave_id(k, sW, T)
    k(f"v_and_b32 v{LN_}, 63, v0")
    k.label("RESTART")
    k(f"s_load_dwordx4 s[8:11], s[0:1], {A_C}")
    k(f"s_load_dwordx2 s[4:5], s[0:1], {A_X}")
    k(f"s_load_dwordx4 s[68:71], s[0:1], {A_DBG}")
    k(f"s_load_dwordx8 s[40:47], s[0:1], {A_K}")
    L_R = L_M + 4096
    PSC = "sc1"
    GW, GC, GA = 64, 80, 88
    k(f"v_lshl_add_u32 v99, s{sW}, 6, v{LN_}")
    k("v_and_b32 v100, 1, v99"); k("v_lshrrev_b32 v101, 1, v99")
    k("v_mul_u32_u24 v102, 6144, v101"); k("v_lshl_add_u32 v102, v100, 4, v102"); k("v_lshlrev_b32 v103, 1, v101")
    k("v_lshrrev_b32 v104, 4, v99"); k("v_lshlrev_b32 v104, 6, v104"); k("v_lshl_add_u32 v104, v100, 5, v104")
    sSL = 7; sPR = 53
    k(f"s_and_b32 s{sT0}, s2, 7"); k(f"s_lshr_b32 s{sT1}, s2, 3")
    k(f"s_lshl_b32 s{sSL}, s{sT0}, 3"); k(f"s_add_u32 s{sSL}, s{sSL}, s{sT1}")
    k(f"s_lshl_b32 s{sT2}, s{sT0}, 4"); k(f"s_add_u32 s{sT2}, s{sT2}, s{sT1}"); k(f"s_add_u32 s{sT2}, s{sT2}, 56")
    k("s_cmp_lt_u32 s2, 64"); k(f"s_cselect_b32 s{sSL}, s{sSL}, s{sT2}")
    k(f"s_cselect_b32 s{sPR}, s{sFB}, 1")
    k(f"s_lshl_b32 s31, s{sSL}, 5")
    k(f"v_lshlrev_b32 v{VL16}, 4, v{LN_}")
    G = P["G"]
    NG = 8 // G; NS = 32 // G
    k(f"s_and_b32 s{sG}, s2, {NG-1}"); k(f"s_lshl_b32 s{sG}, s{sG}, {lg2(G)}"); k(f"s_lshr_b32 s{sT0}, s2, {3+lg2(NS)}"); k(f"s_add_u32 s{sG}, s{sG}, s{sT0}")
    k(f"s_bfe_u32 s{sROT}, s2, {3 | (lg2(NS) << 16):#x}")
    k(f"s_and_b32 s{sRB}, s2, 7"); k(f"s_lshr_b32 s{sRB}, s{sRB}, {lg2(NG)}"); k(f"s_lshl_b32 s{sRB}, s{sRB}, {lg2(NS)}"); k(f"s_add_u32 s{sRB}, s{sRB}, s{sROT}")
    k(f"s_lshl_b32 s{sROT}, s{sROT}, {lg2(G)}")
    k(f"s_and_b32 s{sR8}, s{sROT}, 7"); k(f"s_lshr_b32 s{sCC}, s{sROT}, 3")
    RR, CGL = tm, tm + 1
    k(f"v_bfe_u32 v{RR}, v{LN_}, 2, 3")
    k(f"v_lshrrev_b32 v{CGL}, 5, v{LN_}"); k(f"v_lshlrev_b32 v{CGL}, 2, v{CGL}"); k(f"v_and_or_b32 v{CGL}, v{LN_}, 3, v{CGL}")
    k(f"v_lshlrev_b32 v{VX}, 10, v{RR}"); k(f"v_lshl_add_u32 v{VX}, v{CGL}, 4, v{VX}"); k(f"v_add_u32 v{VX+1}, 8192, v{VX}")
    k(f"s_lshl_b32 s3, s{sRB}, 16"); k(f"s_lshl_b32 s{sT2}, s{sW}, 14"); k(f"s_add_u32 s3, s3, s{sT2}")
    XR = [128, 144, 160, 176]
    XS = [48, 49, 56, 57]
    for c in range(4):
        put(k, [f"s_add_u32 s{XS[c]}, s{sCC}, {c}", f"s_and_b32 s{XS[c]}, s{XS[c]}, 3", f"s_lshl_b32 s{XS[c]}, s{XS[c]}, 8", f"s_add_u32 s{XS[c]}, s{XS[c]}, s3"])
    xl = [f"buffer_load_dwordx4 {v(XR[c]+8*cb+4*oo,4)}, v{VX+oo}, s[16:19], s{XS[c]} offen offset:{128*cb}" for oo in range(2) for c in range(4) for cb in range(2)]
    k.srd(12, 10, 512 * 6144); k.srd(20, 8, 1024); k.srd(16, 4, 2048 * 1024)
    def gemv_loads():
        k(f"s_mov_b32 s{sT0}, s31")
        for i in range(4):
            k(f"buffer_load_dwordx4 {v(GW+4*i,4)}, v102, s[12:15], s{sT0} offen")
            if i < 3: k(f"s_add_u32 s{sT0}, s{sT0}, {128*6144}")
    for i in range(4): k(f"buffer_load_ushort v{GC+i}, v103, s[20:23], 0 offen offset:{256*i}")
    k.srd(24, 70, WS_BYTES)
    k(f"s_lshl_b32 s{sE2}, s{sW}, 11"); k(f"s_add_u32 s{sE2}, s{sE2}, {WS_GO:#x}")
    for i in range(2): k(f"buffer_load_dwordx4 {v(MX+4*i,4)}, v{VL16}, s[24:27], s{sE2} offen offset:{1024*i} sc1")
    k(f"v_lshlrev_b32 v109, 3, v{LN_}"); k(f"s_lshl_b32 s{sE1}, s{sSL}, 7"); k(f"s_add_u32 s{sE1}, s{sE1}, {WS_GO:#x}")
    k(f"buffer_load_dword v110, v109, s[24:27], s{sE1} offen offset:4 sc1")
    k(f"s_xor_b32 s{sE0}, s{sW}, 3"); k(f"s_or_b32 s{sE0}, s{sE0}, s{sFB}")
    k(f"s_cmp_lg_u32 s{sE0}, 0"); k("s_cbranch_scc1 NOZERO")
    k(f"v_lshlrev_b32 v111, 15, v{LN_}"); k("v_mov_b32 v107, 0"); k(f"s_lshl_b32 s{sT0}, s2, 7"); k(f"s_add_u32 s{sT0}, s{sT0}, {WS_FL:#x}")
    k("s_mov_b64 exec, 7")
    k(f"buffer_store_dword v107, v111, s[24:27], s{sT0} offen sc1")
    k("s_mov_b64 exec, -1")
    k.label("NOZERO")
    k.vm = {kk: max(p - 1, 0) for kk, p in k.vm.items()}
    k(f"s_cmp_eq_u32 s{sPR}, 0"); k("s_cbranch_scc1 PLOAD")
    s_a = (dict(k.vm), dict(k.lg))
    put(k, xl)
    s_b = dict(k.vm)
    k("s_branch PJOIN")
    k.label("PLOAD")
    k.vm = dict(s_a[0])
    gemv_loads()
    k.label("PJOIN")
    k.vm = k._merge(k.vm, s_b)
    k(f"s_lshl_b32 s{sW256}, s{sW}, 8"); k(f"s_lshl_b32 s{sW2K}, s{sW}, 11")
    k(f"v_lshrrev_b32 v{ROWL}, 4, v{LN_}")
    k(f"v_and_b32 v{r_}, 15, v{LN_}"); k(f"v_lshlrev_b32 v{GR16}, 2, v{ROWL}"); k(f"v_xor_b32 v{GR16}, v{GR16}, v{r_}")
    k(f"v_lshlrev_b32 v{GR16}, 4, v{GR16}")
    def w_voffs(psh, scol):
        return [f"v_lshl_add_u32 v{VDW}, v{ROWL}, {psh}, v{GR16}", f"v_add_u32 v{VDW}, s{scol}, v{VDW}"] + \
               [f"v_add_u32 v{VDW+n}, {n*((4<<psh)-1024)}, v{VDW}" for n in range(1, 4)]
    k(f"s_lshl_b32 s{sT0}, s{sG}, 10"); k(f"s_add_u32 s{sT0}, s{sT0}, s{sW256}")
    put(k, w_voffs(13, sT0))
    k(f"s_lshl_b32 s{sRING}, s{sW}, 14"); k(f"s_add_u32 s{sRING}, s{sRING}, {L_W}")
    for p in range(8):
        k(f"s_add_u32 s{TAB+p}, s{sR8}, {p}"); k(f"s_and_b32 s{TAB+p}, s{TAB+p}, 7"); k(f"s_lshl_b32 s{TAB+p}, s{TAB+p}, 17")
    k(f"s_lshl_b32 s{sKhi}, s{sCC}, 20")
    k.srd(8, 44, 512 * 8192)
    def w_dma(step, which):
        slot = step % 4
        if which == "Q":
            srd = 8
            pre = [f"s_add_u32 s{sT0}, s{sKhi}, s{TAB+step%8}"]
            adv = [[f"s_add_u32 s{sKhi}, s{sKhi}, 0x100000", f"s_and_b32 s{sKhi}, s{sKhi}, 0x3fffff"]] if step % 8 == 7 else []
        else:
            srd = 20
            pre = [f"s_add_u32 s{sT0}, s{TAB+step%8}, {(2*(step//8))<<14}"]
            adv = []
        o = [pre + [f"s_add_u32 m0, s{sRING}, {4096*slot}"]] + adv + [f"buffer_load_dwordx4 v{VDW}, s[{srd}:{srd+3}], s{sT0} offen lds"]
        for n in range(1, 4):
            o.append(L(lambda n=n: k(f"buffer_load_dwordx4 v{VDW+n}, s[{srd}:{srd+3}], s{sT0} offen offset:{1024*n} lds", token=f"W{slot}"), 10, "v"))
        return o
    k(f"v_lshrrev_b32 v{r_}, 1, v{CGL}"); k(f"v_subrev_u32 v{r_}, s{sR8}, v{r_}")
    k(f"v_and_b32 v{c2}, 1, v{CGL}"); k(f"v_and_b32 v{gn}, 1, v{r_}"); k(f"v_lshl_add_u32 v{gn}, v{gn}, 1, v{c2}"); k(f"v_lshlrev_b32 v{gn}, 1, v{gn}")
    k(f"v_xor_b32 v{gn}, v{gn}, v{RR}")
    k(f"v_lshlrev_b32 v{c2}, 9, v{c2}"); k(f"v_lshl_add_u32 v{c2}, v{gn}, 4, v{c2}")
    k(f"s_lshr_b32 s{sT1}, s{sW}, 1"); k(f"s_lshl_b32 s{sT1}, s{sT1}, 15"); k(f"s_and_b32 s{sT2}, s{sW}, 1"); k(f"s_lshl_b32 s{sT2}, s{sT2}, 8")
    k(f"s_add_u32 s{sT1}, s{sT1}, s{sT2}"); k(f"s_add_u32 s{sT1}, s{sT1}, {L_H}"); k(f"v_add_u32 v{c2}, s{sT1}, v{c2}")
    for cb in range(2):
        k(f"v_add_u32 v{gn}, {4*cb}, v{r_}"); k(f"v_and_b32 v{gn}, 7, v{gn}"); k(f"v_lshl_add_u32 v{HW+cb}, v{gn}, 10, v{c2}")
    k(f"s_lshl_b32 s{sT2}, s{sCC}, 9"); k(f"v_lshlrev_b32 v{VM}, 5, v{CGL}"); k(f"v_add_u32 v{VM}, s{sT2}, v{VM}")
    lane_tr_parts(k, LN_, r_, c2, gn, h_, tm)
    k(f"v_lshl_add_u32 v{CH8}, v{gn}, 2, v{c2}"); k(f"v_lshlrev_b32 v{CH8}, 3, v{CH8}")
    k(f"v_lshl_add_u32 v{tm}, v{h_}, 3, v{r_}"); k(f"v_lshl_add_u32 v{tm}, v{tm}, 8, v{CH8}"); k(f"v_add_u32 v{tm}, s{sRING}, v{tm}")
    for a_ in range(4):
        k(f"v_xor_b32 v{tm+1}, {a_}, v{r_}"); k(f"v_lshl_add_u32 v{VW+a_}, v{tm+1}, 6, v{tm}")
    put(k, [f"v_lshl_add_u32 v{tm}, v{h_}, 2, v{r_}", f"v_lshl_add_u32 v{tm}, v{tm}, 8, v{CH8}", f"v_add_u32 v{tm}, {L_V}, v{tm}"])
    for dt in range(4): put(k, [f"v_xor_b32 v{tm+1}, {dt}, v{r_}", f"v_lshl_add_u32 v{VV+dt}, v{tm+1}, 6, v{tm}"])
    put(k, [f"v_and_b32 v{tm}, 31, v{LN_}", f"v_and_b32 v{tm+1}, 15, v{LN_}", f"v_xor_b32 v{tm+1}, v{tm+1}, v{h_}",
            f"v_lshlrev_b32 v{tm}, 8, v{tm}", f"v_lshl_add_u32 v{VK}, v{tm+1}, 4, v{tm}"])
    put(k, [f"v_xor_b32 v{VK+s_}, {s_*32}, v{VK}" for s_ in range(1, 8)])
    put(k, [f"v_mov_b32 v{LS}, 0", f"v_mov_b32 v{LS+1}, 0",
        f"v_lshl_add_u32 v{VDV}, v{ROWL}, 8, v{GR16}", f"s_and_b32 s{sT1}, s{sW}, 1", f"s_lshl_b32 s{sT1}, s{sT1}, 3",
        f"v_or_b32 v{tm}, s{sT1}, v{ROWL}", f"v_and_b32 v{tm+1}, 15, v{LN_}", f"v_xor_b32 v{tm}, v{tm}, v{tm+1}",
        f"v_lshlrev_b32 v{VDK}, 8, v{ROWL}", f"v_lshl_add_u32 v{VDK}, v{tm}, 4, v{VDK}", f"v_xor_b32 v{VDK+1}, 64, v{VDK}",
        f"s_lshl_b32 s{sT1}, s{sG}, 19", f"s_add_u32 s{sT1}, s{sT1}, s{sW2K}", f"s_add_u32 s{sT1}, s{sT1}, {1536*256}",
        f"v_add_u32 v{VDK}, s{sT1}, v{VDK}", f"v_add_u32 v{VDK+1}, s{sT1}, v{VDK+1}", f"v_add_u32 v{VDV}, s{sT1}, v{VDV}",
        f"v_lshlrev_b32 v{tm}, 5, v{h_}", f"v_xor_b32 v{VLIN}, v{tm}, v{VL16}", f"v_add_u32 v{VLIN}, {L_H}, v{VLIN}", f"v_xor_b32 v{VLO}, 64, v{VLIN}",
        f"s_mov_b32 s{sMASK}, 0xffff0000"])
    def nxt(d, s_): return [f"s_add_u32 s{d}, s{s_}, 8192", f"s_and_b32 s{d}, s{d}, 0x1ffff"]
    def kv_dma(which, lds_off, so):
        srd = 12 if which == "K" else 16
        return [f"s_add_u32 m0, s{sW2K}, {lds_off}", f"buffer_load_dwordx4 v{VDK if which=='K' else VDV}, s[{srd}:{srd+3}], s{so} offen lds",
                L(lambda: k(f"buffer_load_dwordx4 v{VDK+1 if which=='K' else VDV}, s[{srd}:{srd+3}], s{so} offen offset:1024 lds", token=which), 10, "v")]
    kinit = [[f"s_lshr_b32 s{sO0}, s{sROT}, 1", f"s_lshl_b32 s{sO0}, s{sO0}, 13"] + nxt(sO1, sO0) + nxt(sO2, sO1)]
    kfirst = [kv_dma("K", L_K + 16384 + 8192, sO0), kv_dma("K", L_K, sO1), kv_dma("K", L_K + 8192, sO2)]
    k.srd(20, 68, 256)
    def gemv_compute(lo, hi, tag, late):
        k(f"s_sub_u32 s{sT0}, s2, {lo}"); k(f"s_cmp_ge_u32 s{sT0}, {hi-lo}"); k(f"s_cselect_b32 s{sT0}, 1, s{sFB}"); k(f"s_cmp_lg_u32 s{sT0}, 0"); k("s_cbranch_scc1 NOGEMV" + tag)
        st0 = (dict(k.vm), dict(k.lg))
        D = P.get("DG") == 1 and not late
        if D: stamp(k, "g_in"); k.wait_regs(v(GW, 20)); stamp(k, "g_data")
        k(f"s_mov_b32 s{sT1}, {f32(-LOG2E)}")
        for i in range(4): k(f"v_lshlrev_b32 v{GC+i}, 16, v{GC+i}")
        for i in range(4): k(f"v_mul_f32 v{GA+i}, s{sT1}, v{GC+i}")
        for i in range(4): k(f"v_exp_f32 v{GA+i}, v{GA+i}")
        for i in range(4): k(f"v_add_f32 v{GA+i}, 1.0, v{GA+i}")
        for i in range(4): k(f"v_rcp_f32 v{GA+i}, v{GA+i}")
        for i in range(4): k(f"v_mul_f32 v{GC+i}, v{GC+i}, v{GA+i}")
        for i in range(4): rnd(k, 112 + 2 * i, GC + i)
        for i in range(4):
            for q in range(4):
                r = GW + 4 * i + q; u = 120 + 2 * (q & 1)
                k(f"v_lshlrev_b32 v{u}, 16, v{r}"); k(f"v_and_b32 v{u+1}, s{sMASK}, v{r}")
                if i == 0: k(f"v_pk_mul_f32 {v(GA+2*q,2)}, {v(u,2)}, {v(112+2*i,2)} op_sel_hi:[1,0]")
                else: k(f"v_pk_fma_f32 {v(GA+2*q,2)}, {v(u,2)}, {v(112+2*i,2)}, {v(GA+2*q,2)} op_sel_hi:[1,0,1]")
        for md in ("quad_perm:[2,3,0,1]", "row_ror:4", "row_ror:8"):
            for j in range(8): k(f"v_add_f32_dpp v{GA+j}, v{GA+j}, v{GA+j} {md} row_mask:0xf bank_mask:0xf")
        k(f"ds_write_b128 v104, {v(GA,4)} offset:{L_R}", token="w"); k(f"ds_write_b128 v104, {v(GA+4,4)} offset:{L_R+16}", token="w")
        k(f"v_lshlrev_b32 v105, 2, v{LN_}")
        k(f"s_lshr_b32 s{sT0}, s{sSL}, 5"); k(f"s_cmp_eq_u32 s{sT0}, 1"); k(f"s_cselect_b32 s{sT1}, 1.0, 0")
        k(f"s_cmp_eq_u32 s{sT0}, 4"); k(f"s_cselect_b32 s{sT1}, 1.0, s{sT1}")
        k(f"s_cmp_lt_u32 s{sT0}, 2"); k(f"s_cselect_b32 s{sT2}, {f32(QS)}, 1.0")
        k(f"s_lshl_b32 s{sT0}, s{sSL}, 6")
        k.wait("w"); k("s_barrier")
        k(f"s_cmp_lg_u32 s{sW}, 3"); k("s_cbranch_scc1 " + ("NOGEMV" + tag if late else "PWAIT"))
        for i in range(4): k(f"ds_read_b32 v{GA+i}, v105 offset:{L_R+256*i}")
        k(f"v_add_f32 v{GA}, v{GA}, v{GA+1}"); k(f"v_add_f32 v{GA+2}, v{GA+2}, v{GA+3}"); k(f"v_add_f32 v{GA}, v{GA}, v{GA+2}")
        k(f"v_mov_b32 v{GA+1}, v{GA}"); k(f"v_permlane16_swap_b32 v{GA}, v{GA+1}"); k(f"v_add_f32 v{GA}, v{GA}, v{GA+1}")
        k(f"v_mov_b32 v{GA+1}, v{GA}"); k(f"v_permlane32_swap_b32 v{GA}, v{GA+1}"); k(f"v_add_f32 v{GA}, v{GA}, v{GA+1}")
        rnd(k, GA, GA)
        k(f"v_add_f32 v{GA}, s{sT1}, v{GA}"); k(f"v_mul_f32 v{GA}, s{sT2}, v{GA}")
        if D: stamp(k, "g_red")
        k("s_mov_b64 exec, 0xffff")
        if not late:
            k(f"v_add_u32 v{GA+1}, 1, v110")
            k(f"buffer_store_dwordx2 {v(GA,2)}, v109, s[24:27], s{sE1} offen sc1")
            k("s_mov_b64 exec, -1")
            k.label("PWAIT")
            k("s_barrier")
            k.vm = {}
            put(k, xl)
            st0 = (k._merge(st0[0], k.vm), None)
        else:
            k(f"buffer_store_dword v{GA}, v105, s[24:27], s{sT0} offen sc1")
            k("s_mov_b64 exec, -1")
        k.label("NOGEMV" + tag)
        k.vm, k.lg = dict(st0[0]), {}
    gemv_compute(0, 64, "A", False)
    stamp(k, "gemv")
    k("s_mov_b32 s3, 0x3f803f80")
    ASET = {"Q": [16 * i for i in range(10)], "O": [AF, AF + 16]}
    def aset(which, step): return ASET[which][step % len(ASET[which])]
    def a_reads(step, which="O"):
        slot = step % 4; b_ = aset(which, step)
        rd = [f"ds_read_b64_tr_b16 {a(b_+4*a_+2*u,2)}, v{VW+a_} offset:{4096*slot+1024*u}" for a_ in range(4) for u in range(2)]
        return [[L(lambda: k.wait(f"W{slot}")), rd[0]]] + rd[1:]
    N0 = P["N0"]
    if P.get("DG") == 2: stamp(k, "iss"); k.wait_regs(v(0, 16), v(128, 48)); stamp(k, "xarr")
    for oo in range(2):
        src = [XR[c] + 8 * cb + 4 * oo + q for c in range(4) for cb in range(2) for q in range(4)]
        A_ = 16 + 8 * oo
        if oo == P["WPOS"]:
            if oo: k.wait_regs(*[f"v{x}" for x in src])
            def late_loads():
                k(f"s_sub_u32 s{sT0}, s2, 64"); k(f"s_cmp_ge_u32 s{sT0}, 128"); k("s_cbranch_scc1 NOLATE")
                s_c = dict(k.vm)
                gemv_loads()
                k.label("NOLATE")
                k.vm = k._merge(k.vm, s_c)
                k.srd(12, 40, 8 * 2048 * 256)
            if P["LFIRST"]: late_loads()
            put(k, [w_dma(s_, "Q") for s_ in range(4)])
            if not P["LFIRST"]: late_loads()
        for j, x in enumerate(src):
            k(f"v_dot2_f32_bf16 v{A_+(j&1)}, v{x}, s3, {'0' if j < 2 else 'v%d' % (A_+(j&1))}")
            k(f"v_dot2_f32_bf16 v{A_+2+(j&1)}, v{x}, v{x}, {'0' if j < 2 else 'v%d' % (A_+2+(j&1))}")
        k("s_nop 2")
        k(f"v_add_f32 v{A_}, v{A_}, v{A_+1}"); k(f"v_add_f32 v{A_+2}, v{A_+2}, v{A_+3}")
        for md in ("quad_perm:[1,0,3,2]", "quad_perm:[2,3,0,1]"):
            for x in (A_, A_ + 2): k(f"v_add_f32_dpp v{x}, v{x}, v{x} {md} row_mask:0xf bank_mask:0xf")
        for x in (A_, A_ + 2): k(f"v_mov_b32 v{x+1}, v{x}")
        for x in (A_, A_ + 2): k(f"v_permlane32_swap_b32 v{x}, v{x+1}")
        for x in (A_, A_ + 2): k(f"v_add_f32 v{x}, v{x}, v{x+1}")
        k(f"v_mul_f32 v{A_}, {f32(-1/512)}, v{A_}")
        k(f"v_mul_f32 v{A_+2}, {f32(1/512)}, v{A_+2}")
        k(f"v_fma_f32 v{A_+2}, -v{A_}, v{A_}, v{A_+2}"); k(f"v_max_f32 v{A_+2}, 0, v{A_+2}")
        k(f"v_add_f32 v{A_+2}, {f32(1e-5)}, v{A_+2}"); k(f"v_rsq_f32 v{STT+2*oo+1}, v{A_+2}")
        k(f"v_mul_f32 v{STT+2*oo}, v{A_}, v{STT+2*oo+1}")
    def pre_all():
        for c in range(4):
            for cb in range(2):
                for oo in range(2):
                    x = XR[c] + 8 * cb + 4 * oo; u = 32 * c + 16 * cb + 8 * oo; st = v(STT + 2 * oo, 2)
                    for q in range(4): k(f"v_lshlrev_b32 v{u+2*q}, 16, v{x+q}"); k(f"v_and_b32 v{u+2*q+1}, s{sMASK}, v{x+q}")
                    for q in range(4): k(f"v_pk_fma_f32 {v(u+2*q,2)}, {v(u+2*q,2)}, {st}, {st} op_sel:[0,1,0] op_sel_hi:[1,1,0]")
    gemv_compute(64, 192, "B", True)
    put(k, kinit)
    put(k, kfirst)
    k.srd(16, 42, 8 * 2048 * 256)
    k(f"s_lshl_b32 s{sT1}, s{sROT}, 12"); k(f"s_lshl_b32 s{sT2}, s{sG}, 19"); k(f"s_add_u32 s{sT1}, s{sT1}, s{sT2}")
    k(f"s_lshl_b32 s{sT2}, s{sW}, {10+lg2(G)}"); k(f"s_add_u32 s{sT1}, s{sT1}, s{sT2}"); k(f"s_add_u32 s{sT1}, s{sT1}, {1536*256}")
    for n in range(G): k(f"buffer_load_dwordx4 {a(192+4*n,4)}, v{VL16}, s[16:19], s{sT1} offen offset:{1024*n}")
    k(f"v_mov_b32 v{UT}, v109")
    pre_all()
    if N0 >= 4:
        put(k, [a_reads(j, "Q") for j in range(4)])
        for j in range(4): k.wait_regs(a(aset("Q", j), 16)); put(k, w_dma(4 + j, "Q"))
    stamp(k, "stats")
    k(f"s_lshl_b32 s{sT1}, s{sFB}, 4"); k(f"s_sub_u32 s{sT1}, s{sT1}, s{sFB}")
    k(f"v_mov_b32 v{UT+1}, 0")
    k(f"s_mov_b32 s{sT2}, 0")
    k.label("POLL")
    k(f"s_add_u32 s{sT1}, s{sT1}, 1")
    k(f"s_and_b32 s{sT0}, s{sT1}, 15"); k("s_cbranch_scc1 POLLR")
    k(f"buffer_load_dword v{UT+2}, v{UT+1}, s[20:23], 0 offen sc1")
    k(f"v_readfirstlane_b32 s{sT0}, v{UT+2}")
    k(f"s_cmp_ge_u32 s{sT0}, 0x100"); k(f"s_cselect_b32 s{sT2}, 1, 0")
    k(f"s_cmp_gt_u32 s{sT1}, 0x8000"); k(f"s_cselect_b32 s{sT2}, 1, s{sT2}")
    k.label("POLLR")
    for i in range(2): k(f"buffer_load_dwordx4 {v(128+4*i,4)}, v{VL16}, s[24:27], s{sE2} offen offset:{1024*i} sc1")
    k(f"v_cmp_eq_u32 vcc, v129, v{MX+1}")
    for j in (3, 5, 7):
        k(f"v_cmp_eq_u32 s[56:57], v{128+j}, v{MX+j}"); k("s_or_b64 vcc, vcc, s[56:57]")
    k(f"s_cselect_b32 s{sT2}, s{sT2}, 1")
    k(f"s_cmp_lg_u32 s{sE0}, 0"); k("s_cbranch_scc1 NOARR")
    k("s_mov_b64 exec, 1"); k(f"v_mov_b32 v{UT+3}, 1")
    k(f"buffer_atomic_add v{UT+3}, v{UT+1}, s[20:23], 0 offen")
    k("s_mov_b64 exec, -1")
    k(f"s_mov_b32 s{sE0}, 1")
    k.label("NOARR")
    k(f"s_cmp_lg_u32 s{sT2}, 0"); k("s_cbranch_scc1 POLLED")
    if P["SLEEP"]: k(f"s_sleep {P['SLEEP']}")
    k("s_branch POLL")
    k.label("POLLED")
    if P.get("DG"): stamp(k, "go")
    k("v_mov_b32 v129, v130"); k("v_mov_b32 v133, v134")
    k(f"s_lshl_b32 s{sT0}, s{sW}, 10"); k(f"v_add_u32 v{UT+1}, s{sT0}, v{UT}")
    for i in range(2): k(f"ds_write_b64 v{UT+1}, {v(128+4*i,2)} offset:{L_M+512*i}", token="w")
    for c in range(1, 4): k(f"v_add_u32 v{UT+3+c}, {0x200*c}, v{VM}"); k(f"v_and_b32 v{UT+3+c}, 0x7ff, v{UT+3+c}")
    k.wait("w")
    k("s_barrier")
    stamp(k, "poll")
    k.srd(20, 46, 4096 * 1024)
    def cread(j):
        c, cb = divmod(j, 2); dst = 128 + 16 * (j % 4)
        return [f"ds_read_b128 {v(dst+8*m_+4*q,4)}, v{VM if c == 0 else UT+3+c} offset:{L_M+2048*(1-m_)+256*cb+16*q}" for m_ in range(2) for q in range(2)]
    put(k, [cread(j) for j in range(3)])
    for j in range(8):
        c, cb = divmod(j, 2); cn = 128 + 16 * (j % 4)
        if j + 3 < 8: put(k, cread(j + 3))
        for oo in range(2):
            u = 16 * j + 8 * oo
            for q in range(4): k(f"v_pk_fma_f32 {v(u+2*q,2)}, {v(u+2*q,2)}, {v(cn+2*q,2)}, {v(cn+8+2*q,2)}")
            for q in range(4): k(f"v_cvt_pk_bf16_f32 v{u+q}, v{u+2*q}, v{u+2*q+1}")
            k(f"ds_write_b128 v{HW+cb}, {v(u,4)} offset:{8192*c+128*oo}", token="hw")
    if N0 == 8: put(k, [a_reads(j, "Q") for j in range(4, 8)])
    if N0 == 1: put(k, a_reads(0, "Q"))
    fr = lambda f: FR + 4 * (f % 8)
    def rdK(f, s_, off): return [f"ds_read_b128 {a(fr(f),4)}, v{VK+s_} offset:{off}"]
    def rdV(f, i, off): return [f"ds_read_b64_tr_b16 {a(fr(f)+2*u,2)}, v{VV+i%4} offset:{off+4096*(i//4)+2048*u}" for u in range(2)]
    def b_reads(step):
        return [f"ds_read_b128 {a(BF+8*(step%2)+4*rt,4)}, v{VLO if step & 1 else VLIN} offset:{1024*step+32768*rt}" for rt in range(2)]
    k.wait("hw"); k("s_barrier")
    stamp(k, "mod")
    put(k, b_reads(0))
    def g_mfma(which, st):
        return [f"v_mfma_f32_32x32x16_bf16 {v(ACC+32*a_+16*rt,16)}, {a(aset(which,st)+4*a_,4)}, {a(BF+8*(st%2)+4*rt,4)}, {'0' if st == 0 else v(ACC+32*a_+16*rt,16)}"
                for a_ in range(4) for rt in range(2)]
    class Off:
        def __init__(s_, sc, o): s_.sc, s_.o = sc, o
        def pin(s_, g, x, end=False): s_.sc.pin(g + s_.o, x, end)
        def add(s_, ops, g0, g1, prio=0): s_.sc.add(ops, g0 + s_.o, g1 + s_.o, prio)
    def gemm(which, extra, nr, nd):
        sc = Sched(256)
        mf = []
        for st in range(32):
            if st + 1 < 32:
                sc.add(b_reads(st + 1), 8 * st, 8 * st + 4, prio=1)
                sc.pin(8 * st + 7, L(lambda st=st: k.wait_regs(a(aset(which, st + 1), 16), a(BF + 8 * ((st + 1) % 2), 8))), end=True)
            mf += g_mfma(which, st)
        R = len(ASET[which])
        g0 = 0
        td = {}
        first = [j for j in range(nd, min(nr + 4, 32))]
        pd = P["QP0"] if which == "Q" else 8
        for i, j in enumerate(first):
            sc.add(w_dma(j, which), pd * i, pd * (i + 1)); td[j] = pd * (i + 1)
        tstart = max(pd * len(first) - (pd if first else 0), 8 * (nr - R + 1), 0)
        if first and nr in td: tstart = max(tstart, td[nr] + 12)
        nun = 32 - nr
        tr = {j: int(tstart + (j - nr) * (240 - tstart) / (nun - 1)) for j in range(nr, 32)}
        for j in range(nr, 32):
            assert tr[j] >= 8 * (j - R + 1) and tr[j] <= 8 * (j - 1), (j, tr[j])
            sc.add(a_reads(j, which), tr[j], tr[j] + 5, prio=1)
            if j + 4 < 32 and j + 4 >= nd and j + 4 not in td:
                lo = max(tr[j + 1], max(td.values()) if td else 0); hi = max(tr[j + 2], lo + 6)
                sc.add([L(lambda j=j: k.wait_regs(a(aset(which, j), 16)))] + w_dma(j + 4, which), lo, hi); td[j + 4] = hi
        sc.last_dma = max(td.values())
        for c in range(4): extra(c)(Off(sc, 64 * c), sc.last_dma - 192)
        i0 = len(k.items)
        for g_, (m, f_) in enumerate(zip(mf, sc.run())):
            k(m); put(k, f_)
            if g_ % 64 == 63 and g_ < 255: stamp(k, f"q{g_//64}" + ("o" if which == "O" else ""))
            if g_ == 191: i1 = len(k.items)
        X = P.get("DBG" + which, 0)
        if X:
            def keep(it):
                if it.kind in ("label", "raw"): return True
                if X & 1 and it.mn == "s_barrier": return False
                if X & 4 and it.kind in ("valu", "trans"): return False
                if X & 8 and it.kind == "vmem": return False
                if X & 16 and it.mn.startswith("ds_write"): return False
                if X & 32 and it.mn.startswith("ds_read_b128") and it.ops[0].startswith("v"): return False
                return True
            k.items[i0:i1] = [it for it in k.items[i0:i1] if keep(it)]
    def qepi(a_):
        return [f"v_cvt_pk_bf16_f32 v{Q+16*a_+8*(j//4)+4*rt+j%4}, v{ACC+32*a_+16*rt+2*j}, v{ACC+32*a_+16*rt+2*j+1}" for rt in range(2) for j in range(8)]
    def qx(c):
        def f(sc, ld):
            if c == 3:
                assert ld <= 40, ld
                tab = []
                for p in range(8):
                    tab.append([f"s_add_u32 s{sT1}, s{sR8}, {p}", f"s_and_b32 s{sT1}, s{sT1}, 7", f"s_lshr_b32 s{sT2}, s{sT1}, 1", f"s_mul_i32 s{sT2}, s{sT2}, 6"])
                    tab.append([f"s_add_u32 s{sT1}, s{sT1}, s{sT2}", f"s_lshl_b32 s{TAB+p}, s{sT1}, 14"])
                sc.add(tab + [[f"s_lshl_b32 s{sT0}, s{sG}, 19", f"s_add_u32 s{sT0}, s{sT0}, s{sW256}"]] + w_voffs(10, sT0), ld + 1, 58)
                sc.pin(56, L(lambda: (k.wait_all(), k("s_barrier")), 8))
                sc.add([rdK(f, f, L_K + 16384 + 8192) for f in range(4)], 56, 60, prio=1)
                sc.add(kv_dma("V", L_V, sO0) + kv_dma("V", L_V + 8192, sO1), 57, 62)
                sc.add(qepi(0), 61, 64)
                sc.pin(58, [f"v_add_u32 v{VLIN}, {L_H}, v{VL16}", f"v_add_u32 v{VLO}, {L_H}, v{VL16}"])
        return f
    gemm("Q", qx, N0, {1: 4, 4: 8, 8: 8}[N0])
    stamp(k, "qgemm")
    def qk(f, s_, qt, buf, zero):
        d = v(S + 32 * buf + 16 * qt, 16)
        c = d if s_ else ("0" if zero else v(CI + 16 * qt, 16))
        return f"v_mfma_f32_32x32x16_bf16 {d}, {a(fr(f),4)}, {v(Q+8*s_+4*qt,4)}, {c}"
    def pv(f, i, qt, buf, zero=False):
        d = a(O + 32 * (i % 4) + 16 * qt, 16)
        return f"v_mfma_f32_32x32x16_bf16 {d}, {a(fr(f),4)}, {v(S+32*buf+16*qt+8*(i//4),4)}, {'0' if zero else d}"
    def sreg(buf, e): return S + 32 * buf + 16 * ((e >> 3) & 1) + 8 * (e >> 4) + (e & 7)
    def sm(buf, e, addci=False):
        o = []
        if e < 32:
            if addci: o.append(f"v_add_f32 v{sreg(buf,e)}, v{sreg(buf,e)}, v{CI+16*((e>>3)&1)}")
            o.append(f"v_exp_f32 v{sreg(buf,e)}, v{sreg(buf,e)}")
        if e >= 1:
            p = e - 1
            o.append(f"v_add_f32 v{LS+((p>>3)&1)}, v{LS+((p>>3)&1)}, v{sreg(buf,p)}")
            if p & 1:
                o.append(f"v_cvt_pk_bf16_f32 v{sreg(buf,p&~7)+(p&7)//2}, v{sreg(buf,p-1)}, v{sreg(buf,p)}")
        return o
    def wgrp(j): return L(lambda: k.wait_regs(a(FR + 16 * (j % 2), 16)))
    def qk0(epi):
        wgrp(0)()
        for s_ in range(8):
            ep = qepi(s_ // 2 + 1)[8 * (s_ & 1):8 * (s_ & 1) + 8] if epi and s_ < 6 else []
            rd = [rdK(f + 4, f + 4, L_K + 16384 + 8192) if f < 4 else rdK(f + 4, f - 4, L_K) for f in ([2*s_, 2*s_+1] if s_ < 2 else [2*s_-4, 2*s_-3] if 4 <= s_ < 6 else [])]
            k(qk(s_, s_, 0, 0, True)); put(k, rd[:1]); put(k, ep[:4])
            k(qk(s_, s_, 1, 0, True)); put(k, rd[1:]); put(k, ep[4:])
            if s_ % 4 == 3: wgrp(s_ // 4 + 1)()
    qk0(True)
    k(f"s_cmp_lg_u32 s{sFB}, 0"); k("s_cbranch_scc1 FB_MAX")
    k.label("IT0")
    def maxops(buf, dst):
        o = []
        for qt in range(2):
            b = S + 32 * buf + 16 * qt; t = dst + qt
            o.append(f"v_max3_f32 v{t}, v{b}, v{b+1}, v{b+2}")
            for i in range(3, 15, 2): o.append(f"v_max3_f32 v{t}, v{t}, v{b+i}, v{b+i+1}")
            o.append(f"v_max_f32 v{t}, v{t}, v{b+15}")
        return [x for pr in zip(o[:8], o[8:]) for x in pr]
    def xhalf_max(t, t2):
        return [f"v_mov_b32 v{t2}, v{t}", f"v_mov_b32 v{t2+1}, v{t+1}", f"v_permlane32_swap_b32 v{t}, v{t2}", f"v_permlane32_swap_b32 v{t+1}, v{t2+1}",
                f"v_max_f32 v{t}, v{t}, v{t2}", f"v_max_f32 v{t+1}, v{t+1}, v{t2+1}"]
    def flat(x): return [y for z in x for y in z]
    def iteration(par, first=False, last=False, extra=None):
        hb = 16384 * par; nb = 16384 * (1 - par)
        mf = []
        phs = [0, 1, 3] if last else [0, 1, 2, 3]
        n = 16 * len(phs)
        sc = Sched(n)
        frs = []
        for q_, ph in enumerate(phs):
            for g in range(16):
                f = 8 * q_ + g // 2; qt = g & 1; i = g // 2
                if ph == 0: mf.append(qk(f, i, qt, 1, first))
                elif ph == 1: mf.append(pv(f, i, qt, 0, first and i < 4))
                elif ph == 2: mf.append(qk(f, i, qt, 0, False))
                else: mf.append(pv(f, i, qt, 1))
            for i in range(8): frs.append((ph, i))
        ng = len(frs) // 4
        for j in range(1, ng):
            rd = []
            for f in range(4 * j, 4 * j + 4):
                ph, i = frs[f]
                rd += rdK(f, i, hb + 8192 * (ph // 2)) if ph % 2 == 0 else rdV(f, i, hb + 8192 * (ph // 2))
            g0 = 8 * (j - 1)
            if first and j == 2: sc.pin(g0 + 1, L(lambda: (k.wait("V"), k("s_barrier")), 8)); g0 += 1
            sc.add(rd, g0, 8 * (j - 1) + 6, prio=1)
            sc.pin(8 * j - 1, wgrp(j), end=True)
        dm = [nxt(sO1, sO2), kv_dma("V", L_V + nb, sO2), kv_dma("K", L_K + nb, sO1), kv_dma("V", L_V + nb + 8192, sO1), nxt(sO2, sO1), kv_dma("K", L_K + nb + 8192, sO2)]
        dm = [dm[0]] + dm[1] + dm[2] + dm[3] + [dm[4]] + dm[5]
        if first:
            sc.add(dm, 24, 44)
            mx = maxops(0, MX) + xhalf_max(MX, MX + 2)
            mx += [[f"s_cmp_lg_u32 s{sFB}, 0", "s_cselect_b64 vcc, -1, 0"]]
            mx += [f"v_sub_f32 v{CI+16*qt}, {f32(-float(P['BIAS']))}, v{MX+qt}" for qt in range(2)]
            mx += [f"v_cndmask_b32 v{CI+16*qt}, v{CI+16*qt}, v{MX+4+qt}, vcc" for qt in range(2)]
            sc.add(mx + flat(sm(0, e, True) for e in range(17)), 1, 16)
            sc.add(flat(sm(0, e, True) for e in range(17, 33)), 16, 23)
            sc.add([f"v_mov_b32 v{CI+16*qt+i}, v{CI+16*qt}" for qt in range(2) for i in range(1, 16)], 23, 31)
            sc.add(flat(sm(1, e, True) for e in range(33)), 23, 54)
            sc.add(flat(sm(0, e) for e in range(12)), 54, 64)
        else:
            for e in range(12, 33): sc.pin(e - 12, sm(0, e))
            if last:
                sc.add(flat(sm(1, e) for e in range(17)), 19, 31)
                sc.add(flat(sm(1, e) for e in range(17, 33)), 31, 39)
            else:
                sc.add(dm, 1, 40)
                for e in range(33): sc.pin(20 + e, sm(1, e))
                for e in range(12): sc.pin(52 + e, sm(0, e))
        if not last:
            sc.pin(56, L(lambda: (k.wait("K", "V"), k("s_barrier")), 8))
            sc.add([rdK(f, f, nb) for f in range(4)], 56, 61, prio=1)
            sc.pin(63, wgrp(0), end=True)
        if extra: extra(sc)
        for m, f_ in zip(mf, sc.run()): k(m); put(k, f_)
    def x_first(sc):
        pf = [[f"s_lshl_b32 s{sT1}, s{sROT}, 14", f"s_lshl_b32 s{sT2}, s{sG}, 19", f"s_add_u32 s{sT1}, s{sT1}, s{sT2}"], [f"s_lshl_b32 s{sT2}, s{sW}, {12+lg2(G)}", f"s_add_u32 s{sT1}, s{sT1}, s{sT2}"]]
        for n in range(4 * G):
            pf.append([f"buffer_load_dwordx4 {a(192+4*(n%16),4)}, v{VL16}, s[20:23], s{sT1} offen offset:{1024*(n%4)}"] + ([f"s_add_u32 s{sT1}, s{sT1}, 4096"] if n % 4 == 3 else []))
        sc.add(pf, 44, 56)
    iteration(0, first=True, extra=x_first)
    stamp(k, "it0")
    i0 = len(k.items)
    k.loop(sST, 3, lambda: (iteration(1), iteration(0)), align=3)
    X = P.get("DBGX", 0)
    if X:
        def keep(it):
            if it.kind in ("label", "raw"): return True
            if X & 1 and it.mn == "s_barrier": return False
            if X & 2 and it.mn == "s_waitcnt": return False
            if X & 4 and it.kind in ("valu", "trans"): return False
            if X & 8 and it.kind == "vmem": return False
            if X & 16 and it.kind == "ds": return False
            if X & 32 and it.kind == "trans": return False
            if X & 64 and it.kind == "valu": return False
            return True
        k.items[i0:] = [it for it in k.items[i0:] if keep(it)]
        k.wait_all()
    stamp(k, "it1-6")
    OM = MX + 4
    def finalize(dt, qt, pk=True):
        b = Q + 16 * ((2 * dt + qt) % 4)
        o = [f"v_accvgpr_read_b32 v{b+i}, a{O+32*dt+16*qt+i}" for i in range(16)]
        if dt == 0: o += [f"v_max3_f32 v{OM+qt}, |v{b+i}|, |v{b+i+1}|, v{OM+qt}" for i in range(0, 16, 2)]
        o += [f"v_pk_mul_f32 {v(b+i,2)}, {v(b+i,2)}, {v(RL,2)} op_sel:[0,{qt}] op_sel_hi:[1,{qt}]" for i in range(0, 16, 2)]
        for sp in range(2):
            o += [f"v_cvt_pk_bf16_f32 v{b+8*sp+j}, v{b+8*sp+2*j}, v{b+8*sp+2*j+1}" for j in range(4)]
            o.append(L(lambda sp=sp: k(f"ds_write_b128 v{HW+sp}, {v(b+8*sp,4)} offset:{32768*qt+8192*dt}", token="hw"), 22, "d"))
        return o
    f0 = finalize(0, 0); f1 = finalize(0, 1)
    def x_last(sc):
        sc.add(flat(w_dma(s_, "O") for s_ in range(4)), 0, 30)
        fin = [f"v_mov_b32 v{MX}, v{LS}", f"v_mov_b32 v{MX+1}, v{LS+1}", f"v_mov_b32 v{OM}, 0", f"v_mov_b32 v{OM+1}, 0",
               f"v_permlane32_swap_b32 v{LS}, v{MX}", f"v_permlane32_swap_b32 v{LS+1}, v{MX+1}",
               f"v_add_f32 v{LS}, v{LS}, v{MX}", f"v_add_f32 v{LS+1}, v{LS+1}, v{MX+1}",
               f"v_rcp_f32 v{RL}, v{LS}", f"v_rcp_f32 v{RL+1}, v{LS+1}", f"v_max_f32 v{MX+6}, v{LS}, v{LS+1}"]
        adr = []
        for sp in range(2):
            adr += [[f"s_lshl_b32 s56, s{sW}, 1", f"s_add_u32 s56, s56, {sp}", f"s_sub_u32 s56, s56, s{sR8}"], [f"s_and_b32 s56, s56, 7",
                    f"s_lshl_b32 s56, s56, 10", f"v_add_u32 v{HW+sp}, s56, v{VLIN}"]]
        sc.add(adr, 0, 8)
        sc.add(fin, 39, 43)
        sc.pin(40, L(lambda: k("s_barrier")))
        sc.add(a_reads(0), 40, 46, prio=1)
        sc.add(f0[:16] + f1[:12], 43, 48)
    iteration(1, last=True, extra=x_last)
    stamp(k, "it7")
    k(f"s_load_dwordx4 s[40:43], s[0:1], {A_WG}")
    k(f"s_load_dwordx2 s[44:45], s[0:1], {A_WD}")
    k(f"s_load_dwordx2 s[46:47], s[0:1], {A_X}")
    k(f"s_load_dwordx2 s[48:49], s[0:1], {A_OUT}")
    put(k, f0[16:] + f1[12:])
    for dt in range(1, 4):
        for qt in range(2): put(k, finalize(dt, qt))
    k.wait_all(vm=False); k("s_barrier")
    put(k, b_reads(0))
    stamp(k, "owrite")
    def ox(c):
        def f(sc, ld):
            assert ld <= 36, ld
            if c == 0:
                sc.add([f"v_min_f32 v{OM}, v{OM}, v{OM+1}", f"v_cmp_ngt_f32 vcc, {f32(2.0**120)}, v{MX+6}", "s_mov_b64 s[62:63], vcc",
                        f"v_cmp_gt_f32 vcc, {f32(2.0**-112 if not P['FORCE_FB'] else 2.0**100)}, v{OM}", "s_or_b64 s[62:63], s[62:63], vcc",
                        [f"s_lshl_b32 s{sT1}, s{sW}, 2", f"v_mov_b32 v{MX+1}, s{sT1}"], f"v_mov_b32 v{MX+2}, 0", f"v_mov_b32 v{MX+3}, 0x7f800000"], 4, 40)
            if c == 3:
                if P["PF1"]:
                    NA = P["F1R"] // 2; Wd_ = 3584 // NA; nl = (Wd_ + 1023) // 1024; per = Wd_ // nl // 16
                    pf = [[f"v_min_u32 v{tm}, {per-1}, v{LN_}", f"v_lshlrev_b32 v{tm}, 4, v{tm}"],
                          [f"s_lshr_b32 s56, s2, 3", f"s_lshl_b32 s56, s56, 2", f"s_add_u32 s56, s56, s{sW}"], [f"s_mul_i32 s56, s56, {4*3584}",
                           f"s_and_b32 s57, s2, {NA-1}"], [f"s_mul_i32 s57, s57, {Wd_}", f"s_add_u32 s56, s56, s57"],
                          L(lambda: k.srd(12, 40, 512 * 3584), 16), L(lambda: k.srd(16, 42, 512 * 3584), 16)]
                    n = 0
                    for r in range(4):
                        for l_ in range(nl):
                            for srd in (12, 16):
                                pf.append(f"buffer_load_dwordx4 {a(192+4*(n%16),4)}, v{tm}, s[{srd}:{srd+3}], s56 offen offset:{l_*per*16}"); n += 1
                        pf.append(f"s_add_u32 s56, s56, 3584")
                    sc.add(pf[:6], 8, 32); sc.add(pf[6:], 36, 58)
                sc.pin(38, [f"s_lshl_b32 s{sT0}, s{sG}, 21", f"s_lshl_b32 s{sT1}, s{sRB}, 16", f"s_add_u32 s{sT0}, s{sT0}, s{sT1}"])
                sc.pin(46, [f"s_lshl_b32 s{sT1}, s{sW}, 13", f"s_add_u32 s{sT0}, s{sT0}, s{sT1}", f"s_add_u32 s{sT0}, s{sT0}, {WS_P:#x}"])
        return f
    gemm("O", ox, 1, 4)
    stamp(k, "ogemm")
    for rt in range(2):
        k(f"v_cmp_nlt_f32 vcc, |v{ACC+16*rt}|, v{MX+3}"); k("s_or_b64 s[62:63], s[62:63], vcc")
    k(f"s_cselect_b32 s{sT1}, 1, 0"); k(f"v_mov_b32 v{MX}, s{sT1}")
    k(f"ds_write_b32 v{MX+1}, v{MX} offset:{L_K}", token="fl")
    for a_ in range(4):
        if a_ == 1: k.wait("fl"); k("s_barrier"); k(f"ds_read_b128 {v(STT,4)}, v{MX+2} offset:{L_K}")
        for rt in range(2):
            k(f"s_add_u32 s{sT1}, s{sT0}, {32768*rt + 2048*a_}")
            b = ACC + 32 * a_ + 16 * rt
            for sp in range(2):
                for j in range(4 * sp, 4 * sp + 4): k(f"v_cvt_pk_bf16_f32 v{Q+16*a_+8*rt+j}, v{b+2*j}, v{b+2*j+1}")
                k(f"buffer_store_dwordx4 {v(Q+16*a_+8*rt+4*sp,4)}, v{VL16}, s[24:27], s{sT1} offen offset:{1024*sp} sc1", token="PST")
    k(f"v_or3_b32 v{STT}, v{STT}, v{STT+1}, v{STT+2}"); k(f"v_or_b32 v{STT}, v{STT}, v{STT+3}")
    k(f"v_readfirstlane_b32 s{sT2}, v{STT}")
    k(f"s_andn2_b32 s{sT2}, s{sT2}, s{sFB}"); k("s_cbranch_scc1 FALLBACK")
    tail(sys.modules[__name__], k)
    stamp_flush(k, 0)
    k.label("END_attn"); k("s_endpgm")
    k.label("FALLBACK")
    k.wait_all(); k("s_barrier")
    k(f"s_mov_b32 s{sFB}, 1")
    k("s_nop 15")
    k("s_branch RESTART")
    k.label("FB_MAX")
    k.wait_all(); k("s_barrier")
    k(f"v_mov_b32 v{MX+4}, 0xff800000"); k(f"v_mov_b32 v{MX+5}, 0xff800000")
    def fbody():
        put(k, kv_dma("K", L_K, sO0) + nxt(sO0, sO0)); k.wait("K"); k("s_barrier")
        for s_ in range(8): put(k, rdK(s_, s_, L_K))
        for s_ in range(8):
            for qt in range(2): k(qk(s_, s_, qt, 0, True))
        put(k, maxops(0, MX))
        k(f"v_max_f32 v{MX+4}, v{MX+4}, v{MX}"); k(f"v_max_f32 v{MX+5}, v{MX+5}, v{MX+1}")
        k("s_barrier")
    k.loop(sST, 16, fbody)
    put(k, xhalf_max(MX + 4, MX + 2))
    for qt in range(2): k(f"v_sub_f32 v{MX+4+qt}, 0, v{MX+4+qt}")
    put(k, kfirst)
    k.wait_all(); k("s_barrier")
    for f in range(4): put(k, rdK(f, f, L_K + 16384 + 8192))
    qk0(False)
    k.wait_all()
    k("s_branch IT0")
    return k

from gen12_tail import tail

HEADER = open('adaLN_cond__sliding_block_cached__geglu_ffn__prompt.s.ref').read().split("; Override launch")[0]

if __name__ == "__main__":
    out = sys.argv[1] if len(sys.argv) > 1 else "k.s"
    me = sys.modules[__name__]
    ks = [gen_attn()]
    ks[-1].label("CODE_END")
    txt = emit(ks, header=HEADER)
    if P.get("SINGLE"): txt = txt.replace("; @launch kernel=" + KNAME + " ", "; @launch ")
    open(out, "w").write(txt)
    json.dump([[k.name, k.grid, k.block//64, k.stamps] for k in ks], open(out[:-2]+".json","w"))
    for k in ks: print(k.name, "regs(v,a,s)", k.used, "nops", k.n_nops, "misal", k.n_mis, "instrs", len(k.items))
```

```python
import sys, struct, math, os, json
from asmlib import *

def f32(x): return "0x%08x" % struct.unpack("<I", struct.pack("<f", x))[0]
LOG2E = 1.4426950408889634
CS = 128 ** -0.5
A_X, A_K, A_V, A_WQ, A_WO, B_X, A_WG, A_WU, A_WD, A_C, A_WM, A_OUT, A_DBG, A_WS = [8 * i for i in range(14)]
WS_MOD = 0x0
WS_GO = 0x18000
WS_FL = 0x20000
WS_ST = 0x10000
WS_P = 0x400000
WS_X1 = 0x1400000
WS_H2 = 0x1600000
WS_ACT = 0x1800000
WS_BYTES = 0x10000000
WS_DBG = 0x8000000
P = dict(STAMPS=0, G=2, ROT=1, F1R=8, F2R=8, PREF0=1, PREFC=1, PREFQ=1, PREFK=1, PORD=1, XPRE=0, TLBW=1, PBAR=3, WPOS=1, DEFER=1, SYNC=1, LFIRST=0, SLEEP=2, OSC=1, SLEEP2=4, FW1=10, FW2=20, F2PRE=12, N0=4, QP0=10, QBURST=1, TW1=3, TW2=5, HPRE=3, PSYS=0, WPRE=2, BURST=54, KEARLY=0, BIAS=100, FORCE_FB=0, PNT=0, PST=2, AST=2, PF1=1, PF2=1)
for kv in os.environ.get("GP", "").split(","):
    if kv: P[kv.split("=")[0]] = int(kv.split("=")[1])

def stamp(k, name):
    if not P["STAMPS"]: return
    SETS = {0: ("start", "mod", "qgemm", "it0", "it1-6", "owrite", "ogemm", "t_set", "end"), 1: ("start", "gemv", "stats", "poll", "mod", "qgemm", "end"),
            3: ("start", "t_set", "poll1", "x1", "poll2", "ffn1", "pub3", "poll3", "end"), 4: ("start", "mod", "q0", "q1", "q2", "qgemm", "end"), 5: ("start", "owrite", "q0o", "q1o", "q2o", "ogemm", "end")}
    if name not in SETS[P.get("DG", 0)]: return
    i = len(k.stamps); k.stamps.append(name)
    assert i < 9
    k.sgpr = 102
    k("s_memtime s[64:65]"); k("s_memrealtime s[66:67]"); k("s_waitcnt lgkmcnt(0)")
    k(f"s_mov_b32 s{82+2*i}, s64"); k(f"s_mov_b32 s{83+2*i}, s66")
def stamp_begin(k):
    k.stamps = []
    if not P["STAMPS"]: return
    k("v_lshrrev_b32 v1, 6, v0"); k("v_readfirstlane_b32 s101, v1")
    stamp(k, "start")
def stamp_flush(k, kidx):
    if not P["STAMPS"]: return
    stamp(k, "end")
    if P["STAMPS"] == 2:
        lab = k.newlabel("NODBG")
        k("s_mov_b64 exec, -1")
        k(f"s_xor_b32 s100, s2, {P.get('DWG', 200)}"); k("s_or_b32 s100, s100, s101"); k("s_cmp_lg_u32 s100, 0"); k(f"s_cbranch_scc1 {lab}")
        k(f"s_load_dwordx2 s[66:67], s[0:1], {A_DBG}")
        k.srd(60, 66, 256)
        k("v_mov_b32 v1, 0")
        n = len(k.stamps)
        for j in range(1, n):
            k(f"s_sub_u32 s100, s{77+2*j}, s77"); k("v_mov_b32 v0, s100")
            k(f"buffer_store_dword v0, v1, s[60:63], 0 offen offset:{4*j}")
        k(f"s_sub_u32 s100, s{76+2*(n-1)}, s76"); k("v_mov_b32 v0, s100")
        k(f"buffer_store_dword v0, v1, s[60:63], 0 offen offset:{4*n}")
        k.label(lab)
        return
    k(f"s_load_dwordx2 s[64:65], s[0:1], {A_WS}")
    k("s_mov_b64 exec, -1")
    k.srd(56, 64, WS_BYTES)
    k("s_lshl_b32 s100, s2, 3"); k("s_add_u32 s100, s100, s101"); k("s_lshl_b32 s100, s100, 8")
    k(f"s_add_u32 s100, s100, {WS_DBG + kidx*0x100000:#x}")
    k("v_mov_b32 v1, 0")
    for j, sr in enumerate([82 + i for i in range(2*len(k.stamps))]):
        k(f"v_mov_b32 v0, s{sr}")
        k(f"buffer_store_dword v0, v1, s[56:59], s100 offen offset:{4*j}")

def wave_id(k, sdst, vtmp):
    k(f"v_lshrrev_b32 v{vtmp}, 6, v0")
    k(f"v_readfirstlane_b32 s{sdst}, v{vtmp}")
def rowsum_8(k, val, tmp):
    k(f"v_add_f32_dpp v{val}, v{val}, v{val} row_ror:8 row_mask:0xf bank_mask:0xf")
    k(f"v_mov_b32 v{tmp}, v{val}"); k(f"v_permlane16_swap_b32 v{val}, v{tmp}"); k(f"v_add_f32 v{val}, v{val}, v{tmp}")
    k(f"v_mov_b32 v{tmp}, v{val}"); k(f"v_permlane32_swap_b32 v{val}, v{tmp}"); k(f"v_add_f32 v{val}, v{val}, v{tmp}")
def rnd(k, d, sreg): k(f"v_cvt_pk_bf16_f32 v{d}, 0, v{sreg}")
def lg2(x): return x.bit_length() - 1
def split2(k, sb, sA, sB, nA_per, nB_total, t0, t1):
    A_total = 256 // nB_total; NA = A_total // nA_per
    k(f"s_and_b32 s{t0}, s{sb}, 7"); k(f"s_lshr_b32 s{t1}, s{sb}, 3")
    k(f"s_and_b32 s{sA}, s{t0}, {NA-1}"); k(f"s_lshl_b32 s{sA}, s{sA}, {lg2(nA_per)}")
    k(f"s_and_b32 s{sB}, s{t1}, {nA_per-1}"); k(f"s_add_u32 s{sA}, s{sA}, s{sB}")
    k(f"s_lshr_b32 s{sB}, s{t0}, {lg2(NA)}"); k(f"s_lshl_b32 s{sB}, s{sB}, {lg2(32//nA_per)}")
    k(f"s_lshr_b32 s{t1}, s{t1}, {lg2(nA_per)}"); k(f"s_add_u32 s{sB}, s{sB}, s{t1}")
def lane_tr_parts(k, lane, r, c2, gn, h, tmp):
    k(f"v_bfe_u32 v{r}, v{lane}, 2, 2")
    k(f"v_and_b32 v{c2}, 1, v{lane}"); k(f"v_lshlrev_b32 v{c2}, 1, v{c2}")
    k(f"v_bfe_u32 v{tmp}, v{lane}, 1, 1"); k(f"v_or_b32 v{c2}, v{c2}, v{tmp}")
    k(f"v_bfe_u32 v{gn}, v{lane}, 4, 1")
    k(f"v_lshrrev_b32 v{h}, 5, v{lane}")

QS = CS * LOG2E
KNAME = "adaLN_cond__sliding_block_cached__geglu_ffn__prompt_kernel"
def ln_stats(k, XF):
    k(f"v_pk_add_f32 v[10:11], {v(XF,2)}, {v(XF+2,2)}")
    for e in range(4, 16, 2): k(f"v_pk_add_f32 v[10:11], v[10:11], {v(XF+e,2)}")
    k("v_add_f32 v10, v10, v11")
    def allreduce(off):
        rowsum_8(k, 10, 11)
        k(f"ds_write_b32 v9, v10 offset:{off}", token="w"); k.wait("w"); k("s_barrier")
        k(f"ds_read_b128 {v(12,4)}, v8 offset:{off}")
        k("v_add_f32 v12, v12, v13"); k("v_add_f32 v14, v14, v15"); k("v_add_f32 v10, v12, v14")
    allreduce(0)
    k(f"v_mul_f32 v58, {f32(-1/512)}, v10"); k("v_mov_b32 v59, v58")
    for e in range(0, 16, 2): k(f"v_pk_add_f32 {v(XF+e,2)}, {v(XF+e,2)}, v[58:59]")
    k(f"v_pk_mul_f32 v[10:11], {v(XF,2)}, {v(XF,2)}")
    for e in range(2, 16, 2): k(f"v_pk_fma_f32 v[10:11], {v(XF+e,2)}, {v(XF+e,2)}, v[10:11]")
    k("v_add_f32 v10, v10, v11")
    allreduce(128)
    k(f"v_mov_b32 v11, {f32(1e-5)}"); k(f"v_fmac_f32 v11, {f32(1/512)}, v10")
    k("v_rsq_f32 v56, v11"); k("v_mov_b32 v57, v56")

def gen_ln2():
    k = Kernel("ln2_kernel", 256, 256, 256, vgpr=160, sgpr=64)
    k("s_cmp_ge_u32 s2, 256"); k("s_cbranch_scc1 END_ln2")
    stamp_begin(k)
    k(f"s_load_dwordx2 s[4:5], s[0:1], {A_X}")
    k(f"s_load_dwordx2 s[6:7], s[0:1], {A_WS}")
    k("v_and_b32 v1, 7, v0"); k("v_lshrrev_b32 v2, 3, v0"); k("v_lshrrev_b32 v6, 6, v0")
    k("v_and_b32 v7, 7, v2"); k("v_lshl_add_u32 v7, v6, 4, v7")
    k("v_lshlrev_b32 v3, 9, v7"); k("v_lshl_add_u32 v3, v1, 4, v3")
    k("v_add_u32 v2, 4096, v3")
    k("v_lshlrev_b32 v4, 10, v1"); k("v_lshl_add_u32 v4, v7, 4, v4")
    k("v_lshlrev_b32 v5, 5, v7")
    k("v_lshlrev_b32 v8, 4, v1"); k("v_lshl_add_u32 v9, v6, 2, v8")
    k("s_and_b32 s25, s2, 7"); k("s_lshl_b32 s25, s25, 5"); k("s_lshr_b32 s26, s2, 3"); k("s_add_u32 s25, s25, s26")
    k("s_lshl_b32 s20, s25, 13")
    k("s_lshr_b32 s21, s25, 2"); k("s_lshl_b32 s21, s21, 15"); k("s_and_b32 s22, s25, 3"); k("s_lshl_b32 s22, s22, 7")
    k("s_add_u32 s21, s21, s22")
    k(f"s_add_u32 s23, s21, {WS_P:#x}")
    k.srd(12, 6, WS_BYTES)
    X = 16; XF = 24; MV = 40; PB = 64
    for g in range(8):
        for i in range(2):
            k(f"buffer_load_dwordx4 {v(PB+8*g+4*i,4)}, v{3-i}, s[12:15], s23 offen" + (" nt" if P["PNT"] else ""))
        if g < 7: k("s_add_u32 s23, s23, 0x200000")
    k.srd(8, 4, 2048 * 1024)
    for i in range(2): k(f"buffer_load_dwordx4 {v(X+4*i,4)}, v4, s[8:11], s20 offen offset:{128*i}")
    k("v_mov_b32 v10, 0"); k("s_lshl_b32 s27, s2, 7"); k(f"s_add_u32 s27, s27, {WS_FL:#x}")
    k("buffer_store_dword v10, v10, s[12:15], s27 offen sc1")
    k("s_mov_b32 s24, 0xffff0000")
    def load_mod(base, m):
        k(f"s_mov_b32 s23, {WS_MOD + m*2048}")
        for i in range(2):
            for hh in range(2):
                k(f"buffer_load_dwordx4 {v(base+8*i+4*hh,4)}, v5, s[12:15], s23 offen offset:{256*i+16*hh}")
    def unpack(dst, src):
        k(f"v_lshlrev_b32 v{dst}, 16, v{src}"); k(f"v_and_b32 v{dst+1}, s24, v{src}")
    load_mod(MV, 2); load_mod(128, 4); load_mod(144, 3)
    for q in range(8): unpack(XF + 2 * q, PB + q)
    for g in range(1, 8):
        for q in range(8):
            unpack(10 + 2 * (q & 1), PB + 8 * g + q)
            k(f"v_pk_add_f32 {v(XF+2*q,2)}, {v(XF+2*q,2)}, {v(10+2*(q&1),2)}")
    for q in range(8):
        unpack(10, X + q)
        k(f"v_pk_fma_f32 v[10:11], {v(XF+2*q,2)}, {v(MV+2*q,2)}, v[10:11]")
        k(f"v_cvt_pk_bf16_f32 v{X+q}, v10, v11")
        unpack(XF + 2 * q, X + q)
    k(f"s_add_u32 s23, s21, {WS_X1:#x}")
    for i in range(2): k(f"buffer_store_dwordx4 {v(X+4*i,4)}, v{3-i}, s[12:15], s23 offen sc1")
    stamp(k, "x1")
    ln_stats(k, XF)
    stamp(k, "stats")
    for e in range(0, 16, 2):
        k(f"v_pk_mul_f32 {v(XF+e,2)}, {v(XF+e,2)}, v[56:57]")
        k(f"v_pk_fma_f32 {v(XF+e,2)}, {v(XF+e,2)}, {v(128+e,2)}, {v(144+e,2)}")
        k(f"v_cvt_pk_bf16_f32 v{MV+e//2}, v{XF+e}, v{XF+e+1}")
    k(f"s_add_u32 s23, s21, {WS_H2:#x}")
    for i in range(2): k(f"buffer_store_dwordx4 {v(MV+4*i,4)}, v{3-i}, s[12:15], s23 offen sc1")
    stamp_flush(k, 1)
    k.label("END_ln2"); k("s_endpgm")
    return k

def put(k, seq):
    for x in seq:
        if isinstance(x, list): put(k, x)
        elif callable(x): x()
        else: k(x)

def gen_attn():
    k = Kernel(KNAME, 256, 256, 163840, vgpr=256, agpr=256, sgpr=82)
    k.denorm32 = P.get("DEN", 3)
    L_K, L_H, L_V, L_W, L_M = 0, 32768, 32768, 98304, 16384
    ACC = 0; S = 0; CI = 64; Q = 128
    VK = 192; VV = 200; VW = 204; VDW = 208; VDK = 212; VDV = 214; VLIN = 215; VL16 = 216
    LS = 217; VLO = 219
    T = 220
    LN_, ROWL, GR16 = T, T + 1, T + 2
    r_, c2, gn, h_, tm = T + 3, T + 4, T + 5, T + 6, T + 7
    CH8 = T + 10; HW = T + 11
    VX = T + 13; VM = T + 15
    MX = T + 16
    STT = T + 24
    RL = T + 28; UT = T + 28
    O = 0; FR = 128; AF = 128; BF = 160
    sW, sG, sRB, sT0, sT1, sRING, sST, sFB, sROT, sT2 = 28, 29, 30, 32, 33, 34, 35, 39, 50, 51
    sE0, sE1, sE2 = 61, 62, 63
    sO0, sO1, sO2, sW2K, sW256, sKhi, sMASK, sCC, sR8 = 36, 37, 38, 52, 54, 55, 58, 59, 6
    TAB = 72
    def L(f, cost=4, mem=False):
        f.cost = cost; f.mem = mem; return f
    k("s_cmp_ge_u32 s2, 256"); k("s_cbranch_scc1 END_attn")
    stamp_begin(k)
    k(f"s_mov_b32 s{sFB}, 0")
    if P["PREFC"]:
        k("s_getpc_b64 s[56:57]")
        k.label("PCREF")
        k(f"s_lshr_b32 s{sT1}, s2, 3"); k(f"s_lshl_b32 s{sT1}, s{sT1}, 12")
        k("v_lshlrev_b32 v108, 4, v0"); k(f"v_add_u32 v108, s{sT1}, v108"); k("v_min_u32 v108, CODE_END-PCREF-16, v108")
        k("global_load_dwordx4 a[252:255], v108, s[56:57]")
    wave_id(k, sW, T)
    k(f"v_and_b32 v{LN_}, 63, v0")
    k.label("RESTART")
    k(f"s_load_dwordx4 s[8:11], s[0:1], {A_C}")
    k(f"s_load_dwordx2 s[4:5], s[0:1], {A_X}")
    k(f"s_load_dwordx4 s[68:71], s[0:1], {A_DBG}")
    k(f"s_load_dwordx8 s[40:47], s[0:1], {A_K}")
    L_R = L_M + 4096
    PSC = "sc1"
    GW, GC, GA = 64, 80, 88
    k(f"v_lshl_add_u32 v99, s{sW}, 6, v{LN_}")
    k("v_and_b32 v100, 1, v99"); k("v_lshrrev_b32 v101, 1, v99")
    k("v_mul_u32_u24 v102, 6144, v101"); k("v_lshl_add_u32 v102, v100, 4, v102"); k("v_lshlrev_b32 v103, 1, v101")
    k("v_lshrrev_b32 v104, 4, v99"); k("v_lshlrev_b32 v104, 6, v104"); k("v_lshl_add_u32 v104, v100, 5, v104")
    sSL = 7; sPR = 53
    k(f"s_and_b32 s{sT0}, s2, 7"); k(f"s_lshr_b32 s{sT1}, s2, 3")
    k(f"s_lshl_b32 s{sSL}, s{sT0}, 3"); k(f"s_add_u32 s{sSL}, s{sSL}, s{sT1}")
    k(f"s_lshl_b32 s{sT2}, s{sT0}, 4"); k(f"s_add_u32 s{sT2}, s{sT2}, s{sT1}"); k(f"s_add_u32 s{sT2}, s{sT2}, 56")
    k("s_cmp_lt_u32 s2, 64"); k(f"s_cselect_b32 s{sSL}, s{sSL}, s{sT2}")
    k(f"s_cselect_b32 s{sPR}, s{sFB}, 1")
    k(f"s_lshl_b32 s31, s{sSL}, 5")
    k(f"v_lshlrev_b32 v{VL16}, 4, v{LN_}")
    G = P["G"]
    NG = 8 // G; NS = 32 // G
    k(f"s_and_b32 s{sG}, s2, {NG-1}"); k(f"s_lshl_b32 s{sG}, s{sG}, {lg2(G)}"); k(f"s_lshr_b32 s{sT0}, s2, {3+lg2(NS)}"); k(f"s_add_u32 s{sG}, s{sG}, s{sT0}")
    k(f"s_bfe_u32 s{sROT}, s2, {3 | (lg2(NS) << 16):#x}")
    k(f"s_and_b32 s{sRB}, s2, 7"); k(f"s_lshr_b32 s{sRB}, s{sRB}, {lg2(NG)}"); k(f"s_lshl_b32 s{sRB}, s{sRB}, {lg2(NS)}"); k(f"s_add_u32 s{sRB}, s{sRB}, s{sROT}")
    k(f"s_lshl_b32 s{sROT}, s{sROT}, {lg2(G)}")
    k(f"s_and_b32 s{sR8}, s{sROT}, 7"); k(f"s_lshr_b32 s{sCC}, s{sROT}, 3")
    RR, CGL = tm, tm + 1
    k(f"v_bfe_u32 v{RR}, v{LN_}, 2, 3")
    k(f"v_lshrrev_b32 v{CGL}, 5, v{LN_}"); k(f"v_lshlrev_b32 v{CGL}, 2, v{CGL}"); k(f"v_and_or_b32 v{CGL}, v{LN_}, 3, v{CGL}")
    k(f"v_lshlrev_b32 v{VX}, 10, v{RR}"); k(f"v_lshl_add_u32 v{VX}, v{CGL}, 4, v{VX}"); k(f"v_add_u32 v{VX+1}, 8192, v{VX}")
    k(f"s_lshl_b32 s3, s{sRB}, 16"); k(f"s_lshl_b32 s{sT2}, s{sW}, 14"); k(f"s_add_u32 s3, s3, s{sT2}")
    XR = [0, 128, 144, 160]; CN = 176
    XS = [48, 49, 56, 57]
    for c in range(4):
        put(k, [f"s_add_u32 s{XS[c]}, s{sCC}, {c}", f"s_and_b32 s{XS[c]}, s{XS[c]}, 3", f"s_lshl_b32 s{XS[c]}, s{XS[c]}, 8", f"s_add_u32 s{XS[c]}, s{XS[c]}, s3"])
    xl = [f"buffer_load_dwordx4 {v(XR[c]+8*cb+4*oo,4)}, v{VX+oo}, s[16:19], s{XS[c]} offen offset:{128*cb}" for oo in range(2) for c in range(4) for cb in range(2)]
    k.srd(12, 10, 512 * 6144); k.srd(20, 8, 1024); k.srd(16, 4, 2048 * 1024)
    def gemv_loads():
        k(f"s_mov_b32 s{sT0}, s31")
        for i in range(4):
            k(f"buffer_load_dwordx4 {v(GW+4*i,4)}, v102, s[12:15], s{sT0} offen")
            if i < 3: k(f"s_add_u32 s{sT0}, s{sT0}, {128*6144}")
    for i in range(4): k(f"buffer_load_ushort v{GC+i}, v103, s[20:23], 0 offen offset:{256*i}")
    k.srd(24, 70, WS_BYTES)
    k(f"s_lshl_b32 s{sE2}, s{sW}, 11"); k(f"s_add_u32 s{sE2}, s{sE2}, {WS_GO:#x}")
    for i in range(2): k(f"buffer_load_dwordx4 {v(MX+4*i,4)}, v{VL16}, s[24:27], s{sE2} offen offset:{1024*i} sc1")
    k(f"v_lshlrev_b32 v109, 3, v{LN_}"); k(f"s_lshl_b32 s{sE1}, s{sSL}, 7"); k(f"s_add_u32 s{sE1}, s{sE1}, {WS_GO:#x}")
    k(f"buffer_load_dword v110, v109, s[24:27], s{sE1} offen offset:4 sc1")
    k(f"s_xor_b32 s{sE0}, s{sW}, 3"); k(f"s_or_b32 s{sE0}, s{sE0}, s{sFB}")
    k(f"s_cmp_lg_u32 s{sE0}, 0"); k("s_cbranch_scc1 NOZERO")
    k(f"v_lshlrev_b32 v111, 15, v{LN_}"); k("v_mov_b32 v107, 0"); k(f"s_lshl_b32 s{sT0}, s2, 7"); k(f"s_add_u32 s{sT0}, s{sT0}, {WS_FL:#x}")
    k("s_mov_b64 exec, 7")
    k(f"buffer_store_dword v107, v111, s[24:27], s{sT0} offen sc1")
    k("s_mov_b64 exec, -1")
    k.label("NOZERO")
    k.vm = {kk: max(p - 1, 0) for kk, p in k.vm.items()}
    k(f"s_cmp_eq_u32 s{sPR}, 0"); k("s_cbranch_scc1 PLOAD")
    s_a = (dict(k.vm), dict(k.lg))
    put(k, xl)
    s_b = dict(k.vm)
    k("s_branch PJOIN")
    k.label("PLOAD")
    k.vm = dict(s_a[0])
    gemv_loads()
    k.label("PJOIN")
    k.vm = k._merge(k.vm, s_b)
    k(f"s_lshl_b32 s{sW256}, s{sW}, 8"); k(f"s_lshl_b32 s{sW2K}, s{sW}, 11")
    k(f"v_lshrrev_b32 v{ROWL}, 4, v{LN_}")
    k(f"v_and_b32 v{r_}, 15, v{LN_}"); k(f"v_lshlrev_b32 v{GR16}, 2, v{ROWL}"); k(f"v_xor_b32 v{GR16}, v{GR16}, v{r_}")
    k(f"v_lshlrev_b32 v{GR16}, 4, v{GR16}")
    def w_voffs(psh, scol):
        return [f"v_lshl_add_u32 v{VDW}, v{ROWL}, {psh}, v{GR16}", f"v_add_u32 v{VDW}, s{scol}, v{VDW}"] + \
               [f"v_add_u32 v{VDW+n}, {n*((4<<psh)-1024)}, v{VDW}" for n in range(1, 4)]
    k(f"s_lshl_b32 s{sT0}, s{sG}, 10"); k(f"s_add_u32 s{sT0}, s{sT0}, s{sW256}")
    put(k, w_voffs(13, sT0))
    k(f"s_lshl_b32 s{sRING}, s{sW}, 14"); k(f"s_add_u32 s{sRING}, s{sRING}, {L_W}")
    for p in range(8):
        k(f"s_add_u32 s{TAB+p}, s{sR8}, {p}"); k(f"s_and_b32 s{TAB+p}, s{TAB+p}, 7"); k(f"s_lshl_b32 s{TAB+p}, s{TAB+p}, 17")
    k(f"s_lshl_b32 s{sKhi}, s{sCC}, 20")
    k.srd(8, 44, 512 * 8192)
    def w_dma(step, which):
        slot = step % 4
        if which == "Q":
            srd = 8
            pre = [f"s_add_u32 s{sT0}, s{sKhi}, s{TAB+step%8}"]
            adv = [[f"s_add_u32 s{sKhi}, s{sKhi}, 0x100000", f"s_and_b32 s{sKhi}, s{sKhi}, 0x3fffff"]] if step % 8 == 7 else []
        else:
            srd = 20
            pre = [f"s_add_u32 s{sT0}, s{TAB+step%8}, {(2*(step//8))<<14}"]
            adv = []
        o = [pre + [f"s_add_u32 m0, s{sRING}, {4096*slot}"]] + adv + [f"buffer_load_dwordx4 v{VDW}, s[{srd}:{srd+3}], s{sT0} offen lds"]
        for n in range(1, 4):
            o.append(L(lambda n=n: k(f"buffer_load_dwordx4 v{VDW+n}, s[{srd}:{srd+3}], s{sT0} offen offset:{1024*n} lds", token=f"W{slot}"), 10, "v"))
        return o
    k(f"v_lshrrev_b32 v{r_}, 1, v{CGL}"); k(f"v_subrev_u32 v{r_}, s{sR8}, v{r_}")
    k(f"v_and_b32 v{c2}, 1, v{CGL}"); k(f"v_and_b32 v{gn}, 1, v{r_}"); k(f"v_lshl_add_u32 v{gn}, v{gn}, 1, v{c2}"); k(f"v_lshlrev_b32 v{gn}, 1, v{gn}")
    k(f"v_xor_b32 v{gn}, v{gn}, v{RR}")
    k(f"v_lshlrev_b32 v{c2}, 9, v{c2}"); k(f"v_lshl_add_u32 v{c2}, v{gn}, 4, v{c2}")
    k(f"s_lshr_b32 s{sT1}, s{sW}, 1"); k(f"s_lshl_b32 s{sT1}, s{sT1}, 15"); k(f"s_and_b32 s{sT2}, s{sW}, 1"); k(f"s_lshl_b32 s{sT2}, s{sT2}, 8")
    k(f"s_add_u32 s{sT1}, s{sT1}, s{sT2}"); k(f"s_add_u32 s{sT1}, s{sT1}, {L_H}"); k(f"v_add_u32 v{c2}, s{sT1}, v{c2}")
    for cb in range(2):
        k(f"v_add_u32 v{gn}, {4*cb}, v{r_}"); k(f"v_and_b32 v{gn}, 7, v{gn}"); k(f"v_lshl_add_u32 v{HW+cb}, v{gn}, 10, v{c2}")
    k(f"s_lshl_b32 s{sT2}, s{sCC}, 9"); k(f"v_lshlrev_b32 v{VM}, 5, v{CGL}"); k(f"v_add_u32 v{VM}, s{sT2}, v{VM}")
    lane_tr_parts(k, LN_, r_, c2, gn, h_, tm)
    k(f"v_lshl_add_u32 v{CH8}, v{gn}, 2, v{c2}"); k(f"v_lshlrev_b32 v{CH8}, 3, v{CH8}")
    k(f"v_lshl_add_u32 v{tm}, v{h_}, 3, v{r_}"); k(f"v_lshl_add_u32 v{tm}, v{tm}, 8, v{CH8}"); k(f"v_add_u32 v{tm}, s{sRING}, v{tm}")
    for a_ in range(4):
        k(f"v_xor_b32 v{tm+1}, {a_}, v{r_}"); k(f"v_lshl_add_u32 v{VW+a_}, v{tm+1}, 6, v{tm}")
    put(k, [f"v_lshl_add_u32 v{tm}, v{h_}, 2, v{r_}", f"v_lshl_add_u32 v{tm}, v{tm}, 8, v{CH8}", f"v_add_u32 v{tm}, {L_V}, v{tm}"])
    for dt in range(4): put(k, [f"v_xor_b32 v{tm+1}, {dt}, v{r_}", f"v_lshl_add_u32 v{VV+dt}, v{tm+1}, 6, v{tm}"])
    put(k, [f"v_and_b32 v{tm}, 31, v{LN_}", f"v_and_b32 v{tm+1}, 15, v{LN_}", f"v_xor_b32 v{tm+1}, v{tm+1}, v{h_}",
            f"v_lshlrev_b32 v{tm}, 8, v{tm}", f"v_lshl_add_u32 v{VK}, v{tm+1}, 4, v{tm}"])
    put(k, [f"v_xor_b32 v{VK+s_}, {s_*32}, v{VK}" for s_ in range(1, 8)])
    put(k, [f"v_mov_b32 v{LS}, 0", f"v_mov_b32 v{LS+1}, 0",
        f"v_lshl_add_u32 v{VDV}, v{ROWL}, 8, v{GR16}", f"s_and_b32 s{sT1}, s{sW}, 1", f"s_lshl_b32 s{sT1}, s{sT1}, 3",
        f"v_or_b32 v{tm}, s{sT1}, v{ROWL}", f"v_and_b32 v{tm+1}, 15, v{LN_}", f"v_xor_b32 v{tm}, v{tm}, v{tm+1}",
        f"v_lshlrev_b32 v{VDK}, 8, v{ROWL}", f"v_lshl_add_u32 v{VDK}, v{tm}, 4, v{VDK}", f"v_xor_b32 v{VDK+1}, 64, v{VDK}",
        f"s_lshl_b32 s{sT1}, s{sG}, 19", f"s_add_u32 s{sT1}, s{sT1}, s{sW2K}", f"s_add_u32 s{sT1}, s{sT1}, {1536*256}",
        f"v_add_u32 v{VDK}, s{sT1}, v{VDK}", f"v_add_u32 v{VDK+1}, s{sT1}, v{VDK+1}", f"v_add_u32 v{VDV}, s{sT1}, v{VDV}",
        f"v_lshlrev_b32 v{tm}, 5, v{h_}", f"v_xor_b32 v{VLIN}, v{tm}, v{VL16}", f"v_add_u32 v{VLIN}, {L_H}, v{VLIN}", f"v_xor_b32 v{VLO}, 64, v{VLIN}",
        f"s_mov_b32 s{sMASK}, 0xffff0000"])
    def nxt(d, s_): return [f"s_add_u32 s{d}, s{s_}, 8192", f"s_and_b32 s{d}, s{d}, 0x1ffff"]
    def kv_dma(which, lds_off, so):
        srd = 12 if which == "K" else 16
        return [f"s_add_u32 m0, s{sW2K}, {lds_off}", f"buffer_load_dwordx4 v{VDK if which=='K' else VDV}, s[{srd}:{srd+3}], s{so} offen lds",
                L(lambda: k(f"buffer_load_dwordx4 v{VDK+1 if which=='K' else VDV}, s[{srd}:{srd+3}], s{so} offen offset:1024 lds", token=which), 10, "v")]
    kinit = [[f"s_lshr_b32 s{sO0}, s{sROT}, 1", f"s_lshl_b32 s{sO0}, s{sO0}, 13"] + nxt(sO1, sO0) + nxt(sO2, sO1)]
    kfirst = [kv_dma("K", L_K + 16384 + 8192, sO0), kv_dma("K", L_K, sO1), kv_dma("K", L_K + 8192, sO2)]
    k.srd(20, 68, 256)
    def gemv_compute(lo, hi, tag, late):
        k(f"s_sub_u32 s{sT0}, s2, {lo}"); k(f"s_cmp_ge_u32 s{sT0}, {hi-lo}"); k(f"s_cselect_b32 s{sT0}, 1, s{sFB}"); k(f"s_cmp_lg_u32 s{sT0}, 0"); k("s_cbranch_scc1 NOGEMV" + tag)
        st0 = (dict(k.vm), dict(k.lg))
        D = P.get("DG") == 1 and not late
        if D: stamp(k, "g_in"); k.wait_regs(v(GW, 20)); stamp(k, "g_data")
        k(f"s_mov_b32 s{sT1}, {f32(-LOG2E)}")
        for i in range(4): k(f"v_lshlrev_b32 v{GC+i}, 16, v{GC+i}")
        for i in range(4): k(f"v_mul_f32 v{GA+i}, s{sT1}, v{GC+i}")
        for i in range(4): k(f"v_exp_f32 v{GA+i}, v{GA+i}")
        for i in range(4): k(f"v_add_f32 v{GA+i}, 1.0, v{GA+i}")
        for i in range(4): k(f"v_rcp_f32 v{GA+i}, v{GA+i}")
        for i in range(4): k(f"v_mul_f32 v{GC+i}, v{GC+i}, v{GA+i}")
        for i in range(4): rnd(k, 112 + 2 * i, GC + i)
        for i in range(4):
            for q in range(4):
                r = GW + 4 * i + q; u = 120 + 2 * (q & 1)
                k(f"v_lshlrev_b32 v{u}, 16, v{r}"); k(f"v_and_b32 v{u+1}, s{sMASK}, v{r}")
                if i == 0: k(f"v_pk_mul_f32 {v(GA+2*q,2)}, {v(u,2)}, {v(112+2*i,2)} op_sel_hi:[1,0]")
                else: k(f"v_pk_fma_f32 {v(GA+2*q,2)}, {v(u,2)}, {v(112+2*i,2)}, {v(GA+2*q,2)} op_sel_hi:[1,0,1]")
        for md in ("quad_perm:[2,3,0,1]", "row_ror:4", "row_ror:8"):
            for j in range(8): k(f"v_add_f32_dpp v{GA+j}, v{GA+j}, v{GA+j} {md} row_mask:0xf bank_mask:0xf")
        k(f"ds_write_b128 v104, {v(GA,4)} offset:{L_R}", token="w"); k(f"ds_write_b128 v104, {v(GA+4,4)} offset:{L_R+16}", token="w")
        k(f"v_lshlrev_b32 v105, 2, v{LN_}")
        k(f"s_lshr_b32 s{sT0}, s{sSL}, 5"); k(f"s_cmp_eq_u32 s{sT0}, 1"); k(f"s_cselect_b32 s{sT1}, 1.0, 0")
        k(f"s_cmp_eq_u32 s{sT0}, 4"); k(f"s_cselect_b32 s{sT1}, 1.0, s{sT1}")
        k(f"s_cmp_lt_u32 s{sT0}, 2"); k(f"s_cselect_b32 s{sT2}, {f32(QS)}, 1.0")
        k(f"s_lshl_b32 s{sT0}, s{sSL}, 6")
        k.wait("w"); k("s_barrier")
        k(f"s_cmp_lg_u32 s{sW}, 3"); k("s_cbranch_scc1 " + ("NOGEMV" + tag if late else "PWAIT"))
        for i in range(4): k(f"ds_read_b32 v{GA+i}, v105 offset:{L_R+256*i}")
        k(f"v_add_f32 v{GA}, v{GA}, v{GA+1}"); k(f"v_add_f32 v{GA+2}, v{GA+2}, v{GA+3}"); k(f"v_add_f32 v{GA}, v{GA}, v{GA+2}")
        k(f"v_mov_b32 v{GA+1}, v{GA}"); k(f"v_permlane16_swap_b32 v{GA}, v{GA+1}"); k(f"v_add_f32 v{GA}, v{GA}, v{GA+1}")
        k(f"v_mov_b32 v{GA+1}, v{GA}"); k(f"v_permlane32_swap_b32 v{GA}, v{GA+1}"); k(f"v_add_f32 v{GA}, v{GA}, v{GA+1}")
        rnd(k, GA, GA)
        k(f"v_add_f32 v{GA}, s{sT1}, v{GA}"); k(f"v_mul_f32 v{GA}, s{sT2}, v{GA}")
        if D: stamp(k, "g_red")
        k("s_mov_b64 exec, 0xffff")
        if not late:
            k(f"v_add_u32 v{GA+1}, 1, v110")
            k(f"buffer_store_dwordx2 {v(GA,2)}, v109, s[24:27], s{sE1} offen sc1")
            k("s_mov_b64 exec, -1")
            k.label("PWAIT")
            k("s_barrier")
            k.vm = {}
            put(k, xl)
            st0 = (k._merge(st0[0], k.vm), None)
        else:
            k(f"buffer_store_dword v{GA}, v105, s[24:27], s{sT0} offen sc1")
            k("s_mov_b64 exec, -1")
        k.label("NOGEMV" + tag)
        k.vm, k.lg = dict(st0[0]), {}
    gemv_compute(0, 64, "A", False)
    stamp(k, "gemv")
    k("s_mov_b32 s3, 0x3f803f80")
    ASET = {"Q": [AF, AF + 16], "O": [AF, AF + 16]}
    def aset(which, step): return ASET[which][step % len(ASET[which])]
    def a_reads(step, which="O"):
        slot = step % 4; b_ = aset(which, step)
        rd = [f"ds_read_b64_tr_b16 {a(b_+4*a_+2*u,2)}, v{VW+a_} offset:{4096*slot+1024*u}" for a_ in range(4) for u in range(2)]
        return [[L(lambda: k.wait(f"W{slot}")), rd[0]]] + rd[1:]
    N0 = P["N0"]
    if P.get("DG") == 2: stamp(k, "iss"); k.wait_regs(v(0, 16), v(128, 48)); stamp(k, "xarr")
    for oo in range(2):
        src = [XR[c] + 8 * cb + 4 * oo + q for c in range(4) for cb in range(2) for q in range(4)]
        A_ = 16 + 8 * oo
        if oo == P["WPOS"]:
            if oo: k.wait_regs(*[f"v{x}" for x in src])
            def late_loads():
                k(f"s_sub_u32 s{sT0}, s2, 64"); k(f"s_cmp_ge_u32 s{sT0}, 128"); k("s_cbranch_scc1 NOLATE")
                s_c = dict(k.vm)
                gemv_loads()
                k.label("NOLATE")
                k.vm = k._merge(k.vm, s_c)
                k.srd(12, 40, 8 * 2048 * 256)
            if P["LFIRST"]: late_loads()
            put(k, [w_dma(s_, "Q") for s_ in range(P["WPRE"])])
            if not P["LFIRST"]: late_loads()
        for j, x in enumerate(src):
            k(f"v_dot2_f32_bf16 v{A_+(j&1)}, v{x}, s3, {'0' if j < 2 else 'v%d' % (A_+(j&1))}")
            k(f"v_dot2_f32_bf16 v{A_+2+(j&1)}, v{x}, v{x}, {'0' if j < 2 else 'v%d' % (A_+2+(j&1))}")
        k("s_nop 2")
        k(f"v_add_f32 v{A_}, v{A_}, v{A_+1}"); k(f"v_add_f32 v{A_+2}, v{A_+2}, v{A_+3}")
        for md in ("quad_perm:[1,0,3,2]", "quad_perm:[2,3,0,1]"):
            for x in (A_, A_ + 2): k(f"v_add_f32_dpp v{x}, v{x}, v{x} {md} row_mask:0xf bank_mask:0xf")
        for x in (A_, A_ + 2): k(f"v_mov_b32 v{x+1}, v{x}")
        for x in (A_, A_ + 2): k(f"v_permlane32_swap_b32 v{x}, v{x+1}")
        for x in (A_, A_ + 2): k(f"v_add_f32 v{x}, v{x}, v{x+1}")
        k(f"v_mul_f32 v{A_}, {f32(-1/512)}, v{A_}")
        k(f"v_mul_f32 v{A_+2}, {f32(1/512)}, v{A_+2}")
        k(f"v_fma_f32 v{A_+2}, -v{A_}, v{A_}, v{A_+2}"); k(f"v_max_f32 v{A_+2}, 0, v{A_+2}")
        k(f"v_add_f32 v{A_+2}, {f32(1e-5)}, v{A_+2}"); k(f"v_rsq_f32 v{STT+2*oo+1}, v{A_+2}")
        k(f"v_mul_f32 v{STT+2*oo}, v{A_}, v{STT+2*oo+1}")
    def cread(cb, dst):
        return [f"ds_read_b128 {v(dst+8*m_+4*q,4)}, v{VM} offset:{L_M+2048*(1-m_)+256*cb+16*q}" for m_ in range(2) for q in range(2)]
    vmadv = [[f"v_add_u32 v{VM}, 0x200, v{VM}", f"v_and_b32 v{VM}, 0x7ff, v{VM}"]]
    def modulate(c, cb, cn, U_, pk):
        o = []
        for oo in range(2):
            x = XR[c] + 8 * cb + 4 * oo; u = U_ + (8 * oo if pk else 0)
            for q in range(4): o += [f"v_lshlrev_b32 v{u+2*q}, 16, v{x+q}", f"v_and_b32 v{u+2*q+1}, s{sMASK}, v{x+q}"]
            if pk:
                st = v(STT + 2 * oo, 2)
                o += [f"v_pk_fma_f32 {v(u+2*q,2)}, {v(u+2*q,2)}, {st}, {st} op_sel:[0,1,0] op_sel_hi:[1,1,0]" for q in range(4)]
                if pk == "pre": continue
                if pk == "post": o = o[:-12]
                o += [f"v_pk_fma_f32 {v(u+2*q,2)}, {v(u+2*q,2)}, {v(cn+2*q,2)}, {v(cn+8+2*q,2)}" for q in range(4)]
            else:
                o += [f"v_fma_f32 v{u+e}, v{u+e}, v{STT+2*oo+1}, v{STT+2*oo}" for e in range(8)]
                o += [f"v_fma_f32 v{u+e}, v{u+e}, v{cn+e}, v{cn+8+e}" for e in range(8)]
            o += [f"v_cvt_pk_bf16_f32 v{x+q}, v{u+2*q}, v{u+2*q+1}" for q in range(4)]
            o.append(L(lambda x=x, cb=cb, oo=oo: k(f"ds_write_b128 v{HW+cb}, {v(x,4)} offset:{8192*c+128*oo}", token="hw"), 22, "d"))
        return o
    put(k, modulate(0, 0, 16, 32, "pre") + modulate(0, 1, 32, 48, "pre"))
    if P.get("DG") == 2: stamp(k, "st+pre")
    gemv_compute(64, 192, "B", True)
    put(k, kinit)
    if P["KEARLY"]:
        put(k, kfirst)
        k.srd(16, 42, 8 * 2048 * 256)
        k(f"s_lshl_b32 s{sT1}, s{sROT}, 12"); k(f"s_lshl_b32 s{sT2}, s{sG}, 19"); k(f"s_add_u32 s{sT1}, s{sT1}, s{sT2}")
        k(f"s_lshl_b32 s{sT2}, s{sW}, {10+lg2(G)}"); k(f"s_add_u32 s{sT1}, s{sT1}, s{sT2}"); k(f"s_add_u32 s{sT1}, s{sT1}, {1536*256}")
        for n in range(G): k(f"buffer_load_dwordx4 {a(192+4*n,4)}, v{VL16}, s[16:19], s{sT1} offen offset:{1024*n}")
    stamp(k, "stats")
    k(f"s_lshl_b32 s{sT1}, s{sFB}, 4"); k(f"s_sub_u32 s{sT1}, s{sT1}, s{sFB}")
    k("v_mov_b32 v80, 0")
    k(f"s_mov_b32 s{sT2}, 0")
    k.label("POLL")
    k(f"s_add_u32 s{sT1}, s{sT1}, 1")
    k(f"s_and_b32 s{sT0}, s{sT1}, 15"); k("s_cbranch_scc1 POLLR")
    k("buffer_load_dword v81, v80, s[20:23], 0 offen sc1")
    k("v_readfirstlane_b32 s{0}, v81".format(sT0))
    k(f"s_cmp_ge_u32 s{sT0}, 0x100"); k(f"s_cselect_b32 s{sT2}, 1, 0")
    k(f"s_cmp_gt_u32 s{sT1}, 0x8000"); k(f"s_cselect_b32 s{sT2}, 1, s{sT2}")
    k.label("POLLR")
    for i in range(2): k(f"buffer_load_dwordx4 {v(16+4*i,4)}, v{VL16}, s[24:27], s{sE2} offen offset:{1024*i} sc1")
    k(f"v_cmp_eq_u32 vcc, v17, v{MX+1}")
    for j in (3, 5, 7):
        k(f"v_cmp_eq_u32 s[56:57], v{16+j}, v{MX+j}"); k("s_or_b64 vcc, vcc, s[56:57]")
    k(f"s_cselect_b32 s{sT2}, s{sT2}, 1")
    k(f"s_cmp_lg_u32 s{sE0}, 0"); k("s_cbranch_scc1 NOARR")
    k("s_mov_b64 exec, 1"); k("v_mov_b32 v106, 1")
    k("buffer_atomic_add v106, v80, s[20:23], 0 offen")
    k("s_mov_b64 exec, -1")
    k(f"s_mov_b32 s{sE0}, 1")
    k.label("NOARR")
    k(f"s_cmp_lg_u32 s{sT2}, 0"); k("s_cbranch_scc1 POLLED")
    if P["SLEEP"]: k(f"s_sleep {P['SLEEP']}")
    k("s_branch POLL")
    k.label("POLLED")
    if P.get("DG"): stamp(k, "go")
    k("v_mov_b32 v17, v18"); k("v_mov_b32 v21, v22")
    k(f"s_lshl_b32 s{sT0}, s{sW}, 10"); k(f"v_add_u32 v80, s{sT0}, v109")
    for i in range(2): k(f"ds_write_b64 v80, {v(16+4*i,2)} offset:{L_M+512*i}", token="w")
    k.wait("w")
    k("s_barrier")
    stamp(k, "poll")
    k.srd(20, 46, 4096 * 1024)
    put(k, cread(0, 64) + cread(1, 80) + vmadv)
    put(k, modulate(0, 0, 64, 32, "post") + modulate(0, 1, 80, 48, "post"))
    put(k, [w_dma(s_, "Q") for s_ in range(P["WPRE"], 4)])
    put(k, a_reads(0, "Q"))
    fr = lambda f: FR + 4 * (f % 8)
    def rdK(f, s_, off): return [f"ds_read_b128 {a(fr(f),4)}, v{VK+s_} offset:{off}"]
    def rdV(f, i, off): return [f"ds_read_b64_tr_b16 {a(fr(f)+2*u,2)}, v{VV+i%4} offset:{off+4096*(i//4)+2048*u}" for u in range(2)]
    def b_reads(step):
        return [f"ds_read_b128 {a(BF+8*(step%2)+4*rt,4)}, v{VLO if step & 1 else VLIN} offset:{1024*step+32768*rt}" for rt in range(2)]
    k.wait("hw"); k("s_barrier")
    stamp(k, "mod")
    put(k, b_reads(0))
    def g_mfma(which, st):
        return [f"v_mfma_f32_32x32x16_bf16 {v(ACC+32*a_+16*rt,16)}, {a(aset(which,st)+4*a_,4)}, {a(BF+8*(st%2)+4*rt,4)}, {'0' if st == 0 else v(ACC+32*a_+16*rt,16)}"
                for a_ in range(4) for rt in range(2)]
    class Off:
        def __init__(s_, sc, o): s_.sc, s_.o = sc, o
        def pin(s_, g, x, end=False): s_.sc.pin(g + s_.o, x, end)
        def add(s_, ops, g0, g1, prio=0): s_.sc.add(ops, g0 + s_.o, g1 + s_.o, prio)
    def gemm(which, extra, nr, nd):
        sc = Sched(256)
        mf = []
        for st in range(32):
            if which == "Q" and st % 8 == 7 and st < 31: sc.pin(8 * st + 1, L(lambda: (k.wait("hw"), k("s_barrier")), 8))
            if st + 1 < 32:
                sc.add(b_reads(st + 1), 8 * st + (1 if st % 8 == 7 else 0), 8 * st + 4, prio=1)
                sc.pin(8 * st + 7, L(lambda st=st: k.wait_regs(a(aset(which, st + 1), 16), a(BF + 8 * ((st + 1) % 2), 8))), end=True)
            mf += g_mfma(which, st)
        R = len(ASET[which])
        g0 = 0
        td = {}
        first = [j for j in range(nd, min(nr + 4, 32))]
        pd = 8
        for i, j in enumerate(first):
            sc.add(w_dma(j, which), pd * i, pd * (i + 1)); td[j] = pd * (i + 1)
        tstart = max(pd * len(first) - (pd if first else 0), 8 * (nr - R + 1), 0)
        if first and nr in td: tstart = max(tstart, td[nr] + 12)
        nun = 32 - nr
        tr = {j: int(tstart + (j - nr) * (240 - tstart) / (nun - 1)) for j in range(nr, 32)}
        for j in range(nr, 32):
            assert tr[j] >= 8 * (j - R + 1) and tr[j] <= 8 * (j - 1), (j, tr[j])
            sc.add(a_reads(j, which), tr[j], tr[j] + 5, prio=1)
            if j + 4 < 32 and j + 4 >= nd and j + 4 not in td:
                lo = max(tr[j + 1], max(td.values()) if td else 0); hi = max(tr[j + 2], lo + 6)
                sc.add([L(lambda j=j: k.wait_regs(a(aset(which, j), 16)))] + w_dma(j + 4, which), lo, hi); td[j + 4] = hi
        sc.last_dma = max(td.values())
        for c in range(4): extra(c)(Off(sc, 64 * c), sc.last_dma - 192)
        i0 = len(k.items)
        for g_, (m, f_) in enumerate(zip(mf, sc.run())):
            k(m); put(k, f_)
            if g_ % 64 == 63 and g_ < 255: stamp(k, f"q{g_//64}" + ("o" if which == "O" else ""))
            if g_ == 191: i1 = len(k.items)
        X = P.get("DBG" + which, 0)
        if X:
            def keep(it):
                if it.kind in ("label", "raw"): return True
                if X & 1 and it.mn == "s_barrier": return False
                if X & 4 and it.kind in ("valu", "trans"): return False
                if X & 8 and it.kind == "vmem": return False
                if X & 16 and it.mn.startswith("ds_write"): return False
                if X & 32 and it.mn.startswith("ds_read_b128") and it.ops[0].startswith("v"): return False
                return True
            k.items[i0:i1] = [it for it in k.items[i0:i1] if keep(it)]
    def qepi(a_):
        return [f"v_cvt_pk_bf16_f32 v{Q+16*a_+8*(j//4)+4*rt+j%4}, v{ACC+32*a_+16*rt+2*j}, v{ACC+32*a_+16*rt+2*j+1}" for rt in range(2) for j in range(8)]
    def qx(c):
        def f(sc, ld):
            if c < 3:
                m0_ = modulate(c + 1, 0, CN, UT, False); m1_ = modulate(c + 1, 1, CN, UT, False)
                if P["QBURST"]:
                    wr = [x for x in m0_ + m1_ if callable(x)]
                    m0_ = [x for x in m0_ if not callable(x)]; m1_ = [x for x in m1_ if not callable(x)]
                    sc.add(cread(0, CN) + m0_[:-4] + cread(1, CN) + m0_[-4:] + m1_ + vmadv, 0, P["BURST"])
                    sc.pin(P["BURST"], wr)
                else:
                    sc.add(cread(0, CN) + m0_[:-5] + cread(1, CN) + m0_[-5:] + m1_ + vmadv, 0, 55)
            else:
                sc.pin(0, L(lambda: k.srd(16, 42, 8 * 2048 * 256), 16))
                assert ld <= 40, ld
                if not P["KEARLY"]: sc.add([x for d in kfirst for x in d], ld, ld + 9)
                tab = []
                for p in range(8):
                    tab.append([f"s_add_u32 s{sT1}, s{sR8}, {p}", f"s_and_b32 s{sT1}, s{sT1}, 7", f"s_lshr_b32 s{sT2}, s{sT1}, 1", f"s_mul_i32 s{sT2}, s{sT2}, 6"])
                    tab.append([f"s_add_u32 s{sT1}, s{sT1}, s{sT2}", f"s_lshl_b32 s{TAB+p}, s{sT1}, 14"])
                sc.add(tab + [[f"s_lshl_b32 s{sT0}, s{sG}, 19", f"s_add_u32 s{sT0}, s{sT0}, s{sW256}"]] + w_voffs(10, sT0), ld + 1, 58)
                sc.pin(56, L(lambda: (k.wait_all(), k("s_barrier")), 8))
                sc.add([rdK(f, f, L_K + 16384 + 8192) for f in range(4)], 56, 60, prio=1)
                sc.add(kv_dma("V", L_V, sO0) + kv_dma("V", L_V + 8192, sO1), 57, 62)
                sc.add(qepi(0), 61, 64)
                sc.pin(58, [f"v_add_u32 v{VLIN}, {L_H}, v{VL16}", f"v_add_u32 v{VLO}, {L_H}, v{VL16}"])
        return f
    gemm("Q", qx, 1, 4)
    stamp(k, "qgemm")
    def qk(f, s_, qt, buf, zero):
        d = v(S + 32 * buf + 16 * qt, 16)
        c = d if s_ else ("0" if zero else v(CI + 16 * qt, 16))
        return f"v_mfma_f32_32x32x16_bf16 {d}, {a(fr(f),4)}, {v(Q+8*s_+4*qt,4)}, {c}"
    def pv(f, i, qt, buf, zero=False):
        d = a(O + 32 * (i % 4) + 16 * qt, 16)
        return f"v_mfma_f32_32x32x16_bf16 {d}, {a(fr(f),4)}, {v(S+32*buf+16*qt+8*(i//4),4)}, {'0' if zero else d}"
    def sreg(buf, e): return S + 32 * buf + 16 * ((e >> 3) & 1) + 8 * (e >> 4) + (e & 7)
    def sm(buf, e, addci=False):
        o = []
        if e < 32:
            if addci: o.append(f"v_add_f32 v{sreg(buf,e)}, v{sreg(buf,e)}, v{CI+16*((e>>3)&1)}")
            o.append(f"v_exp_f32 v{sreg(buf,e)}, v{sreg(buf,e)}")
        if e >= 1:
            p = e - 1
            o.append(f"v_add_f32 v{LS+((p>>3)&1)}, v{LS+((p>>3)&1)}, v{sreg(buf,p)}")
            if p & 1:
                o.append(f"v_cvt_pk_bf16_f32 v{sreg(buf,p&~7)+(p&7)//2}, v{sreg(buf,p-1)}, v{sreg(buf,p)}")
        return o
    def wgrp(j): return L(lambda: k.wait_regs(a(FR + 16 * (j % 2), 16)))
    def qk0(epi):
        wgrp(0)()
        for s_ in range(8):
            ep = qepi(s_ // 2 + 1)[8 * (s_ & 1):8 * (s_ & 1) + 8] if epi and s_ < 6 else []
            rd = [rdK(f + 4, f + 4, L_K + 16384 + 8192) if f < 4 else rdK(f + 4, f - 4, L_K) for f in ([2*s_, 2*s_+1] if s_ < 2 else [2*s_-4, 2*s_-3] if 4 <= s_ < 6 else [])]
            k(qk(s_, s_, 0, 0, True)); put(k, rd[:1]); put(k, ep[:4])
            k(qk(s_, s_, 1, 0, True)); put(k, rd[1:]); put(k, ep[4:])
            if s_ % 4 == 3: wgrp(s_ // 4 + 1)()
    qk0(True)
    k(f"s_cmp_lg_u32 s{sFB}, 0"); k("s_cbranch_scc1 FB_MAX")
    k.label("IT0")
    def maxops(buf, dst):
        o = []
        for qt in range(2):
            b = S + 32 * buf + 16 * qt; t = dst + qt
            o.append(f"v_max3_f32 v{t}, v{b}, v{b+1}, v{b+2}")
            for i in range(3, 15, 2): o.append(f"v_max3_f32 v{t}, v{t}, v{b+i}, v{b+i+1}")
            o.append(f"v_max_f32 v{t}, v{t}, v{b+15}")
        return [x for pr in zip(o[:8], o[8:]) for x in pr]
    def xhalf_max(t, t2):
        return [f"v_mov_b32 v{t2}, v{t}", f"v_mov_b32 v{t2+1}, v{t+1}", f"v_permlane32_swap_b32 v{t}, v{t2}", f"v_permlane32_swap_b32 v{t+1}, v{t2+1}",
                f"v_max_f32 v{t}, v{t}, v{t2}", f"v_max_f32 v{t+1}, v{t+1}, v{t2+1}"]
    def flat(x): return [y for z in x for y in z]
    def iteration(par, first=False, last=False, extra=None):
        hb = 16384 * par; nb = 16384 * (1 - par)
        mf = []
        phs = [0, 1, 3] if last else [0, 1, 2, 3]
        n = 16 * len(phs)
        sc = Sched(n)
        frs = []
        for q_, ph in enumerate(phs):
            for g in range(16):
                f = 8 * q_ + g // 2; qt = g & 1; i = g // 2
                if ph == 0: mf.append(qk(f, i, qt, 1, first))
                elif ph == 1: mf.append(pv(f, i, qt, 0, first and i < 4))
                elif ph == 2: mf.append(qk(f, i, qt, 0, False))
                else: mf.append(pv(f, i, qt, 1))
            for i in range(8): frs.append((ph, i))
        ng = len(frs) // 4
        for j in range(1, ng):
            rd = []
            for f in range(4 * j, 4 * j + 4):
                ph, i = frs[f]
                rd += rdK(f, i, hb + 8192 * (ph // 2)) if ph % 2 == 0 else rdV(f, i, hb + 8192 * (ph // 2))
            g0 = 8 * (j - 1)
            if first and j == 2: sc.pin(g0 + 1, L(lambda: (k.wait("V"), k("s_barrier")), 8)); g0 += 1
            sc.add(rd, g0, 8 * (j - 1) + 6, prio=1)
            sc.pin(8 * j - 1, wgrp(j), end=True)
        dm = [nxt(sO1, sO2), kv_dma("V", L_V + nb, sO2), kv_dma("K", L_K + nb, sO1), kv_dma("V", L_V + nb + 8192, sO1), nxt(sO2, sO1), kv_dma("K", L_K + nb + 8192, sO2)]
        dm = [dm[0]] + dm[1] + dm[2] + dm[3] + [dm[4]] + dm[5]
        if first:
            sc.add(dm, 24, 44)
            mx = maxops(0, MX) + xhalf_max(MX, MX + 2)
            mx += [[f"s_cmp_lg_u32 s{sFB}, 0", "s_cselect_b64 vcc, -1, 0"]]
            mx += [f"v_sub_f32 v{CI+16*qt}, {f32(-float(P['BIAS']))}, v{MX+qt}" for qt in range(2)]
            mx += [f"v_cndmask_b32 v{CI+16*qt}, v{CI+16*qt}, v{MX+4+qt}, vcc" for qt in range(2)]
            sc.add(mx + flat(sm(0, e, True) for e in range(17)), 1, 16)
            sc.add(flat(sm(0, e, True) for e in range(17, 33)), 16, 23)
            sc.add([f"v_mov_b32 v{CI+16*qt+i}, v{CI+16*qt}" for qt in range(2) for i in range(1, 16)], 23, 31)
            sc.add(flat(sm(1, e, True) for e in range(33)), 23, 54)
            sc.add(flat(sm(0, e) for e in range(12)), 54, 64)
        else:
            for e in range(12, 33): sc.pin(e - 12, sm(0, e))
            if last:
                sc.add(flat(sm(1, e) for e in range(17)), 19, 31)
                sc.add(flat(sm(1, e) for e in range(17, 33)), 31, 39)
            else:
                sc.add(dm, 1, 40)
                for e in range(33): sc.pin(20 + e, sm(1, e))
                for e in range(12): sc.pin(52 + e, sm(0, e))
        if not last:
            sc.pin(56, L(lambda: (k.wait("K", "V"), k("s_barrier")), 8))
            sc.add([rdK(f, f, nb) for f in range(4)], 56, 61, prio=1)
            sc.pin(63, wgrp(0), end=True)
        if extra: extra(sc)
        for m, f_ in zip(mf, sc.run()): k(m); put(k, f_)
    def x_first(sc):
        pf = [[f"s_lshl_b32 s{sT1}, s{sROT}, 14", f"s_lshl_b32 s{sT2}, s{sG}, 19", f"s_add_u32 s{sT1}, s{sT1}, s{sT2}"], [f"s_lshl_b32 s{sT2}, s{sW}, {12+lg2(G)}", f"s_add_u32 s{sT1}, s{sT1}, s{sT2}"]]
        for n in range(4 * G):
            pf.append([f"buffer_load_dwordx4 {a(192+4*(n%16),4)}, v{VL16}, s[20:23], s{sT1} offen offset:{1024*(n%4)}"] + ([f"s_add_u32 s{sT1}, s{sT1}, 4096"] if n % 4 == 3 else []))
        sc.add(pf, 44, 56)
    iteration(0, first=True, extra=x_first)
    stamp(k, "it0")
    i0 = len(k.items)
    k.loop(sST, 3, lambda: (iteration(1), iteration(0)), align=3)
    X = P.get("DBGX", 0)
    if X:
        def keep(it):
            if it.kind in ("label", "raw"): return True
            if X & 1 and it.mn == "s_barrier": return False
            if X & 2 and it.mn == "s_waitcnt": return False
            if X & 4 and it.kind in ("valu", "trans"): return False
            if X & 8 and it.kind == "vmem": return False
            if X & 16 and it.kind == "ds": return False
            if X & 32 and it.kind == "trans": return False
            if X & 64 and it.kind == "valu": return False
            return True
        k.items[i0:] = [it for it in k.items[i0:] if keep(it)]
        k.wait_all()
    stamp(k, "it1-6")
    OM = MX + 4
    def finalize(dt, qt, pk=True):
        b = Q + 16 * ((2 * dt + qt) % 4)
        o = [f"v_accvgpr_read_b32 v{b+i}, a{O+32*dt+16*qt+i}" for i in range(16)]
        if dt == 0: o += [f"v_max3_f32 v{OM+qt}, |v{b+i}|, |v{b+i+1}|, v{OM+qt}" for i in range(0, 16, 2)]
        o += [f"v_pk_mul_f32 {v(b+i,2)}, {v(b+i,2)}, {v(RL,2)} op_sel:[0,{qt}] op_sel_hi:[1,{qt}]" for i in range(0, 16, 2)]
        for sp in range(2):
            o += [f"v_cvt_pk_bf16_f32 v{b+8*sp+j}, v{b+8*sp+2*j}, v{b+8*sp+2*j+1}" for j in range(4)]
            o.append(L(lambda sp=sp: k(f"ds_write_b128 v{HW+sp}, {v(b+8*sp,4)} offset:{32768*qt+8192*dt}", token="hw"), 22, "d"))
        return o
    f0 = finalize(0, 0); f1 = finalize(0, 1)
    def x_last(sc):
        sc.add(flat(w_dma(s_, "O") for s_ in range(4)), 0, 30)
        fin = [f"v_mov_b32 v{MX}, v{LS}", f"v_mov_b32 v{MX+1}, v{LS+1}", f"v_mov_b32 v{OM}, 0", f"v_mov_b32 v{OM+1}, 0",
               f"v_permlane32_swap_b32 v{LS}, v{MX}", f"v_permlane32_swap_b32 v{LS+1}, v{MX+1}",
               f"v_add_f32 v{LS}, v{LS}, v{MX}", f"v_add_f32 v{LS+1}, v{LS+1}, v{MX+1}",
               f"v_rcp_f32 v{RL}, v{LS}", f"v_rcp_f32 v{RL+1}, v{LS+1}", f"v_max_f32 v{MX+6}, v{LS}, v{LS+1}"]
        adr = []
        for sp in range(2):
            adr += [[f"s_lshl_b32 s56, s{sW}, 1", f"s_add_u32 s56, s56, {sp}", f"s_sub_u32 s56, s56, s{sR8}"], [f"s_and_b32 s56, s56, 7",
                    f"s_lshl_b32 s56, s56, 10", f"v_add_u32 v{HW+sp}, s56, v{VLIN}"]]
        sc.add(adr, 0, 8)
        sc.add(fin, 39, 43)
        sc.pin(40, L(lambda: k("s_barrier")))
        sc.add(a_reads(0), 40, 46, prio=1)
        sc.add(f0[:16] + f1[:12], 43, 48)
    iteration(1, last=True, extra=x_last)
    stamp(k, "it7")
    k(f"s_load_dwordx4 s[40:43], s[0:1], {A_WG}")
    k(f"s_load_dwordx2 s[44:45], s[0:1], {A_WD}")
    k(f"s_load_dwordx2 s[46:47], s[0:1], {A_X}")
    k(f"s_load_dwordx2 s[48:49], s[0:1], {A_OUT}")
    put(k, f0[16:] + f1[12:])
    for dt in range(1, 4):
        for qt in range(2): put(k, finalize(dt, qt))
    k.wait_all(vm=False); k("s_barrier")
    put(k, b_reads(0))
    stamp(k, "owrite")
    def ox(c):
        def f(sc, ld):
            assert ld <= 36, ld
            if c == 0:
                sc.add([f"v_min_f32 v{OM}, v{OM}, v{OM+1}", f"v_cmp_ngt_f32 vcc, {f32(2.0**120)}, v{MX+6}", "s_mov_b64 s[62:63], vcc",
                        f"v_cmp_gt_f32 vcc, {f32(2.0**-112 if not P['FORCE_FB'] else 2.0**100)}, v{OM}", "s_or_b64 s[62:63], s[62:63], vcc",
                        [f"s_lshl_b32 s{sT1}, s{sW}, 2", f"v_mov_b32 v{MX+1}, s{sT1}"], f"v_mov_b32 v{MX+2}, 0", f"v_mov_b32 v{MX+3}, 0x7f800000"], 4, 40)
            if c == 3:
                if P["PF1"]:
                    NA = P["F1R"] // 2; Wd_ = 3584 // NA; nl = (Wd_ + 1023) // 1024; per = Wd_ // nl // 16
                    pf = [[f"v_min_u32 v{tm}, {per-1}, v{LN_}", f"v_lshlrev_b32 v{tm}, 4, v{tm}"],
                          [f"s_lshr_b32 s56, s2, 3", f"s_lshl_b32 s56, s56, 2", f"s_add_u32 s56, s56, s{sW}"], [f"s_mul_i32 s56, s56, {4*3584}",
                           f"s_and_b32 s57, s2, {NA-1}"], [f"s_mul_i32 s57, s57, {Wd_}", f"s_add_u32 s56, s56, s57"],
                          L(lambda: k.srd(12, 40, 512 * 3584), 16), L(lambda: k.srd(16, 42, 512 * 3584), 16)]
                    n = 0
                    for r in range(4):
                        for l_ in range(nl):
                            for srd in (12, 16):
                                pf.append(f"buffer_load_dwordx4 {a(192+4*(n%16),4)}, v{tm}, s[{srd}:{srd+3}], s56 offen offset:{l_*per*16}"); n += 1
                        pf.append(f"s_add_u32 s56, s56, 3584")
                    sc.add(pf[:6], 8, 32); sc.add(pf[6:], 36, 58)
                sc.pin(38, [f"s_lshl_b32 s{sT0}, s{sG}, 21", f"s_lshl_b32 s{sT1}, s{sRB}, 16", f"s_add_u32 s{sT0}, s{sT0}, s{sT1}"])
                sc.pin(46, [f"s_lshl_b32 s{sT1}, s{sW}, 13", f"s_add_u32 s{sT0}, s{sT0}, s{sT1}", f"s_add_u32 s{sT0}, s{sT0}, {WS_P:#x}"])
        return f
    gemm("O", ox, 1, 4)
    stamp(k, "ogemm")
    for rt in range(2):
        k(f"v_cmp_nlt_f32 vcc, |v{ACC+16*rt}|, v{MX+3}"); k("s_or_b64 s[62:63], s[62:63], vcc")
    k(f"s_cselect_b32 s{sT1}, 1, 0"); k(f"v_mov_b32 v{MX}, s{sT1}")
    k(f"ds_write_b32 v{MX+1}, v{MX} offset:{L_K}", token="fl")
    for a_ in range(4):
        if a_ == 1: k.wait("fl"); k("s_barrier"); k(f"ds_read_b128 {v(STT,4)}, v{MX+2} offset:{L_K}")
        for rt in range(2):
            k(f"s_add_u32 s{sT1}, s{sT0}, {32768*rt + 2048*a_}")
            b = ACC + 32 * a_ + 16 * rt
            for sp in range(2):
                for j in range(4 * sp, 4 * sp + 4): k(f"v_cvt_pk_bf16_f32 v{Q+16*a_+8*rt+j}, v{b+2*j}, v{b+2*j+1}")
                k(f"buffer_store_dwordx4 {v(Q+16*a_+8*rt+4*sp,4)}, v{VL16}, s[24:27], s{sT1} offen offset:{1024*sp} sc1", token="PST")
    k(f"v_or3_b32 v{STT}, v{STT}, v{STT+1}, v{STT+2}"); k(f"v_or_b32 v{STT}, v{STT}, v{STT+3}")
    k(f"v_readfirstlane_b32 s{sT2}, v{STT}")
    k(f"s_andn2_b32 s{sT2}, s{sT2}, s{sFB}"); k("s_cbranch_scc1 FALLBACK")
    tail(sys.modules[__name__], k)
    stamp_flush(k, 0)
    k.label("END_attn"); k("s_endpgm")
    k.label("FALLBACK")
    k.wait_all(); k("s_barrier")
    k(f"s_mov_b32 s{sFB}, 1")
    k("s_nop 15")
    k("s_branch RESTART")
    k.label("FB_MAX")
    k.wait_all(); k("s_barrier")
    k(f"v_mov_b32 v{MX+4}, 0xff800000"); k(f"v_mov_b32 v{MX+5}, 0xff800000")
    def fbody():
        put(k, kv_dma("K", L_K, sO0) + nxt(sO0, sO0)); k.wait("K"); k("s_barrier")
        for s_ in range(8): put(k, rdK(s_, s_, L_K))
        for s_ in range(8):
            for qt in range(2): k(qk(s_, s_, qt, 0, True))
        put(k, maxops(0, MX))
        k(f"v_max_f32 v{MX+4}, v{MX+4}, v{MX}"); k(f"v_max_f32 v{MX+5}, v{MX+5}, v{MX+1}")
        k("s_barrier")
    k.loop(sST, 16, fbody)
    put(k, xhalf_max(MX + 4, MX + 2))
    for qt in range(2): k(f"v_sub_f32 v{MX+4+qt}, 0, v{MX+4+qt}")
    put(k, kfirst)
    k.wait_all(); k("s_barrier")
    for f in range(4): put(k, rdK(f, f, L_K + 16384 + 8192))
    qk0(False)
    k.wait_all()
    k("s_branch IT0")
    return k

from gen15_tail import tail

HEADER = open('adaLN_cond__sliding_block_cached__geglu_ffn__prompt.s.ref').read().split("; Override launch")[0]

if __name__ == "__main__":
    out = sys.argv[1] if len(sys.argv) > 1 else "k.s"
    me = sys.modules[__name__]
    ks = [gen_attn()]
    ks[-1].label("CODE_END")
    txt = emit(ks, header=HEADER)
    if P.get("SINGLE"): txt = txt.replace("; @launch kernel=" + KNAME + " ", "; @launch ")
    open(out, "w").write(txt)
    json.dump([[k.name, k.grid, k.block//64, k.stamps] for k in ks], open(out[:-2]+".json","w"))
    for k in ks: print(k.name, "regs(v,a,s)", k.used, "nops", k.n_nops, "misal", k.n_mis, "instrs", len(k.items))
```

```python
import sys, struct, math, os, json
from asmlib import *

def f32(x): return "0x%08x" % struct.unpack("<I", struct.pack("<f", x))[0]
LOG2E = 1.4426950408889634
CS = 128 ** -0.5
A_X, A_K, A_V, A_WQ, A_WO, B_X, A_WG, A_WU, A_WD, A_C, A_WM, A_OUT, A_DBG, A_WS = [8 * i for i in range(14)]
WS_MOD = 0x0
WS_GO = 0x18000
WS_FL = 0x20000
WS_ST = 0x10000
WS_P = 0x400000
WS_X1 = 0x1400000
WS_H2 = 0x1600000
WS_ACT = 0x1800000
WS_BYTES = 0x10000000
WS_DBG = 0x8000000
P = dict(STAMPS=0, G=2, ROT=1, F1R=8, F2R=8, PREF0=1, PREFC=1, PREFQ=1, PREFK=1, PORD=1, XPRE=0, TLBW=1, PBAR=3, WPOS=1, DEFER=1, SYNC=1, LFIRST=0, SLEEP=2, OSC=1, SLEEP2=4, FW1=10, FW2=20, F2PRE=12, TOUCH=0, N0=4, QP0=10, QBURST=1, TW1=3, TW2=5, HPRE=3, PSYS=0, WPRE=2, BURST=54, KEARLY=0, BIAS=100, FORCE_FB=0, PNT=0, PST=2, AST=2, PF1=1, PF2=1)
for kv in os.environ.get("GP", "").split(","):
    if kv: P[kv.split("=")[0]] = int(kv.split("=")[1])

def stamp(k, name):
    if not P["STAMPS"]: return
    SETS = {0: ("start", "mod", "qgemm", "it0", "it1-6", "owrite", "ogemm", "t_set", "end"), 1: ("start", "gemv", "stats", "poll", "mod", "qgemm", "end"),
            3: ("start", "t_set", "poll1", "x1", "poll2", "ffn1", "pub3", "poll3", "end"), 4: ("start", "mod", "q0", "q1", "q2", "qgemm", "end"), 5: ("start", "owrite", "q0o", "q1o", "q2o", "ogemm", "end")}
    if name not in SETS[P.get("DG", 0)]: return
    i = len(k.stamps); k.stamps.append(name)
    assert i < 9
    k.sgpr = 102
    k("s_memtime s[64:65]"); k("s_memrealtime s[66:67]"); k("s_waitcnt lgkmcnt(0)")
    k(f"s_mov_b32 s{82+2*i}, s64"); k(f"s_mov_b32 s{83+2*i}, s66")
def stamp_begin(k):
    k.stamps = []
    if not P["STAMPS"]: return
    k("v_lshrrev_b32 v1, 6, v0"); k("v_readfirstlane_b32 s101, v1")
    stamp(k, "start")
def stamp_flush(k, kidx):
    if not P["STAMPS"]: return
    stamp(k, "end")
    if P["STAMPS"] == 2:
        lab = k.newlabel("NODBG")
        k("s_mov_b64 exec, -1")
        k(f"s_xor_b32 s100, s2, {P.get('DWG', 200)}"); k("s_or_b32 s100, s100, s101"); k("s_cmp_lg_u32 s100, 0"); k(f"s_cbranch_scc1 {lab}")
        k(f"s_load_dwordx2 s[66:67], s[0:1], {A_DBG}")
        k.srd(60, 66, 256)
        k("v_mov_b32 v1, 0")
        n = len(k.stamps)
        for j in range(1, n):
            k(f"s_sub_u32 s100, s{77+2*j}, s77"); k("v_mov_b32 v0, s100")
            k(f"buffer_store_dword v0, v1, s[60:63], 0 offen offset:{4*j}")
        k(f"s_sub_u32 s100, s{76+2*(n-1)}, s76"); k("v_mov_b32 v0, s100")
        k(f"buffer_store_dword v0, v1, s[60:63], 0 offen offset:{4*n}")
        k.label(lab)
        return
    k(f"s_load_dwordx2 s[64:65], s[0:1], {A_WS}")
    k("s_mov_b64 exec, -1")
    k.srd(56, 64, WS_BYTES)
    k("s_lshl_b32 s100, s2, 3"); k("s_add_u32 s100, s100, s101"); k("s_lshl_b32 s100, s100, 8")
    k(f"s_add_u32 s100, s100, {WS_DBG + kidx*0x100000:#x}")
    k("v_mov_b32 v1, 0")
    for j, sr in enumerate([82 + i for i in range(2*len(k.stamps))]):
        k(f"v_mov_b32 v0, s{sr}")
        k(f"buffer_store_dword v0, v1, s[56:59], s100 offen offset:{4*j}")

def wave_id(k, sdst, vtmp):
    k(f"v_lshrrev_b32 v{vtmp}, 6, v0")
    k(f"v_readfirstlane_b32 s{sdst}, v{vtmp}")
def rowsum_8(k, val, tmp):
    k(f"v_add_f32_dpp v{val}, v{val}, v{val} row_ror:8 row_mask:0xf bank_mask:0xf")
    k(f"v_mov_b32 v{tmp}, v{val}"); k(f"v_permlane16_swap_b32 v{val}, v{tmp}"); k(f"v_add_f32 v{val}, v{val}, v{tmp}")
    k(f"v_mov_b32 v{tmp}, v{val}"); k(f"v_permlane32_swap_b32 v{val}, v{tmp}"); k(f"v_add_f32 v{val}, v{val}, v{tmp}")
def rnd(k, d, sreg): k(f"v_cvt_pk_bf16_f32 v{d}, 0, v{sreg}")
def lg2(x): return x.bit_length() - 1
def split2(k, sb, sA, sB, nA_per, nB_total, t0, t1):
    A_total = 256 // nB_total; NA = A_total // nA_per
    k(f"s_and_b32 s{t0}, s{sb}, 7"); k(f"s_lshr_b32 s{t1}, s{sb}, 3")
    k(f"s_and_b32 s{sA}, s{t0}, {NA-1}"); k(f"s_lshl_b32 s{sA}, s{sA}, {lg2(nA_per)}")
    k(f"s_and_b32 s{sB}, s{t1}, {nA_per-1}"); k(f"s_add_u32 s{sA}, s{sA}, s{sB}")
    k(f"s_lshr_b32 s{sB}, s{t0}, {lg2(NA)}"); k(f"s_lshl_b32 s{sB}, s{sB}, {lg2(32//nA_per)}")
    k(f"s_lshr_b32 s{t1}, s{t1}, {lg2(nA_per)}"); k(f"s_add_u32 s{sB}, s{sB}, s{t1}")
def lane_tr_parts(k, lane, r, c2, gn, h, tmp):
    k(f"v_bfe_u32 v{r}, v{lane}, 2, 2")
    k(f"v_and_b32 v{c2}, 1, v{lane}"); k(f"v_lshlrev_b32 v{c2}, 1, v{c2}")
    k(f"v_bfe_u32 v{tmp}, v{lane}, 1, 1"); k(f"v_or_b32 v{c2}, v{c2}, v{tmp}")
    k(f"v_bfe_u32 v{gn}, v{lane}, 4, 1")
    k(f"v_lshrrev_b32 v{h}, 5, v{lane}")

QS = CS * LOG2E
KNAME = "adaLN_cond__sliding_block_cached__geglu_ffn__prompt_kernel"
def ln_stats(k, XF):
    k(f"v_pk_add_f32 v[10:11], {v(XF,2)}, {v(XF+2,2)}")
    for e in range(4, 16, 2): k(f"v_pk_add_f32 v[10:11], v[10:11], {v(XF+e,2)}")
    k("v_add_f32 v10, v10, v11")
    def allreduce(off):
        rowsum_8(k, 10, 11)
        k(f"ds_write_b32 v9, v10 offset:{off}", token="w"); k.wait("w"); k("s_barrier")
        k(f"ds_read_b128 {v(12,4)}, v8 offset:{off}")
        k("v_add_f32 v12, v12, v13"); k("v_add_f32 v14, v14, v15"); k("v_add_f32 v10, v12, v14")
    allreduce(0)
    k(f"v_mul_f32 v58, {f32(-1/512)}, v10"); k("v_mov_b32 v59, v58")
    for e in range(0, 16, 2): k(f"v_pk_add_f32 {v(XF+e,2)}, {v(XF+e,2)}, v[58:59]")
    k(f"v_pk_mul_f32 v[10:11], {v(XF,2)}, {v(XF,2)}")
    for e in range(2, 16, 2): k(f"v_pk_fma_f32 v[10:11], {v(XF+e,2)}, {v(XF+e,2)}, v[10:11]")
    k("v_add_f32 v10, v10, v11")
    allreduce(128)
    k(f"v_mov_b32 v11, {f32(1e-5)}"); k(f"v_fmac_f32 v11, {f32(1/512)}, v10")
    k("v_rsq_f32 v56, v11"); k("v_mov_b32 v57, v56")

def gen_ln2():
    k = Kernel("ln2_kernel", 256, 256, 256, vgpr=160, sgpr=64)
    k("s_cmp_ge_u32 s2, 256"); k("s_cbranch_scc1 END_ln2")
    stamp_begin(k)
    k(f"s_load_dwordx2 s[4:5], s[0:1], {A_X}")
    k(f"s_load_dwordx2 s[6:7], s[0:1], {A_WS}")
    k("v_and_b32 v1, 7, v0"); k("v_lshrrev_b32 v2, 3, v0"); k("v_lshrrev_b32 v6, 6, v0")
    k("v_and_b32 v7, 7, v2"); k("v_lshl_add_u32 v7, v6, 4, v7")
    k("v_lshlrev_b32 v3, 9, v7"); k("v_lshl_add_u32 v3, v1, 4, v3")
    k("v_add_u32 v2, 4096, v3")
    k("v_lshlrev_b32 v4, 10, v1"); k("v_lshl_add_u32 v4, v7, 4, v4")
    k("v_lshlrev_b32 v5, 5, v7")
    k("v_lshlrev_b32 v8, 4, v1"); k("v_lshl_add_u32 v9, v6, 2, v8")
    k("s_and_b32 s25, s2, 7"); k("s_lshl_b32 s25, s25, 5"); k("s_lshr_b32 s26, s2, 3"); k("s_add_u32 s25, s25, s26")
    k("s_lshl_b32 s20, s25, 13")
    k("s_lshr_b32 s21, s25, 2"); k("s_lshl_b32 s21, s21, 15"); k("s_and_b32 s22, s25, 3"); k("s_lshl_b32 s22, s22, 7")
    k("s_add_u32 s21, s21, s22")
    k(f"s_add_u32 s23, s21, {WS_P:#x}")
    k.srd(12, 6, WS_BYTES)
    X = 16; XF = 24; MV = 40; PB = 64
    for g in range(8):
        for i in range(2):
            k(f"buffer_load_dwordx4 {v(PB+8*g+4*i,4)}, v{3-i}, s[12:15], s23 offen" + (" nt" if P["PNT"] else ""))
        if g < 7: k("s_add_u32 s23, s23, 0x200000")
    k.srd(8, 4, 2048 * 1024)
    for i in range(2): k(f"buffer_load_dwordx4 {v(X+4*i,4)}, v4, s[8:11], s20 offen offset:{128*i}")
    k("v_mov_b32 v10, 0"); k("s_lshl_b32 s27, s2, 7"); k(f"s_add_u32 s27, s27, {WS_FL:#x}")
    k("buffer_store_dword v10, v10, s[12:15], s27 offen sc1")
    k("s_mov_b32 s24, 0xffff0000")
    def load_mod(base, m):
        k(f"s_mov_b32 s23, {WS_MOD + m*2048}")
        for i in range(2):
            for hh in range(2):
                k(f"buffer_load_dwordx4 {v(base+8*i+4*hh,4)}, v5, s[12:15], s23 offen offset:{256*i+16*hh}")
    def unpack(dst, src):
        k(f"v_lshlrev_b32 v{dst}, 16, v{src}"); k(f"v_and_b32 v{dst+1}, s24, v{src}")
    load_mod(MV, 2); load_mod(128, 4); load_mod(144, 3)
    for q in range(8): unpack(XF + 2 * q, PB + q)
    for g in range(1, 8):
        for q in range(8):
            unpack(10 + 2 * (q & 1), PB + 8 * g + q)
            k(f"v_pk_add_f32 {v(XF+2*q,2)}, {v(XF+2*q,2)}, {v(10+2*(q&1),2)}")
    for q in range(8):
        unpack(10, X + q)
        k(f"v_pk_fma_f32 v[10:11], {v(XF+2*q,2)}, {v(MV+2*q,2)}, v[10:11]")
        k(f"v_cvt_pk_bf16_f32 v{X+q}, v10, v11")
        unpack(XF + 2 * q, X + q)
    k(f"s_add_u32 s23, s21, {WS_X1:#x}")
    for i in range(2): k(f"buffer_store_dwordx4 {v(X+4*i,4)}, v{3-i}, s[12:15], s23 offen sc1")
    stamp(k, "x1")
    ln_stats(k, XF)
    stamp(k, "stats")
    for e in range(0, 16, 2):
        k(f"v_pk_mul_f32 {v(XF+e,2)}, {v(XF+e,2)}, v[56:57]")
        k(f"v_pk_fma_f32 {v(XF+e,2)}, {v(XF+e,2)}, {v(128+e,2)}, {v(144+e,2)}")
        k(f"v_cvt_pk_bf16_f32 v{MV+e//2}, v{XF+e}, v{XF+e+1}")
    k(f"s_add_u32 s23, s21, {WS_H2:#x}")
    for i in range(2): k(f"buffer_store_dwordx4 {v(MV+4*i,4)}, v{3-i}, s[12:15], s23 offen sc1")
    stamp_flush(k, 1)
    k.label("END_ln2"); k("s_endpgm")
    return k

def put(k, seq):
    for x in seq:
        if isinstance(x, list): put(k, x)
        elif callable(x): x()
        else: k(x)

def gen_attn():
    k = Kernel(KNAME, 256, 256, 163840, vgpr=256, agpr=256, sgpr=82)
    k.denorm32 = P.get("DEN", 3)
    L_K, L_H, L_V, L_W, L_M = 0, 32768, 32768, 98304, 16384
    ACC = 0; S = 0; CI = 64; Q = 128
    VK = 192; VV = 200; VW = 204; VDW = 208; VDK = 212; VDV = 214; VLIN = 215; VL16 = 216
    LS = 217; VLO = 219
    T = 220
    LN_, ROWL, GR16 = T, T + 1, T + 2
    r_, c2, gn, h_, tm = T + 3, T + 4, T + 5, T + 6, T + 7
    CH8 = T + 10; HW = T + 11
    VX = T + 13; VM = T + 15
    MX = T + 16
    STT = T + 24
    RL = T + 28; UT = T + 28
    O = 0; FR = 128; AF = 128; BF = 160
    sW, sG, sRB, sT0, sT1, sRING, sST, sFB, sROT, sT2 = 28, 29, 30, 32, 33, 34, 35, 39, 50, 51
    sE0, sE1, sE2 = 61, 62, 63
    sO0, sO1, sO2, sW2K, sW256, sKhi, sMASK, sCC, sR8 = 36, 37, 38, 52, 54, 55, 58, 59, 6
    TAB = 72
    def L(f, cost=4, mem=False):
        f.cost = cost; f.mem = mem; return f
    k("s_cmp_ge_u32 s2, 256"); k("s_cbranch_scc1 END_attn")
    stamp_begin(k)
    k(f"s_mov_b32 s{sFB}, 0")
    if P["PREFC"]:
        k("s_getpc_b64 s[56:57]")
        k.label("PCREF")
        k(f"s_lshr_b32 s{sT1}, s2, 3"); k(f"s_lshl_b32 s{sT1}, s{sT1}, 12")
        k("v_lshlrev_b32 v108, 4, v0"); k(f"v_add_u32 v108, s{sT1}, v108"); k("v_min_u32 v108, CODE_END-PCREF-16, v108")
        k("global_load_dwordx4 a[252:255], v108, s[56:57]")
    wave_id(k, sW, T)
    k(f"v_and_b32 v{LN_}, 63, v0")
    k.label("RESTART")
    k(f"s_load_dwordx4 s[8:11], s[0:1], {A_C}")
    k(f"s_load_dwordx2 s[4:5], s[0:1], {A_X}")
    k(f"s_load_dwordx4 s[68:71], s[0:1], {A_DBG}")
    k(f"s_load_dwordx8 s[40:47], s[0:1], {A_K}")
    if P["TOUCH"]:
        k(f"s_load_dwordx4 s[84:87], s[0:1], {A_WG}"); k(f"s_load_dwordx2 s[88:89], s[0:1], {A_WD}"); k(f"s_load_dwordx2 s[90:91], s[0:1], {A_OUT}")
    L_R = L_M + 4096
    PSC = "sc1"
    GW, GC, GA = 64, 80, 88
    k(f"v_lshl_add_u32 v99, s{sW}, 6, v{LN_}")
    k("v_and_b32 v100, 1, v99"); k("v_lshrrev_b32 v101, 1, v99")
    k("v_mul_u32_u24 v102, 6144, v101"); k("v_lshl_add_u32 v102, v100, 4, v102"); k("v_lshlrev_b32 v103, 1, v101")
    k("v_lshrrev_b32 v104, 4, v99"); k("v_lshlrev_b32 v104, 6, v104"); k("v_lshl_add_u32 v104, v100, 5, v104")
    sSL = 7; sPR = 53
    k(f"s_and_b32 s{sT0}, s2, 7"); k(f"s_lshr_b32 s{sT1}, s2, 3")
    k(f"s_lshl_b32 s{sSL}, s{sT0}, 3"); k(f"s_add_u32 s{sSL}, s{sSL}, s{sT1}")
    k(f"s_lshl_b32 s{sT2}, s{sT0}, 4"); k(f"s_add_u32 s{sT2}, s{sT2}, s{sT1}"); k(f"s_add_u32 s{sT2}, s{sT2}, 56")
    k("s_cmp_lt_u32 s2, 64"); k(f"s_cselect_b32 s{sSL}, s{sSL}, s{sT2}")
    k(f"s_cselect_b32 s{sPR}, s{sFB}, 1")
    k(f"s_lshl_b32 s31, s{sSL}, 5")
    k(f"v_lshlrev_b32 v{VL16}, 4, v{LN_}")
    G = P["G"]
    NG = 8 // G; NS = 32 // G
    k(f"s_and_b32 s{sG}, s2, {NG-1}"); k(f"s_lshl_b32 s{sG}, s{sG}, {lg2(G)}"); k(f"s_lshr_b32 s{sT0}, s2, {3+lg2(NS)}"); k(f"s_add_u32 s{sG}, s{sG}, s{sT0}")
    k(f"s_bfe_u32 s{sROT}, s2, {3 | (lg2(NS) << 16):#x}")
    k(f"s_and_b32 s{sRB}, s2, 7"); k(f"s_lshr_b32 s{sRB}, s{sRB}, {lg2(NG)}"); k(f"s_lshl_b32 s{sRB}, s{sRB}, {lg2(NS)}"); k(f"s_add_u32 s{sRB}, s{sRB}, s{sROT}")
    k(f"s_lshl_b32 s{sROT}, s{sROT}, {lg2(G)}")
    k(f"s_and_b32 s{sR8}, s{sROT}, 7"); k(f"s_lshr_b32 s{sCC}, s{sROT}, 3")
    RR, CGL = tm, tm + 1
    k(f"v_bfe_u32 v{RR}, v{LN_}, 2, 3")
    k(f"v_lshrrev_b32 v{CGL}, 5, v{LN_}"); k(f"v_lshlrev_b32 v{CGL}, 2, v{CGL}"); k(f"v_and_or_b32 v{CGL}, v{LN_}, 3, v{CGL}")
    k(f"v_lshlrev_b32 v{VX}, 10, v{RR}"); k(f"v_lshl_add_u32 v{VX}, v{CGL}, 4, v{VX}"); k(f"v_add_u32 v{VX+1}, 8192, v{VX}")
    k(f"s_lshl_b32 s3, s{sRB}, 16"); k(f"s_lshl_b32 s{sT2}, s{sW}, 14"); k(f"s_add_u32 s3, s3, s{sT2}")
    XR = [0, 128, 144, 160]; CN = 176
    XS = [48, 49, 56, 57]
    for c in range(4):
        put(k, [f"s_add_u32 s{XS[c]}, s{sCC}, {c}", f"s_and_b32 s{XS[c]}, s{XS[c]}, 3", f"s_lshl_b32 s{XS[c]}, s{XS[c]}, 8", f"s_add_u32 s{XS[c]}, s{XS[c]}, s3"])
    xl = [f"buffer_load_dwordx4 {v(XR[c]+8*cb+4*oo,4)}, v{VX+oo}, s[16:19], s{XS[c]} offen offset:{128*cb}" for oo in range(2) for c in range(4) for cb in range(2)]
    k.srd(12, 10, 512 * 6144); k.srd(20, 8, 1024); k.srd(16, 4, 2048 * 1024)
    def gemv_loads():
        k(f"s_mov_b32 s{sT0}, s31")
        for i in range(4):
            k(f"buffer_load_dwordx4 {v(GW+4*i,4)}, v102, s[12:15], s{sT0} offen")
            if i < 3: k(f"s_add_u32 s{sT0}, s{sT0}, {128*6144}")
    for i in range(4): k(f"buffer_load_ushort v{GC+i}, v103, s[20:23], 0 offen offset:{256*i}")
    k.srd(24, 70, WS_BYTES)
    k(f"s_lshl_b32 s{sE2}, s{sW}, 11"); k(f"s_add_u32 s{sE2}, s{sE2}, {WS_GO:#x}")
    for i in range(2): k(f"buffer_load_dwordx4 {v(MX+4*i,4)}, v{VL16}, s[24:27], s{sE2} offen offset:{1024*i} sc1")
    k(f"v_lshlrev_b32 v109, 3, v{LN_}"); k(f"s_lshl_b32 s{sE1}, s{sSL}, 7"); k(f"s_add_u32 s{sE1}, s{sE1}, {WS_GO:#x}")
    k(f"buffer_load_dword v110, v109, s[24:27], s{sE1} offen offset:4 sc1")
    k(f"s_xor_b32 s{sE0}, s{sW}, 3"); k(f"s_or_b32 s{sE0}, s{sE0}, s{sFB}")
    k(f"s_cmp_lg_u32 s{sE0}, 0"); k("s_cbranch_scc1 NOZERO")
    k(f"v_lshlrev_b32 v111, 15, v{LN_}"); k("v_mov_b32 v107, 0"); k(f"s_lshl_b32 s{sT0}, s2, 7"); k(f"s_add_u32 s{sT0}, s{sT0}, {WS_FL:#x}")
    k("s_mov_b64 exec, 7")
    k(f"buffer_store_dword v107, v111, s[24:27], s{sT0} offen sc1")
    k("s_mov_b64 exec, -1")
    k.label("NOZERO")
    k.vm = {kk: max(p - 1, 0) for kk, p in k.vm.items()}
    k(f"s_cmp_eq_u32 s{sPR}, 0"); k("s_cbranch_scc1 PLOAD")
    s_a = (dict(k.vm), dict(k.lg))
    if P["TOUCH"]:
        k(f"s_cmp_lt_u32 s2, {P['TOUCH']}"); k("s_cbranch_scc1 NOTOUCH")
        k(f"s_lshl_b32 s92, s{sW}, 20"); k(f"s_and_b32 s93, s92, 0x100000")
        k.auto = False
        for base in (44, 40, 42, 46): k(f"s_load_dword s81, s[{base}:{base+1}], s92")
        for base in (84, 86, 88, 90): k(f"s_load_dword s81, s[{base}:{base+1}], s93")
        for i in range(8):
            k(f"s_load_dword s81, s[70:71], s92"); k("s_add_u32 s92, s92, 0x400000")
        k.auto = True
        k.label("NOTOUCH")
        k.sgpr = max(k.sgpr, 94)
    put(k, xl)
    s_b = dict(k.vm)
    k("s_branch PJOIN")
    k.label("PLOAD")
    k.vm = dict(s_a[0])
    gemv_loads()
    k.label("PJOIN")
    k.vm = k._merge(k.vm, s_b)
    k(f"s_lshl_b32 s{sW256}, s{sW}, 8"); k(f"s_lshl_b32 s{sW2K}, s{sW}, 11")
    k(f"v_lshrrev_b32 v{ROWL}, 4, v{LN_}")
    k(f"v_and_b32 v{r_}, 15, v{LN_}"); k(f"v_lshlrev_b32 v{GR16}, 2, v{ROWL}"); k(f"v_xor_b32 v{GR16}, v{GR16}, v{r_}")
    k(f"v_lshlrev_b32 v{GR16}, 4, v{GR16}")
    def w_voffs(psh, scol):
        return [f"v_lshl_add_u32 v{VDW}, v{ROWL}, {psh}, v{GR16}", f"v_add_u32 v{VDW}, s{scol}, v{VDW}"] + \
               [f"v_add_u32 v{VDW+n}, {n*((4<<psh)-1024)}, v{VDW}" for n in range(1, 4)]
    k(f"s_lshl_b32 s{sT0}, s{sG}, 10"); k(f"s_add_u32 s{sT0}, s{sT0}, s{sW256}")
    put(k, w_voffs(13, sT0))
    k(f"s_lshl_b32 s{sRING}, s{sW}, 14"); k(f"s_add_u32 s{sRING}, s{sRING}, {L_W}")
    for p in range(8):
        k(f"s_add_u32 s{TAB+p}, s{sR8}, {p}"); k(f"s_and_b32 s{TAB+p}, s{TAB+p}, 7"); k(f"s_lshl_b32 s{TAB+p}, s{TAB+p}, 17")
    k(f"s_lshl_b32 s{sKhi}, s{sCC}, 20")
    k.srd(8, 44, 512 * 8192)
    def w_dma(step, which):
        slot = step % 4
        if which == "Q":
            srd = 8
            pre = [f"s_add_u32 s{sT0}, s{sKhi}, s{TAB+step%8}"]
            adv = [[f"s_add_u32 s{sKhi}, s{sKhi}, 0x100000", f"s_and_b32 s{sKhi}, s{sKhi}, 0x3fffff"]] if step % 8 == 7 else []
        else:
            srd = 20
            pre = [f"s_add_u32 s{sT0}, s{TAB+step%8}, {(2*(step//8))<<14}"]
            adv = []
        o = [pre + [f"s_add_u32 m0, s{sRING}, {4096*slot}"]] + adv + [f"buffer_load_dwordx4 v{VDW}, s[{srd}:{srd+3}], s{sT0} offen lds"]
        for n in range(1, 4):
            o.append(L(lambda n=n: k(f"buffer_load_dwordx4 v{VDW+n}, s[{srd}:{srd+3}], s{sT0} offen offset:{1024*n} lds", token=f"W{slot}"), 10, "v"))
        return o
    k(f"v_lshrrev_b32 v{r_}, 1, v{CGL}"); k(f"v_subrev_u32 v{r_}, s{sR8}, v{r_}")
    k(f"v_and_b32 v{c2}, 1, v{CGL}"); k(f"v_and_b32 v{gn}, 1, v{r_}"); k(f"v_lshl_add_u32 v{gn}, v{gn}, 1, v{c2}"); k(f"v_lshlrev_b32 v{gn}, 1, v{gn}")
    k(f"v_xor_b32 v{gn}, v{gn}, v{RR}")
    k(f"v_lshlrev_b32 v{c2}, 9, v{c2}"); k(f"v_lshl_add_u32 v{c2}, v{gn}, 4, v{c2}")
    k(f"s_lshr_b32 s{sT1}, s{sW}, 1"); k(f"s_lshl_b32 s{sT1}, s{sT1}, 15"); k(f"s_and_b32 s{sT2}, s{sW}, 1"); k(f"s_lshl_b32 s{sT2}, s{sT2}, 8")
    k(f"s_add_u32 s{sT1}, s{sT1}, s{sT2}"); k(f"s_add_u32 s{sT1}, s{sT1}, {L_H}"); k(f"v_add_u32 v{c2}, s{sT1}, v{c2}")
    for cb in range(2):
        k(f"v_add_u32 v{gn}, {4*cb}, v{r_}"); k(f"v_and_b32 v{gn}, 7, v{gn}"); k(f"v_lshl_add_u32 v{HW+cb}, v{gn}, 10, v{c2}")
    k(f"s_lshl_b32 s{sT2}, s{sCC}, 9"); k(f"v_lshlrev_b32 v{VM}, 5, v{CGL}"); k(f"v_add_u32 v{VM}, s{sT2}, v{VM}")
    lane_tr_parts(k, LN_, r_, c2, gn, h_, tm)
    k(f"v_lshl_add_u32 v{CH8}, v{gn}, 2, v{c2}"); k(f"v_lshlrev_b32 v{CH8}, 3, v{CH8}")
    k(f"v_lshl_add_u32 v{tm}, v{h_}, 3, v{r_}"); k(f"v_lshl_add_u32 v{tm}, v{tm}, 8, v{CH8}"); k(f"v_add_u32 v{tm}, s{sRING}, v{tm}")
    for a_ in range(4):
        k(f"v_xor_b32 v{tm+1}, {a_}, v{r_}"); k(f"v_lshl_add_u32 v{VW+a_}, v{tm+1}, 6, v{tm}")
    put(k, [f"v_lshl_add_u32 v{tm}, v{h_}, 2, v{r_}", f"v_lshl_add_u32 v{tm}, v{tm}, 8, v{CH8}", f"v_add_u32 v{tm}, {L_V}, v{tm}"])
    for dt in range(4): put(k, [f"v_xor_b32 v{tm+1}, {dt}, v{r_}", f"v_lshl_add_u32 v{VV+dt}, v{tm+1}, 6, v{tm}"])
    put(k, [f"v_and_b32 v{tm}, 31, v{LN_}", f"v_and_b32 v{tm+1}, 15, v{LN_}", f"v_xor_b32 v{tm+1}, v{tm+1}, v{h_}",
            f"v_lshlrev_b32 v{tm}, 8, v{tm}", f"v_lshl_add_u32 v{VK}, v{tm+1}, 4, v{tm}"])
    put(k, [f"v_xor_b32 v{VK+s_}, {s_*32}, v{VK}" for s_ in range(1, 8)])
    put(k, [f"v_mov_b32 v{LS}, 0", f"v_mov_b32 v{LS+1}, 0",
        f"v_lshl_add_u32 v{VDV}, v{ROWL}, 8, v{GR16}", f"s_and_b32 s{sT1}, s{sW}, 1", f"s_lshl_b32 s{sT1}, s{sT1}, 3",
        f"v_or_b32 v{tm}, s{sT1}, v{ROWL}", f"v_and_b32 v{tm+1}, 15, v{LN_}", f"v_xor_b32 v{tm}, v{tm}, v{tm+1}",
        f"v_lshlrev_b32 v{VDK}, 8, v{ROWL}", f"v_lshl_add_u32 v{VDK}, v{tm}, 4, v{VDK}", f"v_xor_b32 v{VDK+1}, 64, v{VDK}",
        f"s_lshl_b32 s{sT1}, s{sG}, 19", f"s_add_u32 s{sT1}, s{sT1}, s{sW2K}", f"s_add_u32 s{sT1}, s{sT1}, {1536*256}",
        f"v_add_u32 v{VDK}, s{sT1}, v{VDK}", f"v_add_u32 v{VDK+1}, s{sT1}, v{VDK+1}", f"v_add_u32 v{VDV}, s{sT1}, v{VDV}",
        f"v_lshlrev_b32 v{tm}, 5, v{h_}", f"v_xor_b32 v{VLIN}, v{tm}, v{VL16}", f"v_add_u32 v{VLIN}, {L_H}, v{VLIN}", f"v_xor_b32 v{VLO}, 64, v{VLIN}",
        f"s_mov_b32 s{sMASK}, 0xffff0000"])
    def nxt(d, s_): return [f"s_add_u32 s{d}, s{s_}, 8192", f"s_and_b32 s{d}, s{d}, 0x1ffff"]
    def kv_dma(which, lds_off, so):
        srd = 12 if which == "K" else 16
        return [f"s_add_u32 m0, s{sW2K}, {lds_off}", f"buffer_load_dwordx4 v{VDK if which=='K' else VDV}, s[{srd}:{srd+3}], s{so} offen lds",
                L(lambda: k(f"buffer_load_dwordx4 v{VDK+1 if which=='K' else VDV}, s[{srd}:{srd+3}], s{so} offen offset:1024 lds", token=which), 10, "v")]
    kinit = [[f"s_lshr_b32 s{sO0}, s{sROT}, 1", f"s_lshl_b32 s{sO0}, s{sO0}, 13"] + nxt(sO1, sO0) + nxt(sO2, sO1)]
    kfirst = [kv_dma("K", L_K + 16384 + 8192, sO0), kv_dma("K", L_K, sO1), kv_dma("K", L_K + 8192, sO2)]
    k.srd(20, 68, 256)
    def gemv_compute(lo, hi, tag, late):
        k(f"s_sub_u32 s{sT0}, s2, {lo}"); k(f"s_cmp_ge_u32 s{sT0}, {hi-lo}"); k(f"s_cselect_b32 s{sT0}, 1, s{sFB}"); k(f"s_cmp_lg_u32 s{sT0}, 0"); k("s_cbranch_scc1 NOGEMV" + tag)
        st0 = (dict(k.vm), dict(k.lg))
        D = P.get("DG") == 1 and not late
        if D: stamp(k, "g_in"); k.wait_regs(v(GW, 20)); stamp(k, "g_data")
        k(f"s_mov_b32 s{sT1}, {f32(-LOG2E)}")
        for i in range(4): k(f"v_lshlrev_b32 v{GC+i}, 16, v{GC+i}")
        for i in range(4): k(f"v_mul_f32 v{GA+i}, s{sT1}, v{GC+i}")
        for i in range(4): k(f"v_exp_f32 v{GA+i}, v{GA+i}")
        for i in range(4): k(f"v_add_f32 v{GA+i}, 1.0, v{GA+i}")
        for i in range(4): k(f"v_rcp_f32 v{GA+i}, v{GA+i}")
        for i in range(4): k(f"v_mul_f32 v{GC+i}, v{GC+i}, v{GA+i}")
        for i in range(4): rnd(k, 112 + 2 * i, GC + i)
        for i in range(4):
            for q in range(4):
                r = GW + 4 * i + q; u = 120 + 2 * (q & 1)
                k(f"v_lshlrev_b32 v{u}, 16, v{r}"); k(f"v_and_b32 v{u+1}, s{sMASK}, v{r}")
                if i == 0: k(f"v_pk_mul_f32 {v(GA+2*q,2)}, {v(u,2)}, {v(112+2*i,2)} op_sel_hi:[1,0]")
                else: k(f"v_pk_fma_f32 {v(GA+2*q,2)}, {v(u,2)}, {v(112+2*i,2)}, {v(GA+2*q,2)} op_sel_hi:[1,0,1]")
        for md in ("quad_perm:[2,3,0,1]", "row_ror:4", "row_ror:8"):
            for j in range(8): k(f"v_add_f32_dpp v{GA+j}, v{GA+j}, v{GA+j} {md} row_mask:0xf bank_mask:0xf")
        k(f"ds_write_b128 v104, {v(GA,4)} offset:{L_R}", token="w"); k(f"ds_write_b128 v104, {v(GA+4,4)} offset:{L_R+16}", token="w")
        k(f"v_lshlrev_b32 v105, 2, v{LN_}")
        k(f"s_lshr_b32 s{sT0}, s{sSL}, 5"); k(f"s_cmp_eq_u32 s{sT0}, 1"); k(f"s_cselect_b32 s{sT1}, 1.0, 0")
        k(f"s_cmp_eq_u32 s{sT0}, 4"); k(f"s_cselect_b32 s{sT1}, 1.0, s{sT1}")
        k(f"s_cmp_lt_u32 s{sT0}, 2"); k(f"s_cselect_b32 s{sT2}, {f32(QS)}, 1.0")
        k(f"s_lshl_b32 s{sT0}, s{sSL}, 6")
        k.wait("w"); k("s_barrier")
        k(f"s_cmp_lg_u32 s{sW}, 3"); k("s_cbranch_scc1 " + ("NOGEMV" + tag if late else "PWAIT"))
        for i in range(4): k(f"ds_read_b32 v{GA+i}, v105 offset:{L_R+256*i}")
        k(f"v_add_f32 v{GA}, v{GA}, v{GA+1}"); k(f"v_add_f32 v{GA+2}, v{GA+2}, v{GA+3}"); k(f"v_add_f32 v{GA}, v{GA}, v{GA+2}")
        k(f"v_mov_b32 v{GA+1}, v{GA}"); k(f"v_permlane16_swap_b32 v{GA}, v{GA+1}"); k(f"v_add_f32 v{GA}, v{GA}, v{GA+1}")
        k(f"v_mov_b32 v{GA+1}, v{GA}"); k(f"v_permlane32_swap_b32 v{GA}, v{GA+1}"); k(f"v_add_f32 v{GA}, v{GA}, v{GA+1}")
        rnd(k, GA, GA)
        k(f"v_add_f32 v{GA}, s{sT1}, v{GA}"); k(f"v_mul_f32 v{GA}, s{sT2}, v{GA}")
        if D: stamp(k, "g_red")
        k("s_mov_b64 exec, 0xffff")
        if not late:
            k(f"v_add_u32 v{GA+1}, 1, v110")
            k(f"buffer_store_dwordx2 {v(GA,2)}, v109, s[24:27], s{sE1} offen sc1")
            k("s_mov_b64 exec, -1")
            k.label("PWAIT")
            k("s_barrier")
            k.vm = {}
            put(k, xl)
            st0 = (k._merge(st0[0], k.vm), None)
        else:
            k(f"buffer_store_dword v{GA}, v105, s[24:27], s{sT0} offen sc1")
            k("s_mov_b64 exec, -1")
        k.label("NOGEMV" + tag)
        k.vm, k.lg = dict(st0[0]), {}
        k.smem_pending = bool(P["TOUCH"])
    gemv_compute(0, 64, "A", False)
    stamp(k, "gemv")
    k("s_mov_b32 s3, 0x3f803f80")
    ASET = {"Q": [AF, AF + 16], "O": [AF, AF + 16]}
    def aset(which, step): return ASET[which][step % len(ASET[which])]
    def a_reads(step, which="O"):
        slot = step % 4; b_ = aset(which, step)
        rd = [f"ds_read_b64_tr_b16 {a(b_+4*a_+2*u,2)}, v{VW+a_} offset:{4096*slot+1024*u}" for a_ in range(4) for u in range(2)]
        return [[L(lambda: k.wait(f"W{slot}")), rd[0]]] + rd[1:]
    N0 = P["N0"]
    if P.get("DG") == 2: stamp(k, "iss"); k.wait_regs(v(0, 16), v(128, 48)); stamp(k, "xarr")
    for oo in range(2):
        src = [XR[c] + 8 * cb + 4 * oo + q for c in range(4) for cb in range(2) for q in range(4)]
        A_ = 16 + 8 * oo
        if oo == P["WPOS"]:
            if oo: k.wait_regs(*[f"v{x}" for x in src])
            def late_loads():
                k(f"s_sub_u32 s{sT0}, s2, 64"); k(f"s_cmp_ge_u32 s{sT0}, 128"); k("s_cbranch_scc1 NOLATE")
                s_c = dict(k.vm)
                gemv_loads()
                k.label("NOLATE")
                k.vm = k._merge(k.vm, s_c)
                k.srd(12, 40, 8 * 2048 * 256)
            if P["LFIRST"]: late_loads()
            put(k, [w_dma(s_, "Q") for s_ in range(P["WPRE"])])
            if not P["LFIRST"]: late_loads()
        for j, x in enumerate(src):
            k(f"v_dot2_f32_bf16 v{A_+(j&1)}, v{x}, s3, {'0' if j < 2 else 'v%d' % (A_+(j&1))}")
            k(f"v_dot2_f32_bf16 v{A_+2+(j&1)}, v{x}, v{x}, {'0' if j < 2 else 'v%d' % (A_+2+(j&1))}")
        k("s_nop 2")
        k(f"v_add_f32 v{A_}, v{A_}, v{A_+1}"); k(f"v_add_f32 v{A_+2}, v{A_+2}, v{A_+3}")
        for md in ("quad_perm:[1,0,3,2]", "quad_perm:[2,3,0,1]"):
            for x in (A_, A_ + 2): k(f"v_add_f32_dpp v{x}, v{x}, v{x} {md} row_mask:0xf bank_mask:0xf")
        for x in (A_, A_ + 2): k(f"v_mov_b32 v{x+1}, v{x}")
        for x in (A_, A_ + 2): k(f"v_permlane32_swap_b32 v{x}, v{x+1}")
        for x in (A_, A_ + 2): k(f"v_add_f32 v{x}, v{x}, v{x+1}")
        k(f"v_mul_f32 v{A_}, {f32(-1/512)}, v{A_}")
        k(f"v_mul_f32 v{A_+2}, {f32(1/512)}, v{A_+2}")
        k(f"v_fma_f32 v{A_+2}, -v{A_}, v{A_}, v{A_+2}"); k(f"v_max_f32 v{A_+2}, 0, v{A_+2}")
        k(f"v_add_f32 v{A_+2}, {f32(1e-5)}, v{A_+2}"); k(f"v_rsq_f32 v{STT+2*oo+1}, v{A_+2}")
        k(f"v_mul_f32 v{STT+2*oo}, v{A_}, v{STT+2*oo+1}")
    def cread(cb, dst):
        return [f"ds_read_b128 {v(dst+8*m_+4*q,4)}, v{VM} offset:{L_M+2048*(1-m_)+256*cb+16*q}" for m_ in range(2) for q in range(2)]
    vmadv = [[f"v_add_u32 v{VM}, 0x200, v{VM}", f"v_and_b32 v{VM}, 0x7ff, v{VM}"]]
    def modulate(c, cb, cn, U_, pk):
        o = []
        for oo in range(2):
            x = XR[c] + 8 * cb + 4 * oo; u = U_ + (8 * oo if pk else 0)
            for q in range(4): o += [f"v_lshlrev_b32 v{u+2*q}, 16, v{x+q}", f"v_and_b32 v{u+2*q+1}, s{sMASK}, v{x+q}"]
            if pk:
                st = v(STT + 2 * oo, 2)
                o += [f"v_pk_fma_f32 {v(u+2*q,2)}, {v(u+2*q,2)}, {st}, {st} op_sel:[0,1,0] op_sel_hi:[1,1,0]" for q in range(4)]
                if pk == "pre": continue
                if pk == "post": o = o[:-12]
                o += [f"v_pk_fma_f32 {v(u+2*q,2)}, {v(u+2*q,2)}, {v(cn+2*q,2)}, {v(cn+8+2*q,2)}" for q in range(4)]
            else:
                o += [f"v_fma_f32 v{u+e}, v{u+e}, v{STT+2*oo+1}, v{STT+2*oo}" for e in range(8)]
                o += [f"v_fma_f32 v{u+e}, v{u+e}, v{cn+e}, v{cn+8+e}" for e in range(8)]
            o += [f"v_cvt_pk_bf16_f32 v{x+q}, v{u+2*q}, v{u+2*q+1}" for q in range(4)]
            o.append(L(lambda x=x, cb=cb, oo=oo: k(f"ds_write_b128 v{HW+cb}, {v(x,4)} offset:{8192*c+128*oo}", token="hw"), 22, "d"))
        return o
    put(k, modulate(0, 0, 16, 32, "pre") + modulate(0, 1, 32, 48, "pre"))
    if P.get("DG") == 2: stamp(k, "st+pre")
    gemv_compute(64, 192, "B", True)
    put(k, kinit)
    if P["KEARLY"]:
        put(k, kfirst)
        k.srd(16, 42, 8 * 2048 * 256)
        k(f"s_lshl_b32 s{sT1}, s{sROT}, 12"); k(f"s_lshl_b32 s{sT2}, s{sG}, 19"); k(f"s_add_u32 s{sT1}, s{sT1}, s{sT2}")
        k(f"s_lshl_b32 s{sT2}, s{sW}, {10+lg2(G)}"); k(f"s_add_u32 s{sT1}, s{sT1}, s{sT2}"); k(f"s_add_u32 s{sT1}, s{sT1}, {1536*256}")
        for n in range(G): k(f"buffer_load_dwordx4 {a(192+4*n,4)}, v{VL16}, s[16:19], s{sT1} offen offset:{1024*n}")
    stamp(k, "stats")
    k(f"s_lshl_b32 s{sT1}, s{sFB}, 4"); k(f"s_sub_u32 s{sT1}, s{sT1}, s{sFB}")
    k("v_mov_b32 v80, 0")
    k(f"s_mov_b32 s{sT2}, 0")
    k.label("POLL")
    k(f"s_add_u32 s{sT1}, s{sT1}, 1")
    k(f"s_and_b32 s{sT0}, s{sT1}, 15"); k("s_cbranch_scc1 POLLR")
    k("buffer_load_dword v81, v80, s[20:23], 0 offen sc1")
    k("v_readfirstlane_b32 s{0}, v81".format(sT0))
    k(f"s_cmp_ge_u32 s{sT0}, 0x100"); k(f"s_cselect_b32 s{sT2}, 1, 0")
    k(f"s_cmp_gt_u32 s{sT1}, 0x8000"); k(f"s_cselect_b32 s{sT2}, 1, s{sT2}")
    k.label("POLLR")
    for i in range(2): k(f"buffer_load_dwordx4 {v(16+4*i,4)}, v{VL16}, s[24:27], s{sE2} offen offset:{1024*i} sc1")
    k(f"v_cmp_eq_u32 vcc, v17, v{MX+1}")
    for j in (3, 5, 7):
        k(f"v_cmp_eq_u32 s[56:57], v{16+j}, v{MX+j}"); k("s_or_b64 vcc, vcc, s[56:57]")
    k(f"s_cselect_b32 s{sT2}, s{sT2}, 1")
    k(f"s_cmp_lg_u32 s{sE0}, 0"); k("s_cbranch_scc1 NOARR")
    k("s_mov_b64 exec, 1"); k("v_mov_b32 v106, 1")
    k("buffer_atomic_add v106, v80, s[20:23], 0 offen")
    k("s_mov_b64 exec, -1")
    k(f"s_mov_b32 s{sE0}, 1")
    k.label("NOARR")
    k(f"s_cmp_lg_u32 s{sT2}, 0"); k("s_cbranch_scc1 POLLED")
    if P["SLEEP"]: k(f"s_sleep {P['SLEEP']}")
    k("s_branch POLL")
    k.label("POLLED")
    if P.get("DG"): stamp(k, "go")
    k("v_mov_b32 v17, v18"); k("v_mov_b32 v21, v22")
    k(f"s_lshl_b32 s{sT0}, s{sW}, 10"); k(f"v_add_u32 v80, s{sT0}, v109")
    for i in range(2): k(f"ds_write_b64 v80, {v(16+4*i,2)} offset:{L_M+512*i}", token="w")
    k.wait("w")
    k("s_barrier")
    stamp(k, "poll")
    k.srd(20, 46, 4096 * 1024)
    put(k, cread(0, 64) + cread(1, 80) + vmadv)
    put(k, modulate(0, 0, 64, 32, "post") + modulate(0, 1, 80, 48, "post"))
    put(k, [w_dma(s_, "Q") for s_ in range(P["WPRE"], 4)])
    put(k, a_reads(0, "Q"))
    fr = lambda f: FR + 4 * (f % 8)
    def rdK(f, s_, off): return [f"ds_read_b128 {a(fr(f),4)}, v{VK+s_} offset:{off}"]
    def rdV(f, i, off): return [f"ds_read_b64_tr_b16 {a(fr(f)+2*u,2)}, v{VV+i%4} offset:{off+4096*(i//4)+2048*u}" for u in range(2)]
    def b_reads(step):
        return [f"ds_read_b128 {a(BF+8*(step%2)+4*rt,4)}, v{VLO if step & 1 else VLIN} offset:{1024*step+32768*rt}" for rt in range(2)]
    k.wait("hw"); k("s_barrier")
    stamp(k, "mod")
    put(k, b_reads(0))
    def g_mfma(which, st):
        return [f"v_mfma_f32_32x32x16_bf16 {v(ACC+32*a_+16*rt,16)}, {a(aset(which,st)+4*a_,4)}, {a(BF+8*(st%2)+4*rt,4)}, {'0' if st == 0 else v(ACC+32*a_+16*rt,16)}"
                for a_ in range(4) for rt in range(2)]
    class Off:
        def __init__(s_, sc, o): s_.sc, s_.o = sc, o
        def pin(s_, g, x, end=False): s_.sc.pin(g + s_.o, x, end)
        def add(s_, ops, g0, g1, prio=0): s_.sc.add(ops, g0 + s_.o, g1 + s_.o, prio)
    def gemm(which, extra, nr, nd):
        sc = Sched(256)
        mf = []
        for st in range(32):
            if which == "Q" and st % 8 == 7 and st < 31: sc.pin(8 * st + 1, L(lambda: (k.wait("hw"), k("s_barrier")), 8))
            if st + 1 < 32:
                sc.add(b_reads(st + 1), 8 * st + (1 if st % 8 == 7 else 0), 8 * st + 4, prio=1)
                sc.pin(8 * st + 7, L(lambda st=st: k.wait_regs(a(aset(which, st + 1), 16), a(BF + 8 * ((st + 1) % 2), 8))), end=True)
            mf += g_mfma(which, st)
        R = len(ASET[which])
        g0 = 0
        td = {}
        first = [j for j in range(nd, min(nr + 4, 32))]
        pd = 8
        for i, j in enumerate(first):
            sc.add(w_dma(j, which), pd * i, pd * (i + 1)); td[j] = pd * (i + 1)
        tstart = max(pd * len(first) - (pd if first else 0), 8 * (nr - R + 1), 0)
        if first and nr in td: tstart = max(tstart, td[nr] + 12)
        nun = 32 - nr
        tr = {j: int(tstart + (j - nr) * (240 - tstart) / (nun - 1)) for j in range(nr, 32)}
        for j in range(nr, 32):
            assert tr[j] >= 8 * (j - R + 1) and tr[j] <= 8 * (j - 1), (j, tr[j])
            sc.add(a_reads(j, which), tr[j], tr[j] + 5, prio=1)
            if j + 4 < 32 and j + 4 >= nd and j + 4 not in td:
                lo = max(tr[j + 1], max(td.values()) if td else 0); hi = max(tr[j + 2], lo + 6)
                sc.add([L(lambda j=j: k.wait_regs(a(aset(which, j), 16)))] + w_dma(j + 4, which), lo, hi); td[j + 4] = hi
        sc.last_dma = max(td.values())
        for c in range(4): extra(c)(Off(sc, 64 * c), sc.last_dma - 192)
        i0 = len(k.items)
        for g_, (m, f_) in enumerate(zip(mf, sc.run())):
            k(m); put(k, f_)
            if g_ % 64 == 63 and g_ < 255: stamp(k, f"q{g_//64}" + ("o" if which == "O" else ""))
            if g_ == 191: i1 = len(k.items)
        X = P.get("DBG" + which, 0)
        if X:
            def keep(it):
                if it.kind in ("label", "raw"): return True
                if X & 1 and it.mn == "s_barrier": return False
                if X & 4 and it.kind in ("valu", "trans"): return False
                if X & 8 and it.kind == "vmem": return False
                if X & 16 and it.mn.startswith("ds_write"): return False
                if X & 32 and it.mn.startswith("ds_read_b128") and it.ops[0].startswith("v"): return False
                return True
            k.items[i0:i1] = [it for it in k.items[i0:i1] if keep(it)]
    def qepi(a_):
        return [f"v_cvt_pk_bf16_f32 v{Q+16*a_+8*(j//4)+4*rt+j%4}, v{ACC+32*a_+16*rt+2*j}, v{ACC+32*a_+16*rt+2*j+1}" for rt in range(2) for j in range(8)]
    def qx(c):
        def f(sc, ld):
            if c < 3:
                m0_ = modulate(c + 1, 0, CN, UT, False); m1_ = modulate(c + 1, 1, CN, UT, False)
                if P["QBURST"]:
                    wr = [x for x in m0_ + m1_ if callable(x)]
                    m0_ = [x for x in m0_ if not callable(x)]; m1_ = [x for x in m1_ if not callable(x)]
                    sc.add(cread(0, CN) + m0_[:-4] + cread(1, CN) + m0_[-4:] + m1_ + vmadv, 0, P["BURST"])
                    sc.pin(P["BURST"], wr)
                else:
                    sc.add(cread(0, CN) + m0_[:-5] + cread(1, CN) + m0_[-5:] + m1_ + vmadv, 0, 55)
            else:
                sc.pin(0, L(lambda: k.srd(16, 42, 8 * 2048 * 256), 16))
                assert ld <= 40, ld
                if not P["KEARLY"]: sc.add([x for d in kfirst for x in d], ld, ld + 9)
                tab = []
                for p in range(8):
                    tab.append([f"s_add_u32 s{sT1}, s{sR8}, {p}", f"s_and_b32 s{sT1}, s{sT1}, 7", f"s_lshr_b32 s{sT2}, s{sT1}, 1", f"s_mul_i32 s{sT2}, s{sT2}, 6"])
                    tab.append([f"s_add_u32 s{sT1}, s{sT1}, s{sT2}", f"s_lshl_b32 s{TAB+p}, s{sT1}, 14"])
                sc.add(tab + [[f"s_lshl_b32 s{sT0}, s{sG}, 19", f"s_add_u32 s{sT0}, s{sT0}, s{sW256}"]] + w_voffs(10, sT0), ld + 1, 58)
                sc.pin(56, L(lambda: (k.wait_all(), k("s_barrier")), 8))
                sc.add([rdK(f, f, L_K + 16384 + 8192) for f in range(4)], 56, 60, prio=1)
                sc.add(kv_dma("V", L_V, sO0) + kv_dma("V", L_V + 8192, sO1), 57, 62)
                sc.add(qepi(0), 61, 64)
                sc.pin(58, [f"v_add_u32 v{VLIN}, {L_H}, v{VL16}", f"v_add_u32 v{VLO}, {L_H}, v{VL16}"])
        return f
    gemm("Q", qx, 1, 4)
    stamp(k, "qgemm")
    def qk(f, s_, qt, buf, zero):
        d = v(S + 32 * buf + 16 * qt, 16)
        c = d if s_ else ("0" if zero else v(CI + 16 * qt, 16))
        return f"v_mfma_f32_32x32x16_bf16 {d}, {a(fr(f),4)}, {v(Q+8*s_+4*qt,4)}, {c}"
    def pv(f, i, qt, buf, zero=False):
        d = a(O + 32 * (i % 4) + 16 * qt, 16)
        return f"v_mfma_f32_32x32x16_bf16 {d}, {a(fr(f),4)}, {v(S+32*buf+16*qt+8*(i//4),4)}, {'0' if zero else d}"
    def sreg(buf, e): return S + 32 * buf + 16 * ((e >> 3) & 1) + 8 * (e >> 4) + (e & 7)
    def sm(buf, e, addci=False):
        o = []
        if e < 32:
            if addci: o.append(f"v_add_f32 v{sreg(buf,e)}, v{sreg(buf,e)}, v{CI+16*((e>>3)&1)}")
            o.append(f"v_exp_f32 v{sreg(buf,e)}, v{sreg(buf,e)}")
        if e >= 1:
            p = e - 1
            o.append(f"v_add_f32 v{LS+((p>>3)&1)}, v{LS+((p>>3)&1)}, v{sreg(buf,p)}")
            if p & 1:
                o.append(f"v_cvt_pk_bf16_f32 v{sreg(buf,p&~7)+(p&7)//2}, v{sreg(buf,p-1)}, v{sreg(buf,p)}")
        return o
    def wgrp(j): return L(lambda: k.wait_regs(a(FR + 16 * (j % 2), 16)))
    def qk0(epi):
        wgrp(0)()
        for s_ in range(8):
            ep = qepi(s_ // 2 + 1)[8 * (s_ & 1):8 * (s_ & 1) + 8] if epi and s_ < 6 else []
            rd = [rdK(f + 4, f + 4, L_K + 16384 + 8192) if f < 4 else rdK(f + 4, f - 4, L_K) for f in ([2*s_, 2*s_+1] if s_ < 2 else [2*s_-4, 2*s_-3] if 4 <= s_ < 6 else [])]
            k(qk(s_, s_, 0, 0, True)); put(k, rd[:1]); put(k, ep[:4])
            k(qk(s_, s_, 1, 0, True)); put(k, rd[1:]); put(k, ep[4:])
            if s_ % 4 == 3: wgrp(s_ // 4 + 1)()
    qk0(True)
    k(f"s_cmp_lg_u32 s{sFB}, 0"); k("s_cbranch_scc1 FB_MAX")
    k.label("IT0")
    def maxops(buf, dst):
        o = []
        for qt in range(2):
            b = S + 32 * buf + 16 * qt; t = dst + qt
            o.append(f"v_max3_f32 v{t}, v{b}, v{b+1}, v{b+2}")
            for i in range(3, 15, 2): o.append(f"v_max3_f32 v{t}, v{t}, v{b+i}, v{b+i+1}")
            o.append(f"v_max_f32 v{t}, v{t}, v{b+15}")
        return [x for pr in zip(o[:8], o[8:]) for x in pr]
    def xhalf_max(t, t2):
        return [f"v_mov_b32 v{t2}, v{t}", f"v_mov_b32 v{t2+1}, v{t+1}", f"v_permlane32_swap_b32 v{t}, v{t2}", f"v_permlane32_swap_b32 v{t+1}, v{t2+1}",
                f"v_max_f32 v{t}, v{t}, v{t2}", f"v_max_f32 v{t+1}, v{t+1}, v{t2+1}"]
    def flat(x): return [y for z in x for y in z]
    def iteration(par, first=False, last=False, extra=None):
        hb = 16384 * par; nb = 16384 * (1 - par)
        mf = []
        phs = [0, 1, 3] if last else [0, 1, 2, 3]
        n = 16 * len(phs)
        sc = Sched(n)
        frs = []
        for q_, ph in enumerate(phs):
            for g in range(16):
                f = 8 * q_ + g // 2; qt = g & 1; i = g // 2
                if ph == 0: mf.append(qk(f, i, qt, 1, first))
                elif ph == 1: mf.append(pv(f, i, qt, 0, first and i < 4))
                elif ph == 2: mf.append(qk(f, i, qt, 0, False))
                else: mf.append(pv(f, i, qt, 1))
            for i in range(8): frs.append((ph, i))
        ng = len(frs) // 4
        for j in range(1, ng):
            rd = []
            for f in range(4 * j, 4 * j + 4):
                ph, i = frs[f]
                rd += rdK(f, i, hb + 8192 * (ph // 2)) if ph % 2 == 0 else rdV(f, i, hb + 8192 * (ph // 2))
            g0 = 8 * (j - 1)
            if first and j == 2: sc.pin(g0 + 1, L(lambda: (k.wait("V"), k("s_barrier")), 8)); g0 += 1
            sc.add(rd, g0, 8 * (j - 1) + 6, prio=1)
            sc.pin(8 * j - 1, wgrp(j), end=True)
        dm = [nxt(sO1, sO2), kv_dma("V", L_V + nb, sO2), kv_dma("K", L_K + nb, sO1), kv_dma("V", L_V + nb + 8192, sO1), nxt(sO2, sO1), kv_dma("K", L_K + nb + 8192, sO2)]
        dm = [dm[0]] + dm[1] + dm[2] + dm[3] + [dm[4]] + dm[5]
        if first:
            sc.add(dm, 24, 44)
            mx = maxops(0, MX) + xhalf_max(MX, MX + 2)
            mx += [[f"s_cmp_lg_u32 s{sFB}, 0", "s_cselect_b64 vcc, -1, 0"]]
            mx += [f"v_sub_f32 v{CI+16*qt}, {f32(-float(P['BIAS']))}, v{MX+qt}" for qt in range(2)]
            mx += [f"v_cndmask_b32 v{CI+16*qt}, v{CI+16*qt}, v{MX+4+qt}, vcc" for qt in range(2)]
            sc.add(mx + flat(sm(0, e, True) for e in range(17)), 1, 16)
            sc.add(flat(sm(0, e, True) for e in range(17, 33)), 16, 23)
            sc.add([f"v_mov_b32 v{CI+16*qt+i}, v{CI+16*qt}" for qt in range(2) for i in range(1, 16)], 23, 31)
            sc.add(flat(sm(1, e, True) for e in range(33)), 23, 54)
            sc.add(flat(sm(0, e) for e in range(12)), 54, 64)
        else:
            for e in range(12, 33): sc.pin(e - 12, sm(0, e))
            if last:
                sc.add(flat(sm(1, e) for e in range(17)), 19, 31)
                sc.add(flat(sm(1, e) for e in range(17, 33)), 31, 39)
            else:
                sc.add(dm, 1, 40)
                for e in range(33): sc.pin(20 + e, sm(1, e))
                for e in range(12): sc.pin(52 + e, sm(0, e))
        if not last:
            sc.pin(56, L(lambda: (k.wait("K", "V"), k("s_barrier")), 8))
            sc.add([rdK(f, f, nb) for f in range(4)], 56, 61, prio=1)
            sc.pin(63, wgrp(0), end=True)
        if extra: extra(sc)
        for m, f_ in zip(mf, sc.run()): k(m); put(k, f_)
    def x_first(sc):
        pf = [[f"s_lshl_b32 s{sT1}, s{sROT}, 14", f"s_lshl_b32 s{sT2}, s{sG}, 19", f"s_add_u32 s{sT1}, s{sT1}, s{sT2}"], [f"s_lshl_b32 s{sT2}, s{sW}, {12+lg2(G)}", f"s_add_u32 s{sT1}, s{sT1}, s{sT2}"]]
        for n in range(4 * G):
            pf.append([f"buffer_load_dwordx4 {a(192+4*(n%16),4)}, v{VL16}, s[20:23], s{sT1} offen offset:{1024*(n%4)}"] + ([f"s_add_u32 s{sT1}, s{sT1}, 4096"] if n % 4 == 3 else []))
        sc.add(pf, 44, 56)
    iteration(0, first=True, extra=x_first)
    stamp(k, "it0")
    i0 = len(k.items)
    k.loop(sST, 3, lambda: (iteration(1), iteration(0)), align=3)
    X = P.get("DBGX", 0)
    if X:
        def keep(it):
            if it.kind in ("label", "raw"): return True
            if X & 1 and it.mn == "s_barrier": return False
            if X & 2 and it.mn == "s_waitcnt": return False
            if X & 4 and it.kind in ("valu", "trans"): return False
            if X & 8 and it.kind == "vmem": return False
            if X & 16 and it.kind == "ds": return False
            if X & 32 and it.kind == "trans": return False
            if X & 64 and it.kind == "valu": return False
            return True
        k.items[i0:] = [it for it in k.items[i0:] if keep(it)]
        k.wait_all()
    stamp(k, "it1-6")
    OM = MX + 4
    def finalize(dt, qt, pk=True):
        b = Q + 16 * ((2 * dt + qt) % 4)
        o = [f"v_accvgpr_read_b32 v{b+i}, a{O+32*dt+16*qt+i}" for i in range(16)]
        if dt == 0: o += [f"v_max3_f32 v{OM+qt}, |v{b+i}|, |v{b+i+1}|, v{OM+qt}" for i in range(0, 16, 2)]
        o += [f"v_pk_mul_f32 {v(b+i,2)}, {v(b+i,2)}, {v(RL,2)} op_sel:[0,{qt}] op_sel_hi:[1,{qt}]" for i in range(0, 16, 2)]
        for sp in range(2):
            o += [f"v_cvt_pk_bf16_f32 v{b+8*sp+j}, v{b+8*sp+2*j}, v{b+8*sp+2*j+1}" for j in range(4)]
            o.append(L(lambda sp=sp: k(f"ds_write_b128 v{HW+sp}, {v(b+8*sp,4)} offset:{32768*qt+8192*dt}", token="hw"), 22, "d"))
        return o
    f0 = finalize(0, 0); f1 = finalize(0, 1)
    def x_last(sc):
        sc.add(flat(w_dma(s_, "O") for s_ in range(4)), 0, 30)
        fin = [f"v_mov_b32 v{MX}, v{LS}", f"v_mov_b32 v{MX+1}, v{LS+1}", f"v_mov_b32 v{OM}, 0", f"v_mov_b32 v{OM+1}, 0",
               f"v_permlane32_swap_b32 v{LS}, v{MX}", f"v_permlane32_swap_b32 v{LS+1}, v{MX+1}",
               f"v_add_f32 v{LS}, v{LS}, v{MX}", f"v_add_f32 v{LS+1}, v{LS+1}, v{MX+1}",
               f"v_rcp_f32 v{RL}, v{LS}", f"v_rcp_f32 v{RL+1}, v{LS+1}", f"v_max_f32 v{MX+6}, v{LS}, v{LS+1}"]
        adr = []
        for sp in range(2):
            adr += [[f"s_lshl_b32 s56, s{sW}, 1", f"s_add_u32 s56, s56, {sp}", f"s_sub_u32 s56, s56, s{sR8}"], [f"s_and_b32 s56, s56, 7",
                    f"s_lshl_b32 s56, s56, 10", f"v_add_u32 v{HW+sp}, s56, v{VLIN}"]]
        sc.add(adr, 0, 8)
        sc.add(fin, 39, 43)
        sc.pin(40, L(lambda: k("s_barrier")))
        sc.add(a_reads(0), 40, 46, prio=1)
        sc.add(f0[:16] + f1[:12], 43, 48)
    iteration(1, last=True, extra=x_last)
    stamp(k, "it7")
    k(f"s_load_dwordx4 s[40:43], s[0:1], {A_WG}")
    k(f"s_load_dwordx2 s[44:45], s[0:1], {A_WD}")
    k(f"s_load_dwordx2 s[46:47], s[0:1], {A_X}")
    k(f"s_load_dwordx2 s[48:49], s[0:1], {A_OUT}")
    put(k, f0[16:] + f1[12:])
    for dt in range(1, 4):
        for qt in range(2): put(k, finalize(dt, qt))
    k.wait_all(vm=False); k("s_barrier")
    put(k, b_reads(0))
    stamp(k, "owrite")
    def ox(c):
        def f(sc, ld):
            assert ld <= 36, ld
            if c == 0:
                sc.add([f"v_min_f32 v{OM}, v{OM}, v{OM+1}", f"v_cmp_ngt_f32 vcc, {f32(2.0**120)}, v{MX+6}", "s_mov_b64 s[62:63], vcc",
                        f"v_cmp_gt_f32 vcc, {f32(2.0**-112 if not P['FORCE_FB'] else 2.0**100)}, v{OM}", "s_or_b64 s[62:63], s[62:63], vcc",
                        [f"s_lshl_b32 s{sT1}, s{sW}, 2", f"v_mov_b32 v{MX+1}, s{sT1}"], f"v_mov_b32 v{MX+2}, 0", f"v_mov_b32 v{MX+3}, 0x7f800000"], 4, 40)
            if c == 3:
                if P["PF1"]:
                    NA = P["F1R"] // 2; Wd_ = 3584 // NA; nl = (Wd_ + 1023) // 1024; per = Wd_ // nl // 16
                    pf = [[f"v_min_u32 v{tm}, {per-1}, v{LN_}", f"v_lshlrev_b32 v{tm}, 4, v{tm}"],
                          [f"s_lshr_b32 s56, s2, 3", f"s_lshl_b32 s56, s56, 2", f"s_add_u32 s56, s56, s{sW}"], [f"s_mul_i32 s56, s56, {4*3584}",
                           f"s_and_b32 s57, s2, {NA-1}"], [f"s_mul_i32 s57, s57, {Wd_}", f"s_add_u32 s56, s56, s57"],
                          L(lambda: k.srd(12, 40, 512 * 3584), 16), L(lambda: k.srd(16, 42, 512 * 3584), 16)]
                    n = 0
                    for r in range(4):
                        for l_ in range(nl):
                            for srd in (12, 16):
                                pf.append(f"buffer_load_dwordx4 {a(192+4*(n%16),4)}, v{tm}, s[{srd}:{srd+3}], s56 offen offset:{l_*per*16}"); n += 1
                        pf.append(f"s_add_u32 s56, s56, 3584")
                    sc.add(pf[:6], 8, 32); sc.add(pf[6:], 36, 58)
                sc.pin(38, [f"s_lshl_b32 s{sT0}, s{sG}, 21", f"s_lshl_b32 s{sT1}, s{sRB}, 16", f"s_add_u32 s{sT0}, s{sT0}, s{sT1}"])
                sc.pin(46, [f"s_lshl_b32 s{sT1}, s{sW}, 13", f"s_add_u32 s{sT0}, s{sT0}, s{sT1}", f"s_add_u32 s{sT0}, s{sT0}, {WS_P:#x}"])
        return f
    gemm("O", ox, 1, 4)
    stamp(k, "ogemm")
    for rt in range(2):
        k(f"v_cmp_nlt_f32 vcc, |v{ACC+16*rt}|, v{MX+3}"); k("s_or_b64 s[62:63], s[62:63], vcc")
    k(f"s_cselect_b32 s{sT1}, 1, 0"); k(f"v_mov_b32 v{MX}, s{sT1}")
    k(f"ds_write_b32 v{MX+1}, v{MX} offset:{L_K}", token="fl")
    for a_ in range(4):
        if a_ == 1: k.wait("fl"); k("s_barrier"); k(f"ds_read_b128 {v(STT,4)}, v{MX+2} offset:{L_K}")
        for rt in range(2):
            k(f"s_add_u32 s{sT1}, s{sT0}, {32768*rt + 2048*a_}")
            b = ACC + 32 * a_ + 16 * rt
            for sp in range(2):
                for j in range(4 * sp, 4 * sp + 4): k(f"v_cvt_pk_bf16_f32 v{Q+16*a_+8*rt+j}, v{b+2*j}, v{b+2*j+1}")
                k(f"buffer_store_dwordx4 {v(Q+16*a_+8*rt+4*sp,4)}, v{VL16}, s[24:27], s{sT1} offen offset:{1024*sp} sc1", token="PST")
    k(f"v_or3_b32 v{STT}, v{STT}, v{STT+1}, v{STT+2}"); k(f"v_or_b32 v{STT}, v{STT}, v{STT+3}")
    k(f"v_readfirstlane_b32 s{sT2}, v{STT}")
    k(f"s_andn2_b32 s{sT2}, s{sT2}, s{sFB}"); k("s_cbranch_scc1 FALLBACK")
    tail(sys.modules[__name__], k)
    stamp_flush(k, 0)
    k.label("END_attn"); k("s_endpgm")
    k.label("FALLBACK")
    k.wait_all(); k("s_barrier")
    k(f"s_mov_b32 s{sFB}, 1")
    k("s_nop 15")
    k("s_branch RESTART")
    k.label("FB_MAX")
    k.wait_all(); k("s_barrier")
    k(f"v_mov_b32 v{MX+4}, 0xff800000"); k(f"v_mov_b32 v{MX+5}, 0xff800000")
    def fbody():
        put(k, kv_dma("K", L_K, sO0) + nxt(sO0, sO0)); k.wait("K"); k("s_barrier")
        for s_ in range(8): put(k, rdK(s_, s_, L_K))
        for s_ in range(8):
            for qt in range(2): k(qk(s_, s_, qt, 0, True))
        put(k, maxops(0, MX))
        k(f"v_max_f32 v{MX+4}, v{MX+4}, v{MX}"); k(f"v_max_f32 v{MX+5}, v{MX+5}, v{MX+1}")
        k("s_barrier")
    k.loop(sST, 16, fbody)
    put(k, xhalf_max(MX + 4, MX + 2))
    for qt in range(2): k(f"v_sub_f32 v{MX+4+qt}, 0, v{MX+4+qt}")
    put(k, kfirst)
    k.wait_all(); k("s_barrier")
    for f in range(4): put(k, rdK(f, f, L_K + 16384 + 8192))
    qk0(False)
    k.wait_all()
    k("s_branch IT0")
    return k

from gen15_tail import tail

HEADER = open('adaLN_cond__sliding_block_cached__geglu_ffn__prompt.s.ref').read().split("; Override launch")[0]

if __name__ == "__main__":
    out = sys.argv[1] if len(sys.argv) > 1 else "k.s"
    me = sys.modules[__name__]
    ks = [gen_attn()]
    ks[-1].label("CODE_END")
    txt = emit(ks, header=HEADER)
    if P.get("SINGLE"): txt = txt.replace("; @launch kernel=" + KNAME + " ", "; @launch ")
    open(out, "w").write(txt)
    json.dump([[k.name, k.grid, k.block//64, k.stamps] for k in ks], open(out[:-2]+".json","w"))
    for k in ks: print(k.name, "regs(v,a,s)", k.used, "nops", k.n_nops, "misal", k.n_mis, "instrs", len(k.items))
```

```python
import math
from asmlib import *

def L(f, cost=4, mem=False):
    f.cost = cost; f.mem = mem; return f

def tail(M, k):
    P = M.P; f32 = M.f32; put = M.put; stamp = M.stamp
    sW = 28; VL16 = 216; TT = 220
    SCH = "" if P.get("PLAIN", 0) & 1 else " sc1"; SCA = "" if P.get("PLAIN", 0) & 2 else " sc1"
    FL1, FL2, FL3, FL4 = [M.WS_FL + 0x8000 * i for i in range(4)]
    L_S = 163840 - 256
    VF = 248
    def cond(sreg, lab, body):
        k(f"s_cmp_lg_u32 s{sreg}, 0"); k(f"s_cbranch_scc1 {lab}")
        s0 = (dict(k.vm), dict(k.lg)); body(); k.label(lab)
        k.vm = k._merge(k.vm, s0[0]); k.lg = k._merge(k.lg, s0[1])
    def flag_store(soff): k(f"buffer_store_dword v{VF+2}, v{VF+3}, s[20:23], s{soff} offen sc1")
    def publish(tok, soff):
        k.wait(tok); k("s_barrier"); flag_store(soff)
    def spin(soff, n, tag, counter=False, first_issued=False):
        k(f"s_mov_b64 exec, {(1 << n) - 1:#x}")
        k("s_mov_b32 s3, 0")
        if first_issued: k("s_branch CHK" + tag); st = dict(k.vm)
        k.label("POLL" + tag)
        if counter: k(f"buffer_load_dword v{VF+1}, v{VF}, s[16:19], 0 offen sc1")
        else: k(f"buffer_load_dword v{VF+1}, v{VF}, s[24:27], s{soff} offen sc1")
        if first_issued:
            k.wait_all(lg=False); k.label("CHK" + tag); k.vm = st
        k("s_add_u32 s3, s3, 1")
        k(f"v_cmp_gt_u32 vcc, 0x100, v{VF+1}" if counter else f"v_cmp_eq_u32 vcc, 0, v{VF+1}")
        k("s_cmp_gt_u32 s3, 0x8000"); k("s_cbranch_scc1 POLLED" + tag)
        k("s_cbranch_vccz POLLED" + tag)
        k(f"s_sleep {P['SLEEP2']}"); k("s_branch POLL" + tag)
        k.label("POLLED" + tag)
        k("s_mov_b64 exec, -1")
    def await_(soff, n, tag, counter=False):
        cond(sW, "NOPOLL" + tag, lambda: spin(soff, n, tag, counter))
        if not counter: k("s_barrier")
    k("s_lshl_b32 s3, s30, 3"); k("s_add_u32 s3, s3, s29")
    k("s_lshr_b32 s4, s3, 2"); k("s_lshl_b32 s4, s4, 15"); k("s_and_b32 s6, s3, 3"); k("s_lshl_b32 s6, s6, 7"); k("s_add_u32 s4, s4, s6")
    k("s_lshl_b32 s7, s3, 7"); k(f"s_add_u32 s7, s7, {FL1:#x}")
    k("s_lshl_b32 s6, s30, 10"); k(f"s_add_u32 s6, s6, {FL1:#x}")
    k.srd(20, 70, 0x100000); k("s_mov_b32 s46, s8"); k("s_mov_b32 s47, s9")
    k(f"v_lshlrev_b32 v{VF}, 7, v{TT}"); k(f"v_mov_b32 v{VF+2}, 1")
    k(f"v_lshl_add_u32 v{VF+3}, s{sW}, 6, v{TT}"); k(f"v_lshlrev_b32 v{VF+3}, 20, v{VF+3}")
    HB = 0; AF = 128; AC = 0
    VDA = 224; VDB = 228; VAA = 231; VAB = 235; T1 = 237; KC = 246
    sFS, sRB, sT0, sT1, sKA_, sKB_ = 29, 30, 31, 32, 33, 36
    R = P["F1R"]
    M.split2(k, 2, sFS, sRB, 32 // R, 16, sT0, sKA_)
    if R >= 8: k(f"s_and_b32 s{sKA_}, s{sKA_}, 7")
    else: k(f"s_lshl_b32 s{sKA_}, s{sKA_}, {M.lg2(8//R)}")
    k(f"s_mov_b32 s{sKB_}, s{sKA_}"); k(f"s_mov_b32 s39, s{sKA_}")
    k(f"s_lshr_b32 s37, s{sW}, 1")
    k(f"s_and_b32 s{sT0}, s{sW}, 1")
    k(f"s_lshl_b32 s{sT1}, s{sFS}, 7"); k(f"s_mul_i32 s35, s{sT0}, {32*3584}"); k(f"s_add_u32 s{sT1}, s{sT1}, s35")
    k(f"s_mul_i32 s66, s{sFS}, 96"); k("s_add_u32 s66, s66, s35")
    k(f"v_lshrrev_b32 v{T1}, 3, v{TT}"); k(f"v_bfe_u32 v{T1+1}, v{TT}, 4, 1"); k(f"v_lshlrev_b32 v{T1+1}, 2, v{T1+1}")
    k(f"v_and_b32 v{T1+2}, 7, v{TT}"); k(f"v_xor_b32 v{T1+2}, v{T1+2}, v{T1+1}")
    k("s_lshl_b32 s35, s37, 1"); k(f"v_xor_b32 v{T1+3}, s35, v{T1+2}")
    k(f"v_mul_u32_u24 v{VDA}, 3584, v{T1}"); k(f"v_lshl_add_u32 v{VDA}, v{T1+3}, 4, v{VDA}"); k(f"v_add_u32 v{VDA}, s{sT1}, v{VDA}")
    for n in range(1, 4): k(f"v_add_u32 v{VDA+n}, {n*(8*3584-1024)}, v{VDA}")
    VD0, VD1 = 160, 161
    k(f"v_lshlrev_b32 v{VF+4}, 10, v{T1}"); k(f"v_lshl_add_u32 v{VF+4}, v{T1+2}, 4, v{VF+4}")
    k("s_mov_b32 s35, 10923")
    for n in range(3):
        k(f"v_add_u32 v{T1}, {64*n}, v{TT}"); k(f"v_mul_u32_u24 v{T1+1}, s35, v{T1}"); k(f"v_lshrrev_b32 v{T1+1}, 16, v{T1+1}")
        k(f"v_mul_u32_u24 v{T1+2}, 6, v{T1+1}"); k(f"v_sub_u32 v{T1+2}, v{T1}, v{T1+2}")
        k(f"v_mul_u32_u24 v{T1+1}, 3584, v{T1+1}"); k(f"v_lshl_add_u32 v{T1+1}, v{T1+2}, 4, v{T1+1}")
        k(f"v_add_u32 v{T1+1}, s66, v{T1+1}"); k(f"v_add_u32 v{VDB+n}, {2048-1024*n}, v{T1+1}")
    for q in range(192): assert (q * 10923) >> 16 == q // 6
    k(f"s_lshl_b32 s35, s37, 16"); k(f"s_lshl_b32 s{sT1}, s{sT0}, 12"); k(f"s_add_u32 s64, s35, s{sT1}")
    k(f"s_mul_i32 s{sT1}, s{sT0}, 3072"); k(f"s_mul_i32 s65, s37, {65536+128}"); k(f"s_add_u32 s65, s65, s{sT1}")
    k(f"s_mul_i32 s35, s37, {12288+128}"); k(f"s_add_u32 s35, s35, s{sT1}"); k(f"s_add_u32 s35, s35, {131072}")
    k("s_cmp_eq_u32 s37, 0")
    k("s_cselect_b32 s8, s40, s44"); k("s_cselect_b32 s9, s41, s45"); k("s_and_b32 s9, s9, 0xffff")
    k(f"s_mov_b32 s10, {512*3584}"); k("s_mov_b32 s11, 0x20000")
    k(f"s_lshl_b32 s{sT1}, s{sRB}, 2"); k(f"s_add_u32 s{sT1}, s{sT1}, s{sW}"); k(f"s_lshl_b32 s{sT1}, s{sT1}, 15")
    k(f"s_add_u32 s38, s{sT1}, {M.WS_H2:#x}")
    k(f"s_lshl_b32 s34, s{sRB}, 11"); k(f"s_add_u32 s34, s34, {FL2:#x}")
    r_, c2, gn, h_, tm = T1 + 3, T1 + 4, T1 + 5, T1 + 6, T1 + 7
    M.lane_tr_parts(k, TT, r_, c2, gn, h_, tm)
    k(f"v_lshl_add_u32 v{tm}, v{h_}, 3, v{r_}")
    k(f"v_lshlrev_b32 v{T1}, 7, v{tm}"); k(f"v_lshl_add_u32 v{T1}, v{gn}, 16, v{T1}"); k(f"v_lshl_add_u32 v{T1}, v{c2}, 3, v{T1}")
    k(f"v_lshrrev_b32 v{T1+1}, 1, v{r_}"); k(f"v_lshl_add_u32 v{T1}, v{T1+1}, 6, v{T1}"); k(f"v_lshl_add_u32 v{VAA}, v{gn}, 5, v{T1}")
    for t in range(1, 4): k(f"v_xor_b32 v{VAA+t}, {32*t}, v{VAA}")
    k(f"v_mul_u32_u24 v{T1}, 96, v{tm}"); k(f"v_lshl_add_u32 v{T1}, v{c2}, 3, v{T1}")
    k(f"v_mul_u32_u24 v{T1+1}, {65536+128}, v{gn}"); k(f"v_add_u32 v{VAB}, v{T1}, v{T1+1}")
    k(f"v_mul_u32_u24 v{T1+1}, {12288+128}, v{gn}"); k(f"v_add_u32 v{VAB+1}, v{T1}, v{T1+1}"); k(f"v_add_u32 v{VAB+1}, {131072}, v{VAB+1}")
    def dmaA(st):
        return [[f"s_mul_i32 s{sT0}, s{sKA_}, {64*3584}", f"s_add_u32 m0, s64, {8192*st}"], [f"s_add_u32 s{sKA_}, s{sKA_}, 1", f"s_and_b32 s{sKA_}, s{sKA_}, 7"]] + \
               [L(lambda n=n: k(f"buffer_load_dwordx4 v{VDA+n}, s[8:11], s{sT0} offen offset:{1024*n} lds", token=f"A{st}"), 10, "v") for n in range(4)]
    def dmaB(st):
        m0 = f"s_add_u32 m0, s35, {6144*st}" if st < 2 else f"s_add_u32 m0, s65, {8192*(st-2)}"
        return [[f"s_mul_i32 s{sT0}, s{sKB_}, {64*3584}", m0], [f"s_add_u32 s{sKB_}, s{sKB_}, 1", f"s_and_b32 s{sKB_}, s{sKB_}, 7"]] + \
               [L(lambda n=n: k(f"buffer_load_dwordx4 v{VDB+n}, s[8:11], s{sT0} offen offset:{1024*n} lds", token=f"B{st}"), 10, "v") for n in range(3)]
    def hload(st):
        o = [[f"s_lshl_b32 s{sT1}, s39, 12", f"s_add_u32 s{sT1}, s{sT1}, s38"], ["s_add_u32 s39, s39, 1", "s_and_b32 s39, s39, 7"]]
        o += [f"buffer_load_dwordx4 {a(HB+16*st+4*j,4)}, v{VL16}, s[24:27], s{sT1} offen offset:{1024*j}{SCH}" for j in range(4)]
        return o
    stamp(k, "t_set")
    publish("PST", 7)
    k(f"v_and_b32 v1, 7, v{TT}"); k(f"v_lshrrev_b32 v7, 3, v{TT}"); k(f"v_lshl_add_u32 v7, s{sW}, 4, v7")
    k("v_lshlrev_b32 v3, 9, v7"); k("v_lshl_add_u32 v3, v1, 4, v3"); k("v_add_u32 v2, 4096, v3")
    k("v_lshlrev_b32 v8, 4, v1"); k(f"v_add_u32 v8, {L_S}, v8"); k(f"v_lshl_add_u32 v9, s{sW}, 2, v8")
    X = 128; XF = 24; MV = 136; PB = 64
    nd = 0
    while nd < P["TW1"]: put(k, dmaA(nd)); nd += 1
    await_(6, 8, "_1")
    stamp(k, "poll1")
    k(f"s_add_u32 s66, s4, {M.WS_P:#x}")
    for g in range(8):
        for i in range(2): k(f"buffer_load_dwordx4 {v(PB+8*g+4*i,4)}, v{3-i}, s[24:27], s66 offen sc1")
        if g < 7: k("s_add_u32 s66, s66, 0x200000")
    while nd < P["TWM"]: put(k, dmaA(nd)); nd += 1
    k("s_mov_b32 s67, 0xffff0000")
    def unpack(dst, src):
        k(f"v_lshlrev_b32 v{dst}, 16, v{src}"); k(f"v_and_b32 v{dst+1}, s67, v{src}")
    for q in range(8): unpack(XF + 2 * q, PB + q)
    for g in range(1, 8):
        for q in range(8):
            unpack(10 + 2 * (q & 1), PB + 8 * g + q)
            k(f"v_pk_add_f32 {v(XF+2*q,2)}, {v(XF+2*q,2)}, {v(10+2*(q&1),2)}")
    for q in range(8):
        unpack(10, X + q)
        k(f"v_pk_fma_f32 v[10:11], {v(XF+2*q,2)}, {v(MV+2*q,2)}, v[10:11]")
        k(f"v_cvt_pk_bf16_f32 v{X+q}, v10, v11")
        unpack(XF + 2 * q, X + q)
    k(f"s_add_u32 s66, s4, {M.WS_X1:#x}")
    for i in range(2): k(f"buffer_store_dwordx4 {v(X+4*i,4)}, v{3-i}, s[24:27], s66 offen sc1")
    stamp(k, "x1")
    M.ln_stats(k, XF)
    for e in range(0, 16, 2):
        k(f"v_pk_mul_f32 {v(XF+e,2)}, {v(XF+e,2)}, v[56:57]")
        k(f"v_pk_fma_f32 {v(XF+e,2)}, {v(XF+e,2)}, {v(152+e,2)}, {v(168+e,2)}")
        k(f"v_cvt_pk_bf16_f32 v{MV+e//2}, v{XF+e}, v{XF+e+1}")
    k(f"s_add_u32 s66, s4, {M.WS_H2:#x}")
    for i in range(2): k(f"buffer_store_dwordx4 {v(MV+4*i,4)}, v{3-i}, s[24:27], s66 offen sc1", token="H2S")
    k("s_add_u32 s7, s7, 0x8000")
    publish("H2S", 7)
    while nd < 8: put(k, dmaA(nd)); nd += 1
    nb = 0
    while nb < P["TB0"]: put(k, dmaB(nb)); nb += 1
    k.wait("A7")
    await_(34, 16, "_2")
    stamp(k, "poll2")
    HP = P["HPRE"]
    for st in range(HP): put(k, hload(st))
    def readsA(step):
        return [f"ds_read_b64_tr_b16 {a(AF+16*(step%4)+4*t+2*u,2)}, v{VAA+t} offset:{2048*step+512*u}" for t in range(4) for u in range(2)]
    def readsB(step):
        st, ks = divmod(step, 4)
        reg, base = (VAB + 1, 6144 * st) if st < 2 else (VAB, 8192 * (st - 2))
        return [f"ds_read_b64_tr_b16 {a(AF+16*(step%4)+4*t+2*u,2)}, v{reg} offset:{base+96*(16*ks+4*u)+32*t}" for t in range(3) for u in range(2)]
    def mf(step, t0, nt):
        return [f"v_mfma_f32_32x32x16_bf16 {v(AC+16*(t0+t),16)}, {a(AF+16*(step%4)+4*t,4)}, {a(HB+4*step,4)}, {'0' if step == 0 else v(AC+16*(t0+t),16)}" for t in range(nt)]
    BFR = 0; AF2 = 224; AC2 = 0
    VW, VL2, T2 = 162, 168, 170
    sNB, sRB2, sA0, sA1, sAB = 50, 51, 52, 53, 57
    SW_, SA_ = 72, 76
    BLK = [3, 7, 8, 0, 4, 1, 2, 5, 6, 9]
    NSL = 20
    def slot_addr(sl): return BLK[sl // 2] * 16384 + (sl % 2) * 2048
    def setup2():
        o = [L(lambda: M.split2(k, 2, sNB, sRB2, 32 // P["F2R"], 32, sA0, sA1), 40)]
        o += [L(lambda: k.srd(12, 46, 1792 * 1024), 16), L(lambda: k.srd(16, 48, 2048 * 1024), 16)]
        o += [f"s_lshl_b32 s{sA0}, s{sNB}, 7", f"v_add_u32 v{VD0}, s{sA0}, v{VF+4}", f"v_add_u32 v{VD1}, {8*1024-1024}, v{VD0}",
              f"s_lshl_b32 s56, s{sW}, 12", f"v_add_u32 v{VL2}, {224*512}, v{VL16}",
              [f"s_mul_i32 s{sAB}, s{sRB2}, {2*224*512}", f"s_add_u32 s{sAB}, s{sAB}, {M.WS_ACT:#x}"], f"s_lshl_b32 s58, s{sW}, 2"]
        for j in range(4):
            o += [[f"s_add_u32 s{sA0}, s{sNB}, {j}", f"s_and_b32 s{sA0}, s{sA0}, 3", f"s_add_u32 s{SW_+j}, s{sA0}, s58"]]
        o += [f"v_lshl_add_u32 v{T2}, v{h_}, 3, v{r_}", f"v_lshlrev_b32 v{VW}, 7, v{T2}", f"v_lshl_add_u32 v{T2+1}, v{gn}, 2, v{c2}",
              f"v_lshl_add_u32 v{VW}, v{T2+1}, 3, v{VW}", f"v_lshrrev_b32 v{T2}, 1, v{r_}", f"v_lshl_add_u32 v{VW}, v{T2}, 6, v{VW}",
              f"v_add_u32 v{VW}, s56, v{VW}", f"v_xor_b32 v{VW+1}, 64, v{VW}"]
        o += [f"v_add_u32 v{VW+2+j}, {65536*(1+j//2)}, v{VW+j%2}" for j in range(4)]
        o += [[f"s_lshr_b32 s59, s{sRB2}, 1", "s_lshl_b32 s59, s59, 2", f"s_add_u32 s59, s59, s{sW}"], ["s_lshl_b32 s59, s59, 9", f"s_add_u32 s59, s59, {FL3:#x}", "s_add_u32 s61, s59, 0x8000"],
              ["s_lshl_b32 s60, s30, 4", "s_add_u32 s60, s60, s29", "s_lshl_b32 s60, s60, 7"], [f"s_add_u32 s60, s60, {FL3:#x}", "s_add_u32 s62, s60, 0x8000"]]
        return o
    KS2 = [(j, t) for j in range(4) for t in range(4)] + [(j, t) for j in range(4) for t in range(4, 7)]
    def wdma(i):
        sl = i % NSL; j, t = KS2[i]
        mul, add = (4, t) if t < 4 else (3, 60 + t)
        return [[f"s_mul_i32 s{sA0}, s{SW_+j}, {mul<<14}", f"s_add_u32 s{sA0}, s{sA0}, {add<<14}", f"s_add_u32 m0, s56, {slot_addr(sl)}"],
                f"buffer_load_dwordx4 v{VD0}, s[12:15], s{sA0} offen lds",
                L(lambda: k(f"buffer_load_dwordx4 v{VD1}, s[12:15], s{sA0} offen offset:1024 lds", token=f"D{sl}"), 10, "v")]
    def aload(i):
        j, t = KS2[i]
        pre_ = [[f"s_lshl_b32 s{SA_+j}, s{SW_+j}, 12", f"s_add_u32 s{SA_+j}, s{SA_+j}, s{sAB}"]] if t == 0 else []
        if t == 4: pre_ = [[f"s_mul_i32 s{SA_+j}, s{SW_+j}, 3072", f"s_add_u32 s{SA_+j}, s{SA_+j}, s{sAB}", f"s_add_u32 s{SA_+j}, s{SA_+j}, 65536"]]
        return pre_ + [f"buffer_load_dwordx4 {a(BFR+8*i,4)}, v{VL16}, s[24:27], s{SA_+j} offen offset:{1024*(t%4)}{SCA}",
                       f"buffer_load_dwordx4 {a(BFR+8*i+4,4)}, v{VL2}, s[24:27], s{SA_+j} offen offset:{1024*(t%4)}{SCA}"]
    K0_ = -2 * math.sqrt(2 / math.pi) * M.LOG2E
    pre = [[f"s_mov_b32 s40, {f32(K0_*0.044715)}", "s_mov_b32 s41, s40"], f"v_mov_b32 v{KC}, {f32(K0_)}", f"v_mov_b32 v{KC+1}, {f32(K0_)}",
           [f"s_lshl_b32 s42, s{sRB}, 2", f"s_add_u32 s42, s42, s{sW}", f"s_mul_i32 s42, s42, {224*512}"],
           [f"s_add_u32 s42, s42, {M.WS_ACT:#x}", f"s_mul_i32 s43, s{sFS}, 3072", "s_add_u32 s43, s43, s42"], ["s_add_u32 s43, s43, 65536", f"s_lshl_b32 s44, s{sFS}, 12", "s_add_u32 s42, s42, s44"]]
    def epi(t, pk):
        G = AC + 16 * t; E = 136 + 8 * (t % 2); D = 152 + 4 * (t % 2)
        if pk:
            o = [f"v_pk_mul_f32 {v(E+r,2)}, {v(G+r,2)}, {v(G+r,2)}" for r in range(0, 8, 2)]
            o += [f"v_pk_fma_f32 {v(E+r,2)}, {v(E+r,2)}, s[40:41], {v(KC,2)}" for r in range(0, 8, 2)]
            o += [f"v_pk_mul_f32 {v(E+r,2)}, {v(E+r,2)}, {v(G+r,2)}" for r in range(0, 8, 2)]
            o += [f"v_exp_f32 v{E+r}, v{E+r}" for r in range(8)]
            o += [f"v_pk_mul_f32 {v(G+r,2)}, {v(G+r,2)}, {v(G+8+r,2)}" for r in range(0, 8, 2)]
            o += [f"v_pk_add_f32 {v(E+r,2)}, {v(E+r,2)}, 1.0 op_sel_hi:[1,0]" for r in range(0, 8, 2)]
            o += [f"v_rcp_f32 v{E+r}, v{E+r}" for r in range(8)]
            o += [f"v_pk_mul_f32 {v(G+r,2)}, {v(G+r,2)}, {v(E+r,2)}" for r in range(0, 8, 2)]
        else:
            o = [f"v_mul_f32 v{E+r}, v{G+r}, v{G+r}" for r in range(8)]
            o += [f"v_fma_f32 v{E+r}, v{E+r}, s40, v{KC}" for r in range(8)]
            o += [f"v_mul_f32 v{E+r}, v{E+r}, v{G+r}" for r in range(8)]
            for r in range(8): o += [f"v_exp_f32 v{E+r}, v{E+r}", f"v_mul_f32 v{G+r}, v{G+r}, v{G+8+r}"]
            o += [f"v_add_f32 v{E}, 1.0, v{E}"]
            for r in range(8): o += ([f"v_add_f32 v{E+r+1}, 1.0, v{E+r+1}"] if r < 7 else []) + [f"v_rcp_f32 v{E+r}, v{E+r}"]
            o += [f"v_mul_f32 v{G+r}, v{G+r}, v{E+r}" for r in range(8)]
        o += [f"v_cvt_pk_bf16_f32 v{D+j}, v{G+2*j}, v{G+2*j+1}" for j in range(4)]
        o.append(L(lambda: k(f"buffer_store_dwordx4 {v(D,4)}, v{VL16}, s[24:27], s{42 if t<4 else 43} offen offset:{1024*(t%4)} sc1", token="ST"), 10, "v"))
        return o
    put(k, readsA(0) + readsA(1))
    sc = Sched(128); m_ = []
    for step in range(32):
        g0 = 4 * step
        rd = readsA(step + 2) if step < 30 else readsB(step - 30)
        sc.add(rd, g0, g0 + 4, prio=1)
        sc.pin(g0 + 3, L(lambda step=step: k.wait_regs(a(AF + 16 * ((step + 1) % 4), 16), a(HB + 4 * ((step + 1) % 32), 4))), end=True)
        m_ += mf(step, 0, 4)
    sc.add([x for st in range(HP, 8) for x in hload(st)], 0, P["HEND"])
    lo = P["HEND"]
    for b_ in range(nb, 8):
        if b_ >= 2:
            gb = 16 * (b_ - 1) + 2
            if b_ % 2 == 1: sc.pin(gb, "s_barrier")
            gfree = 16 * ((b_ | 1) - 1) + 2
            lo = max(lo, gfree)
        if lo + 8 <= 128: sc.add(dmaB(b_), lo, lo + 8); lo += 8; nb = b_ + 1
        else: break
    sc.add(setup2(), 8, 64); sc.add(pre, 64, 100)
    sc.pin(120, L(lambda: (k.wait("B0", "B1"), k("s_barrier")), 8))
    for m, f_ in zip(m_, sc.run()): k(m); put(k, f_)
    stamp(k, "passA")
    sc = Sched(96); m_ = []
    for step in range(32):
        g0 = 3 * step
        if step < 30:
            if step % 8 == 6: sc.pin(g0, L(lambda step=step: (k.wait(f"B{(step+2)//4}", f"B{(step+2)//4+1}"), k("s_barrier")), 8))
            sc.add(readsB(step + 2), g0, g0 + 3, prio=1)
        if step < 31: sc.pin(g0 + 2, L(lambda step=step: k.wait_regs(a(AF + 16 * ((step + 1) % 4), 12))), end=True)
        m_ += mf(step, 4, 3)
    ld = [x for b_ in range(nb, 8) for x in dmaB(b_)]
    sc.add(ld, 0, 30)
    E_END = P["EEND"]
    sc.add([x for t in range(4) for x in epi(t, False)], 2, E_END)
    sc.add([x for i in range(4) for x in wdma(i)], 30, 48)
    sc.add([x for i in range(4, 6) for x in wdma(i)], 48, 66)
    sc.add([x for i in range(6, 10) for x in wdma(i)], 67, 92)
    sc.pin(P["PUBA"], L(lambda: (k.wait("ST"), k("s_barrier"), flag_store(60)), 18))
    sc.pin(93, L(lambda: (k.wait_all(vm=False), k("s_barrier")), 8))
    for m, f_ in zip(m_, sc.run()): k(m); put(k, f_)
    stamp(k, "ffn1")
    n = 10
    W1 = P["FW1"]
    for t in range(4, 7):
        per = (W1 // 2) if t < 6 else 0
        for j in range(per): put(k, wdma(n)); n += 1
        put(k, epi(t, True))
    X1R, GB = 176, 184
    k(f"s_lshl_b32 s54, s{sRB2}, 1"); k(f"s_and_b32 s55, s{sW}, 1"); k("s_add_u32 s63, s54, s55")
    k(f"s_lshr_b32 s64, s{sW}, 1"); k("s_lshl_b32 s64, s64, 2"); k(f"s_lshl_b32 s54, s{sNB}, 3"); k("s_add_u32 s64, s64, s54")
    k("s_lshl_b32 s65, s63, 15"); k("s_lshl_b32 s55, s64, 9"); k("s_add_u32 s65, s65, s55"); k(f"s_add_u32 s65, s65, {M.WS_X1:#x}")
    k(f"v_lshlrev_b32 v{T2}, 5, v{h_}")
    k("s_lshl_b32 s55, s64, 5"); k(f"s_add_u32 s55, s55, {M.WS_MOD+5*2048}")
    spin(59, 4, "_3")
    k("s_barrier"); flag_store(62)
    stamp(k, "pub3")
    APRE = P["APRE"]
    for i in range(APRE): put(k, aload(i))
    def reads2(i):
        sl = i % NSL; ad = slot_addr(sl)
        rd = [f"ds_read_b64_tr_b16 {a(AF2+8*(i%4)+4*a_+2*u,2)}, v{VW+2*(ad>>16)+a_} offset:{(ad&0xffff)+512*u}" for a_ in range(2) for u in range(2)]
        return [[L(lambda: k.wait(f"D{sl}")), rd[0]]] + rd[1:]
    put(k, reads2(0) + reads2(1))
    stamp(k, "poll3")
    CH = P["BCHK"]
    nal = APRE; polled = False
    for i in range(28):
        if i == CH: spin(61, 4, "_4", first_issued=True)
        sc = Sched(4, budget=40)
        if i + 2 < 28: sc.add(reads2(i + 2), 0, 4, prio=1)
        if i + 1 < 28: sc.pin(3, L(lambda i=i: k.wait_regs(a(AF2 + 8 * ((i + 1) % 4), 8), a(BFR + 8 * (i + 1), 8))), end=True)
        ld = []
        for _ in range(2):
            if nal < (28 if i >= CH else 16): ld += aload(nal); nal += 1
            elif n < 28 and n - NSL < i: ld += wdma(n); n += 1
        if n < 28 and n - NSL < i and n <= i + 6: ld += wdma(n); n += 1
        if i == CH - P["BLEAD"]:
            ld += [["s_mov_b64 exec, 15", f"buffer_load_dword v{VF+1}, v{VF}, s[24:27], s61 offen sc1", "s_mov_b64 exec, -1"]]
        if i == 20:
            ld += [f"buffer_load_dwordx4 {v(X1R+4*sp,4)}, v{VL16}, s[24:27], s65 offen offset:{1024*sp} sc1" for sp in range(2)]
            ld += [f"buffer_load_dwordx4 {v(GB+8*sp+4*q,4)}, v{T2}, s[24:27], s55 offen offset:{64*sp+16*q} sc1" for sp in range(2) for q in range(2)]
        sc.add(ld, 0, 4)
        mf2 = [f"v_mfma_f32_32x32x16_bf16 {v(AC2+32*a_+16*rt,16)}, {a(AF2+8*(i%4)+4*a_,4)}, {a(BFR+8*i+4*rt,4)}, {'0' if i==0 else v(AC2+32*a_+16*rt,16)}" for a_ in range(2) for rt in range(2)]
        for m, f_ in zip(mf2, sc.run()): k(m); put(k, f_)
    assert n == 28 and nal == 28
    stamp(k, "ffn2")
    t2 = T2 + 2
    k("s_barrier")
    k(f"s_lshl_b32 s54, s{sW}, 14"); k(f"v_add_u32 v{t2+1}, s54, v{VL16}")
    for q in range(16): k(f"ds_write_b128 v{t2+1}, {v(AC2+4*q,4)} offset:{1024*q}", token="red")
    R_ = 64
    for r in range(16):
        if r % 2 == 0: k(f"v_lshlrev_b32 v{128+r}, 16, v{X1R+r//2}")
        else: k(f"v_and_b32 v{128+r}, s67, v{X1R+r//2}")
    k(f"v_and_b32 v{t2}, 31, v{TT}"); k(f"v_lshlrev_b32 v{t2}, 10, v{t2}"); k(f"v_lshl_add_u32 v{t2}, v{h_}, 4, v{t2}")
    k(f"v_add_u32 v{t2+2}, s56, v{VL16}")
    k("s_lshl_b32 s54, s63, 15"); k("s_lshl_b32 s55, s64, 4"); k("s_add_u32 s54, s54, s55")
    k.wait("red"); k("s_barrier")
    for q in range(4):
        for ww in range(4): k(f"ds_read_b128 {v(R_+16*ww+4*q,4)}, v{t2+2} offset:{16384*ww+1024*q}")
    for sp in range(2):
        for r in range(8 * sp, 8 * sp + 8, 2):
            k(f"v_pk_add_f32 {v(R_+r,2)}, {v(R_+r,2)}, {v(R_+16+r,2)}"); k(f"v_pk_add_f32 {v(R_+32+r,2)}, {v(R_+32+r,2)}, {v(R_+48+r,2)}")
        for r in range(8 * sp, 8 * sp + 8, 2): k(f"v_pk_add_f32 {v(R_+r,2)}, {v(R_+r,2)}, {v(R_+32+r,2)}")
        for r in range(8 * sp, 8 * sp + 8, 2): k(f"v_pk_fma_f32 {v(R_+r,2)}, {v(R_+r,2)}, {v(GB+r,2)}, {v(128+r,2)}")
        for j in range(4 * sp, 4 * sp + 4): k(f"v_cvt_pk_bf16_f32 v{144+j}, v{R_+2*j}, v{R_+2*j+1}")
        k(f"buffer_store_dwordx4 {v(144+4*sp,4)}, v{t2}, s[16:19], s54 offen offset:{32*sp} sc1")
```

```python
import sys, struct, math, os, json
from asmlib import *

def f32(x): return "0x%08x" % struct.unpack("<I", struct.pack("<f", x))[0]
LOG2E = 1.4426950408889634
CS = 128 ** -0.5
A_X, A_K, A_V, A_WQ, A_WO, B_X, A_WG, A_WU, A_WD, A_C, A_WM, A_OUT, A_DBG, A_WS = [8 * i for i in range(14)]
WS_MOD = 0x0
WS_GO = 0x18000
WS_FL = 0x20000
WS_ST = 0x10000
WS_P = 0x400000
WS_X1 = 0x1400000
WS_H2 = 0x1600000
WS_ACT = 0x1800000
WS_BYTES = 0x10000000
WS_DBG = 0x8000000
P = dict(STAMPS=0, G=2, ROT=1, F1R=8, F2R=8, PREF0=1, PREFC=1, PREFQ=1, PREFK=1, PORD=1, XPRE=0, TLBW=1, PBAR=3, WPOS=1, DEFER=1, SYNC=1, LFIRST=0, SLEEP=2, OSC=1, SLEEP2=4, FW1=6, FW2=20, F2PRE=12, TOUCH=0, N0=4, QP0=10, QBURST=1, TW1=8, TWM=8, TB0=2, HEND=32, APRE=6, BLEAD=4, EEND=72, PUBA=84, WLAG=4, BCHK=10, TW2=5, HPRE=3, PSYS=0, WPRE=2, BURST=54, KEARLY=0, BIAS=100, FORCE_FB=0, PNT=0, PST=2, AST=2, PF1=1, PF2=1)
for kv in os.environ.get("GP", "").split(","):
    if kv: P[kv.split("=")[0]] = int(kv.split("=")[1])

def stamp(k, name):
    if not P["STAMPS"]: return
    SETS = {0: ("start", "mod", "qgemm", "it0", "it1-6", "owrite", "ogemm", "t_set", "end"), 1: ("start", "gemv", "stats", "poll", "mod", "qgemm", "end"),
            3: ("start", "t_set", "poll1", "x1", "poll2", "ffn1", "pub3", "poll3", "end"), 6: ("start", "poll2", "passA", "ffn1", "pub3", "poll3", "ffn2", "end"), 4: ("start", "mod", "q0", "q1", "q2", "qgemm", "end"), 5: ("start", "owrite", "q0o", "q1o", "q2o", "ogemm", "end")}
    if name not in SETS[P.get("DG", 0)]: return
    i = len(k.stamps); k.stamps.append(name)
    assert i < 9
    k.sgpr = 102
    k("s_memtime s[80:81]"); k("s_memrealtime s[100:101]"); k("s_waitcnt lgkmcnt(0)")
    k(f"s_mov_b32 s{82+2*i}, s80"); k(f"s_mov_b32 s{83+2*i}, s100")
def stamp_begin(k):
    k.stamps = []
    if not P["STAMPS"]: return
    stamp(k, "start")
def stamp_flush(k, kidx):
    if not P["STAMPS"]: return
    stamp(k, "end")
    if P["STAMPS"] == 2:
        lab = k.newlabel("NODBG")
        k("s_mov_b64 exec, -1")
        k(f"s_xor_b32 s100, s2, {P.get('DWG', 200)}"); k("s_or_b32 s100, s100, s101"); k("s_cmp_lg_u32 s100, 0"); k(f"s_cbranch_scc1 {lab}")
        k(f"s_load_dwordx2 s[66:67], s[0:1], {A_DBG}")
        k.srd(60, 66, 256)
        k("v_mov_b32 v1, 0")
        n = len(k.stamps)
        for j in range(1, n):
            k(f"s_sub_u32 s100, s{77+2*j}, s77"); k("v_mov_b32 v0, s100")
            k(f"buffer_store_dword v0, v1, s[60:63], 0 offen offset:{4*j}")
        k(f"s_sub_u32 s100, s{76+2*(n-1)}, s76"); k("v_mov_b32 v0, s100")
        k(f"buffer_store_dword v0, v1, s[60:63], 0 offen offset:{4*n}")
        k.label(lab)
        return
    k(f"s_load_dwordx2 s[64:65], s[0:1], {A_WS}")
    k("s_mov_b64 exec, -1")
    k.srd(56, 64, WS_BYTES)
    k("s_lshl_b32 s100, s2, 3"); k("s_add_u32 s100, s100, s28"); k("s_lshl_b32 s100, s100, 8")
    k(f"s_add_u32 s100, s100, {WS_DBG + kidx*0x100000:#x}")
    k("v_mov_b32 v1, 0")
    for j, sr in enumerate([82 + i for i in range(2*len(k.stamps))]):
        k(f"v_mov_b32 v0, s{sr}")
        k(f"buffer_store_dword v0, v1, s[56:59], s100 offen offset:{4*j}")

def wave_id(k, sdst, vtmp):
    k(f"v_lshrrev_b32 v{vtmp}, 6, v0")
    k(f"v_readfirstlane_b32 s{sdst}, v{vtmp}")
def rowsum_8(k, val, tmp):
    k(f"v_add_f32_dpp v{val}, v{val}, v{val} row_ror:8 row_mask:0xf bank_mask:0xf")
    k(f"v_mov_b32 v{tmp}, v{val}"); k(f"v_permlane16_swap_b32 v{val}, v{tmp}"); k(f"v_add_f32 v{val}, v{val}, v{tmp}")
    k(f"v_mov_b32 v{tmp}, v{val}"); k(f"v_permlane32_swap_b32 v{val}, v{tmp}"); k(f"v_add_f32 v{val}, v{val}, v{tmp}")
def rnd(k, d, sreg): k(f"v_cvt_pk_bf16_f32 v{d}, 0, v{sreg}")
def lg2(x): return x.bit_length() - 1
def split2(k, sb, sA, sB, nA_per, nB_total, t0, t1):
    A_total = 256 // nB_total; NA = A_total // nA_per
    k(f"s_and_b32 s{t0}, s{sb}, 7"); k(f"s_lshr_b32 s{t1}, s{sb}, 3")
    k(f"s_and_b32 s{sA}, s{t0}, {NA-1}"); k(f"s_lshl_b32 s{sA}, s{sA}, {lg2(nA_per)}")
    k(f"s_and_b32 s{sB}, s{t1}, {nA_per-1}"); k(f"s_add_u32 s{sA}, s{sA}, s{sB}")
    k(f"s_lshr_b32 s{sB}, s{t0}, {lg2(NA)}"); k(f"s_lshl_b32 s{sB}, s{sB}, {lg2(32//nA_per)}")
    k(f"s_lshr_b32 s{t1}, s{t1}, {lg2(nA_per)}"); k(f"s_add_u32 s{sB}, s{sB}, s{t1}")
def lane_tr_parts(k, lane, r, c2, gn, h, tmp):
    k(f"v_bfe_u32 v{r}, v{lane}, 2, 2")
    k(f"v_and_b32 v{c2}, 1, v{lane}"); k(f"v_lshlrev_b32 v{c2}, 1, v{c2}")
    k(f"v_bfe_u32 v{tmp}, v{lane}, 1, 1"); k(f"v_or_b32 v{c2}, v{c2}, v{tmp}")
    k(f"v_bfe_u32 v{gn}, v{lane}, 4, 1")
    k(f"v_lshrrev_b32 v{h}, 5, v{lane}")

QS = CS * LOG2E
KNAME = "adaLN_cond__sliding_block_cached__geglu_ffn__prompt_kernel"
def ln_stats(k, XF):
    k(f"v_pk_add_f32 v[10:11], {v(XF,2)}, {v(XF+2,2)}")
    for e in range(4, 16, 2): k(f"v_pk_add_f32 v[10:11], v[10:11], {v(XF+e,2)}")
    k("v_add_f32 v10, v10, v11")
    def allreduce(off):
        rowsum_8(k, 10, 11)
        k(f"ds_write_b32 v9, v10 offset:{off}", token="w"); k.wait("w"); k("s_barrier")
        k(f"ds_read_b128 {v(12,4)}, v8 offset:{off}")
        k("v_add_f32 v12, v12, v13"); k("v_add_f32 v14, v14, v15"); k("v_add_f32 v10, v12, v14")
    allreduce(0)
    k(f"v_mul_f32 v58, {f32(-1/512)}, v10"); k("v_mov_b32 v59, v58")
    for e in range(0, 16, 2): k(f"v_pk_add_f32 {v(XF+e,2)}, {v(XF+e,2)}, v[58:59]")
    k(f"v_pk_mul_f32 v[10:11], {v(XF,2)}, {v(XF,2)}")
    for e in range(2, 16, 2): k(f"v_pk_fma_f32 v[10:11], {v(XF+e,2)}, {v(XF+e,2)}, v[10:11]")
    k("v_add_f32 v10, v10, v11")
    allreduce(128)
    k(f"v_mov_b32 v11, {f32(1e-5)}"); k(f"v_fmac_f32 v11, {f32(1/512)}, v10")
    k("v_rsq_f32 v56, v11"); k("v_mov_b32 v57, v56")

def gen_ln2():
    k = Kernel("ln2_kernel", 256, 256, 256, vgpr=160, sgpr=64)
    k("s_cmp_ge_u32 s2, 256"); k("s_cbranch_scc1 END_ln2")
    stamp_begin(k)
    k(f"s_load_dwordx2 s[4:5], s[0:1], {A_X}")
    k(f"s_load_dwordx2 s[6:7], s[0:1], {A_WS}")
    k("v_and_b32 v1, 7, v0"); k("v_lshrrev_b32 v2, 3, v0"); k("v_lshrrev_b32 v6, 6, v0")
    k("v_and_b32 v7, 7, v2"); k("v_lshl_add_u32 v7, v6, 4, v7")
    k("v_lshlrev_b32 v3, 9, v7"); k("v_lshl_add_u32 v3, v1, 4, v3")
    k("v_add_u32 v2, 4096, v3")
    k("v_lshlrev_b32 v4, 10, v1"); k("v_lshl_add_u32 v4, v7, 4, v4")
    k("v_lshlrev_b32 v5, 5, v7")
    k("v_lshlrev_b32 v8, 4, v1"); k("v_lshl_add_u32 v9, v6, 2, v8")
    k("s_and_b32 s25, s2, 7"); k("s_lshl_b32 s25, s25, 5"); k("s_lshr_b32 s26, s2, 3"); k("s_add_u32 s25, s25, s26")
    k("s_lshl_b32 s20, s25, 13")
    k("s_lshr_b32 s21, s25, 2"); k("s_lshl_b32 s21, s21, 15"); k("s_and_b32 s22, s25, 3"); k("s_lshl_b32 s22, s22, 7")
    k("s_add_u32 s21, s21, s22")
    k(f"s_add_u32 s23, s21, {WS_P:#x}")
    k.srd(12, 6, WS_BYTES)
    X = 16; XF = 24; MV = 40; PB = 64
    for g in range(8):
        for i in range(2):
            k(f"buffer_load_dwordx4 {v(PB+8*g+4*i,4)}, v{3-i}, s[12:15], s23 offen" + (" nt" if P["PNT"] else ""))
        if g < 7: k("s_add_u32 s23, s23, 0x200000")
    k.srd(8, 4, 2048 * 1024)
    for i in range(2): k(f"buffer_load_dwordx4 {v(X+4*i,4)}, v4, s[8:11], s20 offen offset:{128*i}")
    k("v_mov_b32 v10, 0"); k("s_lshl_b32 s27, s2, 7"); k(f"s_add_u32 s27, s27, {WS_FL:#x}")
    k("buffer_store_dword v10, v10, s[12:15], s27 offen sc1")
    k("s_mov_b32 s24, 0xffff0000")
    def load_mod(base, m):
        k(f"s_mov_b32 s23, {WS_MOD + m*2048}")
        for i in range(2):
            for hh in range(2):
                k(f"buffer_load_dwordx4 {v(base+8*i+4*hh,4)}, v5, s[12:15], s23 offen offset:{256*i+16*hh}")
    def unpack(dst, src):
        k(f"v_lshlrev_b32 v{dst}, 16, v{src}"); k(f"v_and_b32 v{dst+1}, s24, v{src}")
    load_mod(MV, 2); load_mod(128, 4); load_mod(144, 3)
    for q in range(8): unpack(XF + 2 * q, PB + q)
    for g in range(1, 8):
        for q in range(8):
            unpack(10 + 2 * (q & 1), PB + 8 * g + q)
            k(f"v_pk_add_f32 {v(XF+2*q,2)}, {v(XF+2*q,2)}, {v(10+2*(q&1),2)}")
    for q in range(8):
        unpack(10, X + q)
        k(f"v_pk_fma_f32 v[10:11], {v(XF+2*q,2)}, {v(MV+2*q,2)}, v[10:11]")
        k(f"v_cvt_pk_bf16_f32 v{X+q}, v10, v11")
        unpack(XF + 2 * q, X + q)
    k(f"s_add_u32 s23, s21, {WS_X1:#x}")
    for i in range(2): k(f"buffer_store_dwordx4 {v(X+4*i,4)}, v{3-i}, s[12:15], s23 offen sc1")
    stamp(k, "x1")
    ln_stats(k, XF)
    stamp(k, "stats")
    for e in range(0, 16, 2):
        k(f"v_pk_mul_f32 {v(XF+e,2)}, {v(XF+e,2)}, v[56:57]")
        k(f"v_pk_fma_f32 {v(XF+e,2)}, {v(XF+e,2)}, {v(128+e,2)}, {v(144+e,2)}")
        k(f"v_cvt_pk_bf16_f32 v{MV+e//2}, v{XF+e}, v{XF+e+1}")
    k(f"s_add_u32 s23, s21, {WS_H2:#x}")
    for i in range(2): k(f"buffer_store_dwordx4 {v(MV+4*i,4)}, v{3-i}, s[12:15], s23 offen sc1")
    stamp_flush(k, 1)
    k.label("END_ln2"); k("s_endpgm")
    return k

def put(k, seq):
    for x in seq:
        if isinstance(x, list): put(k, x)
        elif callable(x): x()
        else: k(x)

def gen_attn():
    k = Kernel(KNAME, 256, 256, 163840, vgpr=256, agpr=256, sgpr=82)
    k.denorm32 = P.get("DEN", 3)
    L_K, L_H, L_V, L_W, L_M = 0, 32768, 32768, 98304, 16384
    ACC = 0; S = 0; CI = 64; Q = 128
    VK = 192; VV = 200; VW = 204; VDW = 208; VDK = 212; VDV = 214; VLIN = 215; VL16 = 216
    LS = 217; VLO = 219
    T = 220
    LN_, ROWL, GR16 = T, T + 1, T + 2
    r_, c2, gn, h_, tm = T + 3, T + 4, T + 5, T + 6, T + 7
    CH8 = T + 10; HW = T + 11
    VX = T + 13; VM = T + 15
    MX = T + 16
    STT = T + 24
    RL = T + 28; UT = T + 28
    O = 0; FR = 128; AF = 128; BF = 160
    sW, sG, sRB, sT0, sT1, sRING, sST, sFB, sROT, sT2 = 28, 29, 30, 32, 33, 34, 35, 39, 50, 51
    sE0, sE1, sE2 = 61, 62, 63
    sO0, sO1, sO2, sW2K, sW256, sKhi, sMASK, sCC, sR8 = 36, 37, 38, 52, 54, 55, 58, 59, 6
    TAB = 72
    def L(f, cost=4, mem=False):
        f.cost = cost; f.mem = mem; return f
    k("s_cmp_ge_u32 s2, 256"); k("s_cbranch_scc1 END_attn")
    stamp_begin(k)
    k(f"s_mov_b32 s{sFB}, 0")
    if P["PREFC"]:
        k("s_getpc_b64 s[56:57]")
        k.label("PCREF")
        k(f"s_lshr_b32 s{sT1}, s2, 3"); k(f"s_lshl_b32 s{sT1}, s{sT1}, 12")
        k("v_lshlrev_b32 v108, 4, v0"); k(f"v_add_u32 v108, s{sT1}, v108"); k("v_min_u32 v108, CODE_END-PCREF-16, v108")
        k("global_load_dwordx4 a[252:255], v108, s[56:57]")
    wave_id(k, sW, T)
    k(f"v_and_b32 v{LN_}, 63, v0")
    k.label("RESTART")
    k(f"s_load_dwordx4 s[8:11], s[0:1], {A_C}")
    k(f"s_load_dwordx2 s[4:5], s[0:1], {A_X}")
    k(f"s_load_dwordx4 s[68:71], s[0:1], {A_DBG}")
    k(f"s_load_dwordx8 s[40:47], s[0:1], {A_K}")
    if P["TOUCH"]:
        k(f"s_load_dwordx4 s[84:87], s[0:1], {A_WG}"); k(f"s_load_dwordx2 s[88:89], s[0:1], {A_WD}"); k(f"s_load_dwordx2 s[90:91], s[0:1], {A_OUT}")
    L_R = L_M + 4096
    PSC = "sc1"
    GW, GC, GA = 64, 80, 88
    k(f"v_lshl_add_u32 v99, s{sW}, 6, v{LN_}")
    k("v_and_b32 v100, 1, v99"); k("v_lshrrev_b32 v101, 1, v99")
    k("v_mul_u32_u24 v102, 6144, v101"); k("v_lshl_add_u32 v102, v100, 4, v102"); k("v_lshlrev_b32 v103, 1, v101")
    k("v_lshrrev_b32 v104, 4, v99"); k("v_lshlrev_b32 v104, 6, v104"); k("v_lshl_add_u32 v104, v100, 5, v104")
    sSL = 7; sPR = 53
    k(f"s_and_b32 s{sT0}, s2, 7"); k(f"s_lshr_b32 s{sT1}, s2, 3")
    k(f"s_lshl_b32 s{sSL}, s{sT0}, 3"); k(f"s_add_u32 s{sSL}, s{sSL}, s{sT1}")
    k(f"s_lshl_b32 s{sT2}, s{sT0}, 4"); k(f"s_add_u32 s{sT2}, s{sT2}, s{sT1}"); k(f"s_add_u32 s{sT2}, s{sT2}, 56")
    k("s_cmp_lt_u32 s2, 64"); k(f"s_cselect_b32 s{sSL}, s{sSL}, s{sT2}")
    k(f"s_cselect_b32 s{sPR}, s{sFB}, 1")
    k(f"s_lshl_b32 s31, s{sSL}, 5")
    k(f"v_lshlrev_b32 v{VL16}, 4, v{LN_}")
    G = P["G"]
    NG = 8 // G; NS = 32 // G
    k(f"s_and_b32 s{sG}, s2, {NG-1}"); k(f"s_lshl_b32 s{sG}, s{sG}, {lg2(G)}"); k(f"s_lshr_b32 s{sT0}, s2, {3+lg2(NS)}"); k(f"s_add_u32 s{sG}, s{sG}, s{sT0}")
    k(f"s_bfe_u32 s{sROT}, s2, {3 | (lg2(NS) << 16):#x}")
    k(f"s_and_b32 s{sRB}, s2, 7"); k(f"s_lshr_b32 s{sRB}, s{sRB}, {lg2(NG)}"); k(f"s_lshl_b32 s{sRB}, s{sRB}, {lg2(NS)}"); k(f"s_add_u32 s{sRB}, s{sRB}, s{sROT}")
    k(f"s_lshl_b32 s{sROT}, s{sROT}, {lg2(G)}")
    k(f"s_and_b32 s{sR8}, s{sROT}, 7"); k(f"s_lshr_b32 s{sCC}, s{sROT}, 3")
    RR, CGL = tm, tm + 1
    k(f"v_bfe_u32 v{RR}, v{LN_}, 2, 3")
    k(f"v_lshrrev_b32 v{CGL}, 5, v{LN_}"); k(f"v_lshlrev_b32 v{CGL}, 2, v{CGL}"); k(f"v_and_or_b32 v{CGL}, v{LN_}, 3, v{CGL}")
    k(f"v_lshlrev_b32 v{VX}, 10, v{RR}"); k(f"v_lshl_add_u32 v{VX}, v{CGL}, 4, v{VX}"); k(f"v_add_u32 v{VX+1}, 8192, v{VX}")
    k(f"s_lshl_b32 s3, s{sRB}, 16"); k(f"s_lshl_b32 s{sT2}, s{sW}, 14"); k(f"s_add_u32 s3, s3, s{sT2}")
    XR = [0, 128, 144, 160]; CN = 176
    XS = [48, 49, 56, 57]
    for c in range(4):
        put(k, [f"s_add_u32 s{XS[c]}, s{sCC}, {c}", f"s_and_b32 s{XS[c]}, s{XS[c]}, 3", f"s_lshl_b32 s{XS[c]}, s{XS[c]}, 8", f"s_add_u32 s{XS[c]}, s{XS[c]}, s3"])
    xl = [f"buffer_load_dwordx4 {v(XR[c]+8*cb+4*oo,4)}, v{VX+oo}, s[16:19], s{XS[c]} offen offset:{128*cb}" for oo in range(2) for c in range(4) for cb in range(2)]
    k.srd(12, 10, 512 * 6144); k.srd(20, 8, 1024); k.srd(16, 4, 2048 * 1024)
    def gemv_loads():
        k(f"s_mov_b32 s{sT0}, s31")
        for i in range(4):
            k(f"buffer_load_dwordx4 {v(GW+4*i,4)}, v102, s[12:15], s{sT0} offen")
            if i < 3: k(f"s_add_u32 s{sT0}, s{sT0}, {128*6144}")
    for i in range(4): k(f"buffer_load_ushort v{GC+i}, v103, s[20:23], 0 offen offset:{256*i}")
    k.srd(24, 70, WS_BYTES)
    k(f"s_lshl_b32 s{sE2}, s{sW}, 11"); k(f"s_add_u32 s{sE2}, s{sE2}, {WS_GO:#x}")
    for i in range(2): k(f"buffer_load_dwordx4 {v(MX+4*i,4)}, v{VL16}, s[24:27], s{sE2} offen offset:{1024*i} sc1")
    k(f"v_lshlrev_b32 v109, 3, v{LN_}"); k(f"s_lshl_b32 s{sE1}, s{sSL}, 7"); k(f"s_add_u32 s{sE1}, s{sE1}, {WS_GO:#x}")
    k(f"buffer_load_dword v110, v109, s[24:27], s{sE1} offen offset:4 sc1")
    k(f"s_xor_b32 s{sE0}, s{sW}, 3"); k(f"s_or_b32 s{sE0}, s{sE0}, s{sFB}")
    k(f"s_cmp_lg_u32 s{sE0}, 0"); k("s_cbranch_scc1 NOZERO")
    k(f"v_lshlrev_b32 v111, 15, v{LN_}"); k("v_mov_b32 v107, 0"); k(f"s_lshl_b32 s{sT0}, s2, 7"); k(f"s_add_u32 s{sT0}, s{sT0}, {WS_FL:#x}")
    k("s_mov_b64 exec, 15")
    k(f"buffer_store_dword v107, v111, s[24:27], s{sT0} offen sc1")
    k("s_mov_b64 exec, -1")
    k.label("NOZERO")
    k.vm = {kk: max(p - 1, 0) for kk, p in k.vm.items()}
    k(f"s_cmp_eq_u32 s{sPR}, 0"); k("s_cbranch_scc1 PLOAD")
    s_a = (dict(k.vm), dict(k.lg))
    if P["TOUCH"]:
        k(f"s_cmp_lt_u32 s2, {P['TOUCH']}"); k("s_cbranch_scc1 NOTOUCH")
        k(f"s_lshl_b32 s92, s{sW}, 20"); k(f"s_and_b32 s93, s92, 0x100000")
        k.auto = False
        for base in (44, 40, 42, 46): k(f"s_load_dword s81, s[{base}:{base+1}], s92")
        for base in (84, 86, 88, 90): k(f"s_load_dword s81, s[{base}:{base+1}], s93")
        for i in range(8):
            k(f"s_load_dword s81, s[70:71], s92"); k("s_add_u32 s92, s92, 0x400000")
        k.auto = True
        k.label("NOTOUCH")
        k.sgpr = max(k.sgpr, 94)
    put(k, xl)
    s_b = dict(k.vm)
    k("s_branch PJOIN")
    k.label("PLOAD")
    k.vm = dict(s_a[0])
    gemv_loads()
    k.label("PJOIN")
    k.vm = k._merge(k.vm, s_b)
    k(f"s_lshl_b32 s{sW256}, s{sW}, 8"); k(f"s_lshl_b32 s{sW2K}, s{sW}, 11")
    k(f"v_lshrrev_b32 v{ROWL}, 4, v{LN_}")
    k(f"v_and_b32 v{r_}, 15, v{LN_}"); k(f"v_lshlrev_b32 v{GR16}, 2, v{ROWL}"); k(f"v_xor_b32 v{GR16}, v{GR16}, v{r_}")
    k(f"v_lshlrev_b32 v{GR16}, 4, v{GR16}")
    def w_voffs(psh, scol):
        return [f"v_lshl_add_u32 v{VDW}, v{ROWL}, {psh}, v{GR16}", f"v_add_u32 v{VDW}, s{scol}, v{VDW}"] + \
               [f"v_add_u32 v{VDW+n}, {n*((4<<psh)-1024)}, v{VDW}" for n in range(1, 4)]
    k(f"s_lshl_b32 s{sT0}, s{sG}, 10"); k(f"s_add_u32 s{sT0}, s{sT0}, s{sW256}")
    put(k, w_voffs(13, sT0))
    k(f"s_lshl_b32 s{sRING}, s{sW}, 14"); k(f"s_add_u32 s{sRING}, s{sRING}, {L_W}")
    for p in range(8):
        k(f"s_add_u32 s{TAB+p}, s{sR8}, {p}"); k(f"s_and_b32 s{TAB+p}, s{TAB+p}, 7"); k(f"s_lshl_b32 s{TAB+p}, s{TAB+p}, 17")
    k(f"s_lshl_b32 s{sKhi}, s{sCC}, 20")
    k.srd(8, 44, 512 * 8192)
    def w_dma(step, which):
        slot = step % 4
        if which == "Q":
            srd = 8
            pre = [f"s_add_u32 s{sT0}, s{sKhi}, s{TAB+step%8}"]
            adv = [[f"s_add_u32 s{sKhi}, s{sKhi}, 0x100000", f"s_and_b32 s{sKhi}, s{sKhi}, 0x3fffff"]] if step % 8 == 7 else []
        else:
            srd = 20
            pre = [f"s_add_u32 s{sT0}, s{TAB+step%8}, {(2*(step//8))<<14}"]
            adv = []
        o = [pre + [f"s_add_u32 m0, s{sRING}, {4096*slot}"]] + adv + [f"buffer_load_dwordx4 v{VDW}, s[{srd}:{srd+3}], s{sT0} offen lds"]
        for n in range(1, 4):
            o.append(L(lambda n=n: k(f"buffer_load_dwordx4 v{VDW+n}, s[{srd}:{srd+3}], s{sT0} offen offset:{1024*n} lds", token=f"W{slot}"), 10, "v"))
        return o
    k(f"v_lshrrev_b32 v{r_}, 1, v{CGL}"); k(f"v_subrev_u32 v{r_}, s{sR8}, v{r_}")
    k(f"v_and_b32 v{c2}, 1, v{CGL}"); k(f"v_and_b32 v{gn}, 1, v{r_}"); k(f"v_lshl_add_u32 v{gn}, v{gn}, 1, v{c2}"); k(f"v_lshlrev_b32 v{gn}, 1, v{gn}")
    k(f"v_xor_b32 v{gn}, v{gn}, v{RR}")
    k(f"v_lshlrev_b32 v{c2}, 9, v{c2}"); k(f"v_lshl_add_u32 v{c2}, v{gn}, 4, v{c2}")
    k(f"s_lshr_b32 s{sT1}, s{sW}, 1"); k(f"s_lshl_b32 s{sT1}, s{sT1}, 15"); k(f"s_and_b32 s{sT2}, s{sW}, 1"); k(f"s_lshl_b32 s{sT2}, s{sT2}, 8")
    k(f"s_add_u32 s{sT1}, s{sT1}, s{sT2}"); k(f"s_add_u32 s{sT1}, s{sT1}, {L_H}"); k(f"v_add_u32 v{c2}, s{sT1}, v{c2}")
    for cb in range(2):
        k(f"v_add_u32 v{gn}, {4*cb}, v{r_}"); k(f"v_and_b32 v{gn}, 7, v{gn}"); k(f"v_lshl_add_u32 v{HW+cb}, v{gn}, 10, v{c2}")
    k(f"s_lshl_b32 s{sT2}, s{sCC}, 9"); k(f"v_lshlrev_b32 v{VM}, 5, v{CGL}"); k(f"v_add_u32 v{VM}, s{sT2}, v{VM}")
    lane_tr_parts(k, LN_, r_, c2, gn, h_, tm)
    k(f"v_lshl_add_u32 v{CH8}, v{gn}, 2, v{c2}"); k(f"v_lshlrev_b32 v{CH8}, 3, v{CH8}")
    k(f"v_lshl_add_u32 v{tm}, v{h_}, 3, v{r_}"); k(f"v_lshl_add_u32 v{tm}, v{tm}, 8, v{CH8}"); k(f"v_add_u32 v{tm}, s{sRING}, v{tm}")
    for a_ in range(4):
        k(f"v_xor_b32 v{tm+1}, {a_}, v{r_}"); k(f"v_lshl_add_u32 v{VW+a_}, v{tm+1}, 6, v{tm}")
    put(k, [f"v_lshl_add_u32 v{tm}, v{h_}, 2, v{r_}", f"v_lshl_add_u32 v{tm}, v{tm}, 8, v{CH8}", f"v_add_u32 v{tm}, {L_V}, v{tm}"])
    for dt in range(4): put(k, [f"v_xor_b32 v{tm+1}, {dt}, v{r_}", f"v_lshl_add_u32 v{VV+dt}, v{tm+1}, 6, v{tm}"])
    put(k, [f"v_and_b32 v{tm}, 31, v{LN_}", f"v_and_b32 v{tm+1}, 15, v{LN_}", f"v_xor_b32 v{tm+1}, v{tm+1}, v{h_}",
            f"v_lshlrev_b32 v{tm}, 8, v{tm}", f"v_lshl_add_u32 v{VK}, v{tm+1}, 4, v{tm}"])
    put(k, [f"v_xor_b32 v{VK+s_}, {s_*32}, v{VK}" for s_ in range(1, 8)])
    put(k, [f"v_mov_b32 v{LS}, 0", f"v_mov_b32 v{LS+1}, 0",
        f"v_lshl_add_u32 v{VDV}, v{ROWL}, 8, v{GR16}", f"s_and_b32 s{sT1}, s{sW}, 1", f"s_lshl_b32 s{sT1}, s{sT1}, 3",
        f"v_or_b32 v{tm}, s{sT1}, v{ROWL}", f"v_and_b32 v{tm+1}, 15, v{LN_}", f"v_xor_b32 v{tm}, v{tm}, v{tm+1}",
        f"v_lshlrev_b32 v{VDK}, 8, v{ROWL}", f"v_lshl_add_u32 v{VDK}, v{tm}, 4, v{VDK}", f"v_xor_b32 v{VDK+1}, 64, v{VDK}",
        f"s_lshl_b32 s{sT1}, s{sG}, 19", f"s_add_u32 s{sT1}, s{sT1}, s{sW2K}", f"s_add_u32 s{sT1}, s{sT1}, {1536*256}",
        f"v_add_u32 v{VDK}, s{sT1}, v{VDK}", f"v_add_u32 v{VDK+1}, s{sT1}, v{VDK+1}", f"v_add_u32 v{VDV}, s{sT1}, v{VDV}",
        f"v_lshlrev_b32 v{tm}, 5, v{h_}", f"v_xor_b32 v{VLIN}, v{tm}, v{VL16}", f"v_add_u32 v{VLIN}, {L_H}, v{VLIN}", f"v_xor_b32 v{VLO}, 64, v{VLIN}",
        f"s_mov_b32 s{sMASK}, 0xffff0000"])
    def nxt(d, s_): return [f"s_add_u32 s{d}, s{s_}, 8192", f"s_and_b32 s{d}, s{d}, 0x1ffff"]
    def kv_dma(which, lds_off, so):
        srd = 12 if which == "K" else 16
        return [f"s_add_u32 m0, s{sW2K}, {lds_off}", f"buffer_load_dwordx4 v{VDK if which=='K' else VDV}, s[{srd}:{srd+3}], s{so} offen lds",
                L(lambda: k(f"buffer_load_dwordx4 v{VDK+1 if which=='K' else VDV}, s[{srd}:{srd+3}], s{so} offen offset:1024 lds", token=which), 10, "v")]
    kinit = [[f"s_lshr_b32 s{sO0}, s{sROT}, 1", f"s_lshl_b32 s{sO0}, s{sO0}, 13"] + nxt(sO1, sO0) + nxt(sO2, sO1)]
    kfirst = [kv_dma("K", L_K + 16384 + 8192, sO0), kv_dma("K", L_K, sO1), kv_dma("K", L_K + 8192, sO2)]
    k.srd(20, 68, 256)
    def gemv_compute(lo, hi, tag, late):
        k(f"s_sub_u32 s{sT0}, s2, {lo}"); k(f"s_cmp_ge_u32 s{sT0}, {hi-lo}"); k(f"s_cselect_b32 s{sT0}, 1, s{sFB}"); k(f"s_cmp_lg_u32 s{sT0}, 0"); k("s_cbranch_scc1 NOGEMV" + tag)
        st0 = (dict(k.vm), dict(k.lg))
        D = P.get("DG") == 1 and not late
        if D: stamp(k, "g_in"); k.wait_regs(v(GW, 20)); stamp(k, "g_data")
        k(f"s_mov_b32 s{sT1}, {f32(-LOG2E)}")
        for i in range(4): k(f"v_lshlrev_b32 v{GC+i}, 16, v{GC+i}")
        for i in range(4): k(f"v_mul_f32 v{GA+i}, s{sT1}, v{GC+i}")
        for i in range(4): k(f"v_exp_f32 v{GA+i}, v{GA+i}")
        for i in range(4): k(f"v_add_f32 v{GA+i}, 1.0, v{GA+i}")
        for i in range(4): k(f"v_rcp_f32 v{GA+i}, v{GA+i}")
        for i in range(4): k(f"v_mul_f32 v{GC+i}, v{GC+i}, v{GA+i}")
        for i in range(4): rnd(k, 112 + 2 * i, GC + i)
        for i in range(4):
            for q in range(4):
                r = GW + 4 * i + q; u = 120 + 2 * (q & 1)
                k(f"v_lshlrev_b32 v{u}, 16, v{r}"); k(f"v_and_b32 v{u+1}, s{sMASK}, v{r}")
                if i == 0: k(f"v_pk_mul_f32 {v(GA+2*q,2)}, {v(u,2)}, {v(112+2*i,2)} op_sel_hi:[1,0]")
                else: k(f"v_pk_fma_f32 {v(GA+2*q,2)}, {v(u,2)}, {v(112+2*i,2)}, {v(GA+2*q,2)} op_sel_hi:[1,0,1]")
        for md in ("quad_perm:[2,3,0,1]", "row_ror:4", "row_ror:8"):
            for j in range(8): k(f"v_add_f32_dpp v{GA+j}, v{GA+j}, v{GA+j} {md} row_mask:0xf bank_mask:0xf")
        k(f"ds_write_b128 v104, {v(GA,4)} offset:{L_R}", token="w"); k(f"ds_write_b128 v104, {v(GA+4,4)} offset:{L_R+16}", token="w")
        k(f"v_lshlrev_b32 v105, 2, v{LN_}")
        k(f"s_lshr_b32 s{sT0}, s{sSL}, 5"); k(f"s_cmp_eq_u32 s{sT0}, 1"); k(f"s_cselect_b32 s{sT1}, 1.0, 0")
        k(f"s_cmp_eq_u32 s{sT0}, 4"); k(f"s_cselect_b32 s{sT1}, 1.0, s{sT1}")
        k(f"s_cmp_lt_u32 s{sT0}, 2"); k(f"s_cselect_b32 s{sT2}, {f32(QS)}, 1.0")
        k(f"s_lshl_b32 s{sT0}, s{sSL}, 6")
        k.wait("w"); k("s_barrier")
        k(f"s_cmp_lg_u32 s{sW}, 3"); k("s_cbranch_scc1 " + ("NOGEMV" + tag if late else "PWAIT"))
        for i in range(4): k(f"ds_read_b32 v{GA+i}, v105 offset:{L_R+256*i}")
        k(f"v_add_f32 v{GA}, v{GA}, v{GA+1}"); k(f"v_add_f32 v{GA+2}, v{GA+2}, v{GA+3}"); k(f"v_add_f32 v{GA}, v{GA}, v{GA+2}")
        k(f"v_mov_b32 v{GA+1}, v{GA}"); k(f"v_permlane16_swap_b32 v{GA}, v{GA+1}"); k(f"v_add_f32 v{GA}, v{GA}, v{GA+1}")
        k(f"v_mov_b32 v{GA+1}, v{GA}"); k(f"v_permlane32_swap_b32 v{GA}, v{GA+1}"); k(f"v_add_f32 v{GA}, v{GA}, v{GA+1}")
        rnd(k, GA, GA)
        k(f"v_add_f32 v{GA}, s{sT1}, v{GA}"); k(f"v_mul_f32 v{GA}, s{sT2}, v{GA}")
        if D: stamp(k, "g_red")
        k("s_mov_b64 exec, 0xffff")
        if not late:
            k(f"v_add_u32 v{GA+1}, 1, v110")
            k(f"buffer_store_dwordx2 {v(GA,2)}, v109, s[24:27], s{sE1} offen sc1")
            k("s_mov_b64 exec, -1")
            k.label("PWAIT")
            k("s_barrier")
            k.vm = {}
            put(k, xl)
            st0 = (k._merge(st0[0], k.vm), None)
        else:
            k(f"buffer_store_dword v{GA}, v105, s[24:27], s{sT0} offen sc1")
            k("s_mov_b64 exec, -1")
        k.label("NOGEMV" + tag)
        k.vm, k.lg = dict(st0[0]), {}
        k.smem_pending = bool(P["TOUCH"])
    gemv_compute(0, 64, "A", False)
    stamp(k, "gemv")
    k("s_mov_b32 s3, 0x3f803f80")
    ASET = {"Q": [AF, AF + 16], "O": [AF, AF + 16]}
    def aset(which, step): return ASET[which][step % len(ASET[which])]
    def a_reads(step, which="O"):
        slot = step % 4; b_ = aset(which, step)
        rd = [f"ds_read_b64_tr_b16 {a(b_+4*a_+2*u,2)}, v{VW+a_} offset:{4096*slot+1024*u}" for a_ in range(4) for u in range(2)]
        return [[L(lambda: k.wait(f"W{slot}")), rd[0]]] + rd[1:]
    N0 = P["N0"]
    if P.get("DG") == 2: stamp(k, "iss"); k.wait_regs(v(0, 16), v(128, 48)); stamp(k, "xarr")
    for oo in range(2):
        src = [XR[c] + 8 * cb + 4 * oo + q for c in range(4) for cb in range(2) for q in range(4)]
        A_ = 16 + 8 * oo
        if oo == P["WPOS"]:
            if oo: k.wait_regs(*[f"v{x}" for x in src])
            def late_loads():
                k(f"s_sub_u32 s{sT0}, s2, 64"); k(f"s_cmp_ge_u32 s{sT0}, 128"); k("s_cbranch_scc1 NOLATE")
                s_c = dict(k.vm)
                gemv_loads()
                k.label("NOLATE")
                k.vm = k._merge(k.vm, s_c)
                k.srd(12, 40, 8 * 2048 * 256)
            if P["LFIRST"]: late_loads()
            put(k, [w_dma(s_, "Q") for s_ in range(P["WPRE"])])
            if not P["LFIRST"]: late_loads()
        for j, x in enumerate(src):
            k(f"v_dot2_f32_bf16 v{A_+(j&1)}, v{x}, s3, {'0' if j < 2 else 'v%d' % (A_+(j&1))}")
            k(f"v_dot2_f32_bf16 v{A_+2+(j&1)}, v{x}, v{x}, {'0' if j < 2 else 'v%d' % (A_+2+(j&1))}")
        k("s_nop 2")
        k(f"v_add_f32 v{A_}, v{A_}, v{A_+1}"); k(f"v_add_f32 v{A_+2}, v{A_+2}, v{A_+3}")
        for md in ("quad_perm:[1,0,3,2]", "quad_perm:[2,3,0,1]"):
            for x in (A_, A_ + 2): k(f"v_add_f32_dpp v{x}, v{x}, v{x} {md} row_mask:0xf bank_mask:0xf")
        for x in (A_, A_ + 2): k(f"v_mov_b32 v{x+1}, v{x}")
        for x in (A_, A_ + 2): k(f"v_permlane32_swap_b32 v{x}, v{x+1}")
        for x in (A_, A_ + 2): k(f"v_add_f32 v{x}, v{x}, v{x+1}")
        k(f"v_mul_f32 v{A_}, {f32(-1/512)}, v{A_}")
        k(f"v_mul_f32 v{A_+2}, {f32(1/512)}, v{A_+2}")
        k(f"v_fma_f32 v{A_+2}, -v{A_}, v{A_}, v{A_+2}"); k(f"v_max_f32 v{A_+2}, 0, v{A_+2}")
        k(f"v_add_f32 v{A_+2}, {f32(1e-5)}, v{A_+2}"); k(f"v_rsq_f32 v{STT+2*oo+1}, v{A_+2}")
        k(f"v_mul_f32 v{STT+2*oo}, v{A_}, v{STT+2*oo+1}")
    def cread(cb, dst):
        return [f"ds_read_b128 {v(dst+8*m_+4*q,4)}, v{VM} offset:{L_M+2048*(1-m_)+256*cb+16*q}" for m_ in range(2) for q in range(2)]
    vmadv = [[f"v_add_u32 v{VM}, 0x200, v{VM}", f"v_and_b32 v{VM}, 0x7ff, v{VM}"]]
    def modulate(c, cb, cn, U_, pk):
        o = []
        for oo in range(2):
            x = XR[c] + 8 * cb + 4 * oo; u = U_ + (8 * oo if pk else 0)
            for q in range(4): o += [f"v_lshlrev_b32 v{u+2*q}, 16, v{x+q}", f"v_and_b32 v{u+2*q+1}, s{sMASK}, v{x+q}"]
            if pk:
                st = v(STT + 2 * oo, 2)
                o += [f"v_pk_fma_f32 {v(u+2*q,2)}, {v(u+2*q,2)}, {st}, {st} op_sel:[0,1,0] op_sel_hi:[1,1,0]" for q in range(4)]
                if pk == "pre": continue
                if pk == "post": o = o[:-12]
                o += [f"v_pk_fma_f32 {v(u+2*q,2)}, {v(u+2*q,2)}, {v(cn+2*q,2)}, {v(cn+8+2*q,2)}" for q in range(4)]
            else:
                o += [f"v_fma_f32 v{u+e}, v{u+e}, v{STT+2*oo+1}, v{STT+2*oo}" for e in range(8)]
                o += [f"v_fma_f32 v{u+e}, v{u+e}, v{cn+e}, v{cn+8+e}" for e in range(8)]
            o += [f"v_cvt_pk_bf16_f32 v{x+q}, v{u+2*q}, v{u+2*q+1}" for q in range(4)]
            o.append(L(lambda x=x, cb=cb, oo=oo: k(f"ds_write_b128 v{HW+cb}, {v(x,4)} offset:{8192*c+128*oo}", token="hw"), 22, "d"))
        return o
    put(k, modulate(0, 0, 16, 32, "pre") + modulate(0, 1, 32, 48, "pre"))
    if P.get("DG") == 2: stamp(k, "st+pre")
    gemv_compute(64, 192, "B", True)
    put(k, kinit)
    if P["KEARLY"]:
        put(k, kfirst)
        k.srd(16, 42, 8 * 2048 * 256)
        k(f"s_lshl_b32 s{sT1}, s{sROT}, 12"); k(f"s_lshl_b32 s{sT2}, s{sG}, 19"); k(f"s_add_u32 s{sT1}, s{sT1}, s{sT2}")
        k(f"s_lshl_b32 s{sT2}, s{sW}, {10+lg2(G)}"); k(f"s_add_u32 s{sT1}, s{sT1}, s{sT2}"); k(f"s_add_u32 s{sT1}, s{sT1}, {1536*256}")
        for n in range(G): k(f"buffer_load_dwordx4 {a(192+4*n,4)}, v{VL16}, s[16:19], s{sT1} offen offset:{1024*n}")
    stamp(k, "stats")
    k(f"s_lshl_b32 s{sT1}, s{sFB}, 4"); k(f"s_sub_u32 s{sT1}, s{sT1}, s{sFB}")
    k("v_mov_b32 v80, 0")
    k(f"s_mov_b32 s{sT2}, 0")
    k.label("POLL")
    k(f"s_add_u32 s{sT1}, s{sT1}, 1")
    k(f"s_and_b32 s{sT0}, s{sT1}, 15"); k("s_cbranch_scc1 POLLR")
    k("buffer_load_dword v81, v80, s[20:23], 0 offen sc1")
    k("v_readfirstlane_b32 s{0}, v81".format(sT0))
    k(f"s_cmp_ge_u32 s{sT0}, 0x100"); k(f"s_cselect_b32 s{sT2}, 1, 0")
    k(f"s_cmp_gt_u32 s{sT1}, 0x8000"); k(f"s_cselect_b32 s{sT2}, 1, s{sT2}")
    k.label("POLLR")
    for i in range(2): k(f"buffer_load_dwordx4 {v(16+4*i,4)}, v{VL16}, s[24:27], s{sE2} offen offset:{1024*i} sc1")
    k(f"v_cmp_eq_u32 vcc, v17, v{MX+1}")
    for j in (3, 5, 7):
        k(f"v_cmp_eq_u32 s[56:57], v{16+j}, v{MX+j}"); k("s_or_b64 vcc, vcc, s[56:57]")
    k(f"s_cselect_b32 s{sT2}, s{sT2}, 1")
    k(f"s_cmp_lg_u32 s{sE0}, 0"); k("s_cbranch_scc1 NOARR")
    k("s_mov_b64 exec, 1"); k("v_mov_b32 v106, 1")
    k("buffer_atomic_add v106, v80, s[20:23], 0 offen")
    k("s_mov_b64 exec, -1")
    k(f"s_mov_b32 s{sE0}, 1")
    k.label("NOARR")
    k(f"s_cmp_lg_u32 s{sT2}, 0"); k("s_cbranch_scc1 POLLED")
    if P["SLEEP"]: k(f"s_sleep {P['SLEEP']}")
    k("s_branch POLL")
    k.label("POLLED")
    k(f"s_load_dwordx4 s[64:67], s[0:1], {A_WG}"); k(f"s_load_dwordx2 s[4:5], s[0:1], {A_WD}")
    if P.get("DG"): stamp(k, "go")
    k("v_mov_b32 v17, v18"); k("v_mov_b32 v21, v22")
    k(f"s_lshl_b32 s{sT0}, s{sW}, 10"); k(f"v_add_u32 v80, s{sT0}, v109")
    for i in range(2): k(f"ds_write_b64 v80, {v(16+4*i,2)} offset:{L_M+512*i}", token="w")
    k.wait("w")
    k("s_barrier")
    stamp(k, "poll")
    k.srd(20, 46, 4096 * 1024)
    put(k, cread(0, 64) + cread(1, 80) + vmadv)
    put(k, modulate(0, 0, 64, 32, "post") + modulate(0, 1, 80, 48, "post"))
    put(k, [w_dma(s_, "Q") for s_ in range(P["WPRE"], 4)])
    put(k, a_reads(0, "Q"))
    fr = lambda f: FR + 4 * (f % 8)
    def rdK(f, s_, off): return [f"ds_read_b128 {a(fr(f),4)}, v{VK+s_} offset:{off}"]
    def rdV(f, i, off): return [f"ds_read_b64_tr_b16 {a(fr(f)+2*u,2)}, v{VV+i%4} offset:{off+4096*(i//4)+2048*u}" for u in range(2)]
    def b_reads(step):
        return [f"ds_read_b128 {a(BF+8*(step%2)+4*rt,4)}, v{VLO if step & 1 else VLIN} offset:{1024*step+32768*rt}" for rt in range(2)]
    k.wait("hw"); k("s_barrier")
    stamp(k, "mod")
    put(k, b_reads(0))
    def g_mfma(which, st):
        return [f"v_mfma_f32_32x32x16_bf16 {v(ACC+32*a_+16*rt,16)}, {a(aset(which,st)+4*a_,4)}, {a(BF+8*(st%2)+4*rt,4)}, {'0' if st == 0 else v(ACC+32*a_+16*rt,16)}"
                for a_ in range(4) for rt in range(2)]
    class Off:
        def __init__(s_, sc, o): s_.sc, s_.o = sc, o
        def pin(s_, g, x, end=False): s_.sc.pin(g + s_.o, x, end)
        def add(s_, ops, g0, g1, prio=0): s_.sc.add(ops, g0 + s_.o, g1 + s_.o, prio)
    def gemm(which, extra, nr, nd):
        sc = Sched(256)
        mf = []
        for st in range(32):
            if which == "Q" and st % 8 == 7 and st < 31: sc.pin(8 * st + 1, L(lambda: (k.wait("hw"), k("s_barrier")), 8))
            if st + 1 < 32:
                sc.add(b_reads(st + 1), 8 * st + (1 if st % 8 == 7 else 0), 8 * st + 4, prio=1)
                sc.pin(8 * st + 7, L(lambda st=st: k.wait_regs(a(aset(which, st + 1), 16), a(BF + 8 * ((st + 1) % 2), 8))), end=True)
            mf += g_mfma(which, st)
        R = len(ASET[which])
        g0 = 0
        td = {}
        first = [j for j in range(nd, min(nr + 4, 32))]
        pd = 8
        for i, j in enumerate(first):
            sc.add(w_dma(j, which), pd * i, pd * (i + 1)); td[j] = pd * (i + 1)
        tstart = max(pd * len(first) - (pd if first else 0), 8 * (nr - R + 1), 0)
        if first and nr in td: tstart = max(tstart, td[nr] + 12)
        nun = 32 - nr
        tr = {j: int(tstart + (j - nr) * (240 - tstart) / (nun - 1)) for j in range(nr, 32)}
        for j in range(nr, 32):
            assert tr[j] >= 8 * (j - R + 1) and tr[j] <= 8 * (j - 1), (j, tr[j])
            sc.add(a_reads(j, which), tr[j], tr[j] + 5, prio=1)
            if j + 4 < 32 and j + 4 >= nd and j + 4 not in td:
                lo = max(tr[j + 1], max(td.values()) if td else 0); hi = max(tr[j + 2], lo + 6)
                sc.add([L(lambda j=j: k.wait_regs(a(aset(which, j), 16)))] + w_dma(j + 4, which), lo, hi); td[j + 4] = hi
        sc.last_dma = max(td.values())
        for c in range(4): extra(c)(Off(sc, 64 * c), sc.last_dma - 192)
        i0 = len(k.items)
        for g_, (m, f_) in enumerate(zip(mf, sc.run())):
            k(m); put(k, f_)
            if g_ % 64 == 63 and g_ < 255: stamp(k, f"q{g_//64}" + ("o" if which == "O" else ""))
            if g_ == 191: i1 = len(k.items)
        X = P.get("DBG" + which, 0)
        if X:
            def keep(it):
                if it.kind in ("label", "raw"): return True
                if X & 1 and it.mn == "s_barrier": return False
                if X & 4 and it.kind in ("valu", "trans"): return False
                if X & 8 and it.kind == "vmem": return False
                if X & 16 and it.mn.startswith("ds_write"): return False
                if X & 32 and it.mn.startswith("ds_read_b128") and it.ops[0].startswith("v"): return False
                return True
            k.items[i0:i1] = [it for it in k.items[i0:i1] if keep(it)]
    def qepi(a_):
        return [f"v_cvt_pk_bf16_f32 v{Q+16*a_+8*(j//4)+4*rt+j%4}, v{ACC+32*a_+16*rt+2*j}, v{ACC+32*a_+16*rt+2*j+1}" for rt in range(2) for j in range(8)]
    def qx(c):
        def f(sc, ld):
            if c < 3:
                m0_ = modulate(c + 1, 0, CN, UT, False); m1_ = modulate(c + 1, 1, CN, UT, False)
                if P["QBURST"]:
                    wr = [x for x in m0_ + m1_ if callable(x)]
                    m0_ = [x for x in m0_ if not callable(x)]; m1_ = [x for x in m1_ if not callable(x)]
                    sc.add(cread(0, CN) + m0_[:-4] + cread(1, CN) + m0_[-4:] + m1_ + vmadv, 0, P["BURST"])
                    sc.pin(P["BURST"], wr)
                else:
                    sc.add(cread(0, CN) + m0_[:-5] + cread(1, CN) + m0_[-5:] + m1_ + vmadv, 0, 55)
            else:
                sc.pin(0, L(lambda: k.srd(16, 42, 8 * 2048 * 256), 16))
                assert ld <= 40, ld
                if not P["KEARLY"]: sc.add([x for d in kfirst for x in d], ld, ld + 9)
                tab = []
                for p in range(8):
                    tab.append([f"s_add_u32 s{sT1}, s{sR8}, {p}", f"s_and_b32 s{sT1}, s{sT1}, 7", f"s_lshr_b32 s{sT2}, s{sT1}, 1", f"s_mul_i32 s{sT2}, s{sT2}, 6"])
                    tab.append([f"s_add_u32 s{sT1}, s{sT1}, s{sT2}", f"s_lshl_b32 s{TAB+p}, s{sT1}, 14"])
                sc.add(tab + [[f"s_lshl_b32 s{sT0}, s{sG}, 19", f"s_add_u32 s{sT0}, s{sT0}, s{sW256}"]] + w_voffs(10, sT0), ld + 1, 58)
                NA1 = P["F1R"] // 2; W1_ = 3584 // NA1; assert NA1 == 4
                nA2 = 32 // P["F2R"]; NA2 = 8 // nA2; rows2 = 8 // nA2
                ps = [L(lambda: k.srd(40, 64, 512 * 3584), 16), L(lambda: k.srd(44, 66, 512 * 3584), 16),
                      [f"s_lshr_b32 s66, s2, 3", f"s_lshl_b32 s66, s66, 2", f"s_add_u32 s66, s66, s{sW}"],
                      [f"s_mul_i32 s64, s66, {4*3584}", f"s_and_b32 s3, s2, 3", f"s_lshl_b32 s67, s3, 9"], ["s_add_u32 s64, s64, s67", f"s_mul_i32 s65, s66, {14*1024}"],
                      ["s_lshl_b32 s3, s3, 7", "s_sub_u32 s3, 1536, s3"],
                      [f"s_and_b32 s67, s2, {NA2-1}", f"s_mul_i32 s67, s67, {128*nA2}", "s_add_u32 s65, s65, s67"],
                      [f"s_lshl_b32 s66, s{sROT}, 14", f"s_lshl_b32 s67, s{sG}, 19", "s_add_u32 s66, s66, s67"], [f"s_lshl_b32 s67, s{sW}, {12+lg2(G)}", "s_add_u32 s66, s66, s67"],
                      f"v_min_u32 v{VX}, 55, v{LN_}", f"v_lshlrev_b32 v{VX}, 4, v{VX}", f"v_mad_u32_u24 v{VX}, v{h_}, s3, v{VX}",
                      f"v_lshrrev_b32 v{VX+1}, {lg2(8*nA2)}, v{LN_}", f"v_lshlrev_b32 v{VX+1}, 10, v{VX+1}", f"v_and_b32 v{tm}, {8*nA2-1}, v{LN_}", f"v_lshl_add_u32 v{VX+1}, v{tm}, 4, v{VX+1}"]
                sc.add(ps, 2, 32)
                sc.pin(ld + 1, L(lambda: k.srd(8, 4, 1792 * 1024), 16))
                sc.pin(56, L(lambda: (k.wait_all(), k("s_barrier")), 8))
                sc.add([rdK(f, f, L_K + 16384 + 8192) for f in range(4)], 56, 60, prio=1)
                sc.add(kv_dma("V", L_V, sO0) + kv_dma("V", L_V + 8192, sO1), 57, 62)
                sc.add(qepi(0), 61, 64)
                sc.pin(58, [f"v_add_u32 v{VLIN}, {L_H}, v{VL16}", f"v_add_u32 v{VLO}, {L_H}, v{VL16}"])
        return f
    gemm("Q", qx, 1, 4)
    stamp(k, "qgemm")
    def qk(f, s_, qt, buf, zero):
        d = v(S + 32 * buf + 16 * qt, 16)
        c = d if s_ else ("0" if zero else v(CI + 16 * qt, 16))
        return f"v_mfma_f32_32x32x16_bf16 {d}, {a(fr(f),4)}, {v(Q+8*s_+4*qt,4)}, {c}"
    def pv(f, i, qt, buf, zero=False):
        d = a(O + 32 * (i % 4) + 16 * qt, 16)
        return f"v_mfma_f32_32x32x16_bf16 {d}, {a(fr(f),4)}, {v(S+32*buf+16*qt+8*(i//4),4)}, {'0' if zero else d}"
    def sreg(buf, e): return S + 32 * buf + 16 * ((e >> 3) & 1) + 8 * (e >> 4) + (e & 7)
    def sm(buf, e, addci=False):
        o = []
        if e < 32:
            if addci: o.append(f"v_add_f32 v{sreg(buf,e)}, v{sreg(buf,e)}, v{CI+16*((e>>3)&1)}")
            o.append(f"v_exp_f32 v{sreg(buf,e)}, v{sreg(buf,e)}")
        if e >= 1:
            p = e - 1
            o.append(f"v_add_f32 v{LS+((p>>3)&1)}, v{LS+((p>>3)&1)}, v{sreg(buf,p)}")
            if p & 1:
                o.append(f"v_cvt_pk_bf16_f32 v{sreg(buf,p&~7)+(p&7)//2}, v{sreg(buf,p-1)}, v{sreg(buf,p)}")
        return o
    def wgrp(j): return L(lambda: k.wait_regs(a(FR + 16 * (j % 2), 16)))
    def qk0(epi):
        wgrp(0)()
        for s_ in range(8):
            ep = qepi(s_ // 2 + 1)[8 * (s_ & 1):8 * (s_ & 1) + 8] if epi and s_ < 6 else []
            rd = [rdK(f + 4, f + 4, L_K + 16384 + 8192) if f < 4 else rdK(f + 4, f - 4, L_K) for f in ([2*s_, 2*s_+1] if s_ < 2 else [2*s_-4, 2*s_-3] if 4 <= s_ < 6 else [])]
            k(qk(s_, s_, 0, 0, True)); put(k, rd[:1]); put(k, ep[:4])
            k(qk(s_, s_, 1, 0, True)); put(k, rd[1:]); put(k, ep[4:])
            if s_ % 4 == 3: wgrp(s_ // 4 + 1)()
    qk0(True)
    k(f"s_cmp_lg_u32 s{sFB}, 0"); k("s_cbranch_scc1 FB_MAX")
    k.label("IT0")
    def maxops(buf, dst):
        o = []
        for qt in range(2):
            b = S + 32 * buf + 16 * qt; t = dst + qt
            o.append(f"v_max3_f32 v{t}, v{b}, v{b+1}, v{b+2}")
            for i in range(3, 15, 2): o.append(f"v_max3_f32 v{t}, v{t}, v{b+i}, v{b+i+1}")
            o.append(f"v_max_f32 v{t}, v{t}, v{b+15}")
        return [x for pr in zip(o[:8], o[8:]) for x in pr]
    def xhalf_max(t, t2):
        return [f"v_mov_b32 v{t2}, v{t}", f"v_mov_b32 v{t2+1}, v{t+1}", f"v_permlane32_swap_b32 v{t}, v{t2}", f"v_permlane32_swap_b32 v{t+1}, v{t2+1}",
                f"v_max_f32 v{t}, v{t}, v{t2}", f"v_max_f32 v{t+1}, v{t+1}, v{t2+1}"]
    def flat(x): return [y for z in x for y in z]
    def iteration(par, first=False, last=False, extra=None):
        hb = 16384 * par; nb = 16384 * (1 - par)
        mf = []
        phs = [0, 1, 3] if last else [0, 1, 2, 3]
        n = 16 * len(phs)
        sc = Sched(n)
        frs = []
        for q_, ph in enumerate(phs):
            for g in range(16):
                f = 8 * q_ + g // 2; qt = g & 1; i = g // 2
                if ph == 0: mf.append(qk(f, i, qt, 1, first))
                elif ph == 1: mf.append(pv(f, i, qt, 0, first and i < 4))
                elif ph == 2: mf.append(qk(f, i, qt, 0, False))
                else: mf.append(pv(f, i, qt, 1))
            for i in range(8): frs.append((ph, i))
        ng = len(frs) // 4
        for j in range(1, ng):
            rd = []
            for f in range(4 * j, 4 * j + 4):
                ph, i = frs[f]
                rd += rdK(f, i, hb + 8192 * (ph // 2)) if ph % 2 == 0 else rdV(f, i, hb + 8192 * (ph // 2))
            g0 = 8 * (j - 1)
            if first and j == 2: sc.pin(g0 + 1, L(lambda: (k.wait("V"), k("s_barrier")), 8)); g0 += 1
            sc.add(rd, g0, 8 * (j - 1) + 6, prio=1)
            sc.pin(8 * j - 1, wgrp(j), end=True)
        dm = [nxt(sO1, sO2), kv_dma("V", L_V + nb, sO2), kv_dma("K", L_K + nb, sO1), kv_dma("V", L_V + nb + 8192, sO1), nxt(sO2, sO1), kv_dma("K", L_K + nb + 8192, sO2)]
        dm = [dm[0]] + dm[1] + dm[2] + dm[3] + [dm[4]] + dm[5]
        if first:
            sc.add(dm, 24, 44)
            mx = maxops(0, MX) + xhalf_max(MX, MX + 2)
            mx += [[f"s_cmp_lg_u32 s{sFB}, 0", "s_cselect_b64 vcc, -1, 0"]]
            mx += [f"v_sub_f32 v{CI+16*qt}, {f32(-float(P['BIAS']))}, v{MX+qt}" for qt in range(2)]
            mx += [f"v_cndmask_b32 v{CI+16*qt}, v{CI+16*qt}, v{MX+4+qt}, vcc" for qt in range(2)]
            sc.add(mx + flat(sm(0, e, True) for e in range(17)), 1, 16)
            sc.add(flat(sm(0, e, True) for e in range(17, 33)), 16, 23)
            sc.add([f"v_mov_b32 v{CI+16*qt+i}, v{CI+16*qt}" for qt in range(2) for i in range(1, 16)], 23, 31)
            sc.add(flat(sm(1, e, True) for e in range(33)), 23, 54)
            sc.add(flat(sm(0, e) for e in range(12)), 54, 64)
        else:
            for e in range(12, 33): sc.pin(e - 12, sm(0, e))
            if last:
                sc.add(flat(sm(1, e) for e in range(17)), 19, 31)
                sc.add(flat(sm(1, e) for e in range(17, 33)), 31, 39)
            else:
                sc.add(dm, 1, 40)
                for e in range(33): sc.pin(20 + e, sm(1, e))
                for e in range(12): sc.pin(52 + e, sm(0, e))
        if not last:
            sc.pin(56, L(lambda: (k.wait("K", "V"), k("s_barrier")), 8))
            sc.add([rdK(f, f, nb) for f in range(4)], 56, 61, prio=1)
            sc.pin(63, wgrp(0), end=True)
        if extra: extra(sc)
        for m, f_ in zip(mf, sc.run()): k(m); put(k, f_)
    iteration(0, first=True)
    stamp(k, "it0")
    rows2 = 8 // (32 // P["F2R"])
    def xpf(half):
        def f(sc):
            if not P["PF1"]: return
            n = 8 * half
            if half == 0:
                pf = [[f"buffer_load_dwordx4 {a(192+4*(n+j),4)}, v{VL16}, s[20:23], s66 offen offset:{1024*j}"] for j in range((4 * G + 2) // 3)] + [f"s_add_u32 s66, s66, {1024*((4*G+2)//3)}"]
                pf += [[f"buffer_load_dwordx4 {a(192+4*(n+3+j),4)}, v{VX+1}, s[8:11], s65 offen", f"s_add_u32 s65, s65, {1024*rows2}"] for j in range((14 // rows2 + 2) // 3)]
            else:
                pf = [[f"buffer_load_dwordx4 {a(192+4*(n+2*j+m_),4)}, v{VX}, s[{40+4*m_}:{43+4*m_}], s64 offen"] + ([f"s_add_u32 s64, s64, 3584"] if m_ else []) for j in range(2) for m_ in range(2)]
            sc.add(pf, 40, 56)
        return f
    k.loop(sST, 3, lambda: (iteration(1, extra=xpf(0)), iteration(0, extra=xpf(1))), align=3)
    stamp(k, "it1-6")
    OM = MX + 4
    def finalize(dt, qt, pk=True):
        b = Q + 16 * ((2 * dt + qt) % 4)
        o = [f"v_accvgpr_read_b32 v{b+i}, a{O+32*dt+16*qt+i}" for i in range(16)]
        if dt == 0: o += [f"v_max3_f32 v{OM+qt}, |v{b+i}|, |v{b+i+1}|, v{OM+qt}" for i in range(0, 16, 2)]
        o += [f"v_pk_mul_f32 {v(b+i,2)}, {v(b+i,2)}, {v(RL,2)} op_sel:[0,{qt}] op_sel_hi:[1,{qt}]" for i in range(0, 16, 2)]
        for sp in range(2):
            o += [f"v_cvt_pk_bf16_f32 v{b+8*sp+j}, v{b+8*sp+2*j}, v{b+8*sp+2*j+1}" for j in range(4)]
            o.append(L(lambda sp=sp: k(f"ds_write_b128 v{HW+sp}, {v(b+8*sp,4)} offset:{32768*qt+8192*dt}", token="hw"), 22, "d"))
        return o
    f0 = finalize(0, 0); f1 = finalize(0, 1)
    def x_last(sc):
        sc.add(flat(w_dma(s_, "O") for s_ in range(4)), 0, 30)
        fin = [f"v_mov_b32 v{MX}, v{LS}", f"v_mov_b32 v{MX+1}, v{LS+1}", f"v_mov_b32 v{OM}, 0", f"v_mov_b32 v{OM+1}, 0",
               f"v_permlane32_swap_b32 v{LS}, v{MX}", f"v_permlane32_swap_b32 v{LS+1}, v{MX+1}",
               f"v_add_f32 v{LS}, v{LS}, v{MX}", f"v_add_f32 v{LS+1}, v{LS+1}, v{MX+1}",
               f"v_rcp_f32 v{RL}, v{LS}", f"v_rcp_f32 v{RL+1}, v{LS+1}", f"v_max_f32 v{MX+6}, v{LS}, v{LS+1}"]
        adr = []
        for sp in range(2):
            adr += [[f"s_lshl_b32 s56, s{sW}, 1", f"s_add_u32 s56, s56, {sp}", f"s_sub_u32 s56, s56, s{sR8}"], [f"s_and_b32 s56, s56, 7",
                    f"s_lshl_b32 s56, s56, 10", f"v_add_u32 v{HW+sp}, s56, v{VLIN}"]]
        sc.add(adr, 0, 8)
        sc.add(fin, 39, 43)
        sc.pin(40, L(lambda: k("s_barrier")))
        sc.add(a_reads(0), 40, 46, prio=1)
        sc.add(f0[:16] + f1[:12], 43, 48)
    iteration(1, last=True, extra=x_last)
    stamp(k, "it7")
    k(f"s_load_dwordx2 s[46:47], s[0:1], {A_X}")
    k(f"s_load_dwordx2 s[48:49], s[0:1], {A_OUT}")
    put(k, f0[16:] + f1[12:])
    for dt in range(1, 4):
        for qt in range(2): put(k, finalize(dt, qt))
    k.wait_all(vm=False); k("s_barrier")
    put(k, b_reads(0))
    stamp(k, "owrite")
    def ox(c):
        def f(sc, ld):
            assert ld <= 36, ld
            if c == 0:
                sc.add([f"v_min_f32 v{OM}, v{OM}, v{OM+1}", f"v_cmp_ngt_f32 vcc, {f32(2.0**120)}, v{MX+6}", "s_mov_b64 s[62:63], vcc",
                        f"v_cmp_gt_f32 vcc, {f32(2.0**-112 if not P['FORCE_FB'] else 2.0**100)}, v{OM}", "s_or_b64 s[62:63], s[62:63], vcc",
                        [f"s_lshl_b32 s{sT1}, s{sW}, 2", f"v_mov_b32 v{MX+1}, s{sT1}"], f"v_mov_b32 v{MX+2}, 0", f"v_mov_b32 v{MX+3}, 0x7f800000"], 4, 40)
            if c == 1:
                sc.add([L(lambda: k.srd(12, 46, 2048 * 1024), 16), L(lambda: k.srd(16, 68, 256), 16), [f"s_lshl_b32 s5, s{sRB}, 3", f"s_add_u32 s5, s5, s{sG}", "s_lshl_b32 s5, s5, 13"],
                        f"v_and_b32 v{tm}, 7, v{LN_}", f"v_lshrrev_b32 v{tm+1}, 3, v{LN_}", f"v_lshl_add_u32 v{tm+1}, s{sW}, 4, v{tm+1}",
                        f"v_lshlrev_b32 v{VK}, 10, v{tm}", f"v_lshl_add_u32 v{VK}, v{tm+1}, 4, v{VK}", f"v_lshlrev_b32 v{VK+1}, 5, v{tm+1}",
                        f"buffer_load_dword v{VK+2}, v{MX+2}, s[16:19], 0 offen sc1"], 0, 40)
            if c == 3:
                def cspin():
                    k("s_mov_b32 s3, 0"); k("s_branch CCHK"); st = dict(k.vm)
                    k.label("CPOLL")
                    k(f"buffer_load_dword v{VK+2}, v{MX+2}, s[16:19], 0 offen sc1"); k.wait_all(lg=False)
                    k.label("CCHK"); k.vm = st
                    k("s_add_u32 s3, s3, 1"); k(f"v_cmp_gt_u32 vcc, 0x100, v{VK+2}")
                    k("s_cmp_gt_u32 s3, 0x8000"); k("s_cbranch_scc1 CDONE"); k("s_cbranch_vccnz CPOLL")
                    k.label("CDONE")
                sc.pin(ld + 1, L(cspin, 24))
                xm = [f"buffer_load_dwordx4 {v(128+4*i,4)}, v{VK}, s[12:15], s5 offen offset:{128*i}" for i in range(2)]
                for base, m_ in ((136, 2), (152, 4), (168, 3)):
                    xm += [f"s_mov_b32 s4, {WS_MOD + m_*2048}"] + [f"buffer_load_dwordx4 {v(base+8*i+4*hh,4)}, v{VK+1}, s[24:27], s4 offen offset:{256*i+16*hh} sc1" for i in range(2) for hh in range(2)]
                sc.add(xm, ld + 2, 60)
                sc.pin(38, [f"s_lshl_b32 s{sT0}, s{sG}, 21", f"s_lshl_b32 s{sT1}, s{sRB}, 16", f"s_add_u32 s{sT0}, s{sT0}, s{sT1}"])
                sc.pin(46, [f"s_lshl_b32 s{sT1}, s{sW}, 13", f"s_add_u32 s{sT0}, s{sT0}, s{sT1}", f"s_add_u32 s{sT0}, s{sT0}, {WS_P:#x}"])
        return f
    gemm("O", ox, 1, 4)
    stamp(k, "ogemm")
    for rt in range(2):
        k(f"v_cmp_nlt_f32 vcc, |v{ACC+16*rt}|, v{MX+3}"); k("s_or_b64 s[62:63], s[62:63], vcc")
    k(f"s_cselect_b32 s{sT1}, 1, 0"); k(f"v_mov_b32 v{MX}, s{sT1}")
    k(f"ds_write_b32 v{MX+1}, v{MX} offset:{L_K}", token="fl")
    for a_ in range(4):
        if a_ == 1: k.wait("fl"); k("s_barrier"); k(f"ds_read_b128 {v(STT,4)}, v{MX+2} offset:{L_K}")
        for rt in range(2):
            k(f"s_add_u32 s{sT1}, s{sT0}, {32768*rt + 2048*a_}")
            b = ACC + 32 * a_ + 16 * rt
            for sp in range(2):
                for j in range(4): k(f"v_cvt_pk_bf16_f32 v{b+8*sp+j}, v{b+8*sp+2*j}, v{b+8*sp+2*j+1}")
                k(f"buffer_store_dwordx4 {v(b+8*sp,4)}, v{VL16}, s[24:27], s{sT1} offen offset:{1024*sp} sc1", token="PST")
    k(f"v_or3_b32 v{STT}, v{STT}, v{STT+1}, v{STT+2}"); k(f"v_or_b32 v{STT}, v{STT}, v{STT+3}")
    k(f"v_readfirstlane_b32 s{sT2}, v{STT}")
    k(f"s_andn2_b32 s{sT2}, s{sT2}, s{sFB}"); k("s_cbranch_scc1 FALLBACK")
    tail(sys.modules[__name__], k)
    stamp_flush(k, 0)
    k.label("END_attn"); k("s_endpgm")
    k.label("FALLBACK")
    k.wait_all(); k("s_barrier")
    k(f"s_mov_b32 s{sFB}, 1")
    k("s_nop 15")
    k("s_branch RESTART")
    k.label("FB_MAX")
    k.wait_all(); k("s_barrier")
    k(f"v_mov_b32 v{MX+4}, 0xff800000"); k(f"v_mov_b32 v{MX+5}, 0xff800000")
    def fbody():
        put(k, kv_dma("K", L_K, sO0) + nxt(sO0, sO0)); k.wait("K"); k("s_barrier")
        for s_ in range(8): put(k, rdK(s_, s_, L_K))
        for s_ in range(8):
            for qt in range(2): k(qk(s_, s_, qt, 0, True))
        put(k, maxops(0, MX))
        k(f"v_max_f32 v{MX+4}, v{MX+4}, v{MX}"); k(f"v_max_f32 v{MX+5}, v{MX+5}, v{MX+1}")
        k("s_barrier")
    k.loop(sST, 16, fbody)
    put(k, xhalf_max(MX + 4, MX + 2))
    for qt in range(2): k(f"v_sub_f32 v{MX+4+qt}, 0, v{MX+4+qt}")
    put(k, kfirst)
    k.wait_all(); k("s_barrier")
    for f in range(4): put(k, rdK(f, f, L_K + 16384 + 8192))
    qk0(False)
    k.wait_all()
    k("s_branch IT0")
    return k

from gen17_tail import tail

HEADER = open('adaLN_cond__sliding_block_cached__geglu_ffn__prompt.s.ref').read().split("; Override launch")[0]

if __name__ == "__main__":
    out = sys.argv[1] if len(sys.argv) > 1 else "k.s"
    me = sys.modules[__name__]
    ks = [gen_attn()]
    ks[-1].label("CODE_END")
    txt = emit(ks, header=HEADER)
    if P.get("SINGLE"): txt = txt.replace("; @launch kernel=" + KNAME + " ", "; @launch ")
    open(out, "w").write(txt)
    json.dump([[k.name, k.grid, k.block//64, k.stamps] for k in ks], open(out[:-2]+".json","w"))
    for k in ks: print(k.name, "regs(v,a,s)", k.used, "nops", k.n_nops, "misal", k.n_mis, "instrs", len(k.items))
```

```python
import math
from asmlib import *

def L(f, cost=4, mem=False):
    f.cost = cost; f.mem = mem; return f

def tail(M, k):
    P = M.P; f32 = M.f32; put = M.put; stamp = M.stamp
    sW = 28; VL16 = 216; TT = 220
    SCH = "" if P.get("PLAIN", 0) & 1 else " sc1"; SCA = "" if P.get("PLAIN", 0) & 2 else " sc1"
    FL1, FL2, FL3, FL4 = [M.WS_FL + 0x8000 * i for i in range(4)]
    L_S = 163840 - 256
    VF = 248
    def cond(sreg, lab, body):
        k(f"s_cmp_lg_u32 s{sreg}, 0"); k(f"s_cbranch_scc1 {lab}")
        s0 = (dict(k.vm), dict(k.lg)); body(); k.label(lab)
        k.vm = k._merge(k.vm, s0[0]); k.lg = k._merge(k.lg, s0[1])
    def flag_store(soff): k(f"buffer_store_dword v{VF+2}, v{VF+3}, s[20:23], s{soff} offen sc1")
    def publish(tok, soff):
        k.wait(tok); k("s_barrier"); flag_store(soff)
    def spin(soff, n, tag, counter=False, first_issued=False):
        k(f"s_mov_b64 exec, {(1 << n) - 1:#x}")
        k("s_mov_b32 s3, 0")
        if first_issued: k("s_branch CHK" + tag); st = dict(k.vm)
        k.label("POLL" + tag)
        if counter: k(f"buffer_load_dword v{VF+1}, v{VF}, s[16:19], 0 offen sc1")
        else: k(f"buffer_load_dword v{VF+1}, v{VF}, s[24:27], s{soff} offen sc1")
        if first_issued:
            k.wait_all(lg=False); k.label("CHK" + tag); k.vm = st
        k("s_add_u32 s3, s3, 1")
        k(f"v_cmp_gt_u32 vcc, 0x100, v{VF+1}" if counter else f"v_cmp_eq_u32 vcc, 0, v{VF+1}")
        k("s_cmp_gt_u32 s3, 0x8000"); k("s_cbranch_scc1 POLLED" + tag)
        k("s_cbranch_vccz POLLED" + tag)
        k(f"s_sleep {P['SLEEP2']}"); k("s_branch POLL" + tag)
        k.label("POLLED" + tag)
        k("s_mov_b64 exec, -1")
    def await_(soff, n, tag, counter=False):
        cond(sW, "NOPOLL" + tag, lambda: spin(soff, n, tag, counter))
        if not counter: k("s_barrier")
    k("s_lshl_b32 s3, s30, 3"); k("s_add_u32 s3, s3, s29")
    k("s_lshr_b32 s4, s3, 2"); k("s_lshl_b32 s4, s4, 15"); k("s_and_b32 s6, s3, 3"); k("s_lshl_b32 s6, s6, 7"); k("s_add_u32 s4, s4, s6")
    k("s_lshl_b32 s7, s3, 7"); k(f"s_add_u32 s7, s7, {FL1:#x}")
    k("s_lshl_b32 s6, s30, 10"); k(f"s_add_u32 s6, s6, {FL1:#x}")
    k.srd(20, 70, 0x100000); k("s_mov_b32 s46, s8"); k("s_mov_b32 s47, s9")
    k(f"v_lshlrev_b32 v{VF}, 7, v{TT}"); k(f"v_mov_b32 v{VF+2}, 1")
    k(f"v_lshl_add_u32 v{VF+3}, s{sW}, 6, v{TT}"); k(f"v_lshlrev_b32 v{VF+3}, 20, v{VF+3}")
    HB = 0; AF = 128; AC = 0
    VDA = 224; VDB = 228; VAA = 231; VAB = 235; T1 = 237; KC = 246
    sFS, sRB, sT0, sT1, sKA_, sKB_ = 29, 30, 31, 32, 33, 36
    R = P["F1R"]
    M.split2(k, 2, sFS, sRB, 32 // R, 16, sT0, sKA_)
    if R >= 8: k(f"s_and_b32 s{sKA_}, s{sKA_}, 7")
    else: k(f"s_lshl_b32 s{sKA_}, s{sKA_}, {M.lg2(8//R)}")
    k(f"s_mov_b32 s{sKB_}, s{sKA_}"); k(f"s_mov_b32 s39, s{sKA_}")
    k(f"s_lshr_b32 s37, s{sW}, 1")
    k(f"s_and_b32 s{sT0}, s{sW}, 1")
    k(f"s_lshl_b32 s{sT1}, s{sFS}, 7"); k(f"s_mul_i32 s35, s{sT0}, {32*3584}"); k(f"s_add_u32 s{sT1}, s{sT1}, s35")
    k(f"s_mul_i32 s66, s{sFS}, 96"); k("s_add_u32 s66, s66, s35")
    k(f"v_lshrrev_b32 v{T1}, 3, v{TT}"); k(f"v_bfe_u32 v{T1+1}, v{TT}, 4, 1"); k(f"v_lshlrev_b32 v{T1+1}, 2, v{T1+1}")
    k(f"v_and_b32 v{T1+2}, 7, v{TT}"); k(f"v_xor_b32 v{T1+2}, v{T1+2}, v{T1+1}")
    k("s_lshl_b32 s35, s37, 1"); k(f"v_xor_b32 v{T1+3}, s35, v{T1+2}")
    k(f"v_mul_u32_u24 v{VDA}, 3584, v{T1}"); k(f"v_lshl_add_u32 v{VDA}, v{T1+3}, 4, v{VDA}"); k(f"v_add_u32 v{VDA}, s{sT1}, v{VDA}")
    for n in range(1, 4): k(f"v_add_u32 v{VDA+n}, {n*(8*3584-1024)}, v{VDA}")
    VD0, VD1 = 160, 161
    k(f"v_lshlrev_b32 v{VF+4}, 10, v{T1}"); k(f"v_lshl_add_u32 v{VF+4}, v{T1+2}, 4, v{VF+4}")
    k("s_mov_b32 s35, 10923")
    for n in range(3):
        k(f"v_add_u32 v{T1}, {64*n}, v{TT}"); k(f"v_mul_u32_u24 v{T1+1}, s35, v{T1}"); k(f"v_lshrrev_b32 v{T1+1}, 16, v{T1+1}")
        k(f"v_mul_u32_u24 v{T1+2}, 6, v{T1+1}"); k(f"v_sub_u32 v{T1+2}, v{T1}, v{T1+2}")
        k(f"v_mul_u32_u24 v{T1+1}, 3584, v{T1+1}"); k(f"v_lshl_add_u32 v{T1+1}, v{T1+2}, 4, v{T1+1}")
        k(f"v_add_u32 v{T1+1}, s66, v{T1+1}"); k(f"v_add_u32 v{VDB+n}, {2048-1024*n}, v{T1+1}")
    for q in range(192): assert (q * 10923) >> 16 == q // 6
    k(f"s_lshl_b32 s35, s37, 16"); k(f"s_lshl_b32 s{sT1}, s{sT0}, 12"); k(f"s_add_u32 s64, s35, s{sT1}")
    k(f"s_mul_i32 s{sT1}, s{sT0}, 3072"); k(f"s_mul_i32 s65, s37, {65536+128}"); k(f"s_add_u32 s65, s65, s{sT1}")
    k(f"s_mul_i32 s35, s37, {12288+128}"); k(f"s_add_u32 s35, s35, s{sT1}"); k(f"s_add_u32 s35, s35, {131072}")
    k("s_cmp_eq_u32 s37, 0")
    k("s_cselect_b32 s8, s40, s44"); k("s_cselect_b32 s9, s41, s45"); k("s_and_b32 s9, s9, 0xffff")
    k(f"s_mov_b32 s10, {512*3584}"); k("s_mov_b32 s11, 0x20000")
    k(f"s_lshl_b32 s{sT1}, s{sRB}, 2"); k(f"s_add_u32 s{sT1}, s{sT1}, s{sW}"); k(f"s_lshl_b32 s{sT1}, s{sT1}, 15")
    k(f"s_add_u32 s38, s{sT1}, {M.WS_H2:#x}")
    k(f"s_lshl_b32 s34, s{sRB}, 11"); k(f"s_add_u32 s34, s34, {FL2:#x}")
    r_, c2, gn, h_, tm = T1 + 3, T1 + 4, T1 + 5, T1 + 6, T1 + 7
    M.lane_tr_parts(k, TT, r_, c2, gn, h_, tm)
    k(f"v_lshl_add_u32 v{tm}, v{h_}, 3, v{r_}")
    k(f"v_lshlrev_b32 v{T1}, 7, v{tm}"); k(f"v_lshl_add_u32 v{T1}, v{gn}, 16, v{T1}"); k(f"v_lshl_add_u32 v{T1}, v{c2}, 3, v{T1}")
    k(f"v_lshrrev_b32 v{T1+1}, 1, v{r_}"); k(f"v_lshl_add_u32 v{T1}, v{T1+1}, 6, v{T1}"); k(f"v_lshl_add_u32 v{VAA}, v{gn}, 5, v{T1}")
    for t in range(1, 4): k(f"v_xor_b32 v{VAA+t}, {32*t}, v{VAA}")
    k(f"v_mul_u32_u24 v{T1}, 96, v{tm}"); k(f"v_lshl_add_u32 v{T1}, v{c2}, 3, v{T1}")
    k(f"v_mul_u32_u24 v{T1+1}, {65536+128}, v{gn}"); k(f"v_add_u32 v{VAB}, v{T1}, v{T1+1}")
    k(f"v_mul_u32_u24 v{T1+1}, {12288+128}, v{gn}"); k(f"v_add_u32 v{VAB+1}, v{T1}, v{T1+1}"); k(f"v_add_u32 v{VAB+1}, {131072}, v{VAB+1}")
    def dmaA(st):
        return [[f"s_mul_i32 s{sT0}, s{sKA_}, {64*3584}", f"s_add_u32 m0, s64, {8192*st}"], [f"s_add_u32 s{sKA_}, s{sKA_}, 1", f"s_and_b32 s{sKA_}, s{sKA_}, 7"]] + \
               [L(lambda n=n: k(f"buffer_load_dwordx4 v{VDA+n}, s[8:11], s{sT0} offen offset:{1024*n} lds", token=f"A{st}"), 10, "v") for n in range(4)]
    def dmaB(st):
        m0 = f"s_add_u32 m0, s35, {6144*st}" if st < 2 else f"s_add_u32 m0, s65, {8192*(st-2)}"
        return [[f"s_mul_i32 s{sT0}, s{sKB_}, {64*3584}", m0], [f"s_add_u32 s{sKB_}, s{sKB_}, 1", f"s_and_b32 s{sKB_}, s{sKB_}, 7"]] + \
               [L(lambda n=n: k(f"buffer_load_dwordx4 v{VDB+n}, s[8:11], s{sT0} offen offset:{1024*n} lds", token=f"B{st}"), 10, "v") for n in range(3)]
    def hload(st):
        o = [[f"s_lshl_b32 s{sT1}, s39, 12", f"s_add_u32 s{sT1}, s{sT1}, s38"], ["s_add_u32 s39, s39, 1", "s_and_b32 s39, s39, 7"]]
        o += [f"buffer_load_dwordx4 {a(HB+16*st+4*j,4)}, v{VL16}, s[24:27], s{sT1} offen offset:{1024*j}{SCH}" for j in range(4)]
        return o
    stamp(k, "t_set")
    publish("PST", 7)
    k(f"v_and_b32 v1, 7, v{TT}"); k(f"v_lshrrev_b32 v7, 3, v{TT}"); k(f"v_lshl_add_u32 v7, s{sW}, 4, v7")
    k("v_lshlrev_b32 v3, 9, v7"); k("v_lshl_add_u32 v3, v1, 4, v3"); k("v_add_u32 v2, 4096, v3")
    k("v_lshlrev_b32 v8, 4, v1"); k(f"v_add_u32 v8, {L_S}, v8"); k(f"v_lshl_add_u32 v9, s{sW}, 2, v8")
    X = 128; XF = 24; MV = 136; PB = 64
    nd = 0
    while nd < P["TW1"]: put(k, dmaA(nd)); nd += 1
    await_(6, 8, "_1")
    stamp(k, "poll1")
    k(f"s_add_u32 s66, s4, {M.WS_P:#x}")
    for g in range(8):
        for i in range(2): k(f"buffer_load_dwordx4 {v(PB+8*g+4*i,4)}, v{3-i}, s[24:27], s66 offen sc1")
        if g < 7: k("s_add_u32 s66, s66, 0x200000")
    while nd < P["TWM"]: put(k, dmaA(nd)); nd += 1
    k("s_mov_b32 s67, 0xffff0000")
    def unpack(dst, src):
        k(f"v_lshlrev_b32 v{dst}, 16, v{src}"); k(f"v_and_b32 v{dst+1}, s67, v{src}")
    for q in range(8): unpack(XF + 2 * q, PB + q)
    for g in range(1, 8):
        for q in range(8):
            unpack(10 + 2 * (q & 1), PB + 8 * g + q)
            k(f"v_pk_add_f32 {v(XF+2*q,2)}, {v(XF+2*q,2)}, {v(10+2*(q&1),2)}")
    for q in range(8):
        unpack(10, X + q)
        k(f"v_pk_fma_f32 v[10:11], {v(XF+2*q,2)}, {v(MV+2*q,2)}, v[10:11]")
        k(f"v_cvt_pk_bf16_f32 v{X+q}, v10, v11")
        unpack(XF + 2 * q, X + q)
    k(f"s_add_u32 s66, s4, {M.WS_X1:#x}")
    for i in range(2): k(f"buffer_store_dwordx4 {v(X+4*i,4)}, v{3-i}, s[24:27], s66 offen sc1")
    stamp(k, "x1")
    for _ in range(P.get("DLY1", 0)): k("s_sleep 38")
    M.ln_stats(k, XF)
    for e in range(0, 16, 2):
        k(f"v_pk_mul_f32 {v(XF+e,2)}, {v(XF+e,2)}, v[56:57]")
        k(f"v_pk_fma_f32 {v(XF+e,2)}, {v(XF+e,2)}, {v(152+e,2)}, {v(168+e,2)}")
        k(f"v_cvt_pk_bf16_f32 v{MV+e//2}, v{XF+e}, v{XF+e+1}")
    k(f"s_add_u32 s66, s4, {M.WS_H2:#x}")
    for i in range(2): k(f"buffer_store_dwordx4 {v(MV+4*i,4)}, v{3-i}, s[24:27], s66 offen sc1", token="H2S")
    k("s_add_u32 s7, s7, 0x8000")
    publish("H2S", 7)
    while nd < 8: put(k, dmaA(nd)); nd += 1
    nb = 0
    while nb < P["TB0"]: put(k, dmaB(nb)); nb += 1
    k.wait("A7")
    await_(34, 16, "_2")
    stamp(k, "poll2")
    HP = P["HPRE"]
    for st in range(HP): put(k, hload(st))
    def readsA(step):
        return [f"ds_read_b64_tr_b16 {a(AF+16*(step%4)+4*t+2*u,2)}, v{VAA+t} offset:{2048*step+512*u}" for t in range(4) for u in range(2)]
    def readsB(step):
        st, ks = divmod(step, 4)
        reg, base = (VAB + 1, 6144 * st) if st < 2 else (VAB, 8192 * (st - 2))
        return [f"ds_read_b64_tr_b16 {a(AF+16*(step%4)+4*t+2*u,2)}, v{reg} offset:{base+96*(16*ks+4*u)+32*t}" for t in range(3) for u in range(2)]
    def mf(step, t0, nt):
        return [f"v_mfma_f32_32x32x16_bf16 {v(AC+16*(t0+t),16)}, {a(AF+16*(step%4)+4*t,4)}, {a(HB+4*step,4)}, {'0' if step == 0 else v(AC+16*(t0+t),16)}" for t in range(nt)]
    BFR = 0; AF2 = 224; AC2 = 0
    VW, VL2, T2 = 162, 168, 170
    sNB, sRB2, sA0, sA1, sAB = 50, 51, 52, 53, 57
    SW_, SA_ = 72, 76
    BLK = [3, 7, 8, 0, 4, 1, 2, 5, 6, 9]
    NSL = 20
    def slot_addr(sl): return BLK[sl // 2] * 16384 + (sl % 2) * 2048
    def setup2():
        o = [L(lambda: M.split2(k, 2, sNB, sRB2, 32 // P["F2R"], 32, sA0, sA1), 40)]
        o += [L(lambda: k.srd(12, 46, 1792 * 1024), 16), L(lambda: k.srd(16, 48, 2048 * 1024), 16)]
        o += [f"s_lshl_b32 s{sA0}, s{sNB}, 7", f"v_add_u32 v{VD0}, s{sA0}, v{VF+4}", f"v_add_u32 v{VD1}, {8*1024-1024}, v{VD0}",
              f"s_lshl_b32 s56, s{sW}, 12", f"v_add_u32 v{VL2}, {224*512}, v{VL16}",
              [f"s_mul_i32 s{sAB}, s{sRB2}, {2*224*512}", f"s_add_u32 s{sAB}, s{sAB}, {M.WS_ACT:#x}"], f"s_lshl_b32 s58, s{sW}, 2"]
        for j in range(4):
            o += [[f"s_add_u32 s{sA0}, s{sNB}, {j}", f"s_and_b32 s{sA0}, s{sA0}, 3", f"s_add_u32 s{SW_+j}, s{sA0}, s58"]]
        o += [f"v_lshl_add_u32 v{T2}, v{h_}, 3, v{r_}", f"v_lshlrev_b32 v{VW}, 7, v{T2}", f"v_lshl_add_u32 v{T2+1}, v{gn}, 2, v{c2}",
              f"v_lshl_add_u32 v{VW}, v{T2+1}, 3, v{VW}", f"v_lshrrev_b32 v{T2}, 1, v{r_}", f"v_lshl_add_u32 v{VW}, v{T2}, 6, v{VW}",
              f"v_add_u32 v{VW}, s56, v{VW}", f"v_xor_b32 v{VW+1}, 64, v{VW}"]
        o += [f"v_add_u32 v{VW+2+j}, {65536*(1+j//2)}, v{VW+j%2}" for j in range(4)]
        o += [[f"s_lshr_b32 s59, s{sRB2}, 1", "s_lshl_b32 s59, s59, 2", f"s_add_u32 s59, s59, s{sW}"], ["s_lshl_b32 s59, s59, 9", f"s_add_u32 s59, s59, {FL3:#x}", "s_add_u32 s61, s59, 0x8000"],
              ["s_lshl_b32 s60, s30, 4", "s_add_u32 s60, s60, s29", "s_lshl_b32 s60, s60, 7"], [f"s_add_u32 s60, s60, {FL3:#x}", "s_add_u32 s62, s60, 0x8000"]]
        return o
    KS2 = [(j, t) for j in range(4) for t in range(4)] + [(j, t) for j in range(4) for t in range(4, 7)]
    def wdma(i):
        sl = i % NSL; j, t = KS2[i]
        mul, add = (4, t) if t < 4 else (3, 60 + t)
        return [[f"s_mul_i32 s{sA0}, s{SW_+j}, {mul<<14}", f"s_add_u32 s{sA0}, s{sA0}, {add<<14}", f"s_add_u32 m0, s56, {slot_addr(sl)}"],
                f"buffer_load_dwordx4 v{VD0}, s[12:15], s{sA0} offen lds",
                L(lambda: k(f"buffer_load_dwordx4 v{VD1}, s[12:15], s{sA0} offen offset:1024 lds", token=f"D{sl}"), 10, "v")]
    def aload(i):
        j, t = KS2[i]
        pre_ = [[f"s_lshl_b32 s{SA_+j}, s{SW_+j}, 12", f"s_add_u32 s{SA_+j}, s{SA_+j}, s{sAB}"]] if t == 0 else []
        if t == 4: pre_ = [[f"s_mul_i32 s{SA_+j}, s{SW_+j}, 3072", f"s_add_u32 s{SA_+j}, s{SA_+j}, s{sAB}", f"s_add_u32 s{SA_+j}, s{SA_+j}, 65536"]]
        return pre_ + [f"buffer_load_dwordx4 {a(BFR+8*i,4)}, v{VL16}, s[24:27], s{SA_+j} offen offset:{1024*(t%4)}{SCA}",
                       f"buffer_load_dwordx4 {a(BFR+8*i+4,4)}, v{VL2}, s[24:27], s{SA_+j} offen offset:{1024*(t%4)}{SCA}"]
    K0_ = -2 * math.sqrt(2 / math.pi) * M.LOG2E
    pre = [[f"s_mov_b32 s40, {f32(K0_*0.044715)}", "s_mov_b32 s41, s40"], f"v_mov_b32 v{KC}, {f32(M.GK0/M.GSC if P['GS'] else K0_)}", f"v_mov_b32 v{KC+1}, {f32(M.GK0/M.GSC if P['GS'] else K0_)}",
           [f"s_lshl_b32 s42, s{sRB}, 2", f"s_add_u32 s42, s42, s{sW}", f"s_mul_i32 s42, s42, {224*512}"],
           [f"s_add_u32 s42, s42, {M.WS_ACT:#x}", f"s_mul_i32 s43, s{sFS}, 3072", "s_add_u32 s43, s43, s42"], ["s_add_u32 s43, s43, 65536", f"s_lshl_b32 s44, s{sFS}, 12", "s_add_u32 s42, s42, s44"]]
    def epi(t, pk):
        G = AC + 16 * t; E = 136 + 8 * (t % 2); D = 152 + 4 * (t % 2)
        GS = P["GS"]; ng = "-" if GS else ""
        if pk:
            if GS: o = [f"v_pk_fma_f32 {v(E+r,2)}, {v(G+r,2)}, {v(G+r,2)}, {v(KC,2)}" for r in range(0, 8, 2)]
            else:
                o = [f"v_pk_mul_f32 {v(E+r,2)}, {v(G+r,2)}, {v(G+r,2)}" for r in range(0, 8, 2)]
                o += [f"v_pk_fma_f32 {v(E+r,2)}, {v(E+r,2)}, s[40:41], {v(KC,2)}" for r in range(0, 8, 2)]
            o += [f"v_pk_mul_f32 {v(E+r,2)}, {v(E+r,2)}, {v(G+r,2)}" for r in range(0, 8, 2)]
            o += [f"v_exp_f32 v{E+r}, {ng}v{E+r}" for r in range(8)]
            o += [f"v_pk_mul_f32 {v(G+r,2)}, {v(G+r,2)}, {v(G+8+r,2)}" for r in range(0, 8, 2)]
            o += [f"v_pk_add_f32 {v(E+r,2)}, {v(E+r,2)}, 1.0 op_sel_hi:[1,0]" for r in range(0, 8, 2)]
            o += [f"v_rcp_f32 v{E+r}, v{E+r}" for r in range(8)]
            o += [f"v_pk_mul_f32 {v(G+r,2)}, {v(G+r,2)}, {v(E+r,2)}" for r in range(0, 8, 2)]
        else:
            if GS: o = [f"v_fma_f32 v{E+r}, v{G+r}, v{G+r}, v{KC}" for r in range(8)]
            else:
                o = [f"v_mul_f32 v{E+r}, v{G+r}, v{G+r}" for r in range(8)]
                o += [f"v_fma_f32 v{E+r}, v{E+r}, s40, v{KC}" for r in range(8)]
            o += [f"v_mul_f32 v{E+r}, v{E+r}, v{G+r}" for r in range(8)]
            for r in range(8): o += [f"v_exp_f32 v{E+r}, {ng}v{E+r}", f"v_mul_f32 v{G+r}, v{G+r}, v{G+8+r}"]
            o += [f"v_add_f32 v{E}, 1.0, v{E}"]
            for r in range(8): o += ([f"v_add_f32 v{E+r+1}, 1.0, v{E+r+1}"] if r < 7 else []) + [f"v_rcp_f32 v{E+r}, v{E+r}"]
            o += [f"v_mul_f32 v{G+r}, v{G+r}, v{E+r}" for r in range(8)]
        o += [f"v_cvt_pk_bf16_f32 v{D+j}, v{G+2*j}, v{G+2*j+1}" for j in range(4)]
        o.append(L(lambda: k(f"buffer_store_dwordx4 {v(D,4)}, v{VL16}, s[24:27], s{42 if t<4 else 43} offen offset:{1024*(t%4)} sc1", token="ST"), 10, "v"))
        return o
    put(k, readsA(0) + readsA(1))
    sc = Sched(128); m_ = []
    for step in range(32):
        g0 = 4 * step
        rd = readsA(step + 2) if step < 30 else readsB(step - 30)
        sc.add(rd, g0, g0 + 4, prio=1)
        sc.pin(g0 + 3, L(lambda step=step: k.wait_regs(a(AF + 16 * ((step + 1) % 4), 16), a(HB + 4 * ((step + 1) % 32), 4))), end=True)
        m_ += mf(step, 0, 4)
    sc.add([x for st in range(HP, 8) for x in hload(st)], 0, P["HEND"])
    lo = P["HEND"]
    for b_ in range(nb, 8):
        if b_ >= 2:
            gb = 16 * (b_ - 1) + 2
            if b_ % 2 == 1: sc.pin(gb, "s_barrier")
            gfree = 16 * ((b_ | 1) - 1) + 2
            lo = max(lo, gfree)
        if lo + 8 <= 128: sc.add(dmaB(b_), lo, lo + 8); lo += 8; nb = b_ + 1
        else: break
    sc.add(setup2(), 8, 64); sc.add(pre, 64, 100)
    sc.pin(120, L(lambda: (k.wait("B0", "B1"), k("s_barrier")), 8))
    for m, f_ in zip(m_, sc.run()): k(m); put(k, f_)
    stamp(k, "passA")
    sc = Sched(96); m_ = []
    for step in range(32):
        g0 = 3 * step
        if step < 30:
            if step % 8 == 6: sc.pin(g0, L(lambda step=step: (k.wait(f"B{(step+2)//4}", f"B{(step+2)//4+1}"), k("s_barrier")), 8))
            sc.add(readsB(step + 2), g0, g0 + 3, prio=1)
        if step < 31: sc.pin(g0 + 2, L(lambda step=step: k.wait_regs(a(AF + 16 * ((step + 1) % 4), 12))), end=True)
        m_ += mf(step, 4, 3)
    ld = [x for b_ in range(nb, 8) for x in dmaB(b_)]
    sc.add(ld, 0, 30)
    E_END = P["EEND"]
    sc.add([x for t in range(4) for x in epi(t, False)], 2, E_END)
    sc.add([x for i in range(4) for x in wdma(i)], 30, 48)
    sc.add([x for i in range(4, 6) for x in wdma(i)], 48, 66)
    sc.add([x for i in range(6, 10) for x in wdma(i)], 67, 92)
    sc.pin(P["PUBA"], L(lambda: (k.wait("ST"), k("s_barrier"), flag_store(60)), 18))
    sc.pin(93, L(lambda: (k.wait_all(vm=False), k("s_barrier")), 8))
    for m, f_ in zip(m_, sc.run()): k(m); put(k, f_)
    stamp(k, "ffn1")
    for _ in range(P.get("DLY2", 0)): k("s_sleep 38")
    n = 10
    W1 = P["FW1"]
    for t in range(4, 7):
        per = (W1 // 2) if t < 6 else 0
        for j in range(per): put(k, wdma(n)); n += 1
        put(k, epi(t, True))
    X1R, GB = 176, 184
    k(f"s_lshl_b32 s54, s{sRB2}, 1"); k(f"s_and_b32 s55, s{sW}, 1"); k("s_add_u32 s63, s54, s55")
    k(f"s_lshr_b32 s64, s{sW}, 1"); k("s_lshl_b32 s64, s64, 2"); k(f"s_lshl_b32 s54, s{sNB}, 3"); k("s_add_u32 s64, s64, s54")
    k("s_lshl_b32 s65, s63, 15"); k("s_lshl_b32 s55, s64, 9"); k("s_add_u32 s65, s65, s55"); k(f"s_add_u32 s65, s65, {M.WS_X1:#x}")
    k(f"v_lshlrev_b32 v{T2}, 5, v{h_}")
    k("s_lshl_b32 s55, s64, 5"); k(f"s_add_u32 s55, s55, {M.WS_MOD+5*2048}")
    spin(59, 4, "_3")
    k("s_barrier"); flag_store(62)
    stamp(k, "pub3")
    APRE = P["APRE"]
    for i in range(APRE): put(k, aload(i))
    def reads2(i):
        sl = i % NSL; ad = slot_addr(sl)
        rd = [f"ds_read_b64_tr_b16 {a(AF2+8*(i%4)+4*a_+2*u,2)}, v{VW+2*(ad>>16)+a_} offset:{(ad&0xffff)+512*u}" for a_ in range(2) for u in range(2)]
        return [[L(lambda: k.wait(f"D{sl}")), rd[0]]] + rd[1:]
    put(k, reads2(0) + reads2(1))
    stamp(k, "poll3")
    CH = P["BCHK"]
    nal = APRE; polled = False
    for i in range(28):
        if i == CH: spin(61, 4, "_4", first_issued=True)
        sc = Sched(4, budget=40)
        if i + 2 < 28: sc.add(reads2(i + 2), 0, 4, prio=1)
        if i + 1 < 28: sc.pin(3, L(lambda i=i: k.wait_regs(a(AF2 + 8 * ((i + 1) % 4), 8), a(BFR + 8 * (i + 1), 8))), end=True)
        ld = []
        for _ in range(2):
            if nal < (28 if i >= CH else 16): ld += aload(nal); nal += 1
            elif n < 28 and n - NSL < i: ld += wdma(n); n += 1
        if n < 28 and n - NSL < i and n <= i + 6: ld += wdma(n); n += 1
        if i == CH - P["BLEAD"]:
            ld += [["s_mov_b64 exec, 15", f"buffer_load_dword v{VF+1}, v{VF}, s[24:27], s61 offen sc1", "s_mov_b64 exec, -1"]]
        if i == 20:
            ld += [f"buffer_load_dwordx4 {v(X1R+4*sp,4)}, v{VL16}, s[24:27], s65 offen offset:{1024*sp} sc1" for sp in range(2)]
            ld += [f"buffer_load_dwordx4 {v(GB+8*sp+4*q,4)}, v{T2}, s[24:27], s55 offen offset:{64*sp+16*q} sc1" for sp in range(2) for q in range(2)]
        sc.add(ld, 0, 4)
        mf2 = [f"v_mfma_f32_32x32x16_bf16 {v(AC2+32*a_+16*rt,16)}, {a(AF2+8*(i%4)+4*a_,4)}, {a(BFR+8*i+4*rt,4)}, {'0' if i==0 else v(AC2+32*a_+16*rt,16)}" for a_ in range(2) for rt in range(2)]
        for m, f_ in zip(mf2, sc.run()): k(m); put(k, f_)
    assert n == 28 and nal == 28
    stamp(k, "ffn2")
    t2 = T2 + 2
    k("s_barrier")
    k(f"s_lshl_b32 s54, s{sW}, 14"); k(f"v_add_u32 v{t2+1}, s54, v{VL16}")
    for q in range(16): k(f"ds_write_b128 v{t2+1}, {v(AC2+4*q,4)} offset:{1024*q}", token="red")
    R_ = 64
    for r in range(16):
        if r % 2 == 0: k(f"v_lshlrev_b32 v{128+r}, 16, v{X1R+r//2}")
        else: k(f"v_and_b32 v{128+r}, s67, v{X1R+r//2}")
    k(f"v_and_b32 v{t2}, 31, v{TT}"); k(f"v_lshlrev_b32 v{t2}, 10, v{t2}"); k(f"v_lshl_add_u32 v{t2}, v{h_}, 4, v{t2}")
    k(f"v_add_u32 v{t2+2}, s56, v{VL16}")
    k("s_lshl_b32 s54, s63, 15"); k("s_lshl_b32 s55, s64, 4"); k("s_add_u32 s54, s54, s55")
    k.wait("red"); k("s_barrier")
    for q in range(4):
        for ww in range(4): k(f"ds_read_b128 {v(R_+16*ww+4*q,4)}, v{t2+2} offset:{16384*ww+1024*q}")
    for sp in range(2):
        for r in range(8 * sp, 8 * sp + 8, 2):
            k(f"v_pk_add_f32 {v(R_+r,2)}, {v(R_+r,2)}, {v(R_+16+r,2)}"); k(f"v_pk_add_f32 {v(R_+32+r,2)}, {v(R_+32+r,2)}, {v(R_+48+r,2)}")
        for r in range(8 * sp, 8 * sp + 8, 2): k(f"v_pk_add_f32 {v(R_+r,2)}, {v(R_+r,2)}, {v(R_+32+r,2)}")
        for r in range(8 * sp, 8 * sp + 8, 2): k(f"v_pk_fma_f32 {v(R_+r,2)}, {v(R_+r,2)}, {v(GB+r,2)}, {v(128+r,2)}")
        for j in range(4 * sp, 4 * sp + 4): k(f"v_cvt_pk_bf16_f32 v{144+j}, v{R_+2*j}, v{R_+2*j+1}")
        k(f"buffer_store_dwordx4 {v(144+4*sp,4)}, v{t2}, s[16:19], s54 offen offset:{32*sp} sc1")
```

```python
import sys, struct, math, os, json
from asmlib import *

def f32(x): return "0x%08x" % struct.unpack("<I", struct.pack("<f", x))[0]
LOG2E = 1.4426950408889634
CS = 128 ** -0.5
A_X, A_K, A_V, A_WQ, A_WO, B_X, A_WG, A_WU, A_WD, A_C, A_WM, A_OUT, A_DBG, A_WS = [8 * i for i in range(14)]
WS_MOD = 0x0
WS_GO = 0x18000
WS_FL = 0x20000
WS_ST = 0x10000
WS_P = 0x400000
WS_X1 = 0x1400000
WS_H2 = 0x1600000
WS_ACT = 0x1800000
WS_BYTES = 0x10000000
WS_DBG = 0x8000000
P = dict(STAMPS=0, G=2, ROT=1, F1R=8, F2R=8, PREF0=1, PREFC=1, PREFQ=1, PREFK=1, PORD=1, XPRE=0, TLBW=1, PBAR=3, WPOS=1, DEFER=1, SYNC=1, LFIRST=0, SLEEP=2, OSC=1, SLEEP2=4, FW1=6, FW2=20, F2PRE=12, PFK=0, GS=1, NHID=4, TOUCH=0, N0=4, QP0=10, QBURST=1, TW1=8, TWM=8, TB0=2, HEND=32, APRE=6, BLEAD=4, EEND=72, PUBA=84, WLAG=4, BCHK=10, TW2=5, HPRE=3, PSYS=0, WPRE=2, BURST=54, KEARLY=0, BIAS=100, FORCE_FB=0, PNT=0, PST=2, AST=2, PF1=1, PF2=1)
for kv in os.environ.get("GP", "").split(","):
    if kv: P[kv.split("=")[0]] = int(kv.split("=")[1])

def stamp(k, name):
    if not P["STAMPS"]: return
    SETS = {0: ("start", "mod", "qgemm", "it0", "it1-6", "owrite", "ogemm", "t_set", "end"), 1: ("start", "gemv", "stats", "poll", "mod", "qgemm", "end"),
            3: ("start", "t_set", "poll1", "x1", "poll2", "ffn1", "pub3", "poll3", "end"), 7: ("start", "end"), 6: ("start", "poll2", "passA", "ffn1", "pub3", "poll3", "ffn2", "end"), 4: ("start", "mod", "q0", "q1", "q2", "qgemm", "end"), 5: ("start", "owrite", "q0o", "q1o", "q2o", "ogemm", "end")}
    if name not in SETS[P.get("DG", 0)]: return
    i = len(k.stamps); k.stamps.append(name)
    assert i < 9
    k.sgpr = 102
    k("s_memtime s[80:81]"); k("s_memrealtime s[100:101]"); k("s_waitcnt lgkmcnt(0)")
    k(f"s_mov_b32 s{82+2*i}, s80"); k(f"s_mov_b32 s{83+2*i}, s100")
def stamp_begin(k):
    k.stamps = []
    if not P["STAMPS"]: return
    stamp(k, "start")
def stamp_flush(k, kidx):
    if not P["STAMPS"]: return
    stamp(k, "end")
    if P["STAMPS"] == 2:
        lab = k.newlabel("NODBG")
        k("s_mov_b64 exec, -1")
        k(f"s_xor_b32 s100, s2, {P.get('DWG', 200)}"); k("s_or_b32 s100, s100, s101"); k("s_cmp_lg_u32 s100, 0"); k(f"s_cbranch_scc1 {lab}")
        k(f"s_load_dwordx2 s[66:67], s[0:1], {A_DBG}")
        k.srd(60, 66, 256)
        k("v_mov_b32 v1, 0")
        n = len(k.stamps)
        for j in range(1, n):
            k(f"s_sub_u32 s100, s{77+2*j}, s77"); k("v_mov_b32 v0, s100")
            k(f"buffer_store_dword v0, v1, s[60:63], 0 offen offset:{4*j}")
        k(f"s_sub_u32 s100, s{76+2*(n-1)}, s76"); k("v_mov_b32 v0, s100")
        k(f"buffer_store_dword v0, v1, s[60:63], 0 offen offset:{4*n}")
        k.label(lab)
        return
    k(f"s_load_dwordx2 s[64:65], s[0:1], {A_WS}")
    k("s_mov_b64 exec, -1")
    k.srd(56, 64, WS_BYTES)
    k("s_lshl_b32 s100, s2, 3"); k("s_add_u32 s100, s100, s28"); k("s_lshl_b32 s100, s100, 8")
    k(f"s_add_u32 s100, s100, {WS_DBG + kidx*0x100000:#x}")
    k("v_mov_b32 v1, 0")
    for j, sr in enumerate([82 + i for i in range(2*len(k.stamps))]):
        k(f"v_mov_b32 v0, s{sr}")
        k(f"buffer_store_dword v0, v1, s[56:59], s100 offen offset:{4*j}")

def wave_id(k, sdst, vtmp):
    k(f"v_lshrrev_b32 v{vtmp}, 6, v0")
    k(f"v_readfirstlane_b32 s{sdst}, v{vtmp}")
def rowsum_8(k, val, tmp):
    k(f"v_add_f32_dpp v{val}, v{val}, v{val} row_ror:8 row_mask:0xf bank_mask:0xf")
    k(f"v_mov_b32 v{tmp}, v{val}"); k(f"v_permlane16_swap_b32 v{val}, v{tmp}"); k(f"v_add_f32 v{val}, v{val}, v{tmp}")
    k(f"v_mov_b32 v{tmp}, v{val}"); k(f"v_permlane32_swap_b32 v{val}, v{tmp}"); k(f"v_add_f32 v{val}, v{val}, v{tmp}")
def rnd(k, d, sreg): k(f"v_cvt_pk_bf16_f32 v{d}, 0, v{sreg}")
def lg2(x): return x.bit_length() - 1
def split2(k, sb, sA, sB, nA_per, nB_total, t0, t1):
    A_total = 256 // nB_total; NA = A_total // nA_per
    k(f"s_and_b32 s{t0}, s{sb}, 7"); k(f"s_lshr_b32 s{t1}, s{sb}, 3")
    k(f"s_and_b32 s{sA}, s{t0}, {NA-1}"); k(f"s_lshl_b32 s{sA}, s{sA}, {lg2(nA_per)}")
    k(f"s_and_b32 s{sB}, s{t1}, {nA_per-1}"); k(f"s_add_u32 s{sA}, s{sA}, s{sB}")
    k(f"s_lshr_b32 s{sB}, s{t0}, {lg2(NA)}"); k(f"s_lshl_b32 s{sB}, s{sB}, {lg2(32//nA_per)}")
    k(f"s_lshr_b32 s{t1}, s{t1}, {lg2(nA_per)}"); k(f"s_add_u32 s{sB}, s{sB}, s{t1}")
def lane_tr_parts(k, lane, r, c2, gn, h, tmp):
    k(f"v_bfe_u32 v{r}, v{lane}, 2, 2")
    k(f"v_and_b32 v{c2}, 1, v{lane}"); k(f"v_lshlrev_b32 v{c2}, 1, v{c2}")
    k(f"v_bfe_u32 v{tmp}, v{lane}, 1, 1"); k(f"v_or_b32 v{c2}, v{c2}, v{tmp}")
    k(f"v_bfe_u32 v{gn}, v{lane}, 4, 1")
    k(f"v_lshrrev_b32 v{h}, 5, v{lane}")

QS = CS * LOG2E
GK0 = 2 * math.sqrt(2 / math.pi) * LOG2E
GSC = (GK0 * 0.044715) ** (1 / 3)
KNAME = "adaLN_cond__sliding_block_cached__geglu_ffn__prompt_kernel"
def ln_stats(k, XF):
    k(f"v_pk_add_f32 v[10:11], {v(XF,2)}, {v(XF+2,2)}")
    for e in range(4, 16, 2): k(f"v_pk_add_f32 v[10:11], v[10:11], {v(XF+e,2)}")
    k("v_add_f32 v10, v10, v11")
    def allreduce(off):
        rowsum_8(k, 10, 11)
        k(f"ds_write_b32 v9, v10 offset:{off}", token="w"); k.wait("w"); k("s_barrier")
        k(f"ds_read_b128 {v(12,4)}, v8 offset:{off}")
        k("v_add_f32 v12, v12, v13"); k("v_add_f32 v14, v14, v15"); k("v_add_f32 v10, v12, v14")
    allreduce(0)
    k(f"v_mul_f32 v58, {f32(-1/512)}, v10"); k("v_mov_b32 v59, v58")
    for e in range(0, 16, 2): k(f"v_pk_add_f32 {v(XF+e,2)}, {v(XF+e,2)}, v[58:59]")
    k(f"v_pk_mul_f32 v[10:11], {v(XF,2)}, {v(XF,2)}")
    for e in range(2, 16, 2): k(f"v_pk_fma_f32 v[10:11], {v(XF+e,2)}, {v(XF+e,2)}, v[10:11]")
    k("v_add_f32 v10, v10, v11")
    allreduce(128)
    k(f"v_mov_b32 v11, {f32(1e-5)}"); k(f"v_fmac_f32 v11, {f32(1/512)}, v10")
    k("v_rsq_f32 v56, v11"); k("v_mov_b32 v57, v56")

def gen_ln2():
    k = Kernel("ln2_kernel", 256, 256, 256, vgpr=160, sgpr=64)
    k("s_cmp_ge_u32 s2, 256"); k("s_cbranch_scc1 END_ln2")
    stamp_begin(k)
    k(f"s_load_dwordx2 s[4:5], s[0:1], {A_X}")
    k(f"s_load_dwordx2 s[6:7], s[0:1], {A_WS}")
    k("v_and_b32 v1, 7, v0"); k("v_lshrrev_b32 v2, 3, v0"); k("v_lshrrev_b32 v6, 6, v0")
    k("v_and_b32 v7, 7, v2"); k("v_lshl_add_u32 v7, v6, 4, v7")
    k("v_lshlrev_b32 v3, 9, v7"); k("v_lshl_add_u32 v3, v1, 4, v3")
    k("v_add_u32 v2, 4096, v3")
    k("v_lshlrev_b32 v4, 10, v1"); k("v_lshl_add_u32 v4, v7, 4, v4")
    k("v_lshlrev_b32 v5, 5, v7")
    k("v_lshlrev_b32 v8, 4, v1"); k("v_lshl_add_u32 v9, v6, 2, v8")
    k("s_and_b32 s25, s2, 7"); k("s_lshl_b32 s25, s25, 5"); k("s_lshr_b32 s26, s2, 3"); k("s_add_u32 s25, s25, s26")
    k("s_lshl_b32 s20, s25, 13")
    k("s_lshr_b32 s21, s25, 2"); k("s_lshl_b32 s21, s21, 15"); k("s_and_b32 s22, s25, 3"); k("s_lshl_b32 s22, s22, 7")
    k("s_add_u32 s21, s21, s22")
    k(f"s_add_u32 s23, s21, {WS_P:#x}")
    k.srd(12, 6, WS_BYTES)
    X = 16; XF = 24; MV = 40; PB = 64
    for g in range(8):
        for i in range(2):
            k(f"buffer_load_dwordx4 {v(PB+8*g+4*i,4)}, v{3-i}, s[12:15], s23 offen" + (" nt" if P["PNT"] else ""))
        if g < 7: k("s_add_u32 s23, s23, 0x200000")
    k.srd(8, 4, 2048 * 1024)
    for i in range(2): k(f"buffer_load_dwordx4 {v(X+4*i,4)}, v4, s[8:11], s20 offen offset:{128*i}")
    k("v_mov_b32 v10, 0"); k("s_lshl_b32 s27, s2, 7"); k(f"s_add_u32 s27, s27, {WS_FL:#x}")
    k("buffer_store_dword v10, v10, s[12:15], s27 offen sc1")
    k("s_mov_b32 s24, 0xffff0000")
    def load_mod(base, m):
        k(f"s_mov_b32 s23, {WS_MOD + m*2048}")
        for i in range(2):
            for hh in range(2):
                k(f"buffer_load_dwordx4 {v(base+8*i+4*hh,4)}, v5, s[12:15], s23 offen offset:{256*i+16*hh}")
    def unpack(dst, src):
        k(f"v_lshlrev_b32 v{dst}, 16, v{src}"); k(f"v_and_b32 v{dst+1}, s24, v{src}")
    load_mod(MV, 2); load_mod(128, 4); load_mod(144, 3)
    for q in range(8): unpack(XF + 2 * q, PB + q)
    for g in range(1, 8):
        for q in range(8):
            unpack(10 + 2 * (q & 1), PB + 8 * g + q)
            k(f"v_pk_add_f32 {v(XF+2*q,2)}, {v(XF+2*q,2)}, {v(10+2*(q&1),2)}")
    for q in range(8):
        unpack(10, X + q)
        k(f"v_pk_fma_f32 v[10:11], {v(XF+2*q,2)}, {v(MV+2*q,2)}, v[10:11]")
        k(f"v_cvt_pk_bf16_f32 v{X+q}, v10, v11")
        unpack(XF + 2 * q, X + q)
    k(f"s_add_u32 s23, s21, {WS_X1:#x}")
    for i in range(2): k(f"buffer_store_dwordx4 {v(X+4*i,4)}, v{3-i}, s[12:15], s23 offen sc1")
    stamp(k, "x1")
    ln_stats(k, XF)
    stamp(k, "stats")
    for e in range(0, 16, 2):
        k(f"v_pk_mul_f32 {v(XF+e,2)}, {v(XF+e,2)}, v[56:57]")
        k(f"v_pk_fma_f32 {v(XF+e,2)}, {v(XF+e,2)}, {v(128+e,2)}, {v(144+e,2)}")
        k(f"v_cvt_pk_bf16_f32 v{MV+e//2}, v{XF+e}, v{XF+e+1}")
    k(f"s_add_u32 s23, s21, {WS_H2:#x}")
    for i in range(2): k(f"buffer_store_dwordx4 {v(MV+4*i,4)}, v{3-i}, s[12:15], s23 offen sc1")
    stamp_flush(k, 1)
    k.label("END_ln2"); k("s_endpgm")
    return k

def put(k, seq):
    for x in seq:
        if isinstance(x, list): put(k, x)
        elif callable(x): x()
        else: k(x)

def gen_attn():
    k = Kernel(KNAME, 256, 256, 163840, vgpr=256, agpr=256, sgpr=82)
    k.denorm32 = P.get("DEN", 3)
    L_K, L_H, L_V, L_W, L_M = 0, 32768, 32768, 98304, 16384
    ACC = 0; S = 0; CI = 64; Q = 128
    VK = 192; VV = 200; VW = 204; VDW = 208; VDK = 212; VDV = 214; VLIN = 215; VL16 = 216
    LS = 217; VLO = 219
    T = 220
    LN_, ROWL, GR16 = T, T + 1, T + 2
    r_, c2, gn, h_, tm = T + 3, T + 4, T + 5, T + 6, T + 7
    CH8 = T + 10; HW = T + 11
    VX = T + 13; VM = T + 15
    MX = T + 16
    STT = T + 24
    RL = T + 28; UT = T + 28
    O = 0; FR = 128; AF = 128; BF = 160
    sW, sG, sRB, sT0, sT1, sRING, sST, sFB, sROT, sT2 = 28, 29, 30, 32, 33, 34, 35, 39, 50, 51
    sE0, sE1, sE2 = 61, 62, 63
    sO0, sO1, sO2, sW2K, sW256, sKhi, sMASK, sCC, sR8 = 36, 37, 38, 52, 54, 55, 58, 59, 6
    TAB = 72
    def L(f, cost=4, mem=False):
        f.cost = cost; f.mem = mem; return f
    k("s_cmp_ge_u32 s2, 256"); k("s_cbranch_scc1 END_attn")
    stamp_begin(k)
    k(f"s_mov_b32 s{sFB}, 0")
    if P["PREFC"]:
        k("s_getpc_b64 s[56:57]")
        k.label("PCREF")
        k(f"s_lshr_b32 s{sT1}, s2, 3"); k(f"s_lshl_b32 s{sT1}, s{sT1}, 12")
        k("v_lshlrev_b32 v108, 4, v0"); k(f"v_add_u32 v108, s{sT1}, v108"); k("v_min_u32 v108, CODE_END-PCREF-16, v108")
        k("global_load_dwordx4 a[252:255], v108, s[56:57]")
    wave_id(k, sW, T)
    k(f"v_and_b32 v{LN_}, 63, v0")
    k.label("RESTART")
    k(f"s_load_dwordx4 s[8:11], s[0:1], {A_C}")
    k(f"s_load_dwordx2 s[4:5], s[0:1], {A_X}")
    k(f"s_load_dwordx4 s[68:71], s[0:1], {A_DBG}")
    k(f"s_load_dwordx8 s[40:47], s[0:1], {A_K}")
    if P["TOUCH"]:
        k(f"s_load_dwordx4 s[84:87], s[0:1], {A_WG}"); k(f"s_load_dwordx2 s[88:89], s[0:1], {A_WD}"); k(f"s_load_dwordx2 s[90:91], s[0:1], {A_OUT}")
    L_R = L_M + 4096
    PSC = "sc1"
    GW, GC, GA = 64, 80, 88
    k(f"v_lshl_add_u32 v99, s{sW}, 6, v{LN_}")
    k("v_and_b32 v100, 1, v99"); k("v_lshrrev_b32 v101, 1, v99")
    k("v_mul_u32_u24 v102, 6144, v101"); k("v_lshl_add_u32 v102, v100, 4, v102"); k("v_lshlrev_b32 v103, 1, v101")
    k("v_lshrrev_b32 v104, 4, v99"); k("v_lshlrev_b32 v104, 6, v104"); k("v_lshl_add_u32 v104, v100, 5, v104")
    sSL = 7; sPR = 53
    k(f"s_and_b32 s{sT0}, s2, 7"); k(f"s_lshr_b32 s{sT1}, s2, 3")
    k(f"s_lshl_b32 s{sSL}, s{sT0}, 3"); k(f"s_add_u32 s{sSL}, s{sSL}, s{sT1}")
    k(f"s_lshl_b32 s{sT2}, s{sT0}, 4"); k(f"s_add_u32 s{sT2}, s{sT2}, s{sT1}"); k(f"s_add_u32 s{sT2}, s{sT2}, 56")
    k("s_cmp_lt_u32 s2, 64"); k(f"s_cselect_b32 s{sSL}, s{sSL}, s{sT2}")
    k(f"s_cselect_b32 s{sPR}, s{sFB}, 1")
    k(f"s_lshl_b32 s31, s{sSL}, 5")
    k(f"v_lshlrev_b32 v{VL16}, 4, v{LN_}")
    G = P["G"]
    NG = 8 // G; NS = 32 // G
    k(f"s_and_b32 s{sG}, s2, {NG-1}"); k(f"s_lshl_b32 s{sG}, s{sG}, {lg2(G)}"); k(f"s_lshr_b32 s{sT0}, s2, {3+lg2(NS)}"); k(f"s_add_u32 s{sG}, s{sG}, s{sT0}")
    k(f"s_bfe_u32 s{sROT}, s2, {3 | (lg2(NS) << 16):#x}")
    k(f"s_and_b32 s{sRB}, s2, 7"); k(f"s_lshr_b32 s{sRB}, s{sRB}, {lg2(NG)}"); k(f"s_lshl_b32 s{sRB}, s{sRB}, {lg2(NS)}"); k(f"s_add_u32 s{sRB}, s{sRB}, s{sROT}")
    k(f"s_lshl_b32 s{sROT}, s{sROT}, {lg2(G)}")
    k(f"s_and_b32 s{sR8}, s{sROT}, 7"); k(f"s_lshr_b32 s{sCC}, s{sROT}, 3")
    RR, CGL = tm, tm + 1
    k(f"v_bfe_u32 v{RR}, v{LN_}, 2, 3")
    k(f"v_lshrrev_b32 v{CGL}, 5, v{LN_}"); k(f"v_lshlrev_b32 v{CGL}, 2, v{CGL}"); k(f"v_and_or_b32 v{CGL}, v{LN_}, 3, v{CGL}")
    k(f"v_lshlrev_b32 v{VX}, 10, v{RR}"); k(f"v_lshl_add_u32 v{VX}, v{CGL}, 4, v{VX}"); k(f"v_add_u32 v{VX+1}, 8192, v{VX}")
    k(f"s_lshl_b32 s3, s{sRB}, 16"); k(f"s_lshl_b32 s{sT2}, s{sW}, 14"); k(f"s_add_u32 s3, s3, s{sT2}")
    XR = [0, 128, 144, 160]; CN = 176
    XS = [48, 49, 56, 57]
    for c in range(4):
        put(k, [f"s_add_u32 s{XS[c]}, s{sCC}, {c}", f"s_and_b32 s{XS[c]}, s{XS[c]}, 3", f"s_lshl_b32 s{XS[c]}, s{XS[c]}, 8", f"s_add_u32 s{XS[c]}, s{XS[c]}, s3"])
    xl = [f"buffer_load_dwordx4 {v(XR[c]+8*cb+4*oo,4)}, v{VX+oo}, s[16:19], s{XS[c]} offen offset:{128*cb}" for oo in range(2) for c in range(4) for cb in range(2)]
    k.srd(12, 10, 512 * 6144); k.srd(20, 8, 1024); k.srd(16, 4, 2048 * 1024)
    def gemv_loads():
        k(f"s_mov_b32 s{sT0}, s31")
        for i in range(4):
            k(f"buffer_load_dwordx4 {v(GW+4*i,4)}, v102, s[12:15], s{sT0} offen")
            if i < 3: k(f"s_add_u32 s{sT0}, s{sT0}, {128*6144}")
    for i in range(4): k(f"buffer_load_ushort v{GC+i}, v103, s[20:23], 0 offen offset:{256*i}")
    k.srd(24, 70, WS_BYTES)
    k(f"s_lshl_b32 s{sE2}, s{sW}, 11"); k(f"s_add_u32 s{sE2}, s{sE2}, {WS_GO:#x}")
    k(f"v_lshrrev_b32 v{MX+4}, 2, v{LN_}"); k(f"v_lshlrev_b32 v{MX+4}, 6, v{MX+4}"); k(f"v_add_u32 v{MX+4}, v{MX+4}, v{VL16}")
    k(f"buffer_load_dwordx4 {v(MX,4)}, v{MX+4}, s[24:27], s{sE2} offen sc1")
    k(f"v_lshlrev_b32 v109, 2, v{LN_}"); k(f"s_lshl_b32 s{sE1}, s{sSL}, 7"); k(f"s_add_u32 s{sE1}, s{sE1}, {WS_GO:#x}")
    k(f"buffer_load_dword v110, v109, s[24:27], s{sE1} offen sc1")
    k(f"s_xor_b32 s{sE0}, s{sW}, 3"); k(f"s_or_b32 s{sE0}, s{sE0}, s{sFB}")
    k(f"s_cmp_lg_u32 s{sE0}, 0"); k("s_cbranch_scc1 NOZERO")
    k(f"v_lshlrev_b32 v111, 15, v{LN_}"); k("v_mov_b32 v107, 0"); k(f"s_lshl_b32 s{sT0}, s2, 7"); k(f"s_add_u32 s{sT0}, s{sT0}, {WS_FL:#x}")
    k("s_mov_b64 exec, 15")
    k(f"buffer_store_dword v107, v111, s[24:27], s{sT0} offen sc1")
    k("s_mov_b64 exec, -1")
    k.label("NOZERO")
    k.vm = {kk: max(p - 1, 0) for kk, p in k.vm.items()}
    k(f"s_cmp_eq_u32 s{sPR}, 0"); k("s_cbranch_scc1 PLOAD")
    s_a = (dict(k.vm), dict(k.lg))
    if P["TOUCH"]:
        k(f"s_cmp_lt_u32 s2, {P['TOUCH']}"); k("s_cbranch_scc1 NOTOUCH")
        k(f"s_lshl_b32 s92, s{sW}, 20"); k(f"s_and_b32 s93, s92, 0x100000")
        k.auto = False
        for base in (44, 40, 42, 46): k(f"s_load_dword s81, s[{base}:{base+1}], s92")
        for base in (84, 86, 88, 90): k(f"s_load_dword s81, s[{base}:{base+1}], s93")
        for i in range(8):
            k(f"s_load_dword s81, s[70:71], s92"); k("s_add_u32 s92, s92, 0x400000")
        k.auto = True
        k.label("NOTOUCH")
        k.sgpr = max(k.sgpr, 94)
    put(k, xl)
    s_b = dict(k.vm)
    k("s_branch PJOIN")
    k.label("PLOAD")
    k.vm = dict(s_a[0])
    gemv_loads()
    k.label("PJOIN")
    k.vm = k._merge(k.vm, s_b)
    k(f"s_lshl_b32 s{sW256}, s{sW}, 8"); k(f"s_lshl_b32 s{sW2K}, s{sW}, 11")
    k(f"v_lshrrev_b32 v{ROWL}, 4, v{LN_}")
    k(f"v_and_b32 v{r_}, 15, v{LN_}"); k(f"v_lshlrev_b32 v{GR16}, 2, v{ROWL}"); k(f"v_xor_b32 v{GR16}, v{GR16}, v{r_}")
    k(f"v_lshlrev_b32 v{GR16}, 4, v{GR16}")
    def w_voffs(psh, scol):
        return [f"v_lshl_add_u32 v{VDW}, v{ROWL}, {psh}, v{GR16}", f"v_add_u32 v{VDW}, s{scol}, v{VDW}"] + \
               [f"v_add_u32 v{VDW+n}, {n*((4<<psh)-1024)}, v{VDW}" for n in range(1, 4)]
    k(f"s_lshl_b32 s{sT0}, s{sG}, 10"); k(f"s_add_u32 s{sT0}, s{sT0}, s{sW256}")
    put(k, w_voffs(13, sT0))
    k(f"s_lshl_b32 s{sRING}, s{sW}, 14"); k(f"s_add_u32 s{sRING}, s{sRING}, {L_W}")
    for p in range(8):
        k(f"s_add_u32 s{TAB+p}, s{sR8}, {p}"); k(f"s_and_b32 s{TAB+p}, s{TAB+p}, 7"); k(f"s_lshl_b32 s{TAB+p}, s{TAB+p}, 17")
    k(f"s_lshl_b32 s{sKhi}, s{sCC}, 20")
    k.srd(8, 44, 512 * 8192)
    def w_dma(step, which):
        slot = step % 4
        if which == "Q":
            srd = 8
            pre = [f"s_add_u32 s{sT0}, s{sKhi}, s{TAB+step%8}"]
            adv = [[f"s_add_u32 s{sKhi}, s{sKhi}, 0x100000", f"s_and_b32 s{sKhi}, s{sKhi}, 0x3fffff"]] if step % 8 == 7 else []
        else:
            srd = 20
            pre = [f"s_add_u32 s{sT0}, s{TAB+step%8}, {(2*(step//8))<<14}"]
            adv = []
        o = [pre + [f"s_add_u32 m0, s{sRING}, {4096*slot}"]] + adv + [f"buffer_load_dwordx4 v{VDW}, s[{srd}:{srd+3}], s{sT0} offen lds"]
        for n in range(1, 4):
            o.append(L(lambda n=n: k(f"buffer_load_dwordx4 v{VDW+n}, s[{srd}:{srd+3}], s{sT0} offen offset:{1024*n} lds", token=f"W{slot}"), 10, "v"))
        return o
    k(f"v_lshrrev_b32 v{r_}, 1, v{CGL}"); k(f"v_subrev_u32 v{r_}, s{sR8}, v{r_}")
    k(f"v_and_b32 v{c2}, 1, v{CGL}"); k(f"v_and_b32 v{gn}, 1, v{r_}"); k(f"v_lshl_add_u32 v{gn}, v{gn}, 1, v{c2}"); k(f"v_lshlrev_b32 v{gn}, 1, v{gn}")
    k(f"v_xor_b32 v{gn}, v{gn}, v{RR}")
    k(f"v_lshlrev_b32 v{c2}, 9, v{c2}"); k(f"v_lshl_add_u32 v{c2}, v{gn}, 4, v{c2}")
    k(f"s_lshr_b32 s{sT1}, s{sW}, 1"); k(f"s_lshl_b32 s{sT1}, s{sT1}, 15"); k(f"s_and_b32 s{sT2}, s{sW}, 1"); k(f"s_lshl_b32 s{sT2}, s{sT2}, 8")
    k(f"s_add_u32 s{sT1}, s{sT1}, s{sT2}"); k(f"s_add_u32 s{sT1}, s{sT1}, {L_H}"); k(f"v_add_u32 v{c2}, s{sT1}, v{c2}")
    for cb in range(2):
        k(f"v_add_u32 v{gn}, {4*cb}, v{r_}"); k(f"v_and_b32 v{gn}, 7, v{gn}"); k(f"v_lshl_add_u32 v{HW+cb}, v{gn}, 10, v{c2}")
    k(f"s_lshl_b32 s{sT2}, s{sCC}, 9"); k(f"v_lshlrev_b32 v{VM}, 5, v{CGL}"); k(f"v_add_u32 v{VM}, s{sT2}, v{VM}")
    lane_tr_parts(k, LN_, r_, c2, gn, h_, tm)
    k(f"v_lshl_add_u32 v{CH8}, v{gn}, 2, v{c2}"); k(f"v_lshlrev_b32 v{CH8}, 3, v{CH8}")
    k(f"v_lshl_add_u32 v{tm}, v{h_}, 3, v{r_}"); k(f"v_lshl_add_u32 v{tm}, v{tm}, 8, v{CH8}"); k(f"v_add_u32 v{tm}, s{sRING}, v{tm}")
    for a_ in range(4):
        k(f"v_xor_b32 v{tm+1}, {a_}, v{r_}"); k(f"v_lshl_add_u32 v{VW+a_}, v{tm+1}, 6, v{tm}")
    put(k, [f"v_lshl_add_u32 v{tm}, v{h_}, 2, v{r_}", f"v_lshl_add_u32 v{tm}, v{tm}, 8, v{CH8}", f"v_add_u32 v{tm}, {L_V}, v{tm}"])
    for dt in range(4): put(k, [f"v_xor_b32 v{tm+1}, {dt}, v{r_}", f"v_lshl_add_u32 v{VV+dt}, v{tm+1}, 6, v{tm}"])
    put(k, [f"v_and_b32 v{tm}, 31, v{LN_}", f"v_and_b32 v{tm+1}, 15, v{LN_}", f"v_xor_b32 v{tm+1}, v{tm+1}, v{h_}",
            f"v_lshlrev_b32 v{tm}, 8, v{tm}", f"v_lshl_add_u32 v{VK}, v{tm+1}, 4, v{tm}"])
    put(k, [f"v_xor_b32 v{VK+s_}, {s_*32}, v{VK}" for s_ in range(1, 8)])
    put(k, [f"v_mov_b32 v{LS}, 0", f"v_mov_b32 v{LS+1}, 0",
        f"v_lshl_add_u32 v{VDV}, v{ROWL}, 8, v{GR16}", f"s_and_b32 s{sT1}, s{sW}, 1", f"s_lshl_b32 s{sT1}, s{sT1}, 3",
        f"v_or_b32 v{tm}, s{sT1}, v{ROWL}", f"v_and_b32 v{tm+1}, 15, v{LN_}", f"v_xor_b32 v{tm}, v{tm}, v{tm+1}",
        f"v_lshlrev_b32 v{VDK}, 8, v{ROWL}", f"v_lshl_add_u32 v{VDK}, v{tm}, 4, v{VDK}", f"v_xor_b32 v{VDK+1}, 64, v{VDK}",
        f"s_lshl_b32 s{sT1}, s{sG}, 19", f"s_add_u32 s{sT1}, s{sT1}, s{sW2K}", f"s_add_u32 s{sT1}, s{sT1}, {1536*256}",
        f"v_add_u32 v{VDK}, s{sT1}, v{VDK}", f"v_add_u32 v{VDK+1}, s{sT1}, v{VDK+1}", f"v_add_u32 v{VDV}, s{sT1}, v{VDV}",
        f"v_lshlrev_b32 v{tm}, 5, v{h_}", f"v_xor_b32 v{VLIN}, v{tm}, v{VL16}", f"v_add_u32 v{VLIN}, {L_H}, v{VLIN}", f"v_xor_b32 v{VLO}, 64, v{VLIN}",
        f"s_mov_b32 s{sMASK}, 0xffff0000"])
    def nxt(d, s_): return [f"s_add_u32 s{d}, s{s_}, 8192", f"s_and_b32 s{d}, s{d}, 0x1ffff"]
    def kv_dma(which, lds_off, so):
        srd = 12 if which == "K" else 16
        return [f"s_add_u32 m0, s{sW2K}, {lds_off}", f"buffer_load_dwordx4 v{VDK if which=='K' else VDV}, s[{srd}:{srd+3}], s{so} offen lds",
                L(lambda: k(f"buffer_load_dwordx4 v{VDK+1 if which=='K' else VDV}, s[{srd}:{srd+3}], s{so} offen offset:1024 lds", token=which), 10, "v")]
    kinit = [[f"s_lshr_b32 s{sO0}, s{sROT}, 1", f"s_lshl_b32 s{sO0}, s{sO0}, 13"] + nxt(sO1, sO0) + nxt(sO2, sO1)]
    kfirst = [kv_dma("K", L_K + 16384 + 8192, sO0), kv_dma("K", L_K, sO1), kv_dma("K", L_K + 8192, sO2)]
    k.srd(20, 68, 256)
    def gemv_compute(lo, hi, tag, late):
        k(f"s_sub_u32 s{sT0}, s2, {lo}"); k(f"s_cmp_ge_u32 s{sT0}, {hi-lo}"); k(f"s_cselect_b32 s{sT0}, 1, s{sFB}"); k(f"s_cmp_lg_u32 s{sT0}, 0"); k("s_cbranch_scc1 NOGEMV" + tag)
        st0 = (dict(k.vm), dict(k.lg))
        D = P.get("DG") == 1 and not late
        if D: stamp(k, "g_in"); k.wait_regs(v(GW, 20)); stamp(k, "g_data")
        k(f"s_mov_b32 s{sT1}, {f32(-LOG2E)}")
        for i in range(4): k(f"v_lshlrev_b32 v{GC+i}, 16, v{GC+i}")
        for i in range(4): k(f"v_mul_f32 v{GA+i}, s{sT1}, v{GC+i}")
        for i in range(4): k(f"v_exp_f32 v{GA+i}, v{GA+i}")
        for i in range(4): k(f"v_add_f32 v{GA+i}, 1.0, v{GA+i}")
        for i in range(4): k(f"v_rcp_f32 v{GA+i}, v{GA+i}")
        for i in range(4): k(f"v_mul_f32 v{GC+i}, v{GC+i}, v{GA+i}")
        for i in range(4): rnd(k, 112 + 2 * i, GC + i)
        for i in range(4):
            for q in range(4):
                r = GW + 4 * i + q; u = 120 + 2 * (q & 1)
                k(f"v_lshlrev_b32 v{u}, 16, v{r}"); k(f"v_and_b32 v{u+1}, s{sMASK}, v{r}")
                if i == 0: k(f"v_pk_mul_f32 {v(GA+2*q,2)}, {v(u,2)}, {v(112+2*i,2)} op_sel_hi:[1,0]")
                else: k(f"v_pk_fma_f32 {v(GA+2*q,2)}, {v(u,2)}, {v(112+2*i,2)}, {v(GA+2*q,2)} op_sel_hi:[1,0,1]")
        for md in ("quad_perm:[2,3,0,1]", "row_ror:4", "row_ror:8"):
            for j in range(8): k(f"v_add_f32_dpp v{GA+j}, v{GA+j}, v{GA+j} {md} row_mask:0xf bank_mask:0xf")
        k(f"ds_write_b128 v104, {v(GA,4)} offset:{L_R}", token="w"); k(f"ds_write_b128 v104, {v(GA+4,4)} offset:{L_R+16}", token="w")
        k(f"v_lshlrev_b32 v105, 2, v{LN_}")
        k(f"s_lshr_b32 s{sT0}, s{sSL}, 5"); k(f"s_cmp_eq_u32 s{sT0}, 1"); k(f"s_cselect_b32 s{sT1}, 1.0, 0")
        k(f"s_cmp_eq_u32 s{sT0}, 4"); k(f"s_cselect_b32 s{sT1}, 1.0, s{sT1}")
        k(f"s_cmp_lt_u32 s{sT0}, 2"); k(f"s_cselect_b32 s{sT2}, {f32(QS)}, 1.0")
        if P["GS"] and late:
            k(f"s_cmp_ge_u32 s{sT0}, 3"); k(f"s_cselect_b32 s{sT2}, {f32(GSC)}, s{sT2}")
            k(f"s_cmp_eq_u32 s{sT0}, 5"); k(f"s_cselect_b32 s{sT2}, {f32(1/GSC**2)}, s{sT2}")
        k(f"s_lshl_b32 s{sT0}, s{sSL}, 6")
        k.wait("w"); k("s_barrier")
        k(f"s_cmp_lg_u32 s{sW}, 3"); k("s_cbranch_scc1 " + ("NOGEMV" + tag if late else "PWAIT"))
        for i in range(4): k(f"ds_read_b32 v{GA+i}, v105 offset:{L_R+256*i}")
        k(f"v_add_f32 v{GA}, v{GA}, v{GA+1}"); k(f"v_add_f32 v{GA+2}, v{GA+2}, v{GA+3}"); k(f"v_add_f32 v{GA}, v{GA}, v{GA+2}")
        k(f"v_mov_b32 v{GA+1}, v{GA}"); k(f"v_permlane16_swap_b32 v{GA}, v{GA+1}"); k(f"v_add_f32 v{GA}, v{GA}, v{GA+1}")
        k(f"v_mov_b32 v{GA+1}, v{GA}"); k(f"v_permlane32_swap_b32 v{GA}, v{GA+1}"); k(f"v_add_f32 v{GA}, v{GA}, v{GA+1}")
        rnd(k, GA, GA)
        k(f"v_add_f32 v{GA}, s{sT1}, v{GA}"); k(f"v_mul_f32 v{GA}, s{sT2}, v{GA}")
        if D: stamp(k, "g_red")
        k("s_mov_b64 exec, 0xffff")
        if not late:
            k("v_not_b32 v110, v110"); k(f"v_bfi_b32 v{GA}, 1, v110, v{GA}")
            k(f"buffer_store_dword v{GA}, v109, s[24:27], s{sE1} offen sc1")
            k("s_mov_b64 exec, -1")
            k.label("PWAIT")
            k("s_barrier")
            k.vm = {}
            put(k, xl)
            st0 = (k._merge(st0[0], k.vm), None)
        else:
            k(f"buffer_store_dword v{GA}, v105, s[24:27], s{sT0} offen sc1")
            k("s_mov_b64 exec, -1")
        k.label("NOGEMV" + tag)
        k.vm, k.lg = dict(st0[0]), {}
        k.smem_pending = bool(P["TOUCH"])
    gemv_compute(0, 64, "A", False)
    stamp(k, "gemv")
    k("s_mov_b32 s3, 0x3f803f80")
    ASET = {"Q": [AF, AF + 16], "O": [AF, AF + 16]}
    def aset(which, step): return ASET[which][step % len(ASET[which])]
    def a_reads(step, which="O"):
        slot = step % 4; b_ = aset(which, step)
        rd = [f"ds_read_b64_tr_b16 {a(b_+4*a_+2*u,2)}, v{VW+a_} offset:{4096*slot+1024*u}" for a_ in range(4) for u in range(2)]
        return [[L(lambda: k.wait(f"W{slot}")), rd[0]]] + rd[1:]
    N0 = P["N0"]
    if P.get("DG") == 2: stamp(k, "iss"); k.wait_regs(v(0, 16), v(128, 48)); stamp(k, "xarr")
    for oo in range(2):
        src = [XR[c] + 8 * cb + 4 * oo + q for c in range(4) for cb in range(2) for q in range(4)]
        A_ = 16 + 8 * oo
        if oo == P["WPOS"]:
            if oo: k.wait_regs(*[f"v{x}" for x in src])
            def late_loads():
                k(f"s_sub_u32 s{sT0}, s2, 64"); k(f"s_cmp_ge_u32 s{sT0}, 128"); k("s_cbranch_scc1 NOLATE")
                s_c = dict(k.vm)
                gemv_loads()
                k.label("NOLATE")
                k.vm = k._merge(k.vm, s_c)
                k.srd(12, 40, 8 * 2048 * 256)
            if P["LFIRST"]: late_loads()
            put(k, [w_dma(s_, "Q") for s_ in range(P["WPRE"])])
            if not P["LFIRST"]: late_loads()
        for j, x in enumerate(src):
            k(f"v_dot2_f32_bf16 v{A_+(j&1)}, v{x}, s3, {'0' if j < 2 else 'v%d' % (A_+(j&1))}")
            k(f"v_dot2_f32_bf16 v{A_+2+(j&1)}, v{x}, v{x}, {'0' if j < 2 else 'v%d' % (A_+2+(j&1))}")
        k("s_nop 2")
        k(f"v_add_f32 v{A_}, v{A_}, v{A_+1}"); k(f"v_add_f32 v{A_+2}, v{A_+2}, v{A_+3}")
        for md in ("quad_perm:[1,0,3,2]", "quad_perm:[2,3,0,1]"):
            for x in (A_, A_ + 2): k(f"v_add_f32_dpp v{x}, v{x}, v{x} {md} row_mask:0xf bank_mask:0xf")
        for x in (A_, A_ + 2): k(f"v_mov_b32 v{x+1}, v{x}")
        for x in (A_, A_ + 2): k(f"v_permlane32_swap_b32 v{x}, v{x+1}")
        for x in (A_, A_ + 2): k(f"v_add_f32 v{x}, v{x}, v{x+1}")
        k(f"v_mul_f32 v{A_}, {f32(-1/512)}, v{A_}")
        k(f"v_mul_f32 v{A_+2}, {f32(1/512)}, v{A_+2}")
        k(f"v_fma_f32 v{A_+2}, -v{A_}, v{A_}, v{A_+2}"); k(f"v_max_f32 v{A_+2}, 0, v{A_+2}")
        k(f"v_add_f32 v{A_+2}, {f32(1e-5)}, v{A_+2}"); k(f"v_rsq_f32 v{STT+2*oo+1}, v{A_+2}")
        k(f"v_mul_f32 v{STT+2*oo}, v{A_}, v{STT+2*oo+1}")
    def cread(cb, dst):
        return [f"ds_read_b128 {v(dst+8*m_+4*q,4)}, v{VM} offset:{L_M+2048*(1-m_)+256*cb+16*q}" for m_ in range(2) for q in range(2)]
    vmadv = [[f"v_add_u32 v{VM}, 0x200, v{VM}", f"v_and_b32 v{VM}, 0x7ff, v{VM}"]]
    def modulate(c, cb, cn, U_, pk):
        o = []
        for oo in range(2):
            x = XR[c] + 8 * cb + 4 * oo; u = U_ + (8 * oo if pk else 0)
            for q in range(4): o += [f"v_lshlrev_b32 v{u+2*q}, 16, v{x+q}", f"v_and_b32 v{u+2*q+1}, s{sMASK}, v{x+q}"]
            if pk:
                st = v(STT + 2 * oo, 2)
                o += [f"v_pk_fma_f32 {v(u+2*q,2)}, {v(u+2*q,2)}, {st}, {st} op_sel:[0,1,0] op_sel_hi:[1,1,0]" for q in range(4)]
                if pk == "pre": continue
                if pk == "post": o = o[:-12]
                o += [f"v_pk_fma_f32 {v(u+2*q,2)}, {v(u+2*q,2)}, {v(cn+2*q,2)}, {v(cn+8+2*q,2)}" for q in range(4)]
            else:
                o += [f"v_fma_f32 v{u+e}, v{u+e}, v{STT+2*oo+1}, v{STT+2*oo}" for e in range(8)]
                o += [f"v_fma_f32 v{u+e}, v{u+e}, v{cn+e}, v{cn+8+e}" for e in range(8)]
            o += [f"v_cvt_pk_bf16_f32 v{x+q}, v{u+2*q}, v{u+2*q+1}" for q in range(4)]
            o.append(L(lambda x=x, cb=cb, oo=oo: k(f"ds_write_b128 v{HW+cb}, {v(x,4)} offset:{8192*c+128*oo}", token="hw"), 22, "d"))
        return o
    put(k, modulate(0, 0, 16, 32, "pre") + modulate(0, 1, 32, 48, "pre"))
    if P.get("DG") == 2: stamp(k, "st+pre")
    gemv_compute(64, 192, "B", True)
    put(k, kinit)
    if P["KEARLY"]:
        put(k, kfirst)
        k.srd(16, 42, 8 * 2048 * 256)
        k(f"s_lshl_b32 s{sT1}, s{sROT}, 12"); k(f"s_lshl_b32 s{sT2}, s{sG}, 19"); k(f"s_add_u32 s{sT1}, s{sT1}, s{sT2}")
        k(f"s_lshl_b32 s{sT2}, s{sW}, {10+lg2(G)}"); k(f"s_add_u32 s{sT1}, s{sT1}, s{sT2}"); k(f"s_add_u32 s{sT1}, s{sT1}, {1536*256}")
        for n in range(G): k(f"buffer_load_dwordx4 {a(192+4*n,4)}, v{VL16}, s[16:19], s{sT1} offen offset:{1024*n}")
    stamp(k, "stats")
    k(f"s_lshl_b32 s{sT1}, s{sFB}, 4"); k(f"s_sub_u32 s{sT1}, s{sT1}, s{sFB}")
    k("v_mov_b32 v80, 0")
    k(f"s_mov_b32 s{sT2}, 0")
    k.label("POLL")
    k(f"s_add_u32 s{sT1}, s{sT1}, 1")
    k(f"s_and_b32 s{sT0}, s{sT1}, 15"); k("s_cbranch_scc1 POLLR")
    k("buffer_load_dword v81, v80, s[20:23], 0 offen sc1")
    k("v_readfirstlane_b32 s{0}, v81".format(sT0))
    k(f"s_cmp_ge_u32 s{sT0}, 0x100"); k(f"s_cselect_b32 s{sT2}, 1, 0")
    k(f"s_cmp_gt_u32 s{sT1}, 0x8000"); k(f"s_cselect_b32 s{sT2}, 1, s{sT2}")
    k.label("POLLR")
    k(f"buffer_load_dwordx4 {v(16,4)}, v{MX+4}, s[24:27], s{sE2} offen sc1")
    k(f"v_xor_b32 v82, v16, v{MX}")
    for j in range(1, 4): k(f"v_bitop3_b32 v82, v{16+j}, v{MX+j}, v82 bitop3:0x28")
    k("v_and_b32 v82, 1, v82"); k("v_cmp_eq_u32 vcc, 0, v82"); k("s_cmp_lg_u64 vcc, 0")
    k(f"s_cselect_b32 s{sT2}, s{sT2}, 1")
    k(f"s_cmp_lg_u32 s{sE0}, 0"); k("s_cbranch_scc1 NOARR")
    k("s_mov_b64 exec, 1"); k("v_mov_b32 v106, 1")
    k("buffer_atomic_add v106, v80, s[20:23], 0 offen")
    k("s_mov_b64 exec, -1")
    k(f"s_mov_b32 s{sE0}, 1")
    k.label("NOARR")
    k(f"s_cmp_lg_u32 s{sT2}, 0"); k("s_cbranch_scc1 POLLED")
    if P["PFK"]:
        k(f"s_cmp_lg_u32 s{sT1}, 1"); k("s_cbranch_scc1 NOPFK")
        k("s_cmp_lt_u32 s2, 192"); k("s_cbranch_scc1 NOPFK")
        k.srd(64, 42, 8 * 2048 * 256)
        k(f"s_bfe_u32 s{sT0}, s2, 0x30003"); k(f"s_lshl_b32 s{sT0}, s{sT0}, 2"); k(f"s_add_u32 s{sT0}, s{sT0}, s{sW}"); k(f"s_lshl_b32 s{sT0}, s{sT0}, 12")
        k(f"s_and_b32 s3, s2, {NG-1}"); k(f"s_lshl_b32 s3, s3, {19+lg2(G)}"); k(f"s_add_u32 s{sT0}, s{sT0}, s3"); k(f"s_add_u32 s{sT0}, s{sT0}, {1536*256}")
        n = 0
        for gi in range(G):
            for srd in (12, 64)[:P["PFK"]]:
                for j in range(4): k(f"buffer_load_dwordx4 {a(4*n,4)}, v{VL16}, s[{srd}:{srd+3}], s{sT0} offen offset:{1024*j}"); n += 1
            k(f"s_add_u32 s{sT0}, s{sT0}, 0x80000")
        k.label("NOPFK")
    if P["SLEEP"]: k(f"s_sleep {P['SLEEP']}")
    k("s_branch POLL")
    k.label("POLLED")
    k(f"s_load_dwordx4 s[64:67], s[0:1], {A_WG}"); k(f"s_load_dwordx2 s[4:5], s[0:1], {A_WD}")
    if P.get("DG"): stamp(k, "go")
    for j in range(4): k(f"v_and_b32 v{16+j}, -2, v{16+j}")
    k(f"s_lshl_b32 s{sT0}, s{sW}, 10"); k(f"v_add_u32 v80, s{sT0}, v{VL16}")
    k(f"ds_write_b128 v80, {v(16,4)} offset:{L_M}", token="w")
    k.wait("w")
    k("s_barrier")
    stamp(k, "poll")
    k.srd(20, 46, 4096 * 1024)
    put(k, cread(0, 64) + cread(1, 80) + vmadv)
    put(k, modulate(0, 0, 64, 32, "post") + modulate(0, 1, 80, 48, "post"))
    put(k, [w_dma(s_, "Q") for s_ in range(P["WPRE"], 4)])
    put(k, a_reads(0, "Q"))
    fr = lambda f: FR + 4 * (f % 8)
    def rdK(f, s_, off): return [f"ds_read_b128 {a(fr(f),4)}, v{VK+s_} offset:{off}"]
    def rdV(f, i, off): return [f"ds_read_b64_tr_b16 {a(fr(f)+2*u,2)}, v{VV+i%4} offset:{off+4096*(i//4)+2048*u}" for u in range(2)]
    def b_reads(step):
        return [f"ds_read_b128 {a(BF+8*(step%2)+4*rt,4)}, v{VLO if step & 1 else VLIN} offset:{1024*step+32768*rt}" for rt in range(2)]
    k.wait("hw"); k("s_barrier")
    stamp(k, "mod")
    for _ in range(P.get("DLY0", 0)): k("s_sleep 38")
    put(k, b_reads(0))
    def g_mfma(which, st):
        return [f"v_mfma_f32_32x32x16_bf16 {v(ACC+32*a_+16*rt,16)}, {a(aset(which,st)+4*a_,4)}, {a(BF+8*(st%2)+4*rt,4)}, {'0' if st == 0 else v(ACC+32*a_+16*rt,16)}"
                for a_ in range(4) for rt in range(2)]
    class Off:
        def __init__(s_, sc, o): s_.sc, s_.o = sc, o
        def pin(s_, g, x, end=False): s_.sc.pin(g + s_.o, x, end)
        def add(s_, ops, g0, g1, prio=0): s_.sc.add(ops, g0 + s_.o, g1 + s_.o, prio)
    def gemm(which, extra, nr, nd):
        sc = Sched(256)
        mf = []
        for st in range(32):
            if which == "Q" and st % 8 == 7 and st < 31: sc.pin(8 * st + 1, L(lambda: (k.wait("hw"), k("s_barrier")), 8))
            if st + 1 < 32:
                sc.add(b_reads(st + 1), 8 * st + (1 if st % 8 == 7 else 0), 8 * st + 4, prio=1)
                sc.pin(8 * st + 7, L(lambda st=st: k.wait_regs(a(aset(which, st + 1), 16), a(BF + 8 * ((st + 1) % 2), 8))), end=True)
            mf += g_mfma(which, st)
        R = len(ASET[which])
        g0 = 0
        td = {}
        first = [j for j in range(nd, min(nr + 4, 32))]
        pd = 8
        for i, j in enumerate(first):
            sc.add(w_dma(j, which), pd * i, pd * (i + 1)); td[j] = pd * (i + 1)
        tstart = max(pd * len(first) - (pd if first else 0), 8 * (nr - R + 1), 0)
        if first and nr in td: tstart = max(tstart, td[nr] + 12)
        nun = 32 - nr
        tr = {j: int(tstart + (j - nr) * (240 - tstart) / (nun - 1)) for j in range(nr, 32)}
        for j in range(nr, 32):
            assert tr[j] >= 8 * (j - R + 1) and tr[j] <= 8 * (j - 1), (j, tr[j])
            sc.add(a_reads(j, which), tr[j], tr[j] + 5, prio=1)
            if j + 4 < 32 and j + 4 >= nd and j + 4 not in td:
                lo = max(tr[j + 1], max(td.values()) if td else 0); hi = max(tr[j + 2], lo + 6)
                sc.add([L(lambda j=j: k.wait_regs(a(aset(which, j), 16)))] + w_dma(j + 4, which), lo, hi); td[j + 4] = hi
        sc.last_dma = max(td.values())
        for c in range(4): extra(c)(Off(sc, 64 * c), sc.last_dma - 192)
        i0 = len(k.items)
        for g_, (m, f_) in enumerate(zip(mf, sc.run())):
            k(m); put(k, f_)
            if g_ % 64 == 63 and g_ < 255: stamp(k, f"q{g_//64}" + ("o" if which == "O" else ""))
            if g_ == 191: i1 = len(k.items)
        X = P.get("DBG" + which, 0)
        if X:
            def keep(it):
                if it.kind in ("label", "raw"): return True
                if X & 1 and it.mn == "s_barrier": return False
                if X & 4 and it.kind in ("valu", "trans"): return False
                if X & 8 and it.kind == "vmem": return False
                if X & 16 and it.mn.startswith("ds_write"): return False
                if X & 32 and it.mn.startswith("ds_read_b128") and it.ops[0].startswith("v"): return False
                return True
            k.items[i0:i1] = [it for it in k.items[i0:i1] if keep(it)]
    def qepi(a_):
        return [f"v_cvt_pk_bf16_f32 v{Q+16*a_+8*(j//4)+4*rt+j%4}, v{ACC+32*a_+16*rt+2*j}, v{ACC+32*a_+16*rt+2*j+1}" for rt in range(2) for j in range(8)]
    def qx(c):
        def f(sc, ld):
            if c < 3:
                m0_ = modulate(c + 1, 0, CN, UT, False); m1_ = modulate(c + 1, 1, CN, UT, False)
                if P["QBURST"]:
                    wr = [x for x in m0_ + m1_ if callable(x)]
                    m0_ = [x for x in m0_ if not callable(x)]; m1_ = [x for x in m1_ if not callable(x)]
                    sc.add(cread(0, CN) + m0_[:-4] + cread(1, CN) + m0_[-4:] + m1_ + vmadv, 0, P["BURST"])
                    sc.pin(P["BURST"], wr)
                else:
                    sc.add(cread(0, CN) + m0_[:-5] + cread(1, CN) + m0_[-5:] + m1_ + vmadv, 0, 55)
            else:
                sc.pin(0, L(lambda: k.srd(16, 42, 8 * 2048 * 256), 16))
                assert ld <= 40, ld
                if not P["KEARLY"]: sc.add([x for d in kfirst for x in d], ld, ld + 9)
                tab = []
                for p in range(8):
                    tab.append([f"s_add_u32 s{sT1}, s{sR8}, {p}", f"s_and_b32 s{sT1}, s{sT1}, 7", f"s_lshr_b32 s{sT2}, s{sT1}, 1", f"s_mul_i32 s{sT2}, s{sT2}, 6"])
                    tab.append([f"s_add_u32 s{sT1}, s{sT1}, s{sT2}", f"s_lshl_b32 s{TAB+p}, s{sT1}, 14"])
                sc.add(tab + [[f"s_lshl_b32 s{sT0}, s{sG}, 19", f"s_add_u32 s{sT0}, s{sT0}, s{sW256}"]] + w_voffs(10, sT0), ld + 1, 58)
                NA1 = P["F1R"] // 2; W1_ = 3584 // NA1; assert NA1 == 4
                nA2 = 32 // P["F2R"]; NA2 = 8 // nA2; rows2 = 8 // nA2
                ps = [L(lambda: k.srd(40, 64, 512 * 3584), 16), L(lambda: k.srd(44, 66, 512 * 3584), 16),
                      [f"s_lshr_b32 s66, s2, 3", f"s_lshl_b32 s66, s66, 2", f"s_add_u32 s66, s66, s{sW}"],
                      [f"s_mul_i32 s64, s66, {4*3584}", f"s_and_b32 s3, s2, 3", f"s_lshl_b32 s67, s3, 9"], ["s_add_u32 s64, s64, s67", f"s_mul_i32 s65, s66, {14*1024}"],
                      ["s_lshl_b32 s3, s3, 7", "s_sub_u32 s3, 1536, s3"],
                      [f"s_and_b32 s67, s2, {NA2-1}", f"s_mul_i32 s67, s67, {128*nA2}", "s_add_u32 s65, s65, s67"],
                      [f"s_lshl_b32 s66, s{sROT}, 14", f"s_lshl_b32 s67, s{sG}, 19", "s_add_u32 s66, s66, s67"], [f"s_lshl_b32 s67, s{sW}, {12+lg2(G)}", "s_add_u32 s66, s66, s67"],
                      f"v_min_u32 v{VX}, 55, v{LN_}", f"v_lshlrev_b32 v{VX}, 4, v{VX}", f"v_mad_u32_u24 v{VX}, v{h_}, s3, v{VX}",
                      f"v_lshrrev_b32 v{VX+1}, {lg2(8*nA2)}, v{LN_}", f"v_lshlrev_b32 v{VX+1}, 10, v{VX+1}", f"v_and_b32 v{tm}, {8*nA2-1}, v{LN_}", f"v_lshl_add_u32 v{VX+1}, v{tm}, 4, v{VX+1}"]
                sc.add(ps, 2, 32)
                sc.pin(ld + 1, L(lambda: k.srd(8, 4, 1792 * 1024), 16))
                sc.pin(56, L(lambda: (k.wait_all(), k("s_barrier")), 8))
                sc.add([rdK(f, f, L_K + 16384 + 8192) for f in range(4)], 56, 60, prio=1)
                sc.add(kv_dma("V", L_V, sO0) + kv_dma("V", L_V + 8192, sO1), 57, 62)
                sc.add(qepi(0), 61, 64)
                sc.pin(58, [f"v_add_u32 v{VLIN}, {L_H}, v{VL16}", f"v_add_u32 v{VLO}, {L_H}, v{VL16}"])
        return f
    gemm("Q", qx, 1, 4)
    stamp(k, "qgemm")
    def qk(f, s_, qt, buf, zero):
        d = v(S + 32 * buf + 16 * qt, 16)
        c = d if s_ else ("0" if zero else v(CI + 16 * qt, 16))
        return f"v_mfma_f32_32x32x16_bf16 {d}, {a(fr(f),4)}, {v(Q+8*s_+4*qt,4)}, {c}"
    def pv(f, i, qt, buf, zero=False):
        d = a(O + 32 * (i % 4) + 16 * qt, 16)
        return f"v_mfma_f32_32x32x16_bf16 {d}, {a(fr(f),4)}, {v(S+32*buf+16*qt+8*(i//4),4)}, {'0' if zero else d}"
    def sreg(buf, e): return S + 32 * buf + 16 * ((e >> 3) & 1) + 8 * (e >> 4) + (e & 7)
    def sm(buf, e, addci=False):
        o = []
        if e < 32:
            if addci: o.append(f"v_add_f32 v{sreg(buf,e)}, v{sreg(buf,e)}, v{CI+16*((e>>3)&1)}")
            o.append(f"v_exp_f32 v{sreg(buf,e)}, v{sreg(buf,e)}")
        if e >= 1:
            p = e - 1
            o.append(f"v_add_f32 v{LS+((p>>3)&1)}, v{LS+((p>>3)&1)}, v{sreg(buf,p)}")
            if p & 1:
                o.append(f"v_cvt_pk_bf16_f32 v{sreg(buf,p&~7)+(p&7)//2}, v{sreg(buf,p-1)}, v{sreg(buf,p)}")
        return o
    def wgrp(j): return L(lambda: k.wait_regs(a(FR + 16 * (j % 2), 16)))
    def qk0(epi):
        wgrp(0)()
        for s_ in range(8):
            ep = qepi(s_ // 2 + 1)[8 * (s_ & 1):8 * (s_ & 1) + 8] if epi and s_ < 6 else []
            rd = [rdK(f + 4, f + 4, L_K + 16384 + 8192) if f < 4 else rdK(f + 4, f - 4, L_K) for f in ([2*s_, 2*s_+1] if s_ < 2 else [2*s_-4, 2*s_-3] if 4 <= s_ < 6 else [])]
            k(qk(s_, s_, 0, 0, True)); put(k, rd[:1]); put(k, ep[:4])
            k(qk(s_, s_, 1, 0, True)); put(k, rd[1:]); put(k, ep[4:])
            if s_ % 4 == 3: wgrp(s_ // 4 + 1)()
    qk0(True)
    k(f"s_cmp_lg_u32 s{sFB}, 0"); k("s_cbranch_scc1 FB_MAX")
    k.label("IT0")
    def maxops(buf, dst):
        o = []
        for qt in range(2):
            b = S + 32 * buf + 16 * qt; t = dst + qt
            o.append(f"v_max3_f32 v{t}, v{b}, v{b+1}, v{b+2}")
            for i in range(3, 15, 2): o.append(f"v_max3_f32 v{t}, v{t}, v{b+i}, v{b+i+1}")
            o.append(f"v_max_f32 v{t}, v{t}, v{b+15}")
        return [x for pr in zip(o[:8], o[8:]) for x in pr]
    def xhalf_max(t, t2):
        return [f"v_mov_b32 v{t2}, v{t}", f"v_mov_b32 v{t2+1}, v{t+1}", f"v_permlane32_swap_b32 v{t}, v{t2}", f"v_permlane32_swap_b32 v{t+1}, v{t2+1}",
                f"v_max_f32 v{t}, v{t}, v{t2}", f"v_max_f32 v{t+1}, v{t+1}, v{t2+1}"]
    def flat(x): return [y for z in x for y in z]
    def iteration(par, first=False, last=False, extra=None):
        hb = 16384 * par; nb = 16384 * (1 - par)
        mf = []
        phs = [0, 1, 3] if last else [0, 1, 2, 3]
        n = 16 * len(phs)
        sc = Sched(n)
        frs = []
        for q_, ph in enumerate(phs):
            for g in range(16):
                f = 8 * q_ + g // 2; qt = g & 1; i = g // 2
                if ph == 0: mf.append(qk(f, i, qt, 1, first))
                elif ph == 1: mf.append(pv(f, i, qt, 0, first and i < 4))
                elif ph == 2: mf.append(qk(f, i, qt, 0, False))
                else: mf.append(pv(f, i, qt, 1))
            for i in range(8): frs.append((ph, i))
        ng = len(frs) // 4
        for j in range(1, ng):
            rd = []
            for f in range(4 * j, 4 * j + 4):
                ph, i = frs[f]
                rd += rdK(f, i, hb + 8192 * (ph // 2)) if ph % 2 == 0 else rdV(f, i, hb + 8192 * (ph // 2))
            g0 = 8 * (j - 1)
            if first and j == 2: sc.pin(g0 + 1, L(lambda: (k.wait("V"), k("s_barrier")), 8)); g0 += 1
            sc.add(rd, g0, 8 * (j - 1) + 6, prio=1)
            sc.pin(8 * j - 1, wgrp(j), end=True)
        dm = [nxt(sO1, sO2), kv_dma("V", L_V + nb, sO2), kv_dma("K", L_K + nb, sO1), kv_dma("V", L_V + nb + 8192, sO1), nxt(sO2, sO1), kv_dma("K", L_K + nb + 8192, sO2)]
        dm = [dm[0]] + dm[1] + dm[2] + dm[3] + [dm[4]] + dm[5]
        if first:
            sc.add(dm, 24, 44)
            mx = maxops(0, MX) + xhalf_max(MX, MX + 2)
            mx += [[f"s_cmp_lg_u32 s{sFB}, 0", "s_cselect_b64 vcc, -1, 0"]]
            mx += [f"v_sub_f32 v{CI+16*qt}, {f32(-float(P['BIAS']))}, v{MX+qt}" for qt in range(2)]
            mx += [f"v_cndmask_b32 v{CI+16*qt}, v{CI+16*qt}, v{MX+4+qt}, vcc" for qt in range(2)]
            sc.add(mx + flat(sm(0, e, True) for e in range(17)), 1, 16)
            sc.add(flat(sm(0, e, True) for e in range(17, 33)), 16, 23)
            sc.add([f"v_mov_b32 v{CI+16*qt+i}, v{CI+16*qt}" for qt in range(2) for i in range(1, 16)], 23, 31)
            sc.add(flat(sm(1, e, True) for e in range(33)), 23, 54)
            sc.add(flat(sm(0, e) for e in range(12)), 54, 64)
        else:
            for e in range(12, 33): sc.pin(e - 12, sm(0, e))
            if last:
                sc.add(flat(sm(1, e) for e in range(17)), 19, 31)
                sc.add(flat(sm(1, e) for e in range(17, 33)), 31, 39)
            else:
                sc.add(dm, 1, 40)
                for e in range(33): sc.pin(20 + e, sm(1, e))
                for e in range(12): sc.pin(52 + e, sm(0, e))
        if not last:
            sc.pin(56, L(lambda: (k.wait("K", "V"), k("s_barrier")), 8))
            sc.add([rdK(f, f, nb) for f in range(4)], 56, 61, prio=1)
            sc.pin(63, wgrp(0), end=True)
        if extra: extra(sc)
        for m, f_ in zip(mf, sc.run()): k(m); put(k, f_)
    iteration(0, first=True)
    stamp(k, "it0")
    rows2 = 8 // (32 // P["F2R"])
    def xpf(half):
        def f(sc):
            if not P["PF1"]: return
            n = 8 * half
            if half == 0:
                pf = [[f"buffer_load_dwordx4 {a(192+4*(n+j),4)}, v{VL16}, s[20:23], s66 offen offset:{1024*j}"] for j in range((4 * G + 2) // 3)] + [f"s_add_u32 s66, s66, {1024*((4*G+2)//3)}"]
                pf += [[f"buffer_load_dwordx4 {a(192+4*(n+3+j),4)}, v{VX+1}, s[8:11], s65 offen", f"s_add_u32 s65, s65, {1024*rows2}"] for j in range((14 // rows2 + 2) // 3)]
            else:
                pf = [[f"buffer_load_dwordx4 {a(192+4*(n+2*j+m_),4)}, v{VX}, s[{40+4*m_}:{43+4*m_}], s64 offen"] + ([f"s_add_u32 s64, s64, 3584"] if m_ else []) for j in range(2) for m_ in range(2)]
            sc.add(pf, 40, 56)
        return f
    k.loop(sST, 3, lambda: (iteration(1, extra=xpf(0)), iteration(0, extra=xpf(1))), align=3)
    stamp(k, "it1-6")
    OM = MX + 4
    def finalize(dt, qt, pk=True):
        b = Q + 16 * ((2 * dt + qt) % 4)
        o = [f"v_accvgpr_read_b32 v{b+i}, a{O+32*dt+16*qt+i}" for i in range(16)]
        if dt == 0: o += [f"v_max3_f32 v{OM+qt}, |v{b+i}|, |v{b+i+1}|, v{OM+qt}" for i in range(0, 16, 2)]
        o += [f"v_pk_mul_f32 {v(b+i,2)}, {v(b+i,2)}, {v(RL,2)} op_sel:[0,{qt}] op_sel_hi:[1,{qt}]" for i in range(0, 16, 2)]
        for sp in range(2):
            o += [f"v_cvt_pk_bf16_f32 v{b+8*sp+j}, v{b+8*sp+2*j}, v{b+8*sp+2*j+1}" for j in range(4)]
            o.append(L(lambda sp=sp: k(f"ds_write_b128 v{HW+sp}, {v(b+8*sp,4)} offset:{32768*qt+8192*dt}", token="hw"), 22, "d"))
        return o
    f0 = finalize(0, 0); f1 = finalize(0, 1)
    def x_last(sc):
        sc.add(flat(w_dma(s_, "O") for s_ in range(4)), 0, 30)
        fin = [f"v_mov_b32 v{MX}, v{LS}", f"v_mov_b32 v{MX+1}, v{LS+1}", f"v_mov_b32 v{OM}, 0", f"v_mov_b32 v{OM+1}, 0",
               f"v_permlane32_swap_b32 v{LS}, v{MX}", f"v_permlane32_swap_b32 v{LS+1}, v{MX+1}",
               f"v_add_f32 v{LS}, v{LS}, v{MX}", f"v_add_f32 v{LS+1}, v{LS+1}, v{MX+1}",
               f"v_rcp_f32 v{RL}, v{LS}", f"v_rcp_f32 v{RL+1}, v{LS+1}", f"v_max_f32 v{MX+6}, v{LS}, v{LS+1}"]
        adr = []
        for sp in range(2):
            adr += [[f"s_lshl_b32 s56, s{sW}, 1", f"s_add_u32 s56, s56, {sp}", f"s_sub_u32 s56, s56, s{sR8}"], [f"s_and_b32 s56, s56, 7",
                    f"s_lshl_b32 s56, s56, 10", f"v_add_u32 v{HW+sp}, s56, v{VLIN}"]]
        sc.add(adr, 0, 8)
        sc.add(fin, 39, 43)
        sc.pin(40, L(lambda: k("s_barrier")))
        sc.add(a_reads(0), 40, 46, prio=1)
        sc.add(f0[:16] + f1[:12], 43, 48)
    iteration(1, last=True, extra=x_last)
    stamp(k, "it7")
    for _ in range(P.get("DLY3", 0)): k("s_sleep 38")
    k(f"s_load_dwordx2 s[46:47], s[0:1], {A_X}")
    k(f"s_load_dwordx2 s[48:49], s[0:1], {A_OUT}")
    put(k, f0[16:] + f1[12:])
    for dt in range(1, 4):
        for qt in range(2): put(k, finalize(dt, qt))
    k.wait_all(vm=False); k("s_barrier")
    put(k, b_reads(0))
    stamp(k, "owrite")
    def ox(c):
        def f(sc, ld):
            assert ld <= 36, ld
            if c == 0:
                sc.add([f"v_min_f32 v{OM}, v{OM}, v{OM+1}", f"v_cmp_ngt_f32 vcc, {f32(2.0**120)}, v{MX+6}", "s_mov_b64 s[62:63], vcc",
                        f"v_cmp_gt_f32 vcc, {f32(2.0**-112 if not P['FORCE_FB'] else 2.0**100)}, v{OM}", "s_or_b64 s[62:63], s[62:63], vcc",
                        [f"s_lshl_b32 s{sT1}, s{sW}, 2", f"v_mov_b32 v{MX+1}, s{sT1}"], f"v_mov_b32 v{MX+2}, 0", f"v_mov_b32 v{MX+3}, 0x7f800000"], 4, 40)
            if c == 1:
                sc.add([L(lambda: k.srd(12, 46, 2048 * 1024), 16), L(lambda: k.srd(16, 68, 256), 16), [f"s_lshl_b32 s5, s{sRB}, 3", f"s_add_u32 s5, s5, s{sG}", "s_lshl_b32 s5, s5, 13"],
                        f"v_and_b32 v{tm}, 7, v{LN_}", f"v_lshrrev_b32 v{tm+1}, 3, v{LN_}", f"v_lshl_add_u32 v{tm+1}, s{sW}, 4, v{tm+1}",
                        f"v_lshlrev_b32 v{VK}, 10, v{tm}", f"v_lshl_add_u32 v{VK}, v{tm+1}, 4, v{VK}", f"v_lshlrev_b32 v{VK+1}, 5, v{tm+1}",
                        f"buffer_load_dword v{VK+2}, v{MX+2}, s[16:19], 0 offen sc1"], 0, 40)
            if c == 3:
                def cspin():
                    k("s_mov_b32 s3, 0"); k("s_branch CCHK"); st = dict(k.vm)
                    k.label("CPOLL")
                    k(f"buffer_load_dword v{VK+2}, v{MX+2}, s[16:19], 0 offen sc1"); k.wait_all(lg=False)
                    k.label("CCHK"); k.vm = st
                    k("s_add_u32 s3, s3, 1"); k(f"v_cmp_gt_u32 vcc, 0x100, v{VK+2}")
                    k("s_cmp_gt_u32 s3, 0x8000"); k("s_cbranch_scc1 CDONE"); k("s_cbranch_vccnz CPOLL")
                    k.label("CDONE")
                sc.pin(ld + 1, L(cspin, 24))
                xm = [f"buffer_load_dwordx4 {v(128+4*i,4)}, v{VK}, s[12:15], s5 offen offset:{128*i}" for i in range(2)]
                for base, m_ in ((136, 2), (152, 4), (168, 3)):
                    xm += [f"s_mov_b32 s4, {WS_MOD + m_*2048}"] + [f"buffer_load_dwordx4 {v(base+8*i+4*hh,4)}, v{VK+1}, s[24:27], s4 offen offset:{256*i+16*hh} sc1" for i in range(2) for hh in range(2)]
                sc.add(xm, ld + 2, 60)
                sc.pin(38, [f"s_lshl_b32 s{sT0}, s{sG}, 21", f"s_lshl_b32 s{sT1}, s{sRB}, 16", f"s_add_u32 s{sT0}, s{sT0}, s{sT1}"])
                sc.pin(46, [f"s_lshl_b32 s{sT1}, s{sW}, 13", f"s_add_u32 s{sT0}, s{sT0}, s{sT1}", f"s_add_u32 s{sT0}, s{sT0}, {WS_P:#x}"])
        return f
    gemm("O", ox, 1, 4)
    stamp(k, "ogemm")
    for rt in range(2):
        k(f"v_cmp_nlt_f32 vcc, |v{ACC+16*rt}|, v{MX+3}"); k("s_or_b64 s[62:63], s[62:63], vcc")
    k(f"s_cselect_b32 s{sT1}, 1, 0"); k(f"v_mov_b32 v{MX}, s{sT1}")
    k(f"ds_write_b32 v{MX+1}, v{MX} offset:{L_K}", token="fl")
    for a_ in range(4):
        if a_ == 1: k.wait("fl"); k("s_barrier"); k(f"ds_read_b128 {v(STT,4)}, v{MX+2} offset:{L_K}")
        for rt in range(2):
            k(f"s_add_u32 s{sT1}, s{sT0}, {32768*rt + 2048*a_}")
            b = ACC + 32 * a_ + 16 * rt
            for sp in range(2):
                for j in range(4): k(f"v_cvt_pk_bf16_f32 v{b+8*sp+j}, v{b+8*sp+2*j}, v{b+8*sp+2*j+1}")
                k(f"buffer_store_dwordx4 {v(b+8*sp,4)}, v{VL16}, s[24:27], s{sT1} offen offset:{1024*sp} sc1", token="PST")
    k(f"v_or3_b32 v{STT}, v{STT}, v{STT+1}, v{STT+2}"); k(f"v_or_b32 v{STT}, v{STT}, v{STT+3}")
    k(f"v_readfirstlane_b32 s{sT2}, v{STT}")
    k(f"s_andn2_b32 s{sT2}, s{sT2}, s{sFB}"); k("s_cbranch_scc1 FALLBACK")
    tail(sys.modules[__name__], k)
    stamp_flush(k, 0)
    k.label("END_attn"); k("s_endpgm")
    k.label("FALLBACK")
    k.wait_all(); k("s_barrier")
    k(f"s_mov_b32 s{sFB}, 1")
    k("s_nop 15")
    k("s_branch RESTART")
    k.label("FB_MAX")
    k.wait_all(); k("s_barrier")
    k(f"v_mov_b32 v{MX+4}, 0xff800000"); k(f"v_mov_b32 v{MX+5}, 0xff800000")
    def fbody():
        put(k, kv_dma("K", L_K, sO0) + nxt(sO0, sO0)); k.wait("K"); k("s_barrier")
        for s_ in range(8): put(k, rdK(s_, s_, L_K))
        for s_ in range(8):
            for qt in range(2): k(qk(s_, s_, qt, 0, True))
        put(k, maxops(0, MX))
        k(f"v_max_f32 v{MX+4}, v{MX+4}, v{MX}"); k(f"v_max_f32 v{MX+5}, v{MX+5}, v{MX+1}")
        k("s_barrier")
    k.loop(sST, 16, fbody)
    put(k, xhalf_max(MX + 4, MX + 2))
    for qt in range(2): k(f"v_sub_f32 v{MX+4+qt}, 0, v{MX+4+qt}")
    put(k, kfirst)
    k.wait_all(); k("s_barrier")
    for f in range(4): put(k, rdK(f, f, L_K + 16384 + 8192))
    qk0(False)
    k.wait_all()
    k("s_branch IT0")
    return k

from gen21_tail import tail

HEADER = open('adaLN_cond__sliding_block_cached__geglu_ffn__prompt.s.ref').read().split("; Override launch")[0]

if __name__ == "__main__":
    out = sys.argv[1] if len(sys.argv) > 1 else "k.s"
    me = sys.modules[__name__]
    ks = [gen_attn()]
    ks[-1].label("CODE_END")
    txt = emit(ks, header=HEADER)
    if P.get("SINGLE"): txt = txt.replace("; @launch kernel=" + KNAME + " ", "; @launch ")
    open(out, "w").write(txt)
    json.dump([[k.name, k.grid, k.block//64, k.stamps] for k in ks], open(out[:-2]+".json","w"))
    for k in ks: print(k.name, "regs(v,a,s)", k.used, "nops", k.n_nops, "misal", k.n_mis, "instrs", len(k.items))
```

```python
import sys, struct, math, os, json
from asmlib import *

def f32(x): return "0x%08x" % struct.unpack("<I", struct.pack("<f", x))[0]
LOG2E = 1.4426950408889634
CS = 128 ** -0.5
A_X, A_K, A_V, A_WQ, A_WO, B_X, A_WG, A_WU, A_WD, A_C, A_WM, A_OUT, A_DBG, A_WS = [8 * i for i in range(14)]
WS_MOD = 0x0
WS_GO = 0x18000
WS_FL = 0x20000
WS_ST = 0x10000
WS_P = 0x400000
WS_X1 = 0x1400000
WS_H2 = 0x1600000
WS_ACT = 0x1800000
WS_BYTES = 0x10000000
WS_DBG = 0x8000000
P = dict(STAMPS=0, G=2, ROT=1, F1R=8, F2R=8, PREF0=1, PREFC=1, PREFQ=1, PREFK=1, PORD=1, XPRE=0, TLBW=1, PBAR=3, WPOS=1, DEFER=1, SYNC=1, LFIRST=0, SLEEP=2, OSC=1, SLEEP2=4, FW1=6, FW2=20, F2PRE=12, ORD0=0, ODE=32, OBUD=6, PFK=0, GS=1, NHID=4, TOUCH=0, N0=4, QP0=10, QBURST=1, TW1=8, TWM=8, TB0=2, HEND=32, APRE=6, BLEAD=4, EEND=64, PUBA=76, WLAG=4, BCHK=10, TW2=5, HPRE=3, PSYS=0, WPRE=2, BURST=54, KEARLY=0, BIAS=100, FORCE_FB=0, PNT=0, PST=2, AST=2, PF1=1, PF2=1)
for kv in os.environ.get("GP", "").split(","):
    if kv: P[kv.split("=")[0]] = int(kv.split("=")[1])

def stamp(k, name):
    if not P["STAMPS"]: return
    SETS = {0: ("start", "mod", "qgemm", "it0", "it1-6", "owrite", "ogemm", "t_set", "end"), 1: ("start", "gemv", "stats", "poll", "mod", "qgemm", "end"),
            3: ("start", "t_set", "poll1", "x1", "poll2", "ffn1", "pub3", "poll3", "end"), 7: ("start", "end"), 6: ("start", "poll2", "passA", "ffn1", "pub3", "poll3", "ffn2", "end"), 4: ("start", "mod", "q0", "q1", "q2", "qgemm", "end"), 5: ("start", "owrite", "q0o", "q1o", "q2o", "ogemm", "end")}
    if name not in SETS[P.get("DG", 0)]: return
    i = len(k.stamps); k.stamps.append(name)
    assert i < 9
    k.sgpr = 102
    k("s_memtime s[80:81]"); k("s_memrealtime s[100:101]"); k("s_waitcnt lgkmcnt(0)")
    k(f"s_mov_b32 s{82+2*i}, s80"); k(f"s_mov_b32 s{83+2*i}, s100")
def stamp_begin(k):
    k.stamps = []
    if not P["STAMPS"]: return
    stamp(k, "start")
def stamp_flush(k, kidx):
    if not P["STAMPS"]: return
    stamp(k, "end")
    if P["STAMPS"] == 2:
        lab = k.newlabel("NODBG")
        k("s_mov_b64 exec, -1")
        k(f"s_xor_b32 s100, s2, {P.get('DWG', 200)}"); k("s_or_b32 s100, s100, s101"); k("s_cmp_lg_u32 s100, 0"); k(f"s_cbranch_scc1 {lab}")
        k(f"s_load_dwordx2 s[66:67], s[0:1], {A_DBG}")
        k.srd(60, 66, 256)
        k("v_mov_b32 v1, 0")
        n = len(k.stamps)
        for j in range(1, n):
            k(f"s_sub_u32 s100, s{77+2*j}, s77"); k("v_mov_b32 v0, s100")
            k(f"buffer_store_dword v0, v1, s[60:63], 0 offen offset:{4*j}")
        k(f"s_sub_u32 s100, s{76+2*(n-1)}, s76"); k("v_mov_b32 v0, s100")
        k(f"buffer_store_dword v0, v1, s[60:63], 0 offen offset:{4*n}")
        k.label(lab)
        return
    k(f"s_load_dwordx2 s[64:65], s[0:1], {A_WS}")
    k("s_mov_b64 exec, -1")
    k.srd(56, 64, WS_BYTES)
    k("s_lshl_b32 s100, s2, 3"); k("s_add_u32 s100, s100, s28"); k("s_lshl_b32 s100, s100, 8")
    k(f"s_add_u32 s100, s100, {WS_DBG + kidx*0x100000:#x}")
    k("v_mov_b32 v1, 0")
    for j, sr in enumerate([82 + i for i in range(2*len(k.stamps))]):
        k(f"v_mov_b32 v0, s{sr}")
        k(f"buffer_store_dword v0, v1, s[56:59], s100 offen offset:{4*j}")

def wave_id(k, sdst, vtmp):
    k(f"v_lshrrev_b32 v{vtmp}, 6, v0")
    k(f"v_readfirstlane_b32 s{sdst}, v{vtmp}")
def rowsum_8(k, val, tmp):
    k(f"v_add_f32_dpp v{val}, v{val}, v{val} row_ror:8 row_mask:0xf bank_mask:0xf")
    k(f"v_mov_b32 v{tmp}, v{val}"); k(f"v_permlane16_swap_b32 v{val}, v{tmp}"); k(f"v_add_f32 v{val}, v{val}, v{tmp}")
    k(f"v_mov_b32 v{tmp}, v{val}"); k(f"v_permlane32_swap_b32 v{val}, v{tmp}"); k(f"v_add_f32 v{val}, v{val}, v{tmp}")
def rnd(k, d, sreg): k(f"v_cvt_pk_bf16_f32 v{d}, 0, v{sreg}")
def lg2(x): return x.bit_length() - 1
def split2(k, sb, sA, sB, nA_per, nB_total, t0, t1):
    A_total = 256 // nB_total; NA = A_total // nA_per
    k(f"s_and_b32 s{t0}, s{sb}, 7"); k(f"s_lshr_b32 s{t1}, s{sb}, 3")
    k(f"s_and_b32 s{sA}, s{t0}, {NA-1}"); k(f"s_lshl_b32 s{sA}, s{sA}, {lg2(nA_per)}")
    k(f"s_and_b32 s{sB}, s{t1}, {nA_per-1}"); k(f"s_add_u32 s{sA}, s{sA}, s{sB}")
    k(f"s_lshr_b32 s{sB}, s{t0}, {lg2(NA)}"); k(f"s_lshl_b32 s{sB}, s{sB}, {lg2(32//nA_per)}")
    k(f"s_lshr_b32 s{t1}, s{t1}, {lg2(nA_per)}"); k(f"s_add_u32 s{sB}, s{sB}, s{t1}")
def lane_tr_parts(k, lane, r, c2, gn, h, tmp):
    k(f"v_bfe_u32 v{r}, v{lane}, 2, 2")
    k(f"v_and_b32 v{c2}, 1, v{lane}"); k(f"v_lshlrev_b32 v{c2}, 1, v{c2}")
    k(f"v_bfe_u32 v{tmp}, v{lane}, 1, 1"); k(f"v_or_b32 v{c2}, v{c2}, v{tmp}")
    k(f"v_bfe_u32 v{gn}, v{lane}, 4, 1")
    k(f"v_lshrrev_b32 v{h}, 5, v{lane}")

QS = CS * LOG2E
GK0 = 2 * math.sqrt(2 / math.pi) * LOG2E
GSC = (GK0 * 0.044715) ** (1 / 3)
KNAME = "adaLN_cond__sliding_block_cached__geglu_ffn__prompt_kernel"
def ln_stats(k, XF):
    k(f"v_pk_add_f32 v[10:11], {v(XF,2)}, {v(XF+2,2)}")
    for e in range(4, 16, 2): k(f"v_pk_add_f32 v[10:11], v[10:11], {v(XF+e,2)}")
    k("v_add_f32 v10, v10, v11")
    def allreduce(off):
        rowsum_8(k, 10, 11)
        k(f"ds_write_b32 v9, v10 offset:{off}", token="w"); k.wait("w"); k("s_barrier")
        k(f"ds_read_b128 {v(12,4)}, v8 offset:{off}")
        k("v_add_f32 v12, v12, v13"); k("v_add_f32 v14, v14, v15"); k("v_add_f32 v10, v12, v14")
    allreduce(0)
    k(f"v_mul_f32 v58, {f32(-1/512)}, v10"); k("v_mov_b32 v59, v58")
    for e in range(0, 16, 2): k(f"v_pk_add_f32 {v(XF+e,2)}, {v(XF+e,2)}, v[58:59]")
    k(f"v_pk_mul_f32 v[10:11], {v(XF,2)}, {v(XF,2)}")
    for e in range(2, 16, 2): k(f"v_pk_fma_f32 v[10:11], {v(XF+e,2)}, {v(XF+e,2)}, v[10:11]")
    k("v_add_f32 v10, v10, v11")
    allreduce(128)
    k(f"v_mov_b32 v11, {f32(1e-5)}"); k(f"v_fmac_f32 v11, {f32(1/512)}, v10")
    k("v_rsq_f32 v56, v11"); k("v_mov_b32 v57, v56")

def gen_ln2():
    k = Kernel("ln2_kernel", 256, 256, 256, vgpr=160, sgpr=64)
    k("s_cmp_ge_u32 s2, 256"); k("s_cbranch_scc1 END_ln2")
    stamp_begin(k)
    k(f"s_load_dwordx2 s[4:5], s[0:1], {A_X}")
    k(f"s_load_dwordx2 s[6:7], s[0:1], {A_WS}")
    k("v_and_b32 v1, 7, v0"); k("v_lshrrev_b32 v2, 3, v0"); k("v_lshrrev_b32 v6, 6, v0")
    k("v_and_b32 v7, 7, v2"); k("v_lshl_add_u32 v7, v6, 4, v7")
    k("v_lshlrev_b32 v3, 9, v7"); k("v_lshl_add_u32 v3, v1, 4, v3")
    k("v_add_u32 v2, 4096, v3")
    k("v_lshlrev_b32 v4, 10, v1"); k("v_lshl_add_u32 v4, v7, 4, v4")
    k("v_lshlrev_b32 v5, 5, v7")
    k("v_lshlrev_b32 v8, 4, v1"); k("v_lshl_add_u32 v9, v6, 2, v8")
    k("s_and_b32 s25, s2, 7"); k("s_lshl_b32 s25, s25, 5"); k("s_lshr_b32 s26, s2, 3"); k("s_add_u32 s25, s25, s26")
    k("s_lshl_b32 s20, s25, 13")
    k("s_lshr_b32 s21, s25, 2"); k("s_lshl_b32 s21, s21, 15"); k("s_and_b32 s22, s25, 3"); k("s_lshl_b32 s22, s22, 7")
    k("s_add_u32 s21, s21, s22")
    k(f"s_add_u32 s23, s21, {WS_P:#x}")
    k.srd(12, 6, WS_BYTES)
    X = 16; XF = 24; MV = 40; PB = 64
    for g in range(8):
        for i in range(2):
            k(f"buffer_load_dwordx4 {v(PB+8*g+4*i,4)}, v{3-i}, s[12:15], s23 offen" + (" nt" if P["PNT"] else ""))
        if g < 7: k("s_add_u32 s23, s23, 0x200000")
    k.srd(8, 4, 2048 * 1024)
    for i in range(2): k(f"buffer_load_dwordx4 {v(X+4*i,4)}, v4, s[8:11], s20 offen offset:{128*i}")
    k("v_mov_b32 v10, 0"); k("s_lshl_b32 s27, s2, 7"); k(f"s_add_u32 s27, s27, {WS_FL:#x}")
    k("buffer_store_dword v10, v10, s[12:15], s27 offen sc1")
    k("s_mov_b32 s24, 0xffff0000")
    def load_mod(base, m):
        k(f"s_mov_b32 s23, {WS_MOD + m*2048}")
        for i in range(2):
            for hh in range(2):
                k(f"buffer_load_dwordx4 {v(base+8*i+4*hh,4)}, v5, s[12:15], s23 offen offset:{256*i+16*hh}")
    def unpack(dst, src):
        k(f"v_lshlrev_b32 v{dst}, 16, v{src}"); k(f"v_and_b32 v{dst+1}, s24, v{src}")
    load_mod(MV, 2); load_mod(128, 4); load_mod(144, 3)
    for q in range(8): unpack(XF + 2 * q, PB + q)
    for g in range(1, 8):
        for q in range(8):
            unpack(10 + 2 * (q & 1), PB + 8 * g + q)
            k(f"v_pk_add_f32 {v(XF+2*q,2)}, {v(XF+2*q,2)}, {v(10+2*(q&1),2)}")
    for q in range(8):
        unpack(10, X + q)
        k(f"v_pk_fma_f32 v[10:11], {v(XF+2*q,2)}, {v(MV+2*q,2)}, v[10:11]")
        k(f"v_cvt_pk_bf16_f32 v{X+q}, v10, v11")
        unpack(XF + 2 * q, X + q)
    k(f"s_add_u32 s23, s21, {WS_X1:#x}")
    for i in range(2): k(f"buffer_store_dwordx4 {v(X+4*i,4)}, v{3-i}, s[12:15], s23 offen sc1")
    stamp(k, "x1")
    ln_stats(k, XF)
    stamp(k, "stats")
    for e in range(0, 16, 2):
        k(f"v_pk_mul_f32 {v(XF+e,2)}, {v(XF+e,2)}, v[56:57]")
        k(f"v_pk_fma_f32 {v(XF+e,2)}, {v(XF+e,2)}, {v(128+e,2)}, {v(144+e,2)}")
        k(f"v_cvt_pk_bf16_f32 v{MV+e//2}, v{XF+e}, v{XF+e+1}")
    k(f"s_add_u32 s23, s21, {WS_H2:#x}")
    for i in range(2): k(f"buffer_store_dwordx4 {v(MV+4*i,4)}, v{3-i}, s[12:15], s23 offen sc1")
    stamp_flush(k, 1)
    k.label("END_ln2"); k("s_endpgm")
    return k

def put(k, seq):
    for x in seq:
        if isinstance(x, list): put(k, x)
        elif callable(x): x()
        else: k(x)

def gen_attn():
    k = Kernel(KNAME, 256, 256, 163840, vgpr=256, agpr=256, sgpr=82)
    k.denorm32 = P.get("DEN", 3)
    L_K, L_H, L_V, L_W, L_M = 0, 32768, 32768, 98304, 16384
    ACC = 0; S = 0; CI = 64; Q = 128
    VK = 192; VV = 200; VW = 204; VDW = 208; VDK = 212; VDV = 214; VLIN = 215; VL16 = 216
    LS = 217; VLO = 219
    T = 220
    LN_, ROWL, GR16 = T, T + 1, T + 2
    r_, c2, gn, h_, tm = T + 3, T + 4, T + 5, T + 6, T + 7
    CH8 = T + 10; HW = T + 11
    VX = T + 13; VM = T + 15
    MX = T + 16
    STT = T + 24
    RL = T + 28; UT = T + 28
    O = 0; FR = 128; AF = 128; BF = 160
    sW, sG, sRB, sT0, sT1, sRING, sST, sFB, sROT, sT2 = 28, 29, 30, 32, 33, 34, 35, 39, 50, 51
    sE0, sE1, sE2 = 61, 62, 63
    sO0, sO1, sO2, sW2K, sW256, sKhi, sMASK, sCC, sR8 = 36, 37, 38, 52, 54, 55, 58, 59, 6
    TAB = 72
    def L(f, cost=4, mem=False):
        f.cost = cost; f.mem = mem; return f
    k("s_cmp_ge_u32 s2, 256"); k("s_cbranch_scc1 END_attn")
    stamp_begin(k)
    k(f"s_mov_b32 s{sFB}, 0")
    if P["PREFC"]:
        k("s_getpc_b64 s[56:57]")
        k.label("PCREF")
        k(f"s_lshr_b32 s{sT1}, s2, 3"); k(f"s_lshl_b32 s{sT1}, s{sT1}, 12")
        k("v_lshlrev_b32 v108, 4, v0"); k(f"v_add_u32 v108, s{sT1}, v108"); k("v_min_u32 v108, CODE_END-PCREF-16, v108")
        k("global_load_dwordx4 a[252:255], v108, s[56:57]")
    wave_id(k, sW, T)
    k(f"v_and_b32 v{LN_}, 63, v0")
    k.label("RESTART")
    k(f"s_load_dwordx4 s[8:11], s[0:1], {A_C}")
    k(f"s_load_dwordx2 s[4:5], s[0:1], {A_X}")
    k(f"s_load_dwordx4 s[68:71], s[0:1], {A_DBG}")
    k(f"s_load_dwordx8 s[40:47], s[0:1], {A_K}")
    if P["TOUCH"]:
        k(f"s_load_dwordx4 s[84:87], s[0:1], {A_WG}"); k(f"s_load_dwordx2 s[88:89], s[0:1], {A_WD}"); k(f"s_load_dwordx2 s[90:91], s[0:1], {A_OUT}")
    L_R = L_M + 4096
    PSC = "sc1"
    GW, GC, GA = 64, 80, 88
    k(f"v_lshl_add_u32 v99, s{sW}, 6, v{LN_}")
    k("v_and_b32 v100, 1, v99"); k("v_lshrrev_b32 v101, 1, v99")
    k("v_mul_u32_u24 v102, 6144, v101"); k("v_lshl_add_u32 v102, v100, 4, v102"); k("v_lshlrev_b32 v103, 1, v101")
    k("v_lshrrev_b32 v104, 4, v99"); k("v_lshlrev_b32 v104, 6, v104"); k("v_lshl_add_u32 v104, v100, 5, v104")
    sSL = 7; sPR = 53
    k(f"s_and_b32 s{sT0}, s2, 7"); k(f"s_lshr_b32 s{sT1}, s2, 3")
    k(f"s_lshl_b32 s{sSL}, s{sT0}, 3"); k(f"s_add_u32 s{sSL}, s{sSL}, s{sT1}")
    k(f"s_lshl_b32 s{sT2}, s{sT0}, 4"); k(f"s_add_u32 s{sT2}, s{sT2}, s{sT1}"); k(f"s_add_u32 s{sT2}, s{sT2}, 56")
    k("s_cmp_lt_u32 s2, 64"); k(f"s_cselect_b32 s{sSL}, s{sSL}, s{sT2}")
    k(f"s_cselect_b32 s{sPR}, s{sFB}, 1")
    k(f"s_lshl_b32 s31, s{sSL}, 5")
    k(f"v_lshlrev_b32 v{VL16}, 4, v{LN_}")
    G = P["G"]
    NG = 8 // G; NS = 32 // G
    k(f"s_and_b32 s{sG}, s2, {NG-1}"); k(f"s_lshl_b32 s{sG}, s{sG}, {lg2(G)}"); k(f"s_lshr_b32 s{sT0}, s2, {3+lg2(NS)}"); k(f"s_add_u32 s{sG}, s{sG}, s{sT0}")
    k(f"s_bfe_u32 s{sROT}, s2, {3 | (lg2(NS) << 16):#x}")
    k(f"s_and_b32 s{sRB}, s2, 7"); k(f"s_lshr_b32 s{sRB}, s{sRB}, {lg2(NG)}"); k(f"s_lshl_b32 s{sRB}, s{sRB}, {lg2(NS)}"); k(f"s_add_u32 s{sRB}, s{sRB}, s{sROT}")
    k(f"s_lshl_b32 s{sROT}, s{sROT}, {lg2(G)}")
    k(f"s_and_b32 s{sR8}, s{sROT}, 7"); k(f"s_lshr_b32 s{sCC}, s{sROT}, 3")
    RR, CGL = tm, tm + 1
    k(f"v_bfe_u32 v{RR}, v{LN_}, 2, 3")
    k(f"v_lshrrev_b32 v{CGL}, 5, v{LN_}"); k(f"v_lshlrev_b32 v{CGL}, 2, v{CGL}"); k(f"v_and_or_b32 v{CGL}, v{LN_}, 3, v{CGL}")
    k(f"v_lshlrev_b32 v{VX}, 10, v{RR}"); k(f"v_lshl_add_u32 v{VX}, v{CGL}, 4, v{VX}"); k(f"v_add_u32 v{VX+1}, 8192, v{VX}")
    k(f"s_lshl_b32 s3, s{sRB}, 16"); k(f"s_lshl_b32 s{sT2}, s{sW}, 14"); k(f"s_add_u32 s3, s3, s{sT2}")
    XR = [0, 128, 144, 160]; CN = 176
    XS = [48, 49, 56, 57]
    for c in range(4):
        put(k, [f"s_add_u32 s{XS[c]}, s{sCC}, {c}", f"s_and_b32 s{XS[c]}, s{XS[c]}, 3", f"s_lshl_b32 s{XS[c]}, s{XS[c]}, 8", f"s_add_u32 s{XS[c]}, s{XS[c]}, s3"])
    xl = [f"buffer_load_dwordx4 {v(XR[c]+8*cb+4*oo,4)}, v{VX+oo}, s[16:19], s{XS[c]} offen offset:{128*cb}" for oo in range(2) for c in range(4) for cb in range(2)]
    k.srd(12, 10, 512 * 6144); k.srd(20, 8, 1024); k.srd(16, 4, 2048 * 1024)
    def gemv_loads():
        k(f"s_mov_b32 s{sT0}, s31")
        for i in range(4):
            k(f"buffer_load_dwordx4 {v(GW+4*i,4)}, v102, s[12:15], s{sT0} offen")
            if i < 3: k(f"s_add_u32 s{sT0}, s{sT0}, {128*6144}")
    for i in range(4): k(f"buffer_load_ushort v{GC+i}, v103, s[20:23], 0 offen offset:{256*i}")
    k.srd(24, 70, WS_BYTES)
    k(f"s_lshl_b32 s{sE2}, s{sW}, 11"); k(f"s_add_u32 s{sE2}, s{sE2}, {WS_GO:#x}")
    k(f"v_lshrrev_b32 v{MX+4}, 2, v{LN_}"); k(f"v_lshlrev_b32 v{MX+4}, 6, v{MX+4}"); k(f"v_add_u32 v{MX+4}, v{MX+4}, v{VL16}")
    k(f"buffer_load_dwordx4 {v(MX,4)}, v{MX+4}, s[24:27], s{sE2} offen sc1")
    k(f"v_lshlrev_b32 v109, 2, v{LN_}"); k(f"s_lshl_b32 s{sE1}, s{sSL}, 7"); k(f"s_add_u32 s{sE1}, s{sE1}, {WS_GO:#x}")
    k(f"buffer_load_dword v110, v109, s[24:27], s{sE1} offen sc1")
    k(f"s_xor_b32 s{sE0}, s{sW}, 3"); k(f"s_or_b32 s{sE0}, s{sE0}, s{sFB}")
    k(f"s_cmp_lg_u32 s{sE0}, 0"); k("s_cbranch_scc1 NOZERO")
    k(f"v_lshlrev_b32 v111, 15, v{LN_}"); k("v_mov_b32 v107, 0"); k(f"s_lshl_b32 s{sT0}, s2, 7"); k(f"s_add_u32 s{sT0}, s{sT0}, {WS_FL:#x}")
    k("s_mov_b64 exec, 15")
    k(f"buffer_store_dword v107, v111, s[24:27], s{sT0} offen sc1")
    k("s_mov_b64 exec, -1")
    k.label("NOZERO")
    k.vm = {kk: max(p - 1, 0) for kk, p in k.vm.items()}
    k(f"s_cmp_eq_u32 s{sPR}, 0"); k("s_cbranch_scc1 PLOAD")
    s_a = (dict(k.vm), dict(k.lg))
    if P["TOUCH"]:
        k(f"s_cmp_lt_u32 s2, {P['TOUCH']}"); k("s_cbranch_scc1 NOTOUCH")
        k(f"s_lshl_b32 s92, s{sW}, 20"); k(f"s_and_b32 s93, s92, 0x100000")
        k.auto = False
        for base in (44, 40, 42, 46): k(f"s_load_dword s81, s[{base}:{base+1}], s92")
        for base in (84, 86, 88, 90): k(f"s_load_dword s81, s[{base}:{base+1}], s93")
        for i in range(8):
            k(f"s_load_dword s81, s[70:71], s92"); k("s_add_u32 s92, s92, 0x400000")
        k.auto = True
        k.label("NOTOUCH")
        k.sgpr = max(k.sgpr, 94)
    put(k, xl)
    s_b = dict(k.vm)
    k("s_branch PJOIN")
    k.label("PLOAD")
    k.vm = dict(s_a[0])
    gemv_loads()
    k.label("PJOIN")
    k.vm = k._merge(k.vm, s_b)
    k(f"s_lshl_b32 s{sW256}, s{sW}, 8"); k(f"s_lshl_b32 s{sW2K}, s{sW}, 11")
    k(f"v_lshrrev_b32 v{ROWL}, 4, v{LN_}")
    k(f"v_and_b32 v{r_}, 15, v{LN_}"); k(f"v_lshlrev_b32 v{GR16}, 2, v{ROWL}"); k(f"v_xor_b32 v{GR16}, v{GR16}, v{r_}")
    k(f"v_lshlrev_b32 v{GR16}, 4, v{GR16}")
    def w_voffs(psh, scol):
        return [f"v_lshl_add_u32 v{VDW}, v{ROWL}, {psh}, v{GR16}", f"v_add_u32 v{VDW}, s{scol}, v{VDW}"] + \
               [f"v_add_u32 v{VDW+n}, {n*((4<<psh)-1024)}, v{VDW}" for n in range(1, 4)]
    k(f"s_lshl_b32 s{sT0}, s{sG}, 10"); k(f"s_add_u32 s{sT0}, s{sT0}, s{sW256}")
    put(k, w_voffs(13, sT0))
    k(f"s_lshl_b32 s{sRING}, s{sW}, 14"); k(f"s_add_u32 s{sRING}, s{sRING}, {L_W}")
    for p in range(8):
        k(f"s_add_u32 s{TAB+p}, s{sR8}, {p}"); k(f"s_and_b32 s{TAB+p}, s{TAB+p}, 7"); k(f"s_lshl_b32 s{TAB+p}, s{TAB+p}, 17")
    k(f"s_lshl_b32 s{sKhi}, s{sCC}, 20")
    k.srd(8, 44, 512 * 8192)
    def w_dma(step, which):
        slot = step % 4
        if which == "Q":
            srd = 8
            pre = [f"s_add_u32 s{sT0}, s{sKhi}, s{TAB+step%8}"]
            adv = [[f"s_add_u32 s{sKhi}, s{sKhi}, 0x100000", f"s_and_b32 s{sKhi}, s{sKhi}, 0x3fffff"]] if step % 8 == 7 else []
        else:
            srd = 20
            pre = [f"s_add_u32 s{sT0}, s{TAB+step%8}, {(2*(step//8))<<14}"]
            adv = []
        o = [pre + [f"s_add_u32 m0, s{sRING}, {4096*slot}"]] + adv + [f"buffer_load_dwordx4 v{VDW}, s[{srd}:{srd+3}], s{sT0} offen lds"]
        for n in range(1, 4):
            o.append(L(lambda n=n: k(f"buffer_load_dwordx4 v{VDW+n}, s[{srd}:{srd+3}], s{sT0} offen offset:{1024*n} lds", token=f"W{slot}"), 10, "v"))
        return o
    k(f"v_lshrrev_b32 v{r_}, 1, v{CGL}"); k(f"v_subrev_u32 v{r_}, s{sR8}, v{r_}")
    k(f"v_and_b32 v{c2}, 1, v{CGL}"); k(f"v_and_b32 v{gn}, 1, v{r_}"); k(f"v_lshl_add_u32 v{gn}, v{gn}, 1, v{c2}"); k(f"v_lshlrev_b32 v{gn}, 1, v{gn}")
    k(f"v_xor_b32 v{gn}, v{gn}, v{RR}")
    k(f"v_lshlrev_b32 v{c2}, 9, v{c2}"); k(f"v_lshl_add_u32 v{c2}, v{gn}, 4, v{c2}")
    k(f"s_lshr_b32 s{sT1}, s{sW}, 1"); k(f"s_lshl_b32 s{sT1}, s{sT1}, 15"); k(f"s_and_b32 s{sT2}, s{sW}, 1"); k(f"s_lshl_b32 s{sT2}, s{sT2}, 8")
    k(f"s_add_u32 s{sT1}, s{sT1}, s{sT2}"); k(f"s_add_u32 s{sT1}, s{sT1}, {L_H}"); k(f"v_add_u32 v{c2}, s{sT1}, v{c2}")
    for cb in range(2):
        k(f"v_add_u32 v{gn}, {4*cb}, v{r_}"); k(f"v_and_b32 v{gn}, 7, v{gn}"); k(f"v_lshl_add_u32 v{HW+cb}, v{gn}, 10, v{c2}")
    k(f"s_lshl_b32 s{sT2}, s{sCC}, 9"); k(f"v_lshlrev_b32 v{VM}, 5, v{CGL}"); k(f"v_add_u32 v{VM}, s{sT2}, v{VM}")
    lane_tr_parts(k, LN_, r_, c2, gn, h_, tm)
    k(f"v_lshl_add_u32 v{CH8}, v{gn}, 2, v{c2}"); k(f"v_lshlrev_b32 v{CH8}, 3, v{CH8}")
    k(f"v_lshl_add_u32 v{tm}, v{h_}, 3, v{r_}"); k(f"v_lshl_add_u32 v{tm}, v{tm}, 8, v{CH8}"); k(f"v_add_u32 v{tm}, s{sRING}, v{tm}")
    for a_ in range(4):
        k(f"v_xor_b32 v{tm+1}, {a_}, v{r_}"); k(f"v_lshl_add_u32 v{VW+a_}, v{tm+1}, 6, v{tm}")
    put(k, [f"v_lshl_add_u32 v{tm}, v{h_}, 2, v{r_}", f"v_lshl_add_u32 v{tm}, v{tm}, 8, v{CH8}", f"v_add_u32 v{tm}, {L_V}, v{tm}"])
    for dt in range(4): put(k, [f"v_xor_b32 v{tm+1}, {dt}, v{r_}", f"v_lshl_add_u32 v{VV+dt}, v{tm+1}, 6, v{tm}"])
    put(k, [f"v_and_b32 v{tm}, 31, v{LN_}", f"v_and_b32 v{tm+1}, 15, v{LN_}", f"v_xor_b32 v{tm+1}, v{tm+1}, v{h_}",
            f"v_lshlrev_b32 v{tm}, 8, v{tm}", f"v_lshl_add_u32 v{VK}, v{tm+1}, 4, v{tm}"])
    put(k, [f"v_xor_b32 v{VK+s_}, {s_*32}, v{VK}" for s_ in range(1, 8)])
    put(k, [f"v_mov_b32 v{LS}, 0", f"v_mov_b32 v{LS+1}, 0",
        f"v_lshl_add_u32 v{VDV}, v{ROWL}, 8, v{GR16}", f"s_and_b32 s{sT1}, s{sW}, 1", f"s_lshl_b32 s{sT1}, s{sT1}, 3",
        f"v_or_b32 v{tm}, s{sT1}, v{ROWL}", f"v_and_b32 v{tm+1}, 15, v{LN_}", f"v_xor_b32 v{tm}, v{tm}, v{tm+1}",
        f"v_lshlrev_b32 v{VDK}, 8, v{ROWL}", f"v_lshl_add_u32 v{VDK}, v{tm}, 4, v{VDK}", f"v_xor_b32 v{VDK+1}, 64, v{VDK}",
        f"s_lshl_b32 s{sT1}, s{sG}, 19", f"s_add_u32 s{sT1}, s{sT1}, s{sW2K}", f"s_add_u32 s{sT1}, s{sT1}, {1536*256}",
        f"v_add_u32 v{VDK}, s{sT1}, v{VDK}", f"v_add_u32 v{VDK+1}, s{sT1}, v{VDK+1}", f"v_add_u32 v{VDV}, s{sT1}, v{VDV}",
        f"v_lshlrev_b32 v{tm}, 5, v{h_}", f"v_xor_b32 v{VLIN}, v{tm}, v{VL16}", f"v_add_u32 v{VLIN}, {L_H}, v{VLIN}", f"v_xor_b32 v{VLO}, 64, v{VLIN}",
        f"s_mov_b32 s{sMASK}, 0xffff0000"])
    def nxt(d, s_): return [f"s_add_u32 s{d}, s{s_}, 8192", f"s_and_b32 s{d}, s{d}, 0x1ffff"]
    def kv_dma(which, lds_off, so):
        srd = 12 if which == "K" else 16
        return [f"s_add_u32 m0, s{sW2K}, {lds_off}", f"buffer_load_dwordx4 v{VDK if which=='K' else VDV}, s[{srd}:{srd+3}], s{so} offen lds",
                L(lambda: k(f"buffer_load_dwordx4 v{VDK+1 if which=='K' else VDV}, s[{srd}:{srd+3}], s{so} offen offset:1024 lds", token=which), 10, "v")]
    kinit = [[f"s_lshr_b32 s{sO0}, s{sROT}, 1", f"s_lshl_b32 s{sO0}, s{sO0}, 13"] + nxt(sO1, sO0) + nxt(sO2, sO1)]
    kfirst = [kv_dma("K", L_K + 16384 + 8192, sO0), kv_dma("K", L_K, sO1), kv_dma("K", L_K + 8192, sO2)]
    k.srd(20, 68, 256)
    def gemv_compute(lo, hi, tag, late):
        k(f"s_sub_u32 s{sT0}, s2, {lo}"); k(f"s_cmp_ge_u32 s{sT0}, {hi-lo}"); k(f"s_cselect_b32 s{sT0}, 1, s{sFB}"); k(f"s_cmp_lg_u32 s{sT0}, 0"); k("s_cbranch_scc1 NOGEMV" + tag)
        st0 = (dict(k.vm), dict(k.lg))
        D = P.get("DG") == 1 and not late
        if D: stamp(k, "g_in"); k.wait_regs(v(GW, 20)); stamp(k, "g_data")
        k(f"s_mov_b32 s{sT1}, {f32(-LOG2E)}")
        for i in range(4): k(f"v_lshlrev_b32 v{GC+i}, 16, v{GC+i}")
        for i in range(4): k(f"v_mul_f32 v{GA+i}, s{sT1}, v{GC+i}")
        for i in range(4): k(f"v_exp_f32 v{GA+i}, v{GA+i}")
        for i in range(4): k(f"v_add_f32 v{GA+i}, 1.0, v{GA+i}")
        for i in range(4): k(f"v_rcp_f32 v{GA+i}, v{GA+i}")
        for i in range(4): k(f"v_mul_f32 v{GC+i}, v{GC+i}, v{GA+i}")
        for i in range(4): rnd(k, 112 + 2 * i, GC + i)
        for i in range(4):
            for q in range(4):
                r = GW + 4 * i + q; u = 120 + 2 * (q & 1)
                k(f"v_lshlrev_b32 v{u}, 16, v{r}"); k(f"v_and_b32 v{u+1}, s{sMASK}, v{r}")
                if i == 0: k(f"v_pk_mul_f32 {v(GA+2*q,2)}, {v(u,2)}, {v(112+2*i,2)} op_sel_hi:[1,0]")
                else: k(f"v_pk_fma_f32 {v(GA+2*q,2)}, {v(u,2)}, {v(112+2*i,2)}, {v(GA+2*q,2)} op_sel_hi:[1,0,1]")
        for md in ("quad_perm:[2,3,0,1]", "row_ror:4", "row_ror:8"):
            for j in range(8): k(f"v_add_f32_dpp v{GA+j}, v{GA+j}, v{GA+j} {md} row_mask:0xf bank_mask:0xf")
        k(f"ds_write_b128 v104, {v(GA,4)} offset:{L_R}", token="w"); k(f"ds_write_b128 v104, {v(GA+4,4)} offset:{L_R+16}", token="w")
        k(f"v_lshlrev_b32 v105, 2, v{LN_}")
        k(f"s_lshr_b32 s{sT0}, s{sSL}, 5"); k(f"s_cmp_eq_u32 s{sT0}, 1"); k(f"s_cselect_b32 s{sT1}, 1.0, 0")
        k(f"s_cmp_eq_u32 s{sT0}, 4"); k(f"s_cselect_b32 s{sT1}, 1.0, s{sT1}")
        k(f"s_cmp_lt_u32 s{sT0}, 2"); k(f"s_cselect_b32 s{sT2}, {f32(QS)}, 1.0")
        if P["GS"] and late:
            k(f"s_cmp_ge_u32 s{sT0}, 3"); k(f"s_cselect_b32 s{sT2}, {f32(GSC)}, s{sT2}")
            k(f"s_cmp_eq_u32 s{sT0}, 5"); k(f"s_cselect_b32 s{sT2}, {f32(1/GSC**2)}, s{sT2}")
        k(f"s_lshl_b32 s{sT0}, s{sSL}, 6")
        k.wait("w"); k("s_barrier")
        k(f"s_cmp_lg_u32 s{sW}, 3"); k("s_cbranch_scc1 " + ("NOGEMV" + tag if late else "PWAIT"))
        for i in range(4): k(f"ds_read_b32 v{GA+i}, v105 offset:{L_R+256*i}")
        k(f"v_add_f32 v{GA}, v{GA}, v{GA+1}"); k(f"v_add_f32 v{GA+2}, v{GA+2}, v{GA+3}"); k(f"v_add_f32 v{GA}, v{GA}, v{GA+2}")
        k(f"v_mov_b32 v{GA+1}, v{GA}"); k(f"v_permlane16_swap_b32 v{GA}, v{GA+1}"); k(f"v_add_f32 v{GA}, v{GA}, v{GA+1}")
        k(f"v_mov_b32 v{GA+1}, v{GA}"); k(f"v_permlane32_swap_b32 v{GA}, v{GA+1}"); k(f"v_add_f32 v{GA}, v{GA}, v{GA+1}")
        rnd(k, GA, GA)
        k(f"v_add_f32 v{GA}, s{sT1}, v{GA}"); k(f"v_mul_f32 v{GA}, s{sT2}, v{GA}")
        if D: stamp(k, "g_red")
        k("s_mov_b64 exec, 0xffff")
        if not late:
            k("v_not_b32 v110, v110"); k(f"v_bfi_b32 v{GA}, 1, v110, v{GA}")
            k(f"buffer_store_dword v{GA}, v109, s[24:27], s{sE1} offen sc1")
            k("s_mov_b64 exec, -1")
            k.label("PWAIT")
            k("s_barrier")
            k.vm = {}
            put(k, xl)
            st0 = (k._merge(st0[0], k.vm), None)
        else:
            k(f"buffer_store_dword v{GA}, v105, s[24:27], s{sT0} offen sc1")
            k("s_mov_b64 exec, -1")
        k.label("NOGEMV" + tag)
        k.vm, k.lg = dict(st0[0]), {}
        k.smem_pending = bool(P["TOUCH"])
    gemv_compute(0, 64, "A", False)
    stamp(k, "gemv")
    k("s_mov_b32 s3, 0x3f803f80")
    ASET = {"Q": [AF, AF + 16], "O": [AF, AF + 16]}
    def aset(which, step): return ASET[which][step % len(ASET[which])]
    def a_reads(step, which="O"):
        slot = step % 4; b_ = aset(which, step)
        rd = [f"ds_read_b64_tr_b16 {a(b_+4*a_+2*u,2)}, v{VW+a_} offset:{4096*slot+1024*u}" for a_ in range(4) for u in range(2)]
        return [[L(lambda: k.wait(f"W{slot}")), rd[0]]] + rd[1:]
    N0 = P["N0"]
    if P.get("DG") == 2: stamp(k, "iss"); k.wait_regs(v(0, 16), v(128, 48)); stamp(k, "xarr")
    for oo in range(2):
        src = [XR[c] + 8 * cb + 4 * oo + q for c in range(4) for cb in range(2) for q in range(4)]
        A_ = 16 + 8 * oo
        if oo == P["WPOS"]:
            if oo: k.wait_regs(*[f"v{x}" for x in src])
            def late_loads():
                k(f"s_sub_u32 s{sT0}, s2, 64"); k(f"s_cmp_ge_u32 s{sT0}, 128"); k("s_cbranch_scc1 NOLATE")
                s_c = dict(k.vm)
                gemv_loads()
                k.label("NOLATE")
                k.vm = k._merge(k.vm, s_c)
                k.srd(12, 40, 8 * 2048 * 256)
            if P["LFIRST"]: late_loads()
            put(k, [w_dma(s_, "Q") for s_ in range(P["WPRE"])])
            if not P["LFIRST"]: late_loads()
        for j, x in enumerate(src):
            k(f"v_dot2_f32_bf16 v{A_+(j&1)}, v{x}, s3, {'0' if j < 2 else 'v%d' % (A_+(j&1))}")
            k(f"v_dot2_f32_bf16 v{A_+2+(j&1)}, v{x}, v{x}, {'0' if j < 2 else 'v%d' % (A_+2+(j&1))}")
        k("s_nop 2")
        k(f"v_add_f32 v{A_}, v{A_}, v{A_+1}"); k(f"v_add_f32 v{A_+2}, v{A_+2}, v{A_+3}")
        for md in ("quad_perm:[1,0,3,2]", "quad_perm:[2,3,0,1]"):
            for x in (A_, A_ + 2): k(f"v_add_f32_dpp v{x}, v{x}, v{x} {md} row_mask:0xf bank_mask:0xf")
        for x in (A_, A_ + 2): k(f"v_mov_b32 v{x+1}, v{x}")
        for x in (A_, A_ + 2): k(f"v_permlane32_swap_b32 v{x}, v{x+1}")
        for x in (A_, A_ + 2): k(f"v_add_f32 v{x}, v{x}, v{x+1}")
        k(f"v_mul_f32 v{A_}, {f32(-1/512)}, v{A_}")
        k(f"v_mul_f32 v{A_+2}, {f32(1/512)}, v{A_+2}")
        k(f"v_fma_f32 v{A_+2}, -v{A_}, v{A_}, v{A_+2}"); k(f"v_max_f32 v{A_+2}, 0, v{A_+2}")
        k(f"v_add_f32 v{A_+2}, {f32(1e-5)}, v{A_+2}"); k(f"v_rsq_f32 v{STT+2*oo+1}, v{A_+2}")
        k(f"v_mul_f32 v{STT+2*oo}, v{A_}, v{STT+2*oo+1}")
    def cread(cb, dst):
        return [f"ds_read_b128 {v(dst+8*m_+4*q,4)}, v{VM} offset:{L_M+2048*(1-m_)+256*cb+16*q}" for m_ in range(2) for q in range(2)]
    vmadv = [[f"v_add_u32 v{VM}, 0x200, v{VM}", f"v_and_b32 v{VM}, 0x7ff, v{VM}"]]
    def modulate(c, cb, cn, U_, pk):
        o = []
        for oo in range(2):
            x = XR[c] + 8 * cb + 4 * oo; u = U_ + (8 * oo if pk else 0)
            for q in range(4): o += [f"v_lshlrev_b32 v{u+2*q}, 16, v{x+q}", f"v_and_b32 v{u+2*q+1}, s{sMASK}, v{x+q}"]
            if pk:
                st = v(STT + 2 * oo, 2)
                o += [f"v_pk_fma_f32 {v(u+2*q,2)}, {v(u+2*q,2)}, {st}, {st} op_sel:[0,1,0] op_sel_hi:[1,1,0]" for q in range(4)]
                if pk == "pre": continue
                if pk == "post": o = o[:-12]
                o += [f"v_pk_fma_f32 {v(u+2*q,2)}, {v(u+2*q,2)}, {v(cn+2*q,2)}, {v(cn+8+2*q,2)}" for q in range(4)]
            else:
                o += [f"v_fma_f32 v{u+e}, v{u+e}, v{STT+2*oo+1}, v{STT+2*oo}" for e in range(8)]
                o += [f"v_fma_f32 v{u+e}, v{u+e}, v{cn+e}, v{cn+8+e}" for e in range(8)]
            o += [f"v_cvt_pk_bf16_f32 v{x+q}, v{u+2*q}, v{u+2*q+1}" for q in range(4)]
            o.append(L(lambda x=x, cb=cb, oo=oo: k(f"ds_write_b128 v{HW+cb}, {v(x,4)} offset:{8192*c+128*oo}", token="hw"), 22, "d"))
        return o
    put(k, modulate(0, 0, 16, 32, "pre") + modulate(0, 1, 32, 48, "pre"))
    if P.get("DG") == 2: stamp(k, "st+pre")
    gemv_compute(64, 192, "B", True)
    put(k, kinit)
    if P["KEARLY"]:
        put(k, kfirst)
        k.srd(16, 42, 8 * 2048 * 256)
        k(f"s_lshl_b32 s{sT1}, s{sROT}, 12"); k(f"s_lshl_b32 s{sT2}, s{sG}, 19"); k(f"s_add_u32 s{sT1}, s{sT1}, s{sT2}")
        k(f"s_lshl_b32 s{sT2}, s{sW}, {10+lg2(G)}"); k(f"s_add_u32 s{sT1}, s{sT1}, s{sT2}"); k(f"s_add_u32 s{sT1}, s{sT1}, {1536*256}")
        for n in range(G): k(f"buffer_load_dwordx4 {a(192+4*n,4)}, v{VL16}, s[16:19], s{sT1} offen offset:{1024*n}")
    stamp(k, "stats")
    k(f"s_lshl_b32 s{sT1}, s{sFB}, 4"); k(f"s_sub_u32 s{sT1}, s{sT1}, s{sFB}")
    k("v_mov_b32 v80, 0")
    k(f"s_mov_b32 s{sT2}, 0")
    k.label("POLL")
    k(f"s_add_u32 s{sT1}, s{sT1}, 1")
    k(f"s_and_b32 s{sT0}, s{sT1}, 15"); k("s_cbranch_scc1 POLLR")
    k("buffer_load_dword v81, v80, s[20:23], 0 offen sc1")
    k("v_readfirstlane_b32 s{0}, v81".format(sT0))
    k(f"s_cmp_ge_u32 s{sT0}, 0x100"); k(f"s_cselect_b32 s{sT2}, 1, 0")
    k(f"s_cmp_gt_u32 s{sT1}, 0x8000"); k(f"s_cselect_b32 s{sT2}, 1, s{sT2}")
    k.label("POLLR")
    k(f"buffer_load_dwordx4 {v(16,4)}, v{MX+4}, s[24:27], s{sE2} offen sc1")
    k(f"v_xor_b32 v82, v16, v{MX}")
    for j in range(1, 4): k(f"v_bitop3_b32 v82, v{16+j}, v{MX+j}, v82 bitop3:0x28")
    k("v_and_b32 v82, 1, v82"); k("v_cmp_eq_u32 vcc, 0, v82"); k("s_cmp_lg_u64 vcc, 0")
    k(f"s_cselect_b32 s{sT2}, s{sT2}, 1")
    k(f"s_cmp_lg_u32 s{sE0}, 0"); k("s_cbranch_scc1 NOARR")
    k("s_mov_b64 exec, 1"); k("v_mov_b32 v106, 1")
    k("buffer_atomic_add v106, v80, s[20:23], 0 offen")
    k("s_mov_b64 exec, -1")
    k(f"s_mov_b32 s{sE0}, 1")
    k.label("NOARR")
    k(f"s_cmp_lg_u32 s{sT2}, 0"); k("s_cbranch_scc1 POLLED")
    if P["PFK"]:
        k(f"s_cmp_lg_u32 s{sT1}, 1"); k("s_cbranch_scc1 NOPFK")
        k("s_cmp_lt_u32 s2, 192"); k("s_cbranch_scc1 NOPFK")
        k.srd(64, 42, 8 * 2048 * 256)
        k(f"s_bfe_u32 s{sT0}, s2, 0x30003"); k(f"s_lshl_b32 s{sT0}, s{sT0}, 2"); k(f"s_add_u32 s{sT0}, s{sT0}, s{sW}"); k(f"s_lshl_b32 s{sT0}, s{sT0}, 12")
        k(f"s_and_b32 s3, s2, {NG-1}"); k(f"s_lshl_b32 s3, s3, {19+lg2(G)}"); k(f"s_add_u32 s{sT0}, s{sT0}, s3"); k(f"s_add_u32 s{sT0}, s{sT0}, {1536*256}")
        n = 0
        for gi in range(G):
            for srd in (12, 64)[:P["PFK"]]:
                for j in range(4): k(f"buffer_load_dwordx4 {a(4*n,4)}, v{VL16}, s[{srd}:{srd+3}], s{sT0} offen offset:{1024*j}"); n += 1
            k(f"s_add_u32 s{sT0}, s{sT0}, 0x80000")
        k.label("NOPFK")
    if P["SLEEP"]: k(f"s_sleep {P['SLEEP']}")
    k("s_branch POLL")
    k.label("POLLED")
    k(f"s_load_dwordx4 s[64:67], s[0:1], {A_WG}"); k(f"s_load_dwordx2 s[4:5], s[0:1], {A_WD}")
    if P.get("DG"): stamp(k, "go")
    for j in range(4): k(f"v_and_b32 v{16+j}, -2, v{16+j}")
    k(f"s_lshl_b32 s{sT0}, s{sW}, 10"); k(f"v_add_u32 v80, s{sT0}, v{VL16}")
    k(f"ds_write_b128 v80, {v(16,4)} offset:{L_M}", token="w")
    k.wait("w")
    k("s_barrier")
    stamp(k, "poll")
    k.srd(20, 46, 4096 * 1024)
    put(k, cread(0, 64) + cread(1, 80) + vmadv)
    put(k, modulate(0, 0, 64, 32, "post") + modulate(0, 1, 80, 48, "post"))
    put(k, [w_dma(s_, "Q") for s_ in range(P["WPRE"], 4)])
    put(k, a_reads(0, "Q"))
    fr = lambda f: FR + 4 * (f % 8)
    def rdK(f, s_, off): return [f"ds_read_b128 {a(fr(f),4)}, v{VK+s_} offset:{off}"]
    def rdV(f, i, off): return [f"ds_read_b64_tr_b16 {a(fr(f)+2*u,2)}, v{VV+i%4} offset:{off+4096*(i//4)+2048*u}" for u in range(2)]
    def b_reads(step):
        return [f"ds_read_b128 {a(BF+8*(step%2)+4*rt,4)}, v{VLO if step & 1 else VLIN} offset:{1024*step+32768*rt}" for rt in range(2)]
    k.wait("hw"); k("s_barrier")
    stamp(k, "mod")
    for _ in range(P.get("DLY0", 0)): k("s_sleep 38")
    put(k, b_reads(0))
    def g_mfma(which, st):
        return [f"v_mfma_f32_32x32x16_bf16 {v(ACC+32*a_+16*rt,16)}, {a(aset(which,st)+4*a_,4)}, {a(BF+8*(st%2)+4*rt,4)}, {'0' if st == 0 else v(ACC+32*a_+16*rt,16)}"
                for a_ in range(4) for rt in range(2)]
    class Off:
        def __init__(s_, sc, o): s_.sc, s_.o = sc, o
        def pin(s_, g, x, end=False): s_.sc.pin(g + s_.o, x, end)
        def add(s_, ops, g0, g1, prio=0): s_.sc.add(ops, g0 + s_.o, g1 + s_.o, prio)
    def gemm(which, extra, nr, nd):
        sc = Sched(256)
        mf = []
        for st in range(32):
            if which == "Q" and st % 8 == 7 and st < 31: sc.pin(8 * st + 1, L(lambda: (k.wait("hw"), k("s_barrier")), 8))
            if st + 1 < 32:
                sc.add(b_reads(st + 1), 8 * st + (1 if st % 8 == 7 else 0), 8 * st + 4, prio=1)
                sc.pin(8 * st + 7, L(lambda st=st: k.wait_regs(a(aset(which, st + 1), 16), a(BF + 8 * ((st + 1) % 2), 8))), end=True)
            mf += g_mfma(which, st)
        R = len(ASET[which])
        g0 = 0
        td = {}
        first = [j for j in range(nd, min(nr + 4, 32))]
        pd = 8
        for i, j in enumerate(first):
            sc.add(w_dma(j, which), pd * i, pd * (i + 1)); td[j] = pd * (i + 1)
        tstart = max(pd * len(first) - (pd if first else 0), 8 * (nr - R + 1), 0)
        if first and nr in td: tstart = max(tstart, td[nr] + 12)
        nun = 32 - nr
        tr = {j: int(tstart + (j - nr) * (240 - tstart) / (nun - 1)) for j in range(nr, 32)}
        for j in range(nr, 32):
            assert tr[j] >= 8 * (j - R + 1) and tr[j] <= 8 * (j - 1), (j, tr[j])
            sc.add(a_reads(j, which), tr[j], tr[j] + 5, prio=1)
            if j + 4 < 32 and j + 4 >= nd and j + 4 not in td:
                lo = max(tr[j + 1], max(td.values()) if td else 0); hi = max(tr[j + 2], lo + 6)
                sc.add([L(lambda j=j: k.wait_regs(a(aset(which, j), 16)))] + w_dma(j + 4, which), lo, hi); td[j + 4] = hi
        sc.last_dma = max(td.values())
        for c in range(4): extra(c)(Off(sc, 64 * c), sc.last_dma - 192)
        i0 = len(k.items)
        for g_, (m, f_) in enumerate(zip(mf, sc.run())):
            k(m); put(k, f_)
            if g_ % 64 == 63 and g_ < 255: stamp(k, f"q{g_//64}" + ("o" if which == "O" else ""))
            if g_ == 191: i1 = len(k.items)
        X = P.get("DBG" + which, 0)
        if X:
            def keep(it):
                if it.kind in ("label", "raw"): return True
                if X & 1 and it.mn == "s_barrier": return False
                if X & 4 and it.kind in ("valu", "trans"): return False
                if X & 8 and it.kind == "vmem": return False
                if X & 16 and it.mn.startswith("ds_write"): return False
                if X & 32 and it.mn.startswith("ds_read_b128") and it.ops[0].startswith("v"): return False
                return True
            k.items[i0:i1] = [it for it in k.items[i0:i1] if keep(it)]
    def qepi(a_):
        return [f"v_cvt_pk_bf16_f32 v{Q+16*a_+8*(j//4)+4*rt+j%4}, v{ACC+32*a_+16*rt+2*j}, v{ACC+32*a_+16*rt+2*j+1}" for rt in range(2) for j in range(8)]
    def qx(c):
        def f(sc, ld):
            if c < 3:
                m0_ = modulate(c + 1, 0, CN, UT, False); m1_ = modulate(c + 1, 1, CN, UT, False)
                if P["QBURST"]:
                    wr = [x for x in m0_ + m1_ if callable(x)]
                    m0_ = [x for x in m0_ if not callable(x)]; m1_ = [x for x in m1_ if not callable(x)]
                    sc.add(cread(0, CN) + m0_[:-4] + cread(1, CN) + m0_[-4:] + m1_ + vmadv, 0, P["BURST"])
                    sc.pin(P["BURST"], wr)
                else:
                    sc.add(cread(0, CN) + m0_[:-5] + cread(1, CN) + m0_[-5:] + m1_ + vmadv, 0, 55)
            else:
                sc.pin(0, L(lambda: k.srd(16, 42, 8 * 2048 * 256), 16))
                assert ld <= 40, ld
                if not P["KEARLY"]: sc.add([x for d in kfirst for x in d], ld, ld + 9)
                ov = [[f"s_lshl_b32 s{sT0}, s{sG}, 19", f"s_add_u32 s{sT0}, s{sT0}, s{sW256}"],
                      f"v_and_b32 v{VDW+1}, 15, v{LN_}", f"v_lshlrev_b32 v{VDW+2}, 1, v{ROWL}", f"v_xor_b32 v{VDW+1}, v{VDW+1}, v{VDW+2}",
                      f"v_lshlrev_b32 v{VDW}, 10, v{ROWL}", f"v_lshl_add_u32 v{VDW}, v{VDW+1}, 4, v{VDW}", f"v_xor_b32 v{VDW+2}, 128, v{VDW}",
                      f"v_add_u32 v{VDW}, s{sT0}, v{VDW}", f"v_add_u32 v{VDW+2}, s{sT0}, v{VDW+2}",
                      f"v_add_u32 v{VDW+1}, 3072, v{VDW}", f"v_add_u32 v{VDW+3}, {3*3072}, v{VDW+2}", f"v_add_u32 v{VDW+2}, {2*3072}, v{VDW+2}",
                      [f"s_and_b32 s{sR8}, s{sROT}, 30", f"s_lshl_b32 s{sKhi}, s{sR8}, 14"]]
                sc.add(ov, ld + 1, 58)
                NA1 = P["F1R"] // 2; W1_ = 3584 // NA1; assert NA1 == 4
                nA2 = 32 // P["F2R"]; NA2 = 8 // nA2; rows2 = 8 // nA2
                ps = [L(lambda: k.srd(40, 64, 512 * 3584), 16), L(lambda: k.srd(44, 66, 512 * 3584), 16),
                      [f"s_lshr_b32 s66, s2, 3", f"s_lshl_b32 s66, s66, 2", f"s_add_u32 s66, s66, s{sW}"],
                      [f"s_mul_i32 s64, s66, {4*3584}", f"s_and_b32 s3, s2, 3", f"s_lshl_b32 s67, s3, 9"], ["s_add_u32 s64, s64, s67", f"s_mul_i32 s65, s66, {14*1024}"],
                      ["s_lshl_b32 s3, s3, 7", "s_sub_u32 s3, 1536, s3"],
                      [f"s_and_b32 s67, s2, {NA2-1}", f"s_mul_i32 s67, s67, {128*nA2}", "s_add_u32 s65, s65, s67"],
                      [f"s_lshl_b32 s66, s{sROT}, 14", f"s_lshl_b32 s67, s{sG}, 19", "s_add_u32 s66, s66, s67"], [f"s_lshl_b32 s67, s{sW}, {12+lg2(G)}", "s_add_u32 s66, s66, s67"],
                      f"v_min_u32 v{VX}, 55, v{LN_}", f"v_lshlrev_b32 v{VX}, 4, v{VX}", f"v_mad_u32_u24 v{VX}, v{h_}, s3, v{VX}",
                      f"v_lshrrev_b32 v{VX+1}, {lg2(8*nA2)}, v{LN_}", f"v_lshlrev_b32 v{VX+1}, 10, v{VX+1}", f"v_and_b32 v{tm}, {8*nA2-1}, v{LN_}", f"v_lshl_add_u32 v{VX+1}, v{tm}, 4, v{VX+1}"]
                sc.add(ps, 2, 32)
                sc.pin(ld + 1, L(lambda: k.srd(8, 4, 1792 * 1024), 16))
                sc.pin(56, L(lambda: (k.wait_all(), k("s_barrier")), 8))
                sc.add([rdK(f, f, L_K + 16384 + 8192) for f in range(4)], 56, 60, prio=1)
                sc.add(kv_dma("V", L_V, sO0) + kv_dma("V", L_V + 8192, sO1), 57, 62)
                sc.add(qepi(0), 61, 64)
                sc.pin(58, [f"v_add_u32 v{VLIN}, {L_H}, v{VL16}", f"v_add_u32 v{VLO}, {L_H}, v{VL16}"])
        return f
    gemm("Q", qx, 1, 4)
    stamp(k, "qgemm")
    def qk(f, s_, qt, buf, zero):
        d = v(S + 32 * buf + 16 * qt, 16)
        c = d if s_ else ("0" if zero else v(CI + 16 * qt, 16))
        return f"v_mfma_f32_32x32x16_bf16 {d}, {a(fr(f),4)}, {v(Q+8*s_+4*qt,4)}, {c}"
    def pv(f, i, qt, buf, zero=False):
        d = a(O + 32 * (i % 4) + 16 * qt, 16)
        return f"v_mfma_f32_32x32x16_bf16 {d}, {a(fr(f),4)}, {v(S+32*buf+16*qt+8*(i//4),4)}, {'0' if zero else d}"
    def sreg(buf, e): return S + 32 * buf + 16 * ((e >> 3) & 1) + 8 * (e >> 4) + (e & 7)
    def sm(buf, e, addci=False):
        o = []
        if e < 32:
            if addci: o.append(f"v_add_f32 v{sreg(buf,e)}, v{sreg(buf,e)}, v{CI+16*((e>>3)&1)}")
            o.append(f"v_exp_f32 v{sreg(buf,e)}, v{sreg(buf,e)}")
        if e >= 1:
            p = e - 1
            o.append(f"v_add_f32 v{LS+((p>>3)&1)}, v{LS+((p>>3)&1)}, v{sreg(buf,p)}")
            if p & 1:
                o.append(f"v_cvt_pk_bf16_f32 v{sreg(buf,p&~7)+(p&7)//2}, v{sreg(buf,p-1)}, v{sreg(buf,p)}")
        return o
    def wgrp(j): return L(lambda: k.wait_regs(a(FR + 16 * (j % 2), 16)))
    def qk0(epi):
        wgrp(0)()
        for s_ in range(8):
            ep = qepi(s_ // 2 + 1)[8 * (s_ & 1):8 * (s_ & 1) + 8] if epi and s_ < 6 else []
            rd = [rdK(f + 4, f + 4, L_K + 16384 + 8192) if f < 4 else rdK(f + 4, f - 4, L_K) for f in ([2*s_, 2*s_+1] if s_ < 2 else [2*s_-4, 2*s_-3] if 4 <= s_ < 6 else [])]
            k(qk(s_, s_, 0, 0, True)); put(k, rd[:1]); put(k, ep[:4])
            k(qk(s_, s_, 1, 0, True)); put(k, rd[1:]); put(k, ep[4:])
            if s_ % 4 == 3: wgrp(s_ // 4 + 1)()
    qk0(True)
    k(f"s_cmp_lg_u32 s{sFB}, 0"); k("s_cbranch_scc1 FB_MAX")
    k.label("IT0")
    def maxops(buf, dst):
        o = []
        for qt in range(2):
            b = S + 32 * buf + 16 * qt; t = dst + qt
            o.append(f"v_max3_f32 v{t}, v{b}, v{b+1}, v{b+2}")
            for i in range(3, 15, 2): o.append(f"v_max3_f32 v{t}, v{t}, v{b+i}, v{b+i+1}")
            o.append(f"v_max_f32 v{t}, v{t}, v{b+15}")
        return [x for pr in zip(o[:8], o[8:]) for x in pr]
    def xhalf_max(t, t2):
        return [f"v_mov_b32 v{t2}, v{t}", f"v_mov_b32 v{t2+1}, v{t+1}", f"v_permlane32_swap_b32 v{t}, v{t2}", f"v_permlane32_swap_b32 v{t+1}, v{t2+1}",
                f"v_max_f32 v{t}, v{t}, v{t2}", f"v_max_f32 v{t+1}, v{t+1}, v{t2+1}"]
    def flat(x): return [y for z in x for y in z]
    def iteration(par, first=False, last=False, extra=None):
        hb = 16384 * par; nb = 16384 * (1 - par)
        mf = []
        phs = [0, 1, 3] if last else [0, 1, 2, 3]
        n = 16 * len(phs)
        sc = Sched(n)
        frs = []
        for q_, ph in enumerate(phs):
            for g in range(16):
                f = 8 * q_ + g // 2; qt = g & 1; i = g // 2
                if ph == 0: mf.append(qk(f, i, qt, 1, first))
                elif ph == 1: mf.append(pv(f, i, qt, 0, first and i < 4))
                elif ph == 2: mf.append(qk(f, i, qt, 0, False))
                else: mf.append(pv(f, i, qt, 1))
            for i in range(8): frs.append((ph, i))
        ng = len(frs) // 4
        for j in range(1, ng):
            rd = []
            for f in range(4 * j, 4 * j + 4):
                ph, i = frs[f]
                rd += rdK(f, i, hb + 8192 * (ph // 2)) if ph % 2 == 0 else rdV(f, i, hb + 8192 * (ph // 2))
            g0 = 8 * (j - 1)
            if first and j == 2: sc.pin(g0 + 1, L(lambda: (k.wait("V"), k("s_barrier")), 8)); g0 += 1
            sc.add(rd, g0, 8 * (j - 1) + 6, prio=1)
            sc.pin(8 * j - 1, wgrp(j), end=True)
        dm = [nxt(sO1, sO2), kv_dma("V", L_V + nb, sO2), kv_dma("K", L_K + nb, sO1), kv_dma("V", L_V + nb + 8192, sO1), nxt(sO2, sO1), kv_dma("K", L_K + nb + 8192, sO2)]
        dm = [dm[0]] + dm[1] + dm[2] + dm[3] + [dm[4]] + dm[5]
        if first:
            sc.add(dm, 24, 44)
            mx = maxops(0, MX) + xhalf_max(MX, MX + 2)
            mx += [[f"s_cmp_lg_u32 s{sFB}, 0", "s_cselect_b64 vcc, -1, 0"]]
            mx += [f"v_sub_f32 v{CI+16*qt}, {f32(-float(P['BIAS']))}, v{MX+qt}" for qt in range(2)]
            mx += [f"v_cndmask_b32 v{CI+16*qt}, v{CI+16*qt}, v{MX+4+qt}, vcc" for qt in range(2)]
            sc.add(mx + flat(sm(0, e, True) for e in range(17)), 1, 16)
            sc.add(flat(sm(0, e, True) for e in range(17, 33)), 16, 23)
            sc.add([f"v_mov_b32 v{CI+16*qt+i}, v{CI+16*qt}" for qt in range(2) for i in range(1, 16)], 23, 31)
            sc.add(flat(sm(1, e, True) for e in range(33)), 23, 54)
            sc.add(flat(sm(0, e) for e in range(12)), 54, 64)
        else:
            for e in range(12, 33): sc.pin(e - 12, sm(0, e))
            if last:
                sc.add(flat(sm(1, e) for e in range(17)), 19, 31)
                sc.add(flat(sm(1, e) for e in range(17, 33)), 31, 39)
            else:
                sc.add(dm, 1, 40)
                for e in range(33): sc.pin(20 + e, sm(1, e))
                for e in range(12): sc.pin(52 + e, sm(0, e))
        if not last:
            sc.pin(56, L(lambda: (k.wait("K", "V"), k("s_barrier")), 8))
            sc.add([rdK(f, f, nb) for f in range(4)], 56, 61, prio=1)
            sc.pin(63, wgrp(0), end=True)
        if extra: extra(sc)
        for m, f_ in zip(mf, sc.run()): k(m); put(k, f_)
    iteration(0, first=True)
    stamp(k, "it0")
    rows2 = 8 // (32 // P["F2R"])
    def xpf(half):
        def f(sc):
            if not P["PF1"]: return
            n = 8 * half
            if half == 0:
                pf = [[f"buffer_load_dwordx4 {a(192+4*(n+j),4)}, v{VL16}, s[20:23], s66 offen offset:{1024*j}"] for j in range((4 * G + 2) // 3)] + [f"s_add_u32 s66, s66, {1024*((4*G+2)//3)}"]
                pf += [[f"buffer_load_dwordx4 {a(192+4*(n+3+j),4)}, v{VX+1}, s[8:11], s65 offen", f"s_add_u32 s65, s65, {1024*rows2}"] for j in range((14 // rows2 + 2) // 3)]
            else:
                pf = [[f"buffer_load_dwordx4 {a(192+4*(n+2*j+m_),4)}, v{VX}, s[{40+4*m_}:{43+4*m_}], s64 offen"] + ([f"s_add_u32 s64, s64, 3584"] if m_ else []) for j in range(2) for m_ in range(2)]
            sc.add(pf, 40, 56)
        return f
    k.loop(sST, 3, lambda: (iteration(1, extra=xpf(0)), iteration(0, extra=xpf(1))), align=3)
    stamp(k, "it1-6")
    OM = MX + 4
    def finalize(dt, qt):
        b = Q + 16 * ((2 * dt + qt) % 4)
        o = [f"v_accvgpr_read_b32 v{b+i}, a{O+32*dt+16*qt+i}" for i in range(16)]
        if dt == 0: o += [f"v_max3_f32 v{OM+qt}, |v{b+i}|, |v{b+i+1}|, v{OM+qt}" for i in range(0, 16, 2)]
        o += [f"v_pk_mul_f32 {v(b+i,2)}, {v(b+i,2)}, {v(RL,2)} op_sel:[0,{qt}] op_sel_hi:[1,{qt}]" for i in range(0, 16, 2)]
        for sp in range(2):
            o += [f"v_cvt_pk_bf16_f32 v{b+8*sp+j}, v{b+8*sp+2*j}, v{b+8*sp+2*j+1}" for j in range(4)]
            o.append(L(lambda sp=sp: k(f"ds_write_b128 v{STT+dt}, {v(b+8*sp,4)} offset:{32768*qt+1024*sp}", token="hw"), 22, "d"))
        return o
    f0 = finalize(0, 0); f1 = finalize(0, 1)
    def o_dma(st):
        slot = st % 6
        o = [f"s_add_u32 m0, s{sRING}, {4096*slot+0x100000-0x100000}" if slot < 4 else f"s_add_u32 m0, s31, {L_K+16384*(slot-4)}",
             f"buffer_load_dwordx4 v{VDW}, s[20:23], s{sKhi} offen lds"]
        for n in range(1, 4):
            o.append(L(lambda n=n: k(f"buffer_load_dwordx4 v{VDW+n}, s[20:23], s{sKhi} offen offset:{1024*n} lds", token=f"W{slot}"), 10, "v"))
        o.append(f"s_add_u32 s{sKhi}, s{sKhi}, 16384")
        if st & 1: o.append(f"s_and_b32 s{sKhi}, s{sKhi}, 0x7ffff")
        return o
    OA = [0, 32]; OB = [160, 176]
    OA = [192, 224]
    V16 = VW
    def oa_reads(u, half):
        s0 = 2 * (u % 3)
        rd = [f"ds_read_b64_tr_b16 {a(OA[u%2]+8*p+4*e+2*uu,2)}, v{(V16 if s0 < 4 else VV)+p} offset:{(4096*s0 if s0 < 4 else 0)+1024*uu+8*e}" for p in range(2 * half, 2 * half + 2) for e in range(2) for uu in range(2)]
        return [[L(lambda: k.wait(f"W{s0}", f"W{s0+1}")), rd[0]]] + rd[1:]
    def ob_reads(u):
        return [f"ds_read_b128 {a(OB[u%2]+4*r4,4)}, v{VLO} offset:{2048*u+32768*(r4>>1)+256*(r4&1)}" for r4 in range(4)]
    def x_last(sc):
        sc.add([f"s_lshl_b32 s31, s{sW}, 12"] + flat(o_dma(s_) for s_ in range(5)), 0, 38)
        sc.add(o_dma(5), 41, 48)
        fin = [f"v_mov_b32 v{MX}, v{LS}", f"v_mov_b32 v{MX+1}, v{LS+1}", f"v_mov_b32 v{OM}, 0", f"v_mov_b32 v{OM+1}, 0",
               f"v_permlane32_swap_b32 v{LS}, v{MX}", f"v_permlane32_swap_b32 v{LS+1}, v{MX+1}",
               f"v_add_f32 v{LS}, v{LS}, v{MX}", f"v_add_f32 v{LS+1}, v{LS+1}, v{MX+1}",
               f"v_rcp_f32 v{RL}, v{LS}", f"v_rcp_f32 v{RL+1}, v{LS+1}", f"v_max_f32 v{MX+6}, v{LS}, v{LS+1}"]
        adr = [[f"s_lshl_b32 s57, s{sW}, 3", f"s_sub_u32 s57, s57, s{sR8}"]]
        for dt in range(4):
            adr += [[f"s_add_u32 s56, s57, {2*dt}", "s_and_b32 s56, s56, 31", "s_lshl_b32 s56, s56, 10"], f"v_add_u32 v{STT+dt}, s56, v{VLIN}"]
        adr += [f"v_lshl_add_u32 v{tm}, v{ROWL}, 3, v{r_}", f"v_lshlrev_b32 v{tm}, 8, v{tm}", f"v_and_b32 v{tm+1}, 1, v{LN_}", f"v_lshl_add_u32 v{tm}, v{tm+1}, 4, v{tm}",
                f"v_add_u32 v{tm}, s{sRING}, v{tm}", f"v_lshl_add_u32 v{tm+1}, v{gn}, 2, v{r_}", f"v_bfe_u32 v{tm+2}, v{LN_}, 1, 1", f"v_xor_b32 v{tm+1}, v{tm+1}, v{tm+2}",
                f"v_lshl_add_u32 v{V16}, v{tm+1}, 5, v{tm}"] + [f"v_xor_b32 v{V16+p}, {64*p}, v{V16}" for p in range(1, 4)]
        adr += [f"v_and_b32 v{tm+1}, 15, v{LN_}", f"v_lshlrev_b32 v{tm+1}, 4, v{tm+1}", f"v_lshl_add_u32 v{HW}, v{ROWL}, 9, v{tm+1}", f"v_add_u32 v{VLO}, {L_H}, v{HW}"]
        sc.add(adr, 0, 19)
        sc.add(fin, 39, 43)
        sc.pin(40, L(lambda: k("s_barrier")))
        sc.add(oa_reads(0, 0), 40, 46, prio=1)
        sc.add(f0[:16] + f1[:12], 43, 48)
    iteration(1, last=True, extra=x_last)
    stamp(k, "it7")
    k(f"s_load_dwordx2 s[46:47], s[0:1], {A_X}")
    k(f"s_load_dwordx2 s[48:49], s[0:1], {A_OUT}")
    put(k, oa_reads(0, 1))
    k(f"s_sub_u32 s3, s31, s{sRING}"); k(f"v_mul_u32_u24 v{tm}, 12288, v{h_}"); k(f"v_add_u32 v{tm}, s3, v{tm}")
    for p in range(4): k(f"v_add_u32 v{VV+p}, v{V16+p}, v{tm}")
    put(k, f0[16:] + f1[12:])
    for dt in range(1, 4):
        for qt in range(2): put(k, finalize(dt, qt))
    k.wait_all(vm=False); k("s_barrier")
    put(k, ob_reads(0))
    stamp(k, "owrite")
    sc = Sched(512, budget=P['OBUD']); mf = []
    for u in range(16):
        g0 = 32 * u
        if u + 1 < 16:
            sc.add(ob_reads(u + 1) + oa_reads(u + 1, 0) + oa_reads(u + 1, 1), g0 + P["ORD0"], g0 + 28, prio=1)
            sc.pin(g0 + 31, L(lambda u=u: k.wait_regs(a(OA[(u + 1) % 2], 32), a(OB[(u + 1) % 2], 16))), end=True)
        if u + 3 < 16: sc.add(o_dma(2 * u + 6) + o_dma(2 * u + 7), g0, g0 + P["ODE"])
        for t_ in range(8):
            for r4 in range(4):
                d = v(ACC + 32 * (t_ // 2) + 8 * r4 + 4 * (t_ % 2), 4)
                mf.append(f"v_mfma_f32_16x16x32_bf16 {d}, {a(OA[u%2]+4*t_,4)}, {a(OB[u%2]+4*r4,4)}, {'0' if u == 0 else d}")
    misc = [f"v_min_f32 v{OM}, v{OM}, v{OM+1}", f"v_cmp_ngt_f32 vcc, {f32(2.0**120)}, v{MX+6}", "s_mov_b64 s[62:63], vcc",
            f"v_cmp_gt_f32 vcc, {f32(2.0**-112 if not P['FORCE_FB'] else 2.0**100)}, v{OM}", "s_or_b64 s[62:63], s[62:63], vcc",
            f"v_mov_b32 v{MX+1}, s{sRING}", f"v_and_b32 v{MX+7}, 3, v{LN_}", f"v_lshlrev_b32 v{MX+7}, 14, v{MX+7}", f"v_add_u32 v{MX+7}, {L_W}, v{MX+7}", f"v_mov_b32 v{MX+2}, 0", f"v_mov_b32 v{MX+3}, 0x7f800000",
            f"s_lshl_b32 s{sT2}, s{sG}, 21", f"s_lshl_b32 s{sT1}, s{sRB}, 16", f"s_add_u32 s{sT2}, s{sT2}, s{sT1}",
            f"s_lshl_b32 s{sT1}, s{sW}, 13", f"s_add_u32 s{sT2}, s{sT2}, s{sT1}", f"s_add_u32 s{sT2}, s{sT2}, {WS_P:#x}",
            "s_mov_b32 s12, s46", "s_and_b32 s13, s47, 0xffff", "s_mov_b32 s14, 0x200000", "s_mov_b32 s15, 0x20000",
            "s_mov_b32 s16, s68", "s_and_b32 s17, s69, 0xffff", "s_mov_b32 s18, 0x100", "s_mov_b32 s19, 0x20000",
            f"s_lshl_b32 s5, s{sRB}, 3", f"s_add_u32 s5, s5, s{sG}", "s_lshl_b32 s5, s5, 13",
            f"v_and_b32 v{tm}, 7, v{LN_}", f"v_lshrrev_b32 v{tm+1}, 3, v{LN_}", f"v_lshl_add_u32 v{tm+1}, s{sW}, 4, v{tm+1}",
            f"v_lshlrev_b32 v{VK}, 10, v{tm}", f"v_lshl_add_u32 v{VK}, v{tm+1}, 4, v{VK}", f"v_lshlrev_b32 v{VK+1}, 5, v{tm+1}",
            f"buffer_load_dword v{VK+2}, v{MX+2}, s[16:19], 0 offen sc1"]
    sc.add(misc, 8, 260)
    def cspin():
        k("s_mov_b32 s3, 0"); k("s_branch CCHK"); st = dict(k.vm)
        k.label("CPOLL")
        k(f"buffer_load_dword v{VK+2}, v{MX+2}, s[16:19], 0 offen sc1"); k.wait_all(lg=False)
        k.label("CCHK"); k.vm = st
        k("s_add_u32 s3, s3, 1"); k(f"v_cmp_gt_u32 vcc, 0x100, v{VK+2}")
        k("s_cmp_gt_u32 s3, 0x8000"); k("s_cbranch_scc1 CDONE"); k("s_cbranch_vccnz CPOLL")
        k.label("CDONE")
    sc.pin(417, L(cspin, 24))
    xm = [f"buffer_load_dwordx4 {v(128+4*i,4)}, v{VK}, s[12:15], s5 offen offset:{128*i}" for i in range(2)]
    for base, m_ in ((136, 2), (152, 4), (168, 3)):
        xm += [f"s_mov_b32 s4, {WS_MOD + m_*2048}"] + [f"buffer_load_dwordx4 {v(base+8*i+4*hh,4)}, v{VK+1}, s[24:27], s4 offen offset:{256*i+16*hh} sc1" for i in range(2) for hh in range(2)]
    sc.add(xm, 419, 490)
    for m, f_ in zip(mf, sc.run()): k(m); put(k, f_)
    stamp(k, "ogemm")
    for r4 in range(4):
        k(f"v_cmp_nlt_f32 vcc, |v{ACC+8*r4}|, v{MX+3}"); k("s_or_b64 s[62:63], s[62:63], vcc")
    k(f"s_cselect_b32 s{sT1}, 1, 0"); k(f"v_mov_b32 v{MX}, s{sT1}")
    k(f"ds_write_b32 v{MX+1}, v{MX}", token="fl")
    for p in range(4):
        if p == 1: k.wait("fl"); k("s_barrier"); k(f"ds_read_b32 v{STT}, v{MX+7}")
        for r4 in range(4):
            if r4 % 2 == 0: k(f"s_add_u32 s{sT1}, s{sT2}, {32768*(r4>>1) + 2048*p}")
            b = ACC + 32 * p + 8 * r4
            for j in range(4): k(f"v_cvt_pk_bf16_f32 v{b+j}, v{b+2*j}, v{b+2*j+1}")
            k(f"buffer_store_dwordx4 {v(b,4)}, v{HW}, s[24:27], s{sT1} offen offset:{256*(r4&1)} sc1", token="PST")
    k(f"v_cmp_lt_u32 vcc, s{sFB}, v{STT}")
    k("s_cbranch_vccnz FALLBACK")
    tail(sys.modules[__name__], k)
    stamp_flush(k, 0)
    k.label("END_attn"); k("s_endpgm")
    k.label("FALLBACK")
    k.wait_all(); k("s_barrier")
    k(f"s_mov_b32 s{sFB}, 1")
    k("s_nop 15")
    k("s_branch RESTART")
    k.label("FB_MAX")
    k.wait_all(); k("s_barrier")
    k(f"v_mov_b32 v{MX+4}, 0xff800000"); k(f"v_mov_b32 v{MX+5}, 0xff800000")
    def fbody():
        put(k, kv_dma("K", L_K, sO0) + nxt(sO0, sO0)); k.wait("K"); k("s_barrier")
        for s_ in range(8): put(k, rdK(s_, s_, L_K))
        for s_ in range(8):
            for qt in range(2): k(qk(s_, s_, qt, 0, True))
        put(k, maxops(0, MX))
        k(f"v_max_f32 v{MX+4}, v{MX+4}, v{MX}"); k(f"v_max_f32 v{MX+5}, v{MX+5}, v{MX+1}")
        k("s_barrier")
    k.loop(sST, 16, fbody)
    put(k, xhalf_max(MX + 4, MX + 2))
    for qt in range(2): k(f"v_sub_f32 v{MX+4+qt}, 0, v{MX+4+qt}")
    put(k, kfirst)
    k.wait_all(); k("s_barrier")
    for f in range(4): put(k, rdK(f, f, L_K + 16384 + 8192))
    qk0(False)
    k.wait_all()
    k("s_branch IT0")
    return k

from gen23_tail import tail

HEADER = open('adaLN_cond__sliding_block_cached__geglu_ffn__prompt.s.ref').read().split("; Override launch")[0]

if __name__ == "__main__":
    out = sys.argv[1] if len(sys.argv) > 1 else "k.s"
    me = sys.modules[__name__]
    ks = [gen_attn()]
    ks[-1].label("CODE_END")
    txt = emit(ks, header=HEADER)
    if P.get("SINGLE"): txt = txt.replace("; @launch kernel=" + KNAME + " ", "; @launch ")
    open(out, "w").write(txt)
    json.dump([[k.name, k.grid, k.block//64, k.stamps] for k in ks], open(out[:-2]+".json","w"))
    for k in ks: print(k.name, "regs(v,a,s)", k.used, "nops", k.n_nops, "misal", k.n_mis, "instrs", len(k.items))
```

```python
import sys, struct, math, os, json
from asmlib import *

def f32(x): return "0x%08x" % struct.unpack("<I", struct.pack("<f", x))[0]
LOG2E = 1.4426950408889634
CS = 128 ** -0.5
A_X, A_K, A_V, A_WQ, A_WO, B_X, A_WG, A_WU, A_WD, A_C, A_WM, A_OUT, A_DBG, A_WS = [8 * i for i in range(14)]
WS_MOD = 0x0
WS_GO = 0x18000
WS_FL = 0x20000
WS_ST = 0x10000
WS_P = 0x400000
WS_X1 = 0x1400000
WS_H2 = 0x1600000
WS_ACT = 0x1800000
WS_BYTES = 0x10000000
WS_DBG = 0x8000000
P = dict(STAMPS=0, G=2, ROT=1, F1R=8, F2R=8, PREF0=1, PREFC=1, PREFQ=1, PREFK=1, PORD=1, XPRE=0, TLBW=1, PBAR=3, WPOS=1, DEFER=1, SYNC=1, LFIRST=0, SLEEP=2, OSC=1, SLEEP2=4, FW1=6, FW2=20, F2PRE=12, ORD0=0, ODE=32, OBUD=8, ROLE=0, VP=0, KPOS=0, PFK=0, GS=1, NHID=4, TOUCH=0, N0=4, QP0=10, QBURST=1, TW1=8, TWM=8, TB0=2, HEND=32, APRE=6, BLEAD=4, EEND=64, PUBA=76, WLAG=4, BCHK=10, TW2=5, HPRE=3, PSYS=0, WPRE=2, BURST=54, KEARLY=0, BIAS=100, FORCE_FB=0, PNT=0, PST=2, AST=2, PF1=1, PF2=1)
for kv in os.environ.get("GP", "").split(","):
    if kv: P[kv.split("=")[0]] = int(kv.split("=")[1])

def stamp(k, name):
    if not P["STAMPS"]: return
    SETS = {0: ("start", "mod", "qgemm", "it0", "it1-6", "owrite", "ogemm", "t_set", "end"), 1: ("start", "gemv", "stats", "poll", "mod", "qgemm", "end"),
            3: ("start", "t_set", "poll1", "x1", "poll2", "ffn1", "pub3", "poll3", "end"), 7: ("start", "end"), 6: ("start", "poll2", "passA", "ffn1", "pub3", "poll3", "ffn2", "end"), 4: ("start", "mod", "q0", "q1", "q2", "qgemm", "end"), 5: ("start", "owrite", "q0o", "q1o", "q2o", "ogemm", "end")}
    if name not in SETS[P.get("DG", 0)]: return
    i = len(k.stamps); k.stamps.append(name)
    assert i < 9
    k.sgpr = 102
    k("s_memtime s[80:81]"); k("s_memrealtime s[100:101]"); k("s_waitcnt lgkmcnt(0)")
    k(f"s_mov_b32 s{82+2*i}, s80"); k(f"s_mov_b32 s{83+2*i}, s100")
def stamp_begin(k):
    k.stamps = []
    if not P["STAMPS"]: return
    stamp(k, "start")
def stamp_flush(k, kidx):
    if not P["STAMPS"]: return
    stamp(k, "end")
    if P["STAMPS"] == 2:
        lab = k.newlabel("NODBG")
        k("s_mov_b64 exec, -1")
        k(f"s_xor_b32 s100, s2, {P.get('DWG', 200)}"); k("s_or_b32 s100, s100, s101"); k("s_cmp_lg_u32 s100, 0"); k(f"s_cbranch_scc1 {lab}")
        k(f"s_load_dwordx2 s[66:67], s[0:1], {A_DBG}")
        k.srd(60, 66, 256)
        k("v_mov_b32 v1, 0")
        n = len(k.stamps)
        for j in range(1, n):
            k(f"s_sub_u32 s100, s{77+2*j}, s77"); k("v_mov_b32 v0, s100")
            k(f"buffer_store_dword v0, v1, s[60:63], 0 offen offset:{4*j}")
        k(f"s_sub_u32 s100, s{76+2*(n-1)}, s76"); k("v_mov_b32 v0, s100")
        k(f"buffer_store_dword v0, v1, s[60:63], 0 offen offset:{4*n}")
        k.label(lab)
        return
    k(f"s_load_dwordx2 s[64:65], s[0:1], {A_WS}")
    k("s_mov_b64 exec, -1")
    k.srd(56, 64, WS_BYTES)
    k("s_lshl_b32 s100, s2, 3"); k("s_add_u32 s100, s100, s28"); k("s_lshl_b32 s100, s100, 8")
    k(f"s_add_u32 s100, s100, {WS_DBG + kidx*0x100000:#x}")
    k("v_mov_b32 v1, 0")
    for j, sr in enumerate([82 + i for i in range(2*len(k.stamps))]):
        k(f"v_mov_b32 v0, s{sr}")
        k(f"buffer_store_dword v0, v1, s[56:59], s100 offen offset:{4*j}")

def wave_id(k, sdst, vtmp):
    k(f"v_lshrrev_b32 v{vtmp}, 6, v0")
    k(f"v_readfirstlane_b32 s{sdst}, v{vtmp}")
def rowsum_8(k, val, tmp):
    k(f"v_add_f32_dpp v{val}, v{val}, v{val} row_ror:8 row_mask:0xf bank_mask:0xf")
    k(f"v_mov_b32 v{tmp}, v{val}"); k(f"v_permlane16_swap_b32 v{val}, v{tmp}"); k(f"v_add_f32 v{val}, v{val}, v{tmp}")
    k(f"v_mov_b32 v{tmp}, v{val}"); k(f"v_permlane32_swap_b32 v{val}, v{tmp}"); k(f"v_add_f32 v{val}, v{val}, v{tmp}")
def rnd(k, d, sreg): k(f"v_cvt_pk_bf16_f32 v{d}, 0, v{sreg}")
def lg2(x): return x.bit_length() - 1
def split2(k, sb, sA, sB, nA_per, nB_total, t0, t1):
    A_total = 256 // nB_total; NA = A_total // nA_per
    k(f"s_and_b32 s{t0}, s{sb}, 7"); k(f"s_lshr_b32 s{t1}, s{sb}, 3")
    k(f"s_and_b32 s{sA}, s{t0}, {NA-1}"); k(f"s_lshl_b32 s{sA}, s{sA}, {lg2(nA_per)}")
    k(f"s_and_b32 s{sB}, s{t1}, {nA_per-1}"); k(f"s_add_u32 s{sA}, s{sA}, s{sB}")
    k(f"s_lshr_b32 s{sB}, s{t0}, {lg2(NA)}"); k(f"s_lshl_b32 s{sB}, s{sB}, {lg2(32//nA_per)}")
    k(f"s_lshr_b32 s{t1}, s{t1}, {lg2(nA_per)}"); k(f"s_add_u32 s{sB}, s{sB}, s{t1}")
def lane_tr_parts(k, lane, r, c2, gn, h, tmp):
    k(f"v_bfe_u32 v{r}, v{lane}, 2, 2")
    k(f"v_and_b32 v{c2}, 1, v{lane}"); k(f"v_lshlrev_b32 v{c2}, 1, v{c2}")
    k(f"v_bfe_u32 v{tmp}, v{lane}, 1, 1"); k(f"v_or_b32 v{c2}, v{c2}, v{tmp}")
    k(f"v_bfe_u32 v{gn}, v{lane}, 4, 1")
    k(f"v_lshrrev_b32 v{h}, 5, v{lane}")

QS = CS * LOG2E
GK0 = 2 * math.sqrt(2 / math.pi) * LOG2E
GSC = (GK0 * 0.044715) ** (1 / 3)
KNAME = "adaLN_cond__sliding_block_cached__geglu_ffn__prompt_kernel"
def ln_stats(k, XF):
    k(f"v_pk_add_f32 v[10:11], {v(XF,2)}, {v(XF+2,2)}")
    for e in range(4, 16, 2): k(f"v_pk_add_f32 v[10:11], v[10:11], {v(XF+e,2)}")
    k("v_add_f32 v10, v10, v11")
    def allreduce(off):
        rowsum_8(k, 10, 11)
        k(f"ds_write_b32 v9, v10 offset:{off}", token="w"); k.wait("w"); k("s_barrier")
        k(f"ds_read_b128 {v(12,4)}, v8 offset:{off}")
        k("v_add_f32 v12, v12, v13"); k("v_add_f32 v14, v14, v15"); k("v_add_f32 v10, v12, v14")
    allreduce(0)
    k(f"v_mul_f32 v58, {f32(-1/512)}, v10"); k("v_mov_b32 v59, v58")
    for e in range(0, 16, 2): k(f"v_pk_add_f32 {v(XF+e,2)}, {v(XF+e,2)}, v[58:59]")
    k(f"v_pk_mul_f32 v[10:11], {v(XF,2)}, {v(XF,2)}")
    for e in range(2, 16, 2): k(f"v_pk_fma_f32 v[10:11], {v(XF+e,2)}, {v(XF+e,2)}, v[10:11]")
    k("v_add_f32 v10, v10, v11")
    allreduce(128)
    k(f"v_mov_b32 v11, {f32(1e-5)}"); k(f"v_fmac_f32 v11, {f32(1/512)}, v10")
    k("v_rsq_f32 v56, v11"); k("v_mov_b32 v57, v56")

def gen_ln2():
    k = Kernel("ln2_kernel", 256, 256, 256, vgpr=160, sgpr=64)
    k("s_cmp_ge_u32 s2, 256"); k("s_cbranch_scc1 END_ln2")
    stamp_begin(k)
    k(f"s_load_dwordx2 s[4:5], s[0:1], {A_X}")
    k(f"s_load_dwordx2 s[6:7], s[0:1], {A_WS}")
    k("v_and_b32 v1, 7, v0"); k("v_lshrrev_b32 v2, 3, v0"); k("v_lshrrev_b32 v6, 6, v0")
    k("v_and_b32 v7, 7, v2"); k("v_lshl_add_u32 v7, v6, 4, v7")
    k("v_lshlrev_b32 v3, 9, v7"); k("v_lshl_add_u32 v3, v1, 4, v3")
    k("v_add_u32 v2, 4096, v3")
    k("v_lshlrev_b32 v4, 10, v1"); k("v_lshl_add_u32 v4, v7, 4, v4")
    k("v_lshlrev_b32 v5, 5, v7")
    k("v_lshlrev_b32 v8, 4, v1"); k("v_lshl_add_u32 v9, v6, 2, v8")
    k("s_and_b32 s25, s2, 7"); k("s_lshl_b32 s25, s25, 5"); k("s_lshr_b32 s26, s2, 3"); k("s_add_u32 s25, s25, s26")
    k("s_lshl_b32 s20, s25, 13")
    k("s_lshr_b32 s21, s25, 2"); k("s_lshl_b32 s21, s21, 15"); k("s_and_b32 s22, s25, 3"); k("s_lshl_b32 s22, s22, 7")
    k("s_add_u32 s21, s21, s22")
    k(f"s_add_u32 s23, s21, {WS_P:#x}")
    k.srd(12, 6, WS_BYTES)
    X = 16; XF = 24; MV = 40; PB = 64
    for g in range(8):
        for i in range(2):
            k(f"buffer_load_dwordx4 {v(PB+8*g+4*i,4)}, v{3-i}, s[12:15], s23 offen" + (" nt" if P["PNT"] else ""))
        if g < 7: k("s_add_u32 s23, s23, 0x200000")
    k.srd(8, 4, 2048 * 1024)
    for i in range(2): k(f"buffer_load_dwordx4 {v(X+4*i,4)}, v4, s[8:11], s20 offen offset:{128*i}")
    k("v_mov_b32 v10, 0"); k("s_lshl_b32 s27, s2, 7"); k(f"s_add_u32 s27, s27, {WS_FL:#x}")
    k("buffer_store_dword v10, v10, s[12:15], s27 offen sc1")
    k("s_mov_b32 s24, 0xffff0000")
    def load_mod(base, m):
        k(f"s_mov_b32 s23, {WS_MOD + m*2048}")
        for i in range(2):
            for hh in range(2):
                k(f"buffer_load_dwordx4 {v(base+8*i+4*hh,4)}, v5, s[12:15], s23 offen offset:{256*i+16*hh}")
    def unpack(dst, src):
        k(f"v_lshlrev_b32 v{dst}, 16, v{src}"); k(f"v_and_b32 v{dst+1}, s24, v{src}")
    load_mod(MV, 2); load_mod(128, 4); load_mod(144, 3)
    for q in range(8): unpack(XF + 2 * q, PB + q)
    for g in range(1, 8):
        for q in range(8):
            unpack(10 + 2 * (q & 1), PB + 8 * g + q)
            k(f"v_pk_add_f32 {v(XF+2*q,2)}, {v(XF+2*q,2)}, {v(10+2*(q&1),2)}")
    for q in range(8):
        unpack(10, X + q)
        k(f"v_pk_fma_f32 v[10:11], {v(XF+2*q,2)}, {v(MV+2*q,2)}, v[10:11]")
        k(f"v_cvt_pk_bf16_f32 v{X+q}, v10, v11")
        unpack(XF + 2 * q, X + q)
    k(f"s_add_u32 s23, s21, {WS_X1:#x}")
    for i in range(2): k(f"buffer_store_dwordx4 {v(X+4*i,4)}, v{3-i}, s[12:15], s23 offen sc1")
    stamp(k, "x1")
    ln_stats(k, XF)
    stamp(k, "stats")
    for e in range(0, 16, 2):
        k(f"v_pk_mul_f32 {v(XF+e,2)}, {v(XF+e,2)}, v[56:57]")
        k(f"v_pk_fma_f32 {v(XF+e,2)}, {v(XF+e,2)}, {v(128+e,2)}, {v(144+e,2)}")
        k(f"v_cvt_pk_bf16_f32 v{MV+e//2}, v{XF+e}, v{XF+e+1}")
    k(f"s_add_u32 s23, s21, {WS_H2:#x}")
    for i in range(2): k(f"buffer_store_dwordx4 {v(MV+4*i,4)}, v{3-i}, s[12:15], s23 offen sc1")
    stamp_flush(k, 1)
    k.label("END_ln2"); k("s_endpgm")
    return k

def put(k, seq):
    for x in seq:
        if isinstance(x, list): put(k, x)
        elif callable(x): x()
        else: k(x)

def gen_attn():
    k = Kernel(KNAME, 256, 256, 163840, vgpr=256, agpr=256, sgpr=82)
    k.denorm32 = P.get("DEN", 3)
    L_K, L_H, L_V, L_W, L_M = 0, 32768, 32768, 98304, 16384
    ACC = 0; S = 0; CI = 64; Q = 128
    VK = 192; VV = 200; VW = 204; VDW = 208; VDK = 212; VDV = 214; VLIN = 215; VL16 = 216
    LS = 217; VLO = 219
    T = 220
    LN_, ROWL, GR16 = T, T + 1, T + 2
    r_, c2, gn, h_, tm = T + 3, T + 4, T + 5, T + 6, T + 7
    CH8 = T + 10; HW = T + 11
    VX = T + 13; VM = T + 15
    MX = T + 16
    STT = T + 24
    RL = T + 28; UT = T + 28
    O = 0; FR = 128; AF = 128; BF = 160
    sW, sG, sRB, sT0, sT1, sRING, sST, sFB, sROT, sT2 = 28, 29, 30, 32, 33, 34, 35, 39, 50, 51
    sE0, sE1, sE2 = 61, 62, 63
    sO0, sO1, sO2, sW2K, sW256, sKhi, sMASK, sCC, sR8 = 36, 37, 38, 52, 54, 55, 58, 59, 6
    TAB = 72
    def L(f, cost=4, mem=False):
        f.cost = cost; f.mem = mem; return f
    k("s_cmp_ge_u32 s2, 256"); k("s_cbranch_scc1 END_attn")
    stamp_begin(k)
    k(f"s_mov_b32 s{sFB}, 0")
    if P["PREFC"]:
        k("s_getpc_b64 s[56:57]")
        k.label("PCREF")
        k(f"s_lshr_b32 s{sT1}, s2, 3"); k(f"s_lshl_b32 s{sT1}, s{sT1}, 12")
        k("v_lshlrev_b32 v108, 4, v0"); k(f"v_add_u32 v108, s{sT1}, v108"); k("v_min_u32 v108, CODE_END-PCREF-16, v108")
        k("global_load_dwordx4 a[252:255], v108, s[56:57]")
    wave_id(k, sW, T)
    k(f"v_and_b32 v{LN_}, 63, v0")
    k.label("RESTART")
    k(f"s_load_dwordx4 s[8:11], s[0:1], {A_C}")
    k(f"s_load_dwordx2 s[4:5], s[0:1], {A_X}")
    k(f"s_load_dwordx4 s[68:71], s[0:1], {A_DBG}")
    k(f"s_load_dwordx8 s[40:47], s[0:1], {A_K}")
    if P["TOUCH"]:
        k(f"s_load_dwordx4 s[84:87], s[0:1], {A_WG}"); k(f"s_load_dwordx2 s[88:89], s[0:1], {A_WD}"); k(f"s_load_dwordx2 s[90:91], s[0:1], {A_OUT}")
    L_R = L_M + 4096
    PSC = "sc1"
    GW, GC, GA = 64, 80, 88
    k(f"v_lshl_add_u32 v99, s{sW}, 6, v{LN_}")
    k("v_and_b32 v100, 1, v99"); k("v_lshrrev_b32 v101, 1, v99")
    k("v_mul_u32_u24 v102, 6144, v101"); k("v_lshl_add_u32 v102, v100, 4, v102"); k("v_lshlrev_b32 v103, 1, v101")
    k("v_lshrrev_b32 v104, 4, v99"); k("v_lshlrev_b32 v104, 6, v104"); k("v_lshl_add_u32 v104, v100, 5, v104")
    sSL = 7; sPR = 53
    k(f"s_lshr_b32 s{sT1}, s2, 3")
    RM = P["ROLE"]
    if RM == 0:
        k(f"s_and_b32 s{sT0}, s2, 7")
        k(f"s_lshl_b32 s{sSL}, s{sT0}, 3"); k(f"s_add_u32 s{sSL}, s{sSL}, s{sT1}")
        k(f"s_lshl_b32 s{sT2}, s{sT0}, 4"); k(f"s_add_u32 s{sT2}, s{sT2}, s{sT1}"); k(f"s_add_u32 s{sT2}, s{sT2}, 56")
        k("s_cmp_lt_u32 s2, 64"); k(f"s_cselect_b32 s{sSL}, s{sSL}, s{sT2}")
        k("s_cmp_lt_u32 s2, 192"); k(f"s_cselect_b32 s{sSL}, s{sSL}, 255")
    elif RM in (1, 2):
        k(f"s_bfe_u32 s{sT0}, s2, 0x20001")
        k(f"s_lshl_b32 s{sSL}, s{sT0}, 4"); k(f"s_add_u32 s{sSL}, s{sSL}, s{sT1}")
        k(f"s_cmp_lt_u32 s{sT1}, 16"); k(f"s_cselect_b32 s{sSL}, s{sSL}, 255")
        k(f"s_lshl_b32 s{sT2}, s{sT0}, 5"); k(f"s_add_u32 s{sT2}, s{sT2}, s{sT1}"); k(f"s_add_u32 s{sT2}, s{sT2}, 64")
        k("s_bitcmp1_b32 s2, 0")
        k(f"s_cselect_b32 s{sSL}, s{sSL}, s{sT2}" if RM == 1 else f"s_cselect_b32 s{sSL}, s{sT2}, s{sSL}")
    else:
        k(f"s_bfe_u32 s{sT0}, s2, 0x20001"); k(f"s_and_b32 s{sT2}, s{sT1}, 15")
        k(f"s_lshl_b32 s{sSL}, s{sT0}, 4"); k(f"s_add_u32 s{sSL}, s{sSL}, s{sT2}")
        k(f"s_lshr_b32 s{sT2}, s{sT1}, 4"); k(f"s_and_b32 s{sT0}, s2, 1"); k(f"s_lshl_b32 s{sT0}, s{sT0}, 1"); k(f"s_add_u32 s{sT2}, s{sT2}, s{sT0}")
        k(f"s_lshl_b32 s{sT2}, s{sT2}, 6"); k(f"s_add_u32 s{sSL}, s{sSL}, s{sT2}")
    k(f"s_cmp_lt_u32 s{sSL}, 64")
    k(f"s_cselect_b32 s{sPR}, s{sFB}, 1")
    k(f"s_lshl_b32 s31, s{sSL}, 5")
    k(f"v_lshlrev_b32 v{VL16}, 4, v{LN_}")
    G = P["G"]
    NG = 8 // G; NS = 32 // G
    k(f"s_and_b32 s{sG}, s2, {NG-1}"); k(f"s_lshl_b32 s{sG}, s{sG}, {lg2(G)}"); k(f"s_lshr_b32 s{sT0}, s2, {3+lg2(NS)}"); k(f"s_add_u32 s{sG}, s{sG}, s{sT0}")
    k(f"s_bfe_u32 s{sROT}, s2, {3 | (lg2(NS) << 16):#x}")
    k(f"s_and_b32 s{sRB}, s2, 7"); k(f"s_lshr_b32 s{sRB}, s{sRB}, {lg2(NG)}"); k(f"s_lshl_b32 s{sRB}, s{sRB}, {lg2(NS)}"); k(f"s_add_u32 s{sRB}, s{sRB}, s{sROT}")
    k(f"s_lshl_b32 s{sROT}, s{sROT}, {lg2(G)}")
    k(f"s_and_b32 s{sR8}, s{sROT}, 7"); k(f"s_lshr_b32 s{sCC}, s{sROT}, 3")
    RR, CGL = tm, tm + 1
    k(f"v_bfe_u32 v{RR}, v{LN_}, 2, 3")
    k(f"v_lshrrev_b32 v{CGL}, 5, v{LN_}"); k(f"v_lshlrev_b32 v{CGL}, 2, v{CGL}"); k(f"v_and_or_b32 v{CGL}, v{LN_}, 3, v{CGL}")
    k(f"v_lshlrev_b32 v{VX}, 10, v{RR}"); k(f"v_lshl_add_u32 v{VX}, v{CGL}, 4, v{VX}"); k(f"v_add_u32 v{VX+1}, 8192, v{VX}")
    XS = [48, 49, 56, 57]
    k(f"s_lshl_b32 s48, s{sRB}, 16"); k(f"s_lshl_b32 s{sT2}, s{sW}, 8"); k(f"s_add_u32 s48, s48, s{sT2}")
    for c in range(1, 4): k(f"s_add_u32 s{XS[c]}, s48, {16384*c}")
    XP = 128
    xl = [f"buffer_load_dwordx4 {v(XP+8*o+4*cb,4)}, v{VX+(o&1)}, s[16:19], s{XS[o>>1]} offen offset:{128*cb}" for o in range(8) for cb in range(2)]
    k.srd(12, 10, 512 * 6144); k.srd(20, 8, 1024); k.srd(16, 4, 2048 * 1024)
    def gemv_loads(late=False):
        k(f"s_mov_b32 s{sT0}, s31")
        for i in range(4):
            k(f"buffer_load_dwordx4 {a(224+4*i,4) if late else v(GW+4*i,4)}, v102, s[12:15], s{sT0} offen")
            if i < 3: k(f"s_add_u32 s{sT0}, s{sT0}, {128*6144}")
    for i in range(4): k(f"buffer_load_ushort v{GC+i}, v103, s[20:23], 0 offen offset:{256*i}")
    k.srd(24, 70, WS_BYTES)
    k(f"s_lshl_b32 s{sE2}, s{sW}, 10"); k(f"s_add_u32 s{sE2}, s{sE2}, {WS_GO:#x}")
    k(f"v_lshrrev_b32 v{MX+5}, 5, v{LN_}"); k(f"v_lshlrev_b32 v{MX+4}, 7, v{RR}"); k(f"v_lshl_add_u32 v{MX+4}, v{MX+5}, 12, v{MX+4}")
    k(f"v_and_b32 v{MX+5}, 3, v{LN_}"); k(f"v_lshl_add_u32 v{MX+4}, v{MX+5}, 4, v{MX+4}")
    k(f"buffer_load_dwordx4 {v(MX,4)}, v{MX+4}, s[24:27], s{sE2} offen sc1")
    k(f"v_lshlrev_b32 v109, 2, v{LN_}"); k(f"s_lshl_b32 s{sE1}, s{sSL}, 7"); k(f"s_add_u32 s{sE1}, s{sE1}, {WS_GO:#x}")
    k(f"buffer_load_dword v110, v109, s[24:27], s{sE1} offen sc1")
    k(f"s_xor_b32 s{sE0}, s{sW}, 3"); k(f"s_or_b32 s{sE0}, s{sE0}, s{sFB}")
    k(f"s_cmp_lg_u32 s{sE0}, 0"); k("s_cbranch_scc1 NOZERO")
    k(f"v_lshlrev_b32 v111, 15, v{LN_}"); k("v_mov_b32 v107, 0"); k(f"s_lshl_b32 s{sT0}, s2, 7"); k(f"s_add_u32 s{sT0}, s{sT0}, {WS_FL:#x}")
    k("s_mov_b64 exec, 15")
    k(f"buffer_store_dword v107, v111, s[24:27], s{sT0} offen sc1")
    k("s_mov_b64 exec, -1")
    k.label("NOZERO")
    k.vm = {kk: max(p - 1, 0) for kk, p in k.vm.items()}
    k(f"s_cmp_eq_u32 s{sPR}, 0"); k("s_cbranch_scc1 PLOAD")
    s_a = (dict(k.vm), dict(k.lg))
    if P["TOUCH"]:
        k(f"s_cmp_lt_u32 s2, {P['TOUCH']}"); k("s_cbranch_scc1 NOTOUCH")
        k(f"s_lshl_b32 s92, s{sW}, 20"); k(f"s_and_b32 s93, s92, 0x100000")
        k.auto = False
        for base in (44, 40, 42, 46): k(f"s_load_dword s81, s[{base}:{base+1}], s92")
        for base in (84, 86, 88, 90): k(f"s_load_dword s81, s[{base}:{base+1}], s93")
        for i in range(8):
            k(f"s_load_dword s81, s[70:71], s92"); k("s_add_u32 s92, s92, 0x400000")
        k.auto = True
        k.label("NOTOUCH")
        k.sgpr = max(k.sgpr, 94)
    put(k, xl)
    s_b = dict(k.vm)
    k("s_branch PJOIN")
    k.label("PLOAD")
    k.vm = dict(s_a[0])
    gemv_loads()
    k.label("PJOIN")
    k.vm = k._merge(k.vm, s_b)
    k(f"s_lshl_b32 s{sW256}, s{sW}, 8"); k(f"s_lshl_b32 s{sW2K}, s{sW}, 11")
    k(f"v_lshrrev_b32 v{ROWL}, 4, v{LN_}")
    k(f"v_and_b32 v{r_}, 15, v{LN_}"); k(f"v_lshlrev_b32 v{GR16}, 2, v{ROWL}"); k(f"v_xor_b32 v{GR16}, v{GR16}, v{r_}")
    k(f"v_lshlrev_b32 v{GR16}, 4, v{GR16}")
    def w_voffs(psh, scol):
        return [f"v_lshl_add_u32 v{VDW}, v{ROWL}, {psh}, v{GR16}", f"v_add_u32 v{VDW}, s{scol}, v{VDW}"] + \
               [f"v_add_u32 v{VDW+n}, {n*((4<<psh)-1024)}, v{VDW}" for n in range(1, 4)]
    k(f"s_lshl_b32 s{sT0}, s{sG}, 10"); k(f"s_add_u32 s{sT0}, s{sT0}, s{sW256}")
    put(k, w_voffs(13, sT0))
    k(f"s_lshl_b32 s{sRING}, s{sW}, 14"); k(f"s_add_u32 s{sRING}, s{sRING}, {L_W}")
    for p in range(8):
        k(f"s_add_u32 s{TAB+p}, s{sR8}, {p}"); k(f"s_and_b32 s{TAB+p}, s{TAB+p}, 7"); k(f"s_lshl_b32 s{TAB+p}, s{TAB+p}, 17")
    k(f"s_lshl_b32 s{sKhi}, s{sCC}, 20")
    k.srd(8, 44, 512 * 8192)
    def w_dma(step, which):
        slot = step % 4
        if which == "Q":
            srd = 8
            pre = [f"s_add_u32 s{sT0}, s{sKhi}, s{TAB+step%8}"]
            adv = [[f"s_add_u32 s{sKhi}, s{sKhi}, 0x100000", f"s_and_b32 s{sKhi}, s{sKhi}, 0x3fffff"]] if step % 8 == 7 else []
        else:
            srd = 20
            pre = [f"s_add_u32 s{sT0}, s{TAB+step%8}, {(2*(step//8))<<14}"]
            adv = []
        o = [pre + [f"s_add_u32 m0, s{sRING}, {4096*slot}"]] + adv + [f"buffer_load_dwordx4 v{VDW}, s[{srd}:{srd+3}], s{sT0} offen lds"]
        for n in range(1, 4):
            o.append(L(lambda n=n: k(f"buffer_load_dwordx4 v{VDW+n}, s[{srd}:{srd+3}], s{sT0} offen offset:{1024*n} lds", token=f"W{slot}"), 10, "v"))
        return o
    k(f"v_lshrrev_b32 v{r_}, 1, v{CGL}"); k(f"v_subrev_u32 v{r_}, s{sR8}, v{r_}")
    k(f"v_and_b32 v{c2}, 1, v{CGL}"); k(f"v_and_b32 v{gn}, 1, v{r_}"); k(f"v_lshl_add_u32 v{gn}, v{gn}, 1, v{c2}"); k(f"v_lshlrev_b32 v{gn}, 1, v{gn}")
    k(f"v_xor_b32 v{gn}, v{gn}, v{RR}")
    k(f"v_lshlrev_b32 v{c2}, 9, v{c2}"); k(f"v_lshl_add_u32 v{c2}, v{gn}, 4, v{c2}")
    k(f"s_sub_u32 s{sT1}, s{sW}, s{sCC}"); k(f"s_and_b32 s{sT1}, s{sT1}, 3"); k(f"s_lshl_b32 s{sT1}, s{sT1}, 13")
    k(f"s_add_u32 s{sT1}, s{sT1}, {L_H}"); k(f"v_add_u32 v{c2}, s{sT1}, v{c2}")
    for cb in range(2):
        k(f"v_add_u32 v{gn}, {4*cb}, v{r_}"); k(f"v_and_b32 v{gn}, 7, v{gn}"); k(f"v_lshl_add_u32 v{HW+cb}, v{gn}, 10, v{c2}")
    k(f"s_lshl_b32 s{sT2}, s{sW}, 10"); k(f"v_lshlrev_b32 v{VM}, 5, v{CGL}"); k(f"v_add_u32 v{VM}, s{sT2}, v{VM}")
    k(f"v_lshrrev_b32 v{UT+4}, 2, v{LN_}"); k(f"v_lshlrev_b32 v{UT+4}, 6, v{UT+4}"); k(f"v_add_u32 v{UT+4}, s{sT2}, v{UT+4}")
    k(f"v_lshlrev_b32 v{UT+5}, 6, v{RR}"); k(f"v_lshl_add_u32 v{UT+7}, s{sW}, 9, v{UT+5}"); k(f"v_lshl_add_u32 v{UT+5}, v{CGL}, 3, v{UT+5}")
    k(f"v_lshl_add_u32 v{UT+6}, v{CGL}, 3, v{UT+7}")
    lane_tr_parts(k, LN_, r_, c2, gn, h_, tm)
    k(f"v_lshl_add_u32 v{CH8}, v{gn}, 2, v{c2}"); k(f"v_lshlrev_b32 v{CH8}, 3, v{CH8}")
    k(f"v_lshl_add_u32 v{tm}, v{h_}, 3, v{r_}"); k(f"v_lshl_add_u32 v{tm}, v{tm}, 8, v{CH8}"); k(f"v_add_u32 v{tm}, s{sRING}, v{tm}")
    for a_ in range(4):
        k(f"v_xor_b32 v{tm+1}, {a_}, v{r_}"); k(f"v_lshl_add_u32 v{VW+a_}, v{tm+1}, 6, v{tm}")
    put(k, [f"v_lshl_add_u32 v{tm}, v{h_}, 2, v{r_}", f"v_lshl_add_u32 v{tm}, v{tm}, 8, v{CH8}", f"v_add_u32 v{tm}, {L_V}, v{tm}"])
    for dt in range(4): put(k, [f"v_xor_b32 v{tm+1}, {dt}, v{r_}", f"v_lshl_add_u32 v{VV+dt}, v{tm+1}, 6, v{tm}"])
    put(k, [f"v_and_b32 v{tm}, 31, v{LN_}", f"v_and_b32 v{tm+1}, 15, v{LN_}", f"v_xor_b32 v{tm+1}, v{tm+1}, v{h_}",
            f"v_lshlrev_b32 v{tm}, 8, v{tm}", f"v_lshl_add_u32 v{VK}, v{tm+1}, 4, v{tm}"])
    put(k, [f"v_xor_b32 v{VK+s_}, {s_*32}, v{VK}" for s_ in range(1, 8)])
    put(k, [f"v_mov_b32 v{LS}, 0", f"v_mov_b32 v{LS+1}, 0",
        f"v_lshl_add_u32 v{VDV}, v{ROWL}, 8, v{GR16}", f"s_and_b32 s{sT1}, s{sW}, 1", f"s_lshl_b32 s{sT1}, s{sT1}, 3",
        f"v_or_b32 v{tm}, s{sT1}, v{ROWL}", f"v_and_b32 v{tm+1}, 15, v{LN_}", f"v_xor_b32 v{tm}, v{tm}, v{tm+1}",
        f"v_lshlrev_b32 v{VDK}, 8, v{ROWL}", f"v_lshl_add_u32 v{VDK}, v{tm}, 4, v{VDK}", f"v_xor_b32 v{VDK+1}, 64, v{VDK}",
        f"s_lshl_b32 s{sT1}, s{sG}, 19", f"s_add_u32 s{sT1}, s{sT1}, s{sW2K}", f"s_add_u32 s{sT1}, s{sT1}, {1536*256}",
        f"v_add_u32 v{VDK}, s{sT1}, v{VDK}", f"v_add_u32 v{VDK+1}, s{sT1}, v{VDK+1}", f"v_add_u32 v{VDV}, s{sT1}, v{VDV}",
        f"v_lshlrev_b32 v{tm}, 5, v{h_}", f"v_xor_b32 v{VLIN}, v{tm}, v{VL16}", f"v_add_u32 v{VLIN}, {L_H}, v{VLIN}", f"v_xor_b32 v{VLO}, 64, v{VLIN}",
        f"s_mov_b32 s{sMASK}, 0xffff0000"])
    def nxt(d, s_): return [f"s_add_u32 s{d}, s{s_}, 8192", f"s_and_b32 s{d}, s{d}, 0x1ffff"]
    def kv_dma(which, lds_off, so):
        srd = 12 if which == "K" else 16
        return [f"s_add_u32 m0, s{sW2K}, {lds_off}", f"buffer_load_dwordx4 v{VDK if which=='K' else VDV}, s[{srd}:{srd+3}], s{so} offen lds",
                L(lambda: k(f"buffer_load_dwordx4 v{VDK+1 if which=='K' else VDV}, s[{srd}:{srd+3}], s{so} offen offset:1024 lds", token=which), 10, "v")]
    kinit = [[f"s_lshr_b32 s{sO0}, s{sROT}, 1", f"s_lshl_b32 s{sO0}, s{sO0}, 13"] + nxt(sO1, sO0) + nxt(sO2, sO1)]
    kfirst = [kv_dma("K", L_K + 16384 + 8192, sO0), kv_dma("K", L_K, sO1), kv_dma("K", L_K + 8192, sO2)]
    k.srd(20, 68, 256)
    def gemv_compute(lo, hi, tag, late):
        k(f"s_sub_u32 s{sT0}, s{sSL}, {lo}"); k(f"s_cmp_ge_u32 s{sT0}, {hi-lo}"); k(f"s_cselect_b32 s{sT0}, 1, s{sFB}"); k(f"s_cmp_lg_u32 s{sT0}, 0"); k("s_cbranch_scc1 NOGEMV" + tag)
        st0 = (dict(k.vm), dict(k.lg))
        GW, GC, GA, SC_, U_, AW_, AR_ = (160, 176, 180, 144, 188, 152, 153) if late else (64, 80, 88, 112, 120, 104, 105)
        if late:
            for i in range(20): k(f"v_accvgpr_read_b32 v{GW+i}, a{224+i}")
            k(f"v_accvgpr_read_b32 v{AW_}, a244")
        D = P.get("DG") == 1 and not late
        if D: stamp(k, "g_in"); k.wait_regs(v(GW, 20)); stamp(k, "g_data")
        k(f"s_mov_b32 s{sT1}, {f32(-LOG2E)}")
        for i in range(4): k(f"v_lshlrev_b32 v{GC+i}, 16, v{GC+i}")
        for i in range(4): k(f"v_mul_f32 v{GA+i}, s{sT1}, v{GC+i}")
        for i in range(4): k(f"v_exp_f32 v{GA+i}, v{GA+i}")
        for i in range(4): k(f"v_add_f32 v{GA+i}, 1.0, v{GA+i}")
        for i in range(4): k(f"v_rcp_f32 v{GA+i}, v{GA+i}")
        for i in range(4): k(f"v_mul_f32 v{GC+i}, v{GC+i}, v{GA+i}")
        for i in range(4): rnd(k, SC_ + 2 * i, GC + i)
        for i in range(4):
            for q in range(4):
                r = GW + 4 * i + q; u = U_ + 2 * (q & 1)
                k(f"v_lshlrev_b32 v{u}, 16, v{r}"); k(f"v_and_b32 v{u+1}, s{sMASK}, v{r}")
                if i == 0: k(f"v_pk_mul_f32 {v(GA+2*q,2)}, {v(u,2)}, {v(SC_+2*i,2)} op_sel_hi:[1,0]")
                else: k(f"v_pk_fma_f32 {v(GA+2*q,2)}, {v(u,2)}, {v(SC_+2*i,2)}, {v(GA+2*q,2)} op_sel_hi:[1,0,1]")
        for md in ("quad_perm:[2,3,0,1]", "row_ror:4", "row_ror:8"):
            for j in range(8): k(f"v_add_f32_dpp v{GA+j}, v{GA+j}, v{GA+j} {md} row_mask:0xf bank_mask:0xf")
        k(f"ds_write_b128 v{AW_}, {v(GA,4)} offset:{L_R}", token="w"); k(f"ds_write_b128 v{AW_}, {v(GA+4,4)} offset:{L_R+16}", token="w")
        k(f"v_lshlrev_b32 v{AR_}, 2, v{LN_}")
        k(f"s_lshr_b32 s{sT0}, s{sSL}, 5"); k(f"s_cmp_eq_u32 s{sT0}, 1"); k(f"s_cselect_b32 s{sT1}, 1.0, 0")
        k(f"s_cmp_eq_u32 s{sT0}, 4"); k(f"s_cselect_b32 s{sT1}, 1.0, s{sT1}")
        k(f"s_cmp_lt_u32 s{sT0}, 2"); k(f"s_cselect_b32 s{sT2}, {f32(QS)}, 1.0")
        if P["GS"] and late:
            k(f"s_cmp_ge_u32 s{sT0}, 3"); k(f"s_cselect_b32 s{sT2}, {f32(GSC)}, s{sT2}")
            k(f"s_cmp_eq_u32 s{sT0}, 5"); k(f"s_cselect_b32 s{sT2}, {f32(1/GSC**2)}, s{sT2}")
        k(f"s_lshl_b32 s{sT0}, s{sSL}, 6")
        k.wait("w"); k("s_barrier")
        k(f"s_cmp_lg_u32 s{sW}, 3"); k("s_cbranch_scc1 " + ("NOGEMV" + tag if late else "PWAIT"))
        for i in range(4): k(f"ds_read_b32 v{GA+i}, v{AR_} offset:{L_R+256*i}")
        k(f"v_add_f32 v{GA}, v{GA}, v{GA+1}"); k(f"v_add_f32 v{GA+2}, v{GA+2}, v{GA+3}"); k(f"v_add_f32 v{GA}, v{GA}, v{GA+2}")
        k(f"v_mov_b32 v{GA+1}, v{GA}"); k(f"v_permlane16_swap_b32 v{GA}, v{GA+1}"); k(f"v_add_f32 v{GA}, v{GA}, v{GA+1}")
        k(f"v_mov_b32 v{GA+1}, v{GA}"); k(f"v_permlane32_swap_b32 v{GA}, v{GA+1}"); k(f"v_add_f32 v{GA}, v{GA}, v{GA+1}")
        rnd(k, GA, GA)
        k(f"v_add_f32 v{GA}, s{sT1}, v{GA}"); k(f"v_mul_f32 v{GA}, s{sT2}, v{GA}")
        if D: stamp(k, "g_red")
        k("s_mov_b64 exec, 0xffff")
        if not late:
            k("v_not_b32 v110, v110"); k(f"v_bfi_b32 v{GA}, 1, v110, v{GA}")
            k(f"buffer_store_dword v{GA}, v109, s[24:27], s{sE1} offen sc1")
            k("s_mov_b64 exec, -1")
            k.label("PWAIT")
            k("s_barrier")
            k.vm = {}
            put(k, xl)
            st0 = (k._merge(st0[0], k.vm), None)
        else:
            k(f"buffer_store_dword v{GA}, v{AR_}, s[24:27], s{sT0} offen sc1")
            k("s_mov_b64 exec, -1")
        k.label("NOGEMV" + tag)
        k.vm, k.lg = dict(st0[0]), {}
        k.smem_pending = late
    gemv_compute(0, 64, "A", False)
    stamp(k, "gemv")
    k("s_mov_b32 s3, 0x3f803f80")
    k(f"s_load_dwordx4 s[64:67], s[0:1], {A_WG}"); k(f"s_load_dwordx2 s[4:5], s[0:1], {A_WD}")
    ASET = {"Q": [AF, AF + 16], "O": [AF, AF + 16]}
    def aset(which, step): return ASET[which][step % len(ASET[which])]
    def a_reads(step, which="O"):
        slot = step % 4; b_ = aset(which, step)
        rd = [f"ds_read_b64_tr_b16 {a(b_+4*a_+2*u,2)}, v{VW+a_} offset:{4096*slot+1024*u}" for a_ in range(4) for u in range(2)]
        return [[L(lambda: k.wait(f"W{slot}")), rd[0]]] + rd[1:]
    N0 = P["N0"]
    if P.get("DG") == 2: stamp(k, "iss"); k.wait_regs(v(0, 16), v(128, 48)); stamp(k, "xarr")
    for i in range(4): k(f"v_accvgpr_write_b32 a{240+i}, v{GC+i}")
    k("v_accvgpr_write_b32 a244, v104")
    for o in range(8):
        if o == 4:
            k.wait_regs(v(XP, 64))
            put(k, [w_dma(s_, "Q") for s_ in range(P["WPRE"])])
            k(f"s_sub_u32 s{sT0}, s{sSL}, 64"); k(f"s_cmp_ge_u32 s{sT0}, 128"); k("s_cbranch_scc1 NOLATE")
            s_c = dict(k.vm)
            gemv_loads(True)
            k.label("NOLATE")
            k.vm = k._merge(k.vm, s_c)
            k.srd(12, 40, 8 * 2048 * 256)
        for j in range(8):
            x = XP + 8 * o + j
            k(f"v_dot2_f32_bf16 v{2*o}, v{x}, s3, {'0' if j == 0 else 'v%d' % (2*o)}")
            k(f"v_dot2_f32_bf16 v{2*o+1}, v{x}, v{x}, {'0' if j == 0 else 'v%d' % (2*o+1)}")
    k("s_nop 2")
    for md in ("quad_perm:[1,0,3,2]", "quad_perm:[2,3,0,1]"):
        for x in range(16): k(f"v_add_f32_dpp v{x}, v{x}, v{x} {md} row_mask:0xf bank_mask:0xf")
    for q in range(4): k(f"ds_write_b128 v{UT+4}, {v(4*q,4)} offset:{L_K+16*q}", token="w")
    k.wait("w"); k("s_barrier")
    for p_ in range(8): k(f"ds_read_b64 {v(16+2*p_,2)}, v{UT+5} offset:{L_K+512*p_}")
    for st in (1, 2, 4):
        for p_ in range(0, 8, 2 * st): k(f"v_pk_add_f32 {v(16+2*p_,2)}, {v(16+2*p_,2)}, {v(16+2*(p_+st),2)}")
    k(f"v_mul_f32 v16, {f32(-1/512)}, v16"); k(f"v_mul_f32 v17, {f32(1/512)}, v17")
    k("v_fma_f32 v17, -v16, v16, v17"); k("v_max_f32 v17, 0, v17"); k(f"v_add_f32 v17, {f32(1e-5)}, v17"); k("v_rsq_f32 v17, v17")
    k("v_mul_f32 v16, v16, v17")
    k(f"ds_write_b64 v{UT+6}, v[16:17] offset:{L_K+4096}")
    for q in range(4): k(f"ds_read_b128 {v(112+4*q,4)}, v{UT+7} offset:{L_K+4096+16*q}")
    k(f"ds_read_b64 {v(STT,2)}, v{UT+7} offset:{L_K+4096+56}")
    for o in range(8):
        st = v(112 + 2 * o, 2) if o < 7 else v(STT, 2)
        for cb in range(2):
            x = XP + 8 * o + 4 * cb; u = 16 * o + 8 * cb
            for q in range(4): k(f"v_lshlrev_b32 v{u+2*q}, 16, v{x+q}"); k(f"v_and_b32 v{u+2*q+1}, s{sMASK}, v{x+q}")
        for q in range(8): k(f"v_pk_fma_f32 {v(16*o+2*q,2)}, {v(16*o+2*q,2)}, {st}, {st} op_sel:[0,1,0] op_sel_hi:[1,1,0]")
    gemv_compute(64, 192, "B", True)
    put(k, kinit)
    stamp(k, "stats")
    k.wait_all(vm=False)
    k(f"s_lshl_b32 s{sT1}, s{sFB}, 4"); k(f"s_sub_u32 s{sT1}, s{sT1}, s{sFB}")
    k(f"v_mov_b32 v{UT}, 0")
    k(f"s_mov_b32 s{sT2}, 0")
    k.label("POLL")
    k(f"s_add_u32 s{sT1}, s{sT1}, 1")
    k(f"s_and_b32 s{sT0}, s{sT1}, 15"); k("s_cbranch_scc1 POLLR")
    k(f"buffer_load_dword v{UT+1}, v{UT}, s[20:23], 0 offen sc1")
    k(f"v_readfirstlane_b32 s{sT0}, v{UT+1}")
    k(f"s_cmp_ge_u32 s{sT0}, 0x100"); k(f"s_cselect_b32 s{sT2}, 1, 0")
    k(f"s_cmp_gt_u32 s{sT1}, 0x8000"); k(f"s_cselect_b32 s{sT2}, 1, s{sT2}")
    k.label("POLLR")
    k(f"buffer_load_dwordx4 {v(160,4)}, v{MX+4}, s[24:27], s{sE2} offen sc1")
    k(f"v_xor_b32 v{UT+2}, v160, v{MX}")
    for j in range(1, 4): k(f"v_bitop3_b32 v{UT+2}, v{160+j}, v{MX+j}, v{UT+2} bitop3:0x28")
    k(f"v_and_b32 v{UT+2}, 1, v{UT+2}"); k(f"v_cmp_eq_u32 vcc, 0, v{UT+2}"); k("s_cmp_lg_u64 vcc, 0")
    k(f"s_cselect_b32 s{sT2}, s{sT2}, 1")
    k(f"s_cmp_lg_u32 s{sE0}, 0"); k("s_cbranch_scc1 NOARR")
    k("s_mov_b64 exec, 1"); k(f"v_mov_b32 v{UT+3}, 1")
    k(f"buffer_atomic_add v{UT+3}, v{UT}, s[20:23], 0 offen")
    k("s_mov_b64 exec, -1")
    k(f"s_mov_b32 s{sE0}, 1")
    k.label("NOARR")
    k(f"s_cmp_lg_u32 s{sT2}, 0"); k("s_cbranch_scc1 POLLED")
    if P["PFK"]:
        k(f"s_cmp_lg_u32 s{sT1}, 1"); k("s_cbranch_scc1 NOPFK")
        k("s_cmp_lt_u32 s2, 192"); k("s_cbranch_scc1 NOPFK")
        k.srd(64, 42, 8 * 2048 * 256)
        k(f"s_bfe_u32 s{sT0}, s2, 0x30003"); k(f"s_lshl_b32 s{sT0}, s{sT0}, 2"); k(f"s_add_u32 s{sT0}, s{sT0}, s{sW}"); k(f"s_lshl_b32 s{sT0}, s{sT0}, 12")
        k(f"s_and_b32 s3, s2, {NG-1}"); k(f"s_lshl_b32 s3, s3, {19+lg2(G)}"); k(f"s_add_u32 s{sT0}, s{sT0}, s3"); k(f"s_add_u32 s{sT0}, s{sT0}, {1536*256}")
        n = 0
        for gi in range(G):
            for srd in (12, 64)[:P["PFK"]]:
                for j in range(4): k(f"buffer_load_dwordx4 {a(4*n,4)}, v{VL16}, s[{srd}:{srd+3}], s{sT0} offen offset:{1024*j}"); n += 1
            k(f"s_add_u32 s{sT0}, s{sT0}, 0x80000")
        k.label("NOPFK")
    if P["SLEEP"]: k(f"s_sleep {P['SLEEP']}")
    k("s_branch POLL")
    k.label("POLLED")
    if P.get("DG"): stamp(k, "go")
    for j in range(4): k(f"v_and_b32 v{160+j}, -2, v{160+j}")
    k(f"s_lshl_b32 s{sT0}, s{sW}, 10"); k(f"v_add_u32 v{UT+1}, s{sT0}, v{VL16}")
    k(f"ds_write_b128 v{UT+1}, {v(160,4)} offset:{L_M}")
    for cb in range(2):
        for m_ in range(2):
            for q in range(2): k(f"ds_read_b128 {v(128+16*cb+8*m_+4*q,4)}, v{VM} offset:{L_M+512*(1-m_)+256*cb+16*q}")
    stamp(k, "poll")
    k.srd(20, 46, 4096 * 1024)
    put(k, a_reads(0, "Q"))
    for o in range(8):
        for cb in range(2):
            u = 16 * o + 8 * cb; cn = 128 + 16 * cb
            for q in range(4): k(f"v_pk_fma_f32 {v(u+2*q,2)}, {v(u+2*q,2)}, {v(cn+2*q,2)}, {v(cn+8+2*q,2)}")
            for q in range(4): k(f"v_cvt_pk_bf16_f32 v{u+q}, v{u+2*q}, v{u+2*q+1}")
        for cb in range(2): k(f"ds_write_b128 v{HW+cb}, {v(16*o+8*cb,4)} offset:{32768*(o>>2)+128*(o&3)}", token="hw")
    put(k, [w_dma(s_, "Q") for s_ in range(P["WPRE"], 4)])
    fr = lambda f: FR + 4 * (f % 8)
    def rdK(f, s_, off): return [f"ds_read_b128 {a(fr(f),4)}, v{VK+s_} offset:{off}"]
    def rdV(f, i, off): return [f"ds_read_b64_tr_b16 {a(fr(f)+2*u,2)}, v{VV+i%4} offset:{off+4096*(i//4)+2048*u}" for u in range(2)]
    def b_reads(step):
        return [f"ds_read_b128 {a(BF+8*(step%2)+4*rt,4)}, v{VLO if step & 1 else VLIN} offset:{1024*step+32768*rt}" for rt in range(2)]
    k.wait("hw"); k("s_barrier")
    stamp(k, "mod")
    for _ in range(P.get("DLY0", 0)): k("s_sleep 38")
    put(k, b_reads(0))
    def g_mfma(which, st):
        return [f"v_mfma_f32_32x32x16_bf16 {v(ACC+32*a_+16*rt,16)}, {a(aset(which,st)+4*a_,4)}, {a(BF+8*(st%2)+4*rt,4)}, {'0' if st == 0 else v(ACC+32*a_+16*rt,16)}"
                for a_ in range(4) for rt in range(2)]
    class Off:
        def __init__(s_, sc, o): s_.sc, s_.o = sc, o
        def pin(s_, g, x, end=False): s_.sc.pin(g + s_.o, x, end)
        def add(s_, ops, g0, g1, prio=0): s_.sc.add(ops, g0 + s_.o, g1 + s_.o, prio)
    def gemm(which, extra, nr, nd):
        sc = Sched(256)
        mf = []
        for st in range(32):
            if st + 1 < 32:
                sc.add(b_reads(st + 1), 8 * st + (1 if st % 8 == 7 else 0), 8 * st + 4, prio=1)
                sc.pin(8 * st + 7, L(lambda st=st: k.wait_regs(a(aset(which, st + 1), 16), a(BF + 8 * ((st + 1) % 2), 8))), end=True)
            mf += g_mfma(which, st)
        R = len(ASET[which])
        g0 = 0
        td = {}
        first = [j for j in range(nd, min(nr + 4, 32))]
        pd = 8
        for i, j in enumerate(first):
            sc.add(w_dma(j, which), pd * i, pd * (i + 1)); td[j] = pd * (i + 1)
        tstart = max(pd * len(first) - (pd if first else 0), 8 * (nr - R + 1), 0)
        if first and nr in td: tstart = max(tstart, td[nr] + 12)
        nun = 32 - nr
        tr = {j: int(tstart + (j - nr) * (240 - tstart) / (nun - 1)) for j in range(nr, 32)}
        for j in range(nr, 32):
            assert tr[j] >= 8 * (j - R + 1) and tr[j] <= 8 * (j - 1), (j, tr[j])
            sc.add(a_reads(j, which), tr[j], tr[j] + 5, prio=1)
            if j + 4 < 32 and j + 4 >= nd and j + 4 not in td:
                lo = max(tr[j + 1], max(td.values()) if td else 0); hi = max(tr[j + 2], lo + 6)
                sc.add([L(lambda j=j: k.wait_regs(a(aset(which, j), 16)))] + w_dma(j + 4, which), lo, hi); td[j + 4] = hi
        sc.last_dma = max(td.values())
        for c in range(4): extra(c)(Off(sc, 64 * c), sc.last_dma - 192)
        i0 = len(k.items)
        for g_, (m, f_) in enumerate(zip(mf, sc.run())):
            k(m); put(k, f_)
            if g_ % 64 == 63 and g_ < 255: stamp(k, f"q{g_//64}" + ("o" if which == "O" else ""))
            if g_ == 191: i1 = len(k.items)
        X = P.get("DBG" + which, 0)
        if X:
            def keep(it):
                if it.kind in ("label", "raw"): return True
                if X & 1 and it.mn == "s_barrier": return False
                if X & 4 and it.kind in ("valu", "trans"): return False
                if X & 8 and it.kind == "vmem": return False
                if X & 16 and it.mn.startswith("ds_write"): return False
                if X & 32 and it.mn.startswith("ds_read_b128") and it.ops[0].startswith("v"): return False
                return True
            k.items[i0:i1] = [it for it in k.items[i0:i1] if keep(it)]
    def qepi(a_):
        return [f"v_cvt_pk_bf16_f32 v{Q+16*a_+8*(j//4)+4*rt+j%4}, v{ACC+32*a_+16*rt+2*j}, v{ACC+32*a_+16*rt+2*j+1}" for rt in range(2) for j in range(8)]
    def qx(c):
        def f(sc, ld):
            if c == 3:
                sc.pin(0, L(lambda: k.srd(16, 42, 8 * 2048 * 256), 16))
                assert ld <= 40, ld
                vp = [f"buffer_load_dwordx4 {a(192+8*i+4*j,4)}, v{VDV}, s[16:19], s{(sO0, sO1)[i]} offen offset:{1024*j}" for i in range(2) for j in range(2)] if P["VP"] else []
                if P["KPOS"]:
                    kp = [f"buffer_load_dwordx4 {a(208+8*i+4*j,4)}, v{VDK+j}, s[12:15], s{(sO0, sO1, sO2)[i]} offen offset:{1024*j}" for i in range(3) for j in range(2)]
                    sc.add(kp + vp, P["KPOS"], P["KPOS"] + 8); vp = []
                if not P["KEARLY"]: sc.add([x for d in kfirst for x in d] + vp, ld, ld + 12)
                ov = [[f"s_lshl_b32 s{sT0}, s{sG}, 19", f"s_add_u32 s{sT0}, s{sT0}, s{sW256}"],
                      f"v_and_b32 v{VDW+1}, 15, v{LN_}", f"v_lshlrev_b32 v{VDW+2}, 1, v{ROWL}", f"v_xor_b32 v{VDW+1}, v{VDW+1}, v{VDW+2}",
                      f"v_lshlrev_b32 v{VDW}, 10, v{ROWL}", f"v_lshl_add_u32 v{VDW}, v{VDW+1}, 4, v{VDW}", f"v_xor_b32 v{VDW+2}, 128, v{VDW}",
                      f"v_add_u32 v{VDW}, s{sT0}, v{VDW}", f"v_add_u32 v{VDW+2}, s{sT0}, v{VDW+2}",
                      f"v_add_u32 v{VDW+1}, 3072, v{VDW}", f"v_add_u32 v{VDW+3}, {3*3072}, v{VDW+2}", f"v_add_u32 v{VDW+2}, {2*3072}, v{VDW+2}",
                      [f"s_and_b32 s{sR8}, s{sROT}, 30", f"s_lshl_b32 s{sKhi}, s{sR8}, 14"]]
                sc.add(ov, ld + 1, 58)
                NA1 = P["F1R"] // 2; W1_ = 3584 // NA1; assert NA1 == 4
                nA2 = 32 // P["F2R"]; NA2 = 8 // nA2; rows2 = 8 // nA2
                ps = [L(lambda: k.srd(40, 64, 512 * 3584), 16), L(lambda: k.srd(44, 66, 512 * 3584), 16),
                      [f"s_lshr_b32 s66, s2, 3", f"s_lshl_b32 s66, s66, 2", f"s_add_u32 s66, s66, s{sW}"],
                      [f"s_mul_i32 s64, s66, {4*3584}", f"s_and_b32 s3, s2, 3", f"s_lshl_b32 s67, s3, 9"], ["s_add_u32 s64, s64, s67", f"s_mul_i32 s65, s66, {14*1024}"],
                      ["s_lshl_b32 s3, s3, 7", "s_sub_u32 s3, 1536, s3"],
                      [f"s_and_b32 s67, s2, {NA2-1}", f"s_mul_i32 s67, s67, {128*nA2}", "s_add_u32 s65, s65, s67"],
                      [f"s_lshl_b32 s66, s{sROT}, 14", f"s_lshl_b32 s67, s{sG}, 19", "s_add_u32 s66, s66, s67"], [f"s_lshl_b32 s67, s{sW}, {12+lg2(G)}", "s_add_u32 s66, s66, s67"],
                      f"v_min_u32 v{VX}, 55, v{LN_}", f"v_lshlrev_b32 v{VX}, 4, v{VX}", f"v_mad_u32_u24 v{VX}, v{h_}, s3, v{VX}",
                      f"v_lshrrev_b32 v{VX+1}, {lg2(8*nA2)}, v{LN_}", f"v_lshlrev_b32 v{VX+1}, 10, v{VX+1}", f"v_and_b32 v{tm}, {8*nA2-1}, v{LN_}", f"v_lshl_add_u32 v{VX+1}, v{tm}, 4, v{VX+1}"]
                sc.add(ps, 2, 32)
                sc.pin(ld + 1, L(lambda: k.srd(8, 4, 1792 * 1024), 16))
                sc.pin(56, L(lambda: (k.wait("K"), k.wait_all(vm=False), k("s_barrier")), 8))
                sc.add([rdK(f, f, L_K + 16384 + 8192) for f in range(4)], 56, 60, prio=1)
                sc.add(kv_dma("V", L_V, sO0) + kv_dma("V", L_V + 8192, sO1), 57, 62)
                sc.add(qepi(0), 61, 64)
                sc.pin(58, [f"v_add_u32 v{VLIN}, {L_H}, v{VL16}", f"v_add_u32 v{VLO}, {L_H}, v{VL16}"])
        return f
    gemm("Q", qx, 1, 4)
    stamp(k, "qgemm")
    def qk(f, s_, qt, buf, zero):
        d = v(S + 32 * buf + 16 * qt, 16)
        c = d if s_ else ("0" if zero else v(CI + 16 * qt, 16))
        return f"v_mfma_f32_32x32x16_bf16 {d}, {a(fr(f),4)}, {v(Q+8*s_+4*qt,4)}, {c}"
    def pv(f, i, qt, buf, zero=False):
        d = a(O + 32 * (i % 4) + 16 * qt, 16)
        return f"v_mfma_f32_32x32x16_bf16 {d}, {a(fr(f),4)}, {v(S+32*buf+16*qt+8*(i//4),4)}, {'0' if zero else d}"
    def sreg(buf, e): return S + 32 * buf + 16 * ((e >> 3) & 1) + 8 * (e >> 4) + (e & 7)
    def sm(buf, e, addci=False):
        o = []
        if e < 32:
            if addci: o.append(f"v_add_f32 v{sreg(buf,e)}, v{sreg(buf,e)}, v{CI+16*((e>>3)&1)}")
            o.append(f"v_exp_f32 v{sreg(buf,e)}, v{sreg(buf,e)}")
        if e >= 1:
            p = e - 1
            o.append(f"v_add_f32 v{LS+((p>>3)&1)}, v{LS+((p>>3)&1)}, v{sreg(buf,p)}")
            if p & 1:
                o.append(f"v_cvt_pk_bf16_f32 v{sreg(buf,p&~7)+(p&7)//2}, v{sreg(buf,p-1)}, v{sreg(buf,p)}")
        return o
    def wgrp(j): return L(lambda: k.wait_regs(a(FR + 16 * (j % 2), 16)))
    def qk0(epi):
        wgrp(0)()
        for s_ in range(8):
            ep = qepi(s_ // 2 + 1)[8 * (s_ & 1):8 * (s_ & 1) + 8] if epi and s_ < 6 else []
            rd = [rdK(f + 4, f + 4, L_K + 16384 + 8192) if f < 4 else rdK(f + 4, f - 4, L_K) for f in ([2*s_, 2*s_+1] if s_ < 2 else [2*s_-4, 2*s_-3] if 4 <= s_ < 6 else [])]
            k(qk(s_, s_, 0, 0, True)); put(k, rd[:1]); put(k, ep[:4])
            k(qk(s_, s_, 1, 0, True)); put(k, rd[1:]); put(k, ep[4:])
            if s_ % 4 == 3: wgrp(s_ // 4 + 1)()
    qk0(True)
    k(f"s_cmp_lg_u32 s{sFB}, 0"); k("s_cbranch_scc1 FB_MAX")
    k.label("IT0")
    def maxops(buf, dst):
        o = []
        for qt in range(2):
            b = S + 32 * buf + 16 * qt; t = dst + qt
            o.append(f"v_max3_f32 v{t}, v{b}, v{b+1}, v{b+2}")
            for i in range(3, 15, 2): o.append(f"v_max3_f32 v{t}, v{t}, v{b+i}, v{b+i+1}")
            o.append(f"v_max_f32 v{t}, v{t}, v{b+15}")
        return [x for pr in zip(o[:8], o[8:]) for x in pr]
    def xhalf_max(t, t2):
        return [f"v_mov_b32 v{t2}, v{t}", f"v_mov_b32 v{t2+1}, v{t+1}", f"v_permlane32_swap_b32 v{t}, v{t2}", f"v_permlane32_swap_b32 v{t+1}, v{t2+1}",
                f"v_max_f32 v{t}, v{t}, v{t2}", f"v_max_f32 v{t+1}, v{t+1}, v{t2+1}"]
    def flat(x): return [y for z in x for y in z]
    def iteration(par, first=False, last=False, extra=None):
        hb = 16384 * par; nb = 16384 * (1 - par)
        mf = []
        phs = [0, 1, 3] if last else [0, 1, 2, 3]
        n = 16 * len(phs)
        sc = Sched(n)
        frs = []
        for q_, ph in enumerate(phs):
            for g in range(16):
                f = 8 * q_ + g // 2; qt = g & 1; i = g // 2
                if ph == 0: mf.append(qk(f, i, qt, 1, first))
                elif ph == 1: mf.append(pv(f, i, qt, 0, first and i < 4))
                elif ph == 2: mf.append(qk(f, i, qt, 0, False))
                else: mf.append(pv(f, i, qt, 1))
            for i in range(8): frs.append((ph, i))
        ng = len(frs) // 4
        for j in range(1, ng):
            rd = []
            for f in range(4 * j, 4 * j + 4):
                ph, i = frs[f]
                rd += rdK(f, i, hb + 8192 * (ph // 2)) if ph % 2 == 0 else rdV(f, i, hb + 8192 * (ph // 2))
            g0 = 8 * (j - 1)
            if first and j == 2: sc.pin(g0 + 1, L(lambda: (k.wait("V"), k("s_barrier")), 8)); g0 += 1
            sc.add(rd, g0, 8 * (j - 1) + 6, prio=1)
            sc.pin(8 * j - 1, wgrp(j), end=True)
        dm = [nxt(sO1, sO2), kv_dma("V", L_V + nb, sO2), kv_dma("K", L_K + nb, sO1), kv_dma("V", L_V + nb + 8192, sO1), nxt(sO2, sO1), kv_dma("K", L_K + nb + 8192, sO2)]
        dm = [dm[0]] + dm[1] + dm[2] + dm[3] + [dm[4]] + dm[5]
        if first:
            sc.add(dm, 24, 44)
            mx = maxops(0, MX) + xhalf_max(MX, MX + 2)
            mx += [[f"s_cmp_lg_u32 s{sFB}, 0", "s_cselect_b64 vcc, -1, 0"]]
            mx += [f"v_sub_f32 v{CI+16*qt}, {f32(-float(P['BIAS']))}, v{MX+qt}" for qt in range(2)]
            mx += [f"v_cndmask_b32 v{CI+16*qt}, v{CI+16*qt}, v{MX+4+qt}, vcc" for qt in range(2)]
            sc.add(mx + flat(sm(0, e, True) for e in range(17)), 1, 16)
            sc.add(flat(sm(0, e, True) for e in range(17, 33)), 16, 23)
            sc.add([f"v_mov_b32 v{CI+16*qt+i}, v{CI+16*qt}" for qt in range(2) for i in range(1, 16)], 23, 31)
            sc.add(flat(sm(1, e, True) for e in range(33)), 23, 54)
            sc.add(flat(sm(0, e) for e in range(12)), 54, 64)
        else:
            for e in range(12, 33): sc.pin(e - 12, sm(0, e))
            if last:
                sc.add(flat(sm(1, e) for e in range(17)), 19, 31)
                sc.add(flat(sm(1, e) for e in range(17, 33)), 31, 39)
            else:
                sc.add(dm, 1, 40)
                for e in range(33): sc.pin(20 + e, sm(1, e))
                for e in range(12): sc.pin(52 + e, sm(0, e))
        if not last:
            sc.pin(56, L(lambda: (k.wait("K", "V"), k("s_barrier")), 8))
            sc.add([rdK(f, f, nb) for f in range(4)], 56, 61, prio=1)
            sc.pin(63, wgrp(0), end=True)
        if extra: extra(sc)
        for m, f_ in zip(mf, sc.run()): k(m); put(k, f_)
    iteration(0, first=True)
    stamp(k, "it0")
    rows2 = 8 // (32 // P["F2R"])
    def xpf(half):
        def f(sc):
            if not P["PF1"]: return
            n = 8 * half
            if half == 0:
                pf = [[f"buffer_load_dwordx4 {a(192+4*(n+j),4)}, v{VL16}, s[20:23], s66 offen offset:{1024*j}"] for j in range((4 * G + 2) // 3)] + [f"s_add_u32 s66, s66, {1024*((4*G+2)//3)}"]
                pf += [[f"buffer_load_dwordx4 {a(192+4*(n+3+j),4)}, v{VX+1}, s[8:11], s65 offen", f"s_add_u32 s65, s65, {1024*rows2}"] for j in range((14 // rows2 + 2) // 3)]
            else:
                pf = [[f"buffer_load_dwordx4 {a(192+4*(n+2*j+m_),4)}, v{VX}, s[{40+4*m_}:{43+4*m_}], s64 offen"] + ([f"s_add_u32 s64, s64, 3584"] if m_ else []) for j in range(2) for m_ in range(2)]
            sc.add(pf, 40, 56)
        return f
    k.loop(sST, 3, lambda: (iteration(1, extra=xpf(0)), iteration(0, extra=xpf(1))), align=3)
    stamp(k, "it1-6")
    OM = MX + 4
    def finalize(dt, qt):
        b = Q + 16 * ((2 * dt + qt) % 4)
        o = [f"v_accvgpr_read_b32 v{b+i}, a{O+32*dt+16*qt+i}" for i in range(16)]
        if dt == 0: o += [f"v_max3_f32 v{OM+qt}, |v{b+i}|, |v{b+i+1}|, v{OM+qt}" for i in range(0, 16, 2)]
        o += [f"v_pk_mul_f32 {v(b+i,2)}, {v(b+i,2)}, {v(RL,2)} op_sel:[0,{qt}] op_sel_hi:[1,{qt}]" for i in range(0, 16, 2)]
        for sp in range(2):
            o += [f"v_cvt_pk_bf16_f32 v{b+8*sp+j}, v{b+8*sp+2*j}, v{b+8*sp+2*j+1}" for j in range(4)]
            o.append(L(lambda sp=sp: k(f"ds_write_b128 v{STT+dt}, {v(b+8*sp,4)} offset:{32768*qt+1024*sp}", token="hw"), 22, "d"))
        return o
    f0 = finalize(0, 0); f1 = finalize(0, 1)
    def o_dma(st):
        slot = st % 6
        o = [f"s_add_u32 m0, s{sRING}, {4096*slot+0x100000-0x100000}" if slot < 4 else f"s_add_u32 m0, s31, {L_K+16384*(slot-4)}",
             f"buffer_load_dwordx4 v{VDW}, s[20:23], s{sKhi} offen lds"]
        for n in range(1, 4):
            o.append(L(lambda n=n: k(f"buffer_load_dwordx4 v{VDW+n}, s[20:23], s{sKhi} offen offset:{1024*n} lds", token=f"W{slot}"), 10, "v"))
        o.append(f"s_add_u32 s{sKhi}, s{sKhi}, 16384")
        if st & 1: o.append(f"s_and_b32 s{sKhi}, s{sKhi}, 0x7ffff")
        return o
    OA = [0, 32]; OB = [160, 176]
    OA = [192, 224]
    V16 = VW
    def oa_reads(u, half):
        s0 = 2 * (u % 3)
        rd = [f"ds_read_b64_tr_b16 {a(OA[u%2]+8*p+4*e+2*uu,2)}, v{(V16 if s0 < 4 else VV)+p} offset:{(4096*s0 if s0 < 4 else 0)+1024*uu+8*e}" for p in range(2 * half, 2 * half + 2) for e in range(2) for uu in range(2)]
        return [[L(lambda: k.wait(f"W{s0}", f"W{s0+1}")), rd[0]]] + rd[1:]
    def ob_reads(u):
        return [f"ds_read_b128 {a(OB[u%2]+4*r4,4)}, v{VLO} offset:{2048*u+32768*(r4>>1)+256*(r4&1)}" for r4 in range(4)]
    def x_last(sc):
        sc.add([f"s_lshl_b32 s31, s{sW}, 12"] + flat(o_dma(s_) for s_ in range(5)), 0, 38)
        sc.add(o_dma(5), 41, 48)
        fin = [f"v_mov_b32 v{MX}, v{LS}", f"v_mov_b32 v{MX+1}, v{LS+1}", f"v_mov_b32 v{OM}, 0", f"v_mov_b32 v{OM+1}, 0",
               f"v_permlane32_swap_b32 v{LS}, v{MX}", f"v_permlane32_swap_b32 v{LS+1}, v{MX+1}",
               f"v_add_f32 v{LS}, v{LS}, v{MX}", f"v_add_f32 v{LS+1}, v{LS+1}, v{MX+1}",
               f"v_rcp_f32 v{RL}, v{LS}", f"v_rcp_f32 v{RL+1}, v{LS+1}", f"v_max_f32 v{MX+6}, v{LS}, v{LS+1}"]
        adr = [[f"s_lshl_b32 s57, s{sW}, 3", f"s_sub_u32 s57, s57, s{sR8}"]]
        for dt in range(4):
            adr += [[f"s_add_u32 s56, s57, {2*dt}", "s_and_b32 s56, s56, 31", "s_lshl_b32 s56, s56, 10"], f"v_add_u32 v{STT+dt}, s56, v{VLIN}"]
        adr += [f"v_lshl_add_u32 v{tm}, v{ROWL}, 3, v{r_}", f"v_lshlrev_b32 v{tm}, 8, v{tm}", f"v_and_b32 v{tm+1}, 1, v{LN_}", f"v_lshl_add_u32 v{tm}, v{tm+1}, 4, v{tm}",
                f"v_add_u32 v{tm}, s{sRING}, v{tm}", f"v_lshl_add_u32 v{tm+1}, v{gn}, 2, v{r_}", f"v_bfe_u32 v{tm+2}, v{LN_}, 1, 1", f"v_xor_b32 v{tm+1}, v{tm+1}, v{tm+2}",
                f"v_lshl_add_u32 v{V16}, v{tm+1}, 5, v{tm}"] + [f"v_xor_b32 v{V16+p}, {64*p}, v{V16}" for p in range(1, 4)]
        adr += [f"v_and_b32 v{tm+1}, 15, v{LN_}", f"v_lshlrev_b32 v{tm+1}, 4, v{tm+1}", f"v_lshl_add_u32 v{HW}, v{ROWL}, 9, v{tm+1}", f"v_add_u32 v{VLO}, {L_H}, v{HW}"]
        sc.add(adr, 0, 19)
        sc.add(fin, 39, 43)
        sc.pin(40, L(lambda: k("s_barrier")))
        sc.add(oa_reads(0, 0), 40, 46, prio=1)
        sc.add(f0[:16] + f1[:12], 43, 48)
    iteration(1, last=True, extra=x_last)
    stamp(k, "it7")
    k(f"s_load_dwordx2 s[46:47], s[0:1], {A_X}")
    k(f"s_load_dwordx2 s[48:49], s[0:1], {A_OUT}")
    put(k, oa_reads(0, 1))
    k(f"s_sub_u32 s3, s31, s{sRING}"); k(f"v_mul_u32_u24 v{tm}, 12288, v{h_}"); k(f"v_add_u32 v{tm}, s3, v{tm}")
    for p in range(4): k(f"v_add_u32 v{VV+p}, v{V16+p}, v{tm}")
    put(k, f0[16:] + f1[12:])
    for dt in range(1, 4):
        for qt in range(2): put(k, finalize(dt, qt))
    k.wait_all(vm=False); k("s_barrier")
    put(k, ob_reads(0))
    stamp(k, "owrite")
    sc = Sched(512, budget=P['OBUD']); mf = []
    for u in range(16):
        g0 = 32 * u
        if u + 1 < 16:
            sc.add(ob_reads(u + 1) + oa_reads(u + 1, 0) + oa_reads(u + 1, 1), g0 + P["ORD0"], g0 + 28, prio=1)
            sc.pin(g0 + 31, L(lambda u=u: k.wait_regs(a(OA[(u + 1) % 2], 32), a(OB[(u + 1) % 2], 16))), end=True)
        if u + 3 < 16: sc.add(o_dma(2 * u + 6) + o_dma(2 * u + 7), g0, g0 + P["ODE"])
        for t_ in range(8):
            for r4 in range(4):
                d = v(ACC + 32 * (t_ // 2) + 8 * r4 + 4 * (t_ % 2), 4)
                mf.append(f"v_mfma_f32_16x16x32_bf16 {d}, {a(OA[u%2]+4*t_,4)}, {a(OB[u%2]+4*r4,4)}, {'0' if u == 0 else d}")
    misc = [f"v_min_f32 v{OM}, v{OM}, v{OM+1}", f"v_cmp_ngt_f32 vcc, {f32(2.0**120)}, v{MX+6}", "s_mov_b64 s[62:63], vcc",
            f"v_cmp_gt_f32 vcc, {f32(2.0**-112 if not P['FORCE_FB'] else 2.0**100)}, v{OM}", "s_or_b64 s[62:63], s[62:63], vcc",
            f"v_mov_b32 v{MX+1}, s{sRING}", f"v_and_b32 v{MX+7}, 3, v{LN_}", f"v_lshlrev_b32 v{MX+7}, 14, v{MX+7}", f"v_add_u32 v{MX+7}, {L_W}, v{MX+7}", f"v_mov_b32 v{MX+2}, 0", f"v_mov_b32 v{MX+3}, 0x7f800000",
            f"s_lshl_b32 s{sT2}, s{sG}, 21", f"s_lshl_b32 s{sT1}, s{sRB}, 16", f"s_add_u32 s{sT2}, s{sT2}, s{sT1}",
            f"s_lshl_b32 s{sT1}, s{sW}, 13", f"s_add_u32 s{sT2}, s{sT2}, s{sT1}", f"s_add_u32 s{sT2}, s{sT2}, {WS_P:#x}",
            "s_mov_b32 s12, s46", "s_and_b32 s13, s47, 0xffff", "s_mov_b32 s14, 0x200000", "s_mov_b32 s15, 0x20000",
            "s_mov_b32 s16, s68", "s_and_b32 s17, s69, 0xffff", "s_mov_b32 s18, 0x100", "s_mov_b32 s19, 0x20000",
            f"s_lshl_b32 s5, s{sRB}, 3", f"s_add_u32 s5, s5, s{sG}", "s_lshl_b32 s5, s5, 13",
            f"v_and_b32 v{tm}, 7, v{LN_}", f"v_lshrrev_b32 v{tm+1}, 3, v{LN_}", f"v_lshl_add_u32 v{tm+1}, s{sW}, 4, v{tm+1}",
            f"v_lshlrev_b32 v{VK}, 10, v{tm}", f"v_lshl_add_u32 v{VK}, v{tm+1}, 4, v{VK}", f"v_lshlrev_b32 v{VK+1}, 5, v{tm+1}",
            f"buffer_load_dword v{VK+2}, v{MX+2}, s[16:19], 0 offen sc1"]
    sc.add(misc, 8, 260)
    def cspin():
        k("s_mov_b32 s3, 0"); k("s_branch CCHK"); st = dict(k.vm)
        k.label("CPOLL")
        k(f"buffer_load_dword v{VK+2}, v{MX+2}, s[16:19], 0 offen sc1"); k.wait_all(lg=False)
        k.label("CCHK"); k.vm = st
        k("s_add_u32 s3, s3, 1"); k(f"v_cmp_gt_u32 vcc, 0x100, v{VK+2}")
        k("s_cmp_gt_u32 s3, 0x8000"); k("s_cbranch_scc1 CDONE"); k("s_cbranch_vccnz CPOLL")
        k.label("CDONE")
    sc.pin(417, L(cspin, 24))
    xm = [f"buffer_load_dwordx4 {v(128+4*i,4)}, v{VK}, s[12:15], s5 offen offset:{128*i}" for i in range(2)]
    for base, m_ in ((136, 2), (152, 4), (168, 3)):
        xm += [f"s_mov_b32 s4, {WS_MOD + m_*2048}"] + [f"buffer_load_dwordx4 {v(base+8*i+4*hh,4)}, v{VK+1}, s[24:27], s4 offen offset:{256*i+16*hh} sc1" for i in range(2) for hh in range(2)]
    sc.add(xm, 419, 490)
    for m, f_ in zip(mf, sc.run()): k(m); put(k, f_)
    stamp(k, "ogemm")
    for r4 in range(4):
        k(f"v_cmp_nlt_f32 vcc, |v{ACC+8*r4}|, v{MX+3}"); k("s_or_b64 s[62:63], s[62:63], vcc")
    k(f"s_cselect_b32 s{sT1}, 1, 0"); k(f"v_mov_b32 v{MX}, s{sT1}")
    k(f"ds_write_b32 v{MX+1}, v{MX}", token="fl")
    for p in range(4):
        if p == 1: k.wait("fl"); k("s_barrier"); k(f"ds_read_b32 v{STT}, v{MX+7}")
        for r4 in range(4):
            if r4 % 2 == 0: k(f"s_add_u32 s{sT1}, s{sT2}, {32768*(r4>>1) + 2048*p}")
            b = ACC + 32 * p + 8 * r4
            for j in range(4): k(f"v_cvt_pk_bf16_f32 v{b+j}, v{b+2*j}, v{b+2*j+1}")
            k(f"buffer_store_dwordx4 {v(b,4)}, v{HW}, s[24:27], s{sT1} offen offset:{256*(r4&1)} sc1", token="PST")
    k(f"v_cmp_lt_u32 vcc, s{sFB}, v{STT}")
    k("s_cbranch_vccnz FALLBACK")
    tail(sys.modules[__name__], k)
    stamp_flush(k, 0)
    k.label("END_attn"); k("s_endpgm")
    k.label("FALLBACK")
    k.wait_all(); k("s_barrier")
    k(f"s_mov_b32 s{sFB}, 1")
    k("s_nop 15")
    k("s_branch RESTART")
    k.label("FB_MAX")
    k.wait_all(); k("s_barrier")
    k(f"v_mov_b32 v{MX+4}, 0xff800000"); k(f"v_mov_b32 v{MX+5}, 0xff800000")
    def fbody():
        put(k, kv_dma("K", L_K, sO0) + nxt(sO0, sO0)); k.wait("K"); k("s_barrier")
        for s_ in range(8): put(k, rdK(s_, s_, L_K))
        for s_ in range(8):
            for qt in range(2): k(qk(s_, s_, qt, 0, True))
        put(k, maxops(0, MX))
        k(f"v_max_f32 v{MX+4}, v{MX+4}, v{MX}"); k(f"v_max_f32 v{MX+5}, v{MX+5}, v{MX+1}")
        k("s_barrier")
    k.loop(sST, 16, fbody)
    put(k, xhalf_max(MX + 4, MX + 2))
    for qt in range(2): k(f"v_sub_f32 v{MX+4+qt}, 0, v{MX+4+qt}")
    put(k, kfirst)
    k.wait_all(); k("s_barrier")
    for f in range(4): put(k, rdK(f, f, L_K + 16384 + 8192))
    qk0(False)
    k.wait_all()
    k("s_branch IT0")
    return k

from gen26_tail import tail

HEADER = open('adaLN_cond__sliding_block_cached__geglu_ffn__prompt.s.ref').read().split("; Override launch")[0]

if __name__ == "__main__":
    out = sys.argv[1] if len(sys.argv) > 1 else "k.s"
    me = sys.modules[__name__]
    ks = [gen_attn()]
    ks[-1].label("CODE_END")
    txt = emit(ks, header=HEADER)
    if P.get("SINGLE"): txt = txt.replace("; @launch kernel=" + KNAME + " ", "; @launch ")
    open(out, "w").write(txt)
    json.dump([[k.name, k.grid, k.block//64, k.stamps] for k in ks], open(out[:-2]+".json","w"))
    for k in ks: print(k.name, "regs(v,a,s)", k.used, "nops", k.n_nops, "misal", k.n_mis, "instrs", len(k.items))
```

```python
import sys, struct, math, os, json
from asmlib import *

def f32(x): return "0x%08x" % struct.unpack("<I", struct.pack("<f", x))[0]
LOG2E = 1.4426950408889634
CS = 128 ** -0.5
A_X, A_K, A_V, A_WQ, A_WO, B_X, A_WG, A_WU, A_WD, A_C, A_WM, A_OUT, A_DBG, A_WS = [8 * i for i in range(14)]
WS_MOD = 0x0
WS_GO = 0x18000
WS_FL = 0x20000
WS_ST = 0x10000
WS_P = 0x400000
WS_X1 = 0x1400000
WS_H2 = 0x1600000
WS_ACT = 0x1800000
WS_BYTES = 0x10000000
WS_DBG = 0x8000000
P = dict(STAMPS=0, G=2, ROT=1, F1R=8, F2R=8, PREF0=1, PREFC=1, PREFQ=1, PREFK=1, PORD=1, XPRE=0, TLBW=1, PBAR=3, WPOS=1, DEFER=1, SYNC=1, LFIRST=0, SLEEP=2, OSC=1, SLEEP2=4, FW1=6, FW2=20, F2PRE=12, QRD0=6, ORD0=0, ODE=32, OBUD=8, ROLE=0, VP=0, KPOS=0, PFK=0, GS=1, NHID=4, TOUCH=0, N0=4, QP0=10, QBURST=1, TW1=8, TWM=8, TB0=2, HEND=32, APRE=6, BLEAD=4, EEND=64, PUBA=76, WLAG=4, BCHK=10, TW2=5, HPRE=3, PSYS=0, WPRE=2, BURST=54, KEARLY=0, BIAS=100, FORCE_FB=0, PNT=0, PST=2, AST=2, PF1=1, PF2=1)
for kv in os.environ.get("GP", "").split(","):
    if kv: P[kv.split("=")[0]] = int(kv.split("=")[1])

def stamp(k, name):
    if not P["STAMPS"]: return
    SETS = {0: ("start", "mod", "qgemm", "it0", "it1-6", "owrite", "ogemm", "t_set", "end"), 1: ("start", "gemv", "stats", "poll", "mod", "qgemm", "end"),
            3: ("start", "t_set", "poll1", "x1", "poll2", "ffn1", "pub3", "poll3", "end"), 7: ("start", "end"), 6: ("start", "poll2", "passA", "ffn1", "pub3", "poll3", "ffn2", "end"), 4: ("start", "mod", "q0", "q1", "q2", "qgemm", "end"), 5: ("start", "owrite", "q0o", "q1o", "q2o", "ogemm", "end")}
    if name not in SETS[P.get("DG", 0)]: return
    i = len(k.stamps); k.stamps.append(name)
    assert i < 9
    k.sgpr = 102
    k("s_memtime s[80:81]"); k("s_memrealtime s[100:101]"); k("s_waitcnt lgkmcnt(0)")
    k(f"s_mov_b32 s{82+2*i}, s80"); k(f"s_mov_b32 s{83+2*i}, s100")
def stamp_begin(k):
    k.stamps = []
    if not P["STAMPS"]: return
    stamp(k, "start")
def stamp_flush(k, kidx):
    if not P["STAMPS"]: return
    stamp(k, "end")
    if P["STAMPS"] == 2:
        lab = k.newlabel("NODBG")
        k("s_mov_b64 exec, -1")
        k(f"s_xor_b32 s100, s2, {P.get('DWG', 200)}"); k("s_or_b32 s100, s100, s101"); k("s_cmp_lg_u32 s100, 0"); k(f"s_cbranch_scc1 {lab}")
        k(f"s_load_dwordx2 s[66:67], s[0:1], {A_DBG}")
        k.srd(60, 66, 256)
        k("v_mov_b32 v1, 0")
        n = len(k.stamps)
        for j in range(1, n):
            k(f"s_sub_u32 s100, s{77+2*j}, s77"); k("v_mov_b32 v0, s100")
            k(f"buffer_store_dword v0, v1, s[60:63], 0 offen offset:{4*j}")
        k(f"s_sub_u32 s100, s{76+2*(n-1)}, s76"); k("v_mov_b32 v0, s100")
        k(f"buffer_store_dword v0, v1, s[60:63], 0 offen offset:{4*n}")
        k.label(lab)
        return
    k(f"s_load_dwordx2 s[64:65], s[0:1], {A_WS}")
    k("s_mov_b64 exec, -1")
    k.srd(56, 64, WS_BYTES)
    k("s_lshl_b32 s100, s2, 3"); k("s_add_u32 s100, s100, s28"); k("s_lshl_b32 s100, s100, 8")
    k(f"s_add_u32 s100, s100, {WS_DBG + kidx*0x100000:#x}")
    k("v_mov_b32 v1, 0")
    for j, sr in enumerate([82 + i for i in range(2*len(k.stamps))]):
        k(f"v_mov_b32 v0, s{sr}")
        k(f"buffer_store_dword v0, v1, s[56:59], s100 offen offset:{4*j}")

def wave_id(k, sdst, vtmp):
    k(f"v_lshrrev_b32 v{vtmp}, 6, v0")
    k(f"v_readfirstlane_b32 s{sdst}, v{vtmp}")
def rowsum_8(k, val, tmp):
    k(f"v_add_f32_dpp v{val}, v{val}, v{val} row_ror:8 row_mask:0xf bank_mask:0xf")
    k(f"v_mov_b32 v{tmp}, v{val}"); k(f"v_permlane16_swap_b32 v{val}, v{tmp}"); k(f"v_add_f32 v{val}, v{val}, v{tmp}")
    k(f"v_mov_b32 v{tmp}, v{val}"); k(f"v_permlane32_swap_b32 v{val}, v{tmp}"); k(f"v_add_f32 v{val}, v{val}, v{tmp}")
def rnd(k, d, sreg): k(f"v_cvt_pk_bf16_f32 v{d}, 0, v{sreg}")
def lg2(x): return x.bit_length() - 1
def split2(k, sb, sA, sB, nA_per, nB_total, t0, t1):
    A_total = 256 // nB_total; NA = A_total // nA_per
    k(f"s_and_b32 s{t0}, s{sb}, 7"); k(f"s_lshr_b32 s{t1}, s{sb}, 3")
    k(f"s_and_b32 s{sA}, s{t0}, {NA-1}"); k(f"s_lshl_b32 s{sA}, s{sA}, {lg2(nA_per)}")
    k(f"s_and_b32 s{sB}, s{t1}, {nA_per-1}"); k(f"s_add_u32 s{sA}, s{sA}, s{sB}")
    k(f"s_lshr_b32 s{sB}, s{t0}, {lg2(NA)}"); k(f"s_lshl_b32 s{sB}, s{sB}, {lg2(32//nA_per)}")
    k(f"s_lshr_b32 s{t1}, s{t1}, {lg2(nA_per)}"); k(f"s_add_u32 s{sB}, s{sB}, s{t1}")
def lane_tr_parts(k, lane, r, c2, gn, h, tmp):
    k(f"v_bfe_u32 v{r}, v{lane}, 2, 2")
    k(f"v_and_b32 v{c2}, 1, v{lane}"); k(f"v_lshlrev_b32 v{c2}, 1, v{c2}")
    k(f"v_bfe_u32 v{tmp}, v{lane}, 1, 1"); k(f"v_or_b32 v{c2}, v{c2}, v{tmp}")
    k(f"v_bfe_u32 v{gn}, v{lane}, 4, 1")
    k(f"v_lshrrev_b32 v{h}, 5, v{lane}")

QS = CS * LOG2E
GK0 = 2 * math.sqrt(2 / math.pi) * LOG2E
GSC = (GK0 * 0.044715) ** (1 / 3)
KNAME = "adaLN_cond__sliding_block_cached__geglu_ffn__prompt_kernel"
def ln_stats(k, XF):
    k(f"v_pk_add_f32 v[10:11], {v(XF,2)}, {v(XF+2,2)}")
    for e in range(4, 16, 2): k(f"v_pk_add_f32 v[10:11], v[10:11], {v(XF+e,2)}")
    k("v_add_f32 v10, v10, v11")
    def allreduce(off):
        rowsum_8(k, 10, 11)
        k(f"ds_write_b32 v9, v10 offset:{off}", token="w"); k.wait("w"); k("s_barrier")
        k(f"ds_read_b128 {v(12,4)}, v8 offset:{off}")
        k("v_add_f32 v12, v12, v13"); k("v_add_f32 v14, v14, v15"); k("v_add_f32 v10, v12, v14")
    allreduce(0)
    k(f"v_mul_f32 v58, {f32(-1/512)}, v10"); k("v_mov_b32 v59, v58")
    for e in range(0, 16, 2): k(f"v_pk_add_f32 {v(XF+e,2)}, {v(XF+e,2)}, v[58:59]")
    k(f"v_pk_mul_f32 v[10:11], {v(XF,2)}, {v(XF,2)}")
    for e in range(2, 16, 2): k(f"v_pk_fma_f32 v[10:11], {v(XF+e,2)}, {v(XF+e,2)}, v[10:11]")
    k("v_add_f32 v10, v10, v11")
    allreduce(128)
    k(f"v_mov_b32 v11, {f32(1e-5)}"); k(f"v_fmac_f32 v11, {f32(1/512)}, v10")
    k("v_rsq_f32 v56, v11"); k("v_mov_b32 v57, v56")

def gen_ln2():
    k = Kernel("ln2_kernel", 256, 256, 256, vgpr=160, sgpr=64)
    k("s_cmp_ge_u32 s2, 256"); k("s_cbranch_scc1 END_ln2")
    stamp_begin(k)
    k(f"s_load_dwordx2 s[4:5], s[0:1], {A_X}")
    k(f"s_load_dwordx2 s[6:7], s[0:1], {A_WS}")
    k("v_and_b32 v1, 7, v0"); k("v_lshrrev_b32 v2, 3, v0"); k("v_lshrrev_b32 v6, 6, v0")
    k("v_and_b32 v7, 7, v2"); k("v_lshl_add_u32 v7, v6, 4, v7")
    k("v_lshlrev_b32 v3, 9, v7"); k("v_lshl_add_u32 v3, v1, 4, v3")
    k("v_add_u32 v2, 4096, v3")
    k("v_lshlrev_b32 v4, 10, v1"); k("v_lshl_add_u32 v4, v7, 4, v4")
    k("v_lshlrev_b32 v5, 5, v7")
    k("v_lshlrev_b32 v8, 4, v1"); k("v_lshl_add_u32 v9, v6, 2, v8")
    k("s_and_b32 s25, s2, 7"); k("s_lshl_b32 s25, s25, 5"); k("s_lshr_b32 s26, s2, 3"); k("s_add_u32 s25, s25, s26")
    k("s_lshl_b32 s20, s25, 13")
    k("s_lshr_b32 s21, s25, 2"); k("s_lshl_b32 s21, s21, 15"); k("s_and_b32 s22, s25, 3"); k("s_lshl_b32 s22, s22, 7")
    k("s_add_u32 s21, s21, s22")
    k(f"s_add_u32 s23, s21, {WS_P:#x}")
    k.srd(12, 6, WS_BYTES)
    X = 16; XF = 24; MV = 40; PB = 64
    for g in range(8):
        for i in range(2):
            k(f"buffer_load_dwordx4 {v(PB+8*g+4*i,4)}, v{3-i}, s[12:15], s23 offen" + (" nt" if P["PNT"] else ""))
        if g < 7: k("s_add_u32 s23, s23, 0x200000")
    k.srd(8, 4, 2048 * 1024)
    for i in range(2): k(f"buffer_load_dwordx4 {v(X+4*i,4)}, v4, s[8:11], s20 offen offset:{128*i}")
    k("v_mov_b32 v10, 0"); k("s_lshl_b32 s27, s2, 7"); k(f"s_add_u32 s27, s27, {WS_FL:#x}")
    k("buffer_store_dword v10, v10, s[12:15], s27 offen sc1")
    k("s_mov_b32 s24, 0xffff0000")
    def load_mod(base, m):
        k(f"s_mov_b32 s23, {WS_MOD + m*2048}")
        for i in range(2):
            for hh in range(2):
                k(f"buffer_load_dwordx4 {v(base+8*i+4*hh,4)}, v5, s[12:15], s23 offen offset:{256*i+16*hh}")
    def unpack(dst, src):
        k(f"v_lshlrev_b32 v{dst}, 16, v{src}"); k(f"v_and_b32 v{dst+1}, s24, v{src}")
    load_mod(MV, 2); load_mod(128, 4); load_mod(144, 3)
    for q in range(8): unpack(XF + 2 * q, PB + q)
    for g in range(1, 8):
        for q in range(8):
            unpack(10 + 2 * (q & 1), PB + 8 * g + q)
            k(f"v_pk_add_f32 {v(XF+2*q,2)}, {v(XF+2*q,2)}, {v(10+2*(q&1),2)}")
    for q in range(8):
        unpack(10, X + q)
        k(f"v_pk_fma_f32 v[10:11], {v(XF+2*q,2)}, {v(MV+2*q,2)}, v[10:11]")
        k(f"v_cvt_pk_bf16_f32 v{X+q}, v10, v11")
        unpack(XF + 2 * q, X + q)
    k(f"s_add_u32 s23, s21, {WS_X1:#x}")
    for i in range(2): k(f"buffer_store_dwordx4 {v(X+4*i,4)}, v{3-i}, s[12:15], s23 offen sc1")
    stamp(k, "x1")
    ln_stats(k, XF)
    stamp(k, "stats")
    for e in range(0, 16, 2):
        k(f"v_pk_mul_f32 {v(XF+e,2)}, {v(XF+e,2)}, v[56:57]")
        k(f"v_pk_fma_f32 {v(XF+e,2)}, {v(XF+e,2)}, {v(128+e,2)}, {v(144+e,2)}")
        k(f"v_cvt_pk_bf16_f32 v{MV+e//2}, v{XF+e}, v{XF+e+1}")
    k(f"s_add_u32 s23, s21, {WS_H2:#x}")
    for i in range(2): k(f"buffer_store_dwordx4 {v(MV+4*i,4)}, v{3-i}, s[12:15], s23 offen sc1")
    stamp_flush(k, 1)
    k.label("END_ln2"); k("s_endpgm")
    return k

def put(k, seq):
    for x in seq:
        if isinstance(x, list): put(k, x)
        elif callable(x): x()
        else: k(x)

def gen_attn():
    k = Kernel(KNAME, 256, 256, 163840, vgpr=256, agpr=256, sgpr=82)
    k.denorm32 = P.get("DEN", 3)
    L_K, L_H, L_V, L_W, L_M = 0, 32768, 32768, 98304, 16384
    ACC = 0; S = 0; CI = 64; Q = 128
    VK = 192; VV = 200; VW = 204; VDW = 208; VDK = 212; VDV = 214; VLIN = 215; VL16 = 216
    LS = 217; VLO = 219
    T = 220
    LN_, ROWL, GR16 = T, T + 1, T + 2
    r_, c2, gn, h_, tm = T + 3, T + 4, T + 5, T + 6, T + 7
    CH8 = T + 10; HW = T + 11
    VX = T + 13; VM = T + 15
    MX = T + 16
    STT = T + 24
    RL = T + 28; UT = T + 28
    O = 0; FR = 128; AF = 128; BF = 160
    sW, sG, sRB, sT0, sT1, sRING, sST, sFB, sROT, sT2 = 28, 29, 30, 32, 33, 34, 35, 39, 50, 51
    sE0, sE1, sE2 = 61, 62, 63
    sO0, sO1, sO2, sW2K, sW256, sKhi, sMASK, sCC, sR8 = 36, 37, 38, 52, 54, 55, 58, 59, 6
    TAB = 72
    def L(f, cost=4, mem=False):
        f.cost = cost; f.mem = mem; return f
    k("s_cmp_ge_u32 s2, 256"); k("s_cbranch_scc1 END_attn")
    stamp_begin(k)
    k(f"s_mov_b32 s{sFB}, 0")
    if P["PREFC"]:
        k("s_getpc_b64 s[56:57]")
        k.label("PCREF")
        k(f"s_lshr_b32 s{sT1}, s2, 3"); k(f"s_lshl_b32 s{sT1}, s{sT1}, 12")
        k("v_lshlrev_b32 v108, 4, v0"); k(f"v_add_u32 v108, s{sT1}, v108"); k("v_min_u32 v108, CODE_END-PCREF-16, v108")
        k("global_load_dwordx4 a[252:255], v108, s[56:57]")
    wave_id(k, sW, T)
    k(f"v_and_b32 v{LN_}, 63, v0")
    k.label("RESTART")
    k(f"s_load_dwordx4 s[8:11], s[0:1], {A_C}")
    k(f"s_load_dwordx2 s[4:5], s[0:1], {A_X}")
    k(f"s_load_dwordx4 s[68:71], s[0:1], {A_DBG}")
    k(f"s_load_dwordx8 s[40:47], s[0:1], {A_K}")
    if P["TOUCH"]:
        k(f"s_load_dwordx4 s[84:87], s[0:1], {A_WG}"); k(f"s_load_dwordx2 s[88:89], s[0:1], {A_WD}"); k(f"s_load_dwordx2 s[90:91], s[0:1], {A_OUT}")
    L_R = L_M + 4096
    PSC = "sc1"
    GW, GC, GA = 64, 80, 88
    k(f"v_lshl_add_u32 v99, s{sW}, 6, v{LN_}")
    k("v_and_b32 v100, 1, v99"); k("v_lshrrev_b32 v101, 1, v99")
    k("v_mul_u32_u24 v102, 6144, v101"); k("v_lshl_add_u32 v102, v100, 4, v102"); k("v_lshlrev_b32 v103, 1, v101")
    k("v_lshrrev_b32 v104, 4, v99"); k("v_lshlrev_b32 v104, 6, v104"); k("v_lshl_add_u32 v104, v100, 5, v104")
    sSL = 7; sPR = 53
    k(f"s_lshr_b32 s{sT1}, s2, 3")
    RM = P["ROLE"]
    if RM == 0:
        k(f"s_and_b32 s{sT0}, s2, 7")
        k(f"s_lshl_b32 s{sSL}, s{sT0}, 3"); k(f"s_add_u32 s{sSL}, s{sSL}, s{sT1}")
        k(f"s_lshl_b32 s{sT2}, s{sT0}, 4"); k(f"s_add_u32 s{sT2}, s{sT2}, s{sT1}"); k(f"s_add_u32 s{sT2}, s{sT2}, 56")
        k("s_cmp_lt_u32 s2, 64"); k(f"s_cselect_b32 s{sSL}, s{sSL}, s{sT2}")
        k("s_cmp_lt_u32 s2, 192"); k(f"s_cselect_b32 s{sSL}, s{sSL}, 255")
    elif RM in (1, 2):
        k(f"s_bfe_u32 s{sT0}, s2, 0x20001")
        k(f"s_lshl_b32 s{sSL}, s{sT0}, 4"); k(f"s_add_u32 s{sSL}, s{sSL}, s{sT1}")
        k(f"s_cmp_lt_u32 s{sT1}, 16"); k(f"s_cselect_b32 s{sSL}, s{sSL}, 255")
        k(f"s_lshl_b32 s{sT2}, s{sT0}, 5"); k(f"s_add_u32 s{sT2}, s{sT2}, s{sT1}"); k(f"s_add_u32 s{sT2}, s{sT2}, 64")
        k("s_bitcmp1_b32 s2, 0")
        k(f"s_cselect_b32 s{sSL}, s{sSL}, s{sT2}" if RM == 1 else f"s_cselect_b32 s{sSL}, s{sT2}, s{sSL}")
    else:
        k(f"s_bfe_u32 s{sT0}, s2, 0x20001"); k(f"s_and_b32 s{sT2}, s{sT1}, 15")
        k(f"s_lshl_b32 s{sSL}, s{sT0}, 4"); k(f"s_add_u32 s{sSL}, s{sSL}, s{sT2}")
        k(f"s_lshr_b32 s{sT2}, s{sT1}, 4"); k(f"s_and_b32 s{sT0}, s2, 1"); k(f"s_lshl_b32 s{sT0}, s{sT0}, 1"); k(f"s_add_u32 s{sT2}, s{sT2}, s{sT0}")
        k(f"s_lshl_b32 s{sT2}, s{sT2}, 6"); k(f"s_add_u32 s{sSL}, s{sSL}, s{sT2}")
    k(f"s_cmp_lt_u32 s{sSL}, 64")
    k(f"s_cselect_b32 s{sPR}, s{sFB}, 1")
    k(f"s_lshl_b32 s31, s{sSL}, 5")
    k(f"v_lshlrev_b32 v{VL16}, 4, v{LN_}")
    G = P["G"]
    NG = 8 // G; NS = 32 // G
    k(f"s_and_b32 s{sG}, s2, {NG-1}"); k(f"s_lshl_b32 s{sG}, s{sG}, {lg2(G)}"); k(f"s_lshr_b32 s{sT0}, s2, {3+lg2(NS)}"); k(f"s_add_u32 s{sG}, s{sG}, s{sT0}")
    k(f"s_bfe_u32 s{sROT}, s2, {3 | (lg2(NS) << 16):#x}")
    k(f"s_and_b32 s{sRB}, s2, 7"); k(f"s_lshr_b32 s{sRB}, s{sRB}, {lg2(NG)}"); k(f"s_lshl_b32 s{sRB}, s{sRB}, {lg2(NS)}"); k(f"s_add_u32 s{sRB}, s{sRB}, s{sROT}")
    k(f"s_lshl_b32 s{sROT}, s{sROT}, {lg2(G)}")
    k(f"s_and_b32 s{sR8}, s{sROT}, 7"); k(f"s_lshr_b32 s{sCC}, s{sROT}, 3")
    RR, CGL = tm, tm + 1
    k(f"v_bfe_u32 v{RR}, v{LN_}, 2, 3")
    k(f"v_lshrrev_b32 v{CGL}, 5, v{LN_}"); k(f"v_lshlrev_b32 v{CGL}, 2, v{CGL}"); k(f"v_and_or_b32 v{CGL}, v{LN_}, 3, v{CGL}")
    k(f"v_lshlrev_b32 v{VX}, 10, v{RR}"); k(f"v_lshl_add_u32 v{VX}, v{CGL}, 4, v{VX}"); k(f"v_add_u32 v{VX+1}, 8192, v{VX}")
    XS = [48, 49, 56, 57]
    k(f"s_lshl_b32 s48, s{sRB}, 16"); k(f"s_lshl_b32 s{sT2}, s{sW}, 8"); k(f"s_add_u32 s48, s48, s{sT2}")
    for c in range(1, 4): k(f"s_add_u32 s{XS[c]}, s48, {16384*c}")
    XP = 128
    xl = [f"buffer_load_dwordx4 {v(XP+8*o+4*cb,4)}, v{VX+(o&1)}, s[16:19], s{XS[o>>1]} offen offset:{128*cb}" for o in range(8) for cb in range(2)]
    k.srd(12, 10, 512 * 6144); k.srd(20, 8, 1024); k.srd(16, 4, 2048 * 1024)
    def gemv_loads(late=False):
        k(f"s_mov_b32 s{sT0}, s31")
        for i in range(4):
            k(f"buffer_load_dwordx4 {a(224+4*i,4) if late else v(GW+4*i,4)}, v102, s[12:15], s{sT0} offen")
            if i < 3: k(f"s_add_u32 s{sT0}, s{sT0}, {128*6144}")
    for i in range(4): k(f"buffer_load_ushort v{GC+i}, v103, s[20:23], 0 offen offset:{256*i}")
    k.srd(24, 70, WS_BYTES)
    k(f"s_lshl_b32 s{sE2}, s{sW}, 10"); k(f"s_add_u32 s{sE2}, s{sE2}, {WS_GO:#x}")
    k(f"v_lshrrev_b32 v{MX+5}, 5, v{LN_}"); k(f"v_lshlrev_b32 v{MX+4}, 7, v{RR}"); k(f"v_lshl_add_u32 v{MX+4}, v{MX+5}, 12, v{MX+4}")
    k(f"v_and_b32 v{MX+5}, 3, v{LN_}"); k(f"v_lshl_add_u32 v{MX+4}, v{MX+5}, 4, v{MX+4}")
    k(f"buffer_load_dwordx4 {v(MX,4)}, v{MX+4}, s[24:27], s{sE2} offen sc1")
    k(f"v_lshlrev_b32 v109, 2, v{LN_}"); k(f"s_lshl_b32 s{sE1}, s{sSL}, 7"); k(f"s_add_u32 s{sE1}, s{sE1}, {WS_GO:#x}")
    k(f"buffer_load_dword v110, v109, s[24:27], s{sE1} offen sc1")
    k(f"s_xor_b32 s{sE0}, s{sW}, 3"); k(f"s_or_b32 s{sE0}, s{sE0}, s{sFB}")
    k(f"s_cmp_lg_u32 s{sE0}, 0"); k("s_cbranch_scc1 NOZERO")
    k(f"v_lshlrev_b32 v111, 15, v{LN_}"); k("v_mov_b32 v107, 0"); k(f"s_lshl_b32 s{sT0}, s2, 7"); k(f"s_add_u32 s{sT0}, s{sT0}, {WS_FL:#x}")
    k("s_mov_b64 exec, 15")
    k(f"buffer_store_dword v107, v111, s[24:27], s{sT0} offen sc1")
    k("s_mov_b64 exec, -1")
    k.label("NOZERO")
    k.vm = {kk: max(p - 1, 0) for kk, p in k.vm.items()}
    k(f"s_cmp_eq_u32 s{sPR}, 0"); k("s_cbranch_scc1 PLOAD")
    s_a = (dict(k.vm), dict(k.lg))
    if P["TOUCH"]:
        k(f"s_cmp_lt_u32 s2, {P['TOUCH']}"); k("s_cbranch_scc1 NOTOUCH")
        k(f"s_lshl_b32 s92, s{sW}, 20"); k(f"s_and_b32 s93, s92, 0x100000")
        k.auto = False
        for base in (44, 40, 42, 46): k(f"s_load_dword s81, s[{base}:{base+1}], s92")
        for base in (84, 86, 88, 90): k(f"s_load_dword s81, s[{base}:{base+1}], s93")
        for i in range(8):
            k(f"s_load_dword s81, s[70:71], s92"); k("s_add_u32 s92, s92, 0x400000")
        k.auto = True
        k.label("NOTOUCH")
        k.sgpr = max(k.sgpr, 94)
    put(k, xl)
    s_b = dict(k.vm)
    k("s_branch PJOIN")
    k.label("PLOAD")
    k.vm = dict(s_a[0])
    gemv_loads()
    k.label("PJOIN")
    k.vm = k._merge(k.vm, s_b)
    k(f"s_lshl_b32 s{sW256}, s{sW}, 8"); k(f"s_lshl_b32 s{sW2K}, s{sW}, 11")
    k(f"v_lshrrev_b32 v{ROWL}, 4, v{LN_}")
    k(f"v_and_b32 v{r_}, 15, v{LN_}"); k(f"v_lshlrev_b32 v{GR16}, 2, v{ROWL}"); k(f"v_xor_b32 v{GR16}, v{GR16}, v{r_}")
    k(f"v_lshlrev_b32 v{GR16}, 4, v{GR16}")
    def w_voffs(psh, scol):
        st_ = (4 << psh) - 1024
        return [f"v_and_b32 v{VDW+1}, 15, v{LN_}", f"v_lshlrev_b32 v{VDW+2}, 1, v{ROWL}", f"v_xor_b32 v{VDW+1}, v{VDW+1}, v{VDW+2}",
                f"v_lshlrev_b32 v{VDW}, {psh}, v{ROWL}", f"v_lshl_add_u32 v{VDW}, v{VDW+1}, 4, v{VDW}", f"v_xor_b32 v{VDW+2}, 128, v{VDW}",
                f"v_add_u32 v{VDW}, s{scol}, v{VDW}", f"v_add_u32 v{VDW+2}, s{scol}, v{VDW+2}",
                f"v_add_u32 v{VDW+1}, {st_}, v{VDW}", f"v_add_u32 v{VDW+3}, {3*st_}, v{VDW+2}", f"v_add_u32 v{VDW+2}, {2*st_}, v{VDW+2}"]
    k(f"s_lshl_b32 s{sT0}, s{sG}, 10"); k(f"s_add_u32 s{sT0}, s{sT0}, s{sW256}")
    put(k, w_voffs(13, sT0))
    k(f"s_lshl_b32 s{sRING}, s{sW}, 14"); k(f"s_add_u32 s{sRING}, s{sRING}, {L_W}")
    k(f"s_lshl_b32 s{sKhi}, s{sROT}, 17"); k(f"s_lshl_b32 s{TAB}, s{sW}, 13")
    k.srd(8, 44, 512 * 8192)
    QBUF = [0, 1, 2] * 4 + [0, 1, 0, 1]
    def w_dma(step, which="Q"):
        slot = 2 * QBUF[step // 2] + (step & 1)
        o = [f"s_add_u32 m0, s{sRING}, {4096*slot}" if slot < 4 else f"s_add_u32 m0, s{TAB}, {L_K+4096*(slot-4)}",
             f"buffer_load_dwordx4 v{VDW}, s[8:11], s{sKhi} offen lds"]
        for n in range(1, 4):
            o.append(L(lambda n=n: k(f"buffer_load_dwordx4 v{VDW+n}, s[8:11], s{sKhi} offen offset:{1024*n} lds", token=f"W{slot}"), 10, "v"))
        return o + [f"s_add_u32 s{sKhi}, s{sKhi}, 0x20000", f"s_and_b32 s{sKhi}, s{sKhi}, 0x3fffff"]
    k(f"s_lshl_b32 s{sT1}, s{sW}, 3"); k(f"s_sub_u32 s{sT1}, s{sT1}, s{sROT}")
    k(f"v_lshrrev_b32 v{r_}, 1, v{CGL}"); k(f"v_add_u32 v{r_}, s{sT1}, v{r_}")
    k(f"v_and_b32 v{c2}, 1, v{CGL}"); k(f"v_and_b32 v{gn}, 1, v{r_}"); k(f"v_lshl_add_u32 v{gn}, v{gn}, 1, v{c2}"); k(f"v_lshlrev_b32 v{gn}, 1, v{gn}")
    k(f"v_xor_b32 v{gn}, v{gn}, v{RR}")
    k(f"v_lshlrev_b32 v{c2}, 9, v{c2}"); k(f"v_lshl_add_u32 v{c2}, v{gn}, 4, v{c2}")
    k(f"v_add_u32 v{c2}, {L_H}, v{c2}")
    for cb in range(2):
        k(f"v_add_u32 v{gn}, {4*cb}, v{r_}"); k(f"v_and_b32 v{gn}, 31, v{gn}"); k(f"v_lshl_add_u32 v{HW+cb}, v{gn}, 10, v{c2}")
    k(f"s_lshl_b32 s{sT2}, s{sW}, 10"); k(f"v_lshlrev_b32 v{VM}, 5, v{CGL}"); k(f"v_add_u32 v{VM}, s{sT2}, v{VM}")
    k(f"v_lshrrev_b32 v{UT+4}, 2, v{LN_}"); k(f"v_lshlrev_b32 v{UT+4}, 6, v{UT+4}"); k(f"v_add_u32 v{UT+4}, s{sT2}, v{UT+4}")
    k(f"v_lshlrev_b32 v{UT+5}, 6, v{RR}"); k(f"v_lshl_add_u32 v{UT+7}, s{sW}, 9, v{UT+5}"); k(f"v_lshl_add_u32 v{UT+5}, v{CGL}, 3, v{UT+5}")
    k(f"v_lshl_add_u32 v{UT+6}, v{CGL}, 3, v{UT+7}")
    lane_tr_parts(k, LN_, r_, c2, gn, h_, tm)
    k(f"v_lshl_add_u32 v{CH8}, v{gn}, 2, v{c2}"); k(f"v_lshlrev_b32 v{CH8}, 3, v{CH8}")
    put(k, [f"v_lshl_add_u32 v{tm}, v{ROWL}, 3, v{r_}", f"v_lshlrev_b32 v{tm}, 8, v{tm}", f"v_and_b32 v{tm+1}, 1, v{c2}", f"v_lshl_add_u32 v{tm}, v{tm+1}, 4, v{tm}",
            f"v_add_u32 v{tm}, s{sRING}, v{tm}", f"v_lshl_add_u32 v{tm+1}, v{gn}, 2, v{r_}", f"v_lshrrev_b32 v{tm+2}, 1, v{c2}", f"v_xor_b32 v{tm+1}, v{tm+1}, v{tm+2}",
            f"v_lshl_add_u32 v{VW}, v{tm+1}, 5, v{tm}"] + [f"v_xor_b32 v{VW+p}, {64*p}, v{VW}" for p in range(1, 4)])
    put(k, [f"v_lshl_add_u32 v{tm}, v{h_}, 2, v{r_}", f"v_lshl_add_u32 v{tm}, v{tm}, 8, v{CH8}", f"v_add_u32 v{tm}, {L_V}, v{tm}"])
    for dt in range(4): put(k, [f"v_xor_b32 v{tm+1}, {dt}, v{r_}", f"v_lshl_add_u32 v{VV+dt}, v{tm+1}, 6, v{tm}"])
    put(k, [f"v_and_b32 v{tm}, 31, v{LN_}", f"v_and_b32 v{tm+1}, 15, v{LN_}", f"v_xor_b32 v{tm+1}, v{tm+1}, v{h_}",
            f"v_lshlrev_b32 v{tm}, 8, v{tm}", f"v_lshl_add_u32 v{VK}, v{tm+1}, 4, v{tm}"])
    put(k, [f"v_xor_b32 v{VK+s_}, {s_*32}, v{VK}" for s_ in range(1, 8)])
    put(k, [f"v_mov_b32 v{LS}, 0", f"v_mov_b32 v{LS+1}, 0",
        f"v_lshl_add_u32 v{VDV}, v{ROWL}, 8, v{GR16}", f"s_and_b32 s{sT1}, s{sW}, 1", f"s_lshl_b32 s{sT1}, s{sT1}, 3",
        f"v_or_b32 v{tm}, s{sT1}, v{ROWL}", f"v_and_b32 v{tm+1}, 15, v{LN_}", f"v_xor_b32 v{tm}, v{tm}, v{tm+1}",
        f"v_lshlrev_b32 v{VDK}, 8, v{ROWL}", f"v_lshl_add_u32 v{VDK}, v{tm}, 4, v{VDK}", f"v_xor_b32 v{VDK+1}, 64, v{VDK}",
        f"s_lshl_b32 s{sT1}, s{sG}, 19", f"s_add_u32 s{sT1}, s{sT1}, s{sW2K}", f"s_add_u32 s{sT1}, s{sT1}, {1536*256}",
        f"v_add_u32 v{VDK}, s{sT1}, v{VDK}", f"v_add_u32 v{VDK+1}, s{sT1}, v{VDK+1}", f"v_add_u32 v{VDV}, s{sT1}, v{VDV}",
        f"v_add_u32 v{VLIN}, {L_H}, v{VL16}", f"v_and_b32 v{tm}, 15, v{LN_}", f"v_lshlrev_b32 v{tm+1}, 1, v{ROWL}", f"v_xor_b32 v{tm}, v{tm}, v{tm+1}",
        f"v_lshlrev_b32 v{tm}, 4, v{tm}", f"v_lshl_add_u32 v{VLO}, v{ROWL}, 9, v{tm}", f"v_add_u32 v{VLO}, {L_H}, v{VLO}",
        f"s_mov_b32 s{sMASK}, 0xffff0000"])
    def nxt(d, s_): return [f"s_add_u32 s{d}, s{s_}, 8192", f"s_and_b32 s{d}, s{d}, 0x1ffff"]
    def kv_dma(which, lds_off, so):
        srd = 12 if which == "K" else 16
        return [f"s_add_u32 m0, s{sW2K}, {lds_off}", f"buffer_load_dwordx4 v{VDK if which=='K' else VDV}, s[{srd}:{srd+3}], s{so} offen lds",
                L(lambda: k(f"buffer_load_dwordx4 v{VDK+1 if which=='K' else VDV}, s[{srd}:{srd+3}], s{so} offen offset:1024 lds", token=which), 10, "v")]
    kinit = [[f"s_lshr_b32 s{sO0}, s{sROT}, 1", f"s_lshl_b32 s{sO0}, s{sO0}, 13"] + nxt(sO1, sO0) + nxt(sO2, sO1)]
    kfirst = [kv_dma("K", L_K + 16384 + 8192, sO0), kv_dma("K", L_K, sO1), kv_dma("K", L_K + 8192, sO2)]
    k.srd(20, 68, 256)
    def gemv_compute(lo, hi, tag, late):
        k(f"s_sub_u32 s{sT0}, s{sSL}, {lo}"); k(f"s_cmp_ge_u32 s{sT0}, {hi-lo}"); k(f"s_cselect_b32 s{sT0}, 1, s{sFB}"); k(f"s_cmp_lg_u32 s{sT0}, 0"); k("s_cbranch_scc1 NOGEMV" + tag)
        st0 = (dict(k.vm), dict(k.lg))
        GW, GC, GA, SC_, U_, AW_, AR_ = (160, 176, 180, 144, 188, 152, 153) if late else (64, 80, 88, 112, 120, 104, 105)
        if late:
            for i in range(20): k(f"v_accvgpr_read_b32 v{GW+i}, a{224+i}")
            k(f"v_accvgpr_read_b32 v{AW_}, a244")
        D = P.get("DG") == 1 and not late
        if D: stamp(k, "g_in"); k.wait_regs(v(GW, 20)); stamp(k, "g_data")
        k(f"s_mov_b32 s{sT1}, {f32(-LOG2E)}")
        for i in range(4): k(f"v_lshlrev_b32 v{GC+i}, 16, v{GC+i}")
        for i in range(4): k(f"v_mul_f32 v{GA+i}, s{sT1}, v{GC+i}")
        for i in range(4): k(f"v_exp_f32 v{GA+i}, v{GA+i}")
        for i in range(4): k(f"v_add_f32 v{GA+i}, 1.0, v{GA+i}")
        for i in range(4): k(f"v_rcp_f32 v{GA+i}, v{GA+i}")
        for i in range(4): k(f"v_mul_f32 v{GC+i}, v{GC+i}, v{GA+i}")
        for i in range(4): rnd(k, SC_ + 2 * i, GC + i)
        for i in range(4):
            for q in range(4):
                r = GW + 4 * i + q; u = U_ + 2 * (q & 1)
                k(f"v_lshlrev_b32 v{u}, 16, v{r}"); k(f"v_and_b32 v{u+1}, s{sMASK}, v{r}")
                if i == 0: k(f"v_pk_mul_f32 {v(GA+2*q,2)}, {v(u,2)}, {v(SC_+2*i,2)} op_sel_hi:[1,0]")
                else: k(f"v_pk_fma_f32 {v(GA+2*q,2)}, {v(u,2)}, {v(SC_+2*i,2)}, {v(GA+2*q,2)} op_sel_hi:[1,0,1]")
        for md in ("quad_perm:[2,3,0,1]", "row_ror:4", "row_ror:8"):
            for j in range(8): k(f"v_add_f32_dpp v{GA+j}, v{GA+j}, v{GA+j} {md} row_mask:0xf bank_mask:0xf")
        k(f"ds_write_b128 v{AW_}, {v(GA,4)} offset:{L_R}", token="w"); k(f"ds_write_b128 v{AW_}, {v(GA+4,4)} offset:{L_R+16}", token="w")
        k(f"v_lshlrev_b32 v{AR_}, 2, v{LN_}")
        k(f"s_lshr_b32 s{sT0}, s{sSL}, 5"); k(f"s_cmp_eq_u32 s{sT0}, 1"); k(f"s_cselect_b32 s{sT1}, 1.0, 0")
        k(f"s_cmp_eq_u32 s{sT0}, 4"); k(f"s_cselect_b32 s{sT1}, 1.0, s{sT1}")
        k(f"s_cmp_lt_u32 s{sT0}, 2"); k(f"s_cselect_b32 s{sT2}, {f32(QS)}, 1.0")
        if P["GS"] and late:
            k(f"s_cmp_ge_u32 s{sT0}, 3"); k(f"s_cselect_b32 s{sT2}, {f32(GSC)}, s{sT2}")
            k(f"s_cmp_eq_u32 s{sT0}, 5"); k(f"s_cselect_b32 s{sT2}, {f32(1/GSC**2)}, s{sT2}")
        k(f"s_lshl_b32 s{sT0}, s{sSL}, 6")
        k.wait("w"); k("s_barrier")
        k(f"s_cmp_lg_u32 s{sW}, 3"); k("s_cbranch_scc1 " + ("NOGEMV" + tag if late else "PWAIT"))
        for i in range(4): k(f"ds_read_b32 v{GA+i}, v{AR_} offset:{L_R+256*i}")
        k(f"v_add_f32 v{GA}, v{GA}, v{GA+1}"); k(f"v_add_f32 v{GA+2}, v{GA+2}, v{GA+3}"); k(f"v_add_f32 v{GA}, v{GA}, v{GA+2}")
        k(f"v_mov_b32 v{GA+1}, v{GA}"); k(f"v_permlane16_swap_b32 v{GA}, v{GA+1}"); k(f"v_add_f32 v{GA}, v{GA}, v{GA+1}")
        k(f"v_mov_b32 v{GA+1}, v{GA}"); k(f"v_permlane32_swap_b32 v{GA}, v{GA+1}"); k(f"v_add_f32 v{GA}, v{GA}, v{GA+1}")
        rnd(k, GA, GA)
        k(f"v_add_f32 v{GA}, s{sT1}, v{GA}"); k(f"v_mul_f32 v{GA}, s{sT2}, v{GA}")
        if D: stamp(k, "g_red")
        k("s_mov_b64 exec, 0xffff")
        if not late:
            k("v_not_b32 v110, v110"); k(f"v_bfi_b32 v{GA}, 1, v110, v{GA}")
            k(f"buffer_store_dword v{GA}, v109, s[24:27], s{sE1} offen sc1")
            k("s_mov_b64 exec, -1")
            k.label("PWAIT")
            k("s_barrier")
            k.vm = {}
            put(k, xl)
            st0 = (k._merge(st0[0], k.vm), None)
        else:
            k(f"buffer_store_dword v{GA}, v{AR_}, s[24:27], s{sT0} offen sc1")
            k("s_mov_b64 exec, -1")
        k.label("NOGEMV" + tag)
        k.vm, k.lg = dict(st0[0]), {}
        k.smem_pending = late
    gemv_compute(0, 64, "A", False)
    stamp(k, "gemv")
    k("s_mov_b32 s3, 0x3f803f80")
    k(f"s_load_dwordx4 s[64:67], s[0:1], {A_WG}"); k(f"s_load_dwordx2 s[4:5], s[0:1], {A_WD}")
    ASET = {"Q": [AF, AF + 16], "O": [AF, AF + 16]}
    def aset(which, step): return ASET[which][step % len(ASET[which])]
    def a_reads(step, which="O"):
        slot = step % 4; b_ = aset(which, step)
        rd = [f"ds_read_b64_tr_b16 {a(b_+4*a_+2*u,2)}, v{VW+a_} offset:{4096*slot+1024*u}" for a_ in range(4) for u in range(2)]
        return [[L(lambda: k.wait(f"W{slot}")), rd[0]]] + rd[1:]
    N0 = P["N0"]
    if P.get("DG") == 2: stamp(k, "iss"); k.wait_regs(v(0, 16), v(128, 48)); stamp(k, "xarr")
    for i in range(4): k(f"v_accvgpr_write_b32 a{240+i}, v{GC+i}")
    k("v_accvgpr_write_b32 a244, v104")
    for o in range(8):
        if o == 4:
            k.wait_regs(v(XP, 64))
            put(k, [w_dma(s_, "Q") for s_ in range(P["WPRE"])])
            k(f"s_sub_u32 s{sT0}, s{sSL}, 64"); k(f"s_cmp_ge_u32 s{sT0}, 128"); k("s_cbranch_scc1 NOLATE")
            s_c = dict(k.vm)
            gemv_loads(True)
            k.label("NOLATE")
            k.vm = k._merge(k.vm, s_c)
            k.srd(12, 40, 8 * 2048 * 256)
        for j in range(8):
            x = XP + 8 * o + j
            k(f"v_dot2_f32_bf16 v{2*o}, v{x}, s3, {'0' if j == 0 else 'v%d' % (2*o)}")
            k(f"v_dot2_f32_bf16 v{2*o+1}, v{x}, v{x}, {'0' if j == 0 else 'v%d' % (2*o+1)}")
    k("s_nop 2")
    for md in ("quad_perm:[1,0,3,2]", "quad_perm:[2,3,0,1]"):
        for x in range(16): k(f"v_add_f32_dpp v{x}, v{x}, v{x} {md} row_mask:0xf bank_mask:0xf")
    for q in range(4): k(f"ds_write_b128 v{UT+4}, {v(4*q,4)} offset:{L_K+16*q}", token="w")
    k.wait("w"); k("s_barrier")
    for p_ in range(8): k(f"ds_read_b64 {v(16+2*p_,2)}, v{UT+5} offset:{L_K+512*p_}")
    for st in (1, 2, 4):
        for p_ in range(0, 8, 2 * st): k(f"v_pk_add_f32 {v(16+2*p_,2)}, {v(16+2*p_,2)}, {v(16+2*(p_+st),2)}")
    k(f"v_mul_f32 v16, {f32(-1/512)}, v16"); k(f"v_mul_f32 v17, {f32(1/512)}, v17")
    k("v_fma_f32 v17, -v16, v16, v17"); k("v_max_f32 v17, 0, v17"); k(f"v_add_f32 v17, {f32(1e-5)}, v17"); k("v_rsq_f32 v17, v17")
    k("v_mul_f32 v16, v16, v17")
    k(f"ds_write_b64 v{UT+6}, v[16:17] offset:{L_K+4096}")
    for q in range(4): k(f"ds_read_b128 {v(112+4*q,4)}, v{UT+7} offset:{L_K+4096+16*q}")
    k(f"ds_read_b64 {v(STT,2)}, v{UT+7} offset:{L_K+4096+56}")
    for o in range(8):
        st = v(112 + 2 * o, 2) if o < 7 else v(STT, 2)
        for cb in range(2):
            x = XP + 8 * o + 4 * cb; u = 16 * o + 8 * cb
            for q in range(4): k(f"v_lshlrev_b32 v{u+2*q}, 16, v{x+q}"); k(f"v_and_b32 v{u+2*q+1}, s{sMASK}, v{x+q}")
        for q in range(8): k(f"v_pk_fma_f32 {v(16*o+2*q,2)}, {v(16*o+2*q,2)}, {st}, {st} op_sel:[0,1,0] op_sel_hi:[1,1,0]")
    gemv_compute(64, 192, "B", True)
    put(k, kinit)
    stamp(k, "stats")
    k.wait_all(vm=False)
    k(f"s_lshl_b32 s{sT1}, s{sFB}, 4"); k(f"s_sub_u32 s{sT1}, s{sT1}, s{sFB}")
    k(f"v_mov_b32 v{UT}, 0")
    k(f"s_mov_b32 s{sT2}, 0")
    k.label("POLL")
    k(f"s_add_u32 s{sT1}, s{sT1}, 1")
    k(f"s_and_b32 s{sT0}, s{sT1}, 15"); k("s_cbranch_scc1 POLLR")
    k(f"buffer_load_dword v{UT+1}, v{UT}, s[20:23], 0 offen sc1")
    k(f"v_readfirstlane_b32 s{sT0}, v{UT+1}")
    k(f"s_cmp_ge_u32 s{sT0}, 0x100"); k(f"s_cselect_b32 s{sT2}, 1, 0")
    k(f"s_cmp_gt_u32 s{sT1}, 0x8000"); k(f"s_cselect_b32 s{sT2}, 1, s{sT2}")
    k.label("POLLR")
    k(f"buffer_load_dwordx4 {v(160,4)}, v{MX+4}, s[24:27], s{sE2} offen sc1")
    k(f"v_xor_b32 v{UT+2}, v160, v{MX}")
    for j in range(1, 4): k(f"v_bitop3_b32 v{UT+2}, v{160+j}, v{MX+j}, v{UT+2} bitop3:0x28")
    k(f"v_and_b32 v{UT+2}, 1, v{UT+2}"); k(f"v_cmp_eq_u32 vcc, 0, v{UT+2}"); k("s_cmp_lg_u64 vcc, 0")
    k(f"s_cselect_b32 s{sT2}, s{sT2}, 1")
    k(f"s_cmp_lg_u32 s{sE0}, 0"); k("s_cbranch_scc1 NOARR")
    k("s_mov_b64 exec, 1"); k(f"v_mov_b32 v{UT+3}, 1")
    k(f"buffer_atomic_add v{UT+3}, v{UT}, s[20:23], 0 offen")
    k("s_mov_b64 exec, -1")
    k(f"s_mov_b32 s{sE0}, 1")
    k.label("NOARR")
    k(f"s_cmp_lg_u32 s{sT2}, 0"); k("s_cbranch_scc1 POLLED")
    if P["PFK"]:
        k(f"s_cmp_lg_u32 s{sT1}, 1"); k("s_cbranch_scc1 NOPFK")
        k("s_cmp_lt_u32 s2, 192"); k("s_cbranch_scc1 NOPFK")
        k.srd(64, 42, 8 * 2048 * 256)
        k(f"s_bfe_u32 s{sT0}, s2, 0x30003"); k(f"s_lshl_b32 s{sT0}, s{sT0}, 2"); k(f"s_add_u32 s{sT0}, s{sT0}, s{sW}"); k(f"s_lshl_b32 s{sT0}, s{sT0}, 12")
        k(f"s_and_b32 s3, s2, {NG-1}"); k(f"s_lshl_b32 s3, s3, {19+lg2(G)}"); k(f"s_add_u32 s{sT0}, s{sT0}, s3"); k(f"s_add_u32 s{sT0}, s{sT0}, {1536*256}")
        n = 0
        for gi in range(G):
            for srd in (12, 64)[:P["PFK"]]:
                for j in range(4): k(f"buffer_load_dwordx4 {a(4*n,4)}, v{VL16}, s[{srd}:{srd+3}], s{sT0} offen offset:{1024*j}"); n += 1
            k(f"s_add_u32 s{sT0}, s{sT0}, 0x80000")
        k.label("NOPFK")
    if P["SLEEP"]: k(f"s_sleep {P['SLEEP']}")
    k("s_branch POLL")
    k.label("POLLED")
    if P.get("DG"): stamp(k, "go")
    for j in range(4): k(f"v_and_b32 v{160+j}, -2, v{160+j}")
    k(f"s_lshl_b32 s{sT0}, s{sW}, 10"); k(f"v_add_u32 v{UT+1}, s{sT0}, v{VL16}")
    k(f"ds_write_b128 v{UT+1}, {v(160,4)} offset:{L_M}")
    for cb in range(2):
        for m_ in range(2):
            for q in range(2): k(f"ds_read_b128 {v(128+16*cb+8*m_+4*q,4)}, v{VM} offset:{L_M+512*(1-m_)+256*cb+16*q}")
    stamp(k, "poll")
    k.srd(20, 46, 4096 * 1024)
    QA = [0, 32]; QB = [64, 80]
    def qa_reads(u):
        b_ = QBUF[u]
        rd = [f"ds_read_b64_tr_b16 {a(QA[u%2]+8*p+4*e+2*uu,2)}, v{(VW if b_ < 2 else STT)+p} offset:{(8192*b_ if b_ < 2 else 0)+1024*uu+8*e}" for p in range(4) for e in range(2) for uu in range(2)]
        return [[L(lambda: k.wait(f"W{2*b_}", f"W{2*b_+1}")), rd[0]]] + rd[1:]
    def qb_reads(u): return [f"ds_read_b128 {a(QB[u%2]+4*r4,4)}, v{VLO} offset:{2048*u+32768*(r4>>1)+256*(r4&1)}" for r4 in range(4)]
    put(k, qa_reads(0))
    k(f"s_sub_u32 s3, s{TAB}, s{sRING}")
    for p in range(4): k(f"v_add_u32 v{STT+p}, s3, v{VW+p}")
    for o in range(8):
        for cb in range(2):
            u = 16 * o + 8 * cb; cn = 128 + 16 * cb
            for q in range(4): k(f"v_pk_fma_f32 {v(u+2*q,2)}, {v(u+2*q,2)}, {v(cn+2*q,2)}, {v(cn+8+2*q,2)}")
            for q in range(4): k(f"v_cvt_pk_bf16_f32 v{u+q}, v{u+2*q}, v{u+2*q+1}")
        for cb in range(2): k(f"ds_write_b128 v{HW+cb}, {v(16*o+8*cb,4)} offset:{32768*(o>>2)+128*(o&3)}", token="hw")
    put(k, [w_dma(s_, "Q") for s_ in range(P["WPRE"], 4)])
    fr = lambda f: FR + 4 * (f % 8)
    def rdK(f, s_, off): return [f"ds_read_b128 {a(fr(f),4)}, v{VK+s_} offset:{off}"]
    def rdV(f, i, off): return [f"ds_read_b64_tr_b16 {a(fr(f)+2*u,2)}, v{VV+i%4} offset:{off+4096*(i//4)+2048*u}" for u in range(2)]
    def b_reads(step):
        return [f"ds_read_b128 {a(BF+8*(step%2)+4*rt,4)}, v{VLO if step & 1 else VLIN} offset:{1024*step+32768*rt}" for rt in range(2)]
    k.wait("hw"); k("s_barrier")
    stamp(k, "mod")
    for _ in range(P.get("DLY0", 0)): k("s_sleep 38")
    put(k, qb_reads(0))
    def qepi(p):
        o = []
        for qt in range(2):
            for yy in range(2):
                b = ACC + 32 * p + 16 * qt + 8 * yy
                o += [f"v_cvt_pk_bf16_f32 v{Q+16*p+8*yy+4*qt+j}, v{b+2*j}, v{b+2*j+1}" for j in range(4)]
        for qt in range(2): o += [f"v_permlane16_swap_b32 v{Q+16*p+4*qt+j}, v{Q+16*p+8+4*qt+j}" for j in range(4)]
        return o
    def flat1(x):
        o = []
        for y in x:
            if isinstance(y, list): o += y
            else: o.append(y)
        return o
    sc = Sched(512, budget=P["OBUD"]); mf = []
    for u in range(16):
        g0 = 32 * u
        if u + 1 < 16:
            sc.add(qb_reads(u + 1) + qa_reads(u + 1), g0 + (P["QRD0"] if u in (0, 1, 13, 14) else 0), g0 + 28, prio=1)
            sc.pin(g0 + 31, L(lambda u=u: k.wait_regs(a(QA[(u + 1) % 2], 32), a(QB[(u + 1) % 2], 16))), end=True)
        dm_ = []
        if u == 0: dm_ += w_dma(4) + w_dma(5)
        if u + 3 < 14: dm_ += w_dma(2 * u + 6) + w_dma(2 * u + 7)
        if u == 11: sc.pin(g0, "s_barrier"); dm_ = [x for d in kfirst for x in d]
        if u in (12, 13): dm_ += w_dma(2 * u + 4) + w_dma(2 * u + 5)
        sc.add(dm_, g0, g0 + (20 if u in (12, 13) else 32))
        for t_ in range(8):
            for r4 in range(4):
                d = v(ACC + 32 * (t_ // 2) + 8 * r4 + 4 * (t_ % 2), 4)
                mf.append(f"v_mfma_f32_16x16x32_bf16 {d}, {a(QA[u%2]+4*t_,4)}, {a(QB[u%2]+4*r4,4)}, {'0' if u == 0 else d}")
    NA1 = P["F1R"] // 2; W1_ = 3584 // NA1; assert NA1 == 4
    nA2 = 32 // P["F2R"]; NA2 = 8 // nA2; rows2 = 8 // nA2
    ps = [L(lambda: k.srd(40, 64, 512 * 3584), 16), L(lambda: k.srd(44, 66, 512 * 3584), 16),
          [f"s_lshr_b32 s66, s2, 3", f"s_lshl_b32 s66, s66, 2", f"s_add_u32 s66, s66, s{sW}"],
          [f"s_mul_i32 s64, s66, {4*3584}", f"s_and_b32 s3, s2, 3", f"s_lshl_b32 s67, s3, 9"], ["s_add_u32 s64, s64, s67", f"s_mul_i32 s65, s66, {14*1024}"],
          ["s_lshl_b32 s3, s3, 7", "s_sub_u32 s3, 1536, s3"],
          [f"s_and_b32 s67, s2, {NA2-1}", f"s_mul_i32 s67, s67, {128*nA2}", "s_add_u32 s65, s65, s67"],
          [f"s_lshl_b32 s66, s{sROT}, 14", f"s_lshl_b32 s67, s{sG}, 19", "s_add_u32 s66, s66, s67"], [f"s_lshl_b32 s67, s{sW}, {12+lg2(G)}", "s_add_u32 s66, s66, s67"],
          f"v_min_u32 v{VX}, 55, v{LN_}", f"v_lshlrev_b32 v{VX}, 4, v{VX}", f"v_mad_u32_u24 v{VX}, v{h_}, s3, v{VX}",
          f"v_lshrrev_b32 v{VX+1}, {lg2(8*nA2)}, v{LN_}", f"v_lshlrev_b32 v{VX+1}, 10, v{VX+1}", f"v_and_b32 v{tm}, {8*nA2-1}, v{LN_}", f"v_lshl_add_u32 v{VX+1}, v{tm}, 4, v{VX+1}"]
    def srd_ops(d, ptr, n): return [f"s_mov_b32 s{d}, s{ptr}", f"s_and_b32 s{d+1}, s{ptr+1}, 0xffff", f"s_mov_b32 s{d+2}, {n:#x}", f"s_mov_b32 s{d+3}, 0x20000"]
    sc.add(srd_ops(16, 42, 8 * 2048 * 256) + srd_ops(40, 64, 512 * 3584) + srd_ops(44, 66, 512 * 3584) + flat1(ps[2:]), 64, 340)
    sc.add(srd_ops(8, 4, 1792 * 1024) + [f"s_lshl_b32 s{sT0}, s{sG}, 19", f"s_add_u32 s{sT0}, s{sT0}, s{sW256}"] + w_voffs(10, sT0) +
           [f"s_and_b32 s{sR8}, s{sROT}, 30", f"s_lshl_b32 s{sKhi}, s{sR8}, 14"], 437, 480)
    sc.pin(480, L(lambda: (k.wait("K"), k.wait_all(vm=False), k("s_barrier")), 8))
    sc.add(kv_dma("V", L_V, sO0) + kv_dma("V", L_V + 8192, sO1), 481, 492)
    sc.add([rdK(f, f, L_K + 16384 + 8192) for f in range(4)], 492, 500, prio=1)
    sc.add(qepi(0), 492, 506); sc.add(qepi(1)[:12], 506, 512)
    for m, f_ in zip(mf, sc.run()): k(m); put(k, f_)
    stamp(k, "qgemm")
    def qk(f, s_, qt, buf, zero):
        d = v(S + 32 * buf + 16 * qt, 16)
        c = d if s_ else ("0" if zero else v(CI + 16 * qt, 16))
        return f"v_mfma_f32_32x32x16_bf16 {d}, {a(fr(f),4)}, {v(Q+8*s_+4*qt,4)}, {c}"
    def pv(f, i, qt, buf, zero=False):
        d = a(O + 32 * (i % 4) + 16 * qt, 16)
        return f"v_mfma_f32_32x32x16_bf16 {d}, {a(fr(f),4)}, {v(S+32*buf+16*qt+8*(i//4),4)}, {'0' if zero else d}"
    def sreg(buf, e): return S + 32 * buf + 16 * ((e >> 3) & 1) + 8 * (e >> 4) + (e & 7)
    def sm(buf, e, addci=False):
        o = []
        if e < 32:
            if addci: o.append(f"v_add_f32 v{sreg(buf,e)}, v{sreg(buf,e)}, v{CI+16*((e>>3)&1)}")
            o.append(f"v_exp_f32 v{sreg(buf,e)}, v{sreg(buf,e)}")
        if e >= 1:
            p = e - 1
            o.append(f"v_add_f32 v{LS+((p>>3)&1)}, v{LS+((p>>3)&1)}, v{sreg(buf,p)}")
            if p & 1:
                o.append(f"v_cvt_pk_bf16_f32 v{sreg(buf,p&~7)+(p&7)//2}, v{sreg(buf,p-1)}, v{sreg(buf,p)}")
        return o
    def wgrp(j): return L(lambda: k.wait_regs(a(FR + 16 * (j % 2), 16)))
    def qk0(epi):
        wgrp(0)()
        for s_ in range(8):
            ea = qepi(1)[12:] + qepi(2) + qepi(3)
            cut = [0, 8, 12, 26, 36, 50, 60, 60, 60]
            ep = ea[cut[s_]:cut[s_ + 1]] if epi else []
            rd = [rdK(f + 4, f + 4, L_K + 16384 + 8192) if f < 4 else rdK(f + 4, f - 4, L_K) for f in ([2*s_, 2*s_+1] if s_ < 2 else [2*s_-4, 2*s_-3] if 4 <= s_ < 6 else [])]
            k(qk(s_, s_, 0, 0, True)); put(k, rd[:1]); put(k, ep[:(len(ep) + 1) // 2])
            k(qk(s_, s_, 1, 0, True)); put(k, rd[1:]); put(k, ep[(len(ep) + 1) // 2:])
            if s_ % 4 == 3: wgrp(s_ // 4 + 1)()
    qk0(True)
    k(f"s_cmp_lg_u32 s{sFB}, 0"); k("s_cbranch_scc1 FB_MAX")
    k.label("IT0")
    def maxops(buf, dst):
        o = []
        for qt in range(2):
            b = S + 32 * buf + 16 * qt; t = dst + qt
            o.append(f"v_max3_f32 v{t}, v{b}, v{b+1}, v{b+2}")
            for i in range(3, 15, 2): o.append(f"v_max3_f32 v{t}, v{t}, v{b+i}, v{b+i+1}")
            o.append(f"v_max_f32 v{t}, v{t}, v{b+15}")
        return [x for pr in zip(o[:8], o[8:]) for x in pr]
    def xhalf_max(t, t2):
        return [f"v_mov_b32 v{t2}, v{t}", f"v_mov_b32 v{t2+1}, v{t+1}", f"v_permlane32_swap_b32 v{t}, v{t2}", f"v_permlane32_swap_b32 v{t+1}, v{t2+1}",
                f"v_max_f32 v{t}, v{t}, v{t2}", f"v_max_f32 v{t+1}, v{t+1}, v{t2+1}"]
    def flat(x): return [y for z in x for y in z]
    def iteration(par, first=False, last=False, extra=None):
        hb = 16384 * par; nb = 16384 * (1 - par)
        mf = []
        phs = [0, 1, 3] if last else [0, 1, 2, 3]
        n = 16 * len(phs)
        sc = Sched(n)
        frs = []
        for q_, ph in enumerate(phs):
            for g in range(16):
                f = 8 * q_ + g // 2; qt = g & 1; i = g // 2
                if ph == 0: mf.append(qk(f, i, qt, 1, first))
                elif ph == 1: mf.append(pv(f, i, qt, 0, first and i < 4))
                elif ph == 2: mf.append(qk(f, i, qt, 0, False))
                else: mf.append(pv(f, i, qt, 1))
            for i in range(8): frs.append((ph, i))
        ng = len(frs) // 4
        for j in range(1, ng):
            rd = []
            for f in range(4 * j, 4 * j + 4):
                ph, i = frs[f]
                rd += rdK(f, i, hb + 8192 * (ph // 2)) if ph % 2 == 0 else rdV(f, i, hb + 8192 * (ph // 2))
            g0 = 8 * (j - 1)
            if first and j == 2: sc.pin(g0 + 1, L(lambda: (k.wait("V"), k("s_barrier")), 8)); g0 += 1
            sc.add(rd, g0, 8 * (j - 1) + 6, prio=1)
            sc.pin(8 * j - 1, wgrp(j), end=True)
        dm = [nxt(sO1, sO2), kv_dma("V", L_V + nb, sO2), kv_dma("K", L_K + nb, sO1), kv_dma("V", L_V + nb + 8192, sO1), nxt(sO2, sO1), kv_dma("K", L_K + nb + 8192, sO2)]
        dm = [dm[0]] + dm[1] + dm[2] + dm[3] + [dm[4]] + dm[5]
        if first:
            sc.add(dm, 24, 44)
            mx = maxops(0, MX) + xhalf_max(MX, MX + 2)
            mx += [[f"s_cmp_lg_u32 s{sFB}, 0", "s_cselect_b64 vcc, -1, 0"]]
            mx += [f"v_sub_f32 v{CI+16*qt}, {f32(-float(P['BIAS']))}, v{MX+qt}" for qt in range(2)]
            mx += [f"v_cndmask_b32 v{CI+16*qt}, v{CI+16*qt}, v{MX+4+qt}, vcc" for qt in range(2)]
            sc.add(mx + flat(sm(0, e, True) for e in range(17)), 1, 16)
            sc.add(flat(sm(0, e, True) for e in range(17, 33)), 16, 23)
            sc.add([f"v_mov_b32 v{CI+16*qt+i}, v{CI+16*qt}" for qt in range(2) for i in range(1, 16)], 23, 31)
            sc.add(flat(sm(1, e, True) for e in range(33)), 23, 54)
            sc.add(flat(sm(0, e) for e in range(12)), 54, 64)
        else:
            for e in range(12, 33): sc.pin(e - 12, sm(0, e))
            if last:
                sc.add(flat(sm(1, e) for e in range(17)), 19, 31)
                sc.add(flat(sm(1, e) for e in range(17, 33)), 31, 39)
            else:
                sc.add(dm, 1, 40)
                for e in range(33): sc.pin(20 + e, sm(1, e))
                for e in range(12): sc.pin(52 + e, sm(0, e))
        if not last:
            sc.pin(56, L(lambda: (k.wait("K", "V"), k("s_barrier")), 8))
            sc.add([rdK(f, f, nb) for f in range(4)], 56, 61, prio=1)
            sc.pin(63, wgrp(0), end=True)
        if extra: extra(sc)
        for m, f_ in zip(mf, sc.run()): k(m); put(k, f_)
    iteration(0, first=True)
    stamp(k, "it0")
    rows2 = 8 // (32 // P["F2R"])
    def xpf(half):
        def f(sc):
            if not P["PF1"]: return
            n = 8 * half
            if half == 0:
                pf = [[f"buffer_load_dwordx4 {a(192+4*(n+j),4)}, v{VL16}, s[20:23], s66 offen offset:{1024*j}"] for j in range((4 * G + 2) // 3)] + [f"s_add_u32 s66, s66, {1024*((4*G+2)//3)}"]
                pf += [[f"buffer_load_dwordx4 {a(192+4*(n+3+j),4)}, v{VX+1}, s[8:11], s65 offen", f"s_add_u32 s65, s65, {1024*rows2}"] for j in range((14 // rows2 + 2) // 3)]
            else:
                pf = [[f"buffer_load_dwordx4 {a(192+4*(n+2*j+m_),4)}, v{VX}, s[{40+4*m_}:{43+4*m_}], s64 offen"] + ([f"s_add_u32 s64, s64, 3584"] if m_ else []) for j in range(2) for m_ in range(2)]
            sc.add(pf, 40, 56)
        return f
    k.loop(sST, 3, lambda: (iteration(1, extra=xpf(0)), iteration(0, extra=xpf(1))), align=3)
    stamp(k, "it1-6")
    OM = MX + 4
    def finalize(dt, qt):
        b = Q + 16 * ((2 * dt + qt) % 4)
        o = [f"v_accvgpr_read_b32 v{b+i}, a{O+32*dt+16*qt+i}" for i in range(16)]
        if dt == 0: o += [f"v_max3_f32 v{OM+qt}, |v{b+i}|, |v{b+i+1}|, v{OM+qt}" for i in range(0, 16, 2)]
        o += [f"v_pk_mul_f32 {v(b+i,2)}, {v(b+i,2)}, {v(RL,2)} op_sel:[0,{qt}] op_sel_hi:[1,{qt}]" for i in range(0, 16, 2)]
        for sp in range(2):
            o += [f"v_cvt_pk_bf16_f32 v{b+8*sp+j}, v{b+8*sp+2*j}, v{b+8*sp+2*j+1}" for j in range(4)]
            o.append(L(lambda sp=sp: k(f"ds_write_b128 v{STT+dt}, {v(b+8*sp,4)} offset:{32768*qt+1024*sp}", token="hw"), 22, "d"))
        return o
    f0 = finalize(0, 0); f1 = finalize(0, 1)
    def o_dma(st):
        slot = st % 6
        o = [f"s_add_u32 m0, s{sRING}, {4096*slot+0x100000-0x100000}" if slot < 4 else f"s_add_u32 m0, s31, {L_K+16384*(slot-4)}",
             f"buffer_load_dwordx4 v{VDW}, s[20:23], s{sKhi} offen lds"]
        for n in range(1, 4):
            o.append(L(lambda n=n: k(f"buffer_load_dwordx4 v{VDW+n}, s[20:23], s{sKhi} offen offset:{1024*n} lds", token=f"W{slot}"), 10, "v"))
        o.append(f"s_add_u32 s{sKhi}, s{sKhi}, 16384")
        if st & 1: o.append(f"s_and_b32 s{sKhi}, s{sKhi}, 0x7ffff")
        return o
    OA = [0, 32]; OB = [160, 176]
    OA = [192, 224]
    V16 = VW
    def oa_reads(u, half):
        s0 = 2 * (u % 3)
        rd = [f"ds_read_b64_tr_b16 {a(OA[u%2]+8*p+4*e+2*uu,2)}, v{(V16 if s0 < 4 else VV)+p} offset:{(4096*s0 if s0 < 4 else 0)+1024*uu+8*e}" for p in range(2 * half, 2 * half + 2) for e in range(2) for uu in range(2)]
        return [[L(lambda: k.wait(f"W{s0}", f"W{s0+1}")), rd[0]]] + rd[1:]
    def ob_reads(u):
        return [f"ds_read_b128 {a(OB[u%2]+4*r4,4)}, v{VLO} offset:{2048*u+32768*(r4>>1)+256*(r4&1)}" for r4 in range(4)]
    def x_last(sc):
        sc.add([f"s_lshl_b32 s31, s{sW}, 12"] + flat(o_dma(s_) for s_ in range(5)), 0, 38)
        sc.add(o_dma(5), 41, 48)
        fin = [f"v_mov_b32 v{MX}, v{LS}", f"v_mov_b32 v{MX+1}, v{LS+1}", f"v_mov_b32 v{OM}, 0", f"v_mov_b32 v{OM+1}, 0",
               f"v_permlane32_swap_b32 v{LS}, v{MX}", f"v_permlane32_swap_b32 v{LS+1}, v{MX+1}",
               f"v_add_f32 v{LS}, v{LS}, v{MX}", f"v_add_f32 v{LS+1}, v{LS+1}, v{MX+1}",
               f"v_rcp_f32 v{RL}, v{LS}", f"v_rcp_f32 v{RL+1}, v{LS+1}", f"v_max_f32 v{MX+6}, v{LS}, v{LS+1}"]
        adr = [[f"s_lshl_b32 s57, s{sW}, 3", f"s_sub_u32 s57, s57, s{sR8}"]]
        for dt in range(4):
            adr += [[f"s_add_u32 s56, s57, {2*dt}", "s_and_b32 s56, s56, 31", "s_lshl_b32 s56, s56, 10"], f"v_add_u32 v{STT+dt}, s56, v{VLIN}"]
        adr += [f"v_lshl_add_u32 v{tm}, v{ROWL}, 3, v{r_}", f"v_lshlrev_b32 v{tm}, 8, v{tm}", f"v_and_b32 v{tm+1}, 1, v{LN_}", f"v_lshl_add_u32 v{tm}, v{tm+1}, 4, v{tm}",
                f"v_add_u32 v{tm}, s{sRING}, v{tm}", f"v_lshl_add_u32 v{tm+1}, v{gn}, 2, v{r_}", f"v_bfe_u32 v{tm+2}, v{LN_}, 1, 1", f"v_xor_b32 v{tm+1}, v{tm+1}, v{tm+2}",
                f"v_lshl_add_u32 v{V16}, v{tm+1}, 5, v{tm}"] + [f"v_xor_b32 v{V16+p}, {64*p}, v{V16}" for p in range(1, 4)]
        adr += [f"v_and_b32 v{tm+1}, 15, v{LN_}", f"v_lshlrev_b32 v{tm+1}, 4, v{tm+1}", f"v_lshl_add_u32 v{HW}, v{ROWL}, 9, v{tm+1}", f"v_add_u32 v{VLO}, {L_H}, v{HW}"]
        sc.add(adr, 0, 19)
        sc.add(fin, 39, 43)
        sc.pin(40, L(lambda: k("s_barrier")))
        sc.add(oa_reads(0, 0), 40, 46, prio=1)
        sc.add(f0[:16] + f1[:12], 43, 48)
    iteration(1, last=True, extra=x_last)
    stamp(k, "it7")
    k(f"s_load_dwordx2 s[46:47], s[0:1], {A_X}")
    k(f"s_load_dwordx2 s[48:49], s[0:1], {A_OUT}")
    put(k, oa_reads(0, 1))
    k(f"s_sub_u32 s3, s31, s{sRING}"); k(f"v_mul_u32_u24 v{tm}, 12288, v{h_}"); k(f"v_add_u32 v{tm}, s3, v{tm}")
    for p in range(4): k(f"v_add_u32 v{VV+p}, v{V16+p}, v{tm}")
    put(k, f0[16:] + f1[12:])
    for dt in range(1, 4):
        for qt in range(2): put(k, finalize(dt, qt))
    k.wait_all(vm=False); k("s_barrier")
    put(k, ob_reads(0))
    stamp(k, "owrite")
    sc = Sched(512, budget=P['OBUD']); mf = []
    for u in range(16):
        g0 = 32 * u
        if u + 1 < 16:
            sc.add(ob_reads(u + 1) + oa_reads(u + 1, 0) + oa_reads(u + 1, 1), g0 + P["ORD0"], g0 + 28, prio=1)
            sc.pin(g0 + 31, L(lambda u=u: k.wait_regs(a(OA[(u + 1) % 2], 32), a(OB[(u + 1) % 2], 16))), end=True)
        if u + 3 < 16: sc.add(o_dma(2 * u + 6) + o_dma(2 * u + 7), g0, g0 + P["ODE"])
        for t_ in range(8):
            for r4 in range(4):
                d = v(ACC + 32 * (t_ // 2) + 8 * r4 + 4 * (t_ % 2), 4)
                mf.append(f"v_mfma_f32_16x16x32_bf16 {d}, {a(OA[u%2]+4*t_,4)}, {a(OB[u%2]+4*r4,4)}, {'0' if u == 0 else d}")
    misc = [f"v_min_f32 v{OM}, v{OM}, v{OM+1}", f"v_cmp_ngt_f32 vcc, {f32(2.0**120)}, v{MX+6}", "s_mov_b64 s[62:63], vcc",
            f"v_cmp_gt_f32 vcc, {f32(2.0**-112 if not P['FORCE_FB'] else 2.0**100)}, v{OM}", "s_or_b64 s[62:63], s[62:63], vcc",
            f"v_mov_b32 v{MX+1}, s{sRING}", f"v_and_b32 v{MX+7}, 3, v{LN_}", f"v_lshlrev_b32 v{MX+7}, 14, v{MX+7}", f"v_add_u32 v{MX+7}, {L_W}, v{MX+7}", f"v_mov_b32 v{MX+2}, 0", f"v_mov_b32 v{MX+3}, 0x7f800000",
            f"s_lshl_b32 s{sT2}, s{sG}, 21", f"s_lshl_b32 s{sT1}, s{sRB}, 16", f"s_add_u32 s{sT2}, s{sT2}, s{sT1}",
            f"s_lshl_b32 s{sT1}, s{sW}, 13", f"s_add_u32 s{sT2}, s{sT2}, s{sT1}", f"s_add_u32 s{sT2}, s{sT2}, {WS_P:#x}",
            "s_mov_b32 s12, s46", "s_and_b32 s13, s47, 0xffff", "s_mov_b32 s14, 0x200000", "s_mov_b32 s15, 0x20000",
            "s_mov_b32 s16, s68", "s_and_b32 s17, s69, 0xffff", "s_mov_b32 s18, 0x100", "s_mov_b32 s19, 0x20000",
            f"s_lshl_b32 s5, s{sRB}, 3", f"s_add_u32 s5, s5, s{sG}", "s_lshl_b32 s5, s5, 13",
            f"v_and_b32 v{tm}, 7, v{LN_}", f"v_lshrrev_b32 v{tm+1}, 3, v{LN_}", f"v_lshl_add_u32 v{tm+1}, s{sW}, 4, v{tm+1}",
            f"v_lshlrev_b32 v{VK}, 10, v{tm}", f"v_lshl_add_u32 v{VK}, v{tm+1}, 4, v{VK}", f"v_lshlrev_b32 v{VK+1}, 5, v{tm+1}",
            f"buffer_load_dword v{VK+2}, v{MX+2}, s[16:19], 0 offen sc1"]
    sc.add(misc, 8, 260)
    def cspin():
        k("s_mov_b32 s3, 0"); k("s_branch CCHK"); st = dict(k.vm)
        k.label("CPOLL")
        k(f"buffer_load_dword v{VK+2}, v{MX+2}, s[16:19], 0 offen sc1"); k.wait_all(lg=False)
        k.label("CCHK"); k.vm = st
        k("s_add_u32 s3, s3, 1"); k(f"v_cmp_gt_u32 vcc, 0x100, v{VK+2}")
        k("s_cmp_gt_u32 s3, 0x8000"); k("s_cbranch_scc1 CDONE"); k("s_cbranch_vccnz CPOLL")
        k.label("CDONE")
    sc.pin(417, L(cspin, 24))
    xm = [f"buffer_load_dwordx4 {v(128+4*i,4)}, v{VK}, s[12:15], s5 offen offset:{128*i}" for i in range(2)]
    for base, m_ in ((136, 2), (152, 4), (168, 3)):
        xm += [f"s_mov_b32 s4, {WS_MOD + m_*2048}"] + [f"buffer_load_dwordx4 {v(base+8*i+4*hh,4)}, v{VK+1}, s[24:27], s4 offen offset:{256*i+16*hh} sc1" for i in range(2) for hh in range(2)]
    sc.add(xm, 419, 490)
    for m, f_ in zip(mf, sc.run()): k(m); put(k, f_)
    stamp(k, "ogemm")
    for r4 in range(4):
        k(f"v_cmp_nlt_f32 vcc, |v{ACC+8*r4}|, v{MX+3}"); k("s_or_b64 s[62:63], s[62:63], vcc")
    k(f"s_cselect_b32 s{sT1}, 1, 0"); k(f"v_mov_b32 v{MX}, s{sT1}")
    k(f"ds_write_b32 v{MX+1}, v{MX}", token="fl")
    for p in range(4):
        if p == 1: k.wait("fl"); k("s_barrier"); k(f"ds_read_b32 v{STT}, v{MX+7}")
        for r4 in range(4):
            if r4 % 2 == 0: k(f"s_add_u32 s{sT1}, s{sT2}, {32768*(r4>>1) + 2048*p}")
            b = ACC + 32 * p + 8 * r4
            for j in range(4): k(f"v_cvt_pk_bf16_f32 v{b+j}, v{b+2*j}, v{b+2*j+1}")
            k(f"buffer_store_dwordx4 {v(b,4)}, v{HW}, s[24:27], s{sT1} offen offset:{256*(r4&1)} sc1", token="PST")
    k(f"v_cmp_lt_u32 vcc, s{sFB}, v{STT}")
    k("s_cbranch_vccnz FALLBACK")
    tail(sys.modules[__name__], k)
    stamp_flush(k, 0)
    k.label("END_attn"); k("s_endpgm")
    k.label("FALLBACK")
    k.wait_all(); k("s_barrier")
    k(f"s_mov_b32 s{sFB}, 1")
    k("s_nop 15")
    k("s_branch RESTART")
    k.label("FB_MAX")
    k.wait_all(); k("s_barrier")
    k(f"v_mov_b32 v{MX+4}, 0xff800000"); k(f"v_mov_b32 v{MX+5}, 0xff800000")
    def fbody():
        put(k, kv_dma("K", L_K, sO0) + nxt(sO0, sO0)); k.wait("K"); k("s_barrier")
        for s_ in range(8): put(k, rdK(s_, s_, L_K))
        for s_ in range(8):
            for qt in range(2): k(qk(s_, s_, qt, 0, True))
        put(k, maxops(0, MX))
        k(f"v_max_f32 v{MX+4}, v{MX+4}, v{MX}"); k(f"v_max_f32 v{MX+5}, v{MX+5}, v{MX+1}")
        k("s_barrier")
    k.loop(sST, 16, fbody)
    put(k, xhalf_max(MX + 4, MX + 2))
    for qt in range(2): k(f"v_sub_f32 v{MX+4+qt}, 0, v{MX+4+qt}")
    put(k, kfirst)
    k.wait_all(); k("s_barrier")
    for f in range(4): put(k, rdK(f, f, L_K + 16384 + 8192))
    qk0(False)
    k.wait_all()
    k("s_branch IT0")
    return k

from gen27_tail import tail

HEADER = open('adaLN_cond__sliding_block_cached__geglu_ffn__prompt.s.ref').read().split("; Override launch")[0]

if __name__ == "__main__":
    out = sys.argv[1] if len(sys.argv) > 1 else "k.s"
    me = sys.modules[__name__]
    ks = [gen_attn()]
    ks[-1].label("CODE_END")
    txt = emit(ks, header=HEADER)
    if P.get("SINGLE"): txt = txt.replace("; @launch kernel=" + KNAME + " ", "; @launch ")
    open(out, "w").write(txt)
    json.dump([[k.name, k.grid, k.block//64, k.stamps] for k in ks], open(out[:-2]+".json","w"))
    for k in ks: print(k.name, "regs(v,a,s)", k.used, "nops", k.n_nops, "misal", k.n_mis, "instrs", len(k.items))
```

```python
import re

def v(i, n=1): return f"v{i}" if n == 1 else f"v[{i}:{i+n-1}]"
def a(i, n=1): return f"a{i}" if n == 1 else f"a[{i}:{i+n-1}]"
def s(i, n=1): return f"s{i}" if n == 1 else f"s[{i}:{i+n-1}]"

_REG = re.compile(r"^-?\|?(?:abs\()?([vas])(?:(\d+)|\[(\d+):(\d+)\])\)?\|?$")
def regs_of(tok):
    tok = tok.strip()
    if tok in ("vcc",): return {("s", 106), ("s", 107)}
    if tok == "vcc_lo": return {("s", 106)}
    if tok == "vcc_hi": return {("s", 107)}
    if tok == "exec": return {("s", 126), ("s", 127)}
    if tok == "exec_lo": return {("s", 126)}
    if tok == "m0": return {("s", 124)}
    m = _REG.match(tok)
    if not m: return set()
    f = m.group(1)
    if m.group(2) is not None: lo = hi = int(m.group(2))
    else: lo, hi = int(m.group(3)), int(m.group(4))
    return {(f, i) for i in range(lo, hi + 1)}

def split_ops(rest):
    ops, depth, cur = [], 0, ""
    for ch in rest + ",":
        if ch in "[(": depth += 1
        elif ch in "])": depth -= 1
        if ch == "," and depth == 0:
            ops.append(cur.strip()); cur = ""
        else: cur += ch
    ops = [o for o in ops if o]
    mods = []
    out = []
    for o in ops:
        p = o.split()
        out.append(p[0]); mods += p[1:]
    return out, mods

TRANS = ("v_exp_f32", "v_log_f32", "v_rcp_f32", "v_rsq_f32", "v_sqrt_f32", "v_sin_f32", "v_cos_f32", "v_rcp_iflag_f32")

class Ins:
    __slots__ = ("text", "mn", "ops", "mods", "rd", "wr", "kind", "passes", "srcC", "srcAB", "token", "label", "target", "nops", "dpp", "wide_store")
    def __init__(self, text, token=None):
        self.text = text.strip()
        self.token = token
        self.label = None; self.target = None; self.nops = 1; self.passes = 0
        self.srcC = set(); self.srcAB = set(); self.dpp = False; self.wide_store = set()
        t = self.text.split(";")[0].strip()
        sp = t.split(None, 1)
        self.mn = mn = sp[0]
        self.ops, self.mods = split_ops(sp[1]) if len(sp) > 1 else ([], [])
        ops = self.ops
        R = lambda idxs: set().union(*[regs_of(ops[i]) for i in idxs if i < len(ops)]) if idxs else set()
        n = len(ops)
        rd, wr = set(), set()
        base = re.sub(r"_(e32|e64|dpp|sdwa)$", "", mn)
        if mn.startswith("v_mfma"):
            self.kind = "mfma"
            wr = R([0]); self.srcAB = R([1, 2]); self.srcC = R([3]); rd = self.srcAB | self.srcC
            self.passes = 8 if "32x32x16" in mn else 4
        elif mn.startswith("v_"):
            self.kind = "trans" if base in TRANS else "valu"
            self.dpp = mn.endswith("_dpp") or any(m.startswith(("row_", "quad_perm", "wave_")) for m in self.mods)
            if base.startswith("v_cmp"):
                wr = R([0]); rd = R(range(1, n))
                if base.startswith("v_cmpx"): wr |= regs_of("exec")
            elif base in ("v_permlane32_swap_b32", "v_permlane16_swap_b32", "v_swap_b32"):
                wr = R([0, 1]); rd = R([0, 1]); self.kind = "permlane" if "permlane" in base else "valu"
            elif base in ("v_add_co_u32", "v_sub_co_u32", "v_subrev_co_u32", "v_addc_co_u32", "v_subb_co_u32", "v_div_scale_f32", "v_mad_u64_u32"):
                wr = R([0, 1]); rd = R(range(2, n))
            elif base in ("v_fmac_f32", "v_dot2c_f32_bf16", "v_pk_fmac_f16", "v_writelane_b32"):
                wr = R([0]); rd = R(range(0, n))
            elif base in ("v_readfirstlane_b32", "v_readlane_b32"):
                wr = R([0]); rd = R(range(1, n)); self.kind = "readlane"
            else:
                wr = R([0]); rd = R(range(1, n))
                if base == "v_cndmask_b32" and n == 3: rd |= regs_of("vcc")
                if base == "v_div_fmas_f32": rd |= regs_of("vcc")
                if self.dpp or "sdwa" in mn: rd |= R([0])
        elif mn.startswith("ds_"):
            self.kind = "ds"
            if mn.startswith(("ds_read", "ds_bpermute", "ds_permute", "ds_swizzle")):
                wr = R([0]); rd = R(range(1, n))
            elif "_rtn" in mn:
                wr = R([0]); rd = R(range(1, n))
            else:
                rd = R(range(0, n))
        elif mn.startswith(("buffer_", "global_")):
            self.kind = "vmem"
            lds = "lds" in self.mods or "_lds_" in mn
            if mn in ("buffer_wbl2", "buffer_inv"):
                pass
            elif "load" in mn and not lds:
                wr = R([0]); rd = R(range(1, n))
            elif "atomic" in mn and "sc0" in self.mods:
                if mn.startswith("buffer_"): wr = R([0]); rd = R(range(0, n))
                else: wr = R([0]); rd = R(range(1, n))
            else:
                rd = R(range(0, n))
                if lds: rd |= regs_of("m0")
                if "store" in mn and ("x4" in mn or "x3" in mn):
                    self.wide_store = R([0]) if mn.startswith("buffer_") else R([1])
        elif mn.startswith(("s_load", "s_buffer_load", "s_memtime", "s_memrealtime", "s_atomic")):
            self.kind = "smem"; wr = R([0]); rd = R(range(1, n))
        elif mn == "s_nop":
            self.kind = "nop"; self.nops = int(ops[0], 0) + 1
        elif mn in ("s_waitcnt", "s_barrier", "s_endpgm", "s_setprio", "s_sleep"):
            self.kind = "misc"
        elif mn.startswith(("s_branch", "s_cbranch")):
            self.kind = "branch"; self.target = ops[0]
        elif mn.startswith("s_"):
            self.kind = "salu"
            if mn.startswith("s_cmp") or mn.startswith("s_bitcmp"): rd = R(range(0, n))
            else:
                wr = R([0]); rd = R(range(1, n))
                if "saveexec" in mn: wr |= regs_of("exec")
                if mn in ("s_addk_i32", "s_mulk_i32"): rd |= R([0])
        else:
            raise ValueError("unknown instruction " + text)
        self.rd, self.wr = rd, wr

VOP3_ONLY = ("v_fma_f32", "v_max3_f32", "v_min3_f32", "v_med3_f32", "v_maximum3_f32", "v_minimum3_f32", "v_cvt_pk_bf16_f32", "v_lshl_add_u32", "v_add_lshl_u32",
             "v_lshl_or_b32", "v_and_or_b32", "v_or3_b32", "v_add3_u32", "v_bfe_u32", "v_bfe_i32", "v_bfi_b32", "v_mul_lo_u32", "v_mul_hi_u32", "v_mad_u32_u24",
             "v_perm_b32", "v_readlane_b32", "v_writelane_b32", "v_accvgpr_read_b32", "v_accvgpr_write_b32", "v_ldexp_f32", "v_mbcnt_lo_u32_b32", "v_mbcnt_hi_u32_b32",
             "v_dot2_f32_bf16", "v_bitop3_b32", "v_alignbit_b32", "v_div_scale_f32", "v_div_fmas_f32", "v_div_fixup_f32", "v_lshlrev_b64")
_INL = {"0.5", "-0.5", "1.0", "-1.0", "2.0", "-2.0", "4.0", "-4.0"}
_INLBITS = {0x3f000000, 0xbf000000, 0x3f800000, 0xbf800000, 0x40000000, 0xc0000000, 0x40800000, 0xc0800000, 0x3e22f983}
def is_literal(tok):
    if tok in _INL or regs_of(tok) or tok in ("off", "scc", "exec_lo", "exec_hi"): return False
    try:
        x = int(tok, 0)
        if -16 <= x <= 64: return False
        if x & 0xffffffff in _INLBITS or (x & 0xffffffff) >= 0xfffffff0: return False
        return True
    except ValueError:
        return True
def ins_size(i):
    mn = i.mn
    if i.kind in ("mfma", "ds", "vmem", "smem"): return 8
    if mn.startswith("v_"):
        if mn.endswith(("_e64", "_dpp", "_sdwa")) or i.dpp or mn.startswith("v_pk_") or mn in VOP3_ONLY: return 8
        if any(o.startswith(("-", "|", "abs")) and regs_of(o) for o in i.ops): return 8
        if mn.startswith("v_cmp") and i.ops[0] != "vcc": return 8
        if mn in ("v_fmamk_f32", "v_fmaak_f32"): return 8
        srcs = i.ops[1:]
        if mn == "v_cndmask_b32" and len(i.ops) == 4 and i.ops[3] != "vcc": return 8
        if len(srcs) >= 2 and not srcs[1].startswith("v") and mn not in ("v_add_co_u32", "v_addc_co_u32"): return 8
        return 8 if any(is_literal(o) for o in srcs) else 4
    if i.kind in ("nop", "misc", "branch"): return 4
    if mn.startswith(("s_movk", "s_addk", "s_mulk", "s_cmpk", "s_getreg", "s_getpc")): return 4
    ops = i.ops if mn.startswith(("s_cmp", "s_bitcmp")) else i.ops[1:]
    return 8 if any(is_literal(o) for o in ops) else 4
def widenable(i):
    return i.kind in ("valu", "trans") and ins_size(i) == 4 and not i.mn.endswith("_e32") and i.mn not in ("v_readfirstlane_b32", "v_nop") and not i.mn.startswith(("v_permlane", "v_accvgpr", "v_fmac", "v_dot2c"))

def op_cost(x):
    if isinstance(x, list): return sum(op_cost(y) for y in x)
    if callable(x): return getattr(x, "cost", 4)
    mn = x.split()[0]
    if mn.startswith(TRANS) or mn.startswith("v_permlane"): return 8
    if mn.startswith(("buffer_", "global_")): return 10
    if mn.startswith("ds_write_b128"): return 22
    return 4
def has_mem(x):
    if isinstance(x, list): return any(has_mem(y) for y in x)
    if callable(x): return getattr(x, "mem", False)
    return x.startswith(("ds_", "buffer_", "global_"))
def has_vmem(x):
    if isinstance(x, list): return any(has_vmem(y) for y in x)
    if callable(x): return getattr(x, "mem", False) == "v"
    return x.startswith(("buffer_", "global_"))
def has_valu(x):
    if isinstance(x, list): return any(has_valu(y) for y in x)
    if callable(x): return False
    return x.startswith("v_")

class Sched:
    def __init__(self, n, budget=24):
        self.n = n; self.budget = budget; self.streams = []; self.pinned = [[] for _ in range(n)]; self.pinned_end = [[] for _ in range(n)]
    def pin(self, g, x, end=False): (self.pinned_end if end else self.pinned)[g].append(x)
    def add(self, ops, g0, g1, prio=0):
        if ops: self.streams.append(dict(ops=list(ops), g0=g0, g1=g1, i=0, prio=prio))
    def run(self):
        fill = []
        for g in range(self.n):
            c = op_cost(self.pinned[g]) + op_cost(self.pinned_end[g])
            for s_ in self.streams: s_["cur"] = []; s_["blk"] = False
            while True:
                cand = [s_ for s_ in self.streams if s_["i"] < len(s_["ops"]) and s_["g0"] <= g and not s_["blk"]]
                if not cand: break
                def lag(s_):
                    return s_["g0"] + (s_["i"] + 0.5) * (s_["g1"] - s_["g0"]) / len(s_["ops"]) - g - s_["prio"]
                must = [x for x in cand if x["g1"] - 1 <= g]
                s_ = must[0] if must else min(cand, key=lag)
                op = s_["ops"][s_["i"]]; cc = op_cost(op)
                if not must:
                    if lag(s_) + s_["prio"] > 1.5 or (c + cc > self.budget and c > 0 and lag(s_) > -4) or (has_mem(op) and has_valu(s_["cur"])):
                        s_["blk"] = True; continue
                s_["cur"].append(op); c += cc; s_["i"] += 1
            front, back = [], []
            for s_ in self.streams:
                cur = s_["cur"]; n = 0
                for j, x in enumerate(cur):
                    if has_valu(x): break
                    if has_mem(x): n = j + 1
                if n: front.append(cur[:n])
                back += cur[n:]
            front.sort(key=lambda x: 0 if has_vmem(x) else 1)
            pf = [x for x in self.pinned[g] if not has_valu(x)]; pb = [x for x in self.pinned[g] if has_valu(x)]
            fill.append(pf + [y for x in front for y in x] + pb + back + self.pinned_end[g])
        for s_ in self.streams: assert s_["i"] == len(s_["ops"]), "unscheduled ops"
        return fill

class Label:
    def __init__(self, name): self.name = name; self.kind = "label"; self.nops = 0; self.text = name + ":"
class Raw:
    def __init__(self, text): self.text = text; self.kind = "raw"; self.nops = 0

def isV(r): return r[0] in "va"

def need(p, c):
    n = 0
    pk, ck = p.kind, c.kind
    VALU = ("valu", "trans", "permlane", "readlane")
    if pk in VALU:
        wv = {r for r in p.wr if isV(r)}; ws = {r for r in p.wr if r[0] == "s"}
        if ck == "mfma" and wv & c.rd: n = max(n, 2)
        if ck == "permlane" and wv & c.rd: n = max(n, 2)
        if ck in VALU and c.dpp and wv & c.rd: n = max(n, 2)
        if ck == "readlane" and wv & c.rd: n = max(n, 1)
        if pk == "trans" and ck in VALU + ("mfma",) and ck != "trans" and wv & c.rd: n = max(n, 1)
        if pk == "trans" and ck in ("ds", "vmem") and wv & c.rd: n = max(n, 1)
        if ws:
            if ck == "vmem" and ws & c.rd: n = max(n, 5)
            if ck in VALU and ws & c.rd: n = max(n, 4 if ck == "readlane" or c.mn.startswith(("v_div_fmas", "v_writelane")) else 2)
            if ck == "salu" and ws & c.rd: n = max(n, 1)
            if ck == "branch" and c.mn in ("s_cbranch_vccz", "s_cbranch_vccnz") and ws & regs_of("vcc"): n = max(n, 5)
            if ws & regs_of("exec"):
                if ck == "mfma" or ck == "permlane" or ck == "readlane": n = max(n, 4)
                if ck in VALU and c.dpp: n = max(n, 5)
        if "sdwa" in p.mn and ck in VALU and wv & (c.rd | c.wr): n = max(n, 1)
    if pk == "salu":
        if ("s", 124) in p.wr and ck == "vmem" and ("s", 124) in c.rd: n = max(n, 1)
    if pk == "vmem" and p.wide_store:
        if p.wide_store & c.wr: n = max(n, 2 if ck in VALU else 1)
    if pk == "mfma":
        P = p.passes
        tab = {4: (6, 8, 3), 8: (10, 12, 7)}[P]
        if ck == "mfma":
            if p.wr & c.srcAB: n = max(n, tab[1])
            if p.wr & c.srcC and not (p.wr == c.srcC and c.passes == P): n = max(n, tab[0])
            if p.wr & c.wr and not (p.wr == c.wr and c.passes == P and p.wr == c.srcC): n = max(n, tab[0])
        elif ck in VALU:
            if p.wr & (c.rd | c.wr): n = max(n, tab[1])
            if p.srcC & c.wr: n = max(n, tab[2])
        elif ck in ("ds", "vmem"):
            if p.wr & (c.rd | c.wr): n = max(n, tab[1])
    return n

class Kernel:
    def __init__(self, name, grid, block, lds, vgpr=256, agpr=0, sgpr=102):
        self.name, self.grid, self.block, self.lds = name, grid, block, lds
        self.vgpr, self.agpr, self.sgpr = vgpr, agpr, sgpr
        self.items = []
        self.nlab = 0
        self.vm = {}; self.lg = {}
        self.smem_pending = False
        self.auto = True
    def _emit_wait(self, vm=None, lg=None):
        parts = []
        if vm is not None:
            vm = min(vm, 63); parts.append(f"vmcnt({vm})")
            self.vm = {k: p for k, p in self.vm.items() if p < vm}
        if lg is not None:
            lg = min(lg, 15); parts.append(f"lgkmcnt({lg})")
            self.lg = {k: p for k, p in self.lg.items() if p < lg}
            if lg == 0: self.smem_pending = False
        if parts: self.items.append(Ins("s_waitcnt " + " ".join(parts)))
    def wait(self, *tokens):
        vm = [self.vm[t] for t in tokens if t in self.vm]
        lg = [self.lg[t] for t in tokens if t in self.lg]
        self._emit_wait(min(vm) if vm else None, (0 if self.smem_pending else min(lg)) if lg else None)
    def wait_regs(self, *toks):
        rs = set().union(*[regs_of(x) for x in toks])
        self.wait(*rs)
    def wait_all(self, vm=True, lg=True):
        self._emit_wait(0 if vm else None, 0 if lg else None)
    def __call__(self, line, token=None):
        ins = Ins(line, token)
        if ins.mn == "s_waitcnt":
            m = re.search(r"vmcnt\((\d+)\)", line); vm = int(m.group(1)) if m else None
            m = re.search(r"lgkmcnt\((\d+)\)", line); lg = int(m.group(1)) if m else None
            self._emit_wait(vm, lg); return
        if self.auto:
            touched = ins.rd | ins.wr
            vm = [p for k, p in self.vm.items() if k in touched]
            lg = [p for k, p in self.lg.items() if k in touched]
            if vm or lg:
                self._emit_wait(min(vm) if vm else None, (0 if self.smem_pending else min(lg)) if lg else None)
        self.items.append(ins)
        if ins.kind == "vmem":
            self.vm = {k: p + 1 for k, p in self.vm.items()}
            for r in ins.wr: self.vm[r] = 0
            if token: self.vm[token] = 0
        elif ins.kind == "ds":
            self.lg = {k: p + 1 for k, p in self.lg.items()}
            for r in ins.wr: self.lg[r] = 0
            if token: self.lg[token] = 0
        elif ins.kind == "smem":
            self.smem_pending = True
            self.lg = {k: p + 1 for k, p in self.lg.items()}
            for r in ins.wr: self.lg[r] = 0
    def label(self, l): self.items.append(Label(l))
    def raw(self, t): self.items.append(Raw(t))
    def align(self, p2): self.items.append(Raw(f".p2align {p2}"))
    def newlabel(self, base="L"):
        self.nlab += 1
        return f"{base}_{self.name[:12]}_{self.nlab}"
    def comment(self, c): self.items.append(Raw("    ; " + c))
    @staticmethod
    def _merge(x, y):
        out = dict(x)
        for k, p in y.items(): out[k] = min(p, out[k]) if k in out else p
        return out
    def loop(self, counter, n, body, align=None):
        self(f"s_mov_b32 s{counter}, 0")
        lab = self.newlabel("LOOP")
        st = (dict(self.vm), dict(self.lg))
        mark = len(self.items); nl = self.nlab
        for it in range(10):
            del self.items[mark:]; self.nlab = nl
            self.vm, self.lg = dict(st[0]), dict(st[1])
            if align: self.align(align)
            self.label(lab)
            body()
            self(f"s_add_u32 s{counter}, s{counter}, 1")
            self(f"s_cmp_lt_u32 s{counter}, {n}")
            self(f"s_cbranch_scc1 {lab}")
            new = (self._merge(st[0], self.vm), self._merge(st[1], self.lg))
            if new == st: break
            st = new
        else:
            raise RuntimeError("loop wait state did not converge")
    def finalize(self):
        items = self.items
        out = []
        W = 24
        def window(seq):
            res = []; d = 0
            for it in reversed(seq):
                if it.kind in ("label", "raw"): continue
                res.append((it, d))
                d += it.nops
                if d > W: break
            return res
        nins = 0
        for it in items:
            if it.kind not in ("label", "raw"):
                req = 0
                for p, d in window(out):
                    req = max(req, need(p, it) - d)
                while req > 0:
                    c = min(req, 16); out.append(Ins(f"s_nop {c-1}")); req -= c; nins += 1
            out.append(it)
        changed = True
        while changed:
            changed = False
            pos = {it.name: i for i, it in enumerate(out) if it.kind == "label"}
            for i, it in enumerate(out):
                if it.kind == "branch" and it.target in pos:
                    win = window(out[:i + 1])
                    d2 = 0; req = 0
                    for c in out[pos[it.target]:pos[it.target] + 60]:
                        if c.kind in ("label", "raw"): continue
                        for p, d in win: req = max(req, need(p, c) - d - d2)
                        d2 += c.nops
                        if d2 > W or c.kind == "branch" and c.mn == "s_branch": break
                    if req > 0:
                        out.insert(i, Ins(f"s_nop {min(req,16)-1}")); changed = True; nins += 1
                        break
        off = 0; last4 = None; self.n_mis = 0
        pads = []
        for idx, it in enumerate(out):
            if it.kind == "raw":
                m = re.match(r"\.p2align (\d+)", it.text)
                if m: off = 0; last4 = None
                continue
            if it.kind == "label": continue
            sz = ins_size(it)
            if sz == 8 and off % 8:
                if last4 is not None:
                    o = out[last4]; out[last4] = Ins(o.text.replace(o.mn, o.mn + "_e64", 1), o.token); off += 4
                else:
                    run = 0
                    for y in out[idx:idx + 12]:
                        if y.kind in ("raw", "label"): continue
                        if ins_size(y) != 8: break
                        run += 1
                    if run >= 7: pads.append(idx); off += 4
                    else: self.n_mis += 1
            if sz == 8: last4 = None
            elif widenable(it): last4 = idx
            off += sz
        for idx in reversed(pads): out.insert(idx, Ins("s_nop 0"))
        offs = getattr(self, "stub_offs", None)
        if offs:
            res = []; off = 0; started = False; stop = False; marks = []; nxt_ = None
            for it in out:
                if it.kind == "label" and it.name == "WARM_RET":
                    started = True
                    cands = sorted(p * 4096 + o for p in range(64) for o in offs)
                    cands = [c for c in cands if c > off + 256]
                if it.kind == "label" and it.name == self.stub_end: stop = True
                if it.kind == "raw":
                    m = re.match(r"\.p2align (\d+)", it.text)
                    if m: al = 1 << int(m.group(1)); off = (off + al - 1) // al * al
                elif it.kind != "label":
                    if started and not stop and off >= cands[0] and not (res and res[-1].kind == "branch" and res[-1].mn == "s_branch"):
                        while off >= cands[0]: cands.pop(0)
                        marks.append(len(res)); res += [Label(f"STUB{len(marks)-1}"), None, Ins("s_nop 0")]; off += 8
                    off += ins_size(it)
                res.append(it)
            n = len(marks)
            for i, ix in enumerate(marks): res[ix + 1] = Ins(f"s_cbranch_execz {'STUB%d' % (i + 4) if i + 4 < n else 'WARM_RET'}")
            assert n >= 4
            out = res; self.n_stubs = n
        self.items = out
        self.n_nops = nins
        mv = ma = ms = -1
        for it in out:
            if it.kind in ("label", "raw"): continue
            for f, i in it.rd | it.wr:
                if f == "v": mv = max(mv, i)
                elif f == "a": ma = max(ma, i)
                elif i < 102: ms = max(ms, i)
        assert mv < self.vgpr, (self.name, "vgpr", mv, self.vgpr)
        assert ma < self.agpr or ma < 0, (self.name, "agpr", ma, self.agpr)
        assert ms < self.sgpr, (self.name, "sgpr", ms)
        self.used = (mv + 1, ma + 1, ms + 1)
    def text(self):
        out = [f".globl {self.name}", ".p2align 12\n.p2align 8" if getattr(self, "stub_offs", None) else ".p2align 8", f".type {self.name},@function", f"{self.name}:"]
        for it in self.items:
            out.append(it.text if it.kind in ("label", "raw") else "    " + it.text)
        return "\n".join(out) + "\n"
    def desc(self):
        acc = (self.vgpr + 3) // 4 * 4
        nfv = acc + self.agpr if self.agpr else self.vgpr
        return f""".p2align 6
.amdhsa_kernel {self.name}
  .amdhsa_next_free_vgpr {nfv}
  .amdhsa_next_free_sgpr {self.sgpr}
  .amdhsa_accum_offset {acc}
  .amdhsa_group_segment_fixed_size 0
  .amdhsa_kernarg_size 112
  .amdhsa_user_sgpr_count 2
  .amdhsa_user_sgpr_kernarg_segment_ptr 1
  .amdhsa_system_sgpr_workgroup_id_x 1
  .amdhsa_float_denorm_mode_32 {getattr(self, 'denorm32', 3)}
  .amdhsa_float_denorm_mode_16_64 3
.end_amdhsa_kernel
"""
    def launch_line(self):
        g, b = self.grid, self.block
        return f"; @launch kernel={self.name} grid=({g},1,1) block=({b},1,1) lds={self.lds}"
    def srd(self, d, ptr, nbytes, off=0):
        if off:
            self(f"s_add_u32 s{d}, s{ptr}, {off:#x}"); self(f"s_addc_u32 s{d+1}, s{ptr+1}, 0"); self(f"s_and_b32 s{d+1}, s{d+1}, 0xffff")
        else:
            self(f"s_mov_b32 s{d}, s{ptr}"); self(f"s_and_b32 s{d+1}, s{ptr+1}, 0xffff")
        self(f"s_mov_b32 s{d+2}, {nbytes:#x}"); self(f"s_mov_b32 s{d+3}, 0x20000")

def emit(kernels, launches=None, header=""):
    launches = launches or kernels
    out = header
    out += "\n".join(k.launch_line() for k in launches) + "\n"
    out += '.amdgcn_target "amdgcn-amd-amdhsa--gfx950"\n.text\n'
    for k in kernels:
        k.finalize()
        out += k.text()
    out += '.section .rodata,"a"\n'
    for k in kernels: out += k.desc()
    return out

def interleave(main, fill, start=0):
    out = []
    n = len(main); m = len(fill)
    j = 0
    for i, x in enumerate(main):
        out.append(x)
        tgt = (i + 1) * m // n
        while j < tgt: out.append(fill[j]); j += 1
    out += fill[j:]
    return out
```

```python
import sys, struct, math, os, json
from asmlib import *

def f32(x): return "0x%08x" % struct.unpack("<I", struct.pack("<f", x))[0]
LOG2E = 1.4426950408889634
CS = 128 ** -0.5
A_X, A_K, A_V, A_WQ, A_WO, B_X, A_WG, A_WU, A_WD, A_C, A_WM, A_OUT, A_DBG, A_WS = [8 * i for i in range(14)]
WS_MOD = 0x0
WS_GO = 0x18000
WS_FL = 0x20000
WS_ST = 0x10000
WS_P = 0x400000
WS_X1 = 0x1400000
WS_H2 = 0x1600000
WS_ACT = 0x1800000
WS_BYTES = 0x10000000
WS_DBG = 0x8000000
P = dict(STAMPS=0, G=2, ROT=1, F1R=8, F2R=8, PREF0=1, PREFC=1, PREFQ=1, PREFK=1, PORD=1, XPRE=0, TLBW=1, PBAR=3, WPOS=1, DEFER=1, SYNC=1, LFIRST=0, SLEEP=2, OSC=1, SLEEP2=4, FW1=6, FW2=20, F2PRE=12, WARM=0, WOFF=1, ORD0=0, ODE=32, OBUD=8, ROLE=0, VP=0, KPOS=0, PFK=0, GS=1, NHID=4, TOUCH=0, N0=4, QP0=10, QBURST=1, TW1=8, TWM=8, TB0=2, HEND=32, APRE=6, BLEAD=4, EEND=64, PUBA=76, WLAG=4, BCHK=10, TW2=5, HPRE=3, PSYS=0, WPRE=2, BURST=54, KEARLY=0, BIAS=100, FORCE_FB=0, PNT=0, PST=2, AST=2, PF1=1, PF2=1)
for kv in os.environ.get("GP", "").split(","):
    if kv: P[kv.split("=")[0]] = int(kv.split("=")[1])

def stamp(k, name):
    if not P["STAMPS"]: return
    SETS = {0: ("start", "mod", "qgemm", "it0", "it1-6", "owrite", "ogemm", "t_set", "end"), 1: ("start", "gemv", "stats", "poll", "mod", "qgemm", "end"),
            3: ("start", "t_set", "poll1", "x1", "poll2", "ffn1", "pub3", "poll3", "end"), 7: ("start", "end"), 6: ("start", "poll2", "passA", "ffn1", "pub3", "poll3", "ffn2", "end"), 4: ("start", "mod", "q0", "q1", "q2", "qgemm", "end"), 5: ("start", "owrite", "q0o", "q1o", "q2o", "ogemm", "end")}
    if name not in SETS[P.get("DG", 0)]: return
    i = len(k.stamps); k.stamps.append(name)
    assert i < 9
    k.sgpr = 102
    k("s_memtime s[80:81]"); k("s_memrealtime s[100:101]"); k("s_waitcnt lgkmcnt(0)")
    k(f"s_mov_b32 s{82+2*i}, s80"); k(f"s_mov_b32 s{83+2*i}, s100")
def stamp_begin(k):
    k.stamps = []
    if not P["STAMPS"]: return
    stamp(k, "start")
def stamp_flush(k, kidx):
    if not P["STAMPS"]: return
    stamp(k, "end")
    if P["STAMPS"] == 2:
        lab = k.newlabel("NODBG")
        k("s_mov_b64 exec, -1")
        k(f"s_xor_b32 s100, s2, {P.get('DWG', 200)}"); k("s_or_b32 s100, s100, s101"); k("s_cmp_lg_u32 s100, 0"); k(f"s_cbranch_scc1 {lab}")
        k(f"s_load_dwordx2 s[66:67], s[0:1], {A_DBG}")
        k.srd(60, 66, 256)
        k("v_mov_b32 v1, 0")
        n = len(k.stamps)
        for j in range(1, n):
            k(f"s_sub_u32 s100, s{77+2*j}, s77"); k("v_mov_b32 v0, s100")
            k(f"buffer_store_dword v0, v1, s[60:63], 0 offen offset:{4*j}")
        k(f"s_sub_u32 s100, s{76+2*(n-1)}, s76"); k("v_mov_b32 v0, s100")
        k(f"buffer_store_dword v0, v1, s[60:63], 0 offen offset:{4*n}")
        k.label(lab)
        return
    k(f"s_load_dwordx2 s[64:65], s[0:1], {A_WS}")
    k("s_mov_b64 exec, -1")
    k.srd(56, 64, WS_BYTES)
    k("s_lshl_b32 s100, s2, 3"); k("s_add_u32 s100, s100, s28"); k("s_lshl_b32 s100, s100, 8")
    k(f"s_add_u32 s100, s100, {WS_DBG + kidx*0x100000:#x}")
    k("v_mov_b32 v1, 0")
    for j, sr in enumerate([82 + i for i in range(2*len(k.stamps))]):
        k(f"v_mov_b32 v0, s{sr}")
        k(f"buffer_store_dword v0, v1, s[56:59], s100 offen offset:{4*j}")

def wave_id(k, sdst, vtmp):
    k(f"v_lshrrev_b32 v{vtmp}, 6, v0")
    k(f"v_readfirstlane_b32 s{sdst}, v{vtmp}")
def rowsum_8(k, val, tmp):
    k(f"v_add_f32_dpp v{val}, v{val}, v{val} row_ror:8 row_mask:0xf bank_mask:0xf")
    k(f"v_mov_b32 v{tmp}, v{val}"); k(f"v_permlane16_swap_b32 v{val}, v{tmp}"); k(f"v_add_f32 v{val}, v{val}, v{tmp}")
    k(f"v_mov_b32 v{tmp}, v{val}"); k(f"v_permlane32_swap_b32 v{val}, v{tmp}"); k(f"v_add_f32 v{val}, v{val}, v{tmp}")
def rnd(k, d, sreg): k(f"v_cvt_pk_bf16_f32 v{d}, 0, v{sreg}")
def lg2(x): return x.bit_length() - 1
def split2(k, sb, sA, sB, nA_per, nB_total, t0, t1):
    A_total = 256 // nB_total; NA = A_total // nA_per
    k(f"s_and_b32 s{t0}, s{sb}, 7"); k(f"s_lshr_b32 s{t1}, s{sb}, 3")
    k(f"s_and_b32 s{sA}, s{t0}, {NA-1}"); k(f"s_lshl_b32 s{sA}, s{sA}, {lg2(nA_per)}")
    k(f"s_and_b32 s{sB}, s{t1}, {nA_per-1}"); k(f"s_add_u32 s{sA}, s{sA}, s{sB}")
    k(f"s_lshr_b32 s{sB}, s{t0}, {lg2(NA)}"); k(f"s_lshl_b32 s{sB}, s{sB}, {lg2(32//nA_per)}")
    k(f"s_lshr_b32 s{t1}, s{t1}, {lg2(nA_per)}"); k(f"s_add_u32 s{sB}, s{sB}, s{t1}")
def lane_tr_parts(k, lane, r, c2, gn, h, tmp):
    k(f"v_bfe_u32 v{r}, v{lane}, 2, 2")
    k(f"v_and_b32 v{c2}, 1, v{lane}"); k(f"v_lshlrev_b32 v{c2}, 1, v{c2}")
    k(f"v_bfe_u32 v{tmp}, v{lane}, 1, 1"); k(f"v_or_b32 v{c2}, v{c2}, v{tmp}")
    k(f"v_bfe_u32 v{gn}, v{lane}, 4, 1")
    k(f"v_lshrrev_b32 v{h}, 5, v{lane}")

QS = CS * LOG2E
GK0 = 2 * math.sqrt(2 / math.pi) * LOG2E
GSC = (GK0 * 0.044715) ** (1 / 3)
KNAME = "adaLN_cond__sliding_block_cached__geglu_ffn__prompt_kernel"
def ln_stats(k, XF):
    k(f"v_pk_add_f32 v[10:11], {v(XF,2)}, {v(XF+2,2)}")
    for e in range(4, 16, 2): k(f"v_pk_add_f32 v[10:11], v[10:11], {v(XF+e,2)}")
    k("v_add_f32 v10, v10, v11")
    def allreduce(off):
        rowsum_8(k, 10, 11)
        k(f"ds_write_b32 v9, v10 offset:{off}", token="w"); k.wait("w"); k("s_barrier")
        k(f"ds_read_b128 {v(12,4)}, v8 offset:{off}")
        k("v_add_f32 v12, v12, v13"); k("v_add_f32 v14, v14, v15"); k("v_add_f32 v10, v12, v14")
    allreduce(0)
    k(f"v_mul_f32 v58, {f32(-1/512)}, v10"); k("v_mov_b32 v59, v58")
    for e in range(0, 16, 2): k(f"v_pk_add_f32 {v(XF+e,2)}, {v(XF+e,2)}, v[58:59]")
    k(f"v_pk_mul_f32 v[10:11], {v(XF,2)}, {v(XF,2)}")
    for e in range(2, 16, 2): k(f"v_pk_fma_f32 v[10:11], {v(XF+e,2)}, {v(XF+e,2)}, v[10:11]")
    k("v_add_f32 v10, v10, v11")
    allreduce(128)
    k(f"v_mov_b32 v11, {f32(1e-5)}"); k(f"v_fmac_f32 v11, {f32(1/512)}, v10")
    k("v_rsq_f32 v56, v11"); k("v_mov_b32 v57, v56")

def gen_ln2():
    k = Kernel("ln2_kernel", 256, 256, 256, vgpr=160, sgpr=64)
    k("s_cmp_ge_u32 s2, 256"); k("s_cbranch_scc1 END_ln2")
    stamp_begin(k)
    k(f"s_load_dwordx2 s[4:5], s[0:1], {A_X}")
    k(f"s_load_dwordx2 s[6:7], s[0:1], {A_WS}")
    k("v_and_b32 v1, 7, v0"); k("v_lshrrev_b32 v2, 3, v0"); k("v_lshrrev_b32 v6, 6, v0")
    k("v_and_b32 v7, 7, v2"); k("v_lshl_add_u32 v7, v6, 4, v7")
    k("v_lshlrev_b32 v3, 9, v7"); k("v_lshl_add_u32 v3, v1, 4, v3")
    k("v_add_u32 v2, 4096, v3")
    k("v_lshlrev_b32 v4, 10, v1"); k("v_lshl_add_u32 v4, v7, 4, v4")
    k("v_lshlrev_b32 v5, 5, v7")
    k("v_lshlrev_b32 v8, 4, v1"); k("v_lshl_add_u32 v9, v6, 2, v8")
    k("s_and_b32 s25, s2, 7"); k("s_lshl_b32 s25, s25, 5"); k("s_lshr_b32 s26, s2, 3"); k("s_add_u32 s25, s25, s26")
    k("s_lshl_b32 s20, s25, 13")
    k("s_lshr_b32 s21, s25, 2"); k("s_lshl_b32 s21, s21, 15"); k("s_and_b32 s22, s25, 3"); k("s_lshl_b32 s22, s22, 7")
    k("s_add_u32 s21, s21, s22")
    k(f"s_add_u32 s23, s21, {WS_P:#x}")
    k.srd(12, 6, WS_BYTES)
    X = 16; XF = 24; MV = 40; PB = 64
    for g in range(8):
        for i in range(2):
            k(f"buffer_load_dwordx4 {v(PB+8*g+4*i,4)}, v{3-i}, s[12:15], s23 offen" + (" nt" if P["PNT"] else ""))
        if g < 7: k("s_add_u32 s23, s23, 0x200000")
    k.srd(8, 4, 2048 * 1024)
    for i in range(2): k(f"buffer_load_dwordx4 {v(X+4*i,4)}, v4, s[8:11], s20 offen offset:{128*i}")
    k("v_mov_b32 v10, 0"); k("s_lshl_b32 s27, s2, 7"); k(f"s_add_u32 s27, s27, {WS_FL:#x}")
    k("buffer_store_dword v10, v10, s[12:15], s27 offen sc1")
    k("s_mov_b32 s24, 0xffff0000")
    def load_mod(base, m):
        k(f"s_mov_b32 s23, {WS_MOD + m*2048}")
        for i in range(2):
            for hh in range(2):
                k(f"buffer_load_dwordx4 {v(base+8*i+4*hh,4)}, v5, s[12:15], s23 offen offset:{256*i+16*hh}")
    def unpack(dst, src):
        k(f"v_lshlrev_b32 v{dst}, 16, v{src}"); k(f"v_and_b32 v{dst+1}, s24, v{src}")
    load_mod(MV, 2); load_mod(128, 4); load_mod(144, 3)
    for q in range(8): unpack(XF + 2 * q, PB + q)
    for g in range(1, 8):
        for q in range(8):
            unpack(10 + 2 * (q & 1), PB + 8 * g + q)
            k(f"v_pk_add_f32 {v(XF+2*q,2)}, {v(XF+2*q,2)}, {v(10+2*(q&1),2)}")
    for q in range(8):
        unpack(10, X + q)
        k(f"v_pk_fma_f32 v[10:11], {v(XF+2*q,2)}, {v(MV+2*q,2)}, v[10:11]")
        k(f"v_cvt_pk_bf16_f32 v{X+q}, v10, v11")
        unpack(XF + 2 * q, X + q)
    k(f"s_add_u32 s23, s21, {WS_X1:#x}")
    for i in range(2): k(f"buffer_store_dwordx4 {v(X+4*i,4)}, v{3-i}, s[12:15], s23 offen sc1")
    stamp(k, "x1")
    ln_stats(k, XF)
    stamp(k, "stats")
    for e in range(0, 16, 2):
        k(f"v_pk_mul_f32 {v(XF+e,2)}, {v(XF+e,2)}, v[56:57]")
        k(f"v_pk_fma_f32 {v(XF+e,2)}, {v(XF+e,2)}, {v(128+e,2)}, {v(144+e,2)}")
        k(f"v_cvt_pk_bf16_f32 v{MV+e//2}, v{XF+e}, v{XF+e+1}")
    k(f"s_add_u32 s23, s21, {WS_H2:#x}")
    for i in range(2): k(f"buffer_store_dwordx4 {v(MV+4*i,4)}, v{3-i}, s[12:15], s23 offen sc1")
    stamp_flush(k, 1)
    k.label("END_ln2"); k("s_endpgm")
    return k

def put(k, seq):
    for x in seq:
        if isinstance(x, list): put(k, x)
        elif callable(x): x()
        else: k(x)

def warm(k, sW):
    k.stub_offs = {1: [0], 2: [0, 128], 3: [0, 2048], 4: [0, 1024, 2048, 3072]}[P["WOFF"]]; k.stub_end = "END_attn"
    k("s_mov_b64 exec, 0")
    for w in range(3): k(f"s_cmp_eq_u32 s{sW}, {w}"); k(f"s_cbranch_scc1 STUB{w}")
    k("s_branch STUB3")
    k.label("WARM_RET")
    k("s_mov_b64 exec, -1")

def gen_attn():
    k = Kernel(KNAME, 256, 256, 163840, vgpr=256, agpr=256, sgpr=82)
    k.denorm32 = P.get("DEN", 3)
    L_K, L_H, L_V, L_W, L_M = 0, 32768, 32768, 98304, 16384
    ACC = 0; S = 0; CI = 64; Q = 128
    VK = 192; VV = 200; VW = 204; VDW = 208; VDK = 212; VDV = 214; VLIN = 215; VL16 = 216
    LS = 217; VLO = 219
    T = 220
    LN_, ROWL, GR16 = T, T + 1, T + 2
    r_, c2, gn, h_, tm = T + 3, T + 4, T + 5, T + 6, T + 7
    CH8 = T + 10; HW = T + 11
    VX = T + 13; VM = T + 15
    MX = T + 16
    STT = T + 24
    RL = T + 28; UT = T + 28
    O = 0; FR = 128; AF = 128; BF = 160
    sW, sG, sRB, sT0, sT1, sRING, sST, sFB, sROT, sT2 = 28, 29, 30, 32, 33, 34, 35, 39, 50, 51
    sE0, sE1, sE2 = 61, 62, 63
    sO0, sO1, sO2, sW2K, sW256, sKhi, sMASK, sCC, sR8 = 36, 37, 38, 52, 54, 55, 58, 59, 6
    TAB = 72
    def L(f, cost=4, mem=False):
        f.cost = cost; f.mem = mem; return f
    k("s_cmp_ge_u32 s2, 256"); k("s_cbranch_scc1 END_attn")
    stamp_begin(k)
    k(f"s_mov_b32 s{sFB}, 0")
    if P["PREFC"]:
        k("s_getpc_b64 s[56:57]")
        k.label("PCREF")
        k(f"s_lshr_b32 s{sT1}, s2, 3"); k(f"s_lshl_b32 s{sT1}, s{sT1}, 12")
        k("v_lshlrev_b32 v108, 4, v0"); k(f"v_add_u32 v108, s{sT1}, v108"); k("v_min_u32 v108, CODE_END-PCREF-16, v108")
        k("global_load_dwordx4 a[252:255], v108, s[56:57]")
    wave_id(k, sW, T)
    k(f"v_and_b32 v{LN_}, 63, v0")
    k.label("RESTART")
    k(f"s_load_dwordx4 s[8:11], s[0:1], {A_C}")
    k(f"s_load_dwordx2 s[4:5], s[0:1], {A_X}")
    k(f"s_load_dwordx4 s[68:71], s[0:1], {A_DBG}")
    k(f"s_load_dwordx8 s[40:47], s[0:1], {A_K}")
    if P["TOUCH"]:
        k(f"s_load_dwordx4 s[84:87], s[0:1], {A_WG}"); k(f"s_load_dwordx2 s[88:89], s[0:1], {A_WD}"); k(f"s_load_dwordx2 s[90:91], s[0:1], {A_OUT}")
    L_R = L_M + 4096
    PSC = "sc1"
    GW, GC, GA = 64, 80, 88
    k(f"v_lshl_add_u32 v99, s{sW}, 6, v{LN_}")
    k("v_and_b32 v100, 1, v99"); k("v_lshrrev_b32 v101, 1, v99")
    k("v_mul_u32_u24 v102, 6144, v101"); k("v_lshl_add_u32 v102, v100, 4, v102"); k("v_lshlrev_b32 v103, 1, v101")
    k("v_lshrrev_b32 v104, 4, v99"); k("v_lshlrev_b32 v104, 6, v104"); k("v_lshl_add_u32 v104, v100, 5, v104")
    sSL = 7; sPR = 53
    k(f"s_lshr_b32 s{sT1}, s2, 3")
    RM = P["ROLE"]
    if RM == 0:
        k(f"s_and_b32 s{sT0}, s2, 7")
        k(f"s_lshl_b32 s{sSL}, s{sT0}, 3"); k(f"s_add_u32 s{sSL}, s{sSL}, s{sT1}")
        k(f"s_lshl_b32 s{sT2}, s{sT0}, 4"); k(f"s_add_u32 s{sT2}, s{sT2}, s{sT1}"); k(f"s_add_u32 s{sT2}, s{sT2}, 56")
        k("s_cmp_lt_u32 s2, 64"); k(f"s_cselect_b32 s{sSL}, s{sSL}, s{sT2}")
        k("s_cmp_lt_u32 s2, 192"); k(f"s_cselect_b32 s{sSL}, s{sSL}, 255")
    elif RM in (1, 2):
        k(f"s_bfe_u32 s{sT0}, s2, 0x20001")
        k(f"s_lshl_b32 s{sSL}, s{sT0}, 4"); k(f"s_add_u32 s{sSL}, s{sSL}, s{sT1}")
        k(f"s_cmp_lt_u32 s{sT1}, 16"); k(f"s_cselect_b32 s{sSL}, s{sSL}, 255")
        k(f"s_lshl_b32 s{sT2}, s{sT0}, 5"); k(f"s_add_u32 s{sT2}, s{sT2}, s{sT1}"); k(f"s_add_u32 s{sT2}, s{sT2}, 64")
        k("s_bitcmp1_b32 s2, 0")
        k(f"s_cselect_b32 s{sSL}, s{sSL}, s{sT2}" if RM == 1 else f"s_cselect_b32 s{sSL}, s{sT2}, s{sSL}")
    else:
        k(f"s_bfe_u32 s{sT0}, s2, 0x20001"); k(f"s_and_b32 s{sT2}, s{sT1}, 15")
        k(f"s_lshl_b32 s{sSL}, s{sT0}, 4"); k(f"s_add_u32 s{sSL}, s{sSL}, s{sT2}")
        k(f"s_lshr_b32 s{sT2}, s{sT1}, 4"); k(f"s_and_b32 s{sT0}, s2, 1"); k(f"s_lshl_b32 s{sT0}, s{sT0}, 1"); k(f"s_add_u32 s{sT2}, s{sT2}, s{sT0}")
        k(f"s_lshl_b32 s{sT2}, s{sT2}, 6"); k(f"s_add_u32 s{sSL}, s{sSL}, s{sT2}")
    k(f"s_cmp_lt_u32 s{sSL}, 64")
    k(f"s_cselect_b32 s{sPR}, s{sFB}, 1")
    k(f"s_lshl_b32 s31, s{sSL}, 5")
    k(f"v_lshlrev_b32 v{VL16}, 4, v{LN_}")
    G = P["G"]
    NG = 8 // G; NS = 32 // G
    k(f"s_and_b32 s{sG}, s2, {NG-1}"); k(f"s_lshl_b32 s{sG}, s{sG}, {lg2(G)}"); k(f"s_lshr_b32 s{sT0}, s2, {3+lg2(NS)}"); k(f"s_add_u32 s{sG}, s{sG}, s{sT0}")
    k(f"s_bfe_u32 s{sROT}, s2, {3 | (lg2(NS) << 16):#x}")
    k(f"s_and_b32 s{sRB}, s2, 7"); k(f"s_lshr_b32 s{sRB}, s{sRB}, {lg2(NG)}"); k(f"s_lshl_b32 s{sRB}, s{sRB}, {lg2(NS)}"); k(f"s_add_u32 s{sRB}, s{sRB}, s{sROT}")
    k(f"s_lshl_b32 s{sROT}, s{sROT}, {lg2(G)}")
    k(f"s_and_b32 s{sR8}, s{sROT}, 7"); k(f"s_lshr_b32 s{sCC}, s{sROT}, 3")
    RR, CGL = tm, tm + 1
    k(f"v_bfe_u32 v{RR}, v{LN_}, 2, 3")
    k(f"v_lshrrev_b32 v{CGL}, 5, v{LN_}"); k(f"v_lshlrev_b32 v{CGL}, 2, v{CGL}"); k(f"v_and_or_b32 v{CGL}, v{LN_}, 3, v{CGL}")
    k(f"v_lshlrev_b32 v{VX}, 10, v{RR}"); k(f"v_lshl_add_u32 v{VX}, v{CGL}, 4, v{VX}"); k(f"v_add_u32 v{VX+1}, 8192, v{VX}")
    XS = [48, 49, 56, 57]
    k(f"s_lshl_b32 s48, s{sRB}, 16"); k(f"s_lshl_b32 s{sT2}, s{sW}, 8"); k(f"s_add_u32 s48, s48, s{sT2}")
    for c in range(1, 4): k(f"s_add_u32 s{XS[c]}, s48, {16384*c}")
    XP = 128
    xl = [f"buffer_load_dwordx4 {v(XP+8*o+4*cb,4)}, v{VX+(o&1)}, s[16:19], s{XS[o>>1]} offen offset:{128*cb}" for o in range(8) for cb in range(2)]
    k.srd(12, 10, 512 * 6144); k.srd(20, 8, 1024); k.srd(16, 4, 2048 * 1024)
    def gemv_loads(late=False):
        k(f"s_mov_b32 s{sT0}, s31")
        for i in range(4):
            k(f"buffer_load_dwordx4 {a(224+4*i,4) if late else v(GW+4*i,4)}, v102, s[12:15], s{sT0} offen")
            if i < 3: k(f"s_add_u32 s{sT0}, s{sT0}, {128*6144}")
    for i in range(4): k(f"buffer_load_ushort v{GC+i}, v103, s[20:23], 0 offen offset:{256*i}")
    k.srd(24, 70, WS_BYTES)
    k(f"s_lshl_b32 s{sE2}, s{sW}, 10"); k(f"s_add_u32 s{sE2}, s{sE2}, {WS_GO:#x}")
    k(f"v_lshrrev_b32 v{MX+5}, 5, v{LN_}"); k(f"v_lshlrev_b32 v{MX+4}, 7, v{RR}"); k(f"v_lshl_add_u32 v{MX+4}, v{MX+5}, 12, v{MX+4}")
    k(f"v_and_b32 v{MX+5}, 3, v{LN_}"); k(f"v_lshl_add_u32 v{MX+4}, v{MX+5}, 4, v{MX+4}")
    k(f"buffer_load_dwordx4 {v(MX,4)}, v{MX+4}, s[24:27], s{sE2} offen sc1")
    k(f"v_lshlrev_b32 v109, 2, v{LN_}"); k(f"s_lshl_b32 s{sE1}, s{sSL}, 7"); k(f"s_add_u32 s{sE1}, s{sE1}, {WS_GO:#x}")
    k(f"buffer_load_dword v110, v109, s[24:27], s{sE1} offen sc1")
    k(f"s_xor_b32 s{sE0}, s{sW}, 3"); k(f"s_or_b32 s{sE0}, s{sE0}, s{sFB}")
    k(f"s_cmp_lg_u32 s{sE0}, 0"); k("s_cbranch_scc1 NOZERO")
    k(f"v_lshlrev_b32 v111, 15, v{LN_}"); k("v_mov_b32 v107, 0"); k(f"s_lshl_b32 s{sT0}, s2, 7"); k(f"s_add_u32 s{sT0}, s{sT0}, {WS_FL:#x}")
    k("s_mov_b64 exec, 15")
    k(f"buffer_store_dword v107, v111, s[24:27], s{sT0} offen sc1")
    k("s_mov_b64 exec, -1")
    k.label("NOZERO")
    k.vm = {kk: max(p - 1, 0) for kk, p in k.vm.items()}
    k(f"s_cmp_eq_u32 s{sPR}, 0"); k("s_cbranch_scc1 PLOAD")
    s_a = (dict(k.vm), dict(k.lg))
    if P["TOUCH"]:
        k(f"s_cmp_lt_u32 s2, {P['TOUCH']}"); k("s_cbranch_scc1 NOTOUCH")
        k(f"s_lshl_b32 s92, s{sW}, 20"); k(f"s_and_b32 s93, s92, 0x100000")
        k.auto = False
        for base in (44, 40, 42, 46): k(f"s_load_dword s81, s[{base}:{base+1}], s92")
        for base in (84, 86, 88, 90): k(f"s_load_dword s81, s[{base}:{base+1}], s93")
        for i in range(8):
            k(f"s_load_dword s81, s[70:71], s92"); k("s_add_u32 s92, s92, 0x400000")
        k.auto = True
        k.label("NOTOUCH")
        k.sgpr = max(k.sgpr, 94)
    put(k, xl)
    s_b = dict(k.vm)
    k("s_branch PJOIN")
    k.label("PLOAD")
    k.vm = dict(s_a[0])
    gemv_loads()
    k.label("PJOIN")
    k.vm = k._merge(k.vm, s_b)
    k(f"s_lshl_b32 s{sW256}, s{sW}, 8"); k(f"s_lshl_b32 s{sW2K}, s{sW}, 11")
    k(f"v_lshrrev_b32 v{ROWL}, 4, v{LN_}")
    k(f"v_and_b32 v{r_}, 15, v{LN_}"); k(f"v_lshlrev_b32 v{GR16}, 2, v{ROWL}"); k(f"v_xor_b32 v{GR16}, v{GR16}, v{r_}")
    k(f"v_lshlrev_b32 v{GR16}, 4, v{GR16}")
    def w_voffs(psh, scol):
        return [f"v_lshl_add_u32 v{VDW}, v{ROWL}, {psh}, v{GR16}", f"v_add_u32 v{VDW}, s{scol}, v{VDW}"] + \
               [f"v_add_u32 v{VDW+n}, {n*((4<<psh)-1024)}, v{VDW}" for n in range(1, 4)]
    k(f"s_lshl_b32 s{sT0}, s{sG}, 10"); k(f"s_add_u32 s{sT0}, s{sT0}, s{sW256}")
    put(k, w_voffs(13, sT0))
    k(f"s_lshl_b32 s{sRING}, s{sW}, 14"); k(f"s_add_u32 s{sRING}, s{sRING}, {L_W}")
    for p in range(8):
        k(f"s_add_u32 s{TAB+p}, s{sR8}, {p}"); k(f"s_and_b32 s{TAB+p}, s{TAB+p}, 7"); k(f"s_lshl_b32 s{TAB+p}, s{TAB+p}, 17")
    k(f"s_lshl_b32 s{sKhi}, s{sCC}, 20")
    k.srd(8, 44, 512 * 8192)
    def w_dma(step, which):
        slot = step % 4
        if which == "Q":
            srd = 8
            pre = [f"s_add_u32 s{sT0}, s{sKhi}, s{TAB+step%8}"]
            adv = [[f"s_add_u32 s{sKhi}, s{sKhi}, 0x100000", f"s_and_b32 s{sKhi}, s{sKhi}, 0x3fffff"]] if step % 8 == 7 else []
        else:
            srd = 20
            pre = [f"s_add_u32 s{sT0}, s{TAB+step%8}, {(2*(step//8))<<14}"]
            adv = []
        o = [pre + [f"s_add_u32 m0, s{sRING}, {4096*slot}"]] + adv + [f"buffer_load_dwordx4 v{VDW}, s[{srd}:{srd+3}], s{sT0} offen lds"]
        for n in range(1, 4):
            o.append(L(lambda n=n: k(f"buffer_load_dwordx4 v{VDW+n}, s[{srd}:{srd+3}], s{sT0} offen offset:{1024*n} lds", token=f"W{slot}"), 10, "v"))
        return o
    k(f"v_lshrrev_b32 v{r_}, 1, v{CGL}"); k(f"v_subrev_u32 v{r_}, s{sR8}, v{r_}")
    k(f"v_and_b32 v{c2}, 1, v{CGL}"); k(f"v_and_b32 v{gn}, 1, v{r_}"); k(f"v_lshl_add_u32 v{gn}, v{gn}, 1, v{c2}"); k(f"v_lshlrev_b32 v{gn}, 1, v{gn}")
    k(f"v_xor_b32 v{gn}, v{gn}, v{RR}")
    k(f"v_lshlrev_b32 v{c2}, 9, v{c2}"); k(f"v_lshl_add_u32 v{c2}, v{gn}, 4, v{c2}")
    k(f"s_sub_u32 s{sT1}, s{sW}, s{sCC}"); k(f"s_and_b32 s{sT1}, s{sT1}, 3"); k(f"s_lshl_b32 s{sT1}, s{sT1}, 13")
    k(f"s_add_u32 s{sT1}, s{sT1}, {L_H}"); k(f"v_add_u32 v{c2}, s{sT1}, v{c2}")
    for cb in range(2):
        k(f"v_add_u32 v{gn}, {4*cb}, v{r_}"); k(f"v_and_b32 v{gn}, 7, v{gn}"); k(f"v_lshl_add_u32 v{HW+cb}, v{gn}, 10, v{c2}")
    k(f"s_lshl_b32 s{sT2}, s{sW}, 10"); k(f"v_lshlrev_b32 v{VM}, 5, v{CGL}"); k(f"v_add_u32 v{VM}, s{sT2}, v{VM}")
    k(f"v_lshrrev_b32 v{UT+4}, 2, v{LN_}"); k(f"v_lshlrev_b32 v{UT+4}, 6, v{UT+4}"); k(f"v_add_u32 v{UT+4}, s{sT2}, v{UT+4}")
    k(f"v_lshlrev_b32 v{UT+5}, 6, v{RR}"); k(f"v_lshl_add_u32 v{UT+7}, s{sW}, 9, v{UT+5}"); k(f"v_lshl_add_u32 v{UT+5}, v{CGL}, 3, v{UT+5}")
    k(f"v_lshl_add_u32 v{UT+6}, v{CGL}, 3, v{UT+7}")
    lane_tr_parts(k, LN_, r_, c2, gn, h_, tm)
    k(f"v_lshl_add_u32 v{CH8}, v{gn}, 2, v{c2}"); k(f"v_lshlrev_b32 v{CH8}, 3, v{CH8}")
    k(f"v_lshl_add_u32 v{tm}, v{h_}, 3, v{r_}"); k(f"v_lshl_add_u32 v{tm}, v{tm}, 8, v{CH8}"); k(f"v_add_u32 v{tm}, s{sRING}, v{tm}")
    for a_ in range(4):
        k(f"v_xor_b32 v{tm+1}, {a_}, v{r_}"); k(f"v_lshl_add_u32 v{VW+a_}, v{tm+1}, 6, v{tm}")
    put(k, [f"v_lshl_add_u32 v{tm}, v{h_}, 2, v{r_}", f"v_lshl_add_u32 v{tm}, v{tm}, 8, v{CH8}", f"v_add_u32 v{tm}, {L_V}, v{tm}"])
    for dt in range(4): put(k, [f"v_xor_b32 v{tm+1}, {dt}, v{r_}", f"v_lshl_add_u32 v{VV+dt}, v{tm+1}, 6, v{tm}"])
    put(k, [f"v_and_b32 v{tm}, 31, v{LN_}", f"v_and_b32 v{tm+1}, 15, v{LN_}", f"v_xor_b32 v{tm+1}, v{tm+1}, v{h_}",
            f"v_lshlrev_b32 v{tm}, 8, v{tm}", f"v_lshl_add_u32 v{VK}, v{tm+1}, 4, v{tm}"])
    put(k, [f"v_xor_b32 v{VK+s_}, {s_*32}, v{VK}" for s_ in range(1, 8)])
    put(k, [f"v_mov_b32 v{LS}, 0", f"v_mov_b32 v{LS+1}, 0",
        f"v_lshl_add_u32 v{VDV}, v{ROWL}, 8, v{GR16}", f"s_and_b32 s{sT1}, s{sW}, 1", f"s_lshl_b32 s{sT1}, s{sT1}, 3",
        f"v_or_b32 v{tm}, s{sT1}, v{ROWL}", f"v_and_b32 v{tm+1}, 15, v{LN_}", f"v_xor_b32 v{tm}, v{tm}, v{tm+1}",
        f"v_lshlrev_b32 v{VDK}, 8, v{ROWL}", f"v_lshl_add_u32 v{VDK}, v{tm}, 4, v{VDK}", f"v_xor_b32 v{VDK+1}, 64, v{VDK}",
        f"s_lshl_b32 s{sT1}, s{sG}, 19", f"s_add_u32 s{sT1}, s{sT1}, s{sW2K}", f"s_add_u32 s{sT1}, s{sT1}, {1536*256}",
        f"v_add_u32 v{VDK}, s{sT1}, v{VDK}", f"v_add_u32 v{VDK+1}, s{sT1}, v{VDK+1}", f"v_add_u32 v{VDV}, s{sT1}, v{VDV}",
        f"v_lshlrev_b32 v{tm}, 5, v{h_}", f"v_xor_b32 v{VLIN}, v{tm}, v{VL16}", f"v_add_u32 v{VLIN}, {L_H}, v{VLIN}", f"v_xor_b32 v{VLO}, 64, v{VLIN}",
        f"s_mov_b32 s{sMASK}, 0xffff0000"])
    def nxt(d, s_): return [f"s_add_u32 s{d}, s{s_}, 8192", f"s_and_b32 s{d}, s{d}, 0x1ffff"]
    def kv_dma(which, lds_off, so):
        srd = 12 if which == "K" else 16
        return [f"s_add_u32 m0, s{sW2K}, {lds_off}", f"buffer_load_dwordx4 v{VDK if which=='K' else VDV}, s[{srd}:{srd+3}], s{so} offen lds",
                L(lambda: k(f"buffer_load_dwordx4 v{VDK+1 if which=='K' else VDV}, s[{srd}:{srd+3}], s{so} offen offset:1024 lds", token=which), 10, "v")]
    kinit = [[f"s_lshr_b32 s{sO0}, s{sROT}, 1", f"s_lshl_b32 s{sO0}, s{sO0}, 13"] + nxt(sO1, sO0) + nxt(sO2, sO1)]
    kfirst = [kv_dma("K", L_K + 16384 + 8192, sO0), kv_dma("K", L_K, sO1), kv_dma("K", L_K + 8192, sO2)]
    k.srd(20, 68, 256)
    def gemv_compute(lo, hi, tag, late):
        k(f"s_sub_u32 s{sT0}, s{sSL}, {lo}"); k(f"s_cmp_ge_u32 s{sT0}, {hi-lo}"); k(f"s_cselect_b32 s{sT0}, 1, s{sFB}"); k(f"s_cmp_lg_u32 s{sT0}, 0"); k("s_cbranch_scc1 NOGEMV" + tag)
        st0 = (dict(k.vm), dict(k.lg))
        GW, GC, GA, SC_, U_, AW_, AR_ = (160, 176, 180, 144, 188, 152, 153) if late else (64, 80, 88, 112, 120, 104, 105)
        if late:
            for i in range(20): k(f"v_accvgpr_read_b32 v{GW+i}, a{224+i}")
            k(f"v_accvgpr_read_b32 v{AW_}, a244")
        D = P.get("DG") == 1 and not late
        if D: stamp(k, "g_in"); k.wait_regs(v(GW, 20)); stamp(k, "g_data")
        k(f"s_mov_b32 s{sT1}, {f32(-LOG2E)}")
        for i in range(4): k(f"v_lshlrev_b32 v{GC+i}, 16, v{GC+i}")
        for i in range(4): k(f"v_mul_f32 v{GA+i}, s{sT1}, v{GC+i}")
        for i in range(4): k(f"v_exp_f32 v{GA+i}, v{GA+i}")
        for i in range(4): k(f"v_add_f32 v{GA+i}, 1.0, v{GA+i}")
        for i in range(4): k(f"v_rcp_f32 v{GA+i}, v{GA+i}")
        for i in range(4): k(f"v_mul_f32 v{GC+i}, v{GC+i}, v{GA+i}")
        for i in range(4): rnd(k, SC_ + 2 * i, GC + i)
        for i in range(4):
            for q in range(4):
                r = GW + 4 * i + q; u = U_ + 2 * (q & 1)
                k(f"v_lshlrev_b32 v{u}, 16, v{r}"); k(f"v_and_b32 v{u+1}, s{sMASK}, v{r}")
                if i == 0: k(f"v_pk_mul_f32 {v(GA+2*q,2)}, {v(u,2)}, {v(SC_+2*i,2)} op_sel_hi:[1,0]")
                else: k(f"v_pk_fma_f32 {v(GA+2*q,2)}, {v(u,2)}, {v(SC_+2*i,2)}, {v(GA+2*q,2)} op_sel_hi:[1,0,1]")
        for md in ("quad_perm:[2,3,0,1]", "row_ror:4", "row_ror:8"):
            for j in range(8): k(f"v_add_f32_dpp v{GA+j}, v{GA+j}, v{GA+j} {md} row_mask:0xf bank_mask:0xf")
        k(f"ds_write_b128 v{AW_}, {v(GA,4)} offset:{L_R}", token="w"); k(f"ds_write_b128 v{AW_}, {v(GA+4,4)} offset:{L_R+16}", token="w")
        k(f"v_lshlrev_b32 v{AR_}, 2, v{LN_}")
        k(f"s_lshr_b32 s{sT0}, s{sSL}, 5"); k(f"s_cmp_eq_u32 s{sT0}, 1"); k(f"s_cselect_b32 s{sT1}, 1.0, 0")
        k(f"s_cmp_eq_u32 s{sT0}, 4"); k(f"s_cselect_b32 s{sT1}, 1.0, s{sT1}")
        k(f"s_cmp_lt_u32 s{sT0}, 2"); k(f"s_cselect_b32 s{sT2}, {f32(QS)}, 1.0")
        if P["GS"] and late:
            k(f"s_cmp_ge_u32 s{sT0}, 3"); k(f"s_cselect_b32 s{sT2}, {f32(GSC)}, s{sT2}")
            k(f"s_cmp_eq_u32 s{sT0}, 5"); k(f"s_cselect_b32 s{sT2}, {f32(1/GSC**2)}, s{sT2}")
        k(f"s_lshl_b32 s{sT0}, s{sSL}, 6")
        k.wait("w"); k("s_barrier")
        k(f"s_cmp_lg_u32 s{sW}, 3"); k("s_cbranch_scc1 " + ("NOGEMV" + tag if late else "PWAIT"))
        for i in range(4): k(f"ds_read_b32 v{GA+i}, v{AR_} offset:{L_R+256*i}")
        k(f"v_add_f32 v{GA}, v{GA}, v{GA+1}"); k(f"v_add_f32 v{GA+2}, v{GA+2}, v{GA+3}"); k(f"v_add_f32 v{GA}, v{GA}, v{GA+2}")
        k(f"v_mov_b32 v{GA+1}, v{GA}"); k(f"v_permlane16_swap_b32 v{GA}, v{GA+1}"); k(f"v_add_f32 v{GA}, v{GA}, v{GA+1}")
        k(f"v_mov_b32 v{GA+1}, v{GA}"); k(f"v_permlane32_swap_b32 v{GA}, v{GA+1}"); k(f"v_add_f32 v{GA}, v{GA}, v{GA+1}")
        rnd(k, GA, GA)
        k(f"v_add_f32 v{GA}, s{sT1}, v{GA}"); k(f"v_mul_f32 v{GA}, s{sT2}, v{GA}")
        if D: stamp(k, "g_red")
        k("s_mov_b64 exec, 0xffff")
        if not late:
            k("v_not_b32 v110, v110"); k(f"v_bfi_b32 v{GA}, 1, v110, v{GA}")
            k(f"buffer_store_dword v{GA}, v109, s[24:27], s{sE1} offen sc1")
            k("s_mov_b64 exec, -1")
            k.label("PWAIT")
            k("s_barrier")
            k.vm = {}
            put(k, xl)
            st0 = (k._merge(st0[0], k.vm), None)
        else:
            k(f"buffer_store_dword v{GA}, v{AR_}, s[24:27], s{sT0} offen sc1")
            k("s_mov_b64 exec, -1")
        k.label("NOGEMV" + tag)
        k.vm, k.lg = dict(st0[0]), {}
        k.smem_pending = late
    gemv_compute(0, 64, "A", False)
    stamp(k, "gemv")
    if P["WARM"] == 1: warm(k, sW)
    k("s_mov_b32 s3, 0x3f803f80")
    k(f"s_load_dwordx4 s[64:67], s[0:1], {A_WG}"); k(f"s_load_dwordx2 s[4:5], s[0:1], {A_WD}")
    ASET = {"Q": [AF, AF + 16], "O": [AF, AF + 16]}
    def aset(which, step): return ASET[which][step % len(ASET[which])]
    def a_reads(step, which="O"):
        slot = step % 4; b_ = aset(which, step)
        rd = [f"ds_read_b64_tr_b16 {a(b_+4*a_+2*u,2)}, v{VW+a_} offset:{4096*slot+1024*u}" for a_ in range(4) for u in range(2)]
        return [[L(lambda: k.wait(f"W{slot}")), rd[0]]] + rd[1:]
    N0 = P["N0"]
    if P.get("DG") == 2: stamp(k, "iss"); k.wait_regs(v(0, 16), v(128, 48)); stamp(k, "xarr")
    for i in range(4): k(f"v_accvgpr_write_b32 a{240+i}, v{GC+i}")
    k("v_accvgpr_write_b32 a244, v104")
    for o in range(8):
        if o == 4:
            k.wait_regs(v(XP, 64))
            put(k, [w_dma(s_, "Q") for s_ in range(P["WPRE"])])
            k(f"s_sub_u32 s{sT0}, s{sSL}, 64"); k(f"s_cmp_ge_u32 s{sT0}, 128"); k("s_cbranch_scc1 NOLATE")
            s_c = dict(k.vm)
            gemv_loads(True)
            k.label("NOLATE")
            k.vm = k._merge(k.vm, s_c)
            k.srd(12, 40, 8 * 2048 * 256)
        for j in range(8):
            x = XP + 8 * o + j
            k(f"v_dot2_f32_bf16 v{2*o}, v{x}, s3, {'0' if j == 0 else 'v%d' % (2*o)}")
            k(f"v_dot2_f32_bf16 v{2*o+1}, v{x}, v{x}, {'0' if j == 0 else 'v%d' % (2*o+1)}")
    k("s_nop 2")
    for md in ("quad_perm:[1,0,3,2]", "quad_perm:[2,3,0,1]"):
        for x in range(16): k(f"v_add_f32_dpp v{x}, v{x}, v{x} {md} row_mask:0xf bank_mask:0xf")
    for q in range(4): k(f"ds_write_b128 v{UT+4}, {v(4*q,4)} offset:{L_K+16*q}", token="w")
    k.wait("w"); k("s_barrier")
    for p_ in range(8): k(f"ds_read_b64 {v(16+2*p_,2)}, v{UT+5} offset:{L_K+512*p_}")
    for st in (1, 2, 4):
        for p_ in range(0, 8, 2 * st): k(f"v_pk_add_f32 {v(16+2*p_,2)}, {v(16+2*p_,2)}, {v(16+2*(p_+st),2)}")
    k(f"v_mul_f32 v16, {f32(-1/512)}, v16"); k(f"v_mul_f32 v17, {f32(1/512)}, v17")
    k("v_fma_f32 v17, -v16, v16, v17"); k("v_max_f32 v17, 0, v17"); k(f"v_add_f32 v17, {f32(1e-5)}, v17"); k("v_rsq_f32 v17, v17")
    k("v_mul_f32 v16, v16, v17")
    k(f"ds_write_b64 v{UT+6}, v[16:17] offset:{L_K+4096}")
    for q in range(4): k(f"ds_read_b128 {v(112+4*q,4)}, v{UT+7} offset:{L_K+4096+16*q}")
    k(f"ds_read_b64 {v(STT,2)}, v{UT+7} offset:{L_K+4096+56}")
    for o in range(8):
        st = v(112 + 2 * o, 2) if o < 7 else v(STT, 2)
        for cb in range(2):
            x = XP + 8 * o + 4 * cb; u = 16 * o + 8 * cb
            for q in range(4): k(f"v_lshlrev_b32 v{u+2*q}, 16, v{x+q}"); k(f"v_and_b32 v{u+2*q+1}, s{sMASK}, v{x+q}")
        for q in range(8): k(f"v_pk_fma_f32 {v(16*o+2*q,2)}, {v(16*o+2*q,2)}, {st}, {st} op_sel:[0,1,0] op_sel_hi:[1,1,0]")
    gemv_compute(64, 192, "B", True)
    put(k, kinit)
    stamp(k, "stats")
    if P["WARM"] == 2: warm(k, sW)
    k.wait_all(vm=False)
    k(f"s_lshl_b32 s{sT1}, s{sFB}, 4"); k(f"s_sub_u32 s{sT1}, s{sT1}, s{sFB}")
    k(f"v_mov_b32 v{UT}, 0")
    k(f"s_mov_b32 s{sT2}, 0")
    k.label("POLL")
    k(f"s_add_u32 s{sT1}, s{sT1}, 1")
    k(f"s_and_b32 s{sT0}, s{sT1}, 15"); k("s_cbranch_scc1 POLLR")
    k(f"buffer_load_dword v{UT+1}, v{UT}, s[20:23], 0 offen sc1")
    k(f"v_readfirstlane_b32 s{sT0}, v{UT+1}")
    k(f"s_cmp_ge_u32 s{sT0}, 0x100"); k(f"s_cselect_b32 s{sT2}, 1, 0")
    k(f"s_cmp_gt_u32 s{sT1}, 0x8000"); k(f"s_cselect_b32 s{sT2}, 1, s{sT2}")
    k.label("POLLR")
    k(f"buffer_load_dwordx4 {v(160,4)}, v{MX+4}, s[24:27], s{sE2} offen sc1")
    k(f"v_xor_b32 v{UT+2}, v160, v{MX}")
    for j in range(1, 4): k(f"v_bitop3_b32 v{UT+2}, v{160+j}, v{MX+j}, v{UT+2} bitop3:0x28")
    k(f"v_and_b32 v{UT+2}, 1, v{UT+2}"); k(f"v_cmp_eq_u32 vcc, 0, v{UT+2}"); k("s_cmp_lg_u64 vcc, 0")
    k(f"s_cselect_b32 s{sT2}, s{sT2}, 1")
    k(f"s_cmp_lg_u32 s{sE0}, 0"); k("s_cbranch_scc1 NOARR")
    k("s_mov_b64 exec, 1"); k(f"v_mov_b32 v{UT+3}, 1")
    k(f"buffer_atomic_add v{UT+3}, v{UT}, s[20:23], 0 offen")
    k("s_mov_b64 exec, -1")
    k(f"s_mov_b32 s{sE0}, 1")
    k.label("NOARR")
    k(f"s_cmp_lg_u32 s{sT2}, 0"); k("s_cbranch_scc1 POLLED")
    if P["PFK"]:
        k(f"s_cmp_lg_u32 s{sT1}, 1"); k("s_cbranch_scc1 NOPFK")
        k("s_cmp_lt_u32 s2, 192"); k("s_cbranch_scc1 NOPFK")
        k.srd(64, 42, 8 * 2048 * 256)
        k(f"s_bfe_u32 s{sT0}, s2, 0x30003"); k(f"s_lshl_b32 s{sT0}, s{sT0}, 2"); k(f"s_add_u32 s{sT0}, s{sT0}, s{sW}"); k(f"s_lshl_b32 s{sT0}, s{sT0}, 12")
        k(f"s_and_b32 s3, s2, {NG-1}"); k(f"s_lshl_b32 s3, s3, {19+lg2(G)}"); k(f"s_add_u32 s{sT0}, s{sT0}, s3"); k(f"s_add_u32 s{sT0}, s{sT0}, {1536*256}")
        n = 0
        for gi in range(G):
            for srd in (12, 64)[:P["PFK"]]:
                for j in range(4): k(f"buffer_load_dwordx4 {a(4*n,4)}, v{VL16}, s[{srd}:{srd+3}], s{sT0} offen offset:{1024*j}"); n += 1
            k(f"s_add_u32 s{sT0}, s{sT0}, 0x80000")
        k.label("NOPFK")
    if P["SLEEP"]: k(f"s_sleep {P['SLEEP']}")
    k("s_branch POLL")
    k.label("POLLED")
    if P.get("DG"): stamp(k, "go")
    for j in range(4): k(f"v_and_b32 v{160+j}, -2, v{160+j}")
    k(f"s_lshl_b32 s{sT0}, s{sW}, 10"); k(f"v_add_u32 v{UT+1}, s{sT0}, v{VL16}")
    k(f"ds_write_b128 v{UT+1}, {v(160,4)} offset:{L_M}")
    for cb in range(2):
        for m_ in range(2):
            for q in range(2): k(f"ds_read_b128 {v(128+16*cb+8*m_+4*q,4)}, v{VM} offset:{L_M+512*(1-m_)+256*cb+16*q}")
    stamp(k, "poll")
    k.srd(20, 46, 4096 * 1024)
    put(k, a_reads(0, "Q"))
    for o in range(8):
        for cb in range(2):
            u = 16 * o + 8 * cb; cn = 128 + 16 * cb
            for q in range(4): k(f"v_pk_fma_f32 {v(u+2*q,2)}, {v(u+2*q,2)}, {v(cn+2*q,2)}, {v(cn+8+2*q,2)}")
            for q in range(4): k(f"v_cvt_pk_bf16_f32 v{u+q}, v{u+2*q}, v{u+2*q+1}")
        for cb in range(2): k(f"ds_write_b128 v{HW+cb}, {v(16*o+8*cb,4)} offset:{32768*(o>>2)+128*(o&3)}", token="hw")
    put(k, [w_dma(s_, "Q") for s_ in range(P["WPRE"], 4)])
    fr = lambda f: FR + 4 * (f % 8)
    def rdK(f, s_, off): return [f"ds_read_b128 {a(fr(f),4)}, v{VK+s_} offset:{off}"]
    def rdV(f, i, off): return [f"ds_read_b64_tr_b16 {a(fr(f)+2*u,2)}, v{VV+i%4} offset:{off+4096*(i//4)+2048*u}" for u in range(2)]
    def b_reads(step):
        return [f"ds_read_b128 {a(BF+8*(step%2)+4*rt,4)}, v{VLO if step & 1 else VLIN} offset:{1024*step+32768*rt}" for rt in range(2)]
    k.wait("hw"); k("s_barrier")
    stamp(k, "mod")
    for _ in range(P.get("DLY0", 0)): k("s_sleep 38")
    put(k, b_reads(0))
    def g_mfma(which, st):
        return [f"v_mfma_f32_32x32x16_bf16 {v(ACC+32*a_+16*rt,16)}, {a(aset(which,st)+4*a_,4)}, {a(BF+8*(st%2)+4*rt,4)}, {'0' if st == 0 else v(ACC+32*a_+16*rt,16)}"
                for a_ in range(4) for rt in range(2)]
    class Off:
        def __init__(s_, sc, o): s_.sc, s_.o = sc, o
        def pin(s_, g, x, end=False): s_.sc.pin(g + s_.o, x, end)
        def add(s_, ops, g0, g1, prio=0): s_.sc.add(ops, g0 + s_.o, g1 + s_.o, prio)
    def gemm(which, extra, nr, nd):
        sc = Sched(256)
        mf = []
        for st in range(32):
            if st + 1 < 32:
                sc.add(b_reads(st + 1), 8 * st + (1 if st % 8 == 7 else 0), 8 * st + 4, prio=1)
                sc.pin(8 * st + 7, L(lambda st=st: k.wait_regs(a(aset(which, st + 1), 16), a(BF + 8 * ((st + 1) % 2), 8))), end=True)
            mf += g_mfma(which, st)
        R = len(ASET[which])
        g0 = 0
        td = {}
        first = [j for j in range(nd, min(nr + 4, 32))]
        pd = 8
        for i, j in enumerate(first):
            sc.add(w_dma(j, which), pd * i, pd * (i + 1)); td[j] = pd * (i + 1)
        tstart = max(pd * len(first) - (pd if first else 0), 8 * (nr - R + 1), 0)
        if first and nr in td: tstart = max(tstart, td[nr] + 12)
        nun = 32 - nr
        tr = {j: int(tstart + (j - nr) * (240 - tstart) / (nun - 1)) for j in range(nr, 32)}
        for j in range(nr, 32):
            assert tr[j] >= 8 * (j - R + 1) and tr[j] <= 8 * (j - 1), (j, tr[j])
            sc.add(a_reads(j, which), tr[j], tr[j] + 5, prio=1)
            if j + 4 < 32 and j + 4 >= nd and j + 4 not in td:
                lo = max(tr[j + 1], max(td.values()) if td else 0); hi = max(tr[j + 2], lo + 6)
                sc.add([L(lambda j=j: k.wait_regs(a(aset(which, j), 16)))] + w_dma(j + 4, which), lo, hi); td[j + 4] = hi
        sc.last_dma = max(td.values())
        for c in range(4): extra(c)(Off(sc, 64 * c), sc.last_dma - 192)
        i0 = len(k.items)
        for g_, (m, f_) in enumerate(zip(mf, sc.run())):
            k(m); put(k, f_)
            if g_ % 64 == 63 and g_ < 255: stamp(k, f"q{g_//64}" + ("o" if which == "O" else ""))
            if g_ == 191: i1 = len(k.items)
        X = P.get("DBG" + which, 0)
        if X:
            def keep(it):
                if it.kind in ("label", "raw"): return True
                if X & 1 and it.mn == "s_barrier": return False
                if X & 4 and it.kind in ("valu", "trans"): return False
                if X & 8 and it.kind == "vmem": return False
                if X & 16 and it.mn.startswith("ds_write"): return False
                if X & 32 and it.mn.startswith("ds_read_b128") and it.ops[0].startswith("v"): return False
                return True
            k.items[i0:i1] = [it for it in k.items[i0:i1] if keep(it)]
    def qepi(a_):
        return [f"v_cvt_pk_bf16_f32 v{Q+16*a_+8*(j//4)+4*rt+j%4}, v{ACC+32*a_+16*rt+2*j}, v{ACC+32*a_+16*rt+2*j+1}" for rt in range(2) for j in range(8)]
    def qx(c):
        def f(sc, ld):
            if c == 3:
                sc.pin(0, L(lambda: k.srd(16, 42, 8 * 2048 * 256), 16))
                assert ld <= 40, ld
                vp = [f"buffer_load_dwordx4 {a(192+8*i+4*j,4)}, v{VDV}, s[16:19], s{(sO0, sO1)[i]} offen offset:{1024*j}" for i in range(2) for j in range(2)] if P["VP"] else []
                if P["KPOS"]:
                    kp = [f"buffer_load_dwordx4 {a(208+8*i+4*j,4)}, v{VDK+j}, s[12:15], s{(sO0, sO1, sO2)[i]} offen offset:{1024*j}" for i in range(3) for j in range(2)]
                    sc.add(kp + vp, P["KPOS"], P["KPOS"] + 8); vp = []
                if not P["KEARLY"]: sc.add([x for d in kfirst for x in d] + vp, ld, ld + 12)
                ov = [[f"s_lshl_b32 s{sT0}, s{sG}, 19", f"s_add_u32 s{sT0}, s{sT0}, s{sW256}"],
                      f"v_and_b32 v{VDW+1}, 15, v{LN_}", f"v_lshlrev_b32 v{VDW+2}, 1, v{ROWL}", f"v_xor_b32 v{VDW+1}, v{VDW+1}, v{VDW+2}",
                      f"v_lshlrev_b32 v{VDW}, 10, v{ROWL}", f"v_lshl_add_u32 v{VDW}, v{VDW+1}, 4, v{VDW}", f"v_xor_b32 v{VDW+2}, 128, v{VDW}",
                      f"v_add_u32 v{VDW}, s{sT0}, v{VDW}", f"v_add_u32 v{VDW+2}, s{sT0}, v{VDW+2}",
                      f"v_add_u32 v{VDW+1}, 3072, v{VDW}", f"v_add_u32 v{VDW+3}, {3*3072}, v{VDW+2}", f"v_add_u32 v{VDW+2}, {2*3072}, v{VDW+2}",
                      [f"s_and_b32 s{sR8}, s{sROT}, 30", f"s_lshl_b32 s{sKhi}, s{sR8}, 14"]]
                sc.add(ov, ld + 1, 58)
                NA1 = P["F1R"] // 2; W1_ = 3584 // NA1; assert NA1 == 4
                nA2 = 32 // P["F2R"]; NA2 = 8 // nA2; rows2 = 8 // nA2
                ps = [L(lambda: k.srd(40, 64, 512 * 3584), 16), L(lambda: k.srd(44, 66, 512 * 3584), 16),
                      [f"s_lshr_b32 s66, s2, 3", f"s_lshl_b32 s66, s66, 2", f"s_add_u32 s66, s66, s{sW}"],
                      [f"s_mul_i32 s64, s66, {4*3584}", f"s_and_b32 s3, s2, 3", f"s_lshl_b32 s67, s3, 9"], ["s_add_u32 s64, s64, s67", f"s_mul_i32 s65, s66, {14*1024}"],
                      ["s_lshl_b32 s3, s3, 7", "s_sub_u32 s3, 1536, s3"],
                      [f"s_and_b32 s67, s2, {NA2-1}", f"s_mul_i32 s67, s67, {128*nA2}", "s_add_u32 s65, s65, s67"],
                      [f"s_lshl_b32 s66, s{sROT}, 14", f"s_lshl_b32 s67, s{sG}, 19", "s_add_u32 s66, s66, s67"], [f"s_lshl_b32 s67, s{sW}, {12+lg2(G)}", "s_add_u32 s66, s66, s67"],
                      f"v_min_u32 v{VX}, 55, v{LN_}", f"v_lshlrev_b32 v{VX}, 4, v{VX}", f"v_mad_u32_u24 v{VX}, v{h_}, s3, v{VX}",
                      f"v_lshrrev_b32 v{VX+1}, {lg2(8*nA2)}, v{LN_}", f"v_lshlrev_b32 v{VX+1}, 10, v{VX+1}", f"v_and_b32 v{tm}, {8*nA2-1}, v{LN_}", f"v_lshl_add_u32 v{VX+1}, v{tm}, 4, v{VX+1}"]
                sc.add(ps, 2, 32)
                sc.pin(ld + 1, L(lambda: k.srd(8, 4, 1792 * 1024), 16))
                sc.pin(56, L(lambda: (k.wait("K"), k.wait_all(vm=False), k("s_barrier")), 8))
                sc.add([rdK(f, f, L_K + 16384 + 8192) for f in range(4)], 56, 60, prio=1)
                sc.add(kv_dma("V", L_V, sO0) + kv_dma("V", L_V + 8192, sO1), 57, 62)
                sc.add(qepi(0), 61, 64)
                sc.pin(58, [f"v_add_u32 v{VLIN}, {L_H}, v{VL16}", f"v_add_u32 v{VLO}, {L_H}, v{VL16}"])
        return f
    gemm("Q", qx, 1, 4)
    stamp(k, "qgemm")
    def qk(f, s_, qt, buf, zero):
        d = v(S + 32 * buf + 16 * qt, 16)
        c = d if s_ else ("0" if zero else v(CI + 16 * qt, 16))
        return f"v_mfma_f32_32x32x16_bf16 {d}, {a(fr(f),4)}, {v(Q+8*s_+4*qt,4)}, {c}"
    def pv(f, i, qt, buf, zero=False):
        d = a(O + 32 * (i % 4) + 16 * qt, 16)
        return f"v_mfma_f32_32x32x16_bf16 {d}, {a(fr(f),4)}, {v(S+32*buf+16*qt+8*(i//4),4)}, {'0' if zero else d}"
    def sreg(buf, e): return S + 32 * buf + 16 * ((e >> 3) & 1) + 8 * (e >> 4) + (e & 7)
    def sm(buf, e, addci=False):
        o = []
        if e < 32:
            if addci: o.append(f"v_add_f32 v{sreg(buf,e)}, v{sreg(buf,e)}, v{CI+16*((e>>3)&1)}")
            o.append(f"v_exp_f32 v{sreg(buf,e)}, v{sreg(buf,e)}")
        if e >= 1:
            p = e - 1
            o.append(f"v_add_f32 v{LS+((p>>3)&1)}, v{LS+((p>>3)&1)}, v{sreg(buf,p)}")
            if p & 1:
                o.append(f"v_cvt_pk_bf16_f32 v{sreg(buf,p&~7)+(p&7)//2}, v{sreg(buf,p-1)}, v{sreg(buf,p)}")
        return o
    def wgrp(j): return L(lambda: k.wait_regs(a(FR + 16 * (j % 2), 16)))
    def qk0(epi):
        wgrp(0)()
        for s_ in range(8):
            ep = qepi(s_ // 2 + 1)[8 * (s_ & 1):8 * (s_ & 1) + 8] if epi and s_ < 6 else []
            rd = [rdK(f + 4, f + 4, L_K + 16384 + 8192) if f < 4 else rdK(f + 4, f - 4, L_K) for f in ([2*s_, 2*s_+1] if s_ < 2 else [2*s_-4, 2*s_-3] if 4 <= s_ < 6 else [])]
            k(qk(s_, s_, 0, 0, True)); put(k, rd[:1]); put(k, ep[:4])
            k(qk(s_, s_, 1, 0, True)); put(k, rd[1:]); put(k, ep[4:])
            if s_ % 4 == 3: wgrp(s_ // 4 + 1)()
    qk0(True)
    k(f"s_cmp_lg_u32 s{sFB}, 0"); k("s_cbranch_scc1 FB_MAX")
    k.label("IT0")
    def maxops(buf, dst):
        o = []
        for qt in range(2):
            b = S + 32 * buf + 16 * qt; t = dst + qt
            o.append(f"v_max3_f32 v{t}, v{b}, v{b+1}, v{b+2}")
            for i in range(3, 15, 2): o.append(f"v_max3_f32 v{t}, v{t}, v{b+i}, v{b+i+1}")
            o.append(f"v_max_f32 v{t}, v{t}, v{b+15}")
        return [x for pr in zip(o[:8], o[8:]) for x in pr]
    def xhalf_max(t, t2):
        return [f"v_mov_b32 v{t2}, v{t}", f"v_mov_b32 v{t2+1}, v{t+1}", f"v_permlane32_swap_b32 v{t}, v{t2}", f"v_permlane32_swap_b32 v{t+1}, v{t2+1}",
                f"v_max_f32 v{t}, v{t}, v{t2}", f"v_max_f32 v{t+1}, v{t+1}, v{t2+1}"]
    def flat(x): return [y for z in x for y in z]
    def iteration(par, first=False, last=False, extra=None):
        hb = 16384 * par; nb = 16384 * (1 - par)
        mf = []
        phs = [0, 1, 3] if last else [0, 1, 2, 3]
        n = 16 * len(phs)
        sc = Sched(n)
        frs = []
        for q_, ph in enumerate(phs):
            for g in range(16):
                f = 8 * q_ + g // 2; qt = g & 1; i = g // 2
                if ph == 0: mf.append(qk(f, i, qt, 1, first))
                elif ph == 1: mf.append(pv(f, i, qt, 0, first and i < 4))
                elif ph == 2: mf.append(qk(f, i, qt, 0, False))
                else: mf.append(pv(f, i, qt, 1))
            for i in range(8): frs.append((ph, i))
        ng = len(frs) // 4
        for j in range(1, ng):
            rd = []
            for f in range(4 * j, 4 * j + 4):
                ph, i = frs[f]
                rd += rdK(f, i, hb + 8192 * (ph // 2)) if ph % 2 == 0 else rdV(f, i, hb + 8192 * (ph // 2))
            g0 = 8 * (j - 1)
            if first and j == 2: sc.pin(g0 + 1, L(lambda: (k.wait("V"), k("s_barrier")), 8)); g0 += 1
            sc.add(rd, g0, 8 * (j - 1) + 6, prio=1)
            sc.pin(8 * j - 1, wgrp(j), end=True)
        dm = [nxt(sO1, sO2), kv_dma("V", L_V + nb, sO2), kv_dma("K", L_K + nb, sO1), kv_dma("V", L_V + nb + 8192, sO1), nxt(sO2, sO1), kv_dma("K", L_K + nb + 8192, sO2)]
        dm = [dm[0]] + dm[1] + dm[2] + dm[3] + [dm[4]] + dm[5]
        if first:
            sc.add(dm, 24, 44)
            mx = maxops(0, MX) + xhalf_max(MX, MX + 2)
            mx += [[f"s_cmp_lg_u32 s{sFB}, 0", "s_cselect_b64 vcc, -1, 0"]]
            mx += [f"v_sub_f32 v{CI+16*qt}, {f32(-float(P['BIAS']))}, v{MX+qt}" for qt in range(2)]
            mx += [f"v_cndmask_b32 v{CI+16*qt}, v{CI+16*qt}, v{MX+4+qt}, vcc" for qt in range(2)]
            sc.add(mx + flat(sm(0, e, True) for e in range(17)), 1, 16)
            sc.add(flat(sm(0, e, True) for e in range(17, 33)), 16, 23)
            sc.add([f"v_mov_b32 v{CI+16*qt+i}, v{CI+16*qt}" for qt in range(2) for i in range(1, 16)], 23, 31)
            sc.add(flat(sm(1, e, True) for e in range(33)), 23, 54)
            sc.add(flat(sm(0, e) for e in range(12)), 54, 64)
        else:
            for e in range(12, 33): sc.pin(e - 12, sm(0, e))
            if last:
                sc.add(flat(sm(1, e) for e in range(17)), 19, 31)
                sc.add(flat(sm(1, e) for e in range(17, 33)), 31, 39)
            else:
                sc.add(dm, 1, 40)
                for e in range(33): sc.pin(20 + e, sm(1, e))
                for e in range(12): sc.pin(52 + e, sm(0, e))
        if not last:
            sc.pin(56, L(lambda: (k.wait("K", "V"), k("s_barrier")), 8))
            sc.add([rdK(f, f, nb) for f in range(4)], 56, 61, prio=1)
            sc.pin(63, wgrp(0), end=True)
        if extra: extra(sc)
        for m, f_ in zip(mf, sc.run()): k(m); put(k, f_)
    iteration(0, first=True)
    stamp(k, "it0")
    rows2 = 8 // (32 // P["F2R"])
    def xpf(half):
        def f(sc):
            if not P["PF1"]: return
            n = 8 * half
            if half == 0:
                pf = [[f"buffer_load_dwordx4 {a(192+4*(n+j),4)}, v{VL16}, s[20:23], s66 offen offset:{1024*j}"] for j in range((4 * G + 2) // 3)] + [f"s_add_u32 s66, s66, {1024*((4*G+2)//3)}"]
                pf += [[f"buffer_load_dwordx4 {a(192+4*(n+3+j),4)}, v{VX+1}, s[8:11], s65 offen", f"s_add_u32 s65, s65, {1024*rows2}"] for j in range((14 // rows2 + 2) // 3)]
            else:
                pf = [[f"buffer_load_dwordx4 {a(192+4*(n+2*j+m_),4)}, v{VX}, s[{40+4*m_}:{43+4*m_}], s64 offen"] + ([f"s_add_u32 s64, s64, 3584"] if m_ else []) for j in range(2) for m_ in range(2)]
            sc.add(pf, 40, 56)
        return f
    k.loop(sST, 3, lambda: (iteration(1, extra=xpf(0)), iteration(0, extra=xpf(1))), align=3)
    stamp(k, "it1-6")
    OM = MX + 4
    def finalize(dt, qt):
        b = Q + 16 * ((2 * dt + qt) % 4)
        o = [f"v_accvgpr_read_b32 v{b+i}, a{O+32*dt+16*qt+i}" for i in range(16)]
        if dt == 0: o += [f"v_max3_f32 v{OM+qt}, |v{b+i}|, |v{b+i+1}|, v{OM+qt}" for i in range(0, 16, 2)]
        o += [f"v_pk_mul_f32 {v(b+i,2)}, {v(b+i,2)}, {v(RL,2)} op_sel:[0,{qt}] op_sel_hi:[1,{qt}]" for i in range(0, 16, 2)]
        for sp in range(2):
            o += [f"v_cvt_pk_bf16_f32 v{b+8*sp+j}, v{b+8*sp+2*j}, v{b+8*sp+2*j+1}" for j in range(4)]
            o.append(L(lambda sp=sp: k(f"ds_write_b128 v{STT+dt}, {v(b+8*sp,4)} offset:{32768*qt+1024*sp}", token="hw"), 22, "d"))
        return o
    f0 = finalize(0, 0); f1 = finalize(0, 1)
    def o_dma(st):
        slot = st % 6
        o = [f"s_add_u32 m0, s{sRING}, {4096*slot+0x100000-0x100000}" if slot < 4 else f"s_add_u32 m0, s31, {L_K+16384*(slot-4)}",
             f"buffer_load_dwordx4 v{VDW}, s[20:23], s{sKhi} offen lds"]
        for n in range(1, 4):
            o.append(L(lambda n=n: k(f"buffer_load_dwordx4 v{VDW+n}, s[20:23], s{sKhi} offen offset:{1024*n} lds", token=f"W{slot}"), 10, "v"))
        o.append(f"s_add_u32 s{sKhi}, s{sKhi}, 16384")
        if st & 1: o.append(f"s_and_b32 s{sKhi}, s{sKhi}, 0x7ffff")
        return o
    OA = [0, 32]; OB = [160, 176]
    OA = [192, 224]
    V16 = VW
    def oa_reads(u, half):
        s0 = 2 * (u % 3)
        rd = [f"ds_read_b64_tr_b16 {a(OA[u%2]+8*p+4*e+2*uu,2)}, v{(V16 if s0 < 4 else VV)+p} offset:{(4096*s0 if s0 < 4 else 0)+1024*uu+8*e}" for p in range(2 * half, 2 * half + 2) for e in range(2) for uu in range(2)]
        return [[L(lambda: k.wait(f"W{s0}", f"W{s0+1}")), rd[0]]] + rd[1:]
    def ob_reads(u):
        return [f"ds_read_b128 {a(OB[u%2]+4*r4,4)}, v{VLO} offset:{2048*u+32768*(r4>>1)+256*(r4&1)}" for r4 in range(4)]
    def x_last(sc):
        sc.add([f"s_lshl_b32 s31, s{sW}, 12"] + flat(o_dma(s_) for s_ in range(5)), 0, 38)
        sc.add(o_dma(5), 41, 48)
        fin = [f"v_mov_b32 v{MX}, v{LS}", f"v_mov_b32 v{MX+1}, v{LS+1}", f"v_mov_b32 v{OM}, 0", f"v_mov_b32 v{OM+1}, 0",
               f"v_permlane32_swap_b32 v{LS}, v{MX}", f"v_permlane32_swap_b32 v{LS+1}, v{MX+1}",
               f"v_add_f32 v{LS}, v{LS}, v{MX}", f"v_add_f32 v{LS+1}, v{LS+1}, v{MX+1}",
               f"v_rcp_f32 v{RL}, v{LS}", f"v_rcp_f32 v{RL+1}, v{LS+1}", f"v_max_f32 v{MX+6}, v{LS}, v{LS+1}"]
        adr = [[f"s_lshl_b32 s57, s{sW}, 3", f"s_sub_u32 s57, s57, s{sR8}"]]
        for dt in range(4):
            adr += [[f"s_add_u32 s56, s57, {2*dt}", "s_and_b32 s56, s56, 31", "s_lshl_b32 s56, s56, 10"], f"v_add_u32 v{STT+dt}, s56, v{VLIN}"]
        adr += [f"v_lshl_add_u32 v{tm}, v{ROWL}, 3, v{r_}", f"v_lshlrev_b32 v{tm}, 8, v{tm}", f"v_and_b32 v{tm+1}, 1, v{LN_}", f"v_lshl_add_u32 v{tm}, v{tm+1}, 4, v{tm}",
                f"v_add_u32 v{tm}, s{sRING}, v{tm}", f"v_lshl_add_u32 v{tm+1}, v{gn}, 2, v{r_}", f"v_bfe_u32 v{tm+2}, v{LN_}, 1, 1", f"v_xor_b32 v{tm+1}, v{tm+1}, v{tm+2}",
                f"v_lshl_add_u32 v{V16}, v{tm+1}, 5, v{tm}"] + [f"v_xor_b32 v{V16+p}, {64*p}, v{V16}" for p in range(1, 4)]
        adr += [f"v_and_b32 v{tm+1}, 15, v{LN_}", f"v_lshlrev_b32 v{tm+1}, 4, v{tm+1}", f"v_lshl_add_u32 v{HW}, v{ROWL}, 9, v{tm+1}", f"v_add_u32 v{VLO}, {L_H}, v{HW}"]
        sc.add(adr, 0, 19)
        sc.add(fin, 39, 43)
        sc.pin(40, L(lambda: k("s_barrier")))
        sc.add(oa_reads(0, 0), 40, 46, prio=1)
        sc.add(f0[:16] + f1[:12], 43, 48)
    iteration(1, last=True, extra=x_last)
    stamp(k, "it7")
    k(f"s_load_dwordx2 s[46:47], s[0:1], {A_X}")
    k(f"s_load_dwordx2 s[48:49], s[0:1], {A_OUT}")
    put(k, oa_reads(0, 1))
    k(f"s_sub_u32 s3, s31, s{sRING}"); k(f"v_mul_u32_u24 v{tm}, 12288, v{h_}"); k(f"v_add_u32 v{tm}, s3, v{tm}")
    for p in range(4): k(f"v_add_u32 v{VV+p}, v{V16+p}, v{tm}")
    put(k, f0[16:] + f1[12:])
    for dt in range(1, 4):
        for qt in range(2): put(k, finalize(dt, qt))
    k.wait_all(vm=False); k("s_barrier")
    put(k, ob_reads(0))
    stamp(k, "owrite")
    sc = Sched(512, budget=P['OBUD']); mf = []
    for u in range(16):
        g0 = 32 * u
        if u + 1 < 16:
            sc.add(ob_reads(u + 1) + oa_reads(u + 1, 0) + oa_reads(u + 1, 1), g0 + P["ORD0"], g0 + 28, prio=1)
            sc.pin(g0 + 31, L(lambda u=u: k.wait_regs(a(OA[(u + 1) % 2], 32), a(OB[(u + 1) % 2], 16))), end=True)
        if u + 3 < 16: sc.add(o_dma(2 * u + 6) + o_dma(2 * u + 7), g0, g0 + P["ODE"])
        for t_ in range(8):
            for r4 in range(4):
                d = v(ACC + 32 * (t_ // 2) + 8 * r4 + 4 * (t_ % 2), 4)
                mf.append(f"v_mfma_f32_16x16x32_bf16 {d}, {a(OA[u%2]+4*t_,4)}, {a(OB[u%2]+4*r4,4)}, {'0' if u == 0 else d}")
    misc = [f"v_min_f32 v{OM}, v{OM}, v{OM+1}", f"v_cmp_ngt_f32 vcc, {f32(2.0**120)}, v{MX+6}", "s_mov_b64 s[62:63], vcc",
            f"v_cmp_gt_f32 vcc, {f32(2.0**-112 if not P['FORCE_FB'] else 2.0**100)}, v{OM}", "s_or_b64 s[62:63], s[62:63], vcc",
            f"v_mov_b32 v{MX+1}, s{sRING}", f"v_and_b32 v{MX+7}, 3, v{LN_}", f"v_lshlrev_b32 v{MX+7}, 14, v{MX+7}", f"v_add_u32 v{MX+7}, {L_W}, v{MX+7}", f"v_mov_b32 v{MX+2}, 0", f"v_mov_b32 v{MX+3}, 0x7f800000",
            f"s_lshl_b32 s{sT2}, s{sG}, 21", f"s_lshl_b32 s{sT1}, s{sRB}, 16", f"s_add_u32 s{sT2}, s{sT2}, s{sT1}",
            f"s_lshl_b32 s{sT1}, s{sW}, 13", f"s_add_u32 s{sT2}, s{sT2}, s{sT1}", f"s_add_u32 s{sT2}, s{sT2}, {WS_P:#x}",
            "s_mov_b32 s12, s46", "s_and_b32 s13, s47, 0xffff", "s_mov_b32 s14, 0x200000", "s_mov_b32 s15, 0x20000",
            "s_mov_b32 s16, s68", "s_and_b32 s17, s69, 0xffff", "s_mov_b32 s18, 0x100", "s_mov_b32 s19, 0x20000",
            f"s_lshl_b32 s5, s{sRB}, 3", f"s_add_u32 s5, s5, s{sG}", "s_lshl_b32 s5, s5, 13",
            f"v_and_b32 v{tm}, 7, v{LN_}", f"v_lshrrev_b32 v{tm+1}, 3, v{LN_}", f"v_lshl_add_u32 v{tm+1}, s{sW}, 4, v{tm+1}",
            f"v_lshlrev_b32 v{VK}, 10, v{tm}", f"v_lshl_add_u32 v{VK}, v{tm+1}, 4, v{VK}", f"v_lshlrev_b32 v{VK+1}, 5, v{tm+1}",
            f"buffer_load_dword v{VK+2}, v{MX+2}, s[16:19], 0 offen sc1"]
    sc.add(misc, 8, 260)
    def cspin():
        k("s_mov_b32 s3, 0"); k("s_branch CCHK"); st = dict(k.vm)
        k.label("CPOLL")
        k(f"buffer_load_dword v{VK+2}, v{MX+2}, s[16:19], 0 offen sc1"); k.wait_all(lg=False)
        k.label("CCHK"); k.vm = st
        k("s_add_u32 s3, s3, 1"); k(f"v_cmp_gt_u32 vcc, 0x100, v{VK+2}")
        k("s_cmp_gt_u32 s3, 0x8000"); k("s_cbranch_scc1 CDONE"); k("s_cbranch_vccnz CPOLL")
        k.label("CDONE")
    sc.pin(417, L(cspin, 24))
    xm = [f"buffer_load_dwordx4 {v(128+4*i,4)}, v{VK}, s[12:15], s5 offen offset:{128*i}" for i in range(2)]
    for base, m_ in ((136, 2), (152, 4), (168, 3)):
        xm += [f"s_mov_b32 s4, {WS_MOD + m_*2048}"] + [f"buffer_load_dwordx4 {v(base+8*i+4*hh,4)}, v{VK+1}, s[24:27], s4 offen offset:{256*i+16*hh} sc1" for i in range(2) for hh in range(2)]
    sc.add(xm, 419, 490)
    for m, f_ in zip(mf, sc.run()): k(m); put(k, f_)
    stamp(k, "ogemm")
    for r4 in range(4):
        k(f"v_cmp_nlt_f32 vcc, |v{ACC+8*r4}|, v{MX+3}"); k("s_or_b64 s[62:63], s[62:63], vcc")
    k(f"s_cselect_b32 s{sT1}, 1, 0"); k(f"v_mov_b32 v{MX}, s{sT1}")
    k(f"ds_write_b32 v{MX+1}, v{MX}", token="fl")
    for p in range(4):
        if p == 1: k.wait("fl"); k("s_barrier"); k(f"ds_read_b32 v{STT}, v{MX+7}")
        for r4 in range(4):
            if r4 % 2 == 0: k(f"s_add_u32 s{sT1}, s{sT2}, {32768*(r4>>1) + 2048*p}")
            b = ACC + 32 * p + 8 * r4
            for j in range(4): k(f"v_cvt_pk_bf16_f32 v{b+j}, v{b+2*j}, v{b+2*j+1}")
            k(f"buffer_store_dwordx4 {v(b,4)}, v{HW}, s[24:27], s{sT1} offen offset:{256*(r4&1)} sc1", token="PST")
    k(f"v_cmp_lt_u32 vcc, s{sFB}, v{STT}")
    k("s_cbranch_vccnz FALLBACK")
    tail(sys.modules[__name__], k)
    stamp_flush(k, 0)
    k.label("END_attn"); k("s_endpgm")
    k.label("FALLBACK")
    k.wait_all(); k("s_barrier")
    k(f"s_mov_b32 s{sFB}, 1")
    k("s_nop 15")
    k("s_branch RESTART")
    k.label("FB_MAX")
    k.wait_all(); k("s_barrier")
    k(f"v_mov_b32 v{MX+4}, 0xff800000"); k(f"v_mov_b32 v{MX+5}, 0xff800000")
    def fbody():
        put(k, kv_dma("K", L_K, sO0) + nxt(sO0, sO0)); k.wait("K"); k("s_barrier")
        for s_ in range(8): put(k, rdK(s_, s_, L_K))
        for s_ in range(8):
            for qt in range(2): k(qk(s_, s_, qt, 0, True))
        put(k, maxops(0, MX))
        k(f"v_max_f32 v{MX+4}, v{MX+4}, v{MX}"); k(f"v_max_f32 v{MX+5}, v{MX+5}, v{MX+1}")
        k("s_barrier")
    k.loop(sST, 16, fbody)
    put(k, xhalf_max(MX + 4, MX + 2))
    for qt in range(2): k(f"v_sub_f32 v{MX+4+qt}, 0, v{MX+4+qt}")
    put(k, kfirst)
    k.wait_all(); k("s_barrier")
    for f in range(4): put(k, rdK(f, f, L_K + 16384 + 8192))
    qk0(False)
    k.wait_all()
    k("s_branch IT0")
    return k

from gen28_tail import tail

HEADER = open('adaLN_cond__sliding_block_cached__geglu_ffn__prompt.s.ref').read().split("; Override launch")[0]

if __name__ == "__main__":
    out = sys.argv[1] if len(sys.argv) > 1 else "k.s"
    me = sys.modules[__name__]
    ks = [gen_attn()]
    ks[-1].label("CODE_END")
    txt = emit(ks, header=HEADER)
    if P.get("SINGLE"): txt = txt.replace("; @launch kernel=" + KNAME + " ", "; @launch ")
    open(out, "w").write(txt)
    json.dump([[k.name, k.grid, k.block//64, k.stamps] for k in ks], open(out[:-2]+".json","w"))
    for k in ks: print(k.name, "regs(v,a,s)", k.used, "nops", k.n_nops, "misal", k.n_mis, "instrs", len(k.items))
```

```python
import sys, struct, math, os, json
from asmlib import *

def f32(x): return "0x%08x" % struct.unpack("<I", struct.pack("<f", x))[0]
LOG2E = 1.4426950408889634
CS = 128 ** -0.5
A_X, A_K, A_V, A_WQ, A_WO, B_X, A_WG, A_WU, A_WD, A_C, A_WM, A_OUT, A_DBG, A_WS = [8 * i for i in range(14)]
WS_MOD = 0x0
WS_GO = 0x18000
WS_FL = 0x20000
WS_ST = 0x10000
WS_P = 0x400000
WS_X1 = 0x1400000
WS_H2 = 0x1600000
WS_ACT = 0x1800000
WS_BYTES = 0x10000000
WS_DBG = 0x8000000
P = dict(STAMPS=0, G=2, ROT=1, F1R=8, F2R=8, PREF0=1, PREFC=1, PREFQ=1, PREFK=1, PORD=1, XPRE=0, TLBW=1, PBAR=3, WPOS=1, DEFER=1, SYNC=1, LFIRST=0, SLEEP=2, OSC=1, SLEEP2=4, FW1=6, FW2=20, F2PRE=12, WARM=1, WOFF=1, ORD0=0, ODE=32, OBUD=8, ROLE=0, VP=0, KPOS=0, PFK=0, GS=1, NHID=4, TOUCH=0, N0=4, QP0=10, QBURST=1, TW1=8, TWM=8, TB0=2, HEND=32, APRE=6, BLEAD=4, EEND=64, PUBA=76, WLAG=4, BCHK=10, TW2=5, HPRE=3, PSYS=0, WPRE=2, BURST=54, KEARLY=0, BIAS=96, FORCE_FB=0, PNT=0, PST=2, AST=2, PF1=1, PF2=1)
for kv in os.environ.get("GP", "").split(","):
    if kv: P[kv.split("=")[0]] = int(kv.split("=")[1])

def stamp(k, name):
    if not P["STAMPS"]: return
    SETS = {0: ("start", "mod", "qgemm", "it0", "it1-6", "owrite", "ogemm", "t_set", "end"), 1: ("start", "gemv", "stats", "poll", "mod", "qgemm", "end"),
            3: ("start", "t_set", "poll1", "x1", "poll2", "ffn1", "pub3", "poll3", "end"), 7: ("start", "end"), 8: ("start", "mod", "ogemm", "poll2", "ffn1", "pub3", "ffn2", "end"), 9: ("start", "t_set", "poll2", "end"), 10: ("start", "poll2", "pub3", "end"), 6: ("start", "poll2", "passA", "ffn1", "pub3", "poll3", "ffn2", "end"), 4: ("start", "mod", "q0", "q1", "q2", "qgemm", "end"), 5: ("start", "owrite", "q0o", "q1o", "q2o", "ogemm", "end")}
    if name not in SETS[P.get("DG", 0)]: return
    i = len(k.stamps); k.stamps.append(name)
    assert i < 9
    k.sgpr = 102
    k("s_memtime s[80:81]"); k("s_memrealtime s[100:101]"); k("s_waitcnt lgkmcnt(0)")
    k(f"s_mov_b32 s{82+2*i}, s80"); k(f"s_mov_b32 s{83+2*i}, s100")
def stamp_begin(k):
    k.stamps = []
    if not P["STAMPS"]: return
    stamp(k, "start")
def stamp_flush(k, kidx):
    if not P["STAMPS"]: return
    stamp(k, "end")
    if P["STAMPS"] == 2:
        lab = k.newlabel("NODBG")
        k("s_mov_b64 exec, -1")
        k(f"s_xor_b32 s100, s2, {P.get('DWG', 200)}"); k("s_or_b32 s100, s100, s101"); k("s_cmp_lg_u32 s100, 0"); k(f"s_cbranch_scc1 {lab}")
        k(f"s_load_dwordx2 s[66:67], s[0:1], {A_DBG}")
        k.srd(60, 66, 256)
        k("v_mov_b32 v1, 0")
        n = len(k.stamps)
        for j in range(1, n):
            k(f"s_sub_u32 s100, s{77+2*j}, s77"); k("v_mov_b32 v0, s100")
            k(f"buffer_store_dword v0, v1, s[60:63], 0 offen offset:{4*j}")
        k(f"s_sub_u32 s100, s{76+2*(n-1)}, s76"); k("v_mov_b32 v0, s100")
        k(f"buffer_store_dword v0, v1, s[60:63], 0 offen offset:{4*n}")
        k.label(lab)
        return
    k(f"s_load_dwordx2 s[64:65], s[0:1], {A_WS}")
    k("s_mov_b64 exec, -1")
    k.srd(56, 64, WS_BYTES)
    k("s_lshl_b32 s100, s2, 3"); k("s_add_u32 s100, s100, s28"); k("s_lshl_b32 s100, s100, 8")
    k(f"s_add_u32 s100, s100, {WS_DBG + kidx*0x100000:#x}")
    k("v_mov_b32 v1, 0")
    for j, sr in enumerate([82 + i for i in range(2*len(k.stamps))]):
        k(f"v_mov_b32 v0, s{sr}")
        k(f"buffer_store_dword v0, v1, s[56:59], s100 offen offset:{4*j}")

def wave_id(k, sdst, vtmp):
    k(f"v_lshrrev_b32 v{vtmp}, 6, v0")
    k(f"v_readfirstlane_b32 s{sdst}, v{vtmp}")
def rowsum_8(k, val, tmp):
    k(f"v_add_f32_dpp v{val}, v{val}, v{val} row_ror:8 row_mask:0xf bank_mask:0xf")
    k(f"v_mov_b32 v{tmp}, v{val}"); k(f"v_permlane16_swap_b32 v{val}, v{tmp}"); k(f"v_add_f32 v{val}, v{val}, v{tmp}")
    k(f"v_mov_b32 v{tmp}, v{val}"); k(f"v_permlane32_swap_b32 v{val}, v{tmp}"); k(f"v_add_f32 v{val}, v{val}, v{tmp}")
def rnd(k, d, sreg): k(f"v_cvt_pk_bf16_f32 v{d}, 0, v{sreg}")
def lg2(x): return x.bit_length() - 1
def split2(k, sb, sA, sB, nA_per, nB_total, t0, t1):
    A_total = 256 // nB_total; NA = A_total // nA_per
    k(f"s_and_b32 s{t0}, s{sb}, 7"); k(f"s_lshr_b32 s{t1}, s{sb}, 3")
    k(f"s_and_b32 s{sA}, s{t0}, {NA-1}"); k(f"s_lshl_b32 s{sA}, s{sA}, {lg2(nA_per)}")
    k(f"s_and_b32 s{sB}, s{t1}, {nA_per-1}"); k(f"s_add_u32 s{sA}, s{sA}, s{sB}")
    k(f"s_lshr_b32 s{sB}, s{t0}, {lg2(NA)}"); k(f"s_lshl_b32 s{sB}, s{sB}, {lg2(32//nA_per)}")
    k(f"s_lshr_b32 s{t1}, s{t1}, {lg2(nA_per)}"); k(f"s_add_u32 s{sB}, s{sB}, s{t1}")
def lane_tr_parts(k, lane, r, c2, gn, h, tmp):
    k(f"v_bfe_u32 v{r}, v{lane}, 2, 2")
    k(f"v_and_b32 v{c2}, 1, v{lane}"); k(f"v_lshlrev_b32 v{c2}, 1, v{c2}")
    k(f"v_bfe_u32 v{tmp}, v{lane}, 1, 1"); k(f"v_or_b32 v{c2}, v{c2}, v{tmp}")
    k(f"v_bfe_u32 v{gn}, v{lane}, 4, 1")
    k(f"v_lshrrev_b32 v{h}, 5, v{lane}")

QS = CS * LOG2E
GK0 = 2 * math.sqrt(2 / math.pi) * LOG2E
GSC = (GK0 * 0.044715) ** (1 / 3)
KNAME = "adaLN_cond__sliding_block_cached__geglu_ffn__prompt_kernel"
def ln_stats(k, XF):
    k(f"v_pk_add_f32 v[10:11], {v(XF,2)}, {v(XF+2,2)}")
    for e in range(4, 16, 2): k(f"v_pk_add_f32 v[10:11], v[10:11], {v(XF+e,2)}")
    k("v_add_f32 v10, v10, v11")
    def allreduce(off):
        rowsum_8(k, 10, 11)
        k(f"ds_write_b32 v9, v10 offset:{off}", token="w"); k.wait("w"); k("s_barrier")
        k(f"ds_read_b128 {v(12,4)}, v8 offset:{off}")
        k("v_add_f32 v12, v12, v13"); k("v_add_f32 v14, v14, v15"); k("v_add_f32 v10, v12, v14")
    allreduce(0)
    k(f"v_mul_f32 v58, {f32(-1/512)}, v10"); k("v_mov_b32 v59, v58")
    for e in range(0, 16, 2): k(f"v_pk_add_f32 {v(XF+e,2)}, {v(XF+e,2)}, v[58:59]")
    k(f"v_pk_mul_f32 v[10:11], {v(XF,2)}, {v(XF,2)}")
    for e in range(2, 16, 2): k(f"v_pk_fma_f32 v[10:11], {v(XF+e,2)}, {v(XF+e,2)}, v[10:11]")
    k("v_add_f32 v10, v10, v11")
    allreduce(128)
    k(f"v_mov_b32 v11, {f32(1e-5)}"); k(f"v_fmac_f32 v11, {f32(1/512)}, v10")
    k("v_rsq_f32 v56, v11"); k("v_mov_b32 v57, v56")

def gen_ln2():
    k = Kernel("ln2_kernel", 256, 256, 256, vgpr=160, sgpr=64)
    k("s_cmp_ge_u32 s2, 256"); k("s_cbranch_scc1 END_ln2")
    stamp_begin(k)
    k(f"s_load_dwordx2 s[4:5], s[0:1], {A_X}")
    k(f"s_load_dwordx2 s[6:7], s[0:1], {A_WS}")
    k("v_and_b32 v1, 7, v0"); k("v_lshrrev_b32 v2, 3, v0"); k("v_lshrrev_b32 v6, 6, v0")
    k("v_and_b32 v7, 7, v2"); k("v_lshl_add_u32 v7, v6, 4, v7")
    k("v_lshlrev_b32 v3, 9, v7"); k("v_lshl_add_u32 v3, v1, 4, v3")
    k("v_add_u32 v2, 4096, v3")
    k("v_lshlrev_b32 v4, 10, v1"); k("v_lshl_add_u32 v4, v7, 4, v4")
    k("v_lshlrev_b32 v5, 5, v7")
    k("v_lshlrev_b32 v8, 4, v1"); k("v_lshl_add_u32 v9, v6, 2, v8")
    k("s_and_b32 s25, s2, 7"); k("s_lshl_b32 s25, s25, 5"); k("s_lshr_b32 s26, s2, 3"); k("s_add_u32 s25, s25, s26")
    k("s_lshl_b32 s20, s25, 13")
    k("s_lshr_b32 s21, s25, 2"); k("s_lshl_b32 s21, s21, 15"); k("s_and_b32 s22, s25, 3"); k("s_lshl_b32 s22, s22, 7")
    k("s_add_u32 s21, s21, s22")
    k(f"s_add_u32 s23, s21, {WS_P:#x}")
    k.srd(12, 6, WS_BYTES)
    X = 16; XF = 24; MV = 40; PB = 64
    for g in range(8):
        for i in range(2):
            k(f"buffer_load_dwordx4 {v(PB+8*g+4*i,4)}, v{3-i}, s[12:15], s23 offen" + (" nt" if P["PNT"] else ""))
        if g < 7: k("s_add_u32 s23, s23, 0x200000")
    k.srd(8, 4, 2048 * 1024)
    for i in range(2): k(f"buffer_load_dwordx4 {v(X+4*i,4)}, v4, s[8:11], s20 offen offset:{128*i}")
    k("v_mov_b32 v10, 0"); k("s_lshl_b32 s27, s2, 7"); k(f"s_add_u32 s27, s27, {WS_FL:#x}")
    k("buffer_store_dword v10, v10, s[12:15], s27 offen sc1")
    k("s_mov_b32 s24, 0xffff0000")
    def load_mod(base, m):
        k(f"s_mov_b32 s23, {WS_MOD + m*2048}")
        for i in range(2):
            for hh in range(2):
                k(f"buffer_load_dwordx4 {v(base+8*i+4*hh,4)}, v5, s[12:15], s23 offen offset:{256*i+16*hh}")
    def unpack(dst, src):
        k(f"v_lshlrev_b32 v{dst}, 16, v{src}"); k(f"v_and_b32 v{dst+1}, s24, v{src}")
    load_mod(MV, 2); load_mod(128, 4); load_mod(144, 3)
    for q in range(8): unpack(XF + 2 * q, PB + q)
    for g in range(1, 8):
        for q in range(8):
            unpack(10 + 2 * (q & 1), PB + 8 * g + q)
            k(f"v_pk_add_f32 {v(XF+2*q,2)}, {v(XF+2*q,2)}, {v(10+2*(q&1),2)}")
    for q in range(8):
        unpack(10, X + q)
        k(f"v_pk_fma_f32 v[10:11], {v(XF+2*q,2)}, {v(MV+2*q,2)}, v[10:11]")
        k(f"v_cvt_pk_bf16_f32 v{X+q}, v10, v11")
        unpack(XF + 2 * q, X + q)
    k(f"s_add_u32 s23, s21, {WS_X1:#x}")
    for i in range(2): k(f"buffer_store_dwordx4 {v(X+4*i,4)}, v{3-i}, s[12:15], s23 offen sc1")
    stamp(k, "x1")
    ln_stats(k, XF)
    stamp(k, "stats")
    for e in range(0, 16, 2):
        k(f"v_pk_mul_f32 {v(XF+e,2)}, {v(XF+e,2)}, v[56:57]")
        k(f"v_pk_fma_f32 {v(XF+e,2)}, {v(XF+e,2)}, {v(128+e,2)}, {v(144+e,2)}")
        k(f"v_cvt_pk_bf16_f32 v{MV+e//2}, v{XF+e}, v{XF+e+1}")
    k(f"s_add_u32 s23, s21, {WS_H2:#x}")
    for i in range(2): k(f"buffer_store_dwordx4 {v(MV+4*i,4)}, v{3-i}, s[12:15], s23 offen sc1")
    stamp_flush(k, 1)
    k.label("END_ln2"); k("s_endpgm")
    return k

def put(k, seq):
    for x in seq:
        if isinstance(x, list): put(k, x)
        elif callable(x): x()
        else: k(x)

def warm(k, sW):
    k.stub_offs = {1: [0], 2: [0, 128], 3: [0, 2048], 4: [0, 1024, 2048, 3072]}[P["WOFF"]]; k.stub_end = "END_attn"
    k("s_mov_b64 exec, 0")
    for w in range(3): k(f"s_cmp_eq_u32 s{sW}, {w}"); k(f"s_cbranch_scc1 STUB{w}")
    k("s_branch STUB3")
    k.label("WARM_RET")
    k("s_mov_b64 exec, -1")

def gen_attn():
    k = Kernel(KNAME, 256, 256, 163840, vgpr=256, agpr=256, sgpr=82)
    k.denorm32 = P.get("DEN", 3)
    L_K, L_H, L_V, L_W, L_M = 0, 32768, 32768, 98304, 16384
    ACC = 0; S = 0; CI = 64; Q = 128
    VK = 192; VV = 200; VW = 204; VDW = 208; VDK = 212; VDV = 214; VLIN = 215; VL16 = 216
    LS = 217; VLO = 219
    T = 220
    LN_, ROWL, GR16 = T, T + 1, T + 2
    r_, c2, gn, h_, tm = T + 3, T + 4, T + 5, T + 6, T + 7
    CH8 = T + 10; HW = T + 11
    VX = T + 13; VM = T + 15
    MX = T + 16
    STT = T + 24
    RL = T + 28; UT = T + 28
    O = 0; FR = 128; AF = 128; BF = 160
    sW, sG, sRB, sT0, sT1, sRING, sST, sFB, sROT, sT2 = 28, 29, 30, 32, 33, 34, 35, 39, 50, 51
    sE0, sE1, sE2 = 61, 62, 63
    sO0, sO1, sO2, sW2K, sW256, sKhi, sMASK, sCC, sR8 = 36, 37, 38, 52, 54, 55, 58, 59, 6
    TAB = 72
    def L(f, cost=4, mem=False):
        f.cost = cost; f.mem = mem; return f
    k("s_cmp_ge_u32 s2, 256"); k("s_cbranch_scc1 END_attn")
    stamp_begin(k)
    k(f"s_mov_b32 s{sFB}, 0")
    if P["PREFC"]:
        k("s_getpc_b64 s[56:57]")
        k.label("PCREF")
        k(f"s_lshr_b32 s{sT1}, s2, 3"); k(f"s_lshl_b32 s{sT1}, s{sT1}, 12")
        k("v_lshlrev_b32 v108, 4, v0"); k(f"v_add_u32 v108, s{sT1}, v108"); k("v_min_u32 v108, CODE_END-PCREF-16, v108")
        k("global_load_dwordx4 a[252:255], v108, s[56:57]")
    wave_id(k, sW, T)
    k(f"v_and_b32 v{LN_}, 63, v0")
    k.label("RESTART")
    k(f"s_load_dwordx4 s[8:11], s[0:1], {A_C}")
    k(f"s_load_dwordx2 s[4:5], s[0:1], {A_X}")
    k(f"s_load_dwordx4 s[68:71], s[0:1], {A_DBG}")
    k(f"s_load_dwordx8 s[40:47], s[0:1], {A_K}")
    if P["TOUCH"]:
        k(f"s_load_dwordx4 s[84:87], s[0:1], {A_WG}"); k(f"s_load_dwordx2 s[88:89], s[0:1], {A_WD}"); k(f"s_load_dwordx2 s[90:91], s[0:1], {A_OUT}")
    L_R = L_M + 4096
    PSC = "sc1"
    GW, GC, GA = 64, 80, 88
    k(f"v_lshl_add_u32 v99, s{sW}, 6, v{LN_}")
    k("v_and_b32 v100, 1, v99"); k("v_lshrrev_b32 v101, 1, v99")
    k("v_mul_u32_u24 v102, 6144, v101"); k("v_lshl_add_u32 v102, v100, 4, v102"); k("v_lshlrev_b32 v103, 1, v101")
    k("v_lshrrev_b32 v104, 4, v99"); k("v_lshlrev_b32 v104, 6, v104"); k("v_lshl_add_u32 v104, v100, 5, v104")
    sSL = 7; sPR = 53
    k(f"s_lshr_b32 s{sT1}, s2, 3")
    RM = P["ROLE"]
    if RM == 0:
        k(f"s_and_b32 s{sT0}, s2, 7")
        k(f"s_lshl_b32 s{sSL}, s{sT0}, 3"); k(f"s_add_u32 s{sSL}, s{sSL}, s{sT1}")
        k(f"s_lshl_b32 s{sT2}, s{sT0}, 4"); k(f"s_add_u32 s{sT2}, s{sT2}, s{sT1}"); k(f"s_add_u32 s{sT2}, s{sT2}, 56")
        k("s_cmp_lt_u32 s2, 64"); k(f"s_cselect_b32 s{sSL}, s{sSL}, s{sT2}")
        k("s_cmp_lt_u32 s2, 192"); k(f"s_cselect_b32 s{sSL}, s{sSL}, 255")
    elif RM in (1, 2):
        k(f"s_bfe_u32 s{sT0}, s2, 0x20001")
        k(f"s_lshl_b32 s{sSL}, s{sT0}, 4"); k(f"s_add_u32 s{sSL}, s{sSL}, s{sT1}")
        k(f"s_cmp_lt_u32 s{sT1}, 16"); k(f"s_cselect_b32 s{sSL}, s{sSL}, 255")
        k(f"s_lshl_b32 s{sT2}, s{sT0}, 5"); k(f"s_add_u32 s{sT2}, s{sT2}, s{sT1}"); k(f"s_add_u32 s{sT2}, s{sT2}, 64")
        k("s_bitcmp1_b32 s2, 0")
        k(f"s_cselect_b32 s{sSL}, s{sSL}, s{sT2}" if RM == 1 else f"s_cselect_b32 s{sSL}, s{sT2}, s{sSL}")
    else:
        k(f"s_bfe_u32 s{sT0}, s2, 0x20001"); k(f"s_and_b32 s{sT2}, s{sT1}, 15")
        k(f"s_lshl_b32 s{sSL}, s{sT0}, 4"); k(f"s_add_u32 s{sSL}, s{sSL}, s{sT2}")
        k(f"s_lshr_b32 s{sT2}, s{sT1}, 4"); k(f"s_and_b32 s{sT0}, s2, 1"); k(f"s_lshl_b32 s{sT0}, s{sT0}, 1"); k(f"s_add_u32 s{sT2}, s{sT2}, s{sT0}")
        k(f"s_lshl_b32 s{sT2}, s{sT2}, 6"); k(f"s_add_u32 s{sSL}, s{sSL}, s{sT2}")
    k(f"s_cmp_lt_u32 s{sSL}, 64")
    k(f"s_cselect_b32 s{sPR}, s{sFB}, 1")
    k(f"s_lshl_b32 s31, s{sSL}, 5")
    k(f"v_lshlrev_b32 v{VL16}, 4, v{LN_}")
    G = P["G"]
    NG = 8 // G; NS = 32 // G
    k(f"s_and_b32 s{sG}, s2, {NG-1}"); k(f"s_lshl_b32 s{sG}, s{sG}, {lg2(G)}"); k(f"s_lshr_b32 s{sT0}, s2, {3+lg2(NS)}"); k(f"s_add_u32 s{sG}, s{sG}, s{sT0}")
    k(f"s_bfe_u32 s{sROT}, s2, {3 | (lg2(NS) << 16):#x}")
    k(f"s_and_b32 s{sRB}, s2, 7"); k(f"s_lshr_b32 s{sRB}, s{sRB}, {lg2(NG)}"); k(f"s_lshl_b32 s{sRB}, s{sRB}, {lg2(NS)}"); k(f"s_add_u32 s{sRB}, s{sRB}, s{sROT}")
    k(f"s_lshl_b32 s{sROT}, s{sROT}, {lg2(G)}")
    k(f"s_and_b32 s{sR8}, s{sROT}, 7"); k(f"s_lshr_b32 s{sCC}, s{sROT}, 3")
    RR, CGL = tm, tm + 1
    k(f"v_bfe_u32 v{RR}, v{LN_}, 2, 3")
    k(f"v_lshrrev_b32 v{CGL}, 5, v{LN_}"); k(f"v_lshlrev_b32 v{CGL}, 2, v{CGL}"); k(f"v_and_or_b32 v{CGL}, v{LN_}, 3, v{CGL}")
    k(f"v_lshlrev_b32 v{VX}, 10, v{RR}"); k(f"v_lshl_add_u32 v{VX}, v{CGL}, 4, v{VX}"); k(f"v_add_u32 v{VX+1}, 8192, v{VX}")
    XS = [48, 49, 56, 57]
    k(f"s_lshl_b32 s48, s{sRB}, 16"); k(f"s_lshl_b32 s{sT2}, s{sW}, 8"); k(f"s_add_u32 s48, s48, s{sT2}")
    for c in range(1, 4): k(f"s_add_u32 s{XS[c]}, s48, {16384*c}")
    XP = 128
    xl = [f"buffer_load_dwordx4 {v(XP+8*o+4*cb,4)}, v{VX+(o&1)}, s[16:19], s{XS[o>>1]} offen offset:{128*cb}" for o in range(8) for cb in range(2)]
    k.srd(12, 10, 512 * 6144); k.srd(20, 8, 1024); k.srd(16, 4, 2048 * 1024)
    def gemv_loads(late=False):
        k(f"s_mov_b32 s{sT0}, s31")
        for i in range(4):
            k(f"buffer_load_dwordx4 {a(224+4*i,4) if late else v(GW+4*i,4)}, v102, s[12:15], s{sT0} offen")
            if i < 3: k(f"s_add_u32 s{sT0}, s{sT0}, {128*6144}")
    for i in range(4): k(f"buffer_load_ushort v{GC+i}, v103, s[20:23], 0 offen offset:{256*i}")
    k.srd(24, 70, WS_BYTES)
    k(f"s_lshl_b32 s{sE2}, s{sW}, 10"); k(f"s_add_u32 s{sE2}, s{sE2}, {WS_GO:#x}")
    k(f"v_lshrrev_b32 v{MX+5}, 5, v{LN_}"); k(f"v_lshlrev_b32 v{MX+4}, 7, v{RR}"); k(f"v_lshl_add_u32 v{MX+4}, v{MX+5}, 12, v{MX+4}")
    k(f"v_and_b32 v{MX+5}, 3, v{LN_}"); k(f"v_lshl_add_u32 v{MX+4}, v{MX+5}, 4, v{MX+4}")
    k(f"buffer_load_dwordx4 {v(MX,4)}, v{MX+4}, s[24:27], s{sE2} offen sc1")
    k(f"v_lshlrev_b32 v109, 2, v{LN_}"); k(f"s_lshl_b32 s{sE1}, s{sSL}, 7"); k(f"s_add_u32 s{sE1}, s{sE1}, {WS_GO:#x}")
    k(f"buffer_load_dword v110, v109, s[24:27], s{sE1} offen sc1")
    k(f"s_xor_b32 s{sE0}, s{sW}, 3"); k(f"s_or_b32 s{sE0}, s{sE0}, s{sFB}")
    k(f"s_cmp_lg_u32 s{sE0}, 0"); k("s_cbranch_scc1 NOZERO")
    k(f"v_lshlrev_b32 v111, 15, v{LN_}"); k("v_mov_b32 v107, 0"); k(f"s_lshl_b32 s{sT0}, s2, 7"); k(f"s_add_u32 s{sT0}, s{sT0}, {WS_FL:#x}")
    k("s_mov_b64 exec, 15")
    k(f"buffer_store_dword v107, v111, s[24:27], s{sT0} offen sc1")
    k("s_mov_b64 exec, -1")
    k.label("NOZERO")
    k.vm = {kk: max(p - 1, 0) for kk, p in k.vm.items()}
    k(f"s_cmp_eq_u32 s{sPR}, 0"); k("s_cbranch_scc1 PLOAD")
    s_a = (dict(k.vm), dict(k.lg))
    if P["TOUCH"]:
        k(f"s_cmp_lt_u32 s2, {P['TOUCH']}"); k("s_cbranch_scc1 NOTOUCH")
        k(f"s_lshl_b32 s92, s{sW}, 20"); k(f"s_and_b32 s93, s92, 0x100000")
        k.auto = False
        for base in (44, 40, 42, 46): k(f"s_load_dword s81, s[{base}:{base+1}], s92")
        for base in (84, 86, 88, 90): k(f"s_load_dword s81, s[{base}:{base+1}], s93")
        for i in range(8):
            k(f"s_load_dword s81, s[70:71], s92"); k("s_add_u32 s92, s92, 0x400000")
        k.auto = True
        k.label("NOTOUCH")
        k.sgpr = max(k.sgpr, 94)
    put(k, xl)
    s_b = dict(k.vm)
    k("s_branch PJOIN")
    k.label("PLOAD")
    k.vm = dict(s_a[0])
    gemv_loads()
    k.label("PJOIN")
    k.vm = k._merge(k.vm, s_b)
    k(f"s_lshl_b32 s{sW256}, s{sW}, 8"); k(f"s_lshl_b32 s{sW2K}, s{sW}, 11")
    k(f"v_lshrrev_b32 v{ROWL}, 4, v{LN_}")
    k(f"v_and_b32 v{r_}, 15, v{LN_}"); k(f"v_lshlrev_b32 v{GR16}, 2, v{ROWL}"); k(f"v_xor_b32 v{GR16}, v{GR16}, v{r_}")
    k(f"v_lshlrev_b32 v{GR16}, 4, v{GR16}")
    def w_voffs(psh, scol):
        return [f"v_lshl_add_u32 v{VDW}, v{ROWL}, {psh}, v{GR16}", f"v_add_u32 v{VDW}, s{scol}, v{VDW}"] + \
               [f"v_add_u32 v{VDW+n}, {n*((4<<psh)-1024)}, v{VDW}" for n in range(1, 4)]
    k(f"s_lshl_b32 s{sT0}, s{sG}, 10"); k(f"s_add_u32 s{sT0}, s{sT0}, s{sW256}")
    put(k, w_voffs(13, sT0))
    k(f"s_lshl_b32 s{sRING}, s{sW}, 14"); k(f"s_add_u32 s{sRING}, s{sRING}, {L_W}")
    for p in range(8):
        k(f"s_add_u32 s{TAB+p}, s{sR8}, {p}"); k(f"s_and_b32 s{TAB+p}, s{TAB+p}, 7"); k(f"s_lshl_b32 s{TAB+p}, s{TAB+p}, 17")
    k(f"s_lshl_b32 s{sKhi}, s{sCC}, 20")
    k.srd(8, 44, 512 * 8192)
    def w_dma(step, which):
        slot = step % 4
        if which == "Q":
            srd = 8
            pre = [f"s_add_u32 s{sT0}, s{sKhi}, s{TAB+step%8}"]
            adv = [[f"s_add_u32 s{sKhi}, s{sKhi}, 0x100000", f"s_and_b32 s{sKhi}, s{sKhi}, 0x3fffff"]] if step % 8 == 7 else []
        else:
            srd = 20
            pre = [f"s_add_u32 s{sT0}, s{TAB+step%8}, {(2*(step//8))<<14}"]
            adv = []
        o = [pre + [f"s_add_u32 m0, s{sRING}, {4096*slot}"]] + adv + [f"buffer_load_dwordx4 v{VDW}, s[{srd}:{srd+3}], s{sT0} offen lds"]
        for n in range(1, 4):
            o.append(L(lambda n=n: k(f"buffer_load_dwordx4 v{VDW+n}, s[{srd}:{srd+3}], s{sT0} offen offset:{1024*n} lds", token=f"W{slot}"), 10, "v"))
        return o
    k(f"v_lshrrev_b32 v{r_}, 1, v{CGL}"); k(f"v_subrev_u32 v{r_}, s{sR8}, v{r_}")
    k(f"v_and_b32 v{c2}, 1, v{CGL}"); k(f"v_and_b32 v{gn}, 1, v{r_}"); k(f"v_lshl_add_u32 v{gn}, v{gn}, 1, v{c2}"); k(f"v_lshlrev_b32 v{gn}, 1, v{gn}")
    k(f"v_xor_b32 v{gn}, v{gn}, v{RR}")
    k(f"v_lshlrev_b32 v{c2}, 9, v{c2}"); k(f"v_lshl_add_u32 v{c2}, v{gn}, 4, v{c2}")
    k(f"s_sub_u32 s{sT1}, s{sW}, s{sCC}"); k(f"s_and_b32 s{sT1}, s{sT1}, 3"); k(f"s_lshl_b32 s{sT1}, s{sT1}, 13")
    k(f"s_add_u32 s{sT1}, s{sT1}, {L_H}"); k(f"v_add_u32 v{c2}, s{sT1}, v{c2}")
    for cb in range(2):
        k(f"v_add_u32 v{gn}, {4*cb}, v{r_}"); k(f"v_and_b32 v{gn}, 7, v{gn}"); k(f"v_lshl_add_u32 v{HW+cb}, v{gn}, 10, v{c2}")
    k(f"s_lshl_b32 s{sT2}, s{sW}, 10"); k(f"v_lshlrev_b32 v{VM}, 5, v{CGL}"); k(f"v_add_u32 v{VM}, s{sT2}, v{VM}")
    k(f"v_lshrrev_b32 v{UT+4}, 2, v{LN_}"); k(f"v_lshlrev_b32 v{UT+4}, 6, v{UT+4}"); k(f"v_add_u32 v{UT+4}, s{sT2}, v{UT+4}")
    k(f"v_lshlrev_b32 v{UT+5}, 6, v{RR}"); k(f"v_lshl_add_u32 v{UT+7}, s{sW}, 9, v{UT+5}"); k(f"v_lshl_add_u32 v{UT+5}, v{CGL}, 3, v{UT+5}")
    k(f"v_lshl_add_u32 v{UT+6}, v{CGL}, 3, v{UT+7}")
    lane_tr_parts(k, LN_, r_, c2, gn, h_, tm)
    k(f"v_lshl_add_u32 v{CH8}, v{gn}, 2, v{c2}"); k(f"v_lshlrev_b32 v{CH8}, 3, v{CH8}")
    k(f"v_lshl_add_u32 v{tm}, v{h_}, 3, v{r_}"); k(f"v_lshl_add_u32 v{tm}, v{tm}, 8, v{CH8}"); k(f"v_add_u32 v{tm}, s{sRING}, v{tm}")
    for a_ in range(4):
        k(f"v_xor_b32 v{tm+1}, {a_}, v{r_}"); k(f"v_lshl_add_u32 v{VW+a_}, v{tm+1}, 6, v{tm}")
    put(k, [f"v_lshl_add_u32 v{tm}, v{h_}, 2, v{r_}", f"v_lshl_add_u32 v{tm}, v{tm}, 8, v{CH8}", f"v_add_u32 v{tm}, {L_V}, v{tm}"])
    for dt in range(4): put(k, [f"v_xor_b32 v{tm+1}, {dt}, v{r_}", f"v_lshl_add_u32 v{VV+dt}, v{tm+1}, 6, v{tm}"])
    put(k, [f"v_and_b32 v{tm}, 31, v{LN_}", f"v_and_b32 v{tm+1}, 15, v{LN_}", f"v_xor_b32 v{tm+1}, v{tm+1}, v{h_}",
            f"v_lshlrev_b32 v{tm}, 8, v{tm}", f"v_lshl_add_u32 v{VK}, v{tm+1}, 4, v{tm}"])
    put(k, [f"v_xor_b32 v{VK+s_}, {s_*32}, v{VK}" for s_ in range(1, 8)])
    put(k, [f"v_mov_b32 v{LS}, 0", f"v_mov_b32 v{LS+1}, 0",
        f"v_lshl_add_u32 v{VDV}, v{ROWL}, 8, v{GR16}", f"s_and_b32 s{sT1}, s{sW}, 1", f"s_lshl_b32 s{sT1}, s{sT1}, 3",
        f"v_or_b32 v{tm}, s{sT1}, v{ROWL}", f"v_and_b32 v{tm+1}, 15, v{LN_}", f"v_xor_b32 v{tm}, v{tm}, v{tm+1}",
        f"v_lshlrev_b32 v{VDK}, 8, v{ROWL}", f"v_lshl_add_u32 v{VDK}, v{tm}, 4, v{VDK}", f"v_xor_b32 v{VDK+1}, 64, v{VDK}",
        f"s_lshl_b32 s{sT1}, s{sG}, 19", f"s_add_u32 s{sT1}, s{sT1}, s{sW2K}", f"s_add_u32 s{sT1}, s{sT1}, {1536*256}",
        f"v_add_u32 v{VDK}, s{sT1}, v{VDK}", f"v_add_u32 v{VDK+1}, s{sT1}, v{VDK+1}", f"v_add_u32 v{VDV}, s{sT1}, v{VDV}",
        f"v_lshlrev_b32 v{tm}, 5, v{h_}", f"v_xor_b32 v{VLIN}, v{tm}, v{VL16}", f"v_add_u32 v{VLIN}, {L_H}, v{VLIN}", f"v_xor_b32 v{VLO}, 64, v{VLIN}",
        f"s_mov_b32 s{sMASK}, 0xffff0000"])
    def nxt(d, s_): return [f"s_add_u32 s{d}, s{s_}, 8192", f"s_and_b32 s{d}, s{d}, 0x1ffff"]
    def kv_dma(which, lds_off, so):
        srd = 12 if which == "K" else 16
        return [f"s_add_u32 m0, s{sW2K}, {lds_off}", f"buffer_load_dwordx4 v{VDK if which=='K' else VDV}, s[{srd}:{srd+3}], s{so} offen lds",
                L(lambda: k(f"buffer_load_dwordx4 v{VDK+1 if which=='K' else VDV}, s[{srd}:{srd+3}], s{so} offen offset:1024 lds", token=which), 10, "v")]
    kinit = [[f"s_lshr_b32 s{sO0}, s{sROT}, 1", f"s_lshl_b32 s{sO0}, s{sO0}, 13"] + nxt(sO1, sO0) + nxt(sO2, sO1)]
    kfirst = [kv_dma("K", L_K + 16384 + 8192, sO0), kv_dma("K", L_K, sO1), kv_dma("K", L_K + 8192, sO2)]
    k.srd(20, 68, 256)
    def gemv_compute(lo, hi, tag, late):
        k(f"s_sub_u32 s{sT0}, s{sSL}, {lo}"); k(f"s_cmp_ge_u32 s{sT0}, {hi-lo}"); k(f"s_cselect_b32 s{sT0}, 1, s{sFB}"); k(f"s_cmp_lg_u32 s{sT0}, 0"); k("s_cbranch_scc1 NOGEMV" + tag)
        st0 = (dict(k.vm), dict(k.lg))
        GW, GC, GA, SC_, U_, AW_, AR_ = (160, 176, 180, 144, 188, 152, 153) if late else (64, 80, 88, 112, 120, 104, 105)
        if late:
            for i in range(20): k(f"v_accvgpr_read_b32 v{GW+i}, a{224+i}")
            k(f"v_accvgpr_read_b32 v{AW_}, a244")
        D = P.get("DG") == 1 and not late
        if D: stamp(k, "g_in"); k.wait_regs(v(GW, 20)); stamp(k, "g_data")
        k(f"s_mov_b32 s{sT1}, {f32(-LOG2E)}")
        for i in range(4): k(f"v_lshlrev_b32 v{GC+i}, 16, v{GC+i}")
        for i in range(4): k(f"v_mul_f32 v{GA+i}, s{sT1}, v{GC+i}")
        for i in range(4): k(f"v_exp_f32 v{GA+i}, v{GA+i}")
        for i in range(4): k(f"v_add_f32 v{GA+i}, 1.0, v{GA+i}")
        for i in range(4): k(f"v_rcp_f32 v{GA+i}, v{GA+i}")
        for i in range(4): k(f"v_mul_f32 v{GC+i}, v{GC+i}, v{GA+i}")
        for i in range(4): rnd(k, SC_ + 2 * i, GC + i)
        for i in range(4):
            for q in range(4):
                r = GW + 4 * i + q; u = U_ + 2 * (q & 1)
                k(f"v_lshlrev_b32 v{u}, 16, v{r}"); k(f"v_and_b32 v{u+1}, s{sMASK}, v{r}")
                if i == 0: k(f"v_pk_mul_f32 {v(GA+2*q,2)}, {v(u,2)}, {v(SC_+2*i,2)} op_sel_hi:[1,0]")
                else: k(f"v_pk_fma_f32 {v(GA+2*q,2)}, {v(u,2)}, {v(SC_+2*i,2)}, {v(GA+2*q,2)} op_sel_hi:[1,0,1]")
        for md in ("quad_perm:[2,3,0,1]", "row_ror:4", "row_ror:8"):
            for j in range(8): k(f"v_add_f32_dpp v{GA+j}, v{GA+j}, v{GA+j} {md} row_mask:0xf bank_mask:0xf")
        k(f"ds_write_b128 v{AW_}, {v(GA,4)} offset:{L_R}", token="w"); k(f"ds_write_b128 v{AW_}, {v(GA+4,4)} offset:{L_R+16}", token="w")
        k(f"v_lshlrev_b32 v{AR_}, 2, v{LN_}")
        k(f"s_lshr_b32 s{sT0}, s{sSL}, 5"); k(f"s_cmp_eq_u32 s{sT0}, 1"); k(f"s_cselect_b32 s{sT1}, 1.0, 0")
        k(f"s_cmp_eq_u32 s{sT0}, 4"); k(f"s_cselect_b32 s{sT1}, 1.0, s{sT1}")
        k(f"s_cmp_lt_u32 s{sT0}, 2"); k(f"s_cselect_b32 s{sT2}, {f32(QS)}, 1.0")
        if P["GS"] and late:
            k(f"s_cmp_ge_u32 s{sT0}, 3"); k(f"s_cselect_b32 s{sT2}, {f32(GSC)}, s{sT2}")
            k(f"s_cmp_eq_u32 s{sT0}, 5"); k(f"s_cselect_b32 s{sT2}, {f32(1/GSC**2)}, s{sT2}")
        k(f"s_lshl_b32 s{sT0}, s{sSL}, 6")
        k.wait("w"); k("s_barrier")
        k(f"s_cmp_lg_u32 s{sW}, 3"); k("s_cbranch_scc1 " + ("NOGEMV" + tag if late else "PWAIT"))
        for i in range(4): k(f"ds_read_b32 v{GA+i}, v{AR_} offset:{L_R+256*i}")
        k(f"v_add_f32 v{GA}, v{GA}, v{GA+1}"); k(f"v_add_f32 v{GA+2}, v{GA+2}, v{GA+3}"); k(f"v_add_f32 v{GA}, v{GA}, v{GA+2}")
        k(f"v_mov_b32 v{GA+1}, v{GA}"); k(f"v_permlane16_swap_b32 v{GA}, v{GA+1}"); k(f"v_add_f32 v{GA}, v{GA}, v{GA+1}")
        k(f"v_mov_b32 v{GA+1}, v{GA}"); k(f"v_permlane32_swap_b32 v{GA}, v{GA+1}"); k(f"v_add_f32 v{GA}, v{GA}, v{GA+1}")
        rnd(k, GA, GA)
        k(f"v_add_f32 v{GA}, s{sT1}, v{GA}"); k(f"v_mul_f32 v{GA}, s{sT2}, v{GA}")
        if D: stamp(k, "g_red")
        k("s_mov_b64 exec, 0xffff")
        if not late:
            k("v_not_b32 v110, v110"); k(f"v_bfi_b32 v{GA}, 1, v110, v{GA}")
            k(f"buffer_store_dword v{GA}, v109, s[24:27], s{sE1} offen sc1")
            k("s_mov_b64 exec, -1")
            k.label("PWAIT")
            k("s_barrier")
            k.vm = {}
            put(k, xl)
            st0 = (k._merge(st0[0], k.vm), None)
        else:
            k(f"buffer_store_dword v{GA}, v{AR_}, s[24:27], s{sT0} offen sc1")
            k("s_mov_b64 exec, -1")
        k.label("NOGEMV" + tag)
        k.vm, k.lg = dict(st0[0]), {}
        k.smem_pending = late
    gemv_compute(0, 64, "A", False)
    stamp(k, "gemv")
    if P["WARM"] == 1: warm(k, sW)
    k("s_mov_b32 s3, 0x3f803f80")
    k(f"s_load_dwordx4 s[64:67], s[0:1], {A_WG}"); k(f"s_load_dwordx2 s[4:5], s[0:1], {A_WD}")
    ASET = {"Q": [AF, AF + 16], "O": [AF, AF + 16]}
    def aset(which, step): return ASET[which][step % len(ASET[which])]
    def a_reads(step, which="O"):
        slot = step % 4; b_ = aset(which, step)
        rd = [f"ds_read_b64_tr_b16 {a(b_+4*a_+2*u,2)}, v{VW+a_} offset:{4096*slot+1024*u}" for a_ in range(4) for u in range(2)]
        return [[L(lambda: k.wait(f"W{slot}")), rd[0]]] + rd[1:]
    N0 = P["N0"]
    if P.get("DG") == 2: stamp(k, "iss"); k.wait_regs(v(0, 16), v(128, 48)); stamp(k, "xarr")
    for i in range(4): k(f"v_accvgpr_write_b32 a{240+i}, v{GC+i}")
    k("v_accvgpr_write_b32 a244, v104")
    for o in range(8):
        if o == 4:
            k.wait_regs(v(XP, 64))
            put(k, [w_dma(s_, "Q") for s_ in range(P["WPRE"])])
            k(f"s_sub_u32 s{sT0}, s{sSL}, 64"); k(f"s_cmp_ge_u32 s{sT0}, 128"); k("s_cbranch_scc1 NOLATE")
            s_c = dict(k.vm)
            gemv_loads(True)
            k.label("NOLATE")
            k.vm = k._merge(k.vm, s_c)
            k.srd(12, 40, 8 * 2048 * 256)
        for j in range(8):
            x = XP + 8 * o + j
            k(f"v_dot2_f32_bf16 v{2*o}, v{x}, s3, {'0' if j == 0 else 'v%d' % (2*o)}")
            k(f"v_dot2_f32_bf16 v{2*o+1}, v{x}, v{x}, {'0' if j == 0 else 'v%d' % (2*o+1)}")
    k("s_nop 2")
    for md in ("quad_perm:[1,0,3,2]", "quad_perm:[2,3,0,1]"):
        for x in range(16): k(f"v_add_f32_dpp v{x}, v{x}, v{x} {md} row_mask:0xf bank_mask:0xf")
    for q in range(4): k(f"ds_write_b128 v{UT+4}, {v(4*q,4)} offset:{L_K+16*q}", token="w")
    k.wait("w"); k("s_barrier")
    for p_ in range(8): k(f"ds_read_b64 {v(16+2*p_,2)}, v{UT+5} offset:{L_K+512*p_}")
    for st in (1, 2, 4):
        for p_ in range(0, 8, 2 * st): k(f"v_pk_add_f32 {v(16+2*p_,2)}, {v(16+2*p_,2)}, {v(16+2*(p_+st),2)}")
    k(f"v_mul_f32 v16, {f32(-1/512)}, v16"); k(f"v_mul_f32 v17, {f32(1/512)}, v17")
    k("v_fma_f32 v17, -v16, v16, v17"); k("v_max_f32 v17, 0, v17"); k(f"v_add_f32 v17, {f32(1e-5)}, v17"); k("v_rsq_f32 v17, v17")
    k("v_mul_f32 v16, v16, v17")
    k(f"ds_write_b64 v{UT+6}, v[16:17] offset:{L_K+4096}")
    for q in range(4): k(f"ds_read_b128 {v(112+4*q,4)}, v{UT+7} offset:{L_K+4096+16*q}")
    k(f"ds_read_b64 {v(STT,2)}, v{UT+7} offset:{L_K+4096+56}")
    for o in range(8):
        st = v(112 + 2 * o, 2) if o < 7 else v(STT, 2)
        for cb in range(2):
            x = XP + 8 * o + 4 * cb; u = 16 * o + 8 * cb
            for q in range(4): k(f"v_lshlrev_b32 v{u+2*q}, 16, v{x+q}"); k(f"v_and_b32 v{u+2*q+1}, s{sMASK}, v{x+q}")
        for q in range(8): k(f"v_pk_fma_f32 {v(16*o+2*q,2)}, {v(16*o+2*q,2)}, {st}, {st} op_sel:[0,1,0] op_sel_hi:[1,1,0]")
    gemv_compute(64, 192, "B", True)
    put(k, kinit)
    stamp(k, "stats")
    if P["WARM"] == 2: warm(k, sW)
    k.wait_all(vm=False)
    k(f"s_lshl_b32 s{sT1}, s{sFB}, 2"); k(f"s_sub_u32 s{sT1}, s{sT1}, s{sFB}")
    k(f"v_mov_b32 v{UT}, 0")
    k(f"s_mov_b32 s{sT2}, 0")
    k.label("POLL")
    k(f"s_add_u32 s{sT1}, s{sT1}, 1")
    k(f"s_and_b32 s{sT0}, s{sT1}, 3"); k("s_cbranch_scc1 POLLR")
    k(f"buffer_load_dword v{UT+1}, v{UT}, s[20:23], 0 offen sc1")
    k(f"v_readfirstlane_b32 s{sT0}, v{UT+1}")
    k(f"s_cmp_ge_u32 s{sT0}, 0x100"); k(f"s_cselect_b32 s{sT2}, 1, 0")
    k(f"s_cmp_gt_u32 s{sT1}, 0x8000"); k(f"s_cselect_b32 s{sT2}, 1, s{sT2}")
    k.label("POLLR")
    k(f"buffer_load_dwordx4 {v(160,4)}, v{MX+4}, s[24:27], s{sE2} offen sc1")
    k(f"v_xor_b32 v{UT+2}, v160, v{MX}")
    for j in range(1, 4): k(f"v_bitop3_b32 v{UT+2}, v{160+j}, v{MX+j}, v{UT+2} bitop3:0x28")
    k(f"v_and_b32 v{UT+2}, 1, v{UT+2}"); k(f"v_cmp_eq_u32 vcc, 0, v{UT+2}"); k("s_cmp_lg_u64 vcc, 0")
    k(f"s_cselect_b32 s{sT2}, s{sT2}, 1")
    k(f"s_cmp_lg_u32 s{sE0}, 0"); k("s_cbranch_scc1 NOARR")
    k("s_mov_b64 exec, 1"); k(f"v_mov_b32 v{UT+3}, 1")
    k(f"buffer_atomic_add v{UT+3}, v{UT}, s[20:23], 0 offen")
    k("s_mov_b64 exec, -1")
    k(f"s_mov_b32 s{sE0}, 1")
    k.label("NOARR")
    k(f"s_cmp_lg_u32 s{sT2}, 0"); k("s_cbranch_scc1 POLLED")
    if P["PFK"]:
        k(f"s_cmp_lg_u32 s{sT1}, 1"); k("s_cbranch_scc1 NOPFK")
        k("s_cmp_lt_u32 s2, 192"); k("s_cbranch_scc1 NOPFK")
        k.srd(64, 42, 8 * 2048 * 256)
        k(f"s_bfe_u32 s{sT0}, s2, 0x30003"); k(f"s_lshl_b32 s{sT0}, s{sT0}, 2"); k(f"s_add_u32 s{sT0}, s{sT0}, s{sW}"); k(f"s_lshl_b32 s{sT0}, s{sT0}, 12")
        k(f"s_and_b32 s3, s2, {NG-1}"); k(f"s_lshl_b32 s3, s3, {19+lg2(G)}"); k(f"s_add_u32 s{sT0}, s{sT0}, s3"); k(f"s_add_u32 s{sT0}, s{sT0}, {1536*256}")
        n = 0
        for gi in range(G):
            for srd in (12, 64)[:P["PFK"]]:
                for j in range(4): k(f"buffer_load_dwordx4 {a(4*n,4)}, v{VL16}, s[{srd}:{srd+3}], s{sT0} offen offset:{1024*j}"); n += 1
            k(f"s_add_u32 s{sT0}, s{sT0}, 0x80000")
        k.label("NOPFK")
    if P["SLEEP"]: k(f"s_sleep {P['SLEEP']}")
    k("s_branch POLL")
    k.label("POLLED")
    if P.get("DG"): stamp(k, "go")
    for j in range(4): k(f"v_and_b32 v{160+j}, -2, v{160+j}")
    k(f"s_lshl_b32 s{sT0}, s{sW}, 10"); k(f"v_add_u32 v{UT+1}, s{sT0}, v{VL16}")
    k(f"ds_write_b128 v{UT+1}, {v(160,4)} offset:{L_M}")
    for cb in range(2):
        for m_ in range(2):
            for q in range(2): k(f"ds_read_b128 {v(128+16*cb+8*m_+4*q,4)}, v{VM} offset:{L_M+512*(1-m_)+256*cb+16*q}")
    stamp(k, "poll")
    k.srd(20, 46, 4096 * 1024)
    put(k, a_reads(0, "Q"))
    for o in range(8):
        for cb in range(2):
            u = 16 * o + 8 * cb; cn = 128 + 16 * cb
            for q in range(4): k(f"v_pk_fma_f32 {v(u+2*q,2)}, {v(u+2*q,2)}, {v(cn+2*q,2)}, {v(cn+8+2*q,2)}")
            for q in range(4): k(f"v_cvt_pk_bf16_f32 v{u+q}, v{u+2*q}, v{u+2*q+1}")
        for cb in range(2): k(f"ds_write_b128 v{HW+cb}, {v(16*o+8*cb,4)} offset:{32768*(o>>2)+128*(o&3)}", token="hw")
    put(k, [w_dma(s_, "Q") for s_ in range(P["WPRE"], 4)])
    fr = lambda f: FR + 4 * (f % 8)
    def rdK(f, s_, off): return [f"ds_read_b128 {a(fr(f),4)}, v{VK+s_} offset:{off}"]
    def rdV(f, i, off): return [f"ds_read_b64_tr_b16 {a(fr(f)+2*u,2)}, v{VV+i%4} offset:{off+4096*(i//4)+2048*u}" for u in range(2)]
    def b_reads(step):
        return [f"ds_read_b128 {a(BF+8*(step%2)+4*rt,4)}, v{VLO if step & 1 else VLIN} offset:{1024*step+32768*rt}" for rt in range(2)]
    k.wait("hw"); k("s_barrier")
    stamp(k, "mod")
    for _ in range(P.get("DLY0", 0)): k("s_sleep 38")
    put(k, b_reads(0))
    def g_mfma(which, st):
        return [f"v_mfma_f32_32x32x16_bf16 {v(ACC+32*a_+16*rt,16)}, {a(aset(which,st)+4*a_,4)}, {a(BF+8*(st%2)+4*rt,4)}, {'0' if st == 0 else v(ACC+32*a_+16*rt,16)}"
                for a_ in range(4) for rt in range(2)]
    class Off:
        def __init__(s_, sc, o): s_.sc, s_.o = sc, o
        def pin(s_, g, x, end=False): s_.sc.pin(g + s_.o, x, end)
        def add(s_, ops, g0, g1, prio=0): s_.sc.add(ops, g0 + s_.o, g1 + s_.o, prio)
    def gemm(which, extra, nr, nd):
        sc = Sched(256)
        mf = []
        for st in range(32):
            if st + 1 < 32:
                sc.add(b_reads(st + 1), 8 * st + (1 if st % 8 == 7 else 0), 8 * st + 4, prio=1)
                sc.pin(8 * st + 7, L(lambda st=st: k.wait_regs(a(aset(which, st + 1), 16), a(BF + 8 * ((st + 1) % 2), 8))), end=True)
            mf += g_mfma(which, st)
        R = len(ASET[which])
        g0 = 0
        td = {}
        first = [j for j in range(nd, min(nr + 4, 32))]
        pd = 8
        for i, j in enumerate(first):
            sc.add(w_dma(j, which), pd * i, pd * (i + 1)); td[j] = pd * (i + 1)
        tstart = max(pd * len(first) - (pd if first else 0), 8 * (nr - R + 1), 0)
        if first and nr in td: tstart = max(tstart, td[nr] + 12)
        nun = 32 - nr
        tr = {j: int(tstart + (j - nr) * (240 - tstart) / (nun - 1)) for j in range(nr, 32)}
        for j in range(nr, 32):
            assert tr[j] >= 8 * (j - R + 1) and tr[j] <= 8 * (j - 1), (j, tr[j])
            sc.add(a_reads(j, which), tr[j], tr[j] + 5, prio=1)
            if j + 4 < 32 and j + 4 >= nd and j + 4 not in td:
                lo = max(tr[j + 1], max(td.values()) if td else 0); hi = max(tr[j + 2], lo + 6)
                sc.add([L(lambda j=j: k.wait_regs(a(aset(which, j), 16)))] + w_dma(j + 4, which), lo, hi); td[j + 4] = hi
        sc.last_dma = max(td.values())
        for c in range(4): extra(c)(Off(sc, 64 * c), sc.last_dma - 192)
        i0 = len(k.items)
        for g_, (m, f_) in enumerate(zip(mf, sc.run())):
            k(m); put(k, f_)
            if g_ % 64 == 63 and g_ < 255: stamp(k, f"q{g_//64}" + ("o" if which == "O" else ""))
            if g_ == 191: i1 = len(k.items)
        X = P.get("DBG" + which, 0)
        if X:
            def keep(it):
                if it.kind in ("label", "raw"): return True
                if X & 1 and it.mn == "s_barrier": return False
                if X & 4 and it.kind in ("valu", "trans"): return False
                if X & 8 and it.kind == "vmem": return False
                if X & 16 and it.mn.startswith("ds_write"): return False
                if X & 32 and it.mn.startswith("ds_read_b128") and it.ops[0].startswith("v"): return False
                return True
            k.items[i0:i1] = [it for it in k.items[i0:i1] if keep(it)]
    def qepi(a_):
        return [f"v_cvt_pk_bf16_f32 v{Q+16*a_+8*(j//4)+4*rt+j%4}, v{ACC+32*a_+16*rt+2*j}, v{ACC+32*a_+16*rt+2*j+1}" for rt in range(2) for j in range(8)]
    def qx(c):
        def f(sc, ld):
            if c == 3:
                sc.pin(0, L(lambda: k.srd(16, 42, 8 * 2048 * 256), 16))
                assert ld <= 40, ld
                vp = [f"buffer_load_dwordx4 {a(192+8*i+4*j,4)}, v{VDV}, s[16:19], s{(sO0, sO1)[i]} offen offset:{1024*j}" for i in range(2) for j in range(2)] if P["VP"] else []
                if P["KPOS"]:
                    kp = [f"buffer_load_dwordx4 {a(208+8*i+4*j,4)}, v{VDK+j}, s[12:15], s{(sO0, sO1, sO2)[i]} offen offset:{1024*j}" for i in range(3) for j in range(2)]
                    sc.add(kp + vp, P["KPOS"], P["KPOS"] + 8); vp = []
                if not P["KEARLY"]: sc.add([x for d in kfirst for x in d] + vp, ld, ld + 12)
                ov = [[f"s_lshl_b32 s{sT0}, s{sG}, 19", f"s_add_u32 s{sT0}, s{sT0}, s{sW256}"],
                      f"v_and_b32 v{VDW+1}, 15, v{LN_}", f"v_lshlrev_b32 v{VDW+2}, 1, v{ROWL}", f"v_xor_b32 v{VDW+1}, v{VDW+1}, v{VDW+2}",
                      f"v_lshlrev_b32 v{VDW}, 10, v{ROWL}", f"v_lshl_add_u32 v{VDW}, v{VDW+1}, 4, v{VDW}", f"v_xor_b32 v{VDW+2}, 128, v{VDW}",
                      f"v_add_u32 v{VDW}, s{sT0}, v{VDW}", f"v_add_u32 v{VDW+2}, s{sT0}, v{VDW+2}",
                      f"v_add_u32 v{VDW+1}, 3072, v{VDW}", f"v_add_u32 v{VDW+3}, {3*3072}, v{VDW+2}", f"v_add_u32 v{VDW+2}, {2*3072}, v{VDW+2}",
                      [f"s_and_b32 s{sR8}, s{sROT}, 30", f"s_lshl_b32 s{sKhi}, s{sR8}, 14"]]
                sc.add(ov, ld + 1, 58)
                NA1 = P["F1R"] // 2; W1_ = 3584 // NA1; assert NA1 == 4
                nA2 = 32 // P["F2R"]; NA2 = 8 // nA2; rows2 = 8 // nA2
                ps = [L(lambda: k.srd(40, 64, 512 * 3584), 16), L(lambda: k.srd(44, 66, 512 * 3584), 16),
                      [f"s_lshr_b32 s66, s2, 3", f"s_lshl_b32 s66, s66, 2", f"s_add_u32 s66, s66, s{sW}"],
                      [f"s_mul_i32 s64, s66, {4*3584}", f"s_and_b32 s3, s2, 3", f"s_lshl_b32 s67, s3, 9"], ["s_add_u32 s64, s64, s67", f"s_mul_i32 s65, s66, {14*1024}"],
                      ["s_lshl_b32 s3, s3, 7", "s_sub_u32 s3, 1536, s3"],
                      [f"s_and_b32 s67, s2, {NA2-1}", f"s_mul_i32 s67, s67, {128*nA2}", "s_add_u32 s65, s65, s67"],
                      [f"s_lshl_b32 s66, s{sROT}, 14", f"s_lshl_b32 s67, s{sG}, 19", "s_add_u32 s66, s66, s67"], [f"s_lshl_b32 s67, s{sW}, {12+lg2(G)}", "s_add_u32 s66, s66, s67"],
                      f"v_min_u32 v{VX}, 55, v{LN_}", f"v_lshlrev_b32 v{VX}, 4, v{VX}", f"v_mad_u32_u24 v{VX}, v{h_}, s3, v{VX}",
                      f"v_lshrrev_b32 v{VX+1}, {lg2(8*nA2)}, v{LN_}", f"v_lshlrev_b32 v{VX+1}, 10, v{VX+1}", f"v_and_b32 v{tm}, {8*nA2-1}, v{LN_}", f"v_lshl_add_u32 v{VX+1}, v{tm}, 4, v{VX+1}"]
                sc.add(ps, 2, 32)
                sc.pin(ld + 1, L(lambda: k.srd(8, 4, 1792 * 1024), 16))
                sc.pin(56, L(lambda: (k.wait("K"), k.wait_all(vm=False), k("s_barrier")), 8))
                sc.add([rdK(f, f, L_K + 16384 + 8192) for f in range(4)], 56, 60, prio=1)
                sc.add(kv_dma("V", L_V, sO0) + kv_dma("V", L_V + 8192, sO1), 57, 62)
                sc.add(qepi(0), 61, 64)
                sc.pin(58, [f"v_add_u32 v{VLIN}, {L_H}, v{VL16}", f"v_add_u32 v{VLO}, {L_H}, v{VL16}"])
        return f
    gemm("Q", qx, 1, 4)
    stamp(k, "qgemm")
    def qk(f, s_, qt, buf, zero):
        d = v(S + 32 * buf + 16 * qt, 16)
        c = d if s_ else ("0" if zero else v(CI + 16 * qt, 16))
        return f"v_mfma_f32_32x32x16_bf16 {d}, {a(fr(f),4)}, {v(Q+8*s_+4*qt,4)}, {c}"
    def pv(f, i, qt, buf, zero=False):
        d = a(O + 32 * (i % 4) + 16 * qt, 16)
        return f"v_mfma_f32_32x32x16_bf16 {d}, {a(fr(f),4)}, {v(S+32*buf+16*qt+8*(i//4),4)}, {'0' if zero else d}"
    def sreg(buf, e): return S + 32 * buf + 16 * ((e >> 3) & 1) + 8 * (e >> 4) + (e & 7)
    def sm(buf, e, addci=False):
        o = []
        if e < 32:
            if addci: o.append(f"v_add_f32 v{sreg(buf,e)}, v{sreg(buf,e)}, v{CI+16*((e>>3)&1)}")
            o.append(f"v_exp_f32 v{sreg(buf,e)}, v{sreg(buf,e)}")
        if e >= 1:
            p = e - 1
            o.append(f"v_add_f32 v{LS+((p>>3)&1)}, v{LS+((p>>3)&1)}, v{sreg(buf,p)}")
            if p & 1:
                o.append(f"v_cvt_pk_bf16_f32 v{sreg(buf,p&~7)+(p&7)//2}, v{sreg(buf,p-1)}, v{sreg(buf,p)}")
        return o
    def wgrp(j): return L(lambda: k.wait_regs(a(FR + 16 * (j % 2), 16)))
    def qk0(epi):
        wgrp(0)()
        for s_ in range(8):
            ep = qepi(s_ // 2 + 1)[8 * (s_ & 1):8 * (s_ & 1) + 8] if epi and s_ < 6 else []
            rd = [rdK(f + 4, f + 4, L_K + 16384 + 8192) if f < 4 else rdK(f + 4, f - 4, L_K) for f in ([2*s_, 2*s_+1] if s_ < 2 else [2*s_-4, 2*s_-3] if 4 <= s_ < 6 else [])]
            k(qk(s_, s_, 0, 0, True)); put(k, rd[:1]); put(k, ep[:4])
            k(qk(s_, s_, 1, 0, True)); put(k, rd[1:]); put(k, ep[4:])
            if s_ % 4 == 3: wgrp(s_ // 4 + 1)()
    qk0(True)
    k(f"s_cmp_lg_u32 s{sFB}, 0"); k("s_cbranch_scc1 FB_MAX")
    k.label("IT0")
    def maxops(buf, dst):
        o = []
        for qt in range(2):
            b = S + 32 * buf + 16 * qt; t = dst + qt
            o.append(f"v_max3_f32 v{t}, v{b}, v{b+1}, v{b+2}")
            for i in range(3, 15, 2): o.append(f"v_max3_f32 v{t}, v{t}, v{b+i}, v{b+i+1}")
            o.append(f"v_max_f32 v{t}, v{t}, v{b+15}")
        return [x for pr in zip(o[:8], o[8:]) for x in pr]
    def xhalf_max(t, t2):
        return [f"v_mov_b32 v{t2}, v{t}", f"v_mov_b32 v{t2+1}, v{t+1}", f"v_permlane32_swap_b32 v{t}, v{t2}", f"v_permlane32_swap_b32 v{t+1}, v{t2+1}",
                f"v_max_f32 v{t}, v{t}, v{t2}", f"v_max_f32 v{t+1}, v{t+1}, v{t2+1}"]
    def flat(x): return [y for z in x for y in z]
    def iteration(par, first=False, last=False, extra=None):
        hb = 16384 * par; nb = 16384 * (1 - par)
        mf = []
        phs = [0, 1, 3] if last else [0, 1, 2, 3]
        n = 16 * len(phs)
        sc = Sched(n)
        frs = []
        for q_, ph in enumerate(phs):
            for g in range(16):
                f = 8 * q_ + g // 2; qt = g & 1; i = g // 2
                if ph == 0: mf.append(qk(f, i, qt, 1, first))
                elif ph == 1: mf.append(pv(f, i, qt, 0, first and i < 4))
                elif ph == 2: mf.append(qk(f, i, qt, 0, False))
                else: mf.append(pv(f, i, qt, 1))
            for i in range(8): frs.append((ph, i))
        ng = len(frs) // 4
        for j in range(1, ng):
            rd = []
            for f in range(4 * j, 4 * j + 4):
                ph, i = frs[f]
                rd += rdK(f, i, hb + 8192 * (ph // 2)) if ph % 2 == 0 else rdV(f, i, hb + 8192 * (ph // 2))
            g0 = 8 * (j - 1)
            if first and j == 2: sc.pin(g0 + 1, L(lambda: (k.wait("V"), k("s_barrier")), 8)); g0 += 1
            sc.add(rd, g0, 8 * (j - 1) + 6, prio=1)
            sc.pin(8 * j - 1, wgrp(j), end=True)
        dm = [nxt(sO1, sO2), kv_dma("V", L_V + nb, sO2), kv_dma("K", L_K + nb, sO1), kv_dma("V", L_V + nb + 8192, sO1), nxt(sO2, sO1), kv_dma("K", L_K + nb + 8192, sO2)]
        dm = [dm[0]] + dm[1] + dm[2] + dm[3] + [dm[4]] + dm[5]
        if first:
            sc.add(dm, 24, 44)
            mx = maxops(0, MX) + xhalf_max(MX, MX + 2)
            mx += [[f"s_cmp_lg_u32 s{sFB}, 0", "s_cselect_b64 vcc, -1, 0"]]
            mx += [f"v_sub_f32 v{CI+16*qt}, {f32(-float(P['BIAS']))}, v{MX+qt}" for qt in range(2)]
            mx += [f"v_cndmask_b32 v{CI+16*qt}, v{CI+16*qt}, v{MX+4+qt}, vcc" for qt in range(2)]
            sc.add(mx + flat(sm(0, e, True) for e in range(17)), 1, 16)
            sc.add(flat(sm(0, e, True) for e in range(17, 33)), 16, 23)
            sc.add([f"v_mov_b32 v{CI+16*qt+i}, v{CI+16*qt}" for qt in range(2) for i in range(1, 16)], 23, 31)
            sc.add(flat(sm(1, e, True) for e in range(33)), 23, 54)
            sc.add(flat(sm(0, e) for e in range(12)), 54, 64)
        else:
            for e in range(12, 33): sc.pin(e - 12, sm(0, e))
            if last:
                sc.add(flat(sm(1, e) for e in range(17)), 19, 31)
                sc.add(flat(sm(1, e) for e in range(17, 33)), 31, 39)
            else:
                sc.add(dm, 1, 40)
                for e in range(33): sc.pin(20 + e, sm(1, e))
                for e in range(12): sc.pin(52 + e, sm(0, e))
        if not last:
            sc.pin(56, L(lambda: (k.wait("K", "V"), k("s_barrier")), 8))
            sc.add([rdK(f, f, nb) for f in range(4)], 56, 61, prio=1)
            sc.pin(63, wgrp(0), end=True)
        if extra: extra(sc)
        for m, f_ in zip(mf, sc.run()): k(m); put(k, f_)
    iteration(0, first=True)
    stamp(k, "it0")
    rows2 = 8 // (32 // P["F2R"])
    def xpf(half):
        def f(sc):
            if not P["PF1"]: return
            n = 8 * half
            if half == 0:
                pf = [[f"buffer_load_dwordx4 {a(192+4*(n+j),4)}, v{VL16}, s[20:23], s66 offen offset:{1024*j}"] for j in range((4 * G + 2) // 3)] + [f"s_add_u32 s66, s66, {1024*((4*G+2)//3)}"]
                pf += [[f"buffer_load_dwordx4 {a(192+4*(n+3+j),4)}, v{VX+1}, s[8:11], s65 offen", f"s_add_u32 s65, s65, {1024*rows2}"] for j in range((14 // rows2 + 2) // 3)]
            else:
                pf = [[f"buffer_load_dwordx4 {a(192+4*(n+2*j+m_),4)}, v{VX}, s[{40+4*m_}:{43+4*m_}], s64 offen"] + ([f"s_add_u32 s64, s64, 3584"] if m_ else []) for j in range(2) for m_ in range(2)]
            sc.add(pf, 40, 56)
        return f
    k.loop(sST, 3, lambda: (iteration(1, extra=xpf(0)), iteration(0, extra=xpf(1))), align=3)
    stamp(k, "it1-6")
    OM = MX + 4
    def finalize(dt, qt):
        b = Q + 16 * ((2 * dt + qt) % 4)
        o = [f"v_accvgpr_read_b32 v{b+i}, a{O+32*dt+16*qt+i}" for i in range(16)]
        if dt == 0: o += [f"v_max3_f32 v{OM+qt}, |v{b+i}|, |v{b+i+1}|, v{OM+qt}" for i in range(0, 16, 2)]
        o += [f"v_pk_mul_f32 {v(b+i,2)}, {v(b+i,2)}, {v(RL,2)} op_sel:[0,{qt}] op_sel_hi:[1,{qt}]" for i in range(0, 16, 2)]
        for sp in range(2):
            o += [f"v_cvt_pk_bf16_f32 v{b+8*sp+j}, v{b+8*sp+2*j}, v{b+8*sp+2*j+1}" for j in range(4)]
            o.append(L(lambda sp=sp: k(f"ds_write_b128 v{STT+dt}, {v(b+8*sp,4)} offset:{32768*qt+1024*sp}", token="hw"), 22, "d"))
        return o
    f0 = finalize(0, 0); f1 = finalize(0, 1)
    def o_dma(st):
        slot = st % 6
        o = [f"s_add_u32 m0, s{sRING}, {4096*slot+0x100000-0x100000}" if slot < 4 else f"s_add_u32 m0, s31, {L_K+16384*(slot-4)}",
             f"buffer_load_dwordx4 v{VDW}, s[20:23], s{sKhi} offen lds"]
        for n in range(1, 4):
            o.append(L(lambda n=n: k(f"buffer_load_dwordx4 v{VDW+n}, s[20:23], s{sKhi} offen offset:{1024*n} lds", token=f"W{slot}"), 10, "v"))
        o.append(f"s_add_u32 s{sKhi}, s{sKhi}, 16384")
        if st & 1: o.append(f"s_and_b32 s{sKhi}, s{sKhi}, 0x7ffff")
        return o
    OA = [0, 32]; OB = [160, 176]
    OA = [192, 224]
    V16 = VW
    def oa_reads(u, half):
        s0 = 2 * (u % 3)
        rd = [f"ds_read_b64_tr_b16 {a(OA[u%2]+8*p+4*e+2*uu,2)}, v{(V16 if s0 < 4 else VV)+p} offset:{(4096*s0 if s0 < 4 else 0)+1024*uu+8*e}" for p in range(2 * half, 2 * half + 2) for e in range(2) for uu in range(2)]
        return [[L(lambda: k.wait(f"W{s0}", f"W{s0+1}")), rd[0]]] + rd[1:]
    def ob_reads(u):
        return [f"ds_read_b128 {a(OB[u%2]+4*r4,4)}, v{VLO} offset:{2048*u+32768*(r4>>1)+256*(r4&1)}" for r4 in range(4)]
    def x_last(sc):
        sc.add([f"s_lshl_b32 s31, s{sW}, 12"] + flat(o_dma(s_) for s_ in range(5)), 0, 38)
        sc.add(o_dma(5), 41, 48)
        fin = [f"v_mov_b32 v{MX}, v{LS}", f"v_mov_b32 v{MX+1}, v{LS+1}", f"v_mov_b32 v{OM}, 0", f"v_mov_b32 v{OM+1}, 0",
               f"v_permlane32_swap_b32 v{LS}, v{MX}", f"v_permlane32_swap_b32 v{LS+1}, v{MX+1}",
               f"v_add_f32 v{LS}, v{LS}, v{MX}", f"v_add_f32 v{LS+1}, v{LS+1}, v{MX+1}",
               f"v_rcp_f32 v{RL}, v{LS}", f"v_rcp_f32 v{RL+1}, v{LS+1}", f"v_max_f32 v{MX+6}, v{LS}, v{LS+1}"]
        adr = [[f"s_lshl_b32 s57, s{sW}, 3", f"s_sub_u32 s57, s57, s{sR8}"]]
        for dt in range(4):
            adr += [[f"s_add_u32 s56, s57, {2*dt}", "s_and_b32 s56, s56, 31", "s_lshl_b32 s56, s56, 10"], f"v_add_u32 v{STT+dt}, s56, v{VLIN}"]
        adr += [f"v_lshl_add_u32 v{tm}, v{ROWL}, 3, v{r_}", f"v_lshlrev_b32 v{tm}, 8, v{tm}", f"v_and_b32 v{tm+1}, 1, v{LN_}", f"v_lshl_add_u32 v{tm}, v{tm+1}, 4, v{tm}",
                f"v_add_u32 v{tm}, s{sRING}, v{tm}", f"v_lshl_add_u32 v{tm+1}, v{gn}, 2, v{r_}", f"v_bfe_u32 v{tm+2}, v{LN_}, 1, 1", f"v_xor_b32 v{tm+1}, v{tm+1}, v{tm+2}",
                f"v_lshl_add_u32 v{V16}, v{tm+1}, 5, v{tm}"] + [f"v_xor_b32 v{V16+p}, {64*p}, v{V16}" for p in range(1, 4)]
        adr += [f"v_and_b32 v{tm+1}, 15, v{LN_}", f"v_lshlrev_b32 v{tm+1}, 4, v{tm+1}", f"v_lshl_add_u32 v{HW}, v{ROWL}, 9, v{tm+1}", f"v_add_u32 v{VLO}, {L_H}, v{HW}"]
        sc.add(adr, 0, 19)
        sc.add(fin, 39, 43)
        sc.pin(40, L(lambda: k("s_barrier")))
        sc.add(oa_reads(0, 0), 40, 46, prio=1)
        sc.add(f0[:16] + f1[:12], 43, 48)
    iteration(1, last=True, extra=x_last)
    stamp(k, "it7")
    k(f"s_load_dwordx2 s[46:47], s[0:1], {A_X}")
    k(f"s_load_dwordx2 s[48:49], s[0:1], {A_OUT}")
    put(k, oa_reads(0, 1))
    k(f"s_sub_u32 s3, s31, s{sRING}"); k(f"v_mul_u32_u24 v{tm}, 12288, v{h_}"); k(f"v_add_u32 v{tm}, s3, v{tm}")
    for p in range(4): k(f"v_add_u32 v{VV+p}, v{V16+p}, v{tm}")
    put(k, f0[16:] + f1[12:])
    for dt in range(1, 4):
        for qt in range(2): put(k, finalize(dt, qt))
    k.wait_all(vm=False); k("s_barrier")
    put(k, ob_reads(0))
    stamp(k, "owrite")
    sc = Sched(512, budget=P['OBUD']); mf = []
    for u in range(16):
        g0 = 32 * u
        if u + 1 < 16:
            sc.add(ob_reads(u + 1) + oa_reads(u + 1, 0) + oa_reads(u + 1, 1), g0 + P["ORD0"], g0 + 28, prio=1)
            sc.pin(g0 + 31, L(lambda u=u: k.wait_regs(a(OA[(u + 1) % 2], 32), a(OB[(u + 1) % 2], 16))), end=True)
        if u + 3 < 16: sc.add(o_dma(2 * u + 6) + o_dma(2 * u + 7), g0, g0 + P["ODE"])
        for t_ in range(8):
            for r4 in range(4):
                d = v(ACC + 32 * (t_ // 2) + 8 * r4 + 4 * (t_ % 2), 4)
                mf.append(f"v_mfma_f32_16x16x32_bf16 {d}, {a(OA[u%2]+4*t_,4)}, {a(OB[u%2]+4*r4,4)}, {'0' if u == 0 else d}")
    misc = [f"v_min_f32 v{OM}, v{OM}, v{OM+1}", f"v_cmp_ngt_f32 vcc, {f32(2.0**120)}, v{MX+6}", "s_mov_b64 s[62:63], vcc",
            f"v_cmp_gt_f32 vcc, {f32(2.0**-108 if not P['FORCE_FB'] else 2.0**100)}, v{OM}", "s_or_b64 s[62:63], s[62:63], vcc",
            f"v_mov_b32 v{MX+1}, s{sRING}", f"v_and_b32 v{MX+7}, 3, v{LN_}", f"v_lshlrev_b32 v{MX+7}, 14, v{MX+7}", f"v_add_u32 v{MX+7}, {L_W}, v{MX+7}", f"v_mov_b32 v{MX+2}, 0", f"v_mov_b32 v{MX+3}, 0x7f800000",
            f"s_lshl_b32 s{sT2}, s{sG}, 21", f"s_lshl_b32 s{sT1}, s{sRB}, 16", f"s_add_u32 s{sT2}, s{sT2}, s{sT1}",
            f"s_lshl_b32 s{sT1}, s{sW}, 13", f"s_add_u32 s{sT2}, s{sT2}, s{sT1}", f"s_add_u32 s{sT2}, s{sT2}, {WS_P:#x}",
            "s_mov_b32 s12, s46", "s_and_b32 s13, s47, 0xffff", "s_mov_b32 s14, 0x200000", "s_mov_b32 s15, 0x20000",
            "s_mov_b32 s16, s68", "s_and_b32 s17, s69, 0xffff", "s_mov_b32 s18, 0x100", "s_mov_b32 s19, 0x20000",
            f"s_lshl_b32 s5, s{sRB}, 3", f"s_add_u32 s5, s5, s{sG}", "s_lshl_b32 s5, s5, 13",
            f"v_and_b32 v{tm}, 7, v{LN_}", f"v_lshrrev_b32 v{tm+1}, 3, v{LN_}", f"v_lshl_add_u32 v{tm+1}, s{sW}, 4, v{tm+1}",
            f"v_lshlrev_b32 v{VK}, 10, v{tm}", f"v_lshl_add_u32 v{VK}, v{tm+1}, 4, v{VK}", f"v_lshlrev_b32 v{VK+1}, 5, v{tm+1}",
            f"buffer_load_dword v{VK+2}, v{MX+2}, s[16:19], 0 offen sc1"]
    sc.add(misc, 8, 260)
    def cspin():
        k("s_mov_b32 s3, 0"); k("s_branch CCHK"); st = dict(k.vm)
        k.label("CPOLL")
        k(f"buffer_load_dword v{VK+2}, v{MX+2}, s[16:19], 0 offen sc1"); k.wait_all(lg=False)
        k.label("CCHK"); k.vm = st
        k("s_add_u32 s3, s3, 1"); k(f"v_cmp_gt_u32 vcc, 0x100, v{VK+2}")
        k("s_cmp_gt_u32 s3, 0x8000"); k("s_cbranch_scc1 CDONE"); k("s_cbranch_vccnz CPOLL")
        k.label("CDONE")
    sc.pin(417, L(cspin, 24))
    xm = [f"buffer_load_dwordx4 {v(128+4*i,4)}, v{VK}, s[12:15], s5 offen offset:{128*i}" for i in range(2)]
    for base, m_ in ((136, 2), (152, 4), (168, 3)):
        xm += [f"s_mov_b32 s4, {WS_MOD + m_*2048}"] + [f"buffer_load_dwordx4 {v(base+8*i+4*hh,4)}, v{VK+1}, s[24:27], s4 offen offset:{256*i+16*hh} sc1" for i in range(2) for hh in range(2)]
    sc.add(xm, 419, 490)
    for m, f_ in zip(mf, sc.run()): k(m); put(k, f_)
    stamp(k, "ogemm")
    for r4 in range(4):
        k(f"v_cmp_nlt_f32 vcc, |v{ACC+8*r4}|, v{MX+3}"); k("s_or_b64 s[62:63], s[62:63], vcc")
    k(f"s_cselect_b32 s{sT1}, 1, 0"); k(f"v_mov_b32 v{MX}, s{sT1}")
    k(f"ds_write_b32 v{MX+1}, v{MX}", token="fl")
    for p in range(4):
        if p == 1: k.wait("fl"); k("s_barrier"); k(f"ds_read_b32 v{STT}, v{MX+7}")
        for r4 in range(4):
            if r4 % 2 == 0: k(f"s_add_u32 s{sT1}, s{sT2}, {32768*(r4>>1) + 2048*p}")
            b = ACC + 32 * p + 8 * r4
            for j in range(4): k(f"v_cvt_pk_bf16_f32 v{b+j}, v{b+2*j}, v{b+2*j+1}")
            k(f"buffer_store_dwordx4 {v(b,4)}, v{HW}, s[24:27], s{sT1} offen offset:{256*(r4&1)} sc1", token="PST")
    k(f"v_cmp_lt_u32 vcc, s{sFB}, v{STT}")
    k("s_cbranch_vccnz FALLBACK")
    tail(sys.modules[__name__], k)
    stamp_flush(k, 0)
    k.label("END_attn"); k("s_endpgm")
    k.label("FALLBACK")
    k.wait_all(); k("s_barrier")
    k(f"s_mov_b32 s{sFB}, 1")
    k("s_nop 15")
    k("s_branch RESTART")
    k.label("FB_MAX")
    k.wait_all(); k("s_barrier")
    k(f"v_mov_b32 v{MX+4}, 0xff800000"); k(f"v_mov_b32 v{MX+5}, 0xff800000")
    def fbody():
        put(k, kv_dma("K", L_K, sO0) + nxt(sO0, sO0)); k.wait("K"); k("s_barrier")
        for s_ in range(8): put(k, rdK(s_, s_, L_K))
        for s_ in range(8):
            for qt in range(2): k(qk(s_, s_, qt, 0, True))
        put(k, maxops(0, MX))
        k(f"v_max_f32 v{MX+4}, v{MX+4}, v{MX}"); k(f"v_max_f32 v{MX+5}, v{MX+5}, v{MX+1}")
        k("s_barrier")
    k.loop(sST, 16, fbody)
    put(k, xhalf_max(MX + 4, MX + 2))
    for qt in range(2): k(f"v_sub_f32 v{MX+4+qt}, 0, v{MX+4+qt}")
    put(k, kfirst)
    k.wait_all(); k("s_barrier")
    for f in range(4): put(k, rdK(f, f, L_K + 16384 + 8192))
    qk0(False)
    k.wait_all()
    k("s_branch IT0")
    return k

from gen28_tail import tail

HEADER = open('adaLN_cond__sliding_block_cached__geglu_ffn__prompt.s.ref').read().split("; Override launch")[0]

DOC = """; One persistent kernel, 256 workgroups x 4 waves (one workgroup per CU), phases chained by in-launch hand-offs:
;    restarts with the exact row maximum (labels FALLBACK / FB_MAX)
"""

if __name__ == "__main__":
    out = sys.argv[1] if len(sys.argv) > 1 else "k.s"
    me = sys.modules[__name__]
    ks = [gen_attn()]
    ks[-1].label("CODE_END")
    txt = emit(ks, header=HEADER)
    txt = txt.replace('.amdgcn_target', DOC + '.amdgcn_target', 1)
    if P.get("SINGLE"): txt = txt.replace("; @launch kernel=" + KNAME + " ", "; @launch ")
    open(out, "w").write(txt)
    json.dump([[k.name, k.grid, k.block//64, k.stamps] for k in ks], open(out[:-2]+".json","w"))
    for k in ks: print(k.name, "regs(v,a,s)", k.used, "nops", k.n_nops, "misal", k.n_mis, "instrs", len(k.items))
```

```python
import math
from asmlib import *

def L(f, cost=4, mem=False):
    f.cost = cost; f.mem = mem; return f

def tail(M, k):
    P = M.P; f32 = M.f32; put = M.put; stamp = M.stamp
    sW = 28; VL16 = 216; TT = 220
    SCH = "" if P.get("PLAIN", 0) & 1 else " sc1"; SCA = "" if P.get("PLAIN", 0) & 2 else " sc1"
    FL1, FL2, FL3, FL4 = [M.WS_FL + 0x8000 * i for i in range(4)]
    L_S = 163840 - 256
    VF = 248
    def cond(sreg, lab, body):
        k(f"s_cmp_lg_u32 s{sreg}, 0"); k(f"s_cbranch_scc1 {lab}")
        s0 = (dict(k.vm), dict(k.lg)); body(); k.label(lab)
        k.vm = k._merge(k.vm, s0[0]); k.lg = k._merge(k.lg, s0[1])
    def flag_store(soff): k(f"buffer_store_dword v{VF+2}, v{VF+3}, s[20:23], s{soff} offen sc1")
    def publish(tok, soff):
        k.wait(tok); k("s_barrier"); flag_store(soff)
    def spin(soff, n, tag, counter=False, first_issued=False):
        k(f"s_mov_b64 exec, {(1 << n) - 1:#x}")
        k("s_mov_b32 s3, 0")
        if first_issued: k("s_branch CHK" + tag); st = dict(k.vm)
        k.label("POLL" + tag)
        if counter: k(f"buffer_load_dword v{VF+1}, v{VF}, s[16:19], 0 offen sc1")
        else: k(f"buffer_load_dword v{VF+1}, v{VF}, s[24:27], s{soff} offen sc1")
        if first_issued:
            k.wait_all(lg=False); k.label("CHK" + tag); k.vm = st
        k("s_add_u32 s3, s3, 1")
        k(f"v_cmp_gt_u32 vcc, 0x100, v{VF+1}" if counter else f"v_cmp_eq_u32 vcc, 0, v{VF+1}")
        k("s_cmp_gt_u32 s3, 0x8000"); k("s_cbranch_scc1 POLLED" + tag)
        k("s_cbranch_vccz POLLED" + tag)
        k(f"s_sleep {P['SLEEP2']}"); k("s_branch POLL" + tag)
        k.label("POLLED" + tag)
        k("s_mov_b64 exec, -1")
    def await_(soff, n, tag, counter=False):
        if P.get("DUM"):
            for i in range(P["DUM"]): k(f"v_mfma_f32_32x32x16_bf16 {a(128+16*(i%4),16)}, {a(192+4*(i%8),4)}, {a(224+4*(i%8),4)}, {a(128+16*(i%4),16)}")
        cond(sW, "NOPOLL" + tag, lambda: spin(soff, n, tag, counter))
        if not counter: k("s_barrier")
    k("s_lshl_b32 s3, s30, 3"); k("s_add_u32 s3, s3, s29")
    k("s_lshr_b32 s4, s3, 2"); k("s_lshl_b32 s4, s4, 15"); k("s_and_b32 s6, s3, 3"); k("s_lshl_b32 s6, s6, 7"); k("s_add_u32 s4, s4, s6")
    k("s_lshl_b32 s7, s3, 7"); k(f"s_add_u32 s7, s7, {FL1:#x}")
    k("s_lshl_b32 s6, s30, 10"); k(f"s_add_u32 s6, s6, {FL1:#x}")
    k.srd(20, 70, 0x100000); k("s_mov_b32 s46, s8"); k("s_mov_b32 s47, s9")
    k(f"v_lshlrev_b32 v{VF}, 7, v{TT}"); k(f"v_mov_b32 v{VF+2}, 1")
    k(f"v_lshl_add_u32 v{VF+3}, s{sW}, 6, v{TT}"); k(f"v_lshlrev_b32 v{VF+3}, 20, v{VF+3}")
    if P["PUBP"] == 1: publish("PST", 7)
    HB = 0; AF = 128; AC = 0
    VDA = 224; VDB = 228; VAA = 231; VAB = 235; T1 = 237; KC = 246
    sFS, sRB, sT0, sT1, sKA_, sKB_ = 29, 30, 31, 32, 33, 36
    R = P["F1R"]
    M.split2(k, 2, sFS, sRB, 32 // R, 16, sT0, sKA_)
    if R >= 8: k(f"s_and_b32 s{sKA_}, s{sKA_}, 7")
    else: k(f"s_lshl_b32 s{sKA_}, s{sKA_}, {M.lg2(8//R)}")
    k(f"s_mov_b32 s{sKB_}, s{sKA_}"); k(f"s_mov_b32 s39, s{sKA_}")
    k(f"s_lshr_b32 s37, s{sW}, 1")
    k(f"s_and_b32 s{sT0}, s{sW}, 1")
    k(f"s_lshl_b32 s{sT1}, s{sFS}, 7"); k(f"s_mul_i32 s35, s{sT0}, {32*3584}"); k(f"s_add_u32 s{sT1}, s{sT1}, s35")
    k(f"s_mul_i32 s66, s{sFS}, 96"); k("s_add_u32 s66, s66, s35")
    k(f"v_lshrrev_b32 v{T1}, 3, v{TT}"); k(f"v_bfe_u32 v{T1+1}, v{TT}, 4, 1"); k(f"v_lshlrev_b32 v{T1+1}, 2, v{T1+1}")
    k(f"v_and_b32 v{T1+2}, 7, v{TT}"); k(f"v_xor_b32 v{T1+2}, v{T1+2}, v{T1+1}")
    k("s_lshl_b32 s35, s37, 1"); k(f"v_xor_b32 v{T1+3}, s35, v{T1+2}")
    k(f"v_mul_u32_u24 v{VDA}, 3584, v{T1}"); k(f"v_lshl_add_u32 v{VDA}, v{T1+3}, 4, v{VDA}"); k(f"v_add_u32 v{VDA}, s{sT1}, v{VDA}")
    for n in range(1, 4): k(f"v_add_u32 v{VDA+n}, {n*(8*3584-1024)}, v{VDA}")
    VD0, VD1 = 160, 161
    k(f"v_lshlrev_b32 v{VF+4}, 10, v{T1}"); k(f"v_lshl_add_u32 v{VF+4}, v{T1+2}, 4, v{VF+4}")
    if P["PUBP"] == 2: publish("PST", 7)
    k("s_mov_b32 s35, 10923")
    for n in range(3):
        k(f"v_add_u32 v{T1}, {64*n}, v{TT}"); k(f"v_mul_u32_u24 v{T1+1}, s35, v{T1}"); k(f"v_lshrrev_b32 v{T1+1}, 16, v{T1+1}")
        k(f"v_mul_u32_u24 v{T1+2}, 6, v{T1+1}"); k(f"v_sub_u32 v{T1+2}, v{T1}, v{T1+2}")
        k(f"v_mul_u32_u24 v{T1+1}, 3584, v{T1+1}"); k(f"v_lshl_add_u32 v{T1+1}, v{T1+2}, 4, v{T1+1}")
        k(f"v_add_u32 v{T1+1}, s66, v{T1+1}"); k(f"v_add_u32 v{VDB+n}, {2048-1024*n}, v{T1+1}")
    for q in range(192): assert (q * 10923) >> 16 == q // 6
    k(f"s_lshl_b32 s35, s37, 16"); k(f"s_lshl_b32 s{sT1}, s{sT0}, 12"); k(f"s_add_u32 s64, s35, s{sT1}")
    k(f"s_mul_i32 s{sT1}, s{sT0}, 3072"); k(f"s_mul_i32 s65, s37, {65536+128}"); k(f"s_add_u32 s65, s65, s{sT1}")
    k(f"s_mul_i32 s35, s37, {12288+128}"); k(f"s_add_u32 s35, s35, s{sT1}"); k(f"s_add_u32 s35, s35, {131072}")
    k("s_cmp_eq_u32 s37, 0")
    k("s_cselect_b32 s8, s40, s44"); k("s_cselect_b32 s9, s41, s45"); k("s_and_b32 s9, s9, 0xffff")
    k(f"s_mov_b32 s10, {512*3584}"); k("s_mov_b32 s11, 0x20000")
    k(f"s_lshl_b32 s{sT1}, s{sRB}, 2"); k(f"s_add_u32 s{sT1}, s{sT1}, s{sW}"); k(f"s_lshl_b32 s{sT1}, s{sT1}, 15")
    k(f"s_add_u32 s38, s{sT1}, {M.WS_H2:#x}")
    k(f"s_lshl_b32 s34, s{sRB}, 11"); k(f"s_add_u32 s34, s34, {FL2:#x}")
    r_, c2, gn, h_, tm = T1 + 3, T1 + 4, T1 + 5, T1 + 6, T1 + 7
    M.lane_tr_parts(k, TT, r_, c2, gn, h_, tm)
    k(f"v_lshl_add_u32 v{tm}, v{h_}, 3, v{r_}")
    k(f"v_lshlrev_b32 v{T1}, 7, v{tm}"); k(f"v_lshl_add_u32 v{T1}, v{gn}, 16, v{T1}"); k(f"v_lshl_add_u32 v{T1}, v{c2}, 3, v{T1}")
    k(f"v_lshrrev_b32 v{T1+1}, 1, v{r_}"); k(f"v_lshl_add_u32 v{T1}, v{T1+1}, 6, v{T1}"); k(f"v_lshl_add_u32 v{VAA}, v{gn}, 5, v{T1}")
    for t in range(1, 4): k(f"v_xor_b32 v{VAA+t}, {32*t}, v{VAA}")
    k(f"v_mul_u32_u24 v{T1}, 96, v{tm}"); k(f"v_lshl_add_u32 v{T1}, v{c2}, 3, v{T1}")
    k(f"v_mul_u32_u24 v{T1+1}, {65536+128}, v{gn}"); k(f"v_add_u32 v{VAB}, v{T1}, v{T1+1}")
    k(f"v_mul_u32_u24 v{T1+1}, {12288+128}, v{gn}"); k(f"v_add_u32 v{VAB+1}, v{T1}, v{T1+1}"); k(f"v_add_u32 v{VAB+1}, {131072}, v{VAB+1}")
    def dmaA(st):
        return [[f"s_mul_i32 s{sT0}, s{sKA_}, {64*3584}", f"s_add_u32 m0, s64, {8192*st}"], [f"s_add_u32 s{sKA_}, s{sKA_}, 1", f"s_and_b32 s{sKA_}, s{sKA_}, 7"]] + \
               [L(lambda n=n: k(f"buffer_load_dwordx4 v{VDA+n}, s[8:11], s{sT0} offen offset:{1024*n} lds", token=f"A{st}"), 10, "v") for n in range(4)]
    def dmaB(st):
        m0 = f"s_add_u32 m0, s35, {6144*st}" if st < 2 else f"s_add_u32 m0, s65, {8192*(st-2)}"
        return [[f"s_mul_i32 s{sT0}, s{sKB_}, {64*3584}", m0], [f"s_add_u32 s{sKB_}, s{sKB_}, 1", f"s_and_b32 s{sKB_}, s{sKB_}, 7"]] + \
               [L(lambda n=n: k(f"buffer_load_dwordx4 v{VDB+n}, s[8:11], s{sT0} offen offset:{1024*n} lds", token=f"B{st}"), 10, "v") for n in range(3)]
    def hload(st):
        o = [[f"s_lshl_b32 s{sT1}, s39, 12", f"s_add_u32 s{sT1}, s{sT1}, s38"], ["s_add_u32 s39, s39, 1", "s_and_b32 s39, s39, 7"]]
        o += [f"buffer_load_dwordx4 {a(HB+16*st+4*j,4)}, v{VL16}, s[24:27], s{sT1} offen offset:{1024*j}{SCH}" for j in range(4)]
        return o
    stamp(k, "t_set")
    if P["PUBP"] == 0: publish("PST", 7)
    k(f"v_and_b32 v1, 7, v{TT}"); k(f"v_lshrrev_b32 v7, 3, v{TT}"); k(f"v_lshl_add_u32 v7, s{sW}, 4, v7")
    k("v_lshlrev_b32 v3, 9, v7"); k("v_lshl_add_u32 v3, v1, 4, v3"); k("v_add_u32 v2, 4096, v3")
    k("v_lshlrev_b32 v8, 4, v1"); k(f"v_add_u32 v8, {L_S}, v8"); k(f"v_lshl_add_u32 v9, s{sW}, 2, v8")
    X = 128; XF = 24; MV = 136; PB = 64
    nd = 0
    while nd < P["TW1"]: put(k, dmaA(nd)); nd += 1
    await_(6, 8, "_1")
    stamp(k, "poll1")
    k(f"s_add_u32 s66, s4, {M.WS_P:#x}")
    for g in range(8):
        for i in range(2): k(f"buffer_load_dwordx4 {v(PB+8*g+4*i,4)}, v{3-i}, s[24:27], s66 offen sc1")
        if g < 7: k("s_add_u32 s66, s66, 0x200000")
    while nd < P["TWM"]: put(k, dmaA(nd)); nd += 1
    k("s_mov_b32 s67, 0xffff0000")
    def unpack(dst, src):
        k(f"v_lshlrev_b32 v{dst}, 16, v{src}"); k(f"v_and_b32 v{dst+1}, s67, v{src}")
    for q in range(8): unpack(XF + 2 * q, PB + q)
    for g in range(1, 8):
        for q in range(8):
            unpack(10 + 2 * (q & 1), PB + 8 * g + q)
            k(f"v_pk_add_f32 {v(XF+2*q,2)}, {v(XF+2*q,2)}, {v(10+2*(q&1),2)}")
    for q in range(8):
        unpack(10, X + q)
        k(f"v_pk_fma_f32 v[10:11], {v(XF+2*q,2)}, {v(MV+2*q,2)}, v[10:11]")
        k(f"v_cvt_pk_bf16_f32 v{X+q}, v10, v11")
        unpack(XF + 2 * q, X + q)
    k(f"s_add_u32 s66, s4, {M.WS_X1:#x}")
    for i in range(2): k(f"buffer_store_dwordx4 {v(X+4*i,4)}, v{3-i}, s[24:27], s66 offen sc1")
    stamp(k, "x1")
    for _ in range(P.get("DLY1", 0)): k("s_sleep 38")
    M.ln_stats(k, XF)
    for e in range(0, 16, 2):
        k(f"v_pk_mul_f32 {v(XF+e,2)}, {v(XF+e,2)}, v[56:57]")
        k(f"v_pk_fma_f32 {v(XF+e,2)}, {v(XF+e,2)}, {v(152+e,2)}, {v(168+e,2)}")
        k(f"v_cvt_pk_bf16_f32 v{MV+e//2}, v{XF+e}, v{XF+e+1}")
    k(f"s_add_u32 s66, s4, {M.WS_H2:#x}")
    for i in range(2): k(f"buffer_store_dwordx4 {v(MV+4*i,4)}, v{3-i}, s[24:27], s66 offen sc1", token="H2S")
    k("s_add_u32 s7, s7, 0x8000")
    publish("H2S", 7)
    while nd < 8: put(k, dmaA(nd)); nd += 1
    nb = 0
    while nb < P["TB0"]: put(k, dmaB(nb)); nb += 1
    k.wait("A7")
    await_(34, 16, "_2")
    stamp(k, "poll2")
    HP = P["HPRE"]
    for st in range(HP): put(k, hload(st))
    def readsA(step):
        return [f"ds_read_b64_tr_b16 {a(AF+16*(step%4)+4*t+2*u,2)}, v{VAA+t} offset:{2048*step+512*u}" for t in range(4) for u in range(2)]
    def readsB(step):
        st, ks = divmod(step, 4)
        reg, base = (VAB + 1, 6144 * st) if st < 2 else (VAB, 8192 * (st - 2))
        return [f"ds_read_b64_tr_b16 {a(AF+16*(step%4)+4*t+2*u,2)}, v{reg} offset:{base+96*(16*ks+4*u)+32*t}" for t in range(3) for u in range(2)]
    def mf(step, t0, nt):
        return [f"v_mfma_f32_32x32x16_bf16 {v(AC+16*(t0+t),16)}, {a(AF+16*(step%4)+4*t,4)}, {a(HB+4*step,4)}, {'0' if step == 0 else v(AC+16*(t0+t),16)}" for t in range(nt)]
    BFR = 0; AF2 = 224; AC2 = 0
    VW, VL2, T2 = 162, 168, 170
    sNB, sRB2, sA0, sA1, sAB = 50, 51, 52, 53, 57
    SW_, SA_ = 72, 76
    BLK = [3, 7, 8, 0, 4, 1, 2, 5, 6, 9]
    NSL = 20
    def slot_addr(sl): return BLK[sl // 2] * 16384 + (sl % 2) * 2048
    def setup2():
        o = [L(lambda: M.split2(k, 2, sNB, sRB2, 32 // P["F2R"], 32, sA0, sA1), 40)]
        o += [L(lambda: k.srd(12, 46, 1792 * 1024), 16), L(lambda: k.srd(16, 48, 2048 * 1024), 16)]
        o += [f"s_lshl_b32 s{sA0}, s{sNB}, 7", f"v_add_u32 v{VD0}, s{sA0}, v{VF+4}", f"v_add_u32 v{VD1}, {8*1024-1024}, v{VD0}",
              f"s_lshl_b32 s56, s{sW}, 12", f"v_add_u32 v{VL2}, {224*512}, v{VL16}",
              [f"s_mul_i32 s{sAB}, s{sRB2}, {2*224*512}", f"s_add_u32 s{sAB}, s{sAB}, {M.WS_ACT:#x}"], f"s_lshl_b32 s58, s{sW}, 2"]
        for j in range(4):
            o += [[f"s_add_u32 s{sA0}, s{sNB}, {j}", f"s_and_b32 s{sA0}, s{sA0}, 3", f"s_add_u32 s{SW_+j}, s{sA0}, s58"]]
        o += [f"v_lshl_add_u32 v{T2}, v{h_}, 3, v{r_}", f"v_lshlrev_b32 v{VW}, 7, v{T2}", f"v_lshl_add_u32 v{T2+1}, v{gn}, 2, v{c2}",
              f"v_lshl_add_u32 v{VW}, v{T2+1}, 3, v{VW}", f"v_lshrrev_b32 v{T2}, 1, v{r_}", f"v_lshl_add_u32 v{VW}, v{T2}, 6, v{VW}",
              f"v_add_u32 v{VW}, s56, v{VW}", f"v_xor_b32 v{VW+1}, 64, v{VW}"]
        o += [f"v_add_u32 v{VW+2+j}, {65536*(1+j//2)}, v{VW+j%2}" for j in range(4)]
        o += [[f"s_lshr_b32 s59, s{sRB2}, 1", "s_lshl_b32 s59, s59, 2", f"s_add_u32 s59, s59, s{sW}"], ["s_lshl_b32 s59, s59, 9", f"s_add_u32 s59, s59, {FL3:#x}", "s_add_u32 s61, s59, 0x8000"],
              ["s_lshl_b32 s60, s30, 4", "s_add_u32 s60, s60, s29", "s_lshl_b32 s60, s60, 7"], [f"s_add_u32 s60, s60, {FL3:#x}", "s_add_u32 s62, s60, 0x8000"]]
        return o
    KS2 = [(j, t) for j in range(4) for t in range(4)] + [(j, t) for j in range(4) for t in range(4, 7)]
    def wdma(i):
        sl = i % NSL; j, t = KS2[i]
        mul, add = (4, t) if t < 4 else (3, 60 + t)
        return [[f"s_mul_i32 s{sA0}, s{SW_+j}, {mul<<14}", f"s_add_u32 s{sA0}, s{sA0}, {add<<14}", f"s_add_u32 m0, s56, {slot_addr(sl)}"],
                f"buffer_load_dwordx4 v{VD0}, s[12:15], s{sA0} offen lds",
                L(lambda: k(f"buffer_load_dwordx4 v{VD1}, s[12:15], s{sA0} offen offset:1024 lds", token=f"D{sl}"), 10, "v")]
    def aload(i):
        j, t = KS2[i]
        pre_ = [[f"s_lshl_b32 s{SA_+j}, s{SW_+j}, 12", f"s_add_u32 s{SA_+j}, s{SA_+j}, s{sAB}"]] if t == 0 else []
        if t == 4: pre_ = [[f"s_mul_i32 s{SA_+j}, s{SW_+j}, 3072", f"s_add_u32 s{SA_+j}, s{SA_+j}, s{sAB}", f"s_add_u32 s{SA_+j}, s{SA_+j}, 65536"]]
        return pre_ + [f"buffer_load_dwordx4 {a(BFR+8*i,4)}, v{VL16}, s[24:27], s{SA_+j} offen offset:{1024*(t%4)}{SCA}",
                       f"buffer_load_dwordx4 {a(BFR+8*i+4,4)}, v{VL2}, s[24:27], s{SA_+j} offen offset:{1024*(t%4)}{SCA}"]
    K0_ = -2 * math.sqrt(2 / math.pi) * M.LOG2E
    pre = [[f"s_mov_b32 s40, {f32(K0_*0.044715)}", "s_mov_b32 s41, s40"], f"v_mov_b32 v{KC}, {f32(M.GK0/M.GSC if P['GS'] else K0_)}", f"v_mov_b32 v{KC+1}, {f32(M.GK0/M.GSC if P['GS'] else K0_)}",
           [f"s_lshl_b32 s42, s{sRB}, 2", f"s_add_u32 s42, s42, s{sW}", f"s_mul_i32 s42, s42, {224*512}"],
           [f"s_add_u32 s42, s42, {M.WS_ACT:#x}", f"s_mul_i32 s43, s{sFS}, 3072", "s_add_u32 s43, s43, s42"], ["s_add_u32 s43, s43, 65536", f"s_lshl_b32 s44, s{sFS}, 12", "s_add_u32 s42, s42, s44"]]
    def epi(t, pk):
        G = AC + 16 * t; E = 136 + 8 * (t % 2); D = 152 + 4 * (t % 2)
        GS = P["GS"]; ng = "-" if GS else ""
        if pk:
            if GS: o = [f"v_pk_fma_f32 {v(E+r,2)}, {v(G+r,2)}, {v(G+r,2)}, {v(KC,2)}" for r in range(0, 8, 2)]
            else:
                o = [f"v_pk_mul_f32 {v(E+r,2)}, {v(G+r,2)}, {v(G+r,2)}" for r in range(0, 8, 2)]
                o += [f"v_pk_fma_f32 {v(E+r,2)}, {v(E+r,2)}, s[40:41], {v(KC,2)}" for r in range(0, 8, 2)]
            o += [f"v_pk_mul_f32 {v(E+r,2)}, {v(E+r,2)}, {v(G+r,2)}" for r in range(0, 8, 2)]
            o += [f"v_exp_f32 v{E+r}, {ng}v{E+r}" for r in range(8)]
            o += [f"v_pk_mul_f32 {v(G+r,2)}, {v(G+r,2)}, {v(G+8+r,2)}" for r in range(0, 8, 2)]
            o += [f"v_pk_add_f32 {v(E+r,2)}, {v(E+r,2)}, 1.0 op_sel_hi:[1,0]" for r in range(0, 8, 2)]
            o += [f"v_rcp_f32 v{E+r}, v{E+r}" for r in range(8)]
            o += [f"v_pk_mul_f32 {v(G+r,2)}, {v(G+r,2)}, {v(E+r,2)}" for r in range(0, 8, 2)]
        else:
            if GS: o = [f"v_fma_f32 v{E+r}, v{G+r}, v{G+r}, v{KC}" for r in range(8)]
            else:
                o = [f"v_mul_f32 v{E+r}, v{G+r}, v{G+r}" for r in range(8)]
                o += [f"v_fma_f32 v{E+r}, v{E+r}, s40, v{KC}" for r in range(8)]
            o += [f"v_mul_f32 v{E+r}, v{E+r}, v{G+r}" for r in range(8)]
            for r in range(8): o += [f"v_exp_f32 v{E+r}, {ng}v{E+r}", f"v_mul_f32 v{G+r}, v{G+r}, v{G+8+r}"]
            o += [f"v_add_f32 v{E}, 1.0, v{E}"]
            for r in range(8): o += ([f"v_add_f32 v{E+r+1}, 1.0, v{E+r+1}"] if r < 7 else []) + [f"v_rcp_f32 v{E+r}, v{E+r}"]
            o += [f"v_mul_f32 v{G+r}, v{G+r}, v{E+r}" for r in range(8)]
        o += [f"v_cvt_pk_bf16_f32 v{D+j}, v{G+2*j}, v{G+2*j+1}" for j in range(4)]
        o.append(L(lambda: k(f"buffer_store_dwordx4 {v(D,4)}, v{VL16}, s[24:27], s{42 if t<4 else 43} offen offset:{1024*(t%4)} sc1", token="ST"), 10, "v"))
        return o
    RD = P.get("RDA", 2)
    put(k, readsA(0) + (readsA(1) if RD == 2 else []))
    sc = Sched(128); m_ = []
    for step in range(32):
        g0 = 4 * step
        if RD == 2: rd = readsA(step + 2) if step < 30 else readsB(step - 30)
        else: rd = (readsA(step + 1) if step < 31 else []) + (readsB(step - 30) if step >= 30 else [])
        sc.add(rd, g0, g0 + (4 if RD == 2 else P["RDW"]), prio=1)
        sc.pin(g0 + 3, L(lambda step=step: k.wait_regs(a(AF + 16 * ((step + 1) % 4), 16), a(HB + 4 * ((step + 1) % 32), 4))), end=True)
        m_ += mf(step, 0, 4)
    sc.add([x for st in range(HP, 8) for x in hload(st)], 0, P["HEND"])
    lo = P["HEND"]
    for b_ in range(nb, 8):
        if b_ >= 2:
            gb = 16 * (b_ - 1) + 2
            if b_ % 2 == 1: sc.pin(gb, "s_barrier")
            gfree = 16 * ((b_ | 1) - 1) + 2
            lo = max(lo, gfree)
        if lo + 8 <= 128: sc.add(dmaB(b_), lo, lo + 8); lo += 8; nb = b_ + 1
        else: break
    sc.add(setup2(), 8, 64); sc.add(pre, 64, 100)
    sc.pin(120, L(lambda: (k.wait("B0", "B1"), k("s_barrier")), 8))
    for m, f_ in zip(m_, sc.run()):
        k(m); put(k, f_)
        if P.get("PADA"): k(f"s_nop {P['PADA']}")
    stamp(k, "passA")
    sc = Sched(96); m_ = []
    for step in range(32):
        g0 = 3 * step
        if step < 30:
            if step % 8 == 6: sc.pin(g0, L(lambda step=step: (k.wait(f"B{(step+2)//4}", f"B{(step+2)//4+1}"), k("s_barrier")), 8))
            sc.add(readsB(step + 2), g0, g0 + 3, prio=1)
        if step < 31: sc.pin(g0 + 2, L(lambda step=step: k.wait_regs(a(AF + 16 * ((step + 1) % 4), 12))), end=True)
        m_ += mf(step, 4, 3)
    ld = [x for b_ in range(nb, 8) for x in dmaB(b_)]
    sc.add(ld, 0, 30)
    E_END = P["EEND"]
    NH = P["NHID"]
    sc.add([x for t in range(NH) for x in epi(t, False)], 2, E_END)
    sc.add([x for i in range(4) for x in wdma(i)], 30, 48)
    sc.add([x for i in range(4, 6) for x in wdma(i)], 48, 66)
    sc.add([x for i in range(6, 10) for x in wdma(i)], 67, 92)
    if NH == 4: sc.pin(P["PUBA"], L(lambda: (k.wait("ST"), k("s_barrier"), flag_store(60)), 18))
    sc.pin(93, L(lambda: (k.wait_all(vm=False), k("s_barrier")), 8))
    for m, f_ in zip(m_, sc.run()):
        k(m); put(k, f_)
        if P.get("PADB"): k(f"s_nop {P['PADB']}")
    stamp(k, "ffn1")
    for _ in range(P.get("DLY2", 0)): k("s_sleep 38")
    n = 10
    if NH < 4:
        for t in range(NH, 4): put(k, epi(t, True))
    W1 = P["FW1"]
    for t in range(4, 7):
        per = (W1 // 2) if t < 6 else 0
        for j in range(per): put(k, wdma(n)); n += 1
        put(k, epi(t, True))
    if NH < 4: k.wait("ST"); k("s_barrier"); flag_store(60)
    X1R, GB = 176, 184
    k(f"s_lshl_b32 s54, s{sRB2}, 1"); k(f"s_and_b32 s55, s{sW}, 1"); k("s_add_u32 s63, s54, s55")
    k(f"s_lshr_b32 s64, s{sW}, 1"); k("s_lshl_b32 s64, s64, 2"); k(f"s_lshl_b32 s54, s{sNB}, 3"); k("s_add_u32 s64, s64, s54")
    k("s_lshl_b32 s65, s63, 15"); k("s_lshl_b32 s55, s64, 9"); k("s_add_u32 s65, s65, s55"); k(f"s_add_u32 s65, s65, {M.WS_X1:#x}")
    k(f"v_lshlrev_b32 v{T2}, 5, v{h_}")
    k("s_lshl_b32 s55, s64, 5"); k(f"s_add_u32 s55, s55, {M.WS_MOD+5*2048}")
    spin(59, 4, "_3")
    k("s_barrier"); flag_store(62)
    stamp(k, "pub3")
    APRE = P["APRE"]
    for i in range(APRE): put(k, aload(i))
    def reads2(i):
        sl = i % NSL; ad = slot_addr(sl)
        rd = [f"ds_read_b64_tr_b16 {a(AF2+8*(i%4)+4*a_+2*u,2)}, v{VW+2*(ad>>16)+a_} offset:{(ad&0xffff)+512*u}" for a_ in range(2) for u in range(2)]
        return [[L(lambda: k.wait(f"D{sl}")), rd[0]]] + rd[1:]
    put(k, reads2(0) + reads2(1))
    stamp(k, "poll3")
    CH = P["BCHK"]
    nal = APRE; polled = False
    FT = P["FTM"]
    t2 = T2 + 2
    if FT: k(f"v_add_u32 v{t2+1}, s56, v{VL16}"); k(f"v_add_u32 v{t2+1}, 0x10000, v{t2+1}")
    for i in range(24 if FT else 28):
        if i == CH: spin(61, 4, "_4", first_issued=True)
        sc = Sched(4, budget=40)
        if i + 2 < 28: sc.add(reads2(i + 2), 0, 4, prio=1)
        if i + 1 < 28: sc.pin(3, L(lambda i=i: k.wait_regs(a(AF2 + 8 * ((i + 1) % 4), 8), a(BFR + 8 * (i + 1), 8))), end=True)
        ld = []
        for _ in range(2):
            if nal < (28 if i >= CH else 16): ld += aload(nal); nal += 1
            elif n < 28 and n - NSL < i: ld += wdma(n); n += 1
        if n < 28 and n - NSL < i and n <= i + 6: ld += wdma(n); n += 1
        if i == CH - P["BLEAD"]:
            ld += [["s_mov_b64 exec, 15", f"buffer_load_dword v{VF+1}, v{VF}, s[24:27], s61 offen sc1", "s_mov_b64 exec, -1"]]
        if i == 20:
            ld += [f"buffer_load_dwordx4 {v(X1R+4*sp,4)}, v{VL16}, s[24:27], s65 offen offset:{1024*sp} sc1" for sp in range(2)]
            ld += [f"buffer_load_dwordx4 {v(GB+8*sp+4*q,4)}, v{T2}, s[24:27], s55 offen offset:{64*sp+16*q} sc1" for sp in range(2) for q in range(2)]
        sc.add(ld, 0, 4)
        mf2 = [f"v_mfma_f32_32x32x16_bf16 {v(AC2+32*a_+16*rt,16)}, {a(AF2+8*(i%4)+4*a_,4)}, {a(BFR+8*i+4*rt,4)}, {'0' if i==0 else v(AC2+32*a_+16*rt,16)}" for a_ in range(2) for rt in range(2)]
        for m, f_ in zip(mf2, sc.run()): k(m); put(k, f_)
    assert n == 28 and nal == 28
    def rwr(t_): return [L(lambda q=q: k(f"ds_write_b128 v{t2+1}, {v(AC2+16*t_+4*q,4)} offset:{16384*t_+1024*q}", token="red"), 22, "d") for q in range(4)]
    if FT:
        sc = Sched(16)
        r26, r27 = reads2(26), reads2(27)
        put(k, r26[:2])
        sc.add(r27[:2] + r26[2:] + r27[2:], 0, 4, prio=1)
        for t_ in range(3): sc.add(rwr(t_), 4 * t_ + 6, min(4 * t_ + 10, 16))
        mf2 = [f"v_mfma_f32_32x32x16_bf16 {v(AC2+16*t_,16)}, {a(AF2+8*(i%4)+4*(t_>>1),4)}, {a(BFR+8*i+4*(t_&1),4)}, {v(AC2+16*t_,16)}" for t_ in range(4) for i in range(24, 28)]
        for m, f_ in zip(mf2, sc.run()): k(m); put(k, f_)
    stamp(k, "ffn2")
    if not FT:
        k("s_barrier")
        k(f"s_lshl_b32 s54, s{sW}, 14"); k(f"v_add_u32 v{t2+1}, s54, v{VL16}")
        for q in range(16): k(f"ds_write_b128 v{t2+1}, {v(AC2+4*q,4)} offset:{1024*q}", token="red")
    R_ = 64
    for r in range(16):
        if r % 2 == 0: k(f"v_lshlrev_b32 v{128+r}, 16, v{X1R+r//2}")
        else: k(f"v_and_b32 v{128+r}, s67, v{X1R+r//2}")
    k(f"v_and_b32 v{t2}, 31, v{TT}"); k(f"v_lshlrev_b32 v{t2}, 10, v{t2}"); k(f"v_lshl_add_u32 v{t2}, v{h_}, 4, v{t2}")
    if FT:
        k(f"s_lshl_b32 s54, s{sW}, 14"); k("s_add_u32 s54, s54, 0x10000"); k(f"v_add_u32 v{t2+2}, s54, v{VL16}")
        put(k, rwr(3))
    else: k(f"v_add_u32 v{t2+2}, s56, v{VL16}")
    k("s_lshl_b32 s54, s63, 15"); k("s_lshl_b32 s55, s64, 4"); k("s_add_u32 s54, s54, s55")
    k.wait("red"); k("s_barrier")
    for q in range(4):
        for ww in range(4): k(f"ds_read_b128 {v(R_+16*ww+4*q,4)}, v{t2+2} offset:{(4096 if FT else 16384)*ww+1024*q}")
    for sp in range(2):
        for r in range(8 * sp, 8 * sp + 8, 2):
            k(f"v_pk_add_f32 {v(R_+r,2)}, {v(R_+r,2)}, {v(R_+16+r,2)}"); k(f"v_pk_add_f32 {v(R_+32+r,2)}, {v(R_+32+r,2)}, {v(R_+48+r,2)}")
        for r in range(8 * sp, 8 * sp + 8, 2): k(f"v_pk_add_f32 {v(R_+r,2)}, {v(R_+r,2)}, {v(R_+32+r,2)}")
        for r in range(8 * sp, 8 * sp + 8, 2): k(f"v_pk_fma_f32 {v(R_+r,2)}, {v(R_+r,2)}, {v(GB+r,2)}, {v(128+r,2)}")
        for j in range(4 * sp, 4 * sp + 4): k(f"v_cvt_pk_bf16_f32 v{144+j}, v{R_+2*j}, v{R_+2*j+1}")
        k(f"buffer_store_dwordx4 {v(144+4*sp,4)}, v{t2}, s[16:19], s54 offen offset:{32*sp} sc1")
```

```python
import sys, struct, math, os, json
from asmlib import *

def f32(x): return "0x%08x" % struct.unpack("<I", struct.pack("<f", x))[0]
LOG2E = 1.4426950408889634
CS = 128 ** -0.5
A_X, A_K, A_V, A_WQ, A_WO, B_X, A_WG, A_WU, A_WD, A_C, A_WM, A_OUT, A_DBG, A_WS = [8 * i for i in range(14)]
WS_MOD = 0x0
WS_GO = 0x18000
WS_FL = 0x20000
WS_ST = 0x10000
WS_P = 0x400000
WS_X1 = 0x1400000
WS_H2 = 0x1600000
WS_ACT = 0x1800000
WS_BYTES = 0x10000000
WS_DBG = 0x8000000
P = dict(STAMPS=0, G=2, ROT=1, F1R=8, F2R=8, PREF0=1, PREFC=1, PREFQ=1, PREFK=1, PORD=1, XPRE=0, TLBW=1, PBAR=3, WPOS=1, DEFER=1, SYNC=1, LFIRST=0, SLEEP=2, OSC=1, SLEEP2=4, FW1=6, FW2=20, F2PRE=12, OTM=1, RDA=1, RDW=4, QRW=5, PUBP=0, FTM=1, WARM=1, WOFF=1, ORD0=0, ODE=32, OBUD=8, ROLE=0, VP=0, KPOS=0, PFK=0, GS=1, NHID=4, TOUCH=0, N0=4, QP0=10, QBURST=1, TW1=8, TWM=8, TB0=2, HEND=32, APRE=6, BLEAD=4, EEND=64, PUBA=76, WLAG=4, BCHK=10, TW2=5, HPRE=3, PSYS=0, WPRE=2, BURST=54, KEARLY=0, BIAS=96, FORCE_FB=0, PNT=0, PST=2, AST=2, PF1=1, PF2=1)
for kv in os.environ.get("GP", "").split(","):
    if kv: P[kv.split("=")[0]] = int(kv.split("=")[1])

def stamp(k, name):
    if not P["STAMPS"]: return
    SETS = {0: ("start", "mod", "qgemm", "it0", "it1-6", "owrite", "ogemm", "t_set", "end"), 1: ("start", "gemv", "stats", "poll", "mod", "qgemm", "end"),
            3: ("start", "t_set", "poll1", "x1", "poll2", "ffn1", "pub3", "poll3", "end"), 7: ("start", "end"), 8: ("start", "mod", "ogemm", "poll2", "ffn1", "pub3", "ffn2", "end"), 9: ("start", "t_set", "poll2", "end"), 10: ("start", "poll2", "pub3", "end"), 6: ("start", "poll2", "passA", "ffn1", "pub3", "poll3", "ffn2", "end"), 4: ("start", "mod", "q0", "q1", "q2", "qgemm", "end"), 5: ("start", "owrite", "q0o", "q1o", "q2o", "ogemm", "end")}
    if name not in SETS[P.get("DG", 0)]: return
    i = len(k.stamps); k.stamps.append(name)
    assert i < 9
    k.sgpr = 102
    k("s_memtime s[80:81]"); k("s_memrealtime s[100:101]"); k("s_waitcnt lgkmcnt(0)")
    k(f"s_mov_b32 s{82+2*i}, s80"); k(f"s_mov_b32 s{83+2*i}, s100")
def stamp_begin(k):
    k.stamps = []
    if not P["STAMPS"]: return
    stamp(k, "start")
def stamp_flush(k, kidx):
    if not P["STAMPS"]: return
    stamp(k, "end")
    if P["STAMPS"] == 2:
        lab = k.newlabel("NODBG")
        k("s_mov_b64 exec, -1")
        k(f"s_xor_b32 s100, s2, {P.get('DWG', 200)}"); k("s_or_b32 s100, s100, s101"); k("s_cmp_lg_u32 s100, 0"); k(f"s_cbranch_scc1 {lab}")
        k(f"s_load_dwordx2 s[66:67], s[0:1], {A_DBG}")
        k.srd(60, 66, 256)
        k("v_mov_b32 v1, 0")
        n = len(k.stamps)
        for j in range(1, n):
            k(f"s_sub_u32 s100, s{77+2*j}, s77"); k("v_mov_b32 v0, s100")
            k(f"buffer_store_dword v0, v1, s[60:63], 0 offen offset:{4*j}")
        k(f"s_sub_u32 s100, s{76+2*(n-1)}, s76"); k("v_mov_b32 v0, s100")
        k(f"buffer_store_dword v0, v1, s[60:63], 0 offen offset:{4*n}")
        k.label(lab)
        return
    k(f"s_load_dwordx2 s[64:65], s[0:1], {A_WS}")
    k("s_mov_b64 exec, -1")
    k.srd(56, 64, WS_BYTES)
    k("s_lshl_b32 s100, s2, 3"); k("s_add_u32 s100, s100, s28"); k("s_lshl_b32 s100, s100, 8")
    k(f"s_add_u32 s100, s100, {WS_DBG + kidx*0x100000:#x}")
    k("v_mov_b32 v1, 0")
    for j, sr in enumerate([82 + i for i in range(2*len(k.stamps))]):
        k(f"v_mov_b32 v0, s{sr}")
        k(f"buffer_store_dword v0, v1, s[56:59], s100 offen offset:{4*j}")

def wave_id(k, sdst, vtmp):
    k(f"v_lshrrev_b32 v{vtmp}, 6, v0")
    k(f"v_readfirstlane_b32 s{sdst}, v{vtmp}")
def rowsum_8(k, val, tmp):
    k(f"v_add_f32_dpp v{val}, v{val}, v{val} row_ror:8 row_mask:0xf bank_mask:0xf")
    k(f"v_mov_b32 v{tmp}, v{val}"); k(f"v_permlane16_swap_b32 v{val}, v{tmp}"); k(f"v_add_f32 v{val}, v{val}, v{tmp}")
    k(f"v_mov_b32 v{tmp}, v{val}"); k(f"v_permlane32_swap_b32 v{val}, v{tmp}"); k(f"v_add_f32 v{val}, v{val}, v{tmp}")
def rnd(k, d, sreg): k(f"v_cvt_pk_bf16_f32 v{d}, 0, v{sreg}")
def lg2(x): return x.bit_length() - 1
def split2(k, sb, sA, sB, nA_per, nB_total, t0, t1):
    A_total = 256 // nB_total; NA = A_total // nA_per
    k(f"s_and_b32 s{t0}, s{sb}, 7"); k(f"s_lshr_b32 s{t1}, s{sb}, 3")
    k(f"s_and_b32 s{sA}, s{t0}, {NA-1}"); k(f"s_lshl_b32 s{sA}, s{sA}, {lg2(nA_per)}")
    k(f"s_and_b32 s{sB}, s{t1}, {nA_per-1}"); k(f"s_add_u32 s{sA}, s{sA}, s{sB}")
    k(f"s_lshr_b32 s{sB}, s{t0}, {lg2(NA)}"); k(f"s_lshl_b32 s{sB}, s{sB}, {lg2(32//nA_per)}")
    k(f"s_lshr_b32 s{t1}, s{t1}, {lg2(nA_per)}"); k(f"s_add_u32 s{sB}, s{sB}, s{t1}")
def lane_tr_parts(k, lane, r, c2, gn, h, tmp):
    k(f"v_bfe_u32 v{r}, v{lane}, 2, 2")
    k(f"v_and_b32 v{c2}, 1, v{lane}"); k(f"v_lshlrev_b32 v{c2}, 1, v{c2}")
    k(f"v_bfe_u32 v{tmp}, v{lane}, 1, 1"); k(f"v_or_b32 v{c2}, v{c2}, v{tmp}")
    k(f"v_bfe_u32 v{gn}, v{lane}, 4, 1")
    k(f"v_lshrrev_b32 v{h}, 5, v{lane}")

QS = CS * LOG2E
GK0 = 2 * math.sqrt(2 / math.pi) * LOG2E
GSC = (GK0 * 0.044715) ** (1 / 3)
KNAME = "adaLN_cond__sliding_block_cached__geglu_ffn__prompt_kernel"
def ln_stats(k, XF):
    k(f"v_pk_add_f32 v[10:11], {v(XF,2)}, {v(XF+2,2)}")
    for e in range(4, 16, 2): k(f"v_pk_add_f32 v[10:11], v[10:11], {v(XF+e,2)}")
    k("v_add_f32 v10, v10, v11")
    def allreduce(off):
        rowsum_8(k, 10, 11)
        k(f"ds_write_b32 v9, v10 offset:{off}", token="w"); k.wait("w"); k("s_barrier")
        k(f"ds_read_b128 {v(12,4)}, v8 offset:{off}")
        k("v_add_f32 v12, v12, v13"); k("v_add_f32 v14, v14, v15"); k("v_add_f32 v10, v12, v14")
    allreduce(0)
    k(f"v_mul_f32 v58, {f32(-1/512)}, v10"); k("v_mov_b32 v59, v58")
    for e in range(0, 16, 2): k(f"v_pk_add_f32 {v(XF+e,2)}, {v(XF+e,2)}, v[58:59]")
    k(f"v_pk_mul_f32 v[10:11], {v(XF,2)}, {v(XF,2)}")
    for e in range(2, 16, 2): k(f"v_pk_fma_f32 v[10:11], {v(XF+e,2)}, {v(XF+e,2)}, v[10:11]")
    k("v_add_f32 v10, v10, v11")
    allreduce(128)
    k(f"v_mov_b32 v11, {f32(1e-5)}"); k(f"v_fmac_f32 v11, {f32(1/512)}, v10")
    k("v_rsq_f32 v56, v11"); k("v_mov_b32 v57, v56")

def gen_ln2():
    k = Kernel("ln2_kernel", 256, 256, 256, vgpr=160, sgpr=64)
    k("s_cmp_ge_u32 s2, 256"); k("s_cbranch_scc1 END_ln2")
    stamp_begin(k)
    k(f"s_load_dwordx2 s[4:5], s[0:1], {A_X}")
    k(f"s_load_dwordx2 s[6:7], s[0:1], {A_WS}")
    k("v_and_b32 v1, 7, v0"); k("v_lshrrev_b32 v2, 3, v0"); k("v_lshrrev_b32 v6, 6, v0")
    k("v_and_b32 v7, 7, v2"); k("v_lshl_add_u32 v7, v6, 4, v7")
    k("v_lshlrev_b32 v3, 9, v7"); k("v_lshl_add_u32 v3, v1, 4, v3")
    k("v_add_u32 v2, 4096, v3")
    k("v_lshlrev_b32 v4, 10, v1"); k("v_lshl_add_u32 v4, v7, 4, v4")
    k("v_lshlrev_b32 v5, 5, v7")
    k("v_lshlrev_b32 v8, 4, v1"); k("v_lshl_add_u32 v9, v6, 2, v8")
    k("s_and_b32 s25, s2, 7"); k("s_lshl_b32 s25, s25, 5"); k("s_lshr_b32 s26, s2, 3"); k("s_add_u32 s25, s25, s26")
    k("s_lshl_b32 s20, s25, 13")
    k("s_lshr_b32 s21, s25, 2"); k("s_lshl_b32 s21, s21, 15"); k("s_and_b32 s22, s25, 3"); k("s_lshl_b32 s22, s22, 7")
    k("s_add_u32 s21, s21, s22")
    k(f"s_add_u32 s23, s21, {WS_P:#x}")
    k.srd(12, 6, WS_BYTES)
    X = 16; XF = 24; MV = 40; PB = 64
    for g in range(8):
        for i in range(2):
            k(f"buffer_load_dwordx4 {v(PB+8*g+4*i,4)}, v{3-i}, s[12:15], s23 offen" + (" nt" if P["PNT"] else ""))
        if g < 7: k("s_add_u32 s23, s23, 0x200000")
    k.srd(8, 4, 2048 * 1024)
    for i in range(2): k(f"buffer_load_dwordx4 {v(X+4*i,4)}, v4, s[8:11], s20 offen offset:{128*i}")
    k("v_mov_b32 v10, 0"); k("s_lshl_b32 s27, s2, 7"); k(f"s_add_u32 s27, s27, {WS_FL:#x}")
    k("buffer_store_dword v10, v10, s[12:15], s27 offen sc1")
    k("s_mov_b32 s24, 0xffff0000")
    def load_mod(base, m):
        k(f"s_mov_b32 s23, {WS_MOD + m*2048}")
        for i in range(2):
            for hh in range(2):
                k(f"buffer_load_dwordx4 {v(base+8*i+4*hh,4)}, v5, s[12:15], s23 offen offset:{256*i+16*hh}")
    def unpack(dst, src):
        k(f"v_lshlrev_b32 v{dst}, 16, v{src}"); k(f"v_and_b32 v{dst+1}, s24, v{src}")
    load_mod(MV, 2); load_mod(128, 4); load_mod(144, 3)
    for q in range(8): unpack(XF + 2 * q, PB + q)
    for g in range(1, 8):
        for q in range(8):
            unpack(10 + 2 * (q & 1), PB + 8 * g + q)
            k(f"v_pk_add_f32 {v(XF+2*q,2)}, {v(XF+2*q,2)}, {v(10+2*(q&1),2)}")
    for q in range(8):
        unpack(10, X + q)
        k(f"v_pk_fma_f32 v[10:11], {v(XF+2*q,2)}, {v(MV+2*q,2)}, v[10:11]")
        k(f"v_cvt_pk_bf16_f32 v{X+q}, v10, v11")
        unpack(XF + 2 * q, X + q)
    k(f"s_add_u32 s23, s21, {WS_X1:#x}")
    for i in range(2): k(f"buffer_store_dwordx4 {v(X+4*i,4)}, v{3-i}, s[12:15], s23 offen sc1")
    stamp(k, "x1")
    ln_stats(k, XF)
    stamp(k, "stats")
    for e in range(0, 16, 2):
        k(f"v_pk_mul_f32 {v(XF+e,2)}, {v(XF+e,2)}, v[56:57]")
        k(f"v_pk_fma_f32 {v(XF+e,2)}, {v(XF+e,2)}, {v(128+e,2)}, {v(144+e,2)}")
        k(f"v_cvt_pk_bf16_f32 v{MV+e//2}, v{XF+e}, v{XF+e+1}")
    k(f"s_add_u32 s23, s21, {WS_H2:#x}")
    for i in range(2): k(f"buffer_store_dwordx4 {v(MV+4*i,4)}, v{3-i}, s[12:15], s23 offen sc1")
    stamp_flush(k, 1)
    k.label("END_ln2"); k("s_endpgm")
    return k

def put(k, seq):
    for x in seq:
        if isinstance(x, list): put(k, x)
        elif callable(x): x()
        else: k(x)

def warm(k, sW):
    k.stub_offs = {1: [0], 2: [0, 128], 3: [0, 2048], 4: [0, 1024, 2048, 3072]}[P["WOFF"]]; k.stub_end = "END_attn"
    k("s_mov_b64 exec, 0")
    for w in range(3): k(f"s_cmp_eq_u32 s{sW}, {w}"); k(f"s_cbranch_scc1 STUB{w}")
    k("s_branch STUB3")
    k.label("WARM_RET")
    k("s_mov_b64 exec, -1")

def gen_attn():
    k = Kernel(KNAME, 256, 256, 163840, vgpr=256, agpr=256, sgpr=82)
    k.denorm32 = P.get("DEN", 3)
    L_K, L_H, L_V, L_W, L_M = 0, 32768, 32768, 98304, 16384
    ACC = 0; S = 0; CI = 64; Q = 128
    VK = 192; VV = 200; VW = 204; VDW = 208; VDK = 212; VDV = 214; VLIN = 215; VL16 = 216
    LS = 217; VLO = 219
    T = 220
    LN_, ROWL, GR16 = T, T + 1, T + 2
    r_, c2, gn, h_, tm = T + 3, T + 4, T + 5, T + 6, T + 7
    CH8 = T + 10; HW = T + 11
    VX = T + 13; VM = T + 15
    MX = T + 16
    STT = T + 24
    RL = T + 28; UT = T + 28
    O = 0; FR = 128; AF = 128; BF = 160
    sW, sG, sRB, sT0, sT1, sRING, sST, sFB, sROT, sT2 = 28, 29, 30, 32, 33, 34, 35, 39, 50, 51
    sE0, sE1, sE2 = 61, 62, 63
    sO0, sO1, sO2, sW2K, sW256, sKhi, sMASK, sCC, sR8 = 36, 37, 38, 52, 54, 55, 58, 59, 6
    TAB = 72
    def L(f, cost=4, mem=False):
        f.cost = cost; f.mem = mem; return f
    k("s_cmp_ge_u32 s2, 256"); k("s_cbranch_scc1 END_attn")
    stamp_begin(k)
    k(f"s_mov_b32 s{sFB}, 0")
    if P["PREFC"]:
        k("s_getpc_b64 s[56:57]")
        k.label("PCREF")
        k(f"s_lshr_b32 s{sT1}, s2, 3"); k(f"s_lshl_b32 s{sT1}, s{sT1}, 12")
        k("v_lshlrev_b32 v108, 4, v0"); k(f"v_add_u32 v108, s{sT1}, v108"); k("v_min_u32 v108, CODE_END-PCREF-16, v108")
        k("global_load_dwordx4 a[252:255], v108, s[56:57]")
    wave_id(k, sW, T)
    k(f"v_and_b32 v{LN_}, 63, v0")
    k.label("RESTART")
    k(f"s_load_dwordx4 s[8:11], s[0:1], {A_C}")
    k(f"s_load_dwordx2 s[4:5], s[0:1], {A_X}")
    k(f"s_load_dwordx4 s[68:71], s[0:1], {A_DBG}")
    k(f"s_load_dwordx8 s[40:47], s[0:1], {A_K}")
    if P["TOUCH"]:
        k(f"s_load_dwordx4 s[84:87], s[0:1], {A_WG}"); k(f"s_load_dwordx2 s[88:89], s[0:1], {A_WD}"); k(f"s_load_dwordx2 s[90:91], s[0:1], {A_OUT}")
    L_R = L_M + 4096
    PSC = "sc1"
    GW, GC, GA = 64, 80, 88
    k(f"v_lshl_add_u32 v99, s{sW}, 6, v{LN_}")
    k("v_and_b32 v100, 1, v99"); k("v_lshrrev_b32 v101, 1, v99")
    k("v_mul_u32_u24 v102, 6144, v101"); k("v_lshl_add_u32 v102, v100, 4, v102"); k("v_lshlrev_b32 v103, 1, v101")
    k("v_lshrrev_b32 v104, 4, v99"); k("v_lshlrev_b32 v104, 6, v104"); k("v_lshl_add_u32 v104, v100, 5, v104")
    sSL = 7; sPR = 53
    k(f"s_lshr_b32 s{sT1}, s2, 3")
    RM = P["ROLE"]
    if RM == 0:
        k(f"s_and_b32 s{sT0}, s2, 7")
        k(f"s_lshl_b32 s{sSL}, s{sT0}, 3"); k(f"s_add_u32 s{sSL}, s{sSL}, s{sT1}")
        k(f"s_lshl_b32 s{sT2}, s{sT0}, 4"); k(f"s_add_u32 s{sT2}, s{sT2}, s{sT1}"); k(f"s_add_u32 s{sT2}, s{sT2}, 56")
        k("s_cmp_lt_u32 s2, 64"); k(f"s_cselect_b32 s{sSL}, s{sSL}, s{sT2}")
        k("s_cmp_lt_u32 s2, 192"); k(f"s_cselect_b32 s{sSL}, s{sSL}, 255")
    elif RM in (1, 2):
        k(f"s_bfe_u32 s{sT0}, s2, 0x20001")
        k(f"s_lshl_b32 s{sSL}, s{sT0}, 4"); k(f"s_add_u32 s{sSL}, s{sSL}, s{sT1}")
        k(f"s_cmp_lt_u32 s{sT1}, 16"); k(f"s_cselect_b32 s{sSL}, s{sSL}, 255")
        k(f"s_lshl_b32 s{sT2}, s{sT0}, 5"); k(f"s_add_u32 s{sT2}, s{sT2}, s{sT1}"); k(f"s_add_u32 s{sT2}, s{sT2}, 64")
        k("s_bitcmp1_b32 s2, 0")
        k(f"s_cselect_b32 s{sSL}, s{sSL}, s{sT2}" if RM == 1 else f"s_cselect_b32 s{sSL}, s{sT2}, s{sSL}")
    else:
        k(f"s_bfe_u32 s{sT0}, s2, 0x20001"); k(f"s_and_b32 s{sT2}, s{sT1}, 15")
        k(f"s_lshl_b32 s{sSL}, s{sT0}, 4"); k(f"s_add_u32 s{sSL}, s{sSL}, s{sT2}")
        k(f"s_lshr_b32 s{sT2}, s{sT1}, 4"); k(f"s_and_b32 s{sT0}, s2, 1"); k(f"s_lshl_b32 s{sT0}, s{sT0}, 1"); k(f"s_add_u32 s{sT2}, s{sT2}, s{sT0}")
        k(f"s_lshl_b32 s{sT2}, s{sT2}, 6"); k(f"s_add_u32 s{sSL}, s{sSL}, s{sT2}")
    k(f"s_cmp_lt_u32 s{sSL}, 64")
    k(f"s_cselect_b32 s{sPR}, s{sFB}, 1")
    k(f"s_lshl_b32 s31, s{sSL}, 5")
    k(f"v_lshlrev_b32 v{VL16}, 4, v{LN_}")
    G = P["G"]
    NG = 8 // G; NS = 32 // G
    k(f"s_and_b32 s{sG}, s2, {NG-1}"); k(f"s_lshl_b32 s{sG}, s{sG}, {lg2(G)}"); k(f"s_lshr_b32 s{sT0}, s2, {3+lg2(NS)}"); k(f"s_add_u32 s{sG}, s{sG}, s{sT0}")
    k(f"s_bfe_u32 s{sROT}, s2, {3 | (lg2(NS) << 16):#x}")
    k(f"s_and_b32 s{sRB}, s2, 7"); k(f"s_lshr_b32 s{sRB}, s{sRB}, {lg2(NG)}"); k(f"s_lshl_b32 s{sRB}, s{sRB}, {lg2(NS)}"); k(f"s_add_u32 s{sRB}, s{sRB}, s{sROT}")
    k(f"s_lshl_b32 s{sROT}, s{sROT}, {lg2(G)}")
    k(f"s_and_b32 s{sR8}, s{sROT}, 7"); k(f"s_lshr_b32 s{sCC}, s{sROT}, 3")
    RR, CGL = tm, tm + 1
    k(f"v_bfe_u32 v{RR}, v{LN_}, 2, 3")
    k(f"v_lshrrev_b32 v{CGL}, 5, v{LN_}"); k(f"v_lshlrev_b32 v{CGL}, 2, v{CGL}"); k(f"v_and_or_b32 v{CGL}, v{LN_}, 3, v{CGL}")
    k(f"v_lshlrev_b32 v{VX}, 10, v{RR}"); k(f"v_lshl_add_u32 v{VX}, v{CGL}, 4, v{VX}"); k(f"v_add_u32 v{VX+1}, 8192, v{VX}")
    XS = [48, 49, 56, 57]
    k(f"s_lshl_b32 s48, s{sRB}, 16"); k(f"s_lshl_b32 s{sT2}, s{sW}, 8"); k(f"s_add_u32 s48, s48, s{sT2}")
    for c in range(1, 4): k(f"s_add_u32 s{XS[c]}, s48, {16384*c}")
    XP = 128
    xl = [f"buffer_load_dwordx4 {v(XP+8*o+4*cb,4)}, v{VX+(o&1)}, s[16:19], s{XS[o>>1]} offen offset:{128*cb}" for o in range(8) for cb in range(2)]
    k.srd(12, 10, 512 * 6144); k.srd(20, 8, 1024); k.srd(16, 4, 2048 * 1024)
    def gemv_loads(late=False):
        k(f"s_mov_b32 s{sT0}, s31")
        for i in range(4):
            k(f"buffer_load_dwordx4 {a(224+4*i,4) if late else v(GW+4*i,4)}, v102, s[12:15], s{sT0} offen")
            if i < 3: k(f"s_add_u32 s{sT0}, s{sT0}, {128*6144}")
    for i in range(4): k(f"buffer_load_ushort v{GC+i}, v103, s[20:23], 0 offen offset:{256*i}")
    k.srd(24, 70, WS_BYTES)
    k(f"s_lshl_b32 s{sE2}, s{sW}, 10"); k(f"s_add_u32 s{sE2}, s{sE2}, {WS_GO:#x}")
    k(f"v_lshrrev_b32 v{MX+5}, 5, v{LN_}"); k(f"v_lshlrev_b32 v{MX+4}, 7, v{RR}"); k(f"v_lshl_add_u32 v{MX+4}, v{MX+5}, 12, v{MX+4}")
    k(f"v_and_b32 v{MX+5}, 3, v{LN_}"); k(f"v_lshl_add_u32 v{MX+4}, v{MX+5}, 4, v{MX+4}")
    k(f"buffer_load_dwordx4 {v(MX,4)}, v{MX+4}, s[24:27], s{sE2} offen sc1")
    k(f"v_lshlrev_b32 v109, 2, v{LN_}"); k(f"s_lshl_b32 s{sE1}, s{sSL}, 7"); k(f"s_add_u32 s{sE1}, s{sE1}, {WS_GO:#x}")
    k(f"buffer_load_dword v110, v109, s[24:27], s{sE1} offen sc1")
    k(f"s_xor_b32 s{sE0}, s{sW}, 3"); k(f"s_or_b32 s{sE0}, s{sE0}, s{sFB}")
    k(f"s_cmp_lg_u32 s{sE0}, 0"); k("s_cbranch_scc1 NOZERO")
    k(f"v_lshlrev_b32 v111, 15, v{LN_}"); k("v_mov_b32 v107, 0"); k(f"s_lshl_b32 s{sT0}, s2, 7"); k(f"s_add_u32 s{sT0}, s{sT0}, {WS_FL:#x}")
    k("s_mov_b64 exec, 15")
    k(f"buffer_store_dword v107, v111, s[24:27], s{sT0} offen sc1")
    k("s_mov_b64 exec, -1")
    k.label("NOZERO")
    k.vm = {kk: max(p - 1, 0) for kk, p in k.vm.items()}
    k(f"s_cmp_eq_u32 s{sPR}, 0"); k("s_cbranch_scc1 PLOAD")
    s_a = (dict(k.vm), dict(k.lg))
    if P["TOUCH"]:
        k(f"s_cmp_lt_u32 s2, {P['TOUCH']}"); k("s_cbranch_scc1 NOTOUCH")
        k(f"s_lshl_b32 s92, s{sW}, 20"); k(f"s_and_b32 s93, s92, 0x100000")
        k.auto = False
        for base in (44, 40, 42, 46): k(f"s_load_dword s81, s[{base}:{base+1}], s92")
        for base in (84, 86, 88, 90): k(f"s_load_dword s81, s[{base}:{base+1}], s93")
        for i in range(8):
            k(f"s_load_dword s81, s[70:71], s92"); k("s_add_u32 s92, s92, 0x400000")
        k.auto = True
        k.label("NOTOUCH")
        k.sgpr = max(k.sgpr, 94)
    put(k, xl)
    s_b = dict(k.vm)
    k("s_branch PJOIN")
    k.label("PLOAD")
    k.vm = dict(s_a[0])
    gemv_loads()
    k.label("PJOIN")
    k.vm = k._merge(k.vm, s_b)
    k(f"s_lshl_b32 s{sW256}, s{sW}, 8"); k(f"s_lshl_b32 s{sW2K}, s{sW}, 11")
    k(f"v_lshrrev_b32 v{ROWL}, 4, v{LN_}")
    k(f"v_and_b32 v{r_}, 15, v{LN_}"); k(f"v_lshlrev_b32 v{GR16}, 2, v{ROWL}"); k(f"v_xor_b32 v{GR16}, v{GR16}, v{r_}")
    k(f"v_lshlrev_b32 v{GR16}, 4, v{GR16}")
    def w_voffs(psh, scol):
        return [f"v_lshl_add_u32 v{VDW}, v{ROWL}, {psh}, v{GR16}", f"v_add_u32 v{VDW}, s{scol}, v{VDW}"] + \
               [f"v_add_u32 v{VDW+n}, {n*((4<<psh)-1024)}, v{VDW}" for n in range(1, 4)]
    k(f"s_lshl_b32 s{sT0}, s{sG}, 10"); k(f"s_add_u32 s{sT0}, s{sT0}, s{sW256}")
    put(k, w_voffs(13, sT0))
    k(f"s_lshl_b32 s{sRING}, s{sW}, 14"); k(f"s_add_u32 s{sRING}, s{sRING}, {L_W}")
    for p in range(8):
        k(f"s_add_u32 s{TAB+p}, s{sR8}, {p}"); k(f"s_and_b32 s{TAB+p}, s{TAB+p}, 7"); k(f"s_lshl_b32 s{TAB+p}, s{TAB+p}, 17")
    k(f"s_lshl_b32 s{sKhi}, s{sCC}, 20")
    k.srd(8, 44, 512 * 8192)
    def w_dma(step, which):
        slot = step % 4
        if which == "Q":
            srd = 8
            pre = [f"s_add_u32 s{sT0}, s{sKhi}, s{TAB+step%8}"]
            adv = [[f"s_add_u32 s{sKhi}, s{sKhi}, 0x100000", f"s_and_b32 s{sKhi}, s{sKhi}, 0x3fffff"]] if step % 8 == 7 else []
        else:
            srd = 20
            pre = [f"s_add_u32 s{sT0}, s{TAB+step%8}, {(2*(step//8))<<14}"]
            adv = []
        o = [pre + [f"s_add_u32 m0, s{sRING}, {4096*slot}"]] + adv + [f"buffer_load_dwordx4 v{VDW}, s[{srd}:{srd+3}], s{sT0} offen lds"]
        for n in range(1, 4):
            o.append(L(lambda n=n: k(f"buffer_load_dwordx4 v{VDW+n}, s[{srd}:{srd+3}], s{sT0} offen offset:{1024*n} lds", token=f"W{slot}"), 10, "v"))
        return o
    k(f"v_lshrrev_b32 v{r_}, 1, v{CGL}"); k(f"v_subrev_u32 v{r_}, s{sR8}, v{r_}")
    k(f"v_and_b32 v{c2}, 1, v{CGL}"); k(f"v_and_b32 v{gn}, 1, v{r_}"); k(f"v_lshl_add_u32 v{gn}, v{gn}, 1, v{c2}"); k(f"v_lshlrev_b32 v{gn}, 1, v{gn}")
    k(f"v_xor_b32 v{gn}, v{gn}, v{RR}")
    k(f"v_lshlrev_b32 v{c2}, 9, v{c2}"); k(f"v_lshl_add_u32 v{c2}, v{gn}, 4, v{c2}")
    k(f"s_sub_u32 s{sT1}, s{sW}, s{sCC}"); k(f"s_and_b32 s{sT1}, s{sT1}, 3"); k(f"s_lshl_b32 s{sT1}, s{sT1}, 13")
    k(f"s_add_u32 s{sT1}, s{sT1}, {L_H}"); k(f"v_add_u32 v{c2}, s{sT1}, v{c2}")
    for cb in range(2):
        k(f"v_add_u32 v{gn}, {4*cb}, v{r_}"); k(f"v_and_b32 v{gn}, 7, v{gn}"); k(f"v_lshl_add_u32 v{HW+cb}, v{gn}, 10, v{c2}")
    k(f"s_lshl_b32 s{sT2}, s{sW}, 10"); k(f"v_lshlrev_b32 v{VM}, 5, v{CGL}"); k(f"v_add_u32 v{VM}, s{sT2}, v{VM}")
    k(f"v_lshrrev_b32 v{UT+4}, 2, v{LN_}"); k(f"v_lshlrev_b32 v{UT+4}, 6, v{UT+4}"); k(f"v_add_u32 v{UT+4}, s{sT2}, v{UT+4}")
    k(f"v_lshlrev_b32 v{UT+5}, 6, v{RR}"); k(f"v_lshl_add_u32 v{UT+7}, s{sW}, 9, v{UT+5}"); k(f"v_lshl_add_u32 v{UT+5}, v{CGL}, 3, v{UT+5}")
    k(f"v_lshl_add_u32 v{UT+6}, v{CGL}, 3, v{UT+7}")
    lane_tr_parts(k, LN_, r_, c2, gn, h_, tm)
    k(f"v_lshl_add_u32 v{CH8}, v{gn}, 2, v{c2}"); k(f"v_lshlrev_b32 v{CH8}, 3, v{CH8}")
    k(f"v_lshl_add_u32 v{tm}, v{h_}, 3, v{r_}"); k(f"v_lshl_add_u32 v{tm}, v{tm}, 8, v{CH8}"); k(f"v_add_u32 v{tm}, s{sRING}, v{tm}")
    for a_ in range(4):
        k(f"v_xor_b32 v{tm+1}, {a_}, v{r_}"); k(f"v_lshl_add_u32 v{VW+a_}, v{tm+1}, 6, v{tm}")
    put(k, [f"v_lshl_add_u32 v{tm}, v{h_}, 2, v{r_}", f"v_lshl_add_u32 v{tm}, v{tm}, 8, v{CH8}", f"v_add_u32 v{tm}, {L_V}, v{tm}"])
    for dt in range(4): put(k, [f"v_xor_b32 v{tm+1}, {dt}, v{r_}", f"v_lshl_add_u32 v{VV+dt}, v{tm+1}, 6, v{tm}"])
    put(k, [f"v_and_b32 v{tm}, 31, v{LN_}", f"v_and_b32 v{tm+1}, 15, v{LN_}", f"v_xor_b32 v{tm+1}, v{tm+1}, v{h_}",
            f"v_lshlrev_b32 v{tm}, 8, v{tm}", f"v_lshl_add_u32 v{VK}, v{tm+1}, 4, v{tm}"])
    put(k, [f"v_xor_b32 v{VK+s_}, {s_*32}, v{VK}" for s_ in range(1, 8)])
    put(k, [f"v_mov_b32 v{LS}, 0", f"v_mov_b32 v{LS+1}, 0",
        f"v_lshl_add_u32 v{VDV}, v{ROWL}, 8, v{GR16}", f"s_and_b32 s{sT1}, s{sW}, 1", f"s_lshl_b32 s{sT1}, s{sT1}, 3",
        f"v_or_b32 v{tm}, s{sT1}, v{ROWL}", f"v_and_b32 v{tm+1}, 15, v{LN_}", f"v_xor_b32 v{tm}, v{tm}, v{tm+1}",
        f"v_lshlrev_b32 v{VDK}, 8, v{ROWL}", f"v_lshl_add_u32 v{VDK}, v{tm}, 4, v{VDK}", f"v_xor_b32 v{VDK+1}, 64, v{VDK}",
        f"s_lshl_b32 s{sT1}, s{sG}, 19", f"s_add_u32 s{sT1}, s{sT1}, s{sW2K}", f"s_add_u32 s{sT1}, s{sT1}, {1536*256}",
        f"v_add_u32 v{VDK}, s{sT1}, v{VDK}", f"v_add_u32 v{VDK+1}, s{sT1}, v{VDK+1}", f"v_add_u32 v{VDV}, s{sT1}, v{VDV}",
        f"v_lshlrev_b32 v{tm}, 5, v{h_}", f"v_xor_b32 v{VLIN}, v{tm}, v{VL16}", f"v_add_u32 v{VLIN}, {L_H}, v{VLIN}", f"v_xor_b32 v{VLO}, 64, v{VLIN}",
        f"s_mov_b32 s{sMASK}, 0xffff0000"])
    def nxt(d, s_): return [f"s_add_u32 s{d}, s{s_}, 8192", f"s_and_b32 s{d}, s{d}, 0x1ffff"]
    def kv_dma(which, lds_off, so):
        srd = 12 if which == "K" else 16
        return [f"s_add_u32 m0, s{sW2K}, {lds_off}", f"buffer_load_dwordx4 v{VDK if which=='K' else VDV}, s[{srd}:{srd+3}], s{so} offen lds",
                L(lambda: k(f"buffer_load_dwordx4 v{VDK+1 if which=='K' else VDV}, s[{srd}:{srd+3}], s{so} offen offset:1024 lds", token=which), 10, "v")]
    kinit = [[f"s_lshr_b32 s{sO0}, s{sROT}, 1", f"s_lshl_b32 s{sO0}, s{sO0}, 13"] + nxt(sO1, sO0) + nxt(sO2, sO1)]
    kfirst = [kv_dma("K", L_K + 16384 + 8192, sO0), kv_dma("K", L_K, sO1), kv_dma("K", L_K + 8192, sO2)]
    k.srd(20, 68, 256)
    def gemv_compute(lo, hi, tag, late):
        k(f"s_sub_u32 s{sT0}, s{sSL}, {lo}"); k(f"s_cmp_ge_u32 s{sT0}, {hi-lo}"); k(f"s_cselect_b32 s{sT0}, 1, s{sFB}"); k(f"s_cmp_lg_u32 s{sT0}, 0"); k("s_cbranch_scc1 NOGEMV" + tag)
        st0 = (dict(k.vm), dict(k.lg))
        GW, GC, GA, SC_, U_, AW_, AR_ = (160, 176, 180, 144, 188, 152, 153) if late else (64, 80, 88, 112, 120, 104, 105)
        if late:
            for i in range(20): k(f"v_accvgpr_read_b32 v{GW+i}, a{224+i}")
            k(f"v_accvgpr_read_b32 v{AW_}, a244")
        D = P.get("DG") == 1 and not late
        if D: stamp(k, "g_in"); k.wait_regs(v(GW, 20)); stamp(k, "g_data")
        k(f"s_mov_b32 s{sT1}, {f32(-LOG2E)}")
        for i in range(4): k(f"v_lshlrev_b32 v{GC+i}, 16, v{GC+i}")
        for i in range(4): k(f"v_mul_f32 v{GA+i}, s{sT1}, v{GC+i}")
        for i in range(4): k(f"v_exp_f32 v{GA+i}, v{GA+i}")
        for i in range(4): k(f"v_add_f32 v{GA+i}, 1.0, v{GA+i}")
        for i in range(4): k(f"v_rcp_f32 v{GA+i}, v{GA+i}")
        for i in range(4): k(f"v_mul_f32 v{GC+i}, v{GC+i}, v{GA+i}")
        for i in range(4): rnd(k, SC_ + 2 * i, GC + i)
        for i in range(4):
            for q in range(4):
                r = GW + 4 * i + q; u = U_ + 2 * (q & 1)
                k(f"v_lshlrev_b32 v{u}, 16, v{r}"); k(f"v_and_b32 v{u+1}, s{sMASK}, v{r}")
                if i == 0: k(f"v_pk_mul_f32 {v(GA+2*q,2)}, {v(u,2)}, {v(SC_+2*i,2)} op_sel_hi:[1,0]")
                else: k(f"v_pk_fma_f32 {v(GA+2*q,2)}, {v(u,2)}, {v(SC_+2*i,2)}, {v(GA+2*q,2)} op_sel_hi:[1,0,1]")
        for md in ("quad_perm:[2,3,0,1]", "row_ror:4", "row_ror:8"):
            for j in range(8): k(f"v_add_f32_dpp v{GA+j}, v{GA+j}, v{GA+j} {md} row_mask:0xf bank_mask:0xf")
        k(f"ds_write_b128 v{AW_}, {v(GA,4)} offset:{L_R}", token="w"); k(f"ds_write_b128 v{AW_}, {v(GA+4,4)} offset:{L_R+16}", token="w")
        k(f"v_lshlrev_b32 v{AR_}, 2, v{LN_}")
        k(f"s_lshr_b32 s{sT0}, s{sSL}, 5"); k(f"s_cmp_eq_u32 s{sT0}, 1"); k(f"s_cselect_b32 s{sT1}, 1.0, 0")
        k(f"s_cmp_eq_u32 s{sT0}, 4"); k(f"s_cselect_b32 s{sT1}, 1.0, s{sT1}")
        k(f"s_cmp_lt_u32 s{sT0}, 2"); k(f"s_cselect_b32 s{sT2}, {f32(QS)}, 1.0")
        if P["GS"] and late:
            k(f"s_cmp_ge_u32 s{sT0}, 3"); k(f"s_cselect_b32 s{sT2}, {f32(GSC)}, s{sT2}")
            k(f"s_cmp_eq_u32 s{sT0}, 5"); k(f"s_cselect_b32 s{sT2}, {f32(1/GSC**2)}, s{sT2}")
        k(f"s_lshl_b32 s{sT0}, s{sSL}, 6")
        k.wait("w"); k("s_barrier")
        k(f"s_cmp_lg_u32 s{sW}, 3"); k("s_cbranch_scc1 " + ("NOGEMV" + tag if late else "PWAIT"))
        for i in range(4): k(f"ds_read_b32 v{GA+i}, v{AR_} offset:{L_R+256*i}")
        k(f"v_add_f32 v{GA}, v{GA}, v{GA+1}"); k(f"v_add_f32 v{GA+2}, v{GA+2}, v{GA+3}"); k(f"v_add_f32 v{GA}, v{GA}, v{GA+2}")
        k(f"v_mov_b32 v{GA+1}, v{GA}"); k(f"v_permlane16_swap_b32 v{GA}, v{GA+1}"); k(f"v_add_f32 v{GA}, v{GA}, v{GA+1}")
        k(f"v_mov_b32 v{GA+1}, v{GA}"); k(f"v_permlane32_swap_b32 v{GA}, v{GA+1}"); k(f"v_add_f32 v{GA}, v{GA}, v{GA+1}")
        rnd(k, GA, GA)
        k(f"v_add_f32 v{GA}, s{sT1}, v{GA}"); k(f"v_mul_f32 v{GA}, s{sT2}, v{GA}")
        if D: stamp(k, "g_red")
        k("s_mov_b64 exec, 0xffff")
        if not late:
            k("v_not_b32 v110, v110"); k(f"v_bfi_b32 v{GA}, 1, v110, v{GA}")
            k(f"buffer_store_dword v{GA}, v109, s[24:27], s{sE1} offen sc1")
            k("s_mov_b64 exec, -1")
            k.label("PWAIT")
            k("s_barrier")
            k.vm = {}
            put(k, xl)
            st0 = (k._merge(st0[0], k.vm), None)
        else:
            k(f"buffer_store_dword v{GA}, v{AR_}, s[24:27], s{sT0} offen sc1")
            k("s_mov_b64 exec, -1")
        k.label("NOGEMV" + tag)
        k.vm, k.lg = dict(st0[0]), {}
        k.smem_pending = late
    gemv_compute(0, 64, "A", False)
    stamp(k, "gemv")
    if P["WARM"] == 1: warm(k, sW)
    k("s_mov_b32 s3, 0x3f803f80")
    k(f"s_load_dwordx4 s[64:67], s[0:1], {A_WG}"); k(f"s_load_dwordx2 s[4:5], s[0:1], {A_WD}")
    ASET = {"Q": [AF, AF + 16], "O": [AF, AF + 16]}
    def aset(which, step): return ASET[which][step % len(ASET[which])]
    def a_reads(step, which="O"):
        slot = step % 4; b_ = aset(which, step)
        rd = [f"ds_read_b64_tr_b16 {a(b_+4*a_+2*u,2)}, v{VW+a_} offset:{4096*slot+1024*u}" for a_ in range(4) for u in range(2)]
        return [[L(lambda: k.wait(f"W{slot}")), rd[0]]] + rd[1:]
    N0 = P["N0"]
    if P.get("DG") == 2: stamp(k, "iss"); k.wait_regs(v(0, 16), v(128, 48)); stamp(k, "xarr")
    for i in range(4): k(f"v_accvgpr_write_b32 a{240+i}, v{GC+i}")
    k("v_accvgpr_write_b32 a244, v104")
    for o in range(8):
        if o == 4:
            k.wait_regs(v(XP, 64))
            put(k, [w_dma(s_, "Q") for s_ in range(P["WPRE"])])
            k(f"s_sub_u32 s{sT0}, s{sSL}, 64"); k(f"s_cmp_ge_u32 s{sT0}, 128"); k("s_cbranch_scc1 NOLATE")
            s_c = dict(k.vm)
            gemv_loads(True)
            k.label("NOLATE")
            k.vm = k._merge(k.vm, s_c)
            k.srd(12, 40, 8 * 2048 * 256)
        for j in range(8):
            x = XP + 8 * o + j
            k(f"v_dot2_f32_bf16 v{2*o}, v{x}, s3, {'0' if j == 0 else 'v%d' % (2*o)}")
            k(f"v_dot2_f32_bf16 v{2*o+1}, v{x}, v{x}, {'0' if j == 0 else 'v%d' % (2*o+1)}")
    k("s_nop 2")
    for md in ("quad_perm:[1,0,3,2]", "quad_perm:[2,3,0,1]"):
        for x in range(16): k(f"v_add_f32_dpp v{x}, v{x}, v{x} {md} row_mask:0xf bank_mask:0xf")
    for q in range(4): k(f"ds_write_b128 v{UT+4}, {v(4*q,4)} offset:{L_K+16*q}", token="w")
    k.wait("w"); k("s_barrier")
    for p_ in range(8): k(f"ds_read_b64 {v(16+2*p_,2)}, v{UT+5} offset:{L_K+512*p_}")
    for st in (1, 2, 4):
        for p_ in range(0, 8, 2 * st): k(f"v_pk_add_f32 {v(16+2*p_,2)}, {v(16+2*p_,2)}, {v(16+2*(p_+st),2)}")
    k(f"v_mul_f32 v16, {f32(-1/512)}, v16"); k(f"v_mul_f32 v17, {f32(1/512)}, v17")
    k("v_fma_f32 v17, -v16, v16, v17"); k("v_max_f32 v17, 0, v17"); k(f"v_add_f32 v17, {f32(1e-5)}, v17"); k("v_rsq_f32 v17, v17")
    k("v_mul_f32 v16, v16, v17")
    k(f"ds_write_b64 v{UT+6}, v[16:17] offset:{L_K+4096}")
    for q in range(4): k(f"ds_read_b128 {v(112+4*q,4)}, v{UT+7} offset:{L_K+4096+16*q}")
    k(f"ds_read_b64 {v(STT,2)}, v{UT+7} offset:{L_K+4096+56}")
    for o in range(8):
        st = v(112 + 2 * o, 2) if o < 7 else v(STT, 2)
        for cb in range(2):
            x = XP + 8 * o + 4 * cb; u = 16 * o + 8 * cb
            for q in range(4): k(f"v_lshlrev_b32 v{u+2*q}, 16, v{x+q}"); k(f"v_and_b32 v{u+2*q+1}, s{sMASK}, v{x+q}")
        for q in range(8): k(f"v_pk_fma_f32 {v(16*o+2*q,2)}, {v(16*o+2*q,2)}, {st}, {st} op_sel:[0,1,0] op_sel_hi:[1,1,0]")
    gemv_compute(64, 192, "B", True)
    put(k, kinit)
    stamp(k, "stats")
    if P["WARM"] == 2: warm(k, sW)
    k.wait_all(vm=False)
    k(f"s_lshl_b32 s{sT1}, s{sFB}, 2"); k(f"s_sub_u32 s{sT1}, s{sT1}, s{sFB}")
    k(f"v_mov_b32 v{UT}, 0")
    k(f"s_mov_b32 s{sT2}, 0")
    k.label("POLL")
    k(f"s_add_u32 s{sT1}, s{sT1}, 1")
    k(f"s_and_b32 s{sT0}, s{sT1}, 3"); k("s_cbranch_scc1 POLLR")
    k(f"buffer_load_dword v{UT+1}, v{UT}, s[20:23], 0 offen sc1")
    k(f"v_readfirstlane_b32 s{sT0}, v{UT+1}")
    k(f"s_cmp_ge_u32 s{sT0}, 0x100"); k(f"s_cselect_b32 s{sT2}, 1, 0")
    k(f"s_cmp_gt_u32 s{sT1}, 0x8000"); k(f"s_cselect_b32 s{sT2}, 1, s{sT2}")
    k.label("POLLR")
    k(f"buffer_load_dwordx4 {v(160,4)}, v{MX+4}, s[24:27], s{sE2} offen sc1")
    k(f"v_xor_b32 v{UT+2}, v160, v{MX}")
    for j in range(1, 4): k(f"v_bitop3_b32 v{UT+2}, v{160+j}, v{MX+j}, v{UT+2} bitop3:0x28")
    k(f"v_and_b32 v{UT+2}, 1, v{UT+2}"); k(f"v_cmp_eq_u32 vcc, 0, v{UT+2}"); k("s_cmp_lg_u64 vcc, 0")
    k(f"s_cselect_b32 s{sT2}, s{sT2}, 1")
    k(f"s_cmp_lg_u32 s{sE0}, 0"); k("s_cbranch_scc1 NOARR")
    k("s_mov_b64 exec, 1"); k(f"v_mov_b32 v{UT+3}, 1")
    k(f"buffer_atomic_add v{UT+3}, v{UT}, s[20:23], 0 offen")
    k("s_mov_b64 exec, -1")
    k(f"s_mov_b32 s{sE0}, 1")
    k.label("NOARR")
    k(f"s_cmp_lg_u32 s{sT2}, 0"); k("s_cbranch_scc1 POLLED")
    if P["PFK"]:
        k(f"s_cmp_lg_u32 s{sT1}, 1"); k("s_cbranch_scc1 NOPFK")
        k("s_cmp_lt_u32 s2, 192"); k("s_cbranch_scc1 NOPFK")
        k.srd(64, 42, 8 * 2048 * 256)
        k(f"s_bfe_u32 s{sT0}, s2, 0x30003"); k(f"s_lshl_b32 s{sT0}, s{sT0}, 2"); k(f"s_add_u32 s{sT0}, s{sT0}, s{sW}"); k(f"s_lshl_b32 s{sT0}, s{sT0}, 12")
        k(f"s_and_b32 s3, s2, {NG-1}"); k(f"s_lshl_b32 s3, s3, {19+lg2(G)}"); k(f"s_add_u32 s{sT0}, s{sT0}, s3"); k(f"s_add_u32 s{sT0}, s{sT0}, {1536*256}")
        n = 0
        for gi in range(G):
            for srd in (12, 64)[:P["PFK"]]:
                for j in range(4): k(f"buffer_load_dwordx4 {a(4*n,4)}, v{VL16}, s[{srd}:{srd+3}], s{sT0} offen offset:{1024*j}"); n += 1
            k(f"s_add_u32 s{sT0}, s{sT0}, 0x80000")
        k.label("NOPFK")
    if P["SLEEP"]: k(f"s_sleep {P['SLEEP']}")
    k("s_branch POLL")
    k.label("POLLED")
    if P.get("DG"): stamp(k, "go")
    for j in range(4): k(f"v_and_b32 v{160+j}, -2, v{160+j}")
    k(f"s_lshl_b32 s{sT0}, s{sW}, 10"); k(f"v_add_u32 v{UT+1}, s{sT0}, v{VL16}")
    k(f"ds_write_b128 v{UT+1}, {v(160,4)} offset:{L_M}")
    for cb in range(2):
        for m_ in range(2):
            for q in range(2): k(f"ds_read_b128 {v(128+16*cb+8*m_+4*q,4)}, v{VM} offset:{L_M+512*(1-m_)+256*cb+16*q}")
    stamp(k, "poll")
    k.srd(20, 46, 4096 * 1024)
    put(k, a_reads(0, "Q"))
    for o in range(8):
        for cb in range(2):
            u = 16 * o + 8 * cb; cn = 128 + 16 * cb
            for q in range(4): k(f"v_pk_fma_f32 {v(u+2*q,2)}, {v(u+2*q,2)}, {v(cn+2*q,2)}, {v(cn+8+2*q,2)}")
            for q in range(4): k(f"v_cvt_pk_bf16_f32 v{u+q}, v{u+2*q}, v{u+2*q+1}")
        for cb in range(2): k(f"ds_write_b128 v{HW+cb}, {v(16*o+8*cb,4)} offset:{32768*(o>>2)+128*(o&3)}", token="hw")
    put(k, [w_dma(s_, "Q") for s_ in range(P["WPRE"], 4)])
    fr = lambda f: FR + 4 * (f % 8)
    def rdK(f, s_, off): return [f"ds_read_b128 {a(fr(f),4)}, v{VK+s_} offset:{off}"]
    def rdV(f, i, off): return [f"ds_read_b64_tr_b16 {a(fr(f)+2*u,2)}, v{VV+i%4} offset:{off+4096*(i//4)+2048*u}" for u in range(2)]
    def b_reads(step):
        return [f"ds_read_b128 {a(BF+8*(step%2)+4*rt,4)}, v{VLO if step & 1 else VLIN} offset:{1024*step+32768*rt}" for rt in range(2)]
    k.wait("hw"); k("s_barrier")
    stamp(k, "mod")
    for _ in range(P.get("DLY0", 0)): k("s_sleep 38")
    put(k, b_reads(0))
    def g_mfma(which, st):
        return [f"v_mfma_f32_32x32x16_bf16 {v(ACC+32*a_+16*rt,16)}, {a(aset(which,st)+4*a_,4)}, {a(BF+8*(st%2)+4*rt,4)}, {'0' if st == 0 else v(ACC+32*a_+16*rt,16)}"
                for a_ in range(4) for rt in range(2)]
    class Off:
        def __init__(s_, sc, o): s_.sc, s_.o = sc, o
        def pin(s_, g, x, end=False): s_.sc.pin(g + s_.o, x, end)
        def add(s_, ops, g0, g1, prio=0): s_.sc.add(ops, g0 + s_.o, g1 + s_.o, prio)
    def gemm(which, extra, nr, nd):
        sc = Sched(256)
        mf = []
        for st in range(32):
            if st + 1 < 32:
                sc.add(b_reads(st + 1), 8 * st + (1 if st % 8 == 7 else 0), 8 * st + 4, prio=1)
                sc.pin(8 * st + 7, L(lambda st=st: k.wait_regs(a(aset(which, st + 1), 16), a(BF + 8 * ((st + 1) % 2), 8))), end=True)
            mf += g_mfma(which, st)
        R = len(ASET[which])
        g0 = 0
        td = {}
        first = [j for j in range(nd, min(nr + 4, 32))]
        pd = 8
        for i, j in enumerate(first):
            sc.add(w_dma(j, which), pd * i, pd * (i + 1)); td[j] = pd * (i + 1)
        tstart = max(pd * len(first) - (pd if first else 0), 8 * (nr - R + 1), 0)
        if first and nr in td: tstart = max(tstart, td[nr] + 12)
        nun = 32 - nr
        tr = {j: int(tstart + (j - nr) * (240 - tstart) / (nun - 1)) for j in range(nr, 32)}
        for j in range(nr, 32):
            assert tr[j] >= 8 * (j - R + 1) and tr[j] <= 8 * (j - 1), (j, tr[j])
            sc.add(a_reads(j, which), tr[j], tr[j] + P['QRW'], prio=1)
            if j + 4 < 32 and j + 4 >= nd and j + 4 not in td:
                lo = max(tr[j + 1], max(td.values()) if td else 0); hi = max(tr[j + 2], lo + 6)
                sc.add([L(lambda j=j: k.wait_regs(a(aset(which, j), 16)))] + w_dma(j + 4, which), lo, hi); td[j + 4] = hi
        sc.last_dma = max(td.values())
        for c in range(4): extra(c)(Off(sc, 64 * c), sc.last_dma - 192)
        i0 = len(k.items)
        for g_, (m, f_) in enumerate(zip(mf, sc.run())):
            k(m); put(k, f_)
            if P.get("PADQ") and g_ < P.get("PADQN", 256): k(f"s_nop {P['PADQ']}")
            if g_ % 64 == 63 and g_ < 255: stamp(k, f"q{g_//64}" + ("o" if which == "O" else ""))
            if g_ == 191: i1 = len(k.items)
        X = P.get("DBG" + which, 0)
        if X:
            def keep(it):
                if it.kind in ("label", "raw"): return True
                if X & 1 and it.mn == "s_barrier": return False
                if X & 4 and it.kind in ("valu", "trans"): return False
                if X & 8 and it.kind == "vmem": return False
                if X & 16 and it.mn.startswith("ds_write"): return False
                if X & 32 and it.mn.startswith("ds_read_b128") and it.ops[0].startswith("v"): return False
                return True
            k.items[i0:i1] = [it for it in k.items[i0:i1] if keep(it)]
    def qepi(a_):
        return [f"v_cvt_pk_bf16_f32 v{Q+16*a_+8*(j//4)+4*rt+j%4}, v{ACC+32*a_+16*rt+2*j}, v{ACC+32*a_+16*rt+2*j+1}" for rt in range(2) for j in range(8)]
    def qx(c):
        def f(sc, ld):
            if c == 3:
                sc.pin(0, L(lambda: k.srd(16, 42, 8 * 2048 * 256), 16))
                assert ld <= 40, ld
                vp = [f"buffer_load_dwordx4 {a(192+8*i+4*j,4)}, v{VDV}, s[16:19], s{(sO0, sO1)[i]} offen offset:{1024*j}" for i in range(2) for j in range(2)] if P["VP"] else []
                if P["KPOS"]:
                    kp = [f"buffer_load_dwordx4 {a(208+8*i+4*j,4)}, v{VDK+j}, s[12:15], s{(sO0, sO1, sO2)[i]} offen offset:{1024*j}" for i in range(3) for j in range(2)]
                    sc.add(kp + vp, P["KPOS"], P["KPOS"] + 8); vp = []
                if not P["KEARLY"]: sc.add([x for d in kfirst for x in d] + vp, ld, ld + 12)
                ov = [[f"s_lshl_b32 s{sT0}, s{sG}, 19", f"s_add_u32 s{sT0}, s{sT0}, s{sW256}"],
                      f"v_and_b32 v{VDW+1}, 15, v{LN_}", f"v_lshlrev_b32 v{VDW+2}, 1, v{ROWL}", f"v_xor_b32 v{VDW+1}, v{VDW+1}, v{VDW+2}",
                      f"v_lshlrev_b32 v{VDW}, 10, v{ROWL}", f"v_lshl_add_u32 v{VDW}, v{VDW+1}, 4, v{VDW}", f"v_xor_b32 v{VDW+2}, 128, v{VDW}",
                      f"v_add_u32 v{VDW}, s{sT0}, v{VDW}", f"v_add_u32 v{VDW+2}, s{sT0}, v{VDW+2}",
                      f"v_add_u32 v{VDW+1}, 3072, v{VDW}", f"v_add_u32 v{VDW+3}, {3*3072}, v{VDW+2}", f"v_add_u32 v{VDW+2}, {2*3072}, v{VDW+2}",
                      [f"s_and_b32 s{sR8}, s{sROT}, 30", f"s_lshl_b32 s{sKhi}, s{sR8}, 14"]]
                sc.add(ov, ld + 1, 58)
                NA1 = P["F1R"] // 2; W1_ = 3584 // NA1; assert NA1 == 4
                nA2 = 32 // P["F2R"]; NA2 = 8 // nA2; rows2 = 8 // nA2
                ps = [L(lambda: k.srd(40, 64, 512 * 3584), 16), L(lambda: k.srd(44, 66, 512 * 3584), 16),
                      [f"s_lshr_b32 s66, s2, 3", f"s_lshl_b32 s66, s66, 2", f"s_add_u32 s66, s66, s{sW}"],
                      [f"s_mul_i32 s64, s66, {4*3584}", f"s_and_b32 s3, s2, 3", f"s_lshl_b32 s67, s3, 9"], ["s_add_u32 s64, s64, s67", f"s_mul_i32 s65, s66, {14*1024}"],
                      ["s_lshl_b32 s3, s3, 7", "s_sub_u32 s3, 1536, s3"],
                      [f"s_and_b32 s67, s2, {NA2-1}", f"s_mul_i32 s67, s67, {128*nA2}", "s_add_u32 s65, s65, s67"],
                      [f"s_lshl_b32 s66, s{sROT}, 14", f"s_lshl_b32 s67, s{sG}, 19", "s_add_u32 s66, s66, s67"], [f"s_lshl_b32 s67, s{sW}, {12+lg2(G)}", "s_add_u32 s66, s66, s67"],
                      f"v_min_u32 v{VX}, 55, v{LN_}", f"v_lshlrev_b32 v{VX}, 4, v{VX}", f"v_mad_u32_u24 v{VX}, v{h_}, s3, v{VX}",
                      f"v_lshrrev_b32 v{VX+1}, {lg2(8*nA2)}, v{LN_}", f"v_lshlrev_b32 v{VX+1}, 10, v{VX+1}", f"v_and_b32 v{tm}, {8*nA2-1}, v{LN_}", f"v_lshl_add_u32 v{VX+1}, v{tm}, 4, v{VX+1}"]
                sc.add(ps, 2, 32)
                sc.pin(ld + 1, L(lambda: k.srd(8, 4, 1792 * 1024), 16))
                sc.pin(56, L(lambda: (k.wait("K"), k.wait_all(vm=False), k("s_barrier")), 8))
                sc.add([rdK(f, f, L_K + 16384 + 8192) for f in range(4)], 56, 60, prio=1)
                sc.add(kv_dma("V", L_V, sO0) + kv_dma("V", L_V + 8192, sO1), 57, 62)
                sc.add(qepi(0), 61, 64)
                sc.pin(58, [f"v_add_u32 v{VLIN}, {L_H}, v{VL16}", f"v_add_u32 v{VLO}, {L_H}, v{VL16}"])
        return f
    gemm("Q", qx, 1, 4)
    stamp(k, "qgemm")
    def qk(f, s_, qt, buf, zero):
        d = v(S + 32 * buf + 16 * qt, 16)
        c = d if s_ else ("0" if zero else v(CI + 16 * qt, 16))
        return f"v_mfma_f32_32x32x16_bf16 {d}, {a(fr(f),4)}, {v(Q+8*s_+4*qt,4)}, {c}"
    def pv(f, i, qt, buf, zero=False):
        d = a(O + 32 * (i % 4) + 16 * qt, 16)
        return f"v_mfma_f32_32x32x16_bf16 {d}, {a(fr(f),4)}, {v(S+32*buf+16*qt+8*(i//4),4)}, {'0' if zero else d}"
    def sreg(buf, e): return S + 32 * buf + 16 * ((e >> 3) & 1) + 8 * (e >> 4) + (e & 7)
    def sm(buf, e, addci=False):
        o = []
        if e < 32:
            if addci: o.append(f"v_add_f32 v{sreg(buf,e)}, v{sreg(buf,e)}, v{CI+16*((e>>3)&1)}")
            o.append(f"v_exp_f32 v{sreg(buf,e)}, v{sreg(buf,e)}")
        if e >= 1:
            p = e - 1
            o.append(f"v_add_f32 v{LS+((p>>3)&1)}, v{LS+((p>>3)&1)}, v{sreg(buf,p)}")
            if p & 1:
                o.append(f"v_cvt_pk_bf16_f32 v{sreg(buf,p&~7)+(p&7)//2}, v{sreg(buf,p-1)}, v{sreg(buf,p)}")
        return o
    def wgrp(j): return L(lambda: k.wait_regs(a(FR + 16 * (j % 2), 16)))
    def qk0(epi):
        wgrp(0)()
        for s_ in range(8):
            ep = qepi(s_ // 2 + 1)[8 * (s_ & 1):8 * (s_ & 1) + 8] if epi and s_ < 6 else []
            rd = [rdK(f + 4, f + 4, L_K + 16384 + 8192) if f < 4 else rdK(f + 4, f - 4, L_K) for f in ([2*s_, 2*s_+1] if s_ < 2 else [2*s_-4, 2*s_-3] if 4 <= s_ < 6 else [])]
            k(qk(s_, s_, 0, 0, True)); put(k, rd[:1]); put(k, ep[:4])
            k(qk(s_, s_, 1, 0, True)); put(k, rd[1:]); put(k, ep[4:])
            if s_ % 4 == 3: wgrp(s_ // 4 + 1)()
    qk0(True)
    k(f"s_cmp_lg_u32 s{sFB}, 0"); k("s_cbranch_scc1 FB_MAX")
    k.label("IT0")
    def maxops(buf, dst):
        o = []
        for qt in range(2):
            b = S + 32 * buf + 16 * qt; t = dst + qt
            o.append(f"v_max3_f32 v{t}, v{b}, v{b+1}, v{b+2}")
            for i in range(3, 15, 2): o.append(f"v_max3_f32 v{t}, v{t}, v{b+i}, v{b+i+1}")
            o.append(f"v_max_f32 v{t}, v{t}, v{b+15}")
        return [x for pr in zip(o[:8], o[8:]) for x in pr]
    def xhalf_max(t, t2):
        return [f"v_mov_b32 v{t2}, v{t}", f"v_mov_b32 v{t2+1}, v{t+1}", f"v_permlane32_swap_b32 v{t}, v{t2}", f"v_permlane32_swap_b32 v{t+1}, v{t2+1}",
                f"v_max_f32 v{t}, v{t}, v{t2}", f"v_max_f32 v{t+1}, v{t+1}, v{t2+1}"]
    def flat(x): return [y for z in x for y in z]
    def iteration(par, first=False, last=False, extra=None):
        hb = 16384 * par; nb = 16384 * (1 - par)
        mf = []
        phs = [0, 1, 3] if last else [0, 1, 2, 3]
        n = 16 * len(phs)
        sc = Sched(n)
        frs = []
        for q_, ph in enumerate(phs):
            for g in range(16):
                f = 8 * q_ + g // 2; qt = g & 1; i = g // 2
                if ph == 0: mf.append(qk(f, i, qt, 1, first))
                elif ph == 1: mf.append(pv(f, i, qt, 0, first and i < 4))
                elif ph == 2: mf.append(qk(f, i, qt, 0, False))
                else: mf.append(pv(f, i, qt, 1))
            for i in range(8): frs.append((ph, i))
        ng = len(frs) // 4
        for j in range(1, ng):
            rd = []
            for f in range(4 * j, 4 * j + 4):
                ph, i = frs[f]
                rd += rdK(f, i, hb + 8192 * (ph // 2)) if ph % 2 == 0 else rdV(f, i, hb + 8192 * (ph // 2))
            g0 = 8 * (j - 1)
            if first and j == 2: sc.pin(g0 + 1, L(lambda: (k.wait("V"), k("s_barrier")), 8)); g0 += 1
            sc.add(rd, g0, 8 * (j - 1) + 6, prio=1)
            sc.pin(8 * j - 1, wgrp(j), end=True)
        dm = [nxt(sO1, sO2), kv_dma("V", L_V + nb, sO2), kv_dma("K", L_K + nb, sO1), kv_dma("V", L_V + nb + 8192, sO1), nxt(sO2, sO1), kv_dma("K", L_K + nb + 8192, sO2)]
        dm = [dm[0]] + dm[1] + dm[2] + dm[3] + [dm[4]] + dm[5]
        if first:
            sc.add(dm, 24, 44)
            mx = maxops(0, MX) + xhalf_max(MX, MX + 2)
            mx += [[f"s_cmp_lg_u32 s{sFB}, 0", "s_cselect_b64 vcc, -1, 0"]]
            mx += [f"v_sub_f32 v{CI+16*qt}, {f32(-float(P['BIAS']))}, v{MX+qt}" for qt in range(2)]
            mx += [f"v_cndmask_b32 v{CI+16*qt}, v{CI+16*qt}, v{MX+4+qt}, vcc" for qt in range(2)]
            sc.add(mx + flat(sm(0, e, True) for e in range(17)), 1, 16)
            sc.add(flat(sm(0, e, True) for e in range(17, 33)), 16, 23)
            sc.add([f"v_mov_b32 v{CI+16*qt+i}, v{CI+16*qt}" for qt in range(2) for i in range(1, 16)], 23, 31)
            sc.add(flat(sm(1, e, True) for e in range(33)), 23, 54)
            sc.add(flat(sm(0, e) for e in range(12)), 54, 64)
        else:
            for e in range(12, 33): sc.pin(e - 12, sm(0, e))
            if last:
                sc.add(flat(sm(1, e) for e in range(17)), 19, 31)
                sc.add(flat(sm(1, e) for e in range(17, 33)), 31, 39)
            else:
                sc.add(dm, 1, 40)
                for e in range(33): sc.pin(20 + e, sm(1, e))
                for e in range(12): sc.pin(52 + e, sm(0, e))
        if not last:
            sc.pin(56, L(lambda: (k.wait("K", "V"), k("s_barrier")), 8))
            sc.add([rdK(f, f, nb) for f in range(4)], 56, 61, prio=1)
            sc.pin(63, wgrp(0), end=True)
        if extra: extra(sc)
        for m, f_ in zip(mf, sc.run()): k(m); put(k, f_)
    iteration(0, first=True)
    stamp(k, "it0")
    rows2 = 8 // (32 // P["F2R"])
    def xpf(half):
        def f(sc):
            if not P["PF1"]: return
            n = 8 * half
            if half == 0:
                pf = [[f"buffer_load_dwordx4 {a(192+4*(n+j),4)}, v{VL16}, s[20:23], s66 offen offset:{1024*j}"] for j in range((4 * G + 2) // 3)] + [f"s_add_u32 s66, s66, {1024*((4*G+2)//3)}"]
                pf += [[f"buffer_load_dwordx4 {a(192+4*(n+3+j),4)}, v{VX+1}, s[8:11], s65 offen", f"s_add_u32 s65, s65, {1024*rows2}"] for j in range((14 // rows2 + 2) // 3)]
            else:
                pf = [[f"buffer_load_dwordx4 {a(192+4*(n+2*j+m_),4)}, v{VX}, s[{40+4*m_}:{43+4*m_}], s64 offen"] + ([f"s_add_u32 s64, s64, 3584"] if m_ else []) for j in range(2) for m_ in range(2)]
            sc.add(pf, 40, 56)
        return f
    k.loop(sST, 3, lambda: (iteration(1, extra=xpf(0)), iteration(0, extra=xpf(1))), align=3)
    stamp(k, "it1-6")
    OM = MX + 4
    def finalize(dt, qt):
        b = Q + 16 * ((2 * dt + qt) % 4)
        o = [f"v_accvgpr_read_b32 v{b+i}, a{O+32*dt+16*qt+i}" for i in range(16)]
        if dt == 0: o += [f"v_max3_f32 v{OM+qt}, |v{b+i}|, |v{b+i+1}|, v{OM+qt}" for i in range(0, 16, 2)]
        o += [f"v_pk_mul_f32 {v(b+i,2)}, {v(b+i,2)}, {v(RL,2)} op_sel:[0,{qt}] op_sel_hi:[1,{qt}]" for i in range(0, 16, 2)]
        for sp in range(2):
            o += [f"v_cvt_pk_bf16_f32 v{b+8*sp+j}, v{b+8*sp+2*j}, v{b+8*sp+2*j+1}" for j in range(4)]
            o.append(L(lambda sp=sp: k(f"ds_write_b128 v{STT+dt}, {v(b+8*sp,4)} offset:{32768*qt+1024*sp}", token="hw"), 22, "d"))
        return o
    f0 = finalize(0, 0); f1 = finalize(0, 1)
    def o_dma(st):
        slot = st % 6
        o = [f"s_add_u32 m0, s{sRING}, {4096*slot+0x100000-0x100000}" if slot < 4 else f"s_add_u32 m0, s31, {L_K+16384*(slot-4)}",
             f"buffer_load_dwordx4 v{VDW}, s[20:23], s{sKhi} offen lds"]
        for n in range(1, 4):
            o.append(L(lambda n=n: k(f"buffer_load_dwordx4 v{VDW+n}, s[20:23], s{sKhi} offen offset:{1024*n} lds", token=f"W{slot}"), 10, "v"))
        o.append(f"s_add_u32 s{sKhi}, s{sKhi}, 16384")
        if st & 1: o.append(f"s_and_b32 s{sKhi}, s{sKhi}, 0x7ffff")
        return o
    OA = [0, 32]; OB = [160, 176]
    class RS:
        def __init__(s_, two, third): s_.two, s_.third = two, third
        def __call__(s_, u): return s_.third if (u == 15 and P["OTM"]) else s_.two[u % 2]
    OAf = RS([192, 224], 0); OBf = RS([160, 176], 32)
    V16 = VW
    def oa_reads(u, half):
        s0 = 2 * (u % 3)
        rd = [f"ds_read_b64_tr_b16 {a(OAf(u)+8*p+4*e+2*uu,2)}, v{(V16 if s0 < 4 else VV)+p} offset:{(4096*s0 if s0 < 4 else 0)+1024*uu+8*e}" for p in range(2 * half, 2 * half + 2) for e in range(2) for uu in range(2)]
        return [[L(lambda: k.wait(f"W{s0}", f"W{s0+1}")), rd[0]]] + rd[1:]
    def ob_reads(u):
        return [f"ds_read_b128 {a(OBf(u)+4*r4,4)}, v{VLO} offset:{2048*u+32768*(r4>>1)+256*(r4&1)}" for r4 in range(4)]
    def x_last(sc):
        sc.add([f"s_lshl_b32 s31, s{sW}, 12"] + flat(o_dma(s_) for s_ in range(5)), 0, 38)
        sc.add(o_dma(5), 41, 48)
        fin = [f"v_mov_b32 v{MX}, v{LS}", f"v_mov_b32 v{MX+1}, v{LS+1}", f"v_mov_b32 v{OM}, 0", f"v_mov_b32 v{OM+1}, 0",
               f"v_permlane32_swap_b32 v{LS}, v{MX}", f"v_permlane32_swap_b32 v{LS+1}, v{MX+1}",
               f"v_add_f32 v{LS}, v{LS}, v{MX}", f"v_add_f32 v{LS+1}, v{LS+1}, v{MX+1}",
               f"v_rcp_f32 v{RL}, v{LS}", f"v_rcp_f32 v{RL+1}, v{LS+1}", f"v_max_f32 v{MX+6}, v{LS}, v{LS+1}"]
        adr = [[f"s_lshl_b32 s57, s{sW}, 3", f"s_sub_u32 s57, s57, s{sR8}"]]
        for dt in range(4):
            adr += [[f"s_add_u32 s56, s57, {2*dt}", "s_and_b32 s56, s56, 31", "s_lshl_b32 s56, s56, 10"], f"v_add_u32 v{STT+dt}, s56, v{VLIN}"]
        adr += [f"v_lshl_add_u32 v{tm}, v{ROWL}, 3, v{r_}", f"v_lshlrev_b32 v{tm}, 8, v{tm}", f"v_and_b32 v{tm+1}, 1, v{LN_}", f"v_lshl_add_u32 v{tm}, v{tm+1}, 4, v{tm}",
                f"v_add_u32 v{tm}, s{sRING}, v{tm}", f"v_lshl_add_u32 v{tm+1}, v{gn}, 2, v{r_}", f"v_bfe_u32 v{tm+2}, v{LN_}, 1, 1", f"v_xor_b32 v{tm+1}, v{tm+1}, v{tm+2}",
                f"v_lshl_add_u32 v{V16}, v{tm+1}, 5, v{tm}"] + [f"v_xor_b32 v{V16+p}, {64*p}, v{V16}" for p in range(1, 4)]
        adr += [f"v_and_b32 v{tm+1}, 15, v{LN_}", f"v_lshlrev_b32 v{tm+1}, 4, v{tm+1}", f"v_lshl_add_u32 v{HW}, v{ROWL}, 9, v{tm+1}", f"v_add_u32 v{VLO}, {L_H}, v{HW}"]
        sc.add(adr, 0, 19)
        sc.add(fin, 39, 43)
        sc.pin(40, L(lambda: k("s_barrier")))
        sc.add(oa_reads(0, 0), 40, 46, prio=1)
        sc.add(f0[:16] + f1[:12], 43, 48)
    iteration(1, last=True, extra=x_last)
    stamp(k, "it7")
    k(f"s_load_dwordx2 s[46:47], s[0:1], {A_X}")
    k(f"s_load_dwordx2 s[48:49], s[0:1], {A_OUT}")
    put(k, oa_reads(0, 1))
    k(f"s_sub_u32 s3, s31, s{sRING}"); k(f"v_mul_u32_u24 v{tm}, 12288, v{h_}"); k(f"v_add_u32 v{tm}, s3, v{tm}")
    for p in range(4): k(f"v_add_u32 v{VV+p}, v{V16+p}, v{tm}")
    put(k, f0[16:] + f1[12:])
    for dt in range(1, 4):
        for qt in range(2): put(k, finalize(dt, qt))
    k.wait_all(vm=False); k("s_barrier")
    put(k, ob_reads(0))
    stamp(k, "owrite")
    sc = Sched(512, budget=P['OBUD']); mf = []
    def omf(u, t_, r4):
        d = v(ACC + 32 * (t_ // 2) + 8 * r4 + 4 * (t_ % 2), 4)
        return f"v_mfma_f32_16x16x32_bf16 {d}, {a(OAf(u)+4*t_,4)}, {a(OBf(u)+4*r4,4)}, {'0' if u == 0 else d}"
    TM = P["OTM"]
    for u in range(16):
        g0 = 32 * u
        if TM and u == 14:
            sc.add(ob_reads(15) + oa_reads(15, 0), g0 - 10, g0 + 4, prio=1); sc.add(oa_reads(15, 1), g0 + 4, g0 + 16, prio=1)
        elif u + 1 < 16:
            sc.add(ob_reads(u + 1) + oa_reads(u + 1, 0) + oa_reads(u + 1, 1), g0 + P["ORD0"], g0 + (22 if TM and u == 13 else 28), prio=1)
            sc.pin(g0 + 31, L(lambda u=u: k.wait_regs(a(OAf(u + 1), 32), a(OBf(u + 1), 16))), end=True)
        if u + 3 < 16: sc.add(o_dma(2 * u + 6) + o_dma(2 * u + 7), g0, g0 + P["ODE"])
        if TM and u >= 14: continue
        mf += [omf(u, t_, r4) for t_ in range(8) for r4 in range(4)]
    if TM: mf += [omf(u, 2 * p + e, r4) for p in range(4) for u in (14, 15) for e in range(2) for r4 in range(4)]
    def pst(p):
        o = []
        for r4 in range(4):
            if r4 % 2 == 0: o.append(f"s_add_u32 s{sT1}, s{sT2}, {32768*(r4>>1) + 2048*p}")
            b = ACC + 32 * p + 8 * r4
            o += [f"v_cvt_pk_bf16_f32 v{b+j}, v{b+2*j}, v{b+2*j+1}" for j in range(4)]
            o.append(L(lambda b=b, r4=r4: k(f"buffer_store_dwordx4 {v(b,4)}, v{HW}, s[24:27], s{sT1} offen offset:{256*(r4&1)} sc1", token="PST"), 10, "v"))
        return o
    chk = [[f"v_cmp_nlt_f32 vcc, |v{ACC+8*r4}|, v{MX+3}", "s_or_b64 s[62:63], s[62:63], vcc"] + ([f"s_cselect_b32 s3, 1, 0", f"v_mov_b32 v{MX}, s3"] if r4 == 3 else []) for r4 in range(4)]
    if TM:
        sc.add(chk + pst(0), 448 + 18, 448 + 34); sc.add(pst(1), 448 + 34, 448 + 50); sc.add(pst(2), 448 + 50, 512)
    misc = [f"v_min_f32 v{OM}, v{OM}, v{OM+1}", f"v_cmp_ngt_f32 vcc, {f32(2.0**120)}, v{MX+6}", "s_mov_b64 s[62:63], vcc",
            f"v_cmp_gt_f32 vcc, {f32(2.0**-108 if not P['FORCE_FB'] else 2.0**100)}, v{OM}", "s_or_b64 s[62:63], s[62:63], vcc",
            f"v_mov_b32 v{MX+1}, s{sRING}", f"v_and_b32 v{MX+7}, 3, v{LN_}", f"v_lshlrev_b32 v{MX+7}, 14, v{MX+7}", f"v_add_u32 v{MX+7}, {L_W}, v{MX+7}", f"v_mov_b32 v{MX+2}, 0", f"v_mov_b32 v{MX+3}, 0x7f800000",
            f"s_lshl_b32 s{sT2}, s{sG}, 21", f"s_lshl_b32 s{sT1}, s{sRB}, 16", f"s_add_u32 s{sT2}, s{sT2}, s{sT1}",
            f"s_lshl_b32 s{sT1}, s{sW}, 13", f"s_add_u32 s{sT2}, s{sT2}, s{sT1}", f"s_add_u32 s{sT2}, s{sT2}, {WS_P:#x}",
            "s_mov_b32 s12, s46", "s_and_b32 s13, s47, 0xffff", "s_mov_b32 s14, 0x200000", "s_mov_b32 s15, 0x20000",
            "s_mov_b32 s16, s68", "s_and_b32 s17, s69, 0xffff", "s_mov_b32 s18, 0x100", "s_mov_b32 s19, 0x20000",
            f"s_lshl_b32 s5, s{sRB}, 3", f"s_add_u32 s5, s5, s{sG}", "s_lshl_b32 s5, s5, 13",
            f"v_and_b32 v{tm}, 7, v{LN_}", f"v_lshrrev_b32 v{tm+1}, 3, v{LN_}", f"v_lshl_add_u32 v{tm+1}, s{sW}, 4, v{tm+1}",
            f"v_lshlrev_b32 v{VK}, 10, v{tm}", f"v_lshl_add_u32 v{VK}, v{tm+1}, 4, v{VK}", f"v_lshlrev_b32 v{VK+1}, 5, v{tm+1}",
            f"buffer_load_dword v{VK+2}, v{MX+2}, s[16:19], 0 offen sc1"]
    sc.add(misc, 8, 260)
    def cspin():
        k("s_mov_b32 s3, 0"); k("s_branch CCHK"); st = dict(k.vm)
        k.label("CPOLL")
        k(f"buffer_load_dword v{VK+2}, v{MX+2}, s[16:19], 0 offen sc1"); k.wait_all(lg=False)
        k.label("CCHK"); k.vm = st
        k("s_add_u32 s3, s3, 1"); k(f"v_cmp_gt_u32 vcc, 0x100, v{VK+2}")
        k("s_cmp_gt_u32 s3, 0x8000"); k("s_cbranch_scc1 CDONE"); k("s_cbranch_vccnz CPOLL")
        k.label("CDONE")
    sc.pin(417, L(cspin, 24))
    xm = [f"buffer_load_dwordx4 {v(128+4*i,4)}, v{VK}, s[12:15], s5 offen offset:{128*i}" for i in range(2)]
    for base, m_ in ((136, 2), (152, 4), (168, 3)):
        xm += [f"s_mov_b32 s4, {WS_MOD + m_*2048}"] + [f"buffer_load_dwordx4 {v(base+8*i+4*hh,4)}, v{VK+1}, s[24:27], s4 offen offset:{256*i+16*hh} sc1" for i in range(2) for hh in range(2)]
    sc.add(xm, 419, 462 if TM else 490)
    for m, f_ in zip(mf, sc.run()): k(m); put(k, f_)
    stamp(k, "ogemm")
    if not TM: put(k, chk)
    k(f"ds_write_b32 v{MX+1}, v{MX}", token="fl")
    for p in range(3 if TM else 0, 4):
        put(k, pst(p))
        if p == (3 if TM else 0): k.wait("fl"); k("s_barrier"); k(f"ds_read_b32 v{STT}, v{MX+7}")
    k(f"v_cmp_lt_u32 vcc, s{sFB}, v{STT}")
    k("s_cbranch_vccnz FALLBACK")
    tail(sys.modules[__name__], k)
    stamp_flush(k, 0)
    k.label("END_attn"); k("s_endpgm")
    k.label("FALLBACK")
    k.wait_all(); k("s_barrier")
    k(f"s_mov_b32 s{sFB}, 1")
    k("s_nop 15")
    k("s_branch RESTART")
    k.label("FB_MAX")
    k.wait_all(); k("s_barrier")
    k(f"v_mov_b32 v{MX+4}, 0xff800000"); k(f"v_mov_b32 v{MX+5}, 0xff800000")
    def fbody():
        put(k, kv_dma("K", L_K, sO0) + nxt(sO0, sO0)); k.wait("K"); k("s_barrier")
        for s_ in range(8): put(k, rdK(s_, s_, L_K))
        for s_ in range(8):
            for qt in range(2): k(qk(s_, s_, qt, 0, True))
        put(k, maxops(0, MX))
        k(f"v_max_f32 v{MX+4}, v{MX+4}, v{MX}"); k(f"v_max_f32 v{MX+5}, v{MX+5}, v{MX+1}")
        k("s_barrier")
    k.loop(sST, 16, fbody)
    put(k, xhalf_max(MX + 4, MX + 2))
    for qt in range(2): k(f"v_sub_f32 v{MX+4+qt}, 0, v{MX+4+qt}")
    put(k, kfirst)
    k.wait_all(); k("s_barrier")
    for f in range(4): put(k, rdK(f, f, L_K + 16384 + 8192))
    qk0(False)
    k.wait_all()
    k("s_branch IT0")
    return k

from gen32_tail import tail

HEADER = open('adaLN_cond__sliding_block_cached__geglu_ffn__prompt.s.ref').read().split("; Override launch")[0]

DOC = """; One persistent kernel, 256 workgroups x 4 waves (one workgroup per CU), phases chained by in-launch hand-offs:
;    restarts with the exact row maximum (labels FALLBACK / FB_MAX)
"""

if __name__ == "__main__":
    out = sys.argv[1] if len(sys.argv) > 1 else "k.s"
    me = sys.modules[__name__]
    ks = [gen_attn()]
    ks[-1].label("CODE_END")
    txt = emit(ks, header=HEADER)
    txt = txt.replace('.amdgcn_target', DOC + '.amdgcn_target', 1)
    if P.get("SINGLE"): txt = txt.replace("; @launch kernel=" + KNAME + " ", "; @launch ")
    open(out, "w").write(txt)
    json.dump([[k.name, k.grid, k.block//64, k.stamps] for k in ks], open(out[:-2]+".json","w"))
    for k in ks: print(k.name, "regs(v,a,s)", k.used, "nops", k.n_nops, "misal", k.n_mis, "instrs", len(k.items))
```

```python
import math
from asmlib import *

def L(f, cost=4, mem=False):
    f.cost = cost; f.mem = mem; return f

def tail(M, k):
    P = M.P; f32 = M.f32; put = M.put; stamp = M.stamp
    sW = 28; VL16 = 216; TT = 220
    SCH = "" if P.get("PLAIN", 0) & 1 else " sc1"; SCA = "" if P.get("PLAIN", 0) & 2 else " sc1"
    FL1, FL2, FL3, FL4 = [M.WS_FL + 0x8000 * i for i in range(4)]
    L_S = 163840 - 256
    VF = 248
    def cond(sreg, lab, body):
        k(f"s_cmp_lg_u32 s{sreg}, 0"); k(f"s_cbranch_scc1 {lab}")
        s0 = (dict(k.vm), dict(k.lg)); body(); k.label(lab)
        k.vm = k._merge(k.vm, s0[0]); k.lg = k._merge(k.lg, s0[1])
    def flag_store(soff): k(f"buffer_store_dword v{VF+2}, v{VF+3}, s[20:23], s{soff} offen sc1")
    def publish(tok, soff):
        k.wait(tok); k("s_barrier"); flag_store(soff)
    def spin(soff, n, tag, counter=False, first_issued=False):
        k(f"s_mov_b64 exec, {(1 << n) - 1:#x}")
        k("s_mov_b32 s3, 0")
        if first_issued: k("s_branch CHK" + tag); st = dict(k.vm)
        k.label("POLL" + tag)
        if counter: k(f"buffer_load_dword v{VF+1}, v{VF}, s[16:19], 0 offen sc1")
        else: k(f"buffer_load_dword v{VF+1}, v{VF}, s[24:27], s{soff} offen sc1")
        if first_issued:
            k.wait_all(lg=False); k.label("CHK" + tag); k.vm = st
        k("s_add_u32 s3, s3, 1")
        k(f"v_cmp_gt_u32 vcc, 0x100, v{VF+1}" if counter else f"v_cmp_eq_u32 vcc, 0, v{VF+1}")
        k("s_cmp_gt_u32 s3, 0x8000"); k("s_cbranch_scc1 POLLED" + tag)
        k("s_cbranch_vccz POLLED" + tag)
        k(f"s_sleep {P['SLEEP2']}"); k("s_branch POLL" + tag)
        k.label("POLLED" + tag)
        k("s_mov_b64 exec, -1")
    def await_(soff, n, tag, counter=False):
        if P.get("DUM"):
            for i in range(P["DUM"]): k(f"v_mfma_f32_32x32x16_bf16 {a(128+16*(i%4),16)}, {a(192+4*(i%8),4)}, {a(224+4*(i%8),4)}, {a(128+16*(i%4),16)}")
        cond(sW, "NOPOLL" + tag, lambda: spin(soff, n, tag, counter))
        if not counter: k("s_barrier")
    k("s_lshl_b32 s3, s30, 3"); k("s_add_u32 s3, s3, s29")
    k("s_lshr_b32 s4, s3, 2"); k("s_lshl_b32 s4, s4, 15"); k("s_and_b32 s6, s3, 3"); k("s_lshl_b32 s6, s6, 7"); k("s_add_u32 s4, s4, s6")
    k("s_lshl_b32 s7, s3, 7"); k(f"s_add_u32 s7, s7, {FL1:#x}")
    k("s_lshl_b32 s6, s30, 10"); k(f"s_add_u32 s6, s6, {FL1:#x}")
    k.srd(20, 70, 0x100000); k("s_mov_b32 s46, s8"); k("s_mov_b32 s47, s9")
    k(f"v_lshlrev_b32 v{VF}, 7, v{TT}"); k(f"v_mov_b32 v{VF+2}, 1")
    k(f"v_lshl_add_u32 v{VF+3}, s{sW}, 6, v{TT}"); k(f"v_lshlrev_b32 v{VF+3}, 20, v{VF+3}")
    if P["PUBP"] == 1: publish("PST", 7)
    HB = 0; AF = 128; AC = 0
    VDA = 224; VDB = 228; VAA = 231; VAB = 235; T1 = 237; KC = 246
    sFS, sRB, sT0, sT1, sKA_, sKB_ = 29, 30, 31, 32, 33, 36
    R = P["F1R"]
    M.split2(k, 2, sFS, sRB, 32 // R, 16, sT0, sKA_)
    if R >= 8: k(f"s_and_b32 s{sKA_}, s{sKA_}, 7")
    else: k(f"s_lshl_b32 s{sKA_}, s{sKA_}, {M.lg2(8//R)}")
    k(f"s_mov_b32 s{sKB_}, s{sKA_}"); k(f"s_mov_b32 s39, s{sKA_}")
    k(f"s_lshr_b32 s37, s{sW}, 1")
    k(f"s_and_b32 s{sT0}, s{sW}, 1")
    k(f"s_lshl_b32 s{sT1}, s{sFS}, 7"); k(f"s_mul_i32 s35, s{sT0}, {32*3584}"); k(f"s_add_u32 s{sT1}, s{sT1}, s35")
    k(f"s_mul_i32 s66, s{sFS}, 96"); k("s_add_u32 s66, s66, s35")
    k(f"v_lshrrev_b32 v{T1}, 3, v{TT}"); k(f"v_bfe_u32 v{T1+1}, v{TT}, 4, 1"); k(f"v_lshlrev_b32 v{T1+1}, 2, v{T1+1}")
    k(f"v_and_b32 v{T1+2}, 7, v{TT}"); k(f"v_xor_b32 v{T1+2}, v{T1+2}, v{T1+1}")
    k("s_lshl_b32 s35, s37, 1"); k(f"v_xor_b32 v{T1+3}, s35, v{T1+2}")
    k(f"v_mul_u32_u24 v{VDA}, 3584, v{T1}"); k(f"v_lshl_add_u32 v{VDA}, v{T1+3}, 4, v{VDA}"); k(f"v_add_u32 v{VDA}, s{sT1}, v{VDA}")
    for n in range(1, 4): k(f"v_add_u32 v{VDA+n}, {n*(8*3584-1024)}, v{VDA}")
    VD0, VD1 = 160, 161
    k(f"v_lshlrev_b32 v{VF+4}, 10, v{T1}"); k(f"v_lshl_add_u32 v{VF+4}, v{T1+2}, 4, v{VF+4}")
    if P["PUBP"] == 2: publish("PST", 7)
    k("s_mov_b32 s35, 10923")
    for n in range(3):
        k(f"v_add_u32 v{T1}, {64*n}, v{TT}"); k(f"v_mul_u32_u24 v{T1+1}, s35, v{T1}"); k(f"v_lshrrev_b32 v{T1+1}, 16, v{T1+1}")
        k(f"v_mul_u32_u24 v{T1+2}, 6, v{T1+1}"); k(f"v_sub_u32 v{T1+2}, v{T1}, v{T1+2}")
        k(f"v_mul_u32_u24 v{T1+1}, 3584, v{T1+1}"); k(f"v_lshl_add_u32 v{T1+1}, v{T1+2}, 4, v{T1+1}")
        k(f"v_add_u32 v{T1+1}, s66, v{T1+1}"); k(f"v_add_u32 v{VDB+n}, {2048-1024*n}, v{T1+1}")
    for q in range(192): assert (q * 10923) >> 16 == q // 6
    k(f"s_lshl_b32 s35, s37, 16"); k(f"s_lshl_b32 s{sT1}, s{sT0}, 12"); k(f"s_add_u32 s64, s35, s{sT1}")
    k(f"s_mul_i32 s{sT1}, s{sT0}, 3072"); k(f"s_mul_i32 s65, s37, {65536+128}"); k(f"s_add_u32 s65, s65, s{sT1}")
    k(f"s_mul_i32 s35, s37, {12288+128}"); k(f"s_add_u32 s35, s35, s{sT1}"); k(f"s_add_u32 s35, s35, {131072}")
    k("s_cmp_eq_u32 s37, 0")
    k("s_cselect_b32 s8, s40, s44"); k("s_cselect_b32 s9, s41, s45"); k("s_and_b32 s9, s9, 0xffff")
    k(f"s_mov_b32 s10, {512*3584}"); k("s_mov_b32 s11, 0x20000")
    k(f"s_lshl_b32 s{sT1}, s{sRB}, 2"); k(f"s_add_u32 s{sT1}, s{sT1}, s{sW}"); k(f"s_lshl_b32 s{sT1}, s{sT1}, 15")
    k(f"s_add_u32 s38, s{sT1}, {M.WS_H2:#x}")
    k(f"s_lshl_b32 s34, s{sRB}, 11"); k(f"s_add_u32 s34, s34, {FL2:#x}")
    r_, c2, gn, h_, tm = T1 + 3, T1 + 4, T1 + 5, T1 + 6, T1 + 7
    M.lane_tr_parts(k, TT, r_, c2, gn, h_, tm)
    k(f"v_lshl_add_u32 v{tm}, v{h_}, 3, v{r_}")
    k(f"v_lshlrev_b32 v{T1}, 7, v{tm}"); k(f"v_lshl_add_u32 v{T1}, v{gn}, 16, v{T1}"); k(f"v_lshl_add_u32 v{T1}, v{c2}, 3, v{T1}")
    k(f"v_lshrrev_b32 v{T1+1}, 1, v{r_}"); k(f"v_lshl_add_u32 v{T1}, v{T1+1}, 6, v{T1}"); k(f"v_lshl_add_u32 v{VAA}, v{gn}, 5, v{T1}")
    for t in range(1, 4): k(f"v_xor_b32 v{VAA+t}, {32*t}, v{VAA}")
    k(f"v_mul_u32_u24 v{T1}, 96, v{tm}"); k(f"v_lshl_add_u32 v{T1}, v{c2}, 3, v{T1}")
    k(f"v_mul_u32_u24 v{T1+1}, {65536+128}, v{gn}"); k(f"v_add_u32 v{VAB}, v{T1}, v{T1+1}")
    k(f"v_mul_u32_u24 v{T1+1}, {12288+128}, v{gn}"); k(f"v_add_u32 v{VAB+1}, v{T1}, v{T1+1}"); k(f"v_add_u32 v{VAB+1}, {131072}, v{VAB+1}")
    def dmaA(st):
        return [[f"s_mul_i32 s{sT0}, s{sKA_}, {64*3584}", f"s_add_u32 m0, s64, {8192*st}"], [f"s_add_u32 s{sKA_}, s{sKA_}, 1", f"s_and_b32 s{sKA_}, s{sKA_}, 7"]] + \
               [L(lambda n=n: k(f"buffer_load_dwordx4 v{VDA+n}, s[8:11], s{sT0} offen offset:{1024*n} lds", token=f"A{st}"), 10, "v") for n in range(4)]
    def dmaB(st):
        m0 = f"s_add_u32 m0, s35, {6144*st}" if st < 2 else f"s_add_u32 m0, s65, {8192*(st-2)}"
        return [[f"s_mul_i32 s{sT0}, s{sKB_}, {64*3584}", m0], [f"s_add_u32 s{sKB_}, s{sKB_}, 1", f"s_and_b32 s{sKB_}, s{sKB_}, 7"]] + \
               [L(lambda n=n: k(f"buffer_load_dwordx4 v{VDB+n}, s[8:11], s{sT0} offen offset:{1024*n} lds", token=f"B{st}"), 10, "v") for n in range(3)]
    def hload(st):
        o = [[f"s_lshl_b32 s{sT1}, s39, 12", f"s_add_u32 s{sT1}, s{sT1}, s38"], ["s_add_u32 s39, s39, 1", "s_and_b32 s39, s39, 7"]]
        o += [f"buffer_load_dwordx4 {a(HB+16*st+4*j,4)}, v{VL16}, s[24:27], s{sT1} offen offset:{1024*j}{SCH}" for j in range(4)]
        return o
    stamp(k, "t_set")
    if P["PUBP"] == 0: publish("PST", 7)
    k(f"v_and_b32 v1, 7, v{TT}"); k(f"v_lshrrev_b32 v7, 3, v{TT}"); k(f"v_lshl_add_u32 v7, s{sW}, 4, v7")
    k("v_lshlrev_b32 v3, 9, v7"); k("v_lshl_add_u32 v3, v1, 4, v3"); k("v_add_u32 v2, 4096, v3")
    k("v_lshlrev_b32 v8, 4, v1"); k(f"v_add_u32 v8, {L_S}, v8"); k(f"v_lshl_add_u32 v9, s{sW}, 2, v8")
    X = 128; XF = 24; MV = 136; PB = 64
    def dyn_stage():
        k(f"s_mul_i32 s{sT0}, s{sKA_}, {64*3584}"); k("s_lshl_b32 s51, s50, 13"); k("s_add_u32 m0, s64, s51")
        k(f"s_add_u32 s{sKA_}, s{sKA_}, 1"); k(f"s_and_b32 s{sKA_}, s{sKA_}, 7"); k("s_add_u32 s50, s50, 1")
        for n in range(4): k(f"buffer_load_dwordx4 v{VDA+n}, s[8:11], s{sT0} offen offset:{1024*n} lds")
    nd = 0
    if P["DYN"]:
        nd = 8
        k("s_mov_b32 s3, 0"); k("s_mov_b32 s50, 0")
        k(f"v_and_b32 v10, 0x380, v{VF}")
        k.label("DPOLL")
        k(f"buffer_load_dword v{VF+1}, v10, s[24:27], s6 offen sc1")
        k("s_add_u32 s3, s3, 1")
        k(f"v_cmp_eq_u32 vcc, 0, v{VF+1}")
        k("s_cmp_gt_u32 s3, 0x8000"); k("s_cbranch_scc1 DDONE")
        k("s_cbranch_vccz DDONE")
        st_ = dict(k.vm)
        k("s_cmp_ge_u32 s50, 8"); k("s_cbranch_scc1 DSLEEP")
        for _ in range(P["DPER"]): dyn_stage()
        k("s_branch DPOLL")
        k.label("DSLEEP")
        k(f"s_sleep {P['SLEEP2']}"); k("s_branch DPOLL")
        k.label("DDONE")
        k.vm = st_
    else:
        while nd < P["TW1"]: put(k, dmaA(nd)); nd += 1
        await_(6, 8, "_1")
    stamp(k, "poll1")
    k(f"s_add_u32 s66, s4, {M.WS_P:#x}")
    for g in range(8):
        for i in range(2): k(f"buffer_load_dwordx4 {v(PB+8*g+4*i,4)}, v{3-i}, s[24:27], s66 offen sc1")
        if g < 7: k("s_add_u32 s66, s66, 0x200000")
    while nd < P["TWM"]: put(k, dmaA(nd)); nd += 1
    k("s_mov_b32 s67, 0xffff0000")
    def unpack(dst, src):
        k(f"v_lshlrev_b32 v{dst}, 16, v{src}"); k(f"v_and_b32 v{dst+1}, s67, v{src}")
    for q in range(8): unpack(XF + 2 * q, PB + q)
    for g in range(1, 8):
        for q in range(8):
            unpack(10 + 2 * (q & 1), PB + 8 * g + q)
            k(f"v_pk_add_f32 {v(XF+2*q,2)}, {v(XF+2*q,2)}, {v(10+2*(q&1),2)}")
    for q in range(8):
        unpack(10, X + q)
        k(f"v_pk_fma_f32 v[10:11], {v(XF+2*q,2)}, {v(MV+2*q,2)}, v[10:11]")
        k(f"v_cvt_pk_bf16_f32 v{X+q}, v10, v11")
        unpack(XF + 2 * q, X + q)
    k(f"s_add_u32 s66, s4, {M.WS_X1:#x}")
    for i in range(2): k(f"buffer_store_dwordx4 {v(X+4*i,4)}, v{3-i}, s[24:27], s66 offen sc1")
    stamp(k, "x1")
    for _ in range(P.get("DLY1", 0)): k("s_sleep 38")
    if P["ONEP"]:
        k("s_mov_b32 s66, 0x3f803f80")
        for q in range(8):
            k(f"v_dot2_f32_bf16 v10, v{X+q}, s66, {'0' if q == 0 else 'v10'}"); k(f"v_dot2_f32_bf16 v12, v{X+q}, v{X+q}, {'0' if q == 0 else 'v12'}")
        k("s_nop 2")
        for x in (10, 12): k(f"v_add_f32_dpp v{x}, v{x}, v{x} row_ror:8 row_mask:0xf bank_mask:0xf")
        for sw in ("16", "32"):
            for x in (10, 12): k(f"v_mov_b32 v{x+1}, v{x}")
            for x in (10, 12): k(f"v_permlane{sw}_swap_b32 v{x}, v{x+1}")
            for x in (10, 12): k(f"v_add_f32 v{x}, v{x}, v{x+1}")
        k("ds_write_b32 v9, v10", token="w"); k("ds_write_b32 v9, v12 offset:128", token="w"); k.wait("w"); k("s_barrier")
        k("ds_read_b128 v[12:15], v8"); k("ds_read_b128 v[16:19], v8 offset:128")
        k("v_pk_add_f32 v[12:13], v[12:13], v[14:15]"); k("v_pk_add_f32 v[16:17], v[16:17], v[18:19]")
        k("v_add_f32 v12, v12, v13"); k("v_add_f32 v16, v16, v17")
        k(f"v_mul_f32 v12, {f32(-1/512)}, v12"); k(f"v_mul_f32 v16, {f32(1/512)}, v16")
        k("v_fma_f32 v16, -v12, v12, v16"); k("v_max_f32 v16, 0, v16"); k(f"v_add_f32 v16, {f32(1e-5)}, v16")
        k("v_rsq_f32 v57, v16"); k("v_mul_f32 v56, v12, v57")
    else: M.ln_stats(k, XF)
    for e in range(0, 16, 2):
        if P["ONEP"]: k(f"v_pk_fma_f32 {v(XF+e,2)}, {v(XF+e,2)}, v[56:57], v[56:57] op_sel:[0,1,0] op_sel_hi:[1,1,0]")
        else: k(f"v_pk_mul_f32 {v(XF+e,2)}, {v(XF+e,2)}, v[56:57]")
        k(f"v_pk_fma_f32 {v(XF+e,2)}, {v(XF+e,2)}, {v(152+e,2)}, {v(168+e,2)}")
        k(f"v_cvt_pk_bf16_f32 v{MV+e//2}, v{XF+e}, v{XF+e+1}")
    k(f"s_add_u32 s66, s4, {M.WS_H2:#x}")
    for i in range(2): k(f"buffer_store_dwordx4 {v(MV+4*i,4)}, v{3-i}, s[24:27], s66 offen sc1", token="H2S")
    k("s_add_u32 s7, s7, 0x8000")
    publish("H2S", 7)
    while nd < 8: put(k, dmaA(nd)); nd += 1
    if P["DYN"]:
        k.label("DREST")
        k("s_cmp_ge_u32 s50, 8"); k("s_cbranch_scc1 DRDONE")
        dyn_stage()
        k("s_branch DREST")
        k.label("DRDONE")
        k.vm = {"A7": 0}
    nb = 0
    while nb < P["TB0"]: put(k, dmaB(nb)); nb += 1
    k.wait("A7")
    await_(34, 16, "_2")
    stamp(k, "poll2")
    HP = P["HPRE"]
    for st in range(HP): put(k, hload(st))
    def readsA(step):
        return [f"ds_read_b64_tr_b16 {a(AF+16*(step%4)+4*t+2*u,2)}, v{VAA+t} offset:{2048*step+512*u}" for t in range(4) for u in range(2)]
    def readsB(step):
        st, ks = divmod(step, 4)
        reg, base = (VAB + 1, 6144 * st) if st < 2 else (VAB, 8192 * (st - 2))
        return [f"ds_read_b64_tr_b16 {a(AF+16*(step%4)+4*t+2*u,2)}, v{reg} offset:{base+96*(16*ks+4*u)+32*t}" for t in range(3) for u in range(2)]
    def mf(step, t0, nt):
        return [f"v_mfma_f32_32x32x16_bf16 {v(AC+16*(t0+t),16)}, {a(AF+16*(step%4)+4*t,4)}, {a(HB+4*step,4)}, {'0' if step == 0 else v(AC+16*(t0+t),16)}" for t in range(nt)]
    BFR = 0; AF2 = 224; AC2 = 0
    VW, VL2, T2 = 162, 168, 170
    sNB, sRB2, sA0, sA1, sAB = 50, 51, 52, 53, 57
    SW_, SA_ = 72, 76
    BLK = [3, 7, 8, 0, 4, 1, 2, 5, 6, 9]
    NSL = 20
    def slot_addr(sl): return BLK[sl // 2] * 16384 + (sl % 2) * 2048
    def setup2():
        o = [L(lambda: M.split2(k, 2, sNB, sRB2, 32 // P["F2R"], 32, sA0, sA1), 40)]
        o += [L(lambda: k.srd(12, 46, 1792 * 1024), 16), L(lambda: k.srd(16, 48, 2048 * 1024), 16)]
        o += [f"s_lshl_b32 s{sA0}, s{sNB}, 7", f"v_add_u32 v{VD0}, s{sA0}, v{VF+4}", f"v_add_u32 v{VD1}, {8*1024-1024}, v{VD0}",
              f"s_lshl_b32 s56, s{sW}, 12", f"v_add_u32 v{VL2}, {224*512}, v{VL16}",
              [f"s_mul_i32 s{sAB}, s{sRB2}, {2*224*512}", f"s_add_u32 s{sAB}, s{sAB}, {M.WS_ACT:#x}"], f"s_lshl_b32 s58, s{sW}, 2"]
        for j in range(4):
            o += [[f"s_add_u32 s{sA0}, s{sNB}, {j}", f"s_and_b32 s{sA0}, s{sA0}, 3", f"s_add_u32 s{SW_+j}, s{sA0}, s58"]]
        o += [f"v_lshl_add_u32 v{T2}, v{h_}, 3, v{r_}", f"v_lshlrev_b32 v{VW}, 7, v{T2}", f"v_lshl_add_u32 v{T2+1}, v{gn}, 2, v{c2}",
              f"v_lshl_add_u32 v{VW}, v{T2+1}, 3, v{VW}", f"v_lshrrev_b32 v{T2}, 1, v{r_}", f"v_lshl_add_u32 v{VW}, v{T2}, 6, v{VW}",
              f"v_add_u32 v{VW}, s56, v{VW}", f"v_xor_b32 v{VW+1}, 64, v{VW}"]
        o += [f"v_add_u32 v{VW+2+j}, {65536*(1+j//2)}, v{VW+j%2}" for j in range(4)]
        o += [[f"s_lshr_b32 s59, s{sRB2}, 1", "s_lshl_b32 s59, s59, 2", f"s_add_u32 s59, s59, s{sW}"], ["s_lshl_b32 s59, s59, 9", f"s_add_u32 s59, s59, {FL3:#x}", "s_add_u32 s61, s59, 0x8000"],
              ["s_lshl_b32 s60, s30, 4", "s_add_u32 s60, s60, s29", "s_lshl_b32 s60, s60, 7"], [f"s_add_u32 s60, s60, {FL3:#x}", "s_add_u32 s62, s60, 0x8000"]]
        return o
    KS2 = [(j, t) for j in range(4) for t in range(4)] + [(j, t) for j in range(4) for t in range(4, 7)]
    def wdma(i):
        sl = i % NSL; j, t = KS2[i]
        mul, add = (4, t) if t < 4 else (3, 60 + t)
        return [[f"s_mul_i32 s{sA0}, s{SW_+j}, {mul<<14}", f"s_add_u32 s{sA0}, s{sA0}, {add<<14}", f"s_add_u32 m0, s56, {slot_addr(sl)}"],
                f"buffer_load_dwordx4 v{VD0}, s[12:15], s{sA0} offen lds",
                L(lambda: k(f"buffer_load_dwordx4 v{VD1}, s[12:15], s{sA0} offen offset:1024 lds", token=f"D{sl}"), 10, "v")]
    def aload(i):
        j, t = KS2[i]
        pre_ = [[f"s_lshl_b32 s{SA_+j}, s{SW_+j}, 12", f"s_add_u32 s{SA_+j}, s{SA_+j}, s{sAB}"]] if t == 0 else []
        if t == 4: pre_ = [[f"s_mul_i32 s{SA_+j}, s{SW_+j}, 3072", f"s_add_u32 s{SA_+j}, s{SA_+j}, s{sAB}", f"s_add_u32 s{SA_+j}, s{SA_+j}, 65536"]]
        return pre_ + [f"buffer_load_dwordx4 {a(BFR+8*i,4)}, v{VL16}, s[24:27], s{SA_+j} offen offset:{1024*(t%4)}{SCA}",
                       f"buffer_load_dwordx4 {a(BFR+8*i+4,4)}, v{VL2}, s[24:27], s{SA_+j} offen offset:{1024*(t%4)}{SCA}"]
    K0_ = -2 * math.sqrt(2 / math.pi) * M.LOG2E
    pre = [[f"s_mov_b32 s40, {f32(K0_*0.044715)}", "s_mov_b32 s41, s40"], f"v_mov_b32 v{KC}, {f32(M.GK0/M.GSC if P['GS'] else K0_)}", f"v_mov_b32 v{KC+1}, {f32(M.GK0/M.GSC if P['GS'] else K0_)}",
           [f"s_lshl_b32 s42, s{sRB}, 2", f"s_add_u32 s42, s42, s{sW}", f"s_mul_i32 s42, s42, {224*512}"],
           [f"s_add_u32 s42, s42, {M.WS_ACT:#x}", f"s_mul_i32 s43, s{sFS}, 3072", "s_add_u32 s43, s43, s42"], ["s_add_u32 s43, s43, 65536", f"s_lshl_b32 s44, s{sFS}, 12", "s_add_u32 s42, s42, s44"]]
    def epi(t, pk):
        G = AC + 16 * t; E = 136 + 8 * (t % 2); D = 152 + 4 * (t % 2)
        GS = P["GS"]; ng = "-" if GS else ""
        if pk:
            if GS: o = [f"v_pk_fma_f32 {v(E+r,2)}, {v(G+r,2)}, {v(G+r,2)}, {v(KC,2)}" for r in range(0, 8, 2)]
            else:
                o = [f"v_pk_mul_f32 {v(E+r,2)}, {v(G+r,2)}, {v(G+r,2)}" for r in range(0, 8, 2)]
                o += [f"v_pk_fma_f32 {v(E+r,2)}, {v(E+r,2)}, s[40:41], {v(KC,2)}" for r in range(0, 8, 2)]
            o += [f"v_pk_mul_f32 {v(E+r,2)}, {v(E+r,2)}, {v(G+r,2)}" for r in range(0, 8, 2)]
            o += [f"v_exp_f32 v{E+r}, {ng}v{E+r}" for r in range(8)]
            o += [f"v_pk_mul_f32 {v(G+r,2)}, {v(G+r,2)}, {v(G+8+r,2)}" for r in range(0, 8, 2)]
            o += [f"v_pk_add_f32 {v(E+r,2)}, {v(E+r,2)}, 1.0 op_sel_hi:[1,0]" for r in range(0, 8, 2)]
            o += [f"v_rcp_f32 v{E+r}, v{E+r}" for r in range(8)]
            o += [f"v_pk_mul_f32 {v(G+r,2)}, {v(G+r,2)}, {v(E+r,2)}" for r in range(0, 8, 2)]
        else:
            if GS: o = [f"v_fma_f32 v{E+r}, v{G+r}, v{G+r}, v{KC}" for r in range(8)]
            else:
                o = [f"v_mul_f32 v{E+r}, v{G+r}, v{G+r}" for r in range(8)]
                o += [f"v_fma_f32 v{E+r}, v{E+r}, s40, v{KC}" for r in range(8)]
            o += [f"v_mul_f32 v{E+r}, v{E+r}, v{G+r}" for r in range(8)]
            for r in range(8): o += [f"v_exp_f32 v{E+r}, {ng}v{E+r}", f"v_mul_f32 v{G+r}, v{G+r}, v{G+8+r}"]
            o += [f"v_add_f32 v{E}, 1.0, v{E}"]
            for r in range(8): o += ([f"v_add_f32 v{E+r+1}, 1.0, v{E+r+1}"] if r < 7 else []) + [f"v_rcp_f32 v{E+r}, v{E+r}"]
            o += [f"v_mul_f32 v{G+r}, v{G+r}, v{E+r}" for r in range(8)]
        o += [f"v_cvt_pk_bf16_f32 v{D+j}, v{G+2*j}, v{G+2*j+1}" for j in range(4)]
        o.append(L(lambda: k(f"buffer_store_dwordx4 {v(D,4)}, v{VL16}, s[24:27], s{42 if t<4 else 43} offen offset:{1024*(t%4)} sc1", token="ST"), 10, "v"))
        return o
    RD = P.get("RDA", 2)
    put(k, readsA(0) + (readsA(1) if RD == 2 else []))
    sc = Sched(128); m_ = []
    for step in range(32):
        g0 = 4 * step
        if RD == 2: rd = readsA(step + 2) if step < 30 else readsB(step - 30)
        else: rd = (readsA(step + 1) if step < 31 else []) + (readsB(step - 30) if step >= 30 else [])
        sc.add(rd, g0, g0 + (4 if RD == 2 else P["RDW"]), prio=1)
        sc.pin(g0 + 3, L(lambda step=step: k.wait_regs(a(AF + 16 * ((step + 1) % 4), 16), a(HB + 4 * ((step + 1) % 32), 4))), end=True)
        m_ += mf(step, 0, 4)
    sc.add([x for st in range(HP, 8) for x in hload(st)], 0, P["HEND"])
    lo = P["HEND"]
    for b_ in range(nb, 8):
        if b_ >= 2:
            gb = 16 * (b_ - 1) + 2
            if b_ % 2 == 1: sc.pin(gb, "s_barrier")
            gfree = 16 * ((b_ | 1) - 1) + 2
            lo = max(lo, gfree)
        if lo + 8 <= 128: sc.add(dmaB(b_), lo, lo + 8); lo += 8; nb = b_ + 1
        else: break
    sc.add(setup2(), 8, 64); sc.add(pre, 64, 100)
    sc.pin(120, L(lambda: (k.wait("B0", "B1"), k("s_barrier")), 8))
    for m, f_ in zip(m_, sc.run()):
        k(m); put(k, f_)
        if P.get("PADA"): k(f"s_nop {P['PADA']}")
    stamp(k, "passA")
    sc = Sched(96); m_ = []
    for step in range(32):
        g0 = 3 * step
        if step < 30:
            if step % 8 == 6: sc.pin(g0, L(lambda step=step: (k.wait(f"B{(step+2)//4}", f"B{(step+2)//4+1}"), k("s_barrier")), 8))
            sc.add(readsB(step + 2), g0, g0 + 3, prio=1)
        if step < 31: sc.pin(g0 + 2, L(lambda step=step: k.wait_regs(a(AF + 16 * ((step + 1) % 4), 12))), end=True)
        m_ += mf(step, 4, 3)
    ld = [x for b_ in range(nb, 8) for x in dmaB(b_)]
    sc.add(ld, 0, 30)
    E_END = P["EEND"]
    NH = P["NHID"]
    sc.add([x for t in range(NH) for x in epi(t, False)], 2, E_END)
    sc.add([x for i in range(4) for x in wdma(i)], 30, 48)
    sc.add([x for i in range(4, 6) for x in wdma(i)], 48, 66)
    sc.add([x for i in range(6, 10) for x in wdma(i)], 67, 92)
    if NH == 4: sc.pin(P["PUBA"], L(lambda: (k.wait("ST"), k("s_barrier"), flag_store(60)), 18))
    sc.pin(93, L(lambda: (k.wait_all(vm=False), k("s_barrier")), 8))
    for m, f_ in zip(m_, sc.run()):
        k(m); put(k, f_)
        if P.get("PADB"): k(f"s_nop {P['PADB']}")
    stamp(k, "ffn1")
    for _ in range(P.get("DLY2", 0)): k("s_sleep 38")
    n = 10
    if NH < 4:
        for t in range(NH, 4): put(k, epi(t, True))
    W1 = P["FW1"]
    for t in range(4, 7):
        per = (W1 // 2) if t < 6 else 0
        for j in range(per): put(k, wdma(n)); n += 1
        put(k, epi(t, True))
    if NH < 4: k.wait("ST"); k("s_barrier"); flag_store(60)
    X1R, GB = 176, 184
    k(f"s_lshl_b32 s54, s{sRB2}, 1"); k(f"s_and_b32 s55, s{sW}, 1"); k("s_add_u32 s63, s54, s55")
    k(f"s_lshr_b32 s64, s{sW}, 1"); k("s_lshl_b32 s64, s64, 2"); k(f"s_lshl_b32 s54, s{sNB}, 3"); k("s_add_u32 s64, s64, s54")
    k("s_lshl_b32 s65, s63, 15"); k("s_lshl_b32 s55, s64, 9"); k("s_add_u32 s65, s65, s55"); k(f"s_add_u32 s65, s65, {M.WS_X1:#x}")
    k(f"v_lshlrev_b32 v{T2}, 5, v{h_}")
    k("s_lshl_b32 s55, s64, 5"); k(f"s_add_u32 s55, s55, {M.WS_MOD+5*2048}")
    spin(59, 4, "_3")
    k("s_barrier"); flag_store(62)
    stamp(k, "pub3")
    APRE = P["APRE"]
    for i in range(APRE): put(k, aload(i))
    def reads2(i):
        sl = i % NSL; ad = slot_addr(sl)
        rd = [f"ds_read_b64_tr_b16 {a(AF2+8*(i%4)+4*a_+2*u,2)}, v{VW+2*(ad>>16)+a_} offset:{(ad&0xffff)+512*u}" for a_ in range(2) for u in range(2)]
        return [[L(lambda: k.wait(f"D{sl}")), rd[0]]] + rd[1:]
    put(k, reads2(0) + reads2(1))
    stamp(k, "poll3")
    CH = P["BCHK"]
    nal = APRE; polled = False
    FT = P["FTM"]
    t2 = T2 + 2
    if FT: k(f"v_add_u32 v{t2+1}, s56, v{VL16}"); k(f"v_add_u32 v{t2+1}, 0x10000, v{t2+1}")
    for i in range(24 if FT else 28):
        if i == CH: spin(61, 4, "_4", first_issued=True)
        sc = Sched(4, budget=40)
        if i + 2 < 28: sc.add(reads2(i + 2), 0, 4, prio=1)
        if i + 1 < 28: sc.pin(3, L(lambda i=i: k.wait_regs(a(AF2 + 8 * ((i + 1) % 4), 8), a(BFR + 8 * (i + 1), 8))), end=True)
        ld = []
        for _ in range(2):
            if nal < (28 if i >= CH else 16): ld += aload(nal); nal += 1
            elif n < 28 and n - NSL < i: ld += wdma(n); n += 1
        if n < 28 and n - NSL < i and n <= i + 6: ld += wdma(n); n += 1
        if i == CH - P["BLEAD"]:
            ld += [["s_mov_b64 exec, 15", f"buffer_load_dword v{VF+1}, v{VF}, s[24:27], s61 offen sc1", "s_mov_b64 exec, -1"]]
        if i == 20:
            ld += [f"buffer_load_dwordx4 {v(X1R+4*sp,4)}, v{VL16}, s[24:27], s65 offen offset:{1024*sp} sc1" for sp in range(2)]
            ld += [f"buffer_load_dwordx4 {v(GB+8*sp+4*q,4)}, v{T2}, s[24:27], s55 offen offset:{64*sp+16*q} sc1" for sp in range(2) for q in range(2)]
        sc.add(ld, 0, 4)
        mf2 = [f"v_mfma_f32_32x32x16_bf16 {v(AC2+32*a_+16*rt,16)}, {a(AF2+8*(i%4)+4*a_,4)}, {a(BFR+8*i+4*rt,4)}, {'0' if i==0 else v(AC2+32*a_+16*rt,16)}" for a_ in range(2) for rt in range(2)]
        for m, f_ in zip(mf2, sc.run()): k(m); put(k, f_)
    assert n == 28 and nal == 28
    def rwr(t_): return [L(lambda q=q: k(f"ds_write_b128 v{t2+1}, {v(AC2+16*t_+4*q,4)} offset:{16384*t_+1024*q}", token="red"), 22, "d") for q in range(4)]
    if FT:
        sc = Sched(16)
        r26, r27 = reads2(26), reads2(27)
        put(k, r26[:2])
        sc.add(r27[:2] + r26[2:] + r27[2:], 0, 4, prio=1)
        for t_ in range(3): sc.add(rwr(t_), 4 * t_ + 6, min(4 * t_ + 10, 16))
        mf2 = [f"v_mfma_f32_32x32x16_bf16 {v(AC2+16*t_,16)}, {a(AF2+8*(i%4)+4*(t_>>1),4)}, {a(BFR+8*i+4*(t_&1),4)}, {v(AC2+16*t_,16)}" for t_ in range(4) for i in range(24, 28)]
        for m, f_ in zip(mf2, sc.run()): k(m); put(k, f_)
    stamp(k, "ffn2")
    if not FT:
        k("s_barrier")
        k(f"s_lshl_b32 s54, s{sW}, 14"); k(f"v_add_u32 v{t2+1}, s54, v{VL16}")
        for q in range(16): k(f"ds_write_b128 v{t2+1}, {v(AC2+4*q,4)} offset:{1024*q}", token="red")
    R_ = 64
    for r in range(16):
        if r % 2 == 0: k(f"v_lshlrev_b32 v{128+r}, 16, v{X1R+r//2}")
        else: k(f"v_and_b32 v{128+r}, s67, v{X1R+r//2}")
    k(f"v_and_b32 v{t2}, 31, v{TT}"); k(f"v_lshlrev_b32 v{t2}, 10, v{t2}"); k(f"v_lshl_add_u32 v{t2}, v{h_}, 4, v{t2}")
    if FT:
        k(f"s_lshl_b32 s54, s{sW}, 14"); k("s_add_u32 s54, s54, 0x10000"); k(f"v_add_u32 v{t2+2}, s54, v{VL16}")
        put(k, rwr(3))
    else: k(f"v_add_u32 v{t2+2}, s56, v{VL16}")
    k("s_lshl_b32 s54, s63, 15"); k("s_lshl_b32 s55, s64, 4"); k("s_add_u32 s54, s54, s55")
    k.wait("red"); k("s_barrier")
    for q in range(4):
        for ww in range(4): k(f"ds_read_b128 {v(R_+16*ww+4*q,4)}, v{t2+2} offset:{(4096 if FT else 16384)*ww+1024*q}")
    for sp in range(2):
        for r in range(8 * sp, 8 * sp + 8, 2):
            k(f"v_pk_add_f32 {v(R_+r,2)}, {v(R_+r,2)}, {v(R_+16+r,2)}"); k(f"v_pk_add_f32 {v(R_+32+r,2)}, {v(R_+32+r,2)}, {v(R_+48+r,2)}")
        for r in range(8 * sp, 8 * sp + 8, 2): k(f"v_pk_add_f32 {v(R_+r,2)}, {v(R_+r,2)}, {v(R_+32+r,2)}")
        for r in range(8 * sp, 8 * sp + 8, 2): k(f"v_pk_fma_f32 {v(R_+r,2)}, {v(R_+r,2)}, {v(GB+r,2)}, {v(128+r,2)}")
        for j in range(4 * sp, 4 * sp + 4): k(f"v_cvt_pk_bf16_f32 v{144+j}, v{R_+2*j}, v{R_+2*j+1}")
        k(f"buffer_store_dwordx4 {v(144+4*sp,4)}, v{t2}, s[16:19], s54 offen offset:{32*sp} sc1")
```

```python
import sys, struct, math, os, json
from asmlib import *

def f32(x): return "0x%08x" % struct.unpack("<I", struct.pack("<f", x))[0]
LOG2E = 1.4426950408889634
CS = 128 ** -0.5
A_X, A_K, A_V, A_WQ, A_WO, B_X, A_WG, A_WU, A_WD, A_C, A_WM, A_OUT, A_DBG, A_WS = [8 * i for i in range(14)]
WS_MOD = 0x0
WS_GO = 0x18000
WS_FL = 0x20000
WS_ST = 0x10000
WS_P = 0x400000
WS_X1 = 0x1400000
WS_H2 = 0x1600000
WS_ACT = 0x1800000
WS_BYTES = 0x10000000
WS_DBG = 0x8000000
P = dict(STAMPS=0, G=2, ROT=1, F1R=8, F2R=8, PREF0=1, PREFC=1, PREFQ=1, PREFK=1, PORD=1, XPRE=0, TLBW=1, PBAR=3, WPOS=1, DEFER=1, SYNC=1, LFIRST=0, SLEEP=2, OSC=1, SLEEP2=4, FW1=6, FW2=20, F2PRE=12, OTM=1, DYN=0, ONEP=0, DPER=2, RDA=1, RDW=4, QRW=5, PUBP=0, FTM=1, WARM=1, WOFF=1, ORD0=0, ODE=32, OBUD=8, ROLE=0, VP=0, KPOS=0, PFK=0, GS=1, NHID=4, TOUCH=0, N0=4, QP0=10, QBURST=1, TW1=8, TWM=8, TB0=2, HEND=32, APRE=6, BLEAD=4, EEND=64, PUBA=76, WLAG=4, BCHK=10, TW2=5, HPRE=3, PSYS=0, WPRE=2, BURST=54, KEARLY=0, BIAS=96, FORCE_FB=0, PNT=0, PST=2, AST=2, PF1=1, PF2=1)
for kv in os.environ.get("GP", "").split(","):
    if kv: P[kv.split("=")[0]] = int(kv.split("=")[1])

def stamp(k, name):
    if not P["STAMPS"]: return
    SETS = {0: ("start", "mod", "qgemm", "it0", "it1-6", "owrite", "ogemm", "t_set", "end"), 1: ("start", "gemv", "stats", "poll", "mod", "qgemm", "end"),
            3: ("start", "t_set", "poll1", "x1", "poll2", "ffn1", "pub3", "poll3", "end"), 7: ("start", "end"), 8: ("start", "mod", "ogemm", "poll2", "ffn1", "pub3", "ffn2", "end"), 9: ("start", "t_set", "poll2", "end"), 10: ("start", "poll2", "pub3", "end"), 6: ("start", "poll2", "passA", "ffn1", "pub3", "poll3", "ffn2", "end"), 4: ("start", "mod", "q0", "q1", "q2", "qgemm", "end"), 5: ("start", "owrite", "q0o", "q1o", "q2o", "ogemm", "end")}
    if name not in SETS[P.get("DG", 0)]: return
    i = len(k.stamps); k.stamps.append(name)
    assert i < 9
    k.sgpr = 102
    k("s_memtime s[80:81]"); k("s_memrealtime s[100:101]"); k("s_waitcnt lgkmcnt(0)")
    k(f"s_mov_b32 s{82+2*i}, s80"); k(f"s_mov_b32 s{83+2*i}, s100")
def stamp_begin(k):
    k.stamps = []
    if not P["STAMPS"]: return
    stamp(k, "start")
def stamp_flush(k, kidx):
    if not P["STAMPS"]: return
    stamp(k, "end")
    if P["STAMPS"] == 2:
        lab = k.newlabel("NODBG")
        k("s_mov_b64 exec, -1")
        k(f"s_xor_b32 s100, s2, {P.get('DWG', 200)}"); k("s_or_b32 s100, s100, s101"); k("s_cmp_lg_u32 s100, 0"); k(f"s_cbranch_scc1 {lab}")
        k(f"s_load_dwordx2 s[66:67], s[0:1], {A_DBG}")
        k.srd(60, 66, 256)
        k("v_mov_b32 v1, 0")
        n = len(k.stamps)
        for j in range(1, n):
            k(f"s_sub_u32 s100, s{77+2*j}, s77"); k("v_mov_b32 v0, s100")
            k(f"buffer_store_dword v0, v1, s[60:63], 0 offen offset:{4*j}")
        k(f"s_sub_u32 s100, s{76+2*(n-1)}, s76"); k("v_mov_b32 v0, s100")
        k(f"buffer_store_dword v0, v1, s[60:63], 0 offen offset:{4*n}")
        k.label(lab)
        return
    k(f"s_load_dwordx2 s[64:65], s[0:1], {A_WS}")
    k("s_mov_b64 exec, -1")
    k.srd(56, 64, WS_BYTES)
    k("s_lshl_b32 s100, s2, 3"); k("s_add_u32 s100, s100, s28"); k("s_lshl_b32 s100, s100, 8")
    k(f"s_add_u32 s100, s100, {WS_DBG + kidx*0x100000:#x}")
    k("v_mov_b32 v1, 0")
    for j, sr in enumerate([82 + i for i in range(2*len(k.stamps))]):
        k(f"v_mov_b32 v0, s{sr}")
        k(f"buffer_store_dword v0, v1, s[56:59], s100 offen offset:{4*j}")

def wave_id(k, sdst, vtmp):
    k(f"v_lshrrev_b32 v{vtmp}, 6, v0")
    k(f"v_readfirstlane_b32 s{sdst}, v{vtmp}")
def rowsum_8(k, val, tmp):
    k(f"v_add_f32_dpp v{val}, v{val}, v{val} row_ror:8 row_mask:0xf bank_mask:0xf")
    k(f"v_mov_b32 v{tmp}, v{val}"); k(f"v_permlane16_swap_b32 v{val}, v{tmp}"); k(f"v_add_f32 v{val}, v{val}, v{tmp}")
    k(f"v_mov_b32 v{tmp}, v{val}"); k(f"v_permlane32_swap_b32 v{val}, v{tmp}"); k(f"v_add_f32 v{val}, v{val}, v{tmp}")
def rnd(k, d, sreg): k(f"v_cvt_pk_bf16_f32 v{d}, 0, v{sreg}")
def lg2(x): return x.bit_length() - 1
def split2(k, sb, sA, sB, nA_per, nB_total, t0, t1):
    A_total = 256 // nB_total; NA = A_total // nA_per
    k(f"s_and_b32 s{t0}, s{sb}, 7"); k(f"s_lshr_b32 s{t1}, s{sb}, 3")
    k(f"s_and_b32 s{sA}, s{t0}, {NA-1}"); k(f"s_lshl_b32 s{sA}, s{sA}, {lg2(nA_per)}")
    k(f"s_and_b32 s{sB}, s{t1}, {nA_per-1}"); k(f"s_add_u32 s{sA}, s{sA}, s{sB}")
    k(f"s_lshr_b32 s{sB}, s{t0}, {lg2(NA)}"); k(f"s_lshl_b32 s{sB}, s{sB}, {lg2(32//nA_per)}")
    k(f"s_lshr_b32 s{t1}, s{t1}, {lg2(nA_per)}"); k(f"s_add_u32 s{sB}, s{sB}, s{t1}")
def lane_tr_parts(k, lane, r, c2, gn, h, tmp):
    k(f"v_bfe_u32 v{r}, v{lane}, 2, 2")
    k(f"v_and_b32 v{c2}, 1, v{lane}"); k(f"v_lshlrev_b32 v{c2}, 1, v{c2}")
    k(f"v_bfe_u32 v{tmp}, v{lane}, 1, 1"); k(f"v_or_b32 v{c2}, v{c2}, v{tmp}")
    k(f"v_bfe_u32 v{gn}, v{lane}, 4, 1")
    k(f"v_lshrrev_b32 v{h}, 5, v{lane}")

QS = CS * LOG2E
GK0 = 2 * math.sqrt(2 / math.pi) * LOG2E
GSC = (GK0 * 0.044715) ** (1 / 3)
KNAME = "adaLN_cond__sliding_block_cached__geglu_ffn__prompt_kernel"
def ln_stats(k, XF):
    k(f"v_pk_add_f32 v[10:11], {v(XF,2)}, {v(XF+2,2)}")
    for e in range(4, 16, 2): k(f"v_pk_add_f32 v[10:11], v[10:11], {v(XF+e,2)}")
    k("v_add_f32 v10, v10, v11")
    def allreduce(off):
        rowsum_8(k, 10, 11)
        k(f"ds_write_b32 v9, v10 offset:{off}", token="w"); k.wait("w"); k("s_barrier")
        k(f"ds_read_b128 {v(12,4)}, v8 offset:{off}")
        k("v_add_f32 v12, v12, v13"); k("v_add_f32 v14, v14, v15"); k("v_add_f32 v10, v12, v14")
    allreduce(0)
    k(f"v_mul_f32 v58, {f32(-1/512)}, v10"); k("v_mov_b32 v59, v58")
    for e in range(0, 16, 2): k(f"v_pk_add_f32 {v(XF+e,2)}, {v(XF+e,2)}, v[58:59]")
    k(f"v_pk_mul_f32 v[10:11], {v(XF,2)}, {v(XF,2)}")
    for e in range(2, 16, 2): k(f"v_pk_fma_f32 v[10:11], {v(XF+e,2)}, {v(XF+e,2)}, v[10:11]")
    k("v_add_f32 v10, v10, v11")
    allreduce(128)
    k(f"v_mov_b32 v11, {f32(1e-5)}"); k(f"v_fmac_f32 v11, {f32(1/512)}, v10")
    k("v_rsq_f32 v56, v11"); k("v_mov_b32 v57, v56")

def gen_ln2():
    k = Kernel("ln2_kernel", 256, 256, 256, vgpr=160, sgpr=64)
    k("s_cmp_ge_u32 s2, 256"); k("s_cbranch_scc1 END_ln2")
    stamp_begin(k)
    k(f"s_load_dwordx2 s[4:5], s[0:1], {A_X}")
    k(f"s_load_dwordx2 s[6:7], s[0:1], {A_WS}")
    k("v_and_b32 v1, 7, v0"); k("v_lshrrev_b32 v2, 3, v0"); k("v_lshrrev_b32 v6, 6, v0")
    k("v_and_b32 v7, 7, v2"); k("v_lshl_add_u32 v7, v6, 4, v7")
    k("v_lshlrev_b32 v3, 9, v7"); k("v_lshl_add_u32 v3, v1, 4, v3")
    k("v_add_u32 v2, 4096, v3")
    k("v_lshlrev_b32 v4, 10, v1"); k("v_lshl_add_u32 v4, v7, 4, v4")
    k("v_lshlrev_b32 v5, 5, v7")
    k("v_lshlrev_b32 v8, 4, v1"); k("v_lshl_add_u32 v9, v6, 2, v8")
    k("s_and_b32 s25, s2, 7"); k("s_lshl_b32 s25, s25, 5"); k("s_lshr_b32 s26, s2, 3"); k("s_add_u32 s25, s25, s26")
    k("s_lshl_b32 s20, s25, 13")
    k("s_lshr_b32 s21, s25, 2"); k("s_lshl_b32 s21, s21, 15"); k("s_and_b32 s22, s25, 3"); k("s_lshl_b32 s22, s22, 7")
    k("s_add_u32 s21, s21, s22")
    k(f"s_add_u32 s23, s21, {WS_P:#x}")
    k.srd(12, 6, WS_BYTES)
    X = 16; XF = 24; MV = 40; PB = 64
    for g in range(8):
        for i in range(2):
            k(f"buffer_load_dwordx4 {v(PB+8*g+4*i,4)}, v{3-i}, s[12:15], s23 offen" + (" nt" if P["PNT"] else ""))
        if g < 7: k("s_add_u32 s23, s23, 0x200000")
    k.srd(8, 4, 2048 * 1024)
    for i in range(2): k(f"buffer_load_dwordx4 {v(X+4*i,4)}, v4, s[8:11], s20 offen offset:{128*i}")
    k("v_mov_b32 v10, 0"); k("s_lshl_b32 s27, s2, 7"); k(f"s_add_u32 s27, s27, {WS_FL:#x}")
    k("buffer_store_dword v10, v10, s[12:15], s27 offen sc1")
    k("s_mov_b32 s24, 0xffff0000")
    def load_mod(base, m):
        k(f"s_mov_b32 s23, {WS_MOD + m*2048}")
        for i in range(2):
            for hh in range(2):
                k(f"buffer_load_dwordx4 {v(base+8*i+4*hh,4)}, v5, s[12:15], s23 offen offset:{256*i+16*hh}")
    def unpack(dst, src):
        k(f"v_lshlrev_b32 v{dst}, 16, v{src}"); k(f"v_and_b32 v{dst+1}, s24, v{src}")
    load_mod(MV, 2); load_mod(128, 4); load_mod(144, 3)
    for q in range(8): unpack(XF + 2 * q, PB + q)
    for g in range(1, 8):
        for q in range(8):
            unpack(10 + 2 * (q & 1), PB + 8 * g + q)
            k(f"v_pk_add_f32 {v(XF+2*q,2)}, {v(XF+2*q,2)}, {v(10+2*(q&1),2)}")
    for q in range(8):
        unpack(10, X + q)
        k(f"v_pk_fma_f32 v[10:11], {v(XF+2*q,2)}, {v(MV+2*q,2)}, v[10:11]")
        k(f"v_cvt_pk_bf16_f32 v{X+q}, v10, v11")
        unpack(XF + 2 * q, X + q)
    k(f"s_add_u32 s23, s21, {WS_X1:#x}")
    for i in range(2): k(f"buffer_store_dwordx4 {v(X+4*i,4)}, v{3-i}, s[12:15], s23 offen sc1")
    stamp(k, "x1")
    ln_stats(k, XF)
    stamp(k, "stats")
    for e in range(0, 16, 2):
        k(f"v_pk_mul_f32 {v(XF+e,2)}, {v(XF+e,2)}, v[56:57]")
        k(f"v_pk_fma_f32 {v(XF+e,2)}, {v(XF+e,2)}, {v(128+e,2)}, {v(144+e,2)}")
        k(f"v_cvt_pk_bf16_f32 v{MV+e//2}, v{XF+e}, v{XF+e+1}")
    k(f"s_add_u32 s23, s21, {WS_H2:#x}")
    for i in range(2): k(f"buffer_store_dwordx4 {v(MV+4*i,4)}, v{3-i}, s[12:15], s23 offen sc1")
    stamp_flush(k, 1)
    k.label("END_ln2"); k("s_endpgm")
    return k

def put(k, seq):
    for x in seq:
        if isinstance(x, list): put(k, x)
        elif callable(x): x()
        else: k(x)

def warm(k, sW):
    k.stub_offs = {1: [0], 2: [0, 128], 3: [0, 2048], 4: [0, 1024, 2048, 3072]}[P["WOFF"]]; k.stub_end = "END_attn"
    k("s_mov_b64 exec, 0")
    for w in range(3): k(f"s_cmp_eq_u32 s{sW}, {w}"); k(f"s_cbranch_scc1 STUB{w}")
    k("s_branch STUB3")
    k.label("WARM_RET")
    k("s_mov_b64 exec, -1")

def gen_attn():
    k = Kernel(KNAME, 256, 256, 163840, vgpr=256, agpr=256, sgpr=82)
    k.denorm32 = P.get("DEN", 3)
    L_K, L_H, L_V, L_W, L_M = 0, 32768, 32768, 98304, 16384
    ACC = 0; S = 0; CI = 64; Q = 128
    VK = 192; VV = 200; VW = 204; VDW = 208; VDK = 212; VDV = 214; VLIN = 215; VL16 = 216
    LS = 217; VLO = 219
    T = 220
    LN_, ROWL, GR16 = T, T + 1, T + 2
    r_, c2, gn, h_, tm = T + 3, T + 4, T + 5, T + 6, T + 7
    CH8 = T + 10; HW = T + 11
    VX = T + 13; VM = T + 15
    MX = T + 16
    STT = T + 24
    RL = T + 28; UT = T + 28
    O = 0; FR = 128; AF = 128; BF = 160
    sW, sG, sRB, sT0, sT1, sRING, sST, sFB, sROT, sT2 = 28, 29, 30, 32, 33, 34, 35, 39, 50, 51
    sE0, sE1, sE2 = 61, 62, 63
    sO0, sO1, sO2, sW2K, sW256, sKhi, sMASK, sCC, sR8 = 36, 37, 38, 52, 54, 55, 58, 59, 6
    TAB = 72
    def L(f, cost=4, mem=False):
        f.cost = cost; f.mem = mem; return f
    k("s_cmp_ge_u32 s2, 256"); k("s_cbranch_scc1 END_attn")
    stamp_begin(k)
    k(f"s_mov_b32 s{sFB}, 0")
    if P["PREFC"]:
        k("s_getpc_b64 s[56:57]")
        k.label("PCREF")
        k(f"s_lshr_b32 s{sT1}, s2, 3"); k(f"s_lshl_b32 s{sT1}, s{sT1}, 12")
        k("v_lshlrev_b32 v108, 4, v0"); k(f"v_add_u32 v108, s{sT1}, v108"); k("v_min_u32 v108, CODE_END-PCREF-16, v108")
        k("global_load_dwordx4 a[252:255], v108, s[56:57]")
    wave_id(k, sW, T)
    k(f"v_and_b32 v{LN_}, 63, v0")
    k.label("RESTART")
    k(f"s_load_dwordx4 s[8:11], s[0:1], {A_C}")
    k(f"s_load_dwordx2 s[4:5], s[0:1], {A_X}")
    k(f"s_load_dwordx4 s[68:71], s[0:1], {A_DBG}")
    k(f"s_load_dwordx8 s[40:47], s[0:1], {A_K}")
    if P["TOUCH"]:
        k(f"s_load_dwordx4 s[84:87], s[0:1], {A_WG}"); k(f"s_load_dwordx2 s[88:89], s[0:1], {A_WD}"); k(f"s_load_dwordx2 s[90:91], s[0:1], {A_OUT}")
    L_R = L_M + 4096
    PSC = "sc1"
    GW, GC, GA = 64, 80, 88
    k(f"v_lshl_add_u32 v99, s{sW}, 6, v{LN_}")
    k("v_and_b32 v100, 1, v99"); k("v_lshrrev_b32 v101, 1, v99")
    k("v_mul_u32_u24 v102, 6144, v101"); k("v_lshl_add_u32 v102, v100, 4, v102"); k("v_lshlrev_b32 v103, 1, v101")
    k("v_lshrrev_b32 v104, 4, v99"); k("v_lshlrev_b32 v104, 6, v104"); k("v_lshl_add_u32 v104, v100, 5, v104")
    sSL = 7; sPR = 53
    k(f"s_lshr_b32 s{sT1}, s2, 3")
    RM = P["ROLE"]
    if RM == 0:
        k(f"s_and_b32 s{sT0}, s2, 7")
        k(f"s_lshl_b32 s{sSL}, s{sT0}, 3"); k(f"s_add_u32 s{sSL}, s{sSL}, s{sT1}")
        k(f"s_lshl_b32 s{sT2}, s{sT0}, 4"); k(f"s_add_u32 s{sT2}, s{sT2}, s{sT1}"); k(f"s_add_u32 s{sT2}, s{sT2}, 56")
        k("s_cmp_lt_u32 s2, 64"); k(f"s_cselect_b32 s{sSL}, s{sSL}, s{sT2}")
        k("s_cmp_lt_u32 s2, 192"); k(f"s_cselect_b32 s{sSL}, s{sSL}, 255")
    elif RM in (1, 2):
        k(f"s_bfe_u32 s{sT0}, s2, 0x20001")
        k(f"s_lshl_b32 s{sSL}, s{sT0}, 4"); k(f"s_add_u32 s{sSL}, s{sSL}, s{sT1}")
        k(f"s_cmp_lt_u32 s{sT1}, 16"); k(f"s_cselect_b32 s{sSL}, s{sSL}, 255")
        k(f"s_lshl_b32 s{sT2}, s{sT0}, 5"); k(f"s_add_u32 s{sT2}, s{sT2}, s{sT1}"); k(f"s_add_u32 s{sT2}, s{sT2}, 64")
        k("s_bitcmp1_b32 s2, 0")
        k(f"s_cselect_b32 s{sSL}, s{sSL}, s{sT2}" if RM == 1 else f"s_cselect_b32 s{sSL}, s{sT2}, s{sSL}")
    else:
        k(f"s_bfe_u32 s{sT0}, s2, 0x20001"); k(f"s_and_b32 s{sT2}, s{sT1}, 15")
        k(f"s_lshl_b32 s{sSL}, s{sT0}, 4"); k(f"s_add_u32 s{sSL}, s{sSL}, s{sT2}")
        k(f"s_lshr_b32 s{sT2}, s{sT1}, 4"); k(f"s_and_b32 s{sT0}, s2, 1"); k(f"s_lshl_b32 s{sT0}, s{sT0}, 1"); k(f"s_add_u32 s{sT2}, s{sT2}, s{sT0}")
        k(f"s_lshl_b32 s{sT2}, s{sT2}, 6"); k(f"s_add_u32 s{sSL}, s{sSL}, s{sT2}")
    k(f"s_cmp_lt_u32 s{sSL}, 64")
    k(f"s_cselect_b32 s{sPR}, s{sFB}, 1")
    k(f"s_lshl_b32 s31, s{sSL}, 5")
    k(f"v_lshlrev_b32 v{VL16}, 4, v{LN_}")
    G = P["G"]
    NG = 8 // G; NS = 32 // G
    k(f"s_and_b32 s{sG}, s2, {NG-1}"); k(f"s_lshl_b32 s{sG}, s{sG}, {lg2(G)}"); k(f"s_lshr_b32 s{sT0}, s2, {3+lg2(NS)}"); k(f"s_add_u32 s{sG}, s{sG}, s{sT0}")
    k(f"s_bfe_u32 s{sROT}, s2, {3 | (lg2(NS) << 16):#x}")
    k(f"s_and_b32 s{sRB}, s2, 7"); k(f"s_lshr_b32 s{sRB}, s{sRB}, {lg2(NG)}"); k(f"s_lshl_b32 s{sRB}, s{sRB}, {lg2(NS)}"); k(f"s_add_u32 s{sRB}, s{sRB}, s{sROT}")
    k(f"s_lshl_b32 s{sROT}, s{sROT}, {lg2(G)}")
    k(f"s_and_b32 s{sR8}, s{sROT}, 7"); k(f"s_lshr_b32 s{sCC}, s{sROT}, 3")
    RR, CGL = tm, tm + 1
    k(f"v_bfe_u32 v{RR}, v{LN_}, 2, 3")
    k(f"v_lshrrev_b32 v{CGL}, 5, v{LN_}"); k(f"v_lshlrev_b32 v{CGL}, 2, v{CGL}"); k(f"v_and_or_b32 v{CGL}, v{LN_}, 3, v{CGL}")
    k(f"v_lshlrev_b32 v{VX}, 10, v{RR}"); k(f"v_lshl_add_u32 v{VX}, v{CGL}, 4, v{VX}"); k(f"v_add_u32 v{VX+1}, 8192, v{VX}")
    XS = [48, 49, 56, 57]
    k(f"s_lshl_b32 s48, s{sRB}, 16"); k(f"s_lshl_b32 s{sT2}, s{sW}, 8"); k(f"s_add_u32 s48, s48, s{sT2}")
    for c in range(1, 4): k(f"s_add_u32 s{XS[c]}, s48, {16384*c}")
    XP = 128
    xl = [f"buffer_load_dwordx4 {v(XP+8*o+4*cb,4)}, v{VX+(o&1)}, s[16:19], s{XS[o>>1]} offen offset:{128*cb}" for o in range(8) for cb in range(2)]
    k.srd(12, 10, 512 * 6144); k.srd(20, 8, 1024); k.srd(16, 4, 2048 * 1024)
    def gemv_loads(late=False):
        k(f"s_mov_b32 s{sT0}, s31")
        for i in range(4):
            k(f"buffer_load_dwordx4 {a(224+4*i,4) if late else v(GW+4*i,4)}, v102, s[12:15], s{sT0} offen")
            if i < 3: k(f"s_add_u32 s{sT0}, s{sT0}, {128*6144}")
    for i in range(4): k(f"buffer_load_ushort v{GC+i}, v103, s[20:23], 0 offen offset:{256*i}")
    k.srd(24, 70, WS_BYTES)
    k(f"s_lshl_b32 s{sE2}, s{sW}, 10"); k(f"s_add_u32 s{sE2}, s{sE2}, {WS_GO:#x}")
    k(f"v_lshrrev_b32 v{MX+5}, 5, v{LN_}"); k(f"v_lshlrev_b32 v{MX+4}, 7, v{RR}"); k(f"v_lshl_add_u32 v{MX+4}, v{MX+5}, 12, v{MX+4}")
    k(f"v_and_b32 v{MX+5}, 3, v{LN_}"); k(f"v_lshl_add_u32 v{MX+4}, v{MX+5}, 4, v{MX+4}")
    k(f"buffer_load_dwordx4 {v(MX,4)}, v{MX+4}, s[24:27], s{sE2} offen sc1")
    k(f"v_lshlrev_b32 v109, 2, v{LN_}"); k(f"s_lshl_b32 s{sE1}, s{sSL}, 7"); k(f"s_add_u32 s{sE1}, s{sE1}, {WS_GO:#x}")
    k(f"buffer_load_dword v110, v109, s[24:27], s{sE1} offen sc1")
    k(f"s_xor_b32 s{sE0}, s{sW}, 3"); k(f"s_or_b32 s{sE0}, s{sE0}, s{sFB}")
    k(f"s_cmp_lg_u32 s{sE0}, 0"); k("s_cbranch_scc1 NOZERO")
    k(f"v_lshlrev_b32 v111, 15, v{LN_}"); k("v_mov_b32 v107, 0"); k(f"s_lshl_b32 s{sT0}, s2, 7"); k(f"s_add_u32 s{sT0}, s{sT0}, {WS_FL:#x}")
    k("s_mov_b64 exec, 15")
    k(f"buffer_store_dword v107, v111, s[24:27], s{sT0} offen sc1")
    k("s_mov_b64 exec, -1")
    k.label("NOZERO")
    k.vm = {kk: max(p - 1, 0) for kk, p in k.vm.items()}
    k(f"s_cmp_eq_u32 s{sPR}, 0"); k("s_cbranch_scc1 PLOAD")
    s_a = (dict(k.vm), dict(k.lg))
    if P["TOUCH"]:
        k(f"s_cmp_lt_u32 s2, {P['TOUCH']}"); k("s_cbranch_scc1 NOTOUCH")
        k(f"s_lshl_b32 s92, s{sW}, 20"); k(f"s_and_b32 s93, s92, 0x100000")
        k.auto = False
        for base in (44, 40, 42, 46): k(f"s_load_dword s81, s[{base}:{base+1}], s92")
        for base in (84, 86, 88, 90): k(f"s_load_dword s81, s[{base}:{base+1}], s93")
        for i in range(8):
            k(f"s_load_dword s81, s[70:71], s92"); k("s_add_u32 s92, s92, 0x400000")
        k.auto = True
        k.label("NOTOUCH")
        k.sgpr = max(k.sgpr, 94)
    put(k, xl)
    s_b = dict(k.vm)
    k("s_branch PJOIN")
    k.label("PLOAD")
    k.vm = dict(s_a[0])
    gemv_loads()
    k.label("PJOIN")
    k.vm = k._merge(k.vm, s_b)
    k(f"s_lshl_b32 s{sW256}, s{sW}, 8"); k(f"s_lshl_b32 s{sW2K}, s{sW}, 11")
    k(f"v_lshrrev_b32 v{ROWL}, 4, v{LN_}")
    k(f"v_and_b32 v{r_}, 15, v{LN_}"); k(f"v_lshlrev_b32 v{GR16}, 2, v{ROWL}"); k(f"v_xor_b32 v{GR16}, v{GR16}, v{r_}")
    k(f"v_lshlrev_b32 v{GR16}, 4, v{GR16}")
    def w_voffs(psh, scol):
        return [f"v_lshl_add_u32 v{VDW}, v{ROWL}, {psh}, v{GR16}", f"v_add_u32 v{VDW}, s{scol}, v{VDW}"] + \
               [f"v_add_u32 v{VDW+n}, {n*((4<<psh)-1024)}, v{VDW}" for n in range(1, 4)]
    k(f"s_lshl_b32 s{sT0}, s{sG}, 10"); k(f"s_add_u32 s{sT0}, s{sT0}, s{sW256}")
    put(k, w_voffs(13, sT0))
    k(f"s_lshl_b32 s{sRING}, s{sW}, 14"); k(f"s_add_u32 s{sRING}, s{sRING}, {L_W}")
    for p in range(8):
        k(f"s_add_u32 s{TAB+p}, s{sR8}, {p}"); k(f"s_and_b32 s{TAB+p}, s{TAB+p}, 7"); k(f"s_lshl_b32 s{TAB+p}, s{TAB+p}, 17")
    k(f"s_lshl_b32 s{sKhi}, s{sCC}, 20")
    k.srd(8, 44, 512 * 8192)
    def w_dma(step, which):
        slot = step % 4
        if which == "Q":
            srd = 8
            pre = [f"s_add_u32 s{sT0}, s{sKhi}, s{TAB+step%8}"]
            adv = [[f"s_add_u32 s{sKhi}, s{sKhi}, 0x100000", f"s_and_b32 s{sKhi}, s{sKhi}, 0x3fffff"]] if step % 8 == 7 else []
        else:
            srd = 20
            pre = [f"s_add_u32 s{sT0}, s{TAB+step%8}, {(2*(step//8))<<14}"]
            adv = []
        o = [pre + [f"s_add_u32 m0, s{sRING}, {4096*slot}"]] + adv + [f"buffer_load_dwordx4 v{VDW}, s[{srd}:{srd+3}], s{sT0} offen lds"]
        for n in range(1, 4):
            o.append(L(lambda n=n: k(f"buffer_load_dwordx4 v{VDW+n}, s[{srd}:{srd+3}], s{sT0} offen offset:{1024*n} lds", token=f"W{slot}"), 10, "v"))
        return o
    k(f"v_lshrrev_b32 v{r_}, 1, v{CGL}"); k(f"v_subrev_u32 v{r_}, s{sR8}, v{r_}")
    k(f"v_and_b32 v{c2}, 1, v{CGL}"); k(f"v_and_b32 v{gn}, 1, v{r_}"); k(f"v_lshl_add_u32 v{gn}, v{gn}, 1, v{c2}"); k(f"v_lshlrev_b32 v{gn}, 1, v{gn}")
    k(f"v_xor_b32 v{gn}, v{gn}, v{RR}")
    k(f"v_lshlrev_b32 v{c2}, 9, v{c2}"); k(f"v_lshl_add_u32 v{c2}, v{gn}, 4, v{c2}")
    k(f"s_sub_u32 s{sT1}, s{sW}, s{sCC}"); k(f"s_and_b32 s{sT1}, s{sT1}, 3"); k(f"s_lshl_b32 s{sT1}, s{sT1}, 13")
    k(f"s_add_u32 s{sT1}, s{sT1}, {L_H}"); k(f"v_add_u32 v{c2}, s{sT1}, v{c2}")
    for cb in range(2):
        k(f"v_add_u32 v{gn}, {4*cb}, v{r_}"); k(f"v_and_b32 v{gn}, 7, v{gn}"); k(f"v_lshl_add_u32 v{HW+cb}, v{gn}, 10, v{c2}")
    k(f"s_lshl_b32 s{sT2}, s{sW}, 10"); k(f"v_lshlrev_b32 v{VM}, 5, v{CGL}"); k(f"v_add_u32 v{VM}, s{sT2}, v{VM}")
    k(f"v_lshrrev_b32 v{UT+4}, 2, v{LN_}"); k(f"v_lshlrev_b32 v{UT+4}, 6, v{UT+4}"); k(f"v_add_u32 v{UT+4}, s{sT2}, v{UT+4}")
    k(f"v_lshlrev_b32 v{UT+5}, 6, v{RR}"); k(f"v_lshl_add_u32 v{UT+7}, s{sW}, 9, v{UT+5}"); k(f"v_lshl_add_u32 v{UT+5}, v{CGL}, 3, v{UT+5}")
    k(f"v_lshl_add_u32 v{UT+6}, v{CGL}, 3, v{UT+7}")
    lane_tr_parts(k, LN_, r_, c2, gn, h_, tm)
    k(f"v_lshl_add_u32 v{CH8}, v{gn}, 2, v{c2}"); k(f"v_lshlrev_b32 v{CH8}, 3, v{CH8}")
    k(f"v_lshl_add_u32 v{tm}, v{h_}, 3, v{r_}"); k(f"v_lshl_add_u32 v{tm}, v{tm}, 8, v{CH8}"); k(f"v_add_u32 v{tm}, s{sRING}, v{tm}")
    for a_ in range(4):
        k(f"v_xor_b32 v{tm+1}, {a_}, v{r_}"); k(f"v_lshl_add_u32 v{VW+a_}, v{tm+1}, 6, v{tm}")
    put(k, [f"v_lshl_add_u32 v{tm}, v{h_}, 2, v{r_}", f"v_lshl_add_u32 v{tm}, v{tm}, 8, v{CH8}", f"v_add_u32 v{tm}, {L_V}, v{tm}"])
    for dt in range(4): put(k, [f"v_xor_b32 v{tm+1}, {dt}, v{r_}", f"v_lshl_add_u32 v{VV+dt}, v{tm+1}, 6, v{tm}"])
    put(k, [f"v_and_b32 v{tm}, 31, v{LN_}", f"v_and_b32 v{tm+1}, 15, v{LN_}", f"v_xor_b32 v{tm+1}, v{tm+1}, v{h_}",
            f"v_lshlrev_b32 v{tm}, 8, v{tm}", f"v_lshl_add_u32 v{VK}, v{tm+1}, 4, v{tm}"])
    put(k, [f"v_xor_b32 v{VK+s_}, {s_*32}, v{VK}" for s_ in range(1, 8)])
    put(k, [f"v_mov_b32 v{LS}, 0", f"v_mov_b32 v{LS+1}, 0",
        f"v_lshl_add_u32 v{VDV}, v{ROWL}, 8, v{GR16}", f"s_and_b32 s{sT1}, s{sW}, 1", f"s_lshl_b32 s{sT1}, s{sT1}, 3",
        f"v_or_b32 v{tm}, s{sT1}, v{ROWL}", f"v_and_b32 v{tm+1}, 15, v{LN_}", f"v_xor_b32 v{tm}, v{tm}, v{tm+1}",
        f"v_lshlrev_b32 v{VDK}, 8, v{ROWL}", f"v_lshl_add_u32 v{VDK}, v{tm}, 4, v{VDK}", f"v_xor_b32 v{VDK+1}, 64, v{VDK}",
        f"s_lshl_b32 s{sT1}, s{sG}, 19", f"s_add_u32 s{sT1}, s{sT1}, s{sW2K}", f"s_add_u32 s{sT1}, s{sT1}, {1536*256}",
        f"v_add_u32 v{VDK}, s{sT1}, v{VDK}", f"v_add_u32 v{VDK+1}, s{sT1}, v{VDK+1}", f"v_add_u32 v{VDV}, s{sT1}, v{VDV}",
        f"v_lshlrev_b32 v{tm}, 5, v{h_}", f"v_xor_b32 v{VLIN}, v{tm}, v{VL16}", f"v_add_u32 v{VLIN}, {L_H}, v{VLIN}", f"v_xor_b32 v{VLO}, 64, v{VLIN}",
        f"s_mov_b32 s{sMASK}, 0xffff0000"])
    def nxt(d, s_): return [f"s_add_u32 s{d}, s{s_}, 8192", f"s_and_b32 s{d}, s{d}, 0x1ffff"]
    def kv_dma(which, lds_off, so):
        srd = 12 if which == "K" else 16
        return [f"s_add_u32 m0, s{sW2K}, {lds_off}", f"buffer_load_dwordx4 v{VDK if which=='K' else VDV}, s[{srd}:{srd+3}], s{so} offen lds",
                L(lambda: k(f"buffer_load_dwordx4 v{VDK+1 if which=='K' else VDV}, s[{srd}:{srd+3}], s{so} offen offset:1024 lds", token=which), 10, "v")]
    kinit = [[f"s_lshr_b32 s{sO0}, s{sROT}, 1", f"s_lshl_b32 s{sO0}, s{sO0}, 13"] + nxt(sO1, sO0) + nxt(sO2, sO1)]
    kfirst = [kv_dma("K", L_K + 16384 + 8192, sO0), kv_dma("K", L_K, sO1), kv_dma("K", L_K + 8192, sO2)]
    k.srd(20, 68, 256)
    def gemv_compute(lo, hi, tag, late):
        k(f"s_sub_u32 s{sT0}, s{sSL}, {lo}"); k(f"s_cmp_ge_u32 s{sT0}, {hi-lo}"); k(f"s_cselect_b32 s{sT0}, 1, s{sFB}"); k(f"s_cmp_lg_u32 s{sT0}, 0"); k("s_cbranch_scc1 NOGEMV" + tag)
        st0 = (dict(k.vm), dict(k.lg))
        GW, GC, GA, SC_, U_, AW_, AR_ = (160, 176, 180, 144, 188, 152, 153) if late else (64, 80, 88, 112, 120, 104, 105)
        if late:
            for i in range(20): k(f"v_accvgpr_read_b32 v{GW+i}, a{224+i}")
            k(f"v_accvgpr_read_b32 v{AW_}, a244")
        D = P.get("DG") == 1 and not late
        if D: stamp(k, "g_in"); k.wait_regs(v(GW, 20)); stamp(k, "g_data")
        k(f"s_mov_b32 s{sT1}, {f32(-LOG2E)}")
        for i in range(4): k(f"v_lshlrev_b32 v{GC+i}, 16, v{GC+i}")
        for i in range(4): k(f"v_mul_f32 v{GA+i}, s{sT1}, v{GC+i}")
        for i in range(4): k(f"v_exp_f32 v{GA+i}, v{GA+i}")
        for i in range(4): k(f"v_add_f32 v{GA+i}, 1.0, v{GA+i}")
        for i in range(4): k(f"v_rcp_f32 v{GA+i}, v{GA+i}")
        for i in range(4): k(f"v_mul_f32 v{GC+i}, v{GC+i}, v{GA+i}")
        for i in range(4): rnd(k, SC_ + 2 * i, GC + i)
        for i in range(4):
            for q in range(4):
                r = GW + 4 * i + q; u = U_ + 2 * (q & 1)
                k(f"v_lshlrev_b32 v{u}, 16, v{r}"); k(f"v_and_b32 v{u+1}, s{sMASK}, v{r}")
                if i == 0: k(f"v_pk_mul_f32 {v(GA+2*q,2)}, {v(u,2)}, {v(SC_+2*i,2)} op_sel_hi:[1,0]")
                else: k(f"v_pk_fma_f32 {v(GA+2*q,2)}, {v(u,2)}, {v(SC_+2*i,2)}, {v(GA+2*q,2)} op_sel_hi:[1,0,1]")
        for md in ("quad_perm:[2,3,0,1]", "row_ror:4", "row_ror:8"):
            for j in range(8): k(f"v_add_f32_dpp v{GA+j}, v{GA+j}, v{GA+j} {md} row_mask:0xf bank_mask:0xf")
        k(f"ds_write_b128 v{AW_}, {v(GA,4)} offset:{L_R}", token="w"); k(f"ds_write_b128 v{AW_}, {v(GA+4,4)} offset:{L_R+16}", token="w")
        k(f"v_lshlrev_b32 v{AR_}, 2, v{LN_}")
        k(f"s_lshr_b32 s{sT0}, s{sSL}, 5"); k(f"s_cmp_eq_u32 s{sT0}, 1"); k(f"s_cselect_b32 s{sT1}, 1.0, 0")
        k(f"s_cmp_eq_u32 s{sT0}, 4"); k(f"s_cselect_b32 s{sT1}, 1.0, s{sT1}")
        k(f"s_cmp_lt_u32 s{sT0}, 2"); k(f"s_cselect_b32 s{sT2}, {f32(QS)}, 1.0")
        if P["GS"] and late:
            k(f"s_cmp_ge_u32 s{sT0}, 3"); k(f"s_cselect_b32 s{sT2}, {f32(GSC)}, s{sT2}")
            k(f"s_cmp_eq_u32 s{sT0}, 5"); k(f"s_cselect_b32 s{sT2}, {f32(1/GSC**2)}, s{sT2}")
        k(f"s_lshl_b32 s{sT0}, s{sSL}, 6")
        k.wait("w"); k("s_barrier")
        k(f"s_cmp_lg_u32 s{sW}, 3"); k("s_cbranch_scc1 " + ("NOGEMV" + tag if late else "PWAIT"))
        for i in range(4): k(f"ds_read_b32 v{GA+i}, v{AR_} offset:{L_R+256*i}")
        k(f"v_add_f32 v{GA}, v{GA}, v{GA+1}"); k(f"v_add_f32 v{GA+2}, v{GA+2}, v{GA+3}"); k(f"v_add_f32 v{GA}, v{GA}, v{GA+2}")
        k(f"v_mov_b32 v{GA+1}, v{GA}"); k(f"v_permlane16_swap_b32 v{GA}, v{GA+1}"); k(f"v_add_f32 v{GA}, v{GA}, v{GA+1}")
        k(f"v_mov_b32 v{GA+1}, v{GA}"); k(f"v_permlane32_swap_b32 v{GA}, v{GA+1}"); k(f"v_add_f32 v{GA}, v{GA}, v{GA+1}")
        rnd(k, GA, GA)
        k(f"v_add_f32 v{GA}, s{sT1}, v{GA}"); k(f"v_mul_f32 v{GA}, s{sT2}, v{GA}")
        if D: stamp(k, "g_red")
        k("s_mov_b64 exec, 0xffff")
        if not late:
            k("v_not_b32 v110, v110"); k(f"v_bfi_b32 v{GA}, 1, v110, v{GA}")
            k(f"buffer_store_dword v{GA}, v109, s[24:27], s{sE1} offen sc1")
            k("s_mov_b64 exec, -1")
            k.label("PWAIT")
            k("s_barrier")
            k.vm = {}
            put(k, xl)
            st0 = (k._merge(st0[0], k.vm), None)
        else:
            k(f"buffer_store_dword v{GA}, v{AR_}, s[24:27], s{sT0} offen sc1")
            k("s_mov_b64 exec, -1")
        k.label("NOGEMV" + tag)
        k.vm, k.lg = dict(st0[0]), {}
        k.smem_pending = late
    gemv_compute(0, 64, "A", False)
    stamp(k, "gemv")
    if P["WARM"] == 1: warm(k, sW)
    k("s_mov_b32 s3, 0x3f803f80")
    k(f"s_load_dwordx4 s[64:67], s[0:1], {A_WG}"); k(f"s_load_dwordx2 s[4:5], s[0:1], {A_WD}")
    ASET = {"Q": [AF, AF + 16], "O": [AF, AF + 16]}
    def aset(which, step): return ASET[which][step % len(ASET[which])]
    def a_reads(step, which="O"):
        slot = step % 4; b_ = aset(which, step)
        rd = [f"ds_read_b64_tr_b16 {a(b_+4*a_+2*u,2)}, v{VW+a_} offset:{4096*slot+1024*u}" for a_ in range(4) for u in range(2)]
        return [[L(lambda: k.wait(f"W{slot}")), rd[0]]] + rd[1:]
    N0 = P["N0"]
    if P.get("DG") == 2: stamp(k, "iss"); k.wait_regs(v(0, 16), v(128, 48)); stamp(k, "xarr")
    for i in range(4): k(f"v_accvgpr_write_b32 a{240+i}, v{GC+i}")
    k("v_accvgpr_write_b32 a244, v104")
    for o in range(8):
        if o == 4:
            k.wait_regs(v(XP, 64))
            put(k, [w_dma(s_, "Q") for s_ in range(P["WPRE"])])
            k(f"s_sub_u32 s{sT0}, s{sSL}, 64"); k(f"s_cmp_ge_u32 s{sT0}, 128"); k("s_cbranch_scc1 NOLATE")
            s_c = dict(k.vm)
            gemv_loads(True)
            k.label("NOLATE")
            k.vm = k._merge(k.vm, s_c)
            k.srd(12, 40, 8 * 2048 * 256)
        for j in range(8):
            x = XP + 8 * o + j
            k(f"v_dot2_f32_bf16 v{2*o}, v{x}, s3, {'0' if j == 0 else 'v%d' % (2*o)}")
            k(f"v_dot2_f32_bf16 v{2*o+1}, v{x}, v{x}, {'0' if j == 0 else 'v%d' % (2*o+1)}")
    k("s_nop 2")
    for md in ("quad_perm:[1,0,3,2]", "quad_perm:[2,3,0,1]"):
        for x in range(16): k(f"v_add_f32_dpp v{x}, v{x}, v{x} {md} row_mask:0xf bank_mask:0xf")
    for q in range(4): k(f"ds_write_b128 v{UT+4}, {v(4*q,4)} offset:{L_K+16*q}", token="w")
    k.wait("w"); k("s_barrier")
    for p_ in range(8): k(f"ds_read_b64 {v(16+2*p_,2)}, v{UT+5} offset:{L_K+512*p_}")
    for st in (1, 2, 4):
        for p_ in range(0, 8, 2 * st): k(f"v_pk_add_f32 {v(16+2*p_,2)}, {v(16+2*p_,2)}, {v(16+2*(p_+st),2)}")
    k(f"v_mul_f32 v16, {f32(-1/512)}, v16"); k(f"v_mul_f32 v17, {f32(1/512)}, v17")
    k("v_fma_f32 v17, -v16, v16, v17"); k("v_max_f32 v17, 0, v17"); k(f"v_add_f32 v17, {f32(1e-5)}, v17"); k("v_rsq_f32 v17, v17")
    k("v_mul_f32 v16, v16, v17")
    k(f"ds_write_b64 v{UT+6}, v[16:17] offset:{L_K+4096}")
    for q in range(4): k(f"ds_read_b128 {v(112+4*q,4)}, v{UT+7} offset:{L_K+4096+16*q}")
    k(f"ds_read_b64 {v(STT,2)}, v{UT+7} offset:{L_K+4096+56}")
    for o in range(8):
        st = v(112 + 2 * o, 2) if o < 7 else v(STT, 2)
        for cb in range(2):
            x = XP + 8 * o + 4 * cb; u = 16 * o + 8 * cb
            for q in range(4): k(f"v_lshlrev_b32 v{u+2*q}, 16, v{x+q}"); k(f"v_and_b32 v{u+2*q+1}, s{sMASK}, v{x+q}")
        for q in range(8): k(f"v_pk_fma_f32 {v(16*o+2*q,2)}, {v(16*o+2*q,2)}, {st}, {st} op_sel:[0,1,0] op_sel_hi:[1,1,0]")
    gemv_compute(64, 192, "B", True)
    put(k, kinit)
    stamp(k, "stats")
    if P["WARM"] == 2: warm(k, sW)
    k.wait_all(vm=False)
    k(f"s_lshl_b32 s{sT1}, s{sFB}, 2"); k(f"s_sub_u32 s{sT1}, s{sT1}, s{sFB}")
    k(f"v_mov_b32 v{UT}, 0")
    k(f"s_mov_b32 s{sT2}, 0")
    k.label("POLL")
    k(f"s_add_u32 s{sT1}, s{sT1}, 1")
    k(f"s_and_b32 s{sT0}, s{sT1}, 3"); k("s_cbranch_scc1 POLLR")
    k(f"buffer_load_dword v{UT+1}, v{UT}, s[20:23], 0 offen sc1")
    k(f"v_readfirstlane_b32 s{sT0}, v{UT+1}")
    k(f"s_cmp_ge_u32 s{sT0}, 0x100"); k(f"s_cselect_b32 s{sT2}, 1, 0")
    k(f"s_cmp_gt_u32 s{sT1}, 0x8000"); k(f"s_cselect_b32 s{sT2}, 1, s{sT2}")
    k.label("POLLR")
    k(f"buffer_load_dwordx4 {v(160,4)}, v{MX+4}, s[24:27], s{sE2} offen sc1")
    k(f"v_xor_b32 v{UT+2}, v160, v{MX}")
    for j in range(1, 4): k(f"v_bitop3_b32 v{UT+2}, v{160+j}, v{MX+j}, v{UT+2} bitop3:0x28")
    k(f"v_and_b32 v{UT+2}, 1, v{UT+2}"); k(f"v_cmp_eq_u32 vcc, 0, v{UT+2}"); k("s_cmp_lg_u64 vcc, 0")
    k(f"s_cselect_b32 s{sT2}, s{sT2}, 1")
    k(f"s_cmp_lg_u32 s{sE0}, 0"); k("s_cbranch_scc1 NOARR")
    k("s_mov_b64 exec, 1"); k(f"v_mov_b32 v{UT+3}, 1")
    k(f"buffer_atomic_add v{UT+3}, v{UT}, s[20:23], 0 offen")
    k("s_mov_b64 exec, -1")
    k(f"s_mov_b32 s{sE0}, 1")
    k.label("NOARR")
    k(f"s_cmp_lg_u32 s{sT2}, 0"); k("s_cbranch_scc1 POLLED")
    if P["PFK"]:
        k(f"s_cmp_lg_u32 s{sT1}, 1"); k("s_cbranch_scc1 NOPFK")
        k("s_cmp_lt_u32 s2, 192"); k("s_cbranch_scc1 NOPFK")
        k.srd(64, 42, 8 * 2048 * 256)
        k(f"s_bfe_u32 s{sT0}, s2, 0x30003"); k(f"s_lshl_b32 s{sT0}, s{sT0}, 2"); k(f"s_add_u32 s{sT0}, s{sT0}, s{sW}"); k(f"s_lshl_b32 s{sT0}, s{sT0}, 12")
        k(f"s_and_b32 s3, s2, {NG-1}"); k(f"s_lshl_b32 s3, s3, {19+lg2(G)}"); k(f"s_add_u32 s{sT0}, s{sT0}, s3"); k(f"s_add_u32 s{sT0}, s{sT0}, {1536*256}")
        n = 0
        for gi in range(G):
            for srd in (12, 64)[:P["PFK"]]:
                for j in range(4): k(f"buffer_load_dwordx4 {a(4*n,4)}, v{VL16}, s[{srd}:{srd+3}], s{sT0} offen offset:{1024*j}"); n += 1
            k(f"s_add_u32 s{sT0}, s{sT0}, 0x80000")
        k.label("NOPFK")
    if P["SLEEP"]: k(f"s_sleep {P['SLEEP']}")
    k("s_branch POLL")
    k.label("POLLED")
    if P.get("DG"): stamp(k, "go")
    for j in range(4): k(f"v_and_b32 v{160+j}, -2, v{160+j}")
    k(f"s_lshl_b32 s{sT0}, s{sW}, 10"); k(f"v_add_u32 v{UT+1}, s{sT0}, v{VL16}")
    k(f"ds_write_b128 v{UT+1}, {v(160,4)} offset:{L_M}")
    for cb in range(2):
        for m_ in range(2):
            for q in range(2): k(f"ds_read_b128 {v(128+16*cb+8*m_+4*q,4)}, v{VM} offset:{L_M+512*(1-m_)+256*cb+16*q}")
    stamp(k, "poll")
    k.srd(20, 46, 4096 * 1024)
    put(k, a_reads(0, "Q"))
    for o in range(8):
        for cb in range(2):
            u = 16 * o + 8 * cb; cn = 128 + 16 * cb
            for q in range(4): k(f"v_pk_fma_f32 {v(u+2*q,2)}, {v(u+2*q,2)}, {v(cn+2*q,2)}, {v(cn+8+2*q,2)}")
            for q in range(4): k(f"v_cvt_pk_bf16_f32 v{u+q}, v{u+2*q}, v{u+2*q+1}")
        for cb in range(2): k(f"ds_write_b128 v{HW+cb}, {v(16*o+8*cb,4)} offset:{32768*(o>>2)+128*(o&3)}", token="hw")
    put(k, [w_dma(s_, "Q") for s_ in range(P["WPRE"], 4)])
    fr = lambda f: FR + 4 * (f % 8)
    def rdK(f, s_, off): return [f"ds_read_b128 {a(fr(f),4)}, v{VK+s_} offset:{off}"]
    def rdV(f, i, off): return [f"ds_read_b64_tr_b16 {a(fr(f)+2*u,2)}, v{VV+i%4} offset:{off+4096*(i//4)+2048*u}" for u in range(2)]
    def b_reads(step):
        return [f"ds_read_b128 {a(BF+8*(step%2)+4*rt,4)}, v{VLO if step & 1 else VLIN} offset:{1024*step+32768*rt}" for rt in range(2)]
    k.wait("hw"); k("s_barrier")
    stamp(k, "mod")
    for _ in range(P.get("DLY0", 0)): k("s_sleep 38")
    put(k, b_reads(0))
    def g_mfma(which, st):
        return [f"v_mfma_f32_32x32x16_bf16 {v(ACC+32*a_+16*rt,16)}, {a(aset(which,st)+4*a_,4)}, {a(BF+8*(st%2)+4*rt,4)}, {'0' if st == 0 else v(ACC+32*a_+16*rt,16)}"
                for a_ in range(4) for rt in range(2)]
    class Off:
        def __init__(s_, sc, o): s_.sc, s_.o = sc, o
        def pin(s_, g, x, end=False): s_.sc.pin(g + s_.o, x, end)
        def add(s_, ops, g0, g1, prio=0): s_.sc.add(ops, g0 + s_.o, g1 + s_.o, prio)
    def gemm(which, extra, nr, nd):
        sc = Sched(256)
        mf = []
        for st in range(32):
            if st + 1 < 32:
                sc.add(b_reads(st + 1), 8 * st + (1 if st % 8 == 7 else 0), 8 * st + 4, prio=1)
                sc.pin(8 * st + 7, L(lambda st=st: k.wait_regs(a(aset(which, st + 1), 16), a(BF + 8 * ((st + 1) % 2), 8))), end=True)
            mf += g_mfma(which, st)
        R = len(ASET[which])
        g0 = 0
        td = {}
        first = [j for j in range(nd, min(nr + 4, 32))]
        pd = 8
        for i, j in enumerate(first):
            sc.add(w_dma(j, which), pd * i, pd * (i + 1)); td[j] = pd * (i + 1)
        tstart = max(pd * len(first) - (pd if first else 0), 8 * (nr - R + 1), 0)
        if first and nr in td: tstart = max(tstart, td[nr] + 12)
        nun = 32 - nr
        tr = {j: int(tstart + (j - nr) * (240 - tstart) / (nun - 1)) for j in range(nr, 32)}
        for j in range(nr, 32):
            assert tr[j] >= 8 * (j - R + 1) and tr[j] <= 8 * (j - 1), (j, tr[j])
            sc.add(a_reads(j, which), tr[j], tr[j] + P['QRW'], prio=1)
            if j + 4 < 32 and j + 4 >= nd and j + 4 not in td:
                lo = max(tr[j + 1], max(td.values()) if td else 0); hi = max(tr[j + 2], lo + 6)
                sc.add([L(lambda j=j: k.wait_regs(a(aset(which, j), 16)))] + w_dma(j + 4, which), lo, hi); td[j + 4] = hi
        sc.last_dma = max(td.values())
        for c in range(4): extra(c)(Off(sc, 64 * c), sc.last_dma - 192)
        i0 = len(k.items)
        for g_, (m, f_) in enumerate(zip(mf, sc.run())):
            k(m); put(k, f_)
            if P.get("PADQ") and g_ < P.get("PADQN", 256): k(f"s_nop {P['PADQ']}")
            if g_ % 64 == 63 and g_ < 255: stamp(k, f"q{g_//64}" + ("o" if which == "O" else ""))
            if g_ == 191: i1 = len(k.items)
        X = P.get("DBG" + which, 0)
        if X:
            def keep(it):
                if it.kind in ("label", "raw"): return True
                if X & 1 and it.mn == "s_barrier": return False
                if X & 4 and it.kind in ("valu", "trans"): return False
                if X & 8 and it.kind == "vmem": return False
                if X & 16 and it.mn.startswith("ds_write"): return False
                if X & 32 and it.mn.startswith("ds_read_b128") and it.ops[0].startswith("v"): return False
                return True
            k.items[i0:i1] = [it for it in k.items[i0:i1] if keep(it)]
    def qepi(a_):
        return [f"v_cvt_pk_bf16_f32 v{Q+16*a_+8*(j//4)+4*rt+j%4}, v{ACC+32*a_+16*rt+2*j}, v{ACC+32*a_+16*rt+2*j+1}" for rt in range(2) for j in range(8)]
    def qx(c):
        def f(sc, ld):
            if c == 3:
                sc.pin(0, L(lambda: k.srd(16, 42, 8 * 2048 * 256), 16))
                assert ld <= 40, ld
                vp = [f"buffer_load_dwordx4 {a(192+8*i+4*j,4)}, v{VDV}, s[16:19], s{(sO0, sO1)[i]} offen offset:{1024*j}" for i in range(2) for j in range(2)] if P["VP"] else []
                if P["KPOS"]:
                    kp = [f"buffer_load_dwordx4 {a(208+8*i+4*j,4)}, v{VDK+j}, s[12:15], s{(sO0, sO1, sO2)[i]} offen offset:{1024*j}" for i in range(3) for j in range(2)]
                    sc.add(kp + vp, P["KPOS"], P["KPOS"] + 8); vp = []
                if not P["KEARLY"]: sc.add([x for d in kfirst for x in d] + vp, ld, ld + 12)
                ov = [[f"s_lshl_b32 s{sT0}, s{sG}, 19", f"s_add_u32 s{sT0}, s{sT0}, s{sW256}"],
                      f"v_and_b32 v{VDW+1}, 15, v{LN_}", f"v_lshlrev_b32 v{VDW+2}, 1, v{ROWL}", f"v_xor_b32 v{VDW+1}, v{VDW+1}, v{VDW+2}",
                      f"v_lshlrev_b32 v{VDW}, 10, v{ROWL}", f"v_lshl_add_u32 v{VDW}, v{VDW+1}, 4, v{VDW}", f"v_xor_b32 v{VDW+2}, 128, v{VDW}",
                      f"v_add_u32 v{VDW}, s{sT0}, v{VDW}", f"v_add_u32 v{VDW+2}, s{sT0}, v{VDW+2}",
                      f"v_add_u32 v{VDW+1}, 3072, v{VDW}", f"v_add_u32 v{VDW+3}, {3*3072}, v{VDW+2}", f"v_add_u32 v{VDW+2}, {2*3072}, v{VDW+2}",
                      [f"s_and_b32 s{sR8}, s{sROT}, 30", f"s_lshl_b32 s{sKhi}, s{sR8}, 14"]]
                sc.add(ov, ld + 1, 58)
                NA1 = P["F1R"] // 2; W1_ = 3584 // NA1; assert NA1 == 4
                nA2 = 32 // P["F2R"]; NA2 = 8 // nA2; rows2 = 8 // nA2
                ps = [L(lambda: k.srd(40, 64, 512 * 3584), 16), L(lambda: k.srd(44, 66, 512 * 3584), 16),
                      [f"s_lshr_b32 s66, s2, 3", f"s_lshl_b32 s66, s66, 2", f"s_add_u32 s66, s66, s{sW}"],
                      [f"s_mul_i32 s64, s66, {4*3584}", f"s_and_b32 s3, s2, 3", f"s_lshl_b32 s67, s3, 9"], ["s_add_u32 s64, s64, s67", f"s_mul_i32 s65, s66, {14*1024}"],
                      ["s_lshl_b32 s3, s3, 7", "s_sub_u32 s3, 1536, s3"],
                      [f"s_and_b32 s67, s2, {NA2-1}", f"s_mul_i32 s67, s67, {128*nA2}", "s_add_u32 s65, s65, s67"],
                      [f"s_lshl_b32 s66, s{sROT}, 14", f"s_lshl_b32 s67, s{sG}, 19", "s_add_u32 s66, s66, s67"], [f"s_lshl_b32 s67, s{sW}, {12+lg2(G)}", "s_add_u32 s66, s66, s67"],
                      f"v_min_u32 v{VX}, 55, v{LN_}", f"v_lshlrev_b32 v{VX}, 4, v{VX}", f"v_mad_u32_u24 v{VX}, v{h_}, s3, v{VX}",
                      f"v_lshrrev_b32 v{VX+1}, {lg2(8*nA2)}, v{LN_}", f"v_lshlrev_b32 v{VX+1}, 10, v{VX+1}", f"v_and_b32 v{tm}, {8*nA2-1}, v{LN_}", f"v_lshl_add_u32 v{VX+1}, v{tm}, 4, v{VX+1}"]
                sc.add(ps, 2, 32)
                sc.pin(ld + 1, L(lambda: k.srd(8, 4, 1792 * 1024), 16))
                sc.pin(56, L(lambda: (k.wait("K"), k.wait_all(vm=False), k("s_barrier")), 8))
                sc.add([rdK(f, f, L_K + 16384 + 8192) for f in range(4)], 56, 60, prio=1)
                sc.add(kv_dma("V", L_V, sO0) + kv_dma("V", L_V + 8192, sO1), 57, 62)
                sc.add(qepi(0), 61, 64)
                sc.pin(58, [f"v_add_u32 v{VLIN}, {L_H}, v{VL16}", f"v_add_u32 v{VLO}, {L_H}, v{VL16}"])
        return f
    gemm("Q", qx, 1, 4)
    stamp(k, "qgemm")
    def qk(f, s_, qt, buf, zero):
        d = v(S + 32 * buf + 16 * qt, 16)
        c = d if s_ else ("0" if zero else v(CI + 16 * qt, 16))
        return f"v_mfma_f32_32x32x16_bf16 {d}, {a(fr(f),4)}, {v(Q+8*s_+4*qt,4)}, {c}"
    def pv(f, i, qt, buf, zero=False):
        d = a(O + 32 * (i % 4) + 16 * qt, 16)
        return f"v_mfma_f32_32x32x16_bf16 {d}, {a(fr(f),4)}, {v(S+32*buf+16*qt+8*(i//4),4)}, {'0' if zero else d}"
    def sreg(buf, e): return S + 32 * buf + 16 * ((e >> 3) & 1) + 8 * (e >> 4) + (e & 7)
    def sm(buf, e, addci=False):
        o = []
        if e < 32:
            if addci: o.append(f"v_add_f32 v{sreg(buf,e)}, v{sreg(buf,e)}, v{CI+16*((e>>3)&1)}")
            o.append(f"v_exp_f32 v{sreg(buf,e)}, v{sreg(buf,e)}")
        if e >= 1:
            p = e - 1
            o.append(f"v_add_f32 v{LS+((p>>3)&1)}, v{LS+((p>>3)&1)}, v{sreg(buf,p)}")
            if p & 1:
                o.append(f"v_cvt_pk_bf16_f32 v{sreg(buf,p&~7)+(p&7)//2}, v{sreg(buf,p-1)}, v{sreg(buf,p)}")
        return o
    def wgrp(j): return L(lambda: k.wait_regs(a(FR + 16 * (j % 2), 16)))
    def qk0(epi):
        wgrp(0)()
        for s_ in range(8):
            ep = qepi(s_ // 2 + 1)[8 * (s_ & 1):8 * (s_ & 1) + 8] if epi and s_ < 6 else []
            rd = [rdK(f + 4, f + 4, L_K + 16384 + 8192) if f < 4 else rdK(f + 4, f - 4, L_K) for f in ([2*s_, 2*s_+1] if s_ < 2 else [2*s_-4, 2*s_-3] if 4 <= s_ < 6 else [])]
            k(qk(s_, s_, 0, 0, True)); put(k, rd[:1]); put(k, ep[:4])
            k(qk(s_, s_, 1, 0, True)); put(k, rd[1:]); put(k, ep[4:])
            if s_ % 4 == 3: wgrp(s_ // 4 + 1)()
    qk0(True)
    k(f"s_cmp_lg_u32 s{sFB}, 0"); k("s_cbranch_scc1 FB_MAX")
    k.label("IT0")
    def maxops(buf, dst):
        o = []
        for qt in range(2):
            b = S + 32 * buf + 16 * qt; t = dst + qt
            o.append(f"v_max3_f32 v{t}, v{b}, v{b+1}, v{b+2}")
            for i in range(3, 15, 2): o.append(f"v_max3_f32 v{t}, v{t}, v{b+i}, v{b+i+1}")
            o.append(f"v_max_f32 v{t}, v{t}, v{b+15}")
        return [x for pr in zip(o[:8], o[8:]) for x in pr]
    def xhalf_max(t, t2):
        return [f"v_mov_b32 v{t2}, v{t}", f"v_mov_b32 v{t2+1}, v{t+1}", f"v_permlane32_swap_b32 v{t}, v{t2}", f"v_permlane32_swap_b32 v{t+1}, v{t2+1}",
                f"v_max_f32 v{t}, v{t}, v{t2}", f"v_max_f32 v{t+1}, v{t+1}, v{t2+1}"]
    def flat(x): return [y for z in x for y in z]
    def iteration(par, first=False, last=False, extra=None):
        hb = 16384 * par; nb = 16384 * (1 - par)
        mf = []
        phs = [0, 1, 3] if last else [0, 1, 2, 3]
        n = 16 * len(phs)
        sc = Sched(n)
        frs = []
        for q_, ph in enumerate(phs):
            for g in range(16):
                f = 8 * q_ + g // 2; qt = g & 1; i = g // 2
                if ph == 0: mf.append(qk(f, i, qt, 1, first))
                elif ph == 1: mf.append(pv(f, i, qt, 0, first and i < 4))
                elif ph == 2: mf.append(qk(f, i, qt, 0, False))
                else: mf.append(pv(f, i, qt, 1))
            for i in range(8): frs.append((ph, i))
        ng = len(frs) // 4
        for j in range(1, ng):
            rd = []
            for f in range(4 * j, 4 * j + 4):
                ph, i = frs[f]
                rd += rdK(f, i, hb + 8192 * (ph // 2)) if ph % 2 == 0 else rdV(f, i, hb + 8192 * (ph // 2))
            g0 = 8 * (j - 1)
            if first and j == 2: sc.pin(g0 + 1, L(lambda: (k.wait("V"), k("s_barrier")), 8)); g0 += 1
            sc.add(rd, g0, 8 * (j - 1) + 6, prio=1)
            sc.pin(8 * j - 1, wgrp(j), end=True)
        dm = [nxt(sO1, sO2), kv_dma("V", L_V + nb, sO2), kv_dma("K", L_K + nb, sO1), kv_dma("V", L_V + nb + 8192, sO1), nxt(sO2, sO1), kv_dma("K", L_K + nb + 8192, sO2)]
        dm = [dm[0]] + dm[1] + dm[2] + dm[3] + [dm[4]] + dm[5]
        if first:
            sc.add(dm, 24, 44)
            mx = maxops(0, MX) + xhalf_max(MX, MX + 2)
            mx += [[f"s_cmp_lg_u32 s{sFB}, 0", "s_cselect_b64 vcc, -1, 0"]]
            mx += [f"v_sub_f32 v{CI+16*qt}, {f32(-float(P['BIAS']))}, v{MX+qt}" for qt in range(2)]
            mx += [f"v_cndmask_b32 v{CI+16*qt}, v{CI+16*qt}, v{MX+4+qt}, vcc" for qt in range(2)]
            sc.add(mx + flat(sm(0, e, True) for e in range(17)), 1, 16)
            sc.add(flat(sm(0, e, True) for e in range(17, 33)), 16, 23)
            sc.add([f"v_mov_b32 v{CI+16*qt+i}, v{CI+16*qt}" for qt in range(2) for i in range(1, 16)], 23, 31)
            sc.add(flat(sm(1, e, True) for e in range(33)), 23, 54)
            sc.add(flat(sm(0, e) for e in range(12)), 54, 64)
        else:
            for e in range(12, 33): sc.pin(e - 12, sm(0, e))
            if last:
                sc.add(flat(sm(1, e) for e in range(17)), 19, 31)
                sc.add(flat(sm(1, e) for e in range(17, 33)), 31, 39)
            else:
                sc.add(dm, 1, 40)
                for e in range(33): sc.pin(20 + e, sm(1, e))
                for e in range(12): sc.pin(52 + e, sm(0, e))
        if not last:
            sc.pin(56, L(lambda: (k.wait("K", "V"), k("s_barrier")), 8))
            sc.add([rdK(f, f, nb) for f in range(4)], 56, 61, prio=1)
            sc.pin(63, wgrp(0), end=True)
        if extra: extra(sc)
        for m, f_ in zip(mf, sc.run()): k(m); put(k, f_)
    iteration(0, first=True)
    stamp(k, "it0")
    rows2 = 8 // (32 // P["F2R"])
    def xpf(half):
        def f(sc):
            if not P["PF1"]: return
            n = 8 * half
            if half == 0:
                pf = [[f"buffer_load_dwordx4 {a(192+4*(n+j),4)}, v{VL16}, s[20:23], s66 offen offset:{1024*j}"] for j in range((4 * G + 2) // 3)] + [f"s_add_u32 s66, s66, {1024*((4*G+2)//3)}"]
                pf += [[f"buffer_load_dwordx4 {a(192+4*(n+3+j),4)}, v{VX+1}, s[8:11], s65 offen", f"s_add_u32 s65, s65, {1024*rows2}"] for j in range((14 // rows2 + 2) // 3)]
            else:
                pf = [[f"buffer_load_dwordx4 {a(192+4*(n+2*j+m_),4)}, v{VX}, s[{40+4*m_}:{43+4*m_}], s64 offen"] + ([f"s_add_u32 s64, s64, 3584"] if m_ else []) for j in range(2) for m_ in range(2)]
            sc.add(pf, 40, 56)
        return f
    k.loop(sST, 3, lambda: (iteration(1, extra=xpf(0)), iteration(0, extra=xpf(1))), align=3)
    stamp(k, "it1-6")
    OM = MX + 4
    def finalize(dt, qt):
        b = Q + 16 * ((2 * dt + qt) % 4)
        o = [f"v_accvgpr_read_b32 v{b+i}, a{O+32*dt+16*qt+i}" for i in range(16)]
        if dt == 0: o += [f"v_max3_f32 v{OM+qt}, |v{b+i}|, |v{b+i+1}|, v{OM+qt}" for i in range(0, 16, 2)]
        o += [f"v_pk_mul_f32 {v(b+i,2)}, {v(b+i,2)}, {v(RL,2)} op_sel:[0,{qt}] op_sel_hi:[1,{qt}]" for i in range(0, 16, 2)]
        for sp in range(2):
            o += [f"v_cvt_pk_bf16_f32 v{b+8*sp+j}, v{b+8*sp+2*j}, v{b+8*sp+2*j+1}" for j in range(4)]
            o.append(L(lambda sp=sp: k(f"ds_write_b128 v{STT+dt}, {v(b+8*sp,4)} offset:{32768*qt+1024*sp}", token="hw"), 22, "d"))
        return o
    f0 = finalize(0, 0); f1 = finalize(0, 1)
    def o_dma(st):
        slot = st % 6
        o = [f"s_add_u32 m0, s{sRING}, {4096*slot+0x100000-0x100000}" if slot < 4 else f"s_add_u32 m0, s31, {L_K+16384*(slot-4)}",
             f"buffer_load_dwordx4 v{VDW}, s[20:23], s{sKhi} offen lds"]
        for n in range(1, 4):
            o.append(L(lambda n=n: k(f"buffer_load_dwordx4 v{VDW+n}, s[20:23], s{sKhi} offen offset:{1024*n} lds", token=f"W{slot}"), 10, "v"))
        o.append(f"s_add_u32 s{sKhi}, s{sKhi}, 16384")
        if st & 1: o.append(f"s_and_b32 s{sKhi}, s{sKhi}, 0x7ffff")
        return o
    OA = [0, 32]; OB = [160, 176]
    class RS:
        def __init__(s_, two, third): s_.two, s_.third = two, third
        def __call__(s_, u): return s_.third if (u == 15 and P["OTM"]) else s_.two[u % 2]
    OAf = RS([192, 224], 0); OBf = RS([160, 176], 32)
    V16 = VW
    def oa_reads(u, half):
        s0 = 2 * (u % 3)
        rd = [f"ds_read_b64_tr_b16 {a(OAf(u)+8*p+4*e+2*uu,2)}, v{(V16 if s0 < 4 else VV)+p} offset:{(4096*s0 if s0 < 4 else 0)+1024*uu+8*e}" for p in range(2 * half, 2 * half + 2) for e in range(2) for uu in range(2)]
        return [[L(lambda: k.wait(f"W{s0}", f"W{s0+1}")), rd[0]]] + rd[1:]
    def ob_reads(u):
        return [f"ds_read_b128 {a(OBf(u)+4*r4,4)}, v{VLO} offset:{2048*u+32768*(r4>>1)+256*(r4&1)}" for r4 in range(4)]
    def x_last(sc):
        sc.add([f"s_lshl_b32 s31, s{sW}, 12"] + flat(o_dma(s_) for s_ in range(5)), 0, 38)
        sc.add(o_dma(5), 41, 48)
        fin = [f"v_mov_b32 v{MX}, v{LS}", f"v_mov_b32 v{MX+1}, v{LS+1}", f"v_mov_b32 v{OM}, 0", f"v_mov_b32 v{OM+1}, 0",
               f"v_permlane32_swap_b32 v{LS}, v{MX}", f"v_permlane32_swap_b32 v{LS+1}, v{MX+1}",
               f"v_add_f32 v{LS}, v{LS}, v{MX}", f"v_add_f32 v{LS+1}, v{LS+1}, v{MX+1}",
               f"v_rcp_f32 v{RL}, v{LS}", f"v_rcp_f32 v{RL+1}, v{LS+1}", f"v_max_f32 v{MX+6}, v{LS}, v{LS+1}"]
        adr = [[f"s_lshl_b32 s57, s{sW}, 3", f"s_sub_u32 s57, s57, s{sR8}"]]
        for dt in range(4):
            adr += [[f"s_add_u32 s56, s57, {2*dt}", "s_and_b32 s56, s56, 31", "s_lshl_b32 s56, s56, 10"], f"v_add_u32 v{STT+dt}, s56, v{VLIN}"]
        adr += [f"v_lshl_add_u32 v{tm}, v{ROWL}, 3, v{r_}", f"v_lshlrev_b32 v{tm}, 8, v{tm}", f"v_and_b32 v{tm+1}, 1, v{LN_}", f"v_lshl_add_u32 v{tm}, v{tm+1}, 4, v{tm}",
                f"v_add_u32 v{tm}, s{sRING}, v{tm}", f"v_lshl_add_u32 v{tm+1}, v{gn}, 2, v{r_}", f"v_bfe_u32 v{tm+2}, v{LN_}, 1, 1", f"v_xor_b32 v{tm+1}, v{tm+1}, v{tm+2}",
                f"v_lshl_add_u32 v{V16}, v{tm+1}, 5, v{tm}"] + [f"v_xor_b32 v{V16+p}, {64*p}, v{V16}" for p in range(1, 4)]
        adr += [f"v_and_b32 v{tm+1}, 15, v{LN_}", f"v_lshlrev_b32 v{tm+1}, 4, v{tm+1}", f"v_lshl_add_u32 v{HW}, v{ROWL}, 9, v{tm+1}", f"v_add_u32 v{VLO}, {L_H}, v{HW}"]
        sc.add(adr, 0, 19)
        sc.add(fin, 39, 43)
        sc.pin(40, L(lambda: k("s_barrier")))
        sc.add(oa_reads(0, 0), 40, 46, prio=1)
        sc.add(f0[:16] + f1[:12], 43, 48)
    iteration(1, last=True, extra=x_last)
    stamp(k, "it7")
    k(f"s_load_dwordx2 s[46:47], s[0:1], {A_X}")
    k(f"s_load_dwordx2 s[48:49], s[0:1], {A_OUT}")
    put(k, oa_reads(0, 1))
    k(f"s_sub_u32 s3, s31, s{sRING}"); k(f"v_mul_u32_u24 v{tm}, 12288, v{h_}"); k(f"v_add_u32 v{tm}, s3, v{tm}")
    for p in range(4): k(f"v_add_u32 v{VV+p}, v{V16+p}, v{tm}")
    put(k, f0[16:] + f1[12:])
    for dt in range(1, 4):
        for qt in range(2): put(k, finalize(dt, qt))
    k.wait_all(vm=False); k("s_barrier")
    put(k, ob_reads(0))
    stamp(k, "owrite")
    sc = Sched(512, budget=P['OBUD']); mf = []
    def omf(u, t_, r4):
        d = v(ACC + 32 * (t_ // 2) + 8 * r4 + 4 * (t_ % 2), 4)
        return f"v_mfma_f32_16x16x32_bf16 {d}, {a(OAf(u)+4*t_,4)}, {a(OBf(u)+4*r4,4)}, {'0' if u == 0 else d}"
    TM = P["OTM"]
    for u in range(16):
        g0 = 32 * u
        if TM and u == 14:
            sc.add(ob_reads(15) + oa_reads(15, 0), g0 - 10, g0 + 4, prio=1); sc.add(oa_reads(15, 1), g0 + 4, g0 + 16, prio=1)
        elif u + 1 < 16:
            sc.add(ob_reads(u + 1) + oa_reads(u + 1, 0) + oa_reads(u + 1, 1), g0 + P["ORD0"], g0 + (22 if TM and u == 13 else 28), prio=1)
            sc.pin(g0 + 31, L(lambda u=u: k.wait_regs(a(OAf(u + 1), 32), a(OBf(u + 1), 16))), end=True)
        if u + 3 < 16: sc.add(o_dma(2 * u + 6) + o_dma(2 * u + 7), g0, g0 + P["ODE"])
        if TM and u >= 14: continue
        mf += [omf(u, t_, r4) for t_ in range(8) for r4 in range(4)]
    if TM: mf += [omf(u, 2 * p + e, r4) for p in range(4) for u in (14, 15) for e in range(2) for r4 in range(4)]
    def pst(p):
        o = []
        for r4 in range(4):
            if r4 % 2 == 0: o.append(f"s_add_u32 s{sT1}, s{sT2}, {32768*(r4>>1) + 2048*p}")
            b = ACC + 32 * p + 8 * r4
            o += [f"v_cvt_pk_bf16_f32 v{b+j}, v{b+2*j}, v{b+2*j+1}" for j in range(4)]
            o.append(L(lambda b=b, r4=r4: k(f"buffer_store_dwordx4 {v(b,4)}, v{HW}, s[24:27], s{sT1} offen offset:{256*(r4&1)} sc1", token="PST"), 10, "v"))
        return o
    chk = [[f"v_cmp_nlt_f32 vcc, |v{ACC+8*r4}|, v{MX+3}", "s_or_b64 s[62:63], s[62:63], vcc"] + ([f"s_cselect_b32 s3, 1, 0", f"v_mov_b32 v{MX}, s3"] if r4 == 3 else []) for r4 in range(4)]
    if TM:
        sc.add(chk + pst(0), 448 + 18, 448 + 34); sc.add(pst(1), 448 + 34, 448 + 50); sc.add(pst(2), 448 + 50, 512)
    misc = [f"v_min_f32 v{OM}, v{OM}, v{OM+1}", f"v_cmp_ngt_f32 vcc, {f32(2.0**120)}, v{MX+6}", "s_mov_b64 s[62:63], vcc",
            f"v_cmp_gt_f32 vcc, {f32(2.0**-108 if not P['FORCE_FB'] else 2.0**100)}, v{OM}", "s_or_b64 s[62:63], s[62:63], vcc",
            f"v_mov_b32 v{MX+1}, s{sRING}", f"v_and_b32 v{MX+7}, 3, v{LN_}", f"v_lshlrev_b32 v{MX+7}, 14, v{MX+7}", f"v_add_u32 v{MX+7}, {L_W}, v{MX+7}", f"v_mov_b32 v{MX+2}, 0", f"v_mov_b32 v{MX+3}, 0x7f800000",
            f"s_lshl_b32 s{sT2}, s{sG}, 21", f"s_lshl_b32 s{sT1}, s{sRB}, 16", f"s_add_u32 s{sT2}, s{sT2}, s{sT1}",
            f"s_lshl_b32 s{sT1}, s{sW}, 13", f"s_add_u32 s{sT2}, s{sT2}, s{sT1}", f"s_add_u32 s{sT2}, s{sT2}, {WS_P:#x}",
            "s_mov_b32 s12, s46", "s_and_b32 s13, s47, 0xffff", "s_mov_b32 s14, 0x200000", "s_mov_b32 s15, 0x20000",
            "s_mov_b32 s16, s68", "s_and_b32 s17, s69, 0xffff", "s_mov_b32 s18, 0x100", "s_mov_b32 s19, 0x20000",
            f"s_lshl_b32 s5, s{sRB}, 3", f"s_add_u32 s5, s5, s{sG}", "s_lshl_b32 s5, s5, 13",
            f"v_and_b32 v{tm}, 7, v{LN_}", f"v_lshrrev_b32 v{tm+1}, 3, v{LN_}", f"v_lshl_add_u32 v{tm+1}, s{sW}, 4, v{tm+1}",
            f"v_lshlrev_b32 v{VK}, 10, v{tm}", f"v_lshl_add_u32 v{VK}, v{tm+1}, 4, v{VK}", f"v_lshlrev_b32 v{VK+1}, 5, v{tm+1}",
            f"buffer_load_dword v{VK+2}, v{MX+2}, s[16:19], 0 offen sc1"]
    sc.add(misc, 8, 260)
    def cspin():
        k("s_mov_b32 s3, 0"); k("s_branch CCHK"); st = dict(k.vm)
        k.label("CPOLL")
        k(f"buffer_load_dword v{VK+2}, v{MX+2}, s[16:19], 0 offen sc1"); k.wait_all(lg=False)
        k.label("CCHK"); k.vm = st
        k("s_add_u32 s3, s3, 1"); k(f"v_cmp_gt_u32 vcc, 0x100, v{VK+2}")
        k("s_cmp_gt_u32 s3, 0x8000"); k("s_cbranch_scc1 CDONE"); k("s_cbranch_vccnz CPOLL")
        k.label("CDONE")
    sc.pin(417, L(cspin, 24))
    xm = [f"buffer_load_dwordx4 {v(128+4*i,4)}, v{VK}, s[12:15], s5 offen offset:{128*i}" for i in range(2)]
    for base, m_ in ((136, 2), (152, 4), (168, 3)):
        xm += [f"s_mov_b32 s4, {WS_MOD + m_*2048}"] + [f"buffer_load_dwordx4 {v(base+8*i+4*hh,4)}, v{VK+1}, s[24:27], s4 offen offset:{256*i+16*hh} sc1" for i in range(2) for hh in range(2)]
    sc.add(xm, 419, 462 if TM else 490)
    for m, f_ in zip(mf, sc.run()): k(m); put(k, f_)
    stamp(k, "ogemm")
    if not TM: put(k, chk)
    k(f"ds_write_b32 v{MX+1}, v{MX}", token="fl")
    for p in range(3 if TM else 0, 4):
        put(k, pst(p))
        if p == (3 if TM else 0): k.wait("fl"); k("s_barrier"); k(f"ds_read_b32 v{STT}, v{MX+7}")
    k(f"v_cmp_lt_u32 vcc, s{sFB}, v{STT}")
    k("s_cbranch_vccnz FALLBACK")
    tail(sys.modules[__name__], k)
    stamp_flush(k, 0)
    k.label("END_attn"); k("s_endpgm")
    k.label("FALLBACK")
    k.wait_all(); k("s_barrier")
    k(f"s_mov_b32 s{sFB}, 1")
    k("s_nop 15")
    k("s_branch RESTART")
    k.label("FB_MAX")
    k.wait_all(); k("s_barrier")
    k(f"v_mov_b32 v{MX+4}, 0xff800000"); k(f"v_mov_b32 v{MX+5}, 0xff800000")
    def fbody():
        put(k, kv_dma("K", L_K, sO0) + nxt(sO0, sO0)); k.wait("K"); k("s_barrier")
        for s_ in range(8): put(k, rdK(s_, s_, L_K))
        for s_ in range(8):
            for qt in range(2): k(qk(s_, s_, qt, 0, True))
        put(k, maxops(0, MX))
        k(f"v_max_f32 v{MX+4}, v{MX+4}, v{MX}"); k(f"v_max_f32 v{MX+5}, v{MX+5}, v{MX+1}")
        k("s_barrier")
    k.loop(sST, 16, fbody)
    put(k, xhalf_max(MX + 4, MX + 2))
    for qt in range(2): k(f"v_sub_f32 v{MX+4+qt}, 0, v{MX+4+qt}")
    put(k, kfirst)
    k.wait_all(); k("s_barrier")
    for f in range(4): put(k, rdK(f, f, L_K + 16384 + 8192))
    qk0(False)
    k.wait_all()
    k("s_branch IT0")
    return k

from gen33_tail import tail

HEADER = open('adaLN_cond__sliding_block_cached__geglu_ffn__prompt.s.ref').read().split("; Override launch")[0]

DOC = """; One persistent kernel, 256 workgroups x 4 waves (one workgroup per CU), phases chained by in-launch hand-offs:
;    restarts with the exact row maximum (labels FALLBACK / FB_MAX)
"""

if __name__ == "__main__":
    out = sys.argv[1] if len(sys.argv) > 1 else "k.s"
    me = sys.modules[__name__]
    ks = [gen_attn()]
    ks[-1].label("CODE_END")
    txt = emit(ks, header=HEADER)
    txt = txt.replace('.amdgcn_target', DOC + '.amdgcn_target', 1)
    if P.get("SINGLE"): txt = txt.replace("; @launch kernel=" + KNAME + " ", "; @launch ")
    open(out, "w").write(txt)
    json.dump([[k.name, k.grid, k.block//64, k.stamps] for k in ks], open(out[:-2]+".json","w"))
    for k in ks: print(k.name, "regs(v,a,s)", k.used, "nops", k.n_nops, "misal", k.n_mis, "instrs", len(k.items))
```
